```python
import torch

def _softmax(x, axis=-1):
    return torch.softmax(x, dim=axis)
def _gelu(x):
    return torch.nn.functional.gelu(x, approximate="tanh")
def _silu(x):
    return torch.nn.functional.silu(x)
def _sigmoid(x):
    return torch.sigmoid(x)
def _layernorm(x, axis=-1, eps=1e-5):
    m = x.mean(dim=axis, keepdim=True)
    v = x.var(dim=axis, keepdim=True, unbiased=False)
    return (x - m) / torch.sqrt(v + eps)
def _scatter_add(tgt, idx, src, axis=0):
    return tgt.clone().index_add_(axis, idx, src)
def _segment_sum(src, seg, n):
    out = torch.zeros((n,) + src.shape[1:], dtype=src.dtype)
    return out.index_add_(0, seg, src)
def _pad(x, pw):
    flat = tuple(v for pair in reversed(pw) for v in pair)
    return torch.nn.functional.pad(x, flat)

kernel_name = 'concat_heads__grouped_kv_mqa__ssm_conv_s5__prompt'

def setup_inputs():

    _w = (lambda a: (lambda t: t.to(torch.bfloat16) if t.is_floating_point() else t)(torch.as_tensor(a)))
    def _A_setup():
        B, S, D, H = 1, 2048, 512, 32
        Dh = D // H
        return {
            "x": _w((lambda *s: torch.randn(*s, dtype=torch.bfloat16) * 0.05)(B, S, D)),
            "wq": _w((lambda *s: torch.randn(*s, dtype=torch.bfloat16) * 0.8)(D, H * Dh)),
            "wk": _w((lambda *s: torch.randn(*s, dtype=torch.bfloat16) * 0.8)(D, Dh)),
            "wv": _w((lambda *s: torch.randn(*s, dtype=torch.bfloat16) * 0.05)(D, Dh)),
            "wo": _w((lambda *s: torch.randn(*s, dtype=torch.bfloat16) * 0.05)(H * Dh, D)),
        }
    _A_in = _A_setup()

    def _B_setup():
        B, S, D = 1, 2048, 512
        P = D
        Lambda_re = -0.5 * (lambda _x: torch.exp(torch.as_tensor(_x)))((lambda *s: torch.randn(*s, dtype=torch.bfloat16) * 0.2)(P))
        Lambda_im = (lambda *s: torch.randn(*s, dtype=torch.bfloat16) * 0.4)(P) * 1.0
        B_re = (lambda *s: torch.randn(*s, dtype=torch.bfloat16) * 0.2)(P, D) * (D ** -0.5)
        B_im = (lambda *s: torch.randn(*s, dtype=torch.bfloat16) * 0.2)(P, D) * (D ** -0.5)
        C_re = (lambda *s: torch.randn(*s, dtype=torch.bfloat16) * 0.2)(D, P) * (P ** -0.5)
        C_im = (lambda *s: torch.randn(*s, dtype=torch.bfloat16) * 0.2)(D, P) * (P ** -0.5)
        log_dt = (lambda *s: torch.randn(*s, dtype=torch.bfloat16) * 0.2)(P) * 0.3 - 2.0
        Dskip = (lambda *s: torch.randn(*s, dtype=torch.bfloat16) * 0.05)(D)
        return {
            "x": _w((lambda *s: torch.randn(*s, dtype=torch.bfloat16) * 0.05)(B, S, D)),
            "Lambda_re": _w(Lambda_re),
            "Lambda_im": _w(Lambda_im),
            "B_re": _w(B_re),
            "B_im": _w(B_im),
            "C_re": _w(C_re),
            "C_im": _w(C_im),
            "log_dt": _w(log_dt),
            "Dskip": _w(Dskip),
        }
    _B_in = _B_setup()

    return {
        "A_x": _A_in["x"],
        "A_wq": _A_in["wq"],
        "A_wk": _A_in["wk"],
        "A_wv": _A_in["wv"],
        "A_wo": _A_in["wo"],
        "B_x": _B_in["x"],
        "B_Lambda_re": _B_in["Lambda_re"],
        "B_Lambda_im": _B_in["Lambda_im"],
        "B_B_re": _B_in["B_re"],
        "B_B_im": _B_in["B_im"],
        "B_C_re": _B_in["C_re"],
        "B_C_im": _B_in["C_im"],
        "B_log_dt": _B_in["log_dt"],
        "B_Dskip": _B_in["Dskip"],
    }

def reference(A_x, A_wq, A_wk, A_wv, A_wo, B_x, B_Lambda_re, B_Lambda_im, B_B_re, B_B_im, B_C_re, B_C_im, B_log_dt, B_Dskip):
    def _A_ref(x, wq, wk, wv, wo):
        B, S, D = x.shape
        H = 32
        Dh = D // H
        q = (lambda x, *d: x.permute(*d))((x @ wq).reshape(B, S, H, Dh), 0, 2, 1, 3)
        k = x @ wk
        v = x @ wv
        scores = torch.einsum("bhqd,bkd->bhqk", q, k) * (Dh ** -0.5)
        p = _softmax(scores, axis=-1)
        o = torch.einsum("bhqk,bkd->bhqd", p, v)
        return (lambda x, *d: x.permute(*d))(o, 0, 2, 1, 3).reshape(B, S, H * Dh) @ wo

    def _B_ref(x, Lambda_re, Lambda_im, B_re, B_im, C_re, C_im, log_dt, Dskip):
        Bsz, L, H = x.shape
        Lam = Lambda_re + 1j * Lambda_im
        Bmat = B_re + 1j * B_im
        Cmat = C_re + 1j * C_im
        dt = torch.exp(log_dt)
        Lam_bar = torch.exp(dt * Lam)
        B_bar = ((Lam_bar - 1.0) / Lam)[:, None] * Bmat
        Bu = torch.einsum("bld,pd->blp", x + 0j, B_bar)
        h = torch.zeros_like(Bu[:, 0, :])
        hs = []
        for t in range(L):
            h = Lam_bar[None, :] * h + Bu[:, t, :]
            hs.append(h)
        hseq = torch.stack(hs, 1)
        y = 2.0 * torch.einsum("blp,dp->bld", hseq, Cmat).real + x * Dskip[None, None, :]
        return y

    a = _A_ref(A_x, A_wq, A_wk, A_wv, A_wo)
    b = _B_ref(B_x, B_Lambda_re, B_Lambda_im, B_B_re, B_B_im, B_C_re, B_C_im, B_log_dt, B_Dskip)
    return torch.concatenate([a, b], axis=-1)
```

```python
import sys, math, struct
NAME = "concat_heads__grouped_kv_mqa__ssm_conv_s5__prompt"
STAMPS = "--stamps" in sys.argv
OUT = [a for a in sys.argv[1:] if not a.startswith("--")][0]

def f32(x): return "0x%08x" % struct.unpack("<I", struct.pack("<f", x))[0]

WS_FKV = 0x1000
WS_FH  = 0x8000
WS_FO  = 0x20000
WS_KV  = 0x40000
WS_ST  = 0x60000
WS_O   = 0x100000
WS_H   = 0x400000
WS_STAMP = 15 << 20
WS_SIZE = 16 << 20
L_XA, L_WQ, L_WKV, L_KVP = 0, 65536, 131072, 147456
L_QF, L_CNT = 151552, 159744
L_PART, L_R1, L_SCR, L_ES = 0, 73728, 140288, 148480
LDS_BYTES = 161280
PSTRIDE = 9216
RSTR = 1040
POLL_LIMIT = 400000

lines = []
def a(s): lines.append("    " + s)
def lab(s): lines.append(s + ":")
def cm(s): lines.append("    ; " + s)
_uid = [0]
def uid(p):
    _uid[0] += 1
    return f"L_{p}{_uid[0]}"
def vr(b, n): return f"v[{b}:{b+n-1}]"
def sr(b, n): return f"s[{b}:{b+n-1}]"

sW, sTAG, sRB, sG, sC, sPB = 3, 4, 5, 6, 7, 8
sT0, sT1, sT2, sT3, sT4, sCNT = 9, 10, 11, 12, 13, 14
sWV = 15
P_AX, P_WQ, P_WK, P_WV, P_WO, P_BX, P_LRE, P_LIM = 16, 18, 20, 22, 24, 26, 28, 30
P_BRE, P_BIM, P_CRE, P_CIM, P_LDT, P_DSK, P_OUT, P_DBG = 32, 34, 36, 38, 40, 42, 44, 46
P_WS = 48
R_WS, R_A, R_B, R_C = 52, 56, 60, 64
sM = 68
sGRP, sKIND = 70, 71
sSTEP = 72
sSYNC = 73
sST = 76

def srd(dst, ptr, nbytes):
    a(f"s_mov_b32 s{dst}, s{ptr}")
    a(f"s_and_b32 s{dst+1}, s{ptr+1}, 0xffff")
    a(f"s_mov_b32 s{dst+2}, {nbytes}")
    a(f"s_mov_b32 s{dst+3}, 0x20000")

def stamp(i):
    if STAMPS:
        a(f"s_memrealtime s[{sST}:{sST+1}]")
        a("s_waitcnt lgkmcnt(0)")
        a(f"s_mov_b32 s{80+i}, s{sST}")

def dma(voff, srdr, soff, m0=None, imm=0, extra=""):
    if m0 is not None:
        a(f"s_mov_b32 m0, {m0}")
        a("s_nop 0")
    o = f" offset:{imm}" if imm else ""
    a(f"buffer_load_dwordx4 v{voff}, {sr(srdr,4)}, {soff} offen{o} lds{extra}")

def poll(voff, soff, vt):
    L, D = uid("poll"), uid("pdone")
    a(f"s_mov_b32 s{sCNT}, {POLL_LIMIT}")
    lab(L)
    a(f"buffer_load_dword v{vt}, v{voff}, {sr(R_WS,4)}, {soff} offen sc1")
    a("s_waitcnt vmcnt(0)")
    a(f"v_cmp_ne_u32 vcc, s{sTAG}, v{vt}")
    a(f"s_cbranch_vccz {D}")
    a(f"s_sub_u32 s{sCNT}, s{sCNT}, 1")
    a(f"s_cbranch_scc0 {L}")
    lab(D)

def setflag(vt0, vt1, soff_expr_sgpr):
    a(f"v_mov_b32 v{vt0}, 0")
    a(f"v_mov_b32 v{vt1}, s{sTAG}")
    a("s_mov_b64 exec, 1")
    a(f"buffer_store_dword v{vt1}, v{vt0}, {sr(R_WS,4)}, s{soff_expr_sgpr} offen sc1")
    a("s_mov_b64 exec, -1")

def gsync(vcnt, vone, vt):
    L = uid("gs")
    a("s_waitcnt lgkmcnt(0)")
    a(f"s_add_u32 s{sSYNC}, s{sSYNC}, 4")
    a("s_mov_b64 exec, 1")
    a(f"ds_add_u32 v{vcnt}, v{vone}")
    a("s_mov_b64 exec, -1")
    lab(L)
    a(f"ds_read_b32 v{vt}, v{vcnt}")
    a("s_waitcnt lgkmcnt(0)")
    a(f"v_cmp_gt_u32 vcc, s{sSYNC}, v{vt}")
    a(f"s_cbranch_vccnz {L}")

def mfma32(d, x, y, c=None):
    c = vr(d, 16) if c is None else c
    a(f"v_mfma_f32_32x32x16_bf16 {vr(d,16)}, {vr(x,4)}, {vr(y,4)}, {c}")

def cmul_add(dst, L, g, u):
    a(f"v_pk_fma_f32 {vr(dst,2)}, {vr(L,2)}, {vr(g,2)}, {vr(u,2)} op_sel:[0,0,0] op_sel_hi:[0,1,1]")
    a(f"v_pk_fma_f32 {vr(dst,2)}, {vr(L,2)}, {vr(g,2)}, {vr(dst,2)} op_sel:[1,1,0] op_sel_hi:[1,0,1] neg_lo:[1,0,0]")

def csq(dst, src, t):
    a(f"v_mul_f32 v{t}, v{src+1}, v{src+1}")
    a(f"v_add_f32 v{t+1}, v{src}, v{src}")
    a(f"v_fma_f32 v{dst}, v{src}, v{src}, -v{t}")
    a(f"v_mul_f32 v{dst+1}, v{t+1}, v{src+1}")

a("s_cmp_ge_u32 s2, 256")
a("s_cbranch_scc1 L_exit")
if STAMPS:
    for i in range(16): a(f"s_mov_b32 s{80+i}, 0")
    stamp(0)
a(f"s_load_dwordx16 s[16:31], s[0:1], 0")
a(f"s_load_dwordx16 s[32:47], s[0:1], 64")
a(f"s_load_dwordx2 s[48:49], s[0:1], 128")
a("v_lshrrev_b32 v1, 6, v0")
a("v_and_b32 v0, 63, v0")
a(f"v_readfirstlane_b32 s{sW}, v1")
a(f"s_and_b32 s{sT0}, s2, 7")
a(f"s_lshr_b32 s{sT1}, s2, 3")
a(f"s_and_b32 s{sT2}, s{sT1}, 3")
a(f"s_lshl_b32 s{sRB}, s{sT0}, 2")
a(f"s_add_u32 s{sRB}, s{sRB}, s{sT2}")
a(f"s_lshr_b32 s{sG}, s{sT1}, 2")
a(f"s_and_b32 s{sT2}, s{sT1}, 1")
a(f"s_lshl_b32 s{sC}, s{sT0}, 1")
a(f"s_add_u32 s{sC}, s{sC}, s{sT2}")
a(f"s_lshr_b32 s{sPB}, s{sT1}, 1")
a(f"s_and_b32 s{sGRP}, s{sG}, 3")
a(f"s_lshr_b32 s{sKIND}, s{sG}, 2")
a(f"s_and_b32 s{sWV}, s{sW}, 3")
a(f"s_mov_b32 s{sSYNC}, 0")
a(f"s_cmp_ge_u32 s{sW}, 4")
a("s_cbranch_scc1 L_helper")

vIDX, vZ, vAD, vAS, vAQ, vT, vQ = 1, 2, 4, 5, 6, 7, 8
S0, S1, vO, KV = 16, 32, 48, 64
XO = 16
vL16 = 20
cm("A: x voffsets")
a("v_lshrrev_b32 v12, 4, v0")
a("v_and_b32 v13, 15, v0")
for i in range(4):
    a(f"v_add_u32 v14, {4*i}, v12")
    a(f"v_xor_b32 v15, v13, v14")
    a(f"v_lshlrev_b32 v15, 4, v15")
    a(f"v_lshl_add_u32 v{XO+i}, v14, 10, v15")
a(f"v_lshlrev_b32 v{vL16}, 4, v0")
a("s_waitcnt lgkmcnt(0)")
a(f"s_load_dword s{sTAG}, s[{P_WS}:{P_WS+1}], 0")
srd(R_A, P_AX, 2048 * 1024)
a(f"s_cmp_eq_u32 s{sKIND}, 0")
a(f"s_cselect_b32 s{R_B}, s{P_WK}, s{P_WV}")
a(f"s_cselect_b32 s{R_B+1}, s{P_WK+1}, s{P_WV+1}")
a(f"s_and_b32 s{R_B+1}, s{R_B+1}, 0xffff")
a(f"s_mov_b32 s{R_B+2}, 16384")
a(f"s_mov_b32 s{R_B+3}, 0x20000")
cm("KV operands: x rows of group, chunk wv")
a(f"s_lshl_b32 s{sT0}, s{sRB}, 16")
a(f"s_lshl_b32 s{sT1}, s{sGRP}, 14")
a(f"s_add_u32 s{sT0}, s{sT0}, s{sT1}")
a(f"s_lshl_b32 s{sT1}, s{sWV}, 8")
a(f"s_add_u32 s{sT0}, s{sT0}, s{sT1}")
a(f"s_lshl_b32 s{sT2}, s{sWV}, 14")
a(f"s_lshl_b32 s{sT1}, s{sGRP}, 12")
a(f"s_add_u32 s{sT2}, s{sT2}, s{sT1}")
for i in range(4):
    a(f"s_add_u32 m0, s{sT2}, {L_XA + 1024*i}")
    a("s_nop 0")
    dma(XO + i, R_A, f"s{sT0}")
a(f"s_lshl_b32 s{sT3}, s{sWV}, 12")
a(f"s_add_u32 m0, s{sT3}, {L_WKV}")
a("s_nop 0")
for i in range(4):
    dma(vL16, R_B, f"s{sT3}", imm=1024 * i)
cm("waves 1..3: remaining x row groups")
a(f"s_cmp_eq_u32 s{sWV}, 0")
a("s_cbranch_scc1 L_a_noload")
a(f"s_add_u32 s{sT1}, s{sGRP}, s{sWV}")
a(f"s_and_b32 s{sT1}, s{sT1}, 3")
a(f"s_lshl_b32 s{sT0}, s{sRB}, 16")
a(f"s_lshl_b32 s{sT4}, s{sT1}, 14")
a(f"s_add_u32 s{sT0}, s{sT0}, s{sT4}")
a(f"s_lshl_b32 s{sT4}, s{sT1}, 12")
for kc in range(4):
    for i in range(4):
        a(f"s_add_u32 m0, s{sT4}, {L_XA + 16384*kc + 1024*i}")
        a("s_nop 0")
        dma(XO + i, R_A, f"s{sT0}")
    if kc < 3: a(f"s_add_u32 s{sT0}, s{sT0}, 256")
lab("L_a_noload")
srd(R_WS, P_WS, WS_SIZE)
cm("addresses for KV projection")
a("v_xor_b32 v14, v12, v13")
a("v_lshlrev_b32 v14, 4, v14")
a("v_lshl_add_u32 v14, v13, 8, v14")
a(f"v_add_u32 v60, s{sT2}, v14")
for ks in range(1, 4):
    a(f"v_xor_b32 v{60+ks}, {64*ks}, v60")
a("v_lshrrev_b32 v14, 2, v13")
a("v_lshl_add_u32 v14, v12, 3, v14")
a("v_lshlrev_b32 v14, 5, v14")
a("v_and_b32 v15, 3, v0")
a("v_lshl_add_u32 v14, v15, 3, v14")
a(f"v_add_u32 v14, s{sT3}, v14")
a(f"v_add_u32 v14, {L_WKV}, v14")
cm("zero the LDS sync counters")
a(f"v_mov_b32 v{vZ}, 0")
a(f"v_mov_b32 v{vZ+1}, 0")
a(f"v_mov_b32 v15, {L_CNT}")
a(f"ds_write_b64 v15, {vr(vZ,2)}")
a(f"ds_write_b64 v15, {vr(vZ,2)} offset:8")
a(f"s_cmp_eq_u32 s{sWV}, 0")
a("s_cbranch_scc1 L_a_w0")
a("s_waitcnt vmcnt(16)")
a("s_branch L_a_w1")
lab("L_a_w0")
a("s_waitcnt vmcnt(0)")
lab("L_a_w1")
stamp(1)
for ks in range(4):
    a(f"ds_read_b128 {vr(24+4*ks,4)}, v{60+ks}")
    a(f"ds_read_b64_tr_b16 {vr(40+4*ks,2)}, v14 offset:{1024*ks}")
    a(f"ds_read_b64_tr_b16 {vr(42+4*ks,2)}, v14 offset:{1024*ks+128}")
a(f"s_cmp_eq_u32 s{sKIND}, 0")
a("s_cbranch_scc0 L_a_vproj")
a("s_waitcnt lgkmcnt(0)")
for ks in range(4):
    a(f"v_mfma_f32_16x16x32_bf16 v[56:59], {vr(40+4*ks,4)}, {vr(24+4*ks,4)}, {'0' if ks == 0 else 'v[56:59]'}")
a("s_branch L_a_kvdone")
lab("L_a_vproj")
a("s_waitcnt lgkmcnt(0)")
for ks in range(4):
    a(f"v_mfma_f32_16x16x32_bf16 v[56:59], {vr(24+4*ks,4)}, {vr(40+4*ks,4)}, {'0' if ks == 0 else 'v[56:59]'}")
lab("L_a_kvdone")
a(f"s_lshl_b32 s{sT0}, s{sWV}, 10")
a(f"v_add_u32 v15, s{sT0}, v{vL16}")
a(f"v_add_u32 v15, {L_KVP}, v15")
cm("tag = lcg(epoch)")
a(f"s_mul_i32 s{sTAG}, s{sTAG}, 1664525")
a(f"s_add_u32 s{sTAG}, s{sTAG}, 1013904223")
a("s_nop 4")
a(f"ds_write_b128 v15, v[56:59]")
a("s_waitcnt lgkmcnt(0)")
a("s_barrier")
a(f"s_cmp_eq_u32 s{sWV}, 0")
a("s_cbranch_scc0 L_a_nopub")
for i in range(1, 4):
    a(f"ds_read_b128 {vr(20+4*i,4)}, v15 offset:{1024*i}")
cm("store offset")
a(f"s_lshl_b32 s{sT0}, s{sRB}, 2")
a(f"s_add_u32 s{sT0}, s{sT0}, s{sGRP}")
a(f"s_lshr_b32 s{sT1}, s{sT0}, 1")
a(f"s_lshl_b32 s{sT1}, s{sT1}, 11")
a(f"s_and_b32 s{sT2}, s{sT0}, 1")
a("v_and_b32 v40, 1, v12")
a("v_lshrrev_b32 v41, 1, v12")
a("v_lshlrev_b32 v42, 4, v13")
a(f"s_cmp_eq_u32 s{sKIND}, 0")
a("s_cbranch_scc0 L_a_voff")
a("v_lshl_add_u32 v42, v40, 9, v42")
a("v_lshl_add_u32 v42, v41, 3, v42")
a(f"s_lshl_b32 s{sT2}, s{sT2}, 8")
a("s_branch L_a_offd")
lab("L_a_voff")
a("v_lshl_add_u32 v42, v41, 8, v42")
a("v_lshl_add_u32 v42, v40, 3, v42")
a(f"s_lshl_b32 s{sT2}, s{sT2}, 9")
a(f"s_add_u32 s{sT2}, s{sT2}, 1024")
lab("L_a_offd")
a(f"s_add_u32 s{sT1}, s{sT1}, s{sT2}")
a(f"s_add_u32 s{sT1}, s{sT1}, {WS_KV}")
a(f"s_lshl_b32 s{sT0}, s{sT0}, 1")
a(f"s_add_u32 s{sT0}, s{sT0}, s{sKIND}")
a(f"s_lshl_b32 s{sT0}, s{sT0}, 6")
a(f"s_add_u32 s{sT0}, s{sT0}, {WS_FKV}")
a("s_waitcnt lgkmcnt(0)")
a("v_pk_add_f32 v[56:57], v[56:57], v[24:25]")
a("v_pk_add_f32 v[58:59], v[58:59], v[26:27]")
a("v_pk_add_f32 v[28:29], v[28:29], v[32:33]")
a("v_pk_add_f32 v[30:31], v[30:31], v[34:35]")
a("v_pk_add_f32 v[56:57], v[56:57], v[28:29]")
a("v_pk_add_f32 v[58:59], v[58:59], v[30:31]")
a("v_cvt_pk_bf16_f32 v56, v56, v57")
a("v_cvt_pk_bf16_f32 v57, v58, v59")
a(f"buffer_store_dwordx2 v[56:57], v42, {sr(R_WS,4)}, s{sT1} offen sc1")
a("s_waitcnt vmcnt(0)")
setflag(40, 41, sT0)
stamp(2)
lab("L_a_nopub")
a("s_waitcnt vmcnt(8)")
a("s_barrier")
cm("prefill V regs: rows 16 and 20 = ones, other rows >=16 zero")
a("v_and_b32 v12, 27, v0")
a("v_cmp_eq_u32 vcc, 16, v12")
a("v_mov_b32 v13, 0x3f803f80")
a("s_nop 0")
a("v_cndmask_b32 v12, 0, v13, vcc")
a("v_mov_b32 v13, v12")
for t in range(16):
    for j in range(4):
        a(f"v_mov_b64 {vr(KV+12*t+4+2*j,2)}, v[12:13]")
a(f"v_mov_b32 v{vIDX}, 0xdddddddd")
a(f"s_lshl_b32 s{sT0}, s{sWV}, 11")
a(f"v_lshlrev_b32 v{vAQ}, 4, v0")
a(f"v_add_u32 v{vAD}, s{sT0}, v{vAQ}")
a(f"s_lshl_b32 s{sT0}, s{sWV}, 2")
a(f"s_add_u32 s{sT0}, s{sT0}, {L_PART + 8192}")
a(f"v_add_u32 v{vAS}, s{sT0}, v{vAQ}")
a(f"v_mov_b32 v14, v{vAQ}")
a(f"v_add_u32 v{vAQ}, {L_QF}, v{vAQ}")
a("v_lshrrev_b32 v12, 5, v0")
a("v_and_b32 v13, 15, v0")
a("v_lshl_add_u32 v15, v12, 4, v13")
a("v_lshlrev_b32 v15, 4, v15")
a("v_lshlrev_b32 v12, 6, v0")
a("s_waitcnt vmcnt(0)")
a("s_barrier")
stamp(3)
a(f"s_lshl_b32 s{sT0}, s{sWV}, 12")
a(f"s_add_u32 s{sT0}, s{sT0}, {WS_FKV}")
poll(12, f"s{sT0}", 13)
stamp(4)
a(f"s_lshl_b32 s{sT0}, s{sWV}, 15")
a(f"s_add_u32 s{sT0}, s{sT0}, {WS_KV}")
a(f"s_mov_b32 s{sM}, 0xffff")
a(f"s_mov_b32 s{sM+1}, 0xffff")
for tp in range(8):
    for t in (2*tp, 2*tp+1):
        a(f"buffer_load_dwordx4 {vr(KV+12*t,4)}, v14, {sr(R_WS,4)}, s{sT0} offen offset:{2048*(t&1)} sc1")
    a(f"s_mov_b64 exec, s[{sM}:{sM+1}]")
    for t in (2*tp, 2*tp+1):
        a(f"buffer_load_dwordx4 {vr(KV+12*t+4,4)}, v15, {sr(R_WS,4)}, s{sT0} offen offset:{2048*(t&1)+1024} sc1")
        a(f"buffer_load_dwordx4 {vr(KV+12*t+8,4)}, v15, {sr(R_WS,4)}, s{sT0} offen offset:{2048*(t&1)+1536} sc1")
    a("s_mov_b64 exec, -1")
    if tp < 7: a(f"s_add_u32 s{sT0}, s{sT0}, 4096")
stamp(5)
a("s_barrier")
a("s_setprio 1")
a(f"ds_read_b128 {vr(vQ,4)}, v{vAQ}")
a(f"v_add_u32 v{vAQ}, 1024, v{vAQ}")
a("s_waitcnt vmcnt(0) lgkmcnt(0)")
stamp(6)

K_ = lambda t: KV + 12 * t
V1 = lambda t: KV + 12 * t + 4
V2 = lambda t: KV + 12 * t + 8
def ex(X, i): a(f"v_exp_f32 v{X+i}, v{X+i}")
def exs(X, lo, hi):
    for i in range(lo, hi): ex(X, i)
def smf(v, p): a(f"v_smfmac_f32_32x32x32_bf16 {vr(vO,16)}, {vr(v,4)}, {vr(p,8)}, v{vIDX}")
def qk(d, t): mfma32(d, K_(t), vQ, "0")
def zeroO(): a(f"v_mfma_f32_32x32x8_bf16 {vr(vO,16)}, {vr(vZ,2)}, {vr(vZ,2)}, 0")
def dump():
    a(f"ds_write_b128 v{vAD}, {vr(vO,4)}")
    a(f"ds_write_b128 v{vAD}, {vr(vO+4,4)} offset:1024")
    a(f"ds_write_b32 v{vAS}, v{vO+8}")

qk(S0, 0)
zeroO()
qk(S1, 1)
a(f"s_mov_b32 s{sSTEP}, 0")
a("s_nop 8")
exs(S0, 0, 16)
a("s_nop 1")
lines.append(".p2align 6")
lab("L_a_loop")
X, Y = S1, S0
smf(V1(0), Y); exs(X, 0, 3); smf(V2(0), Y + 8); exs(X, 3, 6); qk(Y, 2); exs(X, 6, 10); smf(V1(1), X); exs(X, 10, 16)
a(f"s_add_u32 s{sSTEP}, s{sSTEP}, 1")
for t in range(2, 16):
    X, Y = (S0, S1) if t % 2 == 0 else (S1, S0)
    exs(X, 0, 2); smf(V2(t - 1), Y + 8); exs(X, 2, 5)
    if t == 15:
        a("s_waitcnt lgkmcnt(0)")
        qk(Y, 0)
    else:
        qk(Y, t + 1)
    if t == 14:
        a(f"ds_read_b128 {vr(vQ,4)}, v{vAQ}")
        a(f"v_add_u32 v{vAQ}, 1024, v{vAQ}")
    exs(X, 5, 10); smf(V1(t), X); exs(X, 10, 16)
a(f"s_cmp_eq_u32 s{sSTEP}, 8")
a("s_cbranch_scc1 L_a_fin")
X, Y = S0, S1
smf(V2(15), Y + 8); exs(X, 0, 3); qk(Y, 1); exs(X, 3, 11)
dump()
ex(X, 11); zeroO(); exs(X, 12, 16)
a(f"v_add_u32 v{vAD}, {PSTRIDE}, v{vAD}")
a(f"v_add_u32 v{vAS}, {PSTRIDE}, v{vAS}")
a("s_branch L_a_loop")
lab("L_a_fin")
smf(V2(15), S1 + 8)
a(f"v_mov_b32 v12, {L_CNT}")
a("v_mov_b32 v13, 1")
a(f"s_mul_i32 s{sT0}, s{sWV}, {2*PSTRIDE}")
a("v_lshlrev_b32 v14, 4, v0")
a(f"v_add_u32 v15, s{sT0}, v14")
a("s_nop 7")
dump()
stamp(7)
gsync(12, 13, vT)
stamp(8)
cm("reduce two q-tiles per wave")
for q in range(2):
    b = 64 + 36 * q
    for w in range(4):
        a(f"ds_read_b128 {vr(b+8*w,4)}, v15 offset:{PSTRIDE*q + 2048*w}")
        a(f"ds_read_b128 {vr(b+8*w+4,4)}, v15 offset:{PSTRIDE*q + 2048*w + 1024}")
    a(f"ds_read_b128 {vr(b+32,4)}, v15 offset:{PSTRIDE*q + 8192}")
    if q == 0:
        cm("O offset: ((rb*2+rh)*32 + 4g + 2*(wv&1)) * 1024")
        a(f"s_lshr_b32 s{sT0}, s{sWV}, 1")
        a(f"s_lshl_b32 s{sT1}, s{sRB}, 1")
        a(f"s_add_u32 s{sT0}, s{sT0}, s{sT1}")
        a(f"s_lshl_b32 s{sT0}, s{sT0}, 4")
        a(f"s_lshl_b32 s{sT1}, s{sG}, 1")
        a(f"s_add_u32 s{sT0}, s{sT0}, s{sT1}")
        a(f"s_and_b32 s{sT1}, s{sWV}, 1")
        a(f"s_add_u32 s{sT0}, s{sT0}, s{sT1}")
        a(f"s_lshl_b32 s{sT1}, s{sT0}, 11")
        a(f"s_add_u32 s{sT1}, s{sT1}, {WS_O}")
        a(f"s_lshl_b32 s{sT0}, s{sT0}, 6")
        a(f"s_add_u32 s{sT0}, s{sT0}, {WS_FO}")
for q in range(2):
    b = 64 + 36 * q
    a(f"s_waitcnt lgkmcnt({9 if q == 0 else 0})")
    a(f"v_pk_add_f32 {vr(b+32,2)}, {vr(b+32,2)}, {vr(b+34,2)}")
    for j in range(4):
        a(f"v_pk_add_f32 {vr(b+2*j,2)}, {vr(b+2*j,2)}, {vr(b+8+2*j,2)}")
    a(f"v_add_f32 v{b+32}, v{b+32}, v{b+33}")
    for j in range(4):
        a(f"v_pk_add_f32 {vr(b+16+2*j,2)}, {vr(b+16+2*j,2)}, {vr(b+24+2*j,2)}")
    a(f"v_rcp_f32 v{b+34}, v{b+32}")
    for j in range(4):
        a(f"v_pk_add_f32 {vr(b+2*j,2)}, {vr(b+2*j,2)}, {vr(b+16+2*j,2)}")
    for j in range(4):
        a(f"v_pk_mul_f32 {vr(b+2*j,2)}, {vr(b+2*j,2)}, {vr(b+34,2)} op_sel_hi:[1,0]")
    for j in range(4):
        a(f"v_cvt_pk_bf16_f32 v{b+8+j}, v{b+2*j}, v{b+2*j+1}")
    a(f"buffer_store_dwordx4 {vr(b+8,4)}, v14, {sr(R_WS,4)}, s{sT1} offen offset:{1024*q} sc1")
a("s_waitcnt vmcnt(0)")
setflag(16, 17, sT0)
stamp(9)
cm("epoch update by WG0 wave0")
a(f"s_or_b32 s{sT0}, s2, s{sW}")
a(f"s_cmp_eq_u32 s{sT0}, 0")
a("s_cbranch_scc0 L_end")
setflag(16, 17, sT0)
a("s_branch L_end")

lab("L_helper")
vL, vL16_, vL128, vCO, vDSK = 16, 18, 20, 22, 24
vCNT, vONE, vWT, vRB, vL4 = 2, 3, 4, 5, 6
vWO = 7
XA8 = 8
a("s_setprio 2")
cm("H: W slice dma voffset")
a("v_lshrrev_b32 v25, 3, v0")
a("v_and_b32 v26, 7, v0")
a("v_lshrrev_b32 v27, 2, v0")
a("v_and_b32 v27, 4, v27")
a("v_xor_b32 v26, v26, v27")
a("v_lshlrev_b32 v26, 4, v26")
a(f"v_lshl_add_u32 v{vWO}, v25, 10, v26")
a("v_and_b32 v25, 31, v0")
a(f"s_lshl_b32 s{sT0}, s{sPB}, 5")
a(f"v_add_lshl_u32 v26, v25, s{sT0}, 1")
a(f"v_lshlrev_b32 v{vL4}, 4, v0")
a("s_waitcnt lgkmcnt(0)")
a(f"s_load_dword s{sTAG}, s[{P_WS}:{P_WS+1}], 0")
a(f"global_load_ushort v28, v26, s[{P_LRE}:{P_LRE+1}]")
a(f"global_load_ushort v29, v26, s[{P_LIM}:{P_LIM+1}]")
a(f"global_load_ushort v30, v26, s[{P_LDT}:{P_LDT+1}]")
a(f"global_load_ushort v{vDSK}, v26, s[{P_DSK}:{P_DSK+1}]")
srd(R_A, P_WQ, 512 * 1024)
srd(R_WS, P_WS, WS_SIZE)
def wslice_dma(base):
    a(f"s_lshl_b32 s{sT0}, s{sG}, 7")
    a(f"s_lshl_b32 s{sT1}, s{sWV}, 15")
    a(f"s_add_u32 s{sT0}, s{sT0}, s{sT1}")
    a(f"s_lshl_b32 s{sT1}, s{sWV}, 12")
    for kc in range(4):
        for i in range(4):
            a(f"s_add_u32 m0, s{sT1}, {base + 16384*kc + 1024*i}")
            a(f"s_add_u32 s{sT2}, s{sT0}, {131072*kc + 8192*i}")
            dma(vWO, R_A, f"s{sT2}")
wslice_dma(L_WQ)
cm("addresses")
a(f"v_mov_b32 v{vCNT}, {L_CNT + 8}")
a(f"v_mov_b32 v{vONE}, 1")
a("v_lshrrev_b32 v26, 5, v0")
a(f"v_mul_u32_u24 v{vRB}, {RSTR}, v25")
a(f"v_lshl_add_u32 v{vRB}, v26, 4, v{vRB}")
a(f"v_add_u32 v{vRB}, {L_R1}, v{vRB}")
cm("x frag addresses: (32rh + l%32)*256 + ((2ks+hh) ^ (l&15))*16")
a(f"s_lshr_b32 s{sT0}, s{sWV}, 1")
a(f"s_lshl_b32 s{sT0}, s{sT0}, 13")
a("v_and_b32 v27, 15, v0")
a("v_xor_b32 v27, v27, v26")
a("v_lshlrev_b32 v27, 4, v27")
a("v_lshl_add_u32 v27, v25, 8, v27")
a(f"v_add_u32 v{XA8}, s{sT0}, v27")
for ks in range(1, 8):
    a(f"v_xor_b32 v{XA8+ks}, {32*ks}, v{XA8}")
cm("W tr address (without the hh row term): r*128 + ((4nt+2nh+c/2) ^ (r>>1)*4)*16 + (c&1)*8")
a("v_bfe_u32 v27, v0, 2, 2")
a("v_bfe_u32 v31, v0, 4, 1")
a("v_bfe_u32 v32, v0, 1, 1")
a("v_lshl_add_u32 v31, v31, 1, v32")
a(f"s_and_b32 s{sT0}, s{sWV}, 1")
a(f"s_lshl_b32 s{sT0}, s{sT0}, 2")
a(f"v_add_u32 v31, s{sT0}, v31")
a("v_bfe_u32 v32, v0, 3, 1")
a("v_lshlrev_b32 v32, 2, v32")
a("v_xor_b32 v31, v31, v32")
a("v_lshlrev_b32 v31, 4, v31")
a("v_lshl_add_u32 v31, v27, 7, v31")
a("v_and_b32 v32, 1, v0")
a(f"v_lshl_add_u32 v{vWT}, v32, 3, v31")
a(f"v_lshl_add_u32 v1, v26, 10, v{vWT}")
a(f"v_add_u32 v1, {L_WQ}, v1")
a(f"v_lshl_add_u32 v{vWT}, v26, 9, v{vWT}")
a(f"v_add_u32 v{vWT}, {L_R1}, v{vWT}")
a("s_waitcnt lgkmcnt(0)")
a(f"s_mul_i32 s{sTAG}, s{sTAG}, 1664525")
a(f"s_add_u32 s{sTAG}, s{sTAG}, 1013904223")
a("s_barrier")
cm("SSM parameters")
a("s_waitcnt vmcnt(16)")
LOG2E = 1.4426950408889634
a("v_lshlrev_b32 v28, 16, v28")
a("v_lshlrev_b32 v29, 16, v29")
a("v_lshlrev_b32 v30, 16, v30")
a(f"v_lshlrev_b32 v{vDSK}, 16, v{vDSK}")
a(f"v_mul_f32 v30, {f32(LOG2E)}, v30")
a("v_exp_f32 v30, v30")
a("s_nop 0")
a("v_cvt_pk_bf16_f32 v30, v30, v30")
a("v_and_b32 v30, 0xffff0000, v30")
a("v_mul_f32 v31, v30, v28")
a("v_mul_f32 v32, v30, v29")
a(f"v_mul_f32 v31, {f32(LOG2E)}, v31")
a(f"v_mul_f32 v32, {f32(1/(2*math.pi))}, v32")
a("v_exp_f32 v31, v31")
a("v_rndne_f32 v33, v32")
a("v_sub_f32 v32, v32, v33")
a("v_cos_f32 v33, v32")
a("v_sin_f32 v34, v32")
a("v_mul_f32 v35, v28, v28")
a("v_fma_f32 v35, v29, v29, v35")
a(f"v_mul_f32 v{vL}, v31, v33")
a(f"v_mul_f32 v{vL+1}, v31, v34")
a("v_rcp_f32 v35, v35")
a(f"v_add_f32 v33, -1.0, v{vL}")
a("v_add_f32 v35, v35, v35")
a("v_mul_f32 v31, v33, v28")
a(f"v_fma_f32 v31, v{vL+1}, v29, v31")
a(f"v_mul_f32 v32, v{vL+1}, v28")
a("v_fma_f32 v32, -v33, v29, v32")
a(f"v_mul_f32 v{vCO}, v31, v35")
a(f"v_mul_f32 v{vCO+1}, v32, v35")
csq(vL16_, vL, 30)
for _ in range(3): csq(vL16_, vL16_, 30)
csq(vL128, vL16_, 30)
for _ in range(2): csq(vL128, vL128, 30)
a("s_waitcnt vmcnt(8)")
a("s_barrier")
stamp(1)
cm("Q projection")
ACC = 32
FR = 48
def qread(ks):
    s = FR + 8 * (ks % 4)
    a(f"ds_read_b64_tr_b16 {vr(s,2)}, v1 offset:{2048*ks}")
    a(f"ds_read_b64_tr_b16 {vr(s+2,2)}, v1 offset:{2048*ks+512}")
    a(f"ds_read_b128 {vr(s+4,4)}, v{XA8 + ks % 8} offset:{16384*(ks//8)}")
for half in range(2):
    k0 = 16 * half
    for ks in range(k0, k0 + 3): qread(ks)
    for ks in range(k0, k0 + 16):
        if ks + 3 < k0 + 16:
            qread(ks + 3)
            a("s_waitcnt lgkmcnt(9)")
        else:
            a(f"s_waitcnt lgkmcnt({3*(k0+15-ks)})")
        s = FR + 8 * (ks % 4)
        mfma32(ACC, s, s + 4, "0" if ks == 0 else None)
    if half == 0:
        a("s_waitcnt vmcnt(0)")
        a("s_barrier")
QSCALE = 0.25 * LOG2E
a(f"s_mov_b32 s{sT0}, {f32(QSCALE)}")
a(f"s_lshl_b32 s{sT1}, s{sWV}, 11")
a(f"s_add_u32 s{sT1}, s{sT1}, {L_QF}")
a(f"v_add_u32 v25, s{sT1}, v{vL4}")
cm("xB load voffsets: MFMA row i = 8a+4h+b <-> time 16h+4a+b ; instr pair covers i=0..15 / 16..31")
a("v_lshrrev_b32 v26, 2, v0")
a("v_and_b32 v27, 3, v26")
a("v_bfe_u32 v28, v26, 2, 1")
a("v_lshrrev_b32 v29, 3, v26")
a("v_lshl_add_u32 v27, v28, 4, v27")
a("v_lshl_add_u32 v27, v29, 2, v27")
a("v_and_b32 v28, 3, v0")
a("v_lshlrev_b32 v29, 4, v28")
a("v_lshl_add_u32 v8, v27, 10, v29")
a("v_add_u32 v9, 8192, v8")
for r in range(16):
    a(f"v_mul_f32 v{ACC+r}, s{sT0}, v{ACC+r}")
for j in range(8):
    a(f"v_cvt_pk_bf16_f32 v{ACC+j}, v{ACC+2*j}, v{ACC+2*j+1}")
a(f"ds_write_b128 v25, {vr(ACC,4)}")
a(f"ds_write_b128 v25, {vr(ACC+4,4)} offset:1024")
cm("scratch write addr: i*64 + (c ^ ((i>>2)&3))*16 ; read addr: i=l%32: i*64 + ((2k+hh) ^ f)*16")
a(f"s_lshl_b32 s{sT1}, s{sWV}, 11")
a(f"s_add_u32 s{sT1}, s{sT1}, {L_SCR}")
a("v_lshrrev_b32 v27, 4, v0")
a("v_xor_b32 v27, v27, v28")
a("v_lshlrev_b32 v27, 4, v27")
a("v_lshl_add_u32 v27, v26, 6, v27")
a(f"v_add_u32 v10, s{sT1}, v27")
a("v_bfe_u32 v27, v0, 2, 2")
a("v_lshrrev_b32 v28, 5, v0")
a("v_xor_b32 v27, v27, v28")
a("v_lshlrev_b32 v27, 4, v27")
a("v_and_b32 v29, 31, v0")
a("v_lshl_add_u32 v27, v29, 6, v27")
a(f"v_add_u32 v11, s{sT1}, v27")
a("v_xor_b32 v12, 32, v11")
srd(R_A, P_BX, 2048 * 1024)
srd(R_B, P_BRE, 512 * 1024)
srd(R_C, P_BIM, 512 * 1024)
a("s_waitcnt lgkmcnt(0)")
stamp(2)
a("s_barrier")
stamp(3)
def rows_dma():
    a(f"s_lshl_b32 s{sT0}, s{sPB}, 15")
    a(f"s_lshl_b32 s{sT1}, s{sWV}, 13")
    a(f"s_add_u32 s{sT0}, s{sT0}, s{sT1}")
    a(f"s_mul_i32 s{sT1}, s{sWV}, {8*RSTR}")
    for i in range(8):
        a(f"s_add_u32 m0, s{sT1}, {L_R1 + RSTR*i}")
        a(f"s_add_u32 s{sT2}, s{sT0}, {1024*i}")
        dma(vL4, R_B, f"s{sT2}")
        a(f"s_add_u32 m0, s{sT1}, {L_R1 + RSTR*(32+i)}")
        a("s_nop 0")
        dma(vL4, R_C, f"s{sT2}")
rows_dma()
XR = 128
a(f"s_lshl_b32 s{sT0}, s{sC}, 17")
a(f"s_lshl_b32 s{sT1}, s{sWV}, 15")
a(f"s_add_u32 s{sT3}, s{sT0}, s{sT1}")
for j in range(16):
    a(f"buffer_load_dwordx4 {vr(XR+8*j,4)}, v8, {sr(R_A,4)}, s{sT3} offen offset:{64*j}")
    a(f"buffer_load_dwordx4 {vr(XR+8*j+4,4)}, v9, {sr(R_A,4)}, s{sT3} offen offset:{64*j}")
a("s_waitcnt vmcnt(32)")
gsync(vCNT, vONE, 25)
stamp(4)
a("s_setprio 0")
AR, AI, BR = 32, 48, 64
def uchunk(j):
    a(f"s_waitcnt vmcnt({30-2*j})")
    a(f"ds_write_b128 v10, {vr(XR+8*j,4)}")
    a(f"ds_write_b128 v10, {vr(XR+8*j+4,4)} offset:1024")
    a(f"ds_read_b128 {vr(XR+8*j,4)}, v11")
    a(f"ds_read_b128 {vr(XR+8*j+4,4)}, v12")
    s = BR + 16 * (j % 2)
    for k in range(2):
        a(f"ds_read_b128 {vr(s+8*k,4)}, v{vRB} offset:{32*(2*j+k)}")
        a(f"ds_read_b128 {vr(s+8*k+4,4)}, v{vRB} offset:{32*(2*j+k) + 32*RSTR}")
uchunk(0)
for j in range(16):
    if j < 15:
        uchunk(j + 1)
        a("s_waitcnt lgkmcnt(8)")
    else:
        a("s_waitcnt lgkmcnt(0)")
    s = BR + 16 * (j % 2)
    for k in range(2):
        first = "0" if (j == 0 and k == 0) else None
        mfma32(AR, XR + 8*j + 4*k, s + 8*k, first)
        mfma32(AI, XR + 8*j + 4*k, s + 8*k + 4, first)
a("s_setprio 2")
a("s_nop 11")
stamp(5)
cm("scale by coef into pair layout, local scan")
UP = 64
for r in range(16):
    sel = r & 1
    a(f"v_pk_mul_f32 {vr(UP+2*r,2)}, {vr(vCO,2)}, {vr(AR+(r&~1),2)} op_sel:[0,{sel}] op_sel_hi:[1,{sel}]")
    a(f"v_pk_fma_f32 {vr(UP+2*r,2)}, {vr(vCO,2)}, {vr(AI+(r&~1),2)}, {vr(UP+2*r,2)} op_sel:[1,{sel},0] op_sel_hi:[0,{sel},1] neg_lo:[1,0,0]")
G0, G1 = 26, 28
cmul_add(G0, vL, UP, UP + 2)
for r in range(2, 16):
    src, dst = (G0, G1) if r % 2 == 0 else (G1, G0)
    cmul_add(dst, vL, src, UP + 2 * r)
a(f"s_lshl_b32 s{sT0}, s{sWV}, 9")
a(f"s_add_u32 s{sT0}, s{sT0}, {L_ES}")
a("v_lshlrev_b32 v13, 3, v0")
a(f"v_add_u32 v13, s{sT0}, v13")
a(f"ds_write_b64 v13, {vr(G0,2)}")
a("v_and_b32 v13, 31, v0")
a("v_lshlrev_b32 v14, 4, v13")
a("v_lshlrev_b32 v13, 3, v13")
a(f"v_add_u32 v13, {L_ES}, v13")
gsync(vCNT, vONE, 25)
stamp(6)
a(f"s_cmp_eq_u32 s{sWV}, 0")
a("s_cbranch_scc0 L_h_nopub")
for s in range(8):
    a(f"ds_read_b64 {vr(32+2*s,2)}, v13 offset:{256*s}")
a(f"s_lshl_b32 s{sT0}, s{sPB}, 4")
a(f"s_add_u32 s{sT0}, s{sT0}, s{sC}")
a(f"s_lshl_b32 s{sT0}, s{sT0}, 9")
a(f"s_add_u32 s{sT0}, s{sT0}, {WS_ST}")
a("s_waitcnt lgkmcnt(0)")
for s in range(1, 8):
    cmul_add(32 + 2*s, vL16_, 32 + 2*(s-1), 32 + 2*s)
a("v_mov_b32 v48, v46")
a(f"v_mov_b32 v49, s{sTAG}")
a("v_mov_b32 v50, v47")
a(f"v_mov_b32 v51, s{sTAG}")
a("s_mov_b32 exec_hi, 0")
a(f"buffer_store_dwordx4 v[48:51], v14, {sr(R_WS,4)}, s{sT0} offen sc1")
a("s_mov_b64 exec, -1")
lab("L_h_nopub")
cm("stage Wo through R1 into registers")
srd(R_A, P_WO, 512 * 1024)
wslice_dma(L_R1)
a("s_waitcnt vmcnt(0)")
gsync(vCNT, vONE, 25)
WOF = 128
for hd in range(32):
    a(f"ds_read_b64_tr_b16 {vr(WOF+4*hd,2)}, v{vWT} offset:{2048*hd}")
    a(f"ds_read_b64_tr_b16 {vr(WOF+4*hd+2,2)}, v{vWT} offset:{2048*hd+1024}")
gsync(vCNT, vONE, 25)
stamp(7)
cm("chunk carry: gather predecessors' end states")
STR = [32 + 4*i for i in range(8)] + [96 + 4*i for i in range(7)]
a(f"s_lshl_b32 s{sT0}, s{sPB}, 13")
a(f"s_add_u32 s{sT0}, s{sT0}, {WS_ST}")
a(f"s_add_u32 s{sT1}, s{sT0}, 4096")
a(f"s_mov_b32 s{sCNT}, {POLL_LIMIT}")
a(f"v_mov_b32 v{G0}, 0")
a(f"v_mov_b32 v{G0+1}, 0")
a(f"s_cmp_eq_u32 s{sC}, 0")
a("s_cbranch_scc1 L_h_stdone")
lab("L_h_stpoll")
for i in range(15):
    a(f"buffer_load_dwordx4 {vr(STR[i],4)}, v14, {sr(R_WS,4)}, s{sT0 if i < 8 else sT1} offen offset:{512*(i%8)} sc1")
    if i < 14:
        a(f"s_cmp_eq_u32 s{sC}, {i+1}")
        a("s_cbranch_scc1 L_h_stl")
lab("L_h_stl")
a(f"s_mov_b64 s[{sM}:{sM+1}], 0")
a("s_waitcnt vmcnt(0)")
for i in range(15):
    a(f"v_cmp_ne_u32 vcc, s{sTAG}, v{STR[i]+1}")
    a(f"s_or_b64 s[{sM}:{sM+1}], s[{sM}:{sM+1}], vcc")
    a(f"v_cmp_ne_u32 vcc, s{sTAG}, v{STR[i]+3}")
    a(f"s_or_b64 s[{sM}:{sM+1}], s[{sM}:{sM+1}], vcc")
    if i < 14:
        a(f"s_cmp_eq_u32 s{sC}, {i+1}")
        a("s_cbranch_scc1 L_h_stc")
lab("L_h_stc")
a(f"s_cmp_eq_u64 s[{sM}:{sM+1}], 0")
a("s_cbranch_scc1 L_h_stok")
a(f"s_sub_u32 s{sCNT}, s{sCNT}, 1")
a("s_cbranch_scc0 L_h_stpoll")
lab("L_h_stok")
for i in range(15):
    a(f"v_mov_b32 v{STR[i]+1}, v{STR[i]+2}")
    cmul_add(STR[i], vL128, G0, STR[i])
    a(f"v_mov_b64 {vr(G0,2)}, {vr(STR[i],2)}")
    if i < 14:
        a(f"s_cmp_eq_u32 s{sC}, {i+1}")
        a("s_cbranch_scc1 L_h_stdone")
lab("L_h_stdone")
stamp(8)
cm("segment carry")
for s in range(7):
    a(f"ds_read_b64 {vr(32+2*s,2)}, v13 offset:{256*s}")
a("s_waitcnt lgkmcnt(0)")
for w in range(4):
    cmul_add(G1, vL16_, G0, 32 + 4*w)
    if w < 3:
        a(f"s_cmp_eq_u32 s{sWV}, {w}")
        a("s_cbranch_scc1 L_h_segdone")
        cmul_add(G0, vL16_, G1, 32 + 4*w + 2)
lab("L_h_segdone")
a(f"s_mov_b32 s{sM}, 0")
a(f"s_mov_b32 s{sM+1}, -1")
a(f"v_cndmask_b32 v{G0}, v{G0}, v{G1}, s[{sM}:{sM+1}]")
a(f"v_cndmask_b32 v{G0+1}, v{G0+1}, v{G1+1}, s[{sM}:{sM+1}]")
cmul_add(UP, vL, G0, UP)
for r in range(1, 16):
    cmul_add(UP + 2*r, vL, UP + 2*(r-1), UP + 2*r)
for j in range(8):
    a(f"v_cvt_pk_bf16_f32 v{32+j}, v{UP+4*j}, v{UP+4*j+2}")
for j in range(8):
    a(f"v_cvt_pk_bf16_f32 v{40+j}, -v{UP+4*j+1}, -v{UP+4*j+3}")
cm("transpose through scratch: write [p][t], tr-read as A fragments")
a(f"s_lshl_b32 s{sT1}, s{sWV}, 11")
a(f"s_add_u32 s{sT1}, s{sT1}, {L_SCR}")
a("v_and_b32 v25, 31, v0")
a("v_lshrrev_b32 v26, 5, v0")
a("v_lshlrev_b32 v27, 6, v25")
a("v_lshl_add_u32 v27, v26, 5, v27")
a(f"v_add_u32 v10, s{sT1}, v27")
a("v_bfe_u32 v27, v0, 2, 2")
a("v_lshl_add_u32 v27, v26, 3, v27")
a("v_lshlrev_b32 v27, 6, v27")
a("v_bfe_u32 v28, v0, 4, 1")
a("v_lshl_add_u32 v27, v28, 5, v27")
a("v_and_b32 v28, 3, v0")
a("v_lshl_add_u32 v27, v28, 3, v27")
a(f"v_add_u32 v11, s{sT1}, v27")
for part in range(2):
    a(f"ds_write_b128 v10, {vr(32+8*part,4)}")
    a(f"ds_write_b128 v10, {vr(36+8*part,4)} offset:16")
    for ks in range(2):
        d = 48 + 8*part + 4*ks
        a(f"ds_read_b64_tr_b16 {vr(d,2)}, v11 offset:{1024*ks}")
        a(f"ds_read_b64_tr_b16 {vr(d+2,2)}, v11 offset:{1024*ks+256}")
a(f"s_lshl_b32 s{sT0}, s{sC}, 2")
a(f"s_add_u32 s{sT0}, s{sT0}, s{sWV}")
a(f"s_lshl_b32 s{sT4}, s{sT0}, 16")
a(f"s_add_u32 s{sT4}, s{sT4}, {WS_H}")
a(f"s_lshl_b32 s{sT1}, s{sPB}, 11")
a(f"s_add_u32 s{sT1}, s{sT1}, s{sT4}")
a(f"s_add_u32 s{sT2}, s{sT1}, 32768")
a(f"s_lshl_b32 s{sT0}, s{sT0}, 10")
a(f"s_add_u32 s{sSTEP}, s{sT0}, {WS_FH}")
a(f"s_lshl_b32 s{sT0}, s{sPB}, 6")
a(f"s_add_u32 s{sT0}, s{sT0}, s{sSTEP}")
a("s_waitcnt lgkmcnt(0)")
for part in range(2):
    for ks in range(2):
        a(f"buffer_store_dwordx4 {vr(48+8*part+4*ks,4)}, v{vL4}, {sr(R_WS,4)}, s{sT1 if part == 0 else sT2} offen offset:{1024*ks} sc1")
a("s_waitcnt vmcnt(0)")
setflag(27, 28, sT0)
stamp(9)
cm("C slice -> R1 ; skip term")
srd(R_B, P_CRE, 512 * 1024)
srd(R_C, P_CIM, 512 * 1024)
srd(R_A, P_BX, 2048 * 1024)
rows_dma()
a(f"s_lshl_b32 s{sT0}, s{sPB}, 6")
a(f"s_add_u32 s{sT0}, s{sT0}, s{sT3}")
a("v_lshlrev_b32 v27, 1, v25")
a("v_lshl_add_u32 v27, v26, 12, v27")
for r in range(16):
    if r % 4 == 0 and r: a(f"s_add_u32 s{sT0}, s{sT0}, 8192")
    a(f"buffer_load_ushort v{32+r}, v27, {sr(R_A,4)}, s{sT0} offen offset:{1024*(r%4)}")
a("v_and_b32 v28, 15, v0")
a("v_lshlrev_b32 v12, 6, v28")
a("v_lshlrev_b32 v8, 2, v25")
a("v_lshl_add_u32 v8, v26, 14, v8")
a("s_waitcnt vmcnt(0)")
for r in range(16):
    a(f"v_lshlrev_b32 v{32+r}, 16, v{32+r}")
    a(f"v_mul_f32 v{32+r}, v{vDSK}, v{32+r}")
gsync(vCNT, vONE, 29)
stamp(10)
poll(12, f"s{sSTEP}", 29)
stamp(11)
a("s_setprio 0")
HR, CR = 64, 48
def hload(k):
    if k % 4 == 0 and k: a(f"s_add_u32 s{sT4}, s{sT4}, 4096")
    a(f"buffer_load_dwordx4 {vr(HR+4*(k%16),4)}, v{vL4}, {sr(R_WS,4)}, s{sT4} offen offset:{1024*(k%4)} sc1")
def cread(k):
    a(f"ds_read_b128 {vr(CR+4*(k%4),4)}, v{vRB} offset:{32*(k%32) + 32*RSTR*(k//32)}")
for k in range(15): hload(k)
for k in range(3): cread(k)
for k in range(64):
    if k + 15 < 64: hload(k + 15)
    if k + 3 < 64: cread(k + 3)
    a(f"s_waitcnt vmcnt({min(15, 63-k)}) lgkmcnt({min(3, 63-k)})")
    mfma32(32, HR + 4*(k % 16), CR + 4*(k % 4))
a("s_setprio 2")
srd(R_A, P_OUT, 2048 * 4096)
a(f"s_lshl_b32 s{sT0}, s{sT3}, 2")
a(f"s_lshl_b32 s{sT1}, s{sPB}, 7")
a(f"s_add_u32 s{sT0}, s{sT0}, s{sT1}")
a(f"s_add_u32 s{sT0}, s{sT0}, 2048")
a("s_nop 4")
def store_tile():
    for r in range(16):
        a(f"s_add_u32 s{sT1}, s{sT0}, {4096 * (8*(r//4) + r%4)}")
        a(f"buffer_store_dword v{32+r}, v8, {sr(R_A,4)}, s{sT1} offen")
store_tile()
stamp(12)
cm("output projection")
a(f"s_lshr_b32 s{sT0}, s{sWV}, 1")
a(f"s_lshl_b32 s{sT1}, s{sRB}, 1")
a(f"s_add_u32 s{sT2}, s{sT0}, s{sT1}")
a(f"s_lshl_b32 s{sT0}, s{sT2}, 10")
a(f"s_add_u32 s{sT0}, s{sT0}, {WS_FO}")
a(f"s_lshl_b32 s{sT4}, s{sT2}, 15")
a(f"s_add_u32 s{sT4}, s{sT4}, {WS_O}")
poll(12, f"s{sT0}", 29)
stamp(13)
OR_ = 48
def oload(k):
    if k % 4 == 0 and k: a(f"s_add_u32 s{sT4}, s{sT4}, 4096")
    a(f"buffer_load_dwordx4 {vr(OR_+4*(k%20),4)}, v{vL4}, {sr(R_WS,4)}, s{sT4} offen offset:{1024*(k%4)} sc1")
for k in range(19): oload(k)
for k in range(32):
    if k + 19 < 32: oload(k + 19)
    a(f"s_waitcnt vmcnt({min(19, 31-k)})")
    mfma32(32, OR_ + 4*(k % 20), WOF + 4*k, "0" if k == 0 else None)
a(f"s_lshl_b32 s{sT0}, s{sT2}, 17")
a(f"s_lshl_b32 s{sT1}, s{sG}, 8")
a(f"s_add_u32 s{sT0}, s{sT0}, s{sT1}")
a(f"s_and_b32 s{sT1}, s{sWV}, 1")
a(f"s_lshl_b32 s{sT1}, s{sT1}, 7")
a(f"s_add_u32 s{sT0}, s{sT0}, s{sT1}")
a("s_nop 6")
store_tile()
stamp(14)
lab("L_end")
if STAMPS:
    a("s_waitcnt vmcnt(0)")
    stamp(15)
    a(f"s_lshl_b32 s{sT0}, s2, 3")
    a(f"s_add_u32 s{sT0}, s{sT0}, s{sW}")
    a(f"s_lshl_b32 s{sT0}, s{sT0}, 6")
    a(f"s_add_u32 s{sT0}, s{sT0}, {WS_STAMP}")
    for i in range(16): a(f"v_mov_b32 v{16+i}, s{80+i}")
    a("v_mov_b32 v0, 0")
    a("s_mov_b64 exec, 1")
    for i in range(4):
        a(f"buffer_store_dwordx4 {vr(16+4*i,4)}, v0, {sr(R_WS,4)}, s{sT0} offen offset:{16*i}")
lab("L_exit")
a("s_endpgm")

hdr = open("cdna_kernels/" + NAME + ".s.ref").read().split("; Override launch")[0]
src = hdr + f"; @launch grid=(256,1,1) block=(512,1,1) lds={LDS_BYTES}\n" + f""".amdgcn_target "amdgcn-amd-amdhsa--gfx950"
.text
.globl {NAME}_kernel
.p2align 8
.type {NAME}_kernel,@function
{NAME}_kernel:
""" + "\n".join(lines) + f"""
.section .rodata,"a"
.p2align 6
.amdhsa_kernel {NAME}_kernel
  .amdhsa_next_free_vgpr 256
  .amdhsa_next_free_sgpr 96
  .amdhsa_accum_offset 256
  .amdhsa_group_segment_fixed_size 0
  .amdhsa_kernarg_size 136
  .amdhsa_user_sgpr_count 2
  .amdhsa_user_sgpr_kernarg_segment_ptr 1
  .amdhsa_system_sgpr_workgroup_id_x 1
.end_amdhsa_kernel
"""
open(OUT, "w").write(src)
```

```python
import sys, math, struct
NAME = "concat_heads__grouped_kv_mqa__ssm_conv_s5__prompt"
STAMPS = "--stamps" in sys.argv
OPT = dict(a.lstrip("-").split("=") for a in sys.argv[1:] if a.startswith("--") and "=" in a)
OUT = [a for a in sys.argv[1:] if not a.startswith("--")][0]
OUTFL = OPT.get("outfl", "").replace(",", " ")
if OUTFL: OUTFL = " " + OUTFL

def f32(x): return "0x%08x" % struct.unpack("<I", struct.pack("<f", x))[0]

WS_DUMMY = 0x800
WS_FKV = 0x1000
WS_FH  = 0x8000
WS_FO  = 0x20000
WS_KV  = 0x40000
WS_ST  = 0x60000
WS_O   = 0x100000
WS_H   = 0x400000
WS_SLOW = 0x800000
WS_STAMP = 15 << 20
WS_SIZE = 16 << 20
L_XA, L_WQ, L_KVP, L_WKV = 0, 65536, 131072, 140288
L_PART, L_R1, L_SCR, L_ES, L_QF, L_PROG, L_CNT = 0, 73728, 140288, 148480, 150528, 158720, 159744
L_MAX = 159808
L_CS = 160832

LDS_BYTES = 163840
PSTRIDE = 9216
RSTR = 1040
POLL_LIMIT = 400000
C_A1, C_H1, C_H2, C_A3, C_A4, C_GA, C_GH, C_TAG, C_H3, C_S, C_H0, C_DONE = 0, 4, 8, 12, 16, 20, 24, 28, 32, 36, 40, 44

lines = []
def a(s): lines.append("    " + s)
def lab(s): lines.append(s + ":")
def cm(s): lines.append("    ; " + s)
_uid = [0]
def uid(p):
    _uid[0] += 1
    return f"L_{p}{_uid[0]}"
def vr(b, n): return f"v[{b}:{b+n-1}]"
def sr(b, n): return f"s[{b}:{b+n-1}]"

sW, sTAG, sRB, sG, sC, sPB = 3, 4, 5, 6, 7, 8
sT0, sT1, sT2, sT3, sT4, sCNT = 9, 10, 11, 12, 13, 14
sWV = 15
P_AX, P_WQ, P_WK, P_WV, P_WO, P_BX, P_LRE, P_LIM = 16, 18, 20, 22, 24, 26, 28, 30
P_BRE, P_BIM, P_CRE, P_CIM, P_LDT, P_DSK, P_OUT, P_DBG = 32, 34, 36, 38, 40, 42, 44, 46
P_WS = 48
sT5, sT6 = 50, 51
R_WS, R_A, R_B, R_C = 52, 56, 60, 64
sM = 68
sGRP, sKIND, sSTEP, sSYNC = 70, 71, 72, 73
sRET = 74
sST = 76
sLO, sHI = 78, 79
sROT = sSTEP
sF1, sF2 = 0, 1

def srd(dst, ptr, nbytes):
    a(f"s_mov_b32 s{dst}, s{ptr}")
    a(f"s_and_b32 s{dst+1}, s{ptr+1}, 0xffff")
    a(f"s_mov_b32 s{dst+2}, {nbytes}")
    a(f"s_mov_b32 s{dst+3}, 0x20000")

def stamp(i, ins="s_memrealtime"):
    if STAMPS:
        a(f"{ins} s[{sST}:{sST+1}]")
        a("s_waitcnt lgkmcnt(0)")
        a(f"s_mov_b32 s{80+i}, s{sST}")
def cstamp(i): stamp(i, "s_memtime")
DBG = OPT.get("dbg", "")
def dstamp(name, i):
    if DBG == name: stamp(i)
_stamp0 = stamp


def dma(voff, srdr, soff, imm=0):
    o = f" offset:{imm}" if imm else ""
    a(f"buffer_load_dwordx4 v{voff}, {sr(srdr,4)}, {soff} offen{o} lds")

def poll(voff, soff, vt, sleep=0):
    L, D = uid("poll"), uid("pdone")
    a(f"s_mov_b32 s{sCNT}, {POLL_LIMIT}")
    lab(L)
    a(f"buffer_load_dword v{vt}, v{voff}, {sr(R_WS,4)}, {soff} offen sc1")
    a("s_waitcnt vmcnt(0)")
    a(f"v_cmp_ne_u32 vcc, s{sTAG}, v{vt}")
    a(f"s_cbranch_vccz {D}")
    a(f"s_sub_u32 s{sCNT}, s{sCNT}, 1")
    a(f"s_cbranch_scc0 {L}")
    lab(D)

def setflag(vt0, vt1, soff):
    a(f"v_mov_b32 v{vt0}, 0")
    a(f"v_mov_b32 v{vt1}, s{sTAG}")
    a("s_mov_b64 exec, 1")
    a(f"buffer_store_dword v{vt1}, v{vt0}, {sr(R_WS,4)}, s{soff} offen sc1")
    a("s_mov_b64 exec, -1")

def signal(vcnt, vone, off):
    a("s_mov_b64 exec, 1")
    a(f"ds_add_u32 v{vcnt}, v{vone} offset:{off}")
    a("s_mov_b64 exec, -1")

def waitc(vcnt, off, target, vt, sleep=0):
    L = uid("wc")
    lab(L)
    if sleep: a(f"s_sleep {sleep}")
    a(f"ds_read_b32 v{vt}, v{vcnt} offset:{off}")
    a("s_waitcnt lgkmcnt(0)")
    a(f"v_cmp_gt_u32 vcc, {target}, v{vt}")
    a(f"s_cbranch_vccnz {L}")

def gsync(vcnt, vone, vt, off):
    a("s_waitcnt lgkmcnt(0)")
    a(f"s_add_u32 s{sSYNC}, s{sSYNC}, 4")
    signal(vcnt, vone, off)
    waitc(vcnt, off, f"s{sSYNC}", vt)

def mfma32(d, x, y, c=None):
    c = vr(d, 16) if c is None else c
    a(f"v_mfma_f32_32x32x16_bf16 {vr(d,16)}, {vr(x,4)}, {vr(y,4)}, {c}")

def cmul_add(dst, L, g, u):
    a(f"v_pk_fma_f32 {vr(dst,2)}, {vr(L,2)}, {vr(g,2)}, {vr(u,2)} op_sel:[0,0,0] op_sel_hi:[0,1,1]")
    a(f"v_pk_fma_f32 {vr(dst,2)}, {vr(L,2)}, {vr(g,2)}, {vr(dst,2)} op_sel:[1,1,0] op_sel_hi:[1,0,1] neg_lo:[1,0,0]")

def cmul(dst, x, y):
    a(f"v_pk_mul_f32 {vr(dst,2)}, {vr(x,2)}, {vr(y,2)} op_sel:[0,0] op_sel_hi:[0,1]")
    a(f"v_pk_fma_f32 {vr(dst,2)}, {vr(x,2)}, {vr(y,2)}, {vr(dst,2)} op_sel:[1,1,0] op_sel_hi:[1,0,1] neg_lo:[1,0,0]")

def csq(dst, src, t):
    a(f"v_mul_f32 v{t}, v{src+1}, v{src+1}")
    a(f"v_add_f32 v{t+1}, v{src}, v{src}")
    a(f"v_fma_f32 v{dst}, v{src}, v{src}, -v{t}")
    a(f"v_mul_f32 v{dst+1}, v{t+1}, v{src+1}")

def xvoffsets(XO, t0):
    a(f"v_lshrrev_b32 v{t0}, 4, v0")
    a(f"v_and_b32 v{t0+1}, 15, v0")
    for i in range(4):
        a(f"v_add_u32 v{t0+2}, {4*i}, v{t0}")
        a(f"v_xor_b32 v{t0+3}, v{t0+1}, v{t0+2}")
        a(f"v_lshlrev_b32 v{t0+3}, 4, v{t0+3}")
        a(f"v_lshl_add_u32 v{XO+i}, v{t0+2}, 10, v{t0+3}")

def wtr_addr(dst, hhshift, base, t):
    a(f"v_bfe_u32 v{t}, v0, 2, 2")
    a(f"v_bfe_u32 v{t+1}, v0, 4, 1")
    a(f"v_bfe_u32 v{t+2}, v0, 1, 1")
    a(f"v_lshl_add_u32 v{t+1}, v{t+1}, 1, v{t+2}")
    a(f"s_and_b32 s{sT0}, s{sWV}, 1")
    a(f"s_lshl_b32 s{sT0}, s{sT0}, 2")
    a(f"v_add_u32 v{t+1}, s{sT0}, v{t+1}")
    a(f"v_bfe_u32 v{t+2}, v0, 3, 1")
    a(f"v_lshlrev_b32 v{t+2}, 2, v{t+2}")
    a(f"v_xor_b32 v{t+1}, v{t+1}, v{t+2}")
    a(f"v_lshlrev_b32 v{t+1}, 4, v{t+1}")
    a(f"v_lshl_add_u32 v{t+1}, v{t}, 7, v{t+1}")
    a(f"v_and_b32 v{t+2}, 1, v0")
    a(f"v_lshl_add_u32 v{t+1}, v{t+2}, 3, v{t+1}")
    a(f"v_lshrrev_b32 v{t+2}, 5, v0")
    a(f"v_lshl_add_u32 v{t+1}, v{t+2}, {hhshift}, v{t+1}")
    a(f"v_add_u32 v{dst}, {base}, v{t+1}")

def o_offsets():
    a(f"s_and_b32 s{sT0}, s{sSTEP}, 1")
    a(f"s_lshl_b32 s{sT1}, s{sRB}, 1")
    a(f"s_add_u32 s{sT0}, s{sT0}, s{sT1}")
    a(f"s_lshl_b32 s{sT0}, s{sT0}, 2")
    a(f"s_lshr_b32 s{sT1}, s{sSTEP}, 1")
    a(f"s_add_u32 s{sT0}, s{sT0}, s{sT1}")
    a(f"s_lshl_b32 s{sT0}, s{sT0}, 3")
    a(f"s_add_u32 s{sT0}, s{sT0}, s{sG}")
    a(f"s_lshl_b32 s{sT1}, s{sT0}, 10")
    a(f"s_add_u32 s{sT1}, s{sT1}, {WS_O}")
    a(f"s_lshl_b32 s{sT0}, s{sT0}, 6")
    a(f"s_add_u32 s{sT0}, s{sT0}, {WS_FO}")

def sum_check(b):
    a(f"v_pk_add_f32 {vr(b,2)}, {vr(b,2)}, {vr(b+2,2)}")
    a(f"v_add_f32 v{b}, v{b}, v{b+1}")
    a(f"v_cmp_nle_f32 vcc, s{sLO}, v{b}")
    a(f"v_cmp_nge_f32 s[{sM}:{sM+1}], s{sHI}, v{b}")
    a(f"s_or_b64 vcc, vcc, s[{sM}:{sM+1}]")

def reduce_math(b, vl16, flag=True):
    a(f"v_rcp_f32 v{b+34}, v{b+32}")
    for j in range(4):
        a(f"v_pk_add_f32 {vr(b+2*j,2)}, {vr(b+2*j,2)}, {vr(b+8+2*j,2)}")
    for j in range(4):
        a(f"v_pk_add_f32 {vr(b+16+2*j,2)}, {vr(b+16+2*j,2)}, {vr(b+24+2*j,2)}")
    for j in range(4):
        a(f"v_pk_add_f32 {vr(b+2*j,2)}, {vr(b+2*j,2)}, {vr(b+16+2*j,2)}")
    for j in range(4):
        a(f"v_pk_mul_f32 {vr(b+2*j,2)}, {vr(b+2*j,2)}, {vr(b+34,2)} op_sel_hi:[1,0]")
    for j in range(4):
        a(f"v_cvt_pk_bf16_f32 v{b+8+j}, v{b+2*j}, v{b+2*j+1}")
    a(f"buffer_store_dwordx4 {vr(b+8,4)}, v{vl16}, {sr(R_WS,4)}, s{sT1} offen sc1")
    if flag:
        a("s_waitcnt vmcnt(0)")
        setflag(b, b + 1, sT0)

STG3 = int(OPT.get("stg3", 0))
LOG2E = 1.4426950408889634
L_LO, L_HI = 2.0 ** -60, 2.0 ** 60


class Cnt:
    def __init__(s): s.q = []
    def issue(s, tag, n=1): s.q += [tag] * n
    def need(s, tag):
        if tag not in s.q: return None
        i = len(s.q) - 1 - s.q[::-1].index(tag)
        n = len(s.q) - 1 - i
        s.q = s.q[i + 1:]
        return n
def waits(vm=None, lg=None):
    p = []
    if vm is not None: p.append(f"vmcnt({min(vm,63)})")
    if lg is not None: p.append(f"lgkmcnt({min(lg,15)})")
    if p: a("s_waitcnt " + " ".join(p))

a("s_cmp_ge_u32 s2, 256")
a("s_cbranch_scc1 L_exit")
a(f"s_load_dwordx16 s[16:31], s[0:1], 0")
a(f"s_load_dwordx16 s[32:47], s[0:1], 64")
a(f"s_load_dwordx2 s[48:49], s[0:1], 128")
if STAMPS:
    for i in range(16): a(f"s_mov_b32 s{80+i}, 0")
    a("s_memrealtime s[80:81]")
    a("s_memtime s[92:93]")
a("v_lshrrev_b32 v1, 6, v0")
a("v_and_b32 v0, 63, v0")
a(f"v_readfirstlane_b32 s{sW}, v1")
a("v_lshlrev_b32 v6, 4, v0")
a("v_lshrrev_b32 v12, 4, v0")
a("v_and_b32 v13, 15, v0")
a(f"s_and_b32 s{sT0}, s2, 7")
a(f"s_lshr_b32 s{sT1}, s2, 3")
a(f"s_and_b32 s{sT2}, s{sT1}, 3")
a(f"s_lshl_b32 s{sRB}, s{sT0}, 2")
a(f"s_add_u32 s{sRB}, s{sRB}, s{sT2}")
a(f"s_lshr_b32 s{sG}, s{sT1}, 2")
a(f"s_and_b32 s{sGRP}, s{sG}, 3")
a(f"s_and_b32 s{sWV}, s{sW}, 3")
a(f"s_add_u32 s{sROT}, s{sG}, s{sRB}" if OPT.get("rot", "1") == "1" else f"s_mov_b32 s{sROT}, 0")
a(f"s_mov_b32 s{R_A+2}, {2048*1024}")
a(f"s_mov_b32 s{R_A+3}, 0x20000")
a(f"s_mov_b32 s{R_B+3}, 0x20000")
a(f"s_cmp_ge_u32 s{sW}, 4")
a("s_cbranch_scc1 L_attn")

vL, vL16_, vL8, vCO = 20, 22, 24, 26
vCNT, vONE, vWT, vRB, vL4, vWO = 2, 3, 4, 5, 6, 7
a("s_setprio 3")
for i in range(4):
    a(f"v_add_u32 v14, {4*i}, v12")
    a(f"v_xor_b32 v15, v13, v14")
    a(f"v_lshlrev_b32 v15, 4, v15")
    a(f"v_lshl_add_u32 v{16+i}, v14, 10, v15")
if OPT.get("map", "1") == "0":
    a(f"s_and_b32 s{sT2}, s{sT1}, 1")
    a(f"s_lshl_b32 s{sC}, s{sT0}, 1")
    a(f"s_add_u32 s{sC}, s{sC}, s{sT2}")
    a(f"s_lshr_b32 s{sPB}, s{sT1}, 1")
else:
    a(f"s_and_b32 s{sC}, s{sT0}, 6")
    a(f"s_lshl_b32 s{sC}, s{sC}, 1")
    a(f"s_add_u32 s{sC}, s{sC}, s{sT2}")
    a(f"s_and_b32 s{sPB}, s{sT0}, 1")
    a(f"s_lshl_b32 s{sPB}, s{sPB}, 3")
    a(f"s_add_u32 s{sPB}, s{sPB}, s{sG}")
a(f"s_lshr_b32 s{sKIND}, s{sG}, 2")
a(f"s_add_u32 s{sT3}, s{sROT}, s{sWV}")
a(f"s_and_b32 s{sT3}, s{sT3}, 3")
a(f"s_lshl_b32 s{sT0}, s{sRB}, 16")
a(f"s_lshl_b32 s{sT1}, s{sGRP}, 14")
a(f"s_add_u32 s{sT0}, s{sT0}, s{sT1}")
a(f"s_lshl_b32 s{sT1}, s{sT3}, 8")
a(f"s_add_u32 s{sT0}, s{sT0}, s{sT1}")
a(f"s_lshl_b32 s{sT2}, s{sGRP}, 12")
a(f"s_lshl_b32 s{sT1}, s{sWV}, 14")
a(f"s_add_u32 s{sT2}, s{sT2}, s{sT1}")
a(f"s_lshl_b32 s{sT3}, s{sT3}, 12")
a(f"s_lshl_b32 s{sT4}, s{sWV}, 12")
a(f"s_add_u32 s{sT4}, s{sT4}, {L_WKV}")
a(f"s_mov_b32 s{R_B+2}, 16384")
a(f"s_mov_b32 m0, s{sT2}")
a(f"s_cmp_eq_u32 s{sKIND}, 0")
a("s_waitcnt lgkmcnt(0)")
a(f"s_cselect_b32 s{R_B}, s{P_WK}, s{P_WV}")
a(f"s_cselect_b32 s{R_B+1}, s{P_WK+1}, s{P_WV+1}")
a(f"s_mov_b32 s{R_A}, s{P_AX}")
a(f"s_and_b32 s{R_A+1}, s{P_AX+1}, 0xffff")
a(f"s_and_b32 s{R_B+1}, s{R_B+1}, 0xffff")
for i in range(4):
    dma(16 + i, R_A, f"s{sT0}")
    a(f"s_add_u32 m0, s{sT2}, {1024*(i+1)}" if i < 3 else f"s_mov_b32 m0, s{sT4}")
    a("s_nop 0")
for i in range(4):
    dma(6, R_B, f"s{sT3}", imm=1024 * i)
a(f"s_load_dword s{sTAG}, s[{P_WS}:{P_WS+1}], 0")
a("s_barrier")
a("s_branch L_h1")

lab("L_attn")
vIDX, vZ, vAD, vAS, vAQ, vPG, vQ = 1, 2, 4, 5, 6, 7, 8
vCA, vONEA = 12, 13
S0, S1, vO, KV = 16, 32, 48, 64
cm("zero sync counters + progress words")
a("v_mov_b32 v2, 0")
a("v_mov_b32 v3, 0")
a("v_mov_b32 v4, 0")
a("v_mov_b32 v5, 0")
a(f"v_add_u32 v7, {L_PROG}, v6")
a("ds_write_b128 v7, v[2:5]")
a("ds_write_b128 v7, v[2:5] offset:1024")
a(f"v_lshl_add_u32 v14, s{sWV}, 2, v12")
a("v_xor_b32 v15, v13, v14")
a("v_lshlrev_b32 v15, 4, v15")
a("v_lshl_add_u32 v16, v14, 10, v15")
def wo_voff(dst, t):
    a(f"v_lshrrev_b32 v{t}, 3, v0")
    a(f"v_and_b32 v{t+1}, 7, v0")
    a(f"v_lshrrev_b32 v{t+2}, 2, v0")
    a(f"v_and_b32 v{t+2}, 4, v{t+2}")
    a(f"v_xor_b32 v{t+1}, v{t+1}, v{t+2}")
    a(f"v_lshlrev_b32 v{t+1}, 4, v{t+1}")
    a(f"v_lshl_add_u32 v{dst}, v{t}, 10, v{t+1}")
wo_voff(17, 20)
def wslice_setup():
    a(f"s_lshl_b32 s{sT0}, s{sG}, 7")
    a(f"s_lshl_b32 s{sT1}, s{sWV}, 15")
    a(f"s_add_u32 s{sT0}, s{sT0}, s{sT1}")
    a(f"s_lshl_b32 s{sT1}, s{sWV}, 12")
wslice_setup()
a(f"s_lshl_b32 s{sT4}, s{sRB}, 16")
a(f"s_lshl_b32 s{sT5}, s{sWV}, 10")
for m in range(1, 4):
    a(f"s_add_u32 s{sT2}, s{sGRP}, {m}")
    a(f"s_and_b32 s{sT2}, s{sT2}, 3")
    a(f"s_lshl_b32 s{sT3}, s{sT2}, 14")
    a(f"s_add_u32 s{95+m}, s{sT3}, s{sT4}")
    a(f"s_lshl_b32 s{sT3}, s{sT2}, 12")
    a(f"s_add_u32 s{98+m}, s{sT3}, s{sT5}")
a(f"s_mov_b32 s{R_B+2}, {512*1024}")
a(f"v_mov_b32 v{vCA}, {L_CNT}")
a(f"v_mov_b32 v{vONEA}, 1")
a("s_waitcnt lgkmcnt(0)")
a(f"s_mov_b32 s{R_A}, s{P_AX}")
a(f"s_and_b32 s{R_A+1}, s{P_AX+1}, 0xffff")
a(f"s_mov_b32 s{R_B}, s{P_WQ}")
a(f"s_and_b32 s{R_B+1}, s{P_WQ+1}, 0xffff")
if STAMPS:
    a("s_mov_b32 s81, 0")
    a("s_mov_b32 s93, 0")
a("s_barrier")
def qops(sl):
    a(f"s_add_u32 s{sT3}, s{sROT}, {sl}")
    a(f"s_and_b32 s{sT3}, s{sT3}, 3")
    a(f"s_lshl_b32 s{sT4}, s{sT3}, 8")
    a(f"s_lshl_b32 s{sT3}, s{sT3}, 17")
    a(f"s_add_u32 s{sT3}, s{sT3}, s{sT0}")
    for m in range(1, 4):
        a(f"s_add_u32 m0, s{98+m}, {L_XA + 16384*sl}")
        a(f"s_add_u32 s{sT2}, s{95+m}, s{sT4}")
        dma(16, R_A, f"s{sT2}")
    for i in range(4):
        a(f"s_add_u32 m0, s{sT1}, {L_WQ + 16384*sl + 1024*i}")
        a(f"s_add_u32 s{sT2}, s{sT3}, {8192*i}")
        dma(17, R_B, f"s{sT2}")
for sl in range(3): qops(sl)
a("s_waitcnt vmcnt(14)")
signal(vCA, vONEA, C_H0)
qops(3)
a("s_waitcnt vmcnt(14)")
signal(vCA, vONEA, C_H1)
stamp(1)
srd(R_WS, P_WS, WS_SIZE)
a(f"s_mov_b32 s{sSYNC}, 0")
a(f"s_mov_b32 s{sLO}, {f32(L_LO)}")
a(f"s_mov_b32 s{sHI}, {f32(L_HI)}")
cm("prefill V regs: rows 16 and 20 = ones, other rows >=16 zero")
a("v_and_b32 v24, 27, v0")
a("v_cmp_eq_u32 vcc, 16, v24")
a("v_mov_b32 v25, 0x3f803f80")
a("s_nop 0")
a("v_cndmask_b32 v24, 0, v25, vcc")
a("v_mov_b32 v25, v24")
for t in range(16):
    for j in range(4):
        a(f"v_mov_b64 {vr(KV+12*t+4+2*j,2)}, v[24:25]")
    if t == 5:
        a("s_waitcnt vmcnt(7)")
        signal(vCA, vONEA, C_H2)
a("s_waitcnt vmcnt(0)")
signal(vCA, vONEA, C_H3)
stamp(2)
a("v_mov_b32 v14, v6")
a("v_lshrrev_b32 v24, 5, v0")
a("v_and_b32 v25, 15, v0")
a("v_lshl_add_u32 v15, v24, 4, v25")
a("v_lshlrev_b32 v15, 4, v15")
a(f"v_mov_b32 v{vIDX}, 0xdddddddd")
a(f"s_lshl_b32 s{sT0}, s{sWV}, 11")
a(f"v_add_u32 v{vAD}, s{sT0}, v14")
a(f"s_lshl_b32 s{sT0}, s{sWV}, 2")
a(f"s_add_u32 s{sT1}, s{sT0}, {L_PART + 8192}")
a(f"v_add_u32 v{vAS}, s{sT1}, v14")
a(f"s_add_u32 s{sT1}, s{sT0}, {L_PROG}")
a(f"v_add_u32 v{vPG}, s{sT1}, v14")
a(f"v_add_u32 v{vAQ}, {L_QF}, v14")
a("v_lshlrev_b32 v21, 6, v0")
waitc(vCA, C_S, 4, 20)
a(f"ds_read_b32 v20, v{vCA} offset:{C_TAG}")
a(f"s_lshl_b32 s{sT0}, s{sWV}, 12")
a(f"s_add_u32 s{sT0}, s{sT0}, {WS_FKV}")
a("s_waitcnt lgkmcnt(0)")
a(f"v_readfirstlane_b32 s{sTAG}, v20")
poll(21, f"s{sT0}", 22)
stamp(4)
a(f"s_lshl_b32 s{sT0}, s{sWV}, 15")
a(f"s_add_u32 s{sT0}, s{sT0}, {WS_KV}")
a(f"s_mov_b32 s{sM}, 0xffff")
a(f"s_mov_b32 s{sM+1}, 0xffff")
def kvload(tp):
    for t in (2*tp, 2*tp+1):
        a(f"buffer_load_dwordx4 {vr(KV+12*t,4)}, v14, {sr(R_WS,4)}, s{sT0} offen offset:{2048*(t&1)} sc1")
    a(f"s_mov_b64 exec, s[{sM}:{sM+1}]")
    for t in (2*tp, 2*tp+1):
        a(f"buffer_load_dwordx4 {vr(KV+12*t+4,4)}, v15, {sr(R_WS,4)}, s{sT0} offen offset:{2048*(t&1)+1024} sc1")
        a(f"buffer_load_dwordx4 {vr(KV+12*t+8,4)}, v15, {sr(R_WS,4)}, s{sT0} offen offset:{2048*(t&1)+1536} sc1")
    a("s_mov_b64 exec, -1")
    if tp < 7: a(f"s_add_u32 s{sT0}, s{sT0}, 4096")
NINIT = int(OPT.get("ninit", 3))
A4POS = int(OPT.get("a4", 8))
for tp in range(NINIT):
    kvload(tp)
    if tp + 1 == A4POS: signal(vCA, vONEA, C_A4)
stamp(5)
waitc(vCA, C_A3, 4, 22)
a("s_setprio 1")
a(f"ds_read_b128 {vr(vQ,4)}, v{vAQ}")
a(f"v_add_u32 v{vAQ}, 1024, v{vAQ}")
a(f"s_waitcnt vmcnt({6*(NINIT-1)}) lgkmcnt(0)")
stamp(6)
cstamp(10)

K_ = lambda t: KV + 12 * t
V1 = lambda t: KV + 12 * t + 4
V2 = lambda t: KV + 12 * t + 8
def ex(X, i): a(f"v_exp_f32 v{X+i}, v{X+i}")
def exs(X, lo, hi):
    for i in range(lo, hi): ex(X, i)
def smf(v, p): a(f"v_smfmac_f32_32x32x32_bf16 {vr(vO,16)}, {vr(v,4)}, {vr(p,8)}, v{vIDX}")
def qk(d, t): mfma32(d, K_(t), vQ, "0")
def zeroO(): a(f"v_mfma_f32_32x32x8_bf16 {vr(vO,16)}, {vr(vZ,2)}, {vr(vZ,2)}, 0")
def dump():
    a(f"ds_write_b128 v{vAD}, {vr(vO,4)}")
    a(f"ds_write_b128 v{vAD}, {vr(vO+4,4)} offset:1024")
    a(f"ds_write_b32 v{vAS}, v{vO+8}")
    a(f"ds_write_b32 v{vPG}, v{vAS}")

def tiles_1_15(first):
    issued = [NINIT + 1 if first else 8]
    def preqk(tn):
        if first and tn % 2 == 0 and tn < 16:
            a(f"s_waitcnt vmcnt({6*(min(issued[0],8) - 1 - tn//2)})")
    def more(t):
        if first and t % 2 == 0 and issued[0] < 8:
            kvload(issued[0]); issued[0] += 1
            if issued[0] == A4POS: signal(vCA, vONEA, C_A4)
    X, Y = S1, S0
    smf(V1(0), Y); exs(X, 0, 3); smf(V2(0), Y + 8); exs(X, 3, 6); preqk(2); qk(Y, 2); exs(X, 6, 10); smf(V1(1), X); exs(X, 10, 16)
    a(f"s_add_u32 s{sSTEP}, s{sSTEP}, 1")
    for t in range(2, 16):
        X, Y = (S0, S1) if t % 2 == 0 else (S1, S0)
        exs(X, 0, 2); smf(V2(t - 1), Y + 8); exs(X, 2, 5)
        if t == 15:
            a("s_waitcnt lgkmcnt(0)")
            qk(Y, 0)
        else:
            preqk(t + 1)
            qk(Y, t + 1)
        if t == 14:
            a(f"ds_read_b128 {vr(vQ,4)}, v{vAQ}")
            a(f"v_add_u32 v{vAQ}, 1024, v{vAQ}")
        exs(X, 5, 10); smf(V1(t), X); more(t); exs(X, 10, 16)

qk(S0, 0)
zeroO()
qk(S1, 1)
a(f"s_mov_b32 s{sSTEP}, 0")
if NINIT < 8:
    kvload(NINIT)
    if A4POS == NINIT + 1: signal(vCA, vONEA, C_A4)
else:
    a("s_nop 8")
exs(S0, 0, 16)
a("s_nop 1")
tiles_1_15(True)
a("s_nop 0")
a("s_branch L_a_bound")
lines.append(".p2align 6")
lab("L_a_loop")
tiles_1_15(False)
a(f"s_cmp_eq_u32 s{sSTEP}, 8")
a("s_cbranch_scc1 L_a_fin")
lab("L_a_bound")
X, Y = S0, S1
smf(V2(15), Y + 8); exs(X, 0, 3); qk(Y, 1); exs(X, 3, 11)
dump()
ex(X, 11); zeroO(); exs(X, 12, 16)
a(f"v_add_u32 v{vAD}, {PSTRIDE}, v{vAD}")
a(f"v_add_u32 v{vAS}, {PSTRIDE}, v{vAS}")
a("s_branch L_a_loop")

lab("L_a_fin")
smf(V2(15), S1 + 8)
a(f"s_add_u32 s{sSTEP}, s{sWV}, {6 if STG3 else 4}")
a(f"s_mul_i32 s{sT2}, s{sSTEP}, {PSTRIDE}")
a(f"v_add_u32 v{vAQ}, s{sT2}, v14")
o_offsets()
dump()
a("s_setprio 3")
stamp(7)
cstamp(11)
gsync(vCA, vONEA, 16, C_GA)
if STG3:
    a(f"s_cmp_ge_u32 s{sWV}, 2")
    a("s_cbranch_scc1 L_a_nored")
a(f"ds_read_b128 v[48:51], v{vAQ} offset:8192")
for w in range(4):
    a(f"ds_read_b128 {vr(16+8*w,4)}, v{vAQ} offset:{2048*w}")
    a(f"ds_read_b128 {vr(20+8*w,4)}, v{vAQ} offset:{2048*w + 1024}")
a("s_waitcnt lgkmcnt(8)")
sum_check(48)
a("s_waitcnt lgkmcnt(0)")
a("s_cbranch_scc1 L_a_nost")
reduce_math(16, 14)
if OPT.get("fack", "1") == "1": a("s_waitcnt vmcnt(0)")
lab("L_a_nost")
signal(vCA, vONEA, C_DONE)
stamp(9)
lab("L_a_nored")
a("s_setprio 0")
cm("epoch update by WG0")
a(f"s_lshl_b32 s{sT0}, s2, 2")
a(f"s_add_u32 s{sT0}, s{sT0}, s{sWV}")
a(f"s_cmp_eq_u32 s{sT0}, 3")
a("s_cbranch_scc0 L_a_noep")
a(f"s_mov_b32 s{sT0}, 0")
setflag(16, 17, sT0)
lab("L_a_noep")
cm("safety check of every row sum; unsafe tiles are redone with the true row max")
a(f"s_mov_b32 s{sSTEP}, 0")
a(f"v_add_u32 v{vAS}, {L_PART + 8192}, v14")
lab("L_a_chk")
a(f"ds_read_b128 v[16:19], v{vAS}")
a("s_waitcnt lgkmcnt(0)")
sum_check(16)
a("s_cbranch_scc1 L_slow")
lab("L_a_next")
a(f"v_add_u32 v{vAS}, {PSTRIDE}, v{vAS}")
a(f"s_add_u32 s{sSTEP}, s{sSTEP}, 1")
a(f"s_cmp_lt_u32 s{sSTEP}, 8")
a("s_cbranch_scc1 L_a_chk")
a("s_branch L_end")

lab("L_h1")
if STAMPS:
    a("s_mov_b32 s81, 0")
    a("s_mov_b32 s92, 0")
    a("s_mov_b32 s93, 0")
cm("small loads: code prefetch, SSM parameters, skip fragments")
a(f"s_getpc_b64 s[{sM}:{sM+1}]")
lab("L_pc")
a(f"s_sub_u32 s{sM}, s{sM}, L_pc - {NAME}_kernel")
a(f"s_subb_u32 s{sM+1}, s{sM+1}, 0")
a(f"s_and_b32 s{sT0}, s{sRB}, 3")
a(f"s_lshl_b32 s{sT0}, s{sT0}, 2")
a(f"s_add_u32 s{sT0}, s{sT0}, s{sWV}")
a(f"s_mul_i32 s{sT0}, s{sT0}, 1536")
a("v_lshlrev_b32 v32, 7, v0")
a("v_min_u32 v32, 1408, v32")
a(f"v_add_u32 v32, s{sT0}, v32")
a(f"v_min_u32 v32, L_slow - {NAME}_kernel, v32")
a(f"global_load_dword v33, v32, s[{sM}:{sM+1}]")
a("v_and_b32 v17, 31, v0")
a("v_lshrrev_b32 v18, 5, v0")
a(f"s_lshl_b32 s{sT0}, s{sPB}, 5")
a(f"v_add_lshl_u32 v19, v17, s{sT0}, 1")
p0, p1, p2, vDSK = 60, 61, 62, 63
a(f"global_load_ushort v{p0}, v19, s[{P_LRE}:{P_LRE+1}]")
a(f"global_load_ushort v{p1}, v19, s[{P_LIM}:{P_LIM+1}]")
a(f"global_load_ushort v{p2}, v19, s[{P_LDT}:{P_LDT+1}]")
a(f"global_load_ushort v{vDSK}, v19, s[{P_DSK}:{P_DSK+1}]")
srd(R_WS, P_WS, WS_SIZE)
a("v_xor_b32 v14, v12, v13")
a("v_lshlrev_b32 v14, 4, v14")
a("v_lshl_add_u32 v14, v13, 8, v14")
a(f"v_add_u32 v8, s{sT2}, v14")
for ks in range(1, 4):
    a(f"v_xor_b32 v{8+ks}, {64*ks}, v8")
a("v_lshrrev_b32 v14, 2, v13")
a("v_lshl_add_u32 v14, v12, 3, v14")
a("v_lshlrev_b32 v14, 5, v14")
a("v_and_b32 v15, 3, v0")
a("v_lshl_add_u32 v14, v15, 3, v14")
a(f"v_add_u32 v14, s{sT4}, v14")
a(f"s_lshl_b32 s{sT0}, s{sWV}, 10")
a(f"s_add_u32 s{sT0}, s{sT0}, {L_KVP}")
a(f"v_add_u32 v15, s{sT0}, v6")
a(f"s_lshl_b32 s{sT0}, s{sRB}, 2")
a(f"s_add_u32 s{sT0}, s{sT0}, s{sGRP}")
a(f"s_lshr_b32 s{sT1}, s{sT0}, 1")
a(f"s_lshl_b32 s{sT1}, s{sT1}, 11")
a(f"s_and_b32 s{sT2}, s{sT0}, 1")
a(f"s_lshl_b32 s{sT0}, s{sT0}, 1")
a(f"s_add_u32 s{sT0}, s{sT0}, s{sKIND}")
a(f"s_lshl_b32 s{sT0}, s{sT0}, 6")
a(f"s_add_u32 s{sT6}, s{sT0}, {WS_FKV}")
a("v_and_b32 v34, 1, v12")
a("v_lshrrev_b32 v35, 1, v12")
a("v_lshlrev_b32 v16, 4, v13")
a(f"v_mov_b32 v{vCNT}, {L_CNT}")
a(f"v_mov_b32 v{vONE}, 1")
a(f"s_mov_b32 s{sSYNC}, 0")
a("s_waitcnt lgkmcnt(0)")
a(f"s_mul_i32 s{sTAG}, s{sTAG}, 1664525")
a(f"s_add_u32 s{sTAG}, s{sTAG}, 1013904223")
a(f"v_mov_b32 v36, s{sTAG}")
a(f"ds_write_b32 v{vCNT}, v36 offset:{C_TAG}")
def kvproj(kind):
    if kind == 0:
        a("v_lshl_add_u32 v16, v34, 9, v16")
        a("v_lshl_add_u32 v16, v35, 3, v16")
        a(f"s_lshl_b32 s{sT2}, s{sT2}, 8")
    else:
        a("v_lshl_add_u32 v16, v35, 8, v16")
        a("v_lshl_add_u32 v16, v34, 3, v16")
        a(f"s_lshl_b32 s{sT2}, s{sT2}, 9")
        a(f"s_add_u32 s{sT2}, s{sT2}, 1024")
    a(f"s_add_u32 s{sT1}, s{sT1}, s{sT2}")
    a(f"s_add_u32 s{sT5}, s{sT1}, {WS_KV}")
    a(f"s_waitcnt vmcnt(5)")
    stamp(1)
    b = 128
    for ks in range(4):
        a(f"ds_read_b128 {vr(b+8*ks,4)}, v{8+ks}")
        a(f"ds_read_b64_tr_b16 {vr(b+8*ks+4,2)}, v14 offset:{1024*ks}")
        a(f"ds_read_b64_tr_b16 {vr(b+8*ks+6,2)}, v14 offset:{1024*ks+128}")
    for ks in range(4):
        a(f"s_waitcnt lgkmcnt({9 - 3*ks})")
        x, w = vr(b+8*ks, 4), vr(b+8*ks+4, 4)
        if kind == 0: x, w = w, x
        a(f"v_mfma_f32_16x16x32_bf16 v[40:43], {x}, {w}, {'0' if ks == 0 else 'v[40:43]'}")
a(f"s_cmp_eq_u32 s{sKIND}, 0")
a("s_cbranch_scc0 L_h_vproj")
kvproj(0)
a("s_branch L_h_kvdone")
lab("L_h_vproj")
kvproj(1)
lab("L_h_kvdone")
a(f"s_cmp_eq_u32 s{sWV}, 0")
a("s_cbranch_scc1 L_h_pub")
a("s_nop 5")
a("ds_write_b128 v15, v[40:43]")
signal(vCNT, vONE, C_A1)
a("s_branch L_h_common")
lab("L_h_pub")
signal(vCNT, vONE, C_A1)
waitc(vCNT, C_A1, 4, 36)
for i in range(1, 4):
    a(f"ds_read_b128 {vr(40+4*i,4)}, v15 offset:{1024*i}")
a("s_waitcnt lgkmcnt(0)")
a("v_pk_add_f32 v[40:41], v[40:41], v[44:45]")
a("v_pk_add_f32 v[42:43], v[42:43], v[46:47]")
a("v_pk_add_f32 v[48:49], v[48:49], v[52:53]")
a("v_pk_add_f32 v[50:51], v[50:51], v[54:55]")
a("v_pk_add_f32 v[40:41], v[40:41], v[48:49]")
a("v_pk_add_f32 v[42:43], v[42:43], v[50:51]")
a("v_cvt_pk_bf16_f32 v40, v40, v41")
a("v_cvt_pk_bf16_f32 v41, v42, v43")
a(f"buffer_store_dwordx2 v[40:41], v16, {sr(R_WS,4)}, s{sT5} offen sc1")
lab("L_h_common")
cm("Q projection addresses")
QXA = list(range(48, 56))
a(f"s_lshr_b32 s{sT0}, s{sWV}, 1")
a(f"s_lshl_b32 s{sT0}, s{sT0}, 13")
a("v_xor_b32 v34, v13, v18")
a("v_lshlrev_b32 v34, 4, v34")
a("v_lshl_add_u32 v34, v17, 8, v34")
a(f"v_add_u32 v{QXA[0]}, s{sT0}, v34")
for ks in range(1, 8):
    a(f"v_xor_b32 v{QXA[ks]}, {32*ks}, v{QXA[0]}")
wtr_addr(vWT, 9, L_R1, 34)
a(f"v_lshl_add_u32 v56, v18, 9, v{vWT}")
a(f"v_add_u32 v56, {(L_WQ - L_R1) & 0xffffffff}, v56")
a(f"s_and_b32 s{sT1}, s{sWV}, 1")
a(f"s_lshl_b32 s{sT1}, s{sT1}, 12")
a(f"s_lshr_b32 s{sT2}, s{sWV}, 1")
a(f"s_lshl_b32 s{sT2}, s{sT2}, 10")
a(f"s_add_u32 s{sT1}, s{sT1}, s{sT2}")
a(f"s_add_u32 s{sT1}, s{sT1}, {L_QF}")
a(f"v_add_u32 v57, s{sT1}, v6")
a(f"v_mov_b32 v58, {f32(0.25 * LOG2E)}")
a("v_mov_b32 v59, v58")
cm("SSM offsets and addresses")
a(f"s_mov_b32 s{R_A}, s{P_BX}")
a(f"s_and_b32 s{R_A+1}, s{P_BX+1}, 0xffff")
srd(R_B, P_BRE, 512 * 1024)
srd(R_C, P_BIM, 512 * 1024)
a(f"s_mov_b32 s{sLO}, {f32(L_LO)}")
a(f"s_mov_b32 s{sHI}, {f32(L_HI)}")
a(f"s_lshl_b32 s{sT0}, s{sC}, 17")
a(f"s_lshl_b32 s{sT1}, s{sWV}, 15")
a(f"s_add_u32 s{sT3}, s{sT0}, s{sT1}")
a(f"s_lshl_b32 s{sT2}, s{sPB}, 6")
a(f"s_add_u32 s{sT4}, s{sT2}, s{sT3}")
wo_voff(vWO, 34)
a("v_lshrrev_b32 v36, 2, v0")
a("v_and_b32 v34, 3, v36")
a("v_bfe_u32 v35, v36, 2, 1")
a("v_lshl_add_u32 v34, v35, 4, v34")
a("v_lshrrev_b32 v35, 3, v36")
a("v_lshl_add_u32 v34, v35, 2, v34")
a("v_and_b32 v37, 3, v0")
a("v_lshlrev_b32 v35, 4, v37")
a("v_lshl_add_u32 v8, v34, 10, v35")
a("v_add_u32 v9, 8192, v8")
a(f"v_mul_u32_u24 v{vRB}, {RSTR}, v17")
a(f"v_lshl_add_u32 v{vRB}, v18, 4, v{vRB}")
a(f"v_add_u32 v{vRB}, {L_R1}, v{vRB}")
a(f"s_lshl_b32 s{sT1}, s{sWV}, 11")
a(f"s_add_u32 s{sT1}, s{sT1}, {L_SCR}")
a("v_xor_b32 v34, v12, v37")
a("v_lshlrev_b32 v34, 4, v34")
a("v_lshl_add_u32 v34, v36, 6, v34")
a(f"v_add_u32 v10, s{sT1}, v34")
a("v_bfe_u32 v34, v0, 2, 2")
a("v_xor_b32 v35, v34, v18")
a("v_lshlrev_b32 v35, 4, v35")
a("v_lshl_add_u32 v35, v17, 6, v35")
a(f"v_add_u32 v11, s{sT1}, v35")
a("v_xor_b32 v12, 32, v11")
a("v_lshl_add_u32 v34, v18, 3, v34")
a("v_lshlrev_b32 v34, 6, v34")
a("v_bfe_u32 v35, v0, 4, 1")
a("v_lshl_add_u32 v34, v35, 5, v34")
a("v_lshl_add_u32 v34, v37, 3, v34")
a(f"v_add_u32 v19, s{sT1}, v34")
a("v_lshlrev_b32 v34, 6, v17")
a("v_lshl_add_u32 v34, v18, 5, v34")
a(f"v_add_u32 v16, s{sT1}, v34")
a("v_lshlrev_b32 v38, 4, v18")
a("v_lshl_add_u32 v38, v17, 10, v38")
a("s_waitcnt vmcnt(0)")
a(f"s_cmp_eq_u32 s{sWV}, 0")
a("s_cbranch_scc0 L_h_nopub")
setflag(34, 35, sT6)
stamp(2)
lab("L_h_nopub")
a(f"buffer_load_dwordx4 v[104:107], v38, {sr(R_A,4)}, s{sT4} offen")
a(f"buffer_load_dwordx4 v[108:111], v38, {sr(R_A,4)}, s{sT4} offen offset:32")
waitc(vCNT, C_A1, 4, 34)
cm("Q projection, with the first xB loads interleaved")
ACC, QD = 32, 4
XR = 128
VM, LG = Cnt(), Cnt()
VM.issue("skip", 2)
xq = [(j, h) for j in range(16) for h in range(2)]
def xb1():
    j, h = xq.pop(0)
    a(f"buffer_load_dwordx4 {vr(XR+8*j+4*h,4)}, v{8+h}, {sr(R_A,4)}, s{sT3} offen offset:{64*j}")
    VM.issue(("x", j))
def qs(ks): return 64 + 8 * (ks % 5)
def qread(ks):
    a(f"ds_read_b64_tr_b16 {vr(qs(ks),2)}, v56 offset:{2048*ks}")
    a(f"ds_read_b64_tr_b16 {vr(qs(ks)+2,2)}, v56 offset:{2048*ks+512}")
    a(f"ds_read_b128 {vr(qs(ks)+4,4)}, v{QXA[ks % 8]} offset:{16384*(ks//8)}")
XE = int(OPT.get("xe", 2))
XPOST = int(OPT.get("xpost", 0))
TRIG = int(OPT.get("trig", 24))
for (k0, k1, cn) in ((0, 8, C_H0), (8, 16, C_H1), (16, 24, C_H2), (24, 32, C_H3)):
    waitc(vCNT, cn, 4, 30)
    if k0 == TRIG: signal(vCNT, vONE, C_S); a("s_waitcnt lgkmcnt(0)")
    for ks in range(k0, k0 + QD): qread(ks)
    for ks in range(k0, k1):
        if ks + QD < k1:
            qread(ks + QD)
            a(f"s_waitcnt lgkmcnt({3*QD})")
        else:
            a(f"s_waitcnt lgkmcnt({3*(k1-1-ks)})")
        mfma32(ACC, qs(ks), qs(ks) + 4, "0" if ks == 0 else None)
        if XE and ks >= 8 and ks % XE == 0: xb1()
    if k1 == TRIG + 1 or (k1 == 32 and TRIG == 32): signal(vCNT, vONE, C_S)
a(f"s_lshl_b32 s{sT0}, s{sWV}, 9")
a(f"s_add_u32 s{sT0}, s{sT0}, {L_ES}")
a("v_lshlrev_b32 v13, 3, v0")
a(f"v_add_u32 v13, s{sT0}, v13")
a("v_lshlrev_b32 v14, 4, v17")
a("v_lshlrev_b32 v15, 3, v17")
a(f"v_add_u32 v15, {L_ES}, v15")
a("v_lshlrev_b32 v1, 2, v17")
a("v_lshl_add_u32 v1, v18, 14, v1")
a(f"s_mul_i32 s{sT0}, s{sWV}, {8*RSTR}")
a(f"s_add_u32 s{sT0}, s{sT0}, {L_R1}")
a(f"v_add_u32 v29, s{sT0}, v{vL4}")
for r in range(0, 16, 2):
    a(f"v_pk_mul_f32 {vr(ACC+r,2)}, {vr(ACC+r,2)}, v[58:59]")
for j in range(8):
    a(f"v_cvt_pk_bf16_f32 v{ACC+j}, v{ACC+2*j}, v{ACC+2*j+1}")
a(f"ds_write_b128 v57, {vr(ACC,4)}")
a(f"ds_write_b128 v57, {vr(ACC+4,4)} offset:2048")
signal(vCNT, vONE, C_A3)
for _ in range(XPOST): xb1()
stamp(3)
a("s_setprio 2")
cm("SSM parameters")
q0, q1, q2, q3, q4 = 64, 65, 66, 67, 68
a(f"v_lshlrev_b32 v{p0}, 16, v{p0}")
a(f"v_lshlrev_b32 v{p1}, 16, v{p1}")
a(f"v_lshlrev_b32 v{p2}, 16, v{p2}")
a(f"v_mul_f32 v{p2}, {f32(LOG2E)}, v{p2}")
a(f"v_exp_f32 v{p2}, v{p2}")
a("s_nop 0")
a(f"v_cvt_pk_bf16_f32 v{p2}, v{p2}, v{p2}")
a(f"v_and_b32 v{p2}, 0xffff0000, v{p2}")
a(f"v_mul_f32 v{q0}, v{p2}, v{p0}")
a(f"v_mul_f32 v{q1}, v{p2}, v{p1}")
a(f"v_mul_f32 v{q0}, {f32(LOG2E)}, v{q0}")
a(f"v_mul_f32 v{q1}, {f32(1/(2*math.pi))}, v{q1}")
a(f"v_exp_f32 v{q0}, v{q0}")
a(f"v_rndne_f32 v{q2}, v{q1}")
a(f"v_sub_f32 v{q1}, v{q1}, v{q2}")
a(f"v_cos_f32 v{q2}, v{q1}")
a(f"v_sin_f32 v{q3}, v{q1}")
a(f"v_mul_f32 v{q4}, v{p0}, v{p0}")
a(f"v_fma_f32 v{q4}, v{p1}, v{p1}, v{q4}")
a(f"v_mul_f32 v{vL}, v{q0}, v{q2}")
a(f"v_mul_f32 v{vL+1}, v{q0}, v{q3}")
a(f"v_rcp_f32 v{q4}, v{q4}")
a(f"v_add_f32 v{q2}, -1.0, v{vL}")
a(f"v_add_f32 v{q4}, v{q4}, v{q4}")
a(f"v_mul_f32 v{q0}, v{q2}, v{p0}")
a(f"v_fma_f32 v{q0}, v{vL+1}, v{p1}, v{q0}")
a(f"v_mul_f32 v{q1}, v{vL+1}, v{p0}")
a(f"v_fma_f32 v{q1}, -v{q2}, v{p1}, v{q1}")
a(f"v_mul_f32 v{vCO}, v{q0}, v{q4}")
a(f"v_mul_f32 v{vCO+1}, v{q1}, v{q4}")
cmul(70, vL, vL); cmul(72, 70, 70); cmul(vL8, 72, 72); cmul(vL16_, vL8, vL8)
cm("skip term x*D via a diagonal B operand -> YACC")
YACC = 112
a("v_and_b32 v64, 1, v0")
a("v_lshlrev_b32 v64, 4, v64")
a(f"v_lshlrev_b32 v{vDSK}, v64, v{vDSK}")
a("v_lshrrev_b32 v64, 1, v17")
a("v_lshlrev_b32 v65, 2, v18")
a("v_sub_u32 v64, v64, v65")
for i in range(0, 8, 2):
    a(f"v_cmp_eq_u32 s[{sM}:{sM+1}], {8*(i//4) + i%4}, v64")
    a(f"v_cmp_eq_u32 vcc, {8*(i//4) + i%4 + 1}, v64")
    a("s_nop 0")
    a(f"v_cndmask_b32 v{80+i}, 0, v{vDSK}, s[{sM}:{sM+1}]")
    a(f"v_cndmask_b32 v{81+i}, 0, v{vDSK}, vcc")
waits(vm=VM.need("skip"))
mfma32(YACC, 104, 80, "0")
mfma32(YACC, 108, 84)
cm("per-lane powers: PS = L16^seg, M0 = L256^seg (if valid), M1 = M0*L128 (if valid)")
vPS, vM0, vM1, vO0, vO1 = 96, 98, 100, 102, 103
a(f"s_mov_b32 s{sM}, 0")
a(f"s_mov_b32 s{sM+1}, -1")
def powsel(dst, b1, b2, b4):
    a(f"v_cndmask_b32 v{dst}, 1.0, v{b1}, s[{sM}:{sM+1}]")
    a(f"v_cndmask_b32 v{dst+1}, 0, v{b1+1}, s[{sM}:{sM+1}]")
    for bit, b in ((0, b2), (1, b4)):
        L = uid("ps")
        a(f"s_bitcmp1_b32 s{sWV}, {bit}")
        a(f"s_cbranch_scc0 {L}")
        cmul(66, dst, b)
        a(f"v_mov_b64 {vr(dst,2)}, v[66:67]")
        lab(L)
cmul(68, vL16_, vL16_); cmul(70, 68, 68); cmul(72, 70, 70)
cmul(74, 72, 72); cmul(76, 74, 74); cmul(78, 76, 76)
powsel(vPS, vL16_, 68, 70)
powsel(vM0, 74, 76, 78)
cmul(vM1, vM0, 72)
a(f"s_lshl_b32 s{sT0}, s{sWV}, 2")
a(f"s_sub_u32 s{sT0}, s{sC}, s{sT0}")
a(f"s_sub_u32 s{sT0}, s{sT0}, 1")
a("v_lshlrev_b32 v30, 1, v18")
a(f"v_sub_u32 v{vO0}, s{sT0}, v30")
a(f"v_add_u32 v{vO1}, -1, v{vO0}")
a(f"v_mov_b32 v30, s{sC}")
for (vo, vm) in ((vO0, vM0), (vO1, vM1)):
    a(f"v_cmp_le_i32 vcc, 0, v{vo}")
    a("s_nop 1")
    a(f"v_cndmask_b32 v{vo}, v30, v{vo}, vcc")
    a(f"v_cndmask_b32 v{vm}, 0, v{vm}, vcc")
    a(f"v_cndmask_b32 v{vm+1}, 0, v{vm+1}, vcc")
    a(f"v_lshl_add_u32 v{vo}, v{vo}, 9, v14")
a(f"s_lshl_b32 s{sT0}, s{sPB}, 15")
a(f"s_lshl_b32 s{sT1}, s{sWV}, 13")
a(f"s_add_u32 s{sT5}, s{sT0}, s{sT1}")
a(f"s_add_u32 s{sT6}, s{sT5}, 4096")
a("v_lshlrev_b32 v17, 7, v0")
a(f"v_add_u32 v17, s{sT5}, v17")
a(f"s_lshl_b32 s{sT0}, s{sG}, 7")
a(f"s_lshl_b32 s{sT1}, s{sWV}, 17")
a(f"s_add_u32 s{sT0}, s{sT0}, s{sT1}")
a("v_lshlrev_b32 v18, 10, v0")
a(f"v_add_u32 v18, s{sT0}, v18")
a("v_add_u32 v28, 0x10000, v18")
def rows_dma(tag):
    a(f"s_mul_i32 s{sT1}, s{sWV}, {8*RSTR}")
    for i in range(8):
        a(f"s_add_u32 m0, s{sT1}, {L_R1 + RSTR*i}")
        a(f"s_add_u32 s{sT2}, s{sT5}, {1024*i}")
        dma(vL4, R_B, f"s{sT2}")
        a(f"s_add_u32 m0, s{sT1}, {L_R1 + RSTR*(32+i)}")
        a("s_nop 0")
        dma(vL4, R_C, f"s{sT2}")
    VM.issue(tag, 16)
def xtr(j):
    waits(vm=VM.need(("x", j)))
    a(f"ds_write_b128 v10, {vr(XR+8*j,4)}")
    a(f"ds_write_b128 v10, {vr(XR+8*j+4,4)} offset:1024")
    a(f"ds_read_b128 {vr(XR+8*j,4)}, v11")
    a(f"ds_read_b128 {vr(XR+8*j+4,4)}, v12")
assert len(xq) % 2 == 0
NX0 = 16 - len(xq) // 2
dstamp("u", 5)
for j in range(NX0): xtr(j)
dstamp("u", 6)
waitc(vCNT, C_A3, 4, 30)
waitc(vCNT, C_A4, 4, 30, sleep=1)
dstamp("u", 7)
a("s_setprio 0")
cm("U = x B^T")
while xq: xb1()
dstamp("u", 8)
rows_dma("B")
dstamp("u", 9)
for j in range(NX0, 16): xtr(j)
dstamp("u", 10)
waits(vm=VM.need("B"))
dstamp("u", 11)
if DBG == "u":
    def stamp(i, ins="s_memrealtime"):
        if i in (4, 15): _stamp0(i, ins)
a("s_setprio 2")
gsync(vCNT, vONE, 30, C_GH)
stamp(4)
UPRIO = int(OPT.get("uprio", 0)); YPRIO = int(OPT.get("yprio", 0))
a(f"s_setprio {UPRIO}")
AR, AI, BR = 32, 48, 64
def bread(k):
    s = BR + 8 * (k % 4)
    a(f"ds_read_b128 {vr(s,4)}, v{vRB} offset:{32*k}")
    a(f"ds_read_b128 {vr(s+4,4)}, v{vRB} offset:{32*k + 32*RSTR}")
PF = [(17, P_CRE), (17, P_CIM), (18, P_WO), (28, P_WO)]
for k in range(3): bread(k)
for k in range(32):
    if k + 3 < 32: bread(k + 3)
    a(f"s_waitcnt lgkmcnt({2*min(3, 31-k)})")
    s = BR + 8 * (k % 4)
    first = "0" if k == 0 else None
    mfma32(AR, XR + 4*k, s, first)
    mfma32(AI, XR + 4*k, s + 4, first)
    if k % 4 == 1 and PF:
        v, p = PF.pop(0)
        a(f"global_load_dword v{108+len(PF)}, v{v}, s[{p}:{p+1}]")
a("s_setprio 2")
srd(R_B, P_CRE, 512 * 1024)
srd(R_C, P_CIM, 512 * 1024)
srd(R_A, P_WO, 512 * 1024)
stamp(5)
cm("scale by coef into pair layout, local scan")
UP = 64
G0, G1, EA = 30, 104, 106
def sc1(r): a(f"v_pk_mul_f32 {vr(UP+2*r,2)}, {vr(vCO,2)}, {vr(AR+(r&~1),2)} op_sel:[0,{r&1}] op_sel_hi:[1,{r&1}]")
def sc2(r): a(f"v_pk_fma_f32 {vr(UP+2*r,2)}, {vr(vCO,2)}, {vr(AI+(r&~1),2)}, {vr(UP+2*r,2)} op_sel:[1,{r&1},0] op_sel_hi:[0,{r&1},1] neg_lo:[1,0,0]")
def c1(dst, L, g, u): a(f"v_pk_fma_f32 {vr(dst,2)}, {vr(L,2)}, {vr(g,2)}, {vr(u,2)} op_sel:[0,0,0] op_sel_hi:[0,1,1]")
def c2(dst, L, g): a(f"v_pk_fma_f32 {vr(dst,2)}, {vr(L,2)}, {vr(g,2)}, {vr(dst,2)} op_sel:[1,1,0] op_sel_hi:[1,0,1] neg_lo:[1,0,0]")
sc1(0); sc1(1); sc1(2); sc2(0); sc2(1); sc2(2)
src = UP
for r in range(1, 16):
    dst = EA if r == 7 else (G0 if r % 2 else G1)
    c1(dst, vL, src, UP + 2*r)
    if r < 14: sc1(r + 2)
    c2(dst, vL, src)
    if r < 14: sc2(r + 2)
    src = dst
a(f"ds_write_b64 v13, {vr(G0,2)}")
gsync(vCNT, vONE, 32, C_GH)
stamp(6)
ESR = 32
for s in range(8):
    a(f"ds_read_b64 {vr(ESR+2*s,2)}, v15 offset:{256*s}")
a(f"s_lshl_b32 s{sT6}, s{sPB}, 13")
a(f"s_add_u32 s{sT6}, s{sT6}, {WS_ST}")
a(f"s_lshl_b32 s{sT0}, s{sC}, 9")
a(f"s_add_u32 s{sT0}, s{sT0}, s{sT6}")
a(f"v_mov_b64 {vr(G0,2)}, 0")
a(f"s_mov_b32 s{sCNT}, {POLL_LIMIT}")
a("s_waitcnt lgkmcnt(0)")
a(f"v_mov_b64 {vr(G1,2)}, {vr(ESR,2)}")
for w in range(4):
    if w: cmul_add(G1, vL16_, G0, ESR + 4*w)
    if w < 3:
        a(f"s_cmp_eq_u32 s{sWV}, {w}")
        a("s_cbranch_scc1 L_h_segdone")
        cmul_add(G0, vL16_, G1, ESR + 4*w + 2)
cmul_add(48, vL16_, G1, ESR + 14)
a(f"v_mov_b32 v50, v49")
a(f"v_mov_b32 v49, s{sTAG}")
a(f"v_mov_b32 v51, s{sTAG}")
a("s_mov_b32 exec_hi, 0")
a(f"buffer_store_dwordx4 v[48:51], v14, {sr(R_WS,4)}, s{sT0} offen sc1")
a("s_mov_b64 exec, -1")
lab("L_h_segdone")
a(f"s_mov_b32 s{sM}, 0")
a(f"s_mov_b32 s{sM+1}, -1")
a(f"v_cndmask_b32 v{G0}, v{G0}, v{G1}, s[{sM}:{sM+1}]")
a(f"v_cndmask_b32 v{G0+1}, v{G0+1}, v{G1+1}, s[{sM}:{sM+1}]")
rows_dma("C")
stamp(7)
cm("chunk carry: each lane gathers two predecessors' end states")
lab("L_h_stpoll")
a(f"buffer_load_dwordx4 v[52:55], v{vO0}, {sr(R_WS,4)}, s{sT6} offen sc1")
a(f"buffer_load_dwordx4 v[56:59], v{vO1}, {sr(R_WS,4)}, s{sT6} offen sc1")
a("s_waitcnt vmcnt(0)")
a(f"v_cmp_ne_u32 vcc, s{sTAG}, v53")
a(f"v_cmp_ne_u32 s[{sM}:{sM+1}], s{sTAG}, v55")
a(f"s_or_b64 s[{sM}:{sM+1}], s[{sM}:{sM+1}], vcc")
a(f"v_cmp_ne_u32 vcc, s{sTAG}, v57")
a(f"s_or_b64 s[{sM}:{sM+1}], s[{sM}:{sM+1}], vcc")
a(f"v_cmp_ne_u32 vcc, s{sTAG}, v59")
a(f"s_or_b64 s[{sM}:{sM+1}], s[{sM}:{sM+1}], vcc")
a("s_cbranch_scc0 L_h_stok")
a(f"s_sub_u32 s{sCNT}, s{sCNT}, 1")
a("s_cbranch_scc0 L_h_stpoll")
lab("L_h_stok")
a(f"v_pk_mul_f32 {vr(G1,2)}, {vr(vM0,2)}, v[52:53] op_sel:[0,0] op_sel_hi:[1,0]")
a(f"v_pk_mul_f32 v[60:61], {vr(vM1,2)}, v[56:57] op_sel:[0,0] op_sel_hi:[1,0]")
a(f"v_pk_fma_f32 {vr(G1,2)}, {vr(vM0,2)}, v[54:55], {vr(G1,2)} op_sel:[1,0,0] op_sel_hi:[0,0,1] neg_lo:[1,0,0]")
a(f"v_pk_fma_f32 v[60:61], {vr(vM1,2)}, v[58:59], v[60:61] op_sel:[1,0,0] op_sel_hi:[0,0,1] neg_lo:[1,0,0]")
a(f"v_pk_add_f32 {vr(G1,2)}, {vr(G1,2)}, v[60:61]")
a(f"ds_write_b64 v13, {vr(G1,2)} offset:{L_CS - L_ES}")
gsync(vCNT, vONE, 32, C_GH)
for s in range(8):
    a(f"ds_read_b64 {vr(32+2*s,2)}, v15 offset:{L_CS - L_ES + 256*s}")
a(f"s_lshl_b32 s{sT0}, s{sC}, 2")
a(f"s_add_u32 s{sT0}, s{sT0}, s{sWV}")
a(f"s_lshl_b32 s{sT4}, s{sT0}, 16")
a(f"s_add_u32 s{sT4}, s{sT4}, {WS_H}")
a(f"s_lshl_b32 s{sT1}, s{sPB}, 11")
a(f"s_add_u32 s{sT1}, s{sT1}, s{sT4}")
a(f"s_add_u32 s{sT2}, s{sT1}, 32768")
a(f"s_lshl_b32 s{sT0}, s{sT0}, 10")
a(f"s_add_u32 s{sT5}, s{sT0}, {WS_FH}")
a(f"s_lshl_b32 s{sT0}, s{sPB}, 6")
a(f"s_add_u32 s{sF1}, s{sT0}, s{sT5}")
a("s_waitcnt lgkmcnt(0)")
stamp(8)
for st in (8, 4, 2):
    for j in range(0, st, 2):
        a(f"v_pk_add_f32 {vr(32+j,2)}, {vr(32+j,2)}, {vr(32+j+st,2)}")
cmul_add(G0, vPS, 32, G0)
cmul_add(EA, vL8, G0, EA)
HB = 32
for r in range(8):
    sa = G0 if r == 0 else UP + 2*(r-1)
    sb = EA if r == 0 else UP + 2*(r+7)
    c1(UP + 2*r, vL, sa, UP + 2*r)
    c1(UP + 2*(r+8), vL, sb, UP + 2*(r+8))
    c2(UP + 2*r, vL, sa)
    c2(UP + 2*(r+8), vL, sb)
for part in range(2):
    ng = "-" if part else ""
    for j in range(8):
        a(f"v_cvt_pk_bf16_f32 v{HB+8*part+j}, {ng}v{UP+4*j+part}, {ng}v{UP+4*j+2+part}")
    a(f"ds_write_b128 v16, {vr(HB+8*part,4)}")
    a(f"ds_write_b128 v16, {vr(HB+4+8*part,4)} offset:16")
    for ks in range(2):
        d = 48 + 8*part + 4*ks
        a(f"ds_read_b64_tr_b16 {vr(d,2)}, v19 offset:{1024*ks}")
        a(f"ds_read_b64_tr_b16 {vr(d+2,2)}, v19 offset:{1024*ks+256}")
for part in range(2):
    a(f"s_waitcnt lgkmcnt({6 if part == 0 else 0})")
    for ks in range(2):
        a(f"buffer_store_dwordx4 {vr(48+8*part+4*ks,4)}, v{vL4}, {sr(R_WS,4)}, s{sT1 if part == 0 else sT2} offen offset:{1024*ks} sc1")
a("v_and_b32 v8, 15, v0")
a("v_lshlrev_b32 v12, 6, v8")
a("s_waitcnt vmcnt(0)")
setflag(8, 9, sF1)
stamp(9)
def reduce_call(step_expr):
    a(step_expr)
    a(f"s_call_b64 s[{sRET}:{sRET+1}], L_reduce")
reduce_call(f"s_mov_b32 s{sSTEP}, s{sWV}")
a(f"s_add_u32 s{sSYNC}, s{sSYNC}, 4")
signal(vCNT, vONE, C_GH)
stamp(10)
poll(12, f"s{sT5}", 8)
setflag(8, 9, sT0)
a(f"s_mov_b32 s{sF1}, s{sT0}")
a(f"v_add_u32 v13, {(L_PART - L_R1) & 0xffffffff}, v{vWT}")
stamp(11)
a(f"s_setprio {YPRIO}")
HR, CR, NH = 128, 48, 32
WF, OF = 48, 128
def hload(k):
    if k % 4 == 0 and k: a(f"s_add_u32 s{sT4}, s{sT4}, 4096")
    a(f"buffer_load_dwordx4 {vr(HR+4*(k%NH),4)}, v{vL4}, {sr(R_WS,4)}, s{sT4} offen offset:{1024*(k%4)} sc1")
def cread(k):
    a(f"ds_read_b128 {vr(CR+4*(k%8),4)}, v{vRB} offset:{32*(k%32) + 32*RSTR*(k//32)}")
def oload(k):
    if k % 4 == 0 and k: a(f"s_add_u32 s{sT4}, s{sT4}, 4096")
    a(f"buffer_load_dwordx4 {vr(OF+4*k,4)}, v{vL4}, {sr(R_WS,4)}, s{sT4} offen offset:{1024*(k%4)} sc1")
def wo_dma(half):
    a(f"s_and_b32 s{sT0}, s{sWV}, 1")
    a(f"s_lshl_b32 s{sT0}, s{sT0}, 18")
    a(f"s_lshr_b32 s{sT1}, s{sWV}, 1")
    a(f"s_lshl_b32 s{sT1}, s{sT1}, 14")
    a(f"s_add_u32 s{sT0}, s{sT0}, s{sT1}")
    a(f"s_lshl_b32 s{sT1}, s{sG}, 7")
    a(f"s_add_u32 s{sT0}, s{sT0}, s{sT1}")
    a(f"s_mul_i32 s{sT1}, s{sWV}, {PSTRIDE}")
    for q in range(4):
        for i in range(2):
            a(f"s_add_u32 m0, s{sT1}, {(L_R1 if half else L_PART) + 2048*q + 1024*i}")
            a(f"s_add_u32 s{sT2}, s{sT0}, {32768*half + 65536*q + 8192*i}")
            dma(vWO, R_A, f"s{sT2}")
def wread(dst, k):
    o = PSTRIDE * ((k % 16) // 4) + 2048 * (k % 4)
    ad = 13 if k < 16 else vWT
    a(f"ds_read_b64_tr_b16 {vr(dst,2)}, v{ad} offset:{o}")
    a(f"ds_read_b64_tr_b16 {vr(dst+2,2)}, v{ad} offset:{o+1024}")
HD = 16
CD = 6
for k in range(HD): hload(k)
for k in range(CD): cread(k)
for k in range(64):
    if k == 48:
        a("s_setprio 2")
        a(f"s_lshr_b32 s{sT0}, s{sWV}, 1")
        a(f"s_lshl_b32 s{sT1}, s{sRB}, 1")
        a(f"s_add_u32 s{sT6}, s{sT0}, s{sT1}")
        a(f"s_lshl_b32 s{sT5}, s{sT6}, 11")
        a(f"s_add_u32 s{sT5}, s{sT5}, {WS_FO}")
        a(f"s_lshl_b32 s{sT4}, s{sT6}, 15")
        a(f"s_add_u32 s{sT4}, s{sT4}, {WS_O}")
        waitc(vCNT, C_GH, f"s{sSYNC}", 8)
        wo_dma(0)
        poll(12, f"s{sT5}", 8)
        a(f"s_setprio {YPRIO}")
    if k + HD < 64: hload(k + HD)
    if k >= 48: oload(k - 48)
    if k + CD < 64: cread(k + CD)
    if k < 48: a(f"s_waitcnt vmcnt({HD}) lgkmcnt({min(CD, 63-k)})")
    else: a(f"s_waitcnt lgkmcnt({min(CD, 63-k)})")
    if k % 2 == 0: mfma32(YACC, HR + 4*(k % NH), CR + 4*(k % 8))
    else: mfma32(32, HR + 4*(k % NH), CR + 4*(k % 8), "0" if k == 1 else None)
a("s_setprio 2")
gsync(vCNT, vONE, 8, C_GH)
stamp(12)
for k in range(16): wread(WF + 4*k, k)
wo_dma(1)
for j in range(8):
    a(f"v_pk_add_f32 {vr(YACC+2*j,2)}, {vr(YACC+2*j,2)}, {vr(32+2*j,2)}")
if STG3:
    a(f"s_cmp_ge_u32 s{sWV}, 2")
    a("s_cbranch_scc1 L_h_nor2")
    reduce_call(f"s_add_u32 s{sSTEP}, s{sWV}, 4")
    a(f"s_mov_b32 s{sF1}, s{sT0}")
    lab("L_h_nor2")
srd(R_B, P_OUT, 2048 * 4096)
a(f"s_lshl_b32 s{sT0}, s{sT3}, 2")
a(f"s_lshl_b32 s{sT1}, s{sPB}, 7")
a(f"s_add_u32 s{sT0}, s{sT0}, s{sT1}")
a(f"s_add_u32 s{sT0}, s{sT0}, 2048")
def store1(b, r):
    a(f"s_add_u32 s{sT1}, s{sT0}, {4096 * (8*(r//4) + r%4)}")
    a(f"buffer_store_dword v{b+r}, v1, {sr(R_B,4)}, s{sT1} offen{OUTFL}")
a("s_waitcnt vmcnt(0) lgkmcnt(0)")
if STG3:
    setflag(8, 9, sF1)
    a("v_and_b32 v12, 7, v0")
    a("v_lshlrev_b32 v12, 6, v12")
a(f"s_add_u32 s{sSYNC}, s{sSYNC}, 4")
signal(vCNT, vONE, C_GH)
a("s_setprio 0")
for k in range(16):
    mfma32(32, OF + 4*k, WF + 4*k, "0" if k == 0 else None)
    store1(YACC, k)
a("s_setprio 2")
waitc(vCNT, C_GH, f"s{sSYNC}", 8)
for k in range(16, 32): wread(WF + 4*(k-16), k)
stamp(13)
a(f"s_lshl_b32 s{sT0}, s{sT6}, 17")
a(f"s_lshl_b32 s{sT1}, s{sG}, 8")
a(f"s_add_u32 s{sT0}, s{sT0}, s{sT1}")
a(f"s_and_b32 s{sT1}, s{sWV}, 1")
a(f"s_lshl_b32 s{sT1}, s{sT1}, 7")
a(f"s_add_u32 s{sT0}, s{sT0}, s{sT1}")
stages = ((16, 24), (24, 32)) if STG3 else ((16, 32),)
for (k0, k1) in stages:
    last = k1 == 32
    a("s_setprio 2")
    a(f"s_add_u32 s{sT5}, s{sT5}, {16*64 if k0 == 16 else 8*64}")
    if last:
        cm("do not touch the flag lines before this workgroup's own tiles are out")
        waitc(vCNT, C_DONE, 2 if STG3 else 4, 8, sleep=2)
    poll(12, f"s{sT5}", 8)
    if last: stamp(14)
    else: a("s_setprio 0")
    for k in range(k0, k1): oload(k)
    a("s_waitcnt lgkmcnt(0)")
    for k in range(k0, k1):
        a(f"s_waitcnt vmcnt({k1-1-k})")
        mfma32(32, OF + 4*k, WF + 4*(k-16))
a("s_nop 10")
for r in range(16): store1(32, r)
a("s_branch L_end")

lab("L_reduce")
RB_ = 192
a(f"s_mul_i32 s{sT2}, s{sSTEP}, {PSTRIDE}")
a(f"v_add_u32 v10, s{sT2}, v{vL4}")
a(f"s_add_u32 s{sT2}, s{sT2}, {L_PART + 8192}")
a("v_and_b32 v9, 3, v0")
a("v_lshlrev_b32 v9, 2, v9")
a(f"v_add_u32 v9, {L_PROG}, v9")
o_offsets()
waitc(9, 0, f"s{sT2}", 8)
a(f"ds_read_b128 {vr(RB_+32,4)}, v10 offset:8192")
for w in range(4):
    a(f"ds_read_b128 {vr(RB_+8*w,4)}, v10 offset:{2048*w}")
    a(f"ds_read_b128 {vr(RB_+8*w+4,4)}, v10 offset:{2048*w + 1024}")
a("s_waitcnt lgkmcnt(8)")
sum_check(RB_ + 32)
a("s_waitcnt lgkmcnt(0)")
a("s_cbranch_scc1 L_red_skip")
reduce_math(RB_, vL4, flag=False)
a(f"s_setpc_b64 s[{sRET}:{sRET+1}]")
lab("L_red_skip")
a(f"s_mov_b32 s{sT0}, {WS_DUMMY}")
a(f"s_setpc_b64 s[{sRET}:{sRET+1}]")

lab("L_slow")
a(f"s_lshl_b32 s{sT0}, s{sSTEP}, 10")
a(f"s_add_u32 s{sT0}, s{sT0}, {L_QF}")
a(f"v_add_u32 v{vAQ}, s{sT0}, v14")
a(f"ds_read_b128 {vr(vQ,4)}, v{vAQ}")
a(f"v_mov_b32 v{vAD}, 0xff800000")
a("s_waitcnt lgkmcnt(0)")
for t in range(16):
    qk(S0, t)
    a("s_nop 11")
    for i in range(8):
        a(f"v_max3_f32 v{vAD}, v{S0+2*i}, v{S0+2*i+1}, v{vAD}")
a(f"s_lshl_b32 s{sT0}, s{sWV}, 8")
a(f"s_add_u32 s{sT0}, s{sT0}, {L_MAX}")
a("v_lshlrev_b32 v16, 2, v0")
a(f"v_add_u32 v16, s{sT0}, v16")
a(f"ds_write_b32 v16, v{vAD}")
gsync(vCA, vONEA, 16, C_GA)
a("v_and_b32 v16, 31, v0")
a("v_lshlrev_b32 v16, 2, v16")
a(f"v_add_u32 v16, {L_MAX}, v16")
for i in range(8):
    a(f"ds_read_b32 v{20+i}, v16 offset:{128*i}")
a("s_waitcnt lgkmcnt(0)")
for i in range(4):
    a(f"v_max3_f32 v{vAD}, v{20+2*i}, v{21+2*i}, v{vAD}")
for i in range(16):
    a(f"v_sub_f32 v{S1+i}, 0, v{vAD}")
zeroO()
for t in range(16):
    mfma32(S0, K_(t), vQ, vr(S1, 16))
    a("s_nop 11")
    exs(S0, 0, 16)
    a("s_nop 1")
    smf(V1(t), S0)
    smf(V2(t), S0 + 8)
a(f"s_lshl_b32 s{sT2}, s2, 14")
a(f"s_add_u32 s{sT2}, s{sT2}, {WS_SLOW}")
a(f"s_lshl_b32 s{sT3}, s{sWV}, 12")
a(f"s_add_u32 s{sT3}, s{sT3}, s{sT2}")
a("s_nop 11")
a(f"buffer_store_dwordx4 {vr(vO,4)}, v14, {sr(R_WS,4)}, s{sT3} offen sc1")
a(f"buffer_store_dwordx4 {vr(vO+4,4)}, v14, {sr(R_WS,4)}, s{sT3} offen offset:1024 sc1")
a(f"buffer_store_dword v{vO+8}, v14, {sr(R_WS,4)}, s{sT3} offen offset:2048 sc1")
a("s_waitcnt vmcnt(0)")
gsync(vCA, vONEA, 16, C_GA)
a(f"s_cmp_eq_u32 s{sWV}, 0")
a("s_cbranch_scc0 L_slow_e")
for w in range(4):
    a(f"buffer_load_dwordx4 {vr(16+8*w,4)}, v14, {sr(R_WS,4)}, s{sT2} offen sc1")
    a(f"buffer_load_dwordx4 {vr(20+8*w,4)}, v14, {sr(R_WS,4)}, s{sT2} offen offset:1024 sc1")
    a(f"buffer_load_dword v{48+w}, v14, {sr(R_WS,4)}, s{sT2} offen offset:2048 sc1")
    a(f"s_add_u32 s{sT2}, s{sT2}, 4096")
o_offsets()
a("s_waitcnt vmcnt(0)")
sum_check(48)
reduce_math(16, 14)
lab("L_slow_e")
gsync(vCA, vONEA, 16, C_GA)
a("s_branch L_a_next")

lab("L_end")
if STAMPS:
    a("s_waitcnt vmcnt(0)")
    stamp(15)
    a(f"s_lshl_b32 s{sT0}, s2, 3")
    a(f"s_xor_b32 s{sT1}, s{sW}, 4")
    a(f"s_add_u32 s{sT0}, s{sT0}, s{sT1}")
    a(f"s_lshl_b32 s{sT0}, s{sT0}, 6")
    a(f"s_add_u32 s{sT0}, s{sT0}, {WS_STAMP}")
    for i in range(16): a(f"v_mov_b32 v{16+i}, s{80+i}")
    a("v_mov_b32 v0, 0")
    a("s_mov_b64 exec, 1")
    for i in range(4):
        a(f"buffer_store_dwordx4 {vr(16+4*i,4)}, v0, {sr(R_WS,4)}, s{sT0} offen offset:{16*i}")
lab("L_exit")
a("s_endpgm")

hdr = open("cdna_kernels/" + NAME + ".s.ref").read().split("; Override launch")[0]
src = hdr + f"; @launch grid=(256,1,1) block=(512,1,1) lds={LDS_BYTES}\n" + f""".amdgcn_target "amdgcn-amd-amdhsa--gfx950"
.text
.globl {NAME}_kernel
.p2align 8
.type {NAME}_kernel,@function
{NAME}_kernel:
""" + "\n".join(lines) + f"""
.section .rodata,"a"
.p2align 6
.amdhsa_kernel {NAME}_kernel
  .amdhsa_next_free_vgpr 256
  .amdhsa_next_free_sgpr 102
  .amdhsa_accum_offset 256
  .amdhsa_group_segment_fixed_size 0
  .amdhsa_kernarg_size 136
  .amdhsa_user_sgpr_count 2
  .amdhsa_user_sgpr_kernarg_segment_ptr 1
  .amdhsa_system_sgpr_workgroup_id_x 1
.end_amdhsa_kernel
"""
open(OUT, "w").write(src)
```

```python
import sys, math, struct
NAME = "concat_heads__grouped_kv_mqa__ssm_conv_s5__prompt"
STAMPS = "--stamps" in sys.argv
OPT = dict(a.lstrip("-").split("=") for a in sys.argv[1:] if a.startswith("--") and "=" in a)
OUT = [a for a in sys.argv[1:] if not a.startswith("--")][0]
OUTFL = OPT.get("outfl", "").replace(",", " ")
if OUTFL: OUTFL = " " + OUTFL

def f32(x): return "0x%08x" % struct.unpack("<I", struct.pack("<f", x))[0]

WS_DUMMY = 0x800
WS_FKV = 0x1000
WS_FH  = 0x8000
WS_FO  = 0x20000
WS_KV  = 0x40000
WS_ST  = 0x60000
WS_O   = 0x100000
WS_H   = 0x400000
WS_SLOW = 0x800000
WS_STAMP = 15 << 20
WS_SIZE = 16 << 20
L_XA, L_WQ, L_KVP, L_WKV = 0, 65536, 131072, 140288
L_PART, L_R1, L_SCR, L_ES, L_QF, L_PROG, L_CNT = 0, 73728, 140288, 148480, 150528, 158720, 159744
L_MAX = 159808
L_CS = 160832

LDS_BYTES = 163840
PSTRIDE = 9216
RSTR = 1040
POLL_LIMIT = 400000
C_A1, C_H1, C_H2, C_A3, C_A4, C_GA, C_GH, C_TAG, C_H3, C_S, C_H0, C_DONE = 0, 4, 8, 12, 16, 20, 24, 28, 32, 36, 40, 44

lines = []
def a(s): lines.append("    " + s)
def lab(s): lines.append(s + ":")
def cm(s): lines.append("    ; " + s)
_uid = [0]
def uid(p):
    _uid[0] += 1
    return f"L_{p}{_uid[0]}"
def vr(b, n): return f"v[{b}:{b+n-1}]"
def sr(b, n): return f"s[{b}:{b+n-1}]"

sW, sTAG, sRB, sG, sC, sPB = 3, 4, 5, 6, 7, 8
sT0, sT1, sT2, sT3, sT4, sCNT = 9, 10, 11, 12, 13, 14
sWV = 15
P_AX, P_WQ, P_WK, P_WV, P_WO, P_BX, P_LRE, P_LIM = 16, 18, 20, 22, 24, 26, 28, 30
P_BRE, P_BIM, P_CRE, P_CIM, P_LDT, P_DSK, P_OUT, P_DBG = 32, 34, 36, 38, 40, 42, 44, 46
P_WS = 48
sT5, sT6 = 50, 51
R_WS, R_A, R_B, R_C = 52, 56, 60, 64
sM = 68
sGRP, sKIND, sSTEP, sSYNC = 70, 71, 72, 73
sRET = 74
sST = 76
sLO, sHI = 78, 79
sROT = sSTEP
sF1, sF2 = 0, 1

def srd(dst, ptr, nbytes):
    a(f"s_mov_b32 s{dst}, s{ptr}")
    a(f"s_and_b32 s{dst+1}, s{ptr+1}, 0xffff")
    a(f"s_mov_b32 s{dst+2}, {nbytes}")
    a(f"s_mov_b32 s{dst+3}, 0x20000")

PROBE = OPT.get("probe")
ROLE = ["?"]
if PROBE:
    PROBE = PROBE.split(","); STAMPS = True
def stamp(i, ins="s_memrealtime"):
    if PROBE and not (ins == "s_memrealtime" and (ROLE[0] in (PROBE[0], "E")) and str(i) in PROBE[1:]): return
    if STAMPS:
        a(f"{ins} s[{sST}:{sST+1}]")
        a("s_waitcnt lgkmcnt(0)")
        a(f"s_mov_b32 s{80+i}, s{sST}")
def cstamp(i): stamp(i, "s_memtime")
DBG = OPT.get("dbg", "")
def dstamp(name, i):
    if DBG == name: stamp(i)
_stamp0 = stamp


def dma(voff, srdr, soff, imm=0):
    o = f" offset:{imm}" if imm else ""
    a(f"buffer_load_dwordx4 v{voff}, {sr(srdr,4)}, {soff} offen{o} lds")

def poll(voff, soff, vt, sleep=0):
    L, D = uid("poll"), uid("pdone")
    a(f"s_mov_b32 s{sCNT}, {POLL_LIMIT}")
    lab(L)
    a(f"buffer_load_dword v{vt}, v{voff}, {sr(R_WS,4)}, {soff} offen sc1")
    a("s_waitcnt vmcnt(0)")
    a(f"v_cmp_ne_u32 vcc, s{sTAG}, v{vt}")
    a(f"s_cbranch_vccz {D}")
    a(f"s_sub_u32 s{sCNT}, s{sCNT}, 1")
    a(f"s_cbranch_scc0 {L}")
    lab(D)

def setflag(vt0, vt1, soff):
    a(f"v_mov_b32 v{vt0}, 0")
    a(f"v_mov_b32 v{vt1}, s{sTAG}")
    a("s_mov_b64 exec, 1")
    a(f"buffer_store_dword v{vt1}, v{vt0}, {sr(R_WS,4)}, s{soff} offen sc1")
    a("s_mov_b64 exec, -1")

def signal(vcnt, vone, off):
    a("s_mov_b64 exec, 1")
    a(f"ds_add_u32 v{vcnt}, v{vone} offset:{off}")
    a("s_mov_b64 exec, -1")

def waitc(vcnt, off, target, vt, sleep=0):
    L = uid("wc")
    lab(L)
    if sleep: a(f"s_sleep {sleep}")
    a(f"ds_read_b32 v{vt}, v{vcnt} offset:{off}")
    a("s_waitcnt lgkmcnt(0)")
    a(f"v_cmp_gt_u32 vcc, {target}, v{vt}")
    a(f"s_cbranch_vccnz {L}")

def gsync(vcnt, vone, vt, off):
    a("s_waitcnt lgkmcnt(0)")
    a(f"s_add_u32 s{sSYNC}, s{sSYNC}, 4")
    signal(vcnt, vone, off)
    waitc(vcnt, off, f"s{sSYNC}", vt)

def mfma32(d, x, y, c=None):
    c = vr(d, 16) if c is None else c
    a(f"v_mfma_f32_32x32x16_bf16 {vr(d,16)}, {vr(x,4)}, {vr(y,4)}, {c}")

def cmul_add(dst, L, g, u):
    a(f"v_pk_fma_f32 {vr(dst,2)}, {vr(L,2)}, {vr(g,2)}, {vr(u,2)} op_sel:[0,0,0] op_sel_hi:[0,1,1]")
    a(f"v_pk_fma_f32 {vr(dst,2)}, {vr(L,2)}, {vr(g,2)}, {vr(dst,2)} op_sel:[1,1,0] op_sel_hi:[1,0,1] neg_lo:[1,0,0]")

def cmul(dst, x, y):
    a(f"v_pk_mul_f32 {vr(dst,2)}, {vr(x,2)}, {vr(y,2)} op_sel:[0,0] op_sel_hi:[0,1]")
    a(f"v_pk_fma_f32 {vr(dst,2)}, {vr(x,2)}, {vr(y,2)}, {vr(dst,2)} op_sel:[1,1,0] op_sel_hi:[1,0,1] neg_lo:[1,0,0]")

def csq(dst, src, t):
    a(f"v_mul_f32 v{t}, v{src+1}, v{src+1}")
    a(f"v_add_f32 v{t+1}, v{src}, v{src}")
    a(f"v_fma_f32 v{dst}, v{src}, v{src}, -v{t}")
    a(f"v_mul_f32 v{dst+1}, v{t+1}, v{src+1}")

def xvoffsets(XO, t0):
    a(f"v_lshrrev_b32 v{t0}, 4, v0")
    a(f"v_and_b32 v{t0+1}, 15, v0")
    for i in range(4):
        a(f"v_add_u32 v{t0+2}, {4*i}, v{t0}")
        a(f"v_xor_b32 v{t0+3}, v{t0+1}, v{t0+2}")
        a(f"v_lshlrev_b32 v{t0+3}, 4, v{t0+3}")
        a(f"v_lshl_add_u32 v{XO+i}, v{t0+2}, 10, v{t0+3}")

def wtr_addr(dst, hhshift, base, t):
    a(f"v_bfe_u32 v{t}, v0, 2, 2")
    a(f"v_bfe_u32 v{t+1}, v0, 4, 1")
    a(f"v_bfe_u32 v{t+2}, v0, 1, 1")
    a(f"v_lshl_add_u32 v{t+1}, v{t+1}, 1, v{t+2}")
    a(f"s_and_b32 s{sT0}, s{sWV}, 1")
    a(f"s_lshl_b32 s{sT0}, s{sT0}, 2")
    a(f"v_add_u32 v{t+1}, s{sT0}, v{t+1}")
    a(f"v_bfe_u32 v{t+2}, v0, 3, 1")
    a(f"v_lshlrev_b32 v{t+2}, 2, v{t+2}")
    a(f"v_xor_b32 v{t+1}, v{t+1}, v{t+2}")
    a(f"v_lshlrev_b32 v{t+1}, 4, v{t+1}")
    a(f"v_lshl_add_u32 v{t+1}, v{t}, 7, v{t+1}")
    a(f"v_and_b32 v{t+2}, 1, v0")
    a(f"v_lshl_add_u32 v{t+1}, v{t+2}, 3, v{t+1}")
    a(f"v_lshrrev_b32 v{t+2}, 5, v0")
    a(f"v_lshl_add_u32 v{t+1}, v{t+2}, {hhshift}, v{t+1}")
    a(f"v_add_u32 v{dst}, {base}, v{t+1}")

def o_offsets():
    a(f"s_and_b32 s{sT0}, s{sSTEP}, 1")
    a(f"s_lshl_b32 s{sT1}, s{sRB}, 1")
    a(f"s_add_u32 s{sT0}, s{sT0}, s{sT1}")
    a(f"s_lshl_b32 s{sT0}, s{sT0}, 2")
    a(f"s_lshr_b32 s{sT1}, s{sSTEP}, 1")
    a(f"s_add_u32 s{sT0}, s{sT0}, s{sT1}")
    a(f"s_lshl_b32 s{sT0}, s{sT0}, 3")
    a(f"s_add_u32 s{sT0}, s{sT0}, s{sG}")
    a(f"s_lshl_b32 s{sT1}, s{sT0}, 10")
    a(f"s_add_u32 s{sT1}, s{sT1}, {WS_O}")
    a(f"s_lshl_b32 s{sT0}, s{sT0}, 6")
    a(f"s_add_u32 s{sT0}, s{sT0}, {WS_FO}")

def sum_check(b):
    a(f"v_pk_add_f32 {vr(b,2)}, {vr(b,2)}, {vr(b+2,2)}")
    a(f"v_add_f32 v{b}, v{b}, v{b+1}")
    a(f"v_cmp_nle_f32 vcc, s{sLO}, v{b}")
    a(f"v_cmp_nge_f32 s[{sM}:{sM+1}], s{sHI}, v{b}")
    a(f"s_or_b64 vcc, vcc, s[{sM}:{sM+1}]")

def reduce_math(b, vl16, flag=True):
    a(f"v_rcp_f32 v{b+34}, v{b+32}")
    for j in range(4):
        a(f"v_pk_add_f32 {vr(b+2*j,2)}, {vr(b+2*j,2)}, {vr(b+8+2*j,2)}")
    for j in range(4):
        a(f"v_pk_add_f32 {vr(b+16+2*j,2)}, {vr(b+16+2*j,2)}, {vr(b+24+2*j,2)}")
    for j in range(4):
        a(f"v_pk_add_f32 {vr(b+2*j,2)}, {vr(b+2*j,2)}, {vr(b+16+2*j,2)}")
    for j in range(4):
        a(f"v_pk_mul_f32 {vr(b+2*j,2)}, {vr(b+2*j,2)}, {vr(b+34,2)} op_sel_hi:[1,0]")
    for j in range(4):
        a(f"v_cvt_pk_bf16_f32 v{b+8+j}, v{b+2*j}, v{b+2*j+1}")
    a(f"buffer_store_dwordx4 {vr(b+8,4)}, v{vl16}, {sr(R_WS,4)}, s{sT1} offen sc1")
    if flag:
        a("s_waitcnt vmcnt(0)")
        setflag(b, b + 1, sT0)

STG3 = int(OPT.get("stg3", 0))
LOG2E = 1.4426950408889634
L_LO, L_HI = 2.0 ** -60, 2.0 ** 60


class Cnt:
    def __init__(s): s.q = []
    def issue(s, tag, n=1): s.q += [tag] * n
    def need(s, tag):
        if tag not in s.q: return None
        i = len(s.q) - 1 - s.q[::-1].index(tag)
        n = len(s.q) - 1 - i
        s.q = s.q[i + 1:]
        return n
def waits(vm=None, lg=None):
    p = []
    if vm is not None: p.append(f"vmcnt({min(vm,63)})")
    if lg is not None: p.append(f"lgkmcnt({min(lg,15)})")
    if p: a("s_waitcnt " + " ".join(p))

a("s_cmp_ge_u32 s2, 256")
a("s_cbranch_scc1 L_exit")
a(f"s_load_dwordx16 s[16:31], s[0:1], 0")
a(f"s_load_dwordx16 s[32:47], s[0:1], 64")
a(f"s_load_dwordx2 s[48:49], s[0:1], 128")
if STAMPS:
    for i in range(16): a(f"s_mov_b32 s{80+i}, 0")
    a("s_memrealtime s[80:81]")
    a("s_memtime s[92:93]")
a("v_lshrrev_b32 v1, 6, v0")
a("v_and_b32 v0, 63, v0")
a(f"v_readfirstlane_b32 s{sW}, v1")
a("v_lshlrev_b32 v6, 4, v0")
a("v_lshrrev_b32 v12, 4, v0")
a("v_and_b32 v13, 15, v0")
a(f"s_and_b32 s{sT0}, s2, 7")
a(f"s_lshr_b32 s{sT1}, s2, 3")
a(f"s_and_b32 s{sT2}, s{sT1}, 3")
a(f"s_lshl_b32 s{sRB}, s{sT0}, 2")
a(f"s_add_u32 s{sRB}, s{sRB}, s{sT2}")
a(f"s_lshr_b32 s{sG}, s{sT1}, 2")
a(f"s_and_b32 s{sGRP}, s{sG}, 3")
a(f"s_and_b32 s{sWV}, s{sW}, 3")
a(f"s_add_u32 s{sROT}, s{sG}, s{sRB}" if OPT.get("rot", "1") == "1" else f"s_mov_b32 s{sROT}, 0")
a(f"s_mov_b32 s{R_A+2}, {2048*1024}")
a(f"s_mov_b32 s{R_A+3}, 0x20000")
a(f"s_mov_b32 s{R_B+3}, 0x20000")
a(f"s_cmp_ge_u32 s{sW}, 4")
a("s_cbranch_scc1 L_attn")

vL, vL16_, vL8, vCO = 20, 22, 24, 26
vCNT, vONE, vWT, vRB, vL4, vWO = 2, 3, 4, 5, 6, 7
a("s_setprio 3")
for i in range(4):
    a(f"v_add_u32 v14, {4*i}, v12")
    a(f"v_xor_b32 v15, v13, v14")
    a(f"v_lshlrev_b32 v15, 4, v15")
    a(f"v_lshl_add_u32 v{16+i}, v14, 10, v15")
if OPT.get("map", "1") == "0":
    a(f"s_and_b32 s{sT2}, s{sT1}, 1")
    a(f"s_lshl_b32 s{sC}, s{sT0}, 1")
    a(f"s_add_u32 s{sC}, s{sC}, s{sT2}")
    a(f"s_lshr_b32 s{sPB}, s{sT1}, 1")
else:
    a(f"s_and_b32 s{sC}, s{sT0}, 6")
    a(f"s_lshl_b32 s{sC}, s{sC}, 1")
    a(f"s_add_u32 s{sC}, s{sC}, s{sT2}")
    a(f"s_and_b32 s{sPB}, s{sT0}, 1")
    a(f"s_lshl_b32 s{sPB}, s{sPB}, 3")
    a(f"s_add_u32 s{sPB}, s{sPB}, s{sG}")
a(f"s_lshr_b32 s{sKIND}, s{sG}, 2")
a(f"s_add_u32 s{sT3}, s{sROT}, s{sWV}")
a(f"s_and_b32 s{sT3}, s{sT3}, 3")
a(f"s_lshl_b32 s{sT0}, s{sRB}, 16")
a(f"s_lshl_b32 s{sT1}, s{sGRP}, 14")
a(f"s_add_u32 s{sT0}, s{sT0}, s{sT1}")
a(f"s_lshl_b32 s{sT1}, s{sT3}, 8")
a(f"s_add_u32 s{sT0}, s{sT0}, s{sT1}")
a(f"s_lshl_b32 s{sT2}, s{sGRP}, 12")
a(f"s_lshl_b32 s{sT1}, s{sWV}, 14")
a(f"s_add_u32 s{sT2}, s{sT2}, s{sT1}")
a(f"s_lshl_b32 s{sT3}, s{sT3}, 12")
a(f"s_lshl_b32 s{sT4}, s{sWV}, 12")
a(f"s_add_u32 s{sT4}, s{sT4}, {L_WKV}")
a(f"s_mov_b32 s{R_B+2}, 16384")
a(f"s_mov_b32 m0, s{sT2}")
a(f"s_cmp_eq_u32 s{sKIND}, 0")
a("s_waitcnt lgkmcnt(0)")
a(f"s_cselect_b32 s{R_B}, s{P_WK}, s{P_WV}")
a(f"s_cselect_b32 s{R_B+1}, s{P_WK+1}, s{P_WV+1}")
a(f"s_mov_b32 s{R_A}, s{P_AX}")
a(f"s_and_b32 s{R_A+1}, s{P_AX+1}, 0xffff")
a(f"s_and_b32 s{R_B+1}, s{R_B+1}, 0xffff")
for i in range(4):
    dma(16 + i, R_A, f"s{sT0}")
    a(f"s_add_u32 m0, s{sT2}, {1024*(i+1)}" if i < 3 else f"s_mov_b32 m0, s{sT4}")
    a("s_nop 0")
for i in range(4):
    dma(6, R_B, f"s{sT3}", imm=1024 * i)
a(f"s_load_dword s{sTAG}, s[{P_WS}:{P_WS+1}], 0")
a("s_barrier")
a("s_branch L_h1")

lab("L_attn"); ROLE[0] = "A"
vIDX, vZ, vAD, vAS, vAQ, vPG, vQ = 1, 2, 4, 5, 6, 7, 8
vCA, vONEA = 12, 13
S0, S1, vO, KV = 16, 32, 48, 64
cm("zero sync counters + progress words")
a("v_mov_b32 v2, 0")
a("v_mov_b32 v3, 0")
a("v_mov_b32 v4, 0")
a("v_mov_b32 v5, 0")
a(f"v_add_u32 v7, {L_PROG}, v6")
a("ds_write_b128 v7, v[2:5]")
a("ds_write_b128 v7, v[2:5] offset:1024")
a(f"v_lshl_add_u32 v14, s{sWV}, 2, v12")
a("v_xor_b32 v15, v13, v14")
a("v_lshlrev_b32 v15, 4, v15")
a("v_lshl_add_u32 v16, v14, 10, v15")
def wo_voff(dst, t):
    a(f"v_lshrrev_b32 v{t}, 3, v0")
    a(f"v_and_b32 v{t+1}, 7, v0")
    a(f"v_lshrrev_b32 v{t+2}, 2, v0")
    a(f"v_and_b32 v{t+2}, 4, v{t+2}")
    a(f"v_xor_b32 v{t+1}, v{t+1}, v{t+2}")
    a(f"v_lshlrev_b32 v{t+1}, 4, v{t+1}")
    a(f"v_lshl_add_u32 v{dst}, v{t}, 10, v{t+1}")
wo_voff(17, 20)
def wslice_setup():
    a(f"s_lshl_b32 s{sT0}, s{sG}, 7")
    a(f"s_lshl_b32 s{sT1}, s{sWV}, 15")
    a(f"s_add_u32 s{sT0}, s{sT0}, s{sT1}")
    a(f"s_lshl_b32 s{sT1}, s{sWV}, 12")
wslice_setup()
a(f"s_lshl_b32 s{sT4}, s{sRB}, 16")
a(f"s_lshl_b32 s{sT5}, s{sWV}, 10")
for m in range(1, 4):
    a(f"s_add_u32 s{sT2}, s{sGRP}, {m}")
    a(f"s_and_b32 s{sT2}, s{sT2}, 3")
    a(f"s_lshl_b32 s{sT3}, s{sT2}, 14")
    a(f"s_add_u32 s{95+m}, s{sT3}, s{sT4}")
    a(f"s_lshl_b32 s{sT3}, s{sT2}, 12")
    a(f"s_add_u32 s{98+m}, s{sT3}, s{sT5}")
a(f"s_mov_b32 s{R_B+2}, {512*1024}")
a(f"v_mov_b32 v{vCA}, {L_CNT}")
a(f"v_mov_b32 v{vONEA}, 1")
a("s_waitcnt lgkmcnt(0)")
a(f"s_mov_b32 s{R_A}, s{P_AX}")
a(f"s_and_b32 s{R_A+1}, s{P_AX+1}, 0xffff")
a(f"s_mov_b32 s{R_B}, s{P_WQ}")
a(f"s_and_b32 s{R_B+1}, s{P_WQ+1}, 0xffff")
if STAMPS:
    a("s_mov_b32 s81, 0")
    a("s_mov_b32 s93, 0")
a("s_barrier")
def qops(sl):
    a(f"s_add_u32 s{sT3}, s{sROT}, {sl}")
    a(f"s_and_b32 s{sT3}, s{sT3}, 3")
    a(f"s_lshl_b32 s{sT4}, s{sT3}, 8")
    a(f"s_lshl_b32 s{sT3}, s{sT3}, 17")
    a(f"s_add_u32 s{sT3}, s{sT3}, s{sT0}")
    for m in range(1, 4):
        a(f"s_add_u32 m0, s{98+m}, {L_XA + 16384*sl}")
        a(f"s_add_u32 s{sT2}, s{95+m}, s{sT4}")
        dma(16, R_A, f"s{sT2}")
    for i in range(4):
        a(f"s_add_u32 m0, s{sT1}, {L_WQ + 16384*sl + 1024*i}")
        a(f"s_add_u32 s{sT2}, s{sT3}, {8192*i}")
        dma(17, R_B, f"s{sT2}")
for sl in range(3): qops(sl)
a("s_waitcnt vmcnt(14)")
signal(vCA, vONEA, C_H0)
qops(3)
a("s_waitcnt vmcnt(14)")
signal(vCA, vONEA, C_H1)
stamp(1)
srd(R_WS, P_WS, WS_SIZE)
a(f"s_mov_b32 s{sSYNC}, 0")
a(f"s_mov_b32 s{sLO}, {f32(L_LO)}")
a(f"s_mov_b32 s{sHI}, {f32(L_HI)}")
cm("prefill V regs: rows 16 and 20 = ones, other rows >=16 zero")
a("v_and_b32 v24, 27, v0")
a("v_cmp_eq_u32 vcc, 16, v24")
a("v_mov_b32 v25, 0x3f803f80")
a("s_nop 0")
a("v_cndmask_b32 v24, 0, v25, vcc")
a("v_mov_b32 v25, v24")
for t in range(16):
    for j in range(4):
        a(f"v_mov_b64 {vr(KV+12*t+4+2*j,2)}, v[24:25]")
    if t == 5:
        a("s_waitcnt vmcnt(7)")
        signal(vCA, vONEA, C_H2)
a("s_waitcnt vmcnt(0)")
signal(vCA, vONEA, C_H3)
stamp(2)
a("v_mov_b32 v14, v6")
a("v_lshrrev_b32 v24, 5, v0")
a("v_and_b32 v25, 15, v0")
a("v_lshl_add_u32 v15, v24, 4, v25")
a("v_lshlrev_b32 v15, 4, v15")
a(f"v_mov_b32 v{vIDX}, 0xdddddddd")
a(f"s_lshl_b32 s{sT0}, s{sWV}, 11")
a(f"v_add_u32 v{vAD}, s{sT0}, v14")
a(f"s_lshl_b32 s{sT0}, s{sWV}, 2")
a(f"s_add_u32 s{sT1}, s{sT0}, {L_PART + 8192}")
a(f"v_add_u32 v{vAS}, s{sT1}, v14")
a(f"s_add_u32 s{sT1}, s{sT0}, {L_PROG}")
a(f"v_add_u32 v{vPG}, s{sT1}, v14")
a(f"v_add_u32 v{vAQ}, {L_QF}, v14")
a("v_lshlrev_b32 v21, 6, v0")
waitc(vCA, C_S, 4, 20)
a(f"ds_read_b32 v20, v{vCA} offset:{C_TAG}")
a(f"s_lshl_b32 s{sT0}, s{sWV}, 12")
a(f"s_add_u32 s{sT0}, s{sT0}, {WS_FKV}")
a("s_waitcnt lgkmcnt(0)")
a(f"v_readfirstlane_b32 s{sTAG}, v20")
poll(21, f"s{sT0}", 22)
stamp(4)
a(f"s_lshl_b32 s{sT0}, s{sWV}, 15")
a(f"s_add_u32 s{sT0}, s{sT0}, {WS_KV}")
a(f"s_mov_b32 s{sM}, 0xffff")
a(f"s_mov_b32 s{sM+1}, 0xffff")
def kvload(tp):
    for t in (2*tp, 2*tp+1):
        a(f"buffer_load_dwordx4 {vr(KV+12*t,4)}, v14, {sr(R_WS,4)}, s{sT0} offen offset:{2048*(t&1)} sc1")
    a(f"s_mov_b64 exec, s[{sM}:{sM+1}]")
    for t in (2*tp, 2*tp+1):
        a(f"buffer_load_dwordx4 {vr(KV+12*t+4,4)}, v15, {sr(R_WS,4)}, s{sT0} offen offset:{2048*(t&1)+1024} sc1")
        a(f"buffer_load_dwordx4 {vr(KV+12*t+8,4)}, v15, {sr(R_WS,4)}, s{sT0} offen offset:{2048*(t&1)+1536} sc1")
    a("s_mov_b64 exec, -1")
    if tp < 7: a(f"s_add_u32 s{sT0}, s{sT0}, 4096")
NINIT = int(OPT.get("ninit", 3))
A4POS = int(OPT.get("a4", 8))
for tp in range(NINIT):
    kvload(tp)
    if tp + 1 == A4POS: signal(vCA, vONEA, C_A4)
stamp(5)
waitc(vCA, C_A3, 4, 22)
a("s_setprio 1")
a(f"ds_read_b128 {vr(vQ,4)}, v{vAQ}")
a(f"v_add_u32 v{vAQ}, 1024, v{vAQ}")
a(f"s_waitcnt vmcnt({6*(NINIT-1)}) lgkmcnt(0)")
stamp(6)
cstamp(10)

K_ = lambda t: KV + 12 * t
V1 = lambda t: KV + 12 * t + 4
V2 = lambda t: KV + 12 * t + 8
def ex(X, i): a(f"v_exp_f32 v{X+i}, v{X+i}")
def exs(X, lo, hi):
    for i in range(lo, hi): ex(X, i)
def smf(v, p): a(f"v_smfmac_f32_32x32x32_bf16 {vr(vO,16)}, {vr(v,4)}, {vr(p,8)}, v{vIDX}")
def qk(d, t): mfma32(d, K_(t), vQ, "0")
def zeroO(): a(f"v_mfma_f32_32x32x8_bf16 {vr(vO,16)}, {vr(vZ,2)}, {vr(vZ,2)}, 0")
def dump():
    a(f"ds_write_b128 v{vAD}, {vr(vO,4)}")
    a(f"ds_write_b128 v{vAD}, {vr(vO+4,4)} offset:1024")
    a(f"ds_write_b32 v{vAS}, v{vO+8}")
    a(f"ds_write_b32 v{vPG}, v{vAS}")

def tiles_1_15(first):
    issued = [NINIT + 1 if first else 8]
    def preqk(tn):
        if first and tn % 2 == 0 and tn < 16:
            a(f"s_waitcnt vmcnt({6*(min(issued[0],8) - 1 - tn//2)})")
    def more(t):
        if first and t % 2 == 0 and issued[0] < 8:
            kvload(issued[0]); issued[0] += 1
            if issued[0] == A4POS: signal(vCA, vONEA, C_A4)
    X, Y = S1, S0
    smf(V1(0), Y); exs(X, 0, 3); smf(V2(0), Y + 8); exs(X, 3, 6); preqk(2); qk(Y, 2); exs(X, 6, 10); smf(V1(1), X); exs(X, 10, 16)
    a(f"s_add_u32 s{sSTEP}, s{sSTEP}, 1")
    for t in range(2, 16):
        X, Y = (S0, S1) if t % 2 == 0 else (S1, S0)
        exs(X, 0, 2); smf(V2(t - 1), Y + 8); exs(X, 2, 5)
        if t == 15:
            a("s_waitcnt lgkmcnt(0)")
            qk(Y, 0)
        else:
            preqk(t + 1)
            qk(Y, t + 1)
        if t == 14:
            a(f"ds_read_b128 {vr(vQ,4)}, v{vAQ}")
            a(f"v_add_u32 v{vAQ}, 1024, v{vAQ}")
        exs(X, 5, 10); smf(V1(t), X); more(t); exs(X, 10, 16)

qk(S0, 0)
zeroO()
qk(S1, 1)
a(f"s_mov_b32 s{sSTEP}, 0")
if NINIT < 8:
    kvload(NINIT)
    if A4POS == NINIT + 1: signal(vCA, vONEA, C_A4)
else:
    a("s_nop 8")
exs(S0, 0, 16)
a("s_nop 1")
tiles_1_15(True)
a("s_nop 0")
a("s_branch L_a_bound")
lines.append(".p2align 6")
lab("L_a_loop")
tiles_1_15(False)
a(f"s_cmp_eq_u32 s{sSTEP}, 8")
a("s_cbranch_scc1 L_a_fin")
lab("L_a_bound")
X, Y = S0, S1
smf(V2(15), Y + 8); exs(X, 0, 3); qk(Y, 1); exs(X, 3, 11)
dump()
ex(X, 11); zeroO(); exs(X, 12, 16)
a(f"v_add_u32 v{vAD}, {PSTRIDE}, v{vAD}")
a(f"v_add_u32 v{vAS}, {PSTRIDE}, v{vAS}")
a("s_branch L_a_loop")

lab("L_a_fin")
smf(V2(15), S1 + 8)
a(f"s_add_u32 s{sSTEP}, s{sWV}, {6 if STG3 else 4}")
a(f"s_mul_i32 s{sT2}, s{sSTEP}, {PSTRIDE}")
a(f"v_add_u32 v{vAQ}, s{sT2}, v14")
o_offsets()
dump()
a("s_setprio 3")
stamp(7)
cstamp(11)
gsync(vCA, vONEA, 16, C_GA)
if STG3:
    a(f"s_cmp_ge_u32 s{sWV}, 2")
    a("s_cbranch_scc1 L_a_nored")
a(f"ds_read_b128 v[48:51], v{vAQ} offset:8192")
for w in range(4):
    a(f"ds_read_b128 {vr(16+8*w,4)}, v{vAQ} offset:{2048*w}")
    a(f"ds_read_b128 {vr(20+8*w,4)}, v{vAQ} offset:{2048*w + 1024}")
a("s_waitcnt lgkmcnt(8)")
sum_check(48)
a("s_waitcnt lgkmcnt(0)")
a("s_cbranch_scc1 L_a_nost")
reduce_math(16, 14)
if OPT.get("fack", "1") == "1": a("s_waitcnt vmcnt(0)")
lab("L_a_nost")
signal(vCA, vONEA, C_DONE)
stamp(9)
lab("L_a_nored")
a("s_setprio 0")
cm("epoch update by WG0")
a(f"s_lshl_b32 s{sT0}, s2, 2")
a(f"s_add_u32 s{sT0}, s{sT0}, s{sWV}")
a(f"s_cmp_eq_u32 s{sT0}, 3")
a("s_cbranch_scc0 L_a_noep")
a(f"s_mov_b32 s{sT0}, 0")
setflag(16, 17, sT0)
lab("L_a_noep")
cm("safety check of every row sum; unsafe tiles are redone with the true row max")
a(f"s_mov_b32 s{sSTEP}, 0")
a(f"v_add_u32 v{vAS}, {L_PART + 8192}, v14")
lab("L_a_chk")
a(f"ds_read_b128 v[16:19], v{vAS}")
a("s_waitcnt lgkmcnt(0)")
sum_check(16)
a("s_cbranch_scc1 L_slow")
lab("L_a_next")
a(f"v_add_u32 v{vAS}, {PSTRIDE}, v{vAS}")
a(f"s_add_u32 s{sSTEP}, s{sSTEP}, 1")
a(f"s_cmp_lt_u32 s{sSTEP}, 8")
a("s_cbranch_scc1 L_a_chk")
a("s_branch L_end")

lab("L_h1"); ROLE[0] = "H"
if STAMPS:
    a("s_mov_b32 s81, 0")
    a("s_mov_b32 s92, 0")
    a("s_mov_b32 s93, 0")
cm("small loads: code prefetch, SSM parameters, skip fragments")
a(f"s_getpc_b64 s[{sM}:{sM+1}]")
lab("L_pc")
a(f"s_sub_u32 s{sM}, s{sM}, L_pc - {NAME}_kernel")
a(f"s_subb_u32 s{sM+1}, s{sM+1}, 0")
a(f"s_and_b32 s{sT0}, s{sRB}, 3")
a(f"s_lshl_b32 s{sT0}, s{sT0}, 2")
a(f"s_add_u32 s{sT0}, s{sT0}, s{sWV}")
a(f"s_mul_i32 s{sT0}, s{sT0}, 1536")
a("v_lshlrev_b32 v32, 7, v0")
a("v_min_u32 v32, 1408, v32")
a(f"v_add_u32 v32, s{sT0}, v32")
a(f"v_min_u32 v32, L_slow - {NAME}_kernel, v32")
a(f"global_load_dword v33, v32, s[{sM}:{sM+1}]")
a("v_and_b32 v17, 31, v0")
a("v_lshrrev_b32 v18, 5, v0")
a(f"s_lshl_b32 s{sT0}, s{sPB}, 5")
a(f"v_add_lshl_u32 v19, v17, s{sT0}, 1")
p0, p1, p2, vDSK = 60, 61, 62, 63
a(f"global_load_ushort v{p0}, v19, s[{P_LRE}:{P_LRE+1}]")
a(f"global_load_ushort v{p1}, v19, s[{P_LIM}:{P_LIM+1}]")
a(f"global_load_ushort v{p2}, v19, s[{P_LDT}:{P_LDT+1}]")
a(f"global_load_ushort v{vDSK}, v19, s[{P_DSK}:{P_DSK+1}]")
srd(R_WS, P_WS, WS_SIZE)
a("v_xor_b32 v14, v12, v13")
a("v_lshlrev_b32 v14, 4, v14")
a("v_lshl_add_u32 v14, v13, 8, v14")
a(f"v_add_u32 v8, s{sT2}, v14")
for ks in range(1, 4):
    a(f"v_xor_b32 v{8+ks}, {64*ks}, v8")
a("v_lshrrev_b32 v14, 2, v13")
a("v_lshl_add_u32 v14, v12, 3, v14")
a("v_lshlrev_b32 v14, 5, v14")
a("v_and_b32 v15, 3, v0")
a("v_lshl_add_u32 v14, v15, 3, v14")
a(f"v_add_u32 v14, s{sT4}, v14")
a(f"s_lshl_b32 s{sT0}, s{sWV}, 10")
a(f"s_add_u32 s{sT0}, s{sT0}, {L_KVP}")
a(f"v_add_u32 v15, s{sT0}, v6")
a(f"s_lshl_b32 s{sT0}, s{sRB}, 2")
a(f"s_add_u32 s{sT0}, s{sT0}, s{sGRP}")
a(f"s_lshr_b32 s{sT1}, s{sT0}, 1")
a(f"s_lshl_b32 s{sT1}, s{sT1}, 11")
a(f"s_and_b32 s{sT2}, s{sT0}, 1")
a(f"s_lshl_b32 s{sT0}, s{sT0}, 1")
a(f"s_add_u32 s{sT0}, s{sT0}, s{sKIND}")
a(f"s_lshl_b32 s{sT0}, s{sT0}, 6")
a(f"s_add_u32 s{sT6}, s{sT0}, {WS_FKV}")
a("v_and_b32 v34, 1, v12")
a("v_lshrrev_b32 v35, 1, v12")
a("v_lshlrev_b32 v16, 4, v13")
a(f"v_mov_b32 v{vCNT}, {L_CNT}")
a(f"v_mov_b32 v{vONE}, 1")
a(f"s_mov_b32 s{sSYNC}, 0")
a("s_waitcnt lgkmcnt(0)")
a(f"s_mul_i32 s{sTAG}, s{sTAG}, 1664525")
a(f"s_add_u32 s{sTAG}, s{sTAG}, 1013904223")
a(f"v_mov_b32 v36, s{sTAG}")
a(f"ds_write_b32 v{vCNT}, v36 offset:{C_TAG}")
def kvproj(kind):
    if kind == 0:
        a("v_lshl_add_u32 v16, v34, 9, v16")
        a("v_lshl_add_u32 v16, v35, 3, v16")
        a(f"s_lshl_b32 s{sT2}, s{sT2}, 8")
    else:
        a("v_lshl_add_u32 v16, v35, 8, v16")
        a("v_lshl_add_u32 v16, v34, 3, v16")
        a(f"s_lshl_b32 s{sT2}, s{sT2}, 9")
        a(f"s_add_u32 s{sT2}, s{sT2}, 1024")
    a(f"s_add_u32 s{sT1}, s{sT1}, s{sT2}")
    a(f"s_add_u32 s{sT5}, s{sT1}, {WS_KV}")
    a(f"s_waitcnt vmcnt(5)")
    stamp(1)
    b = 128
    for ks in range(4):
        a(f"ds_read_b128 {vr(b+8*ks,4)}, v{8+ks}")
        a(f"ds_read_b64_tr_b16 {vr(b+8*ks+4,2)}, v14 offset:{1024*ks}")
        a(f"ds_read_b64_tr_b16 {vr(b+8*ks+6,2)}, v14 offset:{1024*ks+128}")
    for ks in range(4):
        a(f"s_waitcnt lgkmcnt({9 - 3*ks})")
        x, w = vr(b+8*ks, 4), vr(b+8*ks+4, 4)
        if kind == 0: x, w = w, x
        a(f"v_mfma_f32_16x16x32_bf16 v[40:43], {x}, {w}, {'0' if ks == 0 else 'v[40:43]'}")
a(f"s_cmp_eq_u32 s{sKIND}, 0")
a("s_cbranch_scc0 L_h_vproj")
kvproj(0)
a("s_branch L_h_kvdone")
lab("L_h_vproj")
kvproj(1)
lab("L_h_kvdone")
a(f"s_cmp_eq_u32 s{sWV}, 0")
a("s_cbranch_scc1 L_h_pub")
a("s_nop 5")
a("ds_write_b128 v15, v[40:43]")
signal(vCNT, vONE, C_A1)
a("s_branch L_h_common")
lab("L_h_pub")
signal(vCNT, vONE, C_A1)
waitc(vCNT, C_A1, 4, 36)
for i in range(1, 4):
    a(f"ds_read_b128 {vr(40+4*i,4)}, v15 offset:{1024*i}")
a("s_waitcnt lgkmcnt(0)")
a("v_pk_add_f32 v[40:41], v[40:41], v[44:45]")
a("v_pk_add_f32 v[42:43], v[42:43], v[46:47]")
a("v_pk_add_f32 v[48:49], v[48:49], v[52:53]")
a("v_pk_add_f32 v[50:51], v[50:51], v[54:55]")
a("v_pk_add_f32 v[40:41], v[40:41], v[48:49]")
a("v_pk_add_f32 v[42:43], v[42:43], v[50:51]")
a("v_cvt_pk_bf16_f32 v40, v40, v41")
a("v_cvt_pk_bf16_f32 v41, v42, v43")
a(f"buffer_store_dwordx2 v[40:41], v16, {sr(R_WS,4)}, s{sT5} offen sc1")
lab("L_h_common")
cm("Q projection addresses")
QXA = list(range(48, 56))
a(f"s_lshr_b32 s{sT0}, s{sWV}, 1")
a(f"s_lshl_b32 s{sT0}, s{sT0}, 13")
a("v_xor_b32 v34, v13, v18")
a("v_lshlrev_b32 v34, 4, v34")
a("v_lshl_add_u32 v34, v17, 8, v34")
a(f"v_add_u32 v{QXA[0]}, s{sT0}, v34")
for ks in range(1, 8):
    a(f"v_xor_b32 v{QXA[ks]}, {32*ks}, v{QXA[0]}")
wtr_addr(vWT, 9, L_R1, 34)
a(f"v_lshl_add_u32 v56, v18, 9, v{vWT}")
a(f"v_add_u32 v56, {(L_WQ - L_R1) & 0xffffffff}, v56")
a(f"s_and_b32 s{sT1}, s{sWV}, 1")
a(f"s_lshl_b32 s{sT1}, s{sT1}, 12")
a(f"s_lshr_b32 s{sT2}, s{sWV}, 1")
a(f"s_lshl_b32 s{sT2}, s{sT2}, 10")
a(f"s_add_u32 s{sT1}, s{sT1}, s{sT2}")
a(f"s_add_u32 s{sT1}, s{sT1}, {L_QF}")
a(f"v_add_u32 v57, s{sT1}, v6")
a(f"v_mov_b32 v58, {f32(0.25 * LOG2E)}")
a("v_mov_b32 v59, v58")
cm("SSM offsets and addresses")
a(f"s_mov_b32 s{R_A}, s{P_BX}")
a(f"s_and_b32 s{R_A+1}, s{P_BX+1}, 0xffff")
srd(R_B, P_BRE, 512 * 1024)
srd(R_C, P_BIM, 512 * 1024)
a(f"s_mov_b32 s{sLO}, {f32(L_LO)}")
a(f"s_mov_b32 s{sHI}, {f32(L_HI)}")
a(f"s_lshl_b32 s{sT0}, s{sC}, 17")
a(f"s_lshl_b32 s{sT1}, s{sWV}, 15")
a(f"s_add_u32 s{sT3}, s{sT0}, s{sT1}")
a(f"s_lshl_b32 s{sT2}, s{sPB}, 6")
a(f"s_add_u32 s{sT4}, s{sT2}, s{sT3}")
wo_voff(vWO, 34)
a("v_lshrrev_b32 v36, 2, v0")
a("v_and_b32 v34, 3, v36")
a("v_bfe_u32 v35, v36, 2, 1")
a("v_lshl_add_u32 v34, v35, 4, v34")
a("v_lshrrev_b32 v35, 3, v36")
a("v_lshl_add_u32 v34, v35, 2, v34")
a("v_and_b32 v37, 3, v0")
a("v_lshlrev_b32 v35, 4, v37")
a("v_lshl_add_u32 v8, v34, 10, v35")
a("v_add_u32 v9, 8192, v8")
a(f"v_mul_u32_u24 v{vRB}, {RSTR}, v17")
a(f"v_lshl_add_u32 v{vRB}, v18, 4, v{vRB}")
a(f"v_add_u32 v{vRB}, {L_R1}, v{vRB}")
a(f"s_lshl_b32 s{sT1}, s{sWV}, 11")
a(f"s_add_u32 s{sT1}, s{sT1}, {L_SCR}")
a("v_xor_b32 v34, v12, v37")
a("v_lshlrev_b32 v34, 4, v34")
a("v_lshl_add_u32 v34, v36, 6, v34")
a(f"v_add_u32 v10, s{sT1}, v34")
a("v_bfe_u32 v34, v0, 2, 2")
a("v_xor_b32 v35, v34, v18")
a("v_lshlrev_b32 v35, 4, v35")
a("v_lshl_add_u32 v35, v17, 6, v35")
a(f"v_add_u32 v11, s{sT1}, v35")
a("v_xor_b32 v12, 32, v11")
a("v_lshl_add_u32 v34, v18, 3, v34")
a("v_lshlrev_b32 v34, 6, v34")
a("v_bfe_u32 v35, v0, 4, 1")
a("v_lshl_add_u32 v34, v35, 5, v34")
a("v_lshl_add_u32 v34, v37, 3, v34")
a(f"v_add_u32 v19, s{sT1}, v34")
a("v_lshlrev_b32 v34, 6, v17")
a("v_lshl_add_u32 v34, v18, 5, v34")
a(f"v_add_u32 v16, s{sT1}, v34")
a("v_lshlrev_b32 v38, 4, v18")
a("v_lshl_add_u32 v38, v17, 10, v38")
a("s_waitcnt vmcnt(0)")
a(f"s_cmp_eq_u32 s{sWV}, 0")
a("s_cbranch_scc0 L_h_nopub")
setflag(34, 35, sT6)
stamp(2)
lab("L_h_nopub")
a(f"buffer_load_dwordx4 v[104:107], v38, {sr(R_A,4)}, s{sT4} offen")
a(f"buffer_load_dwordx4 v[108:111], v38, {sr(R_A,4)}, s{sT4} offen offset:32")
waitc(vCNT, C_A1, 4, 34)
cm("Q projection, with the first xB loads interleaved")
ACC, QD = 32, 4
XR = 128
VM, LG = Cnt(), Cnt()
VM.issue("skip", 2)
xq = [(j, h) for j in range(16) for h in range(2)]
def xb1():
    j, h = xq.pop(0)
    a(f"buffer_load_dwordx4 {vr(XR+8*j+4*h,4)}, v{8+h}, {sr(R_A,4)}, s{sT3} offen offset:{64*j}")
    VM.issue(("x", j))
def qs(ks): return 64 + 8 * (ks % 5)
def qread(ks):
    a(f"ds_read_b64_tr_b16 {vr(qs(ks),2)}, v56 offset:{2048*ks}")
    a(f"ds_read_b64_tr_b16 {vr(qs(ks)+2,2)}, v56 offset:{2048*ks+512}")
    a(f"ds_read_b128 {vr(qs(ks)+4,4)}, v{QXA[ks % 8]} offset:{16384*(ks//8)}")
XE = int(OPT.get("xe", 2))
XPOST = int(OPT.get("xpost", 0))
TRIG = int(OPT.get("trig", 24))
for (k0, k1, cn) in ((0, 8, C_H0), (8, 16, C_H1), (16, 24, C_H2), (24, 32, C_H3)):
    waitc(vCNT, cn, 4, 30)
    if k0 == TRIG: signal(vCNT, vONE, C_S); a("s_waitcnt lgkmcnt(0)")
    for ks in range(k0, k0 + QD): qread(ks)
    for ks in range(k0, k1):
        if ks + QD < k1:
            qread(ks + QD)
            a(f"s_waitcnt lgkmcnt({3*QD})")
        else:
            a(f"s_waitcnt lgkmcnt({3*(k1-1-ks)})")
        mfma32(ACC, qs(ks), qs(ks) + 4, "0" if ks == 0 else None)
        if XE and ks >= 8 and ks % XE == 0: xb1()
    if k1 == TRIG + 1 or (k1 == 32 and TRIG == 32): signal(vCNT, vONE, C_S)
a(f"s_lshl_b32 s{sT0}, s{sWV}, 9")
a(f"s_add_u32 s{sT0}, s{sT0}, {L_ES}")
a("v_lshlrev_b32 v13, 3, v0")
a(f"v_add_u32 v13, s{sT0}, v13")
a("v_lshlrev_b32 v14, 4, v17")
a("v_lshlrev_b32 v15, 3, v17")
a(f"v_add_u32 v15, {L_ES}, v15")
a("v_lshlrev_b32 v1, 2, v17")
a("v_lshl_add_u32 v1, v18, 14, v1")
a(f"s_mul_i32 s{sT0}, s{sWV}, {8*RSTR}")
a(f"s_add_u32 s{sT0}, s{sT0}, {L_R1}")
a(f"v_add_u32 v29, s{sT0}, v{vL4}")
for r in range(0, 16, 2):
    a(f"v_pk_mul_f32 {vr(ACC+r,2)}, {vr(ACC+r,2)}, v[58:59]")
for j in range(8):
    a(f"v_cvt_pk_bf16_f32 v{ACC+j}, v{ACC+2*j}, v{ACC+2*j+1}")
a(f"ds_write_b128 v57, {vr(ACC,4)}")
a(f"ds_write_b128 v57, {vr(ACC+4,4)} offset:2048")
signal(vCNT, vONE, C_A3)
for _ in range(XPOST): xb1()
stamp(3)
a("s_setprio 2")
cm("SSM parameters")
q0, q1, q2, q3, q4 = 64, 65, 66, 67, 68
a(f"v_lshlrev_b32 v{p0}, 16, v{p0}")
a(f"v_lshlrev_b32 v{p1}, 16, v{p1}")
a(f"v_lshlrev_b32 v{p2}, 16, v{p2}")
a(f"v_mul_f32 v{p2}, {f32(LOG2E)}, v{p2}")
a(f"v_exp_f32 v{p2}, v{p2}")
a("s_nop 0")
a(f"v_cvt_pk_bf16_f32 v{p2}, v{p2}, v{p2}")
a(f"v_and_b32 v{p2}, 0xffff0000, v{p2}")
a(f"v_mul_f32 v{q0}, v{p2}, v{p0}")
a(f"v_mul_f32 v{q1}, v{p2}, v{p1}")
a(f"v_mul_f32 v{q0}, {f32(LOG2E)}, v{q0}")
a(f"v_mul_f32 v{q1}, {f32(1/(2*math.pi))}, v{q1}")
a(f"v_exp_f32 v{q0}, v{q0}")
a(f"v_rndne_f32 v{q2}, v{q1}")
a(f"v_sub_f32 v{q1}, v{q1}, v{q2}")
a(f"v_cos_f32 v{q2}, v{q1}")
a(f"v_sin_f32 v{q3}, v{q1}")
a(f"v_mul_f32 v{q4}, v{p0}, v{p0}")
a(f"v_fma_f32 v{q4}, v{p1}, v{p1}, v{q4}")
a(f"v_mul_f32 v{vL}, v{q0}, v{q2}")
a(f"v_mul_f32 v{vL+1}, v{q0}, v{q3}")
a(f"v_rcp_f32 v{q4}, v{q4}")
a(f"v_add_f32 v{q2}, -1.0, v{vL}")
a(f"v_add_f32 v{q4}, v{q4}, v{q4}")
a(f"v_mul_f32 v{q0}, v{q2}, v{p0}")
a(f"v_fma_f32 v{q0}, v{vL+1}, v{p1}, v{q0}")
a(f"v_mul_f32 v{q1}, v{vL+1}, v{p0}")
a(f"v_fma_f32 v{q1}, -v{q2}, v{p1}, v{q1}")
a(f"v_mul_f32 v{vCO}, v{q0}, v{q4}")
a(f"v_mul_f32 v{vCO+1}, v{q1}, v{q4}")
cmul(70, vL, vL); cmul(72, 70, 70); cmul(vL8, 72, 72); cmul(vL16_, vL8, vL8)
cm("skip term x*D via a diagonal B operand -> YACC")
YACC = 112
a("v_and_b32 v64, 1, v0")
a("v_lshlrev_b32 v64, 4, v64")
a(f"v_lshlrev_b32 v{vDSK}, v64, v{vDSK}")
a("v_lshrrev_b32 v64, 1, v17")
a("v_lshlrev_b32 v65, 2, v18")
a("v_sub_u32 v64, v64, v65")
for i in range(0, 8, 2):
    a(f"v_cmp_eq_u32 s[{sM}:{sM+1}], {8*(i//4) + i%4}, v64")
    a(f"v_cmp_eq_u32 vcc, {8*(i//4) + i%4 + 1}, v64")
    a("s_nop 0")
    a(f"v_cndmask_b32 v{80+i}, 0, v{vDSK}, s[{sM}:{sM+1}]")
    a(f"v_cndmask_b32 v{81+i}, 0, v{vDSK}, vcc")
waits(vm=VM.need("skip"))
mfma32(YACC, 104, 80, "0")
mfma32(YACC, 108, 84)
cm("per-lane powers: PS = L16^seg, M0 = L256^seg (if valid), M1 = M0*L128 (if valid)")
vPS, vM0, vM1, vO0, vO1 = 96, 98, 100, 102, 103
a(f"s_mov_b32 s{sM}, 0")
a(f"s_mov_b32 s{sM+1}, -1")
def powsel(dst, b1, b2, b4):
    a(f"v_cndmask_b32 v{dst}, 1.0, v{b1}, s[{sM}:{sM+1}]")
    a(f"v_cndmask_b32 v{dst+1}, 0, v{b1+1}, s[{sM}:{sM+1}]")
    for bit, b in ((0, b2), (1, b4)):
        L = uid("ps")
        a(f"s_bitcmp1_b32 s{sWV}, {bit}")
        a(f"s_cbranch_scc0 {L}")
        cmul(66, dst, b)
        a(f"v_mov_b64 {vr(dst,2)}, v[66:67]")
        lab(L)
cmul(68, vL16_, vL16_); cmul(70, 68, 68); cmul(72, 70, 70)
cmul(74, 72, 72); cmul(76, 74, 74); cmul(78, 76, 76)
powsel(vPS, vL16_, 68, 70)
powsel(vM0, 74, 76, 78)
cmul(vM1, vM0, 72)
a(f"s_lshl_b32 s{sT0}, s{sWV}, 2")
a(f"s_sub_u32 s{sT0}, s{sC}, s{sT0}")
a(f"s_sub_u32 s{sT0}, s{sT0}, 1")
a("v_lshlrev_b32 v30, 1, v18")
a(f"v_sub_u32 v{vO0}, s{sT0}, v30")
a(f"v_add_u32 v{vO1}, -1, v{vO0}")
a(f"v_mov_b32 v30, s{sC}")
for (vo, vm) in ((vO0, vM0), (vO1, vM1)):
    a(f"v_cmp_le_i32 vcc, 0, v{vo}")
    a("s_nop 1")
    a(f"v_cndmask_b32 v{vo}, v30, v{vo}, vcc")
    a(f"v_cndmask_b32 v{vm}, 0, v{vm}, vcc")
    a(f"v_cndmask_b32 v{vm+1}, 0, v{vm+1}, vcc")
    a(f"v_lshl_add_u32 v{vo}, v{vo}, 9, v14")
a(f"s_lshl_b32 s{sT0}, s{sPB}, 15")
a(f"s_lshl_b32 s{sT1}, s{sWV}, 13")
a(f"s_add_u32 s{sT5}, s{sT0}, s{sT1}")
a(f"s_add_u32 s{sT6}, s{sT5}, 4096")
a("v_lshlrev_b32 v17, 7, v0")
a(f"v_add_u32 v17, s{sT5}, v17")
a(f"s_lshl_b32 s{sT0}, s{sG}, 7")
a(f"s_lshl_b32 s{sT1}, s{sWV}, 17")
a(f"s_add_u32 s{sT0}, s{sT0}, s{sT1}")
a("v_lshlrev_b32 v18, 10, v0")
a(f"v_add_u32 v18, s{sT0}, v18")
a("v_add_u32 v28, 0x10000, v18")
def rows_dma(tag):
    a(f"s_mul_i32 s{sT1}, s{sWV}, {8*RSTR}")
    for i in range(8):
        a(f"s_add_u32 m0, s{sT1}, {L_R1 + RSTR*i}")
        a(f"s_add_u32 s{sT2}, s{sT5}, {1024*i}")
        dma(vL4, R_B, f"s{sT2}")
        a(f"s_add_u32 m0, s{sT1}, {L_R1 + RSTR*(32+i)}")
        a("s_nop 0")
        dma(vL4, R_C, f"s{sT2}")
    VM.issue(tag, 16)
def xtr(j):
    waits(vm=VM.need(("x", j)))
    a(f"ds_write_b128 v10, {vr(XR+8*j,4)}")
    a(f"ds_write_b128 v10, {vr(XR+8*j+4,4)} offset:1024")
    a(f"ds_read_b128 {vr(XR+8*j,4)}, v11")
    a(f"ds_read_b128 {vr(XR+8*j+4,4)}, v12")
assert len(xq) % 2 == 0
NX0 = 16 - len(xq) // 2
dstamp("u", 5)
for j in range(NX0): xtr(j)
dstamp("u", 6)
waitc(vCNT, C_A3, 4, 30)
waitc(vCNT, C_A4, 4, 30, sleep=1)
dstamp("u", 7)
a("s_setprio 0")
cm("U = x B^T")
while xq: xb1()
dstamp("u", 8)
rows_dma("B")
dstamp("u", 9)
for j in range(NX0, 16): xtr(j)
dstamp("u", 10)
waits(vm=VM.need("B"))
dstamp("u", 11)
if DBG == "u":
    def stamp(i, ins="s_memrealtime"):
        if i in (4, 15): _stamp0(i, ins)
a("s_setprio 2")
gsync(vCNT, vONE, 30, C_GH)
stamp(4)
UPRIO = int(OPT.get("uprio", 0)); YPRIO = int(OPT.get("yprio", 0))
a(f"s_setprio {UPRIO}")
AR, AI, BR = 32, 48, 64
def bread(k):
    s = BR + 8 * (k % 4)
    a(f"ds_read_b128 {vr(s,4)}, v{vRB} offset:{32*k}")
    a(f"ds_read_b128 {vr(s+4,4)}, v{vRB} offset:{32*k + 32*RSTR}")
PF = [(17, P_CRE), (17, P_CIM), (18, P_WO), (28, P_WO)]
for k in range(3): bread(k)
for k in range(32):
    if k + 3 < 32: bread(k + 3)
    a(f"s_waitcnt lgkmcnt({2*min(3, 31-k)})")
    s = BR + 8 * (k % 4)
    first = "0" if k == 0 else None
    mfma32(AR, XR + 4*k, s, first)
    mfma32(AI, XR + 4*k, s + 4, first)
    if k % 4 == 1 and PF:
        v, p = PF.pop(0)
        a(f"global_load_dword v{108+len(PF)}, v{v}, s[{p}:{p+1}]")
a("s_setprio 2")
srd(R_B, P_CRE, 512 * 1024)
srd(R_C, P_CIM, 512 * 1024)
srd(R_A, P_WO, 512 * 1024)
stamp(5)
cm("scale by coef into pair layout, local scan")
UP = 64
G0, G1, EA = 30, 104, 106
def sc1(r): a(f"v_pk_mul_f32 {vr(UP+2*r,2)}, {vr(vCO,2)}, {vr(AR+(r&~1),2)} op_sel:[0,{r&1}] op_sel_hi:[1,{r&1}]")
def sc2(r): a(f"v_pk_fma_f32 {vr(UP+2*r,2)}, {vr(vCO,2)}, {vr(AI+(r&~1),2)}, {vr(UP+2*r,2)} op_sel:[1,{r&1},0] op_sel_hi:[0,{r&1},1] neg_lo:[1,0,0]")
def c1(dst, L, g, u): a(f"v_pk_fma_f32 {vr(dst,2)}, {vr(L,2)}, {vr(g,2)}, {vr(u,2)} op_sel:[0,0,0] op_sel_hi:[0,1,1]")
def c2(dst, L, g): a(f"v_pk_fma_f32 {vr(dst,2)}, {vr(L,2)}, {vr(g,2)}, {vr(dst,2)} op_sel:[1,1,0] op_sel_hi:[1,0,1] neg_lo:[1,0,0]")
sc1(0); sc1(1); sc1(2); sc2(0); sc2(1); sc2(2)
src = UP
for r in range(1, 16):
    dst = EA if r == 7 else (G0 if r % 2 else G1)
    c1(dst, vL, src, UP + 2*r)
    if r < 14: sc1(r + 2)
    c2(dst, vL, src)
    if r < 14: sc2(r + 2)
    src = dst
a(f"ds_write_b64 v13, {vr(G0,2)}")
gsync(vCNT, vONE, 32, C_GH)
stamp(6)
ESR = 32
for s in range(8):
    a(f"ds_read_b64 {vr(ESR+2*s,2)}, v15 offset:{256*s}")
a(f"s_lshl_b32 s{sT6}, s{sPB}, 13")
a(f"s_add_u32 s{sT6}, s{sT6}, {WS_ST}")
a(f"s_lshl_b32 s{sT0}, s{sC}, 9")
a(f"s_add_u32 s{sT0}, s{sT0}, s{sT6}")
a(f"v_mov_b64 {vr(G0,2)}, 0")
a(f"s_mov_b32 s{sCNT}, {POLL_LIMIT}")
a("s_waitcnt lgkmcnt(0)")
a(f"v_mov_b64 {vr(G1,2)}, {vr(ESR,2)}")
for w in range(4):
    if w: cmul_add(G1, vL16_, G0, ESR + 4*w)
    if w < 3:
        a(f"s_cmp_eq_u32 s{sWV}, {w}")
        a("s_cbranch_scc1 L_h_segdone")
        cmul_add(G0, vL16_, G1, ESR + 4*w + 2)
cmul_add(48, vL16_, G1, ESR + 14)
a(f"v_mov_b32 v50, v49")
a(f"v_mov_b32 v49, s{sTAG}")
a(f"v_mov_b32 v51, s{sTAG}")
a("s_mov_b32 exec_hi, 0")
a(f"buffer_store_dwordx4 v[48:51], v14, {sr(R_WS,4)}, s{sT0} offen sc1")
a("s_mov_b64 exec, -1")
lab("L_h_segdone")
a(f"s_mov_b32 s{sM}, 0")
a(f"s_mov_b32 s{sM+1}, -1")
a(f"v_cndmask_b32 v{G0}, v{G0}, v{G1}, s[{sM}:{sM+1}]")
a(f"v_cndmask_b32 v{G0+1}, v{G0+1}, v{G1+1}, s[{sM}:{sM+1}]")
rows_dma("C")
stamp(7)
cm("chunk carry: each lane gathers two predecessors' end states")
lab("L_h_stpoll")
a(f"buffer_load_dwordx4 v[52:55], v{vO0}, {sr(R_WS,4)}, s{sT6} offen sc1")
a(f"buffer_load_dwordx4 v[56:59], v{vO1}, {sr(R_WS,4)}, s{sT6} offen sc1")
a("s_waitcnt vmcnt(0)")
a(f"v_cmp_ne_u32 vcc, s{sTAG}, v53")
a(f"v_cmp_ne_u32 s[{sM}:{sM+1}], s{sTAG}, v55")
a(f"s_or_b64 s[{sM}:{sM+1}], s[{sM}:{sM+1}], vcc")
a(f"v_cmp_ne_u32 vcc, s{sTAG}, v57")
a(f"s_or_b64 s[{sM}:{sM+1}], s[{sM}:{sM+1}], vcc")
a(f"v_cmp_ne_u32 vcc, s{sTAG}, v59")
a(f"s_or_b64 s[{sM}:{sM+1}], s[{sM}:{sM+1}], vcc")
a("s_cbranch_scc0 L_h_stok")
a(f"s_sub_u32 s{sCNT}, s{sCNT}, 1")
a("s_cbranch_scc0 L_h_stpoll")
lab("L_h_stok")
a(f"v_pk_mul_f32 {vr(G1,2)}, {vr(vM0,2)}, v[52:53] op_sel:[0,0] op_sel_hi:[1,0]")
a(f"v_pk_mul_f32 v[60:61], {vr(vM1,2)}, v[56:57] op_sel:[0,0] op_sel_hi:[1,0]")
a(f"v_pk_fma_f32 {vr(G1,2)}, {vr(vM0,2)}, v[54:55], {vr(G1,2)} op_sel:[1,0,0] op_sel_hi:[0,0,1] neg_lo:[1,0,0]")
a(f"v_pk_fma_f32 v[60:61], {vr(vM1,2)}, v[58:59], v[60:61] op_sel:[1,0,0] op_sel_hi:[0,0,1] neg_lo:[1,0,0]")
a(f"v_pk_add_f32 {vr(G1,2)}, {vr(G1,2)}, v[60:61]")
a(f"ds_write_b64 v13, {vr(G1,2)} offset:{L_CS - L_ES}")
gsync(vCNT, vONE, 32, C_GH)
for s in range(8):
    a(f"ds_read_b64 {vr(32+2*s,2)}, v15 offset:{L_CS - L_ES + 256*s}")
a(f"s_lshl_b32 s{sT0}, s{sC}, 2")
a(f"s_add_u32 s{sT0}, s{sT0}, s{sWV}")
a(f"s_lshl_b32 s{sT4}, s{sT0}, 16")
a(f"s_add_u32 s{sT4}, s{sT4}, {WS_H}")
a(f"s_lshl_b32 s{sT1}, s{sPB}, 11")
a(f"s_add_u32 s{sT1}, s{sT1}, s{sT4}")
a(f"s_add_u32 s{sT2}, s{sT1}, 32768")
a(f"s_lshl_b32 s{sT0}, s{sT0}, 10")
a(f"s_add_u32 s{sT5}, s{sT0}, {WS_FH}")
a(f"s_lshl_b32 s{sT0}, s{sPB}, 6")
a(f"s_add_u32 s{sF1}, s{sT0}, s{sT5}")
a("s_waitcnt lgkmcnt(0)")
stamp(8)
for st in (8, 4, 2):
    for j in range(0, st, 2):
        a(f"v_pk_add_f32 {vr(32+j,2)}, {vr(32+j,2)}, {vr(32+j+st,2)}")
cmul_add(G0, vPS, 32, G0)
cmul_add(EA, vL8, G0, EA)
HB = 32
for r in range(8):
    sa = G0 if r == 0 else UP + 2*(r-1)
    sb = EA if r == 0 else UP + 2*(r+7)
    c1(UP + 2*r, vL, sa, UP + 2*r)
    c1(UP + 2*(r+8), vL, sb, UP + 2*(r+8))
    c2(UP + 2*r, vL, sa)
    c2(UP + 2*(r+8), vL, sb)
for part in range(2):
    ng = "-" if part else ""
    for j in range(8):
        a(f"v_cvt_pk_bf16_f32 v{HB+8*part+j}, {ng}v{UP+4*j+part}, {ng}v{UP+4*j+2+part}")
    a(f"ds_write_b128 v16, {vr(HB+8*part,4)}")
    a(f"ds_write_b128 v16, {vr(HB+4+8*part,4)} offset:16")
    for ks in range(2):
        d = 48 + 8*part + 4*ks
        a(f"ds_read_b64_tr_b16 {vr(d,2)}, v19 offset:{1024*ks}")
        a(f"ds_read_b64_tr_b16 {vr(d+2,2)}, v19 offset:{1024*ks+256}")
for part in range(2):
    a(f"s_waitcnt lgkmcnt({6 if part == 0 else 0})")
    for ks in range(2):
        a(f"buffer_store_dwordx4 {vr(48+8*part+4*ks,4)}, v{vL4}, {sr(R_WS,4)}, s{sT1 if part == 0 else sT2} offen offset:{1024*ks} sc1")
a("v_and_b32 v8, 15, v0")
a("v_lshlrev_b32 v12, 6, v8")
a("s_waitcnt vmcnt(0)")
setflag(8, 9, sF1)
stamp(9)
def reduce_call(step_expr):
    a(step_expr)
    a(f"s_call_b64 s[{sRET}:{sRET+1}], L_reduce")
reduce_call(f"s_mov_b32 s{sSTEP}, s{sWV}")
a(f"s_add_u32 s{sSYNC}, s{sSYNC}, 4")
signal(vCNT, vONE, C_GH)
stamp(10)
poll(12, f"s{sT5}", 8)
setflag(8, 9, sT0)
a(f"s_mov_b32 s{sF1}, s{sT0}")
a(f"v_add_u32 v13, {(L_PART - L_R1) & 0xffffffff}, v{vWT}")
stamp(11)
a(f"s_setprio {YPRIO}")
HR, CR, NH = 128, 48, 32
WF, OF = 48, 128
def hload(k):
    if k % 4 == 0 and k: a(f"s_add_u32 s{sT4}, s{sT4}, 4096")
    a(f"buffer_load_dwordx4 {vr(HR+4*(k%NH),4)}, v{vL4}, {sr(R_WS,4)}, s{sT4} offen offset:{1024*(k%4)} sc1")
def cread(k):
    a(f"ds_read_b128 {vr(CR+4*(k%8),4)}, v{vRB} offset:{32*(k%32) + 32*RSTR*(k//32)}")
def oload(k):
    if k % 4 == 0 and k: a(f"s_add_u32 s{sT4}, s{sT4}, 4096")
    a(f"buffer_load_dwordx4 {vr(OF+4*k,4)}, v{vL4}, {sr(R_WS,4)}, s{sT4} offen offset:{1024*(k%4)} sc1")
def wo_dma(half):
    a(f"s_and_b32 s{sT0}, s{sWV}, 1")
    a(f"s_lshl_b32 s{sT0}, s{sT0}, 18")
    a(f"s_lshr_b32 s{sT1}, s{sWV}, 1")
    a(f"s_lshl_b32 s{sT1}, s{sT1}, 14")
    a(f"s_add_u32 s{sT0}, s{sT0}, s{sT1}")
    a(f"s_lshl_b32 s{sT1}, s{sG}, 7")
    a(f"s_add_u32 s{sT0}, s{sT0}, s{sT1}")
    a(f"s_mul_i32 s{sT1}, s{sWV}, {PSTRIDE}")
    for q in range(4):
        for i in range(2):
            a(f"s_add_u32 m0, s{sT1}, {(L_R1 if half else L_PART) + 2048*q + 1024*i}")
            a(f"s_add_u32 s{sT2}, s{sT0}, {32768*half + 65536*q + 8192*i}")
            dma(vWO, R_A, f"s{sT2}")
def wread(dst, k):
    o = PSTRIDE * ((k % 16) // 4) + 2048 * (k % 4)
    ad = 13 if k < 16 else vWT
    a(f"ds_read_b64_tr_b16 {vr(dst,2)}, v{ad} offset:{o}")
    a(f"ds_read_b64_tr_b16 {vr(dst+2,2)}, v{ad} offset:{o+1024}")
HD = 16
CD = 6
for k in range(HD): hload(k)
for k in range(CD): cread(k)
for k in range(64):
    if k == 48:
        a("s_setprio 2")
        a(f"s_lshr_b32 s{sT0}, s{sWV}, 1")
        a(f"s_lshl_b32 s{sT1}, s{sRB}, 1")
        a(f"s_add_u32 s{sT6}, s{sT0}, s{sT1}")
        a(f"s_lshl_b32 s{sT5}, s{sT6}, 11")
        a(f"s_add_u32 s{sT5}, s{sT5}, {WS_FO}")
        a(f"s_lshl_b32 s{sT4}, s{sT6}, 15")
        a(f"s_add_u32 s{sT4}, s{sT4}, {WS_O}")
        waitc(vCNT, C_GH, f"s{sSYNC}", 8)
        wo_dma(0)
        poll(12, f"s{sT5}", 8)
        a(f"s_setprio {YPRIO}")
    if k + HD < 64: hload(k + HD)
    if k >= 48: oload(k - 48)
    if k + CD < 64: cread(k + CD)
    if k < 48: a(f"s_waitcnt vmcnt({HD}) lgkmcnt({min(CD, 63-k)})")
    else: a(f"s_waitcnt lgkmcnt({min(CD, 63-k)})")
    if k % 2 == 0: mfma32(YACC, HR + 4*(k % NH), CR + 4*(k % 8))
    else: mfma32(32, HR + 4*(k % NH), CR + 4*(k % 8), "0" if k == 1 else None)
a("s_setprio 2")
gsync(vCNT, vONE, 8, C_GH)
stamp(12)
for k in range(16): wread(WF + 4*k, k)
wo_dma(1)
for j in range(8):
    a(f"v_pk_add_f32 {vr(YACC+2*j,2)}, {vr(YACC+2*j,2)}, {vr(32+2*j,2)}")
if STG3:
    a(f"s_cmp_ge_u32 s{sWV}, 2")
    a("s_cbranch_scc1 L_h_nor2")
    reduce_call(f"s_add_u32 s{sSTEP}, s{sWV}, 4")
    a(f"s_mov_b32 s{sF1}, s{sT0}")
    lab("L_h_nor2")
srd(R_B, P_OUT, 2048 * 4096)
a(f"s_lshl_b32 s{sT0}, s{sT3}, 2")
a(f"s_lshl_b32 s{sT1}, s{sPB}, 7")
a(f"s_add_u32 s{sT0}, s{sT0}, s{sT1}")
a(f"s_add_u32 s{sT0}, s{sT0}, 2048")
def store1(b, r):
    a(f"s_add_u32 s{sT1}, s{sT0}, {4096 * (8*(r//4) + r%4)}")
    a(f"buffer_store_dword v{b+r}, v1, {sr(R_B,4)}, s{sT1} offen{OUTFL}")
a("s_waitcnt vmcnt(0) lgkmcnt(0)")
if STG3:
    setflag(8, 9, sF1)
    a("v_and_b32 v12, 7, v0")
    a("v_lshlrev_b32 v12, 6, v12")
a(f"s_add_u32 s{sSYNC}, s{sSYNC}, 4")
signal(vCNT, vONE, C_GH)
a("s_setprio 0")
for k in range(16):
    mfma32(32, OF + 4*k, WF + 4*k, "0" if k == 0 else None)
    store1(YACC, k)
a("s_setprio 2")
waitc(vCNT, C_GH, f"s{sSYNC}", 8)
for k in range(16, 32): wread(WF + 4*(k-16), k)
stamp(13)
a(f"s_lshl_b32 s{sT0}, s{sT6}, 17")
a(f"s_lshl_b32 s{sT1}, s{sG}, 8")
a(f"s_add_u32 s{sT0}, s{sT0}, s{sT1}")
a(f"s_and_b32 s{sT1}, s{sWV}, 1")
a(f"s_lshl_b32 s{sT1}, s{sT1}, 7")
a(f"s_add_u32 s{sT0}, s{sT0}, s{sT1}")
stages = ((16, 24), (24, 32)) if STG3 else ((16, 32),)
for (k0, k1) in stages:
    last = k1 == 32
    a("s_setprio 2")
    a(f"s_add_u32 s{sT5}, s{sT5}, {16*64 if k0 == 16 else 8*64}")
    if last:
        cm("do not touch the flag lines before this workgroup's own tiles are out")
        waitc(vCNT, C_DONE, 2 if STG3 else 4, 8, sleep=2)
    poll(12, f"s{sT5}", 8)
    if last: stamp(14)
    else: a("s_setprio 0")
    for k in range(k0, k1): oload(k)
    a("s_waitcnt lgkmcnt(0)")
    for k in range(k0, k1):
        a(f"s_waitcnt vmcnt({k1-1-k})")
        mfma32(32, OF + 4*k, WF + 4*(k-16))
a("s_nop 10")
for r in range(16): store1(32, r)
a("s_branch L_end")

lab("L_reduce")
RB_ = 192
a(f"s_mul_i32 s{sT2}, s{sSTEP}, {PSTRIDE}")
a(f"v_add_u32 v10, s{sT2}, v{vL4}")
a(f"s_add_u32 s{sT2}, s{sT2}, {L_PART + 8192}")
a("v_and_b32 v9, 3, v0")
a("v_lshlrev_b32 v9, 2, v9")
a(f"v_add_u32 v9, {L_PROG}, v9")
o_offsets()
waitc(9, 0, f"s{sT2}", 8)
a(f"ds_read_b128 {vr(RB_+32,4)}, v10 offset:8192")
for w in range(4):
    a(f"ds_read_b128 {vr(RB_+8*w,4)}, v10 offset:{2048*w}")
    a(f"ds_read_b128 {vr(RB_+8*w+4,4)}, v10 offset:{2048*w + 1024}")
a("s_waitcnt lgkmcnt(8)")
sum_check(RB_ + 32)
a("s_waitcnt lgkmcnt(0)")
a("s_cbranch_scc1 L_red_skip")
reduce_math(RB_, vL4, flag=False)
a(f"s_setpc_b64 s[{sRET}:{sRET+1}]")
lab("L_red_skip")
a(f"s_mov_b32 s{sT0}, {WS_DUMMY}")
a(f"s_setpc_b64 s[{sRET}:{sRET+1}]")

lab("L_slow")
a(f"s_lshl_b32 s{sT0}, s{sSTEP}, 10")
a(f"s_add_u32 s{sT0}, s{sT0}, {L_QF}")
a(f"v_add_u32 v{vAQ}, s{sT0}, v14")
a(f"ds_read_b128 {vr(vQ,4)}, v{vAQ}")
a(f"v_mov_b32 v{vAD}, 0xff800000")
a("s_waitcnt lgkmcnt(0)")
for t in range(16):
    qk(S0, t)
    a("s_nop 11")
    for i in range(8):
        a(f"v_max3_f32 v{vAD}, v{S0+2*i}, v{S0+2*i+1}, v{vAD}")
a(f"s_lshl_b32 s{sT0}, s{sWV}, 8")
a(f"s_add_u32 s{sT0}, s{sT0}, {L_MAX}")
a("v_lshlrev_b32 v16, 2, v0")
a(f"v_add_u32 v16, s{sT0}, v16")
a(f"ds_write_b32 v16, v{vAD}")
gsync(vCA, vONEA, 16, C_GA)
a("v_and_b32 v16, 31, v0")
a("v_lshlrev_b32 v16, 2, v16")
a(f"v_add_u32 v16, {L_MAX}, v16")
for i in range(8):
    a(f"ds_read_b32 v{20+i}, v16 offset:{128*i}")
a("s_waitcnt lgkmcnt(0)")
for i in range(4):
    a(f"v_max3_f32 v{vAD}, v{20+2*i}, v{21+2*i}, v{vAD}")
for i in range(16):
    a(f"v_sub_f32 v{S1+i}, 0, v{vAD}")
zeroO()
for t in range(16):
    mfma32(S0, K_(t), vQ, vr(S1, 16))
    a("s_nop 11")
    exs(S0, 0, 16)
    a("s_nop 1")
    smf(V1(t), S0)
    smf(V2(t), S0 + 8)
a(f"s_lshl_b32 s{sT2}, s2, 14")
a(f"s_add_u32 s{sT2}, s{sT2}, {WS_SLOW}")
a(f"s_lshl_b32 s{sT3}, s{sWV}, 12")
a(f"s_add_u32 s{sT3}, s{sT3}, s{sT2}")
a("s_nop 11")
a(f"buffer_store_dwordx4 {vr(vO,4)}, v14, {sr(R_WS,4)}, s{sT3} offen sc1")
a(f"buffer_store_dwordx4 {vr(vO+4,4)}, v14, {sr(R_WS,4)}, s{sT3} offen offset:1024 sc1")
a(f"buffer_store_dword v{vO+8}, v14, {sr(R_WS,4)}, s{sT3} offen offset:2048 sc1")
a("s_waitcnt vmcnt(0)")
gsync(vCA, vONEA, 16, C_GA)
a(f"s_cmp_eq_u32 s{sWV}, 0")
a("s_cbranch_scc0 L_slow_e")
for w in range(4):
    a(f"buffer_load_dwordx4 {vr(16+8*w,4)}, v14, {sr(R_WS,4)}, s{sT2} offen sc1")
    a(f"buffer_load_dwordx4 {vr(20+8*w,4)}, v14, {sr(R_WS,4)}, s{sT2} offen offset:1024 sc1")
    a(f"buffer_load_dword v{48+w}, v14, {sr(R_WS,4)}, s{sT2} offen offset:2048 sc1")
    a(f"s_add_u32 s{sT2}, s{sT2}, 4096")
o_offsets()
a("s_waitcnt vmcnt(0)")
sum_check(48)
reduce_math(16, 14)
lab("L_slow_e")
gsync(vCA, vONEA, 16, C_GA)
a("s_branch L_a_next")

lab("L_end")
ROLE[0] = "E"
if PROBE:
    a("s_waitcnt vmcnt(0)")
    stamp(15)
    a(f"s_cmp_ge_u32 s{sW}, 4")
    a(f"s_cbranch_scc{0 if PROBE[0] == 'A' else 1} L_exit")
    a(f"s_cmp_eq_u32 s{80+int(PROBE[1])}, 0")
    a("s_cbranch_scc1 L_exit")
    a(f"s_sub_u32 s{sT0}, s{80+int(PROBE[1])}, s{80+int(PROBE[2])}")
    a(f"s_min_u32 s{sT0}, s{sT0}, 10000")
    a(f"s_lshl_b32 s{sT0}, s{sT0}, 1")
    a(f"s_memrealtime s[{sST}:{sST+1}]")
    a("s_waitcnt lgkmcnt(0)")
    a(f"s_mov_b32 s{sT1}, s{sST}")
    lab("L_probe")
    a(f"s_memrealtime s[{sST}:{sST+1}]")
    a("s_waitcnt lgkmcnt(0)")
    a(f"s_sub_u32 s{sT2}, s{sST}, s{sT1}")
    a(f"s_cmp_lt_u32 s{sT2}, s{sT0}")
    a("s_cbranch_scc1 L_probe")
elif STAMPS:
    a("s_waitcnt vmcnt(0)")
    stamp(15)
    a(f"s_lshl_b32 s{sT0}, s2, 3")
    a(f"s_xor_b32 s{sT1}, s{sW}, 4")
    a(f"s_add_u32 s{sT0}, s{sT0}, s{sT1}")
    a(f"s_lshl_b32 s{sT0}, s{sT0}, 6")
    a(f"s_add_u32 s{sT0}, s{sT0}, {WS_STAMP}")
    for i in range(16): a(f"v_mov_b32 v{16+i}, s{80+i}")
    a("v_mov_b32 v0, 0")
    a("s_mov_b64 exec, 1")
    for i in range(4):
        a(f"buffer_store_dwordx4 {vr(16+4*i,4)}, v0, {sr(R_WS,4)}, s{sT0} offen offset:{16*i}")
lab("L_exit")
a("s_endpgm")

hdr = open("cdna_kernels/" + NAME + ".s.ref").read().split("; Override launch")[0]
src = hdr + f"; @launch grid=(256,1,1) block=(512,1,1) lds={LDS_BYTES}\n" + f""".amdgcn_target "amdgcn-amd-amdhsa--gfx950"
.text
.globl {NAME}_kernel
.p2align 8
.type {NAME}_kernel,@function
{NAME}_kernel:
""" + "\n".join(lines) + f"""
.section .rodata,"a"
.p2align 6
.amdhsa_kernel {NAME}_kernel
  .amdhsa_next_free_vgpr 256
  .amdhsa_next_free_sgpr 102
  .amdhsa_accum_offset 256
  .amdhsa_group_segment_fixed_size 0
  .amdhsa_kernarg_size 136
  .amdhsa_user_sgpr_count 2
  .amdhsa_user_sgpr_kernarg_segment_ptr 1
  .amdhsa_system_sgpr_workgroup_id_x 1
.end_amdhsa_kernel
"""
open(OUT, "w").write(src)
```

```python
import sys, math, struct
NAME = "concat_heads__grouped_kv_mqa__ssm_conv_s5__prompt"
STAMPS = "--stamps" in sys.argv
OPT = dict(a.lstrip("-").split("=") for a in sys.argv[1:] if a.startswith("--") and "=" in a)
OUT = [a for a in sys.argv[1:] if not a.startswith("--")][0]
OUTFL = OPT.get("outfl", "").replace(",", " ")
if OUTFL: OUTFL = " " + OUTFL

def f32(x): return "0x%08x" % struct.unpack("<I", struct.pack("<f", x))[0]

FSH = int(OPT.get('fsh', 6))
WS_O2 = 0x300000
WS_FO2 = 0x80000
C_HA = 48
WS_DUMMY = 0x800
WS_FKV = 0x1000
WS_FH  = 0x8000
WS_FO  = 0x20000
WS_KV  = 0x40000
WS_ST  = 0x60000
WS_O   = 0x100000
WS_H   = 0x400000
WS_SLOW = 0x800000
WS_STAMP = 15 << 20
WS_SIZE = 16 << 20
L_XA, L_WQ, L_KVP, L_WKV = 0, 65536, 131072, 140288
L_PART, L_R1, L_SCR, L_ES, L_QF, L_PROG, L_CNT = 0, 73728, 140288, 148480, 150528, 158720, 159744
L_MAX = 159808
L_CS = 160832

LDS_BYTES = 163840
PSTRIDE = 9216
RSTR = 1040
POLL_LIMIT = 400000
C_A1, C_H1, C_H2, C_A3, C_A4, C_GA, C_GH, C_TAG, C_H3, C_S, C_H0, C_DONE = 0, 4, 8, 12, 16, 20, 24, 28, 32, 36, 40, 44

SECS = {}
class _L:
    cur = None
    def append(self, x): SECS[_L.cur].append(x)
lines = _L()
def sec(n):
    SECS.setdefault(n, []); _L.cur = n
sec("P")
def a(s): lines.append("    " + s)
def lab(s): lines.append(s + ":")
def cm(s): lines.append("    ; " + s)
_uid = [0]
def uid(p):
    _uid[0] += 1
    return f"L_{p}{_uid[0]}"
def vr(b, n): return f"v[{b}:{b+n-1}]"
def sr(b, n): return f"s[{b}:{b+n-1}]"

sW, sTAG, sRB, sG, sC, sPB = 3, 4, 5, 6, 7, 8
sT0, sT1, sT2, sT3, sT4, sCNT = 9, 10, 11, 12, 13, 14
sWV = 15
P_AX, P_WQ, P_WK, P_WV, P_WO, P_BX, P_LRE, P_LIM = 16, 18, 20, 22, 24, 26, 28, 30
P_BRE, P_BIM, P_CRE, P_CIM, P_LDT, P_DSK, P_OUT, P_DBG = 32, 34, 36, 38, 40, 42, 44, 46
P_WS = 48
sT5, sT6 = 50, 51
R_WS, R_A, R_B, R_C = 52, 56, 60, 64
sM = 68
sGRP, sKIND, sSTEP, sSYNC = 70, 71, 72, 73
sRET = 74
sST = 76
sLO, sHI = 78, 79
sROT = sSTEP
sF1, sF2 = 0, 1
sYG, sCG, sPC = 96, 97, 98

def srd(dst, ptr, nbytes):
    a(f"s_mov_b32 s{dst}, s{ptr}")
    a(f"s_and_b32 s{dst+1}, s{ptr+1}, 0xffff")
    a(f"s_mov_b32 s{dst+2}, {nbytes}")
    a(f"s_mov_b32 s{dst+3}, 0x20000")

PROBE = OPT.get("probe")
ROLE = ["?"]
if PROBE:
    PROBE = PROBE.split(","); STAMPS = True
def stamp(i, ins="s_memrealtime"):
    if PROBE and not (ins == "s_memrealtime" and (ROLE[0] in (PROBE[0], "E")) and str(i) in PROBE[1:]): return
    if OPT.get("dbg") == "steps" and ROLE[0] == "A" and i < 10: return
    if STAMPS:
        a(f"{ins} s[{sST}:{sST+1}]")
        a("s_waitcnt lgkmcnt(0)")
        a(f"s_mov_b32 s{80+i}, s{sST}")
def cstamp(i): stamp(i, "s_memtime")
DBG = OPT.get("dbg", "")
def dstamp(name, i):
    if DBG == name: stamp(i)
_stamp0 = stamp


def dma(voff, srdr, soff, imm=0):
    o = f" offset:{imm}" if imm else ""
    a(f"buffer_load_dwordx4 v{voff}, {sr(srdr,4)}, {soff} offen{o} lds")

def poll(voff, soff, vt, sleep=0):
    L, D = uid("poll"), uid("pdone")
    a(f"s_mov_b32 s{sCNT}, {POLL_LIMIT}")
    lab(L)
    a(f"buffer_load_dword v{vt}, v{voff}, {sr(R_WS,4)}, {soff} offen sc1")
    a("s_waitcnt vmcnt(0)")
    a(f"v_cmp_ne_u32 vcc, s{sTAG}, v{vt}")
    a(f"s_cbranch_vccz {D}")
    a(f"s_sub_u32 s{sCNT}, s{sCNT}, 1")
    a(f"s_cbranch_scc0 {L}")
    lab(D)

def setflag(vt0, vt1, soff):
    a(f"v_mov_b32 v{vt0}, 0")
    a(f"v_mov_b32 v{vt1}, s{sTAG}")
    a("s_mov_b64 exec, 1")
    a(f"buffer_store_dword v{vt1}, v{vt0}, {sr(R_WS,4)}, s{soff} offen sc1")
    a("s_mov_b64 exec, -1")

def signal(vcnt, vone, off):
    a("s_mov_b64 exec, 1")
    a(f"ds_add_u32 v{vcnt}, v{vone} offset:{off}")
    a("s_mov_b64 exec, -1")

def waitc(vcnt, off, target, vt, sleep=0):
    L = uid("wc")
    lab(L)
    if sleep: a(f"s_sleep {sleep}")
    a(f"ds_read_b32 v{vt}, v{vcnt} offset:{off}")
    a("s_waitcnt lgkmcnt(0)")
    a(f"v_cmp_gt_u32 vcc, {target}, v{vt}")
    a(f"s_cbranch_vccnz {L}")

def gsync(vcnt, vone, vt, off):
    a("s_waitcnt lgkmcnt(0)")
    a(f"s_add_u32 s{sSYNC}, s{sSYNC}, 4")
    signal(vcnt, vone, off)
    waitc(vcnt, off, f"s{sSYNC}", vt)

def mfma32(d, x, y, c=None):
    c = vr(d, 16) if c is None else c
    a(f"v_mfma_f32_32x32x16_bf16 {vr(d,16)}, {vr(x,4)}, {vr(y,4)}, {c}")

def cmul_add(dst, L, g, u):
    a(f"v_pk_fma_f32 {vr(dst,2)}, {vr(L,2)}, {vr(g,2)}, {vr(u,2)} op_sel:[0,0,0] op_sel_hi:[0,1,1]")
    a(f"v_pk_fma_f32 {vr(dst,2)}, {vr(L,2)}, {vr(g,2)}, {vr(dst,2)} op_sel:[1,1,0] op_sel_hi:[1,0,1] neg_lo:[1,0,0]")

def cmul(dst, x, y):
    a(f"v_pk_mul_f32 {vr(dst,2)}, {vr(x,2)}, {vr(y,2)} op_sel:[0,0] op_sel_hi:[0,1]")
    a(f"v_pk_fma_f32 {vr(dst,2)}, {vr(x,2)}, {vr(y,2)}, {vr(dst,2)} op_sel:[1,1,0] op_sel_hi:[1,0,1] neg_lo:[1,0,0]")

def csq(dst, src, t):
    a(f"v_mul_f32 v{t}, v{src+1}, v{src+1}")
    a(f"v_add_f32 v{t+1}, v{src}, v{src}")
    a(f"v_fma_f32 v{dst}, v{src}, v{src}, -v{t}")
    a(f"v_mul_f32 v{dst+1}, v{t+1}, v{src+1}")

def xvoffsets(XO, t0):
    a(f"v_lshrrev_b32 v{t0}, 4, v0")
    a(f"v_and_b32 v{t0+1}, 15, v0")
    for i in range(4):
        a(f"v_add_u32 v{t0+2}, {4*i}, v{t0}")
        a(f"v_xor_b32 v{t0+3}, v{t0+1}, v{t0+2}")
        a(f"v_lshlrev_b32 v{t0+3}, 4, v{t0+3}")
        a(f"v_lshl_add_u32 v{XO+i}, v{t0+2}, 10, v{t0+3}")

def wtr_addr(dst, hhshift, base, t):
    a(f"v_bfe_u32 v{t}, v0, 2, 2")
    a(f"v_bfe_u32 v{t+1}, v0, 4, 1")
    a(f"v_bfe_u32 v{t+2}, v0, 1, 1")
    a(f"v_lshl_add_u32 v{t+1}, v{t+1}, 1, v{t+2}")
    a(f"s_and_b32 s{sT0}, s{sWV}, 1")
    a(f"s_lshl_b32 s{sT0}, s{sT0}, 2")
    a(f"v_add_u32 v{t+1}, s{sT0}, v{t+1}")
    a(f"v_bfe_u32 v{t+2}, v0, 3, 1")
    a(f"v_lshlrev_b32 v{t+2}, 2, v{t+2}")
    a(f"v_xor_b32 v{t+1}, v{t+1}, v{t+2}")
    a(f"v_lshlrev_b32 v{t+1}, 4, v{t+1}")
    a(f"v_lshl_add_u32 v{t+1}, v{t}, 7, v{t+1}")
    a(f"v_and_b32 v{t+2}, 1, v0")
    a(f"v_lshl_add_u32 v{t+1}, v{t+2}, 3, v{t+1}")
    a(f"v_lshrrev_b32 v{t+2}, 5, v0")
    a(f"v_lshl_add_u32 v{t+1}, v{t+2}, {hhshift}, v{t+1}")
    a(f"v_add_u32 v{dst}, {base}, v{t+1}")

def o_offsets():
    a(f"s_and_b32 s{sT0}, s{sSTEP}, 1")
    a(f"s_lshl_b32 s{sT1}, s{sRB}, 1")
    a(f"s_add_u32 s{sT0}, s{sT0}, s{sT1}")
    a(f"s_lshl_b32 s{sT0}, s{sT0}, 2")
    a(f"s_lshr_b32 s{sT1}, s{sSTEP}, 1")
    a(f"s_add_u32 s{sT0}, s{sT0}, s{sT1}")
    a(f"s_lshl_b32 s{sT0}, s{sT0}, 3")
    a(f"s_add_u32 s{sT0}, s{sT0}, s{sG}")
    a(f"s_lshl_b32 s{sT1}, s{sT0}, 10")
    a(f"s_add_u32 s{sT1}, s{sT1}, {WS_O}")
    a(f"s_lshl_b32 s{sT0}, s{sT0}, 6")
    a(f"s_add_u32 s{sT0}, s{sT0}, {WS_FO}")

def sum_check(b):
    a(f"v_pk_add_f32 {vr(b,2)}, {vr(b,2)}, {vr(b+2,2)}")
    a(f"v_add_f32 v{b}, v{b}, v{b+1}")
    a(f"v_cmp_nle_f32 vcc, s{sLO}, v{b}")
    a(f"v_cmp_nge_f32 s[{sM}:{sM+1}], s{sHI}, v{b}")
    a(f"s_or_b64 vcc, vcc, s[{sM}:{sM+1}]")

def tagged_store(b, vl16):
    a(f"v_mov_b32 v{b+8}, s{sTAG}")
    a(f"v_cvt_pk_bf16_f32 v{b+9}, v{b}, v{b+1}")
    a(f"v_mov_b32 v{b+10}, s{sTAG}")
    a(f"v_cvt_pk_bf16_f32 v{b+11}, v{b+2}, v{b+3}")
    a(f"buffer_store_dwordx4 {vr(b+8,4)}, v{vl16}, {sr(R_WS,4)}, s{sT3} offen sc1")
    a(f"v_cvt_pk_bf16_f32 v{b+12}, v{b+4}, v{b+5}")
    a(f"v_mov_b32 v{b+13}, s{sTAG}")
    a(f"v_cvt_pk_bf16_f32 v{b+14}, v{b+6}, v{b+7}")
    a(f"v_mov_b32 v{b+15}, s{sTAG}")
    a(f"buffer_store_dwordx4 {vr(b+12,4)}, v{vl16}, {sr(R_WS,4)}, s{sT3} offen offset:1024 sc1")
def o2_offset():
    a(f"s_and_b32 s{sT3}, s{sSTEP}, 1")
    a(f"s_lshl1_add_u32 s{sT3}, s{sRB}, s{sT3}")
    a(f"s_lshl3_add_u32 s{sT3}, s{sT3}, s{sG}")
    a(f"s_lshl_b32 s{sT3}, s{sT3}, 11")
    a(f"s_add_u32 s{sT3}, s{sT3}, {WS_O2}")

def reduce_math(b, vl16, flag=True, tagged=False, b1=None, bs=None):
    b1 = b + 16 if b1 is None else b1
    bs = b + 32 if bs is None else bs
    a(f"v_rcp_f32 v{bs+2}, v{bs}")
    for j in range(4):
        a(f"v_pk_add_f32 {vr(b+2*j,2)}, {vr(b+2*j,2)}, {vr(b+8+2*j,2)}")
    for j in range(4):
        a(f"v_pk_add_f32 {vr(b1+2*j,2)}, {vr(b1+2*j,2)}, {vr(b1+8+2*j,2)}")
    for j in range(4):
        a(f"v_pk_add_f32 {vr(b+2*j,2)}, {vr(b+2*j,2)}, {vr(b1+2*j,2)}")
    for j in range(4):
        a(f"v_pk_mul_f32 {vr(b+2*j,2)}, {vr(b+2*j,2)}, {vr(bs+2,2)} op_sel_hi:[1,0]")
    if tagged is True:
        tagged_store(b, vl16)
        setflag(b1, b1 + 1, sT0)
        return
    if tagged == "dyn":
        L1, L2 = uid("tg"), uid("tg")
        a(f"s_cmp_lt_u32 s{sSTEP}, 6")
        a(f"s_cbranch_scc1 {L1}")
        o2_offset()
        tagged_store(b, vl16)
        setflag(b1, b1 + 1, sT0)
        a("s_branch L_slow_e")
        lab(L1)
    for j in range(4):
        a(f"v_cvt_pk_bf16_f32 v{b+8+j}, v{b+2*j}, v{b+2*j+1}")
    a(f"buffer_store_dwordx4 {vr(b+8,4)}, v{vl16}, {sr(R_WS,4)}, s{sT1} offen sc1")
    if flag:
        a("s_waitcnt vmcnt(0)")
        setflag(b, b + 1, sT0)

STG3 = 1
LOG2E = 1.4426950408889634
L_LO, L_HI = 2.0 ** -60, 2.0 ** 60


class Cnt:
    def __init__(s): s.q = []
    def issue(s, tag, n=1): s.q += [tag] * n
    def need(s, tag):
        if tag not in s.q: return None
        i = len(s.q) - 1 - s.q[::-1].index(tag)
        n = len(s.q) - 1 - i
        s.q = s.q[i + 1:]
        return n
def waits(vm=None, lg=None):
    p = []
    if vm is not None: p.append(f"vmcnt({min(vm,63)})")
    if lg is not None: p.append(f"lgkmcnt({min(lg,15)})")
    if p: a("s_waitcnt " + " ".join(p))

a("s_cmp_ge_u32 s2, 256")
a("s_cbranch_scc1 L_exit")
a(f"s_load_dwordx16 s[16:31], s[0:1], 0")
a(f"s_load_dwordx16 s[32:47], s[0:1], 64")
a(f"s_load_dwordx2 s[48:49], s[0:1], 128")
if STAMPS:
    for i in range(16): a(f"s_mov_b32 s{80+i}, 0")
    a("s_memrealtime s[80:81]")
    a("s_memtime s[92:93]")
a("v_lshrrev_b32 v1, 6, v0")
a("v_and_b32 v0, 63, v0")
a(f"v_readfirstlane_b32 s{sW}, v1")
a("v_lshlrev_b32 v6, 4, v0")
a("v_lshrrev_b32 v12, 4, v0")
a("v_and_b32 v13, 15, v0")
a(f"s_and_b32 s{sT0}, s2, 7")
a(f"s_lshr_b32 s{sT1}, s2, 3")
a(f"s_and_b32 s{sT2}, s{sT1}, 3")
a(f"s_lshl_b32 s{sRB}, s{sT0}, 2")
a(f"s_add_u32 s{sRB}, s{sRB}, s{sT2}")
a(f"s_lshr_b32 s{sG}, s{sT1}, 2")
a(f"s_and_b32 s{sGRP}, s{sG}, 3")
a(f"s_and_b32 s{sWV}, s{sW}, 3")
a(f"s_add_u32 s{sROT}, s{sG}, s{sRB}" if OPT.get("rot", "0") == "1" else f"s_mov_b32 s{sROT}, 0")
a(f"s_mov_b32 s{R_A+2}, {2048*1024}")
a(f"s_mov_b32 s{R_A+3}, 0x20000")
a(f"s_mov_b32 s{R_B+3}, 0x20000")
a(f"s_cmp_ge_u32 s{sW}, 4")
a("s_cbranch_scc1 L_attn")

vL, vL16_, vL8, vCO = 20, 22, 24, 26
vCNT, vONE, vWT, vRB, vL4, vWO = 2, 3, 4, 5, 6, 7
a("s_setprio 3")
for i in range(4):
    a(f"v_add_u32 v14, {4*i}, v12")
    a(f"v_xor_b32 v15, v13, v14")
    a(f"v_lshlrev_b32 v15, 4, v15")
    a(f"v_lshl_add_u32 v{16+i}, v14, 10, v15")
if OPT.get("map", "1") == "0":
    a(f"s_and_b32 s{sT2}, s{sT1}, 1")
    a(f"s_lshl_b32 s{sC}, s{sT0}, 1")
    a(f"s_add_u32 s{sC}, s{sC}, s{sT2}")
    a(f"s_lshr_b32 s{sPB}, s{sT1}, 1")
else:
    a(f"s_and_b32 s{sC}, s{sT0}, 6")
    a(f"s_lshl_b32 s{sC}, s{sC}, 1")
    a(f"s_add_u32 s{sC}, s{sC}, s{sT2}")
    a(f"s_and_b32 s{sPB}, s{sT0}, 1")
    a(f"s_lshl_b32 s{sPB}, s{sPB}, 3")
    a(f"s_add_u32 s{sPB}, s{sPB}, s{sG}")
a(f"s_lshr_b32 s{sKIND}, s{sG}, 2")
a(f"s_lshl_b32 s{sT3}, s{sPB}, 5")
a("v_and_b32 v38, 31, v0")
a(f"v_add_lshl_u32 v37, v38, s{sT3}, 1")
a(f"s_and_b32 s{sT3}, s{sWV}, 1")
a(f"s_lshl1_add_u32 s{sT3}, s{sG}, s{sT3}")
a(f"s_lshl_b32 s{sT3}, s{sT3}, 5")
a(f"v_add_lshl_u32 v38, v38, s{sT3}, 1")
a(f"s_add_u32 s{sT3}, s{sROT}, s{sWV}")
a(f"s_and_b32 s{sT3}, s{sT3}, 3")
a(f"s_lshl_b32 s{sT0}, s{sRB}, 16")
a(f"s_lshl_b32 s{sT1}, s{sGRP}, 14")
a(f"s_add_u32 s{sT0}, s{sT0}, s{sT1}")
a(f"s_lshl_b32 s{sT1}, s{sT3}, 8")
a(f"s_add_u32 s{sT0}, s{sT0}, s{sT1}")
a(f"s_lshl_b32 s{sT2}, s{sGRP}, 12")
a(f"s_lshl_b32 s{sT1}, s{sWV}, 14")
a(f"s_add_u32 s{sT2}, s{sT2}, s{sT1}")
a(f"s_lshl_b32 s{sT3}, s{sT3}, 12")
a(f"s_lshl_b32 s{sT4}, s{sWV}, 12")
a(f"s_add_u32 s{sT4}, s{sT4}, {L_WKV}")
a(f"s_mov_b32 s{R_B+2}, 16384")
a(f"s_mov_b32 m0, s{sT2}")
a(f"s_cmp_eq_u32 s{sKIND}, 0")
a("s_waitcnt lgkmcnt(0)")
a(f"s_cselect_b32 s{R_B}, s{P_WK}, s{P_WV}")
a(f"s_cselect_b32 s{R_B+1}, s{P_WK+1}, s{P_WV+1}")
a(f"s_mov_b32 s{R_A}, s{P_AX}")
a(f"s_and_b32 s{R_A+1}, s{P_AX+1}, 0xffff")
a(f"s_and_b32 s{R_B+1}, s{R_B+1}, 0xffff")
for i in range(4):
    dma(16 + i, R_A, f"s{sT0}")
    a(f"s_add_u32 m0, s{sT2}, {1024*(i+1)}" if i < 3 else f"s_mov_b32 m0, s{sT4}")
    a("s_nop 0")
for i in range(4):
    dma(6, R_B, f"s{sT3}", imm=1024 * i)
p0, p1, p2, vDSK = 60, 61, 62, 63
a(f"global_load_ushort v{p0}, v37, s[{P_LRE}:{P_LRE+1}]")
a(f"global_load_ushort v{p1}, v37, s[{P_LIM}:{P_LIM+1}]")
a(f"global_load_ushort v{p2}, v37, s[{P_LDT}:{P_LDT+1}]")
a(f"global_load_ushort v{vDSK}, v38, s[{P_DSK}:{P_DSK+1}]")
a(f"s_load_dword s{sTAG}, s[{P_WS}:{P_WS+1}], 0")
a("s_barrier")

sec("AL")
lab("L_attn"); ROLE[0] = "A"
cm("pull the kernel's code towards this XCD's L2")
a(f"s_getpc_b64 s[{sM}:{sM+1}]")
lab("L_pc")
a(f"s_sub_u32 s{sM}, s{sM}, L_pc - {NAME}_kernel")
a(f"s_subb_u32 s{sM+1}, s{sM+1}, 0")
a(f"s_lshl_b32 s{sT2}, s{sT2}, 2")
a(f"s_add_u32 s{sT2}, s{sT2}, s{sWV}")
a(f"s_mul_i32 s{sT2}, s{sT2}, 1408")
a("v_lshlrev_b32 v32, 7, v0")
a("v_min_u32 v32, 1280, v32")
a(f"v_add_u32 v32, s{sT2}, v32")
a(f"v_min_u32 v32, L_slow - {NAME}_kernel, v32")
CPF = int(OPT.get("cpf", 1))
if CPF == 0: a(f"global_load_dword v33, v32, s[{sM}:{sM+1}]")
vIDX, vZ, vAD, vAS, vAQ, vPG, vQ = 1, 2, 4, 5, 6, 7, 8
vCA, vONEA = 12, 13
S0, S1, vO, KV = 16, 32, 48, 64
cm("zero sync counters + progress words")
a("v_mov_b32 v2, 0")
a("v_mov_b32 v3, 0")
a("v_mov_b32 v4, 0")
a("v_mov_b32 v5, 0")
a(f"v_add_u32 v7, {L_PROG}, v6")
a("ds_write_b128 v7, v[2:5]")
a("ds_write_b128 v7, v[2:5] offset:1024")
a(f"v_lshl_add_u32 v14, s{sWV}, 2, v12")
a("v_xor_b32 v15, v13, v14")
a("v_lshlrev_b32 v15, 4, v15")
a("v_lshl_add_u32 v16, v14, 10, v15")
def wo_voff(dst, t):
    a(f"v_lshrrev_b32 v{t}, 3, v0")
    a(f"v_and_b32 v{t+1}, 7, v0")
    a(f"v_lshrrev_b32 v{t+2}, 2, v0")
    a(f"v_and_b32 v{t+2}, 4, v{t+2}")
    a(f"v_xor_b32 v{t+1}, v{t+1}, v{t+2}")
    a(f"v_lshlrev_b32 v{t+1}, 4, v{t+1}")
    a(f"v_lshl_add_u32 v{dst}, v{t}, 10, v{t+1}")
wo_voff(17, 20)
def wslice_setup():
    a(f"s_lshl_b32 s{sT0}, s{sG}, 7")
    a(f"s_lshl_b32 s{sT1}, s{sWV}, 15")
    a(f"s_add_u32 s{sT0}, s{sT0}, s{sT1}")
    a(f"s_lshl_b32 s{sT1}, s{sWV}, 12")
wslice_setup()
a(f"s_lshl_b32 s{sT4}, s{sRB}, 16")
a(f"s_lshl_b32 s{sT5}, s{sWV}, 10")
for m in range(1, 4):
    a(f"s_add_u32 s{sT2}, s{sGRP}, {m}")
    a(f"s_and_b32 s{sT2}, s{sT2}, 3")
    a(f"s_lshl_b32 s{sT3}, s{sT2}, 14")
    a(f"s_add_u32 s{95+m}, s{sT3}, s{sT4}")
    a(f"s_lshl_b32 s{sT3}, s{sT2}, 12")
    a(f"s_add_u32 s{98+m}, s{sT3}, s{sT5}")
a(f"s_mov_b32 s{R_B+2}, {512*1024}")
a(f"v_mov_b32 v{vCA}, {L_CNT}")
a(f"v_mov_b32 v{vONEA}, 1")
a("s_waitcnt lgkmcnt(0)")
a(f"s_mov_b32 s{R_A}, s{P_AX}")
a(f"s_and_b32 s{R_A+1}, s{P_AX+1}, 0xffff")
a(f"s_mov_b32 s{R_B}, s{P_WQ}")
a(f"s_and_b32 s{R_B+1}, s{P_WQ+1}, 0xffff")
if STAMPS:
    a("s_mov_b32 s81, 0")
    a("s_mov_b32 s93, 0")
a("s_barrier")
def qops(sl):
    a(f"s_add_u32 s{sT3}, s{sROT}, {sl}")
    a(f"s_and_b32 s{sT3}, s{sT3}, 3")
    a(f"s_lshl_b32 s{sT4}, s{sT3}, 8")
    a(f"s_lshl_b32 s{sT3}, s{sT3}, 17")
    a(f"s_add_u32 s{sT3}, s{sT3}, s{sT0}")
    for m in range(1, 4):
        a(f"s_add_u32 m0, s{98+m}, {L_XA + 16384*sl}")
        a(f"s_add_u32 s{sT2}, s{95+m}, s{sT4}")
        dma(16, R_A, f"s{sT2}")
    for i in range(4):
        a(f"s_add_u32 m0, s{sT1}, {L_WQ + 16384*sl + 1024*i}")
        a(f"s_add_u32 s{sT2}, s{sT3}, {8192*i}")
        dma(17, R_B, f"s{sT2}")
if CPF == 1: a(f"global_load_dword v33, v32, s[{sM}:{sM+1}]")
QW = int(OPT.get("qw", 1))
for sl in range(QW): qops(sl)
srd(R_WS, P_WS, WS_SIZE)
a(f"s_mov_b32 s{sSYNC}, 0")
a(f"s_mov_b32 s{sLO}, {f32(L_LO)}")
a(f"s_mov_b32 s{sHI}, {f32(L_HI)}")
cm("prefill V regs: rows 16 and 20 = ones, other rows >=16 zero")
a("v_and_b32 v24, 27, v0")
a("v_cmp_eq_u32 vcc, 16, v24")
a("v_mov_b32 v25, 0x3f803f80")
a("s_nop 0")
a("v_cndmask_b32 v24, 0, v25, vcc")
a("v_mov_b32 v25, v24")
for t in range(16):
    for j in range(4):
        a(f"v_mov_b64 {vr(KV+12*t+4+2*j,2)}, v[24:25]")
a("v_mov_b32 v14, v6")
a("v_lshrrev_b32 v24, 5, v0")
a("v_and_b32 v25, 15, v0")
a("v_lshl_add_u32 v15, v24, 4, v25")
a("v_lshlrev_b32 v15, 4, v15")
a(f"v_mov_b32 v{vIDX}, 0xdddddddd")
a(f"s_lshl_b32 s{sT2}, s{sWV}, 11")
a(f"v_add_u32 v{vAD}, s{sT2}, v14")
a(f"s_lshl_b32 s{sT2}, s{sWV}, 2")
a(f"s_add_u32 s{sT3}, s{sT2}, {L_PART + 8192}")
a(f"v_add_u32 v{vAS}, s{sT3}, v14")
a(f"s_add_u32 s{sT3}, s{sT2}, {L_PROG}")
a(f"v_add_u32 v{vPG}, s{sT3}, v14")
a(f"v_add_u32 v{vAQ}, {L_QF}, v14")
a(f"v_lshlrev_b32 v23, {FSH}, v0")
waitc(vCA, C_A1, int(OPT.get("qc", 4)), 20)
a(f"ds_read_b32 v20, v{vCA} offset:{C_TAG}")
for sl in range(QW, 4):
    qops(sl)
    if sl >= 1:
        a(f"s_waitcnt vmcnt({7 if sl < 3 or True else 7})") if False else None
    if sl == 1 or (sl == QW and QW > 1):
        a(f"s_waitcnt vmcnt({7*sl})")
        signal(vCA, vONEA, C_H0)
a("s_waitcnt vmcnt(14) lgkmcnt(0)")
signal(vCA, vONEA, C_H1)
a(f"v_readfirstlane_b32 s{sTAG}, v20")
a(f"s_lshl_b32 s{sT0}, s{sWV}, {FSH+6}")
a(f"s_add_u32 s{sT0}, s{sT0}, {WS_FKV}")
stamp(1)
PP = int(OPT.get("pp", 3))
a(f"s_waitcnt vmcnt(7)")
signal(vCA, vONEA, C_H2)
if PP == 2:
    a(f"buffer_load_dword v22, v23, {sr(R_WS,4)}, s{sT0} offen sc1")
    a(f"s_waitcnt vmcnt(1)")
else:
    a(f"s_waitcnt vmcnt(0)")
signal(vCA, vONEA, C_H3)
a("s_branch L_a2")
sec("A")
lab("L_a2")
stamp(2)
if PP == 2:
    a("s_waitcnt vmcnt(0)")
    a(f"v_cmp_ne_u32 vcc, s{sTAG}, v22")
    a("s_cbranch_vccz L_a_kvok")
if PP == 4: waitc(vCA, C_H3, 4, 20)
poll(23, f"s{sT0}", 22)
lab("L_a_kvok")
stamp(4)
a(f"s_lshl_b32 s{sT0}, s{sWV}, 15")
a(f"s_add_u32 s{sT0}, s{sT0}, {WS_KV}")
a(f"s_mov_b32 s{sM}, 0xffff")
a(f"s_mov_b32 s{sM+1}, 0xffff")
def kvload(tp):
    for t in (2*tp, 2*tp+1):
        a(f"buffer_load_dwordx4 {vr(KV+12*t,4)}, v14, {sr(R_WS,4)}, s{sT0} offen offset:{2048*(t&1)} sc1")
    a(f"s_mov_b64 exec, s[{sM}:{sM+1}]")
    for t in (2*tp, 2*tp+1):
        a(f"buffer_load_dwordx4 {vr(KV+12*t+4,4)}, v15, {sr(R_WS,4)}, s{sT0} offen offset:{2048*(t&1)+1024} sc1")
        a(f"buffer_load_dwordx4 {vr(KV+12*t+8,4)}, v15, {sr(R_WS,4)}, s{sT0} offen offset:{2048*(t&1)+1536} sc1")
    a("s_mov_b64 exec, -1")
    if tp < 7: a(f"s_add_u32 s{sT0}, s{sT0}, 4096")
NINIT = int(OPT.get("ninit", 3))
A4POS = int(OPT.get("a4", 8))
ABPOS = int(OPT.get("ab", 0))
for tp in range(NINIT):
    kvload(tp)
    if tp + 1 in (A4POS, ABPOS): signal(vCA, vONEA, C_A4)
stamp(5)
waitc(vCA, C_A3, 4, 22)
a("s_setprio 1")
a(f"ds_read_b128 {vr(vQ,4)}, v{vAQ}")
a(f"v_add_u32 v{vAQ}, 1024, v{vAQ}")
a(f"s_waitcnt vmcnt({6*(NINIT-1)}) lgkmcnt(0)")
stamp(6)
cstamp(10)

K_ = lambda t: KV + 12 * t
V1 = lambda t: KV + 12 * t + 4
V2 = lambda t: KV + 12 * t + 8
def ex(X, i): a(f"v_exp_f32 v{X+i}, v{X+i}")
def exs(X, lo, hi):
    for i in range(lo, hi): ex(X, i)
def smf(v, p): a(f"v_smfmac_f32_32x32x32_bf16 {vr(vO,16)}, {vr(v,4)}, {vr(p,8)}, v{vIDX}")
def qk(d, t): mfma32(d, K_(t), vQ, "0")
def zeroO(): a(f"v_mfma_f32_32x32x8_bf16 {vr(vO,16)}, {vr(vZ,2)}, {vr(vZ,2)}, 0")
def dump():
    a(f"ds_write_b128 v{vAD}, {vr(vO,4)}")
    a(f"ds_write_b128 v{vAD}, {vr(vO+4,4)} offset:1024")
    a(f"ds_write_b32 v{vAS}, v{vO+8}")
    a(f"ds_write_b32 v{vPG}, v{vAS}")

KVS = int(OPT.get('kvs', 2))
PQ, PS1 = [int(x) for x in OPT.get('pos', '7,12').split(',')]
def tiles_1_15(first):
    issued = [NINIT + 1 if first else 8]
    def preqk(tn):
        if first and tn % 2 == 0 and tn < 16:
            a(f"s_waitcnt vmcnt({6*(min(issued[0],8) - 1 - tn//2)})")
    def more(t):
        if first and t % KVS == 0 and issued[0] < 8:
            kvload(issued[0]); issued[0] += 1
            if issued[0] in (A4POS, ABPOS): signal(vCA, vONEA, C_A4)
    X, Y = S1, S0
    smf(V1(0), Y); exs(X, 0, 3); smf(V2(0), Y + 8); exs(X, 3, 6); preqk(2); qk(Y, 2); exs(X, 6, 10); smf(V1(1), X); more(1); exs(X, 10, 16)
    a(f"s_add_u32 s{sSTEP}, s{sSTEP}, 1")
    for t in range(2, 16):
        X, Y = (S0, S1) if t % 2 == 0 else (S1, S0)
        exs(X, 0, 2); smf(V2(t - 1), Y + 8); exs(X, 2, PQ)
        if t == 15:
            a("s_waitcnt lgkmcnt(0)")
            if DBG == "steps":
                a(f"s_mov_b32 m0, s{sSTEP}")
                a("s_nop 0")
                a(f"s_movreld_b32 s80, s{sST}")
            qk(Y, 0)
        else:
            preqk(t + 1)
            qk(Y, t + 1)
        if t == 14:
            if DBG == "steps": a(f"s_memtime s[{sST}:{sST+1}]")
            a(f"ds_read_b128 {vr(vQ,4)}, v{vAQ}")
            a(f"v_add_u32 v{vAQ}, 1024, v{vAQ}")
        exs(X, PQ, PS1); smf(V1(t), X); more(t); exs(X, PS1, 16)

qk(S0, 0)
zeroO()
qk(S1, 1)
a(f"s_mov_b32 s{sSTEP}, 0")
if NINIT < 8:
    kvload(NINIT)
    if NINIT + 1 in (A4POS, ABPOS): signal(vCA, vONEA, C_A4)
else:
    a("s_nop 8")
exs(S0, 0, 16)
a("s_nop 1")
tiles_1_15(True)
a("s_nop 0")
a("s_branch L_a_bound")
lines.append(".p2align 6")
lab("L_a_loop")
tiles_1_15(False)
a(f"s_cmp_eq_u32 s{sSTEP}, 8")
a("s_cbranch_scc1 L_a_fin")
lab("L_a_bound")
X, Y = S0, S1
smf(V2(15), Y + 8); exs(X, 0, 3); qk(Y, 1); exs(X, 3, 11)
dump()
ex(X, 11); zeroO(); exs(X, 12, 16)
a(f"v_add_u32 v{vAD}, {PSTRIDE}, v{vAD}")
a(f"v_add_u32 v{vAS}, {PSTRIDE}, v{vAS}")
a("s_branch L_a_loop")

lab("L_a_fin")
smf(V2(15), S1 + 8)
a(f"s_add_u32 s{sSTEP}, s{sWV}, {6 if STG3 else 4}")
a(f"s_mul_i32 s{sT2}, s{sSTEP}, {PSTRIDE}")
a(f"v_add_u32 v{vAQ}, s{sT2}, v14")
o2_offset()
o_offsets()
dump()
a("s_setprio 3")
stamp(7)
cstamp(11)
gsync(vCA, vONEA, 16, C_GA)
if STG3:
    a(f"s_cmp_ge_u32 s{sWV}, 2")
    a("s_cbranch_scc1 L_a_nored")
a(f"ds_read_b128 v[48:51], v{vAQ} offset:8192")
for w in range(4):
    a(f"ds_read_b128 {vr(16+8*w,4)}, v{vAQ} offset:{2048*w}")
    a(f"ds_read_b128 {vr(20+8*w,4)}, v{vAQ} offset:{2048*w + 1024}")
a("s_waitcnt lgkmcnt(8)")
sum_check(48)
a("s_waitcnt lgkmcnt(0)")
a("s_cbranch_scc1 L_a_nost")
reduce_math(16, 14, tagged=True)
if OPT.get("fack", "1") == "1": a("s_waitcnt vmcnt(0)")
lab("L_a_nost")
signal(vCA, vONEA, C_DONE)
stamp(9)
lab("L_a_nored")
a("s_setprio 0")
cm("epoch update by WG0")
a(f"s_lshl_b32 s{sT0}, s2, 2")
a(f"s_add_u32 s{sT0}, s{sT0}, s{sWV}")
a(f"s_cmp_eq_u32 s{sT0}, 3")
a("s_cbranch_scc0 L_a_noep")
a(f"s_mov_b32 s{sT0}, 0")
setflag(16, 17, sT0)
lab("L_a_noep")
cm("safety check of every row sum; unsafe tiles are redone with the true row max")
a(f"s_mov_b32 s{sSTEP}, 0")
a(f"v_add_u32 v{vAS}, {L_PART + 8192}, v14")
lab("L_a_chk")
a(f"ds_read_b128 v[16:19], v{vAS}")
a("s_waitcnt lgkmcnt(0)")
sum_check(16)
a("s_cbranch_scc1 L_slow")
lab("L_a_next")
a(f"v_add_u32 v{vAS}, {PSTRIDE}, v{vAS}")
a(f"s_add_u32 s{sSTEP}, s{sSTEP}, 1")
a(f"s_cmp_lt_u32 s{sSTEP}, 8")
a("s_cbranch_scc1 L_a_chk")
a("s_branch L_end")

sec("P")
ROLE[0] = "H"
if STAMPS:
    a("s_mov_b32 s81, 0")
    a("s_mov_b32 s92, 0")
    a("s_mov_b32 s93, 0")
srd(R_WS, P_WS, WS_SIZE)
a("v_xor_b32 v14, v12, v13")
a("v_lshlrev_b32 v14, 4, v14")
a("v_lshl_add_u32 v14, v13, 8, v14")
a(f"v_add_u32 v8, s{sT2}, v14")
for ks in range(1, 4):
    a(f"v_xor_b32 v{8+ks}, {64*ks}, v8")
a("v_lshrrev_b32 v14, 2, v13")
a("v_lshl_add_u32 v14, v12, 3, v14")
a("v_lshlrev_b32 v14, 5, v14")
a("v_and_b32 v15, 3, v0")
a("v_lshl_add_u32 v14, v15, 3, v14")
a(f"v_add_u32 v14, s{sT4}, v14")
a(f"s_lshl_b32 s{sT0}, s{sWV}, 10")
a(f"s_add_u32 s{sT0}, s{sT0}, {L_KVP}")
a(f"v_add_u32 v15, s{sT0}, v6")
a(f"s_lshl_b32 s{sT0}, s{sRB}, 2")
a(f"s_add_u32 s{sT0}, s{sT0}, s{sGRP}")
a(f"s_lshr_b32 s{sT1}, s{sT0}, 1")
a(f"s_lshl_b32 s{sT1}, s{sT1}, 1")
a(f"s_add_u32 s{sT1}, s{sT1}, s{sKIND}")
a(f"s_lshl_b32 s{sT1}, s{sT1}, 10")
a(f"s_and_b32 s{sT2}, s{sT0}, 1")
a(f"s_add_u32 s{sT3}, s{sKIND}, 8")
a(f"s_lshl_b32 s{sT2}, s{sT2}, s{sT3}")
a(f"s_add_u32 s{sT1}, s{sT1}, s{sT2}")
a(f"s_add_u32 s{sT5}, s{sT1}, {WS_KV}")
a(f"s_lshl_b32 s{sT0}, s{sT0}, 1")
a(f"s_add_u32 s{sT0}, s{sT0}, s{sKIND}")
a(f"s_lshl_b32 s{sT0}, s{sT0}, {FSH}")
a(f"s_add_u32 s{sT6}, s{sT0}, {WS_FKV}")
a(f"s_cmp_eq_u32 s{sKIND}, 0")
a(f"s_cselect_b32 s{sT0}, 9, 3")
a(f"s_cselect_b32 s{sT1}, 3, 8")
a("v_and_b32 v34, 1, v12")
a("v_lshrrev_b32 v35, 1, v12")
a("v_lshlrev_b32 v16, 4, v13")
a(f"v_lshl_add_u32 v16, v34, s{sT0}, v16")
a(f"v_lshl_add_u32 v16, v35, s{sT1}, v16")
a(f"v_mov_b32 v{vCNT}, {L_CNT}")
a(f"v_mov_b32 v{vONE}, 1")
a("s_waitcnt lgkmcnt(0)")
a(f"s_mul_i32 s{sTAG}, s{sTAG}, 1664525")
a(f"s_add_u32 s{sTAG}, s{sTAG}, 1013904223")
a(f"v_mov_b32 v36, s{sTAG}")
a(f"ds_write_b32 v{vCNT}, v36 offset:{C_TAG}")
a(f"s_cmp_eq_u32 s{sKIND}, 0")
a(f"s_waitcnt vmcnt(4)")
stamp(1)
b = 128
for ks in range(4):
    a(f"ds_read_b128 {vr(b+8*ks,4)}, v{8+ks}")
    a(f"ds_read_b64_tr_b16 {vr(b+8*ks+4,2)}, v14 offset:{1024*ks}")
    a(f"ds_read_b64_tr_b16 {vr(b+8*ks+6,2)}, v14 offset:{1024*ks+128}")
def kvproj(kind):
    for ks in range(4):
        a(f"s_waitcnt lgkmcnt({9 - 3*ks})")
        x, w = vr(b+8*ks, 4), vr(b+8*ks+4, 4)
        if kind == 0: x, w = w, x
        a(f"v_mfma_f32_16x16x32_bf16 v[40:43], {x}, {w}, {'0' if ks == 0 else 'v[40:43]'}")
a("s_cbranch_scc0 L_h_vproj")
kvproj(0)
a("s_branch L_h_kvdone")
lab("L_h_vproj")
kvproj(1)
lab("L_h_kvdone")
a(f"s_cmp_eq_u32 s{sWV}, 0")
a("s_cbranch_scc1 L_h_pub")
a("s_nop 5")
a("ds_write_b128 v15, v[40:43]")
signal(vCNT, vONE, C_A1)
a("s_branch L_h_common")
lab("L_h_pub")
signal(vCNT, vONE, C_A1)
lab("L_h_pubw")
a(f"ds_read_b32 v36, v{vCNT} offset:{C_A1}")
for i in range(1, 4):
    a(f"ds_read_b128 {vr(40+4*i,4)}, v15 offset:{1024*i}")
a("s_waitcnt lgkmcnt(0)")
a("v_cmp_gt_u32 vcc, 4, v36")
a("s_cbranch_vccnz L_h_pubw")
a("v_pk_add_f32 v[40:41], v[40:41], v[44:45]")
a("v_pk_add_f32 v[42:43], v[42:43], v[46:47]")
a("v_pk_add_f32 v[48:49], v[48:49], v[52:53]")
a("v_pk_add_f32 v[50:51], v[50:51], v[54:55]")
a("v_pk_add_f32 v[40:41], v[40:41], v[48:49]")
a("v_pk_add_f32 v[42:43], v[42:43], v[50:51]")
a("v_cvt_pk_bf16_f32 v40, v40, v41")
a("v_cvt_pk_bf16_f32 v41, v42, v43")
a(f"buffer_store_dwordx2 v[40:41], v16, {sr(R_WS,4)}, s{sT5} offen sc1")
dstamp("p", 5)
a("s_branch L_h_common")
sec("HQ")
lab("L_h_common")
a(f"s_mov_b32 s{sSYNC}, 0")
a("v_and_b32 v17, 31, v0")
a("v_lshrrev_b32 v18, 5, v0")
p0, p1, p2, vDSK = 60, 61, 62, 63
cm("Q projection addresses")
QXA = list(range(48, 56))
a(f"s_lshr_b32 s{sT0}, s{sWV}, 1")
a(f"s_lshl_b32 s{sT0}, s{sT0}, 13")
a("v_xor_b32 v34, v13, v18")
a("v_lshlrev_b32 v34, 4, v34")
a("v_lshl_add_u32 v34, v17, 8, v34")
a(f"v_add_u32 v{QXA[0]}, s{sT0}, v34")
for ks in range(1, 8):
    a(f"v_xor_b32 v{QXA[ks]}, {32*ks}, v{QXA[0]}")
wtr_addr(vWT, 9, L_R1, 34)
a(f"v_lshl_add_u32 v56, v18, 9, v{vWT}")
a(f"v_add_u32 v56, {(L_WQ - L_R1) & 0xffffffff}, v56")
a(f"s_and_b32 s{sT1}, s{sWV}, 1")
a(f"s_lshl_b32 s{sT1}, s{sT1}, 12")
a(f"s_lshr_b32 s{sT2}, s{sWV}, 1")
a(f"s_lshl_b32 s{sT2}, s{sT2}, 10")
a(f"s_add_u32 s{sT1}, s{sT1}, s{sT2}")
a(f"s_add_u32 s{sT1}, s{sT1}, {L_QF}")
a(f"v_add_u32 v57, s{sT1}, v6")
a(f"v_mov_b32 v58, {f32(0.25 * LOG2E)}")
a("v_mov_b32 v59, v58")
cm("SSM offsets and addresses")
a(f"s_mov_b32 s{R_A}, s{P_BX}")
a(f"s_and_b32 s{R_A+1}, s{P_BX+1}, 0xffff")
srd(R_B, P_BRE, 512 * 1024)
srd(R_C, P_BIM, 512 * 1024)
a(f"s_mov_b32 s{sLO}, {f32(L_LO)}")
a(f"s_mov_b32 s{sHI}, {f32(L_HI)}")
a(f"s_lshl_b32 s{sT0}, s{sC}, 17")
a(f"s_lshl_b32 s{sT1}, s{sWV}, 15")
a(f"s_add_u32 s{sT3}, s{sT0}, s{sT1}")
a(f"s_lshr_b32 s{sT0}, s{sWV}, 1")
a(f"s_lshl1_add_u32 s{sYG}, s{sRB}, s{sT0}")
a(f"s_and_b32 s{sT0}, s{sWV}, 1")
a(f"s_lshl1_add_u32 s{sCG}, s{sG}, s{sT0}")
a(f"s_lshl_b32 s{sT4}, s{sYG}, 15")
a(f"s_lshl_b32 s{sT2}, s{sCG}, 6")
a(f"s_add_u32 s{sT4}, s{sT4}, s{sT2}")
wo_voff(vWO, 34)
a("v_lshrrev_b32 v36, 2, v0")
a("v_and_b32 v34, 3, v36")
a("v_bfe_u32 v35, v36, 2, 1")
a("v_lshl_add_u32 v34, v35, 4, v34")
a("v_lshrrev_b32 v35, 3, v36")
a("v_lshl_add_u32 v34, v35, 2, v34")
a("v_and_b32 v37, 3, v0")
a("v_lshlrev_b32 v35, 4, v37")
a("v_lshl_add_u32 v8, v34, 10, v35")
a("v_add_u32 v9, 8192, v8")
a(f"v_mul_u32_u24 v{vRB}, {RSTR}, v17")
a(f"v_lshl_add_u32 v{vRB}, v18, 4, v{vRB}")
a(f"v_add_u32 v{vRB}, {L_R1}, v{vRB}")
a(f"s_lshl_b32 s{sT1}, s{sWV}, 11")
a(f"s_add_u32 s{sT1}, s{sT1}, {L_SCR}")
a("v_xor_b32 v34, v12, v37")
a("v_lshlrev_b32 v34, 4, v34")
a("v_lshl_add_u32 v34, v36, 6, v34")
a(f"v_add_u32 v10, s{sT1}, v34")
a("v_bfe_u32 v34, v0, 2, 2")
a("v_xor_b32 v35, v34, v18")
a("v_lshlrev_b32 v35, 4, v35")
a("v_lshl_add_u32 v35, v17, 6, v35")
a(f"v_add_u32 v11, s{sT1}, v35")
a("v_xor_b32 v12, 32, v11")
a("v_lshl_add_u32 v34, v18, 3, v34")
a("v_lshlrev_b32 v34, 6, v34")
a("v_bfe_u32 v35, v0, 4, 1")
a("v_lshl_add_u32 v34, v35, 5, v34")
a("v_lshl_add_u32 v34, v37, 3, v34")
a(f"v_add_u32 v19, s{sT1}, v34")
a("v_lshlrev_b32 v34, 6, v17")
a("v_lshl_add_u32 v34, v18, 5, v34")
a(f"v_add_u32 v16, s{sT1}, v34")
a("v_lshlrev_b32 v38, 4, v18")
a("v_lshl_add_u32 v29, v17, 10, v38")
a("v_lshlrev_b32 v14, 4, v17")
a("s_waitcnt vmcnt(1)")
a(f"s_cmp_eq_u32 s{sWV}, 0")
a("s_cbranch_scc1 L_h_pw")
a("s_waitcnt vmcnt(0)")
lab("L_h_pw")
cm("SSM parameters")
q0, q1, q2, q3, q4 = 64, 65, 66, 67, 68
a(f"v_lshlrev_b32 v{p0}, 16, v{p0}")
a(f"v_lshlrev_b32 v{p1}, 16, v{p1}")
a(f"v_lshlrev_b32 v{p2}, 16, v{p2}")
a(f"v_mul_f32 v{p2}, {f32(LOG2E)}, v{p2}")
a(f"v_exp_f32 v{p2}, v{p2}")
a("s_nop 0")
a(f"v_cvt_pk_bf16_f32 v{p2}, v{p2}, v{p2}")
a(f"v_and_b32 v{p2}, 0xffff0000, v{p2}")
a(f"v_mul_f32 v{q0}, v{p2}, v{p0}")
a(f"v_mul_f32 v{q1}, v{p2}, v{p1}")
a(f"v_mul_f32 v{q0}, {f32(LOG2E)}, v{q0}")
a(f"v_mul_f32 v{q1}, {f32(1/(2*math.pi))}, v{q1}")
a(f"v_exp_f32 v{q0}, v{q0}")
a(f"v_rndne_f32 v{q2}, v{q1}")
a(f"v_sub_f32 v{q1}, v{q1}, v{q2}")
a(f"v_cos_f32 v{q2}, v{q1}")
a(f"v_sin_f32 v{q3}, v{q1}")
a(f"v_mul_f32 v{q4}, v{p0}, v{p0}")
a(f"v_fma_f32 v{q4}, v{p1}, v{p1}, v{q4}")
a(f"v_mul_f32 v{vL}, v{q0}, v{q2}")
a(f"v_mul_f32 v{vL+1}, v{q0}, v{q3}")
a(f"v_rcp_f32 v{q4}, v{q4}")
a(f"v_add_f32 v{q2}, -1.0, v{vL}")
a(f"v_add_f32 v{q4}, v{q4}, v{q4}")
a(f"v_mul_f32 v{q0}, v{q2}, v{p0}")
a(f"v_fma_f32 v{q0}, v{vL+1}, v{p1}, v{q0}")
a(f"v_mul_f32 v{q1}, v{vL+1}, v{p0}")
a(f"v_fma_f32 v{q1}, -v{q2}, v{p1}, v{q1}")
a(f"v_mul_f32 v{vCO}, v{q0}, v{q4}")
a(f"v_mul_f32 v{vCO+1}, v{q1}, v{q4}")
cmul(70, vL, vL); cmul(72, 70, 70); cmul(vL8, 72, 72); cmul(vL16_, vL8, vL8)
cm("skip term x*D via a diagonal B operand -> YACC")
YACC = 112
a("v_and_b32 v64, 1, v0")
a("v_lshlrev_b32 v64, 4, v64")
a(f"v_lshlrev_b32 v{vDSK}, v64, v{vDSK}")
a("v_lshrrev_b32 v64, 1, v17")
a("v_lshlrev_b32 v65, 2, v18")
a("v_sub_u32 v64, v64, v65")
for i in range(0, 8, 2):
    a(f"v_cmp_eq_u32 s[{sM}:{sM+1}], {8*(i//4) + i%4}, v64")
    a(f"v_cmp_eq_u32 vcc, {8*(i//4) + i%4 + 1}, v64")
    a("s_nop 0")
    a(f"v_cndmask_b32 v{104+i}, 0, v{vDSK}, s[{sM}:{sM+1}]")
    a(f"v_cndmask_b32 v{105+i}, 0, v{vDSK}, vcc")
cm("per-lane powers: PS = L16^seg, M0 = L256^seg (if valid), M1 = M0*L128 (if valid)")
vPS, vM0, vM1, vO0, vO1 = 96, 98, 100, 102, 103
a(f"s_mov_b32 s{sM}, 0")
a(f"s_mov_b32 s{sM+1}, -1")
def powsel(dst, b1, b2, b4):
    a(f"v_cndmask_b32 v{dst}, 1.0, v{b1}, s[{sM}:{sM+1}]")
    a(f"v_cndmask_b32 v{dst+1}, 0, v{b1+1}, s[{sM}:{sM+1}]")
    for bit, b in ((0, b2), (1, b4)):
        L = uid("ps")
        a(f"s_bitcmp1_b32 s{sWV}, {bit}")
        a(f"s_cbranch_scc0 {L}")
        cmul(66, dst, b)
        a(f"v_mov_b64 {vr(dst,2)}, v[66:67]")
        lab(L)
cmul(68, vL16_, vL16_); cmul(70, 68, 68); cmul(72, 70, 70)
cmul(74, 72, 72); cmul(76, 74, 74); cmul(78, 76, 76)
powsel(vPS, vL16_, 68, 70)
powsel(vM0, 74, 76, 78)
cmul(vM1, vM0, 72)
a(f"s_lshl_b32 s{sT0}, s{sWV}, 2")
a(f"s_sub_u32 s{sT0}, s{sC}, s{sT0}")
a(f"s_sub_u32 s{sT0}, s{sT0}, 1")
a("v_lshlrev_b32 v30, 1, v18")
a(f"v_sub_u32 v{vO0}, s{sT0}, v30")
a(f"v_add_u32 v{vO1}, -1, v{vO0}")
a(f"v_mov_b32 v30, 0")
for (vo, vm) in ((vO0, vM0), (vO1, vM1)):
    a(f"v_cmp_le_i32 vcc, 0, v{vo}")
    a("s_nop 1")
    a(f"v_cndmask_b32 v{vo}, v30, v{vo}, vcc")
    a(f"v_cndmask_b32 v{vm}, 0, v{vm}, vcc")
    a(f"v_cndmask_b32 v{vm+1}, 0, v{vm+1}, vcc")
    a(f"v_lshl_add_u32 v{vo}, v{vo}, 9, v14")
a("s_waitcnt vmcnt(0)")
a(f"s_cmp_eq_u32 s{sWV}, 0")
a("s_cbranch_scc0 L_h_nopub")
setflag(34, 35, sT6)
stamp(2)
lab("L_h_nopub")
waitc(vCNT, C_A1, 4, 34)
cm("Q projection")
ACC, QD = 32, 4
XR = 128
VM, LG = Cnt(), Cnt()
xq = [(j, h) for j in range(16) for h in range(2)]
def xb1():
    j, h = xq.pop(0)
    a(f"buffer_load_dwordx4 {vr(XR+8*j+4*h,4)}, v{8+h}, {sr(R_A,4)}, s{sT3} offen offset:{64*j}")
    VM.issue(("x", j))
def qs(ks): return 128 + 8 * (ks % 8)
def qread(ks):
    a(f"ds_read_b64_tr_b16 {vr(qs(ks),2)}, v56 offset:{2048*ks}")
    a(f"ds_read_b64_tr_b16 {vr(qs(ks)+2,2)}, v56 offset:{2048*ks+512}")
    a(f"ds_read_b128 {vr(qs(ks)+4,4)}, v{QXA[ks % 8]} offset:{16384*(ks//8)}")
def qm(ks): mfma32(ACC, qs(ks), qs(ks) + 4, "0" if ks == 0 else None)
XPOST = int(OPT.get("xpost", 0))
TRIG = -1
CH = [C_H0, C_H1, C_H2, C_H3]
waitc(vCNT, C_H0, 4, 30)
for ks in range(QD): qread(ks)
for ks in range(32):
    p = ks // 8
    if ks % 8 == 0:
        lab(f"L_q_join{p}")
        if ks == TRIG: signal(vCNT, vONE, C_S)
        if p < 3: a(f"ds_read_b32 v30, v{vCNT} offset:{CH[p+1]}")
    extra = (1 if p < 3 else 0) + (1 if 8*p == TRIG else 0)
    if ks % 8 == 4 and p < 3:
        a(f"s_waitcnt lgkmcnt(12)")
        a(f"v_cmp_gt_u32 vcc, 4, v30")
        a(f"s_cbranch_vccnz L_q_late{p}")
    if ks + QD < 32:
        qread(ks + QD)
        a(f"s_waitcnt lgkmcnt({min(15, 12 + (extra if ks % 8 < 4 else 0))})")
    else:
        a(f"s_waitcnt lgkmcnt({3*(31-ks)})")
    qm(ks)
sec("Z")
for p in range(3):
    lab(f"L_q_late{p}")
    for ks in range(8*p + 4, 8*p + 8):
        a(f"s_waitcnt lgkmcnt({3*(8*p+7-ks)})")
        qm(ks)
    waitc(vCNT, CH[p+1], 4, 30)
    for ks in range(8*p + 8, 8*p + 8 + QD): qread(ks)
    a(f"s_branch L_q_join{p+1}")
sec("HQ")
if TRIG == 32: signal(vCNT, vONE, C_S)
a(f"s_lshl_b32 s{sT0}, s{sWV}, 9")
a(f"s_add_u32 s{sT0}, s{sT0}, {L_ES}")
a("v_lshlrev_b32 v13, 3, v0")
a(f"v_add_u32 v13, s{sT0}, v13")
a("v_lshlrev_b32 v15, 3, v17")
a(f"v_add_u32 v15, {L_ES}, v15")
a("v_lshlrev_b32 v1, 2, v17")
a("v_lshl_add_u32 v1, v18, 14, v1")
a(f"s_lshl_b32 s{sT0}, s{sPB}, 15")
a(f"s_lshl_b32 s{sT1}, s{sWV}, 13")
a(f"s_add_u32 s{sT5}, s{sT0}, s{sT1}")
a(f"s_add_u32 s{sT6}, s{sT5}, 4096")
a(f"s_and_b32 s{sT0}, s{sRB}, 3")
a(f"s_lshl2_add_u32 s{sT1}, s{sT0}, s{sWV}")
a(f"s_lshl_b32 s{sT1}, s{sT1}, 15")
a(f"s_lshl_b32 s{sT2}, s{sG}, 7")
a(f"s_add_u32 s{sT1}, s{sT1}, s{sT2}")
a("v_lshlrev_b32 v18, 10, v17")
a(f"v_add_u32 v18, s{sT1}, v18")
a(f"s_lshl2_add_u32 s{sT0}, s{sG}, s{sT0}")
a(f"s_lshl_b32 s{sT0}, s{sT0}, 14")
a(f"s_and_b32 s{sT1}, s{sWV}, 1")
a(f"s_lshl_b32 s{sT1}, s{sT1}, 13")
a(f"s_add_u32 s{sT0}, s{sT0}, s{sT1}")
a("v_lshlrev_b32 v17, 7, v0")
a(f"v_add_u32 v17, s{sT0}, v17")
a(f"s_cmp_lt_u32 s{sWV}, 2")
a(f"s_cselect_b32 s{sPC}, s{P_CRE}, s{P_CIM}")
a(f"s_cselect_b32 s{sPC+1}, s{P_CRE+1}, s{P_CIM+1}")
a(f"s_and_b32 s{sT0}, s{sWV}, 1")
a(f"s_mul_i32 s{sT0}, s{sT0}, {32*RSTR}")
a(f"v_add_u32 v28, s{sT0}, v{vRB}")
for r in range(0, 16, 2):
    a(f"v_pk_mul_f32 {vr(ACC+r,2)}, {vr(ACC+r,2)}, v[58:59]")
for j in range(8):
    a(f"v_cvt_pk_bf16_f32 v{ACC+j}, v{ACC+2*j}, v{ACC+2*j+1}")
a(f"ds_write_b128 v57, {vr(ACC,4)}")
a(f"ds_write_b128 v57, {vr(ACC+4,4)} offset:2048")
signal(vCNT, vONE, C_A3)
stamp(3)
a("s_branch L_h2")
sec("H")
lab("L_h2")
a("s_setprio 2")
def rows_dma(tag, base=sT5, ore=0, oim=0):
    a(f"s_mul_i32 s{sT1}, s{sWV}, {8*RSTR}")
    for i in range(8):
        a(f"s_add_u32 m0, s{sT1}, {L_R1 + RSTR*i}")
        a(f"s_add_u32 s{sT2}, s{base}, {1024*i + ore}")
        dma(vL4, R_B, f"s{sT2}")
        a(f"s_add_u32 m0, s{sT1}, {L_R1 + RSTR*(32+i)}")
        a(f"s_add_u32 s{sT2}, s{base}, {1024*i + oim}")
        dma(vL4, R_C, f"s{sT2}")
    VM.issue(tag, 16)
def xw(j, h):
    if h == 0: waits(vm=VM.need(("x", j)))
    a(f"ds_write_b128 v10, {vr(XR+8*j+4*h,4)}" + (" offset:1024" if h else ""))
    LG.issue(("xw", j))
def xr(j):
    a(f"ds_read_b128 {vr(XR+8*j,4)}, v11")
    a(f"ds_read_b128 {vr(XR+8*j+4,4)}, v12")
    LG.issue(("x", j), 2)
XPRE = int(OPT.get("xpre", 0))
for _ in range(2*XPRE): xb1()
for j in range(XPRE): xw(j, 0); xw(j, 1); xr(j)
waitc(vCNT, C_A3, 4, 30)
waitc(vCNT, C_A4, 4, 30, sleep=1)
dstamp("u", 7)
a("s_setprio 0")
cm("U = x B^T")
XA_, XL = int(OPT.get("xa", 4)), int(OPT.get("xl", 2))
while xq and xq[0][0] < XL: xb1()
rows_dma("B")
while xq and xq[0][0] < XA_: xb1()
for j in range(XPRE, XL): xw(j, 0); xw(j, 1); xr(j)
waits(vm=VM.need("B"))
a(f"s_add_u32 s{sSYNC}, s{sSYNC}, 4")
signal(vCNT, vONE, C_GH)
dstamp("u", 8)
a("s_setprio 2")
waitc(vCNT, C_GH, f"s{sSYNC}", 30)
LG.q = []
stamp(4)
UPRIO = int(OPT.get("uprio", 0)); YPRIO = int(OPT.get("yprio", 0))
a(f"s_setprio {UPRIO}")
AR, AI, BR = 32, 48, 64
def bread(k):
    s = BR + 8 * (k % 4)
    a(f"ds_read_b128 {vr(s,4)}, v{vRB} offset:{32*k}")
    a(f"ds_read_b128 {vr(s+4,4)}, v{vRB} offset:{32*k + 32*RSTR}")
    LG.issue(("b", k), 2)
PF = [(17, sPC), (18, P_WO)]
PFK = int(OPT.get("pfk", 19))
X2 = int(OPT.get("x2", 8))
CPOS = int(OPT.get("cpos", 0))
for k in range(3): bread(k)
for k in range(32):
    j = k // 2; jn = j + XL
    tr = XPRE <= jn < 16
    n1 = LG.need(("x", j)); n2 = LG.need(("b", k))
    waits(lg=n2 if n2 is not None else n1)
    s = BR + 8 * (k % 4)
    first = "0" if k == 0 else None
    mfma32(AR, XR + 4*k, s, first)
    if k + 3 < 32: bread(k + 3)
    if xq: xb1()
    if PF and k >= PFK and k % 2 == 1:
        v, p = PF.pop(0)
        a(f"global_load_dword v{136+len(PF)}, v{v}, s[{p}:{p+1}]"); VM.issue("pf")
    if k == 28:
        a(f"buffer_load_dwordx4 v[128:131], v29, {sr(R_A,4)}, s{sT4} offen")
        a(f"buffer_load_dwordx4 v[132:135], v29, {sr(R_A,4)}, s{sT4} offen offset:32")
        VM.issue("skip", 2)
    mfma32(AI, XR + 4*k, s + 4, first)
    if xq and k < X2: xb1()
    if tr:
        xw(jn, k % 2)
        if k % 2: xr(jn)
assert not PF
a("s_setprio 2")
srd(R_B, P_CRE, 512 * 1024)
srd(R_C, P_CIM, 512 * 1024)
srd(R_A, P_WO, 512 * 1024)
if CPOS:
    a(f"s_add_u32 s{sSYNC}, s{sSYNC}, 4")
    signal(vCNT, vONE, C_GH)
a(f"s_lshl_b32 s{sT3}, s{sG}, 16")
a(f"s_lshl_b32 s{sT1}, s{sWV}, 13")
a(f"s_add_u32 s{sT3}, s{sT3}, s{sT1}")
a(f"s_mul_i32 s{sT1}, s{sWV}, {8*RSTR}")
def row1(n, base, ore, oim):
    i, part = n // 2, n % 2
    a(f"s_add_u32 m0, s{sT1}, {L_R1 + RSTR*(32*part+i)}")
    a(f"s_add_u32 s{sT2}, s{base}, {1024*i + (oim if part else ore)}")
    dma(vL4, R_C if part else R_B, f"s{sT2}")
stamp(5)
cm("scale by coef into pair layout, local scan")
UP = 64
G0, G1, EA = 30, 140, 142
def sc1(r): a(f"v_pk_mul_f32 {vr(UP+2*r,2)}, {vr(vCO,2)}, {vr(AR+(r&~1),2)} op_sel:[0,{r&1}] op_sel_hi:[1,{r&1}]")
def sc2(r): a(f"v_pk_fma_f32 {vr(UP+2*r,2)}, {vr(vCO,2)}, {vr(AI+(r&~1),2)}, {vr(UP+2*r,2)} op_sel:[1,{r&1},0] op_sel_hi:[0,{r&1},1] neg_lo:[1,0,0]")
def c1(dst, L, g, u): a(f"v_pk_fma_f32 {vr(dst,2)}, {vr(L,2)}, {vr(g,2)}, {vr(u,2)} op_sel:[0,0,0] op_sel_hi:[0,1,1]")
def c2(dst, L, g): a(f"v_pk_fma_f32 {vr(dst,2)}, {vr(L,2)}, {vr(g,2)}, {vr(dst,2)} op_sel:[1,1,0] op_sel_hi:[1,0,1] neg_lo:[1,0,0]")
sc1(0); sc1(1); sc1(2); sc2(0); sc2(1); sc2(2)
src = UP
for r in range(1, 16):
    dst = EA if r == 7 else (G0 if r % 2 else G1)
    if r == 8 and CPOS: waitc(vCNT, C_GH, f"s{sSYNC}", 8)
    c1(dst, vL, src, UP + 2*r)
    if r < 14: sc1(r + 2)
    if r >= 8 and CPOS: row1(2*(r-8), sT3, 32768, 0)
    c2(dst, vL, src)
    if r < 14: sc2(r + 2)
    if r >= 8 and CPOS: row1(2*(r-8) + 1, sT3, 32768, 0)
    src = dst
a(f"ds_write_b64 v13, {vr(G0,2)}")
gsync(vCNT, vONE, 32, C_GH)
stamp(6)
ESR = 32
for s in range(8):
    a(f"ds_read_b64 {vr(ESR+2*s,2)}, v15 offset:{256*s}")
a(f"s_lshl_b32 s{sT6}, s{sPB}, 13")
a(f"s_add_u32 s{sT6}, s{sT6}, {WS_ST}")
a(f"s_lshl_b32 s{sT0}, s{sC}, 9")
a(f"s_add_u32 s{sT0}, s{sT0}, s{sT6}")
a(f"v_mov_b64 {vr(G0,2)}, 0")
a(f"s_mov_b32 s{sCNT}, {POLL_LIMIT}")
a("s_waitcnt lgkmcnt(0)")
a(f"v_mov_b64 {vr(G1,2)}, {vr(ESR,2)}")
for w in range(4):
    if w: cmul_add(G1, vL16_, G0, ESR + 4*w)
    if w < 3:
        a(f"s_cmp_eq_u32 s{sWV}, {w}")
        a("s_cbranch_scc1 L_h_segdone")
        cmul_add(G0, vL16_, G1, ESR + 4*w + 2)
cmul_add(48, vL16_, G1, ESR + 14)
a(f"v_mov_b32 v50, v49")
a(f"v_mov_b32 v49, s{sTAG}")
a(f"v_mov_b32 v51, s{sTAG}")
a("s_mov_b32 exec_hi, 0")
a(f"buffer_store_dwordx4 v[48:51], v14, {sr(R_WS,4)}, s{sT0} offen sc1")
a("s_mov_b64 exec, -1")
lab("L_h_segdone")
a(f"s_mov_b32 s{sM}, 0")
a(f"s_mov_b32 s{sM+1}, -1")
a(f"v_cndmask_b32 v{G0}, v{G0}, v{G1}, s[{sM}:{sM+1}]")
a(f"v_cndmask_b32 v{G0+1}, v{G0+1}, v{G1+1}, s[{sM}:{sM+1}]")
if not CPOS:
    for n in range(16): row1(n, sT3, 32768, 0)
stamp(7)
cm("chunk carry: each lane gathers two predecessors' end states")
a(f"v_mov_b64 {vr(G1,2)}, 0")
a(f"s_cmp_eq_u32 s{sC}, 0")
a("s_cbranch_scc1 L_h_stskip")
lab("L_h_stpoll")
a(f"buffer_load_dwordx4 v[52:55], v{vO0}, {sr(R_WS,4)}, s{sT6} offen sc1")
a(f"buffer_load_dwordx4 v[56:59], v{vO1}, {sr(R_WS,4)}, s{sT6} offen sc1")
a("s_waitcnt vmcnt(0)")
a(f"v_cmp_ne_u32 vcc, s{sTAG}, v53")
a(f"v_cmp_ne_u32 s[{sM}:{sM+1}], s{sTAG}, v55")
a(f"s_or_b64 s[{sM}:{sM+1}], s[{sM}:{sM+1}], vcc")
a(f"v_cmp_ne_u32 vcc, s{sTAG}, v57")
a(f"s_or_b64 s[{sM}:{sM+1}], s[{sM}:{sM+1}], vcc")
a(f"v_cmp_ne_u32 vcc, s{sTAG}, v59")
a(f"s_or_b64 s[{sM}:{sM+1}], s[{sM}:{sM+1}], vcc")
a("s_cbranch_scc0 L_h_stok")
a(f"s_sub_u32 s{sCNT}, s{sCNT}, 1")
a("s_cbranch_scc0 L_h_stpoll")
lab("L_h_stok")
a(f"v_pk_mul_f32 {vr(G1,2)}, {vr(vM0,2)}, v[52:53] op_sel:[0,0] op_sel_hi:[1,0]")
a(f"v_pk_mul_f32 v[60:61], {vr(vM1,2)}, v[56:57] op_sel:[0,0] op_sel_hi:[1,0]")
a(f"v_pk_fma_f32 {vr(G1,2)}, {vr(vM0,2)}, v[54:55], {vr(G1,2)} op_sel:[1,0,0] op_sel_hi:[0,0,1] neg_lo:[1,0,0]")
a(f"v_pk_fma_f32 v[60:61], {vr(vM1,2)}, v[58:59], v[60:61] op_sel:[1,0,0] op_sel_hi:[0,0,1] neg_lo:[1,0,0]")
a(f"v_pk_add_f32 {vr(G1,2)}, {vr(G1,2)}, v[60:61]")
lab("L_h_stskip")
a(f"ds_write_b64 v13, {vr(G1,2)} offset:{L_CS - L_ES}")
a("s_waitcnt vmcnt(0)")
mfma32(YACC, 128, 104, "0")
mfma32(YACC, 132, 108)
gsync(vCNT, vONE, 32, C_GH)
for s in range(8):
    a(f"ds_read_b64 {vr(32+2*s,2)}, v15 offset:{L_CS - L_ES + 256*s}")
a(f"s_lshl_b32 s{sT0}, s{sC}, 2")
a(f"s_add_u32 s{sT0}, s{sT0}, s{sWV}")
a(f"s_lshl_b32 s{sT4}, s{sT0}, 16")
a(f"s_add_u32 s{sT4}, s{sT4}, {WS_H}")
a(f"s_lshl_b32 s{sT1}, s{sPB}, 11")
a(f"s_add_u32 s{sT1}, s{sT1}, s{sT4}")
a(f"s_add_u32 s{sT2}, s{sT1}, 32768")
a(f"s_lshl_b32 s{sT0}, s{sT0}, 10")
a(f"s_add_u32 s{sT5}, s{sT0}, {WS_FH}")
a(f"s_lshl_b32 s{sT0}, s{sPB}, 6")
a(f"s_add_u32 s{sF1}, s{sT0}, s{sT5}")
a("s_waitcnt lgkmcnt(0)")
stamp(8)
for st in (8, 4, 2):
    for j in range(0, st, 2):
        a(f"v_pk_add_f32 {vr(32+j,2)}, {vr(32+j,2)}, {vr(32+j+st,2)}")
cmul_add(G0, vPS, 32, G0)
cmul_add(EA, vL8, G0, EA)
HB = 32
for r in range(8):
    sa = G0 if r == 0 else UP + 2*(r-1)
    sb = EA if r == 0 else UP + 2*(r+7)
    c1(UP + 2*r, vL, sa, UP + 2*r)
    c1(UP + 2*(r+8), vL, sb, UP + 2*(r+8))
    c2(UP + 2*r, vL, sa)
    c2(UP + 2*(r+8), vL, sb)
for part in range(2):
    ng = "-" if part else ""
    for j in range(8):
        a(f"v_cvt_pk_bf16_f32 v{HB+8*part+j}, {ng}v{UP+4*j+part}, {ng}v{UP+4*j+2+part}")
    a(f"ds_write_b128 v16, {vr(HB+8*part,4)}")
    a(f"ds_write_b128 v16, {vr(HB+4+8*part,4)} offset:16")
    for ks in range(2):
        d = 48 + 8*part + 4*ks
        a(f"ds_read_b64_tr_b16 {vr(d,2)}, v19 offset:{1024*ks}")
        a(f"ds_read_b64_tr_b16 {vr(d+2,2)}, v19 offset:{1024*ks+256}")
for part in range(2):
    a(f"s_waitcnt lgkmcnt({6 if part == 0 else 0})")
    for ks in range(2):
        a(f"buffer_store_dwordx4 {vr(48+8*part+4*ks,4)}, v{vL4}, {sr(R_WS,4)}, s{sT1 if part == 0 else sT2} offen offset:{1024*ks} sc1")
a("v_and_b32 v8, 15, v0")
a("v_lshlrev_b32 v12, 6, v8")
CF = 128
for k in range(32):
    a(f"ds_read_b128 {vr(CF+4*k,4)}, v28 offset:{32*k}")
a(f"s_add_u32 s{sSYNC}, s{sSYNC}, 4")
signal(vCNT, vONE, C_GH)
a("s_waitcnt vmcnt(0)")
setflag(8, 9, sF1)
stamp(9)
def reduce_inline(RB_, b1=None, bs=None):
    b1 = RB_ + 16 if b1 is None else b1
    bs = RB_ + 32 if bs is None else bs
    Ls, Le = uid("rs"), uid("re")
    a(f"s_mul_i32 s{sT2}, s{sSTEP}, {PSTRIDE}")
    a(f"v_add_u32 v10, s{sT2}, v{vL4}")
    a(f"s_add_u32 s{sT2}, s{sT2}, {L_PART + 8192}")
    o_offsets()
    waitc(11, 0, f"s{sT2}", 8)
    a(f"ds_read_b128 {vr(bs,4)}, v10 offset:8192")
    for w in range(4):
        d = (RB_ if w < 2 else b1) + 8*(w % 2)
        a(f"ds_read_b128 {vr(d,4)}, v10 offset:{2048*w}")
        a(f"ds_read_b128 {vr(d+4,4)}, v10 offset:{2048*w + 1024}")
    a("s_waitcnt lgkmcnt(8)")
    sum_check(bs)
    a("s_waitcnt lgkmcnt(0)")
    a(f"s_cbranch_scc1 {Ls}")
    reduce_math(RB_, vL4, flag=False, b1=b1, bs=bs)
    a(f"s_branch {Le}")
    lab(Ls)
    a(f"s_mov_b32 s{sT0}, {WS_DUMMY}")
    lab(Le)
waitc(vCNT, C_GH, f"s{sSYNC}", 8)
rows_dma("C", sT3, 0, 32768)
a("v_and_b32 v11, 3, v0")
a("v_lshlrev_b32 v11, 2, v11")
a(f"v_add_u32 v11, {L_PROG}, v11")
a(f"v_add_u32 v13, {(L_PART - L_R1) & 0xffffffff}, v{vWT}")
a(f"s_lshl_b32 s{sT5}, s{sYG}, 10")
a(f"s_add_u32 s{sT5}, s{sT5}, {WS_FH}")
a(f"s_lshl_b32 s{sT4}, s{sYG}, 16")
a(f"s_and_b32 s{sT1}, s{sWV}, 1")
a(f"s_lshl_b32 s{sT1}, s{sT1}, 15")
a(f"s_add_u32 s{sT4}, s{sT4}, s{sT1}")
a(f"s_add_u32 s{sT4}, s{sT4}, {WS_H}")
stamp(10)
poll(12, f"s{sT5}", 8)
stamp(11)
HR, CR, NH = 48, 96, 12
WF, OF = 48, 128
def hload(k):
    if k % 4 == 0 and k: a(f"s_add_u32 s{sT4}, s{sT4}, 4096")
    a(f"buffer_load_dwordx4 {vr(HR+4*(k%NH),4)}, v{vL4}, {sr(R_WS,4)}, s{sT4} offen offset:{1024*(k%4)} sc1")
def cread(k):
    a(f"ds_read_b128 {vr(CR+4*(k%4),4)}, v28 offset:{32*k}")
def oload(k):
    if k % 4 == 0 and k: a(f"s_add_u32 s{sT6}, s{sT6}, 4096")
    a(f"buffer_load_dwordx4 {vr(OF+4*k,4)}, v{vL4}, {sr(R_WS,4)}, s{sT6} offen offset:{1024*(k%4)} sc1")
def wo_setup():
    a(f"s_and_b32 s{sT0}, s{sWV}, 1")
    a(f"s_lshl_b32 s{sT0}, s{sT0}, 18")
    a(f"s_lshr_b32 s{sT1}, s{sWV}, 1")
    a(f"s_lshl_b32 s{sT1}, s{sT1}, 14")
    a(f"s_add_u32 s{sT0}, s{sT0}, s{sT1}")
    a(f"s_lshl_b32 s{sT1}, s{sG}, 7")
    a(f"s_add_u32 s{sT0}, s{sT0}, s{sT1}")
    a(f"s_mul_i32 s{sT1}, s{sWV}, {PSTRIDE}")
def wo_one(half, n):
    q, i = n // 2, n % 2
    a(f"s_add_u32 m0, s{sT1}, {(L_R1 if half else L_PART) + 2048*q + 1024*i}")
    a(f"s_add_u32 s{sT2}, s{sT0}, {32768*half + 65536*q + 8192*i}")
    dma(vWO, R_A, f"s{sT2}")
def wread(dst, k):
    o = PSTRIDE * ((k % 16) // 4) + 2048 * (k % 4)
    ad = 13 if k < 16 else vWT
    a(f"ds_read_b64_tr_b16 {vr(dst,2)}, v{ad} offset:{o}")
    a(f"ds_read_b64_tr_b16 {vr(dst+2,2)}, v{ad} offset:{o+1024}")
HD, CD = 11, 3
RK = int(OPT.get("rk", 25))
FK = 4
VM, LG = Cnt(), Cnt()
for k in range(HD): hload(k); VM.issue(("h", k))
a(f"s_lshl_b32 s{sT5}, s{sYG}, 11")
a(f"s_add_u32 s{sT5}, s{sT5}, {WS_FO}")
a(f"s_lshl_b32 s{sT6}, s{sYG}, 15")
a(f"s_add_u32 s{sT6}, s{sT6}, {WS_O}")
a(f"s_mov_b32 s{sSTEP}, s{sWV}")
reduce_inline(32, 96, 20)
a(f"s_mov_b32 s{sF1}, s{sT0}")
a(f"v_mov_b32 v24, 0")
a(f"v_mov_b32 v25, s{sTAG}")
gsync(vCNT, vONE, 8, C_GH)
a(f"s_setprio {YPRIO}")
def flag_novalu(soff):
    a("s_mov_b64 exec, 1")
    a(f"buffer_store_dword v25, v24, {sr(R_WS,4)}, s{soff} offen sc1")
    a("s_mov_b64 exec, -1")
for k in range(CD): cread(k); LG.issue(("c", k))
FLK = int(OPT.get("flk", 14))
oq = list(range(16))
for k in range(32):
    if k == FK:
        waits(vm=VM.need(("h", HD)))
        flag_novalu(sF1); VM.issue("f")
        wo_setup()
    if k == FLK:
        a(f"buffer_load_dword v9, v12, {sr(R_WS,4)}, s{sT5} offen sc1"); VM.issue("fl")
    if k == FLK + 5:
        waits(vm=VM.need("fl"))
        a("s_setprio 2")
        a(f"v_cmp_ne_u32 vcc, s{sTAG}, v9")
        a("s_cbranch_vccz L_y_ok")
        poll(12, f"s{sT5}", 8)
        lab("L_y_ok")
        a(f"s_setprio {YPRIO}")
    if k == RK:
        a(f"s_cmp_ge_u32 s{sWV}, 2")
        a("s_cbranch_scc1 L_h_nor2")
        a("s_setprio 2")
        a(f"s_add_u32 s{sSTEP}, s{sWV}, 4")
        reduce_inline(192)
        a(f"s_mov_b32 s{sF1}, s{sT0}")
        a(f"s_setprio {YPRIO}")
        lab("L_h_nor2")
    if k + HD < 32: hload(k + HD); VM.issue(("h", k + HD))
    if k + CD < 32: cread(k + CD); LG.issue(("c", k + CD))
    waits(vm=VM.need(("h", k)), lg=LG.need(("c", k)))
    mfma32(YACC, HR + 4*(k % NH), CR + 4*(k % 4))
    n = k - FK - 1
    if 0 <= n < 8: wo_one(0, n); VM.issue("wo")
    if k >= FLK + 5:
        for _ in range(2 if k + HD >= 32 else 1):
            if oq: oload(oq.pop(0)); VM.issue("o")
    mfma32(32, HR + 4*(k % NH), CF + 4*k, "0" if k == 0 else None)
assert RK >= 25 and not oq
wo_setup()
a("s_setprio 2")
a(f"s_lshl_b32 s{sT2}, s{sWV}, 12")
a(f"s_add_u32 s{sT2}, s{sT2}, {L_R1 + 40960}")
a(f"v_add_u32 v10, s{sT2}, v{vL4}")
a("v_xor_b32 v11, 4096, v10") if ((L_R1 + 40960) % 8192 == 0) else None
assert (L_R1 + 40960) % 8192 == 0
a("v_and_b32 v12, 7, v0")
a("v_lshlrev_b32 v12, 6, v12")
a("s_waitcnt vmcnt(0)")
flag_novalu(sF1)
gsync(vCNT, vONE, 8, C_GH)
stamp(12)
for i in range(4):
    a(f"ds_write_b128 v10, {vr(32+4*i,4)} offset:{1024*i}")
for i in range(8): wo_one(1, i)
for k in range(16): wread(WF + 4*k, k)
srd(R_B, P_OUT, 2048 * 4096)
a(f"s_lshl_b32 s{sT0}, s{sYG}, 17")
a(f"s_lshl_b32 s{sT1}, s{sCG}, 7")
a(f"s_add_u32 s{sT0}, s{sT0}, s{sT1}")
def store1(b, r, off=0):
    a(f"s_add_u32 s{sT1}, s{sT0}, {4096 * (8*(r//4) + r%4)}")
    a(f"buffer_store_dword v{b+r}, v1, {sr(R_B,4)}, s{sT1} offen" + (f" offset:{off}" if off else "") + OUTFL)
a(f"s_add_u32 s{sT5}, s{sT5}, {16*64}")
a("s_waitcnt lgkmcnt(0)")
a("s_setprio 0")
for k in range(16):
    mfma32(32, OF + 4*k, WF + 4*k, "0" if k == 0 else None)
    if k == 7:
        a("s_waitcnt vmcnt(0)")
        a(f"s_add_u32 s{sSYNC}, s{sSYNC}, 4")
        signal(vCNT, vONE, C_GH)
    if k == 12:
        a(f"buffer_load_dword v9, v12, {sr(R_WS,4)}, s{sT5} offen sc1")
a("s_setprio 2")
waitc(vCNT, C_GH, f"s{sSYNC}", 8)
for i in range(4):
    a(f"ds_read_b128 {vr(128+4*i,4)}, v11 offset:{1024*i}")
for k in range(16, 32): wread(WF + 4*(k-16), k)
a("s_waitcnt vmcnt(0)")
a(f"v_cmp_ne_u32 vcc, s{sTAG}, v9")
a("s_cbranch_vccz L_o2_ok")
poll(12, f"s{sT5}", 8)
lab("L_o2_ok")
for k in range(16, 24): oload(k)
a("s_waitcnt lgkmcnt(0)")
for j in range(8):
    a(f"v_pk_add_f32 {vr(YACC+2*j,2)}, {vr(YACC+2*j,2)}, {vr(128+2*j,2)}")
for r in range(16): store1(YACC, r, 2048)
a("s_setprio 0")
for k in range(16, 24):
    a(f"s_waitcnt vmcnt({16+23-k})")
    mfma32(32, OF + 4*k, WF + 4*(k-16))
a("s_setprio 2")
stamp(13)
cm("last heads: tagged fragments, fetched once this workgroup's own tiles are out")
TF = 128
a(f"s_lshl_b32 s{sT6}, s{sYG}, 14")
a(f"s_add_u32 s{sT6}, s{sT6}, {WS_O2}")
a(f"s_mov_b32 s{sCNT}, {POLL_LIMIT}")
a(f"s_add_u32 s{sT5}, s{sT5}, {8*64}")
a(f"s_mov_b32 s{sT4}, {POLL_LIMIT}")
waitc(vCNT, C_DONE, 2, 8, sleep=1)
if OPT.get("tail", "hint") == "try": a("s_branch L_t_fetch")
lab("L_t_poll")
poll(12, f"s{sT5}", 8)
lab("L_t_fetch")
for g in range(8):
    if g % 2 == 0: a(f"s_add_u32 s{sT2}, s{sT6}, {2048*g}")
    a(f"buffer_load_dwordx4 {vr(TF+8*g,4)}, v{vL4}, {sr(R_WS,4)}, s{sT2} offen offset:{2048*(g%2)} sc1")
    a(f"buffer_load_dwordx4 {vr(TF+8*g+4,4)}, v{vL4}, {sr(R_WS,4)}, s{sT2} offen offset:{2048*(g%2)+1024} sc1")
a(f"v_mov_b32 v8, s{sTAG}")
a(f"v_mov_b32 v9, s{sTAG}")
for g in range(8):
    r = TF + 8*g
    a(f"s_waitcnt vmcnt({14-2*g})")
    a(f"v_min3_u32 v8, v{r}, v{r+2}, v8")
    a(f"v_max3_u32 v9, v{r}, v{r+2}, v9")
    a(f"v_min3_u32 v8, v{r+5}, v{r+7}, v8")
    a(f"v_max3_u32 v9, v{r+5}, v{r+7}, v9")
    a(f"v_mov_b32 v{r+2}, v{r+1}")
    a(f"v_mov_b32 v{r+5}, v{r+6}")
a("v_cmp_ne_u32 vcc, v8, v9")
a("s_cbranch_vccz L_t_ok")
a(f"s_cmp_lt_i32 s{sCNT}, 0")
a("s_cbranch_scc1 L_t_ok")
a(f"s_sub_u32 s{sT4}, s{sT4}, 1")
a("s_cbranch_scc0 L_t_poll")
lab("L_t_ok")
stamp(14)
for g in range(8):
    mfma32(32, TF + 8*g + 2, WF + 32 + 4*g)
a("s_nop 10")
for r in range(16): store1(32, r)
a("s_branch L_end")

lab("L_slow")
a(f"s_lshl_b32 s{sT0}, s{sSTEP}, 10")
a(f"s_add_u32 s{sT0}, s{sT0}, {L_QF}")
a(f"v_add_u32 v{vAQ}, s{sT0}, v14")
a(f"ds_read_b128 {vr(vQ,4)}, v{vAQ}")
a(f"v_mov_b32 v{vAD}, 0xff800000")
a("s_waitcnt lgkmcnt(0)")
for t in range(16):
    qk(S0, t)
    a("s_nop 11")
    for i in range(8):
        a(f"v_max3_f32 v{vAD}, v{S0+2*i}, v{S0+2*i+1}, v{vAD}")
a(f"s_lshl_b32 s{sT0}, s{sWV}, 8")
a(f"s_add_u32 s{sT0}, s{sT0}, {L_MAX}")
a("v_lshlrev_b32 v16, 2, v0")
a(f"v_add_u32 v16, s{sT0}, v16")
a(f"ds_write_b32 v16, v{vAD}")
gsync(vCA, vONEA, 16, C_GA)
a("v_and_b32 v16, 31, v0")
a("v_lshlrev_b32 v16, 2, v16")
a(f"v_add_u32 v16, {L_MAX}, v16")
for i in range(8):
    a(f"ds_read_b32 v{20+i}, v16 offset:{128*i}")
a("s_waitcnt lgkmcnt(0)")
for i in range(4):
    a(f"v_max3_f32 v{vAD}, v{20+2*i}, v{21+2*i}, v{vAD}")
for i in range(16):
    a(f"v_sub_f32 v{S1+i}, 0, v{vAD}")
zeroO()
for t in range(16):
    mfma32(S0, K_(t), vQ, vr(S1, 16))
    a("s_nop 11")
    exs(S0, 0, 16)
    a("s_nop 1")
    smf(V1(t), S0)
    smf(V2(t), S0 + 8)
a(f"s_lshl_b32 s{sT2}, s2, 14")
a(f"s_add_u32 s{sT2}, s{sT2}, {WS_SLOW}")
a(f"s_lshl_b32 s{sT3}, s{sWV}, 12")
a(f"s_add_u32 s{sT3}, s{sT3}, s{sT2}")
a("s_nop 11")
a(f"buffer_store_dwordx4 {vr(vO,4)}, v14, {sr(R_WS,4)}, s{sT3} offen sc1")
a(f"buffer_store_dwordx4 {vr(vO+4,4)}, v14, {sr(R_WS,4)}, s{sT3} offen offset:1024 sc1")
a(f"buffer_store_dword v{vO+8}, v14, {sr(R_WS,4)}, s{sT3} offen offset:2048 sc1")
a("s_waitcnt vmcnt(0)")
gsync(vCA, vONEA, 16, C_GA)
a(f"s_cmp_eq_u32 s{sWV}, 0")
a("s_cbranch_scc0 L_slow_e")
for w in range(4):
    a(f"buffer_load_dwordx4 {vr(16+8*w,4)}, v14, {sr(R_WS,4)}, s{sT2} offen sc1")
    a(f"buffer_load_dwordx4 {vr(20+8*w,4)}, v14, {sr(R_WS,4)}, s{sT2} offen offset:1024 sc1")
    a(f"buffer_load_dword v{48+w}, v14, {sr(R_WS,4)}, s{sT2} offen offset:2048 sc1")
    a(f"s_add_u32 s{sT2}, s{sT2}, 4096")
o_offsets()
a("s_waitcnt vmcnt(0)")
sum_check(48)
reduce_math(16, 14, tagged="dyn")
lab("L_slow_e")
gsync(vCA, vONEA, 16, C_GA)
a("s_branch L_a_next")

lab("L_end")
ROLE[0] = "E"
if PROBE:
    a("s_waitcnt vmcnt(0)")
    stamp(15)
    a(f"s_cmp_ge_u32 s{sW}, 4")
    a(f"s_cbranch_scc{0 if PROBE[0] == 'A' else 1} L_exit")
    a(f"s_cmp_eq_u32 s{80+int(PROBE[1])}, 0")
    a("s_cbranch_scc1 L_exit")
    a(f"s_sub_u32 s{sT0}, s{80+int(PROBE[1])}, s{80+int(PROBE[2])}")
    a(f"s_min_u32 s{sT0}, s{sT0}, 10000")
    a(f"s_lshl_b32 s{sT0}, s{sT0}, 1")
    a(f"s_memrealtime s[{sST}:{sST+1}]")
    a("s_waitcnt lgkmcnt(0)")
    a(f"s_mov_b32 s{sT1}, s{sST}")
    lab("L_probe")
    a(f"s_memrealtime s[{sST}:{sST+1}]")
    a("s_waitcnt lgkmcnt(0)")
    a(f"s_sub_u32 s{sT2}, s{sST}, s{sT1}")
    a(f"s_cmp_lt_u32 s{sT2}, s{sT0}")
    a("s_cbranch_scc1 L_probe")
elif STAMPS:
    a("s_waitcnt vmcnt(0)")
    stamp(15)
    a(f"s_lshl_b32 s{sT0}, s2, 3")
    a(f"s_xor_b32 s{sT1}, s{sW}, 4")
    a(f"s_add_u32 s{sT0}, s{sT0}, s{sT1}")
    a(f"s_lshl_b32 s{sT0}, s{sT0}, 6")
    a(f"s_add_u32 s{sT0}, s{sT0}, {WS_STAMP}")
    for i in range(16): a(f"v_mov_b32 v{16+i}, s{80+i}")
    a("v_mov_b32 v0, 0")
    a("s_mov_b64 exec, 1")
    for i in range(4):
        a(f"buffer_store_dwordx4 {vr(16+4*i,4)}, v0, {sr(R_WS,4)}, s{sT0} offen offset:{16*i}")
lab("L_exit")
a("s_endpgm")

hdr = open("cdna_kernels/" + NAME + ".s.ref").read().split("; Override launch")[0]
src = hdr + f"; @launch grid=(256,1,1) block=(512,1,1) lds={LDS_BYTES}\n" + f""".amdgcn_target "amdgcn-amd-amdhsa--gfx950"
.text
.globl {NAME}_kernel
.p2align 8
.type {NAME}_kernel,@function
{NAME}_kernel:
""" + "\n".join(x for n in ("P", "AL", "HQ", "Z", "A", "H") for x in SECS[n]) + f"""
.section .rodata,"a"
.p2align 6
.amdhsa_kernel {NAME}_kernel
  .amdhsa_next_free_vgpr 256
  .amdhsa_next_free_sgpr 102
  .amdhsa_accum_offset 256
  .amdhsa_group_segment_fixed_size 0
  .amdhsa_kernarg_size 136
  .amdhsa_user_sgpr_count 2
  .amdhsa_user_sgpr_kernarg_segment_ptr 1
  .amdhsa_system_sgpr_workgroup_id_x 1
.end_amdhsa_kernel
"""
open(OUT, "w").write(src)
```

```python
import sys, math, struct
NAME = "concat_heads__grouped_kv_mqa__ssm_conv_s5__prompt"
STAMPS = "--stamps" in sys.argv
OPT = dict(a.lstrip("-").split("=") for a in sys.argv[1:] if a.startswith("--") and "=" in a)
OUT = [a for a in sys.argv[1:] if not a.startswith("--")][0]
OUTFL = OPT.get("outfl", "nt").replace(",", " ")
if OUTFL: OUTFL = " " + OUTFL
YFL = OPT.get("yfl", "nt").replace(",", " ")
if YFL: YFL = " " + YFL

def f32(x): return "0x%08x" % struct.unpack("<I", struct.pack("<f", x))[0]

FSH = int(OPT.get('fsh', 6))
WS_O2 = 0x300000
C_HA = 48
WS_DUMMY = 0x800
WS_FKV = 0x1000
WS_FH  = 0x20000
WS_FO  = 0x80000
WS_KV  = 0x40000
WS_ST  = 0x60000
WS_O   = 0x100000
WS_H   = 0x400000
WS_SLOW = 0x800000
WS_STAMP = 15 << 20
WS_SIZE = 16 << 20
L_XA, L_WQ, L_KVP, L_WKV = 0, 65536, 131072, 140288
L_PART, L_R1, L_SCR, L_ES, L_QF, L_PROG, L_CNT = 0, 73728, 140288, 148480, 150528, 158720, 159744
L_MAX = 159808
L_CS = 160832

LDS_BYTES = 163840
PSTRIDE = 9216
RSTR = 1040
POLL_LIMIT = 400000
C_A1, C_H1, C_H2, C_A3, C_A4, C_GA, C_GH, C_TAG, C_H3, C_S, C_H0, C_DONE = 0, 4, 8, 12, 16, 20, 24, 28, 32, 36, 40, 44

SECS = {}
class _L:
    cur = None
    def append(self, x): SECS[_L.cur].append(x)
lines = _L()
def sec(n):
    SECS.setdefault(n, []); _L.cur = n
sec("P")
def a(s): lines.append("    " + s)
def lab(s): lines.append(s + ":")
def cm(s): lines.append("    ; " + s)
_uid = [0]
def uid(p):
    _uid[0] += 1
    return f"L_{p}{_uid[0]}"
def vr(b, n): return f"v[{b}:{b+n-1}]"
def sr(b, n): return f"s[{b}:{b+n-1}]"

sW, sTAG, sRB, sG, sC, sPB = 3, 4, 5, 6, 7, 8
sT0, sT1, sT2, sT3, sT4, sCNT = 9, 10, 11, 12, 13, 14
sWV = 15
P_AX, P_WQ, P_WK, P_WV, P_WO, P_BX, P_LRE, P_LIM = 16, 18, 20, 22, 24, 26, 28, 30
P_BRE, P_BIM, P_CRE, P_CIM, P_LDT, P_DSK, P_OUT, P_DBG = 32, 34, 36, 38, 40, 42, 44, 46
P_WS = 48
sT5, sT6 = 50, 51
R_WS, R_A, R_B, R_C = 52, 56, 60, 64
sM = 68
sGRP, sKIND, sSTEP, sSYNC = 70, 71, 72, 73
sRET = 74
sST = 76
sLO, sHI = 78, 79
sROT = sSTEP
sF1, sF2 = 0, 1
sYG, sCG, sPC = 96, 97, 98
sMODE = sGRP
C_MODE = C_DONE
LFL = OPT.get('lfl', '').replace(',', ' ')
if LFL: LFL = ' ' + LFL

def srd(dst, ptr, nbytes):
    a(f"s_mov_b32 s{dst}, s{ptr}")
    a(f"s_and_b32 s{dst+1}, s{ptr+1}, 0xffff")
    a(f"s_mov_b32 s{dst+2}, {nbytes}")
    a(f"s_mov_b32 s{dst+3}, 0x20000")

PROBE = OPT.get("probe")
ROLE = ["?"]
if PROBE:
    PROBE = PROBE.split(","); STAMPS = True
def stamp(i, ins="s_memrealtime"):
    if PROBE and not (ins == "s_memrealtime" and (ROLE[0] in (PROBE[0], "E")) and str(i) in PROBE[1:]): return
    if OPT.get("dbg") == "steps" and ROLE[0] == "A" and i < 10: return
    if OPT.get("sel") and ROLE[0] != "E" and f"{ROLE[0]}{i}" not in OPT["sel"].split(","): return
    if STAMPS:
        a(f"{ins} s[{sST}:{sST+1}]")
        a("s_waitcnt lgkmcnt(0)")
        a(f"s_mov_b32 s{80+i}, s{sST}")
def cstamp(i): stamp(i, "s_memtime")
DBG = OPT.get("dbg", "")
def dstamp(name, i):
    if DBG == name: stamp(i)
_stamp0 = stamp


def dma(voff, srdr, soff, imm=0):
    o = f" offset:{imm}" if imm else ""
    a(f"buffer_load_dwordx4 v{voff}, {sr(srdr,4)}, {soff} offen{o} lds")

PACE = int(OPT.get("pace", 24))
def pace():
    n = PACE
    while n > 0:
        a(f"s_nop {min(n, 16) - 1}"); n -= 16

def poll(voff, soff, vt, sleep=0, fl=" sc1"):
    L, D = uid("poll"), uid("pdone")
    a(f"s_mov_b32 s{sCNT}, {POLL_LIMIT}")
    lab(L)
    a(f"buffer_load_dword v{vt}, v{voff}, {sr(R_WS,4)}, {soff} offen{fl}")
    a("s_waitcnt vmcnt(0)")
    a(f"v_cmp_ne_u32 vcc, s{sTAG}, v{vt}")
    a(f"s_cbranch_vccz {D}")
    if sleep: a(f"s_sleep {sleep}")
    a(f"s_sub_u32 s{sCNT}, s{sCNT}, 1")
    a(f"s_cbranch_scc0 {L}")
    lab(D)

def setflag(vt0, vt1, soff):
    a(f"v_mov_b32 v{vt0}, 0")
    a(f"v_mov_b32 v{vt1}, s{sTAG}")
    a("s_mov_b64 exec, 1")
    a(f"buffer_store_dword v{vt1}, v{vt0}, {sr(R_WS,4)}, s{soff} offen sc1")
    a("s_mov_b64 exec, -1")

LOC = OPT.get("loc", "t")
KIND = ["t"]
def st2(instrs):
    if KIND[0] not in LOC:
        for x in instrs: a(x.replace("@", " sc1"))
        return
    L, E = uid("sl"), uid("se")
    a(f"s_cmp_eq_u32 s{sMODE}, 1")
    a(f"s_cbranch_scc1 {L}")
    for x in instrs: a(x.replace("@", " sc1"))
    a(f"s_branch {E}")
    lab(L)
    for x in instrs: a(x.replace("@", LFL))
    lab(E)

def signal(vcnt, vone, off):
    a("s_mov_b64 exec, 1")
    a(f"ds_add_u32 v{vcnt}, v{vone} offset:{off}")
    a("s_mov_b64 exec, -1")

HSL = int(OPT.get("hsl", 0))
def waitc(vcnt, off, target, vt, sleep=0):
    L = uid("wc")
    if ROLE[0] == "H" and _L.cur == "H": sleep = max(sleep, HSL)
    if sleep:
        L2 = uid("wd")
        a(f"s_branch {L2}")
    lab(L)
    if sleep:
        a(f"s_sleep {sleep}")
        lab(L2)
    a(f"ds_read_b32 v{vt}, v{vcnt} offset:{off}")
    a("s_waitcnt lgkmcnt(0)")
    a(f"v_cmp_gt_u32 vcc, {target}, v{vt}")
    a(f"s_cbranch_vccnz {L}")

def gsync(vcnt, vone, vt, off):
    a("s_waitcnt lgkmcnt(0)")
    a(f"s_add_u32 s{sSYNC}, s{sSYNC}, 4")
    signal(vcnt, vone, off)
    waitc(vcnt, off, f"s{sSYNC}", vt)

def mfma32(d, x, y, c=None):
    c = vr(d, 16) if c is None else c
    a(f"v_mfma_f32_32x32x16_bf16 {vr(d,16)}, {vr(x,4)}, {vr(y,4)}, {c}")

def cmul_add(dst, L, g, u):
    a(f"v_pk_fma_f32 {vr(dst,2)}, {vr(L,2)}, {vr(g,2)}, {vr(u,2)} op_sel:[0,0,0] op_sel_hi:[0,1,1]")
    a(f"v_pk_fma_f32 {vr(dst,2)}, {vr(L,2)}, {vr(g,2)}, {vr(dst,2)} op_sel:[1,1,0] op_sel_hi:[1,0,1] neg_lo:[1,0,0]")

def cmul(dst, x, y):
    a(f"v_pk_mul_f32 {vr(dst,2)}, {vr(x,2)}, {vr(y,2)} op_sel:[0,0] op_sel_hi:[0,1]")
    a(f"v_pk_fma_f32 {vr(dst,2)}, {vr(x,2)}, {vr(y,2)}, {vr(dst,2)} op_sel:[1,1,0] op_sel_hi:[1,0,1] neg_lo:[1,0,0]")

def csq(dst, src, t):
    a(f"v_mul_f32 v{t}, v{src+1}, v{src+1}")
    a(f"v_add_f32 v{t+1}, v{src}, v{src}")
    a(f"v_fma_f32 v{dst}, v{src}, v{src}, -v{t}")
    a(f"v_mul_f32 v{dst+1}, v{t+1}, v{src+1}")

def xvoffsets(XO, t0):
    a(f"v_lshrrev_b32 v{t0}, 4, v0")
    a(f"v_and_b32 v{t0+1}, 15, v0")
    for i in range(4):
        a(f"v_add_u32 v{t0+2}, {4*i}, v{t0}")
        a(f"v_xor_b32 v{t0+3}, v{t0+1}, v{t0+2}")
        a(f"v_lshlrev_b32 v{t0+3}, 4, v{t0+3}")
        a(f"v_lshl_add_u32 v{XO+i}, v{t0+2}, 10, v{t0+3}")

def wtr_addr(dst, hhshift, base, t):
    a(f"v_bfe_u32 v{t}, v0, 2, 2")
    a(f"v_bfe_u32 v{t+1}, v0, 4, 1")
    a(f"v_bfe_u32 v{t+2}, v0, 1, 1")
    a(f"v_lshl_add_u32 v{t+1}, v{t+1}, 1, v{t+2}")
    a(f"s_and_b32 s{sT0}, s{sWV}, 1")
    a(f"s_lshl_b32 s{sT0}, s{sT0}, 2")
    a(f"v_add_u32 v{t+1}, s{sT0}, v{t+1}")
    a(f"v_bfe_u32 v{t+2}, v0, 3, 1")
    a(f"v_lshlrev_b32 v{t+2}, 2, v{t+2}")
    a(f"v_xor_b32 v{t+1}, v{t+1}, v{t+2}")
    a(f"v_lshlrev_b32 v{t+1}, 4, v{t+1}")
    a(f"v_lshl_add_u32 v{t+1}, v{t}, 7, v{t+1}")
    a(f"v_and_b32 v{t+2}, 1, v0")
    a(f"v_lshl_add_u32 v{t+1}, v{t+2}, 3, v{t+1}")
    a(f"v_lshrrev_b32 v{t+2}, 5, v0")
    a(f"v_lshl_add_u32 v{t+1}, v{t+2}, {hhshift}, v{t+1}")
    a(f"v_add_u32 v{dst}, {base}, v{t+1}")

def o_offsets():
    a(f"s_and_b32 s{sT0}, s{sSTEP}, 1")
    a(f"s_lshl_b32 s{sT1}, s{sRB}, 1")
    a(f"s_add_u32 s{sT0}, s{sT0}, s{sT1}")
    a(f"s_lshl_b32 s{sT0}, s{sT0}, 2")
    a(f"s_lshr_b32 s{sT1}, s{sSTEP}, 1")
    a(f"s_add_u32 s{sT0}, s{sT0}, s{sT1}")
    a(f"s_lshl_b32 s{sT0}, s{sT0}, 3")
    a(f"s_add_u32 s{sT0}, s{sT0}, s{sG}")
    a(f"s_lshl_b32 s{sT1}, s{sT0}, 10")
    a(f"s_add_u32 s{sT1}, s{sT1}, {WS_O}")
    a(f"s_lshl_b32 s{sT0}, s{sT0}, 7")
    a(f"s_add_u32 s{sT0}, s{sT0}, {WS_FO}")

def sum_check(b):
    a(f"v_pk_add_f32 {vr(b,2)}, {vr(b,2)}, {vr(b+2,2)}")
    a(f"v_add_f32 v{b}, v{b}, v{b+1}")
    a(f"v_cmp_nle_f32 vcc, s{sLO}, v{b}")
    a(f"v_cmp_nge_f32 s[{sM}:{sM+1}], s{sHI}, v{b}")
    a(f"s_or_b64 vcc, vcc, s[{sM}:{sM+1}]")

def reduce_math(b, vl16, flag=True, tagged=False, b1=None, bs=None):
    b1 = b + 16 if b1 is None else b1
    bs = b + 32 if bs is None else bs
    a(f"v_rcp_f32 v{bs+2}, v{bs}")
    for j in range(4):
        a(f"v_pk_add_f32 {vr(b+2*j,2)}, {vr(b+2*j,2)}, {vr(b+8+2*j,2)}")
    for j in range(4):
        a(f"v_pk_add_f32 {vr(b1+2*j,2)}, {vr(b1+2*j,2)}, {vr(b1+8+2*j,2)}")
    for j in range(4):
        a(f"v_pk_add_f32 {vr(b+2*j,2)}, {vr(b+2*j,2)}, {vr(b1+2*j,2)}")
    for j in range(4):
        a(f"v_pk_mul_f32 {vr(b+2*j,2)}, {vr(b+2*j,2)}, {vr(bs+2,2)} op_sel_hi:[1,0]")
    for j in range(4):
        a(f"v_cvt_pk_bf16_f32 v{b+8+j}, v{b+2*j}, v{b+2*j+1}")
    if not flag:
        st2([f"buffer_store_dwordx4 {vr(b+8,4)}, v{vl16}, {sr(R_WS,4)}, s{sT1} offen@"])
        return
    a(f"buffer_store_dwordx4 {vr(b+8,4)}, v{vl16}, {sr(R_WS,4)}, s{sT1} offen sc1")
    a("s_waitcnt vmcnt(0)")
    setflag(b, b + 1, sT0)

STG3 = 1
LOG2E = 1.4426950408889634
L_LO, L_HI = 2.0 ** -60, 2.0 ** 60


class Cnt:
    def __init__(s): s.q = []
    def issue(s, tag, n=1): s.q += [tag] * n
    def need(s, tag):
        if tag not in s.q: return None
        i = len(s.q) - 1 - s.q[::-1].index(tag)
        n = len(s.q) - 1 - i
        s.q = s.q[i + 1:]
        return n
def waits(vm=None, lg=None):
    p = []
    if vm is not None: p.append(f"vmcnt({min(vm,63)})")
    if lg is not None: p.append(f"lgkmcnt({min(lg,15)})")
    if p: a("s_waitcnt " + " ".join(p))

a("s_cmp_ge_u32 s2, 256")
a("s_cbranch_scc1 L_exit")
a(f"s_load_dwordx16 s[16:31], s[0:1], 0")
a(f"s_load_dwordx16 s[32:47], s[0:1], 64")
a(f"s_load_dwordx2 s[48:49], s[0:1], 128")
if STAMPS:
    for i in range(16): a(f"s_mov_b32 s{80+i}, 0")
    a("s_memrealtime s[80:81]")
    a("s_memtime s[92:93]")
a("v_lshrrev_b32 v1, 6, v0")
a("v_and_b32 v0, 63, v0")
a(f"v_readfirstlane_b32 s{sW}, v1")
a("v_lshlrev_b32 v6, 4, v0")
a("v_lshrrev_b32 v12, 4, v0")
a("v_and_b32 v13, 15, v0")
a(f"s_and_b32 s{sT0}, s2, 7")
a(f"s_lshr_b32 s{sT1}, s2, 3")
a(f"s_and_b32 s{sT2}, s{sT1}, 3")
a(f"s_lshl_b32 s{sRB}, s{sT0}, 2")
a(f"s_add_u32 s{sRB}, s{sRB}, s{sT2}")
a(f"s_lshr_b32 s{sG}, s{sT1}, 2")
a(f"s_and_b32 s{sGRP}, s{sG}, 3")
a(f"s_and_b32 s{sWV}, s{sW}, 3")
a(f"s_add_u32 s{sROT}, s{sG}, s{sRB}" if OPT.get("rot", "0") == "1" else f"s_mov_b32 s{sROT}, 0")
a(f"s_mov_b32 s{R_A+2}, {2048*1024}")
a(f"s_mov_b32 s{R_A+3}, 0x20000")
a(f"s_mov_b32 s{R_B+3}, 0x20000")
a(f"s_cmp_ge_u32 s{sW}, 4")
a("s_cbranch_scc1 L_attn")

vL, vL16_, vL8, vCO = 20, 22, 24, 26
vCNT, vONE, vWT, vRB, vL4, vWO = 2, 3, 4, 5, 6, 7
a("s_setprio 3")
for i in range(4):
    a(f"v_add_u32 v14, {4*i}, v12")
    a(f"v_xor_b32 v15, v13, v14")
    a(f"v_lshlrev_b32 v15, 4, v15")
    a(f"v_lshl_add_u32 v{16+i}, v14, 10, v15")
if OPT.get("map", "0" if "h" in LOC else "1") == "0":
    a(f"s_and_b32 s{sT2}, s{sT1}, 1")
    a(f"s_lshl_b32 s{sC}, s{sT0}, 1")
    a(f"s_add_u32 s{sC}, s{sC}, s{sT2}")
    a(f"s_lshr_b32 s{sPB}, s{sT1}, 1")
else:
    a(f"s_and_b32 s{sC}, s{sT0}, 6")
    a(f"s_lshl_b32 s{sC}, s{sC}, 1")
    a(f"s_add_u32 s{sC}, s{sC}, s{sT2}")
    a(f"s_and_b32 s{sPB}, s{sT0}, 1")
    a(f"s_lshl_b32 s{sPB}, s{sPB}, 3")
    a(f"s_add_u32 s{sPB}, s{sPB}, s{sG}")
a(f"s_lshr_b32 s{sKIND}, s{sG}, 2")
a(f"s_lshl_b32 s{sT3}, s{sPB}, 5")
a("v_and_b32 v38, 31, v0")
a(f"v_add_lshl_u32 v37, v38, s{sT3}, 1")
a(f"s_and_b32 s{sT3}, s{sWV}, 1")
a(f"s_lshl1_add_u32 s{sT3}, s{sG}, s{sT3}")
a(f"s_lshl_b32 s{sT3}, s{sT3}, 5")
a(f"v_add_lshl_u32 v38, v38, s{sT3}, 1")
a(f"s_add_u32 s{sT3}, s{sROT}, s{sWV}")
a(f"s_and_b32 s{sT3}, s{sT3}, 3")
a(f"s_lshl_b32 s{sT0}, s{sRB}, 16")
a(f"s_lshl_b32 s{sT1}, s{sGRP}, 14")
a(f"s_add_u32 s{sT0}, s{sT0}, s{sT1}")
a(f"s_lshl_b32 s{sT1}, s{sT3}, 8")
a(f"s_add_u32 s{sT0}, s{sT0}, s{sT1}")
a(f"s_lshl_b32 s{sT2}, s{sGRP}, 12")
a(f"s_lshl_b32 s{sT1}, s{sWV}, 14")
a(f"s_add_u32 s{sT2}, s{sT2}, s{sT1}")
a(f"s_lshl_b32 s{sT3}, s{sT3}, 12")
a(f"s_lshl_b32 s{sT4}, s{sWV}, 12")
a(f"s_add_u32 s{sT4}, s{sT4}, {L_WKV}")
a(f"s_mov_b32 s{R_B+2}, 16384")
a(f"s_mov_b32 m0, s{sT2}")
a(f"s_cmp_eq_u32 s{sKIND}, 0")
a("s_waitcnt lgkmcnt(0)")
a(f"s_cselect_b32 s{R_B}, s{P_WK}, s{P_WV}")
a(f"s_cselect_b32 s{R_B+1}, s{P_WK+1}, s{P_WV+1}")
a(f"s_mov_b32 s{R_A}, s{P_AX}")
a(f"s_and_b32 s{R_A+1}, s{P_AX+1}, 0xffff")
a(f"s_and_b32 s{R_B+1}, s{R_B+1}, 0xffff")
for i in range(4):
    dma(16 + i, R_A, f"s{sT0}")
    a(f"s_add_u32 m0, s{sT2}, {1024*(i+1)}" if i < 3 else f"s_mov_b32 m0, s{sT4}")
    a("s_nop 0")
for i in range(4):
    dma(6, R_B, f"s{sT3}", imm=1024 * i)
p0, p1, p2, vDSK = 60, 61, 62, 63
a(f"global_load_ushort v{p0}, v37, s[{P_LRE}:{P_LRE+1}]")
a(f"global_load_ushort v{p1}, v37, s[{P_LIM}:{P_LIM+1}]")
a(f"global_load_ushort v{p2}, v37, s[{P_LDT}:{P_LDT+1}]")
a(f"global_load_ushort v{vDSK}, v38, s[{P_DSK}:{P_DSK+1}]")
a(f"s_load_dword s{sTAG}, s[{P_WS}:{P_WS+1}], 0")
a("s_barrier")

sec("AL")
lab("L_attn"); ROLE[0] = "A"
cm("pull the kernel's code towards this XCD's L2")
a(f"s_getpc_b64 s[{sM}:{sM+1}]")
lab("L_pc")
a(f"s_sub_u32 s{sM}, s{sM}, L_pc - {NAME}_kernel")
a(f"s_subb_u32 s{sM+1}, s{sM+1}, 0")
a(f"s_lshl_b32 s{sT2}, s{sT2}, 2")
a(f"s_add_u32 s{sT2}, s{sT2}, s{sWV}")
a(f"s_mul_i32 s{sT2}, s{sT2}, 1408")
a("v_lshlrev_b32 v32, 7, v0")
a("v_min_u32 v32, 1280, v32")
a(f"v_add_u32 v32, s{sT2}, v32")
a(f"v_min_u32 v32, L_slow - {NAME}_kernel, v32")
CPF = int(OPT.get("cpf", 1))
if CPF == 0: a(f"global_load_dword v33, v32, s[{sM}:{sM+1}]")
vIDX, vZ, vAD, vAS, vAQ, vPG, vQ = 1, 2, 4, 5, 6, 7, 8
vCA, vONEA = 12, 13
S0, S1, vO, KV = 16, 32, 48, 64
cm("zero sync counters + progress words")
a("v_mov_b32 v2, 0")
a("v_mov_b32 v3, 0")
a("v_mov_b32 v4, 0")
a("v_mov_b32 v5, 0")
a(f"v_add_u32 v7, {L_PROG}, v6")
a("ds_write_b128 v7, v[2:5]")
a("ds_write_b128 v7, v[2:5] offset:1024")
a(f"v_lshl_add_u32 v14, s{sWV}, 2, v12")
a("v_xor_b32 v15, v13, v14")
a("v_lshlrev_b32 v15, 4, v15")
a("v_lshl_add_u32 v16, v14, 10, v15")
def wo_voff(dst, t):
    a(f"v_lshrrev_b32 v{t}, 3, v0")
    a(f"v_and_b32 v{t+1}, 7, v0")
    a(f"v_lshrrev_b32 v{t+2}, 2, v0")
    a(f"v_and_b32 v{t+2}, 4, v{t+2}")
    a(f"v_xor_b32 v{t+1}, v{t+1}, v{t+2}")
    a(f"v_lshlrev_b32 v{t+1}, 4, v{t+1}")
    a(f"v_lshl_add_u32 v{dst}, v{t}, 10, v{t+1}")
wo_voff(17, 20)
def wslice_setup():
    a(f"s_lshl_b32 s{sT0}, s{sG}, 7")
    a(f"s_lshl_b32 s{sT1}, s{sWV}, 15")
    a(f"s_add_u32 s{sT0}, s{sT0}, s{sT1}")
    a(f"s_lshl_b32 s{sT1}, s{sWV}, 12")
wslice_setup()
a(f"s_lshl_b32 s{sT4}, s{sRB}, 16")
a(f"s_lshl_b32 s{sT5}, s{sWV}, 10")
for m in range(1, 4):
    a(f"s_add_u32 s{sT2}, s{sGRP}, {m}")
    a(f"s_and_b32 s{sT2}, s{sT2}, 3")
    a(f"s_lshl_b32 s{sT3}, s{sT2}, 14")
    a(f"s_add_u32 s{95+m}, s{sT3}, s{sT4}")
    a(f"s_lshl_b32 s{sT3}, s{sT2}, 12")
    a(f"s_add_u32 s{98+m}, s{sT3}, s{sT5}")
a(f"s_mov_b32 s{R_B+2}, {512*1024}")
a(f"v_mov_b32 v{vCA}, {L_CNT}")
a(f"v_mov_b32 v{vONEA}, 1")
a("s_waitcnt lgkmcnt(0)")
a(f"s_mov_b32 s{R_A}, s{P_AX}")
a(f"s_and_b32 s{R_A+1}, s{P_AX+1}, 0xffff")
a(f"s_mov_b32 s{R_B}, s{P_WQ}")
a(f"s_and_b32 s{R_B+1}, s{P_WQ+1}, 0xffff")
if STAMPS:
    a("s_mov_b32 s81, 0")
    a("s_mov_b32 s93, 0")
a("s_barrier")
def qops(sl):
    a(f"s_add_u32 s{sT3}, s{sROT}, {sl}")
    a(f"s_and_b32 s{sT3}, s{sT3}, 3")
    a(f"s_lshl_b32 s{sT4}, s{sT3}, 8")
    a(f"s_lshl_b32 s{sT3}, s{sT3}, 17")
    a(f"s_add_u32 s{sT3}, s{sT3}, s{sT0}")
    for m in range(1, 4):
        a(f"s_add_u32 m0, s{98+m}, {L_XA + 16384*sl}")
        a(f"s_add_u32 s{sT2}, s{95+m}, s{sT4}")
        dma(16, R_A, f"s{sT2}")
    for i in range(4):
        a(f"s_add_u32 m0, s{sT1}, {L_WQ + 16384*sl + 1024*i}")
        a(f"s_add_u32 s{sT2}, s{sT3}, {8192*i}")
        dma(17, R_B, f"s{sT2}")
if CPF == 1: a(f"global_load_dword v33, v32, s[{sM}:{sM+1}]")
QW = int(OPT.get("qw", 1))
for sl in range(QW): qops(sl)
srd(R_WS, P_WS, WS_SIZE)
a(f"s_mov_b32 s{sSYNC}, 0")
a(f"s_mov_b32 s{sLO}, {f32(L_LO)}")
a(f"s_mov_b32 s{sHI}, {f32(L_HI)}")
cm("prefill V regs: rows 16 and 20 = ones, other rows >=16 zero")
a("v_and_b32 v24, 27, v0")
a("v_cmp_eq_u32 vcc, 16, v24")
a("v_mov_b32 v25, 0x3f803f80")
a("s_nop 0")
a("v_cndmask_b32 v24, 0, v25, vcc")
a("v_mov_b32 v25, v24")
for t in range(16):
    for j in range(4):
        a(f"v_mov_b64 {vr(KV+12*t+4+2*j,2)}, v[24:25]")
a("v_mov_b32 v14, v6")
a("v_lshrrev_b32 v24, 5, v0")
a("v_and_b32 v25, 15, v0")
a("v_lshl_add_u32 v15, v24, 4, v25")
a("v_lshlrev_b32 v15, 4, v15")
a(f"v_mov_b32 v{vIDX}, 0xdddddddd")
a(f"s_lshl_b32 s{sT2}, s{sWV}, 11")
a(f"v_add_u32 v{vAD}, s{sT2}, v14")
a(f"s_lshl_b32 s{sT2}, s{sWV}, 2")
a(f"s_add_u32 s{sT3}, s{sT2}, {L_PART + 8192}")
a(f"v_add_u32 v{vAS}, s{sT3}, v14")
a(f"s_add_u32 s{sT3}, s{sT2}, {L_PROG}")
a(f"v_add_u32 v{vPG}, s{sT3}, v14")
a(f"v_add_u32 v{vAQ}, {L_QF}, v14")
a(f"v_lshlrev_b32 v23, {FSH}, v0")
a("s_barrier")
a(f"ds_read_b32 v20, v{vCA} offset:{C_TAG}")
for sl in range(QW, 4): qops(sl)
a("s_waitcnt vmcnt(14) lgkmcnt(0)")
a("s_barrier")
a(f"v_readfirstlane_b32 s{sTAG}, v20")
cm("scalars for the tail")
sKV = sT0
a(f"s_sub_u32 s{sSTEP}, 7, s{sWV}")
o_offsets()
a(f"s_mov_b32 s{sF1}, s{sT0}")
a(f"s_mov_b32 s{sF2}, s{sT1}")
a(f"s_mul_i32 s{sT2}, s{sSTEP}, {PSTRIDE}")
a(f"s_lshr_b32 s{sT4}, s{sWV}, 1")
a(f"s_lshl1_add_u32 s{sYG}, s{sRB}, s{sT4}")
a(f"s_lshl_b32 s{sCG}, s{sYG}, 12")
a(f"s_add_u32 s{sCG}, s{sCG}, {WS_FO + 16*128}")
srd(R_B, P_OUT, 2048 * 4096)
a(f"s_and_b32 s{sT0}, s{sWV}, 1")
a(f"s_lshl1_add_u32 s{sT0}, s{sG}, s{sT0}")
a(f"s_lshl_b32 s{sT0}, s{sT0}, 7")
a(f"s_lshl_b32 s{sT3}, s{sYG}, 17")
a(f"s_add_u32 s{sT3}, s{sT3}, s{sT0}")
a(f"s_lshl_b32 s{sT6}, s{sYG}, 15")
a(f"s_add_u32 s{sT6}, s{sT6}, {WS_O + 16384}")
a(f"s_mul_i32 s{sT4}, s{sWV}, {PSTRIDE}")
a(f"s_lshl_b32 s{sT5}, s{sWV}, 9")
a(f"s_add_u32 s{sT5}, s{sT5}, {L_CS}")
a(f"s_lshl_b32 s{sT0}, s{sWV}, {FSH+6}")
a(f"s_add_u32 s{sT0}, s{sT0}, {WS_FKV}")
stamp(1)
a(f"s_waitcnt vmcnt(7)")
a("s_barrier")
PE = int(OPT.get("pe", 1))
if PE == 2:
    a(f"buffer_load_dword v22, v23, {sr(R_WS,4)}, s{sT0} offen sc1")
    a(f"s_waitcnt vmcnt(1)")
else:
    a(f"s_waitcnt vmcnt(0)")
if PE == 1: a(f"buffer_load_dword v22, v23, {sr(R_WS,4)}, s{sT0} offen sc1")
a("s_barrier")
a("s_branch L_a2")
sec("A")
lab("L_a2")
stamp(2)
for _ in range(int(OPT.get("pd", 0))): a("s_sleep 2")
a(f"s_mov_b32 s{sCNT}, {POLL_LIMIT}")
if PE: a("s_branch L_a_kvq")
lab("L_a_kvp")
a(f"buffer_load_dword v22, v23, {sr(R_WS,4)}, s{sT0} offen sc1")
lab("L_a_kvq")
a("s_waitcnt vmcnt(0)")
a(f"v_xor_b32 v22, s{sTAG}, v22")
a("v_cmp_lt_u32 vcc, 15, v22")
a("s_cbranch_vccz L_a_kvok")
a(f"s_sub_u32 s{sCNT}, s{sCNT}, 1")
a("s_cbranch_scc0 L_a_kvp")
lab("L_a_kvok")
stamp(4)
a(f"s_lshl_b32 s{sT0}, s{sWV}, 15")
a(f"s_add_u32 s{sT0}, s{sT0}, {WS_KV}")
a(f"s_mov_b32 s{sM}, 0xffff")
a(f"s_mov_b32 s{sM+1}, 0xffff")
def kvload(tp):
    for t in (2*tp, 2*tp+1):
        a(f"buffer_load_dwordx4 {vr(KV+12*t,4)}, v14, {sr(R_WS,4)}, s{sT0} offen offset:{2048*(t&1)} sc1")
    a(f"s_mov_b64 exec, s[{sM}:{sM+1}]")
    for t in (2*tp, 2*tp+1):
        a(f"buffer_load_dwordx4 {vr(KV+12*t+4,4)}, v15, {sr(R_WS,4)}, s{sT0} offen offset:{2048*(t&1)+1024} sc1")
        a(f"buffer_load_dwordx4 {vr(KV+12*t+8,4)}, v15, {sr(R_WS,4)}, s{sT0} offen offset:{2048*(t&1)+1536} sc1")
    a("s_mov_b64 exec, -1")
    if tp < 7: a(f"s_add_u32 s{sT0}, s{sT0}, 4096")
NINIT = int(OPT.get("ninit", 3))
A4POS = int(OPT.get("a4", 8))
ABPOS = int(OPT.get("ab", 0))
NB = int(OPT.get("nb", NINIT))
for tp in range(NB):
    kvload(tp)
cm("do all 32 workgroups of this id class share this XCD?")
a(f"s_bfe_u32 s{sT1}, s2, 0x20001")
a(f"s_cmp_eq_u32 s{sT1}, s{sWV}")
a("s_cbranch_scc0 L_a_nomode")
a(f"s_getreg_b32 s{sT1}, hwreg(HW_REG_XCC_ID, 0, 4)")
a(f"v_cmp_ne_u32 vcc, s{sT1}, v22")
a("s_bitcmp1_b32 s2, 0")
a(f"s_cselect_b32 s{sT1}, vcc_hi, vcc_lo")
a(f"s_cmp_eq_u32 s{sT1}, 0")
a(f"s_cselect_b32 s{sT1}, {2 if OPT.get('nolocal') else 1}, 2")
a(f"v_mov_b32 v21, s{sT1}")
a(f"ds_write_b32 v{vCA}, v21 offset:{C_MODE}")
lab("L_a_nomode")
assert NINIT < 8
stamp(5)
a("s_barrier")
a("s_setprio 1")
a(f"ds_read_b128 {vr(vQ,4)}, v{vAQ}")
a(f"v_add_u32 v{vAQ}, 1024, v{vAQ}")
for tp in range(NB, NINIT): kvload(tp)
a(f"s_waitcnt vmcnt({6*(NINIT-1)+4}) lgkmcnt(0)")
stamp(6)
cstamp(10)

K_ = lambda t: KV + 12 * t
V1 = lambda t: KV + 12 * t + 4
V2 = lambda t: KV + 12 * t + 8
def ex(X, i): a(f"v_exp_f32 v{X+i}, v{X+i}")
def exs(X, lo, hi):
    for i in range(lo, hi): ex(X, i)
def smf(v, p): a(f"v_smfmac_f32_32x32x32_bf16 {vr(vO,16)}, {vr(v,4)}, {vr(p,8)}, v{vIDX}")
def qk(d, t): mfma32(d, K_(t), vQ, "0")
def zeroO(): a(f"v_mfma_f32_32x32x8_bf16 {vr(vO,16)}, {vr(vZ,2)}, {vr(vZ,2)}, 0")
def dump():
    a(f"ds_write_b128 v{vAD}, {vr(vO,4)}")
    a(f"ds_write_b128 v{vAD}, {vr(vO+4,4)} offset:1024")
    a(f"ds_write_b32 v{vAS}, v{vO+8}")
    a(f"ds_write_b32 v{vPG}, v{vAS}")

KVS = int(OPT.get('kvs', 2))
QPF = int(OPT.get('qpf', 0))
PQ, PS1 = [int(x) for x in OPT.get('pos', '7,12').split(',')]
def tiles_1_15(first):
    issued = [NINIT + 1 if first else 8]
    def preqk(tn):
        if first and tn % 2 == 0 and tn < 16:
            a(f"s_waitcnt vmcnt({6*(min(issued[0],8) - 1 - tn//2)})")
    def more(t):
        if first and t % KVS == 0 and issued[0] < 8:
            kvload(issued[0]); issued[0] += 1
            if issued[0] in (A4POS, ABPOS): signal(vCA, vONEA, C_A4)
    X, Y = S1, S0
    smf(V1(0), Y); exs(X, 0, 3); smf(V2(0), Y + 8); exs(X, 3, 6); preqk(2); qk(Y, 2); exs(X, 6, 10); smf(V1(1), X); more(1); exs(X, 10, 16)
    a(f"s_add_u32 s{sSTEP}, s{sSTEP}, 1")
    for t in range(2, 16):
        X, Y = (S0, S1) if t % 2 == 0 else (S1, S0)
        if t == 15 and QPF:
            a("s_waitcnt lgkmcnt(0)")
            a(f"v_mov_b64 {vr(vQ,2)}, v[12:13]")
            a(f"v_mov_b64 {vr(vQ+2,2)}, v[14:15]")
        exs(X, 0, 2); smf(V2(t - 1), Y + 8); exs(X, 2, PQ)
        if t == 15:
            if not QPF: a("s_waitcnt lgkmcnt(0)")
            if DBG == "steps":
                a(f"s_mov_b32 m0, s{sSTEP}")
                a("s_nop 0")
                a(f"s_movreld_b32 s80, s{sST}")
            qk(Y, 0)
        else:
            preqk(t + 1)
            qk(Y, t + 1)
        if t == 14 and DBG == "steps": a(f"s_memtime s[{sST}:{sST+1}]")
        if (t == 14 and not QPF) or (QPF and first and t == 11):
            a(f"ds_read_b128 {vr(12 if QPF else vQ,4)}, v{vAQ}")
            a(f"v_add_u32 v{vAQ}, 1024, v{vAQ}")
        exs(X, PQ, PS1); smf(V1(t), X); more(t); exs(X, PS1, 16)

qk(S0, 0)
zeroO()
qk(S1, 1)
a(f"s_mov_b32 s{sSTEP}, 0")
if NINIT < 8:
    kvload(NINIT)
    if NINIT + 1 in (A4POS, ABPOS): signal(vCA, vONEA, C_A4)
else:
    a("s_nop 8")
exs(S0, 0, 16)
a("s_nop 0")
a(f"s_waitcnt vmcnt({6*NINIT})")
tiles_1_15(True)
a("s_nop 0")
a("s_branch L_a_bound")
lines.append(".p2align 6")
lab("L_a_loop")
tiles_1_15(False)
a(f"s_cmp_eq_u32 s{sSTEP}, 8")
a("s_cbranch_scc1 L_a_fin")
lab("L_a_bound")
X, Y = S0, S1
smf(V2(15), Y + 8); exs(X, 0, 3); qk(Y, 1); exs(X, 3, 11)
dump()
if QPF:
    a(f"ds_read_b128 v[12:15], v{vAQ}")
ex(X, 11); zeroO(); exs(X, 12, 16)
if QPF: a(f"v_add_u32 v{vAQ}, 1024, v{vAQ}")
a(f"v_add_u32 v{vAD}, {PSTRIDE}, v{vAD}")
a(f"v_add_u32 v{vAS}, {PSTRIDE}, v{vAS}")
a("s_branch L_a_loop")

lab("L_a_fin")
smf(V2(15), S1 + 8)
a("v_lshlrev_b32 v14, 4, v0")
a(f"v_mov_b32 v{vCA}, {L_CNT}")
a(f"v_add_u32 v9, s{sT2}, v14")
a("v_and_b32 v10, 3, v0")
a("v_lshlrev_b32 v10, 2, v10")
a(f"v_add_u32 v10, {L_PROG}, v10")
a(f"s_add_u32 s{sT2}, s{sT2}, {L_PART + 8192}")
a(f"v_add_u32 v6, s{sT4}, v14")
a("v_lshlrev_b32 v16, 2, v0")
a(f"v_mov_b32 v17, s{sTAG}")
a("s_setprio 3")
dump()
a("v_lshlrev_b32 v7, 3, v0")
a(f"v_add_u32 v7, s{sT5}, v7")
a(f"s_mov_b32 s{sKIND}, 0")
stamp(7)
cstamp(11)
lab("L_a_rw")
a("ds_read_b32 v11, v10")
a(f"ds_read_b32 v8, v{vCA} offset:{C_MODE}")
a("ds_read_b128 v[52:55], v9 offset:8192")
for w in range(8):
    a(f"ds_read_b128 {vr(20+4*w,4)}, v9 offset:{1024*w}")
a("ds_read_b128 v[56:59], v6 offset:8192")
WSH = int(OPT.get("wsh", 1))
if WSH:
    a(f"ds_read_b32 v60, v{vCA} offset:{C_GH}")
    a("ds_read_b64 v[4:5], v7")
a(f"s_waitcnt lgkmcnt({11 if WSH else 9})")
a(f"v_cmp_gt_u32 vcc, s{sT2}, v11")
a("s_cbranch_vccnz L_a_rw")
a(f"v_readfirstlane_b32 s{sMODE}, v8")
a(f"s_mov_b32 s{sT1}, s{sF2}")
sum_check(52)
a(f"s_waitcnt lgkmcnt({3 if WSH else 1})")
a("s_cbranch_scc1 L_a_bad1")
reduce_math(20, 14, flag=False, bs=52)
a("v_and_b32 v15, 15, v0")
a("v_lshlrev_b32 v15, 7, v15")
a(f"s_lshl_b32 s{sT0}, s{sWV}, 2")
a(f"v_add_u32 v10, s{sT0}, v{vCA}")
AO, AW, AC = 88, 152, 48
def awread(k):
    o = PSTRIDE * (k // 4) + 2048 * (k % 4)
    a(f"ds_read_b64_tr_b16 {vr(AW+4*k,2)}, v4 offset:{o}")
    a(f"ds_read_b64_tr_b16 {vr(AW+4*k+2,2)}, v4 offset:{o+1024}")
if WSH:
    a("s_waitcnt lgkmcnt(0)")
    a("v_cmp_gt_u32 vcc, NSYNC_B2, v60")
    a("s_cbranch_vccnz L_a_nosh")
    a(f"s_mov_b32 s{sKIND}, 1")
    for k in range(7): awread(k)
    lab("L_a_nosh")
a("s_waitcnt vmcnt(0)")
a("s_mov_b32 exec_hi, 0")
st2([f"buffer_store_dword v17, v16, {sr(R_WS,4)}, s{sF1} offen@"])
a("s_mov_b64 exec, -1")
lab("L_a_ok1")
stamp(8)
if not WSH: a("s_waitcnt lgkmcnt(0)")
sum_check(56)
a("s_cbranch_scc1 L_a_bad2")
lab("L_a_ok2")
cm("output projection, last 16 heads")
a(f"buffer_load_dword v8, v15, {sr(R_WS,4)}, s{sCG} offen sc1")
a(f"s_cmp_eq_u32 s{sKIND}, 1")
a("s_cbranch_scc1 L_a_wd")
lab("L_a_ww")
a(f"ds_read_b32 v11, v{vCA} offset:{C_GH}")
a("ds_read_b64 v[4:5], v7")
a("s_waitcnt lgkmcnt(0)")
a("v_cmp_gt_u32 vcc, NSYNC_B2, v11")
a("s_cbranch_vccnz L_a_ww")
for k in range(7): awread(k)
lab("L_a_wd")
a("s_waitcnt vmcnt(0)")
a(f"v_cmp_ne_u32 vcc, s{sTAG}, v8")
a("s_cbranch_vccz L_a_fl")
poll(15, f"s{sCG}", 8)
lab("L_a_fl")
stamp(9)
for g in range(16):
    if g % 4 == 0 and g: a(f"s_add_u32 s{sT6}, s{sT6}, 4096")
    a(f"buffer_load_dwordx4 {vr(AO+4*g,4)}, v14, {sr(R_WS,4)}, s{sT6} offen offset:{1024*(g%4)} sc1")
    if 7 + g < 16: awread(7 + g)
a(f"ds_read_b32 v11, v10 offset:{C_HA}")
for i in range(4):
    a(f"ds_read_b128 {vr(16+4*i,4)}, v6 offset:{1024*i}")
cm("epoch update by WG0 (every workgroup has read the old value long ago)")
a(f"s_lshl2_add_u32 s{sT0}, s2, s{sWV}")
a(f"s_cmp_eq_u32 s{sT0}, 0")
a("s_cbranch_scc0 L_a_noep")
setflag(8, 9, sT0)
lab("L_a_noep")
a("s_waitcnt lgkmcnt(5)")
for g in range(16):
    a(f"s_waitcnt vmcnt({15-g})")
    mfma32(AC, AO + 4*g, AW + 4*g, "0" if g == 0 else None)
stamp(13)
a("s_waitcnt lgkmcnt(0)")
a("v_cmp_eq_u32 vcc, 0, v11")
a("s_cbranch_vccz L_a_hok")
lab("L_a_hw")
a(f"ds_read_b32 v11, v10 offset:{C_HA}")
for i in range(4):
    a(f"ds_read_b128 {vr(16+4*i,4)}, v6 offset:{1024*i}")
a("s_waitcnt lgkmcnt(0)")
a("v_cmp_eq_u32 vcc, 0, v11")
a("s_cbranch_vccnz L_a_hw")
lab("L_a_hok")
a("s_nop 8")
stamp(14)
for j in range(8):
    a(f"v_pk_add_f32 {vr(AC+2*j,2)}, {vr(AC+2*j,2)}, {vr(16+2*j,2)}")
    for r in (2*j, 2*j + 1):
        a(f"s_add_u32 s{sT1}, s{sT3}, {4096 * (8*(r//4) + r%4)}")
        a(f"buffer_store_dword v{AC+r}, v5, {sr(R_B,4)}, s{sT1} offen{OUTFL}")
a("s_branch L_end")

sec("P")
ROLE[0] = "H"
if STAMPS:
    a("s_mov_b32 s81, 0")
    a("s_mov_b32 s92, 0")
    a("s_mov_b32 s93, 0")
srd(R_WS, P_WS, WS_SIZE)
a("v_xor_b32 v14, v12, v13")
a("v_lshlrev_b32 v14, 4, v14")
a("v_lshl_add_u32 v14, v13, 8, v14")
a(f"v_add_u32 v8, s{sT2}, v14")
for ks in range(1, 4):
    a(f"v_xor_b32 v{8+ks}, {64*ks}, v8")
a("v_lshrrev_b32 v14, 2, v13")
a("v_lshl_add_u32 v14, v12, 3, v14")
a("v_lshlrev_b32 v14, 5, v14")
a("v_and_b32 v15, 3, v0")
a("v_lshl_add_u32 v14, v15, 3, v14")
a(f"v_add_u32 v14, s{sT4}, v14")
a(f"s_lshl_b32 s{sT0}, s{sWV}, 10")
a(f"s_add_u32 s{sT0}, s{sT0}, {L_KVP}")
a(f"v_add_u32 v15, s{sT0}, v6")
a(f"s_lshl_b32 s{sT0}, s{sRB}, 2")
a(f"s_add_u32 s{sT0}, s{sT0}, s{sGRP}")
a(f"s_lshr_b32 s{sT1}, s{sT0}, 1")
a(f"s_lshl_b32 s{sT1}, s{sT1}, 1")
a(f"s_add_u32 s{sT1}, s{sT1}, s{sKIND}")
a(f"s_lshl_b32 s{sT1}, s{sT1}, 10")
a(f"s_and_b32 s{sT2}, s{sT0}, 1")
a(f"s_add_u32 s{sT3}, s{sKIND}, 8")
a(f"s_lshl_b32 s{sT2}, s{sT2}, s{sT3}")
a(f"s_add_u32 s{sT1}, s{sT1}, s{sT2}")
a(f"s_add_u32 s{sT5}, s{sT1}, {WS_KV}")
a(f"s_lshl_b32 s{sT0}, s{sT0}, 1")
a(f"s_add_u32 s{sT0}, s{sT0}, s{sKIND}")
a(f"s_lshl_b32 s{sT0}, s{sT0}, {FSH}")
a(f"s_add_u32 s{sT6}, s{sT0}, {WS_FKV}")
a(f"s_cmp_eq_u32 s{sKIND}, 0")
a(f"s_cselect_b32 s{sT0}, 9, 3")
a(f"s_cselect_b32 s{sT1}, 3, 8")
a("v_and_b32 v34, 1, v12")
a("v_lshrrev_b32 v35, 1, v12")
a("v_lshlrev_b32 v16, 4, v13")
a(f"v_lshl_add_u32 v16, v34, s{sT0}, v16")
a(f"v_lshl_add_u32 v16, v35, s{sT1}, v16")
a(f"v_mov_b32 v{vCNT}, {L_CNT}")
a(f"v_mov_b32 v{vONE}, 1")
a("s_waitcnt lgkmcnt(0)")
a(f"s_mul_i32 s{sTAG}, s{sTAG}, 1664525")
a(f"s_add_u32 s{sTAG}, s{sTAG}, 1013904223")
a(f"v_mov_b32 v36, s{sTAG}")
a(f"ds_write_b32 v{vCNT}, v36 offset:{C_TAG}")
a(f"s_cmp_eq_u32 s{sKIND}, 0")
a(f"s_waitcnt vmcnt(4)")
stamp(1)
b = 128
for ks in range(4):
    a(f"ds_read_b128 {vr(b+8*ks,4)}, v{8+ks}")
    a(f"ds_read_b64_tr_b16 {vr(b+8*ks+4,2)}, v14 offset:{1024*ks}")
    a(f"ds_read_b64_tr_b16 {vr(b+8*ks+6,2)}, v14 offset:{1024*ks+128}")
def kvproj(kind):
    for ks in range(4):
        a(f"s_waitcnt lgkmcnt({9 - 3*ks})")
        x, w = vr(b+8*ks, 4), vr(b+8*ks+4, 4)
        if kind == 0: x, w = w, x
        a(f"v_mfma_f32_16x16x32_bf16 v[40:43], {x}, {w}, {'0' if ks == 0 else 'v[40:43]'}")
a("s_cbranch_scc0 L_h_vproj")
kvproj(0)
a("s_branch L_h_kvdone")
lab("L_h_vproj")
kvproj(1)
lab("L_h_kvdone")
a(f"s_cmp_eq_u32 s{sWV}, 0")
a("s_cbranch_scc1 L_h_pub")
a("s_nop 5")
a("ds_write_b128 v15, v[40:43]")
a("s_waitcnt lgkmcnt(0)")
a("s_barrier")
a("s_branch L_h_common")
lab("L_h_pub")
a("s_barrier")
for i in range(1, 4):
    a(f"ds_read_b128 {vr(40+4*i,4)}, v15 offset:{1024*i}")
a("s_nop 1")
a("s_waitcnt lgkmcnt(0)")
a("v_pk_add_f32 v[40:41], v[40:41], v[44:45]")
a("v_pk_add_f32 v[42:43], v[42:43], v[46:47]")
a("v_pk_add_f32 v[48:49], v[48:49], v[52:53]")
a("v_pk_add_f32 v[50:51], v[50:51], v[54:55]")
a("v_pk_add_f32 v[40:41], v[40:41], v[48:49]")
a("v_pk_add_f32 v[42:43], v[42:43], v[50:51]")
a("v_cvt_pk_bf16_f32 v40, v40, v41")
a("v_cvt_pk_bf16_f32 v41, v42, v43")
a(f"buffer_store_dwordx2 v[40:41], v16, {sr(R_WS,4)}, s{sT5} offen sc1")
dstamp("p", 5)
a("s_branch L_h_common")
sec("HQ")
lab("L_h_common")
a(f"s_mov_b32 s{sSYNC}, 0")
a("v_and_b32 v17, 31, v0")
a("v_lshrrev_b32 v18, 5, v0")
p0, p1, p2, vDSK = 60, 61, 62, 63
cm("Q projection addresses")
QXA = list(range(48, 56))
a(f"s_lshr_b32 s{sT0}, s{sWV}, 1")
a(f"s_lshl_b32 s{sT0}, s{sT0}, 13")
a("v_xor_b32 v34, v13, v18")
a("v_lshlrev_b32 v34, 4, v34")
a("v_lshl_add_u32 v34, v17, 8, v34")
a(f"v_add_u32 v{QXA[0]}, s{sT0}, v34")
for ks in range(1, 8):
    a(f"v_xor_b32 v{QXA[ks]}, {32*ks}, v{QXA[0]}")
wtr_addr(vWT, 9, L_R1, 34)
a(f"v_lshl_add_u32 v56, v18, 9, v{vWT}")
a(f"v_add_u32 v56, {(L_WQ - L_R1) & 0xffffffff}, v56")
a(f"s_and_b32 s{sT1}, s{sWV}, 1")
a(f"s_lshl_b32 s{sT1}, s{sT1}, 12")
a(f"s_lshr_b32 s{sT2}, s{sWV}, 1")
a(f"s_lshl_b32 s{sT2}, s{sT2}, 10")
a(f"s_add_u32 s{sT1}, s{sT1}, s{sT2}")
a(f"s_add_u32 s{sT1}, s{sT1}, {L_QF}")
a(f"v_add_u32 v57, s{sT1}, v6")
a(f"v_mov_b32 v58, {f32(0.25 * LOG2E)}")
a("v_mov_b32 v59, v58")
cm("SSM offsets and addresses")
a(f"s_mov_b32 s{R_A}, s{P_BX}")
a(f"s_and_b32 s{R_A+1}, s{P_BX+1}, 0xffff")
srd(R_B, P_BRE, 512 * 1024)
srd(R_C, P_BIM, 512 * 1024)
a(f"s_mov_b32 s{sLO}, {f32(L_LO)}")
a(f"s_mov_b32 s{sHI}, {f32(L_HI)}")
a(f"s_lshl_b32 s{sT0}, s{sC}, 17")
a(f"s_lshl_b32 s{sT1}, s{sWV}, 15")
a(f"s_add_u32 s{sT3}, s{sT0}, s{sT1}")
a(f"s_lshr_b32 s{sT0}, s{sWV}, 1")
a(f"s_lshl1_add_u32 s{sYG}, s{sRB}, s{sT0}")
a(f"s_and_b32 s{sT0}, s{sWV}, 1")
a(f"s_lshl1_add_u32 s{sCG}, s{sG}, s{sT0}")
a(f"s_lshl_b32 s{sT4}, s{sYG}, 15")
a(f"s_lshl_b32 s{sT2}, s{sCG}, 6")
a(f"s_add_u32 s{sT4}, s{sT4}, s{sT2}")
wo_voff(vWO, 34)
a("v_lshrrev_b32 v36, 2, v0")
a("v_and_b32 v34, 3, v36")
a("v_bfe_u32 v35, v36, 2, 1")
a("v_lshl_add_u32 v34, v35, 4, v34")
a("v_lshrrev_b32 v35, 3, v36")
a("v_lshl_add_u32 v34, v35, 2, v34")
a("v_and_b32 v37, 3, v0")
a("v_lshlrev_b32 v35, 4, v37")
a("v_lshl_add_u32 v8, v34, 10, v35")
a("v_add_u32 v9, 8192, v8")
a(f"v_mul_u32_u24 v{vRB}, {RSTR}, v17")
a(f"v_lshl_add_u32 v{vRB}, v18, 4, v{vRB}")
a(f"v_add_u32 v{vRB}, {L_R1}, v{vRB}")
a(f"s_lshl_b32 s{sT1}, s{sWV}, 11")
a(f"s_add_u32 s{sT1}, s{sT1}, {L_SCR}")
a("v_xor_b32 v34, v12, v37")
a("v_lshlrev_b32 v34, 4, v34")
a("v_lshl_add_u32 v34, v36, 6, v34")
a(f"v_add_u32 v10, s{sT1}, v34")
a("v_bfe_u32 v34, v0, 2, 2")
a("v_xor_b32 v35, v34, v18")
a("v_lshlrev_b32 v35, 4, v35")
a("v_lshl_add_u32 v35, v17, 6, v35")
a(f"v_add_u32 v11, s{sT1}, v35")
a("v_xor_b32 v12, 32, v11")
a("v_lshl_add_u32 v34, v18, 3, v34")
a("v_lshlrev_b32 v34, 6, v34")
a("v_bfe_u32 v35, v0, 4, 1")
a("v_lshl_add_u32 v34, v35, 5, v34")
a("v_lshl_add_u32 v34, v37, 3, v34")
a(f"v_add_u32 v19, s{sT1}, v34")
a("v_lshlrev_b32 v34, 6, v17")
a("v_lshl_add_u32 v34, v18, 5, v34")
a(f"v_add_u32 v16, s{sT1}, v34")
a("v_lshlrev_b32 v38, 4, v18")
a("v_lshl_add_u32 v29, v17, 10, v38")
a("v_lshlrev_b32 v14, 4, v17")
a("s_waitcnt vmcnt(1)")
a(f"s_cmp_eq_u32 s{sWV}, 0")
a("s_cbranch_scc1 L_h_pw")
a("s_waitcnt vmcnt(0)")
lab("L_h_pw")
FPOS = int(OPT.get("fpos", 1))
def kvflag():
    a("s_waitcnt vmcnt(0)")
    a(f"s_cmp_eq_u32 s{sWV}, 0")
    a("s_cbranch_scc0 L_h_nopub")
    a(f"s_getreg_b32 s{sT0}, hwreg(HW_REG_XCC_ID, 0, 4)")
    a(f"s_xor_b32 s{sT0}, s{sT0}, s{sTAG}")
    a("v_mov_b32 v34, 0")
    a(f"v_mov_b32 v35, s{sT0}")
    a("s_mov_b64 exec, 1")
    a(f"buffer_store_dword v35, v34, {sr(R_WS,4)}, s{sT6} offen sc1")
    a("s_mov_b64 exec, -1")
    stamp(2)
    lab("L_h_nopub")
if FPOS == 0: kvflag()
cm("SSM parameters")
q0, q1, q2, q3, q4 = 64, 65, 66, 67, 68
a(f"v_lshlrev_b32 v{p0}, 16, v{p0}")
a(f"v_lshlrev_b32 v{p1}, 16, v{p1}")
a(f"v_lshlrev_b32 v{p2}, 16, v{p2}")
a(f"v_mul_f32 v{p2}, {f32(LOG2E)}, v{p2}")
a(f"v_exp_f32 v{p2}, v{p2}")
a("s_nop 0")
a(f"v_cvt_pk_bf16_f32 v{p2}, v{p2}, v{p2}")
a(f"v_and_b32 v{p2}, 0xffff0000, v{p2}")
a(f"v_mul_f32 v{q0}, v{p2}, v{p0}")
a(f"v_mul_f32 v{q1}, v{p2}, v{p1}")
a(f"v_mul_f32 v{q0}, {f32(LOG2E)}, v{q0}")
a(f"v_mul_f32 v{q1}, {f32(1/(2*math.pi))}, v{q1}")
a(f"v_exp_f32 v{q0}, v{q0}")
a(f"v_rndne_f32 v{q2}, v{q1}")
a(f"v_sub_f32 v{q1}, v{q1}, v{q2}")
a(f"v_cos_f32 v{q2}, v{q1}")
a(f"v_sin_f32 v{q3}, v{q1}")
a(f"v_mul_f32 v{q4}, v{p0}, v{p0}")
a(f"v_fma_f32 v{q4}, v{p1}, v{p1}, v{q4}")
a(f"v_mul_f32 v{vL}, v{q0}, v{q2}")
a(f"v_mul_f32 v{vL+1}, v{q0}, v{q3}")
a(f"v_rcp_f32 v{q4}, v{q4}")
a(f"v_add_f32 v{q2}, -1.0, v{vL}")
a(f"v_add_f32 v{q4}, v{q4}, v{q4}")
a(f"v_mul_f32 v{q0}, v{q2}, v{p0}")
a(f"v_fma_f32 v{q0}, v{vL+1}, v{p1}, v{q0}")
a(f"v_mul_f32 v{q1}, v{vL+1}, v{p0}")
a(f"v_fma_f32 v{q1}, -v{q2}, v{p1}, v{q1}")
a(f"v_mul_f32 v{vCO}, v{q0}, v{q4}")
a(f"v_mul_f32 v{vCO+1}, v{q1}, v{q4}")
cmul(70, vL, vL); cmul(72, 70, 70); cmul(vL8, 72, 72); cmul(vL16_, vL8, vL8)
cm("skip term x*D via a diagonal B operand -> YACC")
YACC = 112
a("v_and_b32 v64, 1, v0")
a("v_lshlrev_b32 v64, 4, v64")
a(f"v_lshlrev_b32 v{vDSK}, v64, v{vDSK}")
a("v_lshrrev_b32 v64, 1, v17")
a("v_lshlrev_b32 v65, 2, v18")
a("v_sub_u32 v64, v64, v65")
for i in range(0, 8, 2):
    a(f"v_cmp_eq_u32 s[{sM}:{sM+1}], {8*(i//4) + i%4}, v64")
    a(f"v_cmp_eq_u32 vcc, {8*(i//4) + i%4 + 1}, v64")
    a("s_nop 0")
    a(f"v_cndmask_b32 v{104+i}, 0, v{vDSK}, s[{sM}:{sM+1}]")
    a(f"v_cndmask_b32 v{105+i}, 0, v{vDSK}, vcc")
if FPOS == 1: kvflag()
cm("per-lane powers: PS = L16^seg, M0 = L256^seg (if valid), M1 = M0*L128 (if valid)")
vPS, vM0, vM1, vO0, vO1 = 96, 98, 100, 102, 103
a(f"s_mov_b32 s{sM}, 0")
a(f"s_mov_b32 s{sM+1}, -1")
def powsel(dst, b1, b2, b4):
    a(f"v_cndmask_b32 v{dst}, 1.0, v{b1}, s[{sM}:{sM+1}]")
    a(f"v_cndmask_b32 v{dst+1}, 0, v{b1+1}, s[{sM}:{sM+1}]")
    for bit, b in ((0, b2), (1, b4)):
        L = uid("ps")
        a(f"s_bitcmp1_b32 s{sWV}, {bit}")
        a(f"s_cbranch_scc0 {L}")
        cmul(66, dst, b)
        a(f"v_mov_b64 {vr(dst,2)}, v[66:67]")
        lab(L)
cmul(68, vL16_, vL16_); cmul(70, 68, 68); cmul(72, 70, 70)
cmul(74, 72, 72); cmul(76, 74, 74); cmul(78, 76, 76)
powsel(vPS, vL16_, 68, 70)
powsel(vM0, 74, 76, 78)
cmul(vM1, vM0, 72)
a(f"s_lshl_b32 s{sT0}, s{sWV}, 2")
a(f"s_sub_u32 s{sT0}, s{sC}, s{sT0}")
a(f"s_sub_u32 s{sT0}, s{sT0}, 1")
a("v_lshlrev_b32 v30, 1, v18")
a(f"v_sub_u32 v{vO0}, s{sT0}, v30")
a(f"v_add_u32 v{vO1}, -1, v{vO0}")
a(f"v_mov_b32 v30, 0")
for (vo, vm) in ((vO0, vM0), (vO1, vM1)):
    a(f"v_cmp_le_i32 vcc, 0, v{vo}")
    a("s_nop 1")
    a(f"v_cndmask_b32 v{vo}, v30, v{vo}, vcc")
    a(f"v_cndmask_b32 v{vm}, 0, v{vm}, vcc")
    a(f"v_cndmask_b32 v{vm+1}, 0, v{vm+1}, vcc")
    a(f"v_lshl_add_u32 v{vo}, v{vo}, 9, v14")
if FPOS == 2: kvflag()
cm("Q projection")
ACC, QD = 32, 4
XR = 128
VM, LG = Cnt(), Cnt()
xq = [(j, h) for j in range(16) for h in range(2)]
def xb1():
    j, h = xq.pop(0)
    a(f"buffer_load_dwordx4 {vr(XR+8*j+4*h,4)}, v{8+h}, {sr(R_A,4)}, s{sT3} offen offset:{64*j}")
    VM.issue(("x", j))
def qs(ks): return 128 + 8 * (ks % 8)
def qread(ks):
    a(f"ds_read_b64_tr_b16 {vr(qs(ks),2)}, v56 offset:{2048*ks}")
    a(f"ds_read_b64_tr_b16 {vr(qs(ks)+2,2)}, v56 offset:{2048*ks+512}")
    a(f"ds_read_b128 {vr(qs(ks)+4,4)}, v{QXA[ks % 8]} offset:{16384*(ks//8)}")
def qm(ks): mfma32(ACC, qs(ks), qs(ks) + 4, "0" if ks == 0 else None)
DR = [int(x) for x in OPT.get("drain", "24").split(",") if x]
sec("Z"); sec("HQ")
a("s_barrier")
segs = []
k0 = 0
for k1 in DR + [32]:
    segs.append((k0, k1)); k0 = k1
for (k0, k1) in segs:
    if k0: a("s_barrier")
    for ks in range(k0, k0 + QD): qread(ks)
    for ks in range(k0, k1):
        if ks + QD < k1:
            if ks + QD in (16, 24): a("s_barrier")
            qread(ks + QD)
            a(f"s_waitcnt lgkmcnt(12)")
        else:
            a(f"s_waitcnt lgkmcnt({3*(k1-1-ks)})")
        qm(ks)
a(f"s_lshl_b32 s{sT0}, s{sWV}, 9")
a(f"s_add_u32 s{sT0}, s{sT0}, {L_ES}")
a("v_lshlrev_b32 v13, 3, v0")
a(f"v_add_u32 v13, s{sT0}, v13")
a("v_lshlrev_b32 v15, 3, v17")
a(f"v_add_u32 v15, {L_ES}, v15")
a("v_lshlrev_b32 v1, 2, v17")
a("v_lshl_add_u32 v1, v18, 14, v1")
a(f"s_lshl_b32 s{sT0}, s{sPB}, 15")
a(f"s_lshl_b32 s{sT1}, s{sWV}, 13")
a(f"s_add_u32 s{sT5}, s{sT0}, s{sT1}")
a(f"s_add_u32 s{sT6}, s{sT5}, 4096")
a(f"s_and_b32 s{sT0}, s{sRB}, 3")
a(f"s_lshl2_add_u32 s{sT1}, s{sT0}, s{sWV}")
a(f"s_lshl_b32 s{sT1}, s{sT1}, 15")
a(f"s_lshl_b32 s{sT2}, s{sG}, 7")
a(f"s_add_u32 s{sT1}, s{sT1}, s{sT2}")
a("v_lshlrev_b32 v18, 10, v17")
a(f"v_add_u32 v18, s{sT1}, v18")
a(f"s_lshl2_add_u32 s{sT0}, s{sG}, s{sT0}")
a(f"s_lshl_b32 s{sT0}, s{sT0}, 14")
a(f"s_and_b32 s{sT1}, s{sWV}, 1")
a(f"s_lshl_b32 s{sT1}, s{sT1}, 13")
a(f"s_add_u32 s{sT0}, s{sT0}, s{sT1}")
a("v_lshlrev_b32 v17, 7, v0")
a(f"v_add_u32 v17, s{sT0}, v17")
a(f"s_cmp_lt_u32 s{sWV}, 2")
a(f"s_cselect_b32 s{sPC}, s{P_CRE}, s{P_CIM}")
a(f"s_cselect_b32 s{sPC+1}, s{P_CRE+1}, s{P_CIM+1}")
a(f"s_and_b32 s{sT0}, s{sWV}, 1")
a(f"s_mul_i32 s{sT0}, s{sT0}, {32*RSTR}")
a(f"v_add_u32 v28, s{sT0}, v{vRB}")
for r in range(0, 16, 2):
    a(f"v_pk_mul_f32 {vr(ACC+r,2)}, {vr(ACC+r,2)}, v[58:59]")
for j in range(8):
    a(f"v_cvt_pk_bf16_f32 v{ACC+j}, v{ACC+2*j}, v{ACC+2*j+1}")
a(f"ds_write_b128 v57, {vr(ACC,4)}")
a(f"ds_write_b128 v57, {vr(ACC+4,4)} offset:2048")
cm("B tile: 4 k-slots of [64 rows x 256B], xor-swizzled; read addresses v112..119, dma voffset v120")
BA = 112
a("v_lshrrev_b32 v121, 4, v0")
a("v_and_b32 v122, 15, v0")
a(f"v_lshl_add_u32 v121, s{sWV}, 2, v121")
a("v_xor_b32 v123, v122, v121")
a("v_lshlrev_b32 v123, 4, v123")
a("v_lshl_add_u32 v120, v121, 10, v123")
a(f"s_lshr_b32 s{sT0}, s{sWV}, 1")
a(f"s_lshl_b32 s{sT0}, s{sT0}, 13")
a(f"s_sub_u32 s{sT0}, {L_R1}, s{sT0}")
for ks in range(8):
    a(f"v_add_u32 v{BA+ks}, s{sT0}, v{QXA[ks]}")
a(f"s_lshl_b32 s{sT5}, s{sPB}, 15")
a(f"s_lshl_b32 s{sT6}, s{sWV}, 10")
a("s_waitcnt lgkmcnt(0)")
stamp(3)
a("s_barrier")
a("s_branch L_h2")
sec("H")
lab("L_h2")
a("s_setprio 2")
def rows_dma(tag, base=sT5, ore=0, oim=0):
    a(f"s_mul_i32 s{sT1}, s{sWV}, {8*RSTR}")
    for i in range(8):
        a(f"s_add_u32 m0, s{sT1}, {L_R1 + RSTR*i}")
        a(f"s_add_u32 s{sT2}, s{base}, {1024*i + ore}")
        dma(vL4, R_B, f"s{sT2}")
        a(f"s_add_u32 m0, s{sT1}, {L_R1 + RSTR*(32+i)}")
        a(f"s_add_u32 s{sT2}, s{base}, {1024*i + oim}")
        dma(vL4, R_C, f"s{sT2}")
    VM.issue(tag, 16)
def xw(j, h):
    if h == 0: waits(vm=VM.need(("x", j)))
    a(f"ds_write_b128 v10, {vr(XR+8*j+4*h,4)}" + (" offset:1024" if h else ""))
    LG.issue(("xw", j))
def xr(j):
    a(f"ds_read_b128 {vr(XR+8*j,4)}, v11")
    a(f"ds_read_b128 {vr(XR+8*j+4,4)}, v12")
    LG.issue(("x", j), 2)
waitc(vCNT, C_A4, 4, 30, sleep=int(OPT.get("a4sl", 1)))
a(f"ds_read_b32 v30, v{vCNT} offset:{C_MODE}")
a("s_setprio 0")
cm("U = x B^T")
XL = int(OPT.get("xl", 2))
def bdma(sl, m):
    a(f"s_add_u32 m0, s{sT6}, {L_R1 + 16384*sl + 4096*m}")
    a(f"s_add_u32 s{sT2}, s{sT5}, {256*sl + 16384*(m%2)}")
    dma(120, R_B if m < 2 else R_C, f"s{sT2}")
    VM.issue(("B", sl))
lq = []
for it in OPT.get("uord", "B0,0,1,2,3,B1,4,5,6,7,B2,8,9,10,11,B3,12,13,14,15").split(","):
    lq += [("B", int(it[1]), m) for m in range(4)] if it[0] == "B" else [("x",), ("x",)]
if OPT.get("mix", "1") == "1":
    for sl in range(1, 4):
        i = lq.index(("B", sl, 0))
        xs, bs_ = lq[i-4:i], lq[i:i+4]
        lq[i-4:i+4] = [y for p in zip(xs, bs_) for y in p]
def ld1(n=1):
    for _ in range(n):
        if not lq: return
        it = lq.pop(0)
        if it[0] == "B": bdma(it[1], it[2])
        else: xb1()
CB = [C_H0, C_H1, C_H2, C_H3]
sigd = set()
def bsig(force=None):
    for sl in range(4):
        issued = not any(it[:2] == ("B", sl) for it in lq)
        if sl in sigd or not issued: continue
        if sl == force: waits(vm=VM.need(("B", sl)))
        if ("B", sl) not in VM.q:
            signal(vCNT, vONE, CB[sl]); LG.issue("sig"); sigd.add(sl)
ld1(int(OPT.get("u0", 12)))
bsig(0)
ld1(int(OPT.get("u1", 4)))
for j in range(XL): xw(j, 0); xw(j, 1); xr(j)
a("s_setprio 2")
a(f"v_readfirstlane_b32 s{sMODE}, v30") if False else None
waitc(vCNT, CB[0], 4, 31)
a(f"v_readfirstlane_b32 s{sMODE}, v30")
LG.q = []
stamp(4)
UPRIO = int(OPT.get("uprio", 0)); YPRIO = int(OPT.get("yprio", 0))
a(f"s_setprio {UPRIO}")
AR, AI, BR = 32, 48, 64
def bread(k):
    s = BR + 8 * (k % 4)
    a(f"ds_read_b128 {vr(s,4)}, v{BA + k % 8} offset:{16384*(k//8)}")
    a(f"ds_read_b128 {vr(s+4,4)}, v{BA + k % 8} offset:{16384*(k//8) + 8192}")
    LG.issue(("b", k), 2)
PF = [(17, sPC), (18, P_WO)]
PFK = int(OPT.get("pfk", 19))
PTK = int(OPT.get("ptk", 27))
CPOS = 0
for k in range(3): bread(k)
for k in range(32):
    j = k // 2; jn = j + XL
    tr = jn < 16
    n1 = LG.need(("x", j)); n2 = LG.need(("b", k))
    waits(lg=n2 if n2 is not None else n1)
    s = BR + 8 * (k % 4)
    first = "0" if k == 0 else None
    mfma32(AR, XR + 4*k, s, first)
    if k % 8 == 2 and k < 24: bsig(k // 8 + 1)
    if k % 8 == 4 and k < 24:
        a(f"ds_read_b32 v31, v{vCNT} offset:{CB[k//8+1]}"); LG.issue("cb")
    if k % 8 == 5 and k < 24:
        waits(lg=LG.need("cb"))
        a("s_setprio 2")
        a("v_cmp_gt_u32 vcc, 4, v31")
        Lk = uid("bk")
        a(f"s_cbranch_vccz {Lk}")
        waitc(vCNT, CB[k//8+1], 4, 31)
        lab(Lk)
        a(f"s_setprio {UPRIO}")
    if k + 3 < 32: bread(k + 3)
    ld1()
    if PF and k >= PFK and k % 2 == 1:
        v, p = PF.pop(0)
        a(f"global_load_dword v{136+len(PF)}, v{v}, s[{p}:{p+1}]"); VM.issue("pf")
    if k == PTK:
        cm("local mode: make the lines this wave / its attention partner will hand over valid in L2")
        a(f"s_cmp_eq_u32 s{sMODE}, 1")
        a("s_cbranch_scc0 L_h_nopt")
        def touch(soff, n):
            for i in range(n):
                a(f"buffer_load_dwordx4 v[144:147], v{vL4}, {sr(R_WS,4)}, s{soff} offen offset:{1024*i} sc1")
        def touchf(soff):
            a("s_mov_b64 exec, 0xff")
            touch(soff, 1)
            a("s_mov_b64 exec, -1")
        if "h" in LOC:
            a(f"s_lshl2_add_u32 s{sT0}, s{sC}, s{sWV}")
            a(f"s_lshl_b32 s{sT1}, s{sT0}, 5")
            a(f"s_add_u32 s{sT1}, s{sT1}, s{sPB}")
            a(f"s_lshl_b32 s{sT1}, s{sT1}, 11")
            a(f"s_add_u32 s{sT1}, s{sT1}, {WS_H}")
            touch(sT1, 2)
            a(f"s_add_u32 s{sT1}, s{sT1}, 32768")
            touch(sT1, 2)
            a(f"s_lshl4_add_u32 s{sT0}, s{sT0}, s{sPB}")
            a(f"s_lshl_b32 s{sT0}, s{sT0}, 7")
            a(f"s_add_u32 s{sT0}, s{sT0}, {WS_FH}")
            touchf(sT0)
        for kind, off in (("o", 0), ("t", 4)):
            if kind in LOC:
                a(f"s_add_u32 s{sSTEP}, s{sWV}, {off}")
                o_offsets()
                touch(sT1, 1); touchf(sT0)
        lab("L_h_nopt")
    if k == 28:
        a(f"buffer_load_dwordx4 v[128:131], v29, {sr(R_A,4)}, s{sT4} offen")
        a(f"buffer_load_dwordx4 v[132:135], v29, {sr(R_A,4)}, s{sT4} offen offset:32")
        VM.issue("skip", 2)
    mfma32(AI, XR + 4*k, s + 4, first)
    ld1()
    if tr:
        assert not any(q[0] == jn for q in xq)
        xw(jn, k % 2)
        if k % 2: xr(jn)
    bsig()
assert len(sigd) == 4 and not lq
assert not PF
a("s_setprio 2")
srd(R_B, P_CRE, 512 * 1024)
srd(R_C, P_CIM, 512 * 1024)
srd(R_A, P_WO, 512 * 1024)
if CPOS:
    a(f"s_add_u32 s{sSYNC}, s{sSYNC}, 4")
    signal(vCNT, vONE, C_GH)
a(f"s_lshl_b32 s{sT3}, s{sG}, 16")
a(f"s_lshl_b32 s{sT1}, s{sWV}, 13")
a(f"s_add_u32 s{sT3}, s{sT3}, s{sT1}")
a(f"s_mul_i32 s{sT1}, s{sWV}, {8*RSTR}")
def row1(n, base, ore, oim):
    i, part = n // 2, n % 2
    a(f"s_add_u32 m0, s{sT1}, {L_R1 + RSTR*(32*part+i)}")
    a(f"s_add_u32 s{sT2}, s{base}, {1024*i + (oim if part else ore)}")
    dma(vL4, R_C if part else R_B, f"s{sT2}")
stamp(5)
cm("scale by coef into pair layout, local scan")
UP = 64
G0, G1 = 30, 8
def sc1(r): a(f"v_pk_mul_f32 {vr(UP+2*r,2)}, {vr(vCO,2)}, {vr(AR+(r&~1),2)} op_sel:[0,{r&1}] op_sel_hi:[1,{r&1}]")
def sc2(r): a(f"v_pk_fma_f32 {vr(UP+2*r,2)}, {vr(vCO,2)}, {vr(AI+(r&~1),2)}, {vr(UP+2*r,2)} op_sel:[1,{r&1},0] op_sel_hi:[0,{r&1},1] neg_lo:[1,0,0]")
def c1(dst, L, g, u): a(f"v_pk_fma_f32 {vr(dst,2)}, {vr(L,2)}, {vr(g,2)}, {vr(u,2)} op_sel:[0,0,0] op_sel_hi:[0,1,1]")
def c2(dst, L, g): a(f"v_pk_fma_f32 {vr(dst,2)}, {vr(L,2)}, {vr(g,2)}, {vr(dst,2)} op_sel:[1,1,0] op_sel_hi:[1,0,1] neg_lo:[1,0,0]")
sc1(0); sc1(1); sc1(2); sc2(0); sc2(1); sc2(2)
src = UP
for r in range(1, 16):
    dst = G0 if r % 2 else G1
    if r == 8 and CPOS: waitc(vCNT, C_GH, f"s{sSYNC}", 8)
    c1(dst, vL, src, UP + 2*r)
    if r < 14: sc1(r + 2)
    if r >= 8 and CPOS: row1(2*(r-8), sT3, 32768, 0)
    c2(dst, vL, src)
    if r < 14: sc2(r + 2)
    if r >= 8 and CPOS: row1(2*(r-8) + 1, sT3, 32768, 0)
    src = dst
a(f"ds_write_b64 v13, {vr(G0,2)}")
gsync(vCNT, vONE, 32, C_GH)
stamp(6)
ESR = 32
for s in range(8):
    a(f"ds_read_b64 {vr(ESR+2*s,2)}, v15 offset:{256*s}")
a(f"s_lshl_b32 s{sT6}, s{sPB}, 13")
a(f"s_add_u32 s{sT6}, s{sT6}, {WS_ST}")
a(f"s_lshl_b32 s{sT0}, s{sC}, 9")
a(f"s_add_u32 s{sT0}, s{sT0}, s{sT6}")
a(f"v_mov_b64 {vr(G0,2)}, 0")
a(f"s_mov_b32 s{sCNT}, {POLL_LIMIT}")
a("s_waitcnt lgkmcnt(0)")
a(f"v_mov_b64 {vr(G1,2)}, {vr(ESR,2)}")
for w in range(4):
    if w: cmul_add(G1, vL16_, G0, ESR + 4*w)
    if w < 3:
        a(f"s_cmp_eq_u32 s{sWV}, {w}")
        a("s_cbranch_scc1 L_h_segdone")
        cmul_add(G0, vL16_, G1, ESR + 4*w + 2)
cmul_add(48, vL16_, G1, ESR + 14)
a(f"v_mov_b32 v50, v49")
a(f"v_mov_b32 v49, s{sTAG}")
a(f"v_mov_b32 v51, s{sTAG}")
a("s_mov_b32 exec_hi, 0")
a(f"buffer_store_dwordx4 v[48:51], v14, {sr(R_WS,4)}, s{sT0} offen sc1")
a("s_mov_b64 exec, -1")
lab("L_h_segdone")
a(f"s_mov_b32 s{sM}, 0")
a(f"s_mov_b32 s{sM+1}, -1")
a(f"v_cndmask_b32 v{G0}, v{G0}, v{G1}, s[{sM}:{sM+1}]")
a(f"v_cndmask_b32 v{G0+1}, v{G0+1}, v{G1+1}, s[{sM}:{sM+1}]")
if not CPOS:
    for n in range(16): row1(n, sT3, 32768, 0); pace()
stamp(7)
cm("chunk carry: each lane gathers two predecessors' end states")
a(f"v_mov_b64 {vr(G1,2)}, 0")
a(f"s_cmp_eq_u32 s{sC}, 0")
a("s_cbranch_scc1 L_h_stskip")
lab("L_h_stpoll")
a(f"buffer_load_dwordx4 v[52:55], v{vO0}, {sr(R_WS,4)}, s{sT6} offen sc1")
a(f"buffer_load_dwordx4 v[56:59], v{vO1}, {sr(R_WS,4)}, s{sT6} offen sc1")
a("s_waitcnt vmcnt(0)")
a(f"v_cmp_ne_u32 vcc, s{sTAG}, v53")
a(f"v_cmp_ne_u32 s[{sM}:{sM+1}], s{sTAG}, v55")
a(f"s_or_b64 s[{sM}:{sM+1}], s[{sM}:{sM+1}], vcc")
a(f"v_cmp_ne_u32 vcc, s{sTAG}, v57")
a(f"s_or_b64 s[{sM}:{sM+1}], s[{sM}:{sM+1}], vcc")
a(f"v_cmp_ne_u32 vcc, s{sTAG}, v59")
a(f"s_or_b64 s[{sM}:{sM+1}], s[{sM}:{sM+1}], vcc")
a("s_cbranch_scc0 L_h_stok")
a(f"s_sub_u32 s{sCNT}, s{sCNT}, 1")
a("s_cbranch_scc0 L_h_stpoll")
lab("L_h_stok")
a(f"v_pk_mul_f32 {vr(G1,2)}, {vr(vM0,2)}, v[52:53] op_sel:[0,0] op_sel_hi:[1,0]")
a(f"v_pk_mul_f32 v[60:61], {vr(vM1,2)}, v[56:57] op_sel:[0,0] op_sel_hi:[1,0]")
a(f"v_pk_fma_f32 {vr(G1,2)}, {vr(vM0,2)}, v[54:55], {vr(G1,2)} op_sel:[1,0,0] op_sel_hi:[0,0,1] neg_lo:[1,0,0]")
a(f"v_pk_fma_f32 v[60:61], {vr(vM1,2)}, v[58:59], v[60:61] op_sel:[1,0,0] op_sel_hi:[0,0,1] neg_lo:[1,0,0]")
a(f"v_pk_add_f32 {vr(G1,2)}, {vr(G1,2)}, v[60:61]")
lab("L_h_stskip")
a(f"ds_write_b64 v13, {vr(G1,2)} offset:{L_CS - L_ES}")
a("s_waitcnt vmcnt(0)")
mfma32(YACC, 128, 104, "0")
mfma32(YACC, 132, 108)
gsync(vCNT, vONE, 32, C_GH)
for s in range(8):
    a(f"ds_read_b64 {vr(32+2*s,2)}, v15 offset:{L_CS - L_ES + 256*s}")
a(f"s_lshl_b32 s{sT0}, s{sC}, 2")
a(f"s_add_u32 s{sT0}, s{sT0}, s{sWV}")
a(f"s_lshl_b32 s{sT4}, s{sT0}, 16")
a(f"s_add_u32 s{sT4}, s{sT4}, {WS_H}")
a(f"s_lshl_b32 s{sT1}, s{sPB}, 11")
a(f"s_add_u32 s{sT1}, s{sT1}, s{sT4}")
a(f"s_add_u32 s{sT2}, s{sT1}, 32768")
a(f"s_lshl_b32 s{sT0}, s{sT0}, 11")
a(f"s_add_u32 s{sT5}, s{sT0}, {WS_FH}")
a(f"s_lshl_b32 s{sT0}, s{sPB}, 7")
a(f"s_add_u32 s{sF1}, s{sT0}, s{sT5}")
a("s_waitcnt lgkmcnt(0)")
stamp(8)
for st in (8, 4, 2):
    for j in range(0, st, 2):
        a(f"v_pk_add_f32 {vr(32+j,2)}, {vr(32+j,2)}, {vr(32+j+st,2)}")
cmul_add(G0, vPS, 32, G0)
HB = 32
cmul_add(UP, vL, G0, UP)
for r in range(1, 16):
    cmul_add(UP + 2*r, vL, UP + 2*(r-1), UP + 2*r)
for part in range(2):
    ng = "-" if part else ""
    for j in range(8):
        a(f"v_cvt_pk_bf16_f32 v{HB+8*part+j}, {ng}v{UP+4*j+part}, {ng}v{UP+4*j+2+part}")
    a(f"ds_write_b128 v16, {vr(HB+8*part,4)}")
    a(f"ds_write_b128 v16, {vr(HB+4+8*part,4)} offset:16")
    for ks in range(2):
        d = 48 + 8*part + 4*ks
        a(f"ds_read_b64_tr_b16 {vr(d,2)}, v19 offset:{1024*ks}")
        a(f"ds_read_b64_tr_b16 {vr(d+2,2)}, v19 offset:{1024*ks+256}")
KIND[0] = "h"
a(f"v_lshlrev_b32 v24, 2, v0")
a(f"v_mov_b32 v25, s{sTAG}")
def flag_novalu(soff):
    a("s_mov_b32 exec_hi, 0")
    st2([f"buffer_store_dword v25, v24, {sr(R_WS,4)}, s{soff} offen@"])
    a("s_mov_b64 exec, -1")
a("s_waitcnt lgkmcnt(0)")
st2([f"buffer_store_dwordx4 {vr(48+8*part+4*ks,4)}, v{vL4}, {sr(R_WS,4)}, s{sT1 if part == 0 else sT2} offen offset:{1024*ks}@" for part in range(2) for ks in range(2)])
a("v_and_b32 v8, 15, v0")
a("v_lshlrev_b32 v12, 7, v8")
CF = 128
LB = int(OPT.get("lb", 1))
if LB: a("s_setprio 0")
for k in range(32):
    a(f"ds_read_b128 {vr(CF+4*k,4)}, v28 offset:{32*k}")
    if k == 13:
        a("s_waitcnt vmcnt(0)")
        flag_novalu(sF1)
a(f"s_add_u32 s{sSYNC}, s{sSYNC}, 4")
signal(vCNT, vONE, C_GH)
if LB: a("s_setprio 2")
stamp(9)
def reduce_inline(RB_, b1=None, bs=None):
    b1 = RB_ + 16 if b1 is None else b1
    bs = RB_ + 32 if bs is None else bs
    Ls, Le = uid("rs"), uid("re")
    a(f"s_mul_i32 s{sT2}, s{sSTEP}, {PSTRIDE}")
    a(f"v_add_u32 v10, s{sT2}, v{vL4}")
    a(f"s_add_u32 s{sT2}, s{sT2}, {L_PART + 8192}")
    o_offsets()
    waitc(11, 0, f"s{sT2}", 8)
    a(f"ds_read_b128 {vr(bs,4)}, v10 offset:8192")
    for w in range(4):
        d = (RB_ if w < 2 else b1) + 8*(w % 2)
        a(f"ds_read_b128 {vr(d,4)}, v10 offset:{2048*w}")
        a(f"ds_read_b128 {vr(d+4,4)}, v10 offset:{2048*w + 1024}")
    a("s_waitcnt lgkmcnt(8)")
    sum_check(bs)
    a("s_waitcnt lgkmcnt(0)")
    a(f"s_cbranch_scc1 {Ls}")
    reduce_math(RB_, vL4, flag=False, b1=b1, bs=bs)
    a(f"s_branch {Le}")
    lab(Ls)
    a(f"s_mov_b32 s{sT0}, {WS_DUMMY}")
    lab(Le)
waitc(vCNT, C_GH, f"s{sSYNC}", 8)
a(f"s_mul_i32 s{sT1}, s{sWV}, {8*RSTR}")
for n in range(16): row1(n, sT3, 0, 32768); pace()
a("v_and_b32 v11, 3, v0")
a("v_lshlrev_b32 v11, 2, v11")
a(f"v_add_u32 v11, {L_PROG}, v11")
a(f"v_add_u32 v13, {(L_PART - L_R1) & 0xffffffff}, v{vWT}")
a(f"s_lshl_b32 s{sT5}, s{sYG}, 11")
a(f"s_add_u32 s{sT5}, s{sT5}, {WS_FH}")
a(f"s_lshl_b32 s{sT4}, s{sYG}, 16")
a(f"s_and_b32 s{sT1}, s{sWV}, 1")
a(f"s_lshl_b32 s{sT1}, s{sT1}, 15")
a(f"s_add_u32 s{sT4}, s{sT4}, s{sT1}")
a(f"s_add_u32 s{sT4}, s{sT4}, {WS_H}")
stamp(10)
poll(12, f"s{sT5}", 8)
stamp(11)
HR, CR, NH = 48, 96, 12
WF, OF = 48, 128
def hload(k):
    if k % 4 == 0 and k: a(f"s_add_u32 s{sT4}, s{sT4}, 4096")
    a(f"buffer_load_dwordx4 {vr(HR+4*(k%NH),4)}, v{vL4}, {sr(R_WS,4)}, s{sT4} offen offset:{1024*(k%4)} sc1")
def cread(k):
    a(f"ds_read_b128 {vr(CR+4*(k%4),4)}, v28 offset:{32*k}")
def oload(k):
    if k % 4 == 0 and k: a(f"s_add_u32 s{sT6}, s{sT6}, 4096")
    a(f"buffer_load_dwordx4 {vr(OF+4*k,4)}, v{vL4}, {sr(R_WS,4)}, s{sT6} offen offset:{1024*(k%4)} sc1")
def wo_setup():
    a(f"s_and_b32 s{sT0}, s{sWV}, 1")
    a(f"s_lshl_b32 s{sT0}, s{sT0}, 18")
    a(f"s_lshr_b32 s{sT1}, s{sWV}, 1")
    a(f"s_lshl_b32 s{sT1}, s{sT1}, 14")
    a(f"s_add_u32 s{sT0}, s{sT0}, s{sT1}")
    a(f"s_lshl_b32 s{sT1}, s{sG}, 7")
    a(f"s_add_u32 s{sT0}, s{sT0}, s{sT1}")
    a(f"s_mul_i32 s{sT1}, s{sWV}, {PSTRIDE}")
def wo_one(half, n):
    q, i = n // 2, n % 2
    a(f"s_add_u32 m0, s{sT1}, {(L_R1 if half else L_PART) + 2048*q + 1024*i}")
    a(f"s_add_u32 s{sT2}, s{sT0}, {32768*half + 65536*q + 8192*i}")
    dma(vWO, R_A, f"s{sT2}")
def wread(dst, k):
    o = PSTRIDE * ((k % 16) // 4) + 2048 * (k % 4)
    ad = 13 if k < 16 else vWT
    a(f"ds_read_b64_tr_b16 {vr(dst,2)}, v{ad} offset:{o}")
    a(f"ds_read_b64_tr_b16 {vr(dst+2,2)}, v{ad} offset:{o+1024}")
HD, CD = 11, 3
RK = int(OPT.get("rk", 25))
FK = 4
VM, LG = Cnt(), Cnt()
for k in range(HD): hload(k); VM.issue(("h", k))
a(f"s_lshl_b32 s{sT5}, s{sYG}, 12")
a(f"s_add_u32 s{sT5}, s{sT5}, {WS_FO}")
a(f"s_lshl_b32 s{sT6}, s{sYG}, 15")
a(f"s_add_u32 s{sT6}, s{sT6}, {WS_O}")
a(f"s_mov_b32 s{sSTEP}, s{sWV}")
KIND[0] = "o"
reduce_inline(32, 96, 20)
a(f"s_mov_b32 s{sF1}, s{sT0}")
gsync(vCNT, vONE, 8, C_GH)
a(f"s_setprio {YPRIO}")
for k in range(CD): cread(k); LG.issue(("c", k))
FLK = int(OPT.get("flk", 14))
oq = list(range(16))
for k in range(32):
    if k == FK:
        waits(vm=VM.need(("h", HD)))
        flag_novalu(sF1); VM.issue("f")
        wo_setup()
    if k == FLK:
        a(f"buffer_load_dword v9, v12, {sr(R_WS,4)}, s{sT5} offen sc1"); VM.issue("fl")
    if k == FLK + 5:
        waits(vm=VM.need("fl"))
        a("s_setprio 2")
        a(f"v_cmp_ne_u32 vcc, s{sTAG}, v9")
        a("s_cbranch_vccz L_y_ok")
        poll(12, f"s{sT5}", 8)
        lab("L_y_ok")
        a(f"s_setprio {YPRIO}")
    if k + HD < 32: hload(k + HD); VM.issue(("h", k + HD))
    if k + CD < 32: cread(k + CD); LG.issue(("c", k + CD))
    waits(vm=VM.need(("h", k)), lg=LG.need(("c", k)))
    mfma32(YACC, HR + 4*(k % NH), CR + 4*(k % 4))
    n = k - FK - 1
    if 0 <= n < 8: wo_one(0, n); VM.issue("wo")
    if k >= FLK + 5:
        for _ in range(2 if k + HD >= 32 else 1):
            if oq: oload(oq.pop(0)); VM.issue("o")
    mfma32(32, HR + 4*(k % NH), CF + 4*k, "0" if k == 0 else None)
assert not oq
a("s_setprio 2")
a(f"s_lshl_b32 s{sT2}, s{sWV}, 12")
a(f"s_add_u32 s{sT2}, s{sT2}, {L_R1 + 40960}")
a(f"v_add_u32 v10, s{sT2}, v{vL4}")
a("v_xor_b32 v11, 4096, v10")
assert (L_R1 + 40960) % 8192 == 0
a(f"s_lshl_b32 s{sT2}, s{sWV}, 9")
a(f"s_add_u32 s{sT2}, s{sT2}, {L_CS}")
a("v_lshlrev_b32 v8, 3, v0")
a(f"v_add_u32 v8, s{sT2}, v8")
a(f"ds_write2_b32 v8, v{vWT}, v1 offset1:1")
waits(vm=VM.need("wo"))
gsync(vCNT, vONE, 8, C_GH)
stamp(12)
for i in range(8):
    wo_one(1, i)
    if i < 4: a(f"ds_write_b128 v10, {vr(32+4*i,4)} offset:{1024*i}")
    if i == 3:
        a(f"s_add_u32 s{sSYNC}, s{sSYNC}, 4")
        signal(vCNT, vONE, C_GH)
    if 4 <= i < 7: pace()
srd(R_B, P_OUT, 2048 * 4096)
a(f"s_lshl_b32 s{sT0}, s{sYG}, 17")
a(f"s_lshl_b32 s{sT1}, s{sCG}, 7")
a(f"s_add_u32 s{sT0}, s{sT0}, s{sT1}")
def store1(b, r, off=0):
    a(f"s_add_u32 s{sT1}, s{sT0}, {4096 * (8*(r//4) + r%4)}")
    a(f"buffer_store_dword v{b+r}, v1, {sr(R_B,4)}, s{sT1} offen" + (f" offset:{off}" if off else "") + YFL)
a(f"s_mul_i32 s{sT2}, s{sWV}, {PSTRIDE}")
a(f"v_add_u32 v10, s{sT2}, v{vL4}")
a(f"s_lshl_b32 s{sT2}, s{sWV}, 2")
a(f"v_add_u32 v9, s{sT2}, v{vCNT}")
waitc(vCNT, C_GH, f"s{sSYNC}", 8)
for i in range(4):
    a(f"ds_read_b128 {vr(192+4*i,4)}, v11 offset:{1024*i}")
YL = OPT.get("ylate") == "1"
def ystores():
    for j in range(8):
        a(f"v_pk_add_f32 {vr(YACC+2*j,2)}, {vr(YACC+2*j,2)}, {vr(192+2*j,2)}")
        store1(YACC, 2*j, 2048)
        store1(YACC, 2*j + 1, 2048)
if LB: a("s_setprio 0")
for k in range(16): wread(WF + 4*k, k)
if LB: a("s_setprio 2")
a(f"s_waitcnt vmcnt(0) lgkmcnt(15)")
a(f"s_add_u32 s{sSYNC}, s{sSYNC}, 4")
signal(vCNT, vONE, C_GH)
for j in range(8):
    a(f"v_pk_add_f32 {vr(YACC+2*j,2)}, {vr(YACC+2*j,2)}, {vr(192+2*j,2)}")
a(f"s_waitcnt lgkmcnt(0)")
stamp(14)
a("s_setprio 0")
for k in range(16):
    mfma32(32, OF + 4*k, WF + 4*k, "0" if k == 0 else None)
    store1(YACC, k, 2048)
nsync = sum(1 for n in ("HQ", "H") for x in SECS[n] if x.strip() == f"s_add_u32 s{sSYNC}, s{sSYNC}, 4")
SECS["P"].insert(0, f".set NSYNC_B2, {4*nsync}")
a("s_setprio 2")
waitc(vCNT, C_GH, f"s{sSYNC}", 8)
a("s_nop 6")
for i in range(4):
    a(f"ds_write_b128 v10, {vr(32+4*i,4)} offset:{1024*i}")
a(f"ds_write_b32 v9, v{vONE} offset:{C_HA}")
stamp(13)
if YL:
    waitc(vCNT, C_S, 4, 8, sleep=1)
    ystores()
a("s_branch L_end")

lab("L_slow")
a("s_waitcnt lgkmcnt(0)")
a(f"s_mov_b32 s{sKIND}, 0")
a(f"s_lshl_b32 s{sT0}, s{sSTEP}, 10")
a(f"s_add_u32 s{sT0}, s{sT0}, {L_QF}")
a(f"v_add_u32 v4, s{sT0}, v14")
a(f"ds_read_b128 {vr(vQ,4)}, v4")
a("v_mov_b32 v4, 0xff800000")
a("v_lshrrev_b32 v16, 5, v0")
a("v_and_b32 v17, 15, v0")
a("v_lshl_add_u32 v15, v16, 4, v17")
a("v_lshlrev_b32 v15, 4, v15")
a(f"s_mov_b32 s{sM}, 0xffff")
a(f"s_mov_b32 s{sM+1}, 0xffff")
a(f"s_mov_b32 s{sT0}, {WS_KV}")
lab("L_slow_p1")
kvload(0)
a("s_waitcnt vmcnt(0) lgkmcnt(0)")
for t in range(2):
    qk(S0, t)
    a("s_nop 11")
    for i in range(8):
        a(f"v_max3_f32 v4, v{S0+2*i}, v{S0+2*i+1}, v4")
a(f"s_cmp_lt_u32 s{sT0}, {WS_KV + 131072}")
a("s_cbranch_scc1 L_slow_p1")
a("v_mov_b32 v5, v4")
a("s_nop 1")
a("v_permlane32_swap_b32 v4, v5")
a("v_max_f32 v4, v4, v5")
for i in range(16):
    a(f"v_sub_f32 v{S1+i}, 0, v4")
zeroO()
a(f"s_mov_b32 s{sT0}, {WS_KV}")
lab("L_slow_p2")
kvload(0)
a("s_waitcnt vmcnt(0)")
for t in range(2):
    mfma32(S0, K_(t), vQ, vr(S1, 16))
    a("s_nop 11")
    exs(S0, 0, 16)
    a("s_nop 1")
    smf(V1(t), S0)
    smf(V2(t), S0 + 8)
a(f"s_cmp_lt_u32 s{sT0}, {WS_KV + 131072}")
a("s_cbranch_scc1 L_slow_p2")
o_offsets()
a(f"v_rcp_f32 v4, v{vO+8}")
a("s_nop 0")
for j in range(4):
    a(f"v_pk_mul_f32 {vr(vO+2*j,2)}, {vr(vO+2*j,2)}, v[4:5] op_sel_hi:[1,0]")
for j in range(4):
    a(f"v_cvt_pk_bf16_f32 v{16+j}, v{vO+2*j}, v{vO+2*j+1}")
a(f"buffer_store_dwordx4 v[16:19], v14, {sr(R_WS,4)}, s{sT1} offen sc1")
a("s_waitcnt vmcnt(0)")
setflag(16, 17, sT0)
a("v_and_b32 v15, 15, v0")
a("v_lshlrev_b32 v15, 7, v15")
a("v_lshlrev_b32 v7, 3, v0")
a(f"v_add_u32 v7, s{sT5}, v7")
a(f"s_lshl_b32 s{sT0}, s{sWV}, 2")
a(f"v_add_u32 v10, s{sT0}, v{vCA}")
a(f"s_cmp_lt_u32 s{sSTEP}, 4")
a("s_cbranch_scc1 L_a_ok2")
a("ds_read_b128 v[56:59], v6 offset:8192")
a("s_waitcnt lgkmcnt(0)")
a("s_branch L_a_ok1")
lab("L_a_bad1")
a("s_waitcnt lgkmcnt(0)")
a(f"s_sub_u32 s{sSTEP}, 7, s{sWV}")
a("s_branch L_slow")
lab("L_a_bad2")
a(f"s_mov_b32 s{sSTEP}, s{sWV}")
a("s_branch L_slow")

lab("L_end")
ROLE[0] = "E"
if PROBE:
    a("s_waitcnt vmcnt(0)")
    stamp(15)
    a(f"s_cmp_ge_u32 s{sW}, 4")
    a(f"s_cbranch_scc{0 if PROBE[0] == 'A' else 1} L_exit")
    a(f"s_cmp_eq_u32 s{80+int(PROBE[1])}, 0")
    a("s_cbranch_scc1 L_exit")
    a(f"s_sub_u32 s{sT0}, s{80+int(PROBE[1])}, s{80+int(PROBE[2])}")
    if OPT.get("pmode"):
        a(f"s_cmp_eq_u32 s{sMODE}, 1")
        a(f"s_cselect_b32 s{sT0}, 0, 1000")
    a(f"s_min_u32 s{sT0}, s{sT0}, 10000")
    a(f"s_lshl_b32 s{sT0}, s{sT0}, 1")
    a(f"s_memrealtime s[{sST}:{sST+1}]")
    a("s_waitcnt lgkmcnt(0)")
    a(f"s_mov_b32 s{sT1}, s{sST}")
    lab("L_probe")
    a(f"s_memrealtime s[{sST}:{sST+1}]")
    a("s_waitcnt lgkmcnt(0)")
    a(f"s_sub_u32 s{sT2}, s{sST}, s{sT1}")
    a(f"s_cmp_lt_u32 s{sT2}, s{sT0}")
    a("s_cbranch_scc1 L_probe")
elif STAMPS:
    a("s_waitcnt vmcnt(0)")
    stamp(15)
    a(f"s_lshl_b32 s{sT0}, s2, 3")
    a(f"s_xor_b32 s{sT1}, s{sW}, 4")
    a(f"s_add_u32 s{sT0}, s{sT0}, s{sT1}")
    a(f"s_lshl_b32 s{sT0}, s{sT0}, 6")
    a(f"s_add_u32 s{sT0}, s{sT0}, {WS_STAMP}")
    for i in range(16): a(f"v_mov_b32 v{16+i}, s{80+i}")
    a("v_mov_b32 v0, 0")
    a("s_mov_b64 exec, 1")
    for i in range(4):
        a(f"buffer_store_dwordx4 {vr(16+4*i,4)}, v0, {sr(R_WS,4)}, s{sT0} offen offset:{16*i}")
lab("L_exit")
a("s_endpgm")

hdr = open("cdna_kernels/" + NAME + ".s.ref").read().split("; Override launch")[0]
src = hdr + f"; @launch grid=(256,1,1) block=(512,1,1) lds={LDS_BYTES}\n" + f""".amdgcn_target "amdgcn-amd-amdhsa--gfx950"
.text
.globl {NAME}_kernel
.p2align 8
.type {NAME}_kernel,@function
{NAME}_kernel:
""" + "\n".join(x for n in ("P", "AL", "HQ", "Z", "A", "H") for x in SECS[n]) + f"""
.section .rodata,"a"
.p2align 6
.amdhsa_kernel {NAME}_kernel
  .amdhsa_next_free_vgpr 256
  .amdhsa_next_free_sgpr 102
  .amdhsa_accum_offset 256
  .amdhsa_group_segment_fixed_size 0
  .amdhsa_kernarg_size 136
  .amdhsa_user_sgpr_count 2
  .amdhsa_user_sgpr_kernarg_segment_ptr 1
  .amdhsa_system_sgpr_workgroup_id_x 1
.end_amdhsa_kernel
"""
open(OUT, "w").write(src)
```

```python
import sys, math, struct
NAME = "concat_heads__grouped_kv_mqa__ssm_conv_s5__prompt"
STAMPS = "--stamps" in sys.argv
OPT = dict(a.lstrip("-").split("=") for a in sys.argv[1:] if a.startswith("--") and "=" in a)
OUT = [a for a in sys.argv[1:] if not a.startswith("--")][0]
OUTFL = OPT.get("outfl", "nt").replace(",", " ")
if OUTFL: OUTFL = " " + OUTFL
YFL = OPT.get("yfl", "nt").replace(",", " ")
if YFL: YFL = " " + YFL

def f32(x): return "0x%08x" % struct.unpack("<I", struct.pack("<f", x))[0]

FSH = int(OPT.get('fsh', 6))
WS_O2 = 0x300000
C_HA = 48
WS_DUMMY = 0x800
WS_FKV = 0x1000
WS_FH  = 0x20000
WS_FO  = 0x80000
WS_KV  = 0x40000
WS_ST  = 0x60000
WS_O   = 0x100000
WS_H   = 0x400000
WS_SLOW = 0x800000
WS_STAMP = 15 << 20
WS_SIZE = 16 << 20
L_XA, L_WQ, L_KVP, L_WKV = 0, 65536, 131072, 140288
L_PART, L_R1, L_SCR, L_ES, L_QF, L_PROG, L_CNT = 0, 73728, 140288, 148480, 150528, 158720, 159744
L_MAX = 159808
L_CS = 160832

LDS_BYTES = 163840
PSTRIDE = 9216
RSTR = 1040
POLL_LIMIT = 400000
C_A1, C_H1, C_H2, C_A3, C_A4, C_GA, C_GH, C_TAG, C_H3, C_S, C_H0, C_DONE = 0, 4, 8, 12, 16, 20, 24, 28, 32, 36, 40, 44

SECS = {}
class _L:
    cur = None
    def append(self, x): SECS[_L.cur].append(x)
lines = _L()
def sec(n):
    SECS.setdefault(n, []); _L.cur = n
sec("P")
def a(s): lines.append("    " + s)
def lab(s): lines.append(s + ":")
def cm(s): lines.append("    ; " + s)
_uid = [0]
def uid(p):
    _uid[0] += 1
    return f"L_{p}{_uid[0]}"
def vr(b, n): return f"v[{b}:{b+n-1}]"
def sr(b, n): return f"s[{b}:{b+n-1}]"

sW, sTAG, sRB, sG, sC, sPB = 3, 4, 5, 6, 7, 8
sT0, sT1, sT2, sT3, sT4, sCNT = 9, 10, 11, 12, 13, 14
sWV = 15
P_AX, P_WQ, P_WK, P_WV, P_WO, P_BX, P_LRE, P_LIM = 16, 18, 20, 22, 24, 26, 28, 30
P_BRE, P_BIM, P_CRE, P_CIM, P_LDT, P_DSK, P_OUT, P_DBG = 32, 34, 36, 38, 40, 42, 44, 46
P_WS = 48
sT5, sT6 = 50, 51
R_WS, R_A, R_B, R_C = 52, 56, 60, 64
sM = 68
sGRP, sKIND, sSTEP, sSYNC = 70, 71, 72, 73
sRET = 74
sST = 76
sLO, sHI = 78, 79
sROT = sSTEP
sF1, sF2 = 0, 1
sYG, sCG, sPC = 96, 97, 98
sGY, sYY = 100, 101
YM = int(OPT.get('ymap', 0))
sMODE = sGRP
C_MODE = C_DONE
LFL = OPT.get('lfl', '').replace(',', ' ')
if LFL: LFL = ' ' + LFL

def srd(dst, ptr, nbytes):
    a(f"s_mov_b32 s{dst}, s{ptr}")
    a(f"s_and_b32 s{dst+1}, s{ptr+1}, 0xffff")
    a(f"s_mov_b32 s{dst+2}, {nbytes}")
    a(f"s_mov_b32 s{dst+3}, 0x20000")

PROBE = OPT.get("probe")
ROLE = ["?"]
if PROBE:
    PROBE = PROBE.split(","); STAMPS = True
def stamp(i, ins="s_memrealtime"):
    if PROBE and not (ins == "s_memrealtime" and (ROLE[0] in (PROBE[0], "E")) and str(i) in PROBE[1:]): return
    if OPT.get("dbg") == "steps" and ROLE[0] == "A" and i < 10: return
    if OPT.get("sel") and ROLE[0] != "E" and f"{ROLE[0]}{i}" not in OPT["sel"].split(","): return
    if STAMPS:
        a(f"{ins} s[{sST}:{sST+1}]")
        a("s_waitcnt lgkmcnt(0)")
        a(f"s_mov_b32 s{80+i}, s{sST}")
def cstamp(i): stamp(i, "s_memtime")
DBG = OPT.get("dbg", "")
def dstamp(name, i):
    if DBG == name: stamp(i)
_stamp0 = stamp


def dma(voff, srdr, soff, imm=0):
    o = f" offset:{imm}" if imm else ""
    a(f"buffer_load_dwordx4 v{voff}, {sr(srdr,4)}, {soff} offen{o} lds")

PACE = int(OPT.get("pace", 24))
def pace():
    n = PACE
    while n > 0:
        a(f"s_nop {min(n, 16) - 1}"); n -= 16

def poll(voff, soff, vt, sleep=0, fl=" sc1"):
    L, D = uid("poll"), uid("pdone")
    a(f"s_mov_b32 s{sCNT}, {POLL_LIMIT}")
    lab(L)
    a(f"buffer_load_dword v{vt}, v{voff}, {sr(R_WS,4)}, {soff} offen{fl}")
    a("s_waitcnt vmcnt(0)")
    a(f"v_cmp_ne_u32 vcc, s{sTAG}, v{vt}")
    a(f"s_cbranch_vccz {D}")
    if sleep: a(f"s_sleep {sleep}")
    a(f"s_sub_u32 s{sCNT}, s{sCNT}, 1")
    a(f"s_cbranch_scc0 {L}")
    lab(D)

def setflag(vt0, vt1, soff):
    a(f"v_mov_b32 v{vt0}, 0")
    a(f"v_mov_b32 v{vt1}, s{sTAG}")
    a("s_mov_b64 exec, 1")
    a(f"buffer_store_dword v{vt1}, v{vt0}, {sr(R_WS,4)}, s{soff} offen sc1")
    a("s_mov_b64 exec, -1")

LOC = OPT.get("loc", "t")
KIND = ["t"]
assert not (YM and "h" in LOC)
def st2(instrs):
    if KIND[0] not in LOC:
        for x in instrs: a(x.replace("@", " sc1"))
        return
    L, E = uid("sl"), uid("se")
    a(f"s_cmp_eq_u32 s{sMODE}, 1")
    a(f"s_cbranch_scc1 {L}")
    for x in instrs: a(x.replace("@", " sc1"))
    a(f"s_branch {E}")
    lab(L)
    for x in instrs: a(x.replace("@", LFL))
    lab(E)

def spf(spec):
    for ptr, lines, first, cnt in spec:
        a(f"s_lshl2_add_u32 s{sRET}, s2, s{sWV}")
        a(f"s_mul_i32 s{sRET}, s{sRET}, {128*lines}")
        a(f"s_add_u32 s{sRET}, s{sRET}, s{ptr}")
        a(f"s_addc_u32 s{sRET+1}, s{ptr+1}, 0")
        for i in range(first, first + cnt):
            a(f"s_load_dword s{sST}, s[{sRET}:{sRET+1}], {128*i}")

def signal(vcnt, vone, off):
    a("s_mov_b64 exec, 1")
    a(f"ds_add_u32 v{vcnt}, v{vone} offset:{off}")
    a("s_mov_b64 exec, -1")

HSL = int(OPT.get("hsl", 0))
def waitc(vcnt, off, target, vt, sleep=0):
    L = uid("wc")
    if ROLE[0] == "H" and _L.cur == "H": sleep = max(sleep, HSL)
    if sleep:
        L2 = uid("wd")
        a(f"s_branch {L2}")
    lab(L)
    if sleep:
        a(f"s_sleep {sleep}")
        lab(L2)
    a(f"ds_read_b32 v{vt}, v{vcnt} offset:{off}")
    a("s_waitcnt lgkmcnt(0)")
    a(f"v_cmp_gt_u32 vcc, {target}, v{vt}")
    a(f"s_cbranch_vccnz {L}")

def gsync(vcnt, vone, vt, off):
    a("s_waitcnt lgkmcnt(0)")
    a(f"s_add_u32 s{sSYNC}, s{sSYNC}, 4")
    signal(vcnt, vone, off)
    waitc(vcnt, off, f"s{sSYNC}", vt)

def mfma32(d, x, y, c=None):
    c = vr(d, 16) if c is None else c
    a(f"v_mfma_f32_32x32x16_bf16 {vr(d,16)}, {vr(x,4)}, {vr(y,4)}, {c}")

def cmul_add(dst, L, g, u):
    a(f"v_pk_fma_f32 {vr(dst,2)}, {vr(L,2)}, {vr(g,2)}, {vr(u,2)} op_sel:[0,0,0] op_sel_hi:[0,1,1]")
    a(f"v_pk_fma_f32 {vr(dst,2)}, {vr(L,2)}, {vr(g,2)}, {vr(dst,2)} op_sel:[1,1,0] op_sel_hi:[1,0,1] neg_lo:[1,0,0]")

def cmul(dst, x, y):
    a(f"v_pk_mul_f32 {vr(dst,2)}, {vr(x,2)}, {vr(y,2)} op_sel:[0,0] op_sel_hi:[0,1]")
    a(f"v_pk_fma_f32 {vr(dst,2)}, {vr(x,2)}, {vr(y,2)}, {vr(dst,2)} op_sel:[1,1,0] op_sel_hi:[1,0,1] neg_lo:[1,0,0]")

def csq(dst, src, t):
    a(f"v_mul_f32 v{t}, v{src+1}, v{src+1}")
    a(f"v_add_f32 v{t+1}, v{src}, v{src}")
    a(f"v_fma_f32 v{dst}, v{src}, v{src}, -v{t}")
    a(f"v_mul_f32 v{dst+1}, v{t+1}, v{src+1}")

def xvoffsets(XO, t0):
    a(f"v_lshrrev_b32 v{t0}, 4, v0")
    a(f"v_and_b32 v{t0+1}, 15, v0")
    for i in range(4):
        a(f"v_add_u32 v{t0+2}, {4*i}, v{t0}")
        a(f"v_xor_b32 v{t0+3}, v{t0+1}, v{t0+2}")
        a(f"v_lshlrev_b32 v{t0+3}, 4, v{t0+3}")
        a(f"v_lshl_add_u32 v{XO+i}, v{t0+2}, 10, v{t0+3}")

def wtr_addr(dst, hhshift, base, t):
    a(f"v_bfe_u32 v{t}, v0, 2, 2")
    a(f"v_bfe_u32 v{t+1}, v0, 4, 1")
    a(f"v_bfe_u32 v{t+2}, v0, 1, 1")
    a(f"v_lshl_add_u32 v{t+1}, v{t+1}, 1, v{t+2}")
    a(f"s_and_b32 s{sT0}, s{sWV}, 1")
    a(f"s_lshl_b32 s{sT0}, s{sT0}, 2")
    a(f"v_add_u32 v{t+1}, s{sT0}, v{t+1}")
    a(f"v_bfe_u32 v{t+2}, v0, 3, 1")
    a(f"v_lshlrev_b32 v{t+2}, 2, v{t+2}")
    a(f"v_xor_b32 v{t+1}, v{t+1}, v{t+2}")
    a(f"v_lshlrev_b32 v{t+1}, 4, v{t+1}")
    a(f"v_lshl_add_u32 v{t+1}, v{t}, 7, v{t+1}")
    a(f"v_and_b32 v{t+2}, 1, v0")
    a(f"v_lshl_add_u32 v{t+1}, v{t+2}, 3, v{t+1}")
    a(f"v_lshrrev_b32 v{t+2}, 5, v0")
    a(f"v_lshl_add_u32 v{t+1}, v{t+2}, {hhshift}, v{t+1}")
    a(f"v_add_u32 v{dst}, {base}, v{t+1}")

def o_offsets():
    a(f"s_and_b32 s{sT0}, s{sSTEP}, 1")
    a(f"s_lshl_b32 s{sT1}, s{sRB}, 1")
    a(f"s_add_u32 s{sT0}, s{sT0}, s{sT1}")
    a(f"s_lshl_b32 s{sT0}, s{sT0}, 2")
    a(f"s_lshr_b32 s{sT1}, s{sSTEP}, 1")
    a(f"s_add_u32 s{sT0}, s{sT0}, s{sT1}")
    a(f"s_lshl_b32 s{sT0}, s{sT0}, 3")
    a(f"s_add_u32 s{sT0}, s{sT0}, s{sG}")
    a(f"s_lshl_b32 s{sT1}, s{sT0}, 10")
    a(f"s_add_u32 s{sT1}, s{sT1}, {WS_O}")
    a(f"s_lshl_b32 s{sT0}, s{sT0}, 7")
    a(f"s_add_u32 s{sT0}, s{sT0}, {WS_FO}")

def sum_check(b):
    a(f"v_pk_add_f32 {vr(b,2)}, {vr(b,2)}, {vr(b+2,2)}")
    a(f"v_add_f32 v{b}, v{b}, v{b+1}")
    a(f"v_cmp_nle_f32 vcc, s{sLO}, v{b}")
    a(f"v_cmp_nge_f32 s[{sM}:{sM+1}], s{sHI}, v{b}")
    a(f"s_or_b64 vcc, vcc, s[{sM}:{sM+1}]")

def reduce_math(b, vl16, flag=True, tagged=False, b1=None, bs=None):
    b1 = b + 16 if b1 is None else b1
    bs = b + 32 if bs is None else bs
    a(f"v_rcp_f32 v{bs+2}, v{bs}")
    for j in range(4):
        a(f"v_pk_add_f32 {vr(b+2*j,2)}, {vr(b+2*j,2)}, {vr(b+8+2*j,2)}")
    for j in range(4):
        a(f"v_pk_add_f32 {vr(b1+2*j,2)}, {vr(b1+2*j,2)}, {vr(b1+8+2*j,2)}")
    for j in range(4):
        a(f"v_pk_add_f32 {vr(b+2*j,2)}, {vr(b+2*j,2)}, {vr(b1+2*j,2)}")
    for j in range(4):
        a(f"v_pk_mul_f32 {vr(b+2*j,2)}, {vr(b+2*j,2)}, {vr(bs+2,2)} op_sel_hi:[1,0]")
    for j in range(4):
        a(f"v_cvt_pk_bf16_f32 v{b+8+j}, v{b+2*j}, v{b+2*j+1}")
    if not flag:
        st2([f"buffer_store_dwordx4 {vr(b+8,4)}, v{vl16}, {sr(R_WS,4)}, s{sT1} offen@"])
        return
    a(f"buffer_store_dwordx4 {vr(b+8,4)}, v{vl16}, {sr(R_WS,4)}, s{sT1} offen sc1")
    a("s_waitcnt vmcnt(0)")
    setflag(b, b + 1, sT0)

STG3 = 1
LOG2E = 1.4426950408889634
L_LO, L_HI = 2.0 ** -60, 2.0 ** 60


class Cnt:
    def __init__(s): s.q = []
    def issue(s, tag, n=1): s.q += [tag] * n
    def need(s, tag):
        if tag not in s.q: return None
        i = len(s.q) - 1 - s.q[::-1].index(tag)
        n = len(s.q) - 1 - i
        s.q = s.q[i + 1:]
        return n
def waits(vm=None, lg=None):
    p = []
    if vm is not None: p.append(f"vmcnt({min(vm,63)})")
    if lg is not None: p.append(f"lgkmcnt({min(lg,15)})")
    if p: a("s_waitcnt " + " ".join(p))

a("s_cmp_ge_u32 s2, 256")
a("s_cbranch_scc1 L_exit")
a(f"s_load_dwordx16 s[16:31], s[0:1], 0")
a(f"s_load_dwordx16 s[32:47], s[0:1], 64")
a(f"s_load_dwordx2 s[48:49], s[0:1], 128")
if STAMPS:
    for i in range(16): a(f"s_mov_b32 s{80+i}, 0")
    a("s_memrealtime s[80:81]")
    a("s_memtime s[92:93]")
a("v_lshrrev_b32 v1, 6, v0")
a("v_and_b32 v0, 63, v0")
a(f"v_readfirstlane_b32 s{sW}, v1")
a("v_lshlrev_b32 v6, 4, v0")
a("v_lshrrev_b32 v12, 4, v0")
a("v_and_b32 v13, 15, v0")
a(f"s_and_b32 s{sT0}, s2, 7")
a(f"s_lshr_b32 s{sT1}, s2, 3")
a(f"s_and_b32 s{sT2}, s{sT1}, 3")
a(f"s_lshl_b32 s{sRB}, s{sT0}, 2")
a(f"s_add_u32 s{sRB}, s{sRB}, s{sT2}")
a(f"s_lshr_b32 s{sG}, s{sT1}, 2")
a(f"s_and_b32 s{sGRP}, s{sG}, 3")
a(f"s_and_b32 s{sWV}, s{sW}, 3")
a(f"s_add_u32 s{sROT}, s{sG}, s{sRB}" if OPT.get("rot", "0") == "1" else f"s_mov_b32 s{sROT}, 0")
a(f"s_mov_b32 s{R_A+2}, {2048*1024}")
a(f"s_mov_b32 s{R_A+3}, 0x20000")
a(f"s_mov_b32 s{R_B+3}, 0x20000")
a(f"s_cmp_ge_u32 s{sW}, 4")
a("s_cbranch_scc1 L_attn")

vL, vL16_, vL8, vCO = 20, 22, 24, 26
vCNT, vONE, vWT, vRB, vL4, vWO = 2, 3, 4, 5, 6, 7
a("s_setprio 3")
for i in range(4):
    a(f"v_add_u32 v14, {4*i}, v12")
    a(f"v_xor_b32 v15, v13, v14")
    a(f"v_lshlrev_b32 v15, 4, v15")
    a(f"v_lshl_add_u32 v{16+i}, v14, 10, v15")
if OPT.get("map", "0" if "h" in LOC else "1") == "0":
    a(f"s_and_b32 s{sT2}, s{sT1}, 1")
    a(f"s_lshl_b32 s{sC}, s{sT0}, 1")
    a(f"s_add_u32 s{sC}, s{sC}, s{sT2}")
    a(f"s_lshr_b32 s{sPB}, s{sT1}, 1")
else:
    a(f"s_and_b32 s{sC}, s{sT0}, 6")
    a(f"s_lshl_b32 s{sC}, s{sC}, 1")
    a(f"s_add_u32 s{sC}, s{sC}, s{sT2}")
    a(f"s_and_b32 s{sPB}, s{sT0}, 1")
    a(f"s_lshl_b32 s{sPB}, s{sPB}, 3")
    a(f"s_add_u32 s{sPB}, s{sPB}, s{sG}")
a(f"s_lshr_b32 s{sKIND}, s{sG}, 2")
a(f"s_lshl_b32 s{sT3}, s{sPB}, 5")
a("v_and_b32 v38, 31, v0")
a(f"v_add_lshl_u32 v37, v38, s{sT3}, 1")
if YM:
    a(f"s_and_b32 s{sGY}, s{sRB}, 7")
else:
    a(f"s_mov_b32 s{sGY}, s{sG}")
a(f"s_and_b32 s{sT3}, s{sWV}, 1")
a(f"s_lshl1_add_u32 s{sT3}, s{sGY}, s{sT3}")
a(f"s_lshl_b32 s{sT3}, s{sT3}, 5")
a(f"v_add_lshl_u32 v38, v38, s{sT3}, 1")
a(f"s_add_u32 s{sT3}, s{sROT}, s{sWV}")
a(f"s_and_b32 s{sT3}, s{sT3}, 3")
a(f"s_lshl_b32 s{sT0}, s{sRB}, 16")
a(f"s_lshl_b32 s{sT1}, s{sGRP}, 14")
a(f"s_add_u32 s{sT0}, s{sT0}, s{sT1}")
a(f"s_lshl_b32 s{sT1}, s{sT3}, 8")
a(f"s_add_u32 s{sT0}, s{sT0}, s{sT1}")
a(f"s_lshl_b32 s{sT2}, s{sGRP}, 12")
a(f"s_lshl_b32 s{sT1}, s{sWV}, 14")
a(f"s_add_u32 s{sT2}, s{sT2}, s{sT1}")
a(f"s_lshl_b32 s{sT3}, s{sT3}, 12")
a(f"s_lshl_b32 s{sT4}, s{sWV}, 12")
a(f"s_add_u32 s{sT4}, s{sT4}, {L_WKV}")
a(f"s_mov_b32 s{R_B+2}, 16384")
a(f"s_mov_b32 m0, s{sT2}")
a(f"s_cmp_eq_u32 s{sKIND}, 0")
a("s_waitcnt lgkmcnt(0)")
a(f"s_cselect_b32 s{R_B}, s{P_WK}, s{P_WV}")
a(f"s_cselect_b32 s{R_B+1}, s{P_WK+1}, s{P_WV+1}")
a(f"s_mov_b32 s{R_A}, s{P_AX}")
a(f"s_and_b32 s{R_A+1}, s{P_AX+1}, 0xffff")
a(f"s_and_b32 s{R_B+1}, s{R_B+1}, 0xffff")
for i in range(4):
    dma(16 + i, R_A, f"s{sT0}")
    a(f"s_add_u32 m0, s{sT2}, {1024*(i+1)}" if i < 3 else f"s_mov_b32 m0, s{sT4}")
    a("s_nop 0")
for i in range(4):
    dma(6, R_B, f"s{sT3}", imm=1024 * i)
p0, p1, p2, vDSK = 60, 61, 62, 63
a(f"global_load_ushort v{p0}, v37, s[{P_LRE}:{P_LRE+1}]")
a(f"global_load_ushort v{p1}, v37, s[{P_LIM}:{P_LIM+1}]")
a(f"global_load_ushort v{p2}, v37, s[{P_LDT}:{P_LDT+1}]")
a(f"global_load_ushort v{vDSK}, v38, s[{P_DSK}:{P_DSK+1}]")
a(f"s_load_dword s{sTAG}, s[{P_WS}:{P_WS+1}], 0")
a("s_barrier")

sec("AL")
lab("L_attn"); ROLE[0] = "A"
cm("pull the kernel's code towards this XCD's L2")
a(f"s_getpc_b64 s[{sM}:{sM+1}]")
lab("L_pc")
a(f"s_sub_u32 s{sM}, s{sM}, L_pc - {NAME}_kernel")
a(f"s_subb_u32 s{sM+1}, s{sM+1}, 0")
SPF = int(OPT.get("spf", 0))
if SPF:
    a(f"s_lshl_b32 s{sT3}, s{sWV}, 7")
    a(f"s_add_u32 s{sRET}, s{sM}, s{sT3}")
    a(f"s_addc_u32 s{sRET+1}, s{sM+1}, 0")
    for i in range(SPF):
        a(f"s_load_dword s{sCNT}, s[{sRET}:{sRET+1}], {512*i + 256}")
a(f"s_lshl_b32 s{sT2}, s{sT2}, 2")
a(f"s_add_u32 s{sT2}, s{sT2}, s{sWV}")
a(f"s_mul_i32 s{sT2}, s{sT2}, 1408")
a("v_lshlrev_b32 v32, 7, v0")
a("v_min_u32 v32, 1280, v32")
a(f"v_add_u32 v32, s{sT2}, v32")
a(f"v_min_u32 v32, L_slow - {NAME}_kernel, v32")
CPF = int(OPT.get("cpf", 1))
if CPF == 0: a(f"global_load_dword v33, v32, s[{sM}:{sM+1}]")
vIDX, vZ, vAD, vAS, vAQ, vPG, vQ = 1, 2, 4, 5, 6, 7, 8
vCA, vONEA = 12, 13
S0, S1, vO, KV = 16, 32, 48, 64
cm("zero sync counters + progress words")
a("v_mov_b32 v2, 0")
a("v_mov_b32 v3, 0")
a("v_mov_b32 v4, 0")
a("v_mov_b32 v5, 0")
a(f"v_add_u32 v7, {L_PROG}, v6")
a("ds_write_b128 v7, v[2:5]")
a("ds_write_b128 v7, v[2:5] offset:1024")
a(f"v_lshl_add_u32 v14, s{sWV}, 2, v12")
a("v_xor_b32 v15, v13, v14")
a("v_lshlrev_b32 v15, 4, v15")
a("v_lshl_add_u32 v16, v14, 10, v15")
def wo_voff(dst, t):
    a(f"v_lshrrev_b32 v{t}, 3, v0")
    a(f"v_and_b32 v{t+1}, 7, v0")
    a(f"v_lshrrev_b32 v{t+2}, 2, v0")
    a(f"v_and_b32 v{t+2}, 4, v{t+2}")
    a(f"v_xor_b32 v{t+1}, v{t+1}, v{t+2}")
    a(f"v_lshlrev_b32 v{t+1}, 4, v{t+1}")
    a(f"v_lshl_add_u32 v{dst}, v{t}, 10, v{t+1}")
wo_voff(17, 20)
def wslice_setup():
    a(f"s_lshl_b32 s{sT0}, s{sG}, 7")
    a(f"s_lshl_b32 s{sT1}, s{sWV}, 15")
    a(f"s_add_u32 s{sT0}, s{sT0}, s{sT1}")
    a(f"s_lshl_b32 s{sT1}, s{sWV}, 12")
wslice_setup()
a(f"s_lshl_b32 s{sT4}, s{sRB}, 16")
a(f"s_lshl_b32 s{sT5}, s{sWV}, 10")
for m in range(1, 4):
    a(f"s_add_u32 s{sT2}, s{sGRP}, {m}")
    a(f"s_and_b32 s{sT2}, s{sT2}, 3")
    a(f"s_lshl_b32 s{sT3}, s{sT2}, 14")
    a(f"s_add_u32 s{95+m}, s{sT3}, s{sT4}")
    a(f"s_lshl_b32 s{sT3}, s{sT2}, 12")
    a(f"s_add_u32 s{98+m}, s{sT3}, s{sT5}")
a(f"s_mov_b32 s{R_B+2}, {512*1024}")
a(f"v_mov_b32 v{vCA}, {L_CNT}")
a(f"v_mov_b32 v{vONEA}, 1")
a("s_waitcnt lgkmcnt(0)")
a(f"s_mov_b32 s{R_A}, s{P_AX}")
a(f"s_and_b32 s{R_A+1}, s{P_AX+1}, 0xffff")
a(f"s_mov_b32 s{R_B}, s{P_WQ}")
a(f"s_and_b32 s{R_B+1}, s{P_WQ+1}, 0xffff")
if STAMPS:
    a("s_mov_b32 s81, 0")
    a("s_mov_b32 s93, 0")
a("s_barrier")
def qops(sl):
    a(f"s_add_u32 s{sT3}, s{sROT}, {sl}")
    a(f"s_and_b32 s{sT3}, s{sT3}, 3")
    a(f"s_lshl_b32 s{sT4}, s{sT3}, 8")
    a(f"s_lshl_b32 s{sT3}, s{sT3}, 17")
    a(f"s_add_u32 s{sT3}, s{sT3}, s{sT0}")
    for m in range(1, 4):
        a(f"s_add_u32 m0, s{98+m}, {L_XA + 16384*sl}")
        a(f"s_add_u32 s{sT2}, s{95+m}, s{sT4}")
        dma(16, R_A, f"s{sT2}")
    for i in range(4):
        a(f"s_add_u32 m0, s{sT1}, {L_WQ + 16384*sl + 1024*i}")
        a(f"s_add_u32 s{sT2}, s{sT3}, {8192*i}")
        dma(17, R_B, f"s{sT2}")
if CPF == 1: a(f"global_load_dword v33, v32, s[{sM}:{sM+1}]")
QW = int(OPT.get("qw", 0))
for sl in range(QW): qops(sl)
PFW, PFU = int(OPT.get("pfw", 1)), OPT.get("pfu", "")
if PFW:
    cm("warm L2 with this workgroup's quarter of its Wq slice")
    a(f"s_and_b32 s{sT2}, s{sRB}, 3")
    a(f"s_lshl2_add_u32 s{sT2}, s{sT2}, s{sWV}")
    a(f"s_lshl_b32 s{sT2}, s{sT2}, 15")
    a(f"s_lshl_b32 s{sT3}, s{sG}, 7")
    a(f"s_add_u32 s{sT2}, s{sT2}, s{sT3}")
    a("v_and_b32 v20, 31, v0")
    a("v_lshlrev_b32 v20, 10, v20")
    a("s_mov_b32 exec_hi, 0")
    a(f"buffer_load_dword v34, v20, {sr(R_B,4)}, s{sT2} offen")
    a("s_mov_b64 exec, -1")
def pfu(which):
    cm("pull this wave's 1/1024 share of later inputs out of HBM")
    a(f"s_lshl2_add_u32 s{sT2}, s2, s{sWV}")
    a("v_lshlrev_b32 v26, 7, v0")
    for i, ch in enumerate(which):
        ptr, lines = {"x": (P_BX, 16), "r": (P_BRE, 4), "i": (P_BIM, 4), "c": (P_CRE, 4), "d": (P_CIM, 4), "o": (P_WO, 4)}[ch]
        a(f"s_mul_i32 s{sT3}, s{sT2}, {128*lines}")
        a(f"v_add_u32 v21, s{sT3}, v26")
        a(f"s_mov_b64 exec, {(1 << lines) - 1}")
        a(f"global_load_dword v{35+i}, v21, s[{ptr}:{ptr+1}]")
        a("s_mov_b64 exec, -1")
if PFU: pfu(PFU)
srd(R_WS, P_WS, WS_SIZE)
a(f"s_mov_b32 s{sSYNC}, 0")
a(f"s_mov_b32 s{sLO}, {f32(L_LO)}")
a(f"s_mov_b32 s{sHI}, {f32(L_HI)}")
cm("prefill V regs: rows 16 and 20 = ones, other rows >=16 zero")
a("v_and_b32 v24, 27, v0")
a("v_cmp_eq_u32 vcc, 16, v24")
a("v_mov_b32 v25, 0x3f803f80")
a("s_nop 0")
a("v_cndmask_b32 v24, 0, v25, vcc")
a("v_mov_b32 v25, v24")
for t in range(16):
    for j in range(4):
        a(f"v_mov_b64 {vr(KV+12*t+4+2*j,2)}, v[24:25]")
a("v_mov_b32 v14, v6")
a("v_lshrrev_b32 v24, 5, v0")
a("v_and_b32 v25, 15, v0")
a("v_lshl_add_u32 v15, v24, 4, v25")
a("v_lshlrev_b32 v15, 4, v15")
a(f"v_mov_b32 v{vIDX}, 0xdddddddd")
a(f"s_lshl_b32 s{sT2}, s{sWV}, 11")
a(f"v_add_u32 v{vAD}, s{sT2}, v14")
a(f"s_lshl_b32 s{sT2}, s{sWV}, 2")
a(f"s_add_u32 s{sT3}, s{sT2}, {L_PART + 8192}")
a(f"v_add_u32 v{vAS}, s{sT3}, v14")
a(f"s_add_u32 s{sT3}, s{sT2}, {L_PROG}")
a(f"v_add_u32 v{vPG}, s{sT3}, v14")
a(f"v_add_u32 v{vAQ}, {L_QF}, v14")
a(f"v_lshlrev_b32 v23, {FSH}, v0")
a("s_barrier")
a(f"ds_read_b32 v20, v{vCA} offset:{C_TAG}")
B0 = int(OPT.get("b0", 0))
for sl in range(QW, 4):
    qops(sl)
    if sl + 1 == B0:
        a(f"s_waitcnt vmcnt({7*(B0-1)})")
        a("s_barrier")
PFL = OPT.get("pfl", "")
if PFL: pfu(PFL)
NL = len(PFL)
a(f"s_waitcnt vmcnt({14+NL}) lgkmcnt(0)")
a("s_barrier")
a(f"v_readfirstlane_b32 s{sTAG}, v20")
cm("scalars for the tail")
sKV = sT0
a(f"s_sub_u32 s{sSTEP}, 7, s{sWV}")
o_offsets()
a(f"s_mov_b32 s{sF1}, s{sT0}")
a(f"s_mov_b32 s{sF2}, s{sT1}")
a(f"s_mul_i32 s{sT2}, s{sSTEP}, {PSTRIDE}")
a(f"s_lshr_b32 s{sT4}, s{sWV}, 1")
a(f"s_lshl1_add_u32 s{sYG}, s{sRB}, s{sT4}")
a(f"s_lshl_b32 s{sCG}, s{sYG}, 12")
a(f"s_add_u32 s{sCG}, s{sCG}, {WS_FO + 16*128}")
srd(R_B, P_OUT, 2048 * 4096)
a(f"s_and_b32 s{sT0}, s{sWV}, 1")
a(f"s_lshl1_add_u32 s{sT0}, s{sG}, s{sT0}")
a(f"s_lshl_b32 s{sT0}, s{sT0}, 7")
a(f"s_lshl_b32 s{sT3}, s{sYG}, 17")
a(f"s_add_u32 s{sT3}, s{sT3}, s{sT0}")
a(f"s_lshl_b32 s{sT6}, s{sYG}, 15")
a(f"s_add_u32 s{sT6}, s{sT6}, {WS_O + 16384}")
a(f"s_mul_i32 s{sT4}, s{sWV}, {PSTRIDE}")
a(f"s_lshl_b32 s{sT5}, s{sWV}, 9")
a(f"s_add_u32 s{sT5}, s{sT5}, {L_CS}")
a(f"s_lshl_b32 s{sT0}, s{sWV}, {FSH+6}")
a(f"s_add_u32 s{sT0}, s{sT0}, {WS_FKV}")
stamp(1)
SU = OPT.get("su", "")
if "a" in SU: spf([(P_BX, 16, 0, 14)])
if "b" in SU: spf([(P_BRE, 4, 0, 4), (P_BIM, 4, 0, 4), (P_BX, 16, 0, 6)])
a(f"s_waitcnt vmcnt({7+NL})")
a("s_barrier")
PE = int(OPT.get("pe", 1))
if PE == 2:
    a(f"buffer_load_dword v22, v23, {sr(R_WS,4)}, s{sT0} offen sc1")
    a(f"s_waitcnt vmcnt(1)")
else:
    a(f"s_waitcnt vmcnt({NL})")
if PE == 1: a(f"buffer_load_dword v22, v23, {sr(R_WS,4)}, s{sT0} offen sc1")
a("s_barrier")
a("s_branch L_a2")
sec("A")
lab("L_a2")
stamp(2)
for _ in range(int(OPT.get("pd", 0))): a("s_sleep 2")
a(f"s_mov_b32 s{sCNT}, {POLL_LIMIT}")
if PE: a("s_branch L_a_kvq")
lab("L_a_kvp")
a(f"buffer_load_dword v22, v23, {sr(R_WS,4)}, s{sT0} offen sc1")
lab("L_a_kvq")
a("s_waitcnt vmcnt(0)")
a(f"v_xor_b32 v22, s{sTAG}, v22")
a("v_cmp_lt_u32 vcc, 15, v22")
a("s_cbranch_vccz L_a_kvok")
a(f"s_sub_u32 s{sCNT}, s{sCNT}, 1")
a("s_cbranch_scc0 L_a_kvp")
lab("L_a_kvok")
stamp(4)
a(f"s_lshl_b32 s{sT0}, s{sWV}, 15")
a(f"s_add_u32 s{sT0}, s{sT0}, {WS_KV}")
a(f"s_mov_b32 s{sM}, 0xffff")
a(f"s_mov_b32 s{sM+1}, 0xffff")
def kvload(tp):
    for t in (2*tp, 2*tp+1):
        a(f"buffer_load_dwordx4 {vr(KV+12*t,4)}, v14, {sr(R_WS,4)}, s{sT0} offen offset:{2048*(t&1)} sc1")
    a(f"s_mov_b64 exec, s[{sM}:{sM+1}]")
    for t in (2*tp, 2*tp+1):
        a(f"buffer_load_dwordx4 {vr(KV+12*t+4,4)}, v15, {sr(R_WS,4)}, s{sT0} offen offset:{2048*(t&1)+1024} sc1")
        a(f"buffer_load_dwordx4 {vr(KV+12*t+8,4)}, v15, {sr(R_WS,4)}, s{sT0} offen offset:{2048*(t&1)+1536} sc1")
    a("s_mov_b64 exec, -1")
    if tp < 7: a(f"s_add_u32 s{sT0}, s{sT0}, 4096")
NINIT = int(OPT.get("ninit", 3))
A4POS = int(OPT.get("a4", 8))
ABPOS = int(OPT.get("ab", 0))
NB = int(OPT.get("nb", NINIT))
for tp in range(NB):
    kvload(tp)
cm("do all 32 workgroups of this id class share this XCD?")
a(f"s_bfe_u32 s{sT1}, s2, 0x20001")
a(f"s_cmp_eq_u32 s{sT1}, s{sWV}")
a("s_cbranch_scc0 L_a_nomode")
a(f"s_getreg_b32 s{sT1}, hwreg(HW_REG_XCC_ID, 0, 4)")
a(f"v_cmp_ne_u32 vcc, s{sT1}, v22")
a("s_bitcmp1_b32 s2, 0")
a(f"s_cselect_b32 s{sT1}, vcc_hi, vcc_lo")
a(f"s_cmp_eq_u32 s{sT1}, 0")
a(f"s_cselect_b32 s{sT1}, {2 if OPT.get('nolocal') else 1}, 2")
a(f"v_mov_b32 v21, s{sT1}")
a(f"ds_write_b32 v{vCA}, v21 offset:{C_MODE}")
lab("L_a_nomode")
assert NINIT < 8
stamp(5)
a("s_barrier")
a("s_setprio 1")
a(f"ds_read_b128 {vr(vQ,4)}, v{vAQ}")
a(f"v_add_u32 v{vAQ}, 1024, v{vAQ}")
for tp in range(NB, NINIT): kvload(tp)
a(f"s_waitcnt vmcnt({6*(NINIT-1)+4}) lgkmcnt(0)")
stamp(6)
cstamp(10)

K_ = lambda t: KV + 12 * t
V1 = lambda t: KV + 12 * t + 4
V2 = lambda t: KV + 12 * t + 8
def ex(X, i): a(f"v_exp_f32 v{X+i}, v{X+i}")
def exs(X, lo, hi):
    for i in range(lo, hi): ex(X, i)
def smf(v, p): a(f"v_smfmac_f32_32x32x32_bf16 {vr(vO,16)}, {vr(v,4)}, {vr(p,8)}, v{vIDX}")
def qk(d, t): mfma32(d, K_(t), vQ, "0")
def zeroO(): a(f"v_mfma_f32_32x32x8_bf16 {vr(vO,16)}, {vr(vZ,2)}, {vr(vZ,2)}, 0")
def dump():
    a(f"ds_write_b128 v{vAD}, {vr(vO,4)}")
    a(f"ds_write_b128 v{vAD}, {vr(vO+4,4)} offset:1024")
    a(f"ds_write_b32 v{vAS}, v{vO+8}")
    a(f"ds_write_b32 v{vPG}, v{vAS}")

KVS = int(OPT.get('kvs', 2))
QPF = int(OPT.get('qpf', 0))
PQ, PS1 = [int(x) for x in OPT.get('pos', '7,12').split(',')]
def tiles_1_15(first):
    issued = [NINIT + 1 if first else 8]
    def preqk(tn):
        if first and tn % 2 == 0 and tn < 16:
            a(f"s_waitcnt vmcnt({6*(min(issued[0],8) - 1 - tn//2)})")
    def more(t):
        if first and t % KVS == 0 and issued[0] < 8:
            kvload(issued[0]); issued[0] += 1
            if issued[0] in (A4POS, ABPOS): signal(vCA, vONEA, C_A4)
    X, Y = S1, S0
    smf(V1(0), Y); exs(X, 0, 3); smf(V2(0), Y + 8); exs(X, 3, 6); preqk(2); qk(Y, 2); exs(X, 6, 10); smf(V1(1), X); more(1); exs(X, 10, 16)
    a(f"s_add_u32 s{sSTEP}, s{sSTEP}, 1")
    for t in range(2, 16):
        X, Y = (S0, S1) if t % 2 == 0 else (S1, S0)
        if t == 15 and QPF:
            a("s_waitcnt lgkmcnt(0)")
            a(f"v_mov_b64 {vr(vQ,2)}, v[12:13]")
            a(f"v_mov_b64 {vr(vQ+2,2)}, v[14:15]")
        exs(X, 0, 2); smf(V2(t - 1), Y + 8); exs(X, 2, PQ)
        if t == 15:
            if not QPF: a("s_waitcnt lgkmcnt(0)")
            if DBG == "steps":
                a(f"s_mov_b32 m0, s{sSTEP}")
                a("s_nop 0")
                a(f"s_movreld_b32 s80, s{sST}")
            qk(Y, 0)
        else:
            preqk(t + 1)
            qk(Y, t + 1)
        if t == 14 and DBG == "steps": a(f"s_memtime s[{sST}:{sST+1}]")
        if (t == 14 and not QPF) or (QPF and first and t == 11):
            a(f"ds_read_b128 {vr(12 if QPF else vQ,4)}, v{vAQ}")
            a(f"v_add_u32 v{vAQ}, 1024, v{vAQ}")
        exs(X, PQ, PS1); smf(V1(t), X); more(t); exs(X, PS1, 16)

qk(S0, 0)
zeroO()
qk(S1, 1)
a(f"s_mov_b32 s{sSTEP}, 0")
if NINIT < 8:
    kvload(NINIT)
    if NINIT + 1 in (A4POS, ABPOS): signal(vCA, vONEA, C_A4)
else:
    a("s_nop 8")
exs(S0, 0, 16)
a("s_nop 0")
a(f"s_waitcnt vmcnt({6*NINIT})")
tiles_1_15(True)
a("s_nop 0")
a("s_branch L_a_bound")
lines.append(".p2align 6")
lab("L_a_loop")
tiles_1_15(False)
a(f"s_cmp_eq_u32 s{sSTEP}, 8")
a("s_cbranch_scc1 L_a_fin")
lab("L_a_bound")
X, Y = S0, S1
smf(V2(15), Y + 8); exs(X, 0, 3); qk(Y, 1); exs(X, 3, 11)
dump()
if QPF:
    a(f"ds_read_b128 v[12:15], v{vAQ}")
ex(X, 11); zeroO(); exs(X, 12, 16)
if QPF: a(f"v_add_u32 v{vAQ}, 1024, v{vAQ}")
a(f"v_add_u32 v{vAD}, {PSTRIDE}, v{vAD}")
a(f"v_add_u32 v{vAS}, {PSTRIDE}, v{vAS}")
a("s_branch L_a_loop")

lab("L_a_fin")
smf(V2(15), S1 + 8)
a("v_lshlrev_b32 v14, 4, v0")
a(f"v_mov_b32 v{vCA}, {L_CNT}")
a(f"v_add_u32 v9, s{sT2}, v14")
a("v_and_b32 v10, 3, v0")
a("v_lshlrev_b32 v10, 2, v10")
a(f"v_add_u32 v10, {L_PROG}, v10")
a(f"s_add_u32 s{sT2}, s{sT2}, {L_PART + 8192}")
a(f"v_add_u32 v6, s{sT4}, v14")
a("v_lshlrev_b32 v16, 2, v0")
a(f"v_mov_b32 v17, s{sTAG}")
a("s_setprio 3")
dump()
a("v_lshlrev_b32 v7, 3, v0")
a(f"v_add_u32 v7, s{sT5}, v7")
a(f"s_mov_b32 s{sKIND}, 0")
stamp(7)
cstamp(11)
lab("L_a_rw")
a("ds_read_b32 v11, v10")
a(f"ds_read_b32 v8, v{vCA} offset:{C_MODE}")
a("ds_read_b128 v[52:55], v9 offset:8192")
for w in range(8):
    a(f"ds_read_b128 {vr(20+4*w,4)}, v9 offset:{1024*w}")
a("ds_read_b128 v[56:59], v6 offset:8192")
WSH = int(OPT.get("wsh", 1))
if WSH:
    a(f"ds_read_b32 v60, v{vCA} offset:{C_GH}")
    a("ds_read_b64 v[4:5], v7")
a(f"s_waitcnt lgkmcnt({11 if WSH else 9})")
a(f"v_cmp_gt_u32 vcc, s{sT2}, v11")
a("s_cbranch_vccnz L_a_rw")
a(f"v_readfirstlane_b32 s{sMODE}, v8")
a(f"s_mov_b32 s{sT1}, s{sF2}")
sum_check(52)
a(f"s_waitcnt lgkmcnt({3 if WSH else 1})")
a("s_cbranch_scc1 L_a_bad1")
reduce_math(20, 14, flag=False, bs=52)
a("v_and_b32 v15, 15, v0")
a("v_lshlrev_b32 v15, 7, v15")
a(f"s_lshl_b32 s{sT0}, s{sWV}, 2")
a(f"v_add_u32 v10, s{sT0}, v{vCA}")
AO, AW, AC = 88, 152, 48
def awread(k):
    o = PSTRIDE * (k // 4) + 2048 * (k % 4)
    a(f"ds_read_b64_tr_b16 {vr(AW+4*k,2)}, v4 offset:{o}")
    a(f"ds_read_b64_tr_b16 {vr(AW+4*k+2,2)}, v4 offset:{o+1024}")
if WSH:
    a("s_waitcnt lgkmcnt(0)")
    a("v_cmp_gt_u32 vcc, NSYNC_B2, v60")
    a("s_cbranch_vccnz L_a_nosh")
    a(f"s_mov_b32 s{sKIND}, 1")
    for k in range(7): awread(k)
    lab("L_a_nosh")
a("s_waitcnt vmcnt(0)")
a("s_mov_b32 exec_hi, 0")
st2([f"buffer_store_dword v17, v16, {sr(R_WS,4)}, s{sF1} offen@"])
a("s_mov_b64 exec, -1")
lab("L_a_ok1")
stamp(8)
if not WSH: a("s_waitcnt lgkmcnt(0)")
sum_check(56)
a("s_cbranch_scc1 L_a_bad2")
lab("L_a_ok2")
cm("output projection, last 16 heads")
a(f"buffer_load_dword v8, v15, {sr(R_WS,4)}, s{sCG} offen sc1")
a(f"s_cmp_eq_u32 s{sKIND}, 1")
a("s_cbranch_scc1 L_a_wd")
lab("L_a_ww")
a(f"ds_read_b32 v11, v{vCA} offset:{C_GH}")
a("ds_read_b64 v[4:5], v7")
a("s_waitcnt lgkmcnt(0)")
a("v_cmp_gt_u32 vcc, NSYNC_B2, v11")
a("s_cbranch_vccnz L_a_ww")
for k in range(7): awread(k)
lab("L_a_wd")
a("s_waitcnt vmcnt(0)")
a(f"v_cmp_ne_u32 vcc, s{sTAG}, v8")
a("s_cbranch_vccz L_a_fl")
poll(15, f"s{sCG}", 8)
lab("L_a_fl")
stamp(9)
for g in range(16):
    if g % 4 == 0 and g: a(f"s_add_u32 s{sT6}, s{sT6}, 4096")
    a(f"buffer_load_dwordx4 {vr(AO+4*g,4)}, v14, {sr(R_WS,4)}, s{sT6} offen offset:{1024*(g%4)} sc1")
    if 7 + g < 16: awread(7 + g)
a(f"ds_read_b32 v11, v10 offset:{C_HA}")
for i in range(4):
    a(f"ds_read_b128 {vr(16+4*i,4)}, v6 offset:{1024*i}")
cm("epoch update by WG0 (every workgroup has read the old value long ago)")
a(f"s_lshl2_add_u32 s{sT0}, s2, s{sWV}")
a(f"s_cmp_eq_u32 s{sT0}, 0")
a("s_cbranch_scc0 L_a_noep")
setflag(8, 9, sT0)
lab("L_a_noep")
a("s_waitcnt lgkmcnt(5)")
for g in range(16):
    a(f"s_waitcnt vmcnt({15-g})")
    mfma32(AC, AO + 4*g, AW + 4*g, "0" if g == 0 else None)
stamp(13)
a("s_waitcnt lgkmcnt(0)")
a("v_cmp_eq_u32 vcc, 0, v11")
a("s_cbranch_vccz L_a_hok")
lab("L_a_hw")
a(f"ds_read_b32 v11, v10 offset:{C_HA}")
for i in range(4):
    a(f"ds_read_b128 {vr(16+4*i,4)}, v6 offset:{1024*i}")
a("s_waitcnt lgkmcnt(0)")
a("v_cmp_eq_u32 vcc, 0, v11")
a("s_cbranch_vccnz L_a_hw")
lab("L_a_hok")
a("s_nop 8")
stamp(14)
for j in range(8):
    a(f"v_pk_add_f32 {vr(AC+2*j,2)}, {vr(AC+2*j,2)}, {vr(16+2*j,2)}")
    for r in (2*j, 2*j + 1):
        a(f"s_add_u32 s{sT1}, s{sT3}, {4096 * (8*(r//4) + r%4)}")
        a(f"buffer_store_dword v{AC+r}, v5, {sr(R_B,4)}, s{sT1} offen{OUTFL}")
a("s_branch L_end")

sec("P")
ROLE[0] = "H"
if STAMPS:
    a("s_mov_b32 s81, 0")
    a("s_mov_b32 s92, 0")
    a("s_mov_b32 s93, 0")
srd(R_WS, P_WS, WS_SIZE)
a("v_xor_b32 v14, v12, v13")
a("v_lshlrev_b32 v14, 4, v14")
a("v_lshl_add_u32 v14, v13, 8, v14")
a(f"v_add_u32 v8, s{sT2}, v14")
for ks in range(1, 4):
    a(f"v_xor_b32 v{8+ks}, {64*ks}, v8")
a("v_lshrrev_b32 v14, 2, v13")
a("v_lshl_add_u32 v14, v12, 3, v14")
a("v_lshlrev_b32 v14, 5, v14")
a("v_and_b32 v15, 3, v0")
a("v_lshl_add_u32 v14, v15, 3, v14")
a(f"v_add_u32 v14, s{sT4}, v14")
a(f"s_lshl_b32 s{sT0}, s{sWV}, 10")
a(f"s_add_u32 s{sT0}, s{sT0}, {L_KVP}")
a(f"v_add_u32 v15, s{sT0}, v6")
a(f"s_lshl_b32 s{sT0}, s{sRB}, 2")
a(f"s_add_u32 s{sT0}, s{sT0}, s{sGRP}")
a(f"s_lshr_b32 s{sT1}, s{sT0}, 1")
a(f"s_lshl_b32 s{sT1}, s{sT1}, 1")
a(f"s_add_u32 s{sT1}, s{sT1}, s{sKIND}")
a(f"s_lshl_b32 s{sT1}, s{sT1}, 10")
a(f"s_and_b32 s{sT2}, s{sT0}, 1")
a(f"s_add_u32 s{sT3}, s{sKIND}, 8")
a(f"s_lshl_b32 s{sT2}, s{sT2}, s{sT3}")
a(f"s_add_u32 s{sT1}, s{sT1}, s{sT2}")
a(f"s_add_u32 s{sT5}, s{sT1}, {WS_KV}")
a(f"s_lshl_b32 s{sT0}, s{sT0}, 1")
a(f"s_add_u32 s{sT0}, s{sT0}, s{sKIND}")
a(f"s_lshl_b32 s{sT0}, s{sT0}, {FSH}")
a(f"s_add_u32 s{sT6}, s{sT0}, {WS_FKV}")
a(f"s_cmp_eq_u32 s{sKIND}, 0")
a(f"s_cselect_b32 s{sT0}, 9, 3")
a(f"s_cselect_b32 s{sT1}, 3, 8")
a("v_and_b32 v34, 1, v12")
a("v_lshrrev_b32 v35, 1, v12")
a("v_lshlrev_b32 v16, 4, v13")
a(f"v_lshl_add_u32 v16, v34, s{sT0}, v16")
a(f"v_lshl_add_u32 v16, v35, s{sT1}, v16")
a(f"v_mov_b32 v{vCNT}, {L_CNT}")
a(f"v_mov_b32 v{vONE}, 1")
a("s_waitcnt lgkmcnt(0)")
a(f"s_mul_i32 s{sTAG}, s{sTAG}, 1664525")
a(f"s_add_u32 s{sTAG}, s{sTAG}, 1013904223")
a(f"v_mov_b32 v36, s{sTAG}")
a(f"ds_write_b32 v{vCNT}, v36 offset:{C_TAG}")
a(f"s_cmp_eq_u32 s{sKIND}, 0")
a(f"s_waitcnt vmcnt(4)")
stamp(1)
b = 128
for ks in range(4):
    a(f"ds_read_b128 {vr(b+8*ks,4)}, v{8+ks}")
    a(f"ds_read_b64_tr_b16 {vr(b+8*ks+4,2)}, v14 offset:{1024*ks}")
    a(f"ds_read_b64_tr_b16 {vr(b+8*ks+6,2)}, v14 offset:{1024*ks+128}")
def kvproj(kind):
    for ks in range(4):
        a(f"s_waitcnt lgkmcnt({9 - 3*ks})")
        x, w = vr(b+8*ks, 4), vr(b+8*ks+4, 4)
        if kind == 0: x, w = w, x
        a(f"v_mfma_f32_16x16x32_bf16 v[40:43], {x}, {w}, {'0' if ks == 0 else 'v[40:43]'}")
a("s_cbranch_scc0 L_h_vproj")
kvproj(0)
a("s_branch L_h_kvdone")
lab("L_h_vproj")
kvproj(1)
lab("L_h_kvdone")
a(f"s_cmp_eq_u32 s{sWV}, 0")
a("s_cbranch_scc1 L_h_pub")
a("s_nop 5")
a("ds_write_b128 v15, v[40:43]")
a("s_waitcnt lgkmcnt(0)")
a("s_barrier")
a("s_branch L_h_common")
lab("L_h_pub")
a("s_barrier")
for i in range(1, 4):
    a(f"ds_read_b128 {vr(40+4*i,4)}, v15 offset:{1024*i}")
a("s_nop 1")
a("s_waitcnt lgkmcnt(0)")
a("v_pk_add_f32 v[40:41], v[40:41], v[44:45]")
a("v_pk_add_f32 v[42:43], v[42:43], v[46:47]")
a("v_pk_add_f32 v[48:49], v[48:49], v[52:53]")
a("v_pk_add_f32 v[50:51], v[50:51], v[54:55]")
a("v_pk_add_f32 v[40:41], v[40:41], v[48:49]")
a("v_pk_add_f32 v[42:43], v[42:43], v[50:51]")
a("v_cvt_pk_bf16_f32 v40, v40, v41")
a("v_cvt_pk_bf16_f32 v41, v42, v43")
a(f"buffer_store_dwordx2 v[40:41], v16, {sr(R_WS,4)}, s{sT5} offen sc1")
dstamp("p", 5)
a("s_branch L_h_common")
sec("HQ")
lab("L_h_common")
a(f"s_mov_b32 s{sSYNC}, 0")
a("v_and_b32 v17, 31, v0")
a("v_lshrrev_b32 v18, 5, v0")
p0, p1, p2, vDSK = 60, 61, 62, 63
cm("Q projection addresses")
QXA = list(range(48, 56))
a(f"s_lshr_b32 s{sT0}, s{sWV}, 1")
a(f"s_lshl_b32 s{sT0}, s{sT0}, 13")
a("v_xor_b32 v34, v13, v18")
a("v_lshlrev_b32 v34, 4, v34")
a("v_lshl_add_u32 v34, v17, 8, v34")
a(f"v_add_u32 v{QXA[0]}, s{sT0}, v34")
for ks in range(1, 8):
    a(f"v_xor_b32 v{QXA[ks]}, {32*ks}, v{QXA[0]}")
wtr_addr(vWT, 9, L_R1, 34)
a(f"v_lshl_add_u32 v56, v18, 9, v{vWT}")
a(f"v_add_u32 v56, {(L_WQ - L_R1) & 0xffffffff}, v56")
a(f"s_and_b32 s{sT1}, s{sWV}, 1")
a(f"s_lshl_b32 s{sT1}, s{sT1}, 12")
a(f"s_lshr_b32 s{sT2}, s{sWV}, 1")
a(f"s_lshl_b32 s{sT2}, s{sT2}, 10")
a(f"s_add_u32 s{sT1}, s{sT1}, s{sT2}")
a(f"s_add_u32 s{sT1}, s{sT1}, {L_QF}")
a(f"v_add_u32 v57, s{sT1}, v6")
a(f"v_mov_b32 v58, {f32(0.25 * LOG2E)}")
a("v_mov_b32 v59, v58")
cm("SSM offsets and addresses")
a(f"s_mov_b32 s{R_A}, s{P_BX}")
a(f"s_and_b32 s{R_A+1}, s{P_BX+1}, 0xffff")
srd(R_B, P_BRE, 512 * 1024)
srd(R_C, P_BIM, 512 * 1024)
a(f"s_mov_b32 s{sLO}, {f32(L_LO)}")
a(f"s_mov_b32 s{sHI}, {f32(L_HI)}")
a(f"s_lshl_b32 s{sT0}, s{sC}, 17")
a(f"s_lshl_b32 s{sT1}, s{sWV}, 15")
a(f"s_add_u32 s{sT3}, s{sT0}, s{sT1}")
a(f"s_lshr_b32 s{sT0}, s{sWV}, 1")
a(f"s_lshl1_add_u32 s{sYG}, s{sRB}, s{sT0}")
if YM:
    a(f"s_and_b32 s{sYY}, s{sRB}, 24")
    a(f"s_add_u32 s{sYY}, s{sYY}, s{sG}")
    a(f"s_lshl1_add_u32 s{sYY}, s{sYY}, s{sT0}")
else:
    a(f"s_mov_b32 s{sYY}, s{sYG}")
a(f"s_and_b32 s{sT0}, s{sWV}, 1")
a(f"s_lshl1_add_u32 s{sCG}, s{sGY}, s{sT0}")
a(f"s_lshl_b32 s{sT4}, s{sYY}, 15")
a(f"s_lshl_b32 s{sT2}, s{sCG}, 6")
a(f"s_add_u32 s{sT4}, s{sT4}, s{sT2}")
wo_voff(vWO, 34)
a("v_lshrrev_b32 v36, 2, v0")
a("v_and_b32 v34, 3, v36")
a("v_bfe_u32 v35, v36, 2, 1")
a("v_lshl_add_u32 v34, v35, 4, v34")
a("v_lshrrev_b32 v35, 3, v36")
a("v_lshl_add_u32 v34, v35, 2, v34")
a("v_and_b32 v37, 3, v0")
a("v_lshlrev_b32 v35, 4, v37")
a("v_lshl_add_u32 v8, v34, 10, v35")
a("v_add_u32 v9, 8192, v8")
a(f"v_mul_u32_u24 v{vRB}, {RSTR}, v17")
a(f"v_lshl_add_u32 v{vRB}, v18, 4, v{vRB}")
a(f"v_add_u32 v{vRB}, {L_R1}, v{vRB}")
a(f"s_lshl_b32 s{sT1}, s{sWV}, 11")
a(f"s_add_u32 s{sT1}, s{sT1}, {L_SCR}")
a("v_xor_b32 v34, v12, v37")
a("v_lshlrev_b32 v34, 4, v34")
a("v_lshl_add_u32 v34, v36, 6, v34")
a(f"v_add_u32 v10, s{sT1}, v34")
a("v_bfe_u32 v34, v0, 2, 2")
a("v_xor_b32 v35, v34, v18")
a("v_lshlrev_b32 v35, 4, v35")
a("v_lshl_add_u32 v35, v17, 6, v35")
a(f"v_add_u32 v11, s{sT1}, v35")
a("v_xor_b32 v12, 32, v11")
a("v_lshl_add_u32 v34, v18, 3, v34")
a("v_lshlrev_b32 v34, 6, v34")
a("v_bfe_u32 v35, v0, 4, 1")
a("v_lshl_add_u32 v34, v35, 5, v34")
a("v_lshl_add_u32 v34, v37, 3, v34")
a(f"v_add_u32 v19, s{sT1}, v34")
a("v_lshlrev_b32 v34, 6, v17")
a("v_lshl_add_u32 v34, v18, 5, v34")
a(f"v_add_u32 v16, s{sT1}, v34")
a("v_lshlrev_b32 v38, 4, v18")
a("v_lshl_add_u32 v29, v17, 10, v38")
a("v_lshlrev_b32 v14, 4, v17")
a("s_waitcnt vmcnt(1)")
a(f"s_cmp_eq_u32 s{sWV}, 0")
a("s_cbranch_scc1 L_h_pw")
a("s_waitcnt vmcnt(0)")
lab("L_h_pw")
FPOS = int(OPT.get("fpos", 1))
def kvflag():
    a("s_waitcnt vmcnt(0)")
    a(f"s_cmp_eq_u32 s{sWV}, 0")
    a("s_cbranch_scc0 L_h_nopub")
    a(f"s_getreg_b32 s{sT0}, hwreg(HW_REG_XCC_ID, 0, 4)")
    a(f"s_xor_b32 s{sT0}, s{sT0}, s{sTAG}")
    a("v_mov_b32 v34, 0")
    a(f"v_mov_b32 v35, s{sT0}")
    a("s_mov_b64 exec, 1")
    a(f"buffer_store_dword v35, v34, {sr(R_WS,4)}, s{sT6} offen sc1")
    a("s_mov_b64 exec, -1")
    stamp(2)
    lab("L_h_nopub")
if FPOS == 0: kvflag()
cm("SSM parameters")
q0, q1, q2, q3, q4 = 64, 65, 66, 67, 68
a(f"v_lshlrev_b32 v{p0}, 16, v{p0}")
a(f"v_lshlrev_b32 v{p1}, 16, v{p1}")
a(f"v_lshlrev_b32 v{p2}, 16, v{p2}")
a(f"v_mul_f32 v{p2}, {f32(LOG2E)}, v{p2}")
a(f"v_exp_f32 v{p2}, v{p2}")
a("s_nop 0")
a(f"v_cvt_pk_bf16_f32 v{p2}, v{p2}, v{p2}")
a(f"v_and_b32 v{p2}, 0xffff0000, v{p2}")
a(f"v_mul_f32 v{q0}, v{p2}, v{p0}")
a(f"v_mul_f32 v{q1}, v{p2}, v{p1}")
a(f"v_mul_f32 v{q0}, {f32(LOG2E)}, v{q0}")
a(f"v_mul_f32 v{q1}, {f32(1/(2*math.pi))}, v{q1}")
a(f"v_exp_f32 v{q0}, v{q0}")
a(f"v_rndne_f32 v{q2}, v{q1}")
a(f"v_sub_f32 v{q1}, v{q1}, v{q2}")
a(f"v_cos_f32 v{q2}, v{q1}")
a(f"v_sin_f32 v{q3}, v{q1}")
a(f"v_mul_f32 v{q4}, v{p0}, v{p0}")
a(f"v_fma_f32 v{q4}, v{p1}, v{p1}, v{q4}")
a(f"v_mul_f32 v{vL}, v{q0}, v{q2}")
a(f"v_mul_f32 v{vL+1}, v{q0}, v{q3}")
a(f"v_rcp_f32 v{q4}, v{q4}")
a(f"v_add_f32 v{q2}, -1.0, v{vL}")
a(f"v_add_f32 v{q4}, v{q4}, v{q4}")
a(f"v_mul_f32 v{q0}, v{q2}, v{p0}")
a(f"v_fma_f32 v{q0}, v{vL+1}, v{p1}, v{q0}")
a(f"v_mul_f32 v{q1}, v{vL+1}, v{p0}")
a(f"v_fma_f32 v{q1}, -v{q2}, v{p1}, v{q1}")
a(f"v_mul_f32 v{vCO}, v{q0}, v{q4}")
a(f"v_mul_f32 v{vCO+1}, v{q1}, v{q4}")
cmul(70, vL, vL); cmul(72, 70, 70); cmul(vL8, 72, 72); cmul(vL16_, vL8, vL8)
cm("skip term x*D via a diagonal B operand -> YACC")
YACC = 112
a("v_and_b32 v64, 1, v0")
a("v_lshlrev_b32 v64, 4, v64")
a(f"v_lshlrev_b32 v{vDSK}, v64, v{vDSK}")
a("v_lshrrev_b32 v64, 1, v17")
a("v_lshlrev_b32 v65, 2, v18")
a("v_sub_u32 v64, v64, v65")
for i in range(0, 8, 2):
    a(f"v_cmp_eq_u32 s[{sM}:{sM+1}], {8*(i//4) + i%4}, v64")
    a(f"v_cmp_eq_u32 vcc, {8*(i//4) + i%4 + 1}, v64")
    a("s_nop 0")
    a(f"v_cndmask_b32 v{104+i}, 0, v{vDSK}, s[{sM}:{sM+1}]")
    a(f"v_cndmask_b32 v{105+i}, 0, v{vDSK}, vcc")
if FPOS == 1: kvflag()
cm("per-lane powers: PS = L16^seg, M0 = L256^seg (if valid), M1 = M0*L128 (if valid)")
vPS, vM0, vM1, vO0, vO1 = 96, 98, 100, 102, 103
a(f"s_mov_b32 s{sM}, 0")
a(f"s_mov_b32 s{sM+1}, -1")
def powsel(dst, b1, b2, b4):
    a(f"v_cndmask_b32 v{dst}, 1.0, v{b1}, s[{sM}:{sM+1}]")
    a(f"v_cndmask_b32 v{dst+1}, 0, v{b1+1}, s[{sM}:{sM+1}]")
    for bit, b in ((0, b2), (1, b4)):
        L = uid("ps")
        a(f"s_bitcmp1_b32 s{sWV}, {bit}")
        a(f"s_cbranch_scc0 {L}")
        cmul(66, dst, b)
        a(f"v_mov_b64 {vr(dst,2)}, v[66:67]")
        lab(L)
cmul(68, vL16_, vL16_); cmul(70, 68, 68); cmul(72, 70, 70)
cmul(74, 72, 72); cmul(76, 74, 74); cmul(78, 76, 76)
powsel(vPS, vL16_, 68, 70)
powsel(vM0, 74, 76, 78)
cmul(vM1, vM0, 72)
a(f"s_lshl_b32 s{sT0}, s{sWV}, 2")
a(f"s_sub_u32 s{sT0}, s{sC}, s{sT0}")
a(f"s_sub_u32 s{sT0}, s{sT0}, 1")
a("v_lshlrev_b32 v30, 1, v18")
a(f"v_sub_u32 v{vO0}, s{sT0}, v30")
a(f"v_add_u32 v{vO1}, -1, v{vO0}")
a(f"v_mov_b32 v30, 0")
for (vo, vm) in ((vO0, vM0), (vO1, vM1)):
    a(f"v_cmp_le_i32 vcc, 0, v{vo}")
    a("s_nop 1")
    a(f"v_cndmask_b32 v{vo}, v30, v{vo}, vcc")
    a(f"v_cndmask_b32 v{vm}, 0, v{vm}, vcc")
    a(f"v_cndmask_b32 v{vm+1}, 0, v{vm+1}, vcc")
    a(f"v_lshl_add_u32 v{vo}, v{vo}, 9, v14")
if FPOS == 2: kvflag()
cm("Q projection")
ACC, QD = 32, 4
XR = 128
VM, LG = Cnt(), Cnt()
xq = [(j, h) for j in range(16) for h in range(2)]
def xb1():
    j, h = xq.pop(0)
    a(f"buffer_load_dwordx4 {vr(XR+8*j+4*h,4)}, v{8+h}, {sr(R_A,4)}, s{16+j//4} offen offset:{64*(j%4)}")
    VM.issue(("x", j))
def qs(ks): return 128 + 8 * (ks % 8)
def qread(ks):
    a(f"ds_read_b64_tr_b16 {vr(qs(ks),2)}, v56 offset:{2048*ks}")
    a(f"ds_read_b64_tr_b16 {vr(qs(ks)+2,2)}, v56 offset:{2048*ks+512}")
    a(f"ds_read_b128 {vr(qs(ks)+4,4)}, v{QXA[ks % 8]} offset:{16384*(ks//8)}")
def qm(ks): mfma32(ACC, qs(ks), qs(ks) + 4, "0" if ks == 0 else None)
DR = [int(x) for x in OPT.get("drain", "").split(",") if x]
sec("Z"); sec("HQ")
a("s_barrier")
segs = []
k0 = 0
for k1 in DR + [32]:
    segs.append((k0, k1)); k0 = k1
for (k0, k1) in segs:
    if k0: a("s_barrier")
    for ks in range(k0, k0 + QD): qread(ks)
    for ks in range(k0, k1):
        if ks + QD < k1:
            if ks + QD in ((8, 16, 24) if B0 else (16, 24)): a("s_barrier")
            qread(ks + QD)
            a(f"s_waitcnt lgkmcnt(12)")
        else:
            a(f"s_waitcnt lgkmcnt({3*(k1-1-ks)})")
        qm(ks)
a(f"s_lshl_b32 s{sT0}, s{sWV}, 9")
a(f"s_add_u32 s{sT0}, s{sT0}, {L_ES}")
a("v_lshlrev_b32 v13, 3, v0")
a(f"v_add_u32 v13, s{sT0}, v13")
a("v_lshlrev_b32 v15, 3, v17")
a(f"v_add_u32 v15, {L_ES}, v15")
a("v_lshlrev_b32 v1, 2, v17")
a("v_lshl_add_u32 v1, v18, 14, v1")
a(f"s_lshl_b32 s{sT0}, s{sPB}, 15")
a(f"s_lshl_b32 s{sT1}, s{sWV}, 13")
a(f"s_add_u32 s{sT5}, s{sT0}, s{sT1}")
a(f"s_add_u32 s{sT6}, s{sT5}, 4096")
a(f"s_and_b32 s{sT0}, s{sRB}, 3")
a(f"s_lshl2_add_u32 s{sT1}, s{sT0}, s{sWV}")
a(f"s_lshl_b32 s{sT1}, s{sT1}, 15")
a(f"s_lshl_b32 s{sT2}, s{sG}, 7")
a(f"s_add_u32 s{sT1}, s{sT1}, s{sT2}")
a("v_lshlrev_b32 v18, 10, v17")
a(f"v_add_u32 v18, s{sT1}, v18")
if YM:
    a(f"s_lshl3_add_u32 s{sT0}, s{sGY}, s{sG}")
    a(f"s_lshl_b32 s{sT0}, s{sT0}, 13")
    a(f"s_and_b32 s{sT1}, s{sWV}, 1")
    a(f"s_lshl_b32 s{sT1}, s{sT1}, 12")
    a(f"s_add_u32 s{sT0}, s{sT0}, s{sT1}")
    a("v_lshlrev_b32 v17, 7, v17")
else:
    a(f"s_lshl2_add_u32 s{sT0}, s{sG}, s{sT0}")
    a(f"s_lshl_b32 s{sT0}, s{sT0}, 14")
    a(f"s_and_b32 s{sT1}, s{sWV}, 1")
    a(f"s_lshl_b32 s{sT1}, s{sT1}, 13")
    a(f"s_add_u32 s{sT0}, s{sT0}, s{sT1}")
    a("v_lshlrev_b32 v17, 7, v0")
a(f"v_add_u32 v17, s{sT0}, v17")
a(f"s_cmp_lt_u32 s{sWV}, 2")
a(f"s_cselect_b32 s{sPC}, s{P_CRE}, s{P_CIM}")
a(f"s_cselect_b32 s{sPC+1}, s{P_CRE+1}, s{P_CIM+1}")
a(f"s_and_b32 s{sT0}, s{sWV}, 1")
a(f"s_mul_i32 s{sT0}, s{sT0}, {32*RSTR}")
a(f"v_add_u32 v28, s{sT0}, v{vRB}")
for r in range(0, 16, 2):
    a(f"v_pk_mul_f32 {vr(ACC+r,2)}, {vr(ACC+r,2)}, v[58:59]")
for j in range(8):
    a(f"v_cvt_pk_bf16_f32 v{ACC+j}, v{ACC+2*j}, v{ACC+2*j+1}")
a(f"ds_write_b128 v57, {vr(ACC,4)}")
a(f"ds_write_b128 v57, {vr(ACC+4,4)} offset:2048")
cm("B tile: 4 k-slots of [64 rows x 256B], xor-swizzled; read addresses v112..119, dma voffset v120")
BA = 112
a("v_lshrrev_b32 v121, 4, v0")
a("v_and_b32 v122, 15, v0")
a(f"v_lshl_add_u32 v121, s{sWV}, 2, v121")
a("v_xor_b32 v123, v122, v121")
a("v_lshlrev_b32 v123, 4, v123")
a("v_lshl_add_u32 v120, v121, 10, v123")
a(f"s_lshr_b32 s{sT0}, s{sWV}, 1")
a(f"s_lshl_b32 s{sT0}, s{sT0}, 13")
a(f"s_sub_u32 s{sT0}, {L_R1}, s{sT0}")
for ks in range(8):
    a(f"v_add_u32 v{BA+ks}, s{sT0}, v{QXA[ks]}")
a(f"s_lshl_b32 s{sT5}, s{sPB}, 15")
a(f"s_lshl_b32 s{sT6}, s{sWV}, 10")
UR = OPT.get("urot", "2")
if UR == "0": a(f"s_mov_b32 s{sT0}, 0")
elif UR == "1": a(f"s_add_u32 s{sT0}, s{sC}, s{sPB}")
elif UR == "2": a(f"s_lshr_b32 s{sT0}, s2, 1")
elif UR == "3": a(f"s_mov_b32 s{sT0}, s2")
for sl in range(4):
    a(f"s_add_u32 s{sT1}, s{sT0}, {sl}")
    a(f"s_and_b32 s{sT1}, s{sT1}, 3")
    a(f"s_lshl_b32 s{sT1}, s{sT1}, 8")
    a(f"s_add_u32 s{16+sl}, s{sT3}, s{sT1}")
    a(f"s_add_u32 s{20+sl}, s{sT5}, s{sT1}")
a("s_waitcnt lgkmcnt(0)")
stamp(3)
a("s_barrier")
a("s_branch L_h2")
sec("H")
lab("L_h2")
a("s_setprio 2")
def rows_dma(tag, base=sT5, ore=0, oim=0):
    a(f"s_mul_i32 s{sT1}, s{sWV}, {8*RSTR}")
    for i in range(8):
        a(f"s_add_u32 m0, s{sT1}, {L_R1 + RSTR*i}")
        a(f"s_add_u32 s{sT2}, s{base}, {1024*i + ore}")
        dma(vL4, R_B, f"s{sT2}")
        a(f"s_add_u32 m0, s{sT1}, {L_R1 + RSTR*(32+i)}")
        a(f"s_add_u32 s{sT2}, s{base}, {1024*i + oim}")
        dma(vL4, R_C, f"s{sT2}")
    VM.issue(tag, 16)
def xw(j, h):
    if h == 0: waits(vm=VM.need(("x", j)))
    a(f"ds_write_b128 v10, {vr(XR+8*j+4*h,4)}" + (" offset:1024" if h else ""))
    LG.issue(("xw", j))
def xr(j):
    a(f"ds_read_b128 {vr(XR+8*j,4)}, v11")
    a(f"ds_read_b128 {vr(XR+8*j+4,4)}, v12")
    LG.issue(("x", j), 2)
if "a" in SU: spf([(P_BRE, 4, 0, 4), (P_BIM, 4, 0, 4), (P_BX, 16, 14, 2)])
if "b" in SU: spf([(P_BX, 16, 6, 10)])
if "c" in SU: spf([(P_BRE, 4, 0, 4), (P_BIM, 4, 0, 4), (P_BX, 16, 0, 16)])
if "d" in SU: spf([(P_CRE, 4, 0, 4), (P_CIM, 4, 0, 4), (P_WO, 4, 0, 4)])
waitc(vCNT, C_A4, 4, 30, sleep=int(OPT.get("a4sl", 1)))
a(f"ds_read_b32 v30, v{vCNT} offset:{C_MODE}")
a("s_setprio 0")
cm("U = x B^T")
XL = int(OPT.get("xl", 2))
def bdma(sl, m):
    a(f"s_add_u32 m0, s{sT6}, {L_R1 + 16384*sl + 4096*m}")
    a(f"s_add_u32 s{sT2}, s{20+sl}, {16384*(m%2)}")
    dma(120, R_B if m < 2 else R_C, f"s{sT2}")
    if sl == 0 and OPT.get("bp") == "1": pace()
    VM.issue(("B", sl))
lq = []
for it in OPT.get("uord", "B0,0,1,2,3,B1,4,5,6,7,B2,8,9,10,11,B3,12,13,14,15").split(","):
    lq += [("B", int(it[1]), m) for m in range(4)] if it[0] == "B" else [("x",), ("x",)]
if OPT.get("mix", "1") == "1":
    for sl in range(1, 4):
        i = lq.index(("B", sl, 0))
        xs, bs_ = lq[i-4:i], lq[i:i+4]
        lq[i-4:i+4] = [y for p in zip(xs, bs_) for y in p]
def ld1(n=1):
    for _ in range(n):
        if not lq: return
        it = lq.pop(0)
        if it[0] == "B": bdma(it[1], it[2])
        else: xb1()
CB = [C_H0, C_H1, C_H2, C_H3]
sigd = set()
def bsig(force=None):
    for sl in range(4):
        issued = not any(it[:2] == ("B", sl) for it in lq)
        if sl in sigd or not issued: continue
        if sl == force: waits(vm=VM.need(("B", sl)))
        if ("B", sl) not in VM.q:
            signal(vCNT, vONE, CB[sl]); LG.issue("sig"); sigd.add(sl)
ld1(int(OPT.get("u0", 12)))
bsig(0)
ld1(int(OPT.get("u1", 4)))
for j in range(XL): xw(j, 0); xw(j, 1); xr(j)
a("s_setprio 2")
a(f"v_readfirstlane_b32 s{sMODE}, v30") if False else None
waitc(vCNT, CB[0], 4, 31)
a(f"v_readfirstlane_b32 s{sMODE}, v30")
LG.q = []
stamp(4)
UPRIO = int(OPT.get("uprio", 0)); YPRIO = int(OPT.get("yprio", 0))
a(f"s_setprio {UPRIO}")
AR, AI, BR = 32, 48, 64
def bread(k):
    s = BR + 8 * (k % 4)
    a(f"ds_read_b128 {vr(s,4)}, v{BA + k % 8} offset:{16384*(k//8)}")
    a(f"ds_read_b128 {vr(s+4,4)}, v{BA + k % 8} offset:{16384*(k//8) + 8192}")
    LG.issue(("b", k), 2)
WOL = int(OPT.get("wol", 0))
PF = [(17, sPC)] + ([] if WOL else [(18, P_WO)])
PFK = int(OPT.get("pfk", 19))
PTK = int(OPT.get("ptk", 27))
CPOS = 0
for k in range(3): bread(k)
for k in range(32):
    j = k // 2; jn = j + XL
    tr = jn < 16
    n1 = LG.need(("x", j)); n2 = LG.need(("b", k))
    waits(lg=n2 if n2 is not None else n1)
    s = BR + 8 * (k % 4)
    first = "0" if k == 0 else None
    mfma32(AR, XR + 4*k, s, first)
    if k % 8 == 2 and k < 24: bsig(k // 8 + 1)
    if k % 8 == 4 and k < 24:
        a(f"ds_read_b32 v31, v{vCNT} offset:{CB[k//8+1]}"); LG.issue("cb")
    if k % 8 == 5 and k < 24:
        waits(lg=LG.need("cb"))
        a("s_setprio 2")
        a("v_cmp_gt_u32 vcc, 4, v31")
        Lk = uid("bk")
        a(f"s_cbranch_vccz {Lk}")
        waitc(vCNT, CB[k//8+1], 4, 31)
        lab(Lk)
        a(f"s_setprio {UPRIO}")
    if k + 3 < 32: bread(k + 3)
    ld1(int(OPT.get("lpk", 1)))
    if PF and k >= PFK and k % 2 == 1:
        v, p = PF.pop(0)
        a(f"global_load_dword v{136+len(PF)}, v{v}, s[{p}:{p+1}]"); VM.issue("pf")
    if k == PTK:
        cm("local mode: make the lines this wave / its attention partner will hand over valid in L2")
        a(f"s_cmp_eq_u32 s{sMODE}, 1")
        a("s_cbranch_scc0 L_h_nopt")
        def touch(soff, n):
            for i in range(n):
                a(f"buffer_load_dwordx4 v[144:147], v{vL4}, {sr(R_WS,4)}, s{soff} offen offset:{1024*i} sc1")
        def touchf(soff):
            a("s_mov_b64 exec, 0xff")
            touch(soff, 1)
            a("s_mov_b64 exec, -1")
        if "h" in LOC:
            a(f"s_lshl2_add_u32 s{sT0}, s{sC}, s{sWV}")
            a(f"s_lshl_b32 s{sT1}, s{sT0}, 5")
            a(f"s_add_u32 s{sT1}, s{sT1}, s{sPB}")
            a(f"s_lshl_b32 s{sT1}, s{sT1}, 11")
            a(f"s_add_u32 s{sT1}, s{sT1}, {WS_H}")
            touch(sT1, 2)
            a(f"s_add_u32 s{sT1}, s{sT1}, 32768")
            touch(sT1, 2)
            a(f"s_lshl4_add_u32 s{sT0}, s{sT0}, s{sPB}")
            a(f"s_lshl_b32 s{sT0}, s{sT0}, 7")
            a(f"s_add_u32 s{sT0}, s{sT0}, {WS_FH}")
            touchf(sT0)
        for kind, off in (("o", 0), ("t", 4)):
            if kind in LOC:
                a(f"s_add_u32 s{sSTEP}, s{sWV}, {off}")
                o_offsets()
                touch(sT1, 1); touchf(sT0)
        lab("L_h_nopt")
    if k == 28:
        a(f"buffer_load_dwordx4 v[128:131], v29, {sr(R_A,4)}, s{sT4} offen")
        a(f"buffer_load_dwordx4 v[132:135], v29, {sr(R_A,4)}, s{sT4} offen offset:32")
        VM.issue("skip", 2)
    mfma32(AI, XR + 4*k, s + 4, first)
    ld1()
    if tr:
        assert not any(q[0] == jn for q in xq)
        xw(jn, k % 2)
        if k % 2: xr(jn)
    bsig()
assert len(sigd) == 4 and not lq
assert not PF
a("s_setprio 2")
srd(R_B, P_CRE, 512 * 1024)
srd(R_C, P_CIM, 512 * 1024)
srd(R_A, P_WO, 512 * 1024)
if CPOS:
    a(f"s_add_u32 s{sSYNC}, s{sSYNC}, 4")
    signal(vCNT, vONE, C_GH)
a(f"s_lshl_b32 s{sT3}, s{sGY}, 16")
a(f"s_lshl_b32 s{sT1}, s{sWV}, 13")
a(f"s_add_u32 s{sT3}, s{sT3}, s{sT1}")
a(f"s_mul_i32 s{sT1}, s{sWV}, {8*RSTR}")
def row1(n, base, ore, oim):
    i, part = n // 2, n % 2
    a(f"s_add_u32 m0, s{sT1}, {L_R1 + RSTR*(32*part+i)}")
    a(f"s_add_u32 s{sT2}, s{base}, {1024*i + (oim if part else ore)}")
    dma(vL4, R_C if part else R_B, f"s{sT2}")
stamp(5)
cm("scale by coef into pair layout, local scan")
UP = 64
G0, G1 = 30, 8
def sc1(r): a(f"v_pk_mul_f32 {vr(UP+2*r,2)}, {vr(vCO,2)}, {vr(AR+(r&~1),2)} op_sel:[0,{r&1}] op_sel_hi:[1,{r&1}]")
def sc2(r): a(f"v_pk_fma_f32 {vr(UP+2*r,2)}, {vr(vCO,2)}, {vr(AI+(r&~1),2)}, {vr(UP+2*r,2)} op_sel:[1,{r&1},0] op_sel_hi:[0,{r&1},1] neg_lo:[1,0,0]")
def c1(dst, L, g, u): a(f"v_pk_fma_f32 {vr(dst,2)}, {vr(L,2)}, {vr(g,2)}, {vr(u,2)} op_sel:[0,0,0] op_sel_hi:[0,1,1]")
def c2(dst, L, g): a(f"v_pk_fma_f32 {vr(dst,2)}, {vr(L,2)}, {vr(g,2)}, {vr(dst,2)} op_sel:[1,1,0] op_sel_hi:[1,0,1] neg_lo:[1,0,0]")
sc1(0); sc1(1); sc1(2); sc2(0); sc2(1); sc2(2)
src = UP
for r in range(1, 16):
    dst = G0 if r % 2 else G1
    if r == 8 and CPOS: waitc(vCNT, C_GH, f"s{sSYNC}", 8)
    c1(dst, vL, src, UP + 2*r)
    if r < 14: sc1(r + 2)
    if r >= 8 and CPOS: row1(2*(r-8), sT3, 32768, 0)
    c2(dst, vL, src)
    if r < 14: sc2(r + 2)
    if r >= 8 and CPOS: row1(2*(r-8) + 1, sT3, 32768, 0)
    src = dst
a(f"ds_write_b64 v13, {vr(G0,2)}")
gsync(vCNT, vONE, 32, C_GH)
stamp(6)
ESR = 32
for s in range(8):
    a(f"ds_read_b64 {vr(ESR+2*s,2)}, v15 offset:{256*s}")
a(f"s_lshl_b32 s{sT6}, s{sPB}, 13")
a(f"s_add_u32 s{sT6}, s{sT6}, {WS_ST}")
a(f"s_lshl_b32 s{sT0}, s{sC}, 9")
a(f"s_add_u32 s{sT0}, s{sT0}, s{sT6}")
a(f"v_mov_b64 {vr(G0,2)}, 0")
a(f"s_mov_b32 s{sCNT}, {POLL_LIMIT}")
a("s_waitcnt lgkmcnt(0)")
a(f"v_mov_b64 {vr(G1,2)}, {vr(ESR,2)}")
for w in range(4):
    if w: cmul_add(G1, vL16_, G0, ESR + 4*w)
    if w < 3:
        a(f"s_cmp_eq_u32 s{sWV}, {w}")
        a("s_cbranch_scc1 L_h_segdone")
        cmul_add(G0, vL16_, G1, ESR + 4*w + 2)
cmul_add(48, vL16_, G1, ESR + 14)
a(f"v_mov_b32 v50, v49")
a(f"v_mov_b32 v49, s{sTAG}")
a(f"v_mov_b32 v51, s{sTAG}")
a("s_mov_b32 exec_hi, 0")
a(f"buffer_store_dwordx4 v[48:51], v14, {sr(R_WS,4)}, s{sT0} offen sc1")
a("s_mov_b64 exec, -1")
lab("L_h_segdone")
a(f"s_mov_b32 s{sM}, 0")
a(f"s_mov_b32 s{sM+1}, -1")
a(f"v_cndmask_b32 v{G0}, v{G0}, v{G1}, s[{sM}:{sM+1}]")
a(f"v_cndmask_b32 v{G0+1}, v{G0+1}, v{G1+1}, s[{sM}:{sM+1}]")
if not CPOS:
    for n in range(16): row1(n, sT3, 32768, 0); pace()
stamp(7)
cm("chunk carry: each lane gathers two predecessors' end states")
a(f"v_mov_b64 {vr(G1,2)}, 0")
a(f"s_cmp_eq_u32 s{sC}, 0")
a("s_cbranch_scc1 L_h_stskip")
lab("L_h_stpoll")
a(f"buffer_load_dwordx4 v[52:55], v{vO0}, {sr(R_WS,4)}, s{sT6} offen sc1")
a(f"buffer_load_dwordx4 v[56:59], v{vO1}, {sr(R_WS,4)}, s{sT6} offen sc1")
a("s_waitcnt vmcnt(0)")
a(f"v_cmp_ne_u32 vcc, s{sTAG}, v53")
a(f"v_cmp_ne_u32 s[{sM}:{sM+1}], s{sTAG}, v55")
a(f"s_or_b64 s[{sM}:{sM+1}], s[{sM}:{sM+1}], vcc")
a(f"v_cmp_ne_u32 vcc, s{sTAG}, v57")
a(f"s_or_b64 s[{sM}:{sM+1}], s[{sM}:{sM+1}], vcc")
a(f"v_cmp_ne_u32 vcc, s{sTAG}, v59")
a(f"s_or_b64 s[{sM}:{sM+1}], s[{sM}:{sM+1}], vcc")
a("s_cbranch_scc0 L_h_stok")
a(f"s_sub_u32 s{sCNT}, s{sCNT}, 1")
a("s_cbranch_scc0 L_h_stpoll")
lab("L_h_stok")
a(f"v_pk_mul_f32 {vr(G1,2)}, {vr(vM0,2)}, v[52:53] op_sel:[0,0] op_sel_hi:[1,0]")
a(f"v_pk_mul_f32 v[60:61], {vr(vM1,2)}, v[56:57] op_sel:[0,0] op_sel_hi:[1,0]")
a(f"v_pk_fma_f32 {vr(G1,2)}, {vr(vM0,2)}, v[54:55], {vr(G1,2)} op_sel:[1,0,0] op_sel_hi:[0,0,1] neg_lo:[1,0,0]")
a(f"v_pk_fma_f32 v[60:61], {vr(vM1,2)}, v[58:59], v[60:61] op_sel:[1,0,0] op_sel_hi:[0,0,1] neg_lo:[1,0,0]")
a(f"v_pk_add_f32 {vr(G1,2)}, {vr(G1,2)}, v[60:61]")
lab("L_h_stskip")
a(f"ds_write_b64 v13, {vr(G1,2)} offset:{L_CS - L_ES}")
a("s_waitcnt vmcnt(0)")
mfma32(YACC, 128, 104, "0")
mfma32(YACC, 132, 108)
if WOL == 1: a(f"global_load_dword v10, v18, s[{P_WO}:{P_WO+1}]")
gsync(vCNT, vONE, 32, C_GH)
for s in range(8):
    a(f"ds_read_b64 {vr(32+2*s,2)}, v15 offset:{L_CS - L_ES + 256*s}")
a(f"s_lshl_b32 s{sT0}, s{sC}, 2")
a(f"s_add_u32 s{sT0}, s{sT0}, s{sWV}")
a(f"s_lshl_b32 s{sT4}, s{sT0}, 16")
a(f"s_add_u32 s{sT4}, s{sT4}, {WS_H}")
a(f"s_lshl_b32 s{sT1}, s{sPB}, 11")
a(f"s_add_u32 s{sT1}, s{sT1}, s{sT4}")
a(f"s_add_u32 s{sT2}, s{sT1}, 32768")
a(f"s_lshl_b32 s{sT0}, s{sT0}, 11")
a(f"s_add_u32 s{sT5}, s{sT0}, {WS_FH}")
a(f"s_lshl_b32 s{sT0}, s{sPB}, 7")
a(f"s_add_u32 s{sF1}, s{sT0}, s{sT5}")
a("s_waitcnt lgkmcnt(0)")
stamp(8)
for st in (8, 4, 2):
    for j in range(0, st, 2):
        a(f"v_pk_add_f32 {vr(32+j,2)}, {vr(32+j,2)}, {vr(32+j+st,2)}")
cmul_add(G0, vPS, 32, G0)
HB = 32
cmul_add(UP, vL, G0, UP)
for r in range(1, 16):
    cmul_add(UP + 2*r, vL, UP + 2*(r-1), UP + 2*r)
for part in range(2):
    ng = "-" if part else ""
    for j in range(8):
        a(f"v_cvt_pk_bf16_f32 v{HB+8*part+j}, {ng}v{UP+4*j+part}, {ng}v{UP+4*j+2+part}")
    a(f"ds_write_b128 v16, {vr(HB+8*part,4)}")
    a(f"ds_write_b128 v16, {vr(HB+4+8*part,4)} offset:16")
    for ks in range(2):
        d = 48 + 8*part + 4*ks
        a(f"ds_read_b64_tr_b16 {vr(d,2)}, v19 offset:{1024*ks}")
        a(f"ds_read_b64_tr_b16 {vr(d+2,2)}, v19 offset:{1024*ks+256}")
KIND[0] = "h"
a(f"v_lshlrev_b32 v24, 2, v0")
a(f"v_mov_b32 v25, s{sTAG}")
def flag_novalu(soff):
    a("s_mov_b32 exec_hi, 0")
    st2([f"buffer_store_dword v25, v24, {sr(R_WS,4)}, s{soff} offen@"])
    a("s_mov_b64 exec, -1")
a("s_waitcnt lgkmcnt(0)")
st2([f"buffer_store_dwordx4 {vr(48+8*part+4*ks,4)}, v{vL4}, {sr(R_WS,4)}, s{sT1 if part == 0 else sT2} offen offset:{1024*ks}@" for part in range(2) for ks in range(2)])
a("v_and_b32 v8, 15, v0")
a("v_lshlrev_b32 v12, 7, v8")
CF = 128
LB = int(OPT.get("lb", 1))
if LB: a("s_setprio 0")
for k in range(32):
    a(f"ds_read_b128 {vr(CF+4*k,4)}, v28 offset:{32*k}")
    if k == 13:
        a("s_waitcnt vmcnt(0)")
        flag_novalu(sF1)
a(f"s_add_u32 s{sSYNC}, s{sSYNC}, 4")
signal(vCNT, vONE, C_GH)
if LB: a("s_setprio 2")
stamp(9)
def reduce_inline(RB_, b1=None, bs=None):
    b1 = RB_ + 16 if b1 is None else b1
    bs = RB_ + 32 if bs is None else bs
    Ls, Le = uid("rs"), uid("re")
    a(f"s_mul_i32 s{sT2}, s{sSTEP}, {PSTRIDE}")
    a(f"v_add_u32 v10, s{sT2}, v{vL4}")
    a(f"s_add_u32 s{sT2}, s{sT2}, {L_PART + 8192}")
    o_offsets()
    waitc(11, 0, f"s{sT2}", 8)
    a(f"ds_read_b128 {vr(bs,4)}, v10 offset:8192")
    for w in range(4):
        d = (RB_ if w < 2 else b1) + 8*(w % 2)
        a(f"ds_read_b128 {vr(d,4)}, v10 offset:{2048*w}")
        a(f"ds_read_b128 {vr(d+4,4)}, v10 offset:{2048*w + 1024}")
    a("s_waitcnt lgkmcnt(8)")
    sum_check(bs)
    a("s_waitcnt lgkmcnt(0)")
    a(f"s_cbranch_scc1 {Ls}")
    reduce_math(RB_, vL4, flag=False, b1=b1, bs=bs)
    a(f"s_branch {Le}")
    lab(Ls)
    a(f"s_mov_b32 s{sT0}, {WS_DUMMY}")
    lab(Le)
waitc(vCNT, C_GH, f"s{sSYNC}", 8)
a(f"s_mul_i32 s{sT1}, s{sWV}, {8*RSTR}")
for n in range(16): row1(n, sT3, 0, 32768); pace()
a("v_and_b32 v11, 3, v0")
a("v_lshlrev_b32 v11, 2, v11")
a(f"v_add_u32 v11, {L_PROG}, v11")
a(f"v_add_u32 v13, {(L_PART - L_R1) & 0xffffffff}, v{vWT}")
a(f"s_lshl_b32 s{sT5}, s{sYY}, 11")
a(f"s_add_u32 s{sT5}, s{sT5}, {WS_FH}")
a(f"s_lshl_b32 s{sT4}, s{sYY}, 16")
a(f"s_and_b32 s{sT1}, s{sWV}, 1")
a(f"s_lshl_b32 s{sT1}, s{sT1}, 15")
a(f"s_add_u32 s{sT4}, s{sT4}, s{sT1}")
a(f"s_add_u32 s{sT4}, s{sT4}, {WS_H}")
stamp(10)
poll(12, f"s{sT5}", 8)
stamp(11)
HR, CR, NH = 48, 96, 12
WF, OF = 48, 128
def hload(k):
    if k % 4 == 0 and k: a(f"s_add_u32 s{sT4}, s{sT4}, 4096")
    a(f"buffer_load_dwordx4 {vr(HR+4*(k%NH),4)}, v{vL4}, {sr(R_WS,4)}, s{sT4} offen offset:{1024*(k%4)} sc1")
def cread(k):
    a(f"ds_read_b128 {vr(CR+4*(k%4),4)}, v28 offset:{32*k}")
def oload(k):
    if k % 4 == 0 and k: a(f"s_add_u32 s{sT6}, s{sT6}, 4096")
    a(f"buffer_load_dwordx4 {vr(OF+4*k,4)}, v{vL4}, {sr(R_WS,4)}, s{sT6} offen offset:{1024*(k%4)} sc1")
def wo_setup():
    a(f"s_and_b32 s{sT0}, s{sWV}, 1")
    a(f"s_lshl_b32 s{sT0}, s{sT0}, 18")
    a(f"s_lshr_b32 s{sT1}, s{sWV}, 1")
    a(f"s_lshl_b32 s{sT1}, s{sT1}, 14")
    a(f"s_add_u32 s{sT0}, s{sT0}, s{sT1}")
    a(f"s_lshl_b32 s{sT1}, s{sG}, 7")
    a(f"s_add_u32 s{sT0}, s{sT0}, s{sT1}")
    a(f"s_mul_i32 s{sT1}, s{sWV}, {PSTRIDE}")
def wo_one(half, n):
    q, i = n // 2, n % 2
    a(f"s_add_u32 m0, s{sT1}, {(L_R1 if half else L_PART) + 2048*q + 1024*i}")
    a(f"s_add_u32 s{sT2}, s{sT0}, {32768*half + 65536*q + 8192*i}")
    dma(vWO, R_A, f"s{sT2}")
def wread(dst, k):
    o = PSTRIDE * ((k % 16) // 4) + 2048 * (k % 4)
    ad = 13 if k < 16 else vWT
    a(f"ds_read_b64_tr_b16 {vr(dst,2)}, v{ad} offset:{o}")
    a(f"ds_read_b64_tr_b16 {vr(dst+2,2)}, v{ad} offset:{o+1024}")
HD, CD = 11, 3
RK = int(OPT.get("rk", 25))
FK = 4
VM, LG = Cnt(), Cnt()
for k in range(HD): hload(k); VM.issue(("h", k))
a(f"s_lshl_b32 s{sT5}, s{sYG}, 12")
a(f"s_add_u32 s{sT5}, s{sT5}, {WS_FO}")
a(f"s_lshl_b32 s{sT6}, s{sYG}, 15")
a(f"s_add_u32 s{sT6}, s{sT6}, {WS_O}")
a(f"s_mov_b32 s{sSTEP}, s{sWV}")
KIND[0] = "o"
reduce_inline(32, 96, 20)
a(f"s_mov_b32 s{sF1}, s{sT0}")
gsync(vCNT, vONE, 8, C_GH)
a(f"s_setprio {YPRIO}")
for k in range(CD): cread(k); LG.issue(("c", k))
FLK = int(OPT.get("flk", 14))
oq = list(range(16))
for k in range(32):
    if k == FK:
        waits(vm=VM.need(("h", HD)))
        flag_novalu(sF1); VM.issue("f")
        wo_setup()
    if k == FLK:
        a(f"buffer_load_dword v9, v12, {sr(R_WS,4)}, s{sT5} offen sc1"); VM.issue("fl")
    if k == FLK + 5:
        waits(vm=VM.need("fl"))
        a("s_setprio 2")
        a(f"v_cmp_ne_u32 vcc, s{sTAG}, v9")
        a("s_cbranch_vccz L_y_ok")
        poll(12, f"s{sT5}", 8)
        lab("L_y_ok")
        a(f"s_setprio {YPRIO}")
    if k + HD < 32: hload(k + HD); VM.issue(("h", k + HD))
    if k + CD < 32: cread(k + CD); LG.issue(("c", k + CD))
    waits(vm=VM.need(("h", k)), lg=LG.need(("c", k)))
    mfma32(YACC, HR + 4*(k % NH), CR + 4*(k % 4))
    n = k - FK - 1
    if 0 <= n < 8: wo_one(0, n); VM.issue("wo")
    if k >= FLK + 5:
        for _ in range(2 if k + HD >= 32 else 1):
            if oq: oload(oq.pop(0)); VM.issue("o")
    mfma32(32, HR + 4*(k % NH), CF + 4*k, "0" if k == 0 else None)
assert not oq
a("s_setprio 2")
a(f"s_lshl_b32 s{sT2}, s{sWV}, 12")
a(f"s_add_u32 s{sT2}, s{sT2}, {L_R1 + 40960}")
a(f"v_add_u32 v10, s{sT2}, v{vL4}")
a("v_xor_b32 v11, 4096, v10")
assert (L_R1 + 40960) % 8192 == 0
a(f"s_lshl_b32 s{sT2}, s{sWV}, 9")
a(f"s_add_u32 s{sT2}, s{sT2}, {L_CS}")
a("v_lshlrev_b32 v8, 3, v0")
a(f"v_add_u32 v8, s{sT2}, v8")
a(f"ds_write2_b32 v8, v{vWT}, v1 offset1:1")
waits(vm=VM.need("wo"))
gsync(vCNT, vONE, 8, C_GH)
stamp(12)
for i in range(8):
    wo_one(1, i)
    if i < 4: a(f"ds_write_b128 v10, {vr(32+4*i,4)} offset:{1024*i}")
    if i == 3:
        a(f"s_add_u32 s{sSYNC}, s{sSYNC}, 4")
        signal(vCNT, vONE, C_GH)
    if 4 <= i < 7: pace()
srd(R_B, P_OUT, 2048 * 4096)
a(f"s_lshl_b32 s{sT0}, s{sYY}, 17")
a(f"s_lshl_b32 s{sT1}, s{sCG}, 7")
a(f"s_add_u32 s{sT0}, s{sT0}, s{sT1}")
def store1(b, r, off=0):
    a(f"s_add_u32 s{sT1}, s{sT0}, {4096 * (8*(r//4) + r%4)}")
    a(f"buffer_store_dword v{b+r}, v1, {sr(R_B,4)}, s{sT1} offen" + (f" offset:{off}" if off else "") + YFL)
a(f"s_mul_i32 s{sT2}, s{sWV}, {PSTRIDE}")
a(f"v_add_u32 v10, s{sT2}, v{vL4}")
a(f"s_lshl_b32 s{sT2}, s{sWV}, 2")
a(f"v_add_u32 v9, s{sT2}, v{vCNT}")
waitc(vCNT, C_GH, f"s{sSYNC}", 8)
for i in range(4):
    a(f"ds_read_b128 {vr(192+4*i,4)}, v11 offset:{1024*i}")
YL = OPT.get("ylate") == "1"
def ystores():
    for j in range(8):
        a(f"v_pk_add_f32 {vr(YACC+2*j,2)}, {vr(YACC+2*j,2)}, {vr(192+2*j,2)}")
        store1(YACC, 2*j, 2048)
        store1(YACC, 2*j + 1, 2048)
if LB: a("s_setprio 0")
for k in range(16): wread(WF + 4*k, k)
if LB: a("s_setprio 2")
a(f"s_waitcnt vmcnt(0) lgkmcnt(15)")
a(f"s_add_u32 s{sSYNC}, s{sSYNC}, 4")
signal(vCNT, vONE, C_GH)
for j in range(8):
    a(f"v_pk_add_f32 {vr(YACC+2*j,2)}, {vr(YACC+2*j,2)}, {vr(192+2*j,2)}")
a(f"s_waitcnt lgkmcnt(0)")
stamp(14)
a("s_setprio 0")
for k in range(16):
    mfma32(32, OF + 4*k, WF + 4*k, "0" if k == 0 else None)
    store1(YACC, k, 2048)
nsync = sum(1 for n in ("HQ", "H") for x in SECS[n] if x.strip() == f"s_add_u32 s{sSYNC}, s{sSYNC}, 4")
SECS["P"].insert(0, f".set NSYNC_B2, {4*nsync}")
a("s_setprio 2")
waitc(vCNT, C_GH, f"s{sSYNC}", 8)
a("s_nop 6")
for i in range(4):
    a(f"ds_write_b128 v10, {vr(32+4*i,4)} offset:{1024*i}")
a(f"ds_write_b32 v9, v{vONE} offset:{C_HA}")
stamp(13)
if YL:
    waitc(vCNT, C_S, 4, 8, sleep=1)
    ystores()
a("s_branch L_end")

lab("L_slow")
a("s_waitcnt lgkmcnt(0)")
a(f"s_mov_b32 s{sKIND}, 0")
a(f"s_lshl_b32 s{sT0}, s{sSTEP}, 10")
a(f"s_add_u32 s{sT0}, s{sT0}, {L_QF}")
a(f"v_add_u32 v4, s{sT0}, v14")
a(f"ds_read_b128 {vr(vQ,4)}, v4")
a("v_mov_b32 v4, 0xff800000")
a("v_lshrrev_b32 v16, 5, v0")
a("v_and_b32 v17, 15, v0")
a("v_lshl_add_u32 v15, v16, 4, v17")
a("v_lshlrev_b32 v15, 4, v15")
a(f"s_mov_b32 s{sM}, 0xffff")
a(f"s_mov_b32 s{sM+1}, 0xffff")
a(f"s_mov_b32 s{sT0}, {WS_KV}")
lab("L_slow_p1")
kvload(0)
a("s_waitcnt vmcnt(0) lgkmcnt(0)")
for t in range(2):
    qk(S0, t)
    a("s_nop 11")
    for i in range(8):
        a(f"v_max3_f32 v4, v{S0+2*i}, v{S0+2*i+1}, v4")
a(f"s_cmp_lt_u32 s{sT0}, {WS_KV + 131072}")
a("s_cbranch_scc1 L_slow_p1")
a("v_mov_b32 v5, v4")
a("s_nop 1")
a("v_permlane32_swap_b32 v4, v5")
a("v_max_f32 v4, v4, v5")
for i in range(16):
    a(f"v_sub_f32 v{S1+i}, 0, v4")
zeroO()
a(f"s_mov_b32 s{sT0}, {WS_KV}")
lab("L_slow_p2")
kvload(0)
a("s_waitcnt vmcnt(0)")
for t in range(2):
    mfma32(S0, K_(t), vQ, vr(S1, 16))
    a("s_nop 11")
    exs(S0, 0, 16)
    a("s_nop 1")
    smf(V1(t), S0)
    smf(V2(t), S0 + 8)
a(f"s_cmp_lt_u32 s{sT0}, {WS_KV + 131072}")
a("s_cbranch_scc1 L_slow_p2")
o_offsets()
a(f"v_rcp_f32 v4, v{vO+8}")
a("s_nop 0")
for j in range(4):
    a(f"v_pk_mul_f32 {vr(vO+2*j,2)}, {vr(vO+2*j,2)}, v[4:5] op_sel_hi:[1,0]")
for j in range(4):
    a(f"v_cvt_pk_bf16_f32 v{16+j}, v{vO+2*j}, v{vO+2*j+1}")
a(f"buffer_store_dwordx4 v[16:19], v14, {sr(R_WS,4)}, s{sT1} offen sc1")
a("s_waitcnt vmcnt(0)")
setflag(16, 17, sT0)
a("v_and_b32 v15, 15, v0")
a("v_lshlrev_b32 v15, 7, v15")
a("v_lshlrev_b32 v7, 3, v0")
a(f"v_add_u32 v7, s{sT5}, v7")
a(f"s_lshl_b32 s{sT0}, s{sWV}, 2")
a(f"v_add_u32 v10, s{sT0}, v{vCA}")
a(f"s_cmp_lt_u32 s{sSTEP}, 4")
a("s_cbranch_scc1 L_a_ok2")
a("ds_read_b128 v[56:59], v6 offset:8192")
a("s_waitcnt lgkmcnt(0)")
a("s_branch L_a_ok1")
lab("L_a_bad1")
a("s_waitcnt lgkmcnt(0)")
a(f"s_sub_u32 s{sSTEP}, 7, s{sWV}")
a("s_branch L_slow")
lab("L_a_bad2")
a(f"s_mov_b32 s{sSTEP}, s{sWV}")
a("s_branch L_slow")

lab("L_end")
ROLE[0] = "E"
if PROBE:
    a("s_waitcnt vmcnt(0)")
    stamp(15)
    a(f"s_cmp_ge_u32 s{sW}, 4")
    a(f"s_cbranch_scc{0 if PROBE[0] == 'A' else 1} L_exit")
    a(f"s_cmp_eq_u32 s{80+int(PROBE[1])}, 0")
    a("s_cbranch_scc1 L_exit")
    a(f"s_sub_u32 s{sT0}, s{80+int(PROBE[1])}, s{80+int(PROBE[2])}")
    if OPT.get("pmode"):
        a(f"s_cmp_eq_u32 s{sMODE}, 1")
        a(f"s_cselect_b32 s{sT0}, 0, 1000")
    a(f"s_min_u32 s{sT0}, s{sT0}, 10000")
    a(f"s_lshl_b32 s{sT0}, s{sT0}, 1")
    a(f"s_memrealtime s[{sST}:{sST+1}]")
    a("s_waitcnt lgkmcnt(0)")
    a(f"s_mov_b32 s{sT1}, s{sST}")
    lab("L_probe")
    a(f"s_memrealtime s[{sST}:{sST+1}]")
    a("s_waitcnt lgkmcnt(0)")
    a(f"s_sub_u32 s{sT2}, s{sST}, s{sT1}")
    a(f"s_cmp_lt_u32 s{sT2}, s{sT0}")
    a("s_cbranch_scc1 L_probe")
elif STAMPS:
    a("s_waitcnt vmcnt(0)")
    stamp(15)
    a(f"s_lshl_b32 s{sT0}, s2, 3")
    a(f"s_xor_b32 s{sT1}, s{sW}, 4")
    a(f"s_add_u32 s{sT0}, s{sT0}, s{sT1}")
    a(f"s_lshl_b32 s{sT0}, s{sT0}, 6")
    a(f"s_add_u32 s{sT0}, s{sT0}, {WS_STAMP}")
    for i in range(16): a(f"v_mov_b32 v{16+i}, s{80+i}")
    a("v_mov_b32 v0, 0")
    a("s_mov_b64 exec, 1")
    for i in range(4):
        a(f"buffer_store_dwordx4 {vr(16+4*i,4)}, v0, {sr(R_WS,4)}, s{sT0} offen offset:{16*i}")
lab("L_exit")
a("s_endpgm")

hdr = open("cdna_kernels/" + NAME + ".s.ref").read().split("; Override launch")[0]
src = hdr + f"; @launch grid=(256,1,1) block=(512,1,1) lds={LDS_BYTES}\n" + f""".amdgcn_target "amdgcn-amd-amdhsa--gfx950"
.text
.globl {NAME}_kernel
.p2align 8
.type {NAME}_kernel,@function
{NAME}_kernel:
""" + "\n".join(x for n in ("P", "AL", "HQ", "Z", "A", "H") for x in SECS[n]) + f"""
.section .rodata,"a"
.p2align 6
.amdhsa_kernel {NAME}_kernel
  .amdhsa_next_free_vgpr 256
  .amdhsa_next_free_sgpr 102
  .amdhsa_accum_offset 256
  .amdhsa_group_segment_fixed_size 0
  .amdhsa_kernarg_size 136
  .amdhsa_user_sgpr_count 2
  .amdhsa_user_sgpr_kernarg_segment_ptr 1
  .amdhsa_system_sgpr_workgroup_id_x 1
.end_amdhsa_kernel
"""
open(OUT, "w").write(src)
```

```python
import sys, math, struct
NAME = "concat_heads__grouped_kv_mqa__ssm_conv_s5__prompt"
STAMPS = "--stamps" in sys.argv
OPT = dict(a.lstrip("-").split("=") for a in sys.argv[1:] if a.startswith("--") and "=" in a)
OUT = [a for a in sys.argv[1:] if not a.startswith("--")][0]
OUTFL = OPT.get("outfl", "nt").replace(",", " ")
if OUTFL: OUTFL = " " + OUTFL
YFL = OPT.get("yfl", "nt").replace(",", " ")
if YFL: YFL = " " + YFL

def f32(x): return "0x%08x" % struct.unpack("<I", struct.pack("<f", x))[0]

FSH = int(OPT.get('fsh', 6))
WS_O2 = 0x300000
C_HA = 48
WS_DUMMY = 0x800
WS_FKV = 0x1000
WS_FH  = 0x20000
WS_FO  = 0x80000
WS_KV  = 0x40000
WS_ST  = 0x60000
WS_O   = 0x100000
WS_H   = 0x400000
WS_SLOW = 0x800000
WS_STAMP = 15 << 20
WS_SIZE = 16 << 20
L_XA, L_WQ, L_KVP, L_WKV = 0, 65536, 131072, 140288
L_PART, L_R1, L_SCR, L_ES, L_QF, L_PROG, L_CNT = 0, 73728, 140288, 148480, 150528, 158720, 159744
L_MAX = 159808
L_CS = 160832

LDS_BYTES = 163840
PSTRIDE = 9216
RSTR = 1040
POLL_LIMIT = 400000
C_A1, C_H1, C_H2, C_A3, C_A4, C_GA, C_GH, C_TAG, C_H3, C_S, C_H0, C_DONE = 0, 4, 8, 12, 16, 20, 24, 28, 32, 36, 40, 44

SECS = {}
class _L:
    cur = None
    def append(self, x): SECS[_L.cur].append(x)
lines = _L()
def sec(n):
    SECS.setdefault(n, []); _L.cur = n
sec("P")
def a(s): lines.append("    " + s)
def lab(s): lines.append(s + ":")
def cm(s): lines.append("    ; " + s)
_uid = [0]
def uid(p):
    _uid[0] += 1
    return f"L_{p}{_uid[0]}"
def vr(b, n): return f"v[{b}:{b+n-1}]"
def sr(b, n): return f"s[{b}:{b+n-1}]"

sW, sTAG, sRB, sG, sC, sPB = 3, 4, 5, 6, 7, 8
sT0, sT1, sT2, sT3, sT4, sCNT = 9, 10, 11, 12, 13, 14
sWV = 15
P_AX, P_WQ, P_WK, P_WV, P_WO, P_BX, P_LRE, P_LIM = 16, 18, 20, 22, 24, 26, 28, 30
P_BRE, P_BIM, P_CRE, P_CIM, P_LDT, P_DSK, P_OUT, P_DBG = 32, 34, 36, 38, 40, 42, 44, 46
P_WS = 48
sT5, sT6 = 50, 51
R_WS, R_A, R_B, R_C = 52, 56, 60, 64
sM = 68
sGRP, sKIND, sSTEP, sSYNC = 70, 71, 72, 73
sRET = 74
sST = 76
sLO, sHI = 78, 79
sROT = sSTEP
sF1, sF2 = 0, 1
sYG, sCG, sPC = 96, 97, 98
sGY, sYY = 100, 101
YM = int(OPT.get('ymap', 0))
sMODE = sGRP
C_MODE = C_DONE
LFL = OPT.get('lfl', '').replace(',', ' ')
if LFL: LFL = ' ' + LFL

def srd(dst, ptr, nbytes):
    a(f"s_mov_b32 s{dst}, s{ptr}")
    a(f"s_and_b32 s{dst+1}, s{ptr+1}, 0xffff")
    a(f"s_mov_b32 s{dst+2}, {nbytes}")
    a(f"s_mov_b32 s{dst+3}, 0x20000")

PROBE = OPT.get("probe")
ROLE = ["?"]
if PROBE:
    PROBE = PROBE.split(","); STAMPS = True
def stamp(i, ins="s_memrealtime"):
    if PROBE and not (ins == "s_memrealtime" and (ROLE[0] in (PROBE[0], "E")) and str(i) in PROBE[1:]): return
    if OPT.get("dbg") == "steps" and ROLE[0] == "A" and i < 10: return
    if OPT.get("sel") and ROLE[0] != "E" and f"{ROLE[0]}{i}" not in OPT["sel"].split(","): return
    if STAMPS:
        a(f"{ins} s[{sST}:{sST+1}]")
        a("s_waitcnt lgkmcnt(0)")
        a(f"s_mov_b32 s{80+i}, s{sST}")
def cstamp(i): stamp(i, "s_memtime")
DBG = OPT.get("dbg", "")
def dstamp(name, i):
    if DBG == name: stamp(i)
_stamp0 = stamp


def dma(voff, srdr, soff, imm=0):
    o = f" offset:{imm}" if imm else ""
    a(f"buffer_load_dwordx4 v{voff}, {sr(srdr,4)}, {soff} offen{o} lds")

PACE = int(OPT.get("pace", 24))
def pace():
    n = PACE
    while n > 0:
        a(f"s_nop {min(n, 16) - 1}"); n -= 16

def poll(voff, soff, vt, sleep=0, fl=" sc1"):
    L, D = uid("poll"), uid("pdone")
    a(f"s_mov_b32 s{sCNT}, {POLL_LIMIT}")
    lab(L)
    a(f"buffer_load_dword v{vt}, v{voff}, {sr(R_WS,4)}, {soff} offen{fl}")
    a("s_waitcnt vmcnt(0)")
    a(f"v_cmp_ne_u32 vcc, s{sTAG}, v{vt}")
    a(f"s_cbranch_vccz {D}")
    if sleep: a(f"s_sleep {sleep}")
    a(f"s_sub_u32 s{sCNT}, s{sCNT}, 1")
    a(f"s_cbranch_scc0 {L}")
    lab(D)

def setflag(vt0, vt1, soff):
    a(f"v_mov_b32 v{vt0}, 0")
    a(f"v_mov_b32 v{vt1}, s{sTAG}")
    a("s_mov_b64 exec, 1")
    a(f"buffer_store_dword v{vt1}, v{vt0}, {sr(R_WS,4)}, s{soff} offen sc1")
    a("s_mov_b64 exec, -1")

LOC = OPT.get("loc", "t")
KIND = ["t"]
assert not (YM and "h" in LOC)
def st2(instrs):
    if KIND[0] not in LOC:
        for x in instrs: a(x.replace("@", " sc1"))
        return
    L, E = uid("sl"), uid("se")
    a(f"s_cmp_eq_u32 s{sMODE}, 1")
    a(f"s_cbranch_scc1 {L}")
    for x in instrs: a(x.replace("@", " sc1"))
    a(f"s_branch {E}")
    lab(L)
    for x in instrs: a(x.replace("@", LFL))
    lab(E)

def spf(spec):
    for ptr, lines, first, cnt in spec:
        a(f"s_lshl2_add_u32 s{sRET}, s2, s{sWV}")
        a(f"s_mul_i32 s{sRET}, s{sRET}, {128*lines}")
        a(f"s_add_u32 s{sRET}, s{sRET}, s{ptr}")
        a(f"s_addc_u32 s{sRET+1}, s{ptr+1}, 0")
        for i in range(first, first + cnt):
            a(f"s_load_dword s{sST}, s[{sRET}:{sRET+1}], {128*i}")

def signal(vcnt, vone, off):
    a("s_mov_b64 exec, 1")
    a(f"ds_add_u32 v{vcnt}, v{vone} offset:{off}")
    a("s_mov_b64 exec, -1")

HSL = int(OPT.get("hsl", 0))
def waitc(vcnt, off, target, vt, sleep=0):
    L = uid("wc")
    if ROLE[0] == "H" and _L.cur == "H": sleep = max(sleep, HSL)
    if sleep:
        L2 = uid("wd")
        a(f"s_branch {L2}")
    lab(L)
    if sleep:
        a(f"s_sleep {sleep}")
        lab(L2)
    a(f"ds_read_b32 v{vt}, v{vcnt} offset:{off}")
    a("s_waitcnt lgkmcnt(0)")
    a(f"v_cmp_gt_u32 vcc, {target}, v{vt}")
    a(f"s_cbranch_vccnz {L}")

def gsync(vcnt, vone, vt, off):
    a("s_waitcnt lgkmcnt(0)")
    a(f"s_add_u32 s{sSYNC}, s{sSYNC}, 4")
    signal(vcnt, vone, off)
    waitc(vcnt, off, f"s{sSYNC}", vt)

def mfma32(d, x, y, c=None):
    c = vr(d, 16) if c is None else c
    a(f"v_mfma_f32_32x32x16_bf16 {vr(d,16)}, {vr(x,4)}, {vr(y,4)}, {c}")

def cmul_add(dst, L, g, u):
    a(f"v_pk_fma_f32 {vr(dst,2)}, {vr(L,2)}, {vr(g,2)}, {vr(u,2)} op_sel:[0,0,0] op_sel_hi:[0,1,1]")
    a(f"v_pk_fma_f32 {vr(dst,2)}, {vr(L,2)}, {vr(g,2)}, {vr(dst,2)} op_sel:[1,1,0] op_sel_hi:[1,0,1] neg_lo:[1,0,0]")

def cmul(dst, x, y):
    a(f"v_pk_mul_f32 {vr(dst,2)}, {vr(x,2)}, {vr(y,2)} op_sel:[0,0] op_sel_hi:[0,1]")
    a(f"v_pk_fma_f32 {vr(dst,2)}, {vr(x,2)}, {vr(y,2)}, {vr(dst,2)} op_sel:[1,1,0] op_sel_hi:[1,0,1] neg_lo:[1,0,0]")

def csq(dst, src, t):
    a(f"v_mul_f32 v{t}, v{src+1}, v{src+1}")
    a(f"v_add_f32 v{t+1}, v{src}, v{src}")
    a(f"v_fma_f32 v{dst}, v{src}, v{src}, -v{t}")
    a(f"v_mul_f32 v{dst+1}, v{t+1}, v{src+1}")

def xvoffsets(XO, t0):
    a(f"v_lshrrev_b32 v{t0}, 4, v0")
    a(f"v_and_b32 v{t0+1}, 15, v0")
    for i in range(4):
        a(f"v_add_u32 v{t0+2}, {4*i}, v{t0}")
        a(f"v_xor_b32 v{t0+3}, v{t0+1}, v{t0+2}")
        a(f"v_lshlrev_b32 v{t0+3}, 4, v{t0+3}")
        a(f"v_lshl_add_u32 v{XO+i}, v{t0+2}, 10, v{t0+3}")

def wtr_addr(dst, hhshift, base, t):
    a(f"v_bfe_u32 v{t}, v0, 2, 2")
    a(f"v_bfe_u32 v{t+1}, v0, 4, 1")
    a(f"v_bfe_u32 v{t+2}, v0, 1, 1")
    a(f"v_lshl_add_u32 v{t+1}, v{t+1}, 1, v{t+2}")
    a(f"s_and_b32 s{sT0}, s{sWV}, 1")
    a(f"s_lshl_b32 s{sT0}, s{sT0}, 2")
    a(f"v_add_u32 v{t+1}, s{sT0}, v{t+1}")
    a(f"v_bfe_u32 v{t+2}, v0, 3, 1")
    a(f"v_lshlrev_b32 v{t+2}, 2, v{t+2}")
    a(f"v_xor_b32 v{t+1}, v{t+1}, v{t+2}")
    a(f"v_lshlrev_b32 v{t+1}, 4, v{t+1}")
    a(f"v_lshl_add_u32 v{t+1}, v{t}, 7, v{t+1}")
    a(f"v_and_b32 v{t+2}, 1, v0")
    a(f"v_lshl_add_u32 v{t+1}, v{t+2}, 3, v{t+1}")
    a(f"v_lshrrev_b32 v{t+2}, 5, v0")
    a(f"v_lshl_add_u32 v{t+1}, v{t+2}, {hhshift}, v{t+1}")
    a(f"v_add_u32 v{dst}, {base}, v{t+1}")

def o_offsets():
    a(f"s_and_b32 s{sT0}, s{sSTEP}, 1")
    a(f"s_lshl_b32 s{sT1}, s{sRB}, 1")
    a(f"s_add_u32 s{sT0}, s{sT0}, s{sT1}")
    a(f"s_lshl_b32 s{sT0}, s{sT0}, 2")
    a(f"s_lshr_b32 s{sT1}, s{sSTEP}, 1")
    a(f"s_add_u32 s{sT0}, s{sT0}, s{sT1}")
    a(f"s_lshl_b32 s{sT0}, s{sT0}, 3")
    a(f"s_add_u32 s{sT0}, s{sT0}, s{sG}")
    a(f"s_lshl_b32 s{sT1}, s{sT0}, 10")
    a(f"s_add_u32 s{sT1}, s{sT1}, {WS_O}")
    a(f"s_lshl_b32 s{sT0}, s{sT0}, 7")
    a(f"s_add_u32 s{sT0}, s{sT0}, {WS_FO}")

def sum_check(b):
    a(f"v_pk_add_f32 {vr(b,2)}, {vr(b,2)}, {vr(b+2,2)}")
    a(f"v_add_f32 v{b}, v{b}, v{b+1}")
    a(f"v_cmp_nle_f32 vcc, s{sLO}, v{b}")
    a(f"v_cmp_nge_f32 s[{sM}:{sM+1}], s{sHI}, v{b}")
    a(f"s_or_b64 vcc, vcc, s[{sM}:{sM+1}]")

def reduce_math(b, vl16, flag=True, tagged=False, b1=None, bs=None):
    b1 = b + 16 if b1 is None else b1
    bs = b + 32 if bs is None else bs
    a(f"v_rcp_f32 v{bs+2}, v{bs}")
    for j in range(4):
        a(f"v_pk_add_f32 {vr(b+2*j,2)}, {vr(b+2*j,2)}, {vr(b+8+2*j,2)}")
    for j in range(4):
        a(f"v_pk_add_f32 {vr(b1+2*j,2)}, {vr(b1+2*j,2)}, {vr(b1+8+2*j,2)}")
    for j in range(4):
        a(f"v_pk_add_f32 {vr(b+2*j,2)}, {vr(b+2*j,2)}, {vr(b1+2*j,2)}")
    for j in range(4):
        a(f"v_pk_mul_f32 {vr(b+2*j,2)}, {vr(b+2*j,2)}, {vr(bs+2,2)} op_sel_hi:[1,0]")
    for j in range(4):
        a(f"v_cvt_pk_bf16_f32 v{b+8+j}, v{b+2*j}, v{b+2*j+1}")
    if not flag:
        st2([f"buffer_store_dwordx4 {vr(b+8,4)}, v{vl16}, {sr(R_WS,4)}, s{sT1} offen@"])
        return
    a(f"buffer_store_dwordx4 {vr(b+8,4)}, v{vl16}, {sr(R_WS,4)}, s{sT1} offen sc1")
    a("s_waitcnt vmcnt(0)")
    setflag(b, b + 1, sT0)

STG3 = 1
LOG2E = 1.4426950408889634
L_LO, L_HI = 2.0 ** -60, 2.0 ** 60


class Cnt:
    def __init__(s): s.q = []
    def issue(s, tag, n=1): s.q += [tag] * n
    def need(s, tag):
        if tag not in s.q: return None
        i = len(s.q) - 1 - s.q[::-1].index(tag)
        n = len(s.q) - 1 - i
        s.q = s.q[i + 1:]
        return n
def waits(vm=None, lg=None):
    p = []
    if vm is not None: p.append(f"vmcnt({min(vm,63)})")
    if lg is not None: p.append(f"lgkmcnt({min(lg,15)})")
    if p: a("s_waitcnt " + " ".join(p))

a("s_cmp_ge_u32 s2, 256")
a("s_cbranch_scc1 L_exit")
a(f"s_load_dwordx16 s[16:31], s[0:1], 0")
a(f"s_load_dwordx16 s[32:47], s[0:1], 64")
a(f"s_load_dwordx2 s[48:49], s[0:1], 128")
EPF = [int(x) for x in OPT.get("epf", "").split(",") if x]
if EPF:
    cm("request the first code lines at once instead of one miss after the other")
    a(f"s_getpc_b64 s[{sM}:{sM+1}]")
    a(f"v_subrev_u32 v2, {EPF[0]}, v0")
    a(f"v_cmp_gt_u32 vcc, {EPF[1]}, v2")
    a("v_lshlrev_b32 v2, 7, v2")
    a(f"s_and_saveexec_b64 s[{sRET}:{sRET+1}], vcc")
    a("s_cbranch_execz L_noepf")
    a(f"global_load_dword v31, v2, s[{sM}:{sM+1}] offset:128")
    lab("L_noepf")
    a("s_mov_b64 exec, -1")
if STAMPS:
    for i in range(16): a(f"s_mov_b32 s{80+i}, 0")
    a("s_memrealtime s[80:81]")
    a("s_memtime s[92:93]")
a("v_lshrrev_b32 v1, 6, v0")
a("v_and_b32 v0, 63, v0")
a(f"v_readfirstlane_b32 s{sW}, v1")
a("v_lshlrev_b32 v6, 4, v0")
a("v_lshrrev_b32 v12, 4, v0")
a("v_and_b32 v13, 15, v0")
a(f"s_and_b32 s{sT0}, s2, 7")
a(f"s_lshr_b32 s{sT1}, s2, 3")
a(f"s_and_b32 s{sT2}, s{sT1}, 3")
a(f"s_lshl_b32 s{sRB}, s{sT0}, 2")
a(f"s_add_u32 s{sRB}, s{sRB}, s{sT2}")
a(f"s_lshr_b32 s{sG}, s{sT1}, 2")
a(f"s_and_b32 s{sGRP}, s{sG}, 3")
a(f"s_and_b32 s{sWV}, s{sW}, 3")
a(f"s_add_u32 s{sROT}, s{sG}, s{sRB}" if OPT.get("rot", "0") == "1" else f"s_mov_b32 s{sROT}, 0")
a(f"s_mov_b32 s{R_A+2}, {2048*1024}")
a(f"s_mov_b32 s{R_A+3}, 0x20000")
a(f"s_mov_b32 s{R_B+3}, 0x20000")
a(f"s_cmp_ge_u32 s{sW}, 4")
a("s_cbranch_scc1 L_attn")

vL, vL16_, vL8, vCO = 20, 22, 24, 26
vCNT, vONE, vWT, vRB, vL4, vWO = 2, 3, 4, 5, 6, 7
a("s_setprio 3")
for i in range(4):
    a(f"v_add_u32 v14, {4*i}, v12")
    a(f"v_xor_b32 v15, v13, v14")
    a(f"v_lshlrev_b32 v15, 4, v15")
    a(f"v_lshl_add_u32 v{16+i}, v14, 10, v15")
if OPT.get("map", "0" if "h" in LOC else "1") == "0":
    a(f"s_and_b32 s{sT2}, s{sT1}, 1")
    a(f"s_lshl_b32 s{sC}, s{sT0}, 1")
    a(f"s_add_u32 s{sC}, s{sC}, s{sT2}")
    a(f"s_lshr_b32 s{sPB}, s{sT1}, 1")
else:
    a(f"s_and_b32 s{sC}, s{sT0}, 6")
    a(f"s_lshl_b32 s{sC}, s{sC}, 1")
    a(f"s_add_u32 s{sC}, s{sC}, s{sT2}")
    a(f"s_and_b32 s{sPB}, s{sT0}, 1")
    a(f"s_lshl_b32 s{sPB}, s{sPB}, 3")
    a(f"s_add_u32 s{sPB}, s{sPB}, s{sG}")
a(f"s_lshr_b32 s{sKIND}, s{sG}, 2")
a(f"s_lshl_b32 s{sT3}, s{sPB}, 5")
a("v_and_b32 v38, 31, v0")
a(f"v_add_lshl_u32 v37, v38, s{sT3}, 1")
if YM:
    a(f"s_and_b32 s{sGY}, s{sRB}, 7")
else:
    a(f"s_mov_b32 s{sGY}, s{sG}")
a(f"s_and_b32 s{sT3}, s{sWV}, 1")
a(f"s_lshl1_add_u32 s{sT3}, s{sGY}, s{sT3}")
a(f"s_lshl_b32 s{sT3}, s{sT3}, 5")
a(f"v_add_lshl_u32 v38, v38, s{sT3}, 1")
a(f"s_add_u32 s{sT3}, s{sROT}, s{sWV}")
a(f"s_and_b32 s{sT3}, s{sT3}, 3")
a(f"s_lshl_b32 s{sT0}, s{sRB}, 16")
a(f"s_lshl_b32 s{sT1}, s{sGRP}, 14")
a(f"s_add_u32 s{sT0}, s{sT0}, s{sT1}")
a(f"s_lshl_b32 s{sT1}, s{sT3}, 8")
a(f"s_add_u32 s{sT0}, s{sT0}, s{sT1}")
a(f"s_lshl_b32 s{sT2}, s{sGRP}, 12")
a(f"s_lshl_b32 s{sT1}, s{sWV}, 14")
a(f"s_add_u32 s{sT2}, s{sT2}, s{sT1}")
a(f"s_lshl_b32 s{sT3}, s{sT3}, 12")
a(f"s_lshl_b32 s{sT4}, s{sWV}, 12")
a(f"s_add_u32 s{sT4}, s{sT4}, {L_WKV}")
a(f"s_mov_b32 s{R_B+2}, 16384")
a(f"s_mov_b32 m0, s{sT2}")
a(f"s_cmp_eq_u32 s{sKIND}, 0")
a("s_waitcnt lgkmcnt(0)")
a(f"s_cselect_b32 s{R_B}, s{P_WK}, s{P_WV}")
a(f"s_cselect_b32 s{R_B+1}, s{P_WK+1}, s{P_WV+1}")
a(f"s_mov_b32 s{R_A}, s{P_AX}")
a(f"s_and_b32 s{R_A+1}, s{P_AX+1}, 0xffff")
a(f"s_and_b32 s{R_B+1}, s{R_B+1}, 0xffff")
for i in range(4):
    dma(16 + i, R_A, f"s{sT0}")
    a(f"s_add_u32 m0, s{sT2}, {1024*(i+1)}" if i < 3 else f"s_mov_b32 m0, s{sT4}")
    a("s_nop 0")
for i in range(4):
    dma(6, R_B, f"s{sT3}", imm=1024 * i)
p0, p1, p2, vDSK = 60, 61, 62, 63
a(f"global_load_ushort v{p0}, v37, s[{P_LRE}:{P_LRE+1}]")
a(f"global_load_ushort v{p1}, v37, s[{P_LIM}:{P_LIM+1}]")
a(f"global_load_ushort v{p2}, v37, s[{P_LDT}:{P_LDT+1}]")
a(f"global_load_ushort v{vDSK}, v38, s[{P_DSK}:{P_DSK+1}]")
a(f"s_load_dword s{sTAG}, s[{P_WS}:{P_WS+1}], 0")
a("s_barrier")

sec("AL")
lab("L_attn"); ROLE[0] = "A"
cm("pull the kernel's code towards this XCD's L2")
a(f"s_getpc_b64 s[{sM}:{sM+1}]")
lab("L_pc")
a(f"s_sub_u32 s{sM}, s{sM}, L_pc - {NAME}_kernel")
a(f"s_subb_u32 s{sM+1}, s{sM+1}, 0")
SPF = int(OPT.get("spf", 0))
if SPF:
    a(f"s_lshl_b32 s{sT3}, s{sWV}, 7")
    a(f"s_add_u32 s{sRET}, s{sM}, s{sT3}")
    a(f"s_addc_u32 s{sRET+1}, s{sM+1}, 0")
    for i in range(SPF):
        a(f"s_load_dword s{sCNT}, s[{sRET}:{sRET+1}], {512*i + 256}")
a(f"s_lshl_b32 s{sT2}, s{sT2}, 2")
a(f"s_add_u32 s{sT2}, s{sT2}, s{sWV}")
a(f"s_mul_i32 s{sT2}, s{sT2}, 1408")
a("v_lshlrev_b32 v32, 7, v0")
a("v_min_u32 v32, 1280, v32")
a(f"v_add_u32 v32, s{sT2}, v32")
a(f"v_min_u32 v32, L_slow - {NAME}_kernel, v32")
CPF = int(OPT.get("cpf", 0))
if CPF == 0: a(f"global_load_dword v33, v32, s[{sM}:{sM+1}]")
vIDX, vZ, vAD, vAS, vAQ, vPG, vQ = 1, 2, 4, 5, 6, 7, 8
vCA, vONEA = 12, 13
S0, S1, vO, KV = 16, 32, 48, 64
cm("zero sync counters + progress words")
a("v_mov_b32 v2, 0")
a("v_mov_b32 v3, 0")
a("v_mov_b32 v4, 0")
a("v_mov_b32 v5, 0")
a(f"v_add_u32 v7, {L_PROG}, v6")
a("ds_write_b128 v7, v[2:5]")
a("ds_write_b128 v7, v[2:5] offset:1024")
a(f"v_lshl_add_u32 v14, s{sWV}, 2, v12")
a("v_xor_b32 v15, v13, v14")
a("v_lshlrev_b32 v15, 4, v15")
a("v_lshl_add_u32 v16, v14, 10, v15")
def wo_voff(dst, t):
    a(f"v_lshrrev_b32 v{t}, 3, v0")
    a(f"v_and_b32 v{t+1}, 7, v0")
    a(f"v_lshrrev_b32 v{t+2}, 2, v0")
    a(f"v_and_b32 v{t+2}, 4, v{t+2}")
    a(f"v_xor_b32 v{t+1}, v{t+1}, v{t+2}")
    a(f"v_lshlrev_b32 v{t+1}, 4, v{t+1}")
    a(f"v_lshl_add_u32 v{dst}, v{t}, 10, v{t+1}")
wo_voff(17, 20)
def wslice_setup():
    a(f"s_lshl_b32 s{sT0}, s{sG}, 7")
    a(f"s_lshl_b32 s{sT1}, s{sWV}, 15")
    a(f"s_add_u32 s{sT0}, s{sT0}, s{sT1}")
    a(f"s_lshl_b32 s{sT1}, s{sWV}, 12")
wslice_setup()
a(f"s_lshl_b32 s{sT4}, s{sRB}, 16")
a(f"s_lshl_b32 s{sT5}, s{sWV}, 10")
for m in range(1, 4):
    a(f"s_add_u32 s{sT2}, s{sGRP}, {m}")
    a(f"s_and_b32 s{sT2}, s{sT2}, 3")
    a(f"s_lshl_b32 s{sT3}, s{sT2}, 14")
    a(f"s_add_u32 s{95+m}, s{sT3}, s{sT4}")
    a(f"s_lshl_b32 s{sT3}, s{sT2}, 12")
    a(f"s_add_u32 s{98+m}, s{sT3}, s{sT5}")
a(f"s_mov_b32 s{R_B+2}, {512*1024}")
a(f"v_mov_b32 v{vCA}, {L_CNT}")
a(f"v_mov_b32 v{vONEA}, 1")
a("s_waitcnt lgkmcnt(0)")
a(f"s_mov_b32 s{R_A}, s{P_AX}")
a(f"s_and_b32 s{R_A+1}, s{P_AX+1}, 0xffff")
a(f"s_mov_b32 s{R_B}, s{P_WQ}")
a(f"s_and_b32 s{R_B+1}, s{P_WQ+1}, 0xffff")
if STAMPS:
    a("s_mov_b32 s81, 0")
    a("s_mov_b32 s93, 0")
a("s_barrier")
def qops(sl):
    a(f"s_add_u32 s{sT3}, s{sROT}, {sl}")
    a(f"s_and_b32 s{sT3}, s{sT3}, 3")
    a(f"s_lshl_b32 s{sT4}, s{sT3}, 8")
    a(f"s_lshl_b32 s{sT3}, s{sT3}, 17")
    a(f"s_add_u32 s{sT3}, s{sT3}, s{sT0}")
    for m in range(1, 4):
        a(f"s_add_u32 m0, s{98+m}, {L_XA + 16384*sl}")
        a(f"s_add_u32 s{sT2}, s{95+m}, s{sT4}")
        dma(16, R_A, f"s{sT2}")
    for i in range(4):
        a(f"s_add_u32 m0, s{sT1}, {L_WQ + 16384*sl + 1024*i}")
        a(f"s_add_u32 s{sT2}, s{sT3}, {8192*i}")
        dma(17, R_B, f"s{sT2}")
if CPF == 1: a(f"global_load_dword v33, v32, s[{sM}:{sM+1}]")
QW = int(OPT.get("qw", 0))
for sl in range(QW): qops(sl)
PFW, PFU = int(OPT.get("pfw", 1)), OPT.get("pfu", "")
if PFW:
    cm("warm L2 with this workgroup's quarter of its Wq slice")
    a(f"s_and_b32 s{sT2}, s{sRB}, 3")
    a(f"s_lshl2_add_u32 s{sT2}, s{sT2}, s{sWV}")
    a(f"s_lshl_b32 s{sT2}, s{sT2}, 15")
    a(f"s_lshl_b32 s{sT3}, s{sG}, 7")
    a(f"s_add_u32 s{sT2}, s{sT2}, s{sT3}")
    a("v_and_b32 v20, 31, v0")
    a("v_lshlrev_b32 v20, 10, v20")
    a("s_mov_b32 exec_hi, 0")
    a(f"buffer_load_dword v34, v20, {sr(R_B,4)}, s{sT2} offen")
    a("s_mov_b64 exec, -1")
def pfu(which):
    cm("pull this wave's 1/1024 share of later inputs out of HBM")
    a(f"s_lshl2_add_u32 s{sT2}, s2, s{sWV}")
    a("v_lshlrev_b32 v26, 7, v0")
    for i, ch in enumerate(which):
        ptr, lines = {"x": (P_BX, 16), "r": (P_BRE, 4), "i": (P_BIM, 4), "c": (P_CRE, 4), "d": (P_CIM, 4), "o": (P_WO, 4)}[ch]
        a(f"s_mul_i32 s{sT3}, s{sT2}, {128*lines}")
        a(f"v_add_u32 v21, s{sT3}, v26")
        a(f"s_mov_b64 exec, {(1 << lines) - 1}")
        a(f"global_load_dword v{35+i}, v21, s[{ptr}:{ptr+1}]")
        a("s_mov_b64 exec, -1")
if PFU: pfu(PFU)
srd(R_WS, P_WS, WS_SIZE)
a(f"s_mov_b32 s{sSYNC}, 0")
a(f"s_mov_b32 s{sLO}, {f32(L_LO)}")
a(f"s_mov_b32 s{sHI}, {f32(L_HI)}")
cm("prefill V regs: rows 16 and 20 = ones, other rows >=16 zero")
a("v_and_b32 v24, 27, v0")
a("v_cmp_eq_u32 vcc, 16, v24")
a("v_mov_b32 v25, 0x3f803f80")
a("s_nop 0")
a("v_cndmask_b32 v24, 0, v25, vcc")
a("v_mov_b32 v25, v24")
for t in range(16):
    for j in range(4):
        a(f"v_mov_b64 {vr(KV+12*t+4+2*j,2)}, v[24:25]")
a("v_mov_b32 v14, v6")
a("v_lshrrev_b32 v24, 5, v0")
a("v_and_b32 v25, 15, v0")
a("v_lshl_add_u32 v15, v24, 4, v25")
a("v_lshlrev_b32 v15, 4, v15")
a(f"v_mov_b32 v{vIDX}, 0xdddddddd")
a(f"s_lshl_b32 s{sT2}, s{sWV}, 11")
a(f"v_add_u32 v{vAD}, s{sT2}, v14")
a(f"s_lshl_b32 s{sT2}, s{sWV}, 2")
a(f"s_add_u32 s{sT3}, s{sT2}, {L_PART + 8192}")
a(f"v_add_u32 v{vAS}, s{sT3}, v14")
a(f"s_add_u32 s{sT3}, s{sT2}, {L_PROG}")
a(f"v_add_u32 v{vPG}, s{sT3}, v14")
a(f"v_add_u32 v{vAQ}, {L_QF}, v14")
a(f"v_lshlrev_b32 v23, {FSH}, v0")
a("s_barrier")
a(f"ds_read_b32 v20, v{vCA} offset:{C_TAG}")
B0 = int(OPT.get("b0", 0))
for sl in range(QW, 4):
    qops(sl)
    if sl + 1 == B0:
        a(f"s_waitcnt vmcnt({7*(B0-1)})")
        a("s_barrier")
PFL = OPT.get("pfl", "")
if PFL: pfu(PFL)
NL = len(PFL)
a(f"s_waitcnt vmcnt({14+NL}) lgkmcnt(0)")
a("s_barrier")
a(f"v_readfirstlane_b32 s{sTAG}, v20")
cm("scalars for the tail")
sKV = sT0
a(f"s_sub_u32 s{sSTEP}, 7, s{sWV}")
o_offsets()
a(f"s_mov_b32 s{sF1}, s{sT0}")
a(f"s_mov_b32 s{sF2}, s{sT1}")
a(f"s_mul_i32 s{sT2}, s{sSTEP}, {PSTRIDE}")
a(f"s_lshr_b32 s{sT4}, s{sWV}, 1")
a(f"s_lshl1_add_u32 s{sYG}, s{sRB}, s{sT4}")
a(f"s_lshl_b32 s{sCG}, s{sYG}, 12")
a(f"s_add_u32 s{sCG}, s{sCG}, {WS_FO + 16*128}")
srd(R_B, P_OUT, 2048 * 4096)
a(f"s_and_b32 s{sT0}, s{sWV}, 1")
a(f"s_lshl1_add_u32 s{sT0}, s{sG}, s{sT0}")
a(f"s_lshl_b32 s{sT0}, s{sT0}, 7")
a(f"s_lshl_b32 s{sT3}, s{sYG}, 17")
a(f"s_add_u32 s{sT3}, s{sT3}, s{sT0}")
a(f"s_lshl_b32 s{sT6}, s{sYG}, 15")
a(f"s_add_u32 s{sT6}, s{sT6}, {WS_O + 16384}")
a(f"s_mul_i32 s{sT4}, s{sWV}, {PSTRIDE}")
a(f"s_lshl_b32 s{sT5}, s{sWV}, 9")
a(f"s_add_u32 s{sT5}, s{sT5}, {L_CS}")
a(f"s_lshl_b32 s{sT0}, s{sWV}, {FSH+6}")
a(f"s_add_u32 s{sT0}, s{sT0}, {WS_FKV}")
stamp(1)
SU = OPT.get("su", "")
if "a" in SU: spf([(P_BX, 16, 0, 14)])
if "b" in SU: spf([(P_BRE, 4, 0, 4), (P_BIM, 4, 0, 4), (P_BX, 16, 0, 6)])
a(f"s_waitcnt vmcnt({7+NL})")
a("s_barrier")
PE = int(OPT.get("pe", 1))
if PE == 2:
    a(f"buffer_load_dword v22, v23, {sr(R_WS,4)}, s{sT0} offen sc1")
    a(f"s_waitcnt vmcnt(1)")
else:
    a(f"s_waitcnt vmcnt({NL})")
if PE == 1: a(f"buffer_load_dword v22, v23, {sr(R_WS,4)}, s{sT0} offen sc1")
a("s_barrier")
a("s_branch L_a2")
sec("A")
lab("L_a2")
stamp(2)
for _ in range(int(OPT.get("pd", 0))): a("s_sleep 2")
a(f"s_mov_b32 s{sCNT}, {POLL_LIMIT}")
if PE: a("s_branch L_a_kvq")
lab("L_a_kvp")
a(f"buffer_load_dword v22, v23, {sr(R_WS,4)}, s{sT0} offen sc1")
lab("L_a_kvq")
a("s_waitcnt vmcnt(0)")
a(f"v_xor_b32 v22, s{sTAG}, v22")
a("v_cmp_lt_u32 vcc, 15, v22")
a("s_cbranch_vccz L_a_kvok")
a(f"s_sub_u32 s{sCNT}, s{sCNT}, 1")
a("s_cbranch_scc0 L_a_kvp")
lab("L_a_kvok")
stamp(4)
a(f"s_lshl_b32 s{sT0}, s{sWV}, 15")
a(f"s_add_u32 s{sT0}, s{sT0}, {WS_KV}")
a(f"s_mov_b32 s{sM}, 0xffff")
a(f"s_mov_b32 s{sM+1}, 0xffff")
def kvload(tp):
    for t in (2*tp, 2*tp+1):
        a(f"buffer_load_dwordx4 {vr(KV+12*t,4)}, v14, {sr(R_WS,4)}, s{sT0} offen offset:{2048*(t&1)} sc1")
    a(f"s_mov_b64 exec, s[{sM}:{sM+1}]")
    for t in (2*tp, 2*tp+1):
        a(f"buffer_load_dwordx4 {vr(KV+12*t+4,4)}, v15, {sr(R_WS,4)}, s{sT0} offen offset:{2048*(t&1)+1024} sc1")
        a(f"buffer_load_dwordx4 {vr(KV+12*t+8,4)}, v15, {sr(R_WS,4)}, s{sT0} offen offset:{2048*(t&1)+1536} sc1")
    a("s_mov_b64 exec, -1")
    if tp < 7: a(f"s_add_u32 s{sT0}, s{sT0}, 4096")
NINIT = int(OPT.get("ninit", 3))
A4POS = int(OPT.get("a4", 8))
ABPOS = int(OPT.get("ab", 0))
NB = int(OPT.get("nb", NINIT))
for tp in range(NB):
    kvload(tp)
cm("do all 32 workgroups of this id class share this XCD?")
a(f"s_bfe_u32 s{sT1}, s2, 0x20001")
a(f"s_cmp_eq_u32 s{sT1}, s{sWV}")
a("s_cbranch_scc0 L_a_nomode")
a(f"s_getreg_b32 s{sT1}, hwreg(HW_REG_XCC_ID, 0, 4)")
a(f"v_cmp_ne_u32 vcc, s{sT1}, v22")
a("s_bitcmp1_b32 s2, 0")
a(f"s_cselect_b32 s{sT1}, vcc_hi, vcc_lo")
a(f"s_cmp_eq_u32 s{sT1}, 0")
a(f"s_cselect_b32 s{sT1}, {2 if OPT.get('nolocal') else 1}, 2")
a(f"v_mov_b32 v21, s{sT1}")
a(f"ds_write_b32 v{vCA}, v21 offset:{C_MODE}")
lab("L_a_nomode")
assert NINIT < 8
stamp(5)
a("s_barrier")
a("s_setprio 1")
a(f"ds_read_b128 {vr(vQ,4)}, v{vAQ}")
a(f"v_add_u32 v{vAQ}, 1024, v{vAQ}")
for tp in range(NB, NINIT): kvload(tp)
a(f"s_waitcnt vmcnt({6*(NINIT-1)+4}) lgkmcnt(0)")
stamp(6)
cstamp(10)

K_ = lambda t: KV + 12 * t
V1 = lambda t: KV + 12 * t + 4
V2 = lambda t: KV + 12 * t + 8
def ex(X, i): a(f"v_exp_f32 v{X+i}, v{X+i}")
def exs(X, lo, hi):
    for i in range(lo, hi): ex(X, i)
def smf(v, p): a(f"v_smfmac_f32_32x32x32_bf16 {vr(vO,16)}, {vr(v,4)}, {vr(p,8)}, v{vIDX}")
def qk(d, t): mfma32(d, K_(t), vQ, "0")
def zeroO(): a(f"v_mfma_f32_32x32x8_bf16 {vr(vO,16)}, {vr(vZ,2)}, {vr(vZ,2)}, 0")
def dump():
    a(f"ds_write_b128 v{vAD}, {vr(vO,4)}")
    a(f"ds_write_b128 v{vAD}, {vr(vO+4,4)} offset:1024")
    a(f"ds_write_b32 v{vAS}, v{vO+8}")
    a(f"ds_write_b32 v{vPG}, v{vAS}")

KVS = int(OPT.get('kvs', 2))
QPF = int(OPT.get('qpf', 0))
PQ, PS1 = [int(x) for x in OPT.get('pos', '7,12').split(',')]
def tiles_1_15(first):
    issued = [NINIT + 1 if first else 8]
    def preqk(tn):
        if first and tn % 2 == 0 and tn < 16:
            a(f"s_waitcnt vmcnt({6*(min(issued[0],8) - 1 - tn//2)})")
    def more(t):
        if first and t % KVS == 0 and issued[0] < 8:
            kvload(issued[0]); issued[0] += 1
            if issued[0] in (A4POS, ABPOS): signal(vCA, vONEA, C_A4)
    X, Y = S1, S0
    smf(V1(0), Y); exs(X, 0, 3); smf(V2(0), Y + 8); exs(X, 3, 6); preqk(2); qk(Y, 2); exs(X, 6, 10); smf(V1(1), X); more(1); exs(X, 10, 16)
    a(f"s_add_u32 s{sSTEP}, s{sSTEP}, 1")
    for t in range(2, 16):
        X, Y = (S0, S1) if t % 2 == 0 else (S1, S0)
        if t == 15 and QPF:
            a("s_waitcnt lgkmcnt(0)")
            a(f"v_mov_b64 {vr(vQ,2)}, v[12:13]")
            a(f"v_mov_b64 {vr(vQ+2,2)}, v[14:15]")
        exs(X, 0, 2); smf(V2(t - 1), Y + 8); exs(X, 2, PQ)
        if t == 15:
            if not QPF: a("s_waitcnt lgkmcnt(0)")
            if DBG == "steps":
                a(f"s_mov_b32 m0, s{sSTEP}")
                a("s_nop 0")
                a(f"s_movreld_b32 s80, s{sST}")
            qk(Y, 0)
        else:
            preqk(t + 1)
            qk(Y, t + 1)
        if t == 14 and DBG == "steps": a(f"s_memtime s[{sST}:{sST+1}]")
        if (t == 14 and not QPF) or (QPF and first and t == 11):
            a(f"ds_read_b128 {vr(12 if QPF else vQ,4)}, v{vAQ}")
            a(f"v_add_u32 v{vAQ}, 1024, v{vAQ}")
        exs(X, PQ, PS1); smf(V1(t), X); more(t); exs(X, PS1, 16)

qk(S0, 0)
zeroO()
qk(S1, 1)
a(f"s_mov_b32 s{sSTEP}, 0")
if NINIT < 8:
    kvload(NINIT)
    if NINIT + 1 in (A4POS, ABPOS): signal(vCA, vONEA, C_A4)
else:
    a("s_nop 8")
exs(S0, 0, 16)
a("s_nop 0")
a(f"s_waitcnt vmcnt({6*NINIT})")
tiles_1_15(True)
a("s_nop 0")
a("s_branch L_a_bound")
lines.append(".p2align 6")
lab("L_a_loop")
tiles_1_15(False)
a(f"s_cmp_eq_u32 s{sSTEP}, 8")
a("s_cbranch_scc1 L_a_fin")
lab("L_a_bound")
X, Y = S0, S1
smf(V2(15), Y + 8); exs(X, 0, 3); qk(Y, 1); exs(X, 3, 11)
dump()
if QPF:
    a(f"ds_read_b128 v[12:15], v{vAQ}")
ex(X, 11); zeroO(); exs(X, 12, 16)
if QPF: a(f"v_add_u32 v{vAQ}, 1024, v{vAQ}")
a(f"v_add_u32 v{vAD}, {PSTRIDE}, v{vAD}")
a(f"v_add_u32 v{vAS}, {PSTRIDE}, v{vAS}")
a("s_branch L_a_loop")

lab("L_a_fin")
smf(V2(15), S1 + 8)
a("v_lshlrev_b32 v14, 4, v0")
a(f"v_mov_b32 v{vCA}, {L_CNT}")
a(f"v_add_u32 v9, s{sT2}, v14")
a("v_and_b32 v10, 3, v0")
a("v_lshlrev_b32 v10, 2, v10")
a(f"v_add_u32 v10, {L_PROG}, v10")
a(f"s_add_u32 s{sT2}, s{sT2}, {L_PART + 8192}")
a(f"v_add_u32 v6, s{sT4}, v14")
a("v_lshlrev_b32 v16, 2, v0")
a(f"v_mov_b32 v17, s{sTAG}")
a("s_setprio 3")
dump()
a("v_lshlrev_b32 v7, 3, v0")
a(f"v_add_u32 v7, s{sT5}, v7")
a(f"s_mov_b32 s{sKIND}, 0")
stamp(7)
cstamp(11)
lab("L_a_rw")
a("ds_read_b32 v11, v10")
a(f"ds_read_b32 v8, v{vCA} offset:{C_MODE}")
a("ds_read_b128 v[52:55], v9 offset:8192")
for w in range(8):
    a(f"ds_read_b128 {vr(20+4*w,4)}, v9 offset:{1024*w}")
a("ds_read_b128 v[56:59], v6 offset:8192")
WSH = int(OPT.get("wsh", 1))
if WSH:
    a(f"ds_read_b32 v60, v{vCA} offset:{C_GH}")
    a("ds_read_b64 v[4:5], v7")
a(f"s_waitcnt lgkmcnt({11 if WSH else 9})")
a(f"v_cmp_gt_u32 vcc, s{sT2}, v11")
a("s_cbranch_vccnz L_a_rw")
a(f"v_readfirstlane_b32 s{sMODE}, v8")
a(f"s_mov_b32 s{sT1}, s{sF2}")
sum_check(52)
a(f"s_waitcnt lgkmcnt({3 if WSH else 1})")
a("s_cbranch_scc1 L_a_bad1")
reduce_math(20, 14, flag=False, bs=52)
a("v_and_b32 v15, 15, v0")
a("v_lshlrev_b32 v15, 7, v15")
a(f"s_lshl_b32 s{sT0}, s{sWV}, 2")
a(f"v_add_u32 v10, s{sT0}, v{vCA}")
AO, AW, AC = 88, 152, 48
def awread(k):
    o = PSTRIDE * (k // 4) + 2048 * (k % 4)
    a(f"ds_read_b64_tr_b16 {vr(AW+4*k,2)}, v4 offset:{o}")
    a(f"ds_read_b64_tr_b16 {vr(AW+4*k+2,2)}, v4 offset:{o+1024}")
if WSH:
    a("s_waitcnt lgkmcnt(0)")
    a("v_cmp_gt_u32 vcc, NSYNC_B2, v60")
    a("s_cbranch_vccnz L_a_nosh")
    a(f"s_mov_b32 s{sKIND}, 1")
    for k in range(7): awread(k)
    lab("L_a_nosh")
a("s_waitcnt vmcnt(0)")
a("s_mov_b32 exec_hi, 0")
st2([f"buffer_store_dword v17, v16, {sr(R_WS,4)}, s{sF1} offen@"])
a("s_mov_b64 exec, -1")
lab("L_a_ok1")
stamp(8)
if not WSH: a("s_waitcnt lgkmcnt(0)")
sum_check(56)
a("s_cbranch_scc1 L_a_bad2")
lab("L_a_ok2")
cm("output projection, last 16 heads")
a(f"buffer_load_dword v8, v15, {sr(R_WS,4)}, s{sCG} offen sc1")
a(f"s_cmp_eq_u32 s{sKIND}, 1")
a("s_cbranch_scc1 L_a_wd")
lab("L_a_ww")
a(f"ds_read_b32 v11, v{vCA} offset:{C_GH}")
a("ds_read_b64 v[4:5], v7")
a("s_waitcnt lgkmcnt(0)")
a("v_cmp_gt_u32 vcc, NSYNC_B2, v11")
a("s_cbranch_vccnz L_a_ww")
for k in range(7): awread(k)
lab("L_a_wd")
a("s_waitcnt vmcnt(0)")
a(f"v_cmp_ne_u32 vcc, s{sTAG}, v8")
a("s_cbranch_vccz L_a_fl")
poll(15, f"s{sCG}", 8)
lab("L_a_fl")
stamp(9)
for g in range(16):
    if g % 4 == 0 and g: a(f"s_add_u32 s{sT6}, s{sT6}, 4096")
    a(f"buffer_load_dwordx4 {vr(AO+4*g,4)}, v14, {sr(R_WS,4)}, s{sT6} offen offset:{1024*(g%4)} sc1")
    if 7 + g < 16: awread(7 + g)
a(f"ds_read_b32 v11, v10 offset:{C_HA}")
for i in range(4):
    a(f"ds_read_b128 {vr(16+4*i,4)}, v6 offset:{1024*i}")
cm("epoch update by WG0 (every workgroup has read the old value long ago)")
a(f"s_lshl2_add_u32 s{sT0}, s2, s{sWV}")
a(f"s_cmp_eq_u32 s{sT0}, 0")
a("s_cbranch_scc0 L_a_noep")
setflag(8, 9, sT0)
lab("L_a_noep")
a("s_waitcnt lgkmcnt(5)")
for g in range(16):
    a(f"s_waitcnt vmcnt({15-g})")
    mfma32(AC, AO + 4*g, AW + 4*g, "0" if g == 0 else None)
stamp(13)
a("s_waitcnt lgkmcnt(0)")
a("v_cmp_eq_u32 vcc, 0, v11")
a("s_cbranch_vccz L_a_hok")
lab("L_a_hw")
a(f"ds_read_b32 v11, v10 offset:{C_HA}")
for i in range(4):
    a(f"ds_read_b128 {vr(16+4*i,4)}, v6 offset:{1024*i}")
a("s_waitcnt lgkmcnt(0)")
a("v_cmp_eq_u32 vcc, 0, v11")
a("s_cbranch_vccnz L_a_hw")
lab("L_a_hok")
a("s_nop 8")
stamp(14)
for j in range(8):
    a(f"v_pk_add_f32 {vr(AC+2*j,2)}, {vr(AC+2*j,2)}, {vr(16+2*j,2)}")
    for r in (2*j, 2*j + 1):
        a(f"s_add_u32 s{sT1}, s{sT3}, {4096 * (8*(r//4) + r%4)}")
        a(f"buffer_store_dword v{AC+r}, v5, {sr(R_B,4)}, s{sT1} offen{OUTFL}")
a("s_branch L_end")

sec("P")
ROLE[0] = "H"
if STAMPS:
    a("s_mov_b32 s81, 0")
    a("s_mov_b32 s92, 0")
    a("s_mov_b32 s93, 0")
srd(R_WS, P_WS, WS_SIZE)
a("v_xor_b32 v14, v12, v13")
a("v_lshlrev_b32 v14, 4, v14")
a("v_lshl_add_u32 v14, v13, 8, v14")
a(f"v_add_u32 v8, s{sT2}, v14")
for ks in range(1, 4):
    a(f"v_xor_b32 v{8+ks}, {64*ks}, v8")
a("v_lshrrev_b32 v14, 2, v13")
a("v_lshl_add_u32 v14, v12, 3, v14")
a("v_lshlrev_b32 v14, 5, v14")
a("v_and_b32 v15, 3, v0")
a("v_lshl_add_u32 v14, v15, 3, v14")
a(f"v_add_u32 v14, s{sT4}, v14")
a(f"s_lshl_b32 s{sT0}, s{sWV}, 10")
a(f"s_add_u32 s{sT0}, s{sT0}, {L_KVP}")
a(f"v_add_u32 v15, s{sT0}, v6")
a(f"s_lshl_b32 s{sT0}, s{sRB}, 2")
a(f"s_add_u32 s{sT0}, s{sT0}, s{sGRP}")
a(f"s_lshr_b32 s{sT1}, s{sT0}, 1")
a(f"s_lshl_b32 s{sT1}, s{sT1}, 1")
a(f"s_add_u32 s{sT1}, s{sT1}, s{sKIND}")
a(f"s_lshl_b32 s{sT1}, s{sT1}, 10")
a(f"s_and_b32 s{sT2}, s{sT0}, 1")
a(f"s_add_u32 s{sT3}, s{sKIND}, 8")
a(f"s_lshl_b32 s{sT2}, s{sT2}, s{sT3}")
a(f"s_add_u32 s{sT1}, s{sT1}, s{sT2}")
a(f"s_add_u32 s{sT5}, s{sT1}, {WS_KV}")
a(f"s_lshl_b32 s{sT0}, s{sT0}, 1")
a(f"s_add_u32 s{sT0}, s{sT0}, s{sKIND}")
a(f"s_lshl_b32 s{sT0}, s{sT0}, {FSH}")
a(f"s_add_u32 s{sT6}, s{sT0}, {WS_FKV}")
a(f"s_cmp_eq_u32 s{sKIND}, 0")
a(f"s_cselect_b32 s{sT0}, 9, 3")
a(f"s_cselect_b32 s{sT1}, 3, 8")
a("v_and_b32 v34, 1, v12")
a("v_lshrrev_b32 v35, 1, v12")
a("v_lshlrev_b32 v16, 4, v13")
a(f"v_lshl_add_u32 v16, v34, s{sT0}, v16")
a(f"v_lshl_add_u32 v16, v35, s{sT1}, v16")
a(f"v_mov_b32 v{vCNT}, {L_CNT}")
a(f"v_mov_b32 v{vONE}, 1")
a("s_waitcnt lgkmcnt(0)")
a(f"s_mul_i32 s{sTAG}, s{sTAG}, 1664525")
a(f"s_add_u32 s{sTAG}, s{sTAG}, 1013904223")
a(f"v_mov_b32 v36, s{sTAG}")
a(f"ds_write_b32 v{vCNT}, v36 offset:{C_TAG}")
a(f"s_cmp_eq_u32 s{sKIND}, 0")
a(f"s_waitcnt vmcnt(4)")
stamp(1)
b = 128
for ks in range(4):
    a(f"ds_read_b128 {vr(b+8*ks,4)}, v{8+ks}")
    a(f"ds_read_b64_tr_b16 {vr(b+8*ks+4,2)}, v14 offset:{1024*ks}")
    a(f"ds_read_b64_tr_b16 {vr(b+8*ks+6,2)}, v14 offset:{1024*ks+128}")
def kvproj(kind):
    for ks in range(4):
        a(f"s_waitcnt lgkmcnt({9 - 3*ks})")
        x, w = vr(b+8*ks, 4), vr(b+8*ks+4, 4)
        if kind == 0: x, w = w, x
        a(f"v_mfma_f32_16x16x32_bf16 v[40:43], {x}, {w}, {'0' if ks == 0 else 'v[40:43]'}")
a("s_cbranch_scc0 L_h_vproj")
kvproj(0)
a("s_branch L_h_kvdone")
lab("L_h_vproj")
kvproj(1)
lab("L_h_kvdone")
a(f"s_cmp_eq_u32 s{sWV}, 0")
a("s_cbranch_scc1 L_h_pub")
a("s_nop 5")
a("ds_write_b128 v15, v[40:43]")
a("s_waitcnt lgkmcnt(0)")
a("s_barrier")
a("s_branch L_h_common")
lab("L_h_pub")
a("s_barrier")
for i in range(1, 4):
    a(f"ds_read_b128 {vr(40+4*i,4)}, v15 offset:{1024*i}")
a("s_nop 1")
a("s_waitcnt lgkmcnt(0)")
a("v_pk_add_f32 v[40:41], v[40:41], v[44:45]")
a("v_pk_add_f32 v[42:43], v[42:43], v[46:47]")
a("v_pk_add_f32 v[48:49], v[48:49], v[52:53]")
a("v_pk_add_f32 v[50:51], v[50:51], v[54:55]")
a("v_pk_add_f32 v[40:41], v[40:41], v[48:49]")
a("v_pk_add_f32 v[42:43], v[42:43], v[50:51]")
a("v_cvt_pk_bf16_f32 v40, v40, v41")
a("v_cvt_pk_bf16_f32 v41, v42, v43")
a(f"buffer_store_dwordx2 v[40:41], v16, {sr(R_WS,4)}, s{sT5} offen sc1")
dstamp("p", 5)
a("s_branch L_h_common")
sec("HQ")
lab("L_h_common")
a(f"s_mov_b32 s{sSYNC}, 0")
a("v_and_b32 v17, 31, v0")
a("v_lshrrev_b32 v18, 5, v0")
p0, p1, p2, vDSK = 60, 61, 62, 63
cm("Q projection addresses")
QXA = list(range(48, 56))
a(f"s_lshr_b32 s{sT0}, s{sWV}, 1")
a(f"s_lshl_b32 s{sT0}, s{sT0}, 13")
a("v_xor_b32 v34, v13, v18")
a("v_lshlrev_b32 v34, 4, v34")
a("v_lshl_add_u32 v34, v17, 8, v34")
a(f"v_add_u32 v{QXA[0]}, s{sT0}, v34")
for ks in range(1, 8):
    a(f"v_xor_b32 v{QXA[ks]}, {32*ks}, v{QXA[0]}")
wtr_addr(vWT, 9, L_R1, 34)
a(f"v_lshl_add_u32 v56, v18, 9, v{vWT}")
a(f"v_add_u32 v56, {(L_WQ - L_R1) & 0xffffffff}, v56")
a(f"s_and_b32 s{sT1}, s{sWV}, 1")
a(f"s_lshl_b32 s{sT1}, s{sT1}, 12")
a(f"s_lshr_b32 s{sT2}, s{sWV}, 1")
a(f"s_lshl_b32 s{sT2}, s{sT2}, 10")
a(f"s_add_u32 s{sT1}, s{sT1}, s{sT2}")
a(f"s_add_u32 s{sT1}, s{sT1}, {L_QF}")
a(f"v_add_u32 v57, s{sT1}, v6")
a(f"v_mov_b32 v58, {f32(0.25 * LOG2E)}")
a("v_mov_b32 v59, v58")
cm("SSM offsets and addresses")
a(f"s_mov_b32 s{R_A}, s{P_BX}")
a(f"s_and_b32 s{R_A+1}, s{P_BX+1}, 0xffff")
srd(R_B, P_BRE, 512 * 1024)
srd(R_C, P_BIM, 512 * 1024)
a(f"s_mov_b32 s{sLO}, {f32(L_LO)}")
a(f"s_mov_b32 s{sHI}, {f32(L_HI)}")
a(f"s_lshl_b32 s{sT0}, s{sC}, 17")
a(f"s_lshl_b32 s{sT1}, s{sWV}, 15")
a(f"s_add_u32 s{sT3}, s{sT0}, s{sT1}")
a(f"s_lshr_b32 s{sT0}, s{sWV}, 1")
a(f"s_lshl1_add_u32 s{sYG}, s{sRB}, s{sT0}")
if YM:
    a(f"s_and_b32 s{sYY}, s{sRB}, 24")
    a(f"s_add_u32 s{sYY}, s{sYY}, s{sG}")
    a(f"s_lshl1_add_u32 s{sYY}, s{sYY}, s{sT0}")
else:
    a(f"s_mov_b32 s{sYY}, s{sYG}")
a(f"s_and_b32 s{sT0}, s{sWV}, 1")
a(f"s_lshl1_add_u32 s{sCG}, s{sGY}, s{sT0}")
a(f"s_lshl_b32 s{sT4}, s{sYY}, 15")
a(f"s_lshl_b32 s{sT2}, s{sCG}, 6")
a(f"s_add_u32 s{sT4}, s{sT4}, s{sT2}")
wo_voff(vWO, 34)
a("v_lshrrev_b32 v36, 2, v0")
a("v_and_b32 v34, 3, v36")
a("v_bfe_u32 v35, v36, 2, 1")
a("v_lshl_add_u32 v34, v35, 4, v34")
a("v_lshrrev_b32 v35, 3, v36")
a("v_lshl_add_u32 v34, v35, 2, v34")
a("v_and_b32 v37, 3, v0")
a("v_lshlrev_b32 v35, 4, v37")
a("v_lshl_add_u32 v8, v34, 10, v35")
a("v_add_u32 v9, 8192, v8")
a(f"v_mul_u32_u24 v{vRB}, {RSTR}, v17")
a(f"v_lshl_add_u32 v{vRB}, v18, 4, v{vRB}")
a(f"v_add_u32 v{vRB}, {L_R1}, v{vRB}")
a(f"s_lshl_b32 s{sT1}, s{sWV}, 11")
a(f"s_add_u32 s{sT1}, s{sT1}, {L_SCR}")
a("v_xor_b32 v34, v12, v37")
a("v_lshlrev_b32 v34, 4, v34")
a("v_lshl_add_u32 v34, v36, 6, v34")
a(f"v_add_u32 v10, s{sT1}, v34")
a("v_bfe_u32 v34, v0, 2, 2")
a("v_xor_b32 v35, v34, v18")
a("v_lshlrev_b32 v35, 4, v35")
a("v_lshl_add_u32 v35, v17, 6, v35")
a(f"v_add_u32 v11, s{sT1}, v35")
a("v_xor_b32 v12, 32, v11")
a("v_lshl_add_u32 v34, v18, 3, v34")
a("v_lshlrev_b32 v34, 6, v34")
a("v_bfe_u32 v35, v0, 4, 1")
a("v_lshl_add_u32 v34, v35, 5, v34")
a("v_lshl_add_u32 v34, v37, 3, v34")
a(f"v_add_u32 v19, s{sT1}, v34")
a("v_lshlrev_b32 v34, 6, v17")
a("v_lshl_add_u32 v34, v18, 5, v34")
a(f"v_add_u32 v16, s{sT1}, v34")
a("v_lshlrev_b32 v38, 4, v18")
a("v_lshl_add_u32 v29, v17, 10, v38")
a("v_lshlrev_b32 v14, 4, v17")
a("s_waitcnt vmcnt(1)")
a(f"s_cmp_eq_u32 s{sWV}, 0")
a("s_cbranch_scc1 L_h_pw")
a("s_waitcnt vmcnt(0)")
lab("L_h_pw")
FPOS = int(OPT.get("fpos", 1))
def kvflag():
    a("s_waitcnt vmcnt(0)")
    a(f"s_cmp_eq_u32 s{sWV}, 0")
    a("s_cbranch_scc0 L_h_nopub")
    a(f"s_getreg_b32 s{sT0}, hwreg(HW_REG_XCC_ID, 0, 4)")
    a(f"s_xor_b32 s{sT0}, s{sT0}, s{sTAG}")
    a("v_mov_b32 v34, 0")
    a(f"v_mov_b32 v35, s{sT0}")
    a("s_mov_b64 exec, 1")
    a(f"buffer_store_dword v35, v34, {sr(R_WS,4)}, s{sT6} offen sc1")
    a("s_mov_b64 exec, -1")
    stamp(2)
    lab("L_h_nopub")
if FPOS == 0: kvflag()
cm("SSM parameters")
q0, q1, q2, q3, q4 = 64, 65, 66, 67, 68
a(f"v_lshlrev_b32 v{p0}, 16, v{p0}")
a(f"v_lshlrev_b32 v{p1}, 16, v{p1}")
a(f"v_lshlrev_b32 v{p2}, 16, v{p2}")
a(f"v_mul_f32 v{p2}, {f32(LOG2E)}, v{p2}")
a(f"v_exp_f32 v{p2}, v{p2}")
a("s_nop 0")
a(f"v_cvt_pk_bf16_f32 v{p2}, v{p2}, v{p2}")
a(f"v_and_b32 v{p2}, 0xffff0000, v{p2}")
a(f"v_mul_f32 v{q0}, v{p2}, v{p0}")
a(f"v_mul_f32 v{q1}, v{p2}, v{p1}")
a(f"v_mul_f32 v{q0}, {f32(LOG2E)}, v{q0}")
a(f"v_mul_f32 v{q1}, {f32(1/(2*math.pi))}, v{q1}")
a(f"v_exp_f32 v{q0}, v{q0}")
a(f"v_rndne_f32 v{q2}, v{q1}")
a(f"v_sub_f32 v{q1}, v{q1}, v{q2}")
a(f"v_cos_f32 v{q2}, v{q1}")
a(f"v_sin_f32 v{q3}, v{q1}")
a(f"v_mul_f32 v{q4}, v{p0}, v{p0}")
a(f"v_fma_f32 v{q4}, v{p1}, v{p1}, v{q4}")
a(f"v_mul_f32 v{vL}, v{q0}, v{q2}")
a(f"v_mul_f32 v{vL+1}, v{q0}, v{q3}")
a(f"v_rcp_f32 v{q4}, v{q4}")
a(f"v_add_f32 v{q2}, -1.0, v{vL}")
a(f"v_add_f32 v{q4}, v{q4}, v{q4}")
a(f"v_mul_f32 v{q0}, v{q2}, v{p0}")
a(f"v_fma_f32 v{q0}, v{vL+1}, v{p1}, v{q0}")
a(f"v_mul_f32 v{q1}, v{vL+1}, v{p0}")
a(f"v_fma_f32 v{q1}, -v{q2}, v{p1}, v{q1}")
a(f"v_mul_f32 v{vCO}, v{q0}, v{q4}")
a(f"v_mul_f32 v{vCO+1}, v{q1}, v{q4}")
cmul(70, vL, vL); cmul(72, 70, 70); cmul(vL8, 72, 72); cmul(vL16_, vL8, vL8)
cm("skip term x*D via a diagonal B operand -> YACC")
YACC = 112
a("v_and_b32 v64, 1, v0")
a("v_lshlrev_b32 v64, 4, v64")
a(f"v_lshlrev_b32 v{vDSK}, v64, v{vDSK}")
a("v_lshrrev_b32 v64, 1, v17")
a("v_lshlrev_b32 v65, 2, v18")
a("v_sub_u32 v64, v64, v65")
for i in range(0, 8, 2):
    a(f"v_cmp_eq_u32 s[{sM}:{sM+1}], {8*(i//4) + i%4}, v64")
    a(f"v_cmp_eq_u32 vcc, {8*(i//4) + i%4 + 1}, v64")
    a("s_nop 0")
    a(f"v_cndmask_b32 v{104+i}, 0, v{vDSK}, s[{sM}:{sM+1}]")
    a(f"v_cndmask_b32 v{105+i}, 0, v{vDSK}, vcc")
if FPOS == 1: kvflag()
cm("per-lane powers: PS = L16^seg, M0 = L256^seg (if valid), M1 = M0*L128 (if valid)")
vPS, vM0, vM1, vO0, vO1 = 96, 98, 100, 102, 103
a(f"s_mov_b32 s{sM}, 0")
a(f"s_mov_b32 s{sM+1}, -1")
def powsel(dst, b1, b2, b4):
    a(f"v_cndmask_b32 v{dst}, 1.0, v{b1}, s[{sM}:{sM+1}]")
    a(f"v_cndmask_b32 v{dst+1}, 0, v{b1+1}, s[{sM}:{sM+1}]")
    for bit, b in ((0, b2), (1, b4)):
        L = uid("ps")
        a(f"s_bitcmp1_b32 s{sWV}, {bit}")
        a(f"s_cbranch_scc0 {L}")
        cmul(66, dst, b)
        a(f"v_mov_b64 {vr(dst,2)}, v[66:67]")
        lab(L)
cmul(68, vL16_, vL16_); cmul(70, 68, 68); cmul(72, 70, 70)
cmul(74, 72, 72); cmul(76, 74, 74); cmul(78, 76, 76)
powsel(vPS, vL16_, 68, 70)
powsel(vM0, 74, 76, 78)
cmul(vM1, vM0, 72)
a(f"s_lshl_b32 s{sT0}, s{sWV}, 2")
a(f"s_sub_u32 s{sT0}, s{sC}, s{sT0}")
a(f"s_sub_u32 s{sT0}, s{sT0}, 1")
a("v_lshlrev_b32 v30, 1, v18")
a(f"v_sub_u32 v{vO0}, s{sT0}, v30")
a(f"v_add_u32 v{vO1}, -1, v{vO0}")
a(f"v_mov_b32 v30, 0")
for (vo, vm) in ((vO0, vM0), (vO1, vM1)):
    a(f"v_cmp_le_i32 vcc, 0, v{vo}")
    a("s_nop 1")
    a(f"v_cndmask_b32 v{vo}, v30, v{vo}, vcc")
    a(f"v_cndmask_b32 v{vm}, 0, v{vm}, vcc")
    a(f"v_cndmask_b32 v{vm+1}, 0, v{vm+1}, vcc")
    a(f"v_lshl_add_u32 v{vo}, v{vo}, 9, v14")
if FPOS == 2: kvflag()
cm("Q projection")
ACC, QD = 32, 4
XR = 128
VM, LG = Cnt(), Cnt()
xq = [(j, h) for j in range(16) for h in range(2)]
def xb1():
    j, h = xq.pop(0)
    a(f"buffer_load_dwordx4 {vr(XR+8*j+4*h,4)}, v{8+h}, {sr(R_A,4)}, s{16+j//4} offen offset:{64*(j%4)}")
    VM.issue(("x", j))
def qs(ks): return 128 + 8 * (ks % 8)
def qread(ks):
    a(f"ds_read_b64_tr_b16 {vr(qs(ks),2)}, v56 offset:{2048*ks}")
    a(f"ds_read_b64_tr_b16 {vr(qs(ks)+2,2)}, v56 offset:{2048*ks+512}")
    a(f"ds_read_b128 {vr(qs(ks)+4,4)}, v{QXA[ks % 8]} offset:{16384*(ks//8)}")
def qm(ks): mfma32(ACC, qs(ks), qs(ks) + 4, "0" if ks == 0 else None)
DR = [int(x) for x in OPT.get("drain", "").split(",") if x]
sec("Z"); sec("HQ")
a("s_barrier")
segs = []
k0 = 0
for k1 in DR + [32]:
    segs.append((k0, k1)); k0 = k1
for (k0, k1) in segs:
    if k0: a("s_barrier")
    for ks in range(k0, k0 + QD): qread(ks)
    for ks in range(k0, k1):
        if ks + QD < k1:
            if ks + QD in ((8, 16, 24) if B0 else (16, 24)): a("s_barrier")
            qread(ks + QD)
            a(f"s_waitcnt lgkmcnt(12)")
        else:
            a(f"s_waitcnt lgkmcnt({3*(k1-1-ks)})")
        qm(ks)
a(f"s_lshl_b32 s{sT0}, s{sWV}, 9")
a(f"s_add_u32 s{sT0}, s{sT0}, {L_ES}")
a("v_lshlrev_b32 v13, 3, v0")
a(f"v_add_u32 v13, s{sT0}, v13")
a("v_lshlrev_b32 v15, 3, v17")
a(f"v_add_u32 v15, {L_ES}, v15")
a("v_lshlrev_b32 v1, 2, v17")
a("v_lshl_add_u32 v1, v18, 14, v1")
a(f"s_lshl_b32 s{sT0}, s{sPB}, 15")
a(f"s_lshl_b32 s{sT1}, s{sWV}, 13")
a(f"s_add_u32 s{sT5}, s{sT0}, s{sT1}")
a(f"s_add_u32 s{sT6}, s{sT5}, 4096")
a(f"s_and_b32 s{sT0}, s{sRB}, 3")
a(f"s_lshl2_add_u32 s{sT1}, s{sT0}, s{sWV}")
a(f"s_lshl_b32 s{sT1}, s{sT1}, 15")
a(f"s_lshl_b32 s{sT2}, s{sG}, 7")
a(f"s_add_u32 s{sT1}, s{sT1}, s{sT2}")
a("v_lshlrev_b32 v18, 10, v17")
a(f"v_add_u32 v18, s{sT1}, v18")
if YM:
    a(f"s_lshl3_add_u32 s{sT0}, s{sGY}, s{sG}")
    a(f"s_lshl_b32 s{sT0}, s{sT0}, 13")
    a(f"s_and_b32 s{sT1}, s{sWV}, 1")
    a(f"s_lshl_b32 s{sT1}, s{sT1}, 12")
    a(f"s_add_u32 s{sT0}, s{sT0}, s{sT1}")
    a("v_lshlrev_b32 v17, 7, v17")
else:
    a(f"s_lshl2_add_u32 s{sT0}, s{sG}, s{sT0}")
    a(f"s_lshl_b32 s{sT0}, s{sT0}, 14")
    a(f"s_and_b32 s{sT1}, s{sWV}, 1")
    a(f"s_lshl_b32 s{sT1}, s{sT1}, 13")
    a(f"s_add_u32 s{sT0}, s{sT0}, s{sT1}")
    a("v_lshlrev_b32 v17, 7, v0")
a(f"v_add_u32 v17, s{sT0}, v17")
a(f"s_cmp_lt_u32 s{sWV}, 2")
a(f"s_cselect_b32 s{sPC}, s{P_CRE}, s{P_CIM}")
a(f"s_cselect_b32 s{sPC+1}, s{P_CRE+1}, s{P_CIM+1}")
a(f"s_and_b32 s{sT0}, s{sWV}, 1")
a(f"s_mul_i32 s{sT0}, s{sT0}, {32*RSTR}")
a(f"v_add_u32 v28, s{sT0}, v{vRB}")
for r in range(0, 16, 2):
    a(f"v_pk_mul_f32 {vr(ACC+r,2)}, {vr(ACC+r,2)}, v[58:59]")
for j in range(8):
    a(f"v_cvt_pk_bf16_f32 v{ACC+j}, v{ACC+2*j}, v{ACC+2*j+1}")
a(f"ds_write_b128 v57, {vr(ACC,4)}")
a(f"ds_write_b128 v57, {vr(ACC+4,4)} offset:2048")
cm("B tile: 4 k-slots of [64 rows x 256B], xor-swizzled; read addresses v112..119, dma voffset v120")
BA = 112
a("v_lshrrev_b32 v121, 4, v0")
a("v_and_b32 v122, 15, v0")
a(f"v_lshl_add_u32 v121, s{sWV}, 2, v121")
a("v_xor_b32 v123, v122, v121")
a("v_lshlrev_b32 v123, 4, v123")
a("v_lshl_add_u32 v120, v121, 10, v123")
a(f"s_lshr_b32 s{sT0}, s{sWV}, 1")
a(f"s_lshl_b32 s{sT0}, s{sT0}, 13")
a(f"s_sub_u32 s{sT0}, {L_R1}, s{sT0}")
for ks in range(8):
    a(f"v_add_u32 v{BA+ks}, s{sT0}, v{QXA[ks]}")
a(f"s_lshl_b32 s{sT5}, s{sPB}, 15")
a(f"s_lshl_b32 s{sT6}, s{sWV}, 10")
UR = OPT.get("urot", "2")
if UR == "0": a(f"s_mov_b32 s{sT0}, 0")
elif UR == "1": a(f"s_add_u32 s{sT0}, s{sC}, s{sPB}")
elif UR == "2": a(f"s_lshr_b32 s{sT0}, s2, 1")
elif UR == "3": a(f"s_mov_b32 s{sT0}, s2")
for sl in range(4):
    a(f"s_add_u32 s{sT1}, s{sT0}, {sl}")
    a(f"s_and_b32 s{sT1}, s{sT1}, 3")
    a(f"s_lshl_b32 s{sT1}, s{sT1}, 8")
    a(f"s_add_u32 s{16+sl}, s{sT3}, s{sT1}")
    a(f"s_add_u32 s{20+sl}, s{sT5}, s{sT1}")
a("s_waitcnt lgkmcnt(0)")
stamp(3)
a("s_barrier")
a("s_branch L_h2")
sec("H")
lab("L_h2")
a("s_setprio 2")
def rows_dma(tag, base=sT5, ore=0, oim=0):
    a(f"s_mul_i32 s{sT1}, s{sWV}, {8*RSTR}")
    for i in range(8):
        a(f"s_add_u32 m0, s{sT1}, {L_R1 + RSTR*i}")
        a(f"s_add_u32 s{sT2}, s{base}, {1024*i + ore}")
        dma(vL4, R_B, f"s{sT2}")
        a(f"s_add_u32 m0, s{sT1}, {L_R1 + RSTR*(32+i)}")
        a(f"s_add_u32 s{sT2}, s{base}, {1024*i + oim}")
        dma(vL4, R_C, f"s{sT2}")
    VM.issue(tag, 16)
def xw(j, h):
    if h == 0: waits(vm=VM.need(("x", j)))
    a(f"ds_write_b128 v10, {vr(XR+8*j+4*h,4)}" + (" offset:1024" if h else ""))
    LG.issue(("xw", j))
def xr(j):
    a(f"ds_read_b128 {vr(XR+8*j,4)}, v11")
    a(f"ds_read_b128 {vr(XR+8*j+4,4)}, v12")
    LG.issue(("x", j), 2)
if "a" in SU: spf([(P_BRE, 4, 0, 4), (P_BIM, 4, 0, 4), (P_BX, 16, 14, 2)])
if "b" in SU: spf([(P_BX, 16, 6, 10)])
if "c" in SU: spf([(P_BRE, 4, 0, 4), (P_BIM, 4, 0, 4), (P_BX, 16, 0, 16)])
if "d" in SU: spf([(P_CRE, 4, 0, 4), (P_CIM, 4, 0, 4), (P_WO, 4, 0, 4)])
waitc(vCNT, C_A4, 4, 30, sleep=int(OPT.get("a4sl", 1)))
a(f"ds_read_b32 v30, v{vCNT} offset:{C_MODE}")
a("s_setprio 0")
cm("U = x B^T")
XL = int(OPT.get("xl", 2))
def bdma(sl, m):
    a(f"s_add_u32 m0, s{sT6}, {L_R1 + 16384*sl + 4096*m}")
    a(f"s_add_u32 s{sT2}, s{20+sl}, {16384*(m%2)}")
    dma(120, R_B if m < 2 else R_C, f"s{sT2}")
    if sl == 0 and OPT.get("bp") == "1": pace()
    VM.issue(("B", sl))
lq = []
for it in OPT.get("uord", "B0,0,1,2,3,B1,4,5,6,7,B2,8,9,10,11,B3,12,13,14,15").split(","):
    lq += [("B", int(it[1]), m) for m in range(4)] if it[0] == "B" else [("x",), ("x",)]
if OPT.get("mix", "1") == "1":
    for sl in range(1, 4):
        i = lq.index(("B", sl, 0))
        xs, bs_ = lq[i-4:i], lq[i:i+4]
        lq[i-4:i+4] = [y for p in zip(xs, bs_) for y in p]
def ld1(n=1):
    for _ in range(n):
        if not lq: return
        it = lq.pop(0)
        if it[0] == "B": bdma(it[1], it[2])
        else: xb1()
CB = [C_H0, C_H1, C_H2, C_H3]
sigd = set()
def bsig(force=None):
    for sl in range(4):
        issued = not any(it[:2] == ("B", sl) for it in lq)
        if sl in sigd or not issued: continue
        if sl == force: waits(vm=VM.need(("B", sl)))
        if ("B", sl) not in VM.q:
            signal(vCNT, vONE, CB[sl]); LG.issue("sig"); sigd.add(sl)
ld1(int(OPT.get("u0", 12)))
bsig(0)
ld1(int(OPT.get("u1", 4)))
for j in range(XL): xw(j, 0); xw(j, 1); xr(j)
a("s_setprio 2")
a(f"v_readfirstlane_b32 s{sMODE}, v30") if False else None
waitc(vCNT, CB[0], 4, 31)
a(f"v_readfirstlane_b32 s{sMODE}, v30")
LG.q = []
stamp(4)
UPRIO = int(OPT.get("uprio", 0)); YPRIO = int(OPT.get("yprio", 0))
a(f"s_setprio {UPRIO}")
AR, AI, BR = 32, 48, 64
def bread(k):
    s = BR + 8 * (k % 4)
    a(f"ds_read_b128 {vr(s,4)}, v{BA + k % 8} offset:{16384*(k//8)}")
    a(f"ds_read_b128 {vr(s+4,4)}, v{BA + k % 8} offset:{16384*(k//8) + 8192}")
    LG.issue(("b", k), 2)
WOL = int(OPT.get("wol", 0))
PF = [(17, sPC)] + ([] if WOL else [(18, P_WO)])
PFK = int(OPT.get("pfk", 19))
PTK = int(OPT.get("ptk", 27))
CPOS = 0
for k in range(3): bread(k)
for k in range(32):
    j = k // 2; jn = j + XL
    tr = jn < 16
    n1 = LG.need(("x", j)); n2 = LG.need(("b", k))
    waits(lg=n2 if n2 is not None else n1)
    s = BR + 8 * (k % 4)
    first = "0" if k == 0 else None
    mfma32(AR, XR + 4*k, s, first)
    if k % 8 == 2 and k < 24: bsig(k // 8 + 1)
    if k % 8 == 4 and k < 24:
        a(f"ds_read_b32 v31, v{vCNT} offset:{CB[k//8+1]}"); LG.issue("cb")
    if k % 8 == 5 and k < 24:
        waits(lg=LG.need("cb"))
        a("s_setprio 2")
        a("v_cmp_gt_u32 vcc, 4, v31")
        Lk = uid("bk")
        a(f"s_cbranch_vccz {Lk}")
        waitc(vCNT, CB[k//8+1], 4, 31)
        lab(Lk)
        a(f"s_setprio {UPRIO}")
    if k + 3 < 32: bread(k + 3)
    ld1(int(OPT.get("lpk", 1)))
    if PF and k >= PFK and k % 2 == 1:
        v, p = PF.pop(0)
        a(f"global_load_dword v{136+len(PF)}, v{v}, s[{p}:{p+1}]"); VM.issue("pf")
    if k == PTK:
        cm("local mode: make the lines this wave / its attention partner will hand over valid in L2")
        a(f"s_cmp_eq_u32 s{sMODE}, 1")
        a("s_cbranch_scc0 L_h_nopt")
        def touch(soff, n):
            for i in range(n):
                a(f"buffer_load_dwordx4 v[144:147], v{vL4}, {sr(R_WS,4)}, s{soff} offen offset:{1024*i} sc1")
        def touchf(soff):
            a("s_mov_b64 exec, 0xff")
            touch(soff, 1)
            a("s_mov_b64 exec, -1")
        if "h" in LOC:
            a(f"s_lshl2_add_u32 s{sT0}, s{sC}, s{sWV}")
            a(f"s_lshl_b32 s{sT1}, s{sT0}, 5")
            a(f"s_add_u32 s{sT1}, s{sT1}, s{sPB}")
            a(f"s_lshl_b32 s{sT1}, s{sT1}, 11")
            a(f"s_add_u32 s{sT1}, s{sT1}, {WS_H}")
            touch(sT1, 2)
            a(f"s_add_u32 s{sT1}, s{sT1}, 32768")
            touch(sT1, 2)
            a(f"s_lshl4_add_u32 s{sT0}, s{sT0}, s{sPB}")
            a(f"s_lshl_b32 s{sT0}, s{sT0}, 7")
            a(f"s_add_u32 s{sT0}, s{sT0}, {WS_FH}")
            touchf(sT0)
        for kind, off in (("o", 0), ("t", 4)):
            if kind in LOC:
                a(f"s_add_u32 s{sSTEP}, s{sWV}, {off}")
                o_offsets()
                touch(sT1, 1); touchf(sT0)
        lab("L_h_nopt")
    if k == 28:
        a(f"buffer_load_dwordx4 v[128:131], v29, {sr(R_A,4)}, s{sT4} offen")
        a(f"buffer_load_dwordx4 v[132:135], v29, {sr(R_A,4)}, s{sT4} offen offset:32")
        VM.issue("skip", 2)
    mfma32(AI, XR + 4*k, s + 4, first)
    ld1()
    if tr:
        assert not any(q[0] == jn for q in xq)
        xw(jn, k % 2)
        if k % 2: xr(jn)
    bsig()
assert len(sigd) == 4 and not lq
assert not PF
a("s_setprio 2")
srd(R_B, P_CRE, 512 * 1024)
srd(R_C, P_CIM, 512 * 1024)
srd(R_A, P_WO, 512 * 1024)
if CPOS:
    a(f"s_add_u32 s{sSYNC}, s{sSYNC}, 4")
    signal(vCNT, vONE, C_GH)
a(f"s_lshl_b32 s{sT3}, s{sGY}, 16")
a(f"s_lshl_b32 s{sT1}, s{sWV}, 13")
a(f"s_add_u32 s{sT3}, s{sT3}, s{sT1}")
a(f"s_mul_i32 s{sT1}, s{sWV}, {8*RSTR}")
def row1(n, base, ore, oim):
    i, part = n // 2, n % 2
    a(f"s_add_u32 m0, s{sT1}, {L_R1 + RSTR*(32*part+i)}")
    a(f"s_add_u32 s{sT2}, s{base}, {1024*i + (oim if part else ore)}")
    dma(vL4, R_C if part else R_B, f"s{sT2}")
stamp(5)
cm("scale by coef into pair layout, local scan")
UP = 64
G0, G1 = 30, 8
def sc1(r): a(f"v_pk_mul_f32 {vr(UP+2*r,2)}, {vr(vCO,2)}, {vr(AR+(r&~1),2)} op_sel:[0,{r&1}] op_sel_hi:[1,{r&1}]")
def sc2(r): a(f"v_pk_fma_f32 {vr(UP+2*r,2)}, {vr(vCO,2)}, {vr(AI+(r&~1),2)}, {vr(UP+2*r,2)} op_sel:[1,{r&1},0] op_sel_hi:[0,{r&1},1] neg_lo:[1,0,0]")
def c1(dst, L, g, u): a(f"v_pk_fma_f32 {vr(dst,2)}, {vr(L,2)}, {vr(g,2)}, {vr(u,2)} op_sel:[0,0,0] op_sel_hi:[0,1,1]")
def c2(dst, L, g): a(f"v_pk_fma_f32 {vr(dst,2)}, {vr(L,2)}, {vr(g,2)}, {vr(dst,2)} op_sel:[1,1,0] op_sel_hi:[1,0,1] neg_lo:[1,0,0]")
sc1(0); sc1(1); sc1(2); sc2(0); sc2(1); sc2(2)
src = UP
for r in range(1, 16):
    dst = G0 if r % 2 else G1
    if r == 8 and CPOS: waitc(vCNT, C_GH, f"s{sSYNC}", 8)
    c1(dst, vL, src, UP + 2*r)
    if r < 14: sc1(r + 2)
    if r >= 8 and CPOS: row1(2*(r-8), sT3, 32768, 0)
    c2(dst, vL, src)
    if r < 14: sc2(r + 2)
    if r >= 8 and CPOS: row1(2*(r-8) + 1, sT3, 32768, 0)
    src = dst
a(f"ds_write_b64 v13, {vr(G0,2)}")
gsync(vCNT, vONE, 32, C_GH)
stamp(6)
ESR = 32
for s in range(8):
    a(f"ds_read_b64 {vr(ESR+2*s,2)}, v15 offset:{256*s}")
a(f"s_lshl_b32 s{sT6}, s{sPB}, 13")
a(f"s_add_u32 s{sT6}, s{sT6}, {WS_ST}")
a(f"s_lshl_b32 s{sT0}, s{sC}, 9")
a(f"s_add_u32 s{sT0}, s{sT0}, s{sT6}")
a(f"v_mov_b64 {vr(G0,2)}, 0")
a(f"s_mov_b32 s{sCNT}, {POLL_LIMIT}")
a("s_waitcnt lgkmcnt(0)")
a(f"v_mov_b64 {vr(G1,2)}, {vr(ESR,2)}")
for w in range(4):
    if w: cmul_add(G1, vL16_, G0, ESR + 4*w)
    if w < 3:
        a(f"s_cmp_eq_u32 s{sWV}, {w}")
        a("s_cbranch_scc1 L_h_segdone")
        cmul_add(G0, vL16_, G1, ESR + 4*w + 2)
cmul_add(48, vL16_, G1, ESR + 14)
a(f"v_mov_b32 v50, v49")
a(f"v_mov_b32 v49, s{sTAG}")
a(f"v_mov_b32 v51, s{sTAG}")
a("s_mov_b32 exec_hi, 0")
a(f"buffer_store_dwordx4 v[48:51], v14, {sr(R_WS,4)}, s{sT0} offen sc1")
a("s_mov_b64 exec, -1")
lab("L_h_segdone")
a(f"s_mov_b32 s{sM}, 0")
a(f"s_mov_b32 s{sM+1}, -1")
a(f"v_cndmask_b32 v{G0}, v{G0}, v{G1}, s[{sM}:{sM+1}]")
a(f"v_cndmask_b32 v{G0+1}, v{G0+1}, v{G1+1}, s[{sM}:{sM+1}]")
if not CPOS:
    for n in range(16): row1(n, sT3, 32768, 0); pace()
stamp(7)
cm("chunk carry: each lane gathers two predecessors' end states")
a(f"v_mov_b64 {vr(G1,2)}, 0")
a(f"s_cmp_eq_u32 s{sC}, 0")
a("s_cbranch_scc1 L_h_stskip")
lab("L_h_stpoll")
a(f"buffer_load_dwordx4 v[52:55], v{vO0}, {sr(R_WS,4)}, s{sT6} offen sc1")
a(f"buffer_load_dwordx4 v[56:59], v{vO1}, {sr(R_WS,4)}, s{sT6} offen sc1")
a("s_waitcnt vmcnt(0)")
a(f"v_cmp_ne_u32 vcc, s{sTAG}, v53")
a(f"v_cmp_ne_u32 s[{sM}:{sM+1}], s{sTAG}, v55")
a(f"s_or_b64 s[{sM}:{sM+1}], s[{sM}:{sM+1}], vcc")
a(f"v_cmp_ne_u32 vcc, s{sTAG}, v57")
a(f"s_or_b64 s[{sM}:{sM+1}], s[{sM}:{sM+1}], vcc")
a(f"v_cmp_ne_u32 vcc, s{sTAG}, v59")
a(f"s_or_b64 s[{sM}:{sM+1}], s[{sM}:{sM+1}], vcc")
a("s_cbranch_scc0 L_h_stok")
a(f"s_sub_u32 s{sCNT}, s{sCNT}, 1")
a("s_cbranch_scc0 L_h_stpoll")
lab("L_h_stok")
a(f"v_pk_mul_f32 {vr(G1,2)}, {vr(vM0,2)}, v[52:53] op_sel:[0,0] op_sel_hi:[1,0]")
a(f"v_pk_mul_f32 v[60:61], {vr(vM1,2)}, v[56:57] op_sel:[0,0] op_sel_hi:[1,0]")
a(f"v_pk_fma_f32 {vr(G1,2)}, {vr(vM0,2)}, v[54:55], {vr(G1,2)} op_sel:[1,0,0] op_sel_hi:[0,0,1] neg_lo:[1,0,0]")
a(f"v_pk_fma_f32 v[60:61], {vr(vM1,2)}, v[58:59], v[60:61] op_sel:[1,0,0] op_sel_hi:[0,0,1] neg_lo:[1,0,0]")
a(f"v_pk_add_f32 {vr(G1,2)}, {vr(G1,2)}, v[60:61]")
lab("L_h_stskip")
a(f"ds_write_b64 v13, {vr(G1,2)} offset:{L_CS - L_ES}")
a("s_waitcnt vmcnt(0)")
mfma32(YACC, 128, 104, "0")
mfma32(YACC, 132, 108)
if WOL == 1: a(f"global_load_dword v10, v18, s[{P_WO}:{P_WO+1}]")
gsync(vCNT, vONE, 32, C_GH)
for s in range(8):
    a(f"ds_read_b64 {vr(32+2*s,2)}, v15 offset:{L_CS - L_ES + 256*s}")
a(f"s_lshl_b32 s{sT0}, s{sC}, 2")
a(f"s_add_u32 s{sT0}, s{sT0}, s{sWV}")
a(f"s_lshl_b32 s{sT4}, s{sT0}, 16")
a(f"s_add_u32 s{sT4}, s{sT4}, {WS_H}")
a(f"s_lshl_b32 s{sT1}, s{sPB}, 11")
a(f"s_add_u32 s{sT1}, s{sT1}, s{sT4}")
a(f"s_add_u32 s{sT2}, s{sT1}, 32768")
a(f"s_lshl_b32 s{sT0}, s{sT0}, 11")
a(f"s_add_u32 s{sT5}, s{sT0}, {WS_FH}")
a(f"s_lshl_b32 s{sT0}, s{sPB}, 7")
a(f"s_add_u32 s{sF1}, s{sT0}, s{sT5}")
a("s_waitcnt lgkmcnt(0)")
stamp(8)
for st in (8, 4, 2):
    for j in range(0, st, 2):
        a(f"v_pk_add_f32 {vr(32+j,2)}, {vr(32+j,2)}, {vr(32+j+st,2)}")
cmul_add(G0, vPS, 32, G0)
HB = 32
cmul_add(UP, vL, G0, UP)
for r in range(1, 16):
    cmul_add(UP + 2*r, vL, UP + 2*(r-1), UP + 2*r)
for part in range(2):
    ng = "-" if part else ""
    for j in range(8):
        a(f"v_cvt_pk_bf16_f32 v{HB+8*part+j}, {ng}v{UP+4*j+part}, {ng}v{UP+4*j+2+part}")
    a(f"ds_write_b128 v16, {vr(HB+8*part,4)}")
    a(f"ds_write_b128 v16, {vr(HB+4+8*part,4)} offset:16")
    for ks in range(2):
        d = 48 + 8*part + 4*ks
        a(f"ds_read_b64_tr_b16 {vr(d,2)}, v19 offset:{1024*ks}")
        a(f"ds_read_b64_tr_b16 {vr(d+2,2)}, v19 offset:{1024*ks+256}")
KIND[0] = "h"
a(f"v_lshlrev_b32 v24, 2, v0")
a(f"v_mov_b32 v25, s{sTAG}")
def flag_novalu(soff):
    a("s_mov_b32 exec_hi, 0")
    st2([f"buffer_store_dword v25, v24, {sr(R_WS,4)}, s{soff} offen@"])
    a("s_mov_b64 exec, -1")
a("s_waitcnt lgkmcnt(0)")
st2([f"buffer_store_dwordx4 {vr(48+8*part+4*ks,4)}, v{vL4}, {sr(R_WS,4)}, s{sT1 if part == 0 else sT2} offen offset:{1024*ks}@" for part in range(2) for ks in range(2)])
a("v_and_b32 v8, 15, v0")
a("v_lshlrev_b32 v12, 7, v8")
CF = 128
LB = int(OPT.get("lb", 1))
if LB: a("s_setprio 0")
for k in range(32):
    a(f"ds_read_b128 {vr(CF+4*k,4)}, v28 offset:{32*k}")
    if k == 13:
        a("s_waitcnt vmcnt(0)")
        flag_novalu(sF1)
a(f"s_add_u32 s{sSYNC}, s{sSYNC}, 4")
signal(vCNT, vONE, C_GH)
if LB: a("s_setprio 2")
stamp(9)
def reduce_inline(RB_, b1=None, bs=None):
    b1 = RB_ + 16 if b1 is None else b1
    bs = RB_ + 32 if bs is None else bs
    Ls, Le = uid("rs"), uid("re")
    a(f"s_mul_i32 s{sT2}, s{sSTEP}, {PSTRIDE}")
    a(f"v_add_u32 v10, s{sT2}, v{vL4}")
    a(f"s_add_u32 s{sT2}, s{sT2}, {L_PART + 8192}")
    o_offsets()
    waitc(11, 0, f"s{sT2}", 8)
    a(f"ds_read_b128 {vr(bs,4)}, v10 offset:8192")
    for w in range(4):
        d = (RB_ if w < 2 else b1) + 8*(w % 2)
        a(f"ds_read_b128 {vr(d,4)}, v10 offset:{2048*w}")
        a(f"ds_read_b128 {vr(d+4,4)}, v10 offset:{2048*w + 1024}")
    a("s_waitcnt lgkmcnt(8)")
    sum_check(bs)
    a("s_waitcnt lgkmcnt(0)")
    a(f"s_cbranch_scc1 {Ls}")
    reduce_math(RB_, vL4, flag=False, b1=b1, bs=bs)
    a(f"s_branch {Le}")
    lab(Ls)
    a(f"s_mov_b32 s{sT0}, {WS_DUMMY}")
    lab(Le)
waitc(vCNT, C_GH, f"s{sSYNC}", 8)
a(f"s_mul_i32 s{sT1}, s{sWV}, {8*RSTR}")
for n in range(16): row1(n, sT3, 0, 32768); pace()
a("v_and_b32 v11, 3, v0")
a("v_lshlrev_b32 v11, 2, v11")
a(f"v_add_u32 v11, {L_PROG}, v11")
a(f"v_add_u32 v13, {(L_PART - L_R1) & 0xffffffff}, v{vWT}")
a(f"s_lshl_b32 s{sT5}, s{sYY}, 11")
a(f"s_add_u32 s{sT5}, s{sT5}, {WS_FH}")
a(f"s_lshl_b32 s{sT4}, s{sYY}, 16")
a(f"s_and_b32 s{sT1}, s{sWV}, 1")
a(f"s_lshl_b32 s{sT1}, s{sT1}, 15")
a(f"s_add_u32 s{sT4}, s{sT4}, s{sT1}")
a(f"s_add_u32 s{sT4}, s{sT4}, {WS_H}")
stamp(10)
poll(12, f"s{sT5}", 8)
stamp(11)
HR, CR, NH = 48, 96, 12
WF, OF = 48, 128
def hload(k):
    if k % 4 == 0 and k: a(f"s_add_u32 s{sT4}, s{sT4}, 4096")
    a(f"buffer_load_dwordx4 {vr(HR+4*(k%NH),4)}, v{vL4}, {sr(R_WS,4)}, s{sT4} offen offset:{1024*(k%4)} sc1")
def cread(k):
    a(f"ds_read_b128 {vr(CR+4*(k%4),4)}, v28 offset:{32*k}")
def oload(k):
    if k % 4 == 0 and k: a(f"s_add_u32 s{sT6}, s{sT6}, 4096")
    a(f"buffer_load_dwordx4 {vr(OF+4*k,4)}, v{vL4}, {sr(R_WS,4)}, s{sT6} offen offset:{1024*(k%4)} sc1")
def wo_setup():
    a(f"s_and_b32 s{sT0}, s{sWV}, 1")
    a(f"s_lshl_b32 s{sT0}, s{sT0}, 18")
    a(f"s_lshr_b32 s{sT1}, s{sWV}, 1")
    a(f"s_lshl_b32 s{sT1}, s{sT1}, 14")
    a(f"s_add_u32 s{sT0}, s{sT0}, s{sT1}")
    a(f"s_lshl_b32 s{sT1}, s{sG}, 7")
    a(f"s_add_u32 s{sT0}, s{sT0}, s{sT1}")
    a(f"s_mul_i32 s{sT1}, s{sWV}, {PSTRIDE}")
def wo_one(half, n):
    q, i = n // 2, n % 2
    a(f"s_add_u32 m0, s{sT1}, {(L_R1 if half else L_PART) + 2048*q + 1024*i}")
    a(f"s_add_u32 s{sT2}, s{sT0}, {32768*half + 65536*q + 8192*i}")
    dma(vWO, R_A, f"s{sT2}")
def wread(dst, k):
    o = PSTRIDE * ((k % 16) // 4) + 2048 * (k % 4)
    ad = 13 if k < 16 else vWT
    a(f"ds_read_b64_tr_b16 {vr(dst,2)}, v{ad} offset:{o}")
    a(f"ds_read_b64_tr_b16 {vr(dst+2,2)}, v{ad} offset:{o+1024}")
HD, CD = 11, 3
RK = int(OPT.get("rk", 25))
FK = 4
VM, LG = Cnt(), Cnt()
for k in range(HD): hload(k); VM.issue(("h", k))
a(f"s_lshl_b32 s{sT5}, s{sYG}, 12")
a(f"s_add_u32 s{sT5}, s{sT5}, {WS_FO}")
a(f"s_lshl_b32 s{sT6}, s{sYG}, 15")
a(f"s_add_u32 s{sT6}, s{sT6}, {WS_O}")
a(f"s_mov_b32 s{sSTEP}, s{sWV}")
KIND[0] = "o"
reduce_inline(32, 96, 20)
a(f"s_mov_b32 s{sF1}, s{sT0}")
gsync(vCNT, vONE, 8, C_GH)
a(f"s_setprio {YPRIO}")
for k in range(CD): cread(k); LG.issue(("c", k))
FLK = int(OPT.get("flk", 14))
oq = list(range(16))
for k in range(32):
    if k == FK:
        waits(vm=VM.need(("h", HD)))
        flag_novalu(sF1); VM.issue("f")
        wo_setup()
    if k == FLK:
        a(f"buffer_load_dword v9, v12, {sr(R_WS,4)}, s{sT5} offen sc1"); VM.issue("fl")
    if k == FLK + 5:
        waits(vm=VM.need("fl"))
        a("s_setprio 2")
        a(f"v_cmp_ne_u32 vcc, s{sTAG}, v9")
        a("s_cbranch_vccz L_y_ok")
        poll(12, f"s{sT5}", 8)
        lab("L_y_ok")
        a(f"s_setprio {YPRIO}")
    if k + HD < 32: hload(k + HD); VM.issue(("h", k + HD))
    if k + CD < 32: cread(k + CD); LG.issue(("c", k + CD))
    waits(vm=VM.need(("h", k)), lg=LG.need(("c", k)))
    mfma32(YACC, HR + 4*(k % NH), CR + 4*(k % 4))
    n = k - FK - 1
    if 0 <= n < 8: wo_one(0, n); VM.issue("wo")
    if k >= FLK + 5:
        for _ in range(2 if k + HD >= 32 else 1):
            if oq: oload(oq.pop(0)); VM.issue("o")
    mfma32(32, HR + 4*(k % NH), CF + 4*k, "0" if k == 0 else None)
assert not oq
a("s_setprio 2")
a(f"s_lshl_b32 s{sT2}, s{sWV}, 12")
a(f"s_add_u32 s{sT2}, s{sT2}, {L_R1 + 40960}")
a(f"v_add_u32 v10, s{sT2}, v{vL4}")
a("v_xor_b32 v11, 4096, v10")
assert (L_R1 + 40960) % 8192 == 0
a(f"s_lshl_b32 s{sT2}, s{sWV}, 9")
a(f"s_add_u32 s{sT2}, s{sT2}, {L_CS}")
a("v_lshlrev_b32 v8, 3, v0")
a(f"v_add_u32 v8, s{sT2}, v8")
a(f"ds_write2_b32 v8, v{vWT}, v1 offset1:1")
waits(vm=VM.need("wo"))
gsync(vCNT, vONE, 8, C_GH)
stamp(12)
for i in range(8):
    wo_one(1, i)
    if i < 4: a(f"ds_write_b128 v10, {vr(32+4*i,4)} offset:{1024*i}")
    if i == 3:
        a(f"s_add_u32 s{sSYNC}, s{sSYNC}, 4")
        signal(vCNT, vONE, C_GH)
    if 4 <= i < 7: pace()
srd(R_B, P_OUT, 2048 * 4096)
a(f"s_lshl_b32 s{sT0}, s{sYY}, 17")
a(f"s_lshl_b32 s{sT1}, s{sCG}, 7")
a(f"s_add_u32 s{sT0}, s{sT0}, s{sT1}")
def store1(b, r, off=0):
    a(f"s_add_u32 s{sT1}, s{sT0}, {4096 * (8*(r//4) + r%4)}")
    a(f"buffer_store_dword v{b+r}, v1, {sr(R_B,4)}, s{sT1} offen" + (f" offset:{off}" if off else "") + YFL)
a(f"s_mul_i32 s{sT2}, s{sWV}, {PSTRIDE}")
a(f"v_add_u32 v10, s{sT2}, v{vL4}")
a(f"s_lshl_b32 s{sT2}, s{sWV}, 2")
a(f"v_add_u32 v9, s{sT2}, v{vCNT}")
waitc(vCNT, C_GH, f"s{sSYNC}", 8)
for i in range(4):
    a(f"ds_read_b128 {vr(192+4*i,4)}, v11 offset:{1024*i}")
YL = OPT.get("ylate") == "1"
def ystores():
    for j in range(8):
        a(f"v_pk_add_f32 {vr(YACC+2*j,2)}, {vr(YACC+2*j,2)}, {vr(192+2*j,2)}")
        store1(YACC, 2*j, 2048)
        store1(YACC, 2*j + 1, 2048)
if LB: a("s_setprio 0")
for k in range(16): wread(WF + 4*k, k)
if LB: a("s_setprio 2")
a(f"s_waitcnt vmcnt(0) lgkmcnt(15)")
a(f"s_add_u32 s{sSYNC}, s{sSYNC}, 4")
signal(vCNT, vONE, C_GH)
for j in range(8):
    a(f"v_pk_add_f32 {vr(YACC+2*j,2)}, {vr(YACC+2*j,2)}, {vr(192+2*j,2)}")
a(f"s_waitcnt lgkmcnt(0)")
stamp(14)
a("s_setprio 0")
for k in range(16):
    mfma32(32, OF + 4*k, WF + 4*k, "0" if k == 0 else None)
    store1(YACC, k, 2048)
nsync = sum(1 for n in ("HQ", "H") for x in SECS[n] if x.strip() == f"s_add_u32 s{sSYNC}, s{sSYNC}, 4")
SECS["P"].insert(0, f".set NSYNC_B2, {4*nsync}")
a("s_setprio 2")
waitc(vCNT, C_GH, f"s{sSYNC}", 8)
a("s_nop 6")
for i in range(4):
    a(f"ds_write_b128 v10, {vr(32+4*i,4)} offset:{1024*i}")
a(f"ds_write_b32 v9, v{vONE} offset:{C_HA}")
stamp(13)
if YL:
    waitc(vCNT, C_S, 4, 8, sleep=1)
    ystores()
a("s_branch L_end")

lab("L_slow")
a("s_waitcnt lgkmcnt(0)")
a(f"s_mov_b32 s{sKIND}, 0")
a(f"s_lshl_b32 s{sT0}, s{sSTEP}, 10")
a(f"s_add_u32 s{sT0}, s{sT0}, {L_QF}")
a(f"v_add_u32 v4, s{sT0}, v14")
a(f"ds_read_b128 {vr(vQ,4)}, v4")
a("v_mov_b32 v4, 0xff800000")
a("v_lshrrev_b32 v16, 5, v0")
a("v_and_b32 v17, 15, v0")
a("v_lshl_add_u32 v15, v16, 4, v17")
a("v_lshlrev_b32 v15, 4, v15")
a(f"s_mov_b32 s{sM}, 0xffff")
a(f"s_mov_b32 s{sM+1}, 0xffff")
a(f"s_mov_b32 s{sT0}, {WS_KV}")
lab("L_slow_p1")
kvload(0)
a("s_waitcnt vmcnt(0) lgkmcnt(0)")
for t in range(2):
    qk(S0, t)
    a("s_nop 11")
    for i in range(8):
        a(f"v_max3_f32 v4, v{S0+2*i}, v{S0+2*i+1}, v4")
a(f"s_cmp_lt_u32 s{sT0}, {WS_KV + 131072}")
a("s_cbranch_scc1 L_slow_p1")
a("v_mov_b32 v5, v4")
a("s_nop 1")
a("v_permlane32_swap_b32 v4, v5")
a("v_max_f32 v4, v4, v5")
for i in range(16):
    a(f"v_sub_f32 v{S1+i}, 0, v4")
zeroO()
a(f"s_mov_b32 s{sT0}, {WS_KV}")
lab("L_slow_p2")
kvload(0)
a("s_waitcnt vmcnt(0)")
for t in range(2):
    mfma32(S0, K_(t), vQ, vr(S1, 16))
    a("s_nop 11")
    exs(S0, 0, 16)
    a("s_nop 1")
    smf(V1(t), S0)
    smf(V2(t), S0 + 8)
a(f"s_cmp_lt_u32 s{sT0}, {WS_KV + 131072}")
a("s_cbranch_scc1 L_slow_p2")
o_offsets()
a(f"v_rcp_f32 v4, v{vO+8}")
a("s_nop 0")
for j in range(4):
    a(f"v_pk_mul_f32 {vr(vO+2*j,2)}, {vr(vO+2*j,2)}, v[4:5] op_sel_hi:[1,0]")
for j in range(4):
    a(f"v_cvt_pk_bf16_f32 v{16+j}, v{vO+2*j}, v{vO+2*j+1}")
a(f"buffer_store_dwordx4 v[16:19], v14, {sr(R_WS,4)}, s{sT1} offen sc1")
a("s_waitcnt vmcnt(0)")
setflag(16, 17, sT0)
a("v_and_b32 v15, 15, v0")
a("v_lshlrev_b32 v15, 7, v15")
a("v_lshlrev_b32 v7, 3, v0")
a(f"v_add_u32 v7, s{sT5}, v7")
a(f"s_lshl_b32 s{sT0}, s{sWV}, 2")
a(f"v_add_u32 v10, s{sT0}, v{vCA}")
a(f"s_cmp_lt_u32 s{sSTEP}, 4")
a("s_cbranch_scc1 L_a_ok2")
a("ds_read_b128 v[56:59], v6 offset:8192")
a("s_waitcnt lgkmcnt(0)")
a("s_branch L_a_ok1")
lab("L_a_bad1")
a("s_waitcnt lgkmcnt(0)")
a(f"s_sub_u32 s{sSTEP}, 7, s{sWV}")
a("s_branch L_slow")
lab("L_a_bad2")
a(f"s_mov_b32 s{sSTEP}, s{sWV}")
a("s_branch L_slow")

lab("L_end")
ROLE[0] = "E"
if PROBE:
    a("s_waitcnt vmcnt(0)")
    stamp(15)
    a(f"s_cmp_ge_u32 s{sW}, 4")
    a(f"s_cbranch_scc{0 if PROBE[0] == 'A' else 1} L_exit")
    a(f"s_cmp_eq_u32 s{80+int(PROBE[1])}, 0")
    a("s_cbranch_scc1 L_exit")
    a(f"s_sub_u32 s{sT0}, s{80+int(PROBE[1])}, s{80+int(PROBE[2])}")
    if OPT.get("pmode"):
        a(f"s_cmp_eq_u32 s{sMODE}, 1")
        a(f"s_cselect_b32 s{sT0}, 0, 1000")
    a(f"s_min_u32 s{sT0}, s{sT0}, 10000")
    a(f"s_lshl_b32 s{sT0}, s{sT0}, 1")
    a(f"s_memrealtime s[{sST}:{sST+1}]")
    a("s_waitcnt lgkmcnt(0)")
    a(f"s_mov_b32 s{sT1}, s{sST}")
    lab("L_probe")
    a(f"s_memrealtime s[{sST}:{sST+1}]")
    a("s_waitcnt lgkmcnt(0)")
    a(f"s_sub_u32 s{sT2}, s{sST}, s{sT1}")
    a(f"s_cmp_lt_u32 s{sT2}, s{sT0}")
    a("s_cbranch_scc1 L_probe")
elif STAMPS:
    a("s_waitcnt vmcnt(0)")
    stamp(15)
    a(f"s_lshl_b32 s{sT0}, s2, 3")
    a(f"s_xor_b32 s{sT1}, s{sW}, 4")
    a(f"s_add_u32 s{sT0}, s{sT0}, s{sT1}")
    a(f"s_lshl_b32 s{sT0}, s{sT0}, 6")
    a(f"s_add_u32 s{sT0}, s{sT0}, {WS_STAMP}")
    for i in range(16): a(f"v_mov_b32 v{16+i}, s{80+i}")
    a("v_mov_b32 v0, 0")
    a("s_mov_b64 exec, 1")
    for i in range(4):
        a(f"buffer_store_dwordx4 {vr(16+4*i,4)}, v0, {sr(R_WS,4)}, s{sT0} offen offset:{16*i}")
lab("L_exit")
a("s_endpgm")

hdr = open("cdna_kernels/" + NAME + ".s.ref").read().split("; Override launch")[0]
src = hdr + f"; @launch grid=(256,1,1) block=(512,1,1) lds={LDS_BYTES}\n" + f""".amdgcn_target "amdgcn-amd-amdhsa--gfx950"
.text
.globl {NAME}_kernel
.p2align 8
.type {NAME}_kernel,@function
{NAME}_kernel:
""" + "\n".join(x for n in ("P", "AL", "HQ", "Z", "A", "H") for x in SECS[n]) + f"""
.section .rodata,"a"
.p2align 6
.amdhsa_kernel {NAME}_kernel
  .amdhsa_next_free_vgpr 256
  .amdhsa_next_free_sgpr 102
  .amdhsa_accum_offset 256
  .amdhsa_group_segment_fixed_size 0
  .amdhsa_kernarg_size 136
  .amdhsa_user_sgpr_count 2
  .amdhsa_user_sgpr_kernarg_segment_ptr 1
  .amdhsa_system_sgpr_workgroup_id_x 1
.end_amdhsa_kernel
"""
open(OUT, "w").write(src)
```

```python
import sys, math, struct
NAME = "concat_heads__grouped_kv_mqa__ssm_conv_s5__prompt"
STAMPS = "--stamps" in sys.argv
OPT = dict(a.lstrip("-").split("=") for a in sys.argv[1:] if a.startswith("--") and "=" in a)
OUT = [a for a in sys.argv[1:] if not a.startswith("--")][0]
OUTFL = OPT.get("outfl", "nt").replace(",", " ")
if OUTFL: OUTFL = " " + OUTFL
YFL = OPT.get("yfl", "nt").replace(",", " ")
if YFL: YFL = " " + YFL

def f32(x): return "0x%08x" % struct.unpack("<I", struct.pack("<f", x))[0]

FSH = int(OPT.get('fsh', 6))
WS_O2 = 0x300000
C_HA = 48
WS_DUMMY = 0x800
WS_FKV = 0x1000
WS_FH  = 0x20000
WS_FO  = 0x80000
WS_KV  = 0x40000
WS_ST  = 0x60000
WS_O   = 0x100000
WS_H   = 0x400000
WS_SLOW = 0x800000
WS_STAMP = 15 << 20
WS_SIZE = 16 << 20
L_XA, L_WQ, L_KVP, L_WKV = 0, 65536, 131072, 140288
L_PART, L_R1, L_SCR, L_ES, L_QF, L_PROG, L_CNT = 0, 73728, 140288, 148480, 150528, 158720, 159744
L_MAX = 159808
L_CS = 160832

LDS_BYTES = 163840
PSTRIDE = 9216
RSTR = 1040
POLL_LIMIT = 400000
C_A1, C_H1, C_H2, C_A3, C_A4, C_GA, C_GH, C_TAG, C_H3, C_S, C_H0, C_DONE = 0, 4, 8, 12, 16, 20, 24, 28, 32, 36, 40, 44

SECS = {}
class _L:
    cur = None
    def append(self, x): SECS[_L.cur].append(x)
lines = _L()
def sec(n):
    SECS.setdefault(n, []); _L.cur = n
sec("P")
def a(s): lines.append("    " + s)
def lab(s): lines.append(s + ":")
def cm(s): lines.append("    ; " + s)
_uid = [0]
def uid(p):
    _uid[0] += 1
    return f"L_{p}{_uid[0]}"
def vr(b, n): return f"v[{b}:{b+n-1}]"
def sr(b, n): return f"s[{b}:{b+n-1}]"

sW, sTAG, sRB, sG, sC, sPB = 3, 4, 5, 6, 7, 8
sT0, sT1, sT2, sT3, sT4, sCNT = 9, 10, 11, 12, 13, 14
sWV = 15
P_AX, P_WQ, P_WK, P_WV, P_WO, P_BX, P_LRE, P_LIM = 16, 18, 20, 22, 24, 26, 28, 30
P_BRE, P_BIM, P_CRE, P_CIM, P_LDT, P_DSK, P_OUT, P_DBG = 32, 34, 36, 38, 40, 42, 44, 46
P_WS = 48
sT5, sT6 = 50, 51
R_WS, R_A, R_B, R_C = 52, 56, 60, 64
sM = 68
sGRP, sKIND, sSTEP, sSYNC = 70, 71, 72, 73
sRET = 74
sST = 76
sLO, sHI = 78, 79
sROT = sSTEP
sF1, sF2 = 0, 1
sYG, sCG, sPC = 96, 97, 98
sGY, sYY = 100, 101
YM = int(OPT.get('ymap', 0))
sMODE = sGRP
C_MODE = C_DONE
LFL = OPT.get('lfl', '').replace(',', ' ')
if LFL: LFL = ' ' + LFL

def srd(dst, ptr, nbytes):
    a(f"s_mov_b32 s{dst}, s{ptr}")
    a(f"s_and_b32 s{dst+1}, s{ptr+1}, 0xffff")
    a(f"s_mov_b32 s{dst+2}, {nbytes}")
    a(f"s_mov_b32 s{dst+3}, 0x20000")

PROBE = OPT.get("probe")
ROLE = ["?"]
if PROBE:
    PROBE = PROBE.split(","); STAMPS = True
def stamp(i, ins="s_memrealtime"):
    if PROBE and not (ins == "s_memrealtime" and (ROLE[0] in (PROBE[0], "E")) and str(i) in PROBE[1:]): return
    if OPT.get("dbg") == "steps" and ROLE[0] == "A" and i < 10: return
    if OPT.get("sel") and ROLE[0] != "E" and f"{ROLE[0]}{i}" not in OPT["sel"].split(","): return
    if STAMPS:
        a(f"{ins} s[{sST}:{sST+1}]")
        a("s_waitcnt lgkmcnt(0)")
        a(f"s_mov_b32 s{80+i}, s{sST}")
def cstamp(i): stamp(i, "s_memtime")
DBG = OPT.get("dbg", "")
def dstamp(name, i):
    if DBG == name: stamp(i)
_stamp0 = stamp


def dma(voff, srdr, soff, imm=0):
    o = f" offset:{imm}" if imm else ""
    a(f"buffer_load_dwordx4 v{voff}, {sr(srdr,4)}, {soff} offen{o} lds")

PACE = int(OPT.get("pace", 24))
def pace():
    n = PACE
    while n > 0:
        a(f"s_nop {min(n, 16) - 1}"); n -= 16

def poll(voff, soff, vt, sleep=0, fl=" sc1"):
    L, D = uid("poll"), uid("pdone")
    a(f"s_mov_b32 s{sCNT}, {POLL_LIMIT}")
    lab(L)
    a(f"buffer_load_dword v{vt}, v{voff}, {sr(R_WS,4)}, {soff} offen{fl}")
    a("s_waitcnt vmcnt(0)")
    a(f"v_cmp_ne_u32 vcc, s{sTAG}, v{vt}")
    a(f"s_cbranch_vccz {D}")
    if sleep: a(f"s_sleep {sleep}")
    a(f"s_sub_u32 s{sCNT}, s{sCNT}, 1")
    a(f"s_cbranch_scc0 {L}")
    lab(D)

def setflag(vt0, vt1, soff):
    a(f"v_mov_b32 v{vt0}, 0")
    a(f"v_mov_b32 v{vt1}, s{sTAG}")
    a("s_mov_b64 exec, 1")
    a(f"buffer_store_dword v{vt1}, v{vt0}, {sr(R_WS,4)}, s{soff} offen sc1")
    a("s_mov_b64 exec, -1")

LOC = OPT.get("loc", "t")
KIND = ["t"]
assert not (YM and "h" in LOC)
def st2(instrs):
    if KIND[0] not in LOC:
        for x in instrs: a(x.replace("@", " sc1"))
        return
    L, E = uid("sl"), uid("se")
    a(f"s_cmp_eq_u32 s{sMODE}, 1")
    a(f"s_cbranch_scc1 {L}")
    for x in instrs: a(x.replace("@", " sc1"))
    a(f"s_branch {E}")
    lab(L)
    for x in instrs: a(x.replace("@", LFL))
    lab(E)

def spf(spec):
    for ptr, lines, first, cnt in spec:
        a(f"s_lshl2_add_u32 s{sRET}, s2, s{sWV}")
        a(f"s_mul_i32 s{sRET}, s{sRET}, {128*lines}")
        a(f"s_add_u32 s{sRET}, s{sRET}, s{ptr}")
        a(f"s_addc_u32 s{sRET+1}, s{ptr+1}, 0")
        for i in range(first, first + cnt):
            a(f"s_load_dword s{sST}, s[{sRET}:{sRET+1}], {128*i}")

def signal(vcnt, vone, off):
    a("s_mov_b64 exec, 1")
    a(f"ds_add_u32 v{vcnt}, v{vone} offset:{off}")
    a("s_mov_b64 exec, -1")

HSL = int(OPT.get("hsl", 0))
def waitc(vcnt, off, target, vt, sleep=0):
    L = uid("wc")
    if ROLE[0] == "H" and _L.cur == "H": sleep = max(sleep, HSL)
    if sleep:
        L2 = uid("wd")
        a(f"s_branch {L2}")
    lab(L)
    if sleep:
        a(f"s_sleep {sleep}")
        lab(L2)
    a(f"ds_read_b32 v{vt}, v{vcnt} offset:{off}")
    a("s_waitcnt lgkmcnt(0)")
    a(f"v_cmp_gt_u32 vcc, {target}, v{vt}")
    a(f"s_cbranch_vccnz {L}")

def gsync(vcnt, vone, vt, off):
    a("s_waitcnt lgkmcnt(0)")
    a(f"s_add_u32 s{sSYNC}, s{sSYNC}, 4")
    signal(vcnt, vone, off)
    waitc(vcnt, off, f"s{sSYNC}", vt)

def mfma32(d, x, y, c=None):
    c = vr(d, 16) if c is None else c
    a(f"v_mfma_f32_32x32x16_bf16 {vr(d,16)}, {vr(x,4)}, {vr(y,4)}, {c}")

def cmul_add(dst, L, g, u):
    a(f"v_pk_fma_f32 {vr(dst,2)}, {vr(L,2)}, {vr(g,2)}, {vr(u,2)} op_sel:[0,0,0] op_sel_hi:[0,1,1]")
    a(f"v_pk_fma_f32 {vr(dst,2)}, {vr(L,2)}, {vr(g,2)}, {vr(dst,2)} op_sel:[1,1,0] op_sel_hi:[1,0,1] neg_lo:[1,0,0]")

def cmul(dst, x, y):
    a(f"v_pk_mul_f32 {vr(dst,2)}, {vr(x,2)}, {vr(y,2)} op_sel:[0,0] op_sel_hi:[0,1]")
    a(f"v_pk_fma_f32 {vr(dst,2)}, {vr(x,2)}, {vr(y,2)}, {vr(dst,2)} op_sel:[1,1,0] op_sel_hi:[1,0,1] neg_lo:[1,0,0]")

def csq(dst, src, t):
    a(f"v_mul_f32 v{t}, v{src+1}, v{src+1}")
    a(f"v_add_f32 v{t+1}, v{src}, v{src}")
    a(f"v_fma_f32 v{dst}, v{src}, v{src}, -v{t}")
    a(f"v_mul_f32 v{dst+1}, v{t+1}, v{src+1}")

def xvoffsets(XO, t0):
    a(f"v_lshrrev_b32 v{t0}, 4, v0")
    a(f"v_and_b32 v{t0+1}, 15, v0")
    for i in range(4):
        a(f"v_add_u32 v{t0+2}, {4*i}, v{t0}")
        a(f"v_xor_b32 v{t0+3}, v{t0+1}, v{t0+2}")
        a(f"v_lshlrev_b32 v{t0+3}, 4, v{t0+3}")
        a(f"v_lshl_add_u32 v{XO+i}, v{t0+2}, 10, v{t0+3}")

def wtr_addr(dst, hhshift, base, t):
    a(f"v_bfe_u32 v{t}, v0, 2, 2")
    a(f"v_bfe_u32 v{t+1}, v0, 4, 1")
    a(f"v_bfe_u32 v{t+2}, v0, 1, 1")
    a(f"v_lshl_add_u32 v{t+1}, v{t+1}, 1, v{t+2}")
    a(f"s_and_b32 s{sT0}, s{sWV}, 1")
    a(f"s_lshl_b32 s{sT0}, s{sT0}, 2")
    a(f"v_add_u32 v{t+1}, s{sT0}, v{t+1}")
    a(f"v_bfe_u32 v{t+2}, v0, 3, 1")
    a(f"v_lshlrev_b32 v{t+2}, 2, v{t+2}")
    a(f"v_xor_b32 v{t+1}, v{t+1}, v{t+2}")
    a(f"v_lshlrev_b32 v{t+1}, 4, v{t+1}")
    a(f"v_lshl_add_u32 v{t+1}, v{t}, 7, v{t+1}")
    a(f"v_and_b32 v{t+2}, 1, v0")
    a(f"v_lshl_add_u32 v{t+1}, v{t+2}, 3, v{t+1}")
    a(f"v_lshrrev_b32 v{t+2}, 5, v0")
    a(f"v_lshl_add_u32 v{t+1}, v{t+2}, {hhshift}, v{t+1}")
    a(f"v_add_u32 v{dst}, {base}, v{t+1}")

def o_offsets():
    a(f"s_and_b32 s{sT0}, s{sSTEP}, 1")
    a(f"s_lshl_b32 s{sT1}, s{sRB}, 1")
    a(f"s_add_u32 s{sT0}, s{sT0}, s{sT1}")
    a(f"s_lshl_b32 s{sT0}, s{sT0}, 2")
    a(f"s_lshr_b32 s{sT1}, s{sSTEP}, 1")
    a(f"s_add_u32 s{sT0}, s{sT0}, s{sT1}")
    a(f"s_lshl_b32 s{sT0}, s{sT0}, 3")
    a(f"s_add_u32 s{sT0}, s{sT0}, s{sG}")
    a(f"s_lshl_b32 s{sT1}, s{sT0}, 10")
    a(f"s_add_u32 s{sT1}, s{sT1}, {WS_O}")
    a(f"s_lshl_b32 s{sT0}, s{sT0}, 7")
    a(f"s_add_u32 s{sT0}, s{sT0}, {WS_FO}")

def sum_check(b):
    a(f"v_pk_add_f32 {vr(b,2)}, {vr(b,2)}, {vr(b+2,2)}")
    a(f"v_add_f32 v{b}, v{b}, v{b+1}")
    a(f"v_cmp_nle_f32 vcc, s{sLO}, v{b}")
    a(f"v_cmp_nge_f32 s[{sM}:{sM+1}], s{sHI}, v{b}")
    a(f"s_or_b64 vcc, vcc, s[{sM}:{sM+1}]")

def reduce_math(b, vl16, flag=True, tagged=False, b1=None, bs=None):
    b1 = b + 16 if b1 is None else b1
    bs = b + 32 if bs is None else bs
    a(f"v_rcp_f32 v{bs+2}, v{bs}")
    for j in range(4):
        a(f"v_pk_add_f32 {vr(b+2*j,2)}, {vr(b+2*j,2)}, {vr(b+8+2*j,2)}")
    for j in range(4):
        a(f"v_pk_add_f32 {vr(b1+2*j,2)}, {vr(b1+2*j,2)}, {vr(b1+8+2*j,2)}")
    for j in range(4):
        a(f"v_pk_add_f32 {vr(b+2*j,2)}, {vr(b+2*j,2)}, {vr(b1+2*j,2)}")
    for j in range(4):
        a(f"v_pk_mul_f32 {vr(b+2*j,2)}, {vr(b+2*j,2)}, {vr(bs+2,2)} op_sel_hi:[1,0]")
    for j in range(4):
        a(f"v_cvt_pk_bf16_f32 v{b+8+j}, v{b+2*j}, v{b+2*j+1}")
    if not flag:
        st2([f"buffer_store_dwordx4 {vr(b+8,4)}, v{vl16}, {sr(R_WS,4)}, s{sT1} offen@"])
        return
    a(f"buffer_store_dwordx4 {vr(b+8,4)}, v{vl16}, {sr(R_WS,4)}, s{sT1} offen sc1")
    a("s_waitcnt vmcnt(0)")
    setflag(b, b + 1, sT0)

STG3 = 1
LOG2E = 1.4426950408889634
L_LO, L_HI = 2.0 ** -60, 2.0 ** 60


class Cnt:
    def __init__(s): s.q = []
    def issue(s, tag, n=1): s.q += [tag] * n
    def need(s, tag):
        if tag not in s.q: return None
        i = len(s.q) - 1 - s.q[::-1].index(tag)
        n = len(s.q) - 1 - i
        s.q = s.q[i + 1:]
        return n
def waits(vm=None, lg=None):
    p = []
    if vm is not None: p.append(f"vmcnt({min(vm,63)})")
    if lg is not None: p.append(f"lgkmcnt({min(lg,15)})")
    if p: a("s_waitcnt " + " ".join(p))

a("s_cmp_ge_u32 s2, 256")
a("s_cbranch_scc1 L_exit")
a(f"s_load_dwordx16 s[16:31], s[0:1], 0")
a(f"s_load_dwordx16 s[32:47], s[0:1], 64")
a(f"s_load_dwordx2 s[48:49], s[0:1], 128")
EPF = [int(x) for x in OPT.get("epf", "").split(",") if x]
if EPF:
    cm("request the first code lines at once instead of one miss after the other")
    a(f"s_getpc_b64 s[{sM}:{sM+1}]")
    a(f"v_subrev_u32 v2, {EPF[0]}, v0")
    a(f"v_cmp_gt_u32 vcc, {EPF[1]}, v2")
    a("v_lshlrev_b32 v2, 7, v2")
    a(f"s_and_saveexec_b64 s[{sRET}:{sRET+1}], vcc")
    a("s_cbranch_execz L_noepf")
    a(f"global_load_dword v31, v2, s[{sM}:{sM+1}] offset:128")
    lab("L_noepf")
    a("s_mov_b64 exec, -1")
if STAMPS:
    for i in range(16): a(f"s_mov_b32 s{80+i}, 0")
    a("s_memrealtime s[80:81]")
    a("s_memtime s[92:93]")
a("v_lshrrev_b32 v1, 6, v0")
a("v_and_b32 v0, 63, v0")
a(f"v_readfirstlane_b32 s{sW}, v1")
a("v_lshlrev_b32 v6, 4, v0")
a("v_lshrrev_b32 v12, 4, v0")
a("v_and_b32 v13, 15, v0")
a(f"s_and_b32 s{sT0}, s2, 7")
a(f"s_lshr_b32 s{sT1}, s2, 3")
a(f"s_and_b32 s{sT2}, s{sT1}, 3")
a(f"s_lshl_b32 s{sRB}, s{sT0}, 2")
a(f"s_add_u32 s{sRB}, s{sRB}, s{sT2}")
a(f"s_lshr_b32 s{sG}, s{sT1}, 2")
a(f"s_and_b32 s{sGRP}, s{sG}, 3")
a(f"s_and_b32 s{sWV}, s{sW}, 3")
a(f"s_add_u32 s{sROT}, s{sG}, s{sRB}" if OPT.get("rot", "0") == "1" else f"s_mov_b32 s{sROT}, 0")
a(f"s_mov_b32 s{R_A+2}, {2048*1024}")
a(f"s_mov_b32 s{R_A+3}, 0x20000")
a(f"s_mov_b32 s{R_B+3}, 0x20000")
a(f"s_cmp_ge_u32 s{sW}, 4")
a("s_cbranch_scc1 L_attn")

vL, vL16_, vL8, vCO = 20, 22, 24, 26
vCNT, vONE, vWT, vRB, vL4, vWO = 2, 3, 4, 5, 6, 7
a("s_setprio 3")
for i in range(4):
    a(f"v_add_u32 v14, {4*i}, v12")
    a(f"v_xor_b32 v15, v13, v14")
    a(f"v_lshlrev_b32 v15, 4, v15")
    a(f"v_lshl_add_u32 v{16+i}, v14, 10, v15")
if OPT.get("map", "0" if "h" in LOC else "1") == "0":
    a(f"s_and_b32 s{sT2}, s{sT1}, 1")
    a(f"s_lshl_b32 s{sC}, s{sT0}, 1")
    a(f"s_add_u32 s{sC}, s{sC}, s{sT2}")
    a(f"s_lshr_b32 s{sPB}, s{sT1}, 1")
else:
    a(f"s_and_b32 s{sC}, s{sT0}, 6")
    a(f"s_lshl_b32 s{sC}, s{sC}, 1")
    a(f"s_add_u32 s{sC}, s{sC}, s{sT2}")
    a(f"s_and_b32 s{sPB}, s{sT0}, 1")
    a(f"s_lshl_b32 s{sPB}, s{sPB}, 3")
    a(f"s_add_u32 s{sPB}, s{sPB}, s{sG}")
a(f"s_lshr_b32 s{sKIND}, s{sG}, 2")
a(f"s_lshl_b32 s{sT3}, s{sPB}, 5")
a("v_and_b32 v38, 31, v0")
a(f"v_add_lshl_u32 v37, v38, s{sT3}, 1")
if YM:
    a(f"s_and_b32 s{sGY}, s{sRB}, 7")
else:
    a(f"s_mov_b32 s{sGY}, s{sG}")
a(f"s_and_b32 s{sT3}, s{sWV}, 1")
a(f"s_lshl1_add_u32 s{sT3}, s{sGY}, s{sT3}")
a(f"s_lshl_b32 s{sT3}, s{sT3}, 5")
a(f"v_add_lshl_u32 v38, v38, s{sT3}, 1")
a(f"s_add_u32 s{sT3}, s{sROT}, s{sWV}")
a(f"s_and_b32 s{sT3}, s{sT3}, 3")
a(f"s_lshl_b32 s{sT0}, s{sRB}, 16")
a(f"s_lshl_b32 s{sT1}, s{sGRP}, 14")
a(f"s_add_u32 s{sT0}, s{sT0}, s{sT1}")
a(f"s_lshl_b32 s{sT1}, s{sT3}, 8")
a(f"s_add_u32 s{sT0}, s{sT0}, s{sT1}")
a(f"s_lshl_b32 s{sT2}, s{sGRP}, 12")
a(f"s_lshl_b32 s{sT1}, s{sWV}, 14")
a(f"s_add_u32 s{sT2}, s{sT2}, s{sT1}")
a(f"s_lshl_b32 s{sT3}, s{sT3}, 12")
a(f"s_lshl_b32 s{sT4}, s{sWV}, 12")
a(f"s_add_u32 s{sT4}, s{sT4}, {L_WKV}")
a(f"s_mov_b32 s{R_B+2}, 16384")
a(f"s_mov_b32 m0, s{sT2}")
a(f"s_cmp_eq_u32 s{sKIND}, 0")
a("s_waitcnt lgkmcnt(0)")
a(f"s_cselect_b32 s{R_B}, s{P_WK}, s{P_WV}")
a(f"s_cselect_b32 s{R_B+1}, s{P_WK+1}, s{P_WV+1}")
a(f"s_mov_b32 s{R_A}, s{P_AX}")
a(f"s_and_b32 s{R_A+1}, s{P_AX+1}, 0xffff")
a(f"s_and_b32 s{R_B+1}, s{R_B+1}, 0xffff")
for i in range(4):
    dma(16 + i, R_A, f"s{sT0}")
    a(f"s_add_u32 m0, s{sT2}, {1024*(i+1)}" if i < 3 else f"s_mov_b32 m0, s{sT4}")
    a("s_nop 0")
for i in range(4):
    dma(6, R_B, f"s{sT3}", imm=1024 * i)
p0, p1, p2, vDSK = 60, 61, 62, 63
a(f"global_load_ushort v{p0}, v37, s[{P_LRE}:{P_LRE+1}]")
a(f"global_load_ushort v{p1}, v37, s[{P_LIM}:{P_LIM+1}]")
a(f"global_load_ushort v{p2}, v37, s[{P_LDT}:{P_LDT+1}]")
a(f"global_load_ushort v{vDSK}, v38, s[{P_DSK}:{P_DSK+1}]")
EP0 = int(OPT.get("ep0", 0))
if EP0:
    a(f"s_cmp_eq_u32 s{sWV}, 0")
    a("s_cbranch_scc0 L_h_noep")
a(f"s_load_dword s{sTAG}, s[{P_WS}:{P_WS+1}], 0")
lab("L_h_noep")
a("s_barrier")

sec("AL")
lab("L_attn"); ROLE[0] = "A"
cm("pull the kernel's code towards this XCD's L2")
a(f"s_getpc_b64 s[{sM}:{sM+1}]")
lab("L_pc")
a(f"s_sub_u32 s{sM}, s{sM}, L_pc - {NAME}_kernel")
a(f"s_subb_u32 s{sM+1}, s{sM+1}, 0")
SPF = int(OPT.get("spf", 0))
if SPF:
    a(f"s_lshl_b32 s{sT3}, s{sWV}, 7")
    a(f"s_add_u32 s{sRET}, s{sM}, s{sT3}")
    a(f"s_addc_u32 s{sRET+1}, s{sM+1}, 0")
    for i in range(SPF):
        a(f"s_load_dword s{sCNT}, s[{sRET}:{sRET+1}], {512*i + 256}")
CSH = int(OPT.get("csh", 4))
NLN = -(-176 // (4 * CSH))
a(f"s_and_b32 s{sT2}, s{sT1}, {CSH-1}")
a(f"s_lshl2_add_u32 s{sT2}, s{sT2}, s{sWV}")
a(f"s_mul_i32 s{sT2}, s{sT2}, {128*NLN}")
CSK = int(OPT.get("csk", 0))
if CSK: a(f"s_add_u32 s{sT2}, s{sT2}, {CSK}")
a("v_lshlrev_b32 v32, 7, v0")
a(f"v_min_u32 v32, {128*(NLN-1)}, v32")
a(f"v_add_u32 v32, s{sT2}, v32")
a(f"v_min_u32 v32, L_slow - {NAME}_kernel, v32")
CPF = int(OPT.get("cpf", 0))
if CPF == 0: a(f"global_load_dword v33, v32, s[{sM}:{sM+1}]")
vIDX, vZ, vAD, vAS, vAQ, vPG, vQ = 1, 2, 4, 5, 6, 7, 8
vCA, vONEA = 12, 13
S0, S1, vO, KV = 16, 32, 48, 64
cm("zero sync counters + progress words")
a("v_mov_b32 v2, 0")
a("v_mov_b32 v3, 0")
a("v_mov_b32 v4, 0")
a("v_mov_b32 v5, 0")
a(f"v_add_u32 v7, {L_PROG}, v6")
a("ds_write_b128 v7, v[2:5]")
a("ds_write_b128 v7, v[2:5] offset:1024")
a(f"v_lshl_add_u32 v14, s{sWV}, 2, v12")
a("v_xor_b32 v15, v13, v14")
a("v_lshlrev_b32 v15, 4, v15")
a("v_lshl_add_u32 v16, v14, 10, v15")
def wo_voff(dst, t):
    a(f"v_lshrrev_b32 v{t}, 3, v0")
    a(f"v_and_b32 v{t+1}, 7, v0")
    a(f"v_lshrrev_b32 v{t+2}, 2, v0")
    a(f"v_and_b32 v{t+2}, 4, v{t+2}")
    a(f"v_xor_b32 v{t+1}, v{t+1}, v{t+2}")
    a(f"v_lshlrev_b32 v{t+1}, 4, v{t+1}")
    a(f"v_lshl_add_u32 v{dst}, v{t}, 10, v{t+1}")
wo_voff(17, 20)
def wslice_setup():
    a(f"s_lshl_b32 s{sT0}, s{sG}, 7")
    a(f"s_lshl_b32 s{sT1}, s{sWV}, 15")
    a(f"s_add_u32 s{sT0}, s{sT0}, s{sT1}")
    a(f"s_lshl_b32 s{sT1}, s{sWV}, 12")
wslice_setup()
a(f"s_lshl_b32 s{sT4}, s{sRB}, 16")
a(f"s_lshl_b32 s{sT5}, s{sWV}, 10")
for m in range(1, 4):
    a(f"s_add_u32 s{sT2}, s{sGRP}, {m}")
    a(f"s_and_b32 s{sT2}, s{sT2}, 3")
    a(f"s_lshl_b32 s{sT3}, s{sT2}, 14")
    a(f"s_add_u32 s{95+m}, s{sT3}, s{sT4}")
    a(f"s_lshl_b32 s{sT3}, s{sT2}, 12")
    a(f"s_add_u32 s{98+m}, s{sT3}, s{sT5}")
a(f"s_mov_b32 s{R_B+2}, {512*1024}")
a(f"v_mov_b32 v{vCA}, {L_CNT}")
a(f"v_mov_b32 v{vONEA}, 1")
a("s_waitcnt lgkmcnt(0)")
a(f"s_mov_b32 s{R_A}, s{P_AX}")
a(f"s_and_b32 s{R_A+1}, s{P_AX+1}, 0xffff")
a(f"s_mov_b32 s{R_B}, s{P_WQ}")
a(f"s_and_b32 s{R_B+1}, s{P_WQ+1}, 0xffff")
if STAMPS:
    a("s_mov_b32 s81, 0")
    a("s_mov_b32 s93, 0")
a("s_barrier")
def qops(sl):
    a(f"s_add_u32 s{sT3}, s{sROT}, {sl}")
    a(f"s_and_b32 s{sT3}, s{sT3}, 3")
    a(f"s_lshl_b32 s{sT4}, s{sT3}, 8")
    a(f"s_lshl_b32 s{sT3}, s{sT3}, 17")
    a(f"s_add_u32 s{sT3}, s{sT3}, s{sT0}")
    for m in range(1, 4):
        a(f"s_add_u32 m0, s{98+m}, {L_XA + 16384*sl}")
        a(f"s_add_u32 s{sT2}, s{95+m}, s{sT4}")
        dma(16, R_A, f"s{sT2}")
    for i in range(4):
        a(f"s_add_u32 m0, s{sT1}, {L_WQ + 16384*sl + 1024*i}")
        a(f"s_add_u32 s{sT2}, s{sT3}, {8192*i}")
        dma(17, R_B, f"s{sT2}")
if CPF == 1: a(f"global_load_dword v33, v32, s[{sM}:{sM+1}]")
QW = int(OPT.get("qw", 0))
for sl in range(QW): qops(sl)
PFW, PFU = int(OPT.get("pfw", 1)), OPT.get("pfu", "")
if PFW:
    cm("warm L2 with this workgroup's quarter of its Wq slice")
    a(f"s_and_b32 s{sT2}, s{sRB}, 3")
    a(f"s_lshl2_add_u32 s{sT2}, s{sT2}, s{sWV}")
    a(f"s_lshl_b32 s{sT2}, s{sT2}, 15")
    a(f"s_lshl_b32 s{sT3}, s{sG}, 7")
    a(f"s_add_u32 s{sT2}, s{sT2}, s{sT3}")
    a("v_and_b32 v20, 31, v0")
    a("v_lshlrev_b32 v20, 10, v20")
    a("s_mov_b32 exec_hi, 0")
    a(f"buffer_load_dword v34, v20, {sr(R_B,4)}, s{sT2} offen")
    a("s_mov_b64 exec, -1")
def pfu(which):
    cm("pull this wave's 1/1024 share of later inputs out of HBM")
    a(f"s_lshl2_add_u32 s{sT2}, s2, s{sWV}")
    a("v_lshlrev_b32 v26, 7, v0")
    for i, ch in enumerate(which):
        ptr, lines = {"x": (P_BX, 16), "r": (P_BRE, 4), "i": (P_BIM, 4), "c": (P_CRE, 4), "d": (P_CIM, 4), "o": (P_WO, 4)}[ch]
        a(f"s_mul_i32 s{sT3}, s{sT2}, {128*lines}")
        a(f"v_add_u32 v21, s{sT3}, v26")
        a(f"s_mov_b64 exec, {(1 << lines) - 1}")
        a(f"global_load_dword v{35+i}, v21, s[{ptr}:{ptr+1}]")
        a("s_mov_b64 exec, -1")
if PFU: pfu(PFU)
srd(R_WS, P_WS, WS_SIZE)
a(f"s_mov_b32 s{sSYNC}, 0")
a(f"s_mov_b32 s{sLO}, {f32(L_LO)}")
a(f"s_mov_b32 s{sHI}, {f32(L_HI)}")
cm("prefill V regs: rows 16 and 20 = ones, other rows >=16 zero")
a("v_and_b32 v24, 27, v0")
a("v_cmp_eq_u32 vcc, 16, v24")
a("v_mov_b32 v25, 0x3f803f80")
a("s_nop 0")
a("v_cndmask_b32 v24, 0, v25, vcc")
a("v_mov_b32 v25, v24")
for t in range(16):
    for j in range(4):
        a(f"v_mov_b64 {vr(KV+12*t+4+2*j,2)}, v[24:25]")
a("v_mov_b32 v14, v6")
a("v_lshrrev_b32 v24, 5, v0")
a("v_and_b32 v25, 15, v0")
a("v_lshl_add_u32 v15, v24, 4, v25")
a("v_lshlrev_b32 v15, 4, v15")
a(f"v_mov_b32 v{vIDX}, 0xdddddddd")
a(f"s_lshl_b32 s{sT2}, s{sWV}, 11")
a(f"v_add_u32 v{vAD}, s{sT2}, v14")
a(f"s_lshl_b32 s{sT2}, s{sWV}, 2")
a(f"s_add_u32 s{sT3}, s{sT2}, {L_PART + 8192}")
a(f"v_add_u32 v{vAS}, s{sT3}, v14")
a(f"s_add_u32 s{sT3}, s{sT2}, {L_PROG}")
a(f"v_add_u32 v{vPG}, s{sT3}, v14")
a(f"v_add_u32 v{vAQ}, {L_QF}, v14")
a(f"v_lshlrev_b32 v23, {FSH}, v0")
a("s_barrier")
a(f"ds_read_b32 v20, v{vCA} offset:{C_TAG}")
B0 = int(OPT.get("b0", 0))
for sl in range(QW, 4):
    qops(sl)
    if sl + 1 == B0:
        a(f"s_waitcnt vmcnt({7*(B0-1)})")
        a("s_barrier")
PFL = OPT.get("pfl", "")
if PFL: pfu(PFL)
NL = len(PFL)
a(f"s_waitcnt vmcnt({14+NL}) lgkmcnt(0)")
a("s_barrier")
a(f"v_readfirstlane_b32 s{sTAG}, v20")
cm("scalars for the tail")
sKV = sT0
a(f"s_sub_u32 s{sSTEP}, 7, s{sWV}")
o_offsets()
a(f"s_mov_b32 s{sF1}, s{sT0}")
a(f"s_mov_b32 s{sF2}, s{sT1}")
a(f"s_mul_i32 s{sT2}, s{sSTEP}, {PSTRIDE}")
a(f"s_lshr_b32 s{sT4}, s{sWV}, 1")
a(f"s_lshl1_add_u32 s{sYG}, s{sRB}, s{sT4}")
a(f"s_lshl_b32 s{sCG}, s{sYG}, 12")
a(f"s_add_u32 s{sCG}, s{sCG}, {WS_FO + 16*128}")
srd(R_B, P_OUT, 2048 * 4096)
a(f"s_and_b32 s{sT0}, s{sWV}, 1")
a(f"s_lshl1_add_u32 s{sT0}, s{sG}, s{sT0}")
a(f"s_lshl_b32 s{sT0}, s{sT0}, 7")
a(f"s_lshl_b32 s{sT3}, s{sYG}, 17")
a(f"s_add_u32 s{sT3}, s{sT3}, s{sT0}")
a(f"s_lshl_b32 s{sT6}, s{sYG}, 15")
a(f"s_add_u32 s{sT6}, s{sT6}, {WS_O + 16384}")
a(f"s_mul_i32 s{sT4}, s{sWV}, {PSTRIDE}")
a(f"s_lshl_b32 s{sT5}, s{sWV}, 9")
a(f"s_add_u32 s{sT5}, s{sT5}, {L_CS}")
a(f"s_lshl_b32 s{sT0}, s{sWV}, {FSH+6}")
a(f"s_add_u32 s{sT0}, s{sT0}, {WS_FKV}")
stamp(1)
SU = OPT.get("su", "")
if "a" in SU: spf([(P_BX, 16, 0, 14)])
if "b" in SU: spf([(P_BRE, 4, 0, 4), (P_BIM, 4, 0, 4), (P_BX, 16, 0, 6)])
a(f"s_waitcnt vmcnt({7+NL})")
a("s_barrier")
PE = int(OPT.get("pe", 1))
if PE == 2:
    a(f"buffer_load_dword v22, v23, {sr(R_WS,4)}, s{sT0} offen sc1")
    a(f"s_waitcnt vmcnt(1)")
else:
    a(f"s_waitcnt vmcnt({NL})")
if PE == 1: a(f"buffer_load_dword v22, v23, {sr(R_WS,4)}, s{sT0} offen sc1")
a("s_barrier")
a("s_branch L_a2")
sec("A")
lab("L_a2")
stamp(2)
for _ in range(int(OPT.get("pd", 0))): a("s_sleep 2")
a(f"s_mov_b32 s{sCNT}, {POLL_LIMIT}")
if PE: a("s_branch L_a_kvq")
lab("L_a_kvp")
a(f"buffer_load_dword v22, v23, {sr(R_WS,4)}, s{sT0} offen sc1")
lab("L_a_kvq")
a("s_waitcnt vmcnt(0)")
a(f"v_xor_b32 v22, s{sTAG}, v22")
a("v_cmp_lt_u32 vcc, 15, v22")
a("s_cbranch_vccz L_a_kvok")
a(f"s_sub_u32 s{sCNT}, s{sCNT}, 1")
a("s_cbranch_scc0 L_a_kvp")
lab("L_a_kvok")
stamp(4)
a(f"s_lshl_b32 s{sT0}, s{sWV}, 15")
a(f"s_add_u32 s{sT0}, s{sT0}, {WS_KV}")
a(f"s_mov_b32 s{sM}, 0xffff")
a(f"s_mov_b32 s{sM+1}, 0xffff")
def kvload(tp):
    for t in (2*tp, 2*tp+1):
        a(f"buffer_load_dwordx4 {vr(KV+12*t,4)}, v14, {sr(R_WS,4)}, s{sT0} offen offset:{2048*(t&1)} sc1")
    a(f"s_mov_b64 exec, s[{sM}:{sM+1}]")
    for t in (2*tp, 2*tp+1):
        a(f"buffer_load_dwordx4 {vr(KV+12*t+4,4)}, v15, {sr(R_WS,4)}, s{sT0} offen offset:{2048*(t&1)+1024} sc1")
        a(f"buffer_load_dwordx4 {vr(KV+12*t+8,4)}, v15, {sr(R_WS,4)}, s{sT0} offen offset:{2048*(t&1)+1536} sc1")
    a("s_mov_b64 exec, -1")
    if tp < 7: a(f"s_add_u32 s{sT0}, s{sT0}, 4096")
NINIT = int(OPT.get("ninit", 3))
A4POS = int(OPT.get("a4", 8))
ABPOS = int(OPT.get("ab", 0))
NB = int(OPT.get("nb", NINIT))
for tp in range(NB):
    kvload(tp)
cm("do all 32 workgroups of this id class share this XCD?")
a(f"s_bfe_u32 s{sT1}, s2, 0x20001")
a(f"s_cmp_eq_u32 s{sT1}, s{sWV}")
a("s_cbranch_scc0 L_a_nomode")
a(f"s_getreg_b32 s{sT1}, hwreg(HW_REG_XCC_ID, 0, 4)")
a(f"v_cmp_ne_u32 vcc, s{sT1}, v22")
a("s_bitcmp1_b32 s2, 0")
a(f"s_cselect_b32 s{sT1}, vcc_hi, vcc_lo")
a(f"s_cmp_eq_u32 s{sT1}, 0")
a(f"s_cselect_b32 s{sT1}, {2 if OPT.get('nolocal') else 1}, 2")
a(f"v_mov_b32 v21, s{sT1}")
a(f"ds_write_b32 v{vCA}, v21 offset:{C_MODE}")
lab("L_a_nomode")
assert NINIT < 8
stamp(5)
a("s_barrier")
a("s_setprio 1")
a(f"ds_read_b128 {vr(vQ,4)}, v{vAQ}")
a(f"v_add_u32 v{vAQ}, 1024, v{vAQ}")
for tp in range(NB, NINIT): kvload(tp)
a(f"s_waitcnt vmcnt({6*(NINIT-1)+4}) lgkmcnt(0)")
stamp(6)
cstamp(10)

K_ = lambda t: KV + 12 * t
V1 = lambda t: KV + 12 * t + 4
V2 = lambda t: KV + 12 * t + 8
def ex(X, i): a(f"v_exp_f32 v{X+i}, v{X+i}")
def exs(X, lo, hi):
    for i in range(lo, hi): ex(X, i)
def smf(v, p): a(f"v_smfmac_f32_32x32x32_bf16 {vr(vO,16)}, {vr(v,4)}, {vr(p,8)}, v{vIDX}")
def qk(d, t): mfma32(d, K_(t), vQ, "0")
def zeroO(): a(f"v_mfma_f32_32x32x8_bf16 {vr(vO,16)}, {vr(vZ,2)}, {vr(vZ,2)}, 0")
def dump():
    a(f"ds_write_b128 v{vAD}, {vr(vO,4)}")
    a(f"ds_write_b128 v{vAD}, {vr(vO+4,4)} offset:1024")
    a(f"ds_write_b32 v{vAS}, v{vO+8}")
    a(f"ds_write_b32 v{vPG}, v{vAS}")

KVS = int(OPT.get('kvs', 2))
QPF = int(OPT.get('qpf', 0))
PQ, PS1 = [int(x) for x in OPT.get('pos', '7,12').split(',')]
def tiles_1_15(first):
    issued = [NINIT + 1 if first else 8]
    def preqk(tn):
        if first and tn % 2 == 0 and tn < 16:
            a(f"s_waitcnt vmcnt({6*(min(issued[0],8) - 1 - tn//2)})")
    def more(t):
        if first and t % KVS == 0 and issued[0] < 8:
            kvload(issued[0]); issued[0] += 1
            if issued[0] in (A4POS, ABPOS): signal(vCA, vONEA, C_A4)
    X, Y = S1, S0
    smf(V1(0), Y); exs(X, 0, 3); smf(V2(0), Y + 8); exs(X, 3, 6); preqk(2); qk(Y, 2); exs(X, 6, 10); smf(V1(1), X); more(1); exs(X, 10, 16)
    a(f"s_add_u32 s{sSTEP}, s{sSTEP}, 1")
    for t in range(2, 16):
        X, Y = (S0, S1) if t % 2 == 0 else (S1, S0)
        if t == 15 and QPF:
            a("s_waitcnt lgkmcnt(0)")
            a(f"v_mov_b64 {vr(vQ,2)}, v[12:13]")
            a(f"v_mov_b64 {vr(vQ+2,2)}, v[14:15]")
        exs(X, 0, 2); smf(V2(t - 1), Y + 8); exs(X, 2, PQ)
        if t == 15:
            if not QPF: a("s_waitcnt lgkmcnt(0)")
            if DBG == "steps":
                a(f"s_mov_b32 m0, s{sSTEP}")
                a("s_nop 0")
                a(f"s_movreld_b32 s80, s{sST}")
            qk(Y, 0)
        else:
            preqk(t + 1)
            qk(Y, t + 1)
        if t == 14 and DBG == "steps": a(f"s_memtime s[{sST}:{sST+1}]")
        if (t == 14 and not QPF) or (QPF and first and t == 11):
            a(f"ds_read_b128 {vr(12 if QPF else vQ,4)}, v{vAQ}")
            a(f"v_add_u32 v{vAQ}, 1024, v{vAQ}")
        exs(X, PQ, PS1); smf(V1(t), X); more(t); exs(X, PS1, 16)

qk(S0, 0)
zeroO()
qk(S1, 1)
a(f"s_mov_b32 s{sSTEP}, 0")
if NINIT < 8:
    kvload(NINIT)
    if NINIT + 1 in (A4POS, ABPOS): signal(vCA, vONEA, C_A4)
else:
    a("s_nop 8")
exs(S0, 0, 16)
a("s_nop 0")
a(f"s_waitcnt vmcnt({6*NINIT})")
tiles_1_15(True)
a("s_nop 0")
a("s_branch L_a_bound")
lines.append(".p2align 6")
lab("L_a_loop")
tiles_1_15(False)
a(f"s_cmp_eq_u32 s{sSTEP}, 8")
a("s_cbranch_scc1 L_a_fin")
lab("L_a_bound")
X, Y = S0, S1
smf(V2(15), Y + 8); exs(X, 0, 3); qk(Y, 1); exs(X, 3, 11)
dump()
if QPF:
    a(f"ds_read_b128 v[12:15], v{vAQ}")
ex(X, 11); zeroO(); exs(X, 12, 16)
if QPF: a(f"v_add_u32 v{vAQ}, 1024, v{vAQ}")
a(f"v_add_u32 v{vAD}, {PSTRIDE}, v{vAD}")
a(f"v_add_u32 v{vAS}, {PSTRIDE}, v{vAS}")
a("s_branch L_a_loop")

lab("L_a_fin")
smf(V2(15), S1 + 8)
a("v_lshlrev_b32 v14, 4, v0")
a(f"v_mov_b32 v{vCA}, {L_CNT}")
a(f"v_add_u32 v9, s{sT2}, v14")
a("v_and_b32 v10, 3, v0")
a("v_lshlrev_b32 v10, 2, v10")
a(f"v_add_u32 v10, {L_PROG}, v10")
a(f"s_add_u32 s{sT2}, s{sT2}, {L_PART + 8192}")
a(f"v_add_u32 v6, s{sT4}, v14")
a("v_lshlrev_b32 v16, 2, v0")
a(f"v_mov_b32 v17, s{sTAG}")
a("s_setprio 3")
dump()
a("v_lshlrev_b32 v7, 3, v0")
a(f"v_add_u32 v7, s{sT5}, v7")
a(f"s_mov_b32 s{sKIND}, 0")
stamp(7)
cstamp(11)
lab("L_a_rw")
a("ds_read_b32 v11, v10")
a(f"ds_read_b32 v8, v{vCA} offset:{C_MODE}")
a("ds_read_b128 v[52:55], v9 offset:8192")
for w in range(8):
    a(f"ds_read_b128 {vr(20+4*w,4)}, v9 offset:{1024*w}")
a("ds_read_b128 v[56:59], v6 offset:8192")
WSH = int(OPT.get("wsh", 1))
if WSH:
    a(f"ds_read_b32 v60, v{vCA} offset:{C_GH}")
    a("ds_read_b64 v[4:5], v7")
a(f"s_waitcnt lgkmcnt({11 if WSH else 9})")
a(f"v_cmp_gt_u32 vcc, s{sT2}, v11")
a("s_cbranch_vccnz L_a_rw")
a(f"v_readfirstlane_b32 s{sMODE}, v8")
a(f"s_mov_b32 s{sT1}, s{sF2}")
sum_check(52)
a(f"s_waitcnt lgkmcnt({3 if WSH else 1})")
a("s_cbranch_scc1 L_a_bad1")
reduce_math(20, 14, flag=False, bs=52)
a("v_and_b32 v15, 15, v0")
a("v_lshlrev_b32 v15, 7, v15")
a(f"s_lshl_b32 s{sT0}, s{sWV}, 2")
a(f"v_add_u32 v10, s{sT0}, v{vCA}")
AO, AW, AC = 88, 152, 48
def awread(k):
    o = PSTRIDE * (k // 4) + 2048 * (k % 4)
    a(f"ds_read_b64_tr_b16 {vr(AW+4*k,2)}, v4 offset:{o}")
    a(f"ds_read_b64_tr_b16 {vr(AW+4*k+2,2)}, v4 offset:{o+1024}")
if WSH:
    a("s_waitcnt lgkmcnt(0)")
    a("v_cmp_gt_u32 vcc, NSYNC_B2, v60")
    a("s_cbranch_vccnz L_a_nosh")
    a(f"s_mov_b32 s{sKIND}, 1")
    for k in range(7): awread(k)
    lab("L_a_nosh")
a("s_waitcnt vmcnt(0)")
a("s_mov_b32 exec_hi, 0")
st2([f"buffer_store_dword v17, v16, {sr(R_WS,4)}, s{sF1} offen@"])
a("s_mov_b64 exec, -1")
lab("L_a_ok1")
stamp(8)
if not WSH: a("s_waitcnt lgkmcnt(0)")
sum_check(56)
a("s_cbranch_scc1 L_a_bad2")
lab("L_a_ok2")
cm("output projection, last 16 heads")
a(f"buffer_load_dword v8, v15, {sr(R_WS,4)}, s{sCG} offen sc1")
a(f"s_cmp_eq_u32 s{sKIND}, 1")
a("s_cbranch_scc1 L_a_wd")
lab("L_a_ww")
a(f"ds_read_b32 v11, v{vCA} offset:{C_GH}")
a("ds_read_b64 v[4:5], v7")
a("s_waitcnt lgkmcnt(0)")
a("v_cmp_gt_u32 vcc, NSYNC_B2, v11")
a("s_cbranch_vccnz L_a_ww")
for k in range(7): awread(k)
lab("L_a_wd")
a("s_waitcnt vmcnt(0)")
a(f"v_cmp_ne_u32 vcc, s{sTAG}, v8")
a("s_cbranch_vccz L_a_fl")
poll(15, f"s{sCG}", 8)
lab("L_a_fl")
stamp(9)
for g in range(16):
    if g % 4 == 0 and g: a(f"s_add_u32 s{sT6}, s{sT6}, 4096")
    a(f"buffer_load_dwordx4 {vr(AO+4*g,4)}, v14, {sr(R_WS,4)}, s{sT6} offen offset:{1024*(g%4)} sc1")
    if 7 + g < 16: awread(7 + g)
a(f"ds_read_b32 v11, v10 offset:{C_HA}")
for i in range(4):
    a(f"ds_read_b128 {vr(16+4*i,4)}, v6 offset:{1024*i}")
cm("epoch update by WG0 (every workgroup has read the old value long ago)")
a(f"s_lshl2_add_u32 s{sT0}, s2, s{sWV}")
a(f"s_cmp_eq_u32 s{sT0}, 0")
a("s_cbranch_scc0 L_a_noep")
setflag(8, 9, sT0)
lab("L_a_noep")
a("s_waitcnt lgkmcnt(5)")
for g in range(16):
    a(f"s_waitcnt vmcnt({15-g})")
    mfma32(AC, AO + 4*g, AW + 4*g, "0" if g == 0 else None)
stamp(13)
a("s_waitcnt lgkmcnt(0)")
a("v_cmp_eq_u32 vcc, 0, v11")
a("s_cbranch_vccz L_a_hok")
lab("L_a_hw")
a(f"ds_read_b32 v11, v10 offset:{C_HA}")
for i in range(4):
    a(f"ds_read_b128 {vr(16+4*i,4)}, v6 offset:{1024*i}")
a("s_waitcnt lgkmcnt(0)")
a("v_cmp_eq_u32 vcc, 0, v11")
a("s_cbranch_vccnz L_a_hw")
lab("L_a_hok")
a("s_nop 8")
stamp(14)
for j in range(8):
    a(f"v_pk_add_f32 {vr(AC+2*j,2)}, {vr(AC+2*j,2)}, {vr(16+2*j,2)}")
    for r in (2*j, 2*j + 1):
        a(f"s_add_u32 s{sT1}, s{sT3}, {4096 * (8*(r//4) + r%4)}")
        a(f"buffer_store_dword v{AC+r}, v5, {sr(R_B,4)}, s{sT1} offen{OUTFL}")
a("s_branch L_end")

sec("P")
ROLE[0] = "H"
if STAMPS:
    a("s_mov_b32 s81, 0")
    a("s_mov_b32 s92, 0")
    a("s_mov_b32 s93, 0")
srd(R_WS, P_WS, WS_SIZE)
a("v_xor_b32 v14, v12, v13")
a("v_lshlrev_b32 v14, 4, v14")
a("v_lshl_add_u32 v14, v13, 8, v14")
a(f"v_add_u32 v8, s{sT2}, v14")
for ks in range(1, 4):
    a(f"v_xor_b32 v{8+ks}, {64*ks}, v8")
a("v_lshrrev_b32 v14, 2, v13")
a("v_lshl_add_u32 v14, v12, 3, v14")
a("v_lshlrev_b32 v14, 5, v14")
a("v_and_b32 v15, 3, v0")
a("v_lshl_add_u32 v14, v15, 3, v14")
a(f"v_add_u32 v14, s{sT4}, v14")
a(f"s_lshl_b32 s{sT0}, s{sWV}, 10")
a(f"s_add_u32 s{sT0}, s{sT0}, {L_KVP}")
a(f"v_add_u32 v15, s{sT0}, v6")
a(f"s_lshl_b32 s{sT0}, s{sRB}, 2")
a(f"s_add_u32 s{sT0}, s{sT0}, s{sGRP}")
a(f"s_lshr_b32 s{sT1}, s{sT0}, 1")
a(f"s_lshl_b32 s{sT1}, s{sT1}, 1")
a(f"s_add_u32 s{sT1}, s{sT1}, s{sKIND}")
a(f"s_lshl_b32 s{sT1}, s{sT1}, 10")
a(f"s_and_b32 s{sT2}, s{sT0}, 1")
a(f"s_add_u32 s{sT3}, s{sKIND}, 8")
a(f"s_lshl_b32 s{sT2}, s{sT2}, s{sT3}")
a(f"s_add_u32 s{sT1}, s{sT1}, s{sT2}")
a(f"s_add_u32 s{sT5}, s{sT1}, {WS_KV}")
a(f"s_lshl_b32 s{sT0}, s{sT0}, 1")
a(f"s_add_u32 s{sT0}, s{sT0}, s{sKIND}")
a(f"s_lshl_b32 s{sT0}, s{sT0}, {FSH}")
a(f"s_add_u32 s{sT6}, s{sT0}, {WS_FKV}")
a(f"s_cmp_eq_u32 s{sKIND}, 0")
a(f"s_cselect_b32 s{sT0}, 9, 3")
a(f"s_cselect_b32 s{sT1}, 3, 8")
a("v_and_b32 v34, 1, v12")
a("v_lshrrev_b32 v35, 1, v12")
a("v_lshlrev_b32 v16, 4, v13")
a(f"v_lshl_add_u32 v16, v34, s{sT0}, v16")
a(f"v_lshl_add_u32 v16, v35, s{sT1}, v16")
a(f"v_mov_b32 v{vCNT}, {L_CNT}")
a(f"v_mov_b32 v{vONE}, 1")
a("s_waitcnt lgkmcnt(0)")
a(f"s_mul_i32 s{sTAG}, s{sTAG}, 1664525")
a(f"s_add_u32 s{sTAG}, s{sTAG}, 1013904223")
if EP0:
    a(f"s_cmp_eq_u32 s{sWV}, 0")
    a("s_cbranch_scc0 L_h_notag")
a(f"v_mov_b32 v36, s{sTAG}")
a(f"ds_write_b32 v{vCNT}, v36 offset:{C_TAG}")
lab("L_h_notag")
a(f"s_cmp_eq_u32 s{sKIND}, 0")
a(f"s_waitcnt vmcnt(4)")
stamp(1)
b = 128
for ks in range(4):
    a(f"ds_read_b128 {vr(b+8*ks,4)}, v{8+ks}")
    a(f"ds_read_b64_tr_b16 {vr(b+8*ks+4,2)}, v14 offset:{1024*ks}")
    a(f"ds_read_b64_tr_b16 {vr(b+8*ks+6,2)}, v14 offset:{1024*ks+128}")
def kvproj(kind):
    for ks in range(4):
        a(f"s_waitcnt lgkmcnt({9 - 3*ks})")
        x, w = vr(b+8*ks, 4), vr(b+8*ks+4, 4)
        if kind == 0: x, w = w, x
        a(f"v_mfma_f32_16x16x32_bf16 v[40:43], {x}, {w}, {'0' if ks == 0 else 'v[40:43]'}")
a("s_cbranch_scc0 L_h_vproj")
kvproj(0)
a("s_branch L_h_kvdone")
lab("L_h_vproj")
kvproj(1)
lab("L_h_kvdone")
a(f"s_cmp_eq_u32 s{sWV}, 0")
a("s_cbranch_scc1 L_h_pub")
a("s_nop 5")
a("ds_write_b128 v15, v[40:43]")
a("s_waitcnt lgkmcnt(0)")
a("s_barrier")
a("s_branch L_h_common")
lab("L_h_pub")
a("s_barrier")
for i in range(1, 4):
    a(f"ds_read_b128 {vr(40+4*i,4)}, v15 offset:{1024*i}")
a("s_nop 1")
a("s_waitcnt lgkmcnt(0)")
a("v_pk_add_f32 v[40:41], v[40:41], v[44:45]")
a("v_pk_add_f32 v[42:43], v[42:43], v[46:47]")
a("v_pk_add_f32 v[48:49], v[48:49], v[52:53]")
a("v_pk_add_f32 v[50:51], v[50:51], v[54:55]")
a("v_pk_add_f32 v[40:41], v[40:41], v[48:49]")
a("v_pk_add_f32 v[42:43], v[42:43], v[50:51]")
a("v_cvt_pk_bf16_f32 v40, v40, v41")
a("v_cvt_pk_bf16_f32 v41, v42, v43")
a(f"buffer_store_dwordx2 v[40:41], v16, {sr(R_WS,4)}, s{sT5} offen sc1")
dstamp("p", 5)
a("s_branch L_h_common")
sec("HQ")
lab("L_h_common")
a(f"s_mov_b32 s{sSYNC}, 0")
a("v_and_b32 v17, 31, v0")
a("v_lshrrev_b32 v18, 5, v0")
p0, p1, p2, vDSK = 60, 61, 62, 63
cm("Q projection addresses")
QXA = list(range(48, 56))
a(f"s_lshr_b32 s{sT0}, s{sWV}, 1")
a(f"s_lshl_b32 s{sT0}, s{sT0}, 13")
a("v_xor_b32 v34, v13, v18")
a("v_lshlrev_b32 v34, 4, v34")
a("v_lshl_add_u32 v34, v17, 8, v34")
a(f"v_add_u32 v{QXA[0]}, s{sT0}, v34")
for ks in range(1, 8):
    a(f"v_xor_b32 v{QXA[ks]}, {32*ks}, v{QXA[0]}")
wtr_addr(vWT, 9, L_R1, 34)
a(f"v_lshl_add_u32 v56, v18, 9, v{vWT}")
a(f"v_add_u32 v56, {(L_WQ - L_R1) & 0xffffffff}, v56")
a(f"s_and_b32 s{sT1}, s{sWV}, 1")
a(f"s_lshl_b32 s{sT1}, s{sT1}, 12")
a(f"s_lshr_b32 s{sT2}, s{sWV}, 1")
a(f"s_lshl_b32 s{sT2}, s{sT2}, 10")
a(f"s_add_u32 s{sT1}, s{sT1}, s{sT2}")
a(f"s_add_u32 s{sT1}, s{sT1}, {L_QF}")
a(f"v_add_u32 v57, s{sT1}, v6")
a(f"v_mov_b32 v58, {f32(0.25 * LOG2E)}")
a("v_mov_b32 v59, v58")
cm("SSM offsets and addresses")
a(f"s_mov_b32 s{R_A}, s{P_BX}")
a(f"s_and_b32 s{R_A+1}, s{P_BX+1}, 0xffff")
srd(R_B, P_BRE, 512 * 1024)
srd(R_C, P_BIM, 512 * 1024)
a(f"s_mov_b32 s{sLO}, {f32(L_LO)}")
a(f"s_mov_b32 s{sHI}, {f32(L_HI)}")
a(f"s_lshl_b32 s{sT0}, s{sC}, 17")
a(f"s_lshl_b32 s{sT1}, s{sWV}, 15")
a(f"s_add_u32 s{sT3}, s{sT0}, s{sT1}")
a(f"s_lshr_b32 s{sT0}, s{sWV}, 1")
a(f"s_lshl1_add_u32 s{sYG}, s{sRB}, s{sT0}")
if YM:
    a(f"s_and_b32 s{sYY}, s{sRB}, 24")
    a(f"s_add_u32 s{sYY}, s{sYY}, s{sG}")
    a(f"s_lshl1_add_u32 s{sYY}, s{sYY}, s{sT0}")
else:
    a(f"s_mov_b32 s{sYY}, s{sYG}")
a(f"s_and_b32 s{sT0}, s{sWV}, 1")
a(f"s_lshl1_add_u32 s{sCG}, s{sGY}, s{sT0}")
a(f"s_lshl_b32 s{sT4}, s{sYY}, 15")
a(f"s_lshl_b32 s{sT2}, s{sCG}, 6")
a(f"s_add_u32 s{sT4}, s{sT4}, s{sT2}")
wo_voff(vWO, 34)
a("v_lshrrev_b32 v36, 2, v0")
a("v_and_b32 v34, 3, v36")
a("v_bfe_u32 v35, v36, 2, 1")
a("v_lshl_add_u32 v34, v35, 4, v34")
a("v_lshrrev_b32 v35, 3, v36")
a("v_lshl_add_u32 v34, v35, 2, v34")
a("v_and_b32 v37, 3, v0")
a("v_lshlrev_b32 v35, 4, v37")
a("v_lshl_add_u32 v8, v34, 10, v35")
a("v_add_u32 v9, 8192, v8")
a(f"v_mul_u32_u24 v{vRB}, {RSTR}, v17")
a(f"v_lshl_add_u32 v{vRB}, v18, 4, v{vRB}")
a(f"v_add_u32 v{vRB}, {L_R1}, v{vRB}")
a(f"s_lshl_b32 s{sT1}, s{sWV}, 11")
a(f"s_add_u32 s{sT1}, s{sT1}, {L_SCR}")
a("v_xor_b32 v34, v12, v37")
a("v_lshlrev_b32 v34, 4, v34")
a("v_lshl_add_u32 v34, v36, 6, v34")
a(f"v_add_u32 v10, s{sT1}, v34")
a("v_bfe_u32 v34, v0, 2, 2")
a("v_xor_b32 v35, v34, v18")
a("v_lshlrev_b32 v35, 4, v35")
a("v_lshl_add_u32 v35, v17, 6, v35")
a(f"v_add_u32 v11, s{sT1}, v35")
a("v_xor_b32 v12, 32, v11")
a("v_lshl_add_u32 v34, v18, 3, v34")
a("v_lshlrev_b32 v34, 6, v34")
a("v_bfe_u32 v35, v0, 4, 1")
a("v_lshl_add_u32 v34, v35, 5, v34")
a("v_lshl_add_u32 v34, v37, 3, v34")
a(f"v_add_u32 v19, s{sT1}, v34")
a("v_lshlrev_b32 v34, 6, v17")
a("v_lshl_add_u32 v34, v18, 5, v34")
a(f"v_add_u32 v16, s{sT1}, v34")
a("v_lshlrev_b32 v38, 4, v18")
a("v_lshl_add_u32 v29, v17, 10, v38")
a("v_lshlrev_b32 v14, 4, v17")
a("s_waitcnt vmcnt(1)")
a(f"s_cmp_eq_u32 s{sWV}, 0")
a("s_cbranch_scc1 L_h_pw")
a("s_waitcnt vmcnt(0)")
lab("L_h_pw")
FPOS = int(OPT.get("fpos", 1))
def kvflag():
    a("s_waitcnt vmcnt(0)")
    a(f"s_cmp_eq_u32 s{sWV}, 0")
    a("s_cbranch_scc0 L_h_nopub")
    a(f"s_getreg_b32 s{sT0}, hwreg(HW_REG_XCC_ID, 0, 4)")
    a(f"s_xor_b32 s{sT0}, s{sT0}, s{sTAG}")
    a("v_mov_b32 v34, 0")
    a(f"v_mov_b32 v35, s{sT0}")
    a("s_mov_b64 exec, 1")
    a(f"buffer_store_dword v35, v34, {sr(R_WS,4)}, s{sT6} offen sc1")
    a("s_mov_b64 exec, -1")
    stamp(2)
    lab("L_h_nopub")
if FPOS == 0: kvflag()
cm("SSM parameters")
q0, q1, q2, q3, q4 = 64, 65, 66, 67, 68
a(f"v_lshlrev_b32 v{p0}, 16, v{p0}")
a(f"v_lshlrev_b32 v{p1}, 16, v{p1}")
a(f"v_lshlrev_b32 v{p2}, 16, v{p2}")
a(f"v_mul_f32 v{p2}, {f32(LOG2E)}, v{p2}")
a(f"v_exp_f32 v{p2}, v{p2}")
a("s_nop 0")
a(f"v_cvt_pk_bf16_f32 v{p2}, v{p2}, v{p2}")
a(f"v_and_b32 v{p2}, 0xffff0000, v{p2}")
a(f"v_mul_f32 v{q0}, v{p2}, v{p0}")
a(f"v_mul_f32 v{q1}, v{p2}, v{p1}")
a(f"v_mul_f32 v{q0}, {f32(LOG2E)}, v{q0}")
a(f"v_mul_f32 v{q1}, {f32(1/(2*math.pi))}, v{q1}")
a(f"v_exp_f32 v{q0}, v{q0}")
a(f"v_rndne_f32 v{q2}, v{q1}")
a(f"v_sub_f32 v{q1}, v{q1}, v{q2}")
a(f"v_cos_f32 v{q2}, v{q1}")
a(f"v_sin_f32 v{q3}, v{q1}")
a(f"v_mul_f32 v{q4}, v{p0}, v{p0}")
a(f"v_fma_f32 v{q4}, v{p1}, v{p1}, v{q4}")
a(f"v_mul_f32 v{vL}, v{q0}, v{q2}")
a(f"v_mul_f32 v{vL+1}, v{q0}, v{q3}")
a(f"v_rcp_f32 v{q4}, v{q4}")
a(f"v_add_f32 v{q2}, -1.0, v{vL}")
a(f"v_add_f32 v{q4}, v{q4}, v{q4}")
a(f"v_mul_f32 v{q0}, v{q2}, v{p0}")
a(f"v_fma_f32 v{q0}, v{vL+1}, v{p1}, v{q0}")
a(f"v_mul_f32 v{q1}, v{vL+1}, v{p0}")
a(f"v_fma_f32 v{q1}, -v{q2}, v{p1}, v{q1}")
a(f"v_mul_f32 v{vCO}, v{q0}, v{q4}")
a(f"v_mul_f32 v{vCO+1}, v{q1}, v{q4}")
cmul(70, vL, vL); cmul(72, 70, 70); cmul(vL8, 72, 72); cmul(vL16_, vL8, vL8)
cm("skip term x*D via a diagonal B operand -> YACC")
YACC = 112
a("v_and_b32 v64, 1, v0")
a("v_lshlrev_b32 v64, 4, v64")
a(f"v_lshlrev_b32 v{vDSK}, v64, v{vDSK}")
a("v_lshrrev_b32 v64, 1, v17")
a("v_lshlrev_b32 v65, 2, v18")
a("v_sub_u32 v64, v64, v65")
for i in range(0, 8, 2):
    a(f"v_cmp_eq_u32 s[{sM}:{sM+1}], {8*(i//4) + i%4}, v64")
    a(f"v_cmp_eq_u32 vcc, {8*(i//4) + i%4 + 1}, v64")
    a("s_nop 0")
    a(f"v_cndmask_b32 v{104+i}, 0, v{vDSK}, s[{sM}:{sM+1}]")
    a(f"v_cndmask_b32 v{105+i}, 0, v{vDSK}, vcc")
if FPOS == 1: kvflag()
cm("per-lane powers: PS = L16^seg, M0 = L256^seg (if valid), M1 = M0*L128 (if valid)")
vPS, vM0, vM1, vO0, vO1 = 96, 98, 100, 102, 103
a(f"s_mov_b32 s{sM}, 0")
a(f"s_mov_b32 s{sM+1}, -1")
def powsel(dst, b1, b2, b4):
    a(f"v_cndmask_b32 v{dst}, 1.0, v{b1}, s[{sM}:{sM+1}]")
    a(f"v_cndmask_b32 v{dst+1}, 0, v{b1+1}, s[{sM}:{sM+1}]")
    for bit, b in ((0, b2), (1, b4)):
        L = uid("ps")
        a(f"s_bitcmp1_b32 s{sWV}, {bit}")
        a(f"s_cbranch_scc0 {L}")
        cmul(66, dst, b)
        a(f"v_mov_b64 {vr(dst,2)}, v[66:67]")
        lab(L)
cmul(68, vL16_, vL16_); cmul(70, 68, 68); cmul(72, 70, 70)
cmul(74, 72, 72); cmul(76, 74, 74); cmul(78, 76, 76)
powsel(vPS, vL16_, 68, 70)
powsel(vM0, 74, 76, 78)
cmul(vM1, vM0, 72)
a(f"s_lshl_b32 s{sT0}, s{sWV}, 2")
a(f"s_sub_u32 s{sT0}, s{sC}, s{sT0}")
a(f"s_sub_u32 s{sT0}, s{sT0}, 1")
a("v_lshlrev_b32 v30, 1, v18")
a(f"v_sub_u32 v{vO0}, s{sT0}, v30")
a(f"v_add_u32 v{vO1}, -1, v{vO0}")
a(f"v_mov_b32 v30, 0")
for (vo, vm) in ((vO0, vM0), (vO1, vM1)):
    a(f"v_cmp_le_i32 vcc, 0, v{vo}")
    a("s_nop 1")
    a(f"v_cndmask_b32 v{vo}, v30, v{vo}, vcc")
    a(f"v_cndmask_b32 v{vm}, 0, v{vm}, vcc")
    a(f"v_cndmask_b32 v{vm+1}, 0, v{vm+1}, vcc")
    a(f"v_lshl_add_u32 v{vo}, v{vo}, 9, v14")
if FPOS == 2: kvflag()
cm("Q projection")
ACC, QD = 32, 4
XR = 128
VM, LG = Cnt(), Cnt()
xq = [(j, h) for j in range(16) for h in range(2)]
def xb1():
    j, h = xq.pop(0)
    a(f"buffer_load_dwordx4 {vr(XR+8*j+4*h,4)}, v{8+h}, {sr(R_A,4)}, s{16+j//4} offen offset:{64*(j%4)}")
    VM.issue(("x", j))
def qs(ks): return 128 + 8 * (ks % 8)
def qread(ks):
    a(f"ds_read_b64_tr_b16 {vr(qs(ks),2)}, v56 offset:{2048*ks}")
    a(f"ds_read_b64_tr_b16 {vr(qs(ks)+2,2)}, v56 offset:{2048*ks+512}")
    a(f"ds_read_b128 {vr(qs(ks)+4,4)}, v{QXA[ks % 8]} offset:{16384*(ks//8)}")
def qm(ks): mfma32(ACC, qs(ks), qs(ks) + 4, "0" if ks == 0 else None)
DR = [int(x) for x in OPT.get("drain", "").split(",") if x]
sec("Z"); sec("HQ")
a("s_barrier")
segs = []
k0 = 0
for k1 in DR + [32]:
    segs.append((k0, k1)); k0 = k1
for (k0, k1) in segs:
    if k0: a("s_barrier")
    for ks in range(k0, k0 + QD): qread(ks)
    for ks in range(k0, k1):
        if ks + QD < k1:
            if ks + QD in ((8, 16, 24) if B0 else (16, 24)): a("s_barrier")
            qread(ks + QD)
            a(f"s_waitcnt lgkmcnt(12)")
        else:
            a(f"s_waitcnt lgkmcnt({3*(k1-1-ks)})")
        qm(ks)
a(f"s_lshl_b32 s{sT0}, s{sWV}, 9")
a(f"s_add_u32 s{sT0}, s{sT0}, {L_ES}")
a("v_lshlrev_b32 v13, 3, v0")
a(f"v_add_u32 v13, s{sT0}, v13")
a("v_lshlrev_b32 v15, 3, v17")
a(f"v_add_u32 v15, {L_ES}, v15")
a("v_lshlrev_b32 v1, 2, v17")
a("v_lshl_add_u32 v1, v18, 14, v1")
a(f"s_lshl_b32 s{sT0}, s{sPB}, 15")
a(f"s_lshl_b32 s{sT1}, s{sWV}, 13")
a(f"s_add_u32 s{sT5}, s{sT0}, s{sT1}")
a(f"s_add_u32 s{sT6}, s{sT5}, 4096")
a(f"s_and_b32 s{sT0}, s{sRB}, 3")
a(f"s_lshl2_add_u32 s{sT1}, s{sT0}, s{sWV}")
a(f"s_lshl_b32 s{sT1}, s{sT1}, 15")
a(f"s_lshl_b32 s{sT2}, s{sG}, 7")
a(f"s_add_u32 s{sT1}, s{sT1}, s{sT2}")
a("v_lshlrev_b32 v18, 10, v17")
a(f"v_add_u32 v18, s{sT1}, v18")
if YM:
    a(f"s_lshl3_add_u32 s{sT0}, s{sGY}, s{sG}")
    a(f"s_lshl_b32 s{sT0}, s{sT0}, 13")
    a(f"s_and_b32 s{sT1}, s{sWV}, 1")
    a(f"s_lshl_b32 s{sT1}, s{sT1}, 12")
    a(f"s_add_u32 s{sT0}, s{sT0}, s{sT1}")
    a("v_lshlrev_b32 v17, 7, v17")
else:
    a(f"s_lshl2_add_u32 s{sT0}, s{sG}, s{sT0}")
    a(f"s_lshl_b32 s{sT0}, s{sT0}, 14")
    a(f"s_and_b32 s{sT1}, s{sWV}, 1")
    a(f"s_lshl_b32 s{sT1}, s{sT1}, 13")
    a(f"s_add_u32 s{sT0}, s{sT0}, s{sT1}")
    a("v_lshlrev_b32 v17, 7, v0")
a(f"v_add_u32 v17, s{sT0}, v17")
a(f"s_cmp_lt_u32 s{sWV}, 2")
a(f"s_cselect_b32 s{sPC}, s{P_CRE}, s{P_CIM}")
a(f"s_cselect_b32 s{sPC+1}, s{P_CRE+1}, s{P_CIM+1}")
a(f"s_and_b32 s{sT0}, s{sWV}, 1")
a(f"s_mul_i32 s{sT0}, s{sT0}, {32*RSTR}")
a(f"v_add_u32 v28, s{sT0}, v{vRB}")
for r in range(0, 16, 2):
    a(f"v_pk_mul_f32 {vr(ACC+r,2)}, {vr(ACC+r,2)}, v[58:59]")
for j in range(8):
    a(f"v_cvt_pk_bf16_f32 v{ACC+j}, v{ACC+2*j}, v{ACC+2*j+1}")
a(f"ds_write_b128 v57, {vr(ACC,4)}")
a(f"ds_write_b128 v57, {vr(ACC+4,4)} offset:2048")
cm("B tile: 4 k-slots of [64 rows x 256B], xor-swizzled; read addresses v112..119, dma voffset v120")
BA = 112
a("v_lshrrev_b32 v121, 4, v0")
a("v_and_b32 v122, 15, v0")
a(f"v_lshl_add_u32 v121, s{sWV}, 2, v121")
a("v_xor_b32 v123, v122, v121")
a("v_lshlrev_b32 v123, 4, v123")
a("v_lshl_add_u32 v120, v121, 10, v123")
a(f"s_lshr_b32 s{sT0}, s{sWV}, 1")
a(f"s_lshl_b32 s{sT0}, s{sT0}, 13")
a(f"s_sub_u32 s{sT0}, {L_R1}, s{sT0}")
for ks in range(8):
    a(f"v_add_u32 v{BA+ks}, s{sT0}, v{QXA[ks]}")
a(f"s_lshl_b32 s{sT5}, s{sPB}, 15")
a(f"s_lshl_b32 s{sT6}, s{sWV}, 10")
UR = OPT.get("urot", "2")
if UR == "0": a(f"s_mov_b32 s{sT0}, 0")
elif UR == "1": a(f"s_add_u32 s{sT0}, s{sC}, s{sPB}")
elif UR == "2": a(f"s_lshr_b32 s{sT0}, s2, 1")
elif UR == "3": a(f"s_mov_b32 s{sT0}, s2")
for sl in range(4):
    a(f"s_add_u32 s{sT1}, s{sT0}, {sl}")
    a(f"s_and_b32 s{sT1}, s{sT1}, 3")
    a(f"s_lshl_b32 s{sT1}, s{sT1}, 8")
    a(f"s_add_u32 s{16+sl}, s{sT3}, s{sT1}")
    a(f"s_add_u32 s{20+sl}, s{sT5}, s{sT1}")
a("s_waitcnt lgkmcnt(0)")
stamp(3)
a("s_barrier")
a("s_branch L_h2")
sec("H")
lab("L_h2")
a("s_setprio 2")
def rows_dma(tag, base=sT5, ore=0, oim=0):
    a(f"s_mul_i32 s{sT1}, s{sWV}, {8*RSTR}")
    for i in range(8):
        a(f"s_add_u32 m0, s{sT1}, {L_R1 + RSTR*i}")
        a(f"s_add_u32 s{sT2}, s{base}, {1024*i + ore}")
        dma(vL4, R_B, f"s{sT2}")
        a(f"s_add_u32 m0, s{sT1}, {L_R1 + RSTR*(32+i)}")
        a(f"s_add_u32 s{sT2}, s{base}, {1024*i + oim}")
        dma(vL4, R_C, f"s{sT2}")
    VM.issue(tag, 16)
def xw(j, h):
    if h == 0: waits(vm=VM.need(("x", j)))
    a(f"ds_write_b128 v10, {vr(XR+8*j+4*h,4)}" + (" offset:1024" if h else ""))
    LG.issue(("xw", j))
def xr(j):
    a(f"ds_read_b128 {vr(XR+8*j,4)}, v11")
    a(f"ds_read_b128 {vr(XR+8*j+4,4)}, v12")
    LG.issue(("x", j), 2)
if "a" in SU: spf([(P_BRE, 4, 0, 4), (P_BIM, 4, 0, 4), (P_BX, 16, 14, 2)])
if "b" in SU: spf([(P_BX, 16, 6, 10)])
if "c" in SU: spf([(P_BRE, 4, 0, 4), (P_BIM, 4, 0, 4), (P_BX, 16, 0, 16)])
if "d" in SU: spf([(P_CRE, 4, 0, 4), (P_CIM, 4, 0, 4), (P_WO, 4, 0, 4)])
waitc(vCNT, C_A4, 4, 30, sleep=int(OPT.get("a4sl", 1)))
a(f"ds_read_b32 v30, v{vCNT} offset:{C_MODE}")
if EP0: a(f"ds_read_b32 v121, v{vCNT} offset:{C_TAG}")
a("s_setprio 0")
cm("U = x B^T")
XL = int(OPT.get("xl", 2))
def bdma(sl, m):
    a(f"s_add_u32 m0, s{sT6}, {L_R1 + 16384*sl + 4096*m}")
    a(f"s_add_u32 s{sT2}, s{20+sl}, {16384*(m%2)}")
    dma(120, R_B if m < 2 else R_C, f"s{sT2}")
    if sl == 0 and OPT.get("bp") == "1": pace()
    VM.issue(("B", sl))
lq = []
for it in OPT.get("uord", "B0,0,1,2,3,B1,4,5,6,7,B2,8,9,10,11,B3,12,13,14,15").split(","):
    lq += [("B", int(it[1]), m) for m in range(4)] if it[0] == "B" else [("x",), ("x",)]
if OPT.get("mix", "1") == "1":
    for sl in range(1, 4):
        i = lq.index(("B", sl, 0))
        xs, bs_ = lq[i-4:i], lq[i:i+4]
        lq[i-4:i+4] = [y for p in zip(xs, bs_) for y in p]
def ld1(n=1):
    for _ in range(n):
        if not lq: return
        it = lq.pop(0)
        if it[0] == "B": bdma(it[1], it[2])
        else: xb1()
CB = [C_H0, C_H1, C_H2, C_H3]
sigd = set()
def bsig(force=None):
    for sl in range(4):
        issued = not any(it[:2] == ("B", sl) for it in lq)
        if sl in sigd or not issued: continue
        if sl == force: waits(vm=VM.need(("B", sl)))
        if ("B", sl) not in VM.q:
            signal(vCNT, vONE, CB[sl]); LG.issue("sig"); sigd.add(sl)
ld1(int(OPT.get("u0", 12)))
bsig(0)
ld1(int(OPT.get("u1", 4)))
for j in range(XL): xw(j, 0); xw(j, 1); xr(j)
a("s_setprio 2")
a(f"v_readfirstlane_b32 s{sMODE}, v30") if False else None
waitc(vCNT, CB[0], 4, 31)
a(f"v_readfirstlane_b32 s{sMODE}, v30")
if EP0: a(f"v_readfirstlane_b32 s{sTAG}, v121")
LG.q = []
stamp(4)
UPRIO = int(OPT.get("uprio", 0)); YPRIO = int(OPT.get("yprio", 0))
a(f"s_setprio {UPRIO}")
AR, AI, BR = 32, 48, 64
def bread(k):
    s = BR + 8 * (k % 4)
    a(f"ds_read_b128 {vr(s,4)}, v{BA + k % 8} offset:{16384*(k//8)}")
    a(f"ds_read_b128 {vr(s+4,4)}, v{BA + k % 8} offset:{16384*(k//8) + 8192}")
    LG.issue(("b", k), 2)
WOL = int(OPT.get("wol", 0))
PF = [(17, sPC)] + ([] if WOL else [(18, P_WO)])
PFK = int(OPT.get("pfk", 19))
PTK = int(OPT.get("ptk", 27))
CPOS = 0
for k in range(3): bread(k)
for k in range(32):
    j = k // 2; jn = j + XL
    tr = jn < 16
    n1 = LG.need(("x", j)); n2 = LG.need(("b", k))
    waits(lg=n2 if n2 is not None else n1)
    s = BR + 8 * (k % 4)
    first = "0" if k == 0 else None
    mfma32(AR, XR + 4*k, s, first)
    if k % 8 == 2 and k < 24: bsig(k // 8 + 1)
    if k % 8 == 4 and k < 24:
        a(f"ds_read_b32 v31, v{vCNT} offset:{CB[k//8+1]}"); LG.issue("cb")
    if k % 8 == 5 and k < 24:
        waits(lg=LG.need("cb"))
        a("s_setprio 2")
        a("v_cmp_gt_u32 vcc, 4, v31")
        Lk = uid("bk")
        a(f"s_cbranch_vccz {Lk}")
        waitc(vCNT, CB[k//8+1], 4, 31)
        lab(Lk)
        a(f"s_setprio {UPRIO}")
    if k + 3 < 32: bread(k + 3)
    ld1(int(OPT.get("lpk", 1)))
    if PF and k >= PFK and k % 2 == 1:
        v, p = PF.pop(0)
        a(f"global_load_dword v{136+len(PF)}, v{v}, s[{p}:{p+1}]"); VM.issue("pf")
    if k == PTK:
        cm("local mode: make the lines this wave / its attention partner will hand over valid in L2")
        a(f"s_cmp_eq_u32 s{sMODE}, 1")
        a("s_cbranch_scc0 L_h_nopt")
        def touch(soff, n):
            for i in range(n):
                a(f"buffer_load_dwordx4 v[144:147], v{vL4}, {sr(R_WS,4)}, s{soff} offen offset:{1024*i} sc1")
        def touchf(soff):
            a("s_mov_b64 exec, 0xff")
            touch(soff, 1)
            a("s_mov_b64 exec, -1")
        if "h" in LOC:
            a(f"s_lshl2_add_u32 s{sT0}, s{sC}, s{sWV}")
            a(f"s_lshl_b32 s{sT1}, s{sT0}, 5")
            a(f"s_add_u32 s{sT1}, s{sT1}, s{sPB}")
            a(f"s_lshl_b32 s{sT1}, s{sT1}, 11")
            a(f"s_add_u32 s{sT1}, s{sT1}, {WS_H}")
            touch(sT1, 2)
            a(f"s_add_u32 s{sT1}, s{sT1}, 32768")
            touch(sT1, 2)
            a(f"s_lshl4_add_u32 s{sT0}, s{sT0}, s{sPB}")
            a(f"s_lshl_b32 s{sT0}, s{sT0}, 7")
            a(f"s_add_u32 s{sT0}, s{sT0}, {WS_FH}")
            touchf(sT0)
        for kind, off in (("o", 0), ("t", 4)):
            if kind in LOC:
                a(f"s_add_u32 s{sSTEP}, s{sWV}, {off}")
                o_offsets()
                touch(sT1, 1); touchf(sT0)
        lab("L_h_nopt")
    if k == 28:
        a(f"buffer_load_dwordx4 v[128:131], v29, {sr(R_A,4)}, s{sT4} offen")
        a(f"buffer_load_dwordx4 v[132:135], v29, {sr(R_A,4)}, s{sT4} offen offset:32")
        VM.issue("skip", 2)
    mfma32(AI, XR + 4*k, s + 4, first)
    ld1()
    if tr:
        assert not any(q[0] == jn for q in xq)
        xw(jn, k % 2)
        if k % 2: xr(jn)
    bsig()
assert len(sigd) == 4 and not lq
assert not PF
a("s_setprio 2")
srd(R_B, P_CRE, 512 * 1024)
srd(R_C, P_CIM, 512 * 1024)
srd(R_A, P_WO, 512 * 1024)
if CPOS:
    a(f"s_add_u32 s{sSYNC}, s{sSYNC}, 4")
    signal(vCNT, vONE, C_GH)
a(f"s_lshl_b32 s{sT3}, s{sGY}, 16")
a(f"s_lshl_b32 s{sT1}, s{sWV}, 13")
a(f"s_add_u32 s{sT3}, s{sT3}, s{sT1}")
a(f"s_mul_i32 s{sT1}, s{sWV}, {8*RSTR}")
def row1(n, base, ore, oim):
    i, part = n // 2, n % 2
    a(f"s_add_u32 m0, s{sT1}, {L_R1 + RSTR*(32*part+i)}")
    a(f"s_add_u32 s{sT2}, s{base}, {1024*i + (oim if part else ore)}")
    dma(vL4, R_C if part else R_B, f"s{sT2}")
stamp(5)
cm("scale by coef into pair layout, local scan")
UP = 64
G0, G1 = 30, 8
def sc1(r): a(f"v_pk_mul_f32 {vr(UP+2*r,2)}, {vr(vCO,2)}, {vr(AR+(r&~1),2)} op_sel:[0,{r&1}] op_sel_hi:[1,{r&1}]")
def sc2(r): a(f"v_pk_fma_f32 {vr(UP+2*r,2)}, {vr(vCO,2)}, {vr(AI+(r&~1),2)}, {vr(UP+2*r,2)} op_sel:[1,{r&1},0] op_sel_hi:[0,{r&1},1] neg_lo:[1,0,0]")
def c1(dst, L, g, u): a(f"v_pk_fma_f32 {vr(dst,2)}, {vr(L,2)}, {vr(g,2)}, {vr(u,2)} op_sel:[0,0,0] op_sel_hi:[0,1,1]")
def c2(dst, L, g): a(f"v_pk_fma_f32 {vr(dst,2)}, {vr(L,2)}, {vr(g,2)}, {vr(dst,2)} op_sel:[1,1,0] op_sel_hi:[1,0,1] neg_lo:[1,0,0]")
sc1(0); sc1(1); sc1(2); sc2(0); sc2(1); sc2(2)
src = UP
for r in range(1, 16):
    dst = G0 if r % 2 else G1
    if r == 8 and CPOS: waitc(vCNT, C_GH, f"s{sSYNC}", 8)
    c1(dst, vL, src, UP + 2*r)
    if r < 14: sc1(r + 2)
    if r >= 8 and CPOS: row1(2*(r-8), sT3, 32768, 0)
    c2(dst, vL, src)
    if r < 14: sc2(r + 2)
    if r >= 8 and CPOS: row1(2*(r-8) + 1, sT3, 32768, 0)
    src = dst
a(f"ds_write_b64 v13, {vr(G0,2)}")
gsync(vCNT, vONE, 32, C_GH)
stamp(6)
ESR = 32
for s in range(8):
    a(f"ds_read_b64 {vr(ESR+2*s,2)}, v15 offset:{256*s}")
a(f"s_lshl_b32 s{sT6}, s{sPB}, 13")
a(f"s_add_u32 s{sT6}, s{sT6}, {WS_ST}")
a(f"s_lshl_b32 s{sT0}, s{sC}, 9")
a(f"s_add_u32 s{sT0}, s{sT0}, s{sT6}")
a(f"v_mov_b64 {vr(G0,2)}, 0")
a(f"s_mov_b32 s{sCNT}, {POLL_LIMIT}")
a("s_waitcnt lgkmcnt(0)")
a(f"v_mov_b64 {vr(G1,2)}, {vr(ESR,2)}")
for w in range(4):
    if w: cmul_add(G1, vL16_, G0, ESR + 4*w)
    if w < 3:
        a(f"s_cmp_eq_u32 s{sWV}, {w}")
        a("s_cbranch_scc1 L_h_segdone")
        cmul_add(G0, vL16_, G1, ESR + 4*w + 2)
cmul_add(48, vL16_, G1, ESR + 14)
a(f"v_mov_b32 v50, v49")
a(f"v_mov_b32 v49, s{sTAG}")
a(f"v_mov_b32 v51, s{sTAG}")
a("s_mov_b32 exec_hi, 0")
a(f"buffer_store_dwordx4 v[48:51], v14, {sr(R_WS,4)}, s{sT0} offen sc1")
a("s_mov_b64 exec, -1")
lab("L_h_segdone")
a(f"s_mov_b32 s{sM}, 0")
a(f"s_mov_b32 s{sM+1}, -1")
a(f"v_cndmask_b32 v{G0}, v{G0}, v{G1}, s[{sM}:{sM+1}]")
a(f"v_cndmask_b32 v{G0+1}, v{G0+1}, v{G1+1}, s[{sM}:{sM+1}]")
if not CPOS:
    for n in range(16): row1(n, sT3, 32768, 0); pace()
stamp(7)
cm("chunk carry: each lane gathers two predecessors' end states")
a(f"v_mov_b64 {vr(G1,2)}, 0")
a(f"s_cmp_eq_u32 s{sC}, 0")
a("s_cbranch_scc1 L_h_stskip")
lab("L_h_stpoll")
a(f"buffer_load_dwordx4 v[52:55], v{vO0}, {sr(R_WS,4)}, s{sT6} offen sc1")
a(f"buffer_load_dwordx4 v[56:59], v{vO1}, {sr(R_WS,4)}, s{sT6} offen sc1")
a("s_waitcnt vmcnt(0)")
a(f"v_cmp_ne_u32 vcc, s{sTAG}, v53")
a(f"v_cmp_ne_u32 s[{sM}:{sM+1}], s{sTAG}, v55")
a(f"s_or_b64 s[{sM}:{sM+1}], s[{sM}:{sM+1}], vcc")
a(f"v_cmp_ne_u32 vcc, s{sTAG}, v57")
a(f"s_or_b64 s[{sM}:{sM+1}], s[{sM}:{sM+1}], vcc")
a(f"v_cmp_ne_u32 vcc, s{sTAG}, v59")
a(f"s_or_b64 s[{sM}:{sM+1}], s[{sM}:{sM+1}], vcc")
a("s_cbranch_scc0 L_h_stok")
a(f"s_sub_u32 s{sCNT}, s{sCNT}, 1")
a("s_cbranch_scc0 L_h_stpoll")
lab("L_h_stok")
a(f"v_pk_mul_f32 {vr(G1,2)}, {vr(vM0,2)}, v[52:53] op_sel:[0,0] op_sel_hi:[1,0]")
a(f"v_pk_mul_f32 v[60:61], {vr(vM1,2)}, v[56:57] op_sel:[0,0] op_sel_hi:[1,0]")
a(f"v_pk_fma_f32 {vr(G1,2)}, {vr(vM0,2)}, v[54:55], {vr(G1,2)} op_sel:[1,0,0] op_sel_hi:[0,0,1] neg_lo:[1,0,0]")
a(f"v_pk_fma_f32 v[60:61], {vr(vM1,2)}, v[58:59], v[60:61] op_sel:[1,0,0] op_sel_hi:[0,0,1] neg_lo:[1,0,0]")
a(f"v_pk_add_f32 {vr(G1,2)}, {vr(G1,2)}, v[60:61]")
lab("L_h_stskip")
a(f"ds_write_b64 v13, {vr(G1,2)} offset:{L_CS - L_ES}")
a("s_waitcnt vmcnt(0)")
mfma32(YACC, 128, 104, "0")
mfma32(YACC, 132, 108)
if WOL == 1: a(f"global_load_dword v10, v18, s[{P_WO}:{P_WO+1}]")
gsync(vCNT, vONE, 32, C_GH)
for s in range(8):
    a(f"ds_read_b64 {vr(32+2*s,2)}, v15 offset:{L_CS - L_ES + 256*s}")
a(f"s_lshl_b32 s{sT0}, s{sC}, 2")
a(f"s_add_u32 s{sT0}, s{sT0}, s{sWV}")
a(f"s_lshl_b32 s{sT4}, s{sT0}, 16")
a(f"s_add_u32 s{sT4}, s{sT4}, {WS_H}")
a(f"s_lshl_b32 s{sT1}, s{sPB}, 11")
a(f"s_add_u32 s{sT1}, s{sT1}, s{sT4}")
a(f"s_add_u32 s{sT2}, s{sT1}, 32768")
a(f"s_lshl_b32 s{sT0}, s{sT0}, 11")
a(f"s_add_u32 s{sT5}, s{sT0}, {WS_FH}")
a(f"s_lshl_b32 s{sT0}, s{sPB}, 7")
a(f"s_add_u32 s{sF1}, s{sT0}, s{sT5}")
a("s_waitcnt lgkmcnt(0)")
stamp(8)
for st in (8, 4, 2):
    for j in range(0, st, 2):
        a(f"v_pk_add_f32 {vr(32+j,2)}, {vr(32+j,2)}, {vr(32+j+st,2)}")
cmul_add(G0, vPS, 32, G0)
HB = 32
cmul_add(UP, vL, G0, UP)
for r in range(1, 16):
    cmul_add(UP + 2*r, vL, UP + 2*(r-1), UP + 2*r)
for part in range(2):
    ng = "-" if part else ""
    for j in range(8):
        a(f"v_cvt_pk_bf16_f32 v{HB+8*part+j}, {ng}v{UP+4*j+part}, {ng}v{UP+4*j+2+part}")
    a(f"ds_write_b128 v16, {vr(HB+8*part,4)}")
    a(f"ds_write_b128 v16, {vr(HB+4+8*part,4)} offset:16")
    for ks in range(2):
        d = 48 + 8*part + 4*ks
        a(f"ds_read_b64_tr_b16 {vr(d,2)}, v19 offset:{1024*ks}")
        a(f"ds_read_b64_tr_b16 {vr(d+2,2)}, v19 offset:{1024*ks+256}")
KIND[0] = "h"
a(f"v_lshlrev_b32 v24, 2, v0")
a(f"v_mov_b32 v25, s{sTAG}")
def flag_novalu(soff):
    a("s_mov_b32 exec_hi, 0")
    st2([f"buffer_store_dword v25, v24, {sr(R_WS,4)}, s{soff} offen@"])
    a("s_mov_b64 exec, -1")
a("s_waitcnt lgkmcnt(0)")
st2([f"buffer_store_dwordx4 {vr(48+8*part+4*ks,4)}, v{vL4}, {sr(R_WS,4)}, s{sT1 if part == 0 else sT2} offen offset:{1024*ks}@" for part in range(2) for ks in range(2)])
a("v_and_b32 v8, 15, v0")
a("v_lshlrev_b32 v12, 7, v8")
CF = 128
LB = int(OPT.get("lb", 1))
if LB: a("s_setprio 0")
for k in range(32):
    a(f"ds_read_b128 {vr(CF+4*k,4)}, v28 offset:{32*k}")
    if k == 13:
        a("s_waitcnt vmcnt(0)")
        flag_novalu(sF1)
a(f"s_add_u32 s{sSYNC}, s{sSYNC}, 4")
signal(vCNT, vONE, C_GH)
if LB: a("s_setprio 2")
stamp(9)
def reduce_inline(RB_, b1=None, bs=None):
    b1 = RB_ + 16 if b1 is None else b1
    bs = RB_ + 32 if bs is None else bs
    Ls, Le = uid("rs"), uid("re")
    a(f"s_mul_i32 s{sT2}, s{sSTEP}, {PSTRIDE}")
    a(f"v_add_u32 v10, s{sT2}, v{vL4}")
    a(f"s_add_u32 s{sT2}, s{sT2}, {L_PART + 8192}")
    o_offsets()
    waitc(11, 0, f"s{sT2}", 8)
    a(f"ds_read_b128 {vr(bs,4)}, v10 offset:8192")
    for w in range(4):
        d = (RB_ if w < 2 else b1) + 8*(w % 2)
        a(f"ds_read_b128 {vr(d,4)}, v10 offset:{2048*w}")
        a(f"ds_read_b128 {vr(d+4,4)}, v10 offset:{2048*w + 1024}")
    a("s_waitcnt lgkmcnt(8)")
    sum_check(bs)
    a("s_waitcnt lgkmcnt(0)")
    a(f"s_cbranch_scc1 {Ls}")
    reduce_math(RB_, vL4, flag=False, b1=b1, bs=bs)
    a(f"s_branch {Le}")
    lab(Ls)
    a(f"s_mov_b32 s{sT0}, {WS_DUMMY}")
    lab(Le)
waitc(vCNT, C_GH, f"s{sSYNC}", 8)
a(f"s_mul_i32 s{sT1}, s{sWV}, {8*RSTR}")
for n in range(16): row1(n, sT3, 0, 32768); pace()
a("v_and_b32 v11, 3, v0")
a("v_lshlrev_b32 v11, 2, v11")
a(f"v_add_u32 v11, {L_PROG}, v11")
a(f"v_add_u32 v13, {(L_PART - L_R1) & 0xffffffff}, v{vWT}")
a(f"s_lshl_b32 s{sT5}, s{sYY}, 11")
a(f"s_add_u32 s{sT5}, s{sT5}, {WS_FH}")
a(f"s_lshl_b32 s{sT4}, s{sYY}, 16")
a(f"s_and_b32 s{sT1}, s{sWV}, 1")
a(f"s_lshl_b32 s{sT1}, s{sT1}, 15")
a(f"s_add_u32 s{sT4}, s{sT4}, s{sT1}")
a(f"s_add_u32 s{sT4}, s{sT4}, {WS_H}")
stamp(10)
poll(12, f"s{sT5}", 8)
stamp(11)
HR, CR, NH = 48, 96, 12
WF, OF = 48, 128
def hload(k):
    if k % 4 == 0 and k: a(f"s_add_u32 s{sT4}, s{sT4}, 4096")
    a(f"buffer_load_dwordx4 {vr(HR+4*(k%NH),4)}, v{vL4}, {sr(R_WS,4)}, s{sT4} offen offset:{1024*(k%4)} sc1")
def cread(k):
    a(f"ds_read_b128 {vr(CR+4*(k%4),4)}, v28 offset:{32*k}")
def oload(k):
    if k % 4 == 0 and k: a(f"s_add_u32 s{sT6}, s{sT6}, 4096")
    a(f"buffer_load_dwordx4 {vr(OF+4*k,4)}, v{vL4}, {sr(R_WS,4)}, s{sT6} offen offset:{1024*(k%4)} sc1")
def wo_setup():
    a(f"s_and_b32 s{sT0}, s{sWV}, 1")
    a(f"s_lshl_b32 s{sT0}, s{sT0}, 18")
    a(f"s_lshr_b32 s{sT1}, s{sWV}, 1")
    a(f"s_lshl_b32 s{sT1}, s{sT1}, 14")
    a(f"s_add_u32 s{sT0}, s{sT0}, s{sT1}")
    a(f"s_lshl_b32 s{sT1}, s{sG}, 7")
    a(f"s_add_u32 s{sT0}, s{sT0}, s{sT1}")
    a(f"s_mul_i32 s{sT1}, s{sWV}, {PSTRIDE}")
def wo_one(half, n):
    q, i = n // 2, n % 2
    a(f"s_add_u32 m0, s{sT1}, {(L_R1 if half else L_PART) + 2048*q + 1024*i}")
    a(f"s_add_u32 s{sT2}, s{sT0}, {32768*half + 65536*q + 8192*i}")
    dma(vWO, R_A, f"s{sT2}")
def wread(dst, k):
    o = PSTRIDE * ((k % 16) // 4) + 2048 * (k % 4)
    ad = 13 if k < 16 else vWT
    a(f"ds_read_b64_tr_b16 {vr(dst,2)}, v{ad} offset:{o}")
    a(f"ds_read_b64_tr_b16 {vr(dst+2,2)}, v{ad} offset:{o+1024}")
HD, CD = 11, 3
RK = int(OPT.get("rk", 25))
FK = 4
VM, LG = Cnt(), Cnt()
for k in range(HD): hload(k); VM.issue(("h", k))
a(f"s_lshl_b32 s{sT5}, s{sYG}, 12")
a(f"s_add_u32 s{sT5}, s{sT5}, {WS_FO}")
a(f"s_lshl_b32 s{sT6}, s{sYG}, 15")
a(f"s_add_u32 s{sT6}, s{sT6}, {WS_O}")
a(f"s_mov_b32 s{sSTEP}, s{sWV}")
KIND[0] = "o"
reduce_inline(32, 96, 20)
a(f"s_mov_b32 s{sF1}, s{sT0}")
gsync(vCNT, vONE, 8, C_GH)
a(f"s_setprio {YPRIO}")
for k in range(CD): cread(k); LG.issue(("c", k))
FLK = int(OPT.get("flk", 14))
oq = list(range(16))
for k in range(32):
    if k == FK:
        waits(vm=VM.need(("h", HD)))
        flag_novalu(sF1); VM.issue("f")
        wo_setup()
    if k == FLK:
        a(f"buffer_load_dword v9, v12, {sr(R_WS,4)}, s{sT5} offen sc1"); VM.issue("fl")
    if k == FLK + 5:
        waits(vm=VM.need("fl"))
        a("s_setprio 2")
        a(f"v_cmp_ne_u32 vcc, s{sTAG}, v9")
        a("s_cbranch_vccz L_y_ok")
        poll(12, f"s{sT5}", 8)
        lab("L_y_ok")
        a(f"s_setprio {YPRIO}")
    if k + HD < 32: hload(k + HD); VM.issue(("h", k + HD))
    if k + CD < 32: cread(k + CD); LG.issue(("c", k + CD))
    waits(vm=VM.need(("h", k)), lg=LG.need(("c", k)))
    mfma32(YACC, HR + 4*(k % NH), CR + 4*(k % 4))
    n = k - FK - 1
    if 0 <= n < 8: wo_one(0, n); VM.issue("wo")
    if k >= FLK + 5:
        for _ in range(2 if k + HD >= 32 else 1):
            if oq: oload(oq.pop(0)); VM.issue("o")
    mfma32(32, HR + 4*(k % NH), CF + 4*k, "0" if k == 0 else None)
assert not oq
a("s_setprio 2")
a(f"s_lshl_b32 s{sT2}, s{sWV}, 12")
a(f"s_add_u32 s{sT2}, s{sT2}, {L_R1 + 40960}")
a(f"v_add_u32 v10, s{sT2}, v{vL4}")
a("v_xor_b32 v11, 4096, v10")
assert (L_R1 + 40960) % 8192 == 0
a(f"s_lshl_b32 s{sT2}, s{sWV}, 9")
a(f"s_add_u32 s{sT2}, s{sT2}, {L_CS}")
a("v_lshlrev_b32 v8, 3, v0")
a(f"v_add_u32 v8, s{sT2}, v8")
a(f"ds_write2_b32 v8, v{vWT}, v1 offset1:1")
waits(vm=VM.need("wo"))
gsync(vCNT, vONE, 8, C_GH)
stamp(12)
for i in range(8):
    wo_one(1, i)
    if i < 4: a(f"ds_write_b128 v10, {vr(32+4*i,4)} offset:{1024*i}")
    if i == 3:
        a(f"s_add_u32 s{sSYNC}, s{sSYNC}, 4")
        signal(vCNT, vONE, C_GH)
    if 4 <= i < 7: pace()
srd(R_B, P_OUT, 2048 * 4096)
a(f"s_lshl_b32 s{sT0}, s{sYY}, 17")
a(f"s_lshl_b32 s{sT1}, s{sCG}, 7")
a(f"s_add_u32 s{sT0}, s{sT0}, s{sT1}")
def store1(b, r, off=0):
    a(f"s_add_u32 s{sT1}, s{sT0}, {4096 * (8*(r//4) + r%4)}")
    a(f"buffer_store_dword v{b+r}, v1, {sr(R_B,4)}, s{sT1} offen" + (f" offset:{off}" if off else "") + YFL)
a(f"s_mul_i32 s{sT2}, s{sWV}, {PSTRIDE}")
a(f"v_add_u32 v10, s{sT2}, v{vL4}")
a(f"s_lshl_b32 s{sT2}, s{sWV}, 2")
a(f"v_add_u32 v9, s{sT2}, v{vCNT}")
waitc(vCNT, C_GH, f"s{sSYNC}", 8)
for i in range(4):
    a(f"ds_read_b128 {vr(192+4*i,4)}, v11 offset:{1024*i}")
YL = OPT.get("ylate") == "1"
def ystores():
    for j in range(8):
        a(f"v_pk_add_f32 {vr(YACC+2*j,2)}, {vr(YACC+2*j,2)}, {vr(192+2*j,2)}")
        store1(YACC, 2*j, 2048)
        store1(YACC, 2*j + 1, 2048)
if LB: a("s_setprio 0")
for k in range(16): wread(WF + 4*k, k)
if LB: a("s_setprio 2")
a(f"s_waitcnt vmcnt(0) lgkmcnt(15)")
a(f"s_add_u32 s{sSYNC}, s{sSYNC}, 4")
signal(vCNT, vONE, C_GH)
for j in range(8):
    a(f"v_pk_add_f32 {vr(YACC+2*j,2)}, {vr(YACC+2*j,2)}, {vr(192+2*j,2)}")
a(f"s_waitcnt lgkmcnt(0)")
stamp(14)
a("s_setprio 0")
for k in range(16):
    mfma32(32, OF + 4*k, WF + 4*k, "0" if k == 0 else None)
    store1(YACC, k, 2048)
nsync = sum(1 for n in ("HQ", "H") for x in SECS[n] if x.strip() == f"s_add_u32 s{sSYNC}, s{sSYNC}, 4")
SECS["P"].insert(0, f".set NSYNC_B2, {4*nsync}")
a("s_setprio 2")
waitc(vCNT, C_GH, f"s{sSYNC}", 8)
a("s_nop 6")
for i in range(4):
    a(f"ds_write_b128 v10, {vr(32+4*i,4)} offset:{1024*i}")
a(f"ds_write_b32 v9, v{vONE} offset:{C_HA}")
stamp(13)
if YL:
    waitc(vCNT, C_S, 4, 8, sleep=1)
    ystores()
a("s_branch L_end")

lab("L_slow")
a("s_waitcnt lgkmcnt(0)")
a(f"s_mov_b32 s{sKIND}, 0")
a(f"s_lshl_b32 s{sT0}, s{sSTEP}, 10")
a(f"s_add_u32 s{sT0}, s{sT0}, {L_QF}")
a(f"v_add_u32 v4, s{sT0}, v14")
a(f"ds_read_b128 {vr(vQ,4)}, v4")
a("v_mov_b32 v4, 0xff800000")
a("v_lshrrev_b32 v16, 5, v0")
a("v_and_b32 v17, 15, v0")
a("v_lshl_add_u32 v15, v16, 4, v17")
a("v_lshlrev_b32 v15, 4, v15")
a(f"s_mov_b32 s{sM}, 0xffff")
a(f"s_mov_b32 s{sM+1}, 0xffff")
a(f"s_mov_b32 s{sT0}, {WS_KV}")
lab("L_slow_p1")
kvload(0)
a("s_waitcnt vmcnt(0) lgkmcnt(0)")
for t in range(2):
    qk(S0, t)
    a("s_nop 11")
    for i in range(8):
        a(f"v_max3_f32 v4, v{S0+2*i}, v{S0+2*i+1}, v4")
a(f"s_cmp_lt_u32 s{sT0}, {WS_KV + 131072}")
a("s_cbranch_scc1 L_slow_p1")
a("v_mov_b32 v5, v4")
a("s_nop 1")
a("v_permlane32_swap_b32 v4, v5")
a("v_max_f32 v4, v4, v5")
for i in range(16):
    a(f"v_sub_f32 v{S1+i}, 0, v4")
zeroO()
a(f"s_mov_b32 s{sT0}, {WS_KV}")
lab("L_slow_p2")
kvload(0)
a("s_waitcnt vmcnt(0)")
for t in range(2):
    mfma32(S0, K_(t), vQ, vr(S1, 16))
    a("s_nop 11")
    exs(S0, 0, 16)
    a("s_nop 1")
    smf(V1(t), S0)
    smf(V2(t), S0 + 8)
a(f"s_cmp_lt_u32 s{sT0}, {WS_KV + 131072}")
a("s_cbranch_scc1 L_slow_p2")
o_offsets()
a(f"v_rcp_f32 v4, v{vO+8}")
a("s_nop 0")
for j in range(4):
    a(f"v_pk_mul_f32 {vr(vO+2*j,2)}, {vr(vO+2*j,2)}, v[4:5] op_sel_hi:[1,0]")
for j in range(4):
    a(f"v_cvt_pk_bf16_f32 v{16+j}, v{vO+2*j}, v{vO+2*j+1}")
a(f"buffer_store_dwordx4 v[16:19], v14, {sr(R_WS,4)}, s{sT1} offen sc1")
a("s_waitcnt vmcnt(0)")
setflag(16, 17, sT0)
a("v_and_b32 v15, 15, v0")
a("v_lshlrev_b32 v15, 7, v15")
a("v_lshlrev_b32 v7, 3, v0")
a(f"v_add_u32 v7, s{sT5}, v7")
a(f"s_lshl_b32 s{sT0}, s{sWV}, 2")
a(f"v_add_u32 v10, s{sT0}, v{vCA}")
a(f"s_cmp_lt_u32 s{sSTEP}, 4")
a("s_cbranch_scc1 L_a_ok2")
a("ds_read_b128 v[56:59], v6 offset:8192")
a("s_waitcnt lgkmcnt(0)")
a("s_branch L_a_ok1")
lab("L_a_bad1")
a("s_waitcnt lgkmcnt(0)")
a(f"s_sub_u32 s{sSTEP}, 7, s{sWV}")
a("s_branch L_slow")
lab("L_a_bad2")
a(f"s_mov_b32 s{sSTEP}, s{sWV}")
a("s_branch L_slow")

lab("L_end")
ROLE[0] = "E"
if PROBE:
    a("s_waitcnt vmcnt(0)")
    stamp(15)
    a(f"s_cmp_ge_u32 s{sW}, 4")
    a(f"s_cbranch_scc{0 if PROBE[0] == 'A' else 1} L_exit")
    a(f"s_cmp_eq_u32 s{80+int(PROBE[1])}, 0")
    a("s_cbranch_scc1 L_exit")
    a(f"s_sub_u32 s{sT0}, s{80+int(PROBE[1])}, s{80+int(PROBE[2])}")
    if OPT.get("pmode"):
        a(f"s_cmp_eq_u32 s{sMODE}, 1")
        a(f"s_cselect_b32 s{sT0}, 0, 1000")
    a(f"s_min_u32 s{sT0}, s{sT0}, 10000")
    a(f"s_lshl_b32 s{sT0}, s{sT0}, 1")
    a(f"s_memrealtime s[{sST}:{sST+1}]")
    a("s_waitcnt lgkmcnt(0)")
    a(f"s_mov_b32 s{sT1}, s{sST}")
    lab("L_probe")
    a(f"s_memrealtime s[{sST}:{sST+1}]")
    a("s_waitcnt lgkmcnt(0)")
    a(f"s_sub_u32 s{sT2}, s{sST}, s{sT1}")
    a(f"s_cmp_lt_u32 s{sT2}, s{sT0}")
    a("s_cbranch_scc1 L_probe")
elif STAMPS:
    a("s_waitcnt vmcnt(0)")
    stamp(15)
    a(f"s_lshl_b32 s{sT0}, s2, 3")
    a(f"s_xor_b32 s{sT1}, s{sW}, 4")
    a(f"s_add_u32 s{sT0}, s{sT0}, s{sT1}")
    a(f"s_lshl_b32 s{sT0}, s{sT0}, 6")
    a(f"s_add_u32 s{sT0}, s{sT0}, {WS_STAMP}")
    for i in range(16): a(f"v_mov_b32 v{16+i}, s{80+i}")
    a("v_mov_b32 v0, 0")
    a("s_mov_b64 exec, 1")
    for i in range(4):
        a(f"buffer_store_dwordx4 {vr(16+4*i,4)}, v0, {sr(R_WS,4)}, s{sT0} offen offset:{16*i}")
lab("L_exit")
a("s_endpgm")

hdr = open("cdna_kernels/" + NAME + ".s.ref").read().split("; Override launch")[0]
src = hdr + f"; @launch grid=(256,1,1) block=(512,1,1) lds={LDS_BYTES}\n" + f""".amdgcn_target "amdgcn-amd-amdhsa--gfx950"
.text
.globl {NAME}_kernel
.p2align 8
.type {NAME}_kernel,@function
{NAME}_kernel:
""" + "\n".join(x for n in ("P", "AL", "HQ", "Z", "A", "H") for x in SECS[n]) + f"""
.section .rodata,"a"
.p2align 6
.amdhsa_kernel {NAME}_kernel
  .amdhsa_next_free_vgpr 256
  .amdhsa_next_free_sgpr 102
  .amdhsa_accum_offset 256
  .amdhsa_group_segment_fixed_size 0
  .amdhsa_kernarg_size 136
  .amdhsa_user_sgpr_count 2
  .amdhsa_user_sgpr_kernarg_segment_ptr 1
  .amdhsa_system_sgpr_workgroup_id_x 1
.end_amdhsa_kernel
"""
open(OUT, "w").write(src)
```

```python
import sys, math, struct
NAME = "concat_heads__grouped_kv_mqa__ssm_conv_s5__prompt"
STAMPS = "--stamps" in sys.argv
OPT = dict(a.lstrip("-").split("=") for a in sys.argv[1:] if a.startswith("--") and "=" in a)
OUT = [a for a in sys.argv[1:] if not a.startswith("--")][0]
OUTFL = OPT.get("outfl", "nt").replace(",", " ")
if OUTFL: OUTFL = " " + OUTFL
YFL = OPT.get("yfl", "nt").replace(",", " ")
if YFL: YFL = " " + YFL

def f32(x): return "0x%08x" % struct.unpack("<I", struct.pack("<f", x))[0]

FSH = int(OPT.get('fsh', 6))
WS_O2 = 0x300000
C_HA = 48
WS_DUMMY = 0x800
WS_FKV = 0x1000
WS_FH  = 0x20000
WS_FO  = 0x80000
WS_KV  = 0x40000
WS_ST  = 0x60000
WS_O   = 0x100000
WS_H   = 0x400000
WS_SLOW = 0x800000
WS_STAMP = 15 << 20
WS_SIZE = 16 << 20
L_XA, L_WQ, L_KVP, L_WKV = 0, 65536, 131072, 140288
L_PART, L_R1, L_SCR, L_ES, L_QF, L_PROG, L_CNT = 0, 73728, 140288, 148480, 150528, 158720, 159744
L_MAX = 159808
L_CS = 160832

LDS_BYTES = 163840
PSTRIDE = 9216
RSTR = 1040
POLL_LIMIT = 400000
C_A1, C_H1, C_H2, C_A3, C_A4, C_GA, C_GH, C_TAG, C_H3, C_S, C_H0, C_DONE = 0, 4, 8, 12, 16, 20, 24, 28, 32, 36, 40, 44

SECS = {}
class _L:
    cur = None
    def append(self, x): SECS[_L.cur].append(x)
lines = _L()
def sec(n):
    SECS.setdefault(n, []); _L.cur = n
sec("P")
def a(s): lines.append("    " + s)
def lab(s): lines.append(s + ":")
def cm(s): lines.append("    ; " + s)
_uid = [0]
def uid(p):
    _uid[0] += 1
    return f"L_{p}{_uid[0]}"
def vr(b, n): return f"v[{b}:{b+n-1}]"
def sr(b, n): return f"s[{b}:{b+n-1}]"

sW, sTAG, sRB, sG, sC, sPB = 3, 4, 5, 6, 7, 8
sT0, sT1, sT2, sT3, sT4, sCNT = 9, 10, 11, 12, 13, 14
sWV = 15
P_AX, P_WQ, P_WK, P_WV, P_WO, P_BX, P_LRE, P_LIM = 16, 18, 20, 22, 24, 26, 28, 30
P_BRE, P_BIM, P_CRE, P_CIM, P_LDT, P_DSK, P_OUT, P_DBG = 32, 34, 36, 38, 40, 42, 44, 46
P_WS = 48
sT5, sT6 = 50, 51
R_WS, R_A, R_B, R_C = 52, 56, 60, 64
sM = 68
sGRP, sKIND, sSTEP, sSYNC = 70, 71, 72, 73
sRET = 74
sST = 76
sLO, sHI = 78, 79
sROT = sSTEP
sF1, sF2 = 0, 1
sYG, sCG, sPC = 96, 97, 98
sGY, sYY = 100, 101
YM = int(OPT.get('ymap', 0))
sMODE = sGRP
C_MODE = C_DONE
LFL = OPT.get('lfl', '').replace(',', ' ')
if LFL: LFL = ' ' + LFL

def srd(dst, ptr, nbytes):
    a(f"s_mov_b32 s{dst}, s{ptr}")
    a(f"s_and_b32 s{dst+1}, s{ptr+1}, 0xffff")
    a(f"s_mov_b32 s{dst+2}, {nbytes}")
    a(f"s_mov_b32 s{dst+3}, 0x20000")

PROBE = OPT.get("probe")
ROLE = ["?"]
if PROBE:
    PROBE = PROBE.split(","); STAMPS = True
def stamp(i, ins="s_memrealtime"):
    if PROBE and not (ins == "s_memrealtime" and (ROLE[0] in (PROBE[0], "E")) and str(i) in PROBE[1:]): return
    if OPT.get("dbg") == "steps" and ROLE[0] == "A" and i < 10: return
    if OPT.get("sel") and ROLE[0] != "E" and f"{ROLE[0]}{i}" not in OPT["sel"].split(","): return
    if STAMPS:
        a(f"{ins} s[{sST}:{sST+1}]")
        a("s_waitcnt lgkmcnt(0)")
        a(f"s_mov_b32 s{80+i}, s{sST}")
def cstamp(i): stamp(i, "s_memtime")
DBG = OPT.get("dbg", "")
def dstamp(name, i):
    if DBG == name: stamp(i)
_stamp0 = stamp


def dma(voff, srdr, soff, imm=0):
    o = f" offset:{imm}" if imm else ""
    a(f"buffer_load_dwordx4 v{voff}, {sr(srdr,4)}, {soff} offen{o} lds")

PACE = int(OPT.get("pace", 24))
def pace():
    n = PACE
    while n > 0:
        a(f"s_nop {min(n, 16) - 1}"); n -= 16

def poll(voff, soff, vt, sleep=0, fl=" sc1"):
    L, D = uid("poll"), uid("pdone")
    a(f"s_mov_b32 s{sCNT}, {POLL_LIMIT}")
    lab(L)
    a(f"buffer_load_dword v{vt}, v{voff}, {sr(R_WS,4)}, {soff} offen{fl}")
    a("s_waitcnt vmcnt(0)")
    a(f"v_cmp_ne_u32 vcc, s{sTAG}, v{vt}")
    a(f"s_cbranch_vccz {D}")
    if sleep: a(f"s_sleep {sleep}")
    a(f"s_sub_u32 s{sCNT}, s{sCNT}, 1")
    a(f"s_cbranch_scc0 {L}")
    lab(D)

def setflag(vt0, vt1, soff):
    a(f"v_mov_b32 v{vt0}, 0")
    a(f"v_mov_b32 v{vt1}, s{sTAG}")
    a("s_mov_b64 exec, 1")
    a(f"buffer_store_dword v{vt1}, v{vt0}, {sr(R_WS,4)}, s{soff} offen sc1")
    a("s_mov_b64 exec, -1")

LOC = OPT.get("loc", "t")
KIND = ["t"]
assert not (YM and "h" in LOC)
def st2(instrs):
    if KIND[0] not in LOC:
        for x in instrs: a(x.replace("@", " sc1"))
        return
    L, E = uid("sl"), uid("se")
    a(f"s_cmp_eq_u32 s{sMODE}, 1")
    a(f"s_cbranch_scc1 {L}")
    for x in instrs: a(x.replace("@", " sc1"))
    a(f"s_branch {E}")
    lab(L)
    for x in instrs: a(x.replace("@", LFL))
    lab(E)

def spf(spec):
    for ptr, lines, first, cnt in spec:
        a(f"s_lshl2_add_u32 s{sRET}, s2, s{sWV}")
        a(f"s_mul_i32 s{sRET}, s{sRET}, {128*lines}")
        a(f"s_add_u32 s{sRET}, s{sRET}, s{ptr}")
        a(f"s_addc_u32 s{sRET+1}, s{ptr+1}, 0")
        for i in range(first, first + cnt):
            a(f"s_load_dword s{sST}, s[{sRET}:{sRET+1}], {128*i}")

def signal(vcnt, vone, off):
    a("s_mov_b64 exec, 1")
    a(f"ds_add_u32 v{vcnt}, v{vone} offset:{off}")
    a("s_mov_b64 exec, -1")

HSL = int(OPT.get("hsl", 0))
def waitc(vcnt, off, target, vt, sleep=0):
    L = uid("wc")
    if ROLE[0] == "H" and _L.cur == "H": sleep = max(sleep, HSL)
    if sleep:
        L2 = uid("wd")
        a(f"s_branch {L2}")
    lab(L)
    if sleep:
        a(f"s_sleep {sleep}")
        lab(L2)
    a(f"ds_read_b32 v{vt}, v{vcnt} offset:{off}")
    a("s_waitcnt lgkmcnt(0)")
    a(f"v_cmp_gt_u32 vcc, {target}, v{vt}")
    a(f"s_cbranch_vccnz {L}")

def gsync(vcnt, vone, vt, off):
    a("s_waitcnt lgkmcnt(0)")
    a(f"s_add_u32 s{sSYNC}, s{sSYNC}, 4")
    signal(vcnt, vone, off)
    waitc(vcnt, off, f"s{sSYNC}", vt)

def mfma32(d, x, y, c=None):
    c = vr(d, 16) if c is None else c
    a(f"v_mfma_f32_32x32x16_bf16 {vr(d,16)}, {vr(x,4)}, {vr(y,4)}, {c}")

def cmul_add(dst, L, g, u):
    a(f"v_pk_fma_f32 {vr(dst,2)}, {vr(L,2)}, {vr(g,2)}, {vr(u,2)} op_sel:[0,0,0] op_sel_hi:[0,1,1]")
    a(f"v_pk_fma_f32 {vr(dst,2)}, {vr(L,2)}, {vr(g,2)}, {vr(dst,2)} op_sel:[1,1,0] op_sel_hi:[1,0,1] neg_lo:[1,0,0]")

def cmul(dst, x, y):
    a(f"v_pk_mul_f32 {vr(dst,2)}, {vr(x,2)}, {vr(y,2)} op_sel:[0,0] op_sel_hi:[0,1]")
    a(f"v_pk_fma_f32 {vr(dst,2)}, {vr(x,2)}, {vr(y,2)}, {vr(dst,2)} op_sel:[1,1,0] op_sel_hi:[1,0,1] neg_lo:[1,0,0]")

def csq(dst, src, t):
    a(f"v_mul_f32 v{t}, v{src+1}, v{src+1}")
    a(f"v_add_f32 v{t+1}, v{src}, v{src}")
    a(f"v_fma_f32 v{dst}, v{src}, v{src}, -v{t}")
    a(f"v_mul_f32 v{dst+1}, v{t+1}, v{src+1}")

def xvoffsets(XO, t0):
    a(f"v_lshrrev_b32 v{t0}, 4, v0")
    a(f"v_and_b32 v{t0+1}, 15, v0")
    for i in range(4):
        a(f"v_add_u32 v{t0+2}, {4*i}, v{t0}")
        a(f"v_xor_b32 v{t0+3}, v{t0+1}, v{t0+2}")
        a(f"v_lshlrev_b32 v{t0+3}, 4, v{t0+3}")
        a(f"v_lshl_add_u32 v{XO+i}, v{t0+2}, 10, v{t0+3}")

def wtr_addr(dst, hhshift, base, t):
    a(f"v_bfe_u32 v{t}, v0, 2, 2")
    a(f"v_bfe_u32 v{t+1}, v0, 4, 1")
    a(f"v_bfe_u32 v{t+2}, v0, 1, 1")
    a(f"v_lshl_add_u32 v{t+1}, v{t+1}, 1, v{t+2}")
    a(f"s_and_b32 s{sT0}, s{sWV}, 1")
    a(f"s_lshl_b32 s{sT0}, s{sT0}, 2")
    a(f"v_add_u32 v{t+1}, s{sT0}, v{t+1}")
    a(f"v_bfe_u32 v{t+2}, v0, 3, 1")
    a(f"v_lshlrev_b32 v{t+2}, 2, v{t+2}")
    a(f"v_xor_b32 v{t+1}, v{t+1}, v{t+2}")
    a(f"v_lshlrev_b32 v{t+1}, 4, v{t+1}")
    a(f"v_lshl_add_u32 v{t+1}, v{t}, 7, v{t+1}")
    a(f"v_and_b32 v{t+2}, 1, v0")
    a(f"v_lshl_add_u32 v{t+1}, v{t+2}, 3, v{t+1}")
    a(f"v_lshrrev_b32 v{t+2}, 5, v0")
    a(f"v_lshl_add_u32 v{t+1}, v{t+2}, {hhshift}, v{t+1}")
    a(f"v_add_u32 v{dst}, {base}, v{t+1}")

def o_offsets():
    a(f"s_and_b32 s{sT0}, s{sSTEP}, 1")
    a(f"s_lshl_b32 s{sT1}, s{sRB}, 1")
    a(f"s_add_u32 s{sT0}, s{sT0}, s{sT1}")
    a(f"s_lshl_b32 s{sT0}, s{sT0}, 2")
    a(f"s_lshr_b32 s{sT1}, s{sSTEP}, 1")
    a(f"s_add_u32 s{sT0}, s{sT0}, s{sT1}")
    a(f"s_lshl_b32 s{sT0}, s{sT0}, 3")
    a(f"s_add_u32 s{sT0}, s{sT0}, s{sG}")
    a(f"s_lshl_b32 s{sT1}, s{sT0}, 10")
    a(f"s_add_u32 s{sT1}, s{sT1}, {WS_O}")
    a(f"s_lshl_b32 s{sT0}, s{sT0}, 7")
    a(f"s_add_u32 s{sT0}, s{sT0}, {WS_FO}")

def sum_check(b):
    a(f"v_pk_add_f32 {vr(b,2)}, {vr(b,2)}, {vr(b+2,2)}")
    a(f"v_add_f32 v{b}, v{b}, v{b+1}")
    a(f"v_cmp_nle_f32 vcc, s{sLO}, v{b}")
    a(f"v_cmp_nge_f32 s[{sM}:{sM+1}], s{sHI}, v{b}")
    a(f"s_or_b64 vcc, vcc, s[{sM}:{sM+1}]")

def reduce_math(b, vl16, flag=True, tagged=False, b1=None, bs=None):
    b1 = b + 16 if b1 is None else b1
    bs = b + 32 if bs is None else bs
    a(f"v_rcp_f32 v{bs+2}, v{bs}")
    for j in range(4):
        a(f"v_pk_add_f32 {vr(b+2*j,2)}, {vr(b+2*j,2)}, {vr(b+8+2*j,2)}")
    for j in range(4):
        a(f"v_pk_add_f32 {vr(b1+2*j,2)}, {vr(b1+2*j,2)}, {vr(b1+8+2*j,2)}")
    for j in range(4):
        a(f"v_pk_add_f32 {vr(b+2*j,2)}, {vr(b+2*j,2)}, {vr(b1+2*j,2)}")
    for j in range(4):
        a(f"v_pk_mul_f32 {vr(b+2*j,2)}, {vr(b+2*j,2)}, {vr(bs+2,2)} op_sel_hi:[1,0]")
    for j in range(4):
        a(f"v_cvt_pk_bf16_f32 v{b+8+j}, v{b+2*j}, v{b+2*j+1}")
    if not flag:
        st2([f"buffer_store_dwordx4 {vr(b+8,4)}, v{vl16}, {sr(R_WS,4)}, s{sT1} offen@"])
        return
    a(f"buffer_store_dwordx4 {vr(b+8,4)}, v{vl16}, {sr(R_WS,4)}, s{sT1} offen sc1")
    a("s_waitcnt vmcnt(0)")
    setflag(b, b + 1, sT0)

STG3 = 1
LOG2E = 1.4426950408889634
L_LO, L_HI = 2.0 ** -60, 2.0 ** 60


class Cnt:
    def __init__(s): s.q = []
    def issue(s, tag, n=1): s.q += [tag] * n
    def need(s, tag):
        if tag not in s.q: return None
        i = len(s.q) - 1 - s.q[::-1].index(tag)
        n = len(s.q) - 1 - i
        s.q = s.q[i + 1:]
        return n
def waits(vm=None, lg=None):
    p = []
    if vm is not None: p.append(f"vmcnt({min(vm,63)})")
    if lg is not None: p.append(f"lgkmcnt({min(lg,15)})")
    if p: a("s_waitcnt " + " ".join(p))

a("s_cmp_ge_u32 s2, 256")
a("s_cbranch_scc1 L_exit")
a(f"s_load_dwordx16 s[16:31], s[0:1], 0")
a(f"s_load_dwordx16 s[32:47], s[0:1], 64")
a(f"s_load_dwordx2 s[48:49], s[0:1], 128")
EPF = [int(x) for x in OPT.get("epf", "").split(",") if x]
if EPF:
    cm("request the first code lines at once instead of one miss after the other")
    a(f"s_getpc_b64 s[{sM}:{sM+1}]")
    a(f"v_subrev_u32 v2, {EPF[0]}, v0")
    a(f"v_cmp_gt_u32 vcc, {EPF[1]}, v2")
    a("v_lshlrev_b32 v2, 7, v2")
    a(f"s_and_saveexec_b64 s[{sRET}:{sRET+1}], vcc")
    a("s_cbranch_execz L_noepf")
    a(f"global_load_dword v31, v2, s[{sM}:{sM+1}] offset:128")
    lab("L_noepf")
    a("s_mov_b64 exec, -1")
if STAMPS:
    for i in range(16): a(f"s_mov_b32 s{80+i}, 0")
    a("s_memrealtime s[80:81]")
    a("s_memtime s[92:93]")
a("v_lshrrev_b32 v1, 6, v0")
a("v_and_b32 v0, 63, v0")
a(f"v_readfirstlane_b32 s{sW}, v1")
a("v_lshlrev_b32 v6, 4, v0")
a("v_lshrrev_b32 v12, 4, v0")
a("v_and_b32 v13, 15, v0")
a(f"s_and_b32 s{sT0}, s2, 7")
a(f"s_lshr_b32 s{sT1}, s2, 3")
a(f"s_and_b32 s{sT2}, s{sT1}, 3")
a(f"s_lshl_b32 s{sRB}, s{sT0}, 2")
a(f"s_add_u32 s{sRB}, s{sRB}, s{sT2}")
a(f"s_lshr_b32 s{sG}, s{sT1}, 2")
a(f"s_and_b32 s{sGRP}, s{sG}, 3")
a(f"s_and_b32 s{sWV}, s{sW}, 3")
a(f"s_add_u32 s{sROT}, s{sG}, s{sRB}" if OPT.get("rot", "0") == "1" else f"s_mov_b32 s{sROT}, 0")
a(f"s_mov_b32 s{R_A+2}, {2048*1024}")
a(f"s_mov_b32 s{R_A+3}, 0x20000")
a(f"s_mov_b32 s{R_B+3}, 0x20000")
a(f"s_cmp_ge_u32 s{sW}, 4")
a("s_cbranch_scc1 L_attn")

vL, vL16_, vL8, vCO = 20, 22, 24, 26
vCNT, vONE, vWT, vRB, vL4, vWO = 2, 3, 4, 5, 6, 7
a("s_setprio 3")
for i in range(4):
    a(f"v_add_u32 v14, {4*i}, v12")
    a(f"v_xor_b32 v15, v13, v14")
    a(f"v_lshlrev_b32 v15, 4, v15")
    a(f"v_lshl_add_u32 v{16+i}, v14, 10, v15")
if OPT.get("map", "0" if "h" in LOC else "1") == "0":
    a(f"s_and_b32 s{sT2}, s{sT1}, 1")
    a(f"s_lshl_b32 s{sC}, s{sT0}, 1")
    a(f"s_add_u32 s{sC}, s{sC}, s{sT2}")
    a(f"s_lshr_b32 s{sPB}, s{sT1}, 1")
else:
    a(f"s_and_b32 s{sC}, s{sT0}, 6")
    a(f"s_lshl_b32 s{sC}, s{sC}, 1")
    a(f"s_add_u32 s{sC}, s{sC}, s{sT2}")
    a(f"s_and_b32 s{sPB}, s{sT0}, 1")
    a(f"s_lshl_b32 s{sPB}, s{sPB}, 3")
    a(f"s_add_u32 s{sPB}, s{sPB}, s{sG}")
a(f"s_lshr_b32 s{sKIND}, s{sG}, 2")
a(f"s_lshl_b32 s{sT3}, s{sPB}, 5")
a("v_and_b32 v38, 31, v0")
a(f"v_add_lshl_u32 v37, v38, s{sT3}, 1")
if YM:
    a(f"s_and_b32 s{sGY}, s{sRB}, 7")
else:
    a(f"s_mov_b32 s{sGY}, s{sG}")
a(f"s_and_b32 s{sT3}, s{sWV}, 1")
a(f"s_lshl1_add_u32 s{sT3}, s{sGY}, s{sT3}")
a(f"s_lshl_b32 s{sT3}, s{sT3}, 5")
a(f"v_add_lshl_u32 v38, v38, s{sT3}, 1")
a(f"s_add_u32 s{sT3}, s{sROT}, s{sWV}")
a(f"s_and_b32 s{sT3}, s{sT3}, 3")
a(f"s_lshl_b32 s{sT0}, s{sRB}, 16")
a(f"s_lshl_b32 s{sT1}, s{sGRP}, 14")
a(f"s_add_u32 s{sT0}, s{sT0}, s{sT1}")
a(f"s_lshl_b32 s{sT1}, s{sT3}, 8")
a(f"s_add_u32 s{sT0}, s{sT0}, s{sT1}")
a(f"s_lshl_b32 s{sT2}, s{sGRP}, 12")
a(f"s_lshl_b32 s{sT1}, s{sWV}, 14")
a(f"s_add_u32 s{sT2}, s{sT2}, s{sT1}")
a(f"s_lshl_b32 s{sT3}, s{sT3}, 12")
a(f"s_lshl_b32 s{sT4}, s{sWV}, 12")
a(f"s_add_u32 s{sT4}, s{sT4}, {L_WKV}")
a(f"s_mov_b32 s{R_B+2}, 16384")
a(f"s_mov_b32 m0, s{sT2}")
a(f"s_cmp_eq_u32 s{sKIND}, 0")
a("s_waitcnt lgkmcnt(0)")
a(f"s_cselect_b32 s{R_B}, s{P_WK}, s{P_WV}")
a(f"s_cselect_b32 s{R_B+1}, s{P_WK+1}, s{P_WV+1}")
a(f"s_mov_b32 s{R_A}, s{P_AX}")
a(f"s_and_b32 s{R_A+1}, s{P_AX+1}, 0xffff")
a(f"s_and_b32 s{R_B+1}, s{R_B+1}, 0xffff")
for i in range(4):
    dma(16 + i, R_A, f"s{sT0}")
    a(f"s_add_u32 m0, s{sT2}, {1024*(i+1)}" if i < 3 else f"s_mov_b32 m0, s{sT4}")
    a("s_nop 0")
for i in range(4):
    dma(6, R_B, f"s{sT3}", imm=1024 * i)
p0, p1, p2, vDSK = 60, 61, 62, 63
a(f"global_load_ushort v{p0}, v37, s[{P_LRE}:{P_LRE+1}]")
a(f"global_load_ushort v{p1}, v37, s[{P_LIM}:{P_LIM+1}]")
a(f"global_load_ushort v{p2}, v37, s[{P_LDT}:{P_LDT+1}]")
a(f"global_load_ushort v{vDSK}, v38, s[{P_DSK}:{P_DSK+1}]")
EP0 = int(OPT.get("ep0", 0))
if EP0:
    a(f"s_cmp_eq_u32 s{sWV}, 0")
    a("s_cbranch_scc0 L_h_noep")
a(f"s_load_dword s{sTAG}, s[{P_WS}:{P_WS+1}], 0")
lab("L_h_noep")
a("s_barrier")

sec("AL")
lab("L_attn"); ROLE[0] = "A"
cm("pull the kernel's code towards this XCD's L2")
a(f"s_getpc_b64 s[{sM}:{sM+1}]")
lab("L_pc")
a(f"s_sub_u32 s{sM}, s{sM}, L_pc - {NAME}_kernel")
a(f"s_subb_u32 s{sM+1}, s{sM+1}, 0")
SPF = int(OPT.get("spf", 0))
if SPF:
    a(f"s_lshl_b32 s{sT3}, s{sWV}, 7")
    a(f"s_add_u32 s{sRET}, s{sM}, s{sT3}")
    a(f"s_addc_u32 s{sRET+1}, s{sM+1}, 0")
    for i in range(SPF):
        a(f"s_load_dword s{sCNT}, s[{sRET}:{sRET+1}], {512*i + 256}")
CSH = int(OPT.get("csh", 32))
NLN = -(-176 // (4 * CSH))
a(f"s_and_b32 s{sT2}, s{sT1}, {CSH-1}")
a(f"s_lshl2_add_u32 s{sT2}, s{sT2}, s{sWV}")
a(f"s_mul_i32 s{sT2}, s{sT2}, {128*NLN}")
CSK = int(OPT.get("csk", 0))
if CSK: a(f"s_add_u32 s{sT2}, s{sT2}, {CSK}")
a("v_lshlrev_b32 v32, 7, v0")
a(f"v_min_u32 v32, {128*(NLN-1)}, v32")
a(f"v_add_u32 v32, s{sT2}, v32")
a(f"v_min_u32 v32, L_slow - {NAME}_kernel, v32")
CPF = int(OPT.get("cpf", 0))
if CPF == 0:
    a(f"s_cmp_ge_u32 s{sT2}, L_slow - {NAME}_kernel")
    a("s_cbranch_scc1 L_nocpf")
    a(f"s_mov_b64 exec, {(1 << NLN) - 1}")
    a(f"global_load_dword v33, v32, s[{sM}:{sM+1}]")
    a("s_mov_b64 exec, -1")
    lab("L_nocpf")
vIDX, vZ, vAD, vAS, vAQ, vPG, vQ = 1, 2, 4, 5, 6, 7, 8
vCA, vONEA = 12, 13
S0, S1, vO, KV = 16, 32, 48, 64
cm("zero sync counters + progress words")
a("v_mov_b32 v2, 0")
a("v_mov_b32 v3, 0")
a("v_mov_b32 v4, 0")
a("v_mov_b32 v5, 0")
a(f"v_add_u32 v7, {L_PROG}, v6")
a("ds_write_b128 v7, v[2:5]")
a("ds_write_b128 v7, v[2:5] offset:1024")
a(f"v_lshl_add_u32 v14, s{sWV}, 2, v12")
a("v_xor_b32 v15, v13, v14")
a("v_lshlrev_b32 v15, 4, v15")
a("v_lshl_add_u32 v16, v14, 10, v15")
def wo_voff(dst, t):
    a(f"v_lshrrev_b32 v{t}, 3, v0")
    a(f"v_and_b32 v{t+1}, 7, v0")
    a(f"v_lshrrev_b32 v{t+2}, 2, v0")
    a(f"v_and_b32 v{t+2}, 4, v{t+2}")
    a(f"v_xor_b32 v{t+1}, v{t+1}, v{t+2}")
    a(f"v_lshlrev_b32 v{t+1}, 4, v{t+1}")
    a(f"v_lshl_add_u32 v{dst}, v{t}, 10, v{t+1}")
wo_voff(17, 20)
def wslice_setup():
    a(f"s_lshl_b32 s{sT0}, s{sG}, 7")
    a(f"s_lshl_b32 s{sT1}, s{sWV}, 15")
    a(f"s_add_u32 s{sT0}, s{sT0}, s{sT1}")
    a(f"s_lshl_b32 s{sT1}, s{sWV}, 12")
wslice_setup()
a(f"s_lshl_b32 s{sT4}, s{sRB}, 16")
a(f"s_lshl_b32 s{sT5}, s{sWV}, 10")
for m in range(1, 4):
    a(f"s_add_u32 s{sT2}, s{sGRP}, {m}")
    a(f"s_and_b32 s{sT2}, s{sT2}, 3")
    a(f"s_lshl_b32 s{sT3}, s{sT2}, 14")
    a(f"s_add_u32 s{95+m}, s{sT3}, s{sT4}")
    a(f"s_lshl_b32 s{sT3}, s{sT2}, 12")
    a(f"s_add_u32 s{98+m}, s{sT3}, s{sT5}")
a(f"s_mov_b32 s{R_B+2}, {512*1024}")
a(f"v_mov_b32 v{vCA}, {L_CNT}")
a(f"v_mov_b32 v{vONEA}, 1")
a("s_waitcnt lgkmcnt(0)")
a(f"s_mov_b32 s{R_A}, s{P_AX}")
a(f"s_and_b32 s{R_A+1}, s{P_AX+1}, 0xffff")
a(f"s_mov_b32 s{R_B}, s{P_WQ}")
a(f"s_and_b32 s{R_B+1}, s{P_WQ+1}, 0xffff")
if STAMPS:
    a("s_mov_b32 s81, 0")
    a("s_mov_b32 s93, 0")
a("s_barrier")
def qops(sl):
    a(f"s_add_u32 s{sT3}, s{sROT}, {sl}")
    a(f"s_and_b32 s{sT3}, s{sT3}, 3")
    a(f"s_lshl_b32 s{sT4}, s{sT3}, 8")
    a(f"s_lshl_b32 s{sT3}, s{sT3}, 17")
    a(f"s_add_u32 s{sT3}, s{sT3}, s{sT0}")
    for m in range(1, 4):
        a(f"s_add_u32 m0, s{98+m}, {L_XA + 16384*sl}")
        a(f"s_add_u32 s{sT2}, s{95+m}, s{sT4}")
        dma(16, R_A, f"s{sT2}")
    for i in range(4):
        a(f"s_add_u32 m0, s{sT1}, {L_WQ + 16384*sl + 1024*i}")
        a(f"s_add_u32 s{sT2}, s{sT3}, {8192*i}")
        dma(17, R_B, f"s{sT2}")
if CPF == 1: a(f"global_load_dword v33, v32, s[{sM}:{sM+1}]")
QW = int(OPT.get("qw", 0))
for sl in range(QW): qops(sl)
PFW, PFU = int(OPT.get("pfw", 1)), OPT.get("pfu", "")
if PFW:
    cm("warm L2 with this workgroup's quarter of its Wq slice")
    a(f"s_and_b32 s{sT2}, s{sRB}, 3")
    a(f"s_lshl2_add_u32 s{sT2}, s{sT2}, s{sWV}")
    a(f"s_lshl_b32 s{sT2}, s{sT2}, 15")
    a(f"s_lshl_b32 s{sT3}, s{sG}, 7")
    a(f"s_add_u32 s{sT2}, s{sT2}, s{sT3}")
    a("v_and_b32 v20, 31, v0")
    a("v_lshlrev_b32 v20, 10, v20")
    a("s_mov_b32 exec_hi, 0")
    a(f"buffer_load_dword v34, v20, {sr(R_B,4)}, s{sT2} offen")
    a("s_mov_b64 exec, -1")
def pfu(which):
    cm("pull this wave's 1/1024 share of later inputs out of HBM")
    a(f"s_lshl2_add_u32 s{sT2}, s2, s{sWV}")
    a("v_lshlrev_b32 v26, 7, v0")
    for i, ch in enumerate(which):
        ptr, lines = {"x": (P_BX, 16), "r": (P_BRE, 4), "i": (P_BIM, 4), "c": (P_CRE, 4), "d": (P_CIM, 4), "o": (P_WO, 4)}[ch]
        a(f"s_mul_i32 s{sT3}, s{sT2}, {128*lines}")
        a(f"v_add_u32 v21, s{sT3}, v26")
        a(f"s_mov_b64 exec, {(1 << lines) - 1}")
        a(f"global_load_dword v{35+i}, v21, s[{ptr}:{ptr+1}]")
        a("s_mov_b64 exec, -1")
if PFU: pfu(PFU)
srd(R_WS, P_WS, WS_SIZE)
a(f"s_mov_b32 s{sSYNC}, 0")
a(f"s_mov_b32 s{sLO}, {f32(L_LO)}")
a(f"s_mov_b32 s{sHI}, {f32(L_HI)}")
cm("prefill V regs: rows 16 and 20 = ones, other rows >=16 zero")
a("v_and_b32 v24, 27, v0")
a("v_cmp_eq_u32 vcc, 16, v24")
a("v_mov_b32 v25, 0x3f803f80")
a("s_nop 0")
a("v_cndmask_b32 v24, 0, v25, vcc")
a("v_mov_b32 v25, v24")
for t in range(16):
    for j in range(4):
        a(f"v_mov_b64 {vr(KV+12*t+4+2*j,2)}, v[24:25]")
a("v_mov_b32 v14, v6")
a("v_lshrrev_b32 v24, 5, v0")
a("v_and_b32 v25, 15, v0")
a("v_lshl_add_u32 v15, v24, 4, v25")
a("v_lshlrev_b32 v15, 4, v15")
a(f"v_mov_b32 v{vIDX}, 0xdddddddd")
a(f"s_lshl_b32 s{sT2}, s{sWV}, 11")
a(f"v_add_u32 v{vAD}, s{sT2}, v14")
a(f"s_lshl_b32 s{sT2}, s{sWV}, 2")
a(f"s_add_u32 s{sT3}, s{sT2}, {L_PART + 8192}")
a(f"v_add_u32 v{vAS}, s{sT3}, v14")
a(f"s_add_u32 s{sT3}, s{sT2}, {L_PROG}")
a(f"v_add_u32 v{vPG}, s{sT3}, v14")
a(f"v_add_u32 v{vAQ}, {L_QF}, v14")
a(f"v_lshlrev_b32 v23, {FSH}, v0")
a("s_barrier")
a(f"ds_read_b32 v20, v{vCA} offset:{C_TAG}")
B0 = int(OPT.get("b0", 0))
for sl in range(QW, 4):
    qops(sl)
    if sl + 1 == B0:
        a(f"s_waitcnt vmcnt({7*(B0-1)})")
        a("s_barrier")
PFL = OPT.get("pfl", "")
if PFL: pfu(PFL)
NL = len(PFL)
a(f"s_waitcnt vmcnt({14+NL}) lgkmcnt(0)")
a("s_barrier")
a(f"v_readfirstlane_b32 s{sTAG}, v20")
cm("scalars for the tail")
sKV = sT0
a(f"s_sub_u32 s{sSTEP}, 7, s{sWV}")
o_offsets()
a(f"s_mov_b32 s{sF1}, s{sT0}")
a(f"s_mov_b32 s{sF2}, s{sT1}")
a(f"s_mul_i32 s{sT2}, s{sSTEP}, {PSTRIDE}")
a(f"s_lshr_b32 s{sT4}, s{sWV}, 1")
a(f"s_lshl1_add_u32 s{sYG}, s{sRB}, s{sT4}")
a(f"s_lshl_b32 s{sCG}, s{sYG}, 12")
a(f"s_add_u32 s{sCG}, s{sCG}, {WS_FO + 16*128}")
srd(R_B, P_OUT, 2048 * 4096)
a(f"s_and_b32 s{sT0}, s{sWV}, 1")
a(f"s_lshl1_add_u32 s{sT0}, s{sG}, s{sT0}")
a(f"s_lshl_b32 s{sT0}, s{sT0}, 7")
a(f"s_lshl_b32 s{sT3}, s{sYG}, 17")
a(f"s_add_u32 s{sT3}, s{sT3}, s{sT0}")
a(f"s_lshl_b32 s{sT6}, s{sYG}, 15")
a(f"s_add_u32 s{sT6}, s{sT6}, {WS_O + 16384}")
a(f"s_mul_i32 s{sT4}, s{sWV}, {PSTRIDE}")
a(f"s_lshl_b32 s{sT5}, s{sWV}, 9")
a(f"s_add_u32 s{sT5}, s{sT5}, {L_CS}")
a(f"s_lshl_b32 s{sT0}, s{sWV}, {FSH+6}")
a(f"s_add_u32 s{sT0}, s{sT0}, {WS_FKV}")
stamp(1)
SU = OPT.get("su", "")
if "a" in SU: spf([(P_BX, 16, 0, 14)])
if "b" in SU: spf([(P_BRE, 4, 0, 4), (P_BIM, 4, 0, 4), (P_BX, 16, 0, 6)])
a(f"s_waitcnt vmcnt({7+NL})")
a("s_barrier")
PE = int(OPT.get("pe", 1))
if PE == 2:
    a(f"buffer_load_dword v22, v23, {sr(R_WS,4)}, s{sT0} offen sc1")
    a(f"s_waitcnt vmcnt(1)")
else:
    a(f"s_waitcnt vmcnt({NL})")
if PE == 1: a(f"buffer_load_dword v22, v23, {sr(R_WS,4)}, s{sT0} offen sc1")
a("s_barrier")
a("s_branch L_a2")
sec("A")
lab("L_a2")
stamp(2)
for _ in range(int(OPT.get("pd", 0))): a("s_sleep 2")
a(f"s_mov_b32 s{sCNT}, {POLL_LIMIT}")
if PE: a("s_branch L_a_kvq")
lab("L_a_kvp")
a(f"buffer_load_dword v22, v23, {sr(R_WS,4)}, s{sT0} offen sc1")
lab("L_a_kvq")
a("s_waitcnt vmcnt(0)")
a(f"v_xor_b32 v22, s{sTAG}, v22")
a("v_cmp_lt_u32 vcc, 15, v22")
a("s_cbranch_vccz L_a_kvok")
a(f"s_sub_u32 s{sCNT}, s{sCNT}, 1")
a("s_cbranch_scc0 L_a_kvp")
lab("L_a_kvok")
stamp(4)
a(f"s_lshl_b32 s{sT0}, s{sWV}, 15")
a(f"s_add_u32 s{sT0}, s{sT0}, {WS_KV}")
a(f"s_mov_b32 s{sM}, 0xffff")
a(f"s_mov_b32 s{sM+1}, 0xffff")
def kvload(tp):
    for t in (2*tp, 2*tp+1):
        a(f"buffer_load_dwordx4 {vr(KV+12*t,4)}, v14, {sr(R_WS,4)}, s{sT0} offen offset:{2048*(t&1)} sc1")
    a(f"s_mov_b64 exec, s[{sM}:{sM+1}]")
    for t in (2*tp, 2*tp+1):
        a(f"buffer_load_dwordx4 {vr(KV+12*t+4,4)}, v15, {sr(R_WS,4)}, s{sT0} offen offset:{2048*(t&1)+1024} sc1")
        a(f"buffer_load_dwordx4 {vr(KV+12*t+8,4)}, v15, {sr(R_WS,4)}, s{sT0} offen offset:{2048*(t&1)+1536} sc1")
    a("s_mov_b64 exec, -1")
    if tp < 7: a(f"s_add_u32 s{sT0}, s{sT0}, 4096")
NINIT = int(OPT.get("ninit", 3))
A4POS = int(OPT.get("a4", 8))
ABPOS = int(OPT.get("ab", 0))
NB = int(OPT.get("nb", NINIT))
for tp in range(NB):
    kvload(tp)
cm("do all 32 workgroups of this id class share this XCD?")
a(f"s_bfe_u32 s{sT1}, s2, 0x20001")
a(f"s_cmp_eq_u32 s{sT1}, s{sWV}")
a("s_cbranch_scc0 L_a_nomode")
a(f"s_getreg_b32 s{sT1}, hwreg(HW_REG_XCC_ID, 0, 4)")
a(f"v_cmp_ne_u32 vcc, s{sT1}, v22")
a("s_bitcmp1_b32 s2, 0")
a(f"s_cselect_b32 s{sT1}, vcc_hi, vcc_lo")
a(f"s_cmp_eq_u32 s{sT1}, 0")
a(f"s_cselect_b32 s{sT1}, {2 if OPT.get('nolocal') else 1}, 2")
a(f"v_mov_b32 v21, s{sT1}")
a(f"ds_write_b32 v{vCA}, v21 offset:{C_MODE}")
lab("L_a_nomode")
assert NINIT < 8
stamp(5)
a("s_barrier")
a("s_setprio 1")
a(f"ds_read_b128 {vr(vQ,4)}, v{vAQ}")
a(f"v_add_u32 v{vAQ}, 1024, v{vAQ}")
for tp in range(NB, NINIT): kvload(tp)
a(f"s_waitcnt vmcnt({6*(NINIT-1)+4}) lgkmcnt(0)")
stamp(6)
cstamp(10)

K_ = lambda t: KV + 12 * t
V1 = lambda t: KV + 12 * t + 4
V2 = lambda t: KV + 12 * t + 8
def ex(X, i): a(f"v_exp_f32 v{X+i}, v{X+i}")
def exs(X, lo, hi):
    for i in range(lo, hi): ex(X, i)
def smf(v, p): a(f"v_smfmac_f32_32x32x32_bf16 {vr(vO,16)}, {vr(v,4)}, {vr(p,8)}, v{vIDX}")
def qk(d, t): mfma32(d, K_(t), vQ, "0")
def zeroO(): a(f"v_mfma_f32_32x32x8_bf16 {vr(vO,16)}, {vr(vZ,2)}, {vr(vZ,2)}, 0")
def dump():
    a(f"ds_write_b128 v{vAD}, {vr(vO,4)}")
    a(f"ds_write_b128 v{vAD}, {vr(vO+4,4)} offset:1024")
    a(f"ds_write_b32 v{vAS}, v{vO+8}")
    a(f"ds_write_b32 v{vPG}, v{vAS}")

KVS = int(OPT.get('kvs', 2))
QPF = int(OPT.get('qpf', 0))
PQ, PS1 = [int(x) for x in OPT.get('pos', '7,12').split(',')]
def tiles_1_15(first):
    issued = [NINIT + 1 if first else 8]
    def preqk(tn):
        if first and tn % 2 == 0 and tn < 16:
            a(f"s_waitcnt vmcnt({6*(min(issued[0],8) - 1 - tn//2)})")
    def more(t):
        if first and t % KVS == 0 and issued[0] < 8:
            kvload(issued[0]); issued[0] += 1
            if issued[0] in (A4POS, ABPOS): signal(vCA, vONEA, C_A4)
    X, Y = S1, S0
    smf(V1(0), Y); exs(X, 0, 3); smf(V2(0), Y + 8); exs(X, 3, 6); preqk(2); qk(Y, 2); exs(X, 6, 10); smf(V1(1), X); more(1); exs(X, 10, 16)
    a(f"s_add_u32 s{sSTEP}, s{sSTEP}, 1")
    for t in range(2, 16):
        X, Y = (S0, S1) if t % 2 == 0 else (S1, S0)
        if t == 15 and QPF:
            a("s_waitcnt lgkmcnt(0)")
            a(f"v_mov_b64 {vr(vQ,2)}, v[12:13]")
            a(f"v_mov_b64 {vr(vQ+2,2)}, v[14:15]")
        exs(X, 0, 2); smf(V2(t - 1), Y + 8); exs(X, 2, PQ)
        if t == 15:
            if not QPF: a("s_waitcnt lgkmcnt(0)")
            if DBG == "steps":
                a(f"s_mov_b32 m0, s{sSTEP}")
                a("s_nop 0")
                a(f"s_movreld_b32 s80, s{sST}")
            qk(Y, 0)
        else:
            preqk(t + 1)
            qk(Y, t + 1)
        if t == 14 and DBG == "steps": a(f"s_memtime s[{sST}:{sST+1}]")
        if (t == 14 and not QPF) or (QPF and first and t == 11):
            a(f"ds_read_b128 {vr(12 if QPF else vQ,4)}, v{vAQ}")
            a(f"v_add_u32 v{vAQ}, 1024, v{vAQ}")
        exs(X, PQ, PS1); smf(V1(t), X); more(t); exs(X, PS1, 16)

qk(S0, 0)
zeroO()
qk(S1, 1)
a(f"s_mov_b32 s{sSTEP}, 0")
if NINIT < 8:
    kvload(NINIT)
    if NINIT + 1 in (A4POS, ABPOS): signal(vCA, vONEA, C_A4)
else:
    a("s_nop 8")
exs(S0, 0, 16)
a("s_nop 0")
a(f"s_waitcnt vmcnt({6*NINIT})")
tiles_1_15(True)
a("s_nop 0")
a("s_branch L_a_bound")
lines.append(".p2align 6")
lab("L_a_loop")
tiles_1_15(False)
a(f"s_cmp_eq_u32 s{sSTEP}, 8")
a("s_cbranch_scc1 L_a_fin")
lab("L_a_bound")
X, Y = S0, S1
smf(V2(15), Y + 8); exs(X, 0, 3); qk(Y, 1); exs(X, 3, 11)
dump()
if QPF:
    a(f"ds_read_b128 v[12:15], v{vAQ}")
ex(X, 11); zeroO(); exs(X, 12, 16)
if QPF: a(f"v_add_u32 v{vAQ}, 1024, v{vAQ}")
a(f"v_add_u32 v{vAD}, {PSTRIDE}, v{vAD}")
a(f"v_add_u32 v{vAS}, {PSTRIDE}, v{vAS}")
a("s_branch L_a_loop")

lab("L_a_fin")
smf(V2(15), S1 + 8)
a("v_lshlrev_b32 v14, 4, v0")
a(f"v_mov_b32 v{vCA}, {L_CNT}")
a(f"v_add_u32 v9, s{sT2}, v14")
a("v_and_b32 v10, 3, v0")
a("v_lshlrev_b32 v10, 2, v10")
a(f"v_add_u32 v10, {L_PROG}, v10")
a(f"s_add_u32 s{sT2}, s{sT2}, {L_PART + 8192}")
a(f"v_add_u32 v6, s{sT4}, v14")
a("v_lshlrev_b32 v16, 2, v0")
a(f"v_mov_b32 v17, s{sTAG}")
a("s_setprio 3")
dump()
a("v_lshlrev_b32 v7, 3, v0")
a(f"v_add_u32 v7, s{sT5}, v7")
a(f"s_mov_b32 s{sKIND}, 0")
stamp(7)
cstamp(11)
lab("L_a_rw")
a("ds_read_b32 v11, v10")
a(f"ds_read_b32 v8, v{vCA} offset:{C_MODE}")
a("ds_read_b128 v[52:55], v9 offset:8192")
for w in range(8):
    a(f"ds_read_b128 {vr(20+4*w,4)}, v9 offset:{1024*w}")
a("ds_read_b128 v[56:59], v6 offset:8192")
WSH = int(OPT.get("wsh", 1))
if WSH:
    a(f"ds_read_b32 v60, v{vCA} offset:{C_GH}")
    a("ds_read_b64 v[4:5], v7")
a(f"s_waitcnt lgkmcnt({11 if WSH else 9})")
a(f"v_cmp_gt_u32 vcc, s{sT2}, v11")
a("s_cbranch_vccnz L_a_rw")
a(f"v_readfirstlane_b32 s{sMODE}, v8")
a(f"s_mov_b32 s{sT1}, s{sF2}")
sum_check(52)
a(f"s_waitcnt lgkmcnt({3 if WSH else 1})")
a("s_cbranch_scc1 L_a_bad1")
reduce_math(20, 14, flag=False, bs=52)
a("v_and_b32 v15, 15, v0")
a("v_lshlrev_b32 v15, 7, v15")
a(f"s_lshl_b32 s{sT0}, s{sWV}, 2")
a(f"v_add_u32 v10, s{sT0}, v{vCA}")
AO, AW, AC = 88, 152, 48
def awread(k):
    o = PSTRIDE * (k // 4) + 2048 * (k % 4)
    a(f"ds_read_b64_tr_b16 {vr(AW+4*k,2)}, v4 offset:{o}")
    a(f"ds_read_b64_tr_b16 {vr(AW+4*k+2,2)}, v4 offset:{o+1024}")
if WSH:
    a("s_waitcnt lgkmcnt(0)")
    a("v_cmp_gt_u32 vcc, NSYNC_B2, v60")
    a("s_cbranch_vccnz L_a_nosh")
    a(f"s_mov_b32 s{sKIND}, 1")
    for k in range(7): awread(k)
    lab("L_a_nosh")
a("s_waitcnt vmcnt(0)")
a("s_mov_b32 exec_hi, 0")
st2([f"buffer_store_dword v17, v16, {sr(R_WS,4)}, s{sF1} offen@"])
a("s_mov_b64 exec, -1")
lab("L_a_ok1")
stamp(8)
if not WSH: a("s_waitcnt lgkmcnt(0)")
sum_check(56)
a("s_cbranch_scc1 L_a_bad2")
lab("L_a_ok2")
cm("output projection, last 16 heads")
a(f"buffer_load_dword v8, v15, {sr(R_WS,4)}, s{sCG} offen sc1")
a(f"s_cmp_eq_u32 s{sKIND}, 1")
a("s_cbranch_scc1 L_a_wd")
lab("L_a_ww")
a(f"ds_read_b32 v11, v{vCA} offset:{C_GH}")
a("ds_read_b64 v[4:5], v7")
a("s_waitcnt lgkmcnt(0)")
a("v_cmp_gt_u32 vcc, NSYNC_B2, v11")
a("s_cbranch_vccnz L_a_ww")
for k in range(7): awread(k)
lab("L_a_wd")
a("s_waitcnt vmcnt(0)")
a(f"v_cmp_ne_u32 vcc, s{sTAG}, v8")
a("s_cbranch_vccz L_a_fl")
poll(15, f"s{sCG}", 8)
lab("L_a_fl")
stamp(9)
for g in range(16):
    if g % 4 == 0 and g: a(f"s_add_u32 s{sT6}, s{sT6}, 4096")
    a(f"buffer_load_dwordx4 {vr(AO+4*g,4)}, v14, {sr(R_WS,4)}, s{sT6} offen offset:{1024*(g%4)} sc1")
    if 7 + g < 16: awread(7 + g)
a(f"ds_read_b32 v11, v10 offset:{C_HA}")
for i in range(4):
    a(f"ds_read_b128 {vr(16+4*i,4)}, v6 offset:{1024*i}")
cm("epoch update by WG0 (every workgroup has read the old value long ago)")
a(f"s_lshl2_add_u32 s{sT0}, s2, s{sWV}")
a(f"s_cmp_eq_u32 s{sT0}, 0")
a("s_cbranch_scc0 L_a_noep")
setflag(8, 9, sT0)
lab("L_a_noep")
a("s_waitcnt lgkmcnt(5)")
for g in range(16):
    a(f"s_waitcnt vmcnt({15-g})")
    mfma32(AC, AO + 4*g, AW + 4*g, "0" if g == 0 else None)
stamp(13)
a("s_waitcnt lgkmcnt(0)")
a("v_cmp_eq_u32 vcc, 0, v11")
a("s_cbranch_vccz L_a_hok")
lab("L_a_hw")
a(f"ds_read_b32 v11, v10 offset:{C_HA}")
for i in range(4):
    a(f"ds_read_b128 {vr(16+4*i,4)}, v6 offset:{1024*i}")
a("s_waitcnt lgkmcnt(0)")
a("v_cmp_eq_u32 vcc, 0, v11")
a("s_cbranch_vccnz L_a_hw")
lab("L_a_hok")
a("s_nop 8")
stamp(14)
for j in range(8):
    a(f"v_pk_add_f32 {vr(AC+2*j,2)}, {vr(AC+2*j,2)}, {vr(16+2*j,2)}")
    for r in (2*j, 2*j + 1):
        a(f"s_add_u32 s{sT1}, s{sT3}, {4096 * (8*(r//4) + r%4)}")
        a(f"buffer_store_dword v{AC+r}, v5, {sr(R_B,4)}, s{sT1} offen{OUTFL}")
a("s_branch L_end")

sec("P")
ROLE[0] = "H"
if STAMPS:
    a("s_mov_b32 s81, 0")
    a("s_mov_b32 s92, 0")
    a("s_mov_b32 s93, 0")
srd(R_WS, P_WS, WS_SIZE)
a("v_xor_b32 v14, v12, v13")
a("v_lshlrev_b32 v14, 4, v14")
a("v_lshl_add_u32 v14, v13, 8, v14")
a(f"v_add_u32 v8, s{sT2}, v14")
for ks in range(1, 4):
    a(f"v_xor_b32 v{8+ks}, {64*ks}, v8")
a("v_lshrrev_b32 v14, 2, v13")
a("v_lshl_add_u32 v14, v12, 3, v14")
a("v_lshlrev_b32 v14, 5, v14")
a("v_and_b32 v15, 3, v0")
a("v_lshl_add_u32 v14, v15, 3, v14")
a(f"v_add_u32 v14, s{sT4}, v14")
a(f"s_lshl_b32 s{sT0}, s{sWV}, 10")
a(f"s_add_u32 s{sT0}, s{sT0}, {L_KVP}")
a(f"v_add_u32 v15, s{sT0}, v6")
a(f"s_lshl_b32 s{sT0}, s{sRB}, 2")
a(f"s_add_u32 s{sT0}, s{sT0}, s{sGRP}")
a(f"s_lshr_b32 s{sT1}, s{sT0}, 1")
a(f"s_lshl_b32 s{sT1}, s{sT1}, 1")
a(f"s_add_u32 s{sT1}, s{sT1}, s{sKIND}")
a(f"s_lshl_b32 s{sT1}, s{sT1}, 10")
a(f"s_and_b32 s{sT2}, s{sT0}, 1")
a(f"s_add_u32 s{sT3}, s{sKIND}, 8")
a(f"s_lshl_b32 s{sT2}, s{sT2}, s{sT3}")
a(f"s_add_u32 s{sT1}, s{sT1}, s{sT2}")
a(f"s_add_u32 s{sT5}, s{sT1}, {WS_KV}")
a(f"s_lshl_b32 s{sT0}, s{sT0}, 1")
a(f"s_add_u32 s{sT0}, s{sT0}, s{sKIND}")
a(f"s_lshl_b32 s{sT0}, s{sT0}, {FSH}")
a(f"s_add_u32 s{sT6}, s{sT0}, {WS_FKV}")
a(f"s_cmp_eq_u32 s{sKIND}, 0")
a(f"s_cselect_b32 s{sT0}, 9, 3")
a(f"s_cselect_b32 s{sT1}, 3, 8")
a("v_and_b32 v34, 1, v12")
a("v_lshrrev_b32 v35, 1, v12")
a("v_lshlrev_b32 v16, 4, v13")
a(f"v_lshl_add_u32 v16, v34, s{sT0}, v16")
a(f"v_lshl_add_u32 v16, v35, s{sT1}, v16")
a(f"v_mov_b32 v{vCNT}, {L_CNT}")
a(f"v_mov_b32 v{vONE}, 1")
a("s_waitcnt lgkmcnt(0)")
a(f"s_mul_i32 s{sTAG}, s{sTAG}, 1664525")
a(f"s_add_u32 s{sTAG}, s{sTAG}, 1013904223")
if EP0:
    a(f"s_cmp_eq_u32 s{sWV}, 0")
    a("s_cbranch_scc0 L_h_notag")
a(f"v_mov_b32 v36, s{sTAG}")
a(f"ds_write_b32 v{vCNT}, v36 offset:{C_TAG}")
lab("L_h_notag")
a(f"s_cmp_eq_u32 s{sKIND}, 0")
a(f"s_waitcnt vmcnt(4)")
stamp(1)
b = 128
for ks in range(4):
    a(f"ds_read_b128 {vr(b+8*ks,4)}, v{8+ks}")
    a(f"ds_read_b64_tr_b16 {vr(b+8*ks+4,2)}, v14 offset:{1024*ks}")
    a(f"ds_read_b64_tr_b16 {vr(b+8*ks+6,2)}, v14 offset:{1024*ks+128}")
def kvproj(kind):
    for ks in range(4):
        a(f"s_waitcnt lgkmcnt({9 - 3*ks})")
        x, w = vr(b+8*ks, 4), vr(b+8*ks+4, 4)
        if kind == 0: x, w = w, x
        a(f"v_mfma_f32_16x16x32_bf16 v[40:43], {x}, {w}, {'0' if ks == 0 else 'v[40:43]'}")
a("s_cbranch_scc0 L_h_vproj")
kvproj(0)
a("s_branch L_h_kvdone")
lab("L_h_vproj")
kvproj(1)
lab("L_h_kvdone")
a(f"s_cmp_eq_u32 s{sWV}, 0")
a("s_cbranch_scc1 L_h_pub")
a("s_nop 5")
a("ds_write_b128 v15, v[40:43]")
a("s_waitcnt lgkmcnt(0)")
a("s_barrier")
a("s_branch L_h_common")
lab("L_h_pub")
a("s_barrier")
for i in range(1, 4):
    a(f"ds_read_b128 {vr(40+4*i,4)}, v15 offset:{1024*i}")
a("s_nop 1")
a("s_waitcnt lgkmcnt(0)")
a("v_pk_add_f32 v[40:41], v[40:41], v[44:45]")
a("v_pk_add_f32 v[42:43], v[42:43], v[46:47]")
a("v_pk_add_f32 v[48:49], v[48:49], v[52:53]")
a("v_pk_add_f32 v[50:51], v[50:51], v[54:55]")
a("v_pk_add_f32 v[40:41], v[40:41], v[48:49]")
a("v_pk_add_f32 v[42:43], v[42:43], v[50:51]")
a("v_cvt_pk_bf16_f32 v40, v40, v41")
a("v_cvt_pk_bf16_f32 v41, v42, v43")
a(f"buffer_store_dwordx2 v[40:41], v16, {sr(R_WS,4)}, s{sT5} offen sc1")
dstamp("p", 5)
a("s_branch L_h_common")
sec("HQ")
lab("L_h_common")
a(f"s_mov_b32 s{sSYNC}, 0")
a("v_and_b32 v17, 31, v0")
a("v_lshrrev_b32 v18, 5, v0")
p0, p1, p2, vDSK = 60, 61, 62, 63
cm("Q projection addresses")
QXA = list(range(48, 56))
a(f"s_lshr_b32 s{sT0}, s{sWV}, 1")
a(f"s_lshl_b32 s{sT0}, s{sT0}, 13")
a("v_xor_b32 v34, v13, v18")
a("v_lshlrev_b32 v34, 4, v34")
a("v_lshl_add_u32 v34, v17, 8, v34")
a(f"v_add_u32 v{QXA[0]}, s{sT0}, v34")
for ks in range(1, 8):
    a(f"v_xor_b32 v{QXA[ks]}, {32*ks}, v{QXA[0]}")
wtr_addr(vWT, 9, L_R1, 34)
a(f"v_lshl_add_u32 v56, v18, 9, v{vWT}")
a(f"v_add_u32 v56, {(L_WQ - L_R1) & 0xffffffff}, v56")
a(f"s_and_b32 s{sT1}, s{sWV}, 1")
a(f"s_lshl_b32 s{sT1}, s{sT1}, 12")
a(f"s_lshr_b32 s{sT2}, s{sWV}, 1")
a(f"s_lshl_b32 s{sT2}, s{sT2}, 10")
a(f"s_add_u32 s{sT1}, s{sT1}, s{sT2}")
a(f"s_add_u32 s{sT1}, s{sT1}, {L_QF}")
a(f"v_add_u32 v57, s{sT1}, v6")
a(f"v_mov_b32 v58, {f32(0.25 * LOG2E)}")
a("v_mov_b32 v59, v58")
cm("SSM offsets and addresses")
a(f"s_mov_b32 s{R_A}, s{P_BX}")
a(f"s_and_b32 s{R_A+1}, s{P_BX+1}, 0xffff")
srd(R_B, P_BRE, 512 * 1024)
srd(R_C, P_BIM, 512 * 1024)
a(f"s_mov_b32 s{sLO}, {f32(L_LO)}")
a(f"s_mov_b32 s{sHI}, {f32(L_HI)}")
a(f"s_lshl_b32 s{sT0}, s{sC}, 17")
a(f"s_lshl_b32 s{sT1}, s{sWV}, 15")
a(f"s_add_u32 s{sT3}, s{sT0}, s{sT1}")
a(f"s_lshr_b32 s{sT0}, s{sWV}, 1")
a(f"s_lshl1_add_u32 s{sYG}, s{sRB}, s{sT0}")
if YM:
    a(f"s_and_b32 s{sYY}, s{sRB}, 24")
    a(f"s_add_u32 s{sYY}, s{sYY}, s{sG}")
    a(f"s_lshl1_add_u32 s{sYY}, s{sYY}, s{sT0}")
else:
    a(f"s_mov_b32 s{sYY}, s{sYG}")
a(f"s_and_b32 s{sT0}, s{sWV}, 1")
a(f"s_lshl1_add_u32 s{sCG}, s{sGY}, s{sT0}")
a(f"s_lshl_b32 s{sT4}, s{sYY}, 15")
a(f"s_lshl_b32 s{sT2}, s{sCG}, 6")
a(f"s_add_u32 s{sT4}, s{sT4}, s{sT2}")
wo_voff(vWO, 34)
a("v_lshrrev_b32 v36, 2, v0")
a("v_and_b32 v34, 3, v36")
a("v_bfe_u32 v35, v36, 2, 1")
a("v_lshl_add_u32 v34, v35, 4, v34")
a("v_lshrrev_b32 v35, 3, v36")
a("v_lshl_add_u32 v34, v35, 2, v34")
a("v_and_b32 v37, 3, v0")
a("v_lshlrev_b32 v35, 4, v37")
a("v_lshl_add_u32 v8, v34, 10, v35")
a("v_add_u32 v9, 8192, v8")
a(f"v_mul_u32_u24 v{vRB}, {RSTR}, v17")
a(f"v_lshl_add_u32 v{vRB}, v18, 4, v{vRB}")
a(f"v_add_u32 v{vRB}, {L_R1}, v{vRB}")
a(f"s_lshl_b32 s{sT1}, s{sWV}, 11")
a(f"s_add_u32 s{sT1}, s{sT1}, {L_SCR}")
a("v_xor_b32 v34, v12, v37")
a("v_lshlrev_b32 v34, 4, v34")
a("v_lshl_add_u32 v34, v36, 6, v34")
a(f"v_add_u32 v10, s{sT1}, v34")
a("v_bfe_u32 v34, v0, 2, 2")
a("v_xor_b32 v35, v34, v18")
a("v_lshlrev_b32 v35, 4, v35")
a("v_lshl_add_u32 v35, v17, 6, v35")
a(f"v_add_u32 v11, s{sT1}, v35")
a("v_xor_b32 v12, 32, v11")
a("v_lshl_add_u32 v34, v18, 3, v34")
a("v_lshlrev_b32 v34, 6, v34")
a("v_bfe_u32 v35, v0, 4, 1")
a("v_lshl_add_u32 v34, v35, 5, v34")
a("v_lshl_add_u32 v34, v37, 3, v34")
a(f"v_add_u32 v19, s{sT1}, v34")
a("v_lshlrev_b32 v34, 6, v17")
a("v_lshl_add_u32 v34, v18, 5, v34")
a(f"v_add_u32 v16, s{sT1}, v34")
a("v_lshlrev_b32 v38, 4, v18")
a("v_lshl_add_u32 v29, v17, 10, v38")
a("v_lshlrev_b32 v14, 4, v17")
a("s_waitcnt vmcnt(1)")
a(f"s_cmp_eq_u32 s{sWV}, 0")
a("s_cbranch_scc1 L_h_pw")
a("s_waitcnt vmcnt(0)")
lab("L_h_pw")
FPOS = int(OPT.get("fpos", 1))
def kvflag():
    a("s_waitcnt vmcnt(0)")
    a(f"s_cmp_eq_u32 s{sWV}, 0")
    a("s_cbranch_scc0 L_h_nopub")
    a(f"s_getreg_b32 s{sT0}, hwreg(HW_REG_XCC_ID, 0, 4)")
    a(f"s_xor_b32 s{sT0}, s{sT0}, s{sTAG}")
    a("v_mov_b32 v34, 0")
    a(f"v_mov_b32 v35, s{sT0}")
    a("s_mov_b64 exec, 1")
    a(f"buffer_store_dword v35, v34, {sr(R_WS,4)}, s{sT6} offen sc1")
    a("s_mov_b64 exec, -1")
    stamp(2)
    lab("L_h_nopub")
if FPOS == 0: kvflag()
cm("SSM parameters")
q0, q1, q2, q3, q4 = 64, 65, 66, 67, 68
a(f"v_lshlrev_b32 v{p0}, 16, v{p0}")
a(f"v_lshlrev_b32 v{p1}, 16, v{p1}")
a(f"v_lshlrev_b32 v{p2}, 16, v{p2}")
a(f"v_mul_f32 v{p2}, {f32(LOG2E)}, v{p2}")
a(f"v_exp_f32 v{p2}, v{p2}")
a("s_nop 0")
a(f"v_cvt_pk_bf16_f32 v{p2}, v{p2}, v{p2}")
a(f"v_and_b32 v{p2}, 0xffff0000, v{p2}")
a(f"v_mul_f32 v{q0}, v{p2}, v{p0}")
a(f"v_mul_f32 v{q1}, v{p2}, v{p1}")
a(f"v_mul_f32 v{q0}, {f32(LOG2E)}, v{q0}")
a(f"v_mul_f32 v{q1}, {f32(1/(2*math.pi))}, v{q1}")
a(f"v_exp_f32 v{q0}, v{q0}")
a(f"v_rndne_f32 v{q2}, v{q1}")
a(f"v_sub_f32 v{q1}, v{q1}, v{q2}")
a(f"v_cos_f32 v{q2}, v{q1}")
a(f"v_sin_f32 v{q3}, v{q1}")
a(f"v_mul_f32 v{q4}, v{p0}, v{p0}")
a(f"v_fma_f32 v{q4}, v{p1}, v{p1}, v{q4}")
a(f"v_mul_f32 v{vL}, v{q0}, v{q2}")
a(f"v_mul_f32 v{vL+1}, v{q0}, v{q3}")
a(f"v_rcp_f32 v{q4}, v{q4}")
a(f"v_add_f32 v{q2}, -1.0, v{vL}")
a(f"v_add_f32 v{q4}, v{q4}, v{q4}")
a(f"v_mul_f32 v{q0}, v{q2}, v{p0}")
a(f"v_fma_f32 v{q0}, v{vL+1}, v{p1}, v{q0}")
a(f"v_mul_f32 v{q1}, v{vL+1}, v{p0}")
a(f"v_fma_f32 v{q1}, -v{q2}, v{p1}, v{q1}")
a(f"v_mul_f32 v{vCO}, v{q0}, v{q4}")
a(f"v_mul_f32 v{vCO+1}, v{q1}, v{q4}")
cmul(70, vL, vL); cmul(72, 70, 70); cmul(vL8, 72, 72); cmul(vL16_, vL8, vL8)
cm("skip term x*D via a diagonal B operand -> YACC")
YACC = 112
a("v_and_b32 v64, 1, v0")
a("v_lshlrev_b32 v64, 4, v64")
a(f"v_lshlrev_b32 v{vDSK}, v64, v{vDSK}")
a("v_lshrrev_b32 v64, 1, v17")
a("v_lshlrev_b32 v65, 2, v18")
a("v_sub_u32 v64, v64, v65")
for i in range(0, 8, 2):
    a(f"v_cmp_eq_u32 s[{sM}:{sM+1}], {8*(i//4) + i%4}, v64")
    a(f"v_cmp_eq_u32 vcc, {8*(i//4) + i%4 + 1}, v64")
    a("s_nop 0")
    a(f"v_cndmask_b32 v{104+i}, 0, v{vDSK}, s[{sM}:{sM+1}]")
    a(f"v_cndmask_b32 v{105+i}, 0, v{vDSK}, vcc")
if FPOS == 1: kvflag()
cm("per-lane powers: PS = L16^seg, M0 = L256^seg (if valid), M1 = M0*L128 (if valid)")
vPS, vM0, vM1, vO0, vO1 = 96, 98, 100, 102, 103
a(f"s_mov_b32 s{sM}, 0")
a(f"s_mov_b32 s{sM+1}, -1")
def powsel(dst, b1, b2, b4):
    a(f"v_cndmask_b32 v{dst}, 1.0, v{b1}, s[{sM}:{sM+1}]")
    a(f"v_cndmask_b32 v{dst+1}, 0, v{b1+1}, s[{sM}:{sM+1}]")
    for bit, b in ((0, b2), (1, b4)):
        L = uid("ps")
        a(f"s_bitcmp1_b32 s{sWV}, {bit}")
        a(f"s_cbranch_scc0 {L}")
        cmul(66, dst, b)
        a(f"v_mov_b64 {vr(dst,2)}, v[66:67]")
        lab(L)
cmul(68, vL16_, vL16_); cmul(70, 68, 68); cmul(72, 70, 70)
cmul(74, 72, 72); cmul(76, 74, 74); cmul(78, 76, 76)
powsel(vPS, vL16_, 68, 70)
powsel(vM0, 74, 76, 78)
cmul(vM1, vM0, 72)
a(f"s_lshl_b32 s{sT0}, s{sWV}, 2")
a(f"s_sub_u32 s{sT0}, s{sC}, s{sT0}")
a(f"s_sub_u32 s{sT0}, s{sT0}, 1")
a("v_lshlrev_b32 v30, 1, v18")
a(f"v_sub_u32 v{vO0}, s{sT0}, v30")
a(f"v_add_u32 v{vO1}, -1, v{vO0}")
a(f"v_mov_b32 v30, 0")
for (vo, vm) in ((vO0, vM0), (vO1, vM1)):
    a(f"v_cmp_le_i32 vcc, 0, v{vo}")
    a("s_nop 1")
    a(f"v_cndmask_b32 v{vo}, v30, v{vo}, vcc")
    a(f"v_cndmask_b32 v{vm}, 0, v{vm}, vcc")
    a(f"v_cndmask_b32 v{vm+1}, 0, v{vm+1}, vcc")
    a(f"v_lshl_add_u32 v{vo}, v{vo}, 9, v14")
if FPOS == 2: kvflag()
cm("Q projection")
ACC, QD = 32, 4
XR = 128
VM, LG = Cnt(), Cnt()
xq = [(j, h) for j in range(16) for h in range(2)]
def xb1():
    j, h = xq.pop(0)
    a(f"buffer_load_dwordx4 {vr(XR+8*j+4*h,4)}, v{8+h}, {sr(R_A,4)}, s{16+j//4} offen offset:{64*(j%4)}")
    VM.issue(("x", j))
def qs(ks): return 128 + 8 * (ks % 8)
def qread(ks):
    a(f"ds_read_b64_tr_b16 {vr(qs(ks),2)}, v56 offset:{2048*ks}")
    a(f"ds_read_b64_tr_b16 {vr(qs(ks)+2,2)}, v56 offset:{2048*ks+512}")
    a(f"ds_read_b128 {vr(qs(ks)+4,4)}, v{QXA[ks % 8]} offset:{16384*(ks//8)}")
def qm(ks): mfma32(ACC, qs(ks), qs(ks) + 4, "0" if ks == 0 else None)
DR = [int(x) for x in OPT.get("drain", "").split(",") if x]
sec("Z"); sec("HQ")
a("s_barrier")
segs = []
k0 = 0
for k1 in DR + [32]:
    segs.append((k0, k1)); k0 = k1
for (k0, k1) in segs:
    if k0: a("s_barrier")
    for ks in range(k0, k0 + QD): qread(ks)
    for ks in range(k0, k1):
        if ks + QD < k1:
            if ks + QD in ((8, 16, 24) if B0 else (16, 24)): a("s_barrier")
            qread(ks + QD)
            a(f"s_waitcnt lgkmcnt(12)")
        else:
            a(f"s_waitcnt lgkmcnt({3*(k1-1-ks)})")
        qm(ks)
a(f"s_lshl_b32 s{sT0}, s{sWV}, 9")
a(f"s_add_u32 s{sT0}, s{sT0}, {L_ES}")
a("v_lshlrev_b32 v13, 3, v0")
a(f"v_add_u32 v13, s{sT0}, v13")
a("v_lshlrev_b32 v15, 3, v17")
a(f"v_add_u32 v15, {L_ES}, v15")
a("v_lshlrev_b32 v1, 2, v17")
a("v_lshl_add_u32 v1, v18, 14, v1")
a(f"s_lshl_b32 s{sT0}, s{sPB}, 15")
a(f"s_lshl_b32 s{sT1}, s{sWV}, 13")
a(f"s_add_u32 s{sT5}, s{sT0}, s{sT1}")
a(f"s_add_u32 s{sT6}, s{sT5}, 4096")
a(f"s_and_b32 s{sT0}, s{sRB}, 3")
a(f"s_lshl2_add_u32 s{sT1}, s{sT0}, s{sWV}")
a(f"s_lshl_b32 s{sT1}, s{sT1}, 15")
a(f"s_lshl_b32 s{sT2}, s{sG}, 7")
a(f"s_add_u32 s{sT1}, s{sT1}, s{sT2}")
a("v_lshlrev_b32 v18, 10, v17")
a(f"v_add_u32 v18, s{sT1}, v18")
if YM:
    a(f"s_lshl3_add_u32 s{sT0}, s{sGY}, s{sG}")
    a(f"s_lshl_b32 s{sT0}, s{sT0}, 13")
    a(f"s_and_b32 s{sT1}, s{sWV}, 1")
    a(f"s_lshl_b32 s{sT1}, s{sT1}, 12")
    a(f"s_add_u32 s{sT0}, s{sT0}, s{sT1}")
    a("v_lshlrev_b32 v17, 7, v17")
else:
    a(f"s_lshl2_add_u32 s{sT0}, s{sG}, s{sT0}")
    a(f"s_lshl_b32 s{sT0}, s{sT0}, 14")
    a(f"s_and_b32 s{sT1}, s{sWV}, 1")
    a(f"s_lshl_b32 s{sT1}, s{sT1}, 13")
    a(f"s_add_u32 s{sT0}, s{sT0}, s{sT1}")
    a("v_lshlrev_b32 v17, 7, v0")
a(f"v_add_u32 v17, s{sT0}, v17")
a(f"s_cmp_lt_u32 s{sWV}, 2")
a(f"s_cselect_b32 s{sPC}, s{P_CRE}, s{P_CIM}")
a(f"s_cselect_b32 s{sPC+1}, s{P_CRE+1}, s{P_CIM+1}")
a(f"s_and_b32 s{sT0}, s{sWV}, 1")
a(f"s_mul_i32 s{sT0}, s{sT0}, {32*RSTR}")
a(f"v_add_u32 v28, s{sT0}, v{vRB}")
for r in range(0, 16, 2):
    a(f"v_pk_mul_f32 {vr(ACC+r,2)}, {vr(ACC+r,2)}, v[58:59]")
for j in range(8):
    a(f"v_cvt_pk_bf16_f32 v{ACC+j}, v{ACC+2*j}, v{ACC+2*j+1}")
a(f"ds_write_b128 v57, {vr(ACC,4)}")
a(f"ds_write_b128 v57, {vr(ACC+4,4)} offset:2048")
cm("B tile: 4 k-slots of [64 rows x 256B], xor-swizzled; read addresses v112..119, dma voffset v120")
BA = 112
a("v_lshrrev_b32 v121, 4, v0")
a("v_and_b32 v122, 15, v0")
a(f"v_lshl_add_u32 v121, s{sWV}, 2, v121")
a("v_xor_b32 v123, v122, v121")
a("v_lshlrev_b32 v123, 4, v123")
a("v_lshl_add_u32 v120, v121, 10, v123")
a(f"s_lshr_b32 s{sT0}, s{sWV}, 1")
a(f"s_lshl_b32 s{sT0}, s{sT0}, 13")
a(f"s_sub_u32 s{sT0}, {L_R1}, s{sT0}")
for ks in range(8):
    a(f"v_add_u32 v{BA+ks}, s{sT0}, v{QXA[ks]}")
a(f"s_lshl_b32 s{sT5}, s{sPB}, 15")
a(f"s_lshl_b32 s{sT6}, s{sWV}, 10")
UR = OPT.get("urot", "2")
if UR == "0": a(f"s_mov_b32 s{sT0}, 0")
elif UR == "1": a(f"s_add_u32 s{sT0}, s{sC}, s{sPB}")
elif UR == "2": a(f"s_lshr_b32 s{sT0}, s2, 1")
elif UR == "3": a(f"s_mov_b32 s{sT0}, s2")
for sl in range(4):
    a(f"s_add_u32 s{sT1}, s{sT0}, {sl}")
    a(f"s_and_b32 s{sT1}, s{sT1}, 3")
    a(f"s_lshl_b32 s{sT1}, s{sT1}, 8")
    a(f"s_add_u32 s{16+sl}, s{sT3}, s{sT1}")
    a(f"s_add_u32 s{20+sl}, s{sT5}, s{sT1}")
a("s_waitcnt lgkmcnt(0)")
stamp(3)
a("s_barrier")
a("s_branch L_h2")
sec("H")
lab("L_h2")
a("s_setprio 2")
def rows_dma(tag, base=sT5, ore=0, oim=0):
    a(f"s_mul_i32 s{sT1}, s{sWV}, {8*RSTR}")
    for i in range(8):
        a(f"s_add_u32 m0, s{sT1}, {L_R1 + RSTR*i}")
        a(f"s_add_u32 s{sT2}, s{base}, {1024*i + ore}")
        dma(vL4, R_B, f"s{sT2}")
        a(f"s_add_u32 m0, s{sT1}, {L_R1 + RSTR*(32+i)}")
        a(f"s_add_u32 s{sT2}, s{base}, {1024*i + oim}")
        dma(vL4, R_C, f"s{sT2}")
    VM.issue(tag, 16)
def xw(j, h):
    if h == 0: waits(vm=VM.need(("x", j)))
    a(f"ds_write_b128 v10, {vr(XR+8*j+4*h,4)}" + (" offset:1024" if h else ""))
    LG.issue(("xw", j))
def xr(j):
    a(f"ds_read_b128 {vr(XR+8*j,4)}, v11")
    a(f"ds_read_b128 {vr(XR+8*j+4,4)}, v12")
    LG.issue(("x", j), 2)
if "a" in SU: spf([(P_BRE, 4, 0, 4), (P_BIM, 4, 0, 4), (P_BX, 16, 14, 2)])
if "b" in SU: spf([(P_BX, 16, 6, 10)])
if "c" in SU: spf([(P_BRE, 4, 0, 4), (P_BIM, 4, 0, 4), (P_BX, 16, 0, 16)])
if "d" in SU: spf([(P_CRE, 4, 0, 4), (P_CIM, 4, 0, 4), (P_WO, 4, 0, 4)])
waitc(vCNT, C_A4, 4, 30, sleep=int(OPT.get("a4sl", 1)))
a(f"ds_read_b32 v30, v{vCNT} offset:{C_MODE}")
if EP0: a(f"ds_read_b32 v121, v{vCNT} offset:{C_TAG}")
a("s_setprio 0")
cm("U = x B^T")
XL = int(OPT.get("xl", 2))
def bdma(sl, m):
    a(f"s_add_u32 m0, s{sT6}, {L_R1 + 16384*sl + 4096*m}")
    a(f"s_add_u32 s{sT2}, s{20+sl}, {16384*(m%2)}")
    dma(120, R_B if m < 2 else R_C, f"s{sT2}")
    if sl == 0 and OPT.get("bp") == "1": pace()
    VM.issue(("B", sl))
lq = []
for it in OPT.get("uord", "B0,0,1,2,3,B1,4,5,6,7,B2,8,9,10,11,B3,12,13,14,15").split(","):
    lq += [("B", int(it[1]), m) for m in range(4)] if it[0] == "B" else [("x",), ("x",)]
if OPT.get("mix", "1") == "1":
    for sl in range(1, 4):
        i = lq.index(("B", sl, 0))
        xs, bs_ = lq[i-4:i], lq[i:i+4]
        lq[i-4:i+4] = [y for p in zip(xs, bs_) for y in p]
def ld1(n=1):
    for _ in range(n):
        if not lq: return
        it = lq.pop(0)
        if it[0] == "B": bdma(it[1], it[2])
        else: xb1()
CB = [C_H0, C_H1, C_H2, C_H3]
sigd = set()
def bsig(force=None):
    for sl in range(4):
        issued = not any(it[:2] == ("B", sl) for it in lq)
        if sl in sigd or not issued: continue
        if sl == force: waits(vm=VM.need(("B", sl)))
        if ("B", sl) not in VM.q:
            signal(vCNT, vONE, CB[sl]); LG.issue("sig"); sigd.add(sl)
ld1(int(OPT.get("u0", 12)))
bsig(0)
ld1(int(OPT.get("u1", 4)))
for j in range(XL): xw(j, 0); xw(j, 1); xr(j)
a("s_setprio 2")
a(f"v_readfirstlane_b32 s{sMODE}, v30") if False else None
waitc(vCNT, CB[0], 4, 31)
a(f"v_readfirstlane_b32 s{sMODE}, v30")
if EP0: a(f"v_readfirstlane_b32 s{sTAG}, v121")
LG.q = []
stamp(4)
UPRIO = int(OPT.get("uprio", 0)); YPRIO = int(OPT.get("yprio", 0))
a(f"s_setprio {UPRIO}")
AR, AI, BR = 32, 48, 64
def bread(k):
    s = BR + 8 * (k % 4)
    a(f"ds_read_b128 {vr(s,4)}, v{BA + k % 8} offset:{16384*(k//8)}")
    a(f"ds_read_b128 {vr(s+4,4)}, v{BA + k % 8} offset:{16384*(k//8) + 8192}")
    LG.issue(("b", k), 2)
WOL = int(OPT.get("wol", 0))
PF = [(17, sPC)] + ([] if WOL else [(18, P_WO)])
PFK = int(OPT.get("pfk", 19))
PTK = int(OPT.get("ptk", 27))
CPOS = 0
for k in range(3): bread(k)
for k in range(32):
    j = k // 2; jn = j + XL
    tr = jn < 16
    n1 = LG.need(("x", j)); n2 = LG.need(("b", k))
    waits(lg=n2 if n2 is not None else n1)
    s = BR + 8 * (k % 4)
    first = "0" if k == 0 else None
    mfma32(AR, XR + 4*k, s, first)
    if k % 8 == 2 and k < 24: bsig(k // 8 + 1)
    if k % 8 == 4 and k < 24:
        a(f"ds_read_b32 v31, v{vCNT} offset:{CB[k//8+1]}"); LG.issue("cb")
    if k % 8 == 5 and k < 24:
        waits(lg=LG.need("cb"))
        a("s_setprio 2")
        a("v_cmp_gt_u32 vcc, 4, v31")
        Lk = uid("bk")
        a(f"s_cbranch_vccz {Lk}")
        waitc(vCNT, CB[k//8+1], 4, 31)
        lab(Lk)
        a(f"s_setprio {UPRIO}")
    if k + 3 < 32: bread(k + 3)
    ld1(int(OPT.get("lpk", 1)))
    if PF and k >= PFK and k % 2 == 1:
        v, p = PF.pop(0)
        a(f"global_load_dword v{136+len(PF)}, v{v}, s[{p}:{p+1}]"); VM.issue("pf")
    if k == PTK:
        cm("local mode: make the lines this wave / its attention partner will hand over valid in L2")
        a(f"s_cmp_eq_u32 s{sMODE}, 1")
        a("s_cbranch_scc0 L_h_nopt")
        def touch(soff, n):
            for i in range(n):
                a(f"buffer_load_dwordx4 v[144:147], v{vL4}, {sr(R_WS,4)}, s{soff} offen offset:{1024*i} sc1")
        def touchf(soff):
            a("s_mov_b64 exec, 0xff")
            touch(soff, 1)
            a("s_mov_b64 exec, -1")
        if "h" in LOC:
            a(f"s_lshl2_add_u32 s{sT0}, s{sC}, s{sWV}")
            a(f"s_lshl_b32 s{sT1}, s{sT0}, 5")
            a(f"s_add_u32 s{sT1}, s{sT1}, s{sPB}")
            a(f"s_lshl_b32 s{sT1}, s{sT1}, 11")
            a(f"s_add_u32 s{sT1}, s{sT1}, {WS_H}")
            touch(sT1, 2)
            a(f"s_add_u32 s{sT1}, s{sT1}, 32768")
            touch(sT1, 2)
            a(f"s_lshl4_add_u32 s{sT0}, s{sT0}, s{sPB}")
            a(f"s_lshl_b32 s{sT0}, s{sT0}, 7")
            a(f"s_add_u32 s{sT0}, s{sT0}, {WS_FH}")
            touchf(sT0)
        for kind, off in (("o", 0), ("t", 4)):
            if kind in LOC:
                a(f"s_add_u32 s{sSTEP}, s{sWV}, {off}")
                o_offsets()
                touch(sT1, 1); touchf(sT0)
        lab("L_h_nopt")
    if k == 28:
        a(f"buffer_load_dwordx4 v[128:131], v29, {sr(R_A,4)}, s{sT4} offen")
        a(f"buffer_load_dwordx4 v[132:135], v29, {sr(R_A,4)}, s{sT4} offen offset:32")
        VM.issue("skip", 2)
    mfma32(AI, XR + 4*k, s + 4, first)
    ld1()
    if tr:
        assert not any(q[0] == jn for q in xq)
        xw(jn, k % 2)
        if k % 2: xr(jn)
    bsig()
assert len(sigd) == 4 and not lq
assert not PF
a("s_setprio 2")
srd(R_B, P_CRE, 512 * 1024)
srd(R_C, P_CIM, 512 * 1024)
srd(R_A, P_WO, 512 * 1024)
if CPOS:
    a(f"s_add_u32 s{sSYNC}, s{sSYNC}, 4")
    signal(vCNT, vONE, C_GH)
a(f"s_lshl_b32 s{sT3}, s{sGY}, 16")
a(f"s_lshl_b32 s{sT1}, s{sWV}, 13")
a(f"s_add_u32 s{sT3}, s{sT3}, s{sT1}")
a(f"s_mul_i32 s{sT1}, s{sWV}, {8*RSTR}")
def row1(n, base, ore, oim):
    i, part = n // 2, n % 2
    a(f"s_add_u32 m0, s{sT1}, {L_R1 + RSTR*(32*part+i)}")
    a(f"s_add_u32 s{sT2}, s{base}, {1024*i + (oim if part else ore)}")
    dma(vL4, R_C if part else R_B, f"s{sT2}")
stamp(5)
cm("scale by coef into pair layout, local scan")
UP = 64
G0, G1 = 30, 8
def sc1(r): a(f"v_pk_mul_f32 {vr(UP+2*r,2)}, {vr(vCO,2)}, {vr(AR+(r&~1),2)} op_sel:[0,{r&1}] op_sel_hi:[1,{r&1}]")
def sc2(r): a(f"v_pk_fma_f32 {vr(UP+2*r,2)}, {vr(vCO,2)}, {vr(AI+(r&~1),2)}, {vr(UP+2*r,2)} op_sel:[1,{r&1},0] op_sel_hi:[0,{r&1},1] neg_lo:[1,0,0]")
def c1(dst, L, g, u): a(f"v_pk_fma_f32 {vr(dst,2)}, {vr(L,2)}, {vr(g,2)}, {vr(u,2)} op_sel:[0,0,0] op_sel_hi:[0,1,1]")
def c2(dst, L, g): a(f"v_pk_fma_f32 {vr(dst,2)}, {vr(L,2)}, {vr(g,2)}, {vr(dst,2)} op_sel:[1,1,0] op_sel_hi:[1,0,1] neg_lo:[1,0,0]")
sc1(0); sc1(1); sc1(2); sc2(0); sc2(1); sc2(2)
src = UP
for r in range(1, 16):
    dst = G0 if r % 2 else G1
    if r == 8 and CPOS: waitc(vCNT, C_GH, f"s{sSYNC}", 8)
    c1(dst, vL, src, UP + 2*r)
    if r < 14: sc1(r + 2)
    if r >= 8 and CPOS: row1(2*(r-8), sT3, 32768, 0)
    c2(dst, vL, src)
    if r < 14: sc2(r + 2)
    if r >= 8 and CPOS: row1(2*(r-8) + 1, sT3, 32768, 0)
    src = dst
a(f"ds_write_b64 v13, {vr(G0,2)}")
gsync(vCNT, vONE, 32, C_GH)
stamp(6)
ESR = 32
for s in range(8):
    a(f"ds_read_b64 {vr(ESR+2*s,2)}, v15 offset:{256*s}")
a(f"s_lshl_b32 s{sT6}, s{sPB}, 13")
a(f"s_add_u32 s{sT6}, s{sT6}, {WS_ST}")
a(f"s_lshl_b32 s{sT0}, s{sC}, 9")
a(f"s_add_u32 s{sT0}, s{sT0}, s{sT6}")
a(f"v_mov_b64 {vr(G0,2)}, 0")
a(f"s_mov_b32 s{sCNT}, {POLL_LIMIT}")
a("s_waitcnt lgkmcnt(0)")
a(f"v_mov_b64 {vr(G1,2)}, {vr(ESR,2)}")
for w in range(4):
    if w: cmul_add(G1, vL16_, G0, ESR + 4*w)
    if w < 3:
        a(f"s_cmp_eq_u32 s{sWV}, {w}")
        a("s_cbranch_scc1 L_h_segdone")
        cmul_add(G0, vL16_, G1, ESR + 4*w + 2)
cmul_add(48, vL16_, G1, ESR + 14)
a(f"v_mov_b32 v50, v49")
a(f"v_mov_b32 v49, s{sTAG}")
a(f"v_mov_b32 v51, s{sTAG}")
a("s_mov_b32 exec_hi, 0")
a(f"buffer_store_dwordx4 v[48:51], v14, {sr(R_WS,4)}, s{sT0} offen sc1")
a("s_mov_b64 exec, -1")
lab("L_h_segdone")
a(f"s_mov_b32 s{sM}, 0")
a(f"s_mov_b32 s{sM+1}, -1")
a(f"v_cndmask_b32 v{G0}, v{G0}, v{G1}, s[{sM}:{sM+1}]")
a(f"v_cndmask_b32 v{G0+1}, v{G0+1}, v{G1+1}, s[{sM}:{sM+1}]")
if not CPOS:
    for n in range(16): row1(n, sT3, 32768, 0); pace()
stamp(7)
cm("chunk carry: each lane gathers two predecessors' end states")
a(f"v_mov_b64 {vr(G1,2)}, 0")
a(f"s_cmp_eq_u32 s{sC}, 0")
a("s_cbranch_scc1 L_h_stskip")
lab("L_h_stpoll")
a(f"buffer_load_dwordx4 v[52:55], v{vO0}, {sr(R_WS,4)}, s{sT6} offen sc1")
a(f"buffer_load_dwordx4 v[56:59], v{vO1}, {sr(R_WS,4)}, s{sT6} offen sc1")
a("s_waitcnt vmcnt(0)")
a(f"v_cmp_ne_u32 vcc, s{sTAG}, v53")
a(f"v_cmp_ne_u32 s[{sM}:{sM+1}], s{sTAG}, v55")
a(f"s_or_b64 s[{sM}:{sM+1}], s[{sM}:{sM+1}], vcc")
a(f"v_cmp_ne_u32 vcc, s{sTAG}, v57")
a(f"s_or_b64 s[{sM}:{sM+1}], s[{sM}:{sM+1}], vcc")
a(f"v_cmp_ne_u32 vcc, s{sTAG}, v59")
a(f"s_or_b64 s[{sM}:{sM+1}], s[{sM}:{sM+1}], vcc")
a("s_cbranch_scc0 L_h_stok")
a(f"s_sub_u32 s{sCNT}, s{sCNT}, 1")
a("s_cbranch_scc0 L_h_stpoll")
lab("L_h_stok")
a(f"v_pk_mul_f32 {vr(G1,2)}, {vr(vM0,2)}, v[52:53] op_sel:[0,0] op_sel_hi:[1,0]")
a(f"v_pk_mul_f32 v[60:61], {vr(vM1,2)}, v[56:57] op_sel:[0,0] op_sel_hi:[1,0]")
a(f"v_pk_fma_f32 {vr(G1,2)}, {vr(vM0,2)}, v[54:55], {vr(G1,2)} op_sel:[1,0,0] op_sel_hi:[0,0,1] neg_lo:[1,0,0]")
a(f"v_pk_fma_f32 v[60:61], {vr(vM1,2)}, v[58:59], v[60:61] op_sel:[1,0,0] op_sel_hi:[0,0,1] neg_lo:[1,0,0]")
a(f"v_pk_add_f32 {vr(G1,2)}, {vr(G1,2)}, v[60:61]")
lab("L_h_stskip")
a(f"ds_write_b64 v13, {vr(G1,2)} offset:{L_CS - L_ES}")
a("s_waitcnt vmcnt(0)")
mfma32(YACC, 128, 104, "0")
mfma32(YACC, 132, 108)
if WOL == 1: a(f"global_load_dword v10, v18, s[{P_WO}:{P_WO+1}]")
gsync(vCNT, vONE, 32, C_GH)
for s in range(8):
    a(f"ds_read_b64 {vr(32+2*s,2)}, v15 offset:{L_CS - L_ES + 256*s}")
a(f"s_lshl_b32 s{sT0}, s{sC}, 2")
a(f"s_add_u32 s{sT0}, s{sT0}, s{sWV}")
a(f"s_lshl_b32 s{sT4}, s{sT0}, 16")
a(f"s_add_u32 s{sT4}, s{sT4}, {WS_H}")
a(f"s_lshl_b32 s{sT1}, s{sPB}, 11")
a(f"s_add_u32 s{sT1}, s{sT1}, s{sT4}")
a(f"s_add_u32 s{sT2}, s{sT1}, 32768")
a(f"s_lshl_b32 s{sT0}, s{sT0}, 11")
a(f"s_add_u32 s{sT5}, s{sT0}, {WS_FH}")
a(f"s_lshl_b32 s{sT0}, s{sPB}, 7")
a(f"s_add_u32 s{sF1}, s{sT0}, s{sT5}")
a("s_waitcnt lgkmcnt(0)")
stamp(8)
for st in (8, 4, 2):
    for j in range(0, st, 2):
        a(f"v_pk_add_f32 {vr(32+j,2)}, {vr(32+j,2)}, {vr(32+j+st,2)}")
cmul_add(G0, vPS, 32, G0)
HB = 32
cmul_add(UP, vL, G0, UP)
for r in range(1, 16):
    cmul_add(UP + 2*r, vL, UP + 2*(r-1), UP + 2*r)
for part in range(2):
    ng = "-" if part else ""
    for j in range(8):
        a(f"v_cvt_pk_bf16_f32 v{HB+8*part+j}, {ng}v{UP+4*j+part}, {ng}v{UP+4*j+2+part}")
    a(f"ds_write_b128 v16, {vr(HB+8*part,4)}")
    a(f"ds_write_b128 v16, {vr(HB+4+8*part,4)} offset:16")
    for ks in range(2):
        d = 48 + 8*part + 4*ks
        a(f"ds_read_b64_tr_b16 {vr(d,2)}, v19 offset:{1024*ks}")
        a(f"ds_read_b64_tr_b16 {vr(d+2,2)}, v19 offset:{1024*ks+256}")
KIND[0] = "h"
a(f"v_lshlrev_b32 v24, 2, v0")
a(f"v_mov_b32 v25, s{sTAG}")
def flag_novalu(soff):
    a("s_mov_b32 exec_hi, 0")
    st2([f"buffer_store_dword v25, v24, {sr(R_WS,4)}, s{soff} offen@"])
    a("s_mov_b64 exec, -1")
a("s_waitcnt lgkmcnt(0)")
st2([f"buffer_store_dwordx4 {vr(48+8*part+4*ks,4)}, v{vL4}, {sr(R_WS,4)}, s{sT1 if part == 0 else sT2} offen offset:{1024*ks}@" for part in range(2) for ks in range(2)])
a("v_and_b32 v8, 15, v0")
a("v_lshlrev_b32 v12, 7, v8")
CF = 128
LB = int(OPT.get("lb", 1))
if LB: a("s_setprio 0")
for k in range(32):
    a(f"ds_read_b128 {vr(CF+4*k,4)}, v28 offset:{32*k}")
    if k == 13:
        a("s_waitcnt vmcnt(0)")
        flag_novalu(sF1)
a(f"s_add_u32 s{sSYNC}, s{sSYNC}, 4")
signal(vCNT, vONE, C_GH)
if LB: a("s_setprio 2")
stamp(9)
def reduce_inline(RB_, b1=None, bs=None):
    b1 = RB_ + 16 if b1 is None else b1
    bs = RB_ + 32 if bs is None else bs
    Ls, Le = uid("rs"), uid("re")
    a(f"s_mul_i32 s{sT2}, s{sSTEP}, {PSTRIDE}")
    a(f"v_add_u32 v10, s{sT2}, v{vL4}")
    a(f"s_add_u32 s{sT2}, s{sT2}, {L_PART + 8192}")
    o_offsets()
    waitc(11, 0, f"s{sT2}", 8)
    a(f"ds_read_b128 {vr(bs,4)}, v10 offset:8192")
    for w in range(4):
        d = (RB_ if w < 2 else b1) + 8*(w % 2)
        a(f"ds_read_b128 {vr(d,4)}, v10 offset:{2048*w}")
        a(f"ds_read_b128 {vr(d+4,4)}, v10 offset:{2048*w + 1024}")
    a("s_waitcnt lgkmcnt(8)")
    sum_check(bs)
    a("s_waitcnt lgkmcnt(0)")
    a(f"s_cbranch_scc1 {Ls}")
    reduce_math(RB_, vL4, flag=False, b1=b1, bs=bs)
    a(f"s_branch {Le}")
    lab(Ls)
    a(f"s_mov_b32 s{sT0}, {WS_DUMMY}")
    lab(Le)
waitc(vCNT, C_GH, f"s{sSYNC}", 8)
a(f"s_mul_i32 s{sT1}, s{sWV}, {8*RSTR}")
for n in range(16): row1(n, sT3, 0, 32768); pace()
a("v_and_b32 v11, 3, v0")
a("v_lshlrev_b32 v11, 2, v11")
a(f"v_add_u32 v11, {L_PROG}, v11")
a(f"v_add_u32 v13, {(L_PART - L_R1) & 0xffffffff}, v{vWT}")
a(f"s_lshl_b32 s{sT5}, s{sYY}, 11")
a(f"s_add_u32 s{sT5}, s{sT5}, {WS_FH}")
a(f"s_lshl_b32 s{sT4}, s{sYY}, 16")
a(f"s_and_b32 s{sT1}, s{sWV}, 1")
a(f"s_lshl_b32 s{sT1}, s{sT1}, 15")
a(f"s_add_u32 s{sT4}, s{sT4}, s{sT1}")
a(f"s_add_u32 s{sT4}, s{sT4}, {WS_H}")
stamp(10)
poll(12, f"s{sT5}", 8)
stamp(11)
HR, CR, NH = 48, 96, 12
WF, OF = 48, 128
def hload(k):
    if k % 4 == 0 and k: a(f"s_add_u32 s{sT4}, s{sT4}, 4096")
    a(f"buffer_load_dwordx4 {vr(HR+4*(k%NH),4)}, v{vL4}, {sr(R_WS,4)}, s{sT4} offen offset:{1024*(k%4)} sc1")
def cread(k):
    a(f"ds_read_b128 {vr(CR+4*(k%4),4)}, v28 offset:{32*k}")
def oload(k):
    if k % 4 == 0 and k: a(f"s_add_u32 s{sT6}, s{sT6}, 4096")
    a(f"buffer_load_dwordx4 {vr(OF+4*k,4)}, v{vL4}, {sr(R_WS,4)}, s{sT6} offen offset:{1024*(k%4)} sc1")
def wo_setup():
    a(f"s_and_b32 s{sT0}, s{sWV}, 1")
    a(f"s_lshl_b32 s{sT0}, s{sT0}, 18")
    a(f"s_lshr_b32 s{sT1}, s{sWV}, 1")
    a(f"s_lshl_b32 s{sT1}, s{sT1}, 14")
    a(f"s_add_u32 s{sT0}, s{sT0}, s{sT1}")
    a(f"s_lshl_b32 s{sT1}, s{sG}, 7")
    a(f"s_add_u32 s{sT0}, s{sT0}, s{sT1}")
    a(f"s_mul_i32 s{sT1}, s{sWV}, {PSTRIDE}")
def wo_one(half, n):
    q, i = n // 2, n % 2
    a(f"s_add_u32 m0, s{sT1}, {(L_R1 if half else L_PART) + 2048*q + 1024*i}")
    a(f"s_add_u32 s{sT2}, s{sT0}, {32768*half + 65536*q + 8192*i}")
    dma(vWO, R_A, f"s{sT2}")
def wread(dst, k):
    o = PSTRIDE * ((k % 16) // 4) + 2048 * (k % 4)
    ad = 13 if k < 16 else vWT
    a(f"ds_read_b64_tr_b16 {vr(dst,2)}, v{ad} offset:{o}")
    a(f"ds_read_b64_tr_b16 {vr(dst+2,2)}, v{ad} offset:{o+1024}")
HD, CD = 11, 3
RK = int(OPT.get("rk", 25))
FK = 4
VM, LG = Cnt(), Cnt()
for k in range(HD): hload(k); VM.issue(("h", k))
a(f"s_lshl_b32 s{sT5}, s{sYG}, 12")
a(f"s_add_u32 s{sT5}, s{sT5}, {WS_FO}")
a(f"s_lshl_b32 s{sT6}, s{sYG}, 15")
a(f"s_add_u32 s{sT6}, s{sT6}, {WS_O}")
a(f"s_mov_b32 s{sSTEP}, s{sWV}")
KIND[0] = "o"
reduce_inline(32, 96, 20)
a(f"s_mov_b32 s{sF1}, s{sT0}")
gsync(vCNT, vONE, 8, C_GH)
a(f"s_setprio {YPRIO}")
for k in range(CD): cread(k); LG.issue(("c", k))
FLK = int(OPT.get("flk", 14))
oq = list(range(16))
for k in range(32):
    if k == FK:
        waits(vm=VM.need(("h", HD)))
        flag_novalu(sF1); VM.issue("f")
        wo_setup()
    if k == FLK:
        a(f"buffer_load_dword v9, v12, {sr(R_WS,4)}, s{sT5} offen sc1"); VM.issue("fl")
    if k == FLK + 5:
        waits(vm=VM.need("fl"))
        a("s_setprio 2")
        a(f"v_cmp_ne_u32 vcc, s{sTAG}, v9")
        a("s_cbranch_vccz L_y_ok")
        poll(12, f"s{sT5}", 8)
        lab("L_y_ok")
        a(f"s_setprio {YPRIO}")
    if k + HD < 32: hload(k + HD); VM.issue(("h", k + HD))
    if k + CD < 32: cread(k + CD); LG.issue(("c", k + CD))
    waits(vm=VM.need(("h", k)), lg=LG.need(("c", k)))
    mfma32(YACC, HR + 4*(k % NH), CR + 4*(k % 4))
    n = k - FK - 1
    if 0 <= n < 8: wo_one(0, n); VM.issue("wo")
    if k >= FLK + 5:
        for _ in range(2 if k + HD >= 32 else 1):
            if oq: oload(oq.pop(0)); VM.issue("o")
    mfma32(32, HR + 4*(k % NH), CF + 4*k, "0" if k == 0 else None)
assert not oq
a("s_setprio 2")
a(f"s_lshl_b32 s{sT2}, s{sWV}, 12")
a(f"s_add_u32 s{sT2}, s{sT2}, {L_R1 + 40960}")
a(f"v_add_u32 v10, s{sT2}, v{vL4}")
a("v_xor_b32 v11, 4096, v10")
assert (L_R1 + 40960) % 8192 == 0
a(f"s_lshl_b32 s{sT2}, s{sWV}, 9")
a(f"s_add_u32 s{sT2}, s{sT2}, {L_CS}")
a("v_lshlrev_b32 v8, 3, v0")
a(f"v_add_u32 v8, s{sT2}, v8")
a(f"ds_write2_b32 v8, v{vWT}, v1 offset1:1")
waits(vm=VM.need("wo"))
gsync(vCNT, vONE, 8, C_GH)
stamp(12)
for i in range(8):
    wo_one(1, i)
    if i < 4: a(f"ds_write_b128 v10, {vr(32+4*i,4)} offset:{1024*i}")
    if i == 3:
        a(f"s_add_u32 s{sSYNC}, s{sSYNC}, 4")
        signal(vCNT, vONE, C_GH)
    if 4 <= i < 7: pace()
srd(R_B, P_OUT, 2048 * 4096)
a(f"s_lshl_b32 s{sT0}, s{sYY}, 17")
a(f"s_lshl_b32 s{sT1}, s{sCG}, 7")
a(f"s_add_u32 s{sT0}, s{sT0}, s{sT1}")
def store1(b, r, off=0):
    a(f"s_add_u32 s{sT1}, s{sT0}, {4096 * (8*(r//4) + r%4)}")
    a(f"buffer_store_dword v{b+r}, v1, {sr(R_B,4)}, s{sT1} offen" + (f" offset:{off}" if off else "") + YFL)
a(f"s_mul_i32 s{sT2}, s{sWV}, {PSTRIDE}")
a(f"v_add_u32 v10, s{sT2}, v{vL4}")
a(f"s_lshl_b32 s{sT2}, s{sWV}, 2")
a(f"v_add_u32 v9, s{sT2}, v{vCNT}")
waitc(vCNT, C_GH, f"s{sSYNC}", 8)
for i in range(4):
    a(f"ds_read_b128 {vr(192+4*i,4)}, v11 offset:{1024*i}")
YL = OPT.get("ylate") == "1"
def ystores():
    for j in range(8):
        a(f"v_pk_add_f32 {vr(YACC+2*j,2)}, {vr(YACC+2*j,2)}, {vr(192+2*j,2)}")
        store1(YACC, 2*j, 2048)
        store1(YACC, 2*j + 1, 2048)
if LB: a("s_setprio 0")
for k in range(16): wread(WF + 4*k, k)
if LB: a("s_setprio 2")
a(f"s_waitcnt vmcnt(0) lgkmcnt(15)")
a(f"s_add_u32 s{sSYNC}, s{sSYNC}, 4")
signal(vCNT, vONE, C_GH)
for j in range(8):
    a(f"v_pk_add_f32 {vr(YACC+2*j,2)}, {vr(YACC+2*j,2)}, {vr(192+2*j,2)}")
a(f"s_waitcnt lgkmcnt(0)")
stamp(14)
a("s_setprio 0")
for k in range(16):
    mfma32(32, OF + 4*k, WF + 4*k, "0" if k == 0 else None)
    store1(YACC, k, 2048)
nsync = sum(1 for n in ("HQ", "H") for x in SECS[n] if x.strip() == f"s_add_u32 s{sSYNC}, s{sSYNC}, 4")
SECS["P"].insert(0, f".set NSYNC_B2, {4*nsync}")
a("s_setprio 2")
waitc(vCNT, C_GH, f"s{sSYNC}", 8)
a("s_nop 6")
for i in range(4):
    a(f"ds_write_b128 v10, {vr(32+4*i,4)} offset:{1024*i}")
a(f"ds_write_b32 v9, v{vONE} offset:{C_HA}")
stamp(13)
if YL:
    waitc(vCNT, C_S, 4, 8, sleep=1)
    ystores()
a("s_branch L_end")

lab("L_slow")
a("s_waitcnt lgkmcnt(0)")
a(f"s_mov_b32 s{sKIND}, 0")
a(f"s_lshl_b32 s{sT0}, s{sSTEP}, 10")
a(f"s_add_u32 s{sT0}, s{sT0}, {L_QF}")
a(f"v_add_u32 v4, s{sT0}, v14")
a(f"ds_read_b128 {vr(vQ,4)}, v4")
a("v_mov_b32 v4, 0xff800000")
a("v_lshrrev_b32 v16, 5, v0")
a("v_and_b32 v17, 15, v0")
a("v_lshl_add_u32 v15, v16, 4, v17")
a("v_lshlrev_b32 v15, 4, v15")
a(f"s_mov_b32 s{sM}, 0xffff")
a(f"s_mov_b32 s{sM+1}, 0xffff")
a(f"s_mov_b32 s{sT0}, {WS_KV}")
lab("L_slow_p1")
kvload(0)
a("s_waitcnt vmcnt(0) lgkmcnt(0)")
for t in range(2):
    qk(S0, t)
    a("s_nop 11")
    for i in range(8):
        a(f"v_max3_f32 v4, v{S0+2*i}, v{S0+2*i+1}, v4")
a(f"s_cmp_lt_u32 s{sT0}, {WS_KV + 131072}")
a("s_cbranch_scc1 L_slow_p1")
a("v_mov_b32 v5, v4")
a("s_nop 1")
a("v_permlane32_swap_b32 v4, v5")
a("v_max_f32 v4, v4, v5")
for i in range(16):
    a(f"v_sub_f32 v{S1+i}, 0, v4")
zeroO()
a(f"s_mov_b32 s{sT0}, {WS_KV}")
lab("L_slow_p2")
kvload(0)
a("s_waitcnt vmcnt(0)")
for t in range(2):
    mfma32(S0, K_(t), vQ, vr(S1, 16))
    a("s_nop 11")
    exs(S0, 0, 16)
    a("s_nop 1")
    smf(V1(t), S0)
    smf(V2(t), S0 + 8)
a(f"s_cmp_lt_u32 s{sT0}, {WS_KV + 131072}")
a("s_cbranch_scc1 L_slow_p2")
o_offsets()
a(f"v_rcp_f32 v4, v{vO+8}")
a("s_nop 0")
for j in range(4):
    a(f"v_pk_mul_f32 {vr(vO+2*j,2)}, {vr(vO+2*j,2)}, v[4:5] op_sel_hi:[1,0]")
for j in range(4):
    a(f"v_cvt_pk_bf16_f32 v{16+j}, v{vO+2*j}, v{vO+2*j+1}")
a(f"buffer_store_dwordx4 v[16:19], v14, {sr(R_WS,4)}, s{sT1} offen sc1")
a("s_waitcnt vmcnt(0)")
setflag(16, 17, sT0)
a("v_and_b32 v15, 15, v0")
a("v_lshlrev_b32 v15, 7, v15")
a("v_lshlrev_b32 v7, 3, v0")
a(f"v_add_u32 v7, s{sT5}, v7")
a(f"s_lshl_b32 s{sT0}, s{sWV}, 2")
a(f"v_add_u32 v10, s{sT0}, v{vCA}")
a(f"s_cmp_lt_u32 s{sSTEP}, 4")
a("s_cbranch_scc1 L_a_ok2")
a("ds_read_b128 v[56:59], v6 offset:8192")
a("s_waitcnt lgkmcnt(0)")
a("s_branch L_a_ok1")
lab("L_a_bad1")
a("s_waitcnt lgkmcnt(0)")
a(f"s_sub_u32 s{sSTEP}, 7, s{sWV}")
a("s_branch L_slow")
lab("L_a_bad2")
a(f"s_mov_b32 s{sSTEP}, s{sWV}")
a("s_branch L_slow")

lab("L_end")
ROLE[0] = "E"
if PROBE:
    a("s_waitcnt vmcnt(0)")
    stamp(15)
    a(f"s_cmp_ge_u32 s{sW}, 4")
    a(f"s_cbranch_scc{0 if PROBE[0] == 'A' else 1} L_exit")
    a(f"s_cmp_eq_u32 s{80+int(PROBE[1])}, 0")
    a("s_cbranch_scc1 L_exit")
    a(f"s_sub_u32 s{sT0}, s{80+int(PROBE[1])}, s{80+int(PROBE[2])}")
    if OPT.get("pmode"):
        a(f"s_cmp_eq_u32 s{sMODE}, 1")
        a(f"s_cselect_b32 s{sT0}, 0, 1000")
    a(f"s_min_u32 s{sT0}, s{sT0}, 10000")
    a(f"s_lshl_b32 s{sT0}, s{sT0}, 1")
    a(f"s_memrealtime s[{sST}:{sST+1}]")
    a("s_waitcnt lgkmcnt(0)")
    a(f"s_mov_b32 s{sT1}, s{sST}")
    lab("L_probe")
    a(f"s_memrealtime s[{sST}:{sST+1}]")
    a("s_waitcnt lgkmcnt(0)")
    a(f"s_sub_u32 s{sT2}, s{sST}, s{sT1}")
    a(f"s_cmp_lt_u32 s{sT2}, s{sT0}")
    a("s_cbranch_scc1 L_probe")
elif STAMPS:
    a("s_waitcnt vmcnt(0)")
    stamp(15)
    a(f"s_lshl_b32 s{sT0}, s2, 3")
    a(f"s_xor_b32 s{sT1}, s{sW}, 4")
    a(f"s_add_u32 s{sT0}, s{sT0}, s{sT1}")
    a(f"s_lshl_b32 s{sT0}, s{sT0}, 6")
    a(f"s_add_u32 s{sT0}, s{sT0}, {WS_STAMP}")
    for i in range(16): a(f"v_mov_b32 v{16+i}, s{80+i}")
    a("v_mov_b32 v0, 0")
    a("s_mov_b64 exec, 1")
    for i in range(4):
        a(f"buffer_store_dwordx4 {vr(16+4*i,4)}, v0, {sr(R_WS,4)}, s{sT0} offen offset:{16*i}")
lab("L_exit")
a("s_endpgm")

hdr = open("cdna_kernels/" + NAME + ".s.ref").read().split("; Override launch")[0]
src = hdr + f"; @launch grid=(256,1,1) block=(512,1,1) lds={LDS_BYTES}\n" + f""".amdgcn_target "amdgcn-amd-amdhsa--gfx950"
.text
.globl {NAME}_kernel
.p2align 8
.type {NAME}_kernel,@function
{NAME}_kernel:
""" + "\n".join(x for n in ("P", "AL", "HQ", "Z", "A", "H") for x in SECS[n]) + f"""
.section .rodata,"a"
.p2align 6
.amdhsa_kernel {NAME}_kernel
  .amdhsa_next_free_vgpr 256
  .amdhsa_next_free_sgpr 102
  .amdhsa_accum_offset 256
  .amdhsa_group_segment_fixed_size 0
  .amdhsa_kernarg_size 136
  .amdhsa_user_sgpr_count 2
  .amdhsa_user_sgpr_kernarg_segment_ptr 1
  .amdhsa_system_sgpr_workgroup_id_x 1
.end_amdhsa_kernel
"""
open(OUT, "w").write(src)
```

```python
import sys, math, struct
NAME = "concat_heads__grouped_kv_mqa__ssm_conv_s5__prompt"
STAMPS = "--stamps" in sys.argv
OPT = dict(a.lstrip("-").split("=") for a in sys.argv[1:] if a.startswith("--") and "=" in a)
OUT = [a for a in sys.argv[1:] if not a.startswith("--")][0]
OUTFL = OPT.get("outfl", "nt").replace(",", " ")
if OUTFL: OUTFL = " " + OUTFL
YFL = OPT.get("yfl", "nt").replace(",", " ")
if YFL: YFL = " " + YFL

def f32(x): return "0x%08x" % struct.unpack("<I", struct.pack("<f", x))[0]

FSH = int(OPT.get('fsh', 6))
WS_O2 = 0x300000
C_HA = 48
WS_DUMMY = 0x800
WS_FKV = 0x1000
WS_FH  = 0x20000
WS_FO  = 0x80000
WS_KV  = 0x40000
WS_ST  = 0x60000
WS_O   = 0x100000
WS_H   = 0x400000
WS_SLOW = 0x800000
WS_STAMP = 15 << 20
WS_SIZE = 16 << 20
L_XA, L_WQ, L_KVP, L_WKV = 0, 65536, 131072, 140288
L_PART, L_R1, L_SCR, L_ES, L_QF, L_PROG, L_CNT = 0, 73728, 140288, 148480, 150528, 158720, 159744
L_MAX = 159808
L_CS = 160832

LDS_BYTES = 163840
PSTRIDE = 9216
RSTR = 1040
POLL_LIMIT = 400000
C_A1, C_H1, C_H2, C_A3, C_A4, C_GA, C_GH, C_TAG, C_H3, C_S, C_H0, C_DONE = 0, 4, 8, 12, 16, 20, 24, 28, 32, 36, 40, 44

SECS = {}
class _L:
    cur = None
    def append(self, x): SECS[_L.cur].append(x)
lines = _L()
def sec(n):
    SECS.setdefault(n, []); _L.cur = n
sec("P")
def a(s): lines.append("    " + s)
def lab(s): lines.append(s + ":")
def cm(s): lines.append("    ; " + s)
_uid = [0]
def uid(p):
    _uid[0] += 1
    return f"L_{p}{_uid[0]}"
def vr(b, n): return f"v[{b}:{b+n-1}]"
def sr(b, n): return f"s[{b}:{b+n-1}]"

sW, sTAG, sRB, sG, sC, sPB = 3, 4, 5, 6, 7, 8
sT0, sT1, sT2, sT3, sT4, sCNT = 9, 10, 11, 12, 13, 14
sWV = 15
P_AX, P_WQ, P_WK, P_WV, P_WO, P_BX, P_LRE, P_LIM = 16, 18, 20, 22, 24, 26, 28, 30
P_BRE, P_BIM, P_CRE, P_CIM, P_LDT, P_DSK, P_OUT, P_DBG = 32, 34, 36, 38, 40, 42, 44, 46
P_WS = 48
sT5, sT6 = 50, 51
R_WS, R_A, R_B, R_C = 52, 56, 60, 64
sM = 68
sGRP, sKIND, sSTEP, sSYNC = 70, 71, 72, 73
sRET = 74
sST = 76
sLO, sHI = 78, 79
sROT = sSTEP
sF1, sF2 = 0, 1
sYG, sCG, sPC = 96, 97, 98
sGY, sYY = 100, 101
YM = int(OPT.get('ymap', 0))
sMODE = sGRP
C_MODE = C_DONE
LFL = OPT.get('lfl', '').replace(',', ' ')
if LFL: LFL = ' ' + LFL

def srd(dst, ptr, nbytes):
    a(f"s_mov_b32 s{dst}, s{ptr}")
    a(f"s_and_b32 s{dst+1}, s{ptr+1}, 0xffff")
    a(f"s_mov_b32 s{dst+2}, {nbytes}")
    a(f"s_mov_b32 s{dst+3}, 0x20000")

PROBE = OPT.get("probe")
ROLE = ["?"]
if PROBE:
    PROBE = PROBE.split(","); STAMPS = True
def stamp(i, ins="s_memrealtime"):
    if PROBE and not (ins == "s_memrealtime" and (ROLE[0] in (PROBE[0], "E")) and str(i) in PROBE[1:]): return
    if OPT.get("dbg") == "steps" and ROLE[0] == "A" and i < 10: return
    if OPT.get("sel") and ROLE[0] != "E" and f"{ROLE[0]}{i}" not in OPT["sel"].split(","): return
    if STAMPS:
        a(f"{ins} s[{sST}:{sST+1}]")
        a("s_waitcnt lgkmcnt(0)")
        a(f"s_mov_b32 s{80+i}, s{sST}")
def cstamp(i): stamp(i, "s_memtime")
DBG = OPT.get("dbg", "")
def dstamp(name, i):
    if DBG == name: stamp(i)
_stamp0 = stamp


def dma(voff, srdr, soff, imm=0):
    o = f" offset:{imm}" if imm else ""
    a(f"buffer_load_dwordx4 v{voff}, {sr(srdr,4)}, {soff} offen{o} lds")

PACE = int(OPT.get("pace", 18))
def pace():
    n = PACE
    while n > 0:
        a(f"s_nop {min(n, 16) - 1}"); n -= 16

def poll(voff, soff, vt, sleep=0, fl=" sc1"):
    L, D = uid("poll"), uid("pdone")
    a(f"s_mov_b32 s{sCNT}, {POLL_LIMIT}")
    lab(L)
    a(f"buffer_load_dword v{vt}, v{voff}, {sr(R_WS,4)}, {soff} offen{fl}")
    a("s_waitcnt vmcnt(0)")
    a(f"v_cmp_ne_u32 vcc, s{sTAG}, v{vt}")
    a(f"s_cbranch_vccz {D}")
    if sleep: a(f"s_sleep {sleep}")
    a(f"s_sub_u32 s{sCNT}, s{sCNT}, 1")
    a(f"s_cbranch_scc0 {L}")
    lab(D)

def setflag(vt0, vt1, soff):
    a(f"v_mov_b32 v{vt0}, 0")
    a(f"v_mov_b32 v{vt1}, s{sTAG}")
    a("s_mov_b64 exec, 1")
    a(f"buffer_store_dword v{vt1}, v{vt0}, {sr(R_WS,4)}, s{soff} offen sc1")
    a("s_mov_b64 exec, -1")

LOC = OPT.get("loc", "t")
KIND = ["t"]
assert not (YM and "h" in LOC)
def st2(instrs):
    if KIND[0] not in LOC:
        for x in instrs: a(x.replace("@", " sc1"))
        return
    L, E = uid("sl"), uid("se")
    a(f"s_cmp_eq_u32 s{sMODE}, 1")
    a(f"s_cbranch_scc1 {L}")
    for x in instrs: a(x.replace("@", " sc1"))
    a(f"s_branch {E}")
    lab(L)
    for x in instrs: a(x.replace("@", LFL))
    lab(E)

def spf(spec):
    for ptr, lines, first, cnt in spec:
        a(f"s_lshl2_add_u32 s{sRET}, s2, s{sWV}")
        a(f"s_mul_i32 s{sRET}, s{sRET}, {128*lines}")
        a(f"s_add_u32 s{sRET}, s{sRET}, s{ptr}")
        a(f"s_addc_u32 s{sRET+1}, s{ptr+1}, 0")
        for i in range(first, first + cnt):
            a(f"s_load_dword s{sST}, s[{sRET}:{sRET+1}], {128*i}")

def spx(kind, first, cnt, w="dword"):
    if kind == "x":
        a(f"s_and_b32 s{sRET}, s{sRB}, 0x1b")
        a(f"s_lshr_b32 s{sRET+1}, s{sRET}, 3")
        a(f"s_and_b32 s{sRET}, s{sRET}, 3")
        a(f"s_lshl2_add_u32 s{sRET}, s{sRET+1}, s{sRET}")
        a(f"s_lshl3_add_u32 s{sRET}, s{sRET}, s{sG}")
        a(f"s_lshl2_add_u32 s{sRET}, s{sRET}, s{sWV}")
        a(f"s_lshl_b32 s{sRET}, s{sRET}, 12")
        ptr = P_BX
    else:
        a(f"s_and_b32 s{sRET}, s2, 1")
        a(f"s_lshl3_add_u32 s{sRET}, s{sRET}, s{sG}")
        a(f"s_and_b32 s{sRET+1}, s{sRB}, 3")
        a(f"s_lshl2_add_u32 s{sRET}, s{sRET}, s{sRET+1}")
        a(f"s_lshl2_add_u32 s{sRET}, s{sRET}, s{sWV}")
        a(f"s_lshl_b32 s{sRET}, s{sRET}, 11")
        ptr = P_BRE if kind == "r" else P_BIM
    a(f"s_add_u32 s{sRET}, s{sRET}, s{ptr}")
    a(f"s_addc_u32 s{sRET+1}, s{ptr+1}, 0")
    for i in range(first, first + cnt):
        a(f"s_load_dword s{sST}, s[{sRET}:{sRET+1}], {128*i}")
SX = OPT.get("sx", "")

def signal(vcnt, vone, off):
    a("s_mov_b64 exec, 1")
    a(f"ds_add_u32 v{vcnt}, v{vone} offset:{off}")
    a("s_mov_b64 exec, -1")

HSL = int(OPT.get("hsl", 0))
def waitc(vcnt, off, target, vt, sleep=0):
    L = uid("wc")
    if ROLE[0] == "H" and _L.cur == "H": sleep = max(sleep, HSL)
    if sleep:
        L2 = uid("wd")
        a(f"s_branch {L2}")
    lab(L)
    if sleep:
        a(f"s_sleep {sleep}")
        lab(L2)
    a(f"ds_read_b32 v{vt}, v{vcnt} offset:{off}")
    a("s_waitcnt lgkmcnt(0)")
    a(f"v_cmp_gt_u32 vcc, {target}, v{vt}")
    a(f"s_cbranch_vccnz {L}")

def gsync(vcnt, vone, vt, off):
    a("s_waitcnt lgkmcnt(0)")
    a(f"s_add_u32 s{sSYNC}, s{sSYNC}, 4")
    signal(vcnt, vone, off)
    waitc(vcnt, off, f"s{sSYNC}", vt)

def mfma32(d, x, y, c=None):
    c = vr(d, 16) if c is None else c
    a(f"v_mfma_f32_32x32x16_bf16 {vr(d,16)}, {vr(x,4)}, {vr(y,4)}, {c}")

def cmul_add(dst, L, g, u):
    a(f"v_pk_fma_f32 {vr(dst,2)}, {vr(L,2)}, {vr(g,2)}, {vr(u,2)} op_sel:[0,0,0] op_sel_hi:[0,1,1]")
    a(f"v_pk_fma_f32 {vr(dst,2)}, {vr(L,2)}, {vr(g,2)}, {vr(dst,2)} op_sel:[1,1,0] op_sel_hi:[1,0,1] neg_lo:[1,0,0]")

def cmul(dst, x, y):
    a(f"v_pk_mul_f32 {vr(dst,2)}, {vr(x,2)}, {vr(y,2)} op_sel:[0,0] op_sel_hi:[0,1]")
    a(f"v_pk_fma_f32 {vr(dst,2)}, {vr(x,2)}, {vr(y,2)}, {vr(dst,2)} op_sel:[1,1,0] op_sel_hi:[1,0,1] neg_lo:[1,0,0]")

def csq(dst, src, t):
    a(f"v_mul_f32 v{t}, v{src+1}, v{src+1}")
    a(f"v_add_f32 v{t+1}, v{src}, v{src}")
    a(f"v_fma_f32 v{dst}, v{src}, v{src}, -v{t}")
    a(f"v_mul_f32 v{dst+1}, v{t+1}, v{src+1}")

def xvoffsets(XO, t0):
    a(f"v_lshrrev_b32 v{t0}, 4, v0")
    a(f"v_and_b32 v{t0+1}, 15, v0")
    for i in range(4):
        a(f"v_add_u32 v{t0+2}, {4*i}, v{t0}")
        a(f"v_xor_b32 v{t0+3}, v{t0+1}, v{t0+2}")
        a(f"v_lshlrev_b32 v{t0+3}, 4, v{t0+3}")
        a(f"v_lshl_add_u32 v{XO+i}, v{t0+2}, 10, v{t0+3}")

def wtr_addr(dst, hhshift, base, t):
    a(f"v_bfe_u32 v{t}, v0, 2, 2")
    a(f"v_bfe_u32 v{t+1}, v0, 4, 1")
    a(f"v_bfe_u32 v{t+2}, v0, 1, 1")
    a(f"v_lshl_add_u32 v{t+1}, v{t+1}, 1, v{t+2}")
    a(f"s_and_b32 s{sT0}, s{sWV}, 1")
    a(f"s_lshl_b32 s{sT0}, s{sT0}, 2")
    a(f"v_add_u32 v{t+1}, s{sT0}, v{t+1}")
    a(f"v_bfe_u32 v{t+2}, v0, 3, 1")
    a(f"v_lshlrev_b32 v{t+2}, 2, v{t+2}")
    a(f"v_xor_b32 v{t+1}, v{t+1}, v{t+2}")
    a(f"v_lshlrev_b32 v{t+1}, 4, v{t+1}")
    a(f"v_lshl_add_u32 v{t+1}, v{t}, 7, v{t+1}")
    a(f"v_and_b32 v{t+2}, 1, v0")
    a(f"v_lshl_add_u32 v{t+1}, v{t+2}, 3, v{t+1}")
    a(f"v_lshrrev_b32 v{t+2}, 5, v0")
    a(f"v_lshl_add_u32 v{t+1}, v{t+2}, {hhshift}, v{t+1}")
    a(f"v_add_u32 v{dst}, {base}, v{t+1}")

def o_offsets():
    a(f"s_and_b32 s{sT0}, s{sSTEP}, 1")
    a(f"s_lshl_b32 s{sT1}, s{sRB}, 1")
    a(f"s_add_u32 s{sT0}, s{sT0}, s{sT1}")
    a(f"s_lshl_b32 s{sT0}, s{sT0}, 2")
    a(f"s_lshr_b32 s{sT1}, s{sSTEP}, 1")
    a(f"s_add_u32 s{sT0}, s{sT0}, s{sT1}")
    a(f"s_lshl_b32 s{sT0}, s{sT0}, 3")
    a(f"s_add_u32 s{sT0}, s{sT0}, s{sG}")
    a(f"s_lshl_b32 s{sT1}, s{sT0}, 10")
    a(f"s_add_u32 s{sT1}, s{sT1}, {WS_O}")
    a(f"s_lshl_b32 s{sT0}, s{sT0}, 7")
    a(f"s_add_u32 s{sT0}, s{sT0}, {WS_FO}")

def sum_check(b):
    a(f"v_pk_add_f32 {vr(b,2)}, {vr(b,2)}, {vr(b+2,2)}")
    a(f"v_add_f32 v{b}, v{b}, v{b+1}")
    a(f"v_cmp_nle_f32 vcc, s{sLO}, v{b}")
    a(f"v_cmp_nge_f32 s[{sM}:{sM+1}], s{sHI}, v{b}")
    a(f"s_or_b64 vcc, vcc, s[{sM}:{sM+1}]")

def reduce_math(b, vl16, flag=True, tagged=False, b1=None, bs=None):
    b1 = b + 16 if b1 is None else b1
    bs = b + 32 if bs is None else bs
    a(f"v_rcp_f32 v{bs+2}, v{bs}")
    for j in range(4):
        a(f"v_pk_add_f32 {vr(b+2*j,2)}, {vr(b+2*j,2)}, {vr(b+8+2*j,2)}")
    for j in range(4):
        a(f"v_pk_add_f32 {vr(b1+2*j,2)}, {vr(b1+2*j,2)}, {vr(b1+8+2*j,2)}")
    for j in range(4):
        a(f"v_pk_add_f32 {vr(b+2*j,2)}, {vr(b+2*j,2)}, {vr(b1+2*j,2)}")
    for j in range(4):
        a(f"v_pk_mul_f32 {vr(b+2*j,2)}, {vr(b+2*j,2)}, {vr(bs+2,2)} op_sel_hi:[1,0]")
    for j in range(4):
        a(f"v_cvt_pk_bf16_f32 v{b+8+j}, v{b+2*j}, v{b+2*j+1}")
    if not flag:
        st2([f"buffer_store_dwordx4 {vr(b+8,4)}, v{vl16}, {sr(R_WS,4)}, s{sT1} offen@"])
        return
    a(f"buffer_store_dwordx4 {vr(b+8,4)}, v{vl16}, {sr(R_WS,4)}, s{sT1} offen sc1")
    a("s_waitcnt vmcnt(0)")
    setflag(b, b + 1, sT0)

STG3 = 1
LOG2E = 1.4426950408889634
L_LO, L_HI = 2.0 ** -60, 2.0 ** 60


class Cnt:
    def __init__(s): s.q = []
    def issue(s, tag, n=1): s.q += [tag] * n
    def need(s, tag):
        if tag not in s.q: return None
        i = len(s.q) - 1 - s.q[::-1].index(tag)
        n = len(s.q) - 1 - i
        s.q = s.q[i + 1:]
        return n
def waits(vm=None, lg=None):
    p = []
    if vm is not None: p.append(f"vmcnt({min(vm,63)})")
    if lg is not None: p.append(f"lgkmcnt({min(lg,15)})")
    if p: a("s_waitcnt " + " ".join(p))

a("s_cmp_ge_u32 s2, 256")
a("s_cbranch_scc1 L_exit")
a(f"s_load_dwordx16 s[16:31], s[0:1], 0")
a(f"s_load_dwordx16 s[32:47], s[0:1], 64")
a(f"s_load_dwordx2 s[48:49], s[0:1], 128")
EPF = [int(x) for x in OPT.get("epf", "").split(",") if x]
if EPF:
    cm("request the first code lines at once instead of one miss after the other")
    a(f"s_getpc_b64 s[{sM}:{sM+1}]")
    a(f"v_subrev_u32 v2, {EPF[0]}, v0")
    a(f"v_cmp_gt_u32 vcc, {EPF[1]}, v2")
    a("v_lshlrev_b32 v2, 7, v2")
    a(f"s_and_saveexec_b64 s[{sRET}:{sRET+1}], vcc")
    a("s_cbranch_execz L_noepf")
    a(f"global_load_dword v31, v2, s[{sM}:{sM+1}] offset:128")
    lab("L_noepf")
    a("s_mov_b64 exec, -1")
if STAMPS:
    for i in range(16): a(f"s_mov_b32 s{80+i}, 0")
    a("s_memrealtime s[80:81]")
    a("s_memtime s[92:93]")
a("v_lshrrev_b32 v1, 6, v0")
a("v_and_b32 v0, 63, v0")
a(f"v_readfirstlane_b32 s{sW}, v1")
a("v_lshlrev_b32 v6, 4, v0")
a("v_lshrrev_b32 v12, 4, v0")
a("v_and_b32 v13, 15, v0")
a(f"s_and_b32 s{sT0}, s2, 7")
a(f"s_lshr_b32 s{sT1}, s2, 3")
a(f"s_and_b32 s{sT2}, s{sT1}, 3")
a(f"s_lshl_b32 s{sRB}, s{sT0}, 2")
a(f"s_add_u32 s{sRB}, s{sRB}, s{sT2}")
a(f"s_lshr_b32 s{sG}, s{sT1}, 2")
a(f"s_and_b32 s{sGRP}, s{sG}, 3")
a(f"s_and_b32 s{sWV}, s{sW}, 3")
a(f"s_add_u32 s{sROT}, s{sG}, s{sRB}" if OPT.get("rot", "0") == "1" else f"s_mov_b32 s{sROT}, 0")
a(f"s_mov_b32 s{R_A+2}, {2048*1024}")
a(f"s_mov_b32 s{R_A+3}, 0x20000")
a(f"s_mov_b32 s{R_B+3}, 0x20000")
a(f"s_cmp_ge_u32 s{sW}, 4")
a("s_cbranch_scc1 L_attn")

vL, vL16_, vL8, vCO = 20, 22, 24, 26
vCNT, vONE, vWT, vRB, vL4, vWO = 2, 3, 4, 5, 6, 7
a("s_setprio 3")
for i in range(4):
    a(f"v_add_u32 v14, {4*i}, v12")
    a(f"v_xor_b32 v15, v13, v14")
    a(f"v_lshlrev_b32 v15, 4, v15")
    a(f"v_lshl_add_u32 v{16+i}, v14, 10, v15")
if OPT.get("map", "0" if "h" in LOC else "1") == "0":
    a(f"s_and_b32 s{sT2}, s{sT1}, 1")
    a(f"s_lshl_b32 s{sC}, s{sT0}, 1")
    a(f"s_add_u32 s{sC}, s{sC}, s{sT2}")
    a(f"s_lshr_b32 s{sPB}, s{sT1}, 1")
else:
    a(f"s_and_b32 s{sC}, s{sT0}, 6")
    a(f"s_lshl_b32 s{sC}, s{sC}, 1")
    a(f"s_add_u32 s{sC}, s{sC}, s{sT2}")
    a(f"s_and_b32 s{sPB}, s{sT0}, 1")
    a(f"s_lshl_b32 s{sPB}, s{sPB}, 3")
    a(f"s_add_u32 s{sPB}, s{sPB}, s{sG}")
a(f"s_lshr_b32 s{sKIND}, s{sG}, 2")
a(f"s_lshl_b32 s{sT3}, s{sPB}, 5")
a("v_and_b32 v38, 31, v0")
a(f"v_add_lshl_u32 v37, v38, s{sT3}, 1")
if YM:
    a(f"s_and_b32 s{sGY}, s{sRB}, 7")
else:
    a(f"s_mov_b32 s{sGY}, s{sG}")
a(f"s_and_b32 s{sT3}, s{sWV}, 1")
a(f"s_lshl1_add_u32 s{sT3}, s{sGY}, s{sT3}")
a(f"s_lshl_b32 s{sT3}, s{sT3}, 5")
a(f"v_add_lshl_u32 v38, v38, s{sT3}, 1")
a(f"s_add_u32 s{sT3}, s{sROT}, s{sWV}")
a(f"s_and_b32 s{sT3}, s{sT3}, 3")
a(f"s_lshl_b32 s{sT0}, s{sRB}, 16")
a(f"s_lshl_b32 s{sT1}, s{sGRP}, 14")
a(f"s_add_u32 s{sT0}, s{sT0}, s{sT1}")
a(f"s_lshl_b32 s{sT1}, s{sT3}, 8")
a(f"s_add_u32 s{sT0}, s{sT0}, s{sT1}")
a(f"s_lshl_b32 s{sT2}, s{sGRP}, 12")
a(f"s_lshl_b32 s{sT1}, s{sWV}, 14")
a(f"s_add_u32 s{sT2}, s{sT2}, s{sT1}")
a(f"s_lshl_b32 s{sT3}, s{sT3}, 12")
a(f"s_lshl_b32 s{sT4}, s{sWV}, 12")
a(f"s_add_u32 s{sT4}, s{sT4}, {L_WKV}")
a(f"s_mov_b32 s{R_B+2}, 16384")
a(f"s_mov_b32 m0, s{sT2}")
a(f"s_cmp_eq_u32 s{sKIND}, 0")
a("s_waitcnt lgkmcnt(0)")
a(f"s_cselect_b32 s{R_B}, s{P_WK}, s{P_WV}")
a(f"s_cselect_b32 s{R_B+1}, s{P_WK+1}, s{P_WV+1}")
a(f"s_mov_b32 s{R_A}, s{P_AX}")
a(f"s_and_b32 s{R_A+1}, s{P_AX+1}, 0xffff")
a(f"s_and_b32 s{R_B+1}, s{R_B+1}, 0xffff")
for i in range(4):
    dma(16 + i, R_A, f"s{sT0}")
    a(f"s_add_u32 m0, s{sT2}, {1024*(i+1)}" if i < 3 else f"s_mov_b32 m0, s{sT4}")
    a("s_nop 0")
for i in range(4):
    dma(6, R_B, f"s{sT3}", imm=1024 * i)
p0, p1, p2, vDSK = 60, 61, 62, 63
a(f"global_load_ushort v{p0}, v37, s[{P_LRE}:{P_LRE+1}]")
a(f"global_load_ushort v{p1}, v37, s[{P_LIM}:{P_LIM+1}]")
a(f"global_load_ushort v{p2}, v37, s[{P_LDT}:{P_LDT+1}]")
a(f"global_load_ushort v{vDSK}, v38, s[{P_DSK}:{P_DSK+1}]")
EP0 = int(OPT.get("ep0", 0))
if EP0:
    a(f"s_cmp_eq_u32 s{sWV}, 0")
    a("s_cbranch_scc0 L_h_noep")
a(f"s_load_dword s{sTAG}, s[{P_WS}:{P_WS+1}], 0")
lab("L_h_noep")
a("s_barrier")

sec("AL")
lab("L_attn"); ROLE[0] = "A"
cm("pull the kernel's code towards this XCD's L2")
a(f"s_getpc_b64 s[{sM}:{sM+1}]")
lab("L_pc")
a(f"s_sub_u32 s{sM}, s{sM}, L_pc - {NAME}_kernel")
a(f"s_subb_u32 s{sM+1}, s{sM+1}, 0")
SPF = int(OPT.get("spf", 0))
if SPF:
    a(f"s_lshl_b32 s{sT3}, s{sWV}, 7")
    a(f"s_add_u32 s{sRET}, s{sM}, s{sT3}")
    a(f"s_addc_u32 s{sRET+1}, s{sM+1}, 0")
    for i in range(SPF):
        a(f"s_load_dword s{sCNT}, s[{sRET}:{sRET+1}], {512*i + 256}")
CSH = int(OPT.get("csh", 32))
NLN = -(-176 // (4 * CSH))
a(f"s_and_b32 s{sT2}, s{sT1}, {CSH-1}")
a(f"s_lshl2_add_u32 s{sT2}, s{sT2}, s{sWV}")
a(f"s_mul_i32 s{sT2}, s{sT2}, {128*NLN}")
CSK = int(OPT.get("csk", 0))
if CSK: a(f"s_add_u32 s{sT2}, s{sT2}, {CSK}")
a("v_lshlrev_b32 v32, 7, v0")
a(f"v_min_u32 v32, {128*(NLN-1)}, v32")
a(f"v_add_u32 v32, s{sT2}, v32")
a(f"v_min_u32 v32, L_slow - {NAME}_kernel, v32")
CPF = int(OPT.get("cpf", 0))
if CPF == 0:
    a(f"s_cmp_ge_u32 s{sT2}, L_slow - {NAME}_kernel")
    a("s_cbranch_scc1 L_nocpf")
    a(f"s_mov_b64 exec, {(1 << NLN) - 1}")
    a(f"global_load_dword v33, v32, s[{sM}:{sM+1}]")
    a("s_mov_b64 exec, -1")
    lab("L_nocpf")
vIDX, vZ, vAD, vAS, vAQ, vPG, vQ = 1, 2, 4, 5, 6, 7, 8
vCA, vONEA = 12, 13
S0, S1, vO, KV = 16, 32, 48, 64
cm("zero sync counters + progress words")
a("v_mov_b32 v2, 0")
a("v_mov_b32 v3, 0")
a("v_mov_b32 v4, 0")
a("v_mov_b32 v5, 0")
a(f"v_add_u32 v7, {L_PROG}, v6")
a("ds_write_b128 v7, v[2:5]")
a("ds_write_b128 v7, v[2:5] offset:1024")
a(f"v_lshl_add_u32 v14, s{sWV}, 2, v12")
a("v_xor_b32 v15, v13, v14")
a("v_lshlrev_b32 v15, 4, v15")
a("v_lshl_add_u32 v16, v14, 10, v15")
def wo_voff(dst, t):
    a(f"v_lshrrev_b32 v{t}, 3, v0")
    a(f"v_and_b32 v{t+1}, 7, v0")
    a(f"v_lshrrev_b32 v{t+2}, 2, v0")
    a(f"v_and_b32 v{t+2}, 4, v{t+2}")
    a(f"v_xor_b32 v{t+1}, v{t+1}, v{t+2}")
    a(f"v_lshlrev_b32 v{t+1}, 4, v{t+1}")
    a(f"v_lshl_add_u32 v{dst}, v{t}, 10, v{t+1}")
wo_voff(17, 20)
def wslice_setup():
    a(f"s_lshl_b32 s{sT0}, s{sG}, 7")
    a(f"s_lshl_b32 s{sT1}, s{sWV}, 15")
    a(f"s_add_u32 s{sT0}, s{sT0}, s{sT1}")
    a(f"s_lshl_b32 s{sT1}, s{sWV}, 12")
wslice_setup()
a(f"s_lshl_b32 s{sT4}, s{sRB}, 16")
a(f"s_lshl_b32 s{sT5}, s{sWV}, 10")
for m in range(1, 4):
    a(f"s_add_u32 s{sT2}, s{sGRP}, {m}")
    a(f"s_and_b32 s{sT2}, s{sT2}, 3")
    a(f"s_lshl_b32 s{sT3}, s{sT2}, 14")
    a(f"s_add_u32 s{95+m}, s{sT3}, s{sT4}")
    a(f"s_lshl_b32 s{sT3}, s{sT2}, 12")
    a(f"s_add_u32 s{98+m}, s{sT3}, s{sT5}")
a(f"s_mov_b32 s{R_B+2}, {512*1024}")
a(f"v_mov_b32 v{vCA}, {L_CNT}")
a(f"v_mov_b32 v{vONEA}, 1")
a("s_waitcnt lgkmcnt(0)")
a(f"s_mov_b32 s{R_A}, s{P_AX}")
a(f"s_and_b32 s{R_A+1}, s{P_AX+1}, 0xffff")
a(f"s_mov_b32 s{R_B}, s{P_WQ}")
a(f"s_and_b32 s{R_B+1}, s{P_WQ+1}, 0xffff")
if STAMPS:
    a("s_mov_b32 s81, 0")
    a("s_mov_b32 s93, 0")
a("s_barrier")
def qops(sl):
    a(f"s_add_u32 s{sT3}, s{sROT}, {sl}")
    a(f"s_and_b32 s{sT3}, s{sT3}, 3")
    a(f"s_lshl_b32 s{sT4}, s{sT3}, 8")
    a(f"s_lshl_b32 s{sT3}, s{sT3}, 17")
    a(f"s_add_u32 s{sT3}, s{sT3}, s{sT0}")
    for m in range(1, 4):
        a(f"s_add_u32 m0, s{98+m}, {L_XA + 16384*sl}")
        a(f"s_add_u32 s{sT2}, s{95+m}, s{sT4}")
        dma(16, R_A, f"s{sT2}")
    for i in range(4):
        a(f"s_add_u32 m0, s{sT1}, {L_WQ + 16384*sl + 1024*i}")
        a(f"s_add_u32 s{sT2}, s{sT3}, {8192*i}")
        dma(17, R_B, f"s{sT2}")
if CPF == 1: a(f"global_load_dword v33, v32, s[{sM}:{sM+1}]")
QW = int(OPT.get("qw", 0))
for sl in range(QW): qops(sl)
PFW, PFU = int(OPT.get("pfw", 1)), OPT.get("pfu", "")
if PFW:
    cm("warm L2 with this workgroup's quarter of its Wq slice")
    a(f"s_and_b32 s{sT2}, s{sRB}, 3")
    a(f"s_lshl2_add_u32 s{sT2}, s{sT2}, s{sWV}")
    a(f"s_lshl_b32 s{sT2}, s{sT2}, 15")
    a(f"s_lshl_b32 s{sT3}, s{sG}, 7")
    a(f"s_add_u32 s{sT2}, s{sT2}, s{sT3}")
    a("v_and_b32 v20, 31, v0")
    a("v_lshlrev_b32 v20, 10, v20")
    a("s_mov_b32 exec_hi, 0")
    a(f"buffer_load_dword v34, v20, {sr(R_B,4)}, s{sT2} offen")
    a("s_mov_b64 exec, -1")
def pfu(which):
    cm("pull this wave's 1/1024 share of later inputs out of HBM")
    a(f"s_lshl2_add_u32 s{sT2}, s2, s{sWV}")
    a("v_lshlrev_b32 v26, 7, v0")
    for i, ch in enumerate(which):
        ptr, lines = {"x": (P_BX, 16), "r": (P_BRE, 4), "i": (P_BIM, 4), "c": (P_CRE, 4), "d": (P_CIM, 4), "o": (P_WO, 4)}[ch]
        a(f"s_mul_i32 s{sT3}, s{sT2}, {128*lines}")
        a(f"v_add_u32 v21, s{sT3}, v26")
        a(f"s_mov_b64 exec, {(1 << lines) - 1}")
        a(f"global_load_dword v{35+i}, v21, s[{ptr}:{ptr+1}]")
        a("s_mov_b64 exec, -1")
if PFU: pfu(PFU)
srd(R_WS, P_WS, WS_SIZE)
a(f"s_mov_b32 s{sSYNC}, 0")
a(f"s_mov_b32 s{sLO}, {f32(L_LO)}")
a(f"s_mov_b32 s{sHI}, {f32(L_HI)}")
cm("prefill V regs: rows 16 and 20 = ones, other rows >=16 zero")
a("v_and_b32 v24, 27, v0")
a("v_cmp_eq_u32 vcc, 16, v24")
a("v_mov_b32 v25, 0x3f803f80")
a("s_nop 0")
a("v_cndmask_b32 v24, 0, v25, vcc")
a("v_mov_b32 v25, v24")
for t in range(16):
    for j in range(4):
        a(f"v_mov_b64 {vr(KV+12*t+4+2*j,2)}, v[24:25]")
a("v_mov_b32 v14, v6")
a("v_lshrrev_b32 v24, 5, v0")
a("v_and_b32 v25, 15, v0")
a("v_lshl_add_u32 v15, v24, 4, v25")
a("v_lshlrev_b32 v15, 4, v15")
a(f"v_mov_b32 v{vIDX}, 0xdddddddd")
a(f"s_lshl_b32 s{sT2}, s{sWV}, 11")
a(f"v_add_u32 v{vAD}, s{sT2}, v14")
a(f"s_lshl_b32 s{sT2}, s{sWV}, 2")
a(f"s_add_u32 s{sT3}, s{sT2}, {L_PART + 8192}")
a(f"v_add_u32 v{vAS}, s{sT3}, v14")
a(f"s_add_u32 s{sT3}, s{sT2}, {L_PROG}")
a(f"v_add_u32 v{vPG}, s{sT3}, v14")
a(f"v_add_u32 v{vAQ}, {L_QF}, v14")
a(f"v_lshlrev_b32 v23, {FSH}, v0")
a("s_barrier")
a(f"ds_read_b32 v20, v{vCA} offset:{C_TAG}")
if "1" in SX: spx("r", 0, 14)
B0 = int(OPT.get("b0", 0))
for sl in range(QW, 4):
    qops(sl)
    if sl + 1 == B0:
        a(f"s_waitcnt vmcnt({7*(B0-1)})")
        a("s_barrier")
PFL = OPT.get("pfl", "")
if PFL: pfu(PFL)
NL = len(PFL)
a(f"s_waitcnt vmcnt({14+NL}) lgkmcnt(0)")
a("s_barrier")
a(f"v_readfirstlane_b32 s{sTAG}, v20")
cm("scalars for the tail")
sKV = sT0
a(f"s_sub_u32 s{sSTEP}, 7, s{sWV}")
o_offsets()
a(f"s_mov_b32 s{sF1}, s{sT0}")
a(f"s_mov_b32 s{sF2}, s{sT1}")
a(f"s_mul_i32 s{sT2}, s{sSTEP}, {PSTRIDE}")
a(f"s_lshr_b32 s{sT4}, s{sWV}, 1")
a(f"s_lshl1_add_u32 s{sYG}, s{sRB}, s{sT4}")
a(f"s_lshl_b32 s{sCG}, s{sYG}, 12")
a(f"s_add_u32 s{sCG}, s{sCG}, {WS_FO + 16*128}")
srd(R_B, P_OUT, 2048 * 4096)
a(f"s_and_b32 s{sT0}, s{sWV}, 1")
a(f"s_lshl1_add_u32 s{sT0}, s{sG}, s{sT0}")
a(f"s_lshl_b32 s{sT0}, s{sT0}, 7")
a(f"s_lshl_b32 s{sT3}, s{sYG}, 17")
a(f"s_add_u32 s{sT3}, s{sT3}, s{sT0}")
a(f"s_lshl_b32 s{sT6}, s{sYG}, 15")
a(f"s_add_u32 s{sT6}, s{sT6}, {WS_O + 16384}")
a(f"s_mul_i32 s{sT4}, s{sWV}, {PSTRIDE}")
a(f"s_lshl_b32 s{sT5}, s{sWV}, 9")
a(f"s_add_u32 s{sT5}, s{sT5}, {L_CS}")
a(f"s_lshl_b32 s{sT0}, s{sWV}, {FSH+6}")
a(f"s_add_u32 s{sT0}, s{sT0}, {WS_FKV}")
stamp(1)
if "2" in SX: spx("i", 0, 14)
SU = OPT.get("su", "")
if "a" in SU: spf([(P_BX, 16, 0, 14)])
if "b" in SU: spf([(P_BRE, 4, 0, 4), (P_BIM, 4, 0, 4), (P_BX, 16, 0, 6)])
a(f"s_waitcnt vmcnt({7+NL})")
a("s_barrier")
PE = int(OPT.get("pe", 1))
if PE == 2:
    a(f"buffer_load_dword v22, v23, {sr(R_WS,4)}, s{sT0} offen sc1")
    a(f"s_waitcnt vmcnt(1)")
else:
    a(f"s_waitcnt vmcnt({NL})")
if PE == 1: a(f"buffer_load_dword v22, v23, {sr(R_WS,4)}, s{sT0} offen sc1")
a("s_barrier")
a("s_branch L_a2")
sec("A")
lab("L_a2")
stamp(2)
for _ in range(int(OPT.get("pd", 0))): a("s_sleep 2")
a(f"s_mov_b32 s{sCNT}, {POLL_LIMIT}")
if PE: a("s_branch L_a_kvq")
lab("L_a_kvp")
a(f"buffer_load_dword v22, v23, {sr(R_WS,4)}, s{sT0} offen sc1")
lab("L_a_kvq")
a("s_waitcnt vmcnt(0)")
a(f"v_xor_b32 v22, s{sTAG}, v22")
a("v_cmp_lt_u32 vcc, 15, v22")
a("s_cbranch_vccz L_a_kvok")
a(f"s_sub_u32 s{sCNT}, s{sCNT}, 1")
a("s_cbranch_scc0 L_a_kvp")
lab("L_a_kvok")
stamp(4)
a(f"s_lshl_b32 s{sT0}, s{sWV}, 15")
a(f"s_add_u32 s{sT0}, s{sT0}, {WS_KV}")
a(f"s_mov_b32 s{sM}, 0xffff")
a(f"s_mov_b32 s{sM+1}, 0xffff")
def kvload(tp):
    for t in (2*tp, 2*tp+1):
        a(f"buffer_load_dwordx4 {vr(KV+12*t,4)}, v14, {sr(R_WS,4)}, s{sT0} offen offset:{2048*(t&1)} sc1")
    a(f"s_mov_b64 exec, s[{sM}:{sM+1}]")
    for t in (2*tp, 2*tp+1):
        a(f"buffer_load_dwordx4 {vr(KV+12*t+4,4)}, v15, {sr(R_WS,4)}, s{sT0} offen offset:{2048*(t&1)+1024} sc1")
        a(f"buffer_load_dwordx4 {vr(KV+12*t+8,4)}, v15, {sr(R_WS,4)}, s{sT0} offen offset:{2048*(t&1)+1536} sc1")
    a("s_mov_b64 exec, -1")
    if tp < 7: a(f"s_add_u32 s{sT0}, s{sT0}, 4096")
NINIT = int(OPT.get("ninit", 3))
A4POS = int(OPT.get("a4", 8))
ABPOS = int(OPT.get("ab", 0))
NB = int(OPT.get("nb", NINIT))
for tp in range(NB):
    kvload(tp)
cm("do all 32 workgroups of this id class share this XCD?")
a(f"s_bfe_u32 s{sT1}, s2, 0x20001")
a(f"s_cmp_eq_u32 s{sT1}, s{sWV}")
a("s_cbranch_scc0 L_a_nomode")
a(f"s_getreg_b32 s{sT1}, hwreg(HW_REG_XCC_ID, 0, 4)")
a(f"v_cmp_ne_u32 vcc, s{sT1}, v22")
a("s_bitcmp1_b32 s2, 0")
a(f"s_cselect_b32 s{sT1}, vcc_hi, vcc_lo")
a(f"s_cmp_eq_u32 s{sT1}, 0")
a(f"s_cselect_b32 s{sT1}, {2 if OPT.get('nolocal') else 1}, 2")
a(f"v_mov_b32 v21, s{sT1}")
a(f"ds_write_b32 v{vCA}, v21 offset:{C_MODE}")
lab("L_a_nomode")
assert NINIT < 8
stamp(5)
a("s_barrier")
a("s_setprio 1")
a(f"ds_read_b128 {vr(vQ,4)}, v{vAQ}")
a(f"v_add_u32 v{vAQ}, 1024, v{vAQ}")
for tp in range(NB, NINIT): kvload(tp)
a(f"s_waitcnt vmcnt({6*(NINIT-1)+4}) lgkmcnt(0)")
stamp(6)
cstamp(10)

K_ = lambda t: KV + 12 * t
V1 = lambda t: KV + 12 * t + 4
V2 = lambda t: KV + 12 * t + 8
def ex(X, i): a(f"v_exp_f32 v{X+i}, v{X+i}")
def exs(X, lo, hi):
    for i in range(lo, hi): ex(X, i)
def smf(v, p): a(f"v_smfmac_f32_32x32x32_bf16 {vr(vO,16)}, {vr(v,4)}, {vr(p,8)}, v{vIDX}")
def qk(d, t): mfma32(d, K_(t), vQ, "0")
def zeroO(): a(f"v_mfma_f32_32x32x8_bf16 {vr(vO,16)}, {vr(vZ,2)}, {vr(vZ,2)}, 0")
def dump():
    a(f"ds_write_b128 v{vAD}, {vr(vO,4)}")
    a(f"ds_write_b128 v{vAD}, {vr(vO+4,4)} offset:1024")
    a(f"ds_write_b32 v{vAS}, v{vO+8}")
    a(f"ds_write_b32 v{vPG}, v{vAS}")

KVS = int(OPT.get('kvs', 2))
QPF = int(OPT.get('qpf', 0))
PQ, PS1 = [int(x) for x in OPT.get('pos', '7,12').split(',')]
assert not QPF
UN2 = int(OPT.get("un2", 0))
def dump2(off):
    a(f"ds_write_b128 v{vAD}, {vr(vO,4)}" + (f" offset:{off}" if off else ""))
    a(f"ds_write_b128 v{vAD}, {vr(vO+4,4)} offset:{1024+off}")
    a(f"ds_write_b32 v{vAS}, v{vO+8}")
    a(f"ds_write_b32 v{vPG}, v{vAS}")
def tiles_1_15(first):
    issued = [NINIT + 1 if first else 8]
    def preqk(tn):
        if first and tn % 2 == 0 and tn < 16:
            a(f"s_waitcnt vmcnt({6*(min(issued[0],8) - 1 - tn//2)})")
    def more(t):
        if first and t % KVS == 0 and issued[0] < 8:
            kvload(issued[0]); issued[0] += 1
            if issued[0] in (A4POS, ABPOS): signal(vCA, vONEA, C_A4)
    for t in range(1, 16):
        X, Y = (S0, S1) if t % 2 == 0 else (S1, S0)
        exs(X, 0, 2); smf(V2(t - 1), Y + 8); exs(X, 2, PQ)
        if t == 15:
            a("s_waitcnt lgkmcnt(0)")
            if DBG == "steps":
                a(f"s_sub_u32 m0, 7, s{sSTEP}")
                a("s_nop 0")
                a(f"s_movreld_b32 s81, s{sST}")
            qk(Y, 0)
        else:
            preqk(t + 1)
            qk(Y, t + 1)
        if t == 14 and DBG == "steps": a(f"s_memtime s[{sST}:{sST+1}]")
        if t == 14:
            a(f"ds_read_b128 {vr(vQ,4)}, v{vAQ}")
            a(f"v_add_u32 v{vAQ}, 1024, v{vAQ}")
        exs(X, PQ, PS1); smf(V1(t), X); more(t); exs(X, PS1, 16)

qk(S0, 0)
zeroO()
a(f"s_mov_b32 s{sSTEP}, 7")
kvload(NINIT)
if NINIT + 1 in (A4POS, ABPOS): signal(vCA, vONEA, C_A4)
exs(S0, 0, 4); qk(S1, 1); exs(S0, 4, 12)
a(f"s_waitcnt vmcnt({6*NINIT})")
smf(V1(0), S0); exs(S0, 12, 16)
tiles_1_15(True)
a(f"s_mov_b32 s{sSTEP}, 6")
a("s_nop 0")
lines.append(".p2align 6")
lab("L_a_loop")
cm("tile 0: finish the previous q-tile (6 exps = 48+ cycles cover the accumulator latency), restart the accumulator")
X, Y = S0, S1
smf(V2(15), Y + 8); exs(X, 0, 3); qk(Y, 1); exs(X, 3, 6)
dump()
ex(X, 6); zeroO(); exs(X, 7, 12)
a(f"v_add_u32 v{vAD}, {PSTRIDE}, v{vAD}")
a(f"v_add_u32 v{vAS}, {PSTRIDE}, v{vAS}")
smf(V1(0), X)
exs(X, 12, 16)
tiles_1_15(False)
a(f"s_sub_u32 s{sSTEP}, s{sSTEP}, 1")
a("s_cbranch_scc0 L_a_loop")

lab("L_a_fin")
smf(V2(15), S1 + 8)
a("v_lshlrev_b32 v14, 4, v0")
a(f"v_mov_b32 v{vCA}, {L_CNT}")
a(f"v_add_u32 v9, s{sT2}, v14")
a("v_and_b32 v10, 3, v0")
a("v_lshlrev_b32 v10, 2, v10")
a(f"v_add_u32 v10, {L_PROG}, v10")
a(f"s_add_u32 s{sT2}, s{sT2}, {L_PART + 8192}")
a(f"v_add_u32 v6, s{sT4}, v14")
a("v_lshlrev_b32 v16, 2, v0")
a(f"v_mov_b32 v17, s{sTAG}")
a("s_setprio 3")
dump()
a("v_lshlrev_b32 v7, 3, v0")
a(f"v_add_u32 v7, s{sT5}, v7")
a(f"s_mov_b32 s{sKIND}, 0")
stamp(7)
cstamp(11)
lab("L_a_rw")
a("ds_read_b32 v11, v10")
a(f"ds_read_b32 v8, v{vCA} offset:{C_MODE}")
a("ds_read_b128 v[52:55], v9 offset:8192")
for w in range(8):
    a(f"ds_read_b128 {vr(20+4*w,4)}, v9 offset:{1024*w}")
a("ds_read_b128 v[56:59], v6 offset:8192")
WSH = int(OPT.get("wsh", 1))
if WSH:
    a(f"ds_read_b32 v60, v{vCA} offset:{C_GH}")
    a("ds_read_b64 v[4:5], v7")
a(f"s_waitcnt lgkmcnt({11 if WSH else 9})")
a(f"v_cmp_gt_u32 vcc, s{sT2}, v11")
a("s_cbranch_vccnz L_a_rw")
a(f"v_readfirstlane_b32 s{sMODE}, v8")
a(f"s_mov_b32 s{sT1}, s{sF2}")
sum_check(52)
a(f"s_waitcnt lgkmcnt({3 if WSH else 1})")
a("s_cbranch_scc1 L_a_bad1")
reduce_math(20, 14, flag=False, bs=52)
a("v_and_b32 v15, 15, v0")
a("v_lshlrev_b32 v15, 7, v15")
a(f"s_lshl_b32 s{sT0}, s{sWV}, 2")
a(f"v_add_u32 v10, s{sT0}, v{vCA}")
AO, AW, AC = 88, 152, 48
NSH = int(OPT.get("nsh", 12)); WG0 = int(OPT.get("wg0", 15))
def awread(k):
    o = PSTRIDE * (k // 4) + 2048 * (k % 4)
    a(f"ds_read_b64_tr_b16 {vr(AW+4*k,2)}, v4 offset:{o}")
    a(f"ds_read_b64_tr_b16 {vr(AW+4*k+2,2)}, v4 offset:{o+1024}")
if WSH:
    a("s_waitcnt lgkmcnt(0)")
    a("v_cmp_gt_u32 vcc, NSYNC_B2, v60")
    a("s_cbranch_vccnz L_a_nosh")
    a(f"s_mov_b32 s{sKIND}, 1")
    for k in range(NSH): awread(k)
    lab("L_a_nosh")
a("s_waitcnt vmcnt(0)")
a("s_mov_b32 exec_hi, 0")
st2([f"buffer_store_dword v17, v16, {sr(R_WS,4)}, s{sF1} offen@"])
a("s_mov_b64 exec, -1")
lab("L_a_ok1")
stamp(8)
if not WSH: a("s_waitcnt lgkmcnt(0)")
sum_check(56)
a("s_cbranch_scc1 L_a_bad2")
lab("L_a_ok2")
cm("output projection, last 16 heads")
poll(15, f"s{sCG}", 8)
stamp(9)
for g in range(16):
    if g % 4 == 0 and g: a(f"s_add_u32 s{sT6}, s{sT6}, 4096")
    a(f"buffer_load_dwordx4 {vr(AO+4*g,4)}, v14, {sr(R_WS,4)}, s{sT6} offen offset:{1024*(g%4)} sc1")
    if g == WG0:
        a(f"s_cmp_eq_u32 s{sKIND}, 1")
        a("s_cbranch_scc1 L_a_wd")
        lab("L_a_ww")
        a(f"ds_read_b32 v11, v{vCA} offset:{C_GH}")
        a("ds_read_b64 v[4:5], v7")
        a("s_waitcnt lgkmcnt(0)")
        a("v_cmp_gt_u32 vcc, NSYNC_B2, v11")
        a("s_cbranch_vccnz L_a_ww")
        for k in range(NSH): awread(k)
        lab("L_a_wd")
YLT = int(OPT.get("ylt", 0))
if YLT == 1: signal(vCA, vONEA, C_S)
for k in range(NSH, 16): awread(k)
a(f"ds_read_b32 v11, v10 offset:{C_HA}")
for i in range(4):
    a(f"ds_read_b128 {vr(16+4*i,4)}, v6 offset:{1024*i}")
cm("epoch update by WG0 (every workgroup has read the old value long ago)")
a(f"s_lshl2_add_u32 s{sT0}, s2, s{sWV}")
a(f"s_cmp_eq_u32 s{sT0}, 0")
a("s_cbranch_scc0 L_a_noep")
setflag(8, 9, sT0)
lab("L_a_noep")
for g in range(16):
    a(f"s_waitcnt vmcnt({15-g}) lgkmcnt({min(15, 5 + 2*(15-g))})")
    mfma32(AC, AO + 4*g, AW + 4*g, "0" if g == 0 else None)
if YLT == 2: signal(vCA, vONEA, C_S)
stamp(13)
a("s_waitcnt lgkmcnt(0)")
a("v_cmp_eq_u32 vcc, 0, v11")
a("s_cbranch_vccz L_a_hok")
lab("L_a_hw")
a(f"ds_read_b32 v11, v10 offset:{C_HA}")
for i in range(4):
    a(f"ds_read_b128 {vr(16+4*i,4)}, v6 offset:{1024*i}")
a("s_waitcnt lgkmcnt(0)")
a("v_cmp_eq_u32 vcc, 0, v11")
a("s_cbranch_vccnz L_a_hw")
lab("L_a_hok")
a("s_nop 8")
stamp(14)
for j in range(8):
    a(f"v_pk_add_f32 {vr(AC+2*j,2)}, {vr(AC+2*j,2)}, {vr(16+2*j,2)}")
    for r in (2*j, 2*j + 1):
        a(f"s_add_u32 s{sT1}, s{sT3}, {4096 * (8*(r//4) + r%4)}")
        a(f"buffer_store_dword v{AC+r}, v5, {sr(R_B,4)}, s{sT1} offen{OUTFL}")
a("s_branch L_end")

sec("P")
ROLE[0] = "H"
if STAMPS:
    a("s_mov_b32 s81, 0")
    a("s_mov_b32 s92, 0")
    a("s_mov_b32 s93, 0")
srd(R_WS, P_WS, WS_SIZE)
a("v_xor_b32 v14, v12, v13")
a("v_lshlrev_b32 v14, 4, v14")
a("v_lshl_add_u32 v14, v13, 8, v14")
a(f"v_add_u32 v8, s{sT2}, v14")
for ks in range(1, 4):
    a(f"v_xor_b32 v{8+ks}, {64*ks}, v8")
a("v_lshrrev_b32 v14, 2, v13")
a("v_lshl_add_u32 v14, v12, 3, v14")
a("v_lshlrev_b32 v14, 5, v14")
a("v_and_b32 v15, 3, v0")
a("v_lshl_add_u32 v14, v15, 3, v14")
a(f"v_add_u32 v14, s{sT4}, v14")
a(f"s_lshl_b32 s{sT0}, s{sWV}, 10")
a(f"s_add_u32 s{sT0}, s{sT0}, {L_KVP}")
a(f"v_add_u32 v15, s{sT0}, v6")
a(f"s_lshl_b32 s{sT0}, s{sRB}, 2")
a(f"s_add_u32 s{sT0}, s{sT0}, s{sGRP}")
a(f"s_lshr_b32 s{sT1}, s{sT0}, 1")
a(f"s_lshl_b32 s{sT1}, s{sT1}, 1")
a(f"s_add_u32 s{sT1}, s{sT1}, s{sKIND}")
a(f"s_lshl_b32 s{sT1}, s{sT1}, 10")
a(f"s_and_b32 s{sT2}, s{sT0}, 1")
a(f"s_add_u32 s{sT3}, s{sKIND}, 8")
a(f"s_lshl_b32 s{sT2}, s{sT2}, s{sT3}")
a(f"s_add_u32 s{sT1}, s{sT1}, s{sT2}")
a(f"s_add_u32 s{sT5}, s{sT1}, {WS_KV}")
a(f"s_lshl_b32 s{sT0}, s{sT0}, 1")
a(f"s_add_u32 s{sT0}, s{sT0}, s{sKIND}")
a(f"s_lshl_b32 s{sT0}, s{sT0}, {FSH}")
a(f"s_add_u32 s{sT6}, s{sT0}, {WS_FKV}")
a(f"s_cmp_eq_u32 s{sKIND}, 0")
a(f"s_cselect_b32 s{sT0}, 9, 3")
a(f"s_cselect_b32 s{sT1}, 3, 8")
a("v_and_b32 v34, 1, v12")
a("v_lshrrev_b32 v35, 1, v12")
a("v_lshlrev_b32 v16, 4, v13")
a(f"v_lshl_add_u32 v16, v34, s{sT0}, v16")
a(f"v_lshl_add_u32 v16, v35, s{sT1}, v16")
a(f"v_mov_b32 v{vCNT}, {L_CNT}")
a(f"v_mov_b32 v{vONE}, 1")
a("s_waitcnt lgkmcnt(0)")
a(f"s_mul_i32 s{sTAG}, s{sTAG}, 1664525")
a(f"s_add_u32 s{sTAG}, s{sTAG}, 1013904223")
if EP0:
    a(f"s_cmp_eq_u32 s{sWV}, 0")
    a("s_cbranch_scc0 L_h_notag")
a(f"v_mov_b32 v36, s{sTAG}")
a(f"ds_write_b32 v{vCNT}, v36 offset:{C_TAG}")
lab("L_h_notag")
a(f"s_cmp_eq_u32 s{sKIND}, 0")
a(f"s_waitcnt vmcnt(4)")
stamp(1)
b = 128
for ks in range(4):
    a(f"ds_read_b128 {vr(b+8*ks,4)}, v{8+ks}")
    a(f"ds_read_b64_tr_b16 {vr(b+8*ks+4,2)}, v14 offset:{1024*ks}")
    a(f"ds_read_b64_tr_b16 {vr(b+8*ks+6,2)}, v14 offset:{1024*ks+128}")
def kvproj(kind):
    for ks in range(4):
        a(f"s_waitcnt lgkmcnt({9 - 3*ks})")
        x, w = vr(b+8*ks, 4), vr(b+8*ks+4, 4)
        if kind == 0: x, w = w, x
        a(f"v_mfma_f32_16x16x32_bf16 v[40:43], {x}, {w}, {'0' if ks == 0 else 'v[40:43]'}")
a("s_cbranch_scc0 L_h_vproj")
kvproj(0)
a("s_branch L_h_kvdone")
lab("L_h_vproj")
kvproj(1)
lab("L_h_kvdone")
a(f"s_cmp_eq_u32 s{sWV}, 0")
a("s_cbranch_scc1 L_h_pub")
a("s_nop 5")
a("ds_write_b128 v15, v[40:43]")
a("s_waitcnt lgkmcnt(0)")
a("s_barrier")
a("s_branch L_h_common")
lab("L_h_pub")
a("s_barrier")
for i in range(1, 4):
    a(f"ds_read_b128 {vr(40+4*i,4)}, v15 offset:{1024*i}")
a("s_nop 1")
a("s_waitcnt lgkmcnt(0)")
a("v_pk_add_f32 v[40:41], v[40:41], v[44:45]")
a("v_pk_add_f32 v[42:43], v[42:43], v[46:47]")
a("v_pk_add_f32 v[48:49], v[48:49], v[52:53]")
a("v_pk_add_f32 v[50:51], v[50:51], v[54:55]")
a("v_pk_add_f32 v[40:41], v[40:41], v[48:49]")
a("v_pk_add_f32 v[42:43], v[42:43], v[50:51]")
a("v_cvt_pk_bf16_f32 v40, v40, v41")
a("v_cvt_pk_bf16_f32 v41, v42, v43")
a(f"buffer_store_dwordx2 v[40:41], v16, {sr(R_WS,4)}, s{sT5} offen sc1")
dstamp("p", 5)
a("s_branch L_h_common")
sec("HQ")
lab("L_h_common")
if "3" in SX: spx("x", 0, 15)
a(f"s_mov_b32 s{sSYNC}, 0")
a("v_and_b32 v17, 31, v0")
a("v_lshrrev_b32 v18, 5, v0")
p0, p1, p2, vDSK = 60, 61, 62, 63
cm("Q projection addresses")
QXA = list(range(48, 56))
a(f"s_lshr_b32 s{sT0}, s{sWV}, 1")
a(f"s_lshl_b32 s{sT0}, s{sT0}, 13")
a("v_xor_b32 v34, v13, v18")
a("v_lshlrev_b32 v34, 4, v34")
a("v_lshl_add_u32 v34, v17, 8, v34")
a(f"v_add_u32 v{QXA[0]}, s{sT0}, v34")
for ks in range(1, 8):
    a(f"v_xor_b32 v{QXA[ks]}, {32*ks}, v{QXA[0]}")
wtr_addr(vWT, 9, L_R1, 34)
a(f"v_lshl_add_u32 v56, v18, 9, v{vWT}")
a(f"v_add_u32 v56, {(L_WQ - L_R1) & 0xffffffff}, v56")
a(f"s_and_b32 s{sT1}, s{sWV}, 1")
a(f"s_lshl_b32 s{sT1}, s{sT1}, 12")
a(f"s_lshr_b32 s{sT2}, s{sWV}, 1")
a(f"s_lshl_b32 s{sT2}, s{sT2}, 10")
a(f"s_add_u32 s{sT1}, s{sT1}, s{sT2}")
a(f"s_add_u32 s{sT1}, s{sT1}, {L_QF}")
a(f"v_add_u32 v57, s{sT1}, v6")
a(f"v_mov_b32 v58, {f32(0.25 * LOG2E)}")
a("v_mov_b32 v59, v58")
cm("SSM offsets and addresses")
a(f"s_mov_b32 s{R_A}, s{P_BX}")
a(f"s_and_b32 s{R_A+1}, s{P_BX+1}, 0xffff")
srd(R_B, P_BRE, 512 * 1024)
srd(R_C, P_BIM, 512 * 1024)
a(f"s_mov_b32 s{sLO}, {f32(L_LO)}")
a(f"s_mov_b32 s{sHI}, {f32(L_HI)}")
a(f"s_lshl_b32 s{sT0}, s{sC}, 17")
a(f"s_lshl_b32 s{sT1}, s{sWV}, 15")
a(f"s_add_u32 s{sT3}, s{sT0}, s{sT1}")
a(f"s_lshr_b32 s{sT0}, s{sWV}, 1")
a(f"s_lshl1_add_u32 s{sYG}, s{sRB}, s{sT0}")
if YM:
    a(f"s_and_b32 s{sYY}, s{sRB}, 24")
    a(f"s_add_u32 s{sYY}, s{sYY}, s{sG}")
    a(f"s_lshl1_add_u32 s{sYY}, s{sYY}, s{sT0}")
else:
    a(f"s_mov_b32 s{sYY}, s{sYG}")
a(f"s_and_b32 s{sT0}, s{sWV}, 1")
a(f"s_lshl1_add_u32 s{sCG}, s{sGY}, s{sT0}")
a(f"s_lshl_b32 s{sT4}, s{sYY}, 15")
a(f"s_lshl_b32 s{sT2}, s{sCG}, 6")
a(f"s_add_u32 s{sT4}, s{sT4}, s{sT2}")
wo_voff(vWO, 34)
a("v_lshrrev_b32 v36, 2, v0")
a("v_and_b32 v34, 3, v36")
a("v_bfe_u32 v35, v36, 2, 1")
a("v_lshl_add_u32 v34, v35, 4, v34")
a("v_lshrrev_b32 v35, 3, v36")
a("v_lshl_add_u32 v34, v35, 2, v34")
a("v_and_b32 v37, 3, v0")
a("v_lshlrev_b32 v35, 4, v37")
a("v_lshl_add_u32 v8, v34, 10, v35")
a("v_add_u32 v9, 8192, v8")
a(f"v_mul_u32_u24 v{vRB}, {RSTR}, v17")
a(f"v_lshl_add_u32 v{vRB}, v18, 4, v{vRB}")
a(f"v_add_u32 v{vRB}, {L_R1}, v{vRB}")
a(f"s_lshl_b32 s{sT1}, s{sWV}, 11")
a(f"s_add_u32 s{sT1}, s{sT1}, {L_SCR}")
a("v_xor_b32 v34, v12, v37")
a("v_lshlrev_b32 v34, 4, v34")
a("v_lshl_add_u32 v34, v36, 6, v34")
a(f"v_add_u32 v10, s{sT1}, v34")
a("v_bfe_u32 v34, v0, 2, 2")
a("v_xor_b32 v35, v34, v18")
a("v_lshlrev_b32 v35, 4, v35")
a("v_lshl_add_u32 v35, v17, 6, v35")
a(f"v_add_u32 v11, s{sT1}, v35")
a("v_xor_b32 v12, 32, v11")
a("v_lshl_add_u32 v34, v18, 3, v34")
a("v_lshlrev_b32 v34, 6, v34")
a("v_bfe_u32 v35, v0, 4, 1")
a("v_lshl_add_u32 v34, v35, 5, v34")
a("v_lshl_add_u32 v34, v37, 3, v34")
a(f"v_add_u32 v19, s{sT1}, v34")
a("v_lshlrev_b32 v34, 6, v17")
a("v_lshl_add_u32 v34, v18, 5, v34")
a(f"v_add_u32 v16, s{sT1}, v34")
a("v_lshlrev_b32 v38, 4, v18")
a("v_lshl_add_u32 v29, v17, 10, v38")
a("v_lshlrev_b32 v14, 4, v17")
a("s_waitcnt vmcnt(1)")
a(f"s_cmp_eq_u32 s{sWV}, 0")
a("s_cbranch_scc1 L_h_pw")
a("s_waitcnt vmcnt(0)")
lab("L_h_pw")
FPOS = int(OPT.get("fpos", 1))
def kvflag():
    a("s_waitcnt vmcnt(0)")
    a(f"s_cmp_eq_u32 s{sWV}, 0")
    a("s_cbranch_scc0 L_h_nopub")
    a(f"s_getreg_b32 s{sT0}, hwreg(HW_REG_XCC_ID, 0, 4)")
    a(f"s_xor_b32 s{sT0}, s{sT0}, s{sTAG}")
    a("v_mov_b32 v34, 0")
    a(f"v_mov_b32 v35, s{sT0}")
    a("s_mov_b64 exec, 1")
    a(f"buffer_store_dword v35, v34, {sr(R_WS,4)}, s{sT6} offen sc1")
    a("s_mov_b64 exec, -1")
    stamp(2)
    lab("L_h_nopub")
if FPOS == 0: kvflag()
cm("SSM parameters")
q0, q1, q2, q3, q4 = 64, 65, 66, 67, 68
a(f"v_lshlrev_b32 v{p0}, 16, v{p0}")
a(f"v_lshlrev_b32 v{p1}, 16, v{p1}")
a(f"v_lshlrev_b32 v{p2}, 16, v{p2}")
a(f"v_mul_f32 v{p2}, {f32(LOG2E)}, v{p2}")
a(f"v_exp_f32 v{p2}, v{p2}")
a("s_nop 0")
a(f"v_cvt_pk_bf16_f32 v{p2}, v{p2}, v{p2}")
a(f"v_and_b32 v{p2}, 0xffff0000, v{p2}")
a(f"v_mul_f32 v{q0}, v{p2}, v{p0}")
a(f"v_mul_f32 v{q1}, v{p2}, v{p1}")
a(f"v_mul_f32 v{q0}, {f32(LOG2E)}, v{q0}")
a(f"v_mul_f32 v{q1}, {f32(1/(2*math.pi))}, v{q1}")
a(f"v_exp_f32 v{q0}, v{q0}")
a(f"v_rndne_f32 v{q2}, v{q1}")
a(f"v_sub_f32 v{q1}, v{q1}, v{q2}")
a(f"v_cos_f32 v{q2}, v{q1}")
a(f"v_sin_f32 v{q3}, v{q1}")
a(f"v_mul_f32 v{q4}, v{p0}, v{p0}")
a(f"v_fma_f32 v{q4}, v{p1}, v{p1}, v{q4}")
a(f"v_mul_f32 v{vL}, v{q0}, v{q2}")
a(f"v_mul_f32 v{vL+1}, v{q0}, v{q3}")
a(f"v_rcp_f32 v{q4}, v{q4}")
a(f"v_add_f32 v{q2}, -1.0, v{vL}")
a(f"v_add_f32 v{q4}, v{q4}, v{q4}")
a(f"v_mul_f32 v{q0}, v{q2}, v{p0}")
a(f"v_fma_f32 v{q0}, v{vL+1}, v{p1}, v{q0}")
a(f"v_mul_f32 v{q1}, v{vL+1}, v{p0}")
a(f"v_fma_f32 v{q1}, -v{q2}, v{p1}, v{q1}")
a(f"v_mul_f32 v{vCO}, v{q0}, v{q4}")
a(f"v_mul_f32 v{vCO+1}, v{q1}, v{q4}")
cmul(70, vL, vL); cmul(72, 70, 70); cmul(vL8, 72, 72); cmul(vL16_, vL8, vL8)
cm("skip term x*D via a diagonal B operand -> YACC")
YACC = 112
a("v_and_b32 v64, 1, v0")
a("v_lshlrev_b32 v64, 4, v64")
a(f"v_lshlrev_b32 v{vDSK}, v64, v{vDSK}")
a("v_lshrrev_b32 v64, 1, v17")
a("v_lshlrev_b32 v65, 2, v18")
a("v_sub_u32 v64, v64, v65")
for i in range(0, 8, 2):
    a(f"v_cmp_eq_u32 s[{sM}:{sM+1}], {8*(i//4) + i%4}, v64")
    a(f"v_cmp_eq_u32 vcc, {8*(i//4) + i%4 + 1}, v64")
    a("s_nop 0")
    a(f"v_cndmask_b32 v{104+i}, 0, v{vDSK}, s[{sM}:{sM+1}]")
    a(f"v_cndmask_b32 v{105+i}, 0, v{vDSK}, vcc")
if FPOS == 1: kvflag()
cm("per-lane powers: PS = L16^seg, M0 = L256^seg (if valid), M1 = M0*L128 (if valid)")
vPS, vM0, vM1, vO0, vO1 = 96, 98, 100, 102, 103
a(f"s_mov_b32 s{sM}, 0")
a(f"s_mov_b32 s{sM+1}, -1")
def powsel(dst, b1, b2, b4):
    a(f"v_cndmask_b32 v{dst}, 1.0, v{b1}, s[{sM}:{sM+1}]")
    a(f"v_cndmask_b32 v{dst+1}, 0, v{b1+1}, s[{sM}:{sM+1}]")
    for bit, b in ((0, b2), (1, b4)):
        L = uid("ps")
        a(f"s_bitcmp1_b32 s{sWV}, {bit}")
        a(f"s_cbranch_scc0 {L}")
        cmul(66, dst, b)
        a(f"v_mov_b64 {vr(dst,2)}, v[66:67]")
        lab(L)
cmul(68, vL16_, vL16_); cmul(70, 68, 68); cmul(72, 70, 70)
cmul(74, 72, 72); cmul(76, 74, 74); cmul(78, 76, 76)
powsel(vPS, vL16_, 68, 70)
powsel(vM0, 74, 76, 78)
cmul(vM1, vM0, 72)
a(f"s_lshl_b32 s{sT0}, s{sWV}, 2")
a(f"s_sub_u32 s{sT0}, s{sC}, s{sT0}")
a(f"s_sub_u32 s{sT0}, s{sT0}, 1")
a("v_lshlrev_b32 v30, 1, v18")
a(f"v_sub_u32 v{vO0}, s{sT0}, v30")
a(f"v_add_u32 v{vO1}, -1, v{vO0}")
a(f"v_mov_b32 v30, 0")
for (vo, vm) in ((vO0, vM0), (vO1, vM1)):
    a(f"v_cmp_le_i32 vcc, 0, v{vo}")
    a("s_nop 1")
    a(f"v_cndmask_b32 v{vo}, v30, v{vo}, vcc")
    a(f"v_cndmask_b32 v{vm}, 0, v{vm}, vcc")
    a(f"v_cndmask_b32 v{vm+1}, 0, v{vm+1}, vcc")
    a(f"v_lshl_add_u32 v{vo}, v{vo}, 9, v14")
if FPOS == 2: kvflag()
cm("Q projection")
ACC, QD = 32, 4
XR = 128
VM, LG = Cnt(), Cnt()
xq = [(j, h) for j in range(16) for h in range(2)]
def xb1():
    j, h = xq.pop(0)
    a(f"buffer_load_dwordx4 {vr(XR+8*j+4*h,4)}, v{8+h}, {sr(R_A,4)}, s{16+j//4} offen offset:{64*(j%4)}")
    VM.issue(("x", j))
def qs(ks): return 128 + 8 * (ks % 8)
def qread(ks):
    a(f"ds_read_b64_tr_b16 {vr(qs(ks),2)}, v56 offset:{2048*ks}")
    a(f"ds_read_b64_tr_b16 {vr(qs(ks)+2,2)}, v56 offset:{2048*ks+512}")
    a(f"ds_read_b128 {vr(qs(ks)+4,4)}, v{QXA[ks % 8]} offset:{16384*(ks//8)}")
def qm(ks): mfma32(ACC, qs(ks), qs(ks) + 4, "0" if ks == 0 else None)
DR = [int(x) for x in OPT.get("drain", "").split(",") if x]
sec("Z"); sec("HQ")
if "3" in SX: a("s_waitcnt lgkmcnt(0)")
a("s_barrier")
segs = []
k0 = 0
for k1 in DR + [32]:
    segs.append((k0, k1)); k0 = k1
for (k0, k1) in segs:
    if k0: a("s_barrier")
    for ks in range(k0, k0 + QD): qread(ks)
    for ks in range(k0, k1):
        if ks + QD < k1:
            if ks + QD in ((8, 16, 24) if B0 else (16, 24)): a("s_barrier")
            qread(ks + QD)
            a(f"s_waitcnt lgkmcnt(12)")
        else:
            a(f"s_waitcnt lgkmcnt({3*(k1-1-ks)})")
        qm(ks)
a(f"s_lshl_b32 s{sT0}, s{sWV}, 9")
a(f"s_add_u32 s{sT0}, s{sT0}, {L_ES}")
a("v_lshlrev_b32 v13, 3, v0")
a(f"v_add_u32 v13, s{sT0}, v13")
a("v_lshlrev_b32 v15, 3, v17")
a(f"v_add_u32 v15, {L_ES}, v15")
a("v_lshlrev_b32 v1, 2, v17")
a("v_lshl_add_u32 v1, v18, 14, v1")
a(f"s_lshl_b32 s{sT0}, s{sPB}, 15")
a(f"s_lshl_b32 s{sT1}, s{sWV}, 13")
a(f"s_add_u32 s{sT5}, s{sT0}, s{sT1}")
a(f"s_add_u32 s{sT6}, s{sT5}, 4096")
a(f"s_and_b32 s{sT0}, s{sRB}, 3")
a(f"s_lshl2_add_u32 s{sT1}, s{sT0}, s{sWV}")
a(f"s_lshl_b32 s{sT1}, s{sT1}, 15")
a(f"s_lshl_b32 s{sT2}, s{sG}, 7")
a(f"s_add_u32 s{sT1}, s{sT1}, s{sT2}")
a("v_lshlrev_b32 v18, 10, v17")
a(f"v_add_u32 v18, s{sT1}, v18")
if YM:
    a(f"s_lshl3_add_u32 s{sT0}, s{sGY}, s{sG}")
    a(f"s_lshl_b32 s{sT0}, s{sT0}, 13")
    a(f"s_and_b32 s{sT1}, s{sWV}, 1")
    a(f"s_lshl_b32 s{sT1}, s{sT1}, 12")
    a(f"s_add_u32 s{sT0}, s{sT0}, s{sT1}")
    a("v_lshlrev_b32 v17, 7, v17")
else:
    a(f"s_lshl2_add_u32 s{sT0}, s{sG}, s{sT0}")
    a(f"s_lshl_b32 s{sT0}, s{sT0}, 14")
    a(f"s_and_b32 s{sT1}, s{sWV}, 1")
    a(f"s_lshl_b32 s{sT1}, s{sT1}, 13")
    a(f"s_add_u32 s{sT0}, s{sT0}, s{sT1}")
    a("v_lshlrev_b32 v17, 7, v0")
a(f"v_add_u32 v17, s{sT0}, v17")
a(f"s_cmp_lt_u32 s{sWV}, 2")
a(f"s_cselect_b32 s{sPC}, s{P_CRE}, s{P_CIM}")
a(f"s_cselect_b32 s{sPC+1}, s{P_CRE+1}, s{P_CIM+1}")
a(f"s_and_b32 s{sT0}, s{sWV}, 1")
a(f"s_mul_i32 s{sT0}, s{sT0}, {32*RSTR}")
a(f"v_add_u32 v28, s{sT0}, v{vRB}")
for r in range(0, 16, 2):
    a(f"v_pk_mul_f32 {vr(ACC+r,2)}, {vr(ACC+r,2)}, v[58:59]")
for j in range(8):
    a(f"v_cvt_pk_bf16_f32 v{ACC+j}, v{ACC+2*j}, v{ACC+2*j+1}")
a(f"ds_write_b128 v57, {vr(ACC,4)}")
a(f"ds_write_b128 v57, {vr(ACC+4,4)} offset:2048")
cm("B tile: 4 k-slots of [64 rows x 256B], xor-swizzled; read addresses v112..119, dma voffset v120")
BA = 112
a("v_lshrrev_b32 v121, 4, v0")
a("v_and_b32 v122, 15, v0")
a(f"v_lshl_add_u32 v121, s{sWV}, 2, v121")
a("v_xor_b32 v123, v122, v121")
a("v_lshlrev_b32 v123, 4, v123")
a("v_lshl_add_u32 v120, v121, 10, v123")
a(f"s_lshr_b32 s{sT0}, s{sWV}, 1")
a(f"s_lshl_b32 s{sT0}, s{sT0}, 13")
a(f"s_sub_u32 s{sT0}, {L_R1}, s{sT0}")
for ks in range(8):
    a(f"v_add_u32 v{BA+ks}, s{sT0}, v{QXA[ks]}")
a(f"s_lshl_b32 s{sT5}, s{sPB}, 15")
a(f"s_lshl_b32 s{sT6}, s{sWV}, 10")
UR = OPT.get("urot", "2")
if UR == "0": a(f"s_mov_b32 s{sT0}, 0")
elif UR == "1": a(f"s_add_u32 s{sT0}, s{sC}, s{sPB}")
elif UR == "2": a(f"s_lshr_b32 s{sT0}, s2, 1")
elif UR == "3": a(f"s_mov_b32 s{sT0}, s2")
for sl in range(4):
    a(f"s_add_u32 s{sT1}, s{sT0}, {sl}")
    a(f"s_and_b32 s{sT1}, s{sT1}, 3")
    a(f"s_lshl_b32 s{sT1}, s{sT1}, 8")
    a(f"s_add_u32 s{16+sl}, s{sT3}, s{sT1}")
    a(f"s_add_u32 s{20+sl}, s{sT5}, s{sT1}")
a("s_waitcnt lgkmcnt(0)")
stamp(3)
a("s_barrier")
a("s_branch L_h2")
sec("H")
lab("L_h2")
a("s_setprio 2")
def rows_dma(tag, base=sT5, ore=0, oim=0):
    a(f"s_mul_i32 s{sT1}, s{sWV}, {8*RSTR}")
    for i in range(8):
        a(f"s_add_u32 m0, s{sT1}, {L_R1 + RSTR*i}")
        a(f"s_add_u32 s{sT2}, s{base}, {1024*i + ore}")
        dma(vL4, R_B, f"s{sT2}")
        a(f"s_add_u32 m0, s{sT1}, {L_R1 + RSTR*(32+i)}")
        a(f"s_add_u32 s{sT2}, s{base}, {1024*i + oim}")
        dma(vL4, R_C, f"s{sT2}")
    VM.issue(tag, 16)
def xw(j, h):
    if h == 0: waits(vm=VM.need(("x", j)))
    a(f"ds_write_b128 v10, {vr(XR+8*j+4*h,4)}" + (" offset:1024" if h else ""))
    LG.issue(("xw", j))
def xr(j):
    a(f"ds_read_b128 {vr(XR+8*j,4)}, v11")
    a(f"ds_read_b128 {vr(XR+8*j+4,4)}, v12")
    LG.issue(("x", j), 2)
if "4" in SX:
    spx("x", 15, 17); spx("r", 14, 2); spx("i", 14, 2)
if "5" in SX:
    spx("r", 0, 16); spx("i", 0, 16)
if "6" in SX:
    spx("x", 0, 32); spx("r", 14, 2); spx("i", 14, 2)
if "a" in SU: spf([(P_BRE, 4, 0, 4), (P_BIM, 4, 0, 4), (P_BX, 16, 14, 2)])
if "b" in SU: spf([(P_BX, 16, 6, 10)])
if "c" in SU: spf([(P_BRE, 4, 0, 4), (P_BIM, 4, 0, 4), (P_BX, 16, 0, 16)])
if "d" in SU: spf([(P_CRE, 4, 0, 4), (P_CIM, 4, 0, 4), (P_WO, 4, 0, 4)])
waitc(vCNT, C_A4, 4, 30, sleep=int(OPT.get("a4sl", 1)))
a(f"ds_read_b32 v30, v{vCNT} offset:{C_MODE}")
if EP0: a(f"ds_read_b32 v121, v{vCNT} offset:{C_TAG}")
a("s_setprio 0")
cm("U = x B^T")
XL = int(OPT.get("xl", 2))
def bdma(sl, m):
    a(f"s_add_u32 m0, s{sT6}, {L_R1 + 16384*sl + 4096*m}")
    a(f"s_add_u32 s{sT2}, s{20+sl}, {16384*(m%2)}")
    dma(120, R_B if m < 2 else R_C, f"s{sT2}")
    if sl == 0 and OPT.get("bp") == "1": pace()
    VM.issue(("B", sl))
lq = []
for it in OPT.get("uord", "B0,0,1,2,3,B1,4,5,6,7,B2,8,9,10,11,B3,12,13,14,15").split(","):
    lq += [("B", int(it[1]), m) for m in range(4)] if it[0] == "B" else [("x",), ("x",)]
if OPT.get("mix", "1") == "1":
    for sl in range(1, 4):
        i = lq.index(("B", sl, 0))
        xs, bs_ = lq[i-4:i], lq[i:i+4]
        lq[i-4:i+4] = [y for p in zip(xs, bs_) for y in p]
def ld1(n=1):
    for _ in range(n):
        if not lq: return
        it = lq.pop(0)
        if it[0] == "B": bdma(it[1], it[2])
        else: xb1()
CB = [C_H0, C_H1, C_H2, C_H3]
sigd = set()
def bsig(force=None):
    for sl in range(4):
        issued = not any(it[:2] == ("B", sl) for it in lq)
        if sl in sigd or not issued: continue
        if sl == force: waits(vm=VM.need(("B", sl)))
        if ("B", sl) not in VM.q:
            signal(vCNT, vONE, CB[sl]); LG.issue("sig"); sigd.add(sl)
ld1(int(OPT.get("u0", 12)))
bsig(0)
ld1(int(OPT.get("u1", 4)))
for j in range(XL): xw(j, 0); xw(j, 1); xr(j)
a("s_setprio 2")
a(f"v_readfirstlane_b32 s{sMODE}, v30") if False else None
waitc(vCNT, CB[0], 4, 31)
a(f"v_readfirstlane_b32 s{sMODE}, v30")
if EP0: a(f"v_readfirstlane_b32 s{sTAG}, v121")
LG.q = []
stamp(4)
UPRIO = int(OPT.get("uprio", 0)); YPRIO = int(OPT.get("yprio", 0))
a(f"s_setprio {UPRIO}")
AR, AI, BR = 32, 48, 64
def bread(k):
    s = BR + 8 * (k % 4)
    a(f"ds_read_b128 {vr(s,4)}, v{BA + k % 8} offset:{16384*(k//8)}")
    a(f"ds_read_b128 {vr(s+4,4)}, v{BA + k % 8} offset:{16384*(k//8) + 8192}")
    LG.issue(("b", k), 2)
WOL = int(OPT.get("wol", 0))
PF = [(17, sPC)] + ([] if WOL else [(18, P_WO)])
PFK = int(OPT.get("pfk", 19))
PTK = int(OPT.get("ptk", 27))
CPOS = 0
for k in range(3): bread(k)
for k in range(32):
    j = k // 2; jn = j + XL
    tr = jn < 16
    n1 = LG.need(("x", j)); n2 = LG.need(("b", k))
    waits(lg=n2 if n2 is not None else n1)
    s = BR + 8 * (k % 4)
    first = "0" if k == 0 else None
    mfma32(AR, XR + 4*k, s, first)
    if k % 8 == 2 and k < 24: bsig(k // 8 + 1)
    if k % 8 == 4 and k < 24:
        a(f"ds_read_b32 v31, v{vCNT} offset:{CB[k//8+1]}"); LG.issue("cb")
    if k % 8 == 5 and k < 24:
        waits(lg=LG.need("cb"))
        a("s_setprio 2")
        a("v_cmp_gt_u32 vcc, 4, v31")
        Lk = uid("bk")
        a(f"s_cbranch_vccz {Lk}")
        waitc(vCNT, CB[k//8+1], 4, 31)
        lab(Lk)
        a(f"s_setprio {UPRIO}")
    if k + 3 < 32: bread(k + 3)
    ld1(int(OPT.get("lpk", 1)))
    if PF and k >= PFK and k % 2 == 1:
        v, p = PF.pop(0)
        a(f"global_load_dword v{136+len(PF)}, v{v}, s[{p}:{p+1}]"); VM.issue("pf")
    if k == PTK:
        cm("local mode: make the lines this wave / its attention partner will hand over valid in L2")
        a(f"s_cmp_eq_u32 s{sMODE}, 1")
        a("s_cbranch_scc0 L_h_nopt")
        def touch(soff, n):
            for i in range(n):
                a(f"buffer_load_dwordx4 v[144:147], v{vL4}, {sr(R_WS,4)}, s{soff} offen offset:{1024*i} sc1")
        def touchf(soff):
            a("s_mov_b64 exec, 0xff")
            touch(soff, 1)
            a("s_mov_b64 exec, -1")
        if "h" in LOC:
            a(f"s_lshl2_add_u32 s{sT0}, s{sC}, s{sWV}")
            a(f"s_lshl_b32 s{sT1}, s{sT0}, 5")
            a(f"s_add_u32 s{sT1}, s{sT1}, s{sPB}")
            a(f"s_lshl_b32 s{sT1}, s{sT1}, 11")
            a(f"s_add_u32 s{sT1}, s{sT1}, {WS_H}")
            touch(sT1, 2)
            a(f"s_add_u32 s{sT1}, s{sT1}, 32768")
            touch(sT1, 2)
            a(f"s_lshl4_add_u32 s{sT0}, s{sT0}, s{sPB}")
            a(f"s_lshl_b32 s{sT0}, s{sT0}, 7")
            a(f"s_add_u32 s{sT0}, s{sT0}, {WS_FH}")
            touchf(sT0)
        for kind, off in (("o", 0), ("t", 4)):
            if kind in LOC:
                a(f"s_add_u32 s{sSTEP}, s{sWV}, {off}")
                o_offsets()
                touch(sT1, 1); touchf(sT0)
        lab("L_h_nopt")
    if k == 28:
        a(f"buffer_load_dwordx4 v[128:131], v29, {sr(R_A,4)}, s{sT4} offen")
        a(f"buffer_load_dwordx4 v[132:135], v29, {sr(R_A,4)}, s{sT4} offen offset:32")
        VM.issue("skip", 2)
    mfma32(AI, XR + 4*k, s + 4, first)
    ld1()
    if tr:
        assert not any(q[0] == jn for q in xq)
        xw(jn, k % 2)
        if k % 2: xr(jn)
    bsig()
assert len(sigd) == 4 and not lq
assert not PF
a("s_setprio 2")
srd(R_B, P_CRE, 512 * 1024)
srd(R_C, P_CIM, 512 * 1024)
srd(R_A, P_WO, 512 * 1024)
if CPOS:
    a(f"s_add_u32 s{sSYNC}, s{sSYNC}, 4")
    signal(vCNT, vONE, C_GH)
a(f"s_lshl_b32 s{sT3}, s{sGY}, 16")
a(f"s_lshl_b32 s{sT1}, s{sWV}, 13")
a(f"s_add_u32 s{sT3}, s{sT3}, s{sT1}")
a(f"s_mul_i32 s{sT1}, s{sWV}, {8*RSTR}")
def row1(n, base, ore, oim):
    i, part = n // 2, n % 2
    a(f"s_add_u32 m0, s{sT1}, {L_R1 + RSTR*(32*part+i)}")
    a(f"s_add_u32 s{sT2}, s{base}, {1024*i + (oim if part else ore)}")
    dma(vL4, R_C if part else R_B, f"s{sT2}")
stamp(5)
cm("scale by coef into pair layout, local scan")
UP = 64
G0, G1 = 30, 8
def sc1(r): a(f"v_pk_mul_f32 {vr(UP+2*r,2)}, {vr(vCO,2)}, {vr(AR+(r&~1),2)} op_sel:[0,{r&1}] op_sel_hi:[1,{r&1}]")
def sc2(r): a(f"v_pk_fma_f32 {vr(UP+2*r,2)}, {vr(vCO,2)}, {vr(AI+(r&~1),2)}, {vr(UP+2*r,2)} op_sel:[1,{r&1},0] op_sel_hi:[0,{r&1},1] neg_lo:[1,0,0]")
def c1(dst, L, g, u): a(f"v_pk_fma_f32 {vr(dst,2)}, {vr(L,2)}, {vr(g,2)}, {vr(u,2)} op_sel:[0,0,0] op_sel_hi:[0,1,1]")
def c2(dst, L, g): a(f"v_pk_fma_f32 {vr(dst,2)}, {vr(L,2)}, {vr(g,2)}, {vr(dst,2)} op_sel:[1,1,0] op_sel_hi:[1,0,1] neg_lo:[1,0,0]")
sc1(0); sc1(1); sc1(2); sc2(0); sc2(1); sc2(2)
src = UP
for r in range(1, 16):
    dst = G0 if r % 2 else G1
    if r == 8 and CPOS: waitc(vCNT, C_GH, f"s{sSYNC}", 8)
    c1(dst, vL, src, UP + 2*r)
    if r < 14: sc1(r + 2)
    if r >= 8 and CPOS: row1(2*(r-8), sT3, 32768, 0)
    c2(dst, vL, src)
    if r < 14: sc2(r + 2)
    if r >= 8 and CPOS: row1(2*(r-8) + 1, sT3, 32768, 0)
    src = dst
a(f"ds_write_b64 v13, {vr(G0,2)}")
gsync(vCNT, vONE, 32, C_GH)
stamp(6)
ESR = 32
for s in range(8):
    a(f"ds_read_b64 {vr(ESR+2*s,2)}, v15 offset:{256*s}")
a(f"s_lshl_b32 s{sT6}, s{sPB}, 13")
a(f"s_add_u32 s{sT6}, s{sT6}, {WS_ST}")
a(f"s_lshl_b32 s{sT0}, s{sC}, 9")
a(f"s_add_u32 s{sT0}, s{sT0}, s{sT6}")
a(f"v_mov_b64 {vr(G0,2)}, 0")
a(f"s_mov_b32 s{sCNT}, {POLL_LIMIT}")
a("s_waitcnt lgkmcnt(0)")
a(f"v_mov_b64 {vr(G1,2)}, {vr(ESR,2)}")
for w in range(4):
    if w: cmul_add(G1, vL16_, G0, ESR + 4*w)
    if w < 3:
        a(f"s_cmp_eq_u32 s{sWV}, {w}")
        a("s_cbranch_scc1 L_h_segdone")
        cmul_add(G0, vL16_, G1, ESR + 4*w + 2)
cmul_add(48, vL16_, G1, ESR + 14)
a(f"v_mov_b32 v50, v49")
a(f"v_mov_b32 v49, s{sTAG}")
a(f"v_mov_b32 v51, s{sTAG}")
a("s_mov_b32 exec_hi, 0")
a(f"buffer_store_dwordx4 v[48:51], v14, {sr(R_WS,4)}, s{sT0} offen sc1")
a("s_mov_b64 exec, -1")
lab("L_h_segdone")
a(f"s_mov_b32 s{sM}, 0")
a(f"s_mov_b32 s{sM+1}, -1")
a(f"v_cndmask_b32 v{G0}, v{G0}, v{G1}, s[{sM}:{sM+1}]")
a(f"v_cndmask_b32 v{G0+1}, v{G0+1}, v{G1+1}, s[{sM}:{sM+1}]")
if not CPOS:
    for n in range(16): row1(n, sT3, 32768, 0); pace()
stamp(7)
cm("chunk carry: each lane gathers two predecessors' end states")
a(f"v_mov_b64 {vr(G1,2)}, 0")
a(f"s_cmp_eq_u32 s{sC}, 0")
a("s_cbranch_scc1 L_h_stskip")
lab("L_h_stpoll")
a(f"buffer_load_dwordx4 v[52:55], v{vO0}, {sr(R_WS,4)}, s{sT6} offen sc1")
a(f"buffer_load_dwordx4 v[56:59], v{vO1}, {sr(R_WS,4)}, s{sT6} offen sc1")
a("s_waitcnt vmcnt(0)")
a(f"v_cmp_ne_u32 vcc, s{sTAG}, v53")
a(f"v_cmp_ne_u32 s[{sM}:{sM+1}], s{sTAG}, v55")
a(f"s_or_b64 s[{sM}:{sM+1}], s[{sM}:{sM+1}], vcc")
a(f"v_cmp_ne_u32 vcc, s{sTAG}, v57")
a(f"s_or_b64 s[{sM}:{sM+1}], s[{sM}:{sM+1}], vcc")
a(f"v_cmp_ne_u32 vcc, s{sTAG}, v59")
a(f"s_or_b64 s[{sM}:{sM+1}], s[{sM}:{sM+1}], vcc")
a("s_cbranch_scc0 L_h_stok")
a(f"s_sub_u32 s{sCNT}, s{sCNT}, 1")
a("s_cbranch_scc0 L_h_stpoll")
lab("L_h_stok")
a(f"v_pk_mul_f32 {vr(G1,2)}, {vr(vM0,2)}, v[52:53] op_sel:[0,0] op_sel_hi:[1,0]")
a(f"v_pk_mul_f32 v[60:61], {vr(vM1,2)}, v[56:57] op_sel:[0,0] op_sel_hi:[1,0]")
a(f"v_pk_fma_f32 {vr(G1,2)}, {vr(vM0,2)}, v[54:55], {vr(G1,2)} op_sel:[1,0,0] op_sel_hi:[0,0,1] neg_lo:[1,0,0]")
a(f"v_pk_fma_f32 v[60:61], {vr(vM1,2)}, v[58:59], v[60:61] op_sel:[1,0,0] op_sel_hi:[0,0,1] neg_lo:[1,0,0]")
a(f"v_pk_add_f32 {vr(G1,2)}, {vr(G1,2)}, v[60:61]")
lab("L_h_stskip")
a(f"ds_write_b64 v13, {vr(G1,2)} offset:{L_CS - L_ES}")
a("s_waitcnt vmcnt(0)")
mfma32(YACC, 128, 104, "0")
mfma32(YACC, 132, 108)
if WOL == 1: a(f"global_load_dword v10, v18, s[{P_WO}:{P_WO+1}]")
gsync(vCNT, vONE, 32, C_GH)
for s in range(8):
    a(f"ds_read_b64 {vr(32+2*s,2)}, v15 offset:{L_CS - L_ES + 256*s}")
a(f"s_lshl_b32 s{sT0}, s{sC}, 2")
a(f"s_add_u32 s{sT0}, s{sT0}, s{sWV}")
a(f"s_lshl_b32 s{sT4}, s{sT0}, 16")
a(f"s_add_u32 s{sT4}, s{sT4}, {WS_H}")
a(f"s_lshl_b32 s{sT1}, s{sPB}, 11")
a(f"s_add_u32 s{sT1}, s{sT1}, s{sT4}")
a(f"s_add_u32 s{sT2}, s{sT1}, 32768")
a(f"s_lshl_b32 s{sT0}, s{sT0}, 11")
a(f"s_add_u32 s{sT5}, s{sT0}, {WS_FH}")
a(f"s_lshl_b32 s{sT0}, s{sPB}, 7")
a(f"s_add_u32 s{sF1}, s{sT0}, s{sT5}")
a("s_waitcnt lgkmcnt(0)")
stamp(8)
for st in (8, 4, 2):
    for j in range(0, st, 2):
        a(f"v_pk_add_f32 {vr(32+j,2)}, {vr(32+j,2)}, {vr(32+j+st,2)}")
cmul_add(G0, vPS, 32, G0)
HB = 32
cmul_add(UP, vL, G0, UP)
for r in range(1, 16):
    cmul_add(UP + 2*r, vL, UP + 2*(r-1), UP + 2*r)
for part in range(2):
    ng = "-" if part else ""
    for j in range(8):
        a(f"v_cvt_pk_bf16_f32 v{HB+8*part+j}, {ng}v{UP+4*j+part}, {ng}v{UP+4*j+2+part}")
    a(f"ds_write_b128 v16, {vr(HB+8*part,4)}")
    a(f"ds_write_b128 v16, {vr(HB+4+8*part,4)} offset:16")
    for ks in range(2):
        d = 48 + 8*part + 4*ks
        a(f"ds_read_b64_tr_b16 {vr(d,2)}, v19 offset:{1024*ks}")
        a(f"ds_read_b64_tr_b16 {vr(d+2,2)}, v19 offset:{1024*ks+256}")
KIND[0] = "h"
a(f"v_lshlrev_b32 v24, 2, v0")
a(f"v_mov_b32 v25, s{sTAG}")
def flag_novalu(soff):
    a("s_mov_b32 exec_hi, 0")
    st2([f"buffer_store_dword v25, v24, {sr(R_WS,4)}, s{soff} offen@"])
    a("s_mov_b64 exec, -1")
a("s_waitcnt lgkmcnt(0)")
st2([f"buffer_store_dwordx4 {vr(48+8*part+4*ks,4)}, v{vL4}, {sr(R_WS,4)}, s{sT1 if part == 0 else sT2} offen offset:{1024*ks}@" for part in range(2) for ks in range(2)])
a("v_and_b32 v8, 15, v0")
a("v_lshlrev_b32 v12, 7, v8")
CF = 128
LB = int(OPT.get("lb", 1))
if LB: a("s_setprio 0")
for k in range(32):
    a(f"ds_read_b128 {vr(CF+4*k,4)}, v28 offset:{32*k}")
    if k == 13:
        a("s_waitcnt vmcnt(0)")
        flag_novalu(sF1)
a(f"s_add_u32 s{sSYNC}, s{sSYNC}, 4")
signal(vCNT, vONE, C_GH)
if LB: a("s_setprio 2")
stamp(9)
def reduce_inline(RB_, b1=None, bs=None):
    b1 = RB_ + 16 if b1 is None else b1
    bs = RB_ + 32 if bs is None else bs
    Ls, Le = uid("rs"), uid("re")
    a(f"s_mul_i32 s{sT2}, s{sSTEP}, {PSTRIDE}")
    a(f"v_add_u32 v10, s{sT2}, v{vL4}")
    a(f"s_add_u32 s{sT2}, s{sT2}, {L_PART + 8192}")
    o_offsets()
    waitc(11, 0, f"s{sT2}", 8)
    a(f"ds_read_b128 {vr(bs,4)}, v10 offset:8192")
    for w in range(4):
        d = (RB_ if w < 2 else b1) + 8*(w % 2)
        a(f"ds_read_b128 {vr(d,4)}, v10 offset:{2048*w}")
        a(f"ds_read_b128 {vr(d+4,4)}, v10 offset:{2048*w + 1024}")
    a("s_waitcnt lgkmcnt(8)")
    sum_check(bs)
    a("s_waitcnt lgkmcnt(0)")
    a(f"s_cbranch_scc1 {Ls}")
    reduce_math(RB_, vL4, flag=False, b1=b1, bs=bs)
    a(f"s_branch {Le}")
    lab(Ls)
    a(f"s_mov_b32 s{sT0}, {WS_DUMMY}")
    lab(Le)
waitc(vCNT, C_GH, f"s{sSYNC}", 8)
a(f"s_mul_i32 s{sT1}, s{sWV}, {8*RSTR}")
PACE = int(OPT.get('pace2', PACE))
for n in range(16): row1(n, sT3, 0, 32768); pace()
PACE = int(OPT.get('pace3', PACE))
a("v_and_b32 v11, 3, v0")
a("v_lshlrev_b32 v11, 2, v11")
a(f"v_add_u32 v11, {L_PROG}, v11")
a(f"v_add_u32 v13, {(L_PART - L_R1) & 0xffffffff}, v{vWT}")
a(f"s_lshl_b32 s{sT5}, s{sYY}, 11")
a(f"s_add_u32 s{sT5}, s{sT5}, {WS_FH}")
a(f"s_lshl_b32 s{sT4}, s{sYY}, 16")
a(f"s_and_b32 s{sT1}, s{sWV}, 1")
a(f"s_lshl_b32 s{sT1}, s{sT1}, 15")
a(f"s_add_u32 s{sT4}, s{sT4}, s{sT1}")
a(f"s_add_u32 s{sT4}, s{sT4}, {WS_H}")
stamp(10)
poll(12, f"s{sT5}", 8)
stamp(11)
HR, CR, NH = 48, 96, 12
WF, OF = 48, 128
def hload(k):
    if k % 4 == 0 and k: a(f"s_add_u32 s{sT4}, s{sT4}, 4096")
    a(f"buffer_load_dwordx4 {vr(HR+4*(k%NH),4)}, v{vL4}, {sr(R_WS,4)}, s{sT4} offen offset:{1024*(k%4)} sc1")
def cread(k):
    a(f"ds_read_b128 {vr(CR+4*(k%4),4)}, v28 offset:{32*k}")
def oload(k):
    if k % 4 == 0 and k: a(f"s_add_u32 s{sT6}, s{sT6}, 4096")
    a(f"buffer_load_dwordx4 {vr(OF+4*k,4)}, v{vL4}, {sr(R_WS,4)}, s{sT6} offen offset:{1024*(k%4)} sc1")
def wo_setup():
    a(f"s_and_b32 s{sT0}, s{sWV}, 1")
    a(f"s_lshl_b32 s{sT0}, s{sT0}, 18")
    a(f"s_lshr_b32 s{sT1}, s{sWV}, 1")
    a(f"s_lshl_b32 s{sT1}, s{sT1}, 14")
    a(f"s_add_u32 s{sT0}, s{sT0}, s{sT1}")
    a(f"s_lshl_b32 s{sT1}, s{sG}, 7")
    a(f"s_add_u32 s{sT0}, s{sT0}, s{sT1}")
    a(f"s_mul_i32 s{sT1}, s{sWV}, {PSTRIDE}")
def wo_one(half, n):
    q, i = n // 2, n % 2
    a(f"s_add_u32 m0, s{sT1}, {(L_R1 if half else L_PART) + 2048*q + 1024*i}")
    a(f"s_add_u32 s{sT2}, s{sT0}, {32768*half + 65536*q + 8192*i}")
    dma(vWO, R_A, f"s{sT2}")
def wread(dst, k):
    o = PSTRIDE * ((k % 16) // 4) + 2048 * (k % 4)
    ad = 13 if k < 16 else vWT
    a(f"ds_read_b64_tr_b16 {vr(dst,2)}, v{ad} offset:{o}")
    a(f"ds_read_b64_tr_b16 {vr(dst+2,2)}, v{ad} offset:{o+1024}")
HD, CD = 11, 3
RK = int(OPT.get("rk", 25))
FK = 4
VM, LG = Cnt(), Cnt()
for k in range(HD): hload(k); VM.issue(("h", k))
a(f"s_lshl_b32 s{sT5}, s{sYG}, 12")
a(f"s_add_u32 s{sT5}, s{sT5}, {WS_FO}")
a(f"s_lshl_b32 s{sT6}, s{sYG}, 15")
a(f"s_add_u32 s{sT6}, s{sT6}, {WS_O}")
a(f"s_mov_b32 s{sSTEP}, s{sWV}")
KIND[0] = "o"
reduce_inline(32, 96, 20)
a(f"s_mov_b32 s{sF1}, s{sT0}")
gsync(vCNT, vONE, 8, C_GH)
a(f"s_setprio {YPRIO}")
for k in range(CD): cread(k); LG.issue(("c", k))
FLK = int(OPT.get("flk", 14))
YPK = int(OPT.get("ypk", 99))
oq = list(range(16))
for k in range(32):
    if k == YPK: a("s_setprio 2")
    if k == FK:
        waits(vm=VM.need(("h", HD)))
        flag_novalu(sF1); VM.issue("f")
        wo_setup()
    if k == FLK:
        a(f"buffer_load_dword v9, v12, {sr(R_WS,4)}, s{sT5} offen sc1"); VM.issue("fl")
    if k == FLK + 5:
        waits(vm=VM.need("fl"))
        a("s_setprio 2")
        a(f"v_cmp_ne_u32 vcc, s{sTAG}, v9")
        a("s_cbranch_vccz L_y_ok")
        poll(12, f"s{sT5}", 8)
        lab("L_y_ok")
        a(f"s_setprio {YPRIO}")
    if k + HD < 32: hload(k + HD); VM.issue(("h", k + HD))
    if k + CD < 32: cread(k + CD); LG.issue(("c", k + CD))
    waits(vm=VM.need(("h", k)), lg=LG.need(("c", k)))
    mfma32(YACC, HR + 4*(k % NH), CR + 4*(k % 4))
    n = k - FK - 1
    if 0 <= n < 8: wo_one(0, n); VM.issue("wo")
    if k >= FLK + 5:
        for _ in range(2 if k + HD >= 32 else 1):
            if oq: oload(oq.pop(0)); VM.issue("o")
    mfma32(32, HR + 4*(k % NH), CF + 4*k, "0" if k == 0 else None)
assert not oq
a("s_setprio 2")
a(f"s_lshl_b32 s{sT2}, s{sWV}, 12")
a(f"s_add_u32 s{sT2}, s{sT2}, {L_R1 + 40960}")
a(f"v_add_u32 v10, s{sT2}, v{vL4}")
a("v_xor_b32 v11, 4096, v10")
assert (L_R1 + 40960) % 8192 == 0
a(f"s_lshl_b32 s{sT2}, s{sWV}, 9")
a(f"s_add_u32 s{sT2}, s{sT2}, {L_CS}")
a("v_lshlrev_b32 v8, 3, v0")
a(f"v_add_u32 v8, s{sT2}, v8")
a(f"ds_write2_b32 v8, v{vWT}, v1 offset1:1")
waits(vm=VM.need("wo"))
gsync(vCNT, vONE, 8, C_GH)
stamp(12)
for i in range(8):
    wo_one(1, i)
    if i < 4: a(f"ds_write_b128 v10, {vr(32+4*i,4)} offset:{1024*i}")
    if i == 3:
        a(f"s_add_u32 s{sSYNC}, s{sSYNC}, 4")
        signal(vCNT, vONE, C_GH)
    if 4 <= i < 7: pace()
srd(R_B, P_OUT, 2048 * 4096)
a(f"s_lshl_b32 s{sT0}, s{sYY}, 17")
a(f"s_lshl_b32 s{sT1}, s{sCG}, 7")
a(f"s_add_u32 s{sT0}, s{sT0}, s{sT1}")
def store1(b, r, off=0):
    a(f"s_add_u32 s{sT1}, s{sT0}, {4096 * (8*(r//4) + r%4)}")
    a(f"buffer_store_dword v{b+r}, v1, {sr(R_B,4)}, s{sT1} offen" + (f" offset:{off}" if off else "") + YFL)
a(f"s_mul_i32 s{sT2}, s{sWV}, {PSTRIDE}")
a(f"v_add_u32 v10, s{sT2}, v{vL4}")
a(f"s_lshl_b32 s{sT2}, s{sWV}, 2")
a(f"v_add_u32 v9, s{sT2}, v{vCNT}")
waitc(vCNT, C_GH, f"s{sSYNC}", 8)
for i in range(4):
    a(f"ds_read_b128 {vr(192+4*i,4)}, v11 offset:{1024*i}")
YL = OPT.get("ylate") == "1"
def ystores():
    for j in range(8):
        a(f"v_pk_add_f32 {vr(YACC+2*j,2)}, {vr(YACC+2*j,2)}, {vr(192+2*j,2)}")
        store1(YACC, 2*j, 2048)
        store1(YACC, 2*j + 1, 2048)
if LB: a("s_setprio 0")
for k in range(16): wread(WF + 4*k, k)
if LB: a("s_setprio 2")
a(f"s_waitcnt vmcnt(0) lgkmcnt(15)")
a(f"s_add_u32 s{sSYNC}, s{sSYNC}, 4")
signal(vCNT, vONE, C_GH)
for j in range(8):
    a(f"v_pk_add_f32 {vr(YACC+2*j,2)}, {vr(YACC+2*j,2)}, {vr(192+2*j,2)}")
a(f"s_waitcnt lgkmcnt(0)")
stamp(14)
a(f"s_setprio {OPT.get('oprio', 0)}")
for k in range(16):
    mfma32(32, OF + 4*k, WF + 4*k, "0" if k == 0 else None)
    if not YLT: store1(YACC, k, 2048)
nsync = sum(1 for n in ("HQ", "H") for x in SECS[n] if x.strip() == f"s_add_u32 s{sSYNC}, s{sSYNC}, 4")
SECS["P"].insert(0, f".set NSYNC_B2, {4*nsync}")
a("s_setprio 2")
waitc(vCNT, C_GH, f"s{sSYNC}", 8)
a("s_nop 6")
for i in range(4):
    a(f"ds_write_b128 v10, {vr(32+4*i,4)} offset:{1024*i}")
a(f"ds_write_b32 v9, v{vONE} offset:{C_HA}")
stamp(13)
if YLT:
    waitc(vCNT, C_S, 4, 8, sleep=1)
    for k in range(16): store1(YACC, k, 2048)
a("s_branch L_end")

lab("L_slow")
a("s_waitcnt lgkmcnt(0)")
a(f"s_mov_b32 s{sKIND}, 0")
a(f"s_lshl_b32 s{sT0}, s{sSTEP}, 10")
a(f"s_add_u32 s{sT0}, s{sT0}, {L_QF}")
a(f"v_add_u32 v4, s{sT0}, v14")
a(f"ds_read_b128 {vr(vQ,4)}, v4")
a("v_mov_b32 v4, 0xff800000")
a("v_lshrrev_b32 v16, 5, v0")
a("v_and_b32 v17, 15, v0")
a("v_lshl_add_u32 v15, v16, 4, v17")
a("v_lshlrev_b32 v15, 4, v15")
a(f"s_mov_b32 s{sM}, 0xffff")
a(f"s_mov_b32 s{sM+1}, 0xffff")
a(f"s_mov_b32 s{sT0}, {WS_KV}")
lab("L_slow_p1")
kvload(0)
a("s_waitcnt vmcnt(0) lgkmcnt(0)")
for t in range(2):
    qk(S0, t)
    a("s_nop 11")
    for i in range(8):
        a(f"v_max3_f32 v4, v{S0+2*i}, v{S0+2*i+1}, v4")
a(f"s_cmp_lt_u32 s{sT0}, {WS_KV + 131072}")
a("s_cbranch_scc1 L_slow_p1")
a("v_mov_b32 v5, v4")
a("s_nop 1")
a("v_permlane32_swap_b32 v4, v5")
a("v_max_f32 v4, v4, v5")
for i in range(16):
    a(f"v_sub_f32 v{S1+i}, 0, v4")
zeroO()
a(f"s_mov_b32 s{sT0}, {WS_KV}")
lab("L_slow_p2")
kvload(0)
a("s_waitcnt vmcnt(0)")
for t in range(2):
    mfma32(S0, K_(t), vQ, vr(S1, 16))
    a("s_nop 11")
    exs(S0, 0, 16)
    a("s_nop 1")
    smf(V1(t), S0)
    smf(V2(t), S0 + 8)
a(f"s_cmp_lt_u32 s{sT0}, {WS_KV + 131072}")
a("s_cbranch_scc1 L_slow_p2")
o_offsets()
a(f"v_rcp_f32 v4, v{vO+8}")
a("s_nop 0")
for j in range(4):
    a(f"v_pk_mul_f32 {vr(vO+2*j,2)}, {vr(vO+2*j,2)}, v[4:5] op_sel_hi:[1,0]")
for j in range(4):
    a(f"v_cvt_pk_bf16_f32 v{16+j}, v{vO+2*j}, v{vO+2*j+1}")
a(f"buffer_store_dwordx4 v[16:19], v14, {sr(R_WS,4)}, s{sT1} offen sc1")
a("s_waitcnt vmcnt(0)")
setflag(16, 17, sT0)
a("v_and_b32 v15, 15, v0")
a("v_lshlrev_b32 v15, 7, v15")
a("v_lshlrev_b32 v7, 3, v0")
a(f"v_add_u32 v7, s{sT5}, v7")
a(f"s_lshl_b32 s{sT0}, s{sWV}, 2")
a(f"v_add_u32 v10, s{sT0}, v{vCA}")
a(f"s_cmp_lt_u32 s{sSTEP}, 4")
a("s_cbranch_scc1 L_a_ok2")
a("ds_read_b128 v[56:59], v6 offset:8192")
a("s_waitcnt lgkmcnt(0)")
a("s_branch L_a_ok1")
lab("L_a_bad1")
a("s_waitcnt lgkmcnt(0)")
a(f"s_sub_u32 s{sSTEP}, 7, s{sWV}")
a("s_branch L_slow")
lab("L_a_bad2")
a(f"s_mov_b32 s{sSTEP}, s{sWV}")
a("s_branch L_slow")

lab("L_end")
ROLE[0] = "E"
if PROBE:
    a("s_waitcnt vmcnt(0)")
    stamp(15)
    a(f"s_cmp_ge_u32 s{sW}, 4")
    a(f"s_cbranch_scc{0 if PROBE[0] == 'A' else 1} L_exit")
    a(f"s_cmp_eq_u32 s{80+int(PROBE[1])}, 0")
    a("s_cbranch_scc1 L_exit")
    a(f"s_sub_u32 s{sT0}, s{80+int(PROBE[1])}, s{80+int(PROBE[2])}")
    if OPT.get("pmode"):
        a(f"s_cmp_eq_u32 s{sMODE}, 1")
        a(f"s_cselect_b32 s{sT0}, 0, 1000")
    a(f"s_min_u32 s{sT0}, s{sT0}, 10000")
    a(f"s_lshl_b32 s{sT0}, s{sT0}, 1")
    a(f"s_memrealtime s[{sST}:{sST+1}]")
    a("s_waitcnt lgkmcnt(0)")
    a(f"s_mov_b32 s{sT1}, s{sST}")
    lab("L_probe")
    a(f"s_memrealtime s[{sST}:{sST+1}]")
    a("s_waitcnt lgkmcnt(0)")
    a(f"s_sub_u32 s{sT2}, s{sST}, s{sT1}")
    a(f"s_cmp_lt_u32 s{sT2}, s{sT0}")
    a("s_cbranch_scc1 L_probe")
elif STAMPS:
    a("s_waitcnt vmcnt(0)")
    stamp(15)
    a(f"s_lshl_b32 s{sT0}, s2, 3")
    a(f"s_xor_b32 s{sT1}, s{sW}, 4")
    a(f"s_add_u32 s{sT0}, s{sT0}, s{sT1}")
    a(f"s_lshl_b32 s{sT0}, s{sT0}, 6")
    a(f"s_add_u32 s{sT0}, s{sT0}, {WS_STAMP}")
    for i in range(16): a(f"v_mov_b32 v{16+i}, s{80+i}")
    a("v_mov_b32 v0, 0")
    a("s_mov_b64 exec, 1")
    for i in range(4):
        a(f"buffer_store_dwordx4 {vr(16+4*i,4)}, v0, {sr(R_WS,4)}, s{sT0} offen offset:{16*i}")
lab("L_exit")
a("s_endpgm")

hdr = open("cdna_kernels/" + NAME + ".s.ref").read().split("; Override launch")[0]
src = hdr + f"; @launch grid=(256,1,1) block=(512,1,1) lds={LDS_BYTES}\n" + f""".amdgcn_target "amdgcn-amd-amdhsa--gfx950"
.text
.globl {NAME}_kernel
.p2align 8
.type {NAME}_kernel,@function
{NAME}_kernel:
""" + "\n".join(x for n in ("P", "AL", "HQ", "Z", "A", "H") for x in SECS[n]) + f"""
.section .rodata,"a"
.p2align 6
.amdhsa_kernel {NAME}_kernel
  .amdhsa_next_free_vgpr 256
  .amdhsa_next_free_sgpr 102
  .amdhsa_accum_offset 256
  .amdhsa_group_segment_fixed_size 0
  .amdhsa_kernarg_size 136
  .amdhsa_user_sgpr_count 2
  .amdhsa_user_sgpr_kernarg_segment_ptr 1
  .amdhsa_system_sgpr_workgroup_id_x 1
.end_amdhsa_kernel
"""
open(OUT, "w").write(src)
```

```python
import sys, math, struct
NAME = "concat_heads__grouped_kv_mqa__ssm_conv_s5__prompt"
STAMPS = "--stamps" in sys.argv
OPT = dict(a.lstrip("-").split("=") for a in sys.argv[1:] if a.startswith("--") and "=" in a)
OUT = [a for a in sys.argv[1:] if not a.startswith("--")][0]
OUTFL = OPT.get("outfl", "nt").replace(",", " ")
if OUTFL: OUTFL = " " + OUTFL
YFL = OPT.get("yfl", "nt").replace(",", " ")
if YFL: YFL = " " + YFL

def f32(x): return "0x%08x" % struct.unpack("<I", struct.pack("<f", x))[0]

FSH = int(OPT.get('fsh', 6))
WS_O2 = 0x300000
C_HA = 48
WS_DUMMY = 0x800
WS_FKV = 0x1000
WS_FH  = 0x20000
WS_FO  = 0x80000
WS_KV  = 0x40000
WS_ST  = 0x60000
WS_O   = 0x100000
WS_H   = 0x400000
WS_SLOW = 0x800000
WS_STAMP = 15 << 20
WS_SIZE = 16 << 20
L_XA, L_WQ, L_KVP, L_WKV = 0, 65536, 131072, 140288
L_PART, L_R1, L_SCR, L_ES, L_QF, L_PROG, L_CNT = 0, 73728, 140288, 148480, 150528, 158720, 159744
L_MAX = 159808
L_CS = 160832

LDS_BYTES = 163840
PSTRIDE = 9216
RSTR = 1040
POLL_LIMIT = 400000
C_A1, C_H1, C_H2, C_A3, C_A4, C_GA, C_GH, C_TAG, C_H3, C_S, C_H0, C_DONE = 0, 4, 8, 12, 16, 20, 24, 28, 32, 36, 40, 44

SECS = {}
class _L:
    cur = None
    def append(self, x): SECS[_L.cur].append(x)
lines = _L()
def sec(n):
    SECS.setdefault(n, []); _L.cur = n
sec("P")
def a(s): lines.append("    " + s)
def lab(s): lines.append(s + ":")
def cm(s): lines.append("    ; " + s)
_uid = [0]
def uid(p):
    _uid[0] += 1
    return f"L_{p}{_uid[0]}"
def vr(b, n): return f"v[{b}:{b+n-1}]"
def sr(b, n): return f"s[{b}:{b+n-1}]"

sW, sTAG, sRB, sG, sC, sPB = 3, 4, 5, 6, 7, 8
sT0, sT1, sT2, sT3, sT4, sCNT = 9, 10, 11, 12, 13, 14
sWV = 15
P_AX, P_WQ, P_WK, P_WV, P_WO, P_BX, P_LRE, P_LIM = 16, 18, 20, 22, 24, 26, 28, 30
P_BRE, P_BIM, P_CRE, P_CIM, P_LDT, P_DSK, P_OUT, P_DBG = 32, 34, 36, 38, 40, 42, 44, 46
P_WS = 48
sT5, sT6 = 50, 51
R_WS, R_A, R_B, R_C = 52, 56, 60, 64
sM = 68
sGRP, sKIND, sSTEP, sSYNC = 70, 71, 72, 73
sRET = 74
sST = 76
sLO, sHI = 78, 79
sROT = sSTEP
sF1, sF2 = 0, 1
sYG, sCG, sPC = 96, 97, 98
sGY, sYY = 100, 101
YM = int(OPT.get('ymap', 0))
sMODE = sGRP
C_MODE = C_DONE
LFL = OPT.get('lfl', '').replace(',', ' ')
if LFL: LFL = ' ' + LFL

def srd(dst, ptr, nbytes):
    a(f"s_mov_b32 s{dst}, s{ptr}")
    a(f"s_and_b32 s{dst+1}, s{ptr+1}, 0xffff")
    a(f"s_mov_b32 s{dst+2}, {nbytes}")
    a(f"s_mov_b32 s{dst+3}, 0x20000")

PROBE = OPT.get("probe")
ROLE = ["?"]
if PROBE:
    PROBE = PROBE.split(","); STAMPS = True
def stamp(i, ins="s_memrealtime"):
    if PROBE and not (ins == "s_memrealtime" and (ROLE[0] in (PROBE[0], "E")) and str(i) in PROBE[1:]): return
    if OPT.get("dbg") == "steps" and ROLE[0] == "A" and i < 10: return
    if OPT.get("sel") and ROLE[0] != "E" and f"{ROLE[0]}{i}" not in OPT["sel"].split(","): return
    if STAMPS:
        a(f"{ins} s[{sST}:{sST+1}]")
        a("s_waitcnt lgkmcnt(0)")
        a(f"s_mov_b32 s{80+i}, s{sST}")
def cstamp(i): stamp(i, "s_memtime")
DBG = OPT.get("dbg", "")
def dstamp(name, i):
    if DBG == name: stamp(i)
_stamp0 = stamp


def dma(voff, srdr, soff, imm=0):
    o = f" offset:{imm}" if imm else ""
    a(f"buffer_load_dwordx4 v{voff}, {sr(srdr,4)}, {soff} offen{o} lds")

PACE = int(OPT.get("pace", 18))
PV = int(OPT.get("pv", 6))
def pace():
    if PV >= 0:
        a(f"s_waitcnt vmcnt({PV})")
        return
    n = PACE
    while n > 0:
        a(f"s_nop {min(n, 16) - 1}"); n -= 16

def poll(voff, soff, vt, sleep=0, fl=" sc1"):
    L, D = uid("poll"), uid("pdone")
    a(f"s_mov_b32 s{sCNT}, {POLL_LIMIT}")
    lab(L)
    a(f"buffer_load_dword v{vt}, v{voff}, {sr(R_WS,4)}, {soff} offen{fl}")
    a("s_waitcnt vmcnt(0)")
    a(f"v_cmp_ne_u32 vcc, s{sTAG}, v{vt}")
    a(f"s_cbranch_vccz {D}")
    if sleep: a(f"s_sleep {sleep}")
    a(f"s_sub_u32 s{sCNT}, s{sCNT}, 1")
    a(f"s_cbranch_scc0 {L}")
    lab(D)

def setflag(vt0, vt1, soff):
    a(f"v_mov_b32 v{vt0}, 0")
    a(f"v_mov_b32 v{vt1}, s{sTAG}")
    a("s_mov_b64 exec, 1")
    a(f"buffer_store_dword v{vt1}, v{vt0}, {sr(R_WS,4)}, s{soff} offen sc1")
    a("s_mov_b64 exec, -1")

LOC = OPT.get("loc", "t")
KIND = ["t"]
assert not (YM and "h" in LOC)
def st2(instrs):
    if KIND[0] not in LOC:
        for x in instrs: a(x.replace("@", " sc1"))
        return
    L, E = uid("sl"), uid("se")
    a(f"s_cmp_eq_u32 s{sMODE}, 1")
    a(f"s_cbranch_scc1 {L}")
    for x in instrs: a(x.replace("@", " sc1"))
    a(f"s_branch {E}")
    lab(L)
    for x in instrs: a(x.replace("@", LFL))
    lab(E)

def spf(spec):
    for ptr, lines, first, cnt in spec:
        a(f"s_lshl2_add_u32 s{sRET}, s2, s{sWV}")
        a(f"s_mul_i32 s{sRET}, s{sRET}, {128*lines}")
        a(f"s_add_u32 s{sRET}, s{sRET}, s{ptr}")
        a(f"s_addc_u32 s{sRET+1}, s{ptr+1}, 0")
        for i in range(first, first + cnt):
            a(f"s_load_dword s{sST}, s[{sRET}:{sRET+1}], {128*i}")

def spx(kind, first, cnt, w="dword"):
    if kind == "x":
        a(f"s_and_b32 s{sRET}, s{sRB}, 0x1b")
        a(f"s_lshr_b32 s{sRET+1}, s{sRET}, 3")
        a(f"s_and_b32 s{sRET}, s{sRET}, 3")
        a(f"s_lshl2_add_u32 s{sRET}, s{sRET+1}, s{sRET}")
        a(f"s_lshl3_add_u32 s{sRET}, s{sRET}, s{sG}")
        a(f"s_lshl2_add_u32 s{sRET}, s{sRET}, s{sWV}")
        a(f"s_lshl_b32 s{sRET}, s{sRET}, 12")
        ptr = P_BX
    else:
        a(f"s_and_b32 s{sRET}, s2, 1")
        a(f"s_lshl3_add_u32 s{sRET}, s{sRET}, s{sG}")
        a(f"s_and_b32 s{sRET+1}, s{sRB}, 3")
        a(f"s_lshl2_add_u32 s{sRET}, s{sRET}, s{sRET+1}")
        a(f"s_lshl2_add_u32 s{sRET}, s{sRET}, s{sWV}")
        a(f"s_lshl_b32 s{sRET}, s{sRET}, 11")
        ptr = P_BRE if kind == "r" else P_BIM
    a(f"s_add_u32 s{sRET}, s{sRET}, s{ptr}")
    a(f"s_addc_u32 s{sRET+1}, s{ptr+1}, 0")
    for i in range(first, first + cnt):
        a(f"s_load_dword s{sST}, s[{sRET}:{sRET+1}], {128*i}")
SX = OPT.get("sx", "")

def signal(vcnt, vone, off):
    a("s_mov_b64 exec, 1")
    a(f"ds_add_u32 v{vcnt}, v{vone} offset:{off}")
    a("s_mov_b64 exec, -1")

HSL = int(OPT.get("hsl", 0))
def waitc(vcnt, off, target, vt, sleep=0):
    L = uid("wc")
    if ROLE[0] == "H" and _L.cur == "H": sleep = max(sleep, HSL)
    if sleep:
        L2 = uid("wd")
        a(f"s_branch {L2}")
    lab(L)
    if sleep:
        a(f"s_sleep {sleep}")
        lab(L2)
    a(f"ds_read_b32 v{vt}, v{vcnt} offset:{off}")
    a("s_waitcnt lgkmcnt(0)")
    a(f"v_cmp_gt_u32 vcc, {target}, v{vt}")
    a(f"s_cbranch_vccnz {L}")

def gsync(vcnt, vone, vt, off):
    a("s_waitcnt lgkmcnt(0)")
    a(f"s_add_u32 s{sSYNC}, s{sSYNC}, 4")
    signal(vcnt, vone, off)
    waitc(vcnt, off, f"s{sSYNC}", vt)

def mfma32(d, x, y, c=None):
    c = vr(d, 16) if c is None else c
    a(f"v_mfma_f32_32x32x16_bf16 {vr(d,16)}, {vr(x,4)}, {vr(y,4)}, {c}")

def cmul_add(dst, L, g, u):
    a(f"v_pk_fma_f32 {vr(dst,2)}, {vr(L,2)}, {vr(g,2)}, {vr(u,2)} op_sel:[0,0,0] op_sel_hi:[0,1,1]")
    a(f"v_pk_fma_f32 {vr(dst,2)}, {vr(L,2)}, {vr(g,2)}, {vr(dst,2)} op_sel:[1,1,0] op_sel_hi:[1,0,1] neg_lo:[1,0,0]")

def cmul(dst, x, y):
    a(f"v_pk_mul_f32 {vr(dst,2)}, {vr(x,2)}, {vr(y,2)} op_sel:[0,0] op_sel_hi:[0,1]")
    a(f"v_pk_fma_f32 {vr(dst,2)}, {vr(x,2)}, {vr(y,2)}, {vr(dst,2)} op_sel:[1,1,0] op_sel_hi:[1,0,1] neg_lo:[1,0,0]")

def csq(dst, src, t):
    a(f"v_mul_f32 v{t}, v{src+1}, v{src+1}")
    a(f"v_add_f32 v{t+1}, v{src}, v{src}")
    a(f"v_fma_f32 v{dst}, v{src}, v{src}, -v{t}")
    a(f"v_mul_f32 v{dst+1}, v{t+1}, v{src+1}")

def xvoffsets(XO, t0):
    a(f"v_lshrrev_b32 v{t0}, 4, v0")
    a(f"v_and_b32 v{t0+1}, 15, v0")
    for i in range(4):
        a(f"v_add_u32 v{t0+2}, {4*i}, v{t0}")
        a(f"v_xor_b32 v{t0+3}, v{t0+1}, v{t0+2}")
        a(f"v_lshlrev_b32 v{t0+3}, 4, v{t0+3}")
        a(f"v_lshl_add_u32 v{XO+i}, v{t0+2}, 10, v{t0+3}")

def wtr_addr(dst, hhshift, base, t):
    a(f"v_bfe_u32 v{t}, v0, 2, 2")
    a(f"v_bfe_u32 v{t+1}, v0, 4, 1")
    a(f"v_bfe_u32 v{t+2}, v0, 1, 1")
    a(f"v_lshl_add_u32 v{t+1}, v{t+1}, 1, v{t+2}")
    a(f"s_and_b32 s{sT0}, s{sWV}, 1")
    a(f"s_lshl_b32 s{sT0}, s{sT0}, 2")
    a(f"v_add_u32 v{t+1}, s{sT0}, v{t+1}")
    a(f"v_bfe_u32 v{t+2}, v0, 3, 1")
    a(f"v_lshlrev_b32 v{t+2}, 2, v{t+2}")
    a(f"v_xor_b32 v{t+1}, v{t+1}, v{t+2}")
    a(f"v_lshlrev_b32 v{t+1}, 4, v{t+1}")
    a(f"v_lshl_add_u32 v{t+1}, v{t}, 7, v{t+1}")
    a(f"v_and_b32 v{t+2}, 1, v0")
    a(f"v_lshl_add_u32 v{t+1}, v{t+2}, 3, v{t+1}")
    a(f"v_lshrrev_b32 v{t+2}, 5, v0")
    a(f"v_lshl_add_u32 v{t+1}, v{t+2}, {hhshift}, v{t+1}")
    a(f"v_add_u32 v{dst}, {base}, v{t+1}")

def o_offsets():
    a(f"s_and_b32 s{sT0}, s{sSTEP}, 1")
    a(f"s_lshl_b32 s{sT1}, s{sRB}, 1")
    a(f"s_add_u32 s{sT0}, s{sT0}, s{sT1}")
    a(f"s_lshl_b32 s{sT0}, s{sT0}, 2")
    a(f"s_lshr_b32 s{sT1}, s{sSTEP}, 1")
    a(f"s_add_u32 s{sT0}, s{sT0}, s{sT1}")
    a(f"s_lshl_b32 s{sT0}, s{sT0}, 3")
    a(f"s_add_u32 s{sT0}, s{sT0}, s{sG}")
    a(f"s_lshl_b32 s{sT1}, s{sT0}, 10")
    a(f"s_add_u32 s{sT1}, s{sT1}, {WS_O}")
    a(f"s_lshl_b32 s{sT0}, s{sT0}, 7")
    a(f"s_add_u32 s{sT0}, s{sT0}, {WS_FO}")

def sum_check(b):
    a(f"v_pk_add_f32 {vr(b,2)}, {vr(b,2)}, {vr(b+2,2)}")
    a(f"v_add_f32 v{b}, v{b}, v{b+1}")
    a(f"v_cmp_nle_f32 vcc, s{sLO}, v{b}")
    a(f"v_cmp_nge_f32 s[{sM}:{sM+1}], s{sHI}, v{b}")
    a(f"s_or_b64 vcc, vcc, s[{sM}:{sM+1}]")

def reduce_math(b, vl16, flag=True, tagged=False, b1=None, bs=None):
    b1 = b + 16 if b1 is None else b1
    bs = b + 32 if bs is None else bs
    a(f"v_rcp_f32 v{bs+2}, v{bs}")
    for j in range(4):
        a(f"v_pk_add_f32 {vr(b+2*j,2)}, {vr(b+2*j,2)}, {vr(b+8+2*j,2)}")
    for j in range(4):
        a(f"v_pk_add_f32 {vr(b1+2*j,2)}, {vr(b1+2*j,2)}, {vr(b1+8+2*j,2)}")
    for j in range(4):
        a(f"v_pk_add_f32 {vr(b+2*j,2)}, {vr(b+2*j,2)}, {vr(b1+2*j,2)}")
    for j in range(4):
        a(f"v_pk_mul_f32 {vr(b+2*j,2)}, {vr(b+2*j,2)}, {vr(bs+2,2)} op_sel_hi:[1,0]")
    for j in range(4):
        a(f"v_cvt_pk_bf16_f32 v{b+8+j}, v{b+2*j}, v{b+2*j+1}")
    if not flag:
        st2([f"buffer_store_dwordx4 {vr(b+8,4)}, v{vl16}, {sr(R_WS,4)}, s{sT1} offen@"])
        return
    a(f"buffer_store_dwordx4 {vr(b+8,4)}, v{vl16}, {sr(R_WS,4)}, s{sT1} offen sc1")
    a("s_waitcnt vmcnt(0)")
    setflag(b, b + 1, sT0)

STG3 = 1
LOG2E = 1.4426950408889634
L_LO, L_HI = 2.0 ** -60, 2.0 ** 60


class Cnt:
    def __init__(s): s.q = []
    def issue(s, tag, n=1): s.q += [tag] * n
    def need(s, tag):
        if tag not in s.q: return None
        i = len(s.q) - 1 - s.q[::-1].index(tag)
        n = len(s.q) - 1 - i
        s.q = s.q[i + 1:]
        return n
def waits(vm=None, lg=None):
    p = []
    if vm is not None: p.append(f"vmcnt({min(vm,63)})")
    if lg is not None: p.append(f"lgkmcnt({min(lg,15)})")
    if p: a("s_waitcnt " + " ".join(p))

a("s_cmp_ge_u32 s2, 256")
a("s_cbranch_scc1 L_exit")
a(f"s_load_dwordx16 s[16:31], s[0:1], 0")
a(f"s_load_dwordx16 s[32:47], s[0:1], 64")
a(f"s_load_dwordx2 s[48:49], s[0:1], 128")
EPF = [int(x) for x in OPT.get("epf", "").split(",") if x]
if EPF:
    cm("request the first code lines at once instead of one miss after the other")
    a(f"s_getpc_b64 s[{sM}:{sM+1}]")
    a(f"v_subrev_u32 v2, {EPF[0]}, v0")
    a(f"v_cmp_gt_u32 vcc, {EPF[1]}, v2")
    a("v_lshlrev_b32 v2, 7, v2")
    a(f"s_and_saveexec_b64 s[{sRET}:{sRET+1}], vcc")
    a("s_cbranch_execz L_noepf")
    a(f"global_load_dword v31, v2, s[{sM}:{sM+1}] offset:128")
    lab("L_noepf")
    a("s_mov_b64 exec, -1")
if STAMPS:
    for i in range(16): a(f"s_mov_b32 s{80+i}, 0")
    a("s_memrealtime s[80:81]")
    a("s_memtime s[92:93]")
a("v_lshrrev_b32 v1, 6, v0")
a("v_and_b32 v0, 63, v0")
a(f"v_readfirstlane_b32 s{sW}, v1")
a("v_lshlrev_b32 v6, 4, v0")
a("v_lshrrev_b32 v12, 4, v0")
a("v_and_b32 v13, 15, v0")
a(f"s_and_b32 s{sT0}, s2, 7")
a(f"s_lshr_b32 s{sT1}, s2, 3")
a(f"s_and_b32 s{sT2}, s{sT1}, 3")
a(f"s_lshl_b32 s{sRB}, s{sT0}, 2")
a(f"s_add_u32 s{sRB}, s{sRB}, s{sT2}")
a(f"s_lshr_b32 s{sG}, s{sT1}, 2")
a(f"s_and_b32 s{sGRP}, s{sG}, 3")
a(f"s_and_b32 s{sWV}, s{sW}, 3")
a(f"s_add_u32 s{sROT}, s{sG}, s{sRB}" if OPT.get("rot", "0") == "1" else f"s_mov_b32 s{sROT}, 0")
a(f"s_mov_b32 s{R_A+2}, {2048*1024}")
a(f"s_mov_b32 s{R_A+3}, 0x20000")
a(f"s_mov_b32 s{R_B+3}, 0x20000")
a(f"s_cmp_ge_u32 s{sW}, 4")
a("s_cbranch_scc1 L_attn")

vL, vL16_, vL8, vCO = 20, 22, 24, 26
vCNT, vONE, vWT, vRB, vL4, vWO = 2, 3, 4, 5, 6, 7
a("s_setprio 3")
for i in range(4):
    a(f"v_add_u32 v14, {4*i}, v12")
    a(f"v_xor_b32 v15, v13, v14")
    a(f"v_lshlrev_b32 v15, 4, v15")
    a(f"v_lshl_add_u32 v{16+i}, v14, 10, v15")
if OPT.get("map", "0" if "h" in LOC else "1") == "0":
    a(f"s_and_b32 s{sT2}, s{sT1}, 1")
    a(f"s_lshl_b32 s{sC}, s{sT0}, 1")
    a(f"s_add_u32 s{sC}, s{sC}, s{sT2}")
    a(f"s_lshr_b32 s{sPB}, s{sT1}, 1")
else:
    a(f"s_and_b32 s{sC}, s{sT0}, 6")
    a(f"s_lshl_b32 s{sC}, s{sC}, 1")
    a(f"s_add_u32 s{sC}, s{sC}, s{sT2}")
    a(f"s_and_b32 s{sPB}, s{sT0}, 1")
    a(f"s_lshl_b32 s{sPB}, s{sPB}, 3")
    a(f"s_add_u32 s{sPB}, s{sPB}, s{sG}")
a(f"s_lshr_b32 s{sKIND}, s{sG}, 2")
a(f"s_lshl_b32 s{sT3}, s{sPB}, 5")
a("v_and_b32 v38, 31, v0")
a(f"v_add_lshl_u32 v37, v38, s{sT3}, 1")
if YM:
    a(f"s_and_b32 s{sGY}, s{sRB}, 7")
else:
    a(f"s_mov_b32 s{sGY}, s{sG}")
a(f"s_and_b32 s{sT3}, s{sWV}, 1")
a(f"s_lshl1_add_u32 s{sT3}, s{sGY}, s{sT3}")
a(f"s_lshl_b32 s{sT3}, s{sT3}, 5")
a(f"v_add_lshl_u32 v38, v38, s{sT3}, 1")
a(f"s_add_u32 s{sT3}, s{sROT}, s{sWV}")
a(f"s_and_b32 s{sT3}, s{sT3}, 3")
a(f"s_lshl_b32 s{sT0}, s{sRB}, 16")
a(f"s_lshl_b32 s{sT1}, s{sGRP}, 14")
a(f"s_add_u32 s{sT0}, s{sT0}, s{sT1}")
a(f"s_lshl_b32 s{sT1}, s{sT3}, 8")
a(f"s_add_u32 s{sT0}, s{sT0}, s{sT1}")
a(f"s_lshl_b32 s{sT2}, s{sGRP}, 12")
a(f"s_lshl_b32 s{sT1}, s{sWV}, 14")
a(f"s_add_u32 s{sT2}, s{sT2}, s{sT1}")
a(f"s_lshl_b32 s{sT3}, s{sT3}, 12")
a(f"s_lshl_b32 s{sT4}, s{sWV}, 12")
a(f"s_add_u32 s{sT4}, s{sT4}, {L_WKV}")
a(f"s_mov_b32 s{R_B+2}, 16384")
a(f"s_mov_b32 m0, s{sT2}")
a(f"s_cmp_eq_u32 s{sKIND}, 0")
a("s_waitcnt lgkmcnt(0)")
a(f"s_cselect_b32 s{R_B}, s{P_WK}, s{P_WV}")
a(f"s_cselect_b32 s{R_B+1}, s{P_WK+1}, s{P_WV+1}")
a(f"s_mov_b32 s{R_A}, s{P_AX}")
a(f"s_and_b32 s{R_A+1}, s{P_AX+1}, 0xffff")
a(f"s_and_b32 s{R_B+1}, s{R_B+1}, 0xffff")
for i in range(4):
    dma(16 + i, R_A, f"s{sT0}")
    a(f"s_add_u32 m0, s{sT2}, {1024*(i+1)}" if i < 3 else f"s_mov_b32 m0, s{sT4}")
    a("s_nop 0")
for i in range(4):
    dma(6, R_B, f"s{sT3}", imm=1024 * i)
p0, p1, p2, vDSK = 60, 61, 62, 63
a(f"global_load_ushort v{p0}, v37, s[{P_LRE}:{P_LRE+1}]")
a(f"global_load_ushort v{p1}, v37, s[{P_LIM}:{P_LIM+1}]")
a(f"global_load_ushort v{p2}, v37, s[{P_LDT}:{P_LDT+1}]")
a(f"global_load_ushort v{vDSK}, v38, s[{P_DSK}:{P_DSK+1}]")
EP0 = int(OPT.get("ep0", 0))
if EP0:
    a(f"s_cmp_eq_u32 s{sWV}, 0")
    a("s_cbranch_scc0 L_h_noep")
a(f"s_load_dword s{sTAG}, s[{P_WS}:{P_WS+1}], 0")
lab("L_h_noep")
a("s_barrier")

sec("AL")
lab("L_attn"); ROLE[0] = "A"
cm("pull the kernel's code towards this XCD's L2")
a(f"s_getpc_b64 s[{sM}:{sM+1}]")
lab("L_pc")
a(f"s_sub_u32 s{sM}, s{sM}, L_pc - {NAME}_kernel")
a(f"s_subb_u32 s{sM+1}, s{sM+1}, 0")
SPF = int(OPT.get("spf", 0))
if SPF:
    a(f"s_lshl_b32 s{sT3}, s{sWV}, 7")
    a(f"s_add_u32 s{sRET}, s{sM}, s{sT3}")
    a(f"s_addc_u32 s{sRET+1}, s{sM+1}, 0")
    for i in range(SPF):
        a(f"s_load_dword s{sCNT}, s[{sRET}:{sRET+1}], {512*i + 256}")
CSH = int(OPT.get("csh", 32))
NLN = -(-176 // (4 * CSH))
a(f"s_and_b32 s{sT2}, s{sT1}, {CSH-1}")
a(f"s_lshl2_add_u32 s{sT2}, s{sT2}, s{sWV}")
a(f"s_mul_i32 s{sT2}, s{sT2}, {128*NLN}")
CSK = int(OPT.get("csk", 0))
if CSK: a(f"s_add_u32 s{sT2}, s{sT2}, {CSK}")
a("v_lshlrev_b32 v32, 7, v0")
a(f"v_min_u32 v32, {128*(NLN-1)}, v32")
a(f"v_add_u32 v32, s{sT2}, v32")
a(f"v_min_u32 v32, L_slow - {NAME}_kernel, v32")
CPF = int(OPT.get("cpf", 0))
if CPF == 0:
    a(f"s_cmp_ge_u32 s{sT2}, L_slow - {NAME}_kernel")
    a("s_cbranch_scc1 L_nocpf")
    a(f"s_mov_b64 exec, {(1 << NLN) - 1}")
    a(f"global_load_dword v33, v32, s[{sM}:{sM+1}]")
    a("s_mov_b64 exec, -1")
    lab("L_nocpf")
vIDX, vZ, vAD, vAS, vAQ, vPG, vQ = 1, 2, 4, 5, 6, 7, 8
vCA, vONEA = 12, 13
S0, S1, vO, KV = 16, 32, 48, 64
cm("zero sync counters + progress words")
a("v_mov_b32 v2, 0")
a("v_mov_b32 v3, 0")
a("v_mov_b32 v4, 0")
a("v_mov_b32 v5, 0")
a(f"v_add_u32 v7, {L_PROG}, v6")
a("ds_write_b128 v7, v[2:5]")
a("ds_write_b128 v7, v[2:5] offset:1024")
a(f"v_lshl_add_u32 v14, s{sWV}, 2, v12")
a("v_xor_b32 v15, v13, v14")
a("v_lshlrev_b32 v15, 4, v15")
a("v_lshl_add_u32 v16, v14, 10, v15")
def wo_voff(dst, t):
    a(f"v_lshrrev_b32 v{t}, 3, v0")
    a(f"v_and_b32 v{t+1}, 7, v0")
    a(f"v_lshrrev_b32 v{t+2}, 2, v0")
    a(f"v_and_b32 v{t+2}, 4, v{t+2}")
    a(f"v_xor_b32 v{t+1}, v{t+1}, v{t+2}")
    a(f"v_lshlrev_b32 v{t+1}, 4, v{t+1}")
    a(f"v_lshl_add_u32 v{dst}, v{t}, 10, v{t+1}")
wo_voff(17, 20)
def wslice_setup():
    a(f"s_lshl_b32 s{sT0}, s{sG}, 7")
    a(f"s_lshl_b32 s{sT1}, s{sWV}, 15")
    a(f"s_add_u32 s{sT0}, s{sT0}, s{sT1}")
    a(f"s_lshl_b32 s{sT1}, s{sWV}, 12")
wslice_setup()
a(f"s_lshl_b32 s{sT4}, s{sRB}, 16")
a(f"s_lshl_b32 s{sT5}, s{sWV}, 10")
for m in range(1, 4):
    a(f"s_add_u32 s{sT2}, s{sGRP}, {m}")
    a(f"s_and_b32 s{sT2}, s{sT2}, 3")
    a(f"s_lshl_b32 s{sT3}, s{sT2}, 14")
    a(f"s_add_u32 s{95+m}, s{sT3}, s{sT4}")
    a(f"s_lshl_b32 s{sT3}, s{sT2}, 12")
    a(f"s_add_u32 s{98+m}, s{sT3}, s{sT5}")
a(f"s_mov_b32 s{R_B+2}, {512*1024}")
a(f"v_mov_b32 v{vCA}, {L_CNT}")
a(f"v_mov_b32 v{vONEA}, 1")
a("s_waitcnt lgkmcnt(0)")
a(f"s_mov_b32 s{R_A}, s{P_AX}")
a(f"s_and_b32 s{R_A+1}, s{P_AX+1}, 0xffff")
a(f"s_mov_b32 s{R_B}, s{P_WQ}")
a(f"s_and_b32 s{R_B+1}, s{P_WQ+1}, 0xffff")
if STAMPS:
    a("s_mov_b32 s81, 0")
    a("s_mov_b32 s93, 0")
a("s_barrier")
def qops(sl):
    a(f"s_add_u32 s{sT3}, s{sROT}, {sl}")
    a(f"s_and_b32 s{sT3}, s{sT3}, 3")
    a(f"s_lshl_b32 s{sT4}, s{sT3}, 8")
    a(f"s_lshl_b32 s{sT3}, s{sT3}, 17")
    a(f"s_add_u32 s{sT3}, s{sT3}, s{sT0}")
    for m in range(1, 4):
        a(f"s_add_u32 m0, s{98+m}, {L_XA + 16384*sl}")
        a(f"s_add_u32 s{sT2}, s{95+m}, s{sT4}")
        dma(16, R_A, f"s{sT2}")
    for i in range(4):
        a(f"s_add_u32 m0, s{sT1}, {L_WQ + 16384*sl + 1024*i}")
        a(f"s_add_u32 s{sT2}, s{sT3}, {8192*i}")
        dma(17, R_B, f"s{sT2}")
if CPF == 1: a(f"global_load_dword v33, v32, s[{sM}:{sM+1}]")
QW = int(OPT.get("qw", 0))
for sl in range(QW): qops(sl)
PFW, PFU = int(OPT.get("pfw", 1)), OPT.get("pfu", "")
if PFW:
    cm("warm L2 with this workgroup's quarter of its Wq slice")
    a(f"s_and_b32 s{sT2}, s{sRB}, 3")
    a(f"s_lshl2_add_u32 s{sT2}, s{sT2}, s{sWV}")
    a(f"s_lshl_b32 s{sT2}, s{sT2}, 15")
    a(f"s_lshl_b32 s{sT3}, s{sG}, 7")
    a(f"s_add_u32 s{sT2}, s{sT2}, s{sT3}")
    a("v_and_b32 v20, 31, v0")
    a("v_lshlrev_b32 v20, 10, v20")
    a("s_mov_b32 exec_hi, 0")
    a(f"buffer_load_dword v34, v20, {sr(R_B,4)}, s{sT2} offen")
    a("s_mov_b64 exec, -1")
def pfu(which):
    cm("pull this wave's 1/1024 share of later inputs out of HBM")
    a(f"s_lshl2_add_u32 s{sT2}, s2, s{sWV}")
    a("v_lshlrev_b32 v26, 7, v0")
    for i, ch in enumerate(which):
        ptr, lines = {"x": (P_BX, 16), "r": (P_BRE, 4), "i": (P_BIM, 4), "c": (P_CRE, 4), "d": (P_CIM, 4), "o": (P_WO, 4)}[ch]
        a(f"s_mul_i32 s{sT3}, s{sT2}, {128*lines}")
        a(f"v_add_u32 v21, s{sT3}, v26")
        a(f"s_mov_b64 exec, {(1 << lines) - 1}")
        a(f"global_load_dword v{35+i}, v21, s[{ptr}:{ptr+1}]")
        a("s_mov_b64 exec, -1")
if PFU: pfu(PFU)
srd(R_WS, P_WS, WS_SIZE)
a(f"s_mov_b32 s{sSYNC}, 0")
a(f"s_mov_b32 s{sLO}, {f32(L_LO)}")
a(f"s_mov_b32 s{sHI}, {f32(L_HI)}")
cm("prefill V regs: rows 16 and 20 = ones, other rows >=16 zero")
a("v_and_b32 v24, 27, v0")
a("v_cmp_eq_u32 vcc, 16, v24")
a("v_mov_b32 v25, 0x3f803f80")
a("s_nop 0")
a("v_cndmask_b32 v24, 0, v25, vcc")
a("v_mov_b32 v25, v24")
for t in range(16):
    for j in range(4):
        a(f"v_mov_b64 {vr(KV+12*t+4+2*j,2)}, v[24:25]")
a("v_mov_b32 v14, v6")
a("v_lshrrev_b32 v24, 5, v0")
a("v_and_b32 v25, 15, v0")
a("v_lshl_add_u32 v15, v24, 4, v25")
a("v_lshlrev_b32 v15, 4, v15")
a(f"v_mov_b32 v{vIDX}, 0xdddddddd")
a(f"s_lshl_b32 s{sT2}, s{sWV}, 11")
a(f"v_add_u32 v{vAD}, s{sT2}, v14")
a(f"s_lshl_b32 s{sT2}, s{sWV}, 2")
a(f"s_add_u32 s{sT3}, s{sT2}, {L_PART + 8192}")
a(f"v_add_u32 v{vAS}, s{sT3}, v14")
a(f"s_add_u32 s{sT3}, s{sT2}, {L_PROG}")
a(f"v_add_u32 v{vPG}, s{sT3}, v14")
a(f"v_add_u32 v{vAQ}, {L_QF}, v14")
a(f"v_lshlrev_b32 v23, {FSH}, v0")
a("s_barrier")
a(f"ds_read_b32 v20, v{vCA} offset:{C_TAG}")
if "1" in SX: spx("r", 0, 14)
B0 = int(OPT.get("b0", 0))
for sl in range(QW, 4):
    qops(sl)
    if sl + 1 == B0:
        a(f"s_waitcnt vmcnt({7*(B0-1)})")
        a("s_barrier")
PFL = OPT.get("pfl", "")
if PFL: pfu(PFL)
NL = len(PFL)
a(f"s_waitcnt vmcnt({14+NL}) lgkmcnt(0)")
a("s_barrier")
a(f"v_readfirstlane_b32 s{sTAG}, v20")
cm("scalars for the tail")
sKV = sT0
a(f"s_sub_u32 s{sSTEP}, 7, s{sWV}")
o_offsets()
a(f"s_mov_b32 s{sF1}, s{sT0}")
a(f"s_mov_b32 s{sF2}, s{sT1}")
a(f"s_mul_i32 s{sT2}, s{sSTEP}, {PSTRIDE}")
a(f"s_lshr_b32 s{sT4}, s{sWV}, 1")
a(f"s_lshl1_add_u32 s{sYG}, s{sRB}, s{sT4}")
a(f"s_lshl_b32 s{sCG}, s{sYG}, 12")
a(f"s_add_u32 s{sCG}, s{sCG}, {WS_FO + 16*128}")
srd(R_B, P_OUT, 2048 * 4096)
a(f"s_and_b32 s{sT0}, s{sWV}, 1")
a(f"s_lshl1_add_u32 s{sT0}, s{sG}, s{sT0}")
a(f"s_lshl_b32 s{sT0}, s{sT0}, 7")
a(f"s_lshl_b32 s{sT3}, s{sYG}, 17")
a(f"s_add_u32 s{sT3}, s{sT3}, s{sT0}")
a(f"s_lshl_b32 s{sT6}, s{sYG}, 15")
a(f"s_add_u32 s{sT6}, s{sT6}, {WS_O + 16384}")
a(f"s_mul_i32 s{sT4}, s{sWV}, {PSTRIDE}")
a(f"s_lshl_b32 s{sT5}, s{sWV}, 9")
a(f"s_add_u32 s{sT5}, s{sT5}, {L_CS}")
a(f"s_lshl_b32 s{sT0}, s{sWV}, {FSH+6}")
a(f"s_add_u32 s{sT0}, s{sT0}, {WS_FKV}")
stamp(1)
if "2" in SX: spx("i", 0, 14)
SU = OPT.get("su", "")
if "a" in SU: spf([(P_BX, 16, 0, 14)])
if "b" in SU: spf([(P_BRE, 4, 0, 4), (P_BIM, 4, 0, 4), (P_BX, 16, 0, 6)])
a(f"s_waitcnt vmcnt({7+NL})")
a("s_barrier")
PE = int(OPT.get("pe", 1))
if PE == 2:
    a(f"buffer_load_dword v22, v23, {sr(R_WS,4)}, s{sT0} offen sc1")
    a(f"s_waitcnt vmcnt(1)")
else:
    a(f"s_waitcnt vmcnt({NL})")
if PE == 1: a(f"buffer_load_dword v22, v23, {sr(R_WS,4)}, s{sT0} offen sc1")
a("s_barrier")
a("s_branch L_a2")
sec("A")
lab("L_a2")
stamp(2)
for _ in range(int(OPT.get("pd", 0))): a("s_sleep 2")
a(f"s_mov_b32 s{sCNT}, {POLL_LIMIT}")
if PE: a("s_branch L_a_kvq")
lab("L_a_kvp")
a(f"buffer_load_dword v22, v23, {sr(R_WS,4)}, s{sT0} offen sc1")
lab("L_a_kvq")
a("s_waitcnt vmcnt(0)")
a(f"v_xor_b32 v22, s{sTAG}, v22")
a("v_cmp_lt_u32 vcc, 15, v22")
a("s_cbranch_vccz L_a_kvok")
a(f"s_sub_u32 s{sCNT}, s{sCNT}, 1")
a("s_cbranch_scc0 L_a_kvp")
lab("L_a_kvok")
stamp(4)
a(f"s_lshl_b32 s{sT0}, s{sWV}, 15")
a(f"s_add_u32 s{sT0}, s{sT0}, {WS_KV}")
a(f"s_mov_b32 s{sM}, 0xffff")
a(f"s_mov_b32 s{sM+1}, 0xffff")
def kvload(tp):
    for t in (2*tp, 2*tp+1):
        a(f"buffer_load_dwordx4 {vr(KV+12*t,4)}, v14, {sr(R_WS,4)}, s{sT0} offen offset:{2048*(t&1)} sc1")
    a(f"s_mov_b64 exec, s[{sM}:{sM+1}]")
    for t in (2*tp, 2*tp+1):
        a(f"buffer_load_dwordx4 {vr(KV+12*t+4,4)}, v15, {sr(R_WS,4)}, s{sT0} offen offset:{2048*(t&1)+1024} sc1")
        a(f"buffer_load_dwordx4 {vr(KV+12*t+8,4)}, v15, {sr(R_WS,4)}, s{sT0} offen offset:{2048*(t&1)+1536} sc1")
    a("s_mov_b64 exec, -1")
    if tp < 7: a(f"s_add_u32 s{sT0}, s{sT0}, 4096")
NINIT = int(OPT.get("ninit", 3))
A4POS = int(OPT.get("a4", 8))
ABPOS = int(OPT.get("ab", 0))
NB = int(OPT.get("nb", NINIT))
for tp in range(NB):
    kvload(tp)
cm("do all 32 workgroups of this id class share this XCD?")
a(f"s_bfe_u32 s{sT1}, s2, 0x20001")
a(f"s_cmp_eq_u32 s{sT1}, s{sWV}")
a("s_cbranch_scc0 L_a_nomode")
a(f"s_getreg_b32 s{sT1}, hwreg(HW_REG_XCC_ID, 0, 4)")
a(f"v_cmp_ne_u32 vcc, s{sT1}, v22")
a("s_bitcmp1_b32 s2, 0")
a(f"s_cselect_b32 s{sT1}, vcc_hi, vcc_lo")
a(f"s_cmp_eq_u32 s{sT1}, 0")
a(f"s_cselect_b32 s{sT1}, {2 if OPT.get('nolocal') else 1}, 2")
a(f"v_mov_b32 v21, s{sT1}")
a(f"ds_write_b32 v{vCA}, v21 offset:{C_MODE}")
lab("L_a_nomode")
assert NINIT < 8
stamp(5)
a("s_barrier")
a("s_setprio 1")
a(f"ds_read_b128 {vr(vQ,4)}, v{vAQ}")
a(f"v_add_u32 v{vAQ}, 1024, v{vAQ}")
for tp in range(NB, NINIT): kvload(tp)
a(f"s_waitcnt vmcnt({6*(NINIT-1)+4}) lgkmcnt(0)")
stamp(6)
cstamp(10)

K_ = lambda t: KV + 12 * t
V1 = lambda t: KV + 12 * t + 4
V2 = lambda t: KV + 12 * t + 8
def ex(X, i): a(f"v_exp_f32 v{X+i}, v{X+i}")
def exs(X, lo, hi):
    for i in range(lo, hi): ex(X, i)
def smf(v, p): a(f"v_smfmac_f32_32x32x32_bf16 {vr(vO,16)}, {vr(v,4)}, {vr(p,8)}, v{vIDX}")
def qk(d, t): mfma32(d, K_(t), vQ, "0")
def zeroO(): a(f"v_mfma_f32_32x32x8_bf16 {vr(vO,16)}, {vr(vZ,2)}, {vr(vZ,2)}, 0")
def dump():
    a(f"ds_write_b128 v{vAD}, {vr(vO,4)}")
    a(f"ds_write_b128 v{vAD}, {vr(vO+4,4)} offset:1024")
    a(f"ds_write_b32 v{vAS}, v{vO+8}")
    a(f"ds_write_b32 v{vPG}, v{vAS}")

KVS = int(OPT.get('kvs', 2))
QPF = int(OPT.get('qpf', 0))
PQ, PS1 = [int(x) for x in OPT.get('pos', '7,12').split(',')]
assert not QPF
UN2 = int(OPT.get("un2", 0))
def dump2(off):
    a(f"ds_write_b128 v{vAD}, {vr(vO,4)}" + (f" offset:{off}" if off else ""))
    a(f"ds_write_b128 v{vAD}, {vr(vO+4,4)} offset:{1024+off}")
    a(f"ds_write_b32 v{vAS}, v{vO+8}")
    a(f"ds_write_b32 v{vPG}, v{vAS}")
def tiles_1_15(first):
    issued = [NINIT + 1 if first else 8]
    def preqk(tn):
        if first and tn % 2 == 0 and tn < 16:
            a(f"s_waitcnt vmcnt({6*(min(issued[0],8) - 1 - tn//2)})")
    def more(t):
        if first and t % KVS == 0 and issued[0] < 8:
            kvload(issued[0]); issued[0] += 1
            if issued[0] in (A4POS, ABPOS): signal(vCA, vONEA, C_A4)
    for t in range(1, 16):
        X, Y = (S0, S1) if t % 2 == 0 else (S1, S0)
        exs(X, 0, 2); smf(V2(t - 1), Y + 8); exs(X, 2, PQ)
        if t == 15:
            a("s_waitcnt lgkmcnt(0)")
            if DBG == "steps":
                a(f"s_sub_u32 m0, 7, s{sSTEP}")
                a("s_nop 0")
                a(f"s_movreld_b32 s81, s{sST}")
            qk(Y, 0)
        else:
            preqk(t + 1)
            qk(Y, t + 1)
        if t == 14 and DBG == "steps": a(f"s_memtime s[{sST}:{sST+1}]")
        if t == 14:
            a(f"ds_read_b128 {vr(vQ,4)}, v{vAQ}")
            a(f"v_add_u32 v{vAQ}, 1024, v{vAQ}")
        exs(X, PQ, PS1); smf(V1(t), X); more(t); exs(X, PS1, 16)

qk(S0, 0)
zeroO()
a(f"s_mov_b32 s{sSTEP}, 7")
kvload(NINIT)
if NINIT + 1 in (A4POS, ABPOS): signal(vCA, vONEA, C_A4)
exs(S0, 0, 4); qk(S1, 1); exs(S0, 4, 12)
a(f"s_waitcnt vmcnt({6*NINIT})")
smf(V1(0), S0); exs(S0, 12, 16)
tiles_1_15(True)
a(f"s_mov_b32 s{sSTEP}, 6")
a("s_nop 0")
lines.append(".p2align 6")
lab("L_a_loop")
cm("tile 0: finish the previous q-tile (6 exps = 48+ cycles cover the accumulator latency), restart the accumulator")
X, Y = S0, S1
smf(V2(15), Y + 8); exs(X, 0, 3); qk(Y, 1); exs(X, 3, 6)
dump()
ex(X, 6); zeroO(); exs(X, 7, 12)
a(f"v_add_u32 v{vAD}, {PSTRIDE}, v{vAD}")
a(f"v_add_u32 v{vAS}, {PSTRIDE}, v{vAS}")
smf(V1(0), X)
exs(X, 12, 16)
tiles_1_15(False)
a(f"s_sub_u32 s{sSTEP}, s{sSTEP}, 1")
a("s_cbranch_scc0 L_a_loop")

lab("L_a_fin")
smf(V2(15), S1 + 8)
a("v_lshlrev_b32 v14, 4, v0")
a(f"v_mov_b32 v{vCA}, {L_CNT}")
a(f"v_add_u32 v9, s{sT2}, v14")
a("v_and_b32 v10, 3, v0")
a("v_lshlrev_b32 v10, 2, v10")
a(f"v_add_u32 v10, {L_PROG}, v10")
a(f"s_add_u32 s{sT2}, s{sT2}, {L_PART + 8192}")
a(f"v_add_u32 v6, s{sT4}, v14")
a("v_lshlrev_b32 v16, 2, v0")
a(f"v_mov_b32 v17, s{sTAG}")
a("s_setprio 3")
dump()
a("v_lshlrev_b32 v7, 3, v0")
a(f"v_add_u32 v7, s{sT5}, v7")
a(f"s_mov_b32 s{sKIND}, 0")
stamp(7)
cstamp(11)
lab("L_a_rw")
a("ds_read_b32 v11, v10")
a(f"ds_read_b32 v8, v{vCA} offset:{C_MODE}")
a("ds_read_b128 v[52:55], v9 offset:8192")
for w in range(8):
    a(f"ds_read_b128 {vr(20+4*w,4)}, v9 offset:{1024*w}")
a("ds_read_b128 v[56:59], v6 offset:8192")
WSH = int(OPT.get("wsh", 1))
if WSH:
    a(f"ds_read_b32 v60, v{vCA} offset:{C_GH}")
    a("ds_read_b64 v[4:5], v7")
a(f"s_waitcnt lgkmcnt({11 if WSH else 9})")
a(f"v_cmp_gt_u32 vcc, s{sT2}, v11")
a("s_cbranch_vccnz L_a_rw")
a(f"v_readfirstlane_b32 s{sMODE}, v8")
a(f"s_mov_b32 s{sT1}, s{sF2}")
sum_check(52)
a(f"s_waitcnt lgkmcnt({3 if WSH else 1})")
a("s_cbranch_scc1 L_a_bad1")
reduce_math(20, 14, flag=False, bs=52)
a("v_and_b32 v15, 15, v0")
a("v_lshlrev_b32 v15, 7, v15")
a(f"s_lshl_b32 s{sT0}, s{sWV}, 2")
a(f"v_add_u32 v10, s{sT0}, v{vCA}")
AO, AW, AC = 88, 152, 48
NSH = int(OPT.get("nsh", 12)); WG0 = int(OPT.get("wg0", 15))
def awread(k):
    o = PSTRIDE * (k // 4) + 2048 * (k % 4)
    a(f"ds_read_b64_tr_b16 {vr(AW+4*k,2)}, v4 offset:{o}")
    a(f"ds_read_b64_tr_b16 {vr(AW+4*k+2,2)}, v4 offset:{o+1024}")
if WSH:
    a("s_waitcnt lgkmcnt(0)")
    a("v_cmp_gt_u32 vcc, NSYNC_B2, v60")
    a("s_cbranch_vccnz L_a_nosh")
    a(f"s_mov_b32 s{sKIND}, 1")
    for k in range(NSH): awread(k)
    lab("L_a_nosh")
a("s_waitcnt vmcnt(0)")
a("s_mov_b32 exec_hi, 0")
st2([f"buffer_store_dword v17, v16, {sr(R_WS,4)}, s{sF1} offen@"])
a("s_mov_b64 exec, -1")
lab("L_a_ok1")
stamp(8)
if not WSH: a("s_waitcnt lgkmcnt(0)")
sum_check(56)
a("s_cbranch_scc1 L_a_bad2")
lab("L_a_ok2")
cm("output projection, last 16 heads")
poll(15, f"s{sCG}", 8)
stamp(9)
for g in range(16):
    if g % 4 == 0 and g: a(f"s_add_u32 s{sT6}, s{sT6}, 4096")
    a(f"buffer_load_dwordx4 {vr(AO+4*g,4)}, v14, {sr(R_WS,4)}, s{sT6} offen offset:{1024*(g%4)} sc1")
    if g == WG0:
        a(f"s_cmp_eq_u32 s{sKIND}, 1")
        a("s_cbranch_scc1 L_a_wd")
        lab("L_a_ww")
        a(f"ds_read_b32 v11, v{vCA} offset:{C_GH}")
        a("ds_read_b64 v[4:5], v7")
        a("s_waitcnt lgkmcnt(0)")
        a("v_cmp_gt_u32 vcc, NSYNC_B2, v11")
        a("s_cbranch_vccnz L_a_ww")
        for k in range(NSH): awread(k)
        lab("L_a_wd")
YLT = int(OPT.get("ylt", 0))
if YLT == 1: signal(vCA, vONEA, C_S)
for k in range(NSH, 16): awread(k)
a(f"ds_read_b32 v11, v10 offset:{C_HA}")
for i in range(4):
    a(f"ds_read_b128 {vr(16+4*i,4)}, v6 offset:{1024*i}")
cm("epoch update by WG0 (every workgroup has read the old value long ago)")
a(f"s_lshl2_add_u32 s{sT0}, s2, s{sWV}")
a(f"s_cmp_eq_u32 s{sT0}, 0")
a("s_cbranch_scc0 L_a_noep")
setflag(8, 9, sT0)
lab("L_a_noep")
for g in range(16):
    a(f"s_waitcnt vmcnt({15-g}) lgkmcnt({min(15, 5 + 2*(15-g))})")
    mfma32(AC, AO + 4*g, AW + 4*g, "0" if g == 0 else None)
if YLT == 2: signal(vCA, vONEA, C_S)
stamp(13)
a("s_waitcnt lgkmcnt(0)")
a("v_cmp_eq_u32 vcc, 0, v11")
a("s_cbranch_vccz L_a_hok")
lab("L_a_hw")
a(f"ds_read_b32 v11, v10 offset:{C_HA}")
for i in range(4):
    a(f"ds_read_b128 {vr(16+4*i,4)}, v6 offset:{1024*i}")
a("s_waitcnt lgkmcnt(0)")
a("v_cmp_eq_u32 vcc, 0, v11")
a("s_cbranch_vccnz L_a_hw")
lab("L_a_hok")
a("s_nop 8")
stamp(14)
for j in range(8):
    a(f"v_pk_add_f32 {vr(AC+2*j,2)}, {vr(AC+2*j,2)}, {vr(16+2*j,2)}")
    for r in (2*j, 2*j + 1):
        a(f"s_add_u32 s{sT1}, s{sT3}, {4096 * (8*(r//4) + r%4)}")
        a(f"buffer_store_dword v{AC+r}, v5, {sr(R_B,4)}, s{sT1} offen{OUTFL}")
a("s_branch L_end")

sec("P")
ROLE[0] = "H"
if STAMPS:
    a("s_mov_b32 s81, 0")
    a("s_mov_b32 s92, 0")
    a("s_mov_b32 s93, 0")
srd(R_WS, P_WS, WS_SIZE)
a("v_xor_b32 v14, v12, v13")
a("v_lshlrev_b32 v14, 4, v14")
a("v_lshl_add_u32 v14, v13, 8, v14")
a(f"v_add_u32 v8, s{sT2}, v14")
for ks in range(1, 4):
    a(f"v_xor_b32 v{8+ks}, {64*ks}, v8")
a("v_lshrrev_b32 v14, 2, v13")
a("v_lshl_add_u32 v14, v12, 3, v14")
a("v_lshlrev_b32 v14, 5, v14")
a("v_and_b32 v15, 3, v0")
a("v_lshl_add_u32 v14, v15, 3, v14")
a(f"v_add_u32 v14, s{sT4}, v14")
a(f"s_lshl_b32 s{sT0}, s{sWV}, 10")
a(f"s_add_u32 s{sT0}, s{sT0}, {L_KVP}")
a(f"v_add_u32 v15, s{sT0}, v6")
a(f"s_lshl_b32 s{sT0}, s{sRB}, 2")
a(f"s_add_u32 s{sT0}, s{sT0}, s{sGRP}")
a(f"s_lshr_b32 s{sT1}, s{sT0}, 1")
a(f"s_lshl_b32 s{sT1}, s{sT1}, 1")
a(f"s_add_u32 s{sT1}, s{sT1}, s{sKIND}")
a(f"s_lshl_b32 s{sT1}, s{sT1}, 10")
a(f"s_and_b32 s{sT2}, s{sT0}, 1")
a(f"s_add_u32 s{sT3}, s{sKIND}, 8")
a(f"s_lshl_b32 s{sT2}, s{sT2}, s{sT3}")
a(f"s_add_u32 s{sT1}, s{sT1}, s{sT2}")
a(f"s_add_u32 s{sT5}, s{sT1}, {WS_KV}")
a(f"s_lshl_b32 s{sT0}, s{sT0}, 1")
a(f"s_add_u32 s{sT0}, s{sT0}, s{sKIND}")
a(f"s_lshl_b32 s{sT0}, s{sT0}, {FSH}")
a(f"s_add_u32 s{sT6}, s{sT0}, {WS_FKV}")
a(f"s_cmp_eq_u32 s{sKIND}, 0")
a(f"s_cselect_b32 s{sT0}, 9, 3")
a(f"s_cselect_b32 s{sT1}, 3, 8")
a("v_and_b32 v34, 1, v12")
a("v_lshrrev_b32 v35, 1, v12")
a("v_lshlrev_b32 v16, 4, v13")
a(f"v_lshl_add_u32 v16, v34, s{sT0}, v16")
a(f"v_lshl_add_u32 v16, v35, s{sT1}, v16")
a(f"v_mov_b32 v{vCNT}, {L_CNT}")
a(f"v_mov_b32 v{vONE}, 1")
a("s_waitcnt lgkmcnt(0)")
a(f"s_mul_i32 s{sTAG}, s{sTAG}, 1664525")
a(f"s_add_u32 s{sTAG}, s{sTAG}, 1013904223")
if EP0:
    a(f"s_cmp_eq_u32 s{sWV}, 0")
    a("s_cbranch_scc0 L_h_notag")
a(f"v_mov_b32 v36, s{sTAG}")
a(f"ds_write_b32 v{vCNT}, v36 offset:{C_TAG}")
lab("L_h_notag")
a(f"s_cmp_eq_u32 s{sKIND}, 0")
a(f"s_waitcnt vmcnt(4)")
stamp(1)
b = 128
for ks in range(4):
    a(f"ds_read_b128 {vr(b+8*ks,4)}, v{8+ks}")
    a(f"ds_read_b64_tr_b16 {vr(b+8*ks+4,2)}, v14 offset:{1024*ks}")
    a(f"ds_read_b64_tr_b16 {vr(b+8*ks+6,2)}, v14 offset:{1024*ks+128}")
def kvproj(kind):
    for ks in range(4):
        a(f"s_waitcnt lgkmcnt({9 - 3*ks})")
        x, w = vr(b+8*ks, 4), vr(b+8*ks+4, 4)
        if kind == 0: x, w = w, x
        a(f"v_mfma_f32_16x16x32_bf16 v[40:43], {x}, {w}, {'0' if ks == 0 else 'v[40:43]'}")
a("s_cbranch_scc0 L_h_vproj")
kvproj(0)
a("s_branch L_h_kvdone")
lab("L_h_vproj")
kvproj(1)
lab("L_h_kvdone")
a(f"s_cmp_eq_u32 s{sWV}, 0")
a("s_cbranch_scc1 L_h_pub")
a("s_nop 5")
a("ds_write_b128 v15, v[40:43]")
a("s_waitcnt lgkmcnt(0)")
a("s_barrier")
a("s_branch L_h_common")
lab("L_h_pub")
a("s_barrier")
for i in range(1, 4):
    a(f"ds_read_b128 {vr(40+4*i,4)}, v15 offset:{1024*i}")
a("s_nop 1")
a("s_waitcnt lgkmcnt(0)")
a("v_pk_add_f32 v[40:41], v[40:41], v[44:45]")
a("v_pk_add_f32 v[42:43], v[42:43], v[46:47]")
a("v_pk_add_f32 v[48:49], v[48:49], v[52:53]")
a("v_pk_add_f32 v[50:51], v[50:51], v[54:55]")
a("v_pk_add_f32 v[40:41], v[40:41], v[48:49]")
a("v_pk_add_f32 v[42:43], v[42:43], v[50:51]")
a("v_cvt_pk_bf16_f32 v40, v40, v41")
a("v_cvt_pk_bf16_f32 v41, v42, v43")
a(f"buffer_store_dwordx2 v[40:41], v16, {sr(R_WS,4)}, s{sT5} offen sc1")
dstamp("p", 5)
a("s_branch L_h_common")
sec("HQ")
lab("L_h_common")
if "3" in SX: spx("x", 0, 15)
a(f"s_mov_b32 s{sSYNC}, 0")
a("v_and_b32 v17, 31, v0")
a("v_lshrrev_b32 v18, 5, v0")
p0, p1, p2, vDSK = 60, 61, 62, 63
cm("Q projection addresses")
QXA = list(range(48, 56))
a(f"s_lshr_b32 s{sT0}, s{sWV}, 1")
a(f"s_lshl_b32 s{sT0}, s{sT0}, 13")
a("v_xor_b32 v34, v13, v18")
a("v_lshlrev_b32 v34, 4, v34")
a("v_lshl_add_u32 v34, v17, 8, v34")
a(f"v_add_u32 v{QXA[0]}, s{sT0}, v34")
for ks in range(1, 8):
    a(f"v_xor_b32 v{QXA[ks]}, {32*ks}, v{QXA[0]}")
wtr_addr(vWT, 9, L_R1, 34)
a(f"v_lshl_add_u32 v56, v18, 9, v{vWT}")
a(f"v_add_u32 v56, {(L_WQ - L_R1) & 0xffffffff}, v56")
a(f"s_and_b32 s{sT1}, s{sWV}, 1")
a(f"s_lshl_b32 s{sT1}, s{sT1}, 12")
a(f"s_lshr_b32 s{sT2}, s{sWV}, 1")
a(f"s_lshl_b32 s{sT2}, s{sT2}, 10")
a(f"s_add_u32 s{sT1}, s{sT1}, s{sT2}")
a(f"s_add_u32 s{sT1}, s{sT1}, {L_QF}")
a(f"v_add_u32 v57, s{sT1}, v6")
a(f"v_mov_b32 v58, {f32(0.25 * LOG2E)}")
a("v_mov_b32 v59, v58")
cm("SSM offsets and addresses")
a(f"s_mov_b32 s{R_A}, s{P_BX}")
a(f"s_and_b32 s{R_A+1}, s{P_BX+1}, 0xffff")
srd(R_B, P_BRE, 512 * 1024)
srd(R_C, P_BIM, 512 * 1024)
a(f"s_mov_b32 s{sLO}, {f32(L_LO)}")
a(f"s_mov_b32 s{sHI}, {f32(L_HI)}")
a(f"s_lshl_b32 s{sT0}, s{sC}, 17")
a(f"s_lshl_b32 s{sT1}, s{sWV}, 15")
a(f"s_add_u32 s{sT3}, s{sT0}, s{sT1}")
a(f"s_lshr_b32 s{sT0}, s{sWV}, 1")
a(f"s_lshl1_add_u32 s{sYG}, s{sRB}, s{sT0}")
if YM:
    a(f"s_and_b32 s{sYY}, s{sRB}, 24")
    a(f"s_add_u32 s{sYY}, s{sYY}, s{sG}")
    a(f"s_lshl1_add_u32 s{sYY}, s{sYY}, s{sT0}")
else:
    a(f"s_mov_b32 s{sYY}, s{sYG}")
a(f"s_and_b32 s{sT0}, s{sWV}, 1")
a(f"s_lshl1_add_u32 s{sCG}, s{sGY}, s{sT0}")
a(f"s_lshl_b32 s{sT4}, s{sYY}, 15")
a(f"s_lshl_b32 s{sT2}, s{sCG}, 6")
a(f"s_add_u32 s{sT4}, s{sT4}, s{sT2}")
wo_voff(vWO, 34)
a("v_lshrrev_b32 v36, 2, v0")
a("v_and_b32 v34, 3, v36")
a("v_bfe_u32 v35, v36, 2, 1")
a("v_lshl_add_u32 v34, v35, 4, v34")
a("v_lshrrev_b32 v35, 3, v36")
a("v_lshl_add_u32 v34, v35, 2, v34")
a("v_and_b32 v37, 3, v0")
a("v_lshlrev_b32 v35, 4, v37")
a("v_lshl_add_u32 v8, v34, 10, v35")
a("v_add_u32 v9, 8192, v8")
a(f"v_mul_u32_u24 v{vRB}, {RSTR}, v17")
a(f"v_lshl_add_u32 v{vRB}, v18, 4, v{vRB}")
a(f"v_add_u32 v{vRB}, {L_R1}, v{vRB}")
a(f"s_lshl_b32 s{sT1}, s{sWV}, 11")
a(f"s_add_u32 s{sT1}, s{sT1}, {L_SCR}")
a("v_xor_b32 v34, v12, v37")
a("v_lshlrev_b32 v34, 4, v34")
a("v_lshl_add_u32 v34, v36, 6, v34")
a(f"v_add_u32 v10, s{sT1}, v34")
a("v_bfe_u32 v34, v0, 2, 2")
a("v_xor_b32 v35, v34, v18")
a("v_lshlrev_b32 v35, 4, v35")
a("v_lshl_add_u32 v35, v17, 6, v35")
a(f"v_add_u32 v11, s{sT1}, v35")
a("v_xor_b32 v12, 32, v11")
a("v_lshl_add_u32 v34, v18, 3, v34")
a("v_lshlrev_b32 v34, 6, v34")
a("v_bfe_u32 v35, v0, 4, 1")
a("v_lshl_add_u32 v34, v35, 5, v34")
a("v_lshl_add_u32 v34, v37, 3, v34")
a(f"v_add_u32 v19, s{sT1}, v34")
a("v_lshlrev_b32 v34, 6, v17")
a("v_lshl_add_u32 v34, v18, 5, v34")
a(f"v_add_u32 v16, s{sT1}, v34")
a("v_lshlrev_b32 v38, 4, v18")
a("v_lshl_add_u32 v29, v17, 10, v38")
a("v_lshlrev_b32 v14, 4, v17")
a("s_waitcnt vmcnt(1)")
a(f"s_cmp_eq_u32 s{sWV}, 0")
a("s_cbranch_scc1 L_h_pw")
a("s_waitcnt vmcnt(0)")
lab("L_h_pw")
FPOS = int(OPT.get("fpos", 1))
def kvflag():
    a("s_waitcnt vmcnt(0)")
    a(f"s_cmp_eq_u32 s{sWV}, 0")
    a("s_cbranch_scc0 L_h_nopub")
    a(f"s_getreg_b32 s{sT0}, hwreg(HW_REG_XCC_ID, 0, 4)")
    a(f"s_xor_b32 s{sT0}, s{sT0}, s{sTAG}")
    a("v_mov_b32 v34, 0")
    a(f"v_mov_b32 v35, s{sT0}")
    a("s_mov_b64 exec, 1")
    a(f"buffer_store_dword v35, v34, {sr(R_WS,4)}, s{sT6} offen sc1")
    a("s_mov_b64 exec, -1")
    stamp(2)
    lab("L_h_nopub")
if FPOS == 0: kvflag()
cm("SSM parameters")
q0, q1, q2, q3, q4 = 64, 65, 66, 67, 68
a(f"v_lshlrev_b32 v{p0}, 16, v{p0}")
a(f"v_lshlrev_b32 v{p1}, 16, v{p1}")
a(f"v_lshlrev_b32 v{p2}, 16, v{p2}")
a(f"v_mul_f32 v{p2}, {f32(LOG2E)}, v{p2}")
a(f"v_exp_f32 v{p2}, v{p2}")
a("s_nop 0")
a(f"v_cvt_pk_bf16_f32 v{p2}, v{p2}, v{p2}")
a(f"v_and_b32 v{p2}, 0xffff0000, v{p2}")
a(f"v_mul_f32 v{q0}, v{p2}, v{p0}")
a(f"v_mul_f32 v{q1}, v{p2}, v{p1}")
a(f"v_mul_f32 v{q0}, {f32(LOG2E)}, v{q0}")
a(f"v_mul_f32 v{q1}, {f32(1/(2*math.pi))}, v{q1}")
a(f"v_exp_f32 v{q0}, v{q0}")
a(f"v_rndne_f32 v{q2}, v{q1}")
a(f"v_sub_f32 v{q1}, v{q1}, v{q2}")
a(f"v_cos_f32 v{q2}, v{q1}")
a(f"v_sin_f32 v{q3}, v{q1}")
a(f"v_mul_f32 v{q4}, v{p0}, v{p0}")
a(f"v_fma_f32 v{q4}, v{p1}, v{p1}, v{q4}")
a(f"v_mul_f32 v{vL}, v{q0}, v{q2}")
a(f"v_mul_f32 v{vL+1}, v{q0}, v{q3}")
a(f"v_rcp_f32 v{q4}, v{q4}")
a(f"v_add_f32 v{q2}, -1.0, v{vL}")
a(f"v_add_f32 v{q4}, v{q4}, v{q4}")
a(f"v_mul_f32 v{q0}, v{q2}, v{p0}")
a(f"v_fma_f32 v{q0}, v{vL+1}, v{p1}, v{q0}")
a(f"v_mul_f32 v{q1}, v{vL+1}, v{p0}")
a(f"v_fma_f32 v{q1}, -v{q2}, v{p1}, v{q1}")
a(f"v_mul_f32 v{vCO}, v{q0}, v{q4}")
a(f"v_mul_f32 v{vCO+1}, v{q1}, v{q4}")
cmul(70, vL, vL); cmul(72, 70, 70); cmul(vL8, 72, 72); cmul(vL16_, vL8, vL8)
cm("skip term x*D via a diagonal B operand -> YACC")
YACC = 112
a("v_and_b32 v64, 1, v0")
a("v_lshlrev_b32 v64, 4, v64")
a(f"v_lshlrev_b32 v{vDSK}, v64, v{vDSK}")
a("v_lshrrev_b32 v64, 1, v17")
a("v_lshlrev_b32 v65, 2, v18")
a("v_sub_u32 v64, v64, v65")
for i in range(0, 8, 2):
    a(f"v_cmp_eq_u32 s[{sM}:{sM+1}], {8*(i//4) + i%4}, v64")
    a(f"v_cmp_eq_u32 vcc, {8*(i//4) + i%4 + 1}, v64")
    a("s_nop 0")
    a(f"v_cndmask_b32 v{104+i}, 0, v{vDSK}, s[{sM}:{sM+1}]")
    a(f"v_cndmask_b32 v{105+i}, 0, v{vDSK}, vcc")
if FPOS == 1: kvflag()
cm("per-lane powers: PS = L16^seg, M0 = L256^seg (if valid), M1 = M0*L128 (if valid)")
vPS, vM0, vM1, vO0, vO1 = 96, 98, 100, 102, 103
a(f"s_mov_b32 s{sM}, 0")
a(f"s_mov_b32 s{sM+1}, -1")
def powsel(dst, b1, b2, b4):
    a(f"v_cndmask_b32 v{dst}, 1.0, v{b1}, s[{sM}:{sM+1}]")
    a(f"v_cndmask_b32 v{dst+1}, 0, v{b1+1}, s[{sM}:{sM+1}]")
    for bit, b in ((0, b2), (1, b4)):
        L = uid("ps")
        a(f"s_bitcmp1_b32 s{sWV}, {bit}")
        a(f"s_cbranch_scc0 {L}")
        cmul(66, dst, b)
        a(f"v_mov_b64 {vr(dst,2)}, v[66:67]")
        lab(L)
cmul(68, vL16_, vL16_); cmul(70, 68, 68); cmul(72, 70, 70)
cmul(74, 72, 72); cmul(76, 74, 74); cmul(78, 76, 76)
powsel(vPS, vL16_, 68, 70)
powsel(vM0, 74, 76, 78)
cmul(vM1, vM0, 72)
a(f"s_lshl_b32 s{sT0}, s{sWV}, 2")
a(f"s_sub_u32 s{sT0}, s{sC}, s{sT0}")
a(f"s_sub_u32 s{sT0}, s{sT0}, 1")
a("v_lshlrev_b32 v30, 1, v18")
a(f"v_sub_u32 v{vO0}, s{sT0}, v30")
a(f"v_add_u32 v{vO1}, -1, v{vO0}")
a(f"v_mov_b32 v30, 0")
for (vo, vm) in ((vO0, vM0), (vO1, vM1)):
    a(f"v_cmp_le_i32 vcc, 0, v{vo}")
    a("s_nop 1")
    a(f"v_cndmask_b32 v{vo}, v30, v{vo}, vcc")
    a(f"v_cndmask_b32 v{vm}, 0, v{vm}, vcc")
    a(f"v_cndmask_b32 v{vm+1}, 0, v{vm+1}, vcc")
    a(f"v_lshl_add_u32 v{vo}, v{vo}, 9, v14")
if FPOS == 2: kvflag()
cm("Q projection")
ACC, QD = 32, 4
XR = 128
VM, LG = Cnt(), Cnt()
xq = [(j, h) for j in range(16) for h in range(2)]
def xb1():
    j, h = xq.pop(0)
    a(f"buffer_load_dwordx4 {vr(XR+8*j+4*h,4)}, v{8+h}, {sr(R_A,4)}, s{16+j//4} offen offset:{64*(j%4)}")
    VM.issue(("x", j))
def qs(ks): return 128 + 8 * (ks % 8)
def qread(ks):
    a(f"ds_read_b64_tr_b16 {vr(qs(ks),2)}, v56 offset:{2048*ks}")
    a(f"ds_read_b64_tr_b16 {vr(qs(ks)+2,2)}, v56 offset:{2048*ks+512}")
    a(f"ds_read_b128 {vr(qs(ks)+4,4)}, v{QXA[ks % 8]} offset:{16384*(ks//8)}")
def qm(ks): mfma32(ACC, qs(ks), qs(ks) + 4, "0" if ks == 0 else None)
DR = [int(x) for x in OPT.get("drain", "").split(",") if x]
sec("Z"); sec("HQ")
if "3" in SX: a("s_waitcnt lgkmcnt(0)")
a("s_barrier")
segs = []
k0 = 0
for k1 in DR + [32]:
    segs.append((k0, k1)); k0 = k1
for (k0, k1) in segs:
    if k0: a("s_barrier")
    for ks in range(k0, k0 + QD): qread(ks)
    for ks in range(k0, k1):
        if ks + QD < k1:
            if ks + QD in ((8, 16, 24) if B0 else (16, 24)): a("s_barrier")
            qread(ks + QD)
            a(f"s_waitcnt lgkmcnt(12)")
        else:
            a(f"s_waitcnt lgkmcnt({3*(k1-1-ks)})")
        qm(ks)
a(f"s_lshl_b32 s{sT0}, s{sWV}, 9")
a(f"s_add_u32 s{sT0}, s{sT0}, {L_ES}")
a("v_lshlrev_b32 v13, 3, v0")
a(f"v_add_u32 v13, s{sT0}, v13")
a("v_lshlrev_b32 v15, 3, v17")
a(f"v_add_u32 v15, {L_ES}, v15")
a("v_lshlrev_b32 v1, 2, v17")
a("v_lshl_add_u32 v1, v18, 14, v1")
a(f"s_lshl_b32 s{sT0}, s{sPB}, 15")
a(f"s_lshl_b32 s{sT1}, s{sWV}, 13")
a(f"s_add_u32 s{sT5}, s{sT0}, s{sT1}")
a(f"s_add_u32 s{sT6}, s{sT5}, 4096")
a(f"s_and_b32 s{sT0}, s{sRB}, 3")
a(f"s_lshl2_add_u32 s{sT1}, s{sT0}, s{sWV}")
a(f"s_lshl_b32 s{sT1}, s{sT1}, 15")
a(f"s_lshl_b32 s{sT2}, s{sG}, 7")
a(f"s_add_u32 s{sT1}, s{sT1}, s{sT2}")
a("v_lshlrev_b32 v18, 10, v17")
a(f"v_add_u32 v18, s{sT1}, v18")
if YM:
    a(f"s_lshl3_add_u32 s{sT0}, s{sGY}, s{sG}")
    a(f"s_lshl_b32 s{sT0}, s{sT0}, 13")
    a(f"s_and_b32 s{sT1}, s{sWV}, 1")
    a(f"s_lshl_b32 s{sT1}, s{sT1}, 12")
    a(f"s_add_u32 s{sT0}, s{sT0}, s{sT1}")
    a("v_lshlrev_b32 v17, 7, v17")
else:
    a(f"s_lshl2_add_u32 s{sT0}, s{sG}, s{sT0}")
    a(f"s_lshl_b32 s{sT0}, s{sT0}, 14")
    a(f"s_and_b32 s{sT1}, s{sWV}, 1")
    a(f"s_lshl_b32 s{sT1}, s{sT1}, 13")
    a(f"s_add_u32 s{sT0}, s{sT0}, s{sT1}")
    a("v_lshlrev_b32 v17, 7, v0")
a(f"v_add_u32 v17, s{sT0}, v17")
a(f"s_cmp_lt_u32 s{sWV}, 2")
a(f"s_cselect_b32 s{sPC}, s{P_CRE}, s{P_CIM}")
a(f"s_cselect_b32 s{sPC+1}, s{P_CRE+1}, s{P_CIM+1}")
a(f"s_and_b32 s{sT0}, s{sWV}, 1")
a(f"s_mul_i32 s{sT0}, s{sT0}, {32*RSTR}")
a(f"v_add_u32 v28, s{sT0}, v{vRB}")
for r in range(0, 16, 2):
    a(f"v_pk_mul_f32 {vr(ACC+r,2)}, {vr(ACC+r,2)}, v[58:59]")
for j in range(8):
    a(f"v_cvt_pk_bf16_f32 v{ACC+j}, v{ACC+2*j}, v{ACC+2*j+1}")
a(f"ds_write_b128 v57, {vr(ACC,4)}")
a(f"ds_write_b128 v57, {vr(ACC+4,4)} offset:2048")
cm("B tile: 4 k-slots of [64 rows x 256B], xor-swizzled; read addresses v112..119, dma voffset v120")
BA = 112
a("v_lshrrev_b32 v121, 4, v0")
a("v_and_b32 v122, 15, v0")
a(f"v_lshl_add_u32 v121, s{sWV}, 2, v121")
a("v_xor_b32 v123, v122, v121")
a("v_lshlrev_b32 v123, 4, v123")
a("v_lshl_add_u32 v120, v121, 10, v123")
a(f"s_lshr_b32 s{sT0}, s{sWV}, 1")
a(f"s_lshl_b32 s{sT0}, s{sT0}, 13")
a(f"s_sub_u32 s{sT0}, {L_R1}, s{sT0}")
for ks in range(8):
    a(f"v_add_u32 v{BA+ks}, s{sT0}, v{QXA[ks]}")
a(f"s_lshl_b32 s{sT5}, s{sPB}, 15")
a(f"s_lshl_b32 s{sT6}, s{sWV}, 10")
UR = OPT.get("urot", "2")
if UR == "0": a(f"s_mov_b32 s{sT0}, 0")
elif UR == "1": a(f"s_add_u32 s{sT0}, s{sC}, s{sPB}")
elif UR == "2": a(f"s_lshr_b32 s{sT0}, s2, 1")
elif UR == "3": a(f"s_mov_b32 s{sT0}, s2")
for sl in range(4):
    a(f"s_add_u32 s{sT1}, s{sT0}, {sl}")
    a(f"s_and_b32 s{sT1}, s{sT1}, 3")
    a(f"s_lshl_b32 s{sT1}, s{sT1}, 8")
    a(f"s_add_u32 s{16+sl}, s{sT3}, s{sT1}")
    a(f"s_add_u32 s{20+sl}, s{sT5}, s{sT1}")
a("s_waitcnt lgkmcnt(0)")
stamp(3)
a("s_barrier")
a("s_branch L_h2")
sec("H")
lab("L_h2")
a("s_setprio 2")
def rows_dma(tag, base=sT5, ore=0, oim=0):
    a(f"s_mul_i32 s{sT1}, s{sWV}, {8*RSTR}")
    for i in range(8):
        a(f"s_add_u32 m0, s{sT1}, {L_R1 + RSTR*i}")
        a(f"s_add_u32 s{sT2}, s{base}, {1024*i + ore}")
        dma(vL4, R_B, f"s{sT2}")
        a(f"s_add_u32 m0, s{sT1}, {L_R1 + RSTR*(32+i)}")
        a(f"s_add_u32 s{sT2}, s{base}, {1024*i + oim}")
        dma(vL4, R_C, f"s{sT2}")
    VM.issue(tag, 16)
def xw(j, h):
    if h == 0: waits(vm=VM.need(("x", j)))
    a(f"ds_write_b128 v10, {vr(XR+8*j+4*h,4)}" + (" offset:1024" if h else ""))
    LG.issue(("xw", j))
def xr(j):
    a(f"ds_read_b128 {vr(XR+8*j,4)}, v11")
    a(f"ds_read_b128 {vr(XR+8*j+4,4)}, v12")
    LG.issue(("x", j), 2)
if "4" in SX:
    spx("x", 15, 17); spx("r", 14, 2); spx("i", 14, 2)
if "5" in SX:
    spx("r", 0, 16); spx("i", 0, 16)
if "6" in SX:
    spx("x", 0, 32); spx("r", 14, 2); spx("i", 14, 2)
if "a" in SU: spf([(P_BRE, 4, 0, 4), (P_BIM, 4, 0, 4), (P_BX, 16, 14, 2)])
if "b" in SU: spf([(P_BX, 16, 6, 10)])
if "c" in SU: spf([(P_BRE, 4, 0, 4), (P_BIM, 4, 0, 4), (P_BX, 16, 0, 16)])
if "d" in SU: spf([(P_CRE, 4, 0, 4), (P_CIM, 4, 0, 4), (P_WO, 4, 0, 4)])
waitc(vCNT, C_A4, 4, 30, sleep=int(OPT.get("a4sl", 0)))
a(f"ds_read_b32 v30, v{vCNT} offset:{C_MODE}")
if EP0: a(f"ds_read_b32 v121, v{vCNT} offset:{C_TAG}")
a("s_setprio 0")
cm("U = x B^T")
XL = int(OPT.get("xl", 2))
def bdma(sl, m):
    a(f"s_add_u32 m0, s{sT6}, {L_R1 + 16384*sl + 4096*m}")
    a(f"s_add_u32 s{sT2}, s{20+sl}, {16384*(m%2)}")
    dma(120, R_B if m < 2 else R_C, f"s{sT2}")
    if sl == 0 and OPT.get("bp") == "1": pace()
    VM.issue(("B", sl))
lq = []
for it in OPT.get("uord", "B0,0,1,2,3,B1,4,5,6,7,B2,8,9,10,11,B3,12,13,14,15").split(","):
    lq += [("B", int(it[1]), m) for m in range(4)] if it[0] == "B" else [("x",), ("x",)]
if OPT.get("mix", "1") == "1":
    for sl in range(1, 4):
        i = lq.index(("B", sl, 0))
        xs, bs_ = lq[i-4:i], lq[i:i+4]
        lq[i-4:i+4] = [y for p in zip(xs, bs_) for y in p]
def ld1(n=1):
    for _ in range(n):
        if not lq: return
        it = lq.pop(0)
        if it[0] == "B": bdma(it[1], it[2])
        else: xb1()
CB = [C_H0, C_H1, C_H2, C_H3]
sigd = set()
def bsig(force=None):
    for sl in range(4):
        issued = not any(it[:2] == ("B", sl) for it in lq)
        if sl in sigd or not issued: continue
        if sl == force: waits(vm=VM.need(("B", sl)))
        if ("B", sl) not in VM.q:
            signal(vCNT, vONE, CB[sl]); LG.issue("sig"); sigd.add(sl)
ld1(int(OPT.get("u0", 12)))
bsig(0)
ld1(int(OPT.get("u1", 4)))
for j in range(XL): xw(j, 0); xw(j, 1); xr(j)
a("s_setprio 2")
a(f"v_readfirstlane_b32 s{sMODE}, v30") if False else None
waitc(vCNT, CB[0], 4, 31)
a(f"v_readfirstlane_b32 s{sMODE}, v30")
if EP0: a(f"v_readfirstlane_b32 s{sTAG}, v121")
LG.q = []
stamp(4)
UPRIO = int(OPT.get("uprio", 0)); YPRIO = int(OPT.get("yprio", 0))
a(f"s_setprio {UPRIO}")
AR, AI, BR = 32, 48, 64
def bread(k):
    s = BR + 8 * (k % 4)
    a(f"ds_read_b128 {vr(s,4)}, v{BA + k % 8} offset:{16384*(k//8)}")
    a(f"ds_read_b128 {vr(s+4,4)}, v{BA + k % 8} offset:{16384*(k//8) + 8192}")
    LG.issue(("b", k), 2)
WOL = int(OPT.get("wol", 0))
PF = [(17, sPC)] + ([] if WOL else [(18, P_WO)])
PFK = int(OPT.get("pfk", 19))
PTK = int(OPT.get("ptk", 27))
CPOS = 0
for k in range(3): bread(k)
for k in range(32):
    j = k // 2; jn = j + XL
    tr = jn < 16
    n1 = LG.need(("x", j)); n2 = LG.need(("b", k))
    waits(lg=n2 if n2 is not None else n1)
    s = BR + 8 * (k % 4)
    first = "0" if k == 0 else None
    mfma32(AR, XR + 4*k, s, first)
    if k % 8 == 2 and k < 24: bsig(k // 8 + 1)
    if k % 8 == 4 and k < 24:
        a(f"ds_read_b32 v31, v{vCNT} offset:{CB[k//8+1]}"); LG.issue("cb")
    if k % 8 == 5 and k < 24:
        waits(lg=LG.need("cb"))
        a("s_setprio 2")
        a("v_cmp_gt_u32 vcc, 4, v31")
        Lk = uid("bk")
        a(f"s_cbranch_vccz {Lk}")
        waitc(vCNT, CB[k//8+1], 4, 31)
        lab(Lk)
        a(f"s_setprio {UPRIO}")
    if k + 3 < 32: bread(k + 3)
    ld1(int(OPT.get("lpk", 1)))
    if PF and k >= PFK and k % 2 == 1:
        v, p = PF.pop(0)
        a(f"global_load_dword v{136+len(PF)}, v{v}, s[{p}:{p+1}]"); VM.issue("pf")
    if k == PTK:
        cm("local mode: make the lines this wave / its attention partner will hand over valid in L2")
        a(f"s_cmp_eq_u32 s{sMODE}, 1")
        a("s_cbranch_scc0 L_h_nopt")
        def touch(soff, n):
            for i in range(n):
                a(f"buffer_load_dwordx4 v[144:147], v{vL4}, {sr(R_WS,4)}, s{soff} offen offset:{1024*i} sc1")
        def touchf(soff):
            a("s_mov_b64 exec, 0xff")
            touch(soff, 1)
            a("s_mov_b64 exec, -1")
        if "h" in LOC:
            a(f"s_lshl2_add_u32 s{sT0}, s{sC}, s{sWV}")
            a(f"s_lshl_b32 s{sT1}, s{sT0}, 5")
            a(f"s_add_u32 s{sT1}, s{sT1}, s{sPB}")
            a(f"s_lshl_b32 s{sT1}, s{sT1}, 11")
            a(f"s_add_u32 s{sT1}, s{sT1}, {WS_H}")
            touch(sT1, 2)
            a(f"s_add_u32 s{sT1}, s{sT1}, 32768")
            touch(sT1, 2)
            a(f"s_lshl4_add_u32 s{sT0}, s{sT0}, s{sPB}")
            a(f"s_lshl_b32 s{sT0}, s{sT0}, 7")
            a(f"s_add_u32 s{sT0}, s{sT0}, {WS_FH}")
            touchf(sT0)
        for kind, off in (("o", 0), ("t", 4)):
            if kind in LOC:
                a(f"s_add_u32 s{sSTEP}, s{sWV}, {off}")
                o_offsets()
                touch(sT1, 1); touchf(sT0)
        lab("L_h_nopt")
    if k == 28:
        a(f"buffer_load_dwordx4 v[128:131], v29, {sr(R_A,4)}, s{sT4} offen")
        a(f"buffer_load_dwordx4 v[132:135], v29, {sr(R_A,4)}, s{sT4} offen offset:32")
        VM.issue("skip", 2)
    mfma32(AI, XR + 4*k, s + 4, first)
    ld1()
    if tr:
        assert not any(q[0] == jn for q in xq)
        xw(jn, k % 2)
        if k % 2: xr(jn)
    bsig()
assert len(sigd) == 4 and not lq
assert not PF
a("s_setprio 2")
srd(R_B, P_CRE, 512 * 1024)
srd(R_C, P_CIM, 512 * 1024)
srd(R_A, P_WO, 512 * 1024)
if CPOS:
    a(f"s_add_u32 s{sSYNC}, s{sSYNC}, 4")
    signal(vCNT, vONE, C_GH)
a(f"s_lshl_b32 s{sT3}, s{sGY}, 16")
a(f"s_lshl_b32 s{sT1}, s{sWV}, 13")
a(f"s_add_u32 s{sT3}, s{sT3}, s{sT1}")
a(f"s_mul_i32 s{sT1}, s{sWV}, {8*RSTR}")
def row1(n, base, ore, oim):
    i, part = n // 2, n % 2
    a(f"s_add_u32 m0, s{sT1}, {L_R1 + RSTR*(32*part+i)}")
    a(f"s_add_u32 s{sT2}, s{base}, {1024*i + (oim if part else ore)}")
    dma(vL4, R_C if part else R_B, f"s{sT2}")
CS_ = int(OPT.get("cst", 3))
def cld(n, dst, ore, oim):
    i, part = n // 2, n % 2
    a(f"s_add_u32 s{sT2}, s{sT3}, {1024*i + (oim if part else ore)}")
    a(f"buffer_load_dwordx4 {vr(dst,4)}, v{vL4}, {sr(R_C if part else R_B,4)}, s{sT2} offen")
def cwr(n, src):
    i, part = n // 2, n % 2
    a(f"ds_write_b128 v29, {vr(src,4)} offset:{RSTR*(32*part+i)}")
if CS_:
    a(f"s_add_u32 s{sT2}, s{sT1}, {L_R1}")
    a(f"v_add_u32 v29, s{sT2}, v{vL4}")
stamp(5)
cm("scale by coef into pair layout, local scan")
UP = 64
G0, G1 = 30, 8
def sc1(r): a(f"v_pk_mul_f32 {vr(UP+2*r,2)}, {vr(vCO,2)}, {vr(AR+(r&~1),2)} op_sel:[0,{r&1}] op_sel_hi:[1,{r&1}]")
def sc2(r): a(f"v_pk_fma_f32 {vr(UP+2*r,2)}, {vr(vCO,2)}, {vr(AI+(r&~1),2)}, {vr(UP+2*r,2)} op_sel:[1,{r&1},0] op_sel_hi:[0,{r&1},1] neg_lo:[1,0,0]")
def c1(dst, L, g, u): a(f"v_pk_fma_f32 {vr(dst,2)}, {vr(L,2)}, {vr(g,2)}, {vr(u,2)} op_sel:[0,0,0] op_sel_hi:[0,1,1]")
def c2(dst, L, g): a(f"v_pk_fma_f32 {vr(dst,2)}, {vr(L,2)}, {vr(g,2)}, {vr(dst,2)} op_sel:[1,1,0] op_sel_hi:[1,0,1] neg_lo:[1,0,0]")
sc1(0); sc1(1); sc1(2); sc2(0); sc2(1); sc2(2)
src = UP
CLP = int(OPT.get("clp", 1))
for r in range(1, 16):
    dst = G0 if r % 2 else G1
    if r == 8 and CPOS: waitc(vCNT, C_GH, f"s{sSYNC}", 8)
    c1(dst, vL, src, UP + 2*r)
    if r < 14: sc1(r + 2)
    if r >= 8 and CPOS: row1(2*(r-8), sT3, 32768, 0)
    c2(dst, vL, src)
    if CS_ & 1 and CLP == 0:
        cld(r, 160 + 4*r, 32768, 0)
        if r == 1: cld(0, 160, 32768, 0)
    if r < 14: sc2(r + 2)
    if r >= 8 and CPOS: row1(2*(r-8) + 1, sT3, 32768, 0)
    src = dst
a(f"ds_write_b64 v13, {vr(G0,2)}")
gsync(vCNT, vONE, 32, C_GH)
stamp(6)
ESR = 32
for s in range(8):
    a(f"ds_read_b64 {vr(ESR+2*s,2)}, v15 offset:{256*s}")
a(f"s_lshl_b32 s{sT6}, s{sPB}, 13")
a(f"s_add_u32 s{sT6}, s{sT6}, {WS_ST}")
a(f"s_lshl_b32 s{sT0}, s{sC}, 9")
a(f"s_add_u32 s{sT0}, s{sT0}, s{sT6}")
a(f"v_mov_b64 {vr(G0,2)}, 0")
a(f"s_mov_b32 s{sCNT}, {POLL_LIMIT}")
a("s_waitcnt lgkmcnt(0)")
a(f"v_mov_b64 {vr(G1,2)}, {vr(ESR,2)}")
for w in range(4):
    if w: cmul_add(G1, vL16_, G0, ESR + 4*w)
    if w < 3:
        a(f"s_cmp_eq_u32 s{sWV}, {w}")
        a("s_cbranch_scc1 L_h_segdone")
        cmul_add(G0, vL16_, G1, ESR + 4*w + 2)
cmul_add(48, vL16_, G1, ESR + 14)
a(f"v_mov_b32 v50, v49")
a(f"v_mov_b32 v49, s{sTAG}")
a(f"v_mov_b32 v51, s{sTAG}")
a("s_mov_b32 exec_hi, 0")
a(f"buffer_store_dwordx4 v[48:51], v14, {sr(R_WS,4)}, s{sT0} offen sc1")
a("s_mov_b64 exec, -1")
lab("L_h_segdone")
a(f"s_mov_b32 s{sM}, 0")
a(f"s_mov_b32 s{sM+1}, -1")
a(f"v_cndmask_b32 v{G0}, v{G0}, v{G1}, s[{sM}:{sM+1}]")
a(f"v_cndmask_b32 v{G0+1}, v{G0+1}, v{G1+1}, s[{sM}:{sM+1}]")
if not CPOS:
    if CS_ & 1:
        a("s_setprio 0")
        if CLP == 1:
            for n in range(16): cld(n, 160 + 4*n, 32768, 0)
        for n in range(16):
            if n % 2 == 0: a(f"s_waitcnt vmcnt({14 - n})")
            cwr(n, 160 + 4*n)
        a("s_setprio 2")
    else:
        for n in range(16): row1(n, sT3, 32768, 0); pace()
stamp(7)
cm("chunk carry: each lane gathers two predecessors' end states")
a(f"v_mov_b64 {vr(G1,2)}, 0")
a(f"s_cmp_eq_u32 s{sC}, 0")
a("s_cbranch_scc1 L_h_stskip")
lab("L_h_stpoll")
a(f"buffer_load_dwordx4 v[52:55], v{vO0}, {sr(R_WS,4)}, s{sT6} offen sc1")
a(f"buffer_load_dwordx4 v[56:59], v{vO1}, {sr(R_WS,4)}, s{sT6} offen sc1")
a("s_waitcnt vmcnt(0)")
a(f"v_cmp_ne_u32 vcc, s{sTAG}, v53")
a(f"v_cmp_ne_u32 s[{sM}:{sM+1}], s{sTAG}, v55")
a(f"s_or_b64 s[{sM}:{sM+1}], s[{sM}:{sM+1}], vcc")
a(f"v_cmp_ne_u32 vcc, s{sTAG}, v57")
a(f"s_or_b64 s[{sM}:{sM+1}], s[{sM}:{sM+1}], vcc")
a(f"v_cmp_ne_u32 vcc, s{sTAG}, v59")
a(f"s_or_b64 s[{sM}:{sM+1}], s[{sM}:{sM+1}], vcc")
a("s_cbranch_scc0 L_h_stok")
a(f"s_sub_u32 s{sCNT}, s{sCNT}, 1")
a("s_cbranch_scc0 L_h_stpoll")
lab("L_h_stok")
a(f"v_pk_mul_f32 {vr(G1,2)}, {vr(vM0,2)}, v[52:53] op_sel:[0,0] op_sel_hi:[1,0]")
a(f"v_pk_mul_f32 v[60:61], {vr(vM1,2)}, v[56:57] op_sel:[0,0] op_sel_hi:[1,0]")
a(f"v_pk_fma_f32 {vr(G1,2)}, {vr(vM0,2)}, v[54:55], {vr(G1,2)} op_sel:[1,0,0] op_sel_hi:[0,0,1] neg_lo:[1,0,0]")
a(f"v_pk_fma_f32 v[60:61], {vr(vM1,2)}, v[58:59], v[60:61] op_sel:[1,0,0] op_sel_hi:[0,0,1] neg_lo:[1,0,0]")
a(f"v_pk_add_f32 {vr(G1,2)}, {vr(G1,2)}, v[60:61]")
lab("L_h_stskip")
a(f"ds_write_b64 v13, {vr(G1,2)} offset:{L_CS - L_ES}")
a("s_waitcnt vmcnt(0)")
mfma32(YACC, 128, 104, "0")
mfma32(YACC, 132, 108)
if WOL == 1: a(f"global_load_dword v10, v18, s[{P_WO}:{P_WO+1}]")
gsync(vCNT, vONE, 32, C_GH)
for s in range(8):
    a(f"ds_read_b64 {vr(32+2*s,2)}, v15 offset:{L_CS - L_ES + 256*s}")
a(f"s_lshl_b32 s{sT0}, s{sC}, 2")
a(f"s_add_u32 s{sT0}, s{sT0}, s{sWV}")
a(f"s_lshl_b32 s{sT4}, s{sT0}, 16")
a(f"s_add_u32 s{sT4}, s{sT4}, {WS_H}")
a(f"s_lshl_b32 s{sT1}, s{sPB}, 11")
a(f"s_add_u32 s{sT1}, s{sT1}, s{sT4}")
a(f"s_add_u32 s{sT2}, s{sT1}, 32768")
a(f"s_lshl_b32 s{sT0}, s{sT0}, 11")
a(f"s_add_u32 s{sT5}, s{sT0}, {WS_FH}")
a(f"s_lshl_b32 s{sT0}, s{sPB}, 7")
a(f"s_add_u32 s{sF1}, s{sT0}, s{sT5}")
a("s_waitcnt lgkmcnt(0)")
stamp(8)
for st in (8, 4, 2):
    for j in range(0, st, 2):
        a(f"v_pk_add_f32 {vr(32+j,2)}, {vr(32+j,2)}, {vr(32+j+st,2)}")
cmul_add(G0, vPS, 32, G0)
HB = 32
cmul_add(UP, vL, G0, UP)
for r in range(1, 16):
    cmul_add(UP + 2*r, vL, UP + 2*(r-1), UP + 2*r)
for part in range(2):
    ng = "-" if part else ""
    for j in range(8):
        a(f"v_cvt_pk_bf16_f32 v{HB+8*part+j}, {ng}v{UP+4*j+part}, {ng}v{UP+4*j+2+part}")
    a(f"ds_write_b128 v16, {vr(HB+8*part,4)}")
    a(f"ds_write_b128 v16, {vr(HB+4+8*part,4)} offset:16")
    for ks in range(2):
        d = 48 + 8*part + 4*ks
        a(f"ds_read_b64_tr_b16 {vr(d,2)}, v19 offset:{1024*ks}")
        a(f"ds_read_b64_tr_b16 {vr(d+2,2)}, v19 offset:{1024*ks+256}")
KIND[0] = "h"
a(f"v_lshlrev_b32 v24, 2, v0")
a(f"v_mov_b32 v25, s{sTAG}")
def flag_novalu(soff):
    a("s_mov_b32 exec_hi, 0")
    st2([f"buffer_store_dword v25, v24, {sr(R_WS,4)}, s{soff} offen@"])
    a("s_mov_b64 exec, -1")
a("s_waitcnt lgkmcnt(0)")
st2([f"buffer_store_dwordx4 {vr(48+8*part+4*ks,4)}, v{vL4}, {sr(R_WS,4)}, s{sT1 if part == 0 else sT2} offen offset:{1024*ks}@" for part in range(2) for ks in range(2)])
a("v_and_b32 v8, 15, v0")
a("v_lshlrev_b32 v12, 7, v8")
CF = 128
LB = int(OPT.get("lb", 1))
if LB: a("s_setprio 0")
for k in range(32):
    a(f"ds_read_b128 {vr(CF+4*k,4)}, v28 offset:{32*k}")
    if k == 13:
        a("s_waitcnt vmcnt(0)")
        flag_novalu(sF1)
a(f"s_add_u32 s{sSYNC}, s{sSYNC}, 4")
signal(vCNT, vONE, C_GH)
if LB: a("s_setprio 2")
stamp(9)
def reduce_inline(RB_, b1=None, bs=None):
    b1 = RB_ + 16 if b1 is None else b1
    bs = RB_ + 32 if bs is None else bs
    Ls, Le = uid("rs"), uid("re")
    a(f"s_mul_i32 s{sT2}, s{sSTEP}, {PSTRIDE}")
    a(f"v_add_u32 v10, s{sT2}, v{vL4}")
    a(f"s_add_u32 s{sT2}, s{sT2}, {L_PART + 8192}")
    o_offsets()
    waitc(11, 0, f"s{sT2}", 8)
    a(f"ds_read_b128 {vr(bs,4)}, v10 offset:8192")
    for w in range(4):
        d = (RB_ if w < 2 else b1) + 8*(w % 2)
        a(f"ds_read_b128 {vr(d,4)}, v10 offset:{2048*w}")
        a(f"ds_read_b128 {vr(d+4,4)}, v10 offset:{2048*w + 1024}")
    a("s_waitcnt lgkmcnt(8)")
    sum_check(bs)
    a("s_waitcnt lgkmcnt(0)")
    a(f"s_cbranch_scc1 {Ls}")
    reduce_math(RB_, vL4, flag=False, b1=b1, bs=bs)
    a(f"s_branch {Le}")
    lab(Ls)
    a(f"s_mov_b32 s{sT0}, {WS_DUMMY}")
    lab(Le)
RIL = int(OPT.get("ril", 1))
a("v_and_b32 v11, 12, v24")
a(f"v_add_u32 v11, {L_PROG}, v11")
if not RIL:
    waitc(vCNT, C_GH, f"s{sSYNC}", 8)
    a(f"s_mul_i32 s{sT1}, s{sWV}, {8*RSTR}")
    for n in range(16): row1(n, sT3, 0, 32768); pace()
else:
    cm("second half of C; the reduction of q-tile wv fills the gaps between the transfers")
    a(f"s_mov_b32 s{sSTEP}, s{sWV}")
    o_offsets()
    a(f"s_mov_b32 s{sF1}, s{sT0}")
    a(f"s_mov_b32 s{sF2}, s{sT1}")
    a(f"s_mul_i32 s{sT2}, s{sWV}, {PSTRIDE}")
    a(f"v_add_u32 v10, s{sT2}, v{vL4}")
    a(f"s_add_u32 s{sT0}, s{sT2}, {L_PART + 8192}")
    a(f"s_mul_i32 s{sT1}, s{sWV}, {8*RSTR}")
    if CS_ & 2:
        for n in range(12): cld(n, 48 + 4*n, 0, 32768)
    else:
        waitc(vCNT, C_GH, f"s{sSYNC}", 8)
        row1(0, sT3, 0, 32768)
    waitc(11, 0, f"s{sT0}", 8)
    if not CS_ & 2: row1(1, sT3, 0, 32768)
    a("ds_read_b128 v[20:23], v10 offset:8192")
    for w in range(4):
        d = (32 if w < 2 else 96) + 8*(w % 2)
        a(f"ds_read_b128 {vr(d,4)}, v10 offset:{2048*w}")
        a(f"ds_read_b128 {vr(d+4,4)}, v10 offset:{2048*w + 1024}")
    if not CS_ & 2: row1(2, sT3, 0, 32768)
    a("s_waitcnt lgkmcnt(8)")
    sum_check(20)
    a(f"s_cselect_b32 s{sF1}, {WS_DUMMY}, s{sF1}")
    a(f"s_cselect_b32 s{sF2}, {WS_DUMMY + 1024}, s{sF2}")
    a("v_rcp_f32 v22, v20")
    a("s_waitcnt lgkmcnt(0)")
    ops = [f"v_pk_add_f32 {vr(32+2*j,2)}, {vr(32+2*j,2)}, {vr(40+2*j,2)}" for j in range(4)]
    ops += [f"v_pk_add_f32 {vr(96+2*j,2)}, {vr(96+2*j,2)}, {vr(104+2*j,2)}" for j in range(4)]
    ops += [f"v_pk_add_f32 {vr(32+2*j,2)}, {vr(32+2*j,2)}, {vr(96+2*j,2)}" for j in range(4)]
    ops += [f"v_pk_mul_f32 {vr(32+2*j,2)}, {vr(32+2*j,2)}, v[22:23] op_sel_hi:[1,0]" for j in range(4)]
    ops += [f"v_cvt_pk_bf16_f32 v{40+j}, v{32+2*j}, v{33+2*j}" for j in range(4)]
    if CS_ & 2:
        waitc(vCNT, C_GH, f"s{sSYNC}", 8)
        for n in range(12):
            a(f"s_waitcnt vmcnt({11 - n if n < 4 else 15 - n if n < 5 else 16 - n})")
            cwr(n, 48 + 4*n)
            if n < 4:
                for _ in range(5): a(ops.pop(0))
            if n == 3:
                for m in range(12, 16): cld(m, 96 + 4*(m-12), 0, 32768)
            if n == 4:
                KIND[0] = "o"
                st2([f"buffer_store_dwordx4 v[40:43], v{vL4}, {sr(R_WS,4)}, s{sF2} offen@"])
        for n in range(12, 16):
            a(f"s_waitcnt vmcnt({16 - n})")
            cwr(n, 96 + 4*(n-12))
    for n in ([] if CS_ & 2 else range(3, 16)):
        row1(n, sT3, 0, 32768)
        if ops:
            for _ in range(5): a(ops.pop(0))
            if not ops:
                KIND[0] = "o"
                st2([f"buffer_store_dwordx4 v[40:43], v{vL4}, {sr(R_WS,4)}, s{sF2} offen@"])
        elif n < 15: pace()
PACE = int(OPT.get('pace3', PACE))
a(f"v_add_u32 v13, {(L_PART - L_R1) & 0xffffffff}, v{vWT}")
a(f"s_lshl_b32 s{sT5}, s{sYY}, 11")
a(f"s_add_u32 s{sT5}, s{sT5}, {WS_FH}")
a(f"s_lshl_b32 s{sT4}, s{sYY}, 16")
a(f"s_and_b32 s{sT1}, s{sWV}, 1")
a(f"s_lshl_b32 s{sT1}, s{sT1}, 15")
a(f"s_add_u32 s{sT4}, s{sT4}, s{sT1}")
a(f"s_add_u32 s{sT4}, s{sT4}, {WS_H}")
stamp(10)
poll(12, f"s{sT5}", 8)
if RIL:
    a(f"s_add_u32 s{sSYNC}, s{sSYNC}, 4")
    signal(vCNT, vONE, C_GH)
    flag_novalu(sF1)
stamp(11)
HR, CR, NH = 48, 96, 12
WF, OF = 48, 128
def hload(k):
    if k % 4 == 0 and k: a(f"s_add_u32 s{sT4}, s{sT4}, 4096")
    a(f"buffer_load_dwordx4 {vr(HR+4*(k%NH),4)}, v{vL4}, {sr(R_WS,4)}, s{sT4} offen offset:{1024*(k%4)} sc1")
def cread(k):
    a(f"ds_read_b128 {vr(CR+4*(k%4),4)}, v28 offset:{32*k}")
def oload(k):
    if k % 4 == 0 and k: a(f"s_add_u32 s{sT6}, s{sT6}, 4096")
    a(f"buffer_load_dwordx4 {vr(OF+4*k,4)}, v{vL4}, {sr(R_WS,4)}, s{sT6} offen offset:{1024*(k%4)} sc1")
def wo_setup():
    a(f"s_and_b32 s{sT0}, s{sWV}, 1")
    a(f"s_lshl_b32 s{sT0}, s{sT0}, 18")
    a(f"s_lshr_b32 s{sT1}, s{sWV}, 1")
    a(f"s_lshl_b32 s{sT1}, s{sT1}, 14")
    a(f"s_add_u32 s{sT0}, s{sT0}, s{sT1}")
    a(f"s_lshl_b32 s{sT1}, s{sG}, 7")
    a(f"s_add_u32 s{sT0}, s{sT0}, s{sT1}")
    a(f"s_mul_i32 s{sT1}, s{sWV}, {PSTRIDE}")
def wo_one(half, n):
    q, i = n // 2, n % 2
    a(f"s_add_u32 m0, s{sT1}, {(L_R1 if half else L_PART) + 2048*q + 1024*i}")
    a(f"s_add_u32 s{sT2}, s{sT0}, {32768*half + 65536*q + 8192*i}")
    dma(vWO, R_A, f"s{sT2}")
def wread(dst, k):
    o = PSTRIDE * ((k % 16) // 4) + 2048 * (k % 4)
    ad = 13 if k < 16 else vWT
    a(f"ds_read_b64_tr_b16 {vr(dst,2)}, v{ad} offset:{o}")
    a(f"ds_read_b64_tr_b16 {vr(dst+2,2)}, v{ad} offset:{o+1024}")
HD, CD = 11, 3
RK = int(OPT.get("rk", 25))
FK = 4
VM, LG = Cnt(), Cnt()
for k in range(HD): hload(k); VM.issue(("h", k))
a(f"s_lshl_b32 s{sT5}, s{sYG}, 12")
a(f"s_add_u32 s{sT5}, s{sT5}, {WS_FO}")
a(f"s_lshl_b32 s{sT6}, s{sYG}, 15")
a(f"s_add_u32 s{sT6}, s{sT6}, {WS_O}")
if not RIL:
    a(f"s_mov_b32 s{sSTEP}, s{sWV}")
    KIND[0] = "o"
    reduce_inline(32, 96, 20)
    a(f"s_mov_b32 s{sF1}, s{sT0}")
    gsync(vCNT, vONE, 8, C_GH)
else:
    waitc(vCNT, C_GH, f"s{sSYNC}", 8)
a(f"s_setprio {YPRIO}")
for k in range(CD): cread(k); LG.issue(("c", k))
FLK = int(OPT.get("flk", 14))
YPK = int(OPT.get("ypk", 99))
oq = list(range(16))
for k in range(32):
    if k == YPK: a("s_setprio 2")
    if k == FK:
        if not RIL:
            waits(vm=VM.need(("h", HD)))
            flag_novalu(sF1); VM.issue("f")
        wo_setup()
    if k == FLK:
        a(f"buffer_load_dword v9, v12, {sr(R_WS,4)}, s{sT5} offen sc1"); VM.issue("fl")
    if k == FLK + 5:
        waits(vm=VM.need("fl"))
        a("s_setprio 2")
        a(f"v_cmp_ne_u32 vcc, s{sTAG}, v9")
        a("s_cbranch_vccz L_y_ok")
        poll(12, f"s{sT5}", 8)
        lab("L_y_ok")
        a(f"s_setprio {YPRIO}")
    if k + HD < 32: hload(k + HD); VM.issue(("h", k + HD))
    if k + CD < 32: cread(k + CD); LG.issue(("c", k + CD))
    waits(vm=VM.need(("h", k)), lg=LG.need(("c", k)))
    mfma32(YACC, HR + 4*(k % NH), CR + 4*(k % 4))
    n = k - FK - 1
    if 0 <= n < 8: wo_one(0, n); VM.issue("wo")
    if k >= FLK + 5:
        for _ in range(2 if k + HD >= 32 else 1):
            if oq: oload(oq.pop(0)); VM.issue("o")
    mfma32(32, HR + 4*(k % NH), CF + 4*k, "0" if k == 0 else None)
assert not oq
a("s_setprio 2")
a(f"s_lshl_b32 s{sT2}, s{sWV}, 12")
a(f"s_add_u32 s{sT2}, s{sT2}, {L_R1 + 40960}")
a(f"v_add_u32 v10, s{sT2}, v{vL4}")
a("v_xor_b32 v11, 4096, v10")
assert (L_R1 + 40960) % 8192 == 0
a(f"s_lshl_b32 s{sT2}, s{sWV}, 9")
a(f"s_add_u32 s{sT2}, s{sT2}, {L_CS}")
a("v_lshlrev_b32 v8, 3, v0")
a(f"v_add_u32 v8, s{sT2}, v8")
a(f"ds_write2_b32 v8, v{vWT}, v1 offset1:1")
waits(vm=VM.need("wo"))
gsync(vCNT, vONE, 8, C_GH)
stamp(12)
for i in range(8):
    wo_one(1, i)
    if i < 4: a(f"ds_write_b128 v10, {vr(32+4*i,4)} offset:{1024*i}")
    if i == 3:
        a(f"s_add_u32 s{sSYNC}, s{sSYNC}, 4")
        signal(vCNT, vONE, C_GH)
    if 4 <= i < 7: pace()
srd(R_B, P_OUT, 2048 * 4096)
a(f"s_lshl_b32 s{sT0}, s{sYY}, 17")
a(f"s_lshl_b32 s{sT1}, s{sCG}, 7")
a(f"s_add_u32 s{sT0}, s{sT0}, s{sT1}")
def store1(b, r, off=0):
    a(f"s_add_u32 s{sT1}, s{sT0}, {4096 * (8*(r//4) + r%4)}")
    a(f"buffer_store_dword v{b+r}, v1, {sr(R_B,4)}, s{sT1} offen" + (f" offset:{off}" if off else "") + YFL)
a(f"s_mul_i32 s{sT2}, s{sWV}, {PSTRIDE}")
a(f"v_add_u32 v10, s{sT2}, v{vL4}")
a(f"s_lshl_b32 s{sT2}, s{sWV}, 2")
a(f"v_add_u32 v9, s{sT2}, v{vCNT}")
waitc(vCNT, C_GH, f"s{sSYNC}", 8)
for i in range(4):
    a(f"ds_read_b128 {vr(192+4*i,4)}, v11 offset:{1024*i}")
YL = OPT.get("ylate") == "1"
def ystores():
    for j in range(8):
        a(f"v_pk_add_f32 {vr(YACC+2*j,2)}, {vr(YACC+2*j,2)}, {vr(192+2*j,2)}")
        store1(YACC, 2*j, 2048)
        store1(YACC, 2*j + 1, 2048)
if LB: a("s_setprio 0")
for k in range(16): wread(WF + 4*k, k)
if LB: a("s_setprio 2")
a(f"s_waitcnt vmcnt(0) lgkmcnt(15)")
a(f"s_add_u32 s{sSYNC}, s{sSYNC}, 4")
signal(vCNT, vONE, C_GH)
for j in range(8):
    a(f"v_pk_add_f32 {vr(YACC+2*j,2)}, {vr(YACC+2*j,2)}, {vr(192+2*j,2)}")
a(f"s_waitcnt lgkmcnt(0)")
stamp(14)
DEF = int(OPT.get("defer", 0))
if DEF:
    for k in range(16): store1(YACC, k, 2048)
    cm("the matrix pipe is free once the attention wave of this SIMD has finished")
    a(f"v_add_u32 v11, {(L_PROG - L_CNT) & 0xffffffff}, v9")
    waitc(11, 0, L_PART + 8192 + 7*PSTRIDE, 8)
else:
    a(f"s_setprio {OPT.get('oprio', 0)}")
for k in range(16):
    mfma32(32, OF + 4*k, WF + 4*k, "0" if k == 0 else None)
    if not YLT and not DEF: store1(YACC, k, 2048)
nsync = sum(1 for n in ("HQ", "H") for x in SECS[n] if x.strip() == f"s_add_u32 s{sSYNC}, s{sSYNC}, 4")
SECS["P"].insert(0, f".set NSYNC_B2, {4*nsync}")
a("s_setprio 2")
waitc(vCNT, C_GH, f"s{sSYNC}", 8)
a("s_nop 6")
for i in range(4):
    a(f"ds_write_b128 v10, {vr(32+4*i,4)} offset:{1024*i}")
a(f"ds_write_b32 v9, v{vONE} offset:{C_HA}")
stamp(13)
if YLT:
    waitc(vCNT, C_S, 4, 8, sleep=1)
    for k in range(16): store1(YACC, k, 2048)
a("s_branch L_end")

lab("L_slow")
a("s_waitcnt lgkmcnt(0)")
a(f"s_mov_b32 s{sKIND}, 0")
a(f"s_lshl_b32 s{sT0}, s{sSTEP}, 10")
a(f"s_add_u32 s{sT0}, s{sT0}, {L_QF}")
a(f"v_add_u32 v4, s{sT0}, v14")
a(f"ds_read_b128 {vr(vQ,4)}, v4")
a("v_mov_b32 v4, 0xff800000")
a("v_lshrrev_b32 v16, 5, v0")
a("v_and_b32 v17, 15, v0")
a("v_lshl_add_u32 v15, v16, 4, v17")
a("v_lshlrev_b32 v15, 4, v15")
a(f"s_mov_b32 s{sM}, 0xffff")
a(f"s_mov_b32 s{sM+1}, 0xffff")
a(f"s_mov_b32 s{sT0}, {WS_KV}")
lab("L_slow_p1")
kvload(0)
a("s_waitcnt vmcnt(0) lgkmcnt(0)")
for t in range(2):
    qk(S0, t)
    a("s_nop 11")
    for i in range(8):
        a(f"v_max3_f32 v4, v{S0+2*i}, v{S0+2*i+1}, v4")
a(f"s_cmp_lt_u32 s{sT0}, {WS_KV + 131072}")
a("s_cbranch_scc1 L_slow_p1")
a("v_mov_b32 v5, v4")
a("s_nop 1")
a("v_permlane32_swap_b32 v4, v5")
a("v_max_f32 v4, v4, v5")
for i in range(16):
    a(f"v_sub_f32 v{S1+i}, 0, v4")
zeroO()
a(f"s_mov_b32 s{sT0}, {WS_KV}")
lab("L_slow_p2")
kvload(0)
a("s_waitcnt vmcnt(0)")
for t in range(2):
    mfma32(S0, K_(t), vQ, vr(S1, 16))
    a("s_nop 11")
    exs(S0, 0, 16)
    a("s_nop 1")
    smf(V1(t), S0)
    smf(V2(t), S0 + 8)
a(f"s_cmp_lt_u32 s{sT0}, {WS_KV + 131072}")
a("s_cbranch_scc1 L_slow_p2")
o_offsets()
a(f"v_rcp_f32 v4, v{vO+8}")
a("s_nop 0")
for j in range(4):
    a(f"v_pk_mul_f32 {vr(vO+2*j,2)}, {vr(vO+2*j,2)}, v[4:5] op_sel_hi:[1,0]")
for j in range(4):
    a(f"v_cvt_pk_bf16_f32 v{16+j}, v{vO+2*j}, v{vO+2*j+1}")
a(f"buffer_store_dwordx4 v[16:19], v14, {sr(R_WS,4)}, s{sT1} offen sc1")
a("s_waitcnt vmcnt(0)")
setflag(16, 17, sT0)
a("v_and_b32 v15, 15, v0")
a("v_lshlrev_b32 v15, 7, v15")
a("v_lshlrev_b32 v7, 3, v0")
a(f"v_add_u32 v7, s{sT5}, v7")
a(f"s_lshl_b32 s{sT0}, s{sWV}, 2")
a(f"v_add_u32 v10, s{sT0}, v{vCA}")
a(f"s_cmp_lt_u32 s{sSTEP}, 4")
a("s_cbranch_scc1 L_a_ok2")
a("ds_read_b128 v[56:59], v6 offset:8192")
a("s_waitcnt lgkmcnt(0)")
a("s_branch L_a_ok1")
lab("L_a_bad1")
a("s_waitcnt lgkmcnt(0)")
a(f"s_sub_u32 s{sSTEP}, 7, s{sWV}")
a("s_branch L_slow")
lab("L_a_bad2")
a(f"s_mov_b32 s{sSTEP}, s{sWV}")
a("s_branch L_slow")

lab("L_end")
ROLE[0] = "E"
if PROBE:
    a("s_waitcnt vmcnt(0)")
    stamp(15)
    a(f"s_cmp_ge_u32 s{sW}, 4")
    a(f"s_cbranch_scc{0 if PROBE[0] == 'A' else 1} L_exit")
    a(f"s_cmp_eq_u32 s{80+int(PROBE[1])}, 0")
    a("s_cbranch_scc1 L_exit")
    a(f"s_sub_u32 s{sT0}, s{80+int(PROBE[1])}, s{80+int(PROBE[2])}")
    if OPT.get("pmode"):
        a(f"s_cmp_eq_u32 s{sMODE}, 1")
        a(f"s_cselect_b32 s{sT0}, 0, 1000")
    a(f"s_min_u32 s{sT0}, s{sT0}, 10000")
    a(f"s_lshl_b32 s{sT0}, s{sT0}, 1")
    a(f"s_memrealtime s[{sST}:{sST+1}]")
    a("s_waitcnt lgkmcnt(0)")
    a(f"s_mov_b32 s{sT1}, s{sST}")
    lab("L_probe")
    a(f"s_memrealtime s[{sST}:{sST+1}]")
    a("s_waitcnt lgkmcnt(0)")
    a(f"s_sub_u32 s{sT2}, s{sST}, s{sT1}")
    a(f"s_cmp_lt_u32 s{sT2}, s{sT0}")
    a("s_cbranch_scc1 L_probe")
elif STAMPS:
    a("s_waitcnt vmcnt(0)")
    stamp(15)
    a(f"s_lshl_b32 s{sT0}, s2, 3")
    a(f"s_xor_b32 s{sT1}, s{sW}, 4")
    a(f"s_add_u32 s{sT0}, s{sT0}, s{sT1}")
    a(f"s_lshl_b32 s{sT0}, s{sT0}, 6")
    a(f"s_add_u32 s{sT0}, s{sT0}, {WS_STAMP}")
    for i in range(16): a(f"v_mov_b32 v{16+i}, s{80+i}")
    a("v_mov_b32 v0, 0")
    a("s_mov_b64 exec, 1")
    for i in range(4):
        a(f"buffer_store_dwordx4 {vr(16+4*i,4)}, v0, {sr(R_WS,4)}, s{sT0} offen offset:{16*i}")
lab("L_exit")
a("s_endpgm")

DOC = """; ---------------------------------------------------------------------------------------------
; (tag = lcg(word 0 of d_ws), written back at the end).  Stores are device scope (sc1); only the last
; ---------------------------------------------------------------------------------------------
"""
hdr = open("cdna_kernels/" + NAME + ".s.ref").read().split("; Override launch")[0]
src = hdr + f"; @launch grid=(256,1,1) block=(512,1,1) lds={LDS_BYTES}\n" + f""".amdgcn_target "amdgcn-amd-amdhsa--gfx950"
{DOC}.text
.globl {NAME}_kernel
.p2align 8
.type {NAME}_kernel,@function
{NAME}_kernel:
""" + "\n".join(x for n in ("P", "AL", "HQ", "Z", "A", "H") for x in SECS[n]) + f"""
.section .rodata,"a"
.p2align 6
.amdhsa_kernel {NAME}_kernel
  .amdhsa_next_free_vgpr 256
  .amdhsa_next_free_sgpr 102
  .amdhsa_accum_offset 256
  .amdhsa_group_segment_fixed_size 0
  .amdhsa_kernarg_size 136
  .amdhsa_user_sgpr_count 2
  .amdhsa_user_sgpr_kernarg_segment_ptr 1
  .amdhsa_system_sgpr_workgroup_id_x 1
.end_amdhsa_kernel
"""
open(OUT, "w").write(src)
```

```python
import sys, math, struct
NAME = "concat_heads__grouped_kv_mqa__ssm_conv_s5__prompt"
STAMPS = "--stamps" in sys.argv
OPT = dict(a.lstrip("-").split("=") for a in sys.argv[1:] if a.startswith("--") and "=" in a)
OUT = [a for a in sys.argv[1:] if not a.startswith("--")][0]
OUTFL = OPT.get("outfl", "nt").replace(",", " ")
if OUTFL: OUTFL = " " + OUTFL
YFL = OPT.get("yfl", "nt").replace(",", " ")
if YFL: YFL = " " + YFL

def f32(x): return "0x%08x" % struct.unpack("<I", struct.pack("<f", x))[0]

FSH = int(OPT.get('fsh', 6))
WS_O2 = 0x300000
C_HA = 48
WS_DUMMY = 0x800
WS_FKV = 0x1000
WS_FH  = 0x20000
WS_FO  = 0x80000
WS_KV  = 0x40000
WS_ST  = 0x60000
WS_O   = 0x100000
WS_H   = 0x400000
WS_SLOW = 0x800000
WS_STAMP = 15 << 20
WS_SIZE = 16 << 20
L_XA, L_WQ, L_KVP, L_WKV = 0, 65536, 131072, 140288
L_PART, L_R1, L_SCR, L_ES, L_QF, L_PROG, L_CNT = 0, 73728, 140288, 148480, 150528, 158720, 159744
L_MAX = 159808
L_CS = 160832

LDS_BYTES = 163840
PSTRIDE = 9216
RSTR = 1040
POLL_LIMIT = 400000
C_A1, C_H1, C_H2, C_A3, C_A4, C_GA, C_GH, C_TAG, C_H3, C_S, C_H0, C_DONE = 0, 4, 8, 12, 16, 20, 24, 28, 32, 36, 40, 44

SECS = {}
class _L:
    cur = None
    def append(self, x): SECS[_L.cur].append(x)
lines = _L()
def sec(n):
    SECS.setdefault(n, []); _L.cur = n
sec("P")
def a(s): lines.append("    " + s)
def lab(s): lines.append(s + ":")
def cm(s): lines.append("    ; " + s)
_uid = [0]
def uid(p):
    _uid[0] += 1
    return f"L_{p}{_uid[0]}"
def vr(b, n): return f"v[{b}:{b+n-1}]"
def sr(b, n): return f"s[{b}:{b+n-1}]"

sW, sTAG, sRB, sG, sC, sPB = 3, 4, 5, 6, 7, 8
sT0, sT1, sT2, sT3, sT4, sCNT = 9, 10, 11, 12, 13, 14
sWV = 15
P_AX, P_WQ, P_WK, P_WV, P_WO, P_BX, P_LRE, P_LIM = 16, 18, 20, 22, 24, 26, 28, 30
P_BRE, P_BIM, P_CRE, P_CIM, P_LDT, P_DSK, P_OUT, P_DBG = 32, 34, 36, 38, 40, 42, 44, 46
P_WS = 48
sT5, sT6 = 50, 51
R_WS, R_A, R_B, R_C = 52, 56, 60, 64
sM = 68
sGRP, sKIND, sSTEP, sSYNC = 70, 71, 72, 73
sRET = 74
sST = 76
sLO, sHI = 78, 79
sROT = sSTEP
sF1, sF2 = 0, 1
sYG, sCG, sPC = 96, 97, 98
sGY, sYY = 100, 101
YM = int(OPT.get('ymap', 0))
sMODE = sGRP
C_MODE = C_DONE
LFL = OPT.get('lfl', '').replace(',', ' ')
if LFL: LFL = ' ' + LFL

def srd(dst, ptr, nbytes):
    a(f"s_mov_b32 s{dst}, s{ptr}")
    a(f"s_and_b32 s{dst+1}, s{ptr+1}, 0xffff")
    a(f"s_mov_b32 s{dst+2}, {nbytes}")
    a(f"s_mov_b32 s{dst+3}, 0x20000")

PROBE = OPT.get("probe")
ROLE = ["?"]
if PROBE:
    PROBE = PROBE.split(","); STAMPS = True
def stamp(i, ins="s_memrealtime"):
    if PROBE and not (ins == "s_memrealtime" and (ROLE[0] in (PROBE[0], "E")) and str(i) in PROBE[1:]): return
    if OPT.get("dbg") == "steps" and ROLE[0] == "A" and i < 10: return
    if OPT.get("sel") and ROLE[0] != "E" and f"{ROLE[0]}{i}" not in OPT["sel"].split(","): return
    if STAMPS:
        a(f"{ins} s[{sST}:{sST+1}]")
        a("s_waitcnt lgkmcnt(0)")
        a(f"s_mov_b32 s{80+i}, s{sST}")
def cstamp(i): stamp(i, "s_memtime")
DBG = OPT.get("dbg", "")
def dstamp(name, i):
    if DBG == name: stamp(i)
_stamp0 = stamp


def dma(voff, srdr, soff, imm=0):
    o = f" offset:{imm}" if imm else ""
    a(f"buffer_load_dwordx4 v{voff}, {sr(srdr,4)}, {soff} offen{o} lds")

PACE = int(OPT.get("pace", 18))
def pace():
    n = PACE
    while n > 0:
        a(f"s_nop {min(n, 16) - 1}"); n -= 16

def poll(voff, soff, vt, sleep=0, fl=" sc1"):
    L, D = uid("poll"), uid("pdone")
    a(f"s_mov_b32 s{sCNT}, {POLL_LIMIT}")
    lab(L)
    a(f"buffer_load_dword v{vt}, v{voff}, {sr(R_WS,4)}, {soff} offen{fl}")
    a("s_waitcnt vmcnt(0)")
    a(f"v_cmp_ne_u32 vcc, s{sTAG}, v{vt}")
    a(f"s_cbranch_vccz {D}")
    if sleep: a(f"s_sleep {sleep}")
    a(f"s_sub_u32 s{sCNT}, s{sCNT}, 1")
    a(f"s_cbranch_scc0 {L}")
    lab(D)

def setflag(vt0, vt1, soff):
    a(f"v_mov_b32 v{vt0}, 0")
    a(f"v_mov_b32 v{vt1}, s{sTAG}")
    a("s_mov_b64 exec, 1")
    a(f"buffer_store_dword v{vt1}, v{vt0}, {sr(R_WS,4)}, s{soff} offen sc1")
    a("s_mov_b64 exec, -1")

LOC = OPT.get("loc", "t")
KIND = ["t"]
assert not (YM and "h" in LOC)
def st2(instrs):
    if KIND[0] not in LOC:
        for x in instrs: a(x.replace("@", " sc1"))
        return
    L, E = uid("sl"), uid("se")
    a(f"s_cmp_eq_u32 s{sMODE}, 1")
    a(f"s_cbranch_scc1 {L}")
    for x in instrs: a(x.replace("@", " sc1"))
    a(f"s_branch {E}")
    lab(L)
    for x in instrs: a(x.replace("@", LFL))
    lab(E)

def spf(spec):
    for ptr, lines, first, cnt in spec:
        a(f"s_lshl2_add_u32 s{sRET}, s2, s{sWV}")
        a(f"s_mul_i32 s{sRET}, s{sRET}, {128*lines}")
        a(f"s_add_u32 s{sRET}, s{sRET}, s{ptr}")
        a(f"s_addc_u32 s{sRET+1}, s{ptr+1}, 0")
        for i in range(first, first + cnt):
            a(f"s_load_dword s{sST}, s[{sRET}:{sRET+1}], {128*i}")

def spx(kind, first, cnt, w="dword"):
    if kind == "x":
        a(f"s_and_b32 s{sRET}, s{sRB}, 0x1b")
        a(f"s_lshr_b32 s{sRET+1}, s{sRET}, 3")
        a(f"s_and_b32 s{sRET}, s{sRET}, 3")
        a(f"s_lshl2_add_u32 s{sRET}, s{sRET+1}, s{sRET}")
        a(f"s_lshl3_add_u32 s{sRET}, s{sRET}, s{sG}")
        a(f"s_lshl2_add_u32 s{sRET}, s{sRET}, s{sWV}")
        a(f"s_lshl_b32 s{sRET}, s{sRET}, 12")
        ptr = P_BX
    else:
        a(f"s_and_b32 s{sRET}, s2, 1")
        a(f"s_lshl3_add_u32 s{sRET}, s{sRET}, s{sG}")
        a(f"s_and_b32 s{sRET+1}, s{sRB}, 3")
        a(f"s_lshl2_add_u32 s{sRET}, s{sRET}, s{sRET+1}")
        a(f"s_lshl2_add_u32 s{sRET}, s{sRET}, s{sWV}")
        a(f"s_lshl_b32 s{sRET}, s{sRET}, 11")
        ptr = P_BRE if kind == "r" else P_BIM
    a(f"s_add_u32 s{sRET}, s{sRET}, s{ptr}")
    a(f"s_addc_u32 s{sRET+1}, s{ptr+1}, 0")
    for i in range(first, first + cnt):
        a(f"s_load_dword s{sST}, s[{sRET}:{sRET+1}], {128*i}")
SX = OPT.get("sx", "")

def signal(vcnt, vone, off):
    a("s_mov_b64 exec, 1")
    a(f"ds_add_u32 v{vcnt}, v{vone} offset:{off}")
    a("s_mov_b64 exec, -1")

HSL = int(OPT.get("hsl", 0))
def waitc(vcnt, off, target, vt, sleep=0):
    L = uid("wc")
    if ROLE[0] == "H" and _L.cur == "H": sleep = max(sleep, HSL)
    if sleep:
        L2 = uid("wd")
        a(f"s_branch {L2}")
    lab(L)
    if sleep:
        a(f"s_sleep {sleep}")
        lab(L2)
    a(f"ds_read_b32 v{vt}, v{vcnt} offset:{off}")
    a("s_waitcnt lgkmcnt(0)")
    a(f"v_cmp_gt_u32 vcc, {target}, v{vt}")
    a(f"s_cbranch_vccnz {L}")

def gsync(vcnt, vone, vt, off):
    a("s_waitcnt lgkmcnt(0)")
    a(f"s_add_u32 s{sSYNC}, s{sSYNC}, 4")
    signal(vcnt, vone, off)
    waitc(vcnt, off, f"s{sSYNC}", vt)

def mfma32(d, x, y, c=None):
    c = vr(d, 16) if c is None else c
    a(f"v_mfma_f32_32x32x16_bf16 {vr(d,16)}, {vr(x,4)}, {vr(y,4)}, {c}")

def cmul_add(dst, L, g, u):
    a(f"v_pk_fma_f32 {vr(dst,2)}, {vr(L,2)}, {vr(g,2)}, {vr(u,2)} op_sel:[0,0,0] op_sel_hi:[0,1,1]")
    a(f"v_pk_fma_f32 {vr(dst,2)}, {vr(L,2)}, {vr(g,2)}, {vr(dst,2)} op_sel:[1,1,0] op_sel_hi:[1,0,1] neg_lo:[1,0,0]")

def cmul(dst, x, y):
    a(f"v_pk_mul_f32 {vr(dst,2)}, {vr(x,2)}, {vr(y,2)} op_sel:[0,0] op_sel_hi:[0,1]")
    a(f"v_pk_fma_f32 {vr(dst,2)}, {vr(x,2)}, {vr(y,2)}, {vr(dst,2)} op_sel:[1,1,0] op_sel_hi:[1,0,1] neg_lo:[1,0,0]")

def csq(dst, src, t):
    a(f"v_mul_f32 v{t}, v{src+1}, v{src+1}")
    a(f"v_add_f32 v{t+1}, v{src}, v{src}")
    a(f"v_fma_f32 v{dst}, v{src}, v{src}, -v{t}")
    a(f"v_mul_f32 v{dst+1}, v{t+1}, v{src+1}")

def xvoffsets(XO, t0):
    a(f"v_lshrrev_b32 v{t0}, 4, v0")
    a(f"v_and_b32 v{t0+1}, 15, v0")
    for i in range(4):
        a(f"v_add_u32 v{t0+2}, {4*i}, v{t0}")
        a(f"v_xor_b32 v{t0+3}, v{t0+1}, v{t0+2}")
        a(f"v_lshlrev_b32 v{t0+3}, 4, v{t0+3}")
        a(f"v_lshl_add_u32 v{XO+i}, v{t0+2}, 10, v{t0+3}")

def wtr_addr(dst, hhshift, base, t):
    a(f"v_bfe_u32 v{t}, v0, 2, 2")
    a(f"v_bfe_u32 v{t+1}, v0, 4, 1")
    a(f"v_bfe_u32 v{t+2}, v0, 1, 1")
    a(f"v_lshl_add_u32 v{t+1}, v{t+1}, 1, v{t+2}")
    a(f"s_and_b32 s{sT0}, s{sWV}, 1")
    a(f"s_lshl_b32 s{sT0}, s{sT0}, 2")
    a(f"v_add_u32 v{t+1}, s{sT0}, v{t+1}")
    a(f"v_bfe_u32 v{t+2}, v0, 3, 1")
    a(f"v_lshlrev_b32 v{t+2}, 2, v{t+2}")
    a(f"v_xor_b32 v{t+1}, v{t+1}, v{t+2}")
    a(f"v_lshlrev_b32 v{t+1}, 4, v{t+1}")
    a(f"v_lshl_add_u32 v{t+1}, v{t}, 7, v{t+1}")
    a(f"v_and_b32 v{t+2}, 1, v0")
    a(f"v_lshl_add_u32 v{t+1}, v{t+2}, 3, v{t+1}")
    a(f"v_lshrrev_b32 v{t+2}, 5, v0")
    a(f"v_lshl_add_u32 v{t+1}, v{t+2}, {hhshift}, v{t+1}")
    a(f"v_add_u32 v{dst}, {base}, v{t+1}")

def o_offsets():
    a(f"s_and_b32 s{sT0}, s{sSTEP}, 1")
    a(f"s_lshl_b32 s{sT1}, s{sRB}, 1")
    a(f"s_add_u32 s{sT0}, s{sT0}, s{sT1}")
    a(f"s_lshl_b32 s{sT0}, s{sT0}, 2")
    a(f"s_lshr_b32 s{sT1}, s{sSTEP}, 1")
    a(f"s_add_u32 s{sT0}, s{sT0}, s{sT1}")
    a(f"s_lshl_b32 s{sT0}, s{sT0}, 3")
    a(f"s_add_u32 s{sT0}, s{sT0}, s{sG}")
    a(f"s_lshl_b32 s{sT1}, s{sT0}, 10")
    a(f"s_add_u32 s{sT1}, s{sT1}, {WS_O}")
    a(f"s_lshl_b32 s{sT0}, s{sT0}, 7")
    a(f"s_add_u32 s{sT0}, s{sT0}, {WS_FO}")

def sum_check(b):
    a(f"v_pk_add_f32 {vr(b,2)}, {vr(b,2)}, {vr(b+2,2)}")
    a(f"v_add_f32 v{b}, v{b}, v{b+1}")
    a(f"v_cmp_nle_f32 vcc, s{sLO}, v{b}")
    a(f"v_cmp_nge_f32 s[{sM}:{sM+1}], s{sHI}, v{b}")
    a(f"s_or_b64 vcc, vcc, s[{sM}:{sM+1}]")

def reduce_math(b, vl16, flag=True, tagged=False, b1=None, bs=None):
    b1 = b + 16 if b1 is None else b1
    bs = b + 32 if bs is None else bs
    a(f"v_rcp_f32 v{bs+2}, v{bs}")
    for j in range(4):
        a(f"v_pk_add_f32 {vr(b+2*j,2)}, {vr(b+2*j,2)}, {vr(b+8+2*j,2)}")
    for j in range(4):
        a(f"v_pk_add_f32 {vr(b1+2*j,2)}, {vr(b1+2*j,2)}, {vr(b1+8+2*j,2)}")
    for j in range(4):
        a(f"v_pk_add_f32 {vr(b+2*j,2)}, {vr(b+2*j,2)}, {vr(b1+2*j,2)}")
    for j in range(4):
        a(f"v_pk_mul_f32 {vr(b+2*j,2)}, {vr(b+2*j,2)}, {vr(bs+2,2)} op_sel_hi:[1,0]")
    for j in range(4):
        a(f"v_cvt_pk_bf16_f32 v{b+8+j}, v{b+2*j}, v{b+2*j+1}")
    if not flag:
        st2([f"buffer_store_dwordx4 {vr(b+8,4)}, v{vl16}, {sr(R_WS,4)}, s{sT1} offen@"])
        return
    a(f"buffer_store_dwordx4 {vr(b+8,4)}, v{vl16}, {sr(R_WS,4)}, s{sT1} offen sc1")
    a("s_waitcnt vmcnt(0)")
    setflag(b, b + 1, sT0)

STG3 = 1
LOG2E = 1.4426950408889634
L_LO, L_HI = 2.0 ** -60, 2.0 ** 60


class Cnt:
    def __init__(s): s.q = []
    def issue(s, tag, n=1): s.q += [tag] * n
    def need(s, tag):
        if tag not in s.q: return None
        i = len(s.q) - 1 - s.q[::-1].index(tag)
        n = len(s.q) - 1 - i
        s.q = s.q[i + 1:]
        return n
def waits(vm=None, lg=None):
    p = []
    if vm is not None: p.append(f"vmcnt({min(vm,63)})")
    if lg is not None: p.append(f"lgkmcnt({min(lg,15)})")
    if p: a("s_waitcnt " + " ".join(p))

a("s_cmp_ge_u32 s2, 256")
a("s_cbranch_scc1 L_exit")
a(f"s_load_dwordx16 s[16:31], s[0:1], 0")
a(f"s_load_dwordx16 s[32:47], s[0:1], 64")
a(f"s_load_dwordx2 s[48:49], s[0:1], 128")
EPF = [int(x) for x in OPT.get("epf", "").split(",") if x]
if EPF:
    cm("request the first code lines at once instead of one miss after the other")
    a(f"s_getpc_b64 s[{sM}:{sM+1}]")
    a(f"v_subrev_u32 v2, {EPF[0]}, v0")
    a(f"v_cmp_gt_u32 vcc, {EPF[1]}, v2")
    a("v_lshlrev_b32 v2, 7, v2")
    a(f"s_and_saveexec_b64 s[{sRET}:{sRET+1}], vcc")
    a("s_cbranch_execz L_noepf")
    a(f"global_load_dword v31, v2, s[{sM}:{sM+1}] offset:128")
    lab("L_noepf")
    a("s_mov_b64 exec, -1")
if STAMPS:
    for i in range(16): a(f"s_mov_b32 s{80+i}, 0")
    a("s_memrealtime s[80:81]")
    a("s_memtime s[92:93]")
a("v_lshrrev_b32 v1, 6, v0")
a("v_and_b32 v0, 63, v0")
a(f"v_readfirstlane_b32 s{sW}, v1")
a("v_lshlrev_b32 v6, 4, v0")
a("v_lshrrev_b32 v12, 4, v0")
a("v_and_b32 v13, 15, v0")
a(f"s_and_b32 s{sT0}, s2, 7")
a(f"s_lshr_b32 s{sT1}, s2, 3")
a(f"s_and_b32 s{sT2}, s{sT1}, 3")
a(f"s_lshl_b32 s{sRB}, s{sT0}, 2")
a(f"s_add_u32 s{sRB}, s{sRB}, s{sT2}")
a(f"s_lshr_b32 s{sG}, s{sT1}, 2")
a(f"s_and_b32 s{sGRP}, s{sG}, 3")
a(f"s_and_b32 s{sWV}, s{sW}, 3")
a(f"s_add_u32 s{sROT}, s{sG}, s{sRB}" if OPT.get("rot", "0") == "1" else f"s_mov_b32 s{sROT}, 0")
a(f"s_mov_b32 s{R_A+2}, {2048*1024}")
a(f"s_mov_b32 s{R_A+3}, 0x20000")
a(f"s_mov_b32 s{R_B+3}, 0x20000")
a(f"s_cmp_ge_u32 s{sW}, 4")
a("s_cbranch_scc1 L_attn")

vL, vL16_, vL8, vCO = 20, 22, 24, 26
vCNT, vONE, vWT, vRB, vL4, vWO = 2, 3, 4, 5, 6, 7
a("s_setprio 3")
for i in range(4):
    a(f"v_add_u32 v14, {4*i}, v12")
    a(f"v_xor_b32 v15, v13, v14")
    a(f"v_lshlrev_b32 v15, 4, v15")
    a(f"v_lshl_add_u32 v{16+i}, v14, 10, v15")
if OPT.get("map", "0" if "h" in LOC else "1") == "0":
    a(f"s_and_b32 s{sT2}, s{sT1}, 1")
    a(f"s_lshl_b32 s{sC}, s{sT0}, 1")
    a(f"s_add_u32 s{sC}, s{sC}, s{sT2}")
    a(f"s_lshr_b32 s{sPB}, s{sT1}, 1")
else:
    a(f"s_and_b32 s{sC}, s{sT0}, 6")
    a(f"s_lshl_b32 s{sC}, s{sC}, 1")
    a(f"s_add_u32 s{sC}, s{sC}, s{sT2}")
    a(f"s_and_b32 s{sPB}, s{sT0}, 1")
    a(f"s_lshl_b32 s{sPB}, s{sPB}, 3")
    a(f"s_add_u32 s{sPB}, s{sPB}, s{sG}")
a(f"s_lshr_b32 s{sKIND}, s{sG}, 2")
a(f"s_lshl_b32 s{sT3}, s{sPB}, 5")
a("v_and_b32 v38, 31, v0")
a(f"v_add_lshl_u32 v37, v38, s{sT3}, 1")
if YM:
    a(f"s_and_b32 s{sGY}, s{sRB}, 7")
else:
    a(f"s_mov_b32 s{sGY}, s{sG}")
a(f"s_and_b32 s{sT3}, s{sWV}, 1")
a(f"s_lshl1_add_u32 s{sT3}, s{sGY}, s{sT3}")
a(f"s_lshl_b32 s{sT3}, s{sT3}, 5")
a(f"v_add_lshl_u32 v38, v38, s{sT3}, 1")
a(f"s_add_u32 s{sT3}, s{sROT}, s{sWV}")
a(f"s_and_b32 s{sT3}, s{sT3}, 3")
a(f"s_lshl_b32 s{sT0}, s{sRB}, 16")
a(f"s_lshl_b32 s{sT1}, s{sGRP}, 14")
a(f"s_add_u32 s{sT0}, s{sT0}, s{sT1}")
a(f"s_lshl_b32 s{sT1}, s{sT3}, 8")
a(f"s_add_u32 s{sT0}, s{sT0}, s{sT1}")
a(f"s_lshl_b32 s{sT2}, s{sGRP}, 12")
a(f"s_lshl_b32 s{sT1}, s{sWV}, 14")
a(f"s_add_u32 s{sT2}, s{sT2}, s{sT1}")
a(f"s_lshl_b32 s{sT3}, s{sT3}, 12")
a(f"s_lshl_b32 s{sT4}, s{sWV}, 12")
a(f"s_add_u32 s{sT4}, s{sT4}, {L_WKV}")
a(f"s_mov_b32 s{R_B+2}, 16384")
a(f"s_mov_b32 m0, s{sT2}")
a(f"s_cmp_eq_u32 s{sKIND}, 0")
a("s_waitcnt lgkmcnt(0)")
a(f"s_cselect_b32 s{R_B}, s{P_WK}, s{P_WV}")
a(f"s_cselect_b32 s{R_B+1}, s{P_WK+1}, s{P_WV+1}")
a(f"s_mov_b32 s{R_A}, s{P_AX}")
a(f"s_and_b32 s{R_A+1}, s{P_AX+1}, 0xffff")
a(f"s_and_b32 s{R_B+1}, s{R_B+1}, 0xffff")
for i in range(4):
    dma(16 + i, R_A, f"s{sT0}")
    a(f"s_add_u32 m0, s{sT2}, {1024*(i+1)}" if i < 3 else f"s_mov_b32 m0, s{sT4}")
    a("s_nop 0")
for i in range(4):
    dma(6, R_B, f"s{sT3}", imm=1024 * i)
p0, p1, p2, vDSK = 60, 61, 62, 63
a(f"global_load_ushort v{p0}, v37, s[{P_LRE}:{P_LRE+1}]")
a(f"global_load_ushort v{p1}, v37, s[{P_LIM}:{P_LIM+1}]")
a(f"global_load_ushort v{p2}, v37, s[{P_LDT}:{P_LDT+1}]")
a(f"global_load_ushort v{vDSK}, v38, s[{P_DSK}:{P_DSK+1}]")
EP0 = int(OPT.get("ep0", 0))
if EP0:
    a(f"s_cmp_eq_u32 s{sWV}, 0")
    a("s_cbranch_scc0 L_h_noep")
a(f"s_load_dword s{sTAG}, s[{P_WS}:{P_WS+1}], 0")
lab("L_h_noep")
a("s_barrier")

sec("AL")
lab("L_attn"); ROLE[0] = "A"
cm("pull the kernel's code towards this XCD's L2")
a(f"s_getpc_b64 s[{sM}:{sM+1}]")
lab("L_pc")
a(f"s_sub_u32 s{sM}, s{sM}, L_pc - {NAME}_kernel")
a(f"s_subb_u32 s{sM+1}, s{sM+1}, 0")
SPF = int(OPT.get("spf", 0))
if SPF:
    a(f"s_lshl_b32 s{sT3}, s{sWV}, 7")
    a(f"s_add_u32 s{sRET}, s{sM}, s{sT3}")
    a(f"s_addc_u32 s{sRET+1}, s{sM+1}, 0")
    for i in range(SPF):
        a(f"s_load_dword s{sCNT}, s[{sRET}:{sRET+1}], {512*i + 256}")
CSH = int(OPT.get("csh", 32))
NLN = -(-176 // (4 * CSH))
a(f"s_and_b32 s{sT2}, s{sT1}, {CSH-1}")
a(f"s_lshl2_add_u32 s{sT2}, s{sT2}, s{sWV}")
a(f"s_mul_i32 s{sT2}, s{sT2}, {128*NLN}")
CSK = int(OPT.get("csk", 0))
if CSK: a(f"s_add_u32 s{sT2}, s{sT2}, {CSK}")
a("v_lshlrev_b32 v32, 7, v0")
a(f"v_min_u32 v32, {128*(NLN-1)}, v32")
a(f"v_add_u32 v32, s{sT2}, v32")
a(f"v_min_u32 v32, L_slow - {NAME}_kernel, v32")
CPF = int(OPT.get("cpf", 0))
if CPF == 0:
    a(f"s_cmp_ge_u32 s{sT2}, L_slow - {NAME}_kernel")
    a("s_cbranch_scc1 L_nocpf")
    a(f"s_mov_b64 exec, {(1 << NLN) - 1}")
    a(f"global_load_dword v33, v32, s[{sM}:{sM+1}]")
    a("s_mov_b64 exec, -1")
    lab("L_nocpf")
vIDX, vZ, vAD, vAS, vAQ, vPG, vQ = 1, 2, 4, 5, 6, 7, 8
vCA, vONEA = 12, 13
S0, S1, vO, KV = 16, 32, 48, 64
cm("zero sync counters + progress words")
a("v_mov_b32 v2, 0")
a("v_mov_b32 v3, 0")
a("v_mov_b32 v4, 0")
a("v_mov_b32 v5, 0")
a(f"v_add_u32 v7, {L_PROG}, v6")
a("ds_write_b128 v7, v[2:5]")
a("ds_write_b128 v7, v[2:5] offset:1024")
a(f"v_lshl_add_u32 v14, s{sWV}, 2, v12")
a("v_xor_b32 v15, v13, v14")
a("v_lshlrev_b32 v15, 4, v15")
a("v_lshl_add_u32 v16, v14, 10, v15")
def wo_voff(dst, t):
    a(f"v_lshrrev_b32 v{t}, 3, v0")
    a(f"v_and_b32 v{t+1}, 7, v0")
    a(f"v_lshrrev_b32 v{t+2}, 2, v0")
    a(f"v_and_b32 v{t+2}, 4, v{t+2}")
    a(f"v_xor_b32 v{t+1}, v{t+1}, v{t+2}")
    a(f"v_lshlrev_b32 v{t+1}, 4, v{t+1}")
    a(f"v_lshl_add_u32 v{dst}, v{t}, 10, v{t+1}")
wo_voff(17, 20)
def wslice_setup():
    a(f"s_lshl_b32 s{sT0}, s{sG}, 7")
    a(f"s_lshl_b32 s{sT1}, s{sWV}, 15")
    a(f"s_add_u32 s{sT0}, s{sT0}, s{sT1}")
    a(f"s_lshl_b32 s{sT1}, s{sWV}, 12")
wslice_setup()
a(f"s_lshl_b32 s{sT4}, s{sRB}, 16")
a(f"s_lshl_b32 s{sT5}, s{sWV}, 10")
for m in range(1, 4):
    a(f"s_add_u32 s{sT2}, s{sGRP}, {m}")
    a(f"s_and_b32 s{sT2}, s{sT2}, 3")
    a(f"s_lshl_b32 s{sT3}, s{sT2}, 14")
    a(f"s_add_u32 s{95+m}, s{sT3}, s{sT4}")
    a(f"s_lshl_b32 s{sT3}, s{sT2}, 12")
    a(f"s_add_u32 s{98+m}, s{sT3}, s{sT5}")
a(f"s_mov_b32 s{R_B+2}, {512*1024}")
a(f"v_mov_b32 v{vCA}, {L_CNT}")
a(f"v_mov_b32 v{vONEA}, 1")
a("s_waitcnt lgkmcnt(0)")
a(f"s_mov_b32 s{R_A}, s{P_AX}")
a(f"s_and_b32 s{R_A+1}, s{P_AX+1}, 0xffff")
a(f"s_mov_b32 s{R_B}, s{P_WQ}")
a(f"s_and_b32 s{R_B+1}, s{P_WQ+1}, 0xffff")
if STAMPS:
    a("s_mov_b32 s81, 0")
    a("s_mov_b32 s93, 0")
a("s_barrier")
def qops(sl):
    a(f"s_add_u32 s{sT3}, s{sROT}, {sl}")
    a(f"s_and_b32 s{sT3}, s{sT3}, 3")
    a(f"s_lshl_b32 s{sT4}, s{sT3}, 8")
    a(f"s_lshl_b32 s{sT3}, s{sT3}, 17")
    a(f"s_add_u32 s{sT3}, s{sT3}, s{sT0}")
    for m in range(1, 4):
        a(f"s_add_u32 m0, s{98+m}, {L_XA + 16384*sl}")
        a(f"s_add_u32 s{sT2}, s{95+m}, s{sT4}")
        dma(16, R_A, f"s{sT2}")
    for i in range(4):
        a(f"s_add_u32 m0, s{sT1}, {L_WQ + 16384*sl + 1024*i}")
        a(f"s_add_u32 s{sT2}, s{sT3}, {8192*i}")
        dma(17, R_B, f"s{sT2}")
if CPF == 1: a(f"global_load_dword v33, v32, s[{sM}:{sM+1}]")
QW = int(OPT.get("qw", 0))
for sl in range(QW): qops(sl)
PFW, PFU = int(OPT.get("pfw", 1)), OPT.get("pfu", "")
if PFW:
    cm("warm L2 with this workgroup's quarter of its Wq slice")
    a(f"s_and_b32 s{sT2}, s{sRB}, 3")
    a(f"s_lshl2_add_u32 s{sT2}, s{sT2}, s{sWV}")
    a(f"s_lshl_b32 s{sT2}, s{sT2}, 15")
    a(f"s_lshl_b32 s{sT3}, s{sG}, 7")
    a(f"s_add_u32 s{sT2}, s{sT2}, s{sT3}")
    a("v_and_b32 v20, 31, v0")
    a("v_lshlrev_b32 v20, 10, v20")
    a("s_mov_b32 exec_hi, 0")
    a(f"buffer_load_dword v34, v20, {sr(R_B,4)}, s{sT2} offen")
    a("s_mov_b64 exec, -1")
def pfu(which):
    cm("pull this wave's 1/1024 share of later inputs out of HBM")
    a(f"s_lshl2_add_u32 s{sT2}, s2, s{sWV}")
    a("v_lshlrev_b32 v26, 7, v0")
    for i, ch in enumerate(which):
        ptr, lines = {"x": (P_BX, 16), "r": (P_BRE, 4), "i": (P_BIM, 4), "c": (P_CRE, 4), "d": (P_CIM, 4), "o": (P_WO, 4)}[ch]
        a(f"s_mul_i32 s{sT3}, s{sT2}, {128*lines}")
        a(f"v_add_u32 v21, s{sT3}, v26")
        a(f"s_mov_b64 exec, {(1 << lines) - 1}")
        a(f"global_load_dword v{35+i}, v21, s[{ptr}:{ptr+1}]")
        a("s_mov_b64 exec, -1")
if PFU: pfu(PFU)
srd(R_WS, P_WS, WS_SIZE)
a(f"s_mov_b32 s{sSYNC}, 0")
a(f"s_mov_b32 s{sLO}, {f32(L_LO)}")
a(f"s_mov_b32 s{sHI}, {f32(L_HI)}")
cm("prefill V regs: rows 16 and 20 = ones, other rows >=16 zero")
a("v_and_b32 v24, 27, v0")
a("v_cmp_eq_u32 vcc, 16, v24")
a("v_mov_b32 v25, 0x3f803f80")
a("s_nop 0")
a("v_cndmask_b32 v24, 0, v25, vcc")
a("v_mov_b32 v25, v24")
for t in range(16):
    for j in range(4):
        a(f"v_mov_b64 {vr(KV+12*t+4+2*j,2)}, v[24:25]")
a("v_mov_b32 v14, v6")
a("v_lshrrev_b32 v24, 5, v0")
a("v_and_b32 v25, 15, v0")
a("v_lshl_add_u32 v15, v24, 4, v25")
a("v_lshlrev_b32 v15, 4, v15")
a(f"v_mov_b32 v{vIDX}, 0xdddddddd")
a(f"s_lshl_b32 s{sT2}, s{sWV}, 11")
a(f"v_add_u32 v{vAD}, s{sT2}, v14")
a(f"s_lshl_b32 s{sT2}, s{sWV}, 2")
a(f"s_add_u32 s{sT3}, s{sT2}, {L_PART + 8192}")
a(f"v_add_u32 v{vAS}, s{sT3}, v14")
a(f"s_add_u32 s{sT3}, s{sT2}, {L_PROG}")
a(f"v_add_u32 v{vPG}, s{sT3}, v14")
a(f"v_add_u32 v{vAQ}, {L_QF}, v14")
a(f"v_lshlrev_b32 v23, {FSH}, v0")
a("s_barrier")
a(f"ds_read_b32 v20, v{vCA} offset:{C_TAG}")
if "1" in SX: spx("r", 0, 14)
B0 = int(OPT.get("b0", 0))
for sl in range(QW, 4):
    qops(sl)
    if sl + 1 == B0:
        a(f"s_waitcnt vmcnt({7*(B0-1)})")
        a("s_barrier")
PFL = OPT.get("pfl", "")
if PFL: pfu(PFL)
NL = len(PFL)
a(f"s_waitcnt vmcnt({14+NL}) lgkmcnt(0)")
a("s_barrier")
a(f"v_readfirstlane_b32 s{sTAG}, v20")
cm("scalars for the tail")
sKV = sT0
a(f"s_sub_u32 s{sSTEP}, 7, s{sWV}")
o_offsets()
a(f"s_mov_b32 s{sF1}, s{sT0}")
a(f"s_mov_b32 s{sF2}, s{sT1}")
a(f"s_mul_i32 s{sT2}, s{sSTEP}, {PSTRIDE}")
a(f"s_lshr_b32 s{sT4}, s{sWV}, 1")
a(f"s_lshl1_add_u32 s{sYG}, s{sRB}, s{sT4}")
a(f"s_lshl_b32 s{sCG}, s{sYG}, 12")
a(f"s_add_u32 s{sCG}, s{sCG}, {WS_FO + 16*128}")
srd(R_B, P_OUT, 2048 * 4096)
a(f"s_and_b32 s{sT0}, s{sWV}, 1")
a(f"s_lshl1_add_u32 s{sT0}, s{sG}, s{sT0}")
a(f"s_lshl_b32 s{sT0}, s{sT0}, 7")
a(f"s_lshl_b32 s{sT3}, s{sYG}, 17")
a(f"s_add_u32 s{sT3}, s{sT3}, s{sT0}")
a(f"s_lshl_b32 s{sT6}, s{sYG}, 15")
a(f"s_add_u32 s{sT6}, s{sT6}, {WS_O + 16384}")
a(f"s_mul_i32 s{sT4}, s{sWV}, {PSTRIDE}")
a(f"s_lshl_b32 s{sT5}, s{sWV}, 9")
a(f"s_add_u32 s{sT5}, s{sT5}, {L_CS}")
a(f"s_lshl_b32 s{sT0}, s{sWV}, {FSH+6}")
a(f"s_add_u32 s{sT0}, s{sT0}, {WS_FKV}")
stamp(1)
if "2" in SX: spx("i", 0, 14)
SU = OPT.get("su", "")
if "a" in SU: spf([(P_BX, 16, 0, 14)])
if "b" in SU: spf([(P_BRE, 4, 0, 4), (P_BIM, 4, 0, 4), (P_BX, 16, 0, 6)])
a(f"s_waitcnt vmcnt({7+NL})")
a("s_barrier")
PE = int(OPT.get("pe", 1))
if PE == 2:
    a(f"buffer_load_dword v22, v23, {sr(R_WS,4)}, s{sT0} offen sc1")
    a(f"s_waitcnt vmcnt(1)")
else:
    a(f"s_waitcnt vmcnt({NL})")
if PE == 1: a(f"buffer_load_dword v22, v23, {sr(R_WS,4)}, s{sT0} offen sc1")
a("s_barrier")
a("s_branch L_a2")
sec("A")
lab("L_a2")
stamp(2)
for _ in range(int(OPT.get("pd", 0))): a("s_sleep 2")
a(f"s_mov_b32 s{sCNT}, {POLL_LIMIT}")
if PE: a("s_branch L_a_kvq")
lab("L_a_kvp")
a(f"buffer_load_dword v22, v23, {sr(R_WS,4)}, s{sT0} offen sc1")
lab("L_a_kvq")
a("s_waitcnt vmcnt(0)")
a(f"v_xor_b32 v22, s{sTAG}, v22")
a("v_cmp_lt_u32 vcc, 15, v22")
a("s_cbranch_vccz L_a_kvok")
a(f"s_sub_u32 s{sCNT}, s{sCNT}, 1")
a("s_cbranch_scc0 L_a_kvp")
lab("L_a_kvok")
stamp(4)
a(f"s_lshl_b32 s{sT0}, s{sWV}, 15")
a(f"s_add_u32 s{sT0}, s{sT0}, {WS_KV}")
a(f"s_mov_b32 s{sM}, 0xffff")
a(f"s_mov_b32 s{sM+1}, 0xffff")
def kvload(tp):
    for t in (2*tp, 2*tp+1):
        a(f"buffer_load_dwordx4 {vr(KV+12*t,4)}, v14, {sr(R_WS,4)}, s{sT0} offen offset:{2048*(t&1)} sc1")
    a(f"s_mov_b64 exec, s[{sM}:{sM+1}]")
    for t in (2*tp, 2*tp+1):
        a(f"buffer_load_dwordx4 {vr(KV+12*t+4,4)}, v15, {sr(R_WS,4)}, s{sT0} offen offset:{2048*(t&1)+1024} sc1")
        a(f"buffer_load_dwordx4 {vr(KV+12*t+8,4)}, v15, {sr(R_WS,4)}, s{sT0} offen offset:{2048*(t&1)+1536} sc1")
    a("s_mov_b64 exec, -1")
    if tp < 7: a(f"s_add_u32 s{sT0}, s{sT0}, 4096")
NINIT = int(OPT.get("ninit", 3))
A4POS = int(OPT.get("a4", 8))
ABPOS = int(OPT.get("ab", 0))
NB = int(OPT.get("nb", NINIT))
for tp in range(NB):
    kvload(tp)
cm("do all 32 workgroups of this id class share this XCD?")
a(f"s_bfe_u32 s{sT1}, s2, 0x20001")
a(f"s_cmp_eq_u32 s{sT1}, s{sWV}")
a("s_cbranch_scc0 L_a_nomode")
a(f"s_getreg_b32 s{sT1}, hwreg(HW_REG_XCC_ID, 0, 4)")
a(f"v_cmp_ne_u32 vcc, s{sT1}, v22")
a("s_bitcmp1_b32 s2, 0")
a(f"s_cselect_b32 s{sT1}, vcc_hi, vcc_lo")
a(f"s_cmp_eq_u32 s{sT1}, 0")
a(f"s_cselect_b32 s{sT1}, {2 if OPT.get('nolocal') else 1}, 2")
a(f"v_mov_b32 v21, s{sT1}")
a(f"ds_write_b32 v{vCA}, v21 offset:{C_MODE}")
lab("L_a_nomode")
assert NINIT < 8
stamp(5)
a("s_barrier")
a("s_setprio 1")
a(f"ds_read_b128 {vr(vQ,4)}, v{vAQ}")
a(f"v_add_u32 v{vAQ}, 1024, v{vAQ}")
for tp in range(NB, NINIT): kvload(tp)
a(f"s_waitcnt vmcnt({6*(NINIT-1)+4}) lgkmcnt(0)")
stamp(6)
cstamp(10)

K_ = lambda t: KV + 12 * t
V1 = lambda t: KV + 12 * t + 4
V2 = lambda t: KV + 12 * t + 8
def ex(X, i): a(f"v_exp_f32 v{X+i}, v{X+i}")
def exs(X, lo, hi):
    for i in range(lo, hi): ex(X, i)
def smf(v, p): a(f"v_smfmac_f32_32x32x32_bf16 {vr(vO,16)}, {vr(v,4)}, {vr(p,8)}, v{vIDX}")
def qk(d, t): mfma32(d, K_(t), vQ, "0")
def zeroO(): a(f"v_mfma_f32_32x32x8_bf16 {vr(vO,16)}, {vr(vZ,2)}, {vr(vZ,2)}, 0")
def dump():
    a(f"ds_write_b128 v{vAD}, {vr(vO,4)}")
    a(f"ds_write_b128 v{vAD}, {vr(vO+4,4)} offset:1024")
    a(f"ds_write_b32 v{vAS}, v{vO+8}")
    a(f"ds_write_b32 v{vPG}, v{vAS}")

KVS = int(OPT.get('kvs', 2))
QPF = int(OPT.get('qpf', 0))
PQ, PS1 = [int(x) for x in OPT.get('pos', '7,12').split(',')]
assert not QPF
UN2 = int(OPT.get("un2", 0))
def dump2(off):
    a(f"ds_write_b128 v{vAD}, {vr(vO,4)}" + (f" offset:{off}" if off else ""))
    a(f"ds_write_b128 v{vAD}, {vr(vO+4,4)} offset:{1024+off}")
    a(f"ds_write_b32 v{vAS}, v{vO+8}")
    a(f"ds_write_b32 v{vPG}, v{vAS}")
def tiles_1_15(first):
    issued = [NINIT + 1 if first else 8]
    def preqk(tn):
        if first and tn % 2 == 0 and tn < 16:
            a(f"s_waitcnt vmcnt({6*(min(issued[0],8) - 1 - tn//2)})")
    def more(t):
        if first and t % KVS == 0 and issued[0] < 8:
            kvload(issued[0]); issued[0] += 1
            if issued[0] in (A4POS, ABPOS): signal(vCA, vONEA, C_A4)
    for t in range(1, 16):
        X, Y = (S0, S1) if t % 2 == 0 else (S1, S0)
        exs(X, 0, 2); smf(V2(t - 1), Y + 8); exs(X, 2, PQ)
        if t == 15:
            a("s_waitcnt lgkmcnt(0)")
            if DBG == "steps":
                a(f"s_sub_u32 m0, 7, s{sSTEP}")
                a("s_nop 0")
                a(f"s_movreld_b32 s81, s{sST}")
            qk(Y, 0)
        else:
            preqk(t + 1)
            qk(Y, t + 1)
        if t == 14 and DBG == "steps": a(f"s_memtime s[{sST}:{sST+1}]")
        if t == 14:
            a(f"ds_read_b128 {vr(vQ,4)}, v{vAQ}")
            a(f"v_add_u32 v{vAQ}, 1024, v{vAQ}")
        exs(X, PQ, PS1); smf(V1(t), X); more(t); exs(X, PS1, 16)

qk(S0, 0)
zeroO()
a(f"s_mov_b32 s{sSTEP}, 7")
kvload(NINIT)
if NINIT + 1 in (A4POS, ABPOS): signal(vCA, vONEA, C_A4)
exs(S0, 0, 4); qk(S1, 1); exs(S0, 4, 12)
a(f"s_waitcnt vmcnt({6*NINIT})")
smf(V1(0), S0); exs(S0, 12, 16)
tiles_1_15(True)
a(f"s_mov_b32 s{sSTEP}, 6")
a("s_nop 0")
lines.append(".p2align 6")
lab("L_a_loop")
cm("tile 0: finish the previous q-tile (6 exps = 48+ cycles cover the accumulator latency), restart the accumulator")
X, Y = S0, S1
smf(V2(15), Y + 8); exs(X, 0, 3); qk(Y, 1); exs(X, 3, 6)
dump()
ex(X, 6); zeroO(); exs(X, 7, 12)
a(f"v_add_u32 v{vAD}, {PSTRIDE}, v{vAD}")
a(f"v_add_u32 v{vAS}, {PSTRIDE}, v{vAS}")
smf(V1(0), X)
exs(X, 12, 16)
tiles_1_15(False)
a(f"s_sub_u32 s{sSTEP}, s{sSTEP}, 1")
a("s_cbranch_scc0 L_a_loop")

lab("L_a_fin")
smf(V2(15), S1 + 8)
a("v_lshlrev_b32 v14, 4, v0")
a(f"v_mov_b32 v{vCA}, {L_CNT}")
a(f"v_add_u32 v9, s{sT2}, v14")
a("v_and_b32 v10, 3, v0")
a("v_lshlrev_b32 v10, 2, v10")
a(f"v_add_u32 v10, {L_PROG}, v10")
a(f"s_add_u32 s{sT2}, s{sT2}, {L_PART + 8192}")
a(f"v_add_u32 v6, s{sT4}, v14")
a("v_lshlrev_b32 v16, 2, v0")
a(f"v_mov_b32 v17, s{sTAG}")
a("s_setprio 3")
dump()
a("v_lshlrev_b32 v7, 3, v0")
a(f"v_add_u32 v7, s{sT5}, v7")
a(f"s_mov_b32 s{sKIND}, 0")
stamp(7)
cstamp(11)
lab("L_a_rw")
a("ds_read_b32 v11, v10")
a(f"ds_read_b32 v8, v{vCA} offset:{C_MODE}")
a("ds_read_b128 v[52:55], v9 offset:8192")
for w in range(8):
    a(f"ds_read_b128 {vr(20+4*w,4)}, v9 offset:{1024*w}")
a("ds_read_b128 v[56:59], v6 offset:8192")
WSH = int(OPT.get("wsh", 1))
if WSH:
    a(f"ds_read_b32 v60, v{vCA} offset:{C_GH}")
    a("ds_read_b64 v[4:5], v7")
a(f"s_waitcnt lgkmcnt({11 if WSH else 9})")
a(f"v_cmp_gt_u32 vcc, s{sT2}, v11")
a("s_cbranch_vccnz L_a_rw")
a(f"v_readfirstlane_b32 s{sMODE}, v8")
a(f"s_mov_b32 s{sT1}, s{sF2}")
sum_check(52)
a(f"s_waitcnt lgkmcnt({3 if WSH else 1})")
a("s_cbranch_scc1 L_a_bad1")
reduce_math(20, 14, flag=False, bs=52)
a("v_and_b32 v15, 15, v0")
a("v_lshlrev_b32 v15, 7, v15")
a(f"s_lshl_b32 s{sT0}, s{sWV}, 2")
a(f"v_add_u32 v10, s{sT0}, v{vCA}")
AO, AW, AC = 88, 152, 48
NSH = int(OPT.get("nsh", 12)); WG0 = int(OPT.get("wg0", 15))
def awread(k):
    o = PSTRIDE * (k // 4) + 2048 * (k % 4)
    a(f"ds_read_b64_tr_b16 {vr(AW+4*k,2)}, v4 offset:{o}")
    a(f"ds_read_b64_tr_b16 {vr(AW+4*k+2,2)}, v4 offset:{o+1024}")
if WSH:
    a("s_waitcnt lgkmcnt(0)")
    a("v_cmp_gt_u32 vcc, NSYNC_B2, v60")
    a("s_cbranch_vccnz L_a_nosh")
    a(f"s_mov_b32 s{sKIND}, 1")
    for k in range(NSH): awread(k)
    lab("L_a_nosh")
a("s_waitcnt vmcnt(0)")
a("s_mov_b32 exec_hi, 0")
st2([f"buffer_store_dword v17, v16, {sr(R_WS,4)}, s{sF1} offen@"])
a("s_mov_b64 exec, -1")
lab("L_a_ok1")
stamp(8)
if not WSH: a("s_waitcnt lgkmcnt(0)")
sum_check(56)
a("s_cbranch_scc1 L_a_bad2")
lab("L_a_ok2")
cm("output projection, last 16 heads")
poll(15, f"s{sCG}", 8)
stamp(9)
for g in range(16):
    if g % 4 == 0 and g: a(f"s_add_u32 s{sT6}, s{sT6}, 4096")
    a(f"buffer_load_dwordx4 {vr(AO+4*g,4)}, v14, {sr(R_WS,4)}, s{sT6} offen offset:{1024*(g%4)} sc1")
    if g == WG0:
        a(f"s_cmp_eq_u32 s{sKIND}, 1")
        a("s_cbranch_scc1 L_a_wd")
        lab("L_a_ww")
        a(f"ds_read_b32 v11, v{vCA} offset:{C_GH}")
        a("ds_read_b64 v[4:5], v7")
        a("s_waitcnt lgkmcnt(0)")
        a("v_cmp_gt_u32 vcc, NSYNC_B2, v11")
        a("s_cbranch_vccnz L_a_ww")
        for k in range(NSH): awread(k)
        lab("L_a_wd")
YLT = int(OPT.get("ylt", 0))
if YLT == 1: signal(vCA, vONEA, C_S)
for k in range(NSH, 16): awread(k)
a(f"ds_read_b32 v11, v10 offset:{C_HA}")
for i in range(4):
    a(f"ds_read_b128 {vr(16+4*i,4)}, v6 offset:{1024*i}")
cm("epoch update by WG0 (every workgroup has read the old value long ago)")
a(f"s_lshl2_add_u32 s{sT0}, s2, s{sWV}")
a(f"s_cmp_eq_u32 s{sT0}, 0")
a("s_cbranch_scc0 L_a_noep")
setflag(8, 9, sT0)
lab("L_a_noep")
for g in range(16):
    a(f"s_waitcnt vmcnt({15-g}) lgkmcnt({min(15, 5 + 2*(15-g))})")
    mfma32(AC, AO + 4*g, AW + 4*g, "0" if g == 0 else None)
if YLT == 2: signal(vCA, vONEA, C_S)
stamp(13)
a("s_waitcnt lgkmcnt(0)")
a("v_cmp_eq_u32 vcc, 0, v11")
a("s_cbranch_vccz L_a_hok")
lab("L_a_hw")
a(f"ds_read_b32 v11, v10 offset:{C_HA}")
for i in range(4):
    a(f"ds_read_b128 {vr(16+4*i,4)}, v6 offset:{1024*i}")
a("s_waitcnt lgkmcnt(0)")
a("v_cmp_eq_u32 vcc, 0, v11")
a("s_cbranch_vccnz L_a_hw")
lab("L_a_hok")
a("s_nop 8")
stamp(14)
for j in range(8):
    a(f"v_pk_add_f32 {vr(AC+2*j,2)}, {vr(AC+2*j,2)}, {vr(16+2*j,2)}")
    for r in (2*j, 2*j + 1):
        a(f"s_add_u32 s{sT1}, s{sT3}, {4096 * (8*(r//4) + r%4)}")
        a(f"buffer_store_dword v{AC+r}, v5, {sr(R_B,4)}, s{sT1} offen{OUTFL}")
a("s_branch L_end")

sec("P")
ROLE[0] = "H"
if STAMPS:
    a("s_mov_b32 s81, 0")
    a("s_mov_b32 s92, 0")
    a("s_mov_b32 s93, 0")
srd(R_WS, P_WS, WS_SIZE)
a("v_xor_b32 v14, v12, v13")
a("v_lshlrev_b32 v14, 4, v14")
a("v_lshl_add_u32 v14, v13, 8, v14")
a(f"v_add_u32 v8, s{sT2}, v14")
for ks in range(1, 4):
    a(f"v_xor_b32 v{8+ks}, {64*ks}, v8")
a("v_lshrrev_b32 v14, 2, v13")
a("v_lshl_add_u32 v14, v12, 3, v14")
a("v_lshlrev_b32 v14, 5, v14")
a("v_and_b32 v15, 3, v0")
a("v_lshl_add_u32 v14, v15, 3, v14")
a(f"v_add_u32 v14, s{sT4}, v14")
a(f"s_lshl_b32 s{sT0}, s{sWV}, 10")
a(f"s_add_u32 s{sT0}, s{sT0}, {L_KVP}")
a(f"v_add_u32 v15, s{sT0}, v6")
a(f"s_lshl_b32 s{sT0}, s{sRB}, 2")
a(f"s_add_u32 s{sT0}, s{sT0}, s{sGRP}")
a(f"s_lshr_b32 s{sT1}, s{sT0}, 1")
a(f"s_lshl_b32 s{sT1}, s{sT1}, 1")
a(f"s_add_u32 s{sT1}, s{sT1}, s{sKIND}")
a(f"s_lshl_b32 s{sT1}, s{sT1}, 10")
a(f"s_and_b32 s{sT2}, s{sT0}, 1")
a(f"s_add_u32 s{sT3}, s{sKIND}, 8")
a(f"s_lshl_b32 s{sT2}, s{sT2}, s{sT3}")
a(f"s_add_u32 s{sT1}, s{sT1}, s{sT2}")
a(f"s_add_u32 s{sT5}, s{sT1}, {WS_KV}")
a(f"s_lshl_b32 s{sT0}, s{sT0}, 1")
a(f"s_add_u32 s{sT0}, s{sT0}, s{sKIND}")
a(f"s_lshl_b32 s{sT0}, s{sT0}, {FSH}")
a(f"s_add_u32 s{sT6}, s{sT0}, {WS_FKV}")
a(f"s_cmp_eq_u32 s{sKIND}, 0")
a(f"s_cselect_b32 s{sT0}, 9, 3")
a(f"s_cselect_b32 s{sT1}, 3, 8")
a("v_and_b32 v34, 1, v12")
a("v_lshrrev_b32 v35, 1, v12")
a("v_lshlrev_b32 v16, 4, v13")
a(f"v_lshl_add_u32 v16, v34, s{sT0}, v16")
a(f"v_lshl_add_u32 v16, v35, s{sT1}, v16")
a(f"v_mov_b32 v{vCNT}, {L_CNT}")
a(f"v_mov_b32 v{vONE}, 1")
a("s_waitcnt lgkmcnt(0)")
a(f"s_mul_i32 s{sTAG}, s{sTAG}, 1664525")
a(f"s_add_u32 s{sTAG}, s{sTAG}, 1013904223")
if EP0:
    a(f"s_cmp_eq_u32 s{sWV}, 0")
    a("s_cbranch_scc0 L_h_notag")
a(f"v_mov_b32 v36, s{sTAG}")
a(f"ds_write_b32 v{vCNT}, v36 offset:{C_TAG}")
lab("L_h_notag")
a(f"s_cmp_eq_u32 s{sKIND}, 0")
a(f"s_waitcnt vmcnt(4)")
stamp(1)
b = 128
for ks in range(4):
    a(f"ds_read_b128 {vr(b+8*ks,4)}, v{8+ks}")
    a(f"ds_read_b64_tr_b16 {vr(b+8*ks+4,2)}, v14 offset:{1024*ks}")
    a(f"ds_read_b64_tr_b16 {vr(b+8*ks+6,2)}, v14 offset:{1024*ks+128}")
def kvproj(kind):
    for ks in range(4):
        a(f"s_waitcnt lgkmcnt({9 - 3*ks})")
        x, w = vr(b+8*ks, 4), vr(b+8*ks+4, 4)
        if kind == 0: x, w = w, x
        a(f"v_mfma_f32_16x16x32_bf16 v[40:43], {x}, {w}, {'0' if ks == 0 else 'v[40:43]'}")
a("s_cbranch_scc0 L_h_vproj")
kvproj(0)
a("s_branch L_h_kvdone")
lab("L_h_vproj")
kvproj(1)
lab("L_h_kvdone")
a(f"s_cmp_eq_u32 s{sWV}, 0")
a("s_cbranch_scc1 L_h_pub")
a("s_nop 5")
a("ds_write_b128 v15, v[40:43]")
a("s_waitcnt lgkmcnt(0)")
a("s_barrier")
a("s_branch L_h_common")
lab("L_h_pub")
a("s_barrier")
for i in range(1, 4):
    a(f"ds_read_b128 {vr(40+4*i,4)}, v15 offset:{1024*i}")
a("s_nop 1")
a("s_waitcnt lgkmcnt(0)")
a("v_pk_add_f32 v[40:41], v[40:41], v[44:45]")
a("v_pk_add_f32 v[42:43], v[42:43], v[46:47]")
a("v_pk_add_f32 v[48:49], v[48:49], v[52:53]")
a("v_pk_add_f32 v[50:51], v[50:51], v[54:55]")
a("v_pk_add_f32 v[40:41], v[40:41], v[48:49]")
a("v_pk_add_f32 v[42:43], v[42:43], v[50:51]")
a("v_cvt_pk_bf16_f32 v40, v40, v41")
a("v_cvt_pk_bf16_f32 v41, v42, v43")
a(f"buffer_store_dwordx2 v[40:41], v16, {sr(R_WS,4)}, s{sT5} offen sc1")
dstamp("p", 5)
a("s_branch L_h_common")
sec("HQ")
lab("L_h_common")
if "3" in SX: spx("x", 0, 15)
a(f"s_mov_b32 s{sSYNC}, 0")
a("v_and_b32 v17, 31, v0")
a("v_lshrrev_b32 v18, 5, v0")
p0, p1, p2, vDSK = 60, 61, 62, 63
cm("Q projection addresses")
QXA = list(range(48, 56))
a(f"s_lshr_b32 s{sT0}, s{sWV}, 1")
a(f"s_lshl_b32 s{sT0}, s{sT0}, 13")
a("v_xor_b32 v34, v13, v18")
a("v_lshlrev_b32 v34, 4, v34")
a("v_lshl_add_u32 v34, v17, 8, v34")
a(f"v_add_u32 v{QXA[0]}, s{sT0}, v34")
for ks in range(1, 8):
    a(f"v_xor_b32 v{QXA[ks]}, {32*ks}, v{QXA[0]}")
wtr_addr(vWT, 9, L_R1, 34)
a(f"v_lshl_add_u32 v56, v18, 9, v{vWT}")
a(f"v_add_u32 v56, {(L_WQ - L_R1) & 0xffffffff}, v56")
a(f"s_and_b32 s{sT1}, s{sWV}, 1")
a(f"s_lshl_b32 s{sT1}, s{sT1}, 12")
a(f"s_lshr_b32 s{sT2}, s{sWV}, 1")
a(f"s_lshl_b32 s{sT2}, s{sT2}, 10")
a(f"s_add_u32 s{sT1}, s{sT1}, s{sT2}")
a(f"s_add_u32 s{sT1}, s{sT1}, {L_QF}")
a(f"v_add_u32 v57, s{sT1}, v6")
a(f"v_mov_b32 v58, {f32(0.25 * LOG2E)}")
a("v_mov_b32 v59, v58")
cm("SSM offsets and addresses")
a(f"s_mov_b32 s{R_A}, s{P_BX}")
a(f"s_and_b32 s{R_A+1}, s{P_BX+1}, 0xffff")
srd(R_B, P_BRE, 512 * 1024)
srd(R_C, P_BIM, 512 * 1024)
a(f"s_mov_b32 s{sLO}, {f32(L_LO)}")
a(f"s_mov_b32 s{sHI}, {f32(L_HI)}")
a(f"s_lshl_b32 s{sT0}, s{sC}, 17")
a(f"s_lshl_b32 s{sT1}, s{sWV}, 15")
a(f"s_add_u32 s{sT3}, s{sT0}, s{sT1}")
a(f"s_lshr_b32 s{sT0}, s{sWV}, 1")
a(f"s_lshl1_add_u32 s{sYG}, s{sRB}, s{sT0}")
if YM:
    a(f"s_and_b32 s{sYY}, s{sRB}, 24")
    a(f"s_add_u32 s{sYY}, s{sYY}, s{sG}")
    a(f"s_lshl1_add_u32 s{sYY}, s{sYY}, s{sT0}")
else:
    a(f"s_mov_b32 s{sYY}, s{sYG}")
a(f"s_and_b32 s{sT0}, s{sWV}, 1")
a(f"s_lshl1_add_u32 s{sCG}, s{sGY}, s{sT0}")
a(f"s_lshl_b32 s{sT4}, s{sYY}, 15")
a(f"s_lshl_b32 s{sT2}, s{sCG}, 6")
a(f"s_add_u32 s{sT4}, s{sT4}, s{sT2}")
wo_voff(vWO, 34)
a("v_lshrrev_b32 v36, 2, v0")
a("v_and_b32 v34, 3, v36")
a("v_bfe_u32 v35, v36, 2, 1")
a("v_lshl_add_u32 v34, v35, 4, v34")
a("v_lshrrev_b32 v35, 3, v36")
a("v_lshl_add_u32 v34, v35, 2, v34")
a("v_and_b32 v37, 3, v0")
a("v_lshlrev_b32 v35, 4, v37")
a("v_lshl_add_u32 v8, v34, 10, v35")
a("v_add_u32 v9, 8192, v8")
a(f"v_mul_u32_u24 v{vRB}, {RSTR}, v17")
a(f"v_lshl_add_u32 v{vRB}, v18, 4, v{vRB}")
a(f"v_add_u32 v{vRB}, {L_R1}, v{vRB}")
a(f"s_lshl_b32 s{sT1}, s{sWV}, 11")
a(f"s_add_u32 s{sT1}, s{sT1}, {L_SCR}")
a("v_xor_b32 v34, v12, v37")
a("v_lshlrev_b32 v34, 4, v34")
a("v_lshl_add_u32 v34, v36, 6, v34")
a(f"v_add_u32 v10, s{sT1}, v34")
a("v_bfe_u32 v34, v0, 2, 2")
a("v_xor_b32 v35, v34, v18")
a("v_lshlrev_b32 v35, 4, v35")
a("v_lshl_add_u32 v35, v17, 6, v35")
a(f"v_add_u32 v11, s{sT1}, v35")
a("v_xor_b32 v12, 32, v11")
a("v_lshl_add_u32 v34, v18, 3, v34")
a("v_lshlrev_b32 v34, 6, v34")
a("v_bfe_u32 v35, v0, 4, 1")
a("v_lshl_add_u32 v34, v35, 5, v34")
a("v_lshl_add_u32 v34, v37, 3, v34")
a(f"v_add_u32 v19, s{sT1}, v34")
a("v_lshlrev_b32 v34, 6, v17")
a("v_lshl_add_u32 v34, v18, 5, v34")
a(f"v_add_u32 v16, s{sT1}, v34")
a("v_lshlrev_b32 v38, 4, v18")
a("v_lshl_add_u32 v29, v17, 10, v38")
a("v_lshlrev_b32 v14, 4, v17")
a("s_waitcnt vmcnt(1)")
a(f"s_cmp_eq_u32 s{sWV}, 0")
a("s_cbranch_scc1 L_h_pw")
a("s_waitcnt vmcnt(0)")
lab("L_h_pw")
FPOS = int(OPT.get("fpos", 1))
def kvflag():
    a("s_waitcnt vmcnt(0)")
    a(f"s_cmp_eq_u32 s{sWV}, 0")
    a("s_cbranch_scc0 L_h_nopub")
    a(f"s_getreg_b32 s{sT0}, hwreg(HW_REG_XCC_ID, 0, 4)")
    a(f"s_xor_b32 s{sT0}, s{sT0}, s{sTAG}")
    a("v_mov_b32 v34, 0")
    a(f"v_mov_b32 v35, s{sT0}")
    a("s_mov_b64 exec, 1")
    a(f"buffer_store_dword v35, v34, {sr(R_WS,4)}, s{sT6} offen sc1")
    a("s_mov_b64 exec, -1")
    stamp(2)
    lab("L_h_nopub")
if FPOS == 0: kvflag()
cm("SSM parameters")
q0, q1, q2, q3, q4 = 64, 65, 66, 67, 68
a(f"v_lshlrev_b32 v{p0}, 16, v{p0}")
a(f"v_lshlrev_b32 v{p1}, 16, v{p1}")
a(f"v_lshlrev_b32 v{p2}, 16, v{p2}")
a(f"v_mul_f32 v{p2}, {f32(LOG2E)}, v{p2}")
a(f"v_exp_f32 v{p2}, v{p2}")
a("s_nop 0")
a(f"v_cvt_pk_bf16_f32 v{p2}, v{p2}, v{p2}")
a(f"v_and_b32 v{p2}, 0xffff0000, v{p2}")
a(f"v_mul_f32 v{q0}, v{p2}, v{p0}")
a(f"v_mul_f32 v{q1}, v{p2}, v{p1}")
a(f"v_mul_f32 v{q0}, {f32(LOG2E)}, v{q0}")
a(f"v_mul_f32 v{q1}, {f32(1/(2*math.pi))}, v{q1}")
a(f"v_exp_f32 v{q0}, v{q0}")
a(f"v_rndne_f32 v{q2}, v{q1}")
a(f"v_sub_f32 v{q1}, v{q1}, v{q2}")
a(f"v_cos_f32 v{q2}, v{q1}")
a(f"v_sin_f32 v{q3}, v{q1}")
a(f"v_mul_f32 v{q4}, v{p0}, v{p0}")
a(f"v_fma_f32 v{q4}, v{p1}, v{p1}, v{q4}")
a(f"v_mul_f32 v{vL}, v{q0}, v{q2}")
a(f"v_mul_f32 v{vL+1}, v{q0}, v{q3}")
a(f"v_rcp_f32 v{q4}, v{q4}")
a(f"v_add_f32 v{q2}, -1.0, v{vL}")
a(f"v_add_f32 v{q4}, v{q4}, v{q4}")
a(f"v_mul_f32 v{q0}, v{q2}, v{p0}")
a(f"v_fma_f32 v{q0}, v{vL+1}, v{p1}, v{q0}")
a(f"v_mul_f32 v{q1}, v{vL+1}, v{p0}")
a(f"v_fma_f32 v{q1}, -v{q2}, v{p1}, v{q1}")
a(f"v_mul_f32 v{vCO}, v{q0}, v{q4}")
a(f"v_mul_f32 v{vCO+1}, v{q1}, v{q4}")
cmul(70, vL, vL); cmul(72, 70, 70); cmul(vL8, 72, 72); cmul(vL16_, vL8, vL8)
cm("skip term x*D via a diagonal B operand -> YACC")
YACC = 112
a("v_and_b32 v64, 1, v0")
a("v_lshlrev_b32 v64, 4, v64")
a(f"v_lshlrev_b32 v{vDSK}, v64, v{vDSK}")
a("v_lshrrev_b32 v64, 1, v17")
a("v_lshlrev_b32 v65, 2, v18")
a("v_sub_u32 v64, v64, v65")
for i in range(0, 8, 2):
    a(f"v_cmp_eq_u32 s[{sM}:{sM+1}], {8*(i//4) + i%4}, v64")
    a(f"v_cmp_eq_u32 vcc, {8*(i//4) + i%4 + 1}, v64")
    a("s_nop 0")
    a(f"v_cndmask_b32 v{104+i}, 0, v{vDSK}, s[{sM}:{sM+1}]")
    a(f"v_cndmask_b32 v{105+i}, 0, v{vDSK}, vcc")
if FPOS == 1: kvflag()
cm("per-lane powers: PS = L16^seg, M0 = L256^seg (if valid), M1 = M0*L128 (if valid)")
vPS, vM0, vM1, vO0, vO1 = 96, 98, 100, 102, 103
a(f"s_mov_b32 s{sM}, 0")
a(f"s_mov_b32 s{sM+1}, -1")
def powsel(dst, b1, b2, b4):
    a(f"v_cndmask_b32 v{dst}, 1.0, v{b1}, s[{sM}:{sM+1}]")
    a(f"v_cndmask_b32 v{dst+1}, 0, v{b1+1}, s[{sM}:{sM+1}]")
    for bit, b in ((0, b2), (1, b4)):
        L = uid("ps")
        a(f"s_bitcmp1_b32 s{sWV}, {bit}")
        a(f"s_cbranch_scc0 {L}")
        cmul(66, dst, b)
        a(f"v_mov_b64 {vr(dst,2)}, v[66:67]")
        lab(L)
cmul(68, vL16_, vL16_); cmul(70, 68, 68); cmul(72, 70, 70)
cmul(74, 72, 72); cmul(76, 74, 74); cmul(78, 76, 76)
powsel(vPS, vL16_, 68, 70)
powsel(vM0, 74, 76, 78)
cmul(vM1, vM0, 72)
a(f"s_lshl_b32 s{sT0}, s{sWV}, 2")
a(f"s_sub_u32 s{sT0}, s{sC}, s{sT0}")
a(f"s_sub_u32 s{sT0}, s{sT0}, 1")
a("v_lshlrev_b32 v30, 1, v18")
a(f"v_sub_u32 v{vO0}, s{sT0}, v30")
a(f"v_add_u32 v{vO1}, -1, v{vO0}")
a(f"v_mov_b32 v30, 0")
for (vo, vm) in ((vO0, vM0), (vO1, vM1)):
    a(f"v_cmp_le_i32 vcc, 0, v{vo}")
    a("s_nop 1")
    a(f"v_cndmask_b32 v{vo}, v30, v{vo}, vcc")
    a(f"v_cndmask_b32 v{vm}, 0, v{vm}, vcc")
    a(f"v_cndmask_b32 v{vm+1}, 0, v{vm+1}, vcc")
    a(f"v_lshl_add_u32 v{vo}, v{vo}, 9, v14")
if FPOS == 2: kvflag()
cm("Q projection")
ACC, QD = 32, 4
XR = 128
VM, LG = Cnt(), Cnt()
xq = [(j, h) for j in range(16) for h in range(2)]
def xb1():
    j, h = xq.pop(0)
    a(f"buffer_load_dwordx4 {vr(XR+8*j+4*h,4)}, v{8+h}, {sr(R_A,4)}, s{16+j//4} offen offset:{64*(j%4)}")
    VM.issue(("x", j))
def qs(ks): return 128 + 8 * (ks % 8)
def qread(ks):
    a(f"ds_read_b64_tr_b16 {vr(qs(ks),2)}, v56 offset:{2048*ks}")
    a(f"ds_read_b64_tr_b16 {vr(qs(ks)+2,2)}, v56 offset:{2048*ks+512}")
    a(f"ds_read_b128 {vr(qs(ks)+4,4)}, v{QXA[ks % 8]} offset:{16384*(ks//8)}")
def qm(ks): mfma32(ACC, qs(ks), qs(ks) + 4, "0" if ks == 0 else None)
DR = [int(x) for x in OPT.get("drain", "").split(",") if x]
sec("Z"); sec("HQ")
if "3" in SX: a("s_waitcnt lgkmcnt(0)")
a("s_barrier")
segs = []
k0 = 0
for k1 in DR + [32]:
    segs.append((k0, k1)); k0 = k1
for (k0, k1) in segs:
    if k0: a("s_barrier")
    for ks in range(k0, k0 + QD): qread(ks)
    for ks in range(k0, k1):
        if ks + QD < k1:
            if ks + QD in ((8, 16, 24) if B0 else (16, 24)): a("s_barrier")
            qread(ks + QD)
            a(f"s_waitcnt lgkmcnt(12)")
        else:
            a(f"s_waitcnt lgkmcnt({3*(k1-1-ks)})")
        qm(ks)
a(f"s_lshl_b32 s{sT0}, s{sWV}, 9")
a(f"s_add_u32 s{sT0}, s{sT0}, {L_ES}")
a("v_lshlrev_b32 v13, 3, v0")
a(f"v_add_u32 v13, s{sT0}, v13")
a("v_lshlrev_b32 v15, 3, v17")
a(f"v_add_u32 v15, {L_ES}, v15")
a("v_lshlrev_b32 v1, 2, v17")
a("v_lshl_add_u32 v1, v18, 14, v1")
a(f"s_lshl_b32 s{sT0}, s{sPB}, 15")
a(f"s_lshl_b32 s{sT1}, s{sWV}, 13")
a(f"s_add_u32 s{sT5}, s{sT0}, s{sT1}")
a(f"s_add_u32 s{sT6}, s{sT5}, 4096")
a(f"s_and_b32 s{sT0}, s{sRB}, 3")
a(f"s_lshl2_add_u32 s{sT1}, s{sT0}, s{sWV}")
a(f"s_lshl_b32 s{sT1}, s{sT1}, 15")
a(f"s_lshl_b32 s{sT2}, s{sG}, 7")
a(f"s_add_u32 s{sT1}, s{sT1}, s{sT2}")
a("v_lshlrev_b32 v18, 10, v17")
a(f"v_add_u32 v18, s{sT1}, v18")
if YM:
    a(f"s_lshl3_add_u32 s{sT0}, s{sGY}, s{sG}")
    a(f"s_lshl_b32 s{sT0}, s{sT0}, 13")
    a(f"s_and_b32 s{sT1}, s{sWV}, 1")
    a(f"s_lshl_b32 s{sT1}, s{sT1}, 12")
    a(f"s_add_u32 s{sT0}, s{sT0}, s{sT1}")
    a("v_lshlrev_b32 v17, 7, v17")
else:
    a(f"s_lshl2_add_u32 s{sT0}, s{sG}, s{sT0}")
    a(f"s_lshl_b32 s{sT0}, s{sT0}, 14")
    a(f"s_and_b32 s{sT1}, s{sWV}, 1")
    a(f"s_lshl_b32 s{sT1}, s{sT1}, 13")
    a(f"s_add_u32 s{sT0}, s{sT0}, s{sT1}")
    a("v_lshlrev_b32 v17, 7, v0")
a(f"v_add_u32 v17, s{sT0}, v17")
a(f"s_cmp_lt_u32 s{sWV}, 2")
a(f"s_cselect_b32 s{sPC}, s{P_CRE}, s{P_CIM}")
a(f"s_cselect_b32 s{sPC+1}, s{P_CRE+1}, s{P_CIM+1}")
a(f"s_and_b32 s{sT0}, s{sWV}, 1")
a(f"s_mul_i32 s{sT0}, s{sT0}, {32*RSTR}")
a(f"v_add_u32 v28, s{sT0}, v{vRB}")
for r in range(0, 16, 2):
    a(f"v_pk_mul_f32 {vr(ACC+r,2)}, {vr(ACC+r,2)}, v[58:59]")
for j in range(8):
    a(f"v_cvt_pk_bf16_f32 v{ACC+j}, v{ACC+2*j}, v{ACC+2*j+1}")
a(f"ds_write_b128 v57, {vr(ACC,4)}")
a(f"ds_write_b128 v57, {vr(ACC+4,4)} offset:2048")
cm("B tile: 4 k-slots of [64 rows x 256B], xor-swizzled; read addresses v112..119, dma voffset v120")
BA = 112
a("v_lshrrev_b32 v121, 4, v0")
a("v_and_b32 v122, 15, v0")
a(f"v_lshl_add_u32 v121, s{sWV}, 2, v121")
a("v_xor_b32 v123, v122, v121")
a("v_lshlrev_b32 v123, 4, v123")
a("v_lshl_add_u32 v120, v121, 10, v123")
a(f"s_lshr_b32 s{sT0}, s{sWV}, 1")
a(f"s_lshl_b32 s{sT0}, s{sT0}, 13")
a(f"s_sub_u32 s{sT0}, {L_R1}, s{sT0}")
for ks in range(8):
    a(f"v_add_u32 v{BA+ks}, s{sT0}, v{QXA[ks]}")
a(f"s_lshl_b32 s{sT5}, s{sPB}, 15")
a(f"s_lshl_b32 s{sT6}, s{sWV}, 10")
UR = OPT.get("urot", "2")
if UR == "0": a(f"s_mov_b32 s{sT0}, 0")
elif UR == "1": a(f"s_add_u32 s{sT0}, s{sC}, s{sPB}")
elif UR == "2": a(f"s_lshr_b32 s{sT0}, s2, 1")
elif UR == "3": a(f"s_mov_b32 s{sT0}, s2")
for sl in range(4):
    a(f"s_add_u32 s{sT1}, s{sT0}, {sl}")
    a(f"s_and_b32 s{sT1}, s{sT1}, 3")
    a(f"s_lshl_b32 s{sT1}, s{sT1}, 8")
    a(f"s_add_u32 s{16+sl}, s{sT3}, s{sT1}")
    a(f"s_add_u32 s{20+sl}, s{sT5}, s{sT1}")
a("s_waitcnt lgkmcnt(0)")
stamp(3)
a("s_barrier")
a("s_branch L_h2")
sec("H")
lab("L_h2")
a("s_setprio 2")
def rows_dma(tag, base=sT5, ore=0, oim=0):
    a(f"s_mul_i32 s{sT1}, s{sWV}, {8*RSTR}")
    for i in range(8):
        a(f"s_add_u32 m0, s{sT1}, {L_R1 + RSTR*i}")
        a(f"s_add_u32 s{sT2}, s{base}, {1024*i + ore}")
        dma(vL4, R_B, f"s{sT2}")
        a(f"s_add_u32 m0, s{sT1}, {L_R1 + RSTR*(32+i)}")
        a(f"s_add_u32 s{sT2}, s{base}, {1024*i + oim}")
        dma(vL4, R_C, f"s{sT2}")
    VM.issue(tag, 16)
def xw(j, h):
    if h == 0: waits(vm=VM.need(("x", j)))
    a(f"ds_write_b128 v10, {vr(XR+8*j+4*h,4)}" + (" offset:1024" if h else ""))
    LG.issue(("xw", j))
def xr(j):
    a(f"ds_read_b128 {vr(XR+8*j,4)}, v11")
    a(f"ds_read_b128 {vr(XR+8*j+4,4)}, v12")
    LG.issue(("x", j), 2)
if "4" in SX:
    spx("x", 15, 17); spx("r", 14, 2); spx("i", 14, 2)
if "5" in SX:
    spx("r", 0, 16); spx("i", 0, 16)
if "6" in SX:
    spx("x", 0, 32); spx("r", 14, 2); spx("i", 14, 2)
if "a" in SU: spf([(P_BRE, 4, 0, 4), (P_BIM, 4, 0, 4), (P_BX, 16, 14, 2)])
if "b" in SU: spf([(P_BX, 16, 6, 10)])
if "c" in SU: spf([(P_BRE, 4, 0, 4), (P_BIM, 4, 0, 4), (P_BX, 16, 0, 16)])
if "d" in SU: spf([(P_CRE, 4, 0, 4), (P_CIM, 4, 0, 4), (P_WO, 4, 0, 4)])
waitc(vCNT, C_A4, 4, 30, sleep=int(OPT.get("a4sl", 1)))
a(f"ds_read_b32 v30, v{vCNT} offset:{C_MODE}")
if EP0: a(f"ds_read_b32 v121, v{vCNT} offset:{C_TAG}")
a("s_setprio 0")
cm("U = x B^T")
XL = int(OPT.get("xl", 2))
def bdma(sl, m):
    a(f"s_add_u32 m0, s{sT6}, {L_R1 + 16384*sl + 4096*m}")
    a(f"s_add_u32 s{sT2}, s{20+sl}, {16384*(m%2)}")
    dma(120, R_B if m < 2 else R_C, f"s{sT2}")
    if sl == 0 and OPT.get("bp") == "1": pace()
    VM.issue(("B", sl))
lq = []
for it in OPT.get("uord", "B0,0,1,2,3,B1,4,5,6,7,B2,8,9,10,11,B3,12,13,14,15").split(","):
    lq += [("B", int(it[1]), m) for m in range(4)] if it[0] == "B" else [("x",), ("x",)]
if OPT.get("mix", "1") == "1":
    for sl in range(1, 4):
        i = lq.index(("B", sl, 0))
        xs, bs_ = lq[i-4:i], lq[i:i+4]
        lq[i-4:i+4] = [y for p in zip(xs, bs_) for y in p]
def ld1(n=1):
    for _ in range(n):
        if not lq: return
        it = lq.pop(0)
        if it[0] == "B": bdma(it[1], it[2])
        else: xb1()
CB = [C_H0, C_H1, C_H2, C_H3]
sigd = set()
def bsig(force=None):
    for sl in range(4):
        issued = not any(it[:2] == ("B", sl) for it in lq)
        if sl in sigd or not issued: continue
        if sl == force: waits(vm=VM.need(("B", sl)))
        if ("B", sl) not in VM.q:
            signal(vCNT, vONE, CB[sl]); LG.issue("sig"); sigd.add(sl)
ld1(int(OPT.get("u0", 12)))
bsig(0)
ld1(int(OPT.get("u1", 4)))
for j in range(XL): xw(j, 0); xw(j, 1); xr(j)
a("s_setprio 2")
a(f"v_readfirstlane_b32 s{sMODE}, v30") if False else None
waitc(vCNT, CB[0], 4, 31)
a(f"v_readfirstlane_b32 s{sMODE}, v30")
if EP0: a(f"v_readfirstlane_b32 s{sTAG}, v121")
LG.q = []
stamp(4)
UPRIO = int(OPT.get("uprio", 0)); YPRIO = int(OPT.get("yprio", 0))
a(f"s_setprio {UPRIO}")
AR, AI, BR = 32, 48, 64
def bread(k):
    s = BR + 8 * (k % 4)
    a(f"ds_read_b128 {vr(s,4)}, v{BA + k % 8} offset:{16384*(k//8)}")
    a(f"ds_read_b128 {vr(s+4,4)}, v{BA + k % 8} offset:{16384*(k//8) + 8192}")
    LG.issue(("b", k), 2)
WOL = int(OPT.get("wol", 0))
PF = [(17, sPC)] + ([] if WOL else [(18, P_WO)])
PFK = int(OPT.get("pfk", 19))
PTK = int(OPT.get("ptk", 27))
CPOS = 0
for k in range(3): bread(k)
for k in range(32):
    j = k // 2; jn = j + XL
    tr = jn < 16
    n1 = LG.need(("x", j)); n2 = LG.need(("b", k))
    waits(lg=n2 if n2 is not None else n1)
    s = BR + 8 * (k % 4)
    first = "0" if k == 0 else None
    mfma32(AR, XR + 4*k, s, first)
    if k % 8 == 2 and k < 24: bsig(k // 8 + 1)
    if k % 8 == 4 and k < 24:
        a(f"ds_read_b32 v31, v{vCNT} offset:{CB[k//8+1]}"); LG.issue("cb")
    if k % 8 == 5 and k < 24:
        waits(lg=LG.need("cb"))
        a("s_setprio 2")
        a("v_cmp_gt_u32 vcc, 4, v31")
        Lk = uid("bk")
        a(f"s_cbranch_vccz {Lk}")
        waitc(vCNT, CB[k//8+1], 4, 31)
        lab(Lk)
        a(f"s_setprio {UPRIO}")
    if k + 3 < 32: bread(k + 3)
    ld1(int(OPT.get("lpk", 1)))
    if PF and k >= PFK and k % 2 == 1:
        v, p = PF.pop(0)
        a(f"global_load_dword v{136+len(PF)}, v{v}, s[{p}:{p+1}]"); VM.issue("pf")
    if k == PTK:
        cm("local mode: make the lines this wave / its attention partner will hand over valid in L2")
        a(f"s_cmp_eq_u32 s{sMODE}, 1")
        a("s_cbranch_scc0 L_h_nopt")
        def touch(soff, n):
            for i in range(n):
                a(f"buffer_load_dwordx4 v[144:147], v{vL4}, {sr(R_WS,4)}, s{soff} offen offset:{1024*i} sc1")
        def touchf(soff):
            a("s_mov_b64 exec, 0xff")
            touch(soff, 1)
            a("s_mov_b64 exec, -1")
        if "h" in LOC:
            a(f"s_lshl2_add_u32 s{sT0}, s{sC}, s{sWV}")
            a(f"s_lshl_b32 s{sT1}, s{sT0}, 5")
            a(f"s_add_u32 s{sT1}, s{sT1}, s{sPB}")
            a(f"s_lshl_b32 s{sT1}, s{sT1}, 11")
            a(f"s_add_u32 s{sT1}, s{sT1}, {WS_H}")
            touch(sT1, 2)
            a(f"s_add_u32 s{sT1}, s{sT1}, 32768")
            touch(sT1, 2)
            a(f"s_lshl4_add_u32 s{sT0}, s{sT0}, s{sPB}")
            a(f"s_lshl_b32 s{sT0}, s{sT0}, 7")
            a(f"s_add_u32 s{sT0}, s{sT0}, {WS_FH}")
            touchf(sT0)
        for kind, off in (("o", 0), ("t", 4)):
            if kind in LOC:
                a(f"s_add_u32 s{sSTEP}, s{sWV}, {off}")
                o_offsets()
                touch(sT1, 1); touchf(sT0)
        lab("L_h_nopt")
    if k == 28:
        a(f"buffer_load_dwordx4 v[128:131], v29, {sr(R_A,4)}, s{sT4} offen")
        a(f"buffer_load_dwordx4 v[132:135], v29, {sr(R_A,4)}, s{sT4} offen offset:32")
        VM.issue("skip", 2)
    mfma32(AI, XR + 4*k, s + 4, first)
    ld1()
    if tr:
        assert not any(q[0] == jn for q in xq)
        xw(jn, k % 2)
        if k % 2: xr(jn)
    bsig()
assert len(sigd) == 4 and not lq
assert not PF
a("s_setprio 2")
srd(R_B, P_CRE, 512 * 1024)
srd(R_C, P_CIM, 512 * 1024)
srd(R_A, P_WO, 512 * 1024)
if CPOS:
    a(f"s_add_u32 s{sSYNC}, s{sSYNC}, 4")
    signal(vCNT, vONE, C_GH)
a(f"s_lshl_b32 s{sT3}, s{sGY}, 16")
a(f"s_lshl_b32 s{sT1}, s{sWV}, 13")
a(f"s_add_u32 s{sT3}, s{sT3}, s{sT1}")
a(f"s_mul_i32 s{sT1}, s{sWV}, {8*RSTR}")
def row1(n, base, ore, oim):
    i, part = n // 2, n % 2
    a(f"s_add_u32 m0, s{sT1}, {L_R1 + RSTR*(32*part+i)}")
    a(f"s_add_u32 s{sT2}, s{base}, {1024*i + (oim if part else ore)}")
    dma(vL4, R_C if part else R_B, f"s{sT2}")
stamp(5)
cm("scale by coef into pair layout, local scan")
UP = 64
G0, G1 = 30, 8
def sc1(r): a(f"v_pk_mul_f32 {vr(UP+2*r,2)}, {vr(vCO,2)}, {vr(AR+(r&~1),2)} op_sel:[0,{r&1}] op_sel_hi:[1,{r&1}]")
def sc2(r): a(f"v_pk_fma_f32 {vr(UP+2*r,2)}, {vr(vCO,2)}, {vr(AI+(r&~1),2)}, {vr(UP+2*r,2)} op_sel:[1,{r&1},0] op_sel_hi:[0,{r&1},1] neg_lo:[1,0,0]")
def c1(dst, L, g, u): a(f"v_pk_fma_f32 {vr(dst,2)}, {vr(L,2)}, {vr(g,2)}, {vr(u,2)} op_sel:[0,0,0] op_sel_hi:[0,1,1]")
def c2(dst, L, g): a(f"v_pk_fma_f32 {vr(dst,2)}, {vr(L,2)}, {vr(g,2)}, {vr(dst,2)} op_sel:[1,1,0] op_sel_hi:[1,0,1] neg_lo:[1,0,0]")
sc1(0); sc1(1); sc1(2); sc2(0); sc2(1); sc2(2)
src = UP
for r in range(1, 16):
    dst = G0 if r % 2 else G1
    if r == 8 and CPOS: waitc(vCNT, C_GH, f"s{sSYNC}", 8)
    c1(dst, vL, src, UP + 2*r)
    if r < 14: sc1(r + 2)
    if r >= 8 and CPOS: row1(2*(r-8), sT3, 32768, 0)
    c2(dst, vL, src)
    if r < 14: sc2(r + 2)
    if r >= 8 and CPOS: row1(2*(r-8) + 1, sT3, 32768, 0)
    src = dst
a(f"ds_write_b64 v13, {vr(G0,2)}")
gsync(vCNT, vONE, 32, C_GH)
stamp(6)
ESR = 32
for s in range(8):
    a(f"ds_read_b64 {vr(ESR+2*s,2)}, v15 offset:{256*s}")
a(f"s_lshl_b32 s{sT6}, s{sPB}, 13")
a(f"s_add_u32 s{sT6}, s{sT6}, {WS_ST}")
a(f"s_lshl_b32 s{sT0}, s{sC}, 9")
a(f"s_add_u32 s{sT0}, s{sT0}, s{sT6}")
a(f"v_mov_b64 {vr(G0,2)}, 0")
a(f"s_mov_b32 s{sCNT}, {POLL_LIMIT}")
a("s_waitcnt lgkmcnt(0)")
a(f"v_mov_b64 {vr(G1,2)}, {vr(ESR,2)}")
for w in range(4):
    if w: cmul_add(G1, vL16_, G0, ESR + 4*w)
    if w < 3:
        a(f"s_cmp_eq_u32 s{sWV}, {w}")
        a("s_cbranch_scc1 L_h_segdone")
        cmul_add(G0, vL16_, G1, ESR + 4*w + 2)
cmul_add(48, vL16_, G1, ESR + 14)
a(f"v_mov_b32 v50, v49")
a(f"v_mov_b32 v49, s{sTAG}")
a(f"v_mov_b32 v51, s{sTAG}")
a("s_mov_b32 exec_hi, 0")
a(f"buffer_store_dwordx4 v[48:51], v14, {sr(R_WS,4)}, s{sT0} offen sc1")
a("s_mov_b64 exec, -1")
lab("L_h_segdone")
a(f"s_mov_b32 s{sM}, 0")
a(f"s_mov_b32 s{sM+1}, -1")
a(f"v_cndmask_b32 v{G0}, v{G0}, v{G1}, s[{sM}:{sM+1}]")
a(f"v_cndmask_b32 v{G0+1}, v{G0+1}, v{G1+1}, s[{sM}:{sM+1}]")
if not CPOS:
    for n in range(16): row1(n, sT3, 32768, 0); pace()
stamp(7)
cm("chunk carry: each lane gathers two predecessors' end states")
a(f"v_mov_b64 {vr(G1,2)}, 0")
a(f"s_cmp_eq_u32 s{sC}, 0")
a("s_cbranch_scc1 L_h_stskip")
lab("L_h_stpoll")
a(f"buffer_load_dwordx4 v[52:55], v{vO0}, {sr(R_WS,4)}, s{sT6} offen sc1")
a(f"buffer_load_dwordx4 v[56:59], v{vO1}, {sr(R_WS,4)}, s{sT6} offen sc1")
a("s_waitcnt vmcnt(0)")
a(f"v_cmp_ne_u32 vcc, s{sTAG}, v53")
a(f"v_cmp_ne_u32 s[{sM}:{sM+1}], s{sTAG}, v55")
a(f"s_or_b64 s[{sM}:{sM+1}], s[{sM}:{sM+1}], vcc")
a(f"v_cmp_ne_u32 vcc, s{sTAG}, v57")
a(f"s_or_b64 s[{sM}:{sM+1}], s[{sM}:{sM+1}], vcc")
a(f"v_cmp_ne_u32 vcc, s{sTAG}, v59")
a(f"s_or_b64 s[{sM}:{sM+1}], s[{sM}:{sM+1}], vcc")
a("s_cbranch_scc0 L_h_stok")
a(f"s_sub_u32 s{sCNT}, s{sCNT}, 1")
a("s_cbranch_scc0 L_h_stpoll")
lab("L_h_stok")
a(f"v_pk_mul_f32 {vr(G1,2)}, {vr(vM0,2)}, v[52:53] op_sel:[0,0] op_sel_hi:[1,0]")
a(f"v_pk_mul_f32 v[60:61], {vr(vM1,2)}, v[56:57] op_sel:[0,0] op_sel_hi:[1,0]")
a(f"v_pk_fma_f32 {vr(G1,2)}, {vr(vM0,2)}, v[54:55], {vr(G1,2)} op_sel:[1,0,0] op_sel_hi:[0,0,1] neg_lo:[1,0,0]")
a(f"v_pk_fma_f32 v[60:61], {vr(vM1,2)}, v[58:59], v[60:61] op_sel:[1,0,0] op_sel_hi:[0,0,1] neg_lo:[1,0,0]")
a(f"v_pk_add_f32 {vr(G1,2)}, {vr(G1,2)}, v[60:61]")
lab("L_h_stskip")
a(f"ds_write_b64 v13, {vr(G1,2)} offset:{L_CS - L_ES}")
a("s_waitcnt vmcnt(0)")
mfma32(YACC, 128, 104, "0")
mfma32(YACC, 132, 108)
if WOL == 1: a(f"global_load_dword v10, v18, s[{P_WO}:{P_WO+1}]")
gsync(vCNT, vONE, 32, C_GH)
for s in range(8):
    a(f"ds_read_b64 {vr(32+2*s,2)}, v15 offset:{L_CS - L_ES + 256*s}")
a(f"s_lshl_b32 s{sT0}, s{sC}, 2")
a(f"s_add_u32 s{sT0}, s{sT0}, s{sWV}")
a(f"s_lshl_b32 s{sT4}, s{sT0}, 16")
a(f"s_add_u32 s{sT4}, s{sT4}, {WS_H}")
a(f"s_lshl_b32 s{sT1}, s{sPB}, 11")
a(f"s_add_u32 s{sT1}, s{sT1}, s{sT4}")
a(f"s_add_u32 s{sT2}, s{sT1}, 32768")
a(f"s_lshl_b32 s{sT0}, s{sT0}, 11")
a(f"s_add_u32 s{sT5}, s{sT0}, {WS_FH}")
a(f"s_lshl_b32 s{sT0}, s{sPB}, 7")
a(f"s_add_u32 s{sF1}, s{sT0}, s{sT5}")
a("s_waitcnt lgkmcnt(0)")
stamp(8)
for st in (8, 4, 2):
    for j in range(0, st, 2):
        a(f"v_pk_add_f32 {vr(32+j,2)}, {vr(32+j,2)}, {vr(32+j+st,2)}")
cmul_add(G0, vPS, 32, G0)
HB = 32
cmul_add(UP, vL, G0, UP)
for r in range(1, 16):
    cmul_add(UP + 2*r, vL, UP + 2*(r-1), UP + 2*r)
for part in range(2):
    ng = "-" if part else ""
    for j in range(8):
        a(f"v_cvt_pk_bf16_f32 v{HB+8*part+j}, {ng}v{UP+4*j+part}, {ng}v{UP+4*j+2+part}")
    a(f"ds_write_b128 v16, {vr(HB+8*part,4)}")
    a(f"ds_write_b128 v16, {vr(HB+4+8*part,4)} offset:16")
    for ks in range(2):
        d = 48 + 8*part + 4*ks
        a(f"ds_read_b64_tr_b16 {vr(d,2)}, v19 offset:{1024*ks}")
        a(f"ds_read_b64_tr_b16 {vr(d+2,2)}, v19 offset:{1024*ks+256}")
KIND[0] = "h"
a(f"v_lshlrev_b32 v24, 2, v0")
a(f"v_mov_b32 v25, s{sTAG}")
def flag_novalu(soff):
    a("s_mov_b32 exec_hi, 0")
    st2([f"buffer_store_dword v25, v24, {sr(R_WS,4)}, s{soff} offen@"])
    a("s_mov_b64 exec, -1")
a("s_waitcnt lgkmcnt(0)")
st2([f"buffer_store_dwordx4 {vr(48+8*part+4*ks,4)}, v{vL4}, {sr(R_WS,4)}, s{sT1 if part == 0 else sT2} offen offset:{1024*ks}@" for part in range(2) for ks in range(2)])
a("v_and_b32 v8, 15, v0")
a("v_lshlrev_b32 v12, 7, v8")
CF = 128
LB = int(OPT.get("lb", 1))
if LB: a("s_setprio 0")
for k in range(32):
    a(f"ds_read_b128 {vr(CF+4*k,4)}, v28 offset:{32*k}")
    if k == 13:
        a("s_waitcnt vmcnt(0)")
        flag_novalu(sF1)
a(f"s_add_u32 s{sSYNC}, s{sSYNC}, 4")
signal(vCNT, vONE, C_GH)
if LB: a("s_setprio 2")
stamp(9)
def reduce_inline(RB_, b1=None, bs=None):
    b1 = RB_ + 16 if b1 is None else b1
    bs = RB_ + 32 if bs is None else bs
    Ls, Le = uid("rs"), uid("re")
    a(f"s_mul_i32 s{sT2}, s{sSTEP}, {PSTRIDE}")
    a(f"v_add_u32 v10, s{sT2}, v{vL4}")
    a(f"s_add_u32 s{sT2}, s{sT2}, {L_PART + 8192}")
    o_offsets()
    waitc(11, 0, f"s{sT2}", 8)
    a(f"ds_read_b128 {vr(bs,4)}, v10 offset:8192")
    for w in range(4):
        d = (RB_ if w < 2 else b1) + 8*(w % 2)
        a(f"ds_read_b128 {vr(d,4)}, v10 offset:{2048*w}")
        a(f"ds_read_b128 {vr(d+4,4)}, v10 offset:{2048*w + 1024}")
    a("s_waitcnt lgkmcnt(8)")
    sum_check(bs)
    a("s_waitcnt lgkmcnt(0)")
    a(f"s_cbranch_scc1 {Ls}")
    reduce_math(RB_, vL4, flag=False, b1=b1, bs=bs)
    a(f"s_branch {Le}")
    lab(Ls)
    a(f"s_mov_b32 s{sT0}, {WS_DUMMY}")
    lab(Le)
RIL = int(OPT.get("ril", 1))
a("v_and_b32 v11, 12, v24")
a(f"v_add_u32 v11, {L_PROG}, v11")
if not RIL:
    waitc(vCNT, C_GH, f"s{sSYNC}", 8)
    a(f"s_mul_i32 s{sT1}, s{sWV}, {8*RSTR}")
    for n in range(16): row1(n, sT3, 0, 32768); pace()
else:
    cm("second half of C; the reduction of q-tile wv fills the gaps between the transfers")
    a(f"s_mov_b32 s{sSTEP}, s{sWV}")
    o_offsets()
    a(f"s_mov_b32 s{sF1}, s{sT0}")
    a(f"s_mov_b32 s{sF2}, s{sT1}")
    a(f"s_mul_i32 s{sT2}, s{sWV}, {PSTRIDE}")
    a(f"v_add_u32 v10, s{sT2}, v{vL4}")
    a(f"s_add_u32 s{sT0}, s{sT2}, {L_PART + 8192}")
    a(f"s_mul_i32 s{sT1}, s{sWV}, {8*RSTR}")
    waitc(vCNT, C_GH, f"s{sSYNC}", 8)
    row1(0, sT3, 0, 32768)
    waitc(11, 0, f"s{sT0}", 8)
    row1(1, sT3, 0, 32768)
    a("ds_read_b128 v[20:23], v10 offset:8192")
    for w in range(4):
        d = (32 if w < 2 else 96) + 8*(w % 2)
        a(f"ds_read_b128 {vr(d,4)}, v10 offset:{2048*w}")
        a(f"ds_read_b128 {vr(d+4,4)}, v10 offset:{2048*w + 1024}")
    row1(2, sT3, 0, 32768)
    a("s_waitcnt lgkmcnt(8)")
    sum_check(20)
    a(f"s_cselect_b32 s{sF1}, {WS_DUMMY}, s{sF1}")
    a(f"s_cselect_b32 s{sF2}, {WS_DUMMY + 1024}, s{sF2}")
    a("v_rcp_f32 v22, v20")
    a("s_waitcnt lgkmcnt(0)")
    ops = [f"v_pk_add_f32 {vr(32+2*j,2)}, {vr(32+2*j,2)}, {vr(40+2*j,2)}" for j in range(4)]
    ops += [f"v_pk_add_f32 {vr(96+2*j,2)}, {vr(96+2*j,2)}, {vr(104+2*j,2)}" for j in range(4)]
    ops += [f"v_pk_add_f32 {vr(32+2*j,2)}, {vr(32+2*j,2)}, {vr(96+2*j,2)}" for j in range(4)]
    ops += [f"v_pk_mul_f32 {vr(32+2*j,2)}, {vr(32+2*j,2)}, v[22:23] op_sel_hi:[1,0]" for j in range(4)]
    ops += [f"v_cvt_pk_bf16_f32 v{40+j}, v{32+2*j}, v{33+2*j}" for j in range(4)]
    for n in range(3, 16):
        row1(n, sT3, 0, 32768)
        if ops:
            for _ in range(5): a(ops.pop(0))
            if not ops:
                KIND[0] = "o"
                st2([f"buffer_store_dwordx4 v[40:43], v{vL4}, {sr(R_WS,4)}, s{sF2} offen@"])
        elif n < 15: pace()
PACE = int(OPT.get('pace3', PACE))
a(f"v_add_u32 v13, {(L_PART - L_R1) & 0xffffffff}, v{vWT}")
a(f"s_lshl_b32 s{sT5}, s{sYY}, 11")
a(f"s_add_u32 s{sT5}, s{sT5}, {WS_FH}")
a(f"s_lshl_b32 s{sT4}, s{sYY}, 16")
a(f"s_and_b32 s{sT1}, s{sWV}, 1")
a(f"s_lshl_b32 s{sT1}, s{sT1}, 15")
a(f"s_add_u32 s{sT4}, s{sT4}, s{sT1}")
a(f"s_add_u32 s{sT4}, s{sT4}, {WS_H}")
stamp(10)
poll(12, f"s{sT5}", 8)
if RIL:
    a(f"s_add_u32 s{sSYNC}, s{sSYNC}, 4")
    signal(vCNT, vONE, C_GH)
    flag_novalu(sF1)
stamp(11)
HR, CR, NH = 48, 96, 12
WF, OF = 48, 128
def hload(k):
    if k % 4 == 0 and k: a(f"s_add_u32 s{sT4}, s{sT4}, 4096")
    a(f"buffer_load_dwordx4 {vr(HR+4*(k%NH),4)}, v{vL4}, {sr(R_WS,4)}, s{sT4} offen offset:{1024*(k%4)} sc1")
def cread(k):
    a(f"ds_read_b128 {vr(CR+4*(k%4),4)}, v28 offset:{32*k}")
def oload(k):
    if k % 4 == 0 and k: a(f"s_add_u32 s{sT6}, s{sT6}, 4096")
    a(f"buffer_load_dwordx4 {vr(OF+4*k,4)}, v{vL4}, {sr(R_WS,4)}, s{sT6} offen offset:{1024*(k%4)} sc1")
def wo_setup():
    a(f"s_and_b32 s{sT0}, s{sWV}, 1")
    a(f"s_lshl_b32 s{sT0}, s{sT0}, 18")
    a(f"s_lshr_b32 s{sT1}, s{sWV}, 1")
    a(f"s_lshl_b32 s{sT1}, s{sT1}, 14")
    a(f"s_add_u32 s{sT0}, s{sT0}, s{sT1}")
    a(f"s_lshl_b32 s{sT1}, s{sG}, 7")
    a(f"s_add_u32 s{sT0}, s{sT0}, s{sT1}")
    a(f"s_mul_i32 s{sT1}, s{sWV}, {PSTRIDE}")
def wo_one(half, n):
    q, i = n // 2, n % 2
    a(f"s_add_u32 m0, s{sT1}, {(L_R1 if half else L_PART) + 2048*q + 1024*i}")
    a(f"s_add_u32 s{sT2}, s{sT0}, {32768*half + 65536*q + 8192*i}")
    dma(vWO, R_A, f"s{sT2}")
def wread(dst, k):
    o = PSTRIDE * ((k % 16) // 4) + 2048 * (k % 4)
    ad = 13 if k < 16 else vWT
    a(f"ds_read_b64_tr_b16 {vr(dst,2)}, v{ad} offset:{o}")
    a(f"ds_read_b64_tr_b16 {vr(dst+2,2)}, v{ad} offset:{o+1024}")
HD, CD = 11, 3
RK = int(OPT.get("rk", 25))
FK = 4
VM, LG = Cnt(), Cnt()
for k in range(HD): hload(k); VM.issue(("h", k))
a(f"s_lshl_b32 s{sT5}, s{sYG}, 12")
a(f"s_add_u32 s{sT5}, s{sT5}, {WS_FO}")
a(f"s_lshl_b32 s{sT6}, s{sYG}, 15")
a(f"s_add_u32 s{sT6}, s{sT6}, {WS_O}")
if not RIL:
    a(f"s_mov_b32 s{sSTEP}, s{sWV}")
    KIND[0] = "o"
    reduce_inline(32, 96, 20)
    a(f"s_mov_b32 s{sF1}, s{sT0}")
    gsync(vCNT, vONE, 8, C_GH)
else:
    waitc(vCNT, C_GH, f"s{sSYNC}", 8)
a(f"s_setprio {YPRIO}")
for k in range(CD): cread(k); LG.issue(("c", k))
FLK = int(OPT.get("flk", 14))
YPK = int(OPT.get("ypk", 99))
oq = list(range(16))
for k in range(32):
    if k == YPK: a("s_setprio 2")
    if k == FK:
        if not RIL:
            waits(vm=VM.need(("h", HD)))
            flag_novalu(sF1); VM.issue("f")
        wo_setup()
    if k == FLK:
        a(f"buffer_load_dword v9, v12, {sr(R_WS,4)}, s{sT5} offen sc1"); VM.issue("fl")
    if k == FLK + 5:
        waits(vm=VM.need("fl"))
        a("s_setprio 2")
        a(f"v_cmp_ne_u32 vcc, s{sTAG}, v9")
        a("s_cbranch_vccz L_y_ok")
        poll(12, f"s{sT5}", 8)
        lab("L_y_ok")
        a(f"s_setprio {YPRIO}")
    if k + HD < 32: hload(k + HD); VM.issue(("h", k + HD))
    if k + CD < 32: cread(k + CD); LG.issue(("c", k + CD))
    waits(vm=VM.need(("h", k)), lg=LG.need(("c", k)))
    mfma32(YACC, HR + 4*(k % NH), CR + 4*(k % 4))
    n = k - FK - 1
    if 0 <= n < 8: wo_one(0, n); VM.issue("wo")
    if k >= FLK + 5:
        for _ in range(2 if k + HD >= 32 else 1):
            if oq: oload(oq.pop(0)); VM.issue("o")
    mfma32(32, HR + 4*(k % NH), CF + 4*k, "0" if k == 0 else None)
assert not oq
a("s_setprio 2")
a(f"s_lshl_b32 s{sT2}, s{sWV}, 12")
a(f"s_add_u32 s{sT2}, s{sT2}, {L_R1 + 40960}")
a(f"v_add_u32 v10, s{sT2}, v{vL4}")
a("v_xor_b32 v11, 4096, v10")
assert (L_R1 + 40960) % 8192 == 0
a(f"s_lshl_b32 s{sT2}, s{sWV}, 9")
a(f"s_add_u32 s{sT2}, s{sT2}, {L_CS}")
a("v_lshlrev_b32 v8, 3, v0")
a(f"v_add_u32 v8, s{sT2}, v8")
a(f"ds_write2_b32 v8, v{vWT}, v1 offset1:1")
waits(vm=VM.need("wo"))
gsync(vCNT, vONE, 8, C_GH)
stamp(12)
for i in range(8):
    wo_one(1, i)
    if i < 4: a(f"ds_write_b128 v10, {vr(32+4*i,4)} offset:{1024*i}")
    if i == 3:
        a(f"s_add_u32 s{sSYNC}, s{sSYNC}, 4")
        signal(vCNT, vONE, C_GH)
    if 4 <= i < 7: pace()
srd(R_B, P_OUT, 2048 * 4096)
a(f"s_lshl_b32 s{sT0}, s{sYY}, 17")
a(f"s_lshl_b32 s{sT1}, s{sCG}, 7")
a(f"s_add_u32 s{sT0}, s{sT0}, s{sT1}")
def store1(b, r, off=0):
    a(f"s_add_u32 s{sT1}, s{sT0}, {4096 * (8*(r//4) + r%4)}")
    a(f"buffer_store_dword v{b+r}, v1, {sr(R_B,4)}, s{sT1} offen" + (f" offset:{off}" if off else "") + YFL)
a(f"s_mul_i32 s{sT2}, s{sWV}, {PSTRIDE}")
a(f"v_add_u32 v10, s{sT2}, v{vL4}")
a(f"s_lshl_b32 s{sT2}, s{sWV}, 2")
a(f"v_add_u32 v9, s{sT2}, v{vCNT}")
waitc(vCNT, C_GH, f"s{sSYNC}", 8)
for i in range(4):
    a(f"ds_read_b128 {vr(192+4*i,4)}, v11 offset:{1024*i}")
YL = OPT.get("ylate") == "1"
def ystores():
    for j in range(8):
        a(f"v_pk_add_f32 {vr(YACC+2*j,2)}, {vr(YACC+2*j,2)}, {vr(192+2*j,2)}")
        store1(YACC, 2*j, 2048)
        store1(YACC, 2*j + 1, 2048)
if LB: a("s_setprio 0")
for k in range(16): wread(WF + 4*k, k)
if LB: a("s_setprio 2")
a(f"s_waitcnt vmcnt(0) lgkmcnt(15)")
a(f"s_add_u32 s{sSYNC}, s{sSYNC}, 4")
signal(vCNT, vONE, C_GH)
for j in range(8):
    a(f"v_pk_add_f32 {vr(YACC+2*j,2)}, {vr(YACC+2*j,2)}, {vr(192+2*j,2)}")
a(f"s_waitcnt lgkmcnt(0)")
stamp(14)
a(f"s_setprio {OPT.get('oprio', 0)}")
for k in range(16):
    mfma32(32, OF + 4*k, WF + 4*k, "0" if k == 0 else None)
    if not YLT: store1(YACC, k, 2048)
nsync = sum(1 for n in ("HQ", "H") for x in SECS[n] if x.strip() == f"s_add_u32 s{sSYNC}, s{sSYNC}, 4")
SECS["P"].insert(0, f".set NSYNC_B2, {4*nsync}")
a("s_setprio 2")
waitc(vCNT, C_GH, f"s{sSYNC}", 8)
a("s_nop 6")
for i in range(4):
    a(f"ds_write_b128 v10, {vr(32+4*i,4)} offset:{1024*i}")
a(f"ds_write_b32 v9, v{vONE} offset:{C_HA}")
stamp(13)
if YLT:
    waitc(vCNT, C_S, 4, 8, sleep=1)
    for k in range(16): store1(YACC, k, 2048)
a("s_branch L_end")

lab("L_slow")
a("s_waitcnt lgkmcnt(0)")
a(f"s_mov_b32 s{sKIND}, 0")
a(f"s_lshl_b32 s{sT0}, s{sSTEP}, 10")
a(f"s_add_u32 s{sT0}, s{sT0}, {L_QF}")
a(f"v_add_u32 v4, s{sT0}, v14")
a(f"ds_read_b128 {vr(vQ,4)}, v4")
a("v_mov_b32 v4, 0xff800000")
a("v_lshrrev_b32 v16, 5, v0")
a("v_and_b32 v17, 15, v0")
a("v_lshl_add_u32 v15, v16, 4, v17")
a("v_lshlrev_b32 v15, 4, v15")
a(f"s_mov_b32 s{sM}, 0xffff")
a(f"s_mov_b32 s{sM+1}, 0xffff")
a(f"s_mov_b32 s{sT0}, {WS_KV}")
lab("L_slow_p1")
kvload(0)
a("s_waitcnt vmcnt(0) lgkmcnt(0)")
for t in range(2):
    qk(S0, t)
    a("s_nop 11")
    for i in range(8):
        a(f"v_max3_f32 v4, v{S0+2*i}, v{S0+2*i+1}, v4")
a(f"s_cmp_lt_u32 s{sT0}, {WS_KV + 131072}")
a("s_cbranch_scc1 L_slow_p1")
a("v_mov_b32 v5, v4")
a("s_nop 1")
a("v_permlane32_swap_b32 v4, v5")
a("v_max_f32 v4, v4, v5")
for i in range(16):
    a(f"v_sub_f32 v{S1+i}, 0, v4")
zeroO()
a(f"s_mov_b32 s{sT0}, {WS_KV}")
lab("L_slow_p2")
kvload(0)
a("s_waitcnt vmcnt(0)")
for t in range(2):
    mfma32(S0, K_(t), vQ, vr(S1, 16))
    a("s_nop 11")
    exs(S0, 0, 16)
    a("s_nop 1")
    smf(V1(t), S0)
    smf(V2(t), S0 + 8)
a(f"s_cmp_lt_u32 s{sT0}, {WS_KV + 131072}")
a("s_cbranch_scc1 L_slow_p2")
o_offsets()
a(f"v_rcp_f32 v4, v{vO+8}")
a("s_nop 0")
for j in range(4):
    a(f"v_pk_mul_f32 {vr(vO+2*j,2)}, {vr(vO+2*j,2)}, v[4:5] op_sel_hi:[1,0]")
for j in range(4):
    a(f"v_cvt_pk_bf16_f32 v{16+j}, v{vO+2*j}, v{vO+2*j+1}")
a(f"buffer_store_dwordx4 v[16:19], v14, {sr(R_WS,4)}, s{sT1} offen sc1")
a("s_waitcnt vmcnt(0)")
setflag(16, 17, sT0)
a("v_and_b32 v15, 15, v0")
a("v_lshlrev_b32 v15, 7, v15")
a("v_lshlrev_b32 v7, 3, v0")
a(f"v_add_u32 v7, s{sT5}, v7")
a(f"s_lshl_b32 s{sT0}, s{sWV}, 2")
a(f"v_add_u32 v10, s{sT0}, v{vCA}")
a(f"s_cmp_lt_u32 s{sSTEP}, 4")
a("s_cbranch_scc1 L_a_ok2")
a("ds_read_b128 v[56:59], v6 offset:8192")
a("s_waitcnt lgkmcnt(0)")
a("s_branch L_a_ok1")
lab("L_a_bad1")
a("s_waitcnt lgkmcnt(0)")
a(f"s_sub_u32 s{sSTEP}, 7, s{sWV}")
a("s_branch L_slow")
lab("L_a_bad2")
a(f"s_mov_b32 s{sSTEP}, s{sWV}")
a("s_branch L_slow")

lab("L_end")
ROLE[0] = "E"
if PROBE:
    a("s_waitcnt vmcnt(0)")
    stamp(15)
    a(f"s_cmp_ge_u32 s{sW}, 4")
    a(f"s_cbranch_scc{0 if PROBE[0] == 'A' else 1} L_exit")
    a(f"s_cmp_eq_u32 s{80+int(PROBE[1])}, 0")
    a("s_cbranch_scc1 L_exit")
    a(f"s_sub_u32 s{sT0}, s{80+int(PROBE[1])}, s{80+int(PROBE[2])}")
    if OPT.get("pmode"):
        a(f"s_cmp_eq_u32 s{sMODE}, 1")
        a(f"s_cselect_b32 s{sT0}, 0, 1000")
    a(f"s_min_u32 s{sT0}, s{sT0}, 10000")
    a(f"s_lshl_b32 s{sT0}, s{sT0}, 1")
    a(f"s_memrealtime s[{sST}:{sST+1}]")
    a("s_waitcnt lgkmcnt(0)")
    a(f"s_mov_b32 s{sT1}, s{sST}")
    lab("L_probe")
    a(f"s_memrealtime s[{sST}:{sST+1}]")
    a("s_waitcnt lgkmcnt(0)")
    a(f"s_sub_u32 s{sT2}, s{sST}, s{sT1}")
    a(f"s_cmp_lt_u32 s{sT2}, s{sT0}")
    a("s_cbranch_scc1 L_probe")
elif STAMPS:
    a("s_waitcnt vmcnt(0)")
    stamp(15)
    a(f"s_lshl_b32 s{sT0}, s2, 3")
    a(f"s_xor_b32 s{sT1}, s{sW}, 4")
    a(f"s_add_u32 s{sT0}, s{sT0}, s{sT1}")
    a(f"s_lshl_b32 s{sT0}, s{sT0}, 6")
    a(f"s_add_u32 s{sT0}, s{sT0}, {WS_STAMP}")
    for i in range(16): a(f"v_mov_b32 v{16+i}, s{80+i}")
    a("v_mov_b32 v0, 0")
    a("s_mov_b64 exec, 1")
    for i in range(4):
        a(f"buffer_store_dwordx4 {vr(16+4*i,4)}, v0, {sr(R_WS,4)}, s{sT0} offen offset:{16*i}")
lab("L_exit")
a("s_endpgm")

hdr = open("cdna_kernels/" + NAME + ".s.ref").read().split("; Override launch")[0]
src = hdr + f"; @launch grid=(256,1,1) block=(512,1,1) lds={LDS_BYTES}\n" + f""".amdgcn_target "amdgcn-amd-amdhsa--gfx950"
.text
.globl {NAME}_kernel
.p2align 8
.type {NAME}_kernel,@function
{NAME}_kernel:
""" + "\n".join(x for n in ("P", "AL", "HQ", "Z", "A", "H") for x in SECS[n]) + f"""
.section .rodata,"a"
.p2align 6
.amdhsa_kernel {NAME}_kernel
  .amdhsa_next_free_vgpr 256
  .amdhsa_next_free_sgpr 102
  .amdhsa_accum_offset 256
  .amdhsa_group_segment_fixed_size 0
  .amdhsa_kernarg_size 136
  .amdhsa_user_sgpr_count 2
  .amdhsa_user_sgpr_kernarg_segment_ptr 1
  .amdhsa_system_sgpr_workgroup_id_x 1
.end_amdhsa_kernel
"""
open(OUT, "w").write(src)
```

```python
import sys, math, struct
NAME = "concat_heads__grouped_kv_mqa__ssm_conv_s5__prompt"
STAMPS = "--stamps" in sys.argv
OPT = dict(a.lstrip("-").split("=") for a in sys.argv[1:] if a.startswith("--") and "=" in a)
OUT = [a for a in sys.argv[1:] if not a.startswith("--")][0]
OUTFL = OPT.get("outfl", "nt").replace(",", " ")
if OUTFL: OUTFL = " " + OUTFL
YFL = OPT.get("yfl", "nt").replace(",", " ")
if YFL: YFL = " " + YFL

def f32(x): return "0x%08x" % struct.unpack("<I", struct.pack("<f", x))[0]

FSH = int(OPT.get('fsh', 6))
WS_O2 = 0x300000
C_HA = 48
WS_DUMMY = 0x800
WS_FKV = 0x1000
WS_FH  = 0x20000
WS_FO  = 0x80000
WS_KV  = 0x40000
WS_ST  = 0x60000
WS_O   = 0x100000
WS_H   = 0x400000
WS_SLOW = 0x800000
WS_STAMP = 15 << 20
WS_SIZE = 16 << 20
L_XA, L_WQ, L_KVP, L_WKV = 0, 65536, 131072, 140288
L_PART, L_R1, L_SCR, L_ES, L_QF, L_PROG, L_CNT = 0, 73728, 140288, 148480, 150528, 158720, 159744
L_MAX = 159808
L_CS = 160832

LDS_BYTES = 163840
PSTRIDE = 9216
RSTR = 1040
POLL_LIMIT = 400000
C_A1, C_H1, C_H2, C_A3, C_A4, C_GA, C_GH, C_TAG, C_H3, C_S, C_H0, C_DONE = 0, 4, 8, 12, 16, 20, 24, 28, 32, 36, 40, 44

SECS = {}
class _L:
    cur = None
    def append(self, x): SECS[_L.cur].append(x)
lines = _L()
def sec(n):
    SECS.setdefault(n, []); _L.cur = n
sec("P")
def a(s): lines.append("    " + s)
def lab(s): lines.append(s + ":")
def cm(s): lines.append("    ; " + s)
_uid = [0]
def uid(p):
    _uid[0] += 1
    return f"L_{p}{_uid[0]}"
def vr(b, n): return f"v[{b}:{b+n-1}]"
def sr(b, n): return f"s[{b}:{b+n-1}]"

sW, sTAG, sRB, sG, sC, sPB = 3, 4, 5, 6, 7, 8
sT0, sT1, sT2, sT3, sT4, sCNT = 9, 10, 11, 12, 13, 14
sWV = 15
P_AX, P_WQ, P_WK, P_WV, P_WO, P_BX, P_LRE, P_LIM = 16, 18, 20, 22, 24, 26, 28, 30
P_BRE, P_BIM, P_CRE, P_CIM, P_LDT, P_DSK, P_OUT, P_DBG = 32, 34, 36, 38, 40, 42, 44, 46
P_WS = 48
sT5, sT6 = 50, 51
R_WS, R_A, R_B, R_C = 52, 56, 60, 64
sM = 68
sGRP, sKIND, sSTEP, sSYNC = 70, 71, 72, 73
sRET = 74
sST = 76
sLO, sHI = 78, 79
sROT = sSTEP
sF1, sF2 = 0, 1
sYG, sCG, sPC = 96, 97, 98
sGY, sYY = 100, 101
YM = int(OPT.get('ymap', 0))
sMODE = sGRP
C_MODE = C_DONE
LFL = OPT.get('lfl', '').replace(',', ' ')
if LFL: LFL = ' ' + LFL

def srd(dst, ptr, nbytes):
    a(f"s_mov_b32 s{dst}, s{ptr}")
    a(f"s_and_b32 s{dst+1}, s{ptr+1}, 0xffff")
    a(f"s_mov_b32 s{dst+2}, {nbytes}")
    a(f"s_mov_b32 s{dst+3}, 0x20000")

PROBE = OPT.get("probe")
ROLE = ["?"]
if PROBE:
    PROBE = PROBE.split(","); STAMPS = True
def stamp(i, ins="s_memrealtime"):
    if PROBE and not (ins == "s_memrealtime" and (ROLE[0] in (PROBE[0], "E")) and str(i) in PROBE[1:]): return
    if OPT.get("dbg") == "steps" and ROLE[0] == "A" and i < 10: return
    if OPT.get("sel") and ROLE[0] != "E" and f"{ROLE[0]}{i}" not in OPT["sel"].split(","): return
    if STAMPS:
        a(f"{ins} s[{sST}:{sST+1}]")
        a("s_waitcnt lgkmcnt(0)")
        a(f"s_mov_b32 s{80+i}, s{sST}")
def cstamp(i): stamp(i, "s_memtime")
DBG = OPT.get("dbg", "")
def dstamp(name, i):
    if DBG == name: stamp(i)
_stamp0 = stamp


def dma(voff, srdr, soff, imm=0):
    o = f" offset:{imm}" if imm else ""
    a(f"buffer_load_dwordx4 v{voff}, {sr(srdr,4)}, {soff} offen{o} lds")

PACE = int(OPT.get("pace", 18))
PV = int(OPT.get("pv", 6))
def pace():
    if PV >= 0:
        a(f"s_waitcnt vmcnt({PV})")
        return
    n = PACE
    while n > 0:
        a(f"s_nop {min(n, 16) - 1}"); n -= 16

def poll(voff, soff, vt, sleep=0, fl=" sc1"):
    L, D = uid("poll"), uid("pdone")
    a(f"s_mov_b32 s{sCNT}, {POLL_LIMIT}")
    lab(L)
    a(f"buffer_load_dword v{vt}, v{voff}, {sr(R_WS,4)}, {soff} offen{fl}")
    a("s_waitcnt vmcnt(0)")
    a(f"v_cmp_ne_u32 vcc, s{sTAG}, v{vt}")
    a(f"s_cbranch_vccz {D}")
    if sleep: a(f"s_sleep {sleep}")
    a(f"s_sub_u32 s{sCNT}, s{sCNT}, 1")
    a(f"s_cbranch_scc0 {L}")
    lab(D)

def setflag(vt0, vt1, soff):
    a(f"v_mov_b32 v{vt0}, 0")
    a(f"v_mov_b32 v{vt1}, s{sTAG}")
    a("s_mov_b64 exec, 1")
    a(f"buffer_store_dword v{vt1}, v{vt0}, {sr(R_WS,4)}, s{soff} offen sc1")
    a("s_mov_b64 exec, -1")

LOC = OPT.get("loc", "t")
KIND = ["t"]
assert not (YM and "h" in LOC)
def st2(instrs):
    if KIND[0] not in LOC:
        for x in instrs: a(x.replace("@", " sc1"))
        return
    L, E = uid("sl"), uid("se")
    a(f"s_cmp_eq_u32 s{sMODE}, 1")
    a(f"s_cbranch_scc1 {L}")
    for x in instrs: a(x.replace("@", " sc1"))
    a(f"s_branch {E}")
    lab(L)
    for x in instrs: a(x.replace("@", LFL))
    lab(E)

def spf(spec):
    for ptr, lines, first, cnt in spec:
        a(f"s_lshl2_add_u32 s{sRET}, s2, s{sWV}")
        a(f"s_mul_i32 s{sRET}, s{sRET}, {128*lines}")
        a(f"s_add_u32 s{sRET}, s{sRET}, s{ptr}")
        a(f"s_addc_u32 s{sRET+1}, s{ptr+1}, 0")
        for i in range(first, first + cnt):
            a(f"s_load_dword s{sST}, s[{sRET}:{sRET+1}], {128*i}")

def spx(kind, first, cnt, w="dword"):
    if kind == "x":
        a(f"s_and_b32 s{sRET}, s{sRB}, 0x1b")
        a(f"s_lshr_b32 s{sRET+1}, s{sRET}, 3")
        a(f"s_and_b32 s{sRET}, s{sRET}, 3")
        a(f"s_lshl2_add_u32 s{sRET}, s{sRET+1}, s{sRET}")
        a(f"s_lshl3_add_u32 s{sRET}, s{sRET}, s{sG}")
        a(f"s_lshl2_add_u32 s{sRET}, s{sRET}, s{sWV}")
        a(f"s_lshl_b32 s{sRET}, s{sRET}, 12")
        ptr = P_BX
    else:
        a(f"s_and_b32 s{sRET}, s2, 1")
        a(f"s_lshl3_add_u32 s{sRET}, s{sRET}, s{sG}")
        a(f"s_and_b32 s{sRET+1}, s{sRB}, 3")
        a(f"s_lshl2_add_u32 s{sRET}, s{sRET}, s{sRET+1}")
        a(f"s_lshl2_add_u32 s{sRET}, s{sRET}, s{sWV}")
        a(f"s_lshl_b32 s{sRET}, s{sRET}, 11")
        ptr = P_BRE if kind == "r" else P_BIM
    a(f"s_add_u32 s{sRET}, s{sRET}, s{ptr}")
    a(f"s_addc_u32 s{sRET+1}, s{ptr+1}, 0")
    for i in range(first, first + cnt):
        a(f"s_load_dword s{sST}, s[{sRET}:{sRET+1}], {128*i}")
SX = OPT.get("sx", "")

def signal(vcnt, vone, off):
    a("s_mov_b64 exec, 1")
    a(f"ds_add_u32 v{vcnt}, v{vone} offset:{off}")
    a("s_mov_b64 exec, -1")

HSL = int(OPT.get("hsl", 0))
def waitc(vcnt, off, target, vt, sleep=0):
    L = uid("wc")
    if ROLE[0] == "H" and _L.cur == "H": sleep = max(sleep, HSL)
    if sleep:
        L2 = uid("wd")
        a(f"s_branch {L2}")
    lab(L)
    if sleep:
        a(f"s_sleep {sleep}")
        lab(L2)
    a(f"ds_read_b32 v{vt}, v{vcnt} offset:{off}")
    a("s_waitcnt lgkmcnt(0)")
    a(f"v_cmp_gt_u32 vcc, {target}, v{vt}")
    a(f"s_cbranch_vccnz {L}")

def gsync(vcnt, vone, vt, off):
    a("s_waitcnt lgkmcnt(0)")
    a(f"s_add_u32 s{sSYNC}, s{sSYNC}, 4")
    signal(vcnt, vone, off)
    waitc(vcnt, off, f"s{sSYNC}", vt)

def mfma32(d, x, y, c=None):
    c = vr(d, 16) if c is None else c
    a(f"v_mfma_f32_32x32x16_bf16 {vr(d,16)}, {vr(x,4)}, {vr(y,4)}, {c}")

def cmul_add(dst, L, g, u):
    a(f"v_pk_fma_f32 {vr(dst,2)}, {vr(L,2)}, {vr(g,2)}, {vr(u,2)} op_sel:[0,0,0] op_sel_hi:[0,1,1]")
    a(f"v_pk_fma_f32 {vr(dst,2)}, {vr(L,2)}, {vr(g,2)}, {vr(dst,2)} op_sel:[1,1,0] op_sel_hi:[1,0,1] neg_lo:[1,0,0]")

def cmul(dst, x, y):
    a(f"v_pk_mul_f32 {vr(dst,2)}, {vr(x,2)}, {vr(y,2)} op_sel:[0,0] op_sel_hi:[0,1]")
    a(f"v_pk_fma_f32 {vr(dst,2)}, {vr(x,2)}, {vr(y,2)}, {vr(dst,2)} op_sel:[1,1,0] op_sel_hi:[1,0,1] neg_lo:[1,0,0]")

def csq(dst, src, t):
    a(f"v_mul_f32 v{t}, v{src+1}, v{src+1}")
    a(f"v_add_f32 v{t+1}, v{src}, v{src}")
    a(f"v_fma_f32 v{dst}, v{src}, v{src}, -v{t}")
    a(f"v_mul_f32 v{dst+1}, v{t+1}, v{src+1}")

def xvoffsets(XO, t0):
    a(f"v_lshrrev_b32 v{t0}, 4, v0")
    a(f"v_and_b32 v{t0+1}, 15, v0")
    for i in range(4):
        a(f"v_add_u32 v{t0+2}, {4*i}, v{t0}")
        a(f"v_xor_b32 v{t0+3}, v{t0+1}, v{t0+2}")
        a(f"v_lshlrev_b32 v{t0+3}, 4, v{t0+3}")
        a(f"v_lshl_add_u32 v{XO+i}, v{t0+2}, 10, v{t0+3}")

def wtr_addr(dst, hhshift, base, t):
    a(f"v_bfe_u32 v{t}, v0, 2, 2")
    a(f"v_bfe_u32 v{t+1}, v0, 4, 1")
    a(f"v_bfe_u32 v{t+2}, v0, 1, 1")
    a(f"v_lshl_add_u32 v{t+1}, v{t+1}, 1, v{t+2}")
    a(f"s_and_b32 s{sT0}, s{sWV}, 1")
    a(f"s_lshl_b32 s{sT0}, s{sT0}, 2")
    a(f"v_add_u32 v{t+1}, s{sT0}, v{t+1}")
    a(f"v_bfe_u32 v{t+2}, v0, 3, 1")
    a(f"v_lshlrev_b32 v{t+2}, 2, v{t+2}")
    a(f"v_xor_b32 v{t+1}, v{t+1}, v{t+2}")
    a(f"v_lshlrev_b32 v{t+1}, 4, v{t+1}")
    a(f"v_lshl_add_u32 v{t+1}, v{t}, 7, v{t+1}")
    a(f"v_and_b32 v{t+2}, 1, v0")
    a(f"v_lshl_add_u32 v{t+1}, v{t+2}, 3, v{t+1}")
    a(f"v_lshrrev_b32 v{t+2}, 5, v0")
    a(f"v_lshl_add_u32 v{t+1}, v{t+2}, {hhshift}, v{t+1}")
    a(f"v_add_u32 v{dst}, {base}, v{t+1}")

def o_offsets():
    a(f"s_and_b32 s{sT0}, s{sSTEP}, 1")
    a(f"s_lshl_b32 s{sT1}, s{sRB}, 1")
    a(f"s_add_u32 s{sT0}, s{sT0}, s{sT1}")
    a(f"s_lshl_b32 s{sT0}, s{sT0}, 2")
    a(f"s_lshr_b32 s{sT1}, s{sSTEP}, 1")
    a(f"s_add_u32 s{sT0}, s{sT0}, s{sT1}")
    a(f"s_lshl_b32 s{sT0}, s{sT0}, 3")
    a(f"s_add_u32 s{sT0}, s{sT0}, s{sG}")
    a(f"s_lshl_b32 s{sT1}, s{sT0}, 10")
    a(f"s_add_u32 s{sT1}, s{sT1}, {WS_O}")
    a(f"s_lshl_b32 s{sT0}, s{sT0}, 7")
    a(f"s_add_u32 s{sT0}, s{sT0}, {WS_FO}")

def sum_check(b):
    a(f"v_pk_add_f32 {vr(b,2)}, {vr(b,2)}, {vr(b+2,2)}")
    a(f"v_add_f32 v{b}, v{b}, v{b+1}")
    a(f"v_cmp_nle_f32 vcc, s{sLO}, v{b}")
    a(f"v_cmp_nge_f32 s[{sM}:{sM+1}], s{sHI}, v{b}")
    a(f"s_or_b64 vcc, vcc, s[{sM}:{sM+1}]")

def reduce_math(b, vl16, flag=True, tagged=False, b1=None, bs=None):
    b1 = b + 16 if b1 is None else b1
    bs = b + 32 if bs is None else bs
    a(f"v_rcp_f32 v{bs+2}, v{bs}")
    for j in range(4):
        a(f"v_pk_add_f32 {vr(b+2*j,2)}, {vr(b+2*j,2)}, {vr(b+8+2*j,2)}")
    for j in range(4):
        a(f"v_pk_add_f32 {vr(b1+2*j,2)}, {vr(b1+2*j,2)}, {vr(b1+8+2*j,2)}")
    for j in range(4):
        a(f"v_pk_add_f32 {vr(b+2*j,2)}, {vr(b+2*j,2)}, {vr(b1+2*j,2)}")
    for j in range(4):
        a(f"v_pk_mul_f32 {vr(b+2*j,2)}, {vr(b+2*j,2)}, {vr(bs+2,2)} op_sel_hi:[1,0]")
    for j in range(4):
        a(f"v_cvt_pk_bf16_f32 v{b+8+j}, v{b+2*j}, v{b+2*j+1}")
    if not flag:
        st2([f"buffer_store_dwordx4 {vr(b+8,4)}, v{vl16}, {sr(R_WS,4)}, s{sT1} offen@"])
        return
    a(f"buffer_store_dwordx4 {vr(b+8,4)}, v{vl16}, {sr(R_WS,4)}, s{sT1} offen sc1")
    a("s_waitcnt vmcnt(0)")
    setflag(b, b + 1, sT0)

STG3 = 1
LOG2E = 1.4426950408889634
L_LO, L_HI = 2.0 ** -60, 2.0 ** 60


class Cnt:
    def __init__(s): s.q = []
    def issue(s, tag, n=1): s.q += [tag] * n
    def need(s, tag):
        if tag not in s.q: return None
        i = len(s.q) - 1 - s.q[::-1].index(tag)
        n = len(s.q) - 1 - i
        s.q = s.q[i + 1:]
        return n
def waits(vm=None, lg=None):
    p = []
    if vm is not None: p.append(f"vmcnt({min(vm,63)})")
    if lg is not None: p.append(f"lgkmcnt({min(lg,15)})")
    if p: a("s_waitcnt " + " ".join(p))

a("s_cmp_ge_u32 s2, 256")
a("s_cbranch_scc1 L_exit")
a(f"s_load_dwordx16 s[16:31], s[0:1], 0")
a(f"s_load_dwordx16 s[32:47], s[0:1], 64")
a(f"s_load_dwordx2 s[48:49], s[0:1], 128")
EPF = [int(x) for x in OPT.get("epf", "").split(",") if x]
if EPF:
    cm("request the first code lines at once instead of one miss after the other")
    a(f"s_getpc_b64 s[{sM}:{sM+1}]")
    a(f"v_subrev_u32 v2, {EPF[0]}, v0")
    a(f"v_cmp_gt_u32 vcc, {EPF[1]}, v2")
    a("v_lshlrev_b32 v2, 7, v2")
    a(f"s_and_saveexec_b64 s[{sRET}:{sRET+1}], vcc")
    a("s_cbranch_execz L_noepf")
    a(f"global_load_dword v31, v2, s[{sM}:{sM+1}] offset:128")
    lab("L_noepf")
    a("s_mov_b64 exec, -1")
if STAMPS:
    for i in range(16): a(f"s_mov_b32 s{80+i}, 0")
    a("s_memrealtime s[80:81]")
    a("s_memtime s[92:93]")
a("v_lshrrev_b32 v1, 6, v0")
a("v_and_b32 v0, 63, v0")
a(f"v_readfirstlane_b32 s{sW}, v1")
a("v_lshlrev_b32 v6, 4, v0")
a("v_lshrrev_b32 v12, 4, v0")
a("v_and_b32 v13, 15, v0")
a(f"s_and_b32 s{sT0}, s2, 7")
a(f"s_lshr_b32 s{sT1}, s2, 3")
a(f"s_and_b32 s{sT2}, s{sT1}, 3")
a(f"s_lshl_b32 s{sRB}, s{sT0}, 2")
a(f"s_add_u32 s{sRB}, s{sRB}, s{sT2}")
a(f"s_lshr_b32 s{sG}, s{sT1}, 2")
a(f"s_and_b32 s{sGRP}, s{sG}, 3")
a(f"s_and_b32 s{sWV}, s{sW}, 3")
a(f"s_add_u32 s{sROT}, s{sG}, s{sRB}" if OPT.get("rot", "0") == "1" else f"s_mov_b32 s{sROT}, 0")
a(f"s_mov_b32 s{R_A+2}, {2048*1024}")
a(f"s_mov_b32 s{R_A+3}, 0x20000")
a(f"s_mov_b32 s{R_B+3}, 0x20000")
a(f"s_cmp_ge_u32 s{sW}, 4")
a("s_cbranch_scc1 L_attn")

vL, vL16_, vL8, vCO = 20, 22, 24, 26
vCNT, vONE, vWT, vRB, vL4, vWO = 2, 3, 4, 5, 6, 7
a("s_setprio 3")
for i in range(4):
    a(f"v_add_u32 v14, {4*i}, v12")
    a(f"v_xor_b32 v15, v13, v14")
    a(f"v_lshlrev_b32 v15, 4, v15")
    a(f"v_lshl_add_u32 v{16+i}, v14, 10, v15")
if OPT.get("map", "0" if "h" in LOC else "1") == "0":
    a(f"s_and_b32 s{sT2}, s{sT1}, 1")
    a(f"s_lshl_b32 s{sC}, s{sT0}, 1")
    a(f"s_add_u32 s{sC}, s{sC}, s{sT2}")
    a(f"s_lshr_b32 s{sPB}, s{sT1}, 1")
else:
    a(f"s_and_b32 s{sC}, s{sT0}, 6")
    a(f"s_lshl_b32 s{sC}, s{sC}, 1")
    a(f"s_add_u32 s{sC}, s{sC}, s{sT2}")
    a(f"s_and_b32 s{sPB}, s{sT0}, 1")
    a(f"s_lshl_b32 s{sPB}, s{sPB}, 3")
    a(f"s_add_u32 s{sPB}, s{sPB}, s{sG}")
a(f"s_lshr_b32 s{sKIND}, s{sG}, 2")
a(f"s_lshl_b32 s{sT3}, s{sPB}, 5")
a("v_and_b32 v38, 31, v0")
a(f"v_add_lshl_u32 v37, v38, s{sT3}, 1")
if YM:
    a(f"s_and_b32 s{sGY}, s{sRB}, 7")
else:
    a(f"s_mov_b32 s{sGY}, s{sG}")
a(f"s_and_b32 s{sT3}, s{sWV}, 1")
a(f"s_lshl1_add_u32 s{sT3}, s{sGY}, s{sT3}")
a(f"s_lshl_b32 s{sT3}, s{sT3}, 5")
a(f"v_add_lshl_u32 v38, v38, s{sT3}, 1")
a(f"s_add_u32 s{sT3}, s{sROT}, s{sWV}")
a(f"s_and_b32 s{sT3}, s{sT3}, 3")
a(f"s_lshl_b32 s{sT0}, s{sRB}, 16")
a(f"s_lshl_b32 s{sT1}, s{sGRP}, 14")
a(f"s_add_u32 s{sT0}, s{sT0}, s{sT1}")
a(f"s_lshl_b32 s{sT1}, s{sT3}, 8")
a(f"s_add_u32 s{sT0}, s{sT0}, s{sT1}")
a(f"s_lshl_b32 s{sT2}, s{sGRP}, 12")
a(f"s_lshl_b32 s{sT1}, s{sWV}, 14")
a(f"s_add_u32 s{sT2}, s{sT2}, s{sT1}")
a(f"s_lshl_b32 s{sT3}, s{sT3}, 12")
a(f"s_lshl_b32 s{sT4}, s{sWV}, 12")
a(f"s_add_u32 s{sT4}, s{sT4}, {L_WKV}")
a(f"s_mov_b32 s{R_B+2}, 16384")
a(f"s_mov_b32 m0, s{sT2}")
a(f"s_cmp_eq_u32 s{sKIND}, 0")
a("s_waitcnt lgkmcnt(0)")
ROLE[0] = "H"
if PROBE or OPT.get("sel"):
    stamp(14)
    a(f"s_cmp_eq_u32 s{sKIND}, 0")
a(f"s_cselect_b32 s{R_B}, s{P_WK}, s{P_WV}")
a(f"s_cselect_b32 s{R_B+1}, s{P_WK+1}, s{P_WV+1}")
a(f"s_mov_b32 s{R_A}, s{P_AX}")
a(f"s_and_b32 s{R_A+1}, s{P_AX+1}, 0xffff")
a(f"s_and_b32 s{R_B+1}, s{R_B+1}, 0xffff")
for i in range(4):
    dma(16 + i, R_A, f"s{sT0}")
    a(f"s_add_u32 m0, s{sT2}, {1024*(i+1)}" if i < 3 else f"s_mov_b32 m0, s{sT4}")
    a("s_nop 0")
for i in range(4):
    dma(6, R_B, f"s{sT3}", imm=1024 * i)
p0, p1, p2, vDSK = 60, 61, 62, 63
a(f"global_load_ushort v{p0}, v37, s[{P_LRE}:{P_LRE+1}]")
a(f"global_load_ushort v{p1}, v37, s[{P_LIM}:{P_LIM+1}]")
a(f"global_load_ushort v{p2}, v37, s[{P_LDT}:{P_LDT+1}]")
a(f"global_load_ushort v{vDSK}, v38, s[{P_DSK}:{P_DSK+1}]")
EP0 = int(OPT.get("ep0", 0))
if EP0:
    a(f"s_cmp_eq_u32 s{sWV}, 0")
    a("s_cbranch_scc0 L_h_noep")
a(f"s_load_dword s{sTAG}, s[{P_WS}:{P_WS+1}], 0")
lab("L_h_noep")
a("s_barrier")

sec("AL")
lab("L_attn"); ROLE[0] = "A"
cm("pull the kernel's code towards this XCD's L2")
a(f"s_getpc_b64 s[{sM}:{sM+1}]")
lab("L_pc")
a(f"s_sub_u32 s{sM}, s{sM}, L_pc - {NAME}_kernel")
a(f"s_subb_u32 s{sM+1}, s{sM+1}, 0")
SPF = int(OPT.get("spf", 0))
if SPF:
    a(f"s_lshl_b32 s{sT3}, s{sWV}, 7")
    a(f"s_add_u32 s{sRET}, s{sM}, s{sT3}")
    a(f"s_addc_u32 s{sRET+1}, s{sM+1}, 0")
    for i in range(SPF):
        a(f"s_load_dword s{sCNT}, s[{sRET}:{sRET+1}], {512*i + 256}")
CSH = int(OPT.get("csh", 32))
NLN = -(-176 // (4 * CSH))
a(f"s_and_b32 s{sT2}, s{sT1}, {CSH-1}")
a(f"s_lshl2_add_u32 s{sT2}, s{sT2}, s{sWV}")
a(f"s_mul_i32 s{sT2}, s{sT2}, {128*NLN}")
CSK = int(OPT.get("csk", 0))
if CSK: a(f"s_add_u32 s{sT2}, s{sT2}, {CSK}")
a("v_lshlrev_b32 v32, 7, v0")
a(f"v_min_u32 v32, {128*(NLN-1)}, v32")
a(f"v_add_u32 v32, s{sT2}, v32")
a(f"v_min_u32 v32, L_slow - {NAME}_kernel, v32")
CPF = int(OPT.get("cpf", 0))
if CPF == 0:
    a(f"s_cmp_ge_u32 s{sT2}, L_slow - {NAME}_kernel")
    a("s_cbranch_scc1 L_nocpf")
    a(f"s_mov_b64 exec, {(1 << NLN) - 1}")
    a(f"global_load_dword v33, v32, s[{sM}:{sM+1}]")
    a("s_mov_b64 exec, -1")
    lab("L_nocpf")
vIDX, vZ, vAD, vAS, vAQ, vPG, vQ = 1, 2, 4, 5, 6, 7, 8
vCA, vONEA = 12, 13
S0, S1, vO, KV = 16, 32, 48, 64
cm("zero sync counters + progress words")
a("v_mov_b32 v2, 0")
a("v_mov_b32 v3, 0")
a("v_mov_b32 v4, 0")
a("v_mov_b32 v5, 0")
a(f"v_add_u32 v7, {L_PROG}, v6")
a("ds_write_b128 v7, v[2:5]")
a("ds_write_b128 v7, v[2:5] offset:1024")
a(f"v_lshl_add_u32 v14, s{sWV}, 2, v12")
a("v_xor_b32 v15, v13, v14")
a("v_lshlrev_b32 v15, 4, v15")
a("v_lshl_add_u32 v16, v14, 10, v15")
def wo_voff(dst, t):
    a(f"v_lshrrev_b32 v{t}, 3, v0")
    a(f"v_and_b32 v{t+1}, 7, v0")
    a(f"v_lshrrev_b32 v{t+2}, 2, v0")
    a(f"v_and_b32 v{t+2}, 4, v{t+2}")
    a(f"v_xor_b32 v{t+1}, v{t+1}, v{t+2}")
    a(f"v_lshlrev_b32 v{t+1}, 4, v{t+1}")
    a(f"v_lshl_add_u32 v{dst}, v{t}, 10, v{t+1}")
wo_voff(17, 20)
def wslice_setup():
    a(f"s_lshl_b32 s{sT0}, s{sG}, 7")
    a(f"s_lshl_b32 s{sT1}, s{sWV}, 15")
    a(f"s_add_u32 s{sT0}, s{sT0}, s{sT1}")
    a(f"s_lshl_b32 s{sT1}, s{sWV}, 12")
wslice_setup()
a(f"s_lshl_b32 s{sT4}, s{sRB}, 16")
a(f"s_lshl_b32 s{sT5}, s{sWV}, 10")
for m in range(1, 4):
    a(f"s_add_u32 s{sT2}, s{sGRP}, {m}")
    a(f"s_and_b32 s{sT2}, s{sT2}, 3")
    a(f"s_lshl_b32 s{sT3}, s{sT2}, 14")
    a(f"s_add_u32 s{95+m}, s{sT3}, s{sT4}")
    a(f"s_lshl_b32 s{sT3}, s{sT2}, 12")
    a(f"s_add_u32 s{98+m}, s{sT3}, s{sT5}")
a(f"s_mov_b32 s{R_B+2}, {512*1024}")
a(f"v_mov_b32 v{vCA}, {L_CNT}")
a(f"v_mov_b32 v{vONEA}, 1")
a("s_waitcnt lgkmcnt(0)")
a(f"s_mov_b32 s{R_A}, s{P_AX}")
a(f"s_and_b32 s{R_A+1}, s{P_AX+1}, 0xffff")
a(f"s_mov_b32 s{R_B}, s{P_WQ}")
a(f"s_and_b32 s{R_B+1}, s{P_WQ+1}, 0xffff")
if STAMPS:
    a("s_mov_b32 s81, 0")
    a("s_mov_b32 s93, 0")
a("s_barrier")
def qops(sl):
    a(f"s_add_u32 s{sT3}, s{sROT}, {sl}")
    a(f"s_and_b32 s{sT3}, s{sT3}, 3")
    a(f"s_lshl_b32 s{sT4}, s{sT3}, 8")
    a(f"s_lshl_b32 s{sT3}, s{sT3}, 17")
    a(f"s_add_u32 s{sT3}, s{sT3}, s{sT0}")
    for m in range(1, 4):
        a(f"s_add_u32 m0, s{98+m}, {L_XA + 16384*sl}")
        a(f"s_add_u32 s{sT2}, s{95+m}, s{sT4}")
        dma(16, R_A, f"s{sT2}")
    for i in range(4):
        a(f"s_add_u32 m0, s{sT1}, {L_WQ + 16384*sl + 1024*i}")
        a(f"s_add_u32 s{sT2}, s{sT3}, {8192*i}")
        dma(17, R_B, f"s{sT2}")
if CPF == 1: a(f"global_load_dword v33, v32, s[{sM}:{sM+1}]")
QW = int(OPT.get("qw", 0))
for sl in range(QW): qops(sl)
PFW, PFU = int(OPT.get("pfw", 1)), OPT.get("pfu", "")
if PFW:
    cm("warm L2 with this workgroup's quarter of its Wq slice")
    a(f"s_and_b32 s{sT2}, s{sRB}, 3")
    a(f"s_lshl2_add_u32 s{sT2}, s{sT2}, s{sWV}")
    a(f"s_lshl_b32 s{sT2}, s{sT2}, 15")
    a(f"s_lshl_b32 s{sT3}, s{sG}, 7")
    a(f"s_add_u32 s{sT2}, s{sT2}, s{sT3}")
    a("v_and_b32 v20, 31, v0")
    a("v_lshlrev_b32 v20, 10, v20")
    a("s_mov_b32 exec_hi, 0")
    a(f"buffer_load_dword v34, v20, {sr(R_B,4)}, s{sT2} offen")
    a("s_mov_b64 exec, -1")
def pfu(which):
    cm("pull this wave's 1/1024 share of later inputs out of HBM")
    a(f"s_lshl2_add_u32 s{sT2}, s2, s{sWV}")
    a("v_lshlrev_b32 v26, 7, v0")
    for i, ch in enumerate(which):
        ptr, lines = {"x": (P_BX, 16), "r": (P_BRE, 4), "i": (P_BIM, 4), "c": (P_CRE, 4), "d": (P_CIM, 4), "o": (P_WO, 4)}[ch]
        a(f"s_mul_i32 s{sT3}, s{sT2}, {128*lines}")
        a(f"v_add_u32 v21, s{sT3}, v26")
        a(f"s_mov_b64 exec, {(1 << lines) - 1}")
        a(f"global_load_dword v{35+i}, v21, s[{ptr}:{ptr+1}]")
        a("s_mov_b64 exec, -1")
if PFU: pfu(PFU)
TLB = OPT.get("tlb", "")
if TLB:
    cm("first touch of pages that are needed later on latency-critical paths")
    a(f"s_cmp_eq_u32 s{sWV}, 0")
    a("s_cbranch_scc0 L_notlb")
    a(f"s_lshl_b32 s{sT2}, s2, 7")
    a(f"s_add_u32 s{sT2}, s{sT2}, 0x8000")
    a(f"v_mov_b32 v26, s{sT2}")
    a("s_mov_b64 exec, 1")
    for i, ch in enumerate(TLB):
        ptr = {"w": P_WS, "x": P_BX, "r": P_BRE, "i": P_BIM, "c": P_CRE, "d": P_CIM, "o": P_WO}[ch]
        a(f"global_load_dword v{36+i}, v26, s[{ptr}:{ptr+1}]")
    a("s_mov_b64 exec, -1")
    lab("L_notlb")
srd(R_WS, P_WS, WS_SIZE)
a(f"s_mov_b32 s{sSYNC}, 0")
a(f"s_mov_b32 s{sLO}, {f32(L_LO)}")
a(f"s_mov_b32 s{sHI}, {f32(L_HI)}")
cm("prefill V regs: rows 16 and 20 = ones, other rows >=16 zero")
a("v_and_b32 v24, 27, v0")
a("v_cmp_eq_u32 vcc, 16, v24")
a("v_mov_b32 v25, 0x3f803f80")
a("s_nop 0")
a("v_cndmask_b32 v24, 0, v25, vcc")
a("v_mov_b32 v25, v24")
for t in range(16):
    for j in range(4):
        a(f"v_mov_b64 {vr(KV+12*t+4+2*j,2)}, v[24:25]")
a("v_mov_b32 v14, v6")
a("v_lshrrev_b32 v24, 5, v0")
a("v_and_b32 v25, 15, v0")
a("v_lshl_add_u32 v15, v24, 4, v25")
a("v_lshlrev_b32 v15, 4, v15")
a(f"v_mov_b32 v{vIDX}, 0xdddddddd")
a(f"s_lshl_b32 s{sT2}, s{sWV}, 11")
a(f"v_add_u32 v{vAD}, s{sT2}, v14")
a(f"s_lshl_b32 s{sT2}, s{sWV}, 2")
a(f"s_add_u32 s{sT3}, s{sT2}, {L_PART + 8192}")
a(f"v_add_u32 v{vAS}, s{sT3}, v14")
a(f"s_add_u32 s{sT3}, s{sT2}, {L_PROG}")
a(f"v_add_u32 v{vPG}, s{sT3}, v14")
a(f"v_add_u32 v{vAQ}, {L_QF}, v14")
a(f"v_lshlrev_b32 v23, {FSH}, v0")
a("s_barrier")
a(f"ds_read_b32 v20, v{vCA} offset:{C_TAG}")
if "1" in SX: spx("r", 0, 14)
B0 = int(OPT.get("b0", 0))
for sl in range(QW, 4):
    qops(sl)
    if sl + 1 == B0:
        a(f"s_waitcnt vmcnt({7*(B0-1)})")
        a("s_barrier")
PFL = OPT.get("pfl", "")
if PFL: pfu(PFL)
NL = len(PFL)
a(f"s_waitcnt vmcnt({14+NL}) lgkmcnt(0)")
a("s_barrier")
a(f"v_readfirstlane_b32 s{sTAG}, v20")
cm("scalars for the tail")
sKV = sT0
a(f"s_sub_u32 s{sSTEP}, 7, s{sWV}")
o_offsets()
a(f"s_mov_b32 s{sF1}, s{sT0}")
a(f"s_mov_b32 s{sF2}, s{sT1}")
a(f"s_mul_i32 s{sT2}, s{sSTEP}, {PSTRIDE}")
a(f"s_lshr_b32 s{sT4}, s{sWV}, 1")
a(f"s_lshl1_add_u32 s{sYG}, s{sRB}, s{sT4}")
a(f"s_lshl_b32 s{sCG}, s{sYG}, 12")
a(f"s_add_u32 s{sCG}, s{sCG}, {WS_FO + 16*128}")
srd(R_B, P_OUT, 2048 * 4096)
a(f"s_and_b32 s{sT0}, s{sWV}, 1")
a(f"s_lshl1_add_u32 s{sT0}, s{sG}, s{sT0}")
a(f"s_lshl_b32 s{sT0}, s{sT0}, 7")
a(f"s_lshl_b32 s{sT3}, s{sYG}, 17")
a(f"s_add_u32 s{sT3}, s{sT3}, s{sT0}")
a(f"s_lshl_b32 s{sT6}, s{sYG}, 15")
a(f"s_add_u32 s{sT6}, s{sT6}, {WS_O + 16384}")
a(f"s_mul_i32 s{sT4}, s{sWV}, {PSTRIDE}")
a(f"s_lshl_b32 s{sT5}, s{sWV}, 9")
a(f"s_add_u32 s{sT5}, s{sT5}, {L_CS}")
a(f"s_lshl_b32 s{sT0}, s{sWV}, {FSH+6}")
a(f"s_add_u32 s{sT0}, s{sT0}, {WS_FKV}")
stamp(1)
if "2" in SX: spx("i", 0, 14)
SU = OPT.get("su", "")
if "a" in SU: spf([(P_BX, 16, 0, 14)])
if "b" in SU: spf([(P_BRE, 4, 0, 4), (P_BIM, 4, 0, 4), (P_BX, 16, 0, 6)])
a(f"s_waitcnt vmcnt({7+NL})")
a("s_barrier")
PE = int(OPT.get("pe", 1))
if PE == 2:
    a(f"buffer_load_dword v22, v23, {sr(R_WS,4)}, s{sT0} offen sc1")
    a(f"s_waitcnt vmcnt(1)")
else:
    a(f"s_waitcnt vmcnt({NL})")
if PE == 1: a(f"buffer_load_dword v22, v23, {sr(R_WS,4)}, s{sT0} offen sc1")
a("s_barrier")
a("s_branch L_a2")
sec("A")
lab("L_a2")
stamp(2)
for _ in range(int(OPT.get("pd", 0))): a("s_sleep 2")
a(f"s_mov_b32 s{sCNT}, {POLL_LIMIT}")
if PE: a("s_branch L_a_kvq")
lab("L_a_kvp")
a(f"buffer_load_dword v22, v23, {sr(R_WS,4)}, s{sT0} offen sc1")
lab("L_a_kvq")
a("s_waitcnt vmcnt(0)")
a(f"v_xor_b32 v22, s{sTAG}, v22")
a("v_cmp_lt_u32 vcc, 15, v22")
a("s_cbranch_vccz L_a_kvok")
a(f"s_sub_u32 s{sCNT}, s{sCNT}, 1")
a("s_cbranch_scc0 L_a_kvp")
lab("L_a_kvok")
stamp(4)
a(f"s_lshl_b32 s{sT0}, s{sWV}, 15")
a(f"s_add_u32 s{sT0}, s{sT0}, {WS_KV}")
a(f"s_mov_b32 s{sM}, 0xffff")
a(f"s_mov_b32 s{sM+1}, 0xffff")
def kvload(tp):
    for t in (2*tp, 2*tp+1):
        a(f"buffer_load_dwordx4 {vr(KV+12*t,4)}, v14, {sr(R_WS,4)}, s{sT0} offen offset:{2048*(t&1)} sc1")
    a(f"s_mov_b64 exec, s[{sM}:{sM+1}]")
    for t in (2*tp, 2*tp+1):
        a(f"buffer_load_dwordx4 {vr(KV+12*t+4,4)}, v15, {sr(R_WS,4)}, s{sT0} offen offset:{2048*(t&1)+1024} sc1")
        a(f"buffer_load_dwordx4 {vr(KV+12*t+8,4)}, v15, {sr(R_WS,4)}, s{sT0} offen offset:{2048*(t&1)+1536} sc1")
    a("s_mov_b64 exec, -1")
    if tp < 7: a(f"s_add_u32 s{sT0}, s{sT0}, 4096")
NINIT = int(OPT.get("ninit", 3))
A4POS = int(OPT.get("a4", 8))
ABPOS = int(OPT.get("ab", 0))
NB = int(OPT.get("nb", NINIT))
for tp in range(NB):
    kvload(tp)
cm("do all 32 workgroups of this id class share this XCD?")
a(f"s_bfe_u32 s{sT1}, s2, 0x20001")
a(f"s_cmp_eq_u32 s{sT1}, s{sWV}")
a("s_cbranch_scc0 L_a_nomode")
a(f"s_getreg_b32 s{sT1}, hwreg(HW_REG_XCC_ID, 0, 4)")
a(f"v_cmp_ne_u32 vcc, s{sT1}, v22")
a("s_bitcmp1_b32 s2, 0")
a(f"s_cselect_b32 s{sT1}, vcc_hi, vcc_lo")
a(f"s_cmp_eq_u32 s{sT1}, 0")
a(f"s_cselect_b32 s{sT1}, {2 if OPT.get('nolocal') else 1}, 2")
a(f"v_mov_b32 v21, s{sT1}")
a(f"ds_write_b32 v{vCA}, v21 offset:{C_MODE}")
lab("L_a_nomode")
assert NINIT < 8
stamp(5)
a("s_barrier")
a("s_setprio 1")
a(f"ds_read_b128 {vr(vQ,4)}, v{vAQ}")
a(f"v_add_u32 v{vAQ}, 1024, v{vAQ}")
for tp in range(NB, NINIT): kvload(tp)
a(f"s_waitcnt vmcnt({6*(NINIT-1)+4}) lgkmcnt(0)")
stamp(6)
cstamp(10)

K_ = lambda t: KV + 12 * t
V1 = lambda t: KV + 12 * t + 4
V2 = lambda t: KV + 12 * t + 8
def ex(X, i): a(f"v_exp_f32 v{X+i}, v{X+i}")
def exs(X, lo, hi):
    for i in range(lo, hi): ex(X, i)
def smf(v, p): a(f"v_smfmac_f32_32x32x32_bf16 {vr(vO,16)}, {vr(v,4)}, {vr(p,8)}, v{vIDX}")
def qk(d, t): mfma32(d, K_(t), vQ, "0")
def zeroO(): a(f"v_mfma_f32_32x32x8_bf16 {vr(vO,16)}, {vr(vZ,2)}, {vr(vZ,2)}, 0")
def dump():
    a(f"ds_write_b128 v{vAD}, {vr(vO,4)}")
    a(f"ds_write_b128 v{vAD}, {vr(vO+4,4)} offset:1024")
    a(f"ds_write_b32 v{vAS}, v{vO+8}")
    a(f"ds_write_b32 v{vPG}, v{vAS}")

KVS = int(OPT.get('kvs', 2))
QPF = int(OPT.get('qpf', 0))
PQ, PS1 = [int(x) for x in OPT.get('pos', '7,12').split(',')]
assert not QPF
UN2 = int(OPT.get("un2", 0))
def dump2(off):
    a(f"ds_write_b128 v{vAD}, {vr(vO,4)}" + (f" offset:{off}" if off else ""))
    a(f"ds_write_b128 v{vAD}, {vr(vO+4,4)} offset:{1024+off}")
    a(f"ds_write_b32 v{vAS}, v{vO+8}")
    a(f"ds_write_b32 v{vPG}, v{vAS}")
def tiles_1_15(first):
    issued = [NINIT + 1 if first else 8]
    def preqk(tn):
        if first and tn % 2 == 0 and tn < 16:
            a(f"s_waitcnt vmcnt({6*(min(issued[0],8) - 1 - tn//2)})")
    def more(t):
        if first and t % KVS == 0 and issued[0] < 8:
            kvload(issued[0]); issued[0] += 1
            if issued[0] in (A4POS, ABPOS): signal(vCA, vONEA, C_A4)
    for t in range(1, 16):
        X, Y = (S0, S1) if t % 2 == 0 else (S1, S0)
        exs(X, 0, 2); smf(V2(t - 1), Y + 8); exs(X, 2, PQ)
        if t == 15:
            a("s_waitcnt lgkmcnt(0)")
            if DBG == "steps":
                a(f"s_sub_u32 m0, 7, s{sSTEP}")
                a("s_nop 0")
                a(f"s_movreld_b32 s81, s{sST}")
            qk(Y, 0)
        else:
            preqk(t + 1)
            qk(Y, t + 1)
        if t == 14 and DBG == "steps": a(f"s_memtime s[{sST}:{sST+1}]")
        if t == 14:
            a(f"ds_read_b128 {vr(vQ,4)}, v{vAQ}")
            a(f"v_add_u32 v{vAQ}, 1024, v{vAQ}")
        exs(X, PQ, PS1); smf(V1(t), X); more(t); exs(X, PS1, 16)

qk(S0, 0)
zeroO()
a(f"s_mov_b32 s{sSTEP}, 7")
kvload(NINIT)
if NINIT + 1 in (A4POS, ABPOS): signal(vCA, vONEA, C_A4)
exs(S0, 0, 4); qk(S1, 1); exs(S0, 4, 12)
a(f"s_waitcnt vmcnt({6*NINIT})")
smf(V1(0), S0); exs(S0, 12, 16)
tiles_1_15(True)
a(f"s_mov_b32 s{sSTEP}, 6")
a("s_nop 0")
lines.append(".p2align 6")
lab("L_a_loop")
cm("tile 0: finish the previous q-tile (6 exps = 48+ cycles cover the accumulator latency), restart the accumulator")
X, Y = S0, S1
smf(V2(15), Y + 8); exs(X, 0, 3); qk(Y, 1); exs(X, 3, 6)
dump()
ex(X, 6); zeroO(); exs(X, 7, 12)
a(f"v_add_u32 v{vAD}, {PSTRIDE}, v{vAD}")
a(f"v_add_u32 v{vAS}, {PSTRIDE}, v{vAS}")
smf(V1(0), X)
exs(X, 12, 16)
tiles_1_15(False)
a(f"s_sub_u32 s{sSTEP}, s{sSTEP}, 1")
a("s_cbranch_scc0 L_a_loop")

lab("L_a_fin")
smf(V2(15), S1 + 8)
a("v_lshlrev_b32 v14, 4, v0")
a(f"v_mov_b32 v{vCA}, {L_CNT}")
a(f"v_add_u32 v9, s{sT2}, v14")
a("v_and_b32 v10, 3, v0")
a("v_lshlrev_b32 v10, 2, v10")
a(f"v_add_u32 v10, {L_PROG}, v10")
a(f"s_add_u32 s{sT2}, s{sT2}, {L_PART + 8192}")
a(f"v_add_u32 v6, s{sT4}, v14")
a("v_lshlrev_b32 v16, 2, v0")
a(f"v_mov_b32 v17, s{sTAG}")
a("s_setprio 3")
dump()
a("v_lshlrev_b32 v7, 3, v0")
a(f"v_add_u32 v7, s{sT5}, v7")
a(f"s_mov_b32 s{sKIND}, 0")
stamp(7)
cstamp(11)
lab("L_a_rw")
a("ds_read_b32 v11, v10")
a(f"ds_read_b32 v8, v{vCA} offset:{C_MODE}")
a("ds_read_b128 v[52:55], v9 offset:8192")
for w in range(8):
    a(f"ds_read_b128 {vr(20+4*w,4)}, v9 offset:{1024*w}")
a("ds_read_b128 v[56:59], v6 offset:8192")
WSH = int(OPT.get("wsh", 1))
if WSH:
    a(f"ds_read_b32 v60, v{vCA} offset:{C_GH}")
    a("ds_read_b64 v[4:5], v7")
a(f"s_waitcnt lgkmcnt({11 if WSH else 9})")
a(f"v_cmp_gt_u32 vcc, s{sT2}, v11")
a("s_cbranch_vccnz L_a_rw")
a(f"v_readfirstlane_b32 s{sMODE}, v8")
a(f"s_mov_b32 s{sT1}, s{sF2}")
sum_check(52)
a(f"s_waitcnt lgkmcnt({3 if WSH else 1})")
a("s_cbranch_scc1 L_a_bad1")
reduce_math(20, 14, flag=False, bs=52)
a("v_and_b32 v15, 15, v0")
a("v_lshlrev_b32 v15, 7, v15")
a(f"s_lshl_b32 s{sT0}, s{sWV}, 2")
a(f"v_add_u32 v10, s{sT0}, v{vCA}")
AO, AW, AC = 88, 152, 48
NSH = int(OPT.get("nsh", 12)); WG0 = int(OPT.get("wg0", 15))
def awread(k):
    o = PSTRIDE * (k // 4) + 2048 * (k % 4)
    a(f"ds_read_b64_tr_b16 {vr(AW+4*k,2)}, v4 offset:{o}")
    a(f"ds_read_b64_tr_b16 {vr(AW+4*k+2,2)}, v4 offset:{o+1024}")
if WSH:
    a("s_waitcnt lgkmcnt(0)")
    a("v_cmp_gt_u32 vcc, NSYNC_B2, v60")
    a("s_cbranch_vccnz L_a_nosh")
    a(f"s_mov_b32 s{sKIND}, 1")
    for k in range(NSH): awread(k)
    lab("L_a_nosh")
a("s_waitcnt vmcnt(0)")
a("s_mov_b32 exec_hi, 0")
st2([f"buffer_store_dword v17, v16, {sr(R_WS,4)}, s{sF1} offen@"])
a("s_mov_b64 exec, -1")
lab("L_a_ok1")
stamp(8)
if not WSH: a("s_waitcnt lgkmcnt(0)")
sum_check(56)
a("s_cbranch_scc1 L_a_bad2")
lab("L_a_ok2")
cm("output projection, last 16 heads")
poll(15, f"s{sCG}", 8)
stamp(9)
for g in range(16):
    if g % 4 == 0 and g: a(f"s_add_u32 s{sT6}, s{sT6}, 4096")
    a(f"buffer_load_dwordx4 {vr(AO+4*g,4)}, v14, {sr(R_WS,4)}, s{sT6} offen offset:{1024*(g%4)} sc1")
    if g == WG0:
        a(f"s_cmp_eq_u32 s{sKIND}, 1")
        a("s_cbranch_scc1 L_a_wd")
        lab("L_a_ww")
        a(f"ds_read_b32 v11, v{vCA} offset:{C_GH}")
        a("ds_read_b64 v[4:5], v7")
        a("s_waitcnt lgkmcnt(0)")
        a("v_cmp_gt_u32 vcc, NSYNC_B2, v11")
        a("s_cbranch_vccnz L_a_ww")
        for k in range(NSH): awread(k)
        lab("L_a_wd")
YLT = int(OPT.get("ylt", 0))
if YLT == 1: signal(vCA, vONEA, C_S)
for k in range(NSH, 16): awread(k)
a(f"ds_read_b32 v11, v10 offset:{C_HA}")
for i in range(4):
    a(f"ds_read_b128 {vr(16+4*i,4)}, v6 offset:{1024*i}")
cm("epoch update by WG0 (every workgroup has read the old value long ago)")
a(f"s_lshl2_add_u32 s{sT0}, s2, s{sWV}")
a(f"s_cmp_eq_u32 s{sT0}, 0")
a("s_cbranch_scc0 L_a_noep")
setflag(8, 9, sT0)
lab("L_a_noep")
for g in range(16):
    a(f"s_waitcnt vmcnt({15-g}) lgkmcnt({min(15, 5 + 2*(15-g))})")
    mfma32(AC, AO + 4*g, AW + 4*g, "0" if g == 0 else None)
if YLT == 2: signal(vCA, vONEA, C_S)
stamp(13)
a("s_waitcnt lgkmcnt(0)")
a("v_cmp_eq_u32 vcc, 0, v11")
a("s_cbranch_vccz L_a_hok")
lab("L_a_hw")
a(f"ds_read_b32 v11, v10 offset:{C_HA}")
for i in range(4):
    a(f"ds_read_b128 {vr(16+4*i,4)}, v6 offset:{1024*i}")
a("s_waitcnt lgkmcnt(0)")
a("v_cmp_eq_u32 vcc, 0, v11")
a("s_cbranch_vccnz L_a_hw")
lab("L_a_hok")
a("s_nop 8")
stamp(14)
for j in range(8):
    a(f"v_pk_add_f32 {vr(AC+2*j,2)}, {vr(AC+2*j,2)}, {vr(16+2*j,2)}")
    for r in (2*j, 2*j + 1):
        a(f"s_add_u32 s{sT1}, s{sT3}, {4096 * (8*(r//4) + r%4)}")
        a(f"buffer_store_dword v{AC+r}, v5, {sr(R_B,4)}, s{sT1} offen{OUTFL}")
a("s_branch L_end")

sec("P")
ROLE[0] = "H"
if STAMPS:
    a("s_mov_b32 s81, 0")
    a("s_mov_b32 s92, 0")
    a("s_mov_b32 s93, 0")
srd(R_WS, P_WS, WS_SIZE)
a("v_xor_b32 v14, v12, v13")
a("v_lshlrev_b32 v14, 4, v14")
a("v_lshl_add_u32 v14, v13, 8, v14")
a(f"v_add_u32 v8, s{sT2}, v14")
for ks in range(1, 4):
    a(f"v_xor_b32 v{8+ks}, {64*ks}, v8")
a("v_lshrrev_b32 v14, 2, v13")
a("v_lshl_add_u32 v14, v12, 3, v14")
a("v_lshlrev_b32 v14, 5, v14")
a("v_and_b32 v15, 3, v0")
a("v_lshl_add_u32 v14, v15, 3, v14")
a(f"v_add_u32 v14, s{sT4}, v14")
a(f"s_lshl_b32 s{sT0}, s{sWV}, 10")
a(f"s_add_u32 s{sT0}, s{sT0}, {L_KVP}")
a(f"v_add_u32 v15, s{sT0}, v6")
a(f"s_lshl_b32 s{sT0}, s{sRB}, 2")
a(f"s_add_u32 s{sT0}, s{sT0}, s{sGRP}")
a(f"s_lshr_b32 s{sT1}, s{sT0}, 1")
a(f"s_lshl_b32 s{sT1}, s{sT1}, 1")
a(f"s_add_u32 s{sT1}, s{sT1}, s{sKIND}")
a(f"s_lshl_b32 s{sT1}, s{sT1}, 10")
a(f"s_and_b32 s{sT2}, s{sT0}, 1")
a(f"s_add_u32 s{sT3}, s{sKIND}, 8")
a(f"s_lshl_b32 s{sT2}, s{sT2}, s{sT3}")
a(f"s_add_u32 s{sT1}, s{sT1}, s{sT2}")
a(f"s_add_u32 s{sT5}, s{sT1}, {WS_KV}")
a(f"s_lshl_b32 s{sT0}, s{sT0}, 1")
a(f"s_add_u32 s{sT0}, s{sT0}, s{sKIND}")
a(f"s_lshl_b32 s{sT0}, s{sT0}, {FSH}")
a(f"s_add_u32 s{sT6}, s{sT0}, {WS_FKV}")
a(f"s_cmp_eq_u32 s{sKIND}, 0")
a(f"s_cselect_b32 s{sT0}, 9, 3")
a(f"s_cselect_b32 s{sT1}, 3, 8")
a("v_and_b32 v34, 1, v12")
a("v_lshrrev_b32 v35, 1, v12")
a("v_lshlrev_b32 v16, 4, v13")
a(f"v_lshl_add_u32 v16, v34, s{sT0}, v16")
a(f"v_lshl_add_u32 v16, v35, s{sT1}, v16")
a(f"v_mov_b32 v{vCNT}, {L_CNT}")
a(f"v_mov_b32 v{vONE}, 1")
a("s_waitcnt lgkmcnt(0)")
a(f"s_mul_i32 s{sTAG}, s{sTAG}, 1664525")
a(f"s_add_u32 s{sTAG}, s{sTAG}, 1013904223")
if EP0:
    a(f"s_cmp_eq_u32 s{sWV}, 0")
    a("s_cbranch_scc0 L_h_notag")
a(f"v_mov_b32 v36, s{sTAG}")
a(f"ds_write_b32 v{vCNT}, v36 offset:{C_TAG}")
lab("L_h_notag")
a(f"s_cmp_eq_u32 s{sKIND}, 0")
a(f"s_waitcnt vmcnt(4)")
stamp(1)
b = 128
for ks in range(4):
    a(f"ds_read_b128 {vr(b+8*ks,4)}, v{8+ks}")
    a(f"ds_read_b64_tr_b16 {vr(b+8*ks+4,2)}, v14 offset:{1024*ks}")
    a(f"ds_read_b64_tr_b16 {vr(b+8*ks+6,2)}, v14 offset:{1024*ks+128}")
def kvproj(kind):
    for ks in range(4):
        a(f"s_waitcnt lgkmcnt({9 - 3*ks})")
        x, w = vr(b+8*ks, 4), vr(b+8*ks+4, 4)
        if kind == 0: x, w = w, x
        a(f"v_mfma_f32_16x16x32_bf16 v[40:43], {x}, {w}, {'0' if ks == 0 else 'v[40:43]'}")
a("s_cbranch_scc0 L_h_vproj")
kvproj(0)
a("s_branch L_h_kvdone")
lab("L_h_vproj")
kvproj(1)
lab("L_h_kvdone")
a(f"s_cmp_eq_u32 s{sWV}, 0")
a("s_cbranch_scc1 L_h_pub")
a("s_nop 5")
a("ds_write_b128 v15, v[40:43]")
a("s_waitcnt lgkmcnt(0)")
a("s_barrier")
a("s_branch L_h_common")
lab("L_h_pub")
a("s_barrier")
for i in range(1, 4):
    a(f"ds_read_b128 {vr(40+4*i,4)}, v15 offset:{1024*i}")
a("s_nop 1")
a("s_waitcnt lgkmcnt(0)")
a("v_pk_add_f32 v[40:41], v[40:41], v[44:45]")
a("v_pk_add_f32 v[42:43], v[42:43], v[46:47]")
a("v_pk_add_f32 v[48:49], v[48:49], v[52:53]")
a("v_pk_add_f32 v[50:51], v[50:51], v[54:55]")
a("v_pk_add_f32 v[40:41], v[40:41], v[48:49]")
a("v_pk_add_f32 v[42:43], v[42:43], v[50:51]")
a("v_cvt_pk_bf16_f32 v40, v40, v41")
a("v_cvt_pk_bf16_f32 v41, v42, v43")
a(f"buffer_store_dwordx2 v[40:41], v16, {sr(R_WS,4)}, s{sT5} offen sc1")
dstamp("p", 5)
a("s_branch L_h_common")
sec("HQ")
lab("L_h_common")
if "3" in SX: spx("x", 0, 15)
a(f"s_mov_b32 s{sSYNC}, 0")
a("v_and_b32 v17, 31, v0")
a("v_lshrrev_b32 v18, 5, v0")
p0, p1, p2, vDSK = 60, 61, 62, 63
cm("Q projection addresses")
QXA = list(range(48, 56))
a(f"s_lshr_b32 s{sT0}, s{sWV}, 1")
a(f"s_lshl_b32 s{sT0}, s{sT0}, 13")
a("v_xor_b32 v34, v13, v18")
a("v_lshlrev_b32 v34, 4, v34")
a("v_lshl_add_u32 v34, v17, 8, v34")
a(f"v_add_u32 v{QXA[0]}, s{sT0}, v34")
for ks in range(1, 8):
    a(f"v_xor_b32 v{QXA[ks]}, {32*ks}, v{QXA[0]}")
wtr_addr(vWT, 9, L_R1, 34)
a(f"v_lshl_add_u32 v56, v18, 9, v{vWT}")
a(f"v_add_u32 v56, {(L_WQ - L_R1) & 0xffffffff}, v56")
a(f"s_and_b32 s{sT1}, s{sWV}, 1")
a(f"s_lshl_b32 s{sT1}, s{sT1}, 12")
a(f"s_lshr_b32 s{sT2}, s{sWV}, 1")
a(f"s_lshl_b32 s{sT2}, s{sT2}, 10")
a(f"s_add_u32 s{sT1}, s{sT1}, s{sT2}")
a(f"s_add_u32 s{sT1}, s{sT1}, {L_QF}")
a(f"v_add_u32 v57, s{sT1}, v6")
a(f"v_mov_b32 v58, {f32(0.25 * LOG2E)}")
a("v_mov_b32 v59, v58")
cm("SSM offsets and addresses")
a(f"s_mov_b32 s{R_A}, s{P_BX}")
a(f"s_and_b32 s{R_A+1}, s{P_BX+1}, 0xffff")
srd(R_B, P_BRE, 512 * 1024)
srd(R_C, P_BIM, 512 * 1024)
a(f"s_mov_b32 s{sLO}, {f32(L_LO)}")
a(f"s_mov_b32 s{sHI}, {f32(L_HI)}")
a(f"s_lshl_b32 s{sT0}, s{sC}, 17")
a(f"s_lshl_b32 s{sT1}, s{sWV}, 15")
a(f"s_add_u32 s{sT3}, s{sT0}, s{sT1}")
a(f"s_lshr_b32 s{sT0}, s{sWV}, 1")
a(f"s_lshl1_add_u32 s{sYG}, s{sRB}, s{sT0}")
if YM:
    a(f"s_and_b32 s{sYY}, s{sRB}, 24")
    a(f"s_add_u32 s{sYY}, s{sYY}, s{sG}")
    a(f"s_lshl1_add_u32 s{sYY}, s{sYY}, s{sT0}")
else:
    a(f"s_mov_b32 s{sYY}, s{sYG}")
a(f"s_and_b32 s{sT0}, s{sWV}, 1")
a(f"s_lshl1_add_u32 s{sCG}, s{sGY}, s{sT0}")
a(f"s_lshl_b32 s{sT4}, s{sYY}, 15")
a(f"s_lshl_b32 s{sT2}, s{sCG}, 6")
a(f"s_add_u32 s{sT4}, s{sT4}, s{sT2}")
wo_voff(vWO, 34)
a("v_lshrrev_b32 v36, 2, v0")
a("v_and_b32 v34, 3, v36")
a("v_bfe_u32 v35, v36, 2, 1")
a("v_lshl_add_u32 v34, v35, 4, v34")
a("v_lshrrev_b32 v35, 3, v36")
a("v_lshl_add_u32 v34, v35, 2, v34")
a("v_and_b32 v37, 3, v0")
a("v_lshlrev_b32 v35, 4, v37")
a("v_lshl_add_u32 v8, v34, 10, v35")
a("v_add_u32 v9, 8192, v8")
a(f"v_mul_u32_u24 v{vRB}, {RSTR}, v17")
a(f"v_lshl_add_u32 v{vRB}, v18, 4, v{vRB}")
a(f"v_add_u32 v{vRB}, {L_R1}, v{vRB}")
a(f"s_lshl_b32 s{sT1}, s{sWV}, 11")
a(f"s_add_u32 s{sT1}, s{sT1}, {L_SCR}")
a("v_xor_b32 v34, v12, v37")
a("v_lshlrev_b32 v34, 4, v34")
a("v_lshl_add_u32 v34, v36, 6, v34")
a(f"v_add_u32 v10, s{sT1}, v34")
a("v_bfe_u32 v34, v0, 2, 2")
a("v_xor_b32 v35, v34, v18")
a("v_lshlrev_b32 v35, 4, v35")
a("v_lshl_add_u32 v35, v17, 6, v35")
a(f"v_add_u32 v11, s{sT1}, v35")
a("v_xor_b32 v12, 32, v11")
a("v_lshl_add_u32 v34, v18, 3, v34")
a("v_lshlrev_b32 v34, 6, v34")
a("v_bfe_u32 v35, v0, 4, 1")
a("v_lshl_add_u32 v34, v35, 5, v34")
a("v_lshl_add_u32 v34, v37, 3, v34")
a(f"v_add_u32 v19, s{sT1}, v34")
a("v_lshlrev_b32 v34, 6, v17")
a("v_lshl_add_u32 v34, v18, 5, v34")
a(f"v_add_u32 v16, s{sT1}, v34")
a("v_lshlrev_b32 v38, 4, v18")
a("v_lshl_add_u32 v29, v17, 10, v38")
a("v_lshlrev_b32 v14, 4, v17")
a("s_waitcnt vmcnt(1)")
a(f"s_cmp_eq_u32 s{sWV}, 0")
a("s_cbranch_scc1 L_h_pw")
a("s_waitcnt vmcnt(0)")
lab("L_h_pw")
FPOS = int(OPT.get("fpos", 1))
def kvflag():
    a("s_waitcnt vmcnt(0)")
    a(f"s_cmp_eq_u32 s{sWV}, 0")
    a("s_cbranch_scc0 L_h_nopub")
    a(f"s_getreg_b32 s{sT0}, hwreg(HW_REG_XCC_ID, 0, 4)")
    a(f"s_xor_b32 s{sT0}, s{sT0}, s{sTAG}")
    a("v_mov_b32 v34, 0")
    a(f"v_mov_b32 v35, s{sT0}")
    a("s_mov_b64 exec, 1")
    a(f"buffer_store_dword v35, v34, {sr(R_WS,4)}, s{sT6} offen sc1")
    a("s_mov_b64 exec, -1")
    stamp(2)
    lab("L_h_nopub")
if FPOS == 0: kvflag()
cm("SSM parameters")
q0, q1, q2, q3, q4 = 64, 65, 66, 67, 68
a(f"v_lshlrev_b32 v{p0}, 16, v{p0}")
a(f"v_lshlrev_b32 v{p1}, 16, v{p1}")
a(f"v_lshlrev_b32 v{p2}, 16, v{p2}")
a(f"v_mul_f32 v{p2}, {f32(LOG2E)}, v{p2}")
a(f"v_exp_f32 v{p2}, v{p2}")
a("s_nop 0")
a(f"v_cvt_pk_bf16_f32 v{p2}, v{p2}, v{p2}")
a(f"v_and_b32 v{p2}, 0xffff0000, v{p2}")
a(f"v_mul_f32 v{q0}, v{p2}, v{p0}")
a(f"v_mul_f32 v{q1}, v{p2}, v{p1}")
a(f"v_mul_f32 v{q0}, {f32(LOG2E)}, v{q0}")
a(f"v_mul_f32 v{q1}, {f32(1/(2*math.pi))}, v{q1}")
a(f"v_exp_f32 v{q0}, v{q0}")
a(f"v_rndne_f32 v{q2}, v{q1}")
a(f"v_sub_f32 v{q1}, v{q1}, v{q2}")
a(f"v_cos_f32 v{q2}, v{q1}")
a(f"v_sin_f32 v{q3}, v{q1}")
a(f"v_mul_f32 v{q4}, v{p0}, v{p0}")
a(f"v_fma_f32 v{q4}, v{p1}, v{p1}, v{q4}")
a(f"v_mul_f32 v{vL}, v{q0}, v{q2}")
a(f"v_mul_f32 v{vL+1}, v{q0}, v{q3}")
a(f"v_rcp_f32 v{q4}, v{q4}")
a(f"v_add_f32 v{q2}, -1.0, v{vL}")
a(f"v_add_f32 v{q4}, v{q4}, v{q4}")
a(f"v_mul_f32 v{q0}, v{q2}, v{p0}")
a(f"v_fma_f32 v{q0}, v{vL+1}, v{p1}, v{q0}")
a(f"v_mul_f32 v{q1}, v{vL+1}, v{p0}")
a(f"v_fma_f32 v{q1}, -v{q2}, v{p1}, v{q1}")
a(f"v_mul_f32 v{vCO}, v{q0}, v{q4}")
a(f"v_mul_f32 v{vCO+1}, v{q1}, v{q4}")
cmul(70, vL, vL); cmul(72, 70, 70); cmul(vL8, 72, 72); cmul(vL16_, vL8, vL8)
cm("skip term x*D via a diagonal B operand -> YACC")
YACC = 112
a("v_and_b32 v64, 1, v0")
a("v_lshlrev_b32 v64, 4, v64")
a(f"v_lshlrev_b32 v{vDSK}, v64, v{vDSK}")
a("v_lshrrev_b32 v64, 1, v17")
a("v_lshlrev_b32 v65, 2, v18")
a("v_sub_u32 v64, v64, v65")
for i in range(0, 8, 2):
    a(f"v_cmp_eq_u32 s[{sM}:{sM+1}], {8*(i//4) + i%4}, v64")
    a(f"v_cmp_eq_u32 vcc, {8*(i//4) + i%4 + 1}, v64")
    a("s_nop 0")
    a(f"v_cndmask_b32 v{104+i}, 0, v{vDSK}, s[{sM}:{sM+1}]")
    a(f"v_cndmask_b32 v{105+i}, 0, v{vDSK}, vcc")
if FPOS == 1: kvflag()
cm("per-lane powers: PS = L16^seg, M0 = L256^seg (if valid), M1 = M0*L128 (if valid)")
vPS, vM0, vM1, vO0, vO1 = 96, 98, 100, 102, 103
a(f"s_mov_b32 s{sM}, 0")
a(f"s_mov_b32 s{sM+1}, -1")
def powsel(dst, b1, b2, b4):
    a(f"v_cndmask_b32 v{dst}, 1.0, v{b1}, s[{sM}:{sM+1}]")
    a(f"v_cndmask_b32 v{dst+1}, 0, v{b1+1}, s[{sM}:{sM+1}]")
    for bit, b in ((0, b2), (1, b4)):
        L = uid("ps")
        a(f"s_bitcmp1_b32 s{sWV}, {bit}")
        a(f"s_cbranch_scc0 {L}")
        cmul(66, dst, b)
        a(f"v_mov_b64 {vr(dst,2)}, v[66:67]")
        lab(L)
cmul(68, vL16_, vL16_); cmul(70, 68, 68); cmul(72, 70, 70)
cmul(74, 72, 72); cmul(76, 74, 74); cmul(78, 76, 76)
powsel(vPS, vL16_, 68, 70)
powsel(vM0, 74, 76, 78)
cmul(vM1, vM0, 72)
a(f"s_lshl_b32 s{sT0}, s{sWV}, 2")
a(f"s_sub_u32 s{sT0}, s{sC}, s{sT0}")
a(f"s_sub_u32 s{sT0}, s{sT0}, 1")
a("v_lshlrev_b32 v30, 1, v18")
a(f"v_sub_u32 v{vO0}, s{sT0}, v30")
a(f"v_add_u32 v{vO1}, -1, v{vO0}")
a(f"v_mov_b32 v30, 0")
for (vo, vm) in ((vO0, vM0), (vO1, vM1)):
    a(f"v_cmp_le_i32 vcc, 0, v{vo}")
    a("s_nop 1")
    a(f"v_cndmask_b32 v{vo}, v30, v{vo}, vcc")
    a(f"v_cndmask_b32 v{vm}, 0, v{vm}, vcc")
    a(f"v_cndmask_b32 v{vm+1}, 0, v{vm+1}, vcc")
    a(f"v_lshl_add_u32 v{vo}, v{vo}, 9, v14")
if FPOS == 2: kvflag()
cm("Q projection")
ACC, QD = 32, 4
XR = 128
VM, LG = Cnt(), Cnt()
xq = [(j, h) for j in range(16) for h in range(2)]
def xb1():
    j, h = xq.pop(0)
    a(f"buffer_load_dwordx4 {vr(XR+8*j+4*h,4)}, v{8+h}, {sr(R_A,4)}, s{16+j//4} offen offset:{64*(j%4)}")
    VM.issue(("x", j))
def qs(ks): return 128 + 8 * (ks % 8)
def qread(ks):
    a(f"ds_read_b64_tr_b16 {vr(qs(ks),2)}, v56 offset:{2048*ks}")
    a(f"ds_read_b64_tr_b16 {vr(qs(ks)+2,2)}, v56 offset:{2048*ks+512}")
    a(f"ds_read_b128 {vr(qs(ks)+4,4)}, v{QXA[ks % 8]} offset:{16384*(ks//8)}")
def qm(ks): mfma32(ACC, qs(ks), qs(ks) + 4, "0" if ks == 0 else None)
DR = [int(x) for x in OPT.get("drain", "").split(",") if x]
sec("Z"); sec("HQ")
if "3" in SX: a("s_waitcnt lgkmcnt(0)")
a("s_barrier")
segs = []
k0 = 0
for k1 in DR + [32]:
    segs.append((k0, k1)); k0 = k1
for (k0, k1) in segs:
    if k0: a("s_barrier")
    for ks in range(k0, k0 + QD): qread(ks)
    for ks in range(k0, k1):
        if ks + QD < k1:
            if ks + QD in ((8, 16, 24) if B0 else (16, 24)): a("s_barrier")
            qread(ks + QD)
            a(f"s_waitcnt lgkmcnt(12)")
        else:
            a(f"s_waitcnt lgkmcnt({3*(k1-1-ks)})")
        qm(ks)
a(f"s_lshl_b32 s{sT0}, s{sWV}, 9")
a(f"s_add_u32 s{sT0}, s{sT0}, {L_ES}")
a("v_lshlrev_b32 v13, 3, v0")
a(f"v_add_u32 v13, s{sT0}, v13")
a("v_lshlrev_b32 v15, 3, v17")
a(f"v_add_u32 v15, {L_ES}, v15")
a("v_lshlrev_b32 v1, 2, v17")
a("v_lshl_add_u32 v1, v18, 14, v1")
a(f"s_lshl_b32 s{sT0}, s{sPB}, 15")
a(f"s_lshl_b32 s{sT1}, s{sWV}, 13")
a(f"s_add_u32 s{sT5}, s{sT0}, s{sT1}")
a(f"s_add_u32 s{sT6}, s{sT5}, 4096")
a(f"s_and_b32 s{sT0}, s{sRB}, 3")
a(f"s_lshl2_add_u32 s{sT1}, s{sT0}, s{sWV}")
a(f"s_lshl_b32 s{sT1}, s{sT1}, 15")
a(f"s_lshl_b32 s{sT2}, s{sG}, 7")
a(f"s_add_u32 s{sT1}, s{sT1}, s{sT2}")
a("v_lshlrev_b32 v18, 10, v17")
a(f"v_add_u32 v18, s{sT1}, v18")
if YM:
    a(f"s_lshl3_add_u32 s{sT0}, s{sGY}, s{sG}")
    a(f"s_lshl_b32 s{sT0}, s{sT0}, 13")
    a(f"s_and_b32 s{sT1}, s{sWV}, 1")
    a(f"s_lshl_b32 s{sT1}, s{sT1}, 12")
    a(f"s_add_u32 s{sT0}, s{sT0}, s{sT1}")
    a("v_lshlrev_b32 v17, 7, v17")
else:
    a(f"s_lshl2_add_u32 s{sT0}, s{sG}, s{sT0}")
    a(f"s_lshl_b32 s{sT0}, s{sT0}, 14")
    a(f"s_and_b32 s{sT1}, s{sWV}, 1")
    a(f"s_lshl_b32 s{sT1}, s{sT1}, 13")
    a(f"s_add_u32 s{sT0}, s{sT0}, s{sT1}")
    a("v_lshlrev_b32 v17, 7, v0")
a(f"v_add_u32 v17, s{sT0}, v17")
a(f"s_cmp_lt_u32 s{sWV}, 2")
a(f"s_cselect_b32 s{sPC}, s{P_CRE}, s{P_CIM}")
a(f"s_cselect_b32 s{sPC+1}, s{P_CRE+1}, s{P_CIM+1}")
a(f"s_and_b32 s{sT0}, s{sWV}, 1")
a(f"s_mul_i32 s{sT0}, s{sT0}, {32*RSTR}")
a(f"v_add_u32 v28, s{sT0}, v{vRB}")
for r in range(0, 16, 2):
    a(f"v_pk_mul_f32 {vr(ACC+r,2)}, {vr(ACC+r,2)}, v[58:59]")
for j in range(8):
    a(f"v_cvt_pk_bf16_f32 v{ACC+j}, v{ACC+2*j}, v{ACC+2*j+1}")
a(f"ds_write_b128 v57, {vr(ACC,4)}")
a(f"ds_write_b128 v57, {vr(ACC+4,4)} offset:2048")
cm("B tile: 4 k-slots of [64 rows x 256B], xor-swizzled; read addresses v112..119, dma voffset v120")
BA = 112
a("v_lshrrev_b32 v121, 4, v0")
a("v_and_b32 v122, 15, v0")
a(f"v_lshl_add_u32 v121, s{sWV}, 2, v121")
a("v_xor_b32 v123, v122, v121")
a("v_lshlrev_b32 v123, 4, v123")
a("v_lshl_add_u32 v120, v121, 10, v123")
a(f"s_lshr_b32 s{sT0}, s{sWV}, 1")
a(f"s_lshl_b32 s{sT0}, s{sT0}, 13")
a(f"s_sub_u32 s{sT0}, {L_R1}, s{sT0}")
for ks in range(8):
    a(f"v_add_u32 v{BA+ks}, s{sT0}, v{QXA[ks]}")
a(f"s_lshl_b32 s{sT5}, s{sPB}, 15")
a(f"s_lshl_b32 s{sT6}, s{sWV}, 10")
UR = OPT.get("urot", "2")
if UR == "0": a(f"s_mov_b32 s{sT0}, 0")
elif UR == "1": a(f"s_add_u32 s{sT0}, s{sC}, s{sPB}")
elif UR == "2": a(f"s_lshr_b32 s{sT0}, s2, 1")
elif UR == "3": a(f"s_mov_b32 s{sT0}, s2")
for sl in range(4):
    a(f"s_add_u32 s{sT1}, s{sT0}, {sl}")
    a(f"s_and_b32 s{sT1}, s{sT1}, 3")
    a(f"s_lshl_b32 s{sT1}, s{sT1}, 8")
    a(f"s_add_u32 s{16+sl}, s{sT3}, s{sT1}")
    a(f"s_add_u32 s{20+sl}, s{sT5}, s{sT1}")
a("s_waitcnt lgkmcnt(0)")
stamp(3)
a("s_barrier")
a("s_branch L_h2")
sec("H")
lab("L_h2")
a("s_setprio 2")
def rows_dma(tag, base=sT5, ore=0, oim=0):
    a(f"s_mul_i32 s{sT1}, s{sWV}, {8*RSTR}")
    for i in range(8):
        a(f"s_add_u32 m0, s{sT1}, {L_R1 + RSTR*i}")
        a(f"s_add_u32 s{sT2}, s{base}, {1024*i + ore}")
        dma(vL4, R_B, f"s{sT2}")
        a(f"s_add_u32 m0, s{sT1}, {L_R1 + RSTR*(32+i)}")
        a(f"s_add_u32 s{sT2}, s{base}, {1024*i + oim}")
        dma(vL4, R_C, f"s{sT2}")
    VM.issue(tag, 16)
def xw(j, h):
    if h == 0: waits(vm=VM.need(("x", j)))
    a(f"ds_write_b128 v10, {vr(XR+8*j+4*h,4)}" + (" offset:1024" if h else ""))
    LG.issue(("xw", j))
def xr(j):
    a(f"ds_read_b128 {vr(XR+8*j,4)}, v11")
    a(f"ds_read_b128 {vr(XR+8*j+4,4)}, v12")
    LG.issue(("x", j), 2)
if "4" in SX:
    spx("x", 15, 17); spx("r", 14, 2); spx("i", 14, 2)
if "5" in SX:
    spx("r", 0, 16); spx("i", 0, 16)
if "6" in SX:
    spx("x", 0, 32); spx("r", 14, 2); spx("i", 14, 2)
if "a" in SU: spf([(P_BRE, 4, 0, 4), (P_BIM, 4, 0, 4), (P_BX, 16, 14, 2)])
if "b" in SU: spf([(P_BX, 16, 6, 10)])
if "c" in SU: spf([(P_BRE, 4, 0, 4), (P_BIM, 4, 0, 4), (P_BX, 16, 0, 16)])
if "d" in SU: spf([(P_CRE, 4, 0, 4), (P_CIM, 4, 0, 4), (P_WO, 4, 0, 4)])
waitc(vCNT, C_A4, 4, 30, sleep=int(OPT.get("a4sl", 0)))
a(f"ds_read_b32 v30, v{vCNT} offset:{C_MODE}")
if EP0: a(f"ds_read_b32 v121, v{vCNT} offset:{C_TAG}")
a("s_setprio 0")
cm("U = x B^T")
XL = int(OPT.get("xl", 2))
def bdma(sl, m):
    a(f"s_add_u32 m0, s{sT6}, {L_R1 + 16384*sl + 4096*m}")
    a(f"s_add_u32 s{sT2}, s{20+sl}, {16384*(m%2)}")
    dma(120, R_B if m < 2 else R_C, f"s{sT2}")
    if sl == 0 and OPT.get("bp") == "1": pace()
    VM.issue(("B", sl))
lq = []
for it in OPT.get("uord", "B0,0,1,2,3,B1,4,5,6,7,B2,8,9,10,11,B3,12,13,14,15").split(","):
    lq += [("B", int(it[1]), m) for m in range(4)] if it[0] == "B" else [("x",), ("x",)]
if OPT.get("mix", "1") == "1":
    for sl in range(1, 4):
        i = lq.index(("B", sl, 0))
        xs, bs_ = lq[i-4:i], lq[i:i+4]
        lq[i-4:i+4] = [y for p in zip(xs, bs_) for y in p]
def ld1(n=1):
    for _ in range(n):
        if not lq: return
        it = lq.pop(0)
        if it[0] == "B": bdma(it[1], it[2])
        else: xb1()
CB = [C_H0, C_H1, C_H2, C_H3]
sigd = set()
def bsig(force=None):
    for sl in range(4):
        issued = not any(it[:2] == ("B", sl) for it in lq)
        if sl in sigd or not issued: continue
        if sl == force: waits(vm=VM.need(("B", sl)))
        if ("B", sl) not in VM.q:
            signal(vCNT, vONE, CB[sl]); LG.issue("sig"); sigd.add(sl)
ld1(int(OPT.get("u0", 12)))
bsig(0)
ld1(int(OPT.get("u1", 4)))
for j in range(XL): xw(j, 0); xw(j, 1); xr(j)
a("s_setprio 2")
a(f"v_readfirstlane_b32 s{sMODE}, v30") if False else None
waitc(vCNT, CB[0], 4, 31)
a(f"v_readfirstlane_b32 s{sMODE}, v30")
if EP0: a(f"v_readfirstlane_b32 s{sTAG}, v121")
LG.q = []
stamp(4)
UPRIO = int(OPT.get("uprio", 0)); YPRIO = int(OPT.get("yprio", 0))
a(f"s_setprio {UPRIO}")
AR, AI, BR = 32, 48, 64
def bread(k):
    s = BR + 8 * (k % 4)
    a(f"ds_read_b128 {vr(s,4)}, v{BA + k % 8} offset:{16384*(k//8)}")
    a(f"ds_read_b128 {vr(s+4,4)}, v{BA + k % 8} offset:{16384*(k//8) + 8192}")
    LG.issue(("b", k), 2)
WOL = int(OPT.get("wol", 0))
PF = [(17, sPC)] + ([] if WOL else [(18, P_WO)])
PFK = int(OPT.get("pfk", 19))
PTK = int(OPT.get("ptk", 27))
CPOS = 0
for k in range(3): bread(k)
for k in range(32):
    j = k // 2; jn = j + XL
    tr = jn < 16
    n1 = LG.need(("x", j)); n2 = LG.need(("b", k))
    waits(lg=n2 if n2 is not None else n1)
    s = BR + 8 * (k % 4)
    first = "0" if k == 0 else None
    mfma32(AR, XR + 4*k, s, first)
    if k % 8 == 2 and k < 24: bsig(k // 8 + 1)
    if k % 8 == 4 and k < 24:
        a(f"ds_read_b32 v31, v{vCNT} offset:{CB[k//8+1]}"); LG.issue("cb")
    if k % 8 == 5 and k < 24:
        waits(lg=LG.need("cb"))
        a("s_setprio 2")
        a("v_cmp_gt_u32 vcc, 4, v31")
        Lk = uid("bk")
        a(f"s_cbranch_vccz {Lk}")
        waitc(vCNT, CB[k//8+1], 4, 31)
        lab(Lk)
        a(f"s_setprio {UPRIO}")
    if k + 3 < 32: bread(k + 3)
    ld1(int(OPT.get("lpk", 1)))
    if PF and k >= PFK and k % 2 == 1:
        v, p = PF.pop(0)
        a(f"global_load_dword v{136+len(PF)}, v{v}, s[{p}:{p+1}]"); VM.issue("pf")
    if k == PTK:
        cm("local mode: make the lines this wave / its attention partner will hand over valid in L2")
        a(f"s_cmp_eq_u32 s{sMODE}, 1")
        a("s_cbranch_scc0 L_h_nopt")
        def touch(soff, n):
            for i in range(n):
                a(f"buffer_load_dwordx4 v[144:147], v{vL4}, {sr(R_WS,4)}, s{soff} offen offset:{1024*i} sc1")
        def touchf(soff):
            a("s_mov_b64 exec, 0xff")
            touch(soff, 1)
            a("s_mov_b64 exec, -1")
        if "h" in LOC:
            a(f"s_lshl2_add_u32 s{sT0}, s{sC}, s{sWV}")
            a(f"s_lshl_b32 s{sT1}, s{sT0}, 5")
            a(f"s_add_u32 s{sT1}, s{sT1}, s{sPB}")
            a(f"s_lshl_b32 s{sT1}, s{sT1}, 11")
            a(f"s_add_u32 s{sT1}, s{sT1}, {WS_H}")
            touch(sT1, 2)
            a(f"s_add_u32 s{sT1}, s{sT1}, 32768")
            touch(sT1, 2)
            a(f"s_lshl4_add_u32 s{sT0}, s{sT0}, s{sPB}")
            a(f"s_lshl_b32 s{sT0}, s{sT0}, 7")
            a(f"s_add_u32 s{sT0}, s{sT0}, {WS_FH}")
            touchf(sT0)
        for kind, off in (("o", 0), ("t", 4)):
            if kind in LOC:
                a(f"s_add_u32 s{sSTEP}, s{sWV}, {off}")
                o_offsets()
                touch(sT1, 1); touchf(sT0)
        lab("L_h_nopt")
    if k == 28:
        a(f"buffer_load_dwordx4 v[128:131], v29, {sr(R_A,4)}, s{sT4} offen")
        a(f"buffer_load_dwordx4 v[132:135], v29, {sr(R_A,4)}, s{sT4} offen offset:32")
        VM.issue("skip", 2)
    mfma32(AI, XR + 4*k, s + 4, first)
    ld1()
    if tr:
        assert not any(q[0] == jn for q in xq)
        xw(jn, k % 2)
        if k % 2: xr(jn)
    bsig()
assert len(sigd) == 4 and not lq
assert not PF
a("s_setprio 2")
srd(R_B, P_CRE, 512 * 1024)
srd(R_C, P_CIM, 512 * 1024)
srd(R_A, P_WO, 512 * 1024)
if CPOS:
    a(f"s_add_u32 s{sSYNC}, s{sSYNC}, 4")
    signal(vCNT, vONE, C_GH)
a(f"s_lshl_b32 s{sT3}, s{sGY}, 16")
a(f"s_lshl_b32 s{sT1}, s{sWV}, 13")
a(f"s_add_u32 s{sT3}, s{sT3}, s{sT1}")
a(f"s_mul_i32 s{sT1}, s{sWV}, {8*RSTR}")
def row1(n, base, ore, oim):
    i, part = n // 2, n % 2
    a(f"s_add_u32 m0, s{sT1}, {L_R1 + RSTR*(32*part+i)}")
    a(f"s_add_u32 s{sT2}, s{base}, {1024*i + (oim if part else ore)}")
    dma(vL4, R_C if part else R_B, f"s{sT2}")
def rowloop(part, goff):
    L = uid("rl")
    a(f"s_mov_b32 s{sKIND}, 0")
    lab(L)
    a(f"s_mul_i32 s{sT2}, s{sKIND}, {RSTR}")
    a(f"s_add_u32 s{sT2}, s{sT2}, s{sT1}")
    a(f"s_add_u32 m0, s{sT2}, {L_R1 + RSTR*32*part}")
    a(f"s_lshl_b32 s{sT2}, s{sKIND}, 10")
    a(f"s_add_u32 s{sT2}, s{sT2}, s{sT3}")
    if goff: a(f"s_add_u32 s{sT2}, s{sT2}, {goff}")
    dma(vL4, R_C if part else R_B, f"s{sT2}")
    if RLV >= 0: a(f"s_waitcnt vmcnt({RLV})")
    a(f"s_add_u32 s{sKIND}, s{sKIND}, 1")
    a(f"s_cmp_lt_u32 s{sKIND}, 8")
    a(f"s_cbranch_scc1 {L}")
RLV = int(OPT.get("rlv", -1))
RL = int(OPT.get("rl", 1))
CS_ = int(OPT.get("cst", 0))
def cld(n, dst, ore, oim):
    i, part = n // 2, n % 2
    a(f"s_add_u32 s{sT2}, s{sT3}, {1024*i + (oim if part else ore)}")
    a(f"buffer_load_dwordx4 {vr(dst,4)}, v{vL4}, {sr(R_C if part else R_B,4)}, s{sT2} offen")
def cwr(n, src):
    i, part = n // 2, n % 2
    a(f"ds_write_b128 v29, {vr(src,4)} offset:{RSTR*(32*part+i)}")
if CS_:
    a(f"s_add_u32 s{sT2}, s{sT1}, {L_R1}")
    a(f"v_add_u32 v29, s{sT2}, v{vL4}")
stamp(5)
cm("scale by coef into pair layout, local scan")
UP = 64
G0, G1 = 30, 8
def sc1(r): a(f"v_pk_mul_f32 {vr(UP+2*r,2)}, {vr(vCO,2)}, {vr(AR+(r&~1),2)} op_sel:[0,{r&1}] op_sel_hi:[1,{r&1}]")
def sc2(r): a(f"v_pk_fma_f32 {vr(UP+2*r,2)}, {vr(vCO,2)}, {vr(AI+(r&~1),2)}, {vr(UP+2*r,2)} op_sel:[1,{r&1},0] op_sel_hi:[0,{r&1},1] neg_lo:[1,0,0]")
def c1(dst, L, g, u): a(f"v_pk_fma_f32 {vr(dst,2)}, {vr(L,2)}, {vr(g,2)}, {vr(u,2)} op_sel:[0,0,0] op_sel_hi:[0,1,1]")
def c2(dst, L, g): a(f"v_pk_fma_f32 {vr(dst,2)}, {vr(L,2)}, {vr(g,2)}, {vr(dst,2)} op_sel:[1,1,0] op_sel_hi:[1,0,1] neg_lo:[1,0,0]")
sc1(0); sc1(1); sc1(2); sc2(0); sc2(1); sc2(2)
src = UP
CLP = int(OPT.get("clp", 1))
for r in range(1, 16):
    dst = G0 if r % 2 else G1
    if r == 8 and CPOS: waitc(vCNT, C_GH, f"s{sSYNC}", 8)
    c1(dst, vL, src, UP + 2*r)
    if r < 14: sc1(r + 2)
    if r >= 8 and CPOS: row1(2*(r-8), sT3, 32768, 0)
    c2(dst, vL, src)
    if CS_ & 1 and CLP == 0:
        cld(r, 160 + 4*r, 32768, 0)
        if r == 1: cld(0, 160, 32768, 0)
    if r < 14: sc2(r + 2)
    if r >= 8 and CPOS: row1(2*(r-8) + 1, sT3, 32768, 0)
    src = dst
a(f"ds_write_b64 v13, {vr(G0,2)}")
gsync(vCNT, vONE, 32, C_GH)
stamp(6)
ESR = 32
for s in range(8):
    a(f"ds_read_b64 {vr(ESR+2*s,2)}, v15 offset:{256*s}")
a(f"s_lshl_b32 s{sT6}, s{sPB}, 13")
a(f"s_add_u32 s{sT6}, s{sT6}, {WS_ST}")
a(f"s_lshl_b32 s{sT0}, s{sC}, 9")
a(f"s_add_u32 s{sT0}, s{sT0}, s{sT6}")
a(f"v_mov_b64 {vr(G0,2)}, 0")
a(f"s_mov_b32 s{sCNT}, {POLL_LIMIT}")
a("s_waitcnt lgkmcnt(0)")
a(f"v_mov_b64 {vr(G1,2)}, {vr(ESR,2)}")
for w in range(4):
    if w: cmul_add(G1, vL16_, G0, ESR + 4*w)
    if w < 3:
        a(f"s_cmp_eq_u32 s{sWV}, {w}")
        a("s_cbranch_scc1 L_h_segdone")
        cmul_add(G0, vL16_, G1, ESR + 4*w + 2)
cmul_add(48, vL16_, G1, ESR + 14)
a(f"v_mov_b32 v50, v49")
a(f"v_mov_b32 v49, s{sTAG}")
a(f"v_mov_b32 v51, s{sTAG}")
a("s_mov_b32 exec_hi, 0")
a(f"buffer_store_dwordx4 v[48:51], v14, {sr(R_WS,4)}, s{sT0} offen sc1")
a("s_mov_b64 exec, -1")
lab("L_h_segdone")
a(f"s_mov_b32 s{sM}, 0")
a(f"s_mov_b32 s{sM+1}, -1")
a(f"v_cndmask_b32 v{G0}, v{G0}, v{G1}, s[{sM}:{sM+1}]")
a(f"v_cndmask_b32 v{G0+1}, v{G0+1}, v{G1+1}, s[{sM}:{sM+1}]")
if not CPOS:
    if CS_ & 1:
        a("s_setprio 0")
        if CLP == 1:
            for n in range(16): cld(n, 160 + 4*n, 32768, 0)
        for n in range(16):
            if n % 2 == 0: a(f"s_waitcnt vmcnt({14 - n})")
            cwr(n, 160 + 4*n)
        a("s_setprio 2")
    elif RL:
        rowloop(0, 32768); rowloop(1, 0)
    else:
        for n in range(16): row1(n, sT3, 32768, 0); pace()
stamp(7)
cm("chunk carry: each lane gathers two predecessors' end states")
a(f"v_mov_b64 {vr(G1,2)}, 0")
a(f"s_cmp_eq_u32 s{sC}, 0")
a("s_cbranch_scc1 L_h_stskip")
lab("L_h_stpoll")
a(f"buffer_load_dwordx4 v[52:55], v{vO0}, {sr(R_WS,4)}, s{sT6} offen sc1")
a(f"buffer_load_dwordx4 v[56:59], v{vO1}, {sr(R_WS,4)}, s{sT6} offen sc1")
a("s_waitcnt vmcnt(0)")
a(f"v_cmp_ne_u32 vcc, s{sTAG}, v53")
a(f"v_cmp_ne_u32 s[{sM}:{sM+1}], s{sTAG}, v55")
a(f"s_or_b64 s[{sM}:{sM+1}], s[{sM}:{sM+1}], vcc")
a(f"v_cmp_ne_u32 vcc, s{sTAG}, v57")
a(f"s_or_b64 s[{sM}:{sM+1}], s[{sM}:{sM+1}], vcc")
a(f"v_cmp_ne_u32 vcc, s{sTAG}, v59")
a(f"s_or_b64 s[{sM}:{sM+1}], s[{sM}:{sM+1}], vcc")
a("s_cbranch_scc0 L_h_stok")
a(f"s_sub_u32 s{sCNT}, s{sCNT}, 1")
a("s_cbranch_scc0 L_h_stpoll")
lab("L_h_stok")
a(f"v_pk_mul_f32 {vr(G1,2)}, {vr(vM0,2)}, v[52:53] op_sel:[0,0] op_sel_hi:[1,0]")
a(f"v_pk_mul_f32 v[60:61], {vr(vM1,2)}, v[56:57] op_sel:[0,0] op_sel_hi:[1,0]")
a(f"v_pk_fma_f32 {vr(G1,2)}, {vr(vM0,2)}, v[54:55], {vr(G1,2)} op_sel:[1,0,0] op_sel_hi:[0,0,1] neg_lo:[1,0,0]")
a(f"v_pk_fma_f32 v[60:61], {vr(vM1,2)}, v[58:59], v[60:61] op_sel:[1,0,0] op_sel_hi:[0,0,1] neg_lo:[1,0,0]")
a(f"v_pk_add_f32 {vr(G1,2)}, {vr(G1,2)}, v[60:61]")
lab("L_h_stskip")
a(f"ds_write_b64 v13, {vr(G1,2)} offset:{L_CS - L_ES}")
a("s_waitcnt vmcnt(0)")
mfma32(YACC, 128, 104, "0")
mfma32(YACC, 132, 108)
if WOL == 1: a(f"global_load_dword v10, v18, s[{P_WO}:{P_WO+1}]")
gsync(vCNT, vONE, 32, C_GH)
for s in range(8):
    a(f"ds_read_b64 {vr(32+2*s,2)}, v15 offset:{L_CS - L_ES + 256*s}")
a(f"s_lshl_b32 s{sT0}, s{sC}, 2")
a(f"s_add_u32 s{sT0}, s{sT0}, s{sWV}")
a(f"s_lshl_b32 s{sT4}, s{sT0}, 16")
a(f"s_add_u32 s{sT4}, s{sT4}, {WS_H}")
a(f"s_lshl_b32 s{sT1}, s{sPB}, 11")
a(f"s_add_u32 s{sT1}, s{sT1}, s{sT4}")
a(f"s_add_u32 s{sT2}, s{sT1}, 32768")
a(f"s_lshl_b32 s{sT0}, s{sT0}, 11")
a(f"s_add_u32 s{sT5}, s{sT0}, {WS_FH}")
a(f"s_lshl_b32 s{sT0}, s{sPB}, 7")
a(f"s_add_u32 s{sF1}, s{sT0}, s{sT5}")
a("s_waitcnt lgkmcnt(0)")
stamp(8)
for st in (8, 4, 2):
    for j in range(0, st, 2):
        a(f"v_pk_add_f32 {vr(32+j,2)}, {vr(32+j,2)}, {vr(32+j+st,2)}")
cmul_add(G0, vPS, 32, G0)
HB = 32
cmul_add(UP, vL, G0, UP)
for r in range(1, 16):
    cmul_add(UP + 2*r, vL, UP + 2*(r-1), UP + 2*r)
for part in range(2):
    ng = "-" if part else ""
    for j in range(8):
        a(f"v_cvt_pk_bf16_f32 v{HB+8*part+j}, {ng}v{UP+4*j+part}, {ng}v{UP+4*j+2+part}")
    a(f"ds_write_b128 v16, {vr(HB+8*part,4)}")
    a(f"ds_write_b128 v16, {vr(HB+4+8*part,4)} offset:16")
    for ks in range(2):
        d = 48 + 8*part + 4*ks
        a(f"ds_read_b64_tr_b16 {vr(d,2)}, v19 offset:{1024*ks}")
        a(f"ds_read_b64_tr_b16 {vr(d+2,2)}, v19 offset:{1024*ks+256}")
KIND[0] = "h"
a(f"v_lshlrev_b32 v24, 2, v0")
a(f"v_mov_b32 v25, s{sTAG}")
def flag_novalu(soff):
    a("s_mov_b32 exec_hi, 0")
    st2([f"buffer_store_dword v25, v24, {sr(R_WS,4)}, s{soff} offen@"])
    a("s_mov_b64 exec, -1")
a("s_waitcnt lgkmcnt(0)")
st2([f"buffer_store_dwordx4 {vr(48+8*part+4*ks,4)}, v{vL4}, {sr(R_WS,4)}, s{sT1 if part == 0 else sT2} offen offset:{1024*ks}@" for part in range(2) for ks in range(2)])
a("v_and_b32 v8, 15, v0")
a("v_lshlrev_b32 v12, 7, v8")
CF = 128
LB = int(OPT.get("lb", 1))
if LB: a("s_setprio 0")
for k in range(32):
    a(f"ds_read_b128 {vr(CF+4*k,4)}, v28 offset:{32*k}")
    if k == 13:
        a("s_waitcnt vmcnt(0)")
        flag_novalu(sF1)
a(f"s_add_u32 s{sSYNC}, s{sSYNC}, 4")
signal(vCNT, vONE, C_GH)
if LB: a("s_setprio 2")
stamp(9)
def reduce_inline(RB_, b1=None, bs=None):
    b1 = RB_ + 16 if b1 is None else b1
    bs = RB_ + 32 if bs is None else bs
    Ls, Le = uid("rs"), uid("re")
    a(f"s_mul_i32 s{sT2}, s{sSTEP}, {PSTRIDE}")
    a(f"v_add_u32 v10, s{sT2}, v{vL4}")
    a(f"s_add_u32 s{sT2}, s{sT2}, {L_PART + 8192}")
    o_offsets()
    waitc(11, 0, f"s{sT2}", 8)
    a(f"ds_read_b128 {vr(bs,4)}, v10 offset:8192")
    for w in range(4):
        d = (RB_ if w < 2 else b1) + 8*(w % 2)
        a(f"ds_read_b128 {vr(d,4)}, v10 offset:{2048*w}")
        a(f"ds_read_b128 {vr(d+4,4)}, v10 offset:{2048*w + 1024}")
    a("s_waitcnt lgkmcnt(8)")
    sum_check(bs)
    a("s_waitcnt lgkmcnt(0)")
    a(f"s_cbranch_scc1 {Ls}")
    reduce_math(RB_, vL4, flag=False, b1=b1, bs=bs)
    a(f"s_branch {Le}")
    lab(Ls)
    a(f"s_mov_b32 s{sT0}, {WS_DUMMY}")
    lab(Le)
RIL = int(OPT.get("ril", 1))
a("v_and_b32 v11, 12, v24")
a(f"v_add_u32 v11, {L_PROG}, v11")
if not RIL:
    waitc(vCNT, C_GH, f"s{sSYNC}", 8)
    a(f"s_mul_i32 s{sT1}, s{sWV}, {8*RSTR}")
    for n in range(16): row1(n, sT3, 0, 32768); pace()
else:
    cm("second half of C; the reduction of q-tile wv fills the gaps between the transfers")
    a(f"s_mov_b32 s{sSTEP}, s{sWV}")
    o_offsets()
    a(f"s_mov_b32 s{sF1}, s{sT0}")
    a(f"s_mov_b32 s{sF2}, s{sT1}")
    a(f"s_mul_i32 s{sT2}, s{sWV}, {PSTRIDE}")
    a(f"v_add_u32 v10, s{sT2}, v{vL4}")
    a(f"s_add_u32 s{sT0}, s{sT2}, {L_PART + 8192}")
    a(f"s_mul_i32 s{sT1}, s{sWV}, {8*RSTR}")
    if CS_ & 2:
        for n in range(12): cld(n, 48 + 4*n, 0, 32768)
    else:
        waitc(vCNT, C_GH, f"s{sSYNC}", 8)
        row1(0, sT3, 0, 32768)
    waitc(11, 0, f"s{sT0}", 8)
    if not CS_ & 2: row1(2 if RL else 1, sT3, 0, 32768)
    a("ds_read_b128 v[20:23], v10 offset:8192")
    for w in range(4):
        d = (32 if w < 2 else 96) + 8*(w % 2)
        a(f"ds_read_b128 {vr(d,4)}, v10 offset:{2048*w}")
        a(f"ds_read_b128 {vr(d+4,4)}, v10 offset:{2048*w + 1024}")
    if not CS_ & 2: row1(4 if RL else 2, sT3, 0, 32768)
    a("s_waitcnt lgkmcnt(8)")
    sum_check(20)
    a(f"s_cselect_b32 s{sF1}, {WS_DUMMY}, s{sF1}")
    a(f"s_cselect_b32 s{sF2}, {WS_DUMMY + 1024}, s{sF2}")
    a("v_rcp_f32 v22, v20")
    a("s_waitcnt lgkmcnt(0)")
    ops = [f"v_pk_add_f32 {vr(32+2*j,2)}, {vr(32+2*j,2)}, {vr(40+2*j,2)}" for j in range(4)]
    ops += [f"v_pk_add_f32 {vr(96+2*j,2)}, {vr(96+2*j,2)}, {vr(104+2*j,2)}" for j in range(4)]
    ops += [f"v_pk_add_f32 {vr(32+2*j,2)}, {vr(32+2*j,2)}, {vr(96+2*j,2)}" for j in range(4)]
    ops += [f"v_pk_mul_f32 {vr(32+2*j,2)}, {vr(32+2*j,2)}, v[22:23] op_sel_hi:[1,0]" for j in range(4)]
    ops += [f"v_cvt_pk_bf16_f32 v{40+j}, v{32+2*j}, v{33+2*j}" for j in range(4)]
    if CS_ & 2:
        waitc(vCNT, C_GH, f"s{sSYNC}", 8)
        for n in range(12):
            a(f"s_waitcnt vmcnt({11 - n if n < 4 else 15 - n if n < 5 else 16 - n})")
            cwr(n, 48 + 4*n)
            if n < 4:
                for _ in range(5): a(ops.pop(0))
            if n == 3:
                for m in range(12, 16): cld(m, 96 + 4*(m-12), 0, 32768)
            if n == 4:
                KIND[0] = "o"
                st2([f"buffer_store_dwordx4 v[40:43], v{vL4}, {sr(R_WS,4)}, s{sF2} offen@"])
        for n in range(12, 16):
            a(f"s_waitcnt vmcnt({16 - n})")
            cwr(n, 96 + 4*(n-12))
    for n in ([] if CS_ & 2 else range(6, 16, 2) if RL else range(3, 16)):
        row1(n, sT3, 0, 32768)
        if ops:
            for _ in range(5): a(ops.pop(0))
            if not ops:
                KIND[0] = "o"
                st2([f"buffer_store_dwordx4 v[40:43], v{vL4}, {sr(R_WS,4)}, s{sF2} offen@"])
        elif n < 15 and not RL: pace()
    if RL and not CS_ & 2: rowloop(1, 32768)
PACE = int(OPT.get('pace3', PACE))
a(f"v_add_u32 v13, {(L_PART - L_R1) & 0xffffffff}, v{vWT}")
a(f"s_lshl_b32 s{sT5}, s{sYY}, 11")
a(f"s_add_u32 s{sT5}, s{sT5}, {WS_FH}")
a(f"s_lshl_b32 s{sT4}, s{sYY}, 16")
a(f"s_and_b32 s{sT1}, s{sWV}, 1")
a(f"s_lshl_b32 s{sT1}, s{sT1}, 15")
a(f"s_add_u32 s{sT4}, s{sT4}, s{sT1}")
a(f"s_add_u32 s{sT4}, s{sT4}, {WS_H}")
stamp(10)
poll(12, f"s{sT5}", 8)
if RIL:
    a(f"s_add_u32 s{sSYNC}, s{sSYNC}, 4")
    signal(vCNT, vONE, C_GH)
    flag_novalu(sF1)
stamp(11)
HR, CR, NH = 48, 96, 12
WF, OF = 48, 128
def hload(k):
    if k % 4 == 0 and k: a(f"s_add_u32 s{sT4}, s{sT4}, 4096")
    a(f"buffer_load_dwordx4 {vr(HR+4*(k%NH),4)}, v{vL4}, {sr(R_WS,4)}, s{sT4} offen offset:{1024*(k%4)} sc1")
def cread(k):
    a(f"ds_read_b128 {vr(CR+4*(k%4),4)}, v28 offset:{32*k}")
def oload(k):
    if k % 4 == 0 and k: a(f"s_add_u32 s{sT6}, s{sT6}, 4096")
    a(f"buffer_load_dwordx4 {vr(OF+4*k,4)}, v{vL4}, {sr(R_WS,4)}, s{sT6} offen offset:{1024*(k%4)} sc1")
def wo_setup():
    a(f"s_and_b32 s{sT0}, s{sWV}, 1")
    a(f"s_lshl_b32 s{sT0}, s{sT0}, 18")
    a(f"s_lshr_b32 s{sT1}, s{sWV}, 1")
    a(f"s_lshl_b32 s{sT1}, s{sT1}, 14")
    a(f"s_add_u32 s{sT0}, s{sT0}, s{sT1}")
    a(f"s_lshl_b32 s{sT1}, s{sG}, 7")
    a(f"s_add_u32 s{sT0}, s{sT0}, s{sT1}")
    a(f"s_mul_i32 s{sT1}, s{sWV}, {PSTRIDE}")
def wo_one(half, n):
    q, i = n // 2, n % 2
    a(f"s_add_u32 m0, s{sT1}, {(L_R1 if half else L_PART) + 2048*q + 1024*i}")
    a(f"s_add_u32 s{sT2}, s{sT0}, {32768*half + 65536*q + 8192*i}")
    dma(vWO, R_A, f"s{sT2}")
def wread(dst, k):
    o = PSTRIDE * ((k % 16) // 4) + 2048 * (k % 4)
    ad = 13 if k < 16 else vWT
    a(f"ds_read_b64_tr_b16 {vr(dst,2)}, v{ad} offset:{o}")
    a(f"ds_read_b64_tr_b16 {vr(dst+2,2)}, v{ad} offset:{o+1024}")
HD, CD = 11, 3
RK = int(OPT.get("rk", 25))
FK = 4
VM, LG = Cnt(), Cnt()
for k in range(HD): hload(k); VM.issue(("h", k))
a(f"s_lshl_b32 s{sT5}, s{sYG}, 12")
a(f"s_add_u32 s{sT5}, s{sT5}, {WS_FO}")
a(f"s_lshl_b32 s{sT6}, s{sYG}, 15")
a(f"s_add_u32 s{sT6}, s{sT6}, {WS_O}")
if not RIL:
    a(f"s_mov_b32 s{sSTEP}, s{sWV}")
    KIND[0] = "o"
    reduce_inline(32, 96, 20)
    a(f"s_mov_b32 s{sF1}, s{sT0}")
    gsync(vCNT, vONE, 8, C_GH)
else:
    waitc(vCNT, C_GH, f"s{sSYNC}", 8)
a(f"s_setprio {YPRIO}")
for k in range(CD): cread(k); LG.issue(("c", k))
FLK = int(OPT.get("flk", 14))
YPK = int(OPT.get("ypk", 99))
oq = list(range(16))
for k in range(32):
    if k == YPK: a("s_setprio 2")
    if k == FK:
        if not RIL:
            waits(vm=VM.need(("h", HD)))
            flag_novalu(sF1); VM.issue("f")
        wo_setup()
    if k == FLK:
        a(f"buffer_load_dword v9, v12, {sr(R_WS,4)}, s{sT5} offen sc1"); VM.issue("fl")
    if k == FLK + 5:
        waits(vm=VM.need("fl"))
        a("s_setprio 2")
        a(f"v_cmp_ne_u32 vcc, s{sTAG}, v9")
        a("s_cbranch_vccz L_y_ok")
        poll(12, f"s{sT5}", 8)
        lab("L_y_ok")
        a(f"s_setprio {YPRIO}")
    if k + HD < 32: hload(k + HD); VM.issue(("h", k + HD))
    if k + CD < 32: cread(k + CD); LG.issue(("c", k + CD))
    waits(vm=VM.need(("h", k)), lg=LG.need(("c", k)))
    mfma32(YACC, HR + 4*(k % NH), CR + 4*(k % 4))
    n = k - FK - 1
    if 0 <= n < 8: wo_one(0, n); VM.issue("wo")
    if k >= FLK + 5:
        for _ in range(2 if k + HD >= 32 else 1):
            if oq: oload(oq.pop(0)); VM.issue("o")
    mfma32(32, HR + 4*(k % NH), CF + 4*k, "0" if k == 0 else None)
assert not oq
a("s_setprio 2")
a(f"s_lshl_b32 s{sT2}, s{sWV}, 12")
a(f"s_add_u32 s{sT2}, s{sT2}, {L_R1 + 40960}")
a(f"v_add_u32 v10, s{sT2}, v{vL4}")
a("v_xor_b32 v11, 4096, v10")
assert (L_R1 + 40960) % 8192 == 0
a(f"s_lshl_b32 s{sT2}, s{sWV}, 9")
a(f"s_add_u32 s{sT2}, s{sT2}, {L_CS}")
a("v_lshlrev_b32 v8, 3, v0")
a(f"v_add_u32 v8, s{sT2}, v8")
a(f"ds_write2_b32 v8, v{vWT}, v1 offset1:1")
waits(vm=VM.need("wo"))
gsync(vCNT, vONE, 8, C_GH)
stamp(12)
for i in range(8):
    wo_one(1, i)
    if i < 4: a(f"ds_write_b128 v10, {vr(32+4*i,4)} offset:{1024*i}")
    if i == 3:
        a(f"s_add_u32 s{sSYNC}, s{sSYNC}, 4")
        signal(vCNT, vONE, C_GH)
    if 4 <= i < 7: pace()
srd(R_B, P_OUT, 2048 * 4096)
a(f"s_lshl_b32 s{sT0}, s{sYY}, 17")
a(f"s_lshl_b32 s{sT1}, s{sCG}, 7")
a(f"s_add_u32 s{sT0}, s{sT0}, s{sT1}")
def store1(b, r, off=0):
    a(f"s_add_u32 s{sT1}, s{sT0}, {4096 * (8*(r//4) + r%4)}")
    a(f"buffer_store_dword v{b+r}, v1, {sr(R_B,4)}, s{sT1} offen" + (f" offset:{off}" if off else "") + YFL)
a(f"s_mul_i32 s{sT2}, s{sWV}, {PSTRIDE}")
a(f"v_add_u32 v10, s{sT2}, v{vL4}")
a(f"s_lshl_b32 s{sT2}, s{sWV}, 2")
a(f"v_add_u32 v9, s{sT2}, v{vCNT}")
waitc(vCNT, C_GH, f"s{sSYNC}", 8)
for i in range(4):
    a(f"ds_read_b128 {vr(192+4*i,4)}, v11 offset:{1024*i}")
YL = OPT.get("ylate") == "1"
def ystores():
    for j in range(8):
        a(f"v_pk_add_f32 {vr(YACC+2*j,2)}, {vr(YACC+2*j,2)}, {vr(192+2*j,2)}")
        store1(YACC, 2*j, 2048)
        store1(YACC, 2*j + 1, 2048)
if LB: a("s_setprio 0")
for k in range(16): wread(WF + 4*k, k)
if LB: a("s_setprio 2")
a(f"s_waitcnt vmcnt(0) lgkmcnt(15)")
a(f"s_add_u32 s{sSYNC}, s{sSYNC}, 4")
signal(vCNT, vONE, C_GH)
for j in range(8):
    a(f"v_pk_add_f32 {vr(YACC+2*j,2)}, {vr(YACC+2*j,2)}, {vr(192+2*j,2)}")
a(f"s_waitcnt lgkmcnt(0)")
DEF = int(OPT.get("defer", 0))
if DEF:
    for k in range(16): store1(YACC, k, 2048)
    cm("the matrix pipe is free once the attention wave of this SIMD has finished")
    a(f"v_add_u32 v11, {(L_PROG - L_CNT) & 0xffffffff}, v9")
    waitc(11, 0, L_PART + 8192 + 7*PSTRIDE, 8)
else:
    a(f"s_setprio {OPT.get('oprio', 0)}")
for k in range(16):
    mfma32(32, OF + 4*k, WF + 4*k, "0" if k == 0 else None)
    if not YLT and not DEF: store1(YACC, k, 2048)
nsync = sum(1 for n in ("HQ", "H") for x in SECS[n] if x.strip() == f"s_add_u32 s{sSYNC}, s{sSYNC}, 4")
SECS["P"].insert(0, f".set NSYNC_B2, {4*nsync}")
a("s_setprio 2")
waitc(vCNT, C_GH, f"s{sSYNC}", 8)
a("s_nop 6")
for i in range(4):
    a(f"ds_write_b128 v10, {vr(32+4*i,4)} offset:{1024*i}")
a(f"ds_write_b32 v9, v{vONE} offset:{C_HA}")
stamp(13)
if YLT:
    waitc(vCNT, C_S, 4, 8, sleep=1)
    for k in range(16): store1(YACC, k, 2048)
a("s_branch L_end")

lab("L_slow")
a("s_waitcnt lgkmcnt(0)")
a(f"s_mov_b32 s{sKIND}, 0")
a(f"s_lshl_b32 s{sT0}, s{sSTEP}, 10")
a(f"s_add_u32 s{sT0}, s{sT0}, {L_QF}")
a(f"v_add_u32 v4, s{sT0}, v14")
a(f"ds_read_b128 {vr(vQ,4)}, v4")
a("v_mov_b32 v4, 0xff800000")
a("v_lshrrev_b32 v16, 5, v0")
a("v_and_b32 v17, 15, v0")
a("v_lshl_add_u32 v15, v16, 4, v17")
a("v_lshlrev_b32 v15, 4, v15")
a(f"s_mov_b32 s{sM}, 0xffff")
a(f"s_mov_b32 s{sM+1}, 0xffff")
a(f"s_mov_b32 s{sT0}, {WS_KV}")
lab("L_slow_p1")
kvload(0)
a("s_waitcnt vmcnt(0) lgkmcnt(0)")
for t in range(2):
    qk(S0, t)
    a("s_nop 11")
    for i in range(8):
        a(f"v_max3_f32 v4, v{S0+2*i}, v{S0+2*i+1}, v4")
a(f"s_cmp_lt_u32 s{sT0}, {WS_KV + 131072}")
a("s_cbranch_scc1 L_slow_p1")
a("v_mov_b32 v5, v4")
a("s_nop 1")
a("v_permlane32_swap_b32 v4, v5")
a("v_max_f32 v4, v4, v5")
for i in range(16):
    a(f"v_sub_f32 v{S1+i}, 0, v4")
zeroO()
a(f"s_mov_b32 s{sT0}, {WS_KV}")
lab("L_slow_p2")
kvload(0)
a("s_waitcnt vmcnt(0)")
for t in range(2):
    mfma32(S0, K_(t), vQ, vr(S1, 16))
    a("s_nop 11")
    exs(S0, 0, 16)
    a("s_nop 1")
    smf(V1(t), S0)
    smf(V2(t), S0 + 8)
a(f"s_cmp_lt_u32 s{sT0}, {WS_KV + 131072}")
a("s_cbranch_scc1 L_slow_p2")
o_offsets()
a(f"v_rcp_f32 v4, v{vO+8}")
a("s_nop 0")
for j in range(4):
    a(f"v_pk_mul_f32 {vr(vO+2*j,2)}, {vr(vO+2*j,2)}, v[4:5] op_sel_hi:[1,0]")
for j in range(4):
    a(f"v_cvt_pk_bf16_f32 v{16+j}, v{vO+2*j}, v{vO+2*j+1}")
a(f"buffer_store_dwordx4 v[16:19], v14, {sr(R_WS,4)}, s{sT1} offen sc1")
a("s_waitcnt vmcnt(0)")
setflag(16, 17, sT0)
a("v_and_b32 v15, 15, v0")
a("v_lshlrev_b32 v15, 7, v15")
a("v_lshlrev_b32 v7, 3, v0")
a(f"v_add_u32 v7, s{sT5}, v7")
a(f"s_lshl_b32 s{sT0}, s{sWV}, 2")
a(f"v_add_u32 v10, s{sT0}, v{vCA}")
a(f"s_cmp_lt_u32 s{sSTEP}, 4")
a("s_cbranch_scc1 L_a_ok2")
a("ds_read_b128 v[56:59], v6 offset:8192")
a("s_waitcnt lgkmcnt(0)")
a("s_branch L_a_ok1")
lab("L_a_bad1")
a("s_waitcnt lgkmcnt(0)")
a(f"s_sub_u32 s{sSTEP}, 7, s{sWV}")
a("s_branch L_slow")
lab("L_a_bad2")
a(f"s_mov_b32 s{sSTEP}, s{sWV}")
a("s_branch L_slow")

lab("L_end")
ROLE[0] = "E"
if PROBE:
    a("s_waitcnt vmcnt(0)")
    stamp(15)
    a(f"s_cmp_ge_u32 s{sW}, 4")
    a(f"s_cbranch_scc{0 if PROBE[0] == 'A' else 1} L_exit")
    a(f"s_cmp_eq_u32 s{80+int(PROBE[1])}, 0")
    a("s_cbranch_scc1 L_exit")
    a(f"s_sub_u32 s{sT0}, s{80+int(PROBE[1])}, s{80+int(PROBE[2])}")
    if OPT.get("pmode"):
        a(f"s_cmp_eq_u32 s{sMODE}, 1")
        a(f"s_cselect_b32 s{sT0}, 0, 1000")
    a(f"s_min_u32 s{sT0}, s{sT0}, 10000")
    a(f"s_lshl_b32 s{sT0}, s{sT0}, 1")
    a(f"s_memrealtime s[{sST}:{sST+1}]")
    a("s_waitcnt lgkmcnt(0)")
    a(f"s_mov_b32 s{sT1}, s{sST}")
    lab("L_probe")
    a(f"s_memrealtime s[{sST}:{sST+1}]")
    a("s_waitcnt lgkmcnt(0)")
    a(f"s_sub_u32 s{sT2}, s{sST}, s{sT1}")
    a(f"s_cmp_lt_u32 s{sT2}, s{sT0}")
    a("s_cbranch_scc1 L_probe")
elif STAMPS:
    a("s_waitcnt vmcnt(0)")
    stamp(15)
    a(f"s_lshl_b32 s{sT0}, s2, 3")
    a(f"s_xor_b32 s{sT1}, s{sW}, 4")
    a(f"s_add_u32 s{sT0}, s{sT0}, s{sT1}")
    a(f"s_lshl_b32 s{sT0}, s{sT0}, 6")
    a(f"s_add_u32 s{sT0}, s{sT0}, {WS_STAMP}")
    for i in range(16): a(f"v_mov_b32 v{16+i}, s{80+i}")
    a("v_mov_b32 v0, 0")
    a("s_mov_b64 exec, 1")
    for i in range(4):
        a(f"buffer_store_dwordx4 {vr(16+4*i,4)}, v0, {sr(R_WS,4)}, s{sT0} offen offset:{16*i}")
lab("L_exit")
a("s_endpgm")

DOC = """; ---------------------------------------------------------------------------------------------
; (tag = lcg(word 0 of d_ws), written back at the end).  Stores are device scope (sc1); only the last
; ---------------------------------------------------------------------------------------------
"""
hdr = open("cdna_kernels/" + NAME + ".s.ref").read().split("; Override launch")[0]
src = hdr + f"; @launch grid=(256,1,1) block=(512,1,1) lds={LDS_BYTES}\n" + f""".amdgcn_target "amdgcn-amd-amdhsa--gfx950"
{DOC}.text
.globl {NAME}_kernel
.p2align 8
.type {NAME}_kernel,@function
{NAME}_kernel:
""" + "\n".join(x for n in ("P", "AL", "HQ", "Z", "A", "H") for x in SECS[n]) + f"""
.section .rodata,"a"
.p2align 6
.amdhsa_kernel {NAME}_kernel
  .amdhsa_next_free_vgpr 256
  .amdhsa_next_free_sgpr 102
  .amdhsa_accum_offset 256
  .amdhsa_group_segment_fixed_size 0
  .amdhsa_kernarg_size 136
  .amdhsa_user_sgpr_count 2
  .amdhsa_user_sgpr_kernarg_segment_ptr 1
  .amdhsa_system_sgpr_workgroup_id_x 1
.end_amdhsa_kernel
"""
open(OUT, "w").write(src)
```

```python
import sys, math, struct
NAME = "concat_heads__grouped_kv_mqa__ssm_conv_s5__prompt"
STAMPS = "--stamps" in sys.argv
OPT = dict(a.lstrip("-").split("=") for a in sys.argv[1:] if a.startswith("--") and "=" in a)
OUT = [a for a in sys.argv[1:] if not a.startswith("--")][0]
OUTFL = OPT.get("outfl", "nt").replace(",", " ")
if OUTFL: OUTFL = " " + OUTFL
YFL = OPT.get("yfl", "nt").replace(",", " ")
if YFL: YFL = " " + YFL

def f32(x): return "0x%08x" % struct.unpack("<I", struct.pack("<f", x))[0]

FSH = int(OPT.get('fsh', 6))
WS_O2 = 0x300000
C_HA = 48
WS_DUMMY = 0x800
WS_FKV = 0x1000
WS_FH  = 0x20000
WS_FO  = 0x80000
WS_KV  = 0x40000
WS_ST  = 0x60000
WS_O   = 0x100000
WS_H   = 0x400000
WS_SLOW = 0x800000
WS_STAMP = 15 << 20
WS_SIZE = 16 << 20
L_XA, L_WQ, L_KVP, L_WKV = 0, 65536, 131072, 140288
L_PART, L_R1, L_SCR, L_ES, L_QF, L_PROG, L_CNT = 0, 73728, 140288, 148480, 150528, 158720, 159744
L_MAX = 159808
L_CS = 160832

LDS_BYTES = 163840
PSTRIDE = 9216
RSTR = 1040
POLL_LIMIT = 400000
C_A1, C_H1, C_H2, C_A3, C_A4, C_GA, C_GH, C_TAG, C_H3, C_S, C_H0, C_DONE = 0, 4, 8, 12, 16, 20, 24, 28, 32, 36, 40, 44

SECS = {}
class _L:
    cur = None
    def append(self, x): SECS[_L.cur].append(x)
lines = _L()
def sec(n):
    SECS.setdefault(n, []); _L.cur = n
sec("P")
def a(s): lines.append("    " + s)
def lab(s): lines.append(s + ":")
def cm(s): lines.append("    ; " + s)
_uid = [0]
def uid(p):
    _uid[0] += 1
    return f"L_{p}{_uid[0]}"
def vr(b, n): return f"v[{b}:{b+n-1}]"
def sr(b, n): return f"s[{b}:{b+n-1}]"

sW, sTAG, sRB, sG, sC, sPB = 3, 4, 5, 6, 7, 8
sT0, sT1, sT2, sT3, sT4, sCNT = 9, 10, 11, 12, 13, 14
sWV = 15
P_AX, P_WQ, P_WK, P_WV, P_WO, P_BX, P_LRE, P_LIM = 16, 18, 20, 22, 24, 26, 28, 30
P_BRE, P_BIM, P_CRE, P_CIM, P_LDT, P_DSK, P_OUT, P_DBG = 32, 34, 36, 38, 40, 42, 44, 46
P_WS = 48
sT5, sT6 = 50, 51
R_WS, R_A, R_B, R_C = 52, 56, 60, 64
sM = 68
sGRP, sKIND, sSTEP, sSYNC = 70, 71, 72, 73
sRET = 74
sST = 76
sLO, sHI = 78, 79
sROT = sSTEP
sF1, sF2 = 0, 1
sYG, sCG, sPC = 96, 97, 98
sGY, sYY = 100, 101
YM = int(OPT.get('ymap', 0))
sMODE = sGRP
C_MODE = C_DONE
LFL = OPT.get('lfl', '').replace(',', ' ')
if LFL: LFL = ' ' + LFL

def srd(dst, ptr, nbytes):
    a(f"s_mov_b32 s{dst}, s{ptr}")
    a(f"s_and_b32 s{dst+1}, s{ptr+1}, 0xffff")
    a(f"s_mov_b32 s{dst+2}, {nbytes}")
    a(f"s_mov_b32 s{dst+3}, 0x20000")

PROBE = OPT.get("probe")
ROLE = ["?"]
if PROBE:
    PROBE = PROBE.split(","); STAMPS = True
def stamp(i, ins="s_memrealtime"):
    if PROBE and not (ins == "s_memrealtime" and (ROLE[0] in (PROBE[0], "E")) and str(i) in PROBE[1:]): return
    if OPT.get("dbg") == "steps" and ROLE[0] == "A" and i < 10: return
    if OPT.get("sel") and ROLE[0] != "E" and f"{ROLE[0]}{i}" not in OPT["sel"].split(","): return
    if STAMPS:
        a(f"{ins} s[{sST}:{sST+1}]")
        a("s_waitcnt lgkmcnt(0)")
        a(f"s_mov_b32 s{80+i}, s{sST}")
def cstamp(i): stamp(i, "s_memtime")
DBG = OPT.get("dbg", "")
def dstamp(name, i):
    if DBG == name: stamp(i)
_stamp0 = stamp


def dma(voff, srdr, soff, imm=0):
    o = f" offset:{imm}" if imm else ""
    a(f"buffer_load_dwordx4 v{voff}, {sr(srdr,4)}, {soff} offen{o} lds")

PACE = int(OPT.get("pace", 18))
PV = int(OPT.get("pv", 6))
def pace():
    if PV >= 0:
        a(f"s_waitcnt vmcnt({PV})")
        return
    n = PACE
    while n > 0:
        a(f"s_nop {min(n, 16) - 1}"); n -= 16

def poll(voff, soff, vt, sleep=0, fl=" sc1"):
    L, D = uid("poll"), uid("pdone")
    a(f"s_mov_b32 s{sCNT}, {POLL_LIMIT}")
    lab(L)
    a(f"buffer_load_dword v{vt}, v{voff}, {sr(R_WS,4)}, {soff} offen{fl}")
    a("s_waitcnt vmcnt(0)")
    a(f"v_cmp_ne_u32 vcc, s{sTAG}, v{vt}")
    a(f"s_cbranch_vccz {D}")
    if sleep: a(f"s_sleep {sleep}")
    a(f"s_sub_u32 s{sCNT}, s{sCNT}, 1")
    a(f"s_cbranch_scc0 {L}")
    lab(D)

def setflag(vt0, vt1, soff):
    a(f"v_mov_b32 v{vt0}, 0")
    a(f"v_mov_b32 v{vt1}, s{sTAG}")
    a("s_mov_b64 exec, 1")
    a(f"buffer_store_dword v{vt1}, v{vt0}, {sr(R_WS,4)}, s{soff} offen sc1")
    a("s_mov_b64 exec, -1")

LOC = OPT.get("loc", "t")
KIND = ["t"]
assert not (YM and "h" in LOC)
def st2(instrs):
    if KIND[0] not in LOC:
        for x in instrs: a(x.replace("@", " sc1"))
        return
    L, E = uid("sl"), uid("se")
    a(f"s_cmp_eq_u32 s{sMODE}, 1")
    a(f"s_cbranch_scc1 {L}")
    for x in instrs: a(x.replace("@", " sc1"))
    a(f"s_branch {E}")
    lab(L)
    for x in instrs: a(x.replace("@", LFL))
    lab(E)

def spf(spec):
    for ptr, lines, first, cnt in spec:
        a(f"s_lshl2_add_u32 s{sRET}, s2, s{sWV}")
        a(f"s_mul_i32 s{sRET}, s{sRET}, {128*lines}")
        a(f"s_add_u32 s{sRET}, s{sRET}, s{ptr}")
        a(f"s_addc_u32 s{sRET+1}, s{ptr+1}, 0")
        for i in range(first, first + cnt):
            a(f"s_load_dword s{sST}, s[{sRET}:{sRET+1}], {128*i}")

def spx(kind, first, cnt, w="dword"):
    if kind == "x":
        a(f"s_and_b32 s{sRET}, s{sRB}, 0x1b")
        a(f"s_lshr_b32 s{sRET+1}, s{sRET}, 3")
        a(f"s_and_b32 s{sRET}, s{sRET}, 3")
        a(f"s_lshl2_add_u32 s{sRET}, s{sRET+1}, s{sRET}")
        a(f"s_lshl3_add_u32 s{sRET}, s{sRET}, s{sG}")
        a(f"s_lshl2_add_u32 s{sRET}, s{sRET}, s{sWV}")
        a(f"s_lshl_b32 s{sRET}, s{sRET}, 12")
        ptr = P_BX
    else:
        a(f"s_and_b32 s{sRET}, s2, 1")
        a(f"s_lshl3_add_u32 s{sRET}, s{sRET}, s{sG}")
        a(f"s_and_b32 s{sRET+1}, s{sRB}, 3")
        a(f"s_lshl2_add_u32 s{sRET}, s{sRET}, s{sRET+1}")
        a(f"s_lshl2_add_u32 s{sRET}, s{sRET}, s{sWV}")
        a(f"s_lshl_b32 s{sRET}, s{sRET}, 11")
        ptr = P_BRE if kind == "r" else P_BIM
    a(f"s_add_u32 s{sRET}, s{sRET}, s{ptr}")
    a(f"s_addc_u32 s{sRET+1}, s{ptr+1}, 0")
    for i in range(first, first + cnt):
        a(f"s_load_dword s{sST}, s[{sRET}:{sRET+1}], {128*i}")
SX = OPT.get("sx", "")

def signal(vcnt, vone, off):
    a("s_mov_b64 exec, 1")
    a(f"ds_add_u32 v{vcnt}, v{vone} offset:{off}")
    a("s_mov_b64 exec, -1")

HSL = int(OPT.get("hsl", 0))
def waitc(vcnt, off, target, vt, sleep=0):
    L = uid("wc")
    if ROLE[0] == "H" and _L.cur == "H": sleep = max(sleep, HSL)
    if sleep:
        L2 = uid("wd")
        a(f"s_branch {L2}")
    lab(L)
    if sleep:
        a(f"s_sleep {sleep}")
        lab(L2)
    a(f"ds_read_b32 v{vt}, v{vcnt} offset:{off}")
    a("s_waitcnt lgkmcnt(0)")
    a(f"v_cmp_gt_u32 vcc, {target}, v{vt}")
    a(f"s_cbranch_vccnz {L}")

def gsync(vcnt, vone, vt, off):
    a("s_waitcnt lgkmcnt(0)")
    a(f"s_add_u32 s{sSYNC}, s{sSYNC}, 4")
    signal(vcnt, vone, off)
    waitc(vcnt, off, f"s{sSYNC}", vt)

def mfma32(d, x, y, c=None):
    c = vr(d, 16) if c is None else c
    a(f"v_mfma_f32_32x32x16_bf16 {vr(d,16)}, {vr(x,4)}, {vr(y,4)}, {c}")

def cmul_add(dst, L, g, u):
    a(f"v_pk_fma_f32 {vr(dst,2)}, {vr(L,2)}, {vr(g,2)}, {vr(u,2)} op_sel:[0,0,0] op_sel_hi:[0,1,1]")
    a(f"v_pk_fma_f32 {vr(dst,2)}, {vr(L,2)}, {vr(g,2)}, {vr(dst,2)} op_sel:[1,1,0] op_sel_hi:[1,0,1] neg_lo:[1,0,0]")

def cmul(dst, x, y):
    a(f"v_pk_mul_f32 {vr(dst,2)}, {vr(x,2)}, {vr(y,2)} op_sel:[0,0] op_sel_hi:[0,1]")
    a(f"v_pk_fma_f32 {vr(dst,2)}, {vr(x,2)}, {vr(y,2)}, {vr(dst,2)} op_sel:[1,1,0] op_sel_hi:[1,0,1] neg_lo:[1,0,0]")

def csq(dst, src, t):
    a(f"v_mul_f32 v{t}, v{src+1}, v{src+1}")
    a(f"v_add_f32 v{t+1}, v{src}, v{src}")
    a(f"v_fma_f32 v{dst}, v{src}, v{src}, -v{t}")
    a(f"v_mul_f32 v{dst+1}, v{t+1}, v{src+1}")

def xvoffsets(XO, t0):
    a(f"v_lshrrev_b32 v{t0}, 4, v0")
    a(f"v_and_b32 v{t0+1}, 15, v0")
    for i in range(4):
        a(f"v_add_u32 v{t0+2}, {4*i}, v{t0}")
        a(f"v_xor_b32 v{t0+3}, v{t0+1}, v{t0+2}")
        a(f"v_lshlrev_b32 v{t0+3}, 4, v{t0+3}")
        a(f"v_lshl_add_u32 v{XO+i}, v{t0+2}, 10, v{t0+3}")

def wtr_addr(dst, hhshift, base, t):
    a(f"v_bfe_u32 v{t}, v0, 2, 2")
    a(f"v_bfe_u32 v{t+1}, v0, 4, 1")
    a(f"v_bfe_u32 v{t+2}, v0, 1, 1")
    a(f"v_lshl_add_u32 v{t+1}, v{t+1}, 1, v{t+2}")
    a(f"s_and_b32 s{sT0}, s{sWV}, 1")
    a(f"s_lshl_b32 s{sT0}, s{sT0}, 2")
    a(f"v_add_u32 v{t+1}, s{sT0}, v{t+1}")
    a(f"v_bfe_u32 v{t+2}, v0, 3, 1")
    a(f"v_lshlrev_b32 v{t+2}, 2, v{t+2}")
    a(f"v_xor_b32 v{t+1}, v{t+1}, v{t+2}")
    a(f"v_lshlrev_b32 v{t+1}, 4, v{t+1}")
    a(f"v_lshl_add_u32 v{t+1}, v{t}, 7, v{t+1}")
    a(f"v_and_b32 v{t+2}, 1, v0")
    a(f"v_lshl_add_u32 v{t+1}, v{t+2}, 3, v{t+1}")
    a(f"v_lshrrev_b32 v{t+2}, 5, v0")
    a(f"v_lshl_add_u32 v{t+1}, v{t+2}, {hhshift}, v{t+1}")
    a(f"v_add_u32 v{dst}, {base}, v{t+1}")

def o_offsets():
    a(f"s_and_b32 s{sT0}, s{sSTEP}, 1")
    a(f"s_lshl_b32 s{sT1}, s{sRB}, 1")
    a(f"s_add_u32 s{sT0}, s{sT0}, s{sT1}")
    a(f"s_lshl_b32 s{sT0}, s{sT0}, 2")
    a(f"s_lshr_b32 s{sT1}, s{sSTEP}, 1")
    a(f"s_add_u32 s{sT0}, s{sT0}, s{sT1}")
    a(f"s_lshl_b32 s{sT0}, s{sT0}, 3")
    a(f"s_add_u32 s{sT0}, s{sT0}, s{sG}")
    a(f"s_lshl_b32 s{sT1}, s{sT0}, 10")
    a(f"s_add_u32 s{sT1}, s{sT1}, {WS_O}")
    a(f"s_lshl_b32 s{sT0}, s{sT0}, 7")
    a(f"s_add_u32 s{sT0}, s{sT0}, {WS_FO}")

def sum_check(b):
    a(f"v_pk_add_f32 {vr(b,2)}, {vr(b,2)}, {vr(b+2,2)}")
    a(f"v_add_f32 v{b}, v{b}, v{b+1}")
    a(f"v_cmp_nle_f32 vcc, s{sLO}, v{b}")
    a(f"v_cmp_nge_f32 s[{sM}:{sM+1}], s{sHI}, v{b}")
    a(f"s_or_b64 vcc, vcc, s[{sM}:{sM+1}]")

def reduce_math(b, vl16, flag=True, tagged=False, b1=None, bs=None):
    b1 = b + 16 if b1 is None else b1
    bs = b + 32 if bs is None else bs
    a(f"v_rcp_f32 v{bs+2}, v{bs}")
    for j in range(4):
        a(f"v_pk_add_f32 {vr(b+2*j,2)}, {vr(b+2*j,2)}, {vr(b+8+2*j,2)}")
    for j in range(4):
        a(f"v_pk_add_f32 {vr(b1+2*j,2)}, {vr(b1+2*j,2)}, {vr(b1+8+2*j,2)}")
    for j in range(4):
        a(f"v_pk_add_f32 {vr(b+2*j,2)}, {vr(b+2*j,2)}, {vr(b1+2*j,2)}")
    for j in range(4):
        a(f"v_pk_mul_f32 {vr(b+2*j,2)}, {vr(b+2*j,2)}, {vr(bs+2,2)} op_sel_hi:[1,0]")
    for j in range(4):
        a(f"v_cvt_pk_bf16_f32 v{b+8+j}, v{b+2*j}, v{b+2*j+1}")
    if not flag:
        st2([f"buffer_store_dwordx4 {vr(b+8,4)}, v{vl16}, {sr(R_WS,4)}, s{sT1} offen@"])
        return
    a(f"buffer_store_dwordx4 {vr(b+8,4)}, v{vl16}, {sr(R_WS,4)}, s{sT1} offen sc1")
    a("s_waitcnt vmcnt(0)")
    setflag(b, b + 1, sT0)

STG3 = 1
LOG2E = 1.4426950408889634
L_LO, L_HI = 2.0 ** -60, 2.0 ** 60


class Cnt:
    def __init__(s): s.q = []
    def issue(s, tag, n=1): s.q += [tag] * n
    def need(s, tag):
        if tag not in s.q: return None
        i = len(s.q) - 1 - s.q[::-1].index(tag)
        n = len(s.q) - 1 - i
        s.q = s.q[i + 1:]
        return n
def waits(vm=None, lg=None):
    p = []
    if vm is not None: p.append(f"vmcnt({min(vm,63)})")
    if lg is not None: p.append(f"lgkmcnt({min(lg,15)})")
    if p: a("s_waitcnt " + " ".join(p))

a("s_cmp_ge_u32 s2, 256")
a("s_cbranch_scc1 L_exit")
a(f"s_load_dwordx16 s[16:31], s[0:1], 0")
a(f"s_load_dwordx16 s[32:47], s[0:1], 64")
a(f"s_load_dwordx2 s[48:49], s[0:1], 128")
EPF = [int(x) for x in OPT.get("epf", "").split(",") if x]
if EPF:
    cm("request the first code lines at once instead of one miss after the other")
    a(f"s_getpc_b64 s[{sM}:{sM+1}]")
    a(f"v_subrev_u32 v2, {EPF[0]}, v0")
    a(f"v_cmp_gt_u32 vcc, {EPF[1]}, v2")
    a("v_lshlrev_b32 v2, 7, v2")
    a(f"s_and_saveexec_b64 s[{sRET}:{sRET+1}], vcc")
    a("s_cbranch_execz L_noepf")
    a(f"global_load_dword v31, v2, s[{sM}:{sM+1}] offset:128")
    lab("L_noepf")
    a("s_mov_b64 exec, -1")
if STAMPS:
    for i in range(16): a(f"s_mov_b32 s{80+i}, 0")
    a("s_memrealtime s[80:81]")
    a("s_memtime s[92:93]")
a("v_lshrrev_b32 v1, 6, v0")
a("v_and_b32 v0, 63, v0")
a(f"v_readfirstlane_b32 s{sW}, v1")
a("v_lshlrev_b32 v6, 4, v0")
a("v_lshrrev_b32 v12, 4, v0")
a("v_and_b32 v13, 15, v0")
a(f"s_and_b32 s{sT0}, s2, 7")
a(f"s_lshr_b32 s{sT1}, s2, 3")
a(f"s_and_b32 s{sT2}, s{sT1}, 3")
a(f"s_lshl_b32 s{sRB}, s{sT0}, 2")
a(f"s_add_u32 s{sRB}, s{sRB}, s{sT2}")
a(f"s_lshr_b32 s{sG}, s{sT1}, 2")
a(f"s_and_b32 s{sGRP}, s{sG}, 3")
a(f"s_and_b32 s{sWV}, s{sW}, 3")
a(f"s_add_u32 s{sROT}, s{sG}, s{sRB}" if OPT.get("rot", "0") == "1" else f"s_mov_b32 s{sROT}, 0")
a(f"s_mov_b32 s{R_A+2}, {2048*1024}")
a(f"s_mov_b32 s{R_A+3}, 0x20000")
a(f"s_mov_b32 s{R_B+3}, 0x20000")
a(f"s_cmp_ge_u32 s{sW}, 4")
a("s_cbranch_scc1 L_attn")

vL, vL16_, vL8, vCO = 20, 22, 24, 26
vCNT, vONE, vWT, vRB, vL4, vWO = 2, 3, 4, 5, 6, 7
a("s_setprio 3")
for i in range(4):
    a(f"v_add_u32 v14, {4*i}, v12")
    a(f"v_xor_b32 v15, v13, v14")
    a(f"v_lshlrev_b32 v15, 4, v15")
    a(f"v_lshl_add_u32 v{16+i}, v14, 10, v15")
if OPT.get("map", "0" if "h" in LOC else "1") == "0":
    a(f"s_and_b32 s{sT2}, s{sT1}, 1")
    a(f"s_lshl_b32 s{sC}, s{sT0}, 1")
    a(f"s_add_u32 s{sC}, s{sC}, s{sT2}")
    a(f"s_lshr_b32 s{sPB}, s{sT1}, 1")
else:
    a(f"s_and_b32 s{sC}, s{sT0}, 6")
    a(f"s_lshl_b32 s{sC}, s{sC}, 1")
    a(f"s_add_u32 s{sC}, s{sC}, s{sT2}")
    a(f"s_and_b32 s{sPB}, s{sT0}, 1")
    a(f"s_lshl_b32 s{sPB}, s{sPB}, 3")
    a(f"s_add_u32 s{sPB}, s{sPB}, s{sG}")
a(f"s_lshr_b32 s{sKIND}, s{sG}, 2")
a(f"s_lshl_b32 s{sT3}, s{sPB}, 5")
a("v_and_b32 v38, 31, v0")
a(f"v_add_lshl_u32 v37, v38, s{sT3}, 1")
if YM:
    a(f"s_and_b32 s{sGY}, s{sRB}, 7")
else:
    a(f"s_mov_b32 s{sGY}, s{sG}")
a(f"s_and_b32 s{sT3}, s{sWV}, 1")
a(f"s_lshl1_add_u32 s{sT3}, s{sGY}, s{sT3}")
a(f"s_lshl_b32 s{sT3}, s{sT3}, 5")
a(f"v_add_lshl_u32 v38, v38, s{sT3}, 1")
a(f"s_add_u32 s{sT3}, s{sROT}, s{sWV}")
a(f"s_and_b32 s{sT3}, s{sT3}, 3")
a(f"s_lshl_b32 s{sT0}, s{sRB}, 16")
a(f"s_lshl_b32 s{sT1}, s{sGRP}, 14")
a(f"s_add_u32 s{sT0}, s{sT0}, s{sT1}")
a(f"s_lshl_b32 s{sT1}, s{sT3}, 8")
a(f"s_add_u32 s{sT0}, s{sT0}, s{sT1}")
a(f"s_lshl_b32 s{sT2}, s{sGRP}, 12")
a(f"s_lshl_b32 s{sT1}, s{sWV}, 14")
a(f"s_add_u32 s{sT2}, s{sT2}, s{sT1}")
a(f"s_lshl_b32 s{sT3}, s{sT3}, 12")
a(f"s_lshl_b32 s{sT4}, s{sWV}, 12")
a(f"s_add_u32 s{sT4}, s{sT4}, {L_WKV}")
a(f"s_mov_b32 s{R_B+2}, 16384")
a(f"s_mov_b32 m0, s{sT2}")
a(f"s_cmp_eq_u32 s{sKIND}, 0")
a("s_waitcnt lgkmcnt(0)")
a(f"s_cselect_b32 s{R_B}, s{P_WK}, s{P_WV}")
a(f"s_cselect_b32 s{R_B+1}, s{P_WK+1}, s{P_WV+1}")
a(f"s_mov_b32 s{R_A}, s{P_AX}")
a(f"s_and_b32 s{R_A+1}, s{P_AX+1}, 0xffff")
a(f"s_and_b32 s{R_B+1}, s{R_B+1}, 0xffff")
for i in range(4):
    dma(16 + i, R_A, f"s{sT0}")
    a(f"s_add_u32 m0, s{sT2}, {1024*(i+1)}" if i < 3 else f"s_mov_b32 m0, s{sT4}")
    a("s_nop 0")
for i in range(4):
    dma(6, R_B, f"s{sT3}", imm=1024 * i)
p0, p1, p2, vDSK = 60, 61, 62, 63
PP_ = int(OPT.get("pp2", 0))
a("v_mov_b32 v94, v37")
a("v_mov_b32 v95, v38")
def pld():
    a(f"global_load_ushort v{p0}, v94, s[{P_LRE}:{P_LRE+1}]")
    a(f"global_load_ushort v{p1}, v94, s[{P_LIM}:{P_LIM+1}]")
    a(f"global_load_ushort v{p2}, v94, s[{P_LDT}:{P_LDT+1}]")
    a(f"global_load_ushort v{vDSK}, v95, s[{P_DSK}:{P_DSK+1}]")
def pwarm():
    for p in (P_LRE, P_LIM, P_LDT, P_DSK): a(f"s_load_dword s{sST}, s[{p}:{p+1}], 0")
if PP_ == 0: pld()
EP0 = int(OPT.get("ep0", 0))
if EP0:
    a(f"s_cmp_eq_u32 s{sWV}, 0")
    a("s_cbranch_scc0 L_h_noep")
a(f"s_load_dword s{sTAG}, s[{P_WS}:{P_WS+1}], 0")
lab("L_h_noep")
a("s_barrier")

sec("AL")
lab("L_attn"); ROLE[0] = "A"
cm("pull the kernel's code towards this XCD's L2")
a(f"s_getpc_b64 s[{sM}:{sM+1}]")
lab("L_pc")
a(f"s_sub_u32 s{sM}, s{sM}, L_pc - {NAME}_kernel")
a(f"s_subb_u32 s{sM+1}, s{sM+1}, 0")
SPF = int(OPT.get("spf", 0))
if SPF:
    a(f"s_lshl_b32 s{sT3}, s{sWV}, 7")
    a(f"s_add_u32 s{sRET}, s{sM}, s{sT3}")
    a(f"s_addc_u32 s{sRET+1}, s{sM+1}, 0")
    for i in range(SPF):
        a(f"s_load_dword s{sCNT}, s[{sRET}:{sRET+1}], {512*i + 256}")
CSH = int(OPT.get("csh", 32))
NLN = -(-176 // (4 * CSH))
a(f"s_and_b32 s{sT2}, s{sT1}, {CSH-1}")
a(f"s_lshl2_add_u32 s{sT2}, s{sT2}, s{sWV}")
a(f"s_mul_i32 s{sT2}, s{sT2}, {128*NLN}")
CSK = int(OPT.get("csk", 0))
if CSK: a(f"s_add_u32 s{sT2}, s{sT2}, {CSK}")
a("v_lshlrev_b32 v32, 7, v0")
a(f"v_min_u32 v32, {128*(NLN-1)}, v32")
a(f"v_add_u32 v32, s{sT2}, v32")
a(f"v_min_u32 v32, L_slow - {NAME}_kernel, v32")
CPF = int(OPT.get("cpf", 0))
if CPF == 0:
    a(f"s_cmp_ge_u32 s{sT2}, L_slow - {NAME}_kernel")
    a("s_cbranch_scc1 L_nocpf")
    a(f"s_mov_b64 exec, {(1 << NLN) - 1}")
    a(f"global_load_dword v33, v32, s[{sM}:{sM+1}]")
    a("s_mov_b64 exec, -1")
    lab("L_nocpf")
vIDX, vZ, vAD, vAS, vAQ, vPG, vQ = 1, 2, 4, 5, 6, 7, 8
vCA, vONEA = 12, 13
S0, S1, vO, KV = 16, 32, 48, 64
cm("zero sync counters + progress words")
a("v_mov_b32 v2, 0")
a("v_mov_b32 v3, 0")
a("v_mov_b32 v4, 0")
a("v_mov_b32 v5, 0")
a(f"v_add_u32 v7, {L_PROG}, v6")
a("ds_write_b128 v7, v[2:5]")
a("ds_write_b128 v7, v[2:5] offset:1024")
a(f"v_lshl_add_u32 v14, s{sWV}, 2, v12")
a("v_xor_b32 v15, v13, v14")
a("v_lshlrev_b32 v15, 4, v15")
a("v_lshl_add_u32 v16, v14, 10, v15")
def wo_voff(dst, t):
    a(f"v_lshrrev_b32 v{t}, 3, v0")
    a(f"v_and_b32 v{t+1}, 7, v0")
    a(f"v_lshrrev_b32 v{t+2}, 2, v0")
    a(f"v_and_b32 v{t+2}, 4, v{t+2}")
    a(f"v_xor_b32 v{t+1}, v{t+1}, v{t+2}")
    a(f"v_lshlrev_b32 v{t+1}, 4, v{t+1}")
    a(f"v_lshl_add_u32 v{dst}, v{t}, 10, v{t+1}")
wo_voff(17, 20)
def wslice_setup():
    a(f"s_lshl_b32 s{sT0}, s{sG}, 7")
    a(f"s_lshl_b32 s{sT1}, s{sWV}, 15")
    a(f"s_add_u32 s{sT0}, s{sT0}, s{sT1}")
    a(f"s_lshl_b32 s{sT1}, s{sWV}, 12")
wslice_setup()
a(f"s_lshl_b32 s{sT4}, s{sRB}, 16")
a(f"s_lshl_b32 s{sT5}, s{sWV}, 10")
for m in range(1, 4):
    a(f"s_add_u32 s{sT2}, s{sGRP}, {m}")
    a(f"s_and_b32 s{sT2}, s{sT2}, 3")
    a(f"s_lshl_b32 s{sT3}, s{sT2}, 14")
    a(f"s_add_u32 s{95+m}, s{sT3}, s{sT4}")
    a(f"s_lshl_b32 s{sT3}, s{sT2}, 12")
    a(f"s_add_u32 s{98+m}, s{sT3}, s{sT5}")
a(f"s_mov_b32 s{R_B+2}, {512*1024}")
a(f"v_mov_b32 v{vCA}, {L_CNT}")
a(f"v_mov_b32 v{vONEA}, 1")
a("s_waitcnt lgkmcnt(0)")
a(f"s_mov_b32 s{R_A}, s{P_AX}")
a(f"s_and_b32 s{R_A+1}, s{P_AX+1}, 0xffff")
a(f"s_mov_b32 s{R_B}, s{P_WQ}")
a(f"s_and_b32 s{R_B+1}, s{P_WQ+1}, 0xffff")
if STAMPS:
    a("s_mov_b32 s81, 0")
    a("s_mov_b32 s93, 0")
a("s_barrier")
def qops(sl):
    a(f"s_add_u32 s{sT3}, s{sROT}, {sl}")
    a(f"s_and_b32 s{sT3}, s{sT3}, 3")
    a(f"s_lshl_b32 s{sT4}, s{sT3}, 8")
    a(f"s_lshl_b32 s{sT3}, s{sT3}, 17")
    a(f"s_add_u32 s{sT3}, s{sT3}, s{sT0}")
    for m in range(1, 4):
        a(f"s_add_u32 m0, s{98+m}, {L_XA + 16384*sl}")
        a(f"s_add_u32 s{sT2}, s{95+m}, s{sT4}")
        dma(16, R_A, f"s{sT2}")
    for i in range(4):
        a(f"s_add_u32 m0, s{sT1}, {L_WQ + 16384*sl + 1024*i}")
        a(f"s_add_u32 s{sT2}, s{sT3}, {8192*i}")
        dma(17, R_B, f"s{sT2}")
if CPF == 1: a(f"global_load_dword v33, v32, s[{sM}:{sM+1}]")
QW = int(OPT.get("qw", 0))
for sl in range(QW): qops(sl)
PFW, PFU = int(OPT.get("pfw", 1)), OPT.get("pfu", "")
if PFW:
    cm("warm L2 with this workgroup's quarter of its Wq slice")
    a(f"s_and_b32 s{sT2}, s{sRB}, 3")
    a(f"s_lshl2_add_u32 s{sT2}, s{sT2}, s{sWV}")
    a(f"s_lshl_b32 s{sT2}, s{sT2}, 15")
    a(f"s_lshl_b32 s{sT3}, s{sG}, 7")
    a(f"s_add_u32 s{sT2}, s{sT2}, s{sT3}")
    a("v_and_b32 v20, 31, v0")
    a("v_lshlrev_b32 v20, 10, v20")
    a("s_mov_b32 exec_hi, 0")
    a(f"buffer_load_dword v34, v20, {sr(R_B,4)}, s{sT2} offen")
    a("s_mov_b64 exec, -1")
def pfu(which):
    cm("pull this wave's 1/1024 share of later inputs out of HBM")
    a(f"s_lshl2_add_u32 s{sT2}, s2, s{sWV}")
    a("v_lshlrev_b32 v26, 7, v0")
    for i, ch in enumerate(which):
        ptr, lines = {"x": (P_BX, 16), "r": (P_BRE, 4), "i": (P_BIM, 4), "c": (P_CRE, 4), "d": (P_CIM, 4), "o": (P_WO, 4)}[ch]
        a(f"s_mul_i32 s{sT3}, s{sT2}, {128*lines}")
        a(f"v_add_u32 v21, s{sT3}, v26")
        a(f"s_mov_b64 exec, {(1 << lines) - 1}")
        a(f"global_load_dword v{35+i}, v21, s[{ptr}:{ptr+1}]")
        a("s_mov_b64 exec, -1")
if PFU: pfu(PFU)
srd(R_WS, P_WS, WS_SIZE)
a(f"s_mov_b32 s{sSYNC}, 0")
a(f"s_mov_b32 s{sLO}, {f32(L_LO)}")
a(f"s_mov_b32 s{sHI}, {f32(L_HI)}")
cm("prefill V regs: rows 16 and 20 = ones, other rows >=16 zero")
a("v_and_b32 v24, 27, v0")
a("v_cmp_eq_u32 vcc, 16, v24")
a("v_mov_b32 v25, 0x3f803f80")
a("s_nop 0")
a("v_cndmask_b32 v24, 0, v25, vcc")
a("v_mov_b32 v25, v24")
for t in range(16):
    for j in range(4):
        a(f"v_mov_b64 {vr(KV+12*t+4+2*j,2)}, v[24:25]")
a("v_mov_b32 v14, v6")
a("v_lshrrev_b32 v24, 5, v0")
a("v_and_b32 v25, 15, v0")
a("v_lshl_add_u32 v15, v24, 4, v25")
a("v_lshlrev_b32 v15, 4, v15")
a(f"v_mov_b32 v{vIDX}, 0xdddddddd")
a(f"s_lshl_b32 s{sT2}, s{sWV}, 11")
a(f"v_add_u32 v{vAD}, s{sT2}, v14")
a(f"s_lshl_b32 s{sT2}, s{sWV}, 2")
a(f"s_add_u32 s{sT3}, s{sT2}, {L_PART + 8192}")
a(f"v_add_u32 v{vAS}, s{sT3}, v14")
a(f"s_add_u32 s{sT3}, s{sT2}, {L_PROG}")
a(f"v_add_u32 v{vPG}, s{sT3}, v14")
a(f"v_add_u32 v{vAQ}, {L_QF}, v14")
a(f"v_lshlrev_b32 v23, {FSH}, v0")
a("s_barrier")
a(f"ds_read_b32 v20, v{vCA} offset:{C_TAG}")
if "1" in SX: spx("r", 0, 14)
B0 = int(OPT.get("b0", 0))
for sl in range(QW, 4):
    qops(sl)
    if sl + 1 == B0:
        a(f"s_waitcnt vmcnt({7*(B0-1)})")
        a("s_barrier")
PFL = OPT.get("pfl", "")
if PFL: pfu(PFL)
NL = len(PFL)
a(f"s_waitcnt vmcnt({14+NL}) lgkmcnt(0)")
a("s_barrier")
a(f"v_readfirstlane_b32 s{sTAG}, v20")
cm("scalars for the tail")
sKV = sT0
a(f"s_sub_u32 s{sSTEP}, 7, s{sWV}")
o_offsets()
a(f"s_mov_b32 s{sF1}, s{sT0}")
a(f"s_mov_b32 s{sF2}, s{sT1}")
a(f"s_mul_i32 s{sT2}, s{sSTEP}, {PSTRIDE}")
a(f"s_lshr_b32 s{sT4}, s{sWV}, 1")
a(f"s_lshl1_add_u32 s{sYG}, s{sRB}, s{sT4}")
a(f"s_lshl_b32 s{sCG}, s{sYG}, 12")
a(f"s_add_u32 s{sCG}, s{sCG}, {WS_FO + 16*128}")
srd(R_B, P_OUT, 2048 * 4096)
a(f"s_and_b32 s{sT0}, s{sWV}, 1")
a(f"s_lshl1_add_u32 s{sT0}, s{sG}, s{sT0}")
a(f"s_lshl_b32 s{sT0}, s{sT0}, 7")
a(f"s_lshl_b32 s{sT3}, s{sYG}, 17")
a(f"s_add_u32 s{sT3}, s{sT3}, s{sT0}")
a(f"s_lshl_b32 s{sT6}, s{sYG}, 15")
a(f"s_add_u32 s{sT6}, s{sT6}, {WS_O + 16384}")
a(f"s_mul_i32 s{sT4}, s{sWV}, {PSTRIDE}")
a(f"s_lshl_b32 s{sT5}, s{sWV}, 9")
a(f"s_add_u32 s{sT5}, s{sT5}, {L_CS}")
a(f"s_lshl_b32 s{sT0}, s{sWV}, {FSH+6}")
a(f"s_add_u32 s{sT0}, s{sT0}, {WS_FKV}")
stamp(1)
if "2" in SX: spx("i", 0, 14)
SU = OPT.get("su", "")
if "a" in SU: spf([(P_BX, 16, 0, 14)])
if "b" in SU: spf([(P_BRE, 4, 0, 4), (P_BIM, 4, 0, 4), (P_BX, 16, 0, 6)])
a(f"s_waitcnt vmcnt({7+NL})")
a("s_barrier")
PE = int(OPT.get("pe", 1))
if PE == 2:
    a(f"buffer_load_dword v22, v23, {sr(R_WS,4)}, s{sT0} offen sc1")
    a(f"s_waitcnt vmcnt(1)")
else:
    a(f"s_waitcnt vmcnt({NL})")
if PE == 1: a(f"buffer_load_dword v22, v23, {sr(R_WS,4)}, s{sT0} offen sc1")
a("s_barrier")
a("s_branch L_a2")
sec("A")
lab("L_a2")
stamp(2)
for _ in range(int(OPT.get("pd", 0))): a("s_sleep 2")
a(f"s_mov_b32 s{sCNT}, {POLL_LIMIT}")
if PE: a("s_branch L_a_kvq")
lab("L_a_kvp")
a(f"buffer_load_dword v22, v23, {sr(R_WS,4)}, s{sT0} offen sc1")
lab("L_a_kvq")
a("s_waitcnt vmcnt(0)")
a(f"v_xor_b32 v22, s{sTAG}, v22")
a("v_cmp_lt_u32 vcc, 15, v22")
a("s_cbranch_vccz L_a_kvok")
a(f"s_sub_u32 s{sCNT}, s{sCNT}, 1")
a("s_cbranch_scc0 L_a_kvp")
lab("L_a_kvok")
stamp(4)
a(f"s_lshl_b32 s{sT0}, s{sWV}, 15")
a(f"s_add_u32 s{sT0}, s{sT0}, {WS_KV}")
a(f"s_mov_b32 s{sM}, 0xffff")
a(f"s_mov_b32 s{sM+1}, 0xffff")
def kvload(tp):
    for t in (2*tp, 2*tp+1):
        a(f"buffer_load_dwordx4 {vr(KV+12*t,4)}, v14, {sr(R_WS,4)}, s{sT0} offen offset:{2048*(t&1)} sc1")
    a(f"s_mov_b64 exec, s[{sM}:{sM+1}]")
    for t in (2*tp, 2*tp+1):
        a(f"buffer_load_dwordx4 {vr(KV+12*t+4,4)}, v15, {sr(R_WS,4)}, s{sT0} offen offset:{2048*(t&1)+1024} sc1")
        a(f"buffer_load_dwordx4 {vr(KV+12*t+8,4)}, v15, {sr(R_WS,4)}, s{sT0} offen offset:{2048*(t&1)+1536} sc1")
    a("s_mov_b64 exec, -1")
    if tp < 7: a(f"s_add_u32 s{sT0}, s{sT0}, 4096")
NINIT = int(OPT.get("ninit", 3))
A4POS = int(OPT.get("a4", 8))
ABPOS = int(OPT.get("ab", 0))
NB = int(OPT.get("nb", NINIT))
for tp in range(NB):
    kvload(tp)
cm("do all 32 workgroups of this id class share this XCD?")
a(f"s_bfe_u32 s{sT1}, s2, 0x20001")
a(f"s_cmp_eq_u32 s{sT1}, s{sWV}")
a("s_cbranch_scc0 L_a_nomode")
a(f"s_getreg_b32 s{sT1}, hwreg(HW_REG_XCC_ID, 0, 4)")
a(f"v_cmp_ne_u32 vcc, s{sT1}, v22")
a("s_bitcmp1_b32 s2, 0")
a(f"s_cselect_b32 s{sT1}, vcc_hi, vcc_lo")
a(f"s_cmp_eq_u32 s{sT1}, 0")
a(f"s_cselect_b32 s{sT1}, {2 if OPT.get('nolocal') else 1}, 2")
a(f"v_mov_b32 v21, s{sT1}")
a(f"ds_write_b32 v{vCA}, v21 offset:{C_MODE}")
lab("L_a_nomode")
assert NINIT < 8
stamp(5)
a("s_barrier")
a("s_setprio 1")
a(f"ds_read_b128 {vr(vQ,4)}, v{vAQ}")
a(f"v_add_u32 v{vAQ}, 1024, v{vAQ}")
for tp in range(NB, NINIT): kvload(tp)
a(f"s_waitcnt vmcnt({6*(NINIT-1)+4}) lgkmcnt(0)")
stamp(6)
cstamp(10)

K_ = lambda t: KV + 12 * t
V1 = lambda t: KV + 12 * t + 4
V2 = lambda t: KV + 12 * t + 8
def ex(X, i): a(f"v_exp_f32 v{X+i}, v{X+i}")
def exs(X, lo, hi):
    for i in range(lo, hi): ex(X, i)
def smf(v, p): a(f"v_smfmac_f32_32x32x32_bf16 {vr(vO,16)}, {vr(v,4)}, {vr(p,8)}, v{vIDX}")
def qk(d, t): mfma32(d, K_(t), vQ, "0")
def zeroO(): a(f"v_mfma_f32_32x32x8_bf16 {vr(vO,16)}, {vr(vZ,2)}, {vr(vZ,2)}, 0")
def dump():
    a(f"ds_write_b128 v{vAD}, {vr(vO,4)}")
    a(f"ds_write_b128 v{vAD}, {vr(vO+4,4)} offset:1024")
    a(f"ds_write_b32 v{vAS}, v{vO+8}")
    a(f"ds_write_b32 v{vPG}, v{vAS}")

KVS = int(OPT.get('kvs', 2))
QPF = int(OPT.get('qpf', 0))
PQ, PS1 = [int(x) for x in OPT.get('pos', '7,12').split(',')]
assert not QPF
UN2 = int(OPT.get("un2", 0))
def dump2(off):
    a(f"ds_write_b128 v{vAD}, {vr(vO,4)}" + (f" offset:{off}" if off else ""))
    a(f"ds_write_b128 v{vAD}, {vr(vO+4,4)} offset:{1024+off}")
    a(f"ds_write_b32 v{vAS}, v{vO+8}")
    a(f"ds_write_b32 v{vPG}, v{vAS}")
def tiles_1_15(first):
    issued = [NINIT + 1 if first else 8]
    def preqk(tn):
        if first and tn % 2 == 0 and tn < 16:
            a(f"s_waitcnt vmcnt({6*(min(issued[0],8) - 1 - tn//2)})")
    def more(t):
        if first and t % KVS == 0 and issued[0] < 8:
            kvload(issued[0]); issued[0] += 1
            if issued[0] in (A4POS, ABPOS): signal(vCA, vONEA, C_A4)
    for t in range(1, 16):
        X, Y = (S0, S1) if t % 2 == 0 else (S1, S0)
        exs(X, 0, 2); smf(V2(t - 1), Y + 8); exs(X, 2, PQ)
        if t == 15:
            a("s_waitcnt lgkmcnt(0)")
            if DBG == "steps":
                a(f"s_sub_u32 m0, 7, s{sSTEP}")
                a("s_nop 0")
                a(f"s_movreld_b32 s81, s{sST}")
            qk(Y, 0)
        else:
            preqk(t + 1)
            qk(Y, t + 1)
        if t == 14 and DBG == "steps": a(f"s_memtime s[{sST}:{sST+1}]")
        if t == 14:
            a(f"ds_read_b128 {vr(vQ,4)}, v{vAQ}")
            a(f"v_add_u32 v{vAQ}, 1024, v{vAQ}")
        exs(X, PQ, PS1); smf(V1(t), X); more(t); exs(X, PS1, 16)

qk(S0, 0)
zeroO()
a(f"s_mov_b32 s{sSTEP}, 7")
kvload(NINIT)
if NINIT + 1 in (A4POS, ABPOS): signal(vCA, vONEA, C_A4)
exs(S0, 0, 4); qk(S1, 1); exs(S0, 4, 12)
a(f"s_waitcnt vmcnt({6*NINIT})")
smf(V1(0), S0); exs(S0, 12, 16)
tiles_1_15(True)
a(f"s_mov_b32 s{sSTEP}, 6")
a("s_nop 0")
lines.append(".p2align 6")
lab("L_a_loop")
cm("tile 0: finish the previous q-tile (6 exps = 48+ cycles cover the accumulator latency), restart the accumulator")
X, Y = S0, S1
smf(V2(15), Y + 8); exs(X, 0, 3); qk(Y, 1); exs(X, 3, 6)
dump()
ex(X, 6); zeroO(); exs(X, 7, 12)
a(f"v_add_u32 v{vAD}, {PSTRIDE}, v{vAD}")
a(f"v_add_u32 v{vAS}, {PSTRIDE}, v{vAS}")
smf(V1(0), X)
exs(X, 12, 16)
tiles_1_15(False)
a(f"s_sub_u32 s{sSTEP}, s{sSTEP}, 1")
a("s_cbranch_scc0 L_a_loop")

lab("L_a_fin")
smf(V2(15), S1 + 8)
a("v_lshlrev_b32 v14, 4, v0")
a(f"v_mov_b32 v{vCA}, {L_CNT}")
a(f"v_add_u32 v9, s{sT2}, v14")
a("v_and_b32 v10, 3, v0")
a("v_lshlrev_b32 v10, 2, v10")
a(f"v_add_u32 v10, {L_PROG}, v10")
a(f"s_add_u32 s{sT2}, s{sT2}, {L_PART + 8192}")
a(f"v_add_u32 v6, s{sT4}, v14")
a("v_lshlrev_b32 v16, 2, v0")
a(f"v_mov_b32 v17, s{sTAG}")
a("s_setprio 3")
dump()
a("v_lshlrev_b32 v7, 3, v0")
a(f"v_add_u32 v7, s{sT5}, v7")
a(f"s_mov_b32 s{sKIND}, 0")
stamp(7)
cstamp(11)
lab("L_a_rw")
a("ds_read_b32 v11, v10")
a(f"ds_read_b32 v8, v{vCA} offset:{C_MODE}")
a("ds_read_b128 v[52:55], v9 offset:8192")
for w in range(8):
    a(f"ds_read_b128 {vr(20+4*w,4)}, v9 offset:{1024*w}")
a("ds_read_b128 v[56:59], v6 offset:8192")
WSH = int(OPT.get("wsh", 1))
if WSH:
    a(f"ds_read_b32 v60, v{vCA} offset:{C_GH}")
    a("ds_read_b64 v[4:5], v7")
a(f"s_waitcnt lgkmcnt({11 if WSH else 9})")
a(f"v_cmp_gt_u32 vcc, s{sT2}, v11")
a("s_cbranch_vccnz L_a_rw")
a(f"v_readfirstlane_b32 s{sMODE}, v8")
a(f"s_mov_b32 s{sT1}, s{sF2}")
sum_check(52)
a(f"s_waitcnt lgkmcnt({3 if WSH else 1})")
a("s_cbranch_scc1 L_a_bad1")
reduce_math(20, 14, flag=False, bs=52)
a("v_and_b32 v15, 15, v0")
a("v_lshlrev_b32 v15, 7, v15")
a(f"s_lshl_b32 s{sT0}, s{sWV}, 2")
a(f"v_add_u32 v10, s{sT0}, v{vCA}")
AO, AW, AC = 88, 152, 48
NSH = int(OPT.get("nsh", 12)); WG0 = int(OPT.get("wg0", 15))
def awread(k):
    o = PSTRIDE * (k // 4) + 2048 * (k % 4)
    a(f"ds_read_b64_tr_b16 {vr(AW+4*k,2)}, v4 offset:{o}")
    a(f"ds_read_b64_tr_b16 {vr(AW+4*k+2,2)}, v4 offset:{o+1024}")
if WSH:
    a("s_waitcnt lgkmcnt(0)")
    a("v_cmp_gt_u32 vcc, NSYNC_B2, v60")
    a("s_cbranch_vccnz L_a_nosh")
    a(f"s_mov_b32 s{sKIND}, 1")
    for k in range(NSH): awread(k)
    lab("L_a_nosh")
a("s_waitcnt vmcnt(0)")
a("s_mov_b32 exec_hi, 0")
st2([f"buffer_store_dword v17, v16, {sr(R_WS,4)}, s{sF1} offen@"])
a("s_mov_b64 exec, -1")
lab("L_a_ok1")
stamp(8)
if not WSH: a("s_waitcnt lgkmcnt(0)")
sum_check(56)
a("s_cbranch_scc1 L_a_bad2")
lab("L_a_ok2")
cm("output projection, last 16 heads")
poll(15, f"s{sCG}", 8)
stamp(9)
for g in range(16):
    if g % 4 == 0 and g: a(f"s_add_u32 s{sT6}, s{sT6}, 4096")
    a(f"buffer_load_dwordx4 {vr(AO+4*g,4)}, v14, {sr(R_WS,4)}, s{sT6} offen offset:{1024*(g%4)} sc1")
    if g == WG0:
        a(f"s_cmp_eq_u32 s{sKIND}, 1")
        a("s_cbranch_scc1 L_a_wd")
        lab("L_a_ww")
        a(f"ds_read_b32 v11, v{vCA} offset:{C_GH}")
        a("ds_read_b64 v[4:5], v7")
        a("s_waitcnt lgkmcnt(0)")
        a("v_cmp_gt_u32 vcc, NSYNC_B2, v11")
        a("s_cbranch_vccnz L_a_ww")
        for k in range(NSH): awread(k)
        lab("L_a_wd")
YLT = int(OPT.get("ylt", 0))
if YLT == 1: signal(vCA, vONEA, C_S)
for k in range(NSH, 16): awread(k)
a(f"ds_read_b32 v11, v10 offset:{C_HA}")
for i in range(4):
    a(f"ds_read_b128 {vr(16+4*i,4)}, v6 offset:{1024*i}")
cm("epoch update by WG0 (every workgroup has read the old value long ago)")
a(f"s_lshl2_add_u32 s{sT0}, s2, s{sWV}")
a(f"s_cmp_eq_u32 s{sT0}, 0")
a("s_cbranch_scc0 L_a_noep")
setflag(8, 9, sT0)
lab("L_a_noep")
for g in range(16):
    a(f"s_waitcnt vmcnt({15-g}) lgkmcnt({min(15, 5 + 2*(15-g))})")
    mfma32(AC, AO + 4*g, AW + 4*g, "0" if g == 0 else None)
if YLT == 2: signal(vCA, vONEA, C_S)
stamp(13)
a("s_waitcnt lgkmcnt(0)")
a("v_cmp_eq_u32 vcc, 0, v11")
a("s_cbranch_vccz L_a_hok")
lab("L_a_hw")
a(f"ds_read_b32 v11, v10 offset:{C_HA}")
for i in range(4):
    a(f"ds_read_b128 {vr(16+4*i,4)}, v6 offset:{1024*i}")
a("s_waitcnt lgkmcnt(0)")
a("v_cmp_eq_u32 vcc, 0, v11")
a("s_cbranch_vccnz L_a_hw")
lab("L_a_hok")
a("s_nop 8")
stamp(14)
for j in range(8):
    a(f"v_pk_add_f32 {vr(AC+2*j,2)}, {vr(AC+2*j,2)}, {vr(16+2*j,2)}")
    for r in (2*j, 2*j + 1):
        a(f"s_add_u32 s{sT1}, s{sT3}, {4096 * (8*(r//4) + r%4)}")
        a(f"buffer_store_dword v{AC+r}, v5, {sr(R_B,4)}, s{sT1} offen{OUTFL}")
a("s_branch L_end")

sec("P")
ROLE[0] = "H"
if STAMPS:
    a("s_mov_b32 s81, 0")
    a("s_mov_b32 s92, 0")
    a("s_mov_b32 s93, 0")
srd(R_WS, P_WS, WS_SIZE)
a("v_xor_b32 v14, v12, v13")
a("v_lshlrev_b32 v14, 4, v14")
a("v_lshl_add_u32 v14, v13, 8, v14")
a(f"v_add_u32 v8, s{sT2}, v14")
for ks in range(1, 4):
    a(f"v_xor_b32 v{8+ks}, {64*ks}, v8")
a("v_lshrrev_b32 v14, 2, v13")
a("v_lshl_add_u32 v14, v12, 3, v14")
a("v_lshlrev_b32 v14, 5, v14")
a("v_and_b32 v15, 3, v0")
a("v_lshl_add_u32 v14, v15, 3, v14")
a(f"v_add_u32 v14, s{sT4}, v14")
a(f"s_lshl_b32 s{sT0}, s{sWV}, 10")
a(f"s_add_u32 s{sT0}, s{sT0}, {L_KVP}")
a(f"v_add_u32 v15, s{sT0}, v6")
a(f"s_lshl_b32 s{sT0}, s{sRB}, 2")
a(f"s_add_u32 s{sT0}, s{sT0}, s{sGRP}")
a(f"s_lshr_b32 s{sT1}, s{sT0}, 1")
a(f"s_lshl_b32 s{sT1}, s{sT1}, 1")
a(f"s_add_u32 s{sT1}, s{sT1}, s{sKIND}")
a(f"s_lshl_b32 s{sT1}, s{sT1}, 10")
a(f"s_and_b32 s{sT2}, s{sT0}, 1")
a(f"s_add_u32 s{sT3}, s{sKIND}, 8")
a(f"s_lshl_b32 s{sT2}, s{sT2}, s{sT3}")
a(f"s_add_u32 s{sT1}, s{sT1}, s{sT2}")
a(f"s_add_u32 s{sT5}, s{sT1}, {WS_KV}")
a(f"s_lshl_b32 s{sT0}, s{sT0}, 1")
a(f"s_add_u32 s{sT0}, s{sT0}, s{sKIND}")
a(f"s_lshl_b32 s{sT0}, s{sT0}, {FSH}")
a(f"s_add_u32 s{sT6}, s{sT0}, {WS_FKV}")
a(f"s_cmp_eq_u32 s{sKIND}, 0")
a(f"s_cselect_b32 s{sT0}, 9, 3")
a(f"s_cselect_b32 s{sT1}, 3, 8")
a("v_and_b32 v34, 1, v12")
a("v_lshrrev_b32 v35, 1, v12")
a("v_lshlrev_b32 v16, 4, v13")
a(f"v_lshl_add_u32 v16, v34, s{sT0}, v16")
a(f"v_lshl_add_u32 v16, v35, s{sT1}, v16")
a(f"v_mov_b32 v{vCNT}, {L_CNT}")
a(f"v_mov_b32 v{vONE}, 1")
a("s_waitcnt lgkmcnt(0)")
a(f"s_mul_i32 s{sTAG}, s{sTAG}, 1664525")
a(f"s_add_u32 s{sTAG}, s{sTAG}, 1013904223")
if EP0:
    a(f"s_cmp_eq_u32 s{sWV}, 0")
    a("s_cbranch_scc0 L_h_notag")
a(f"v_mov_b32 v36, s{sTAG}")
a(f"ds_write_b32 v{vCNT}, v36 offset:{C_TAG}")
lab("L_h_notag")
a(f"s_cmp_eq_u32 s{sKIND}, 0")
a(f"s_waitcnt vmcnt({0 if PP_ else 4})")
stamp(1)
b = 128
for ks in range(4):
    a(f"ds_read_b128 {vr(b+8*ks,4)}, v{8+ks}")
    a(f"ds_read_b64_tr_b16 {vr(b+8*ks+4,2)}, v14 offset:{1024*ks}")
    a(f"ds_read_b64_tr_b16 {vr(b+8*ks+6,2)}, v14 offset:{1024*ks+128}")
def kvproj(kind):
    for ks in range(4):
        a(f"s_waitcnt lgkmcnt({9 - 3*ks})")
        x, w = vr(b+8*ks, 4), vr(b+8*ks+4, 4)
        if kind == 0: x, w = w, x
        a(f"v_mfma_f32_16x16x32_bf16 v[40:43], {x}, {w}, {'0' if ks == 0 else 'v[40:43]'}")
a("s_cbranch_scc0 L_h_vproj")
kvproj(0)
a("s_branch L_h_kvdone")
lab("L_h_vproj")
kvproj(1)
lab("L_h_kvdone")
a(f"s_cmp_eq_u32 s{sWV}, 0")
a("s_cbranch_scc1 L_h_pub")
a("s_nop 5")
a("ds_write_b128 v15, v[40:43]")
a("s_waitcnt lgkmcnt(0)")
a("s_barrier")
a("s_branch L_h_common")
lab("L_h_pub")
a("s_barrier")
for i in range(1, 4):
    a(f"ds_read_b128 {vr(40+4*i,4)}, v15 offset:{1024*i}")
a("s_nop 1")
a("s_waitcnt lgkmcnt(0)")
a("v_pk_add_f32 v[40:41], v[40:41], v[44:45]")
a("v_pk_add_f32 v[42:43], v[42:43], v[46:47]")
a("v_pk_add_f32 v[48:49], v[48:49], v[52:53]")
a("v_pk_add_f32 v[50:51], v[50:51], v[54:55]")
a("v_pk_add_f32 v[40:41], v[40:41], v[48:49]")
a("v_pk_add_f32 v[42:43], v[42:43], v[50:51]")
a("v_cvt_pk_bf16_f32 v40, v40, v41")
a("v_cvt_pk_bf16_f32 v41, v42, v43")
a(f"buffer_store_dwordx2 v[40:41], v16, {sr(R_WS,4)}, s{sT5} offen sc1")
dstamp("p", 5)
a("s_branch L_h_common")
sec("HQ")
lab("L_h_common")
if OPT.get("pw") == "1": pwarm()
if "3" in SX: spx("x", 0, 15)
a(f"s_mov_b32 s{sSYNC}, 0")
a("v_and_b32 v17, 31, v0")
a("v_lshrrev_b32 v18, 5, v0")
p0, p1, p2, vDSK = 60, 61, 62, 63
cm("Q projection addresses")
QXA = list(range(48, 56))
a(f"s_lshr_b32 s{sT0}, s{sWV}, 1")
a(f"s_lshl_b32 s{sT0}, s{sT0}, 13")
a("v_xor_b32 v34, v13, v18")
a("v_lshlrev_b32 v34, 4, v34")
a("v_lshl_add_u32 v34, v17, 8, v34")
a(f"v_add_u32 v{QXA[0]}, s{sT0}, v34")
for ks in range(1, 8):
    a(f"v_xor_b32 v{QXA[ks]}, {32*ks}, v{QXA[0]}")
wtr_addr(vWT, 9, L_R1, 34)
a(f"v_lshl_add_u32 v56, v18, 9, v{vWT}")
a(f"v_add_u32 v56, {(L_WQ - L_R1) & 0xffffffff}, v56")
a(f"s_and_b32 s{sT1}, s{sWV}, 1")
a(f"s_lshl_b32 s{sT1}, s{sT1}, 12")
a(f"s_lshr_b32 s{sT2}, s{sWV}, 1")
a(f"s_lshl_b32 s{sT2}, s{sT2}, 10")
a(f"s_add_u32 s{sT1}, s{sT1}, s{sT2}")
a(f"s_add_u32 s{sT1}, s{sT1}, {L_QF}")
a(f"v_add_u32 v57, s{sT1}, v6")
a(f"v_mov_b32 v58, {f32(0.25 * LOG2E)}")
a("v_mov_b32 v59, v58")
cm("SSM offsets and addresses")
a(f"s_mov_b32 s{R_A}, s{P_BX}")
a(f"s_and_b32 s{R_A+1}, s{P_BX+1}, 0xffff")
srd(R_B, P_BRE, 512 * 1024)
srd(R_C, P_BIM, 512 * 1024)
a(f"s_mov_b32 s{sLO}, {f32(L_LO)}")
a(f"s_mov_b32 s{sHI}, {f32(L_HI)}")
a(f"s_lshl_b32 s{sT0}, s{sC}, 17")
a(f"s_lshl_b32 s{sT1}, s{sWV}, 15")
a(f"s_add_u32 s{sT3}, s{sT0}, s{sT1}")
a(f"s_lshr_b32 s{sT0}, s{sWV}, 1")
a(f"s_lshl1_add_u32 s{sYG}, s{sRB}, s{sT0}")
if YM:
    a(f"s_and_b32 s{sYY}, s{sRB}, 24")
    a(f"s_add_u32 s{sYY}, s{sYY}, s{sG}")
    a(f"s_lshl1_add_u32 s{sYY}, s{sYY}, s{sT0}")
else:
    a(f"s_mov_b32 s{sYY}, s{sYG}")
a(f"s_and_b32 s{sT0}, s{sWV}, 1")
a(f"s_lshl1_add_u32 s{sCG}, s{sGY}, s{sT0}")
a(f"s_lshl_b32 s{sT4}, s{sYY}, 15")
a(f"s_lshl_b32 s{sT2}, s{sCG}, 6")
a(f"s_add_u32 s{sT4}, s{sT4}, s{sT2}")
wo_voff(vWO, 34)
a("v_lshrrev_b32 v36, 2, v0")
a("v_and_b32 v34, 3, v36")
a("v_bfe_u32 v35, v36, 2, 1")
a("v_lshl_add_u32 v34, v35, 4, v34")
a("v_lshrrev_b32 v35, 3, v36")
a("v_lshl_add_u32 v34, v35, 2, v34")
a("v_and_b32 v37, 3, v0")
a("v_lshlrev_b32 v35, 4, v37")
a("v_lshl_add_u32 v8, v34, 10, v35")
a("v_add_u32 v9, 8192, v8")
a(f"v_mul_u32_u24 v{vRB}, {RSTR}, v17")
a(f"v_lshl_add_u32 v{vRB}, v18, 4, v{vRB}")
a(f"v_add_u32 v{vRB}, {L_R1}, v{vRB}")
a(f"s_lshl_b32 s{sT1}, s{sWV}, 11")
a(f"s_add_u32 s{sT1}, s{sT1}, {L_SCR}")
a("v_xor_b32 v34, v12, v37")
a("v_lshlrev_b32 v34, 4, v34")
a("v_lshl_add_u32 v34, v36, 6, v34")
a(f"v_add_u32 v10, s{sT1}, v34")
a("v_bfe_u32 v34, v0, 2, 2")
a("v_xor_b32 v35, v34, v18")
a("v_lshlrev_b32 v35, 4, v35")
a("v_lshl_add_u32 v35, v17, 6, v35")
a(f"v_add_u32 v11, s{sT1}, v35")
a("v_xor_b32 v12, 32, v11")
a("v_lshl_add_u32 v34, v18, 3, v34")
a("v_lshlrev_b32 v34, 6, v34")
a("v_bfe_u32 v35, v0, 4, 1")
a("v_lshl_add_u32 v34, v35, 5, v34")
a("v_lshl_add_u32 v34, v37, 3, v34")
a(f"v_add_u32 v19, s{sT1}, v34")
a("v_lshlrev_b32 v34, 6, v17")
a("v_lshl_add_u32 v34, v18, 5, v34")
a(f"v_add_u32 v16, s{sT1}, v34")
a("v_lshlrev_b32 v38, 4, v18")
a("v_lshl_add_u32 v29, v17, 10, v38")
a("v_lshlrev_b32 v14, 4, v17")
a("s_waitcnt vmcnt(1)")
a(f"s_cmp_eq_u32 s{sWV}, 0")
a("s_cbranch_scc1 L_h_pw")
a("s_waitcnt vmcnt(0)")
lab("L_h_pw")
FPOS = int(OPT.get("fpos", 1))
def kvflag():
    a("s_waitcnt vmcnt(0)")
    a(f"s_cmp_eq_u32 s{sWV}, 0")
    a("s_cbranch_scc0 L_h_nopub")
    a(f"s_getreg_b32 s{sT0}, hwreg(HW_REG_XCC_ID, 0, 4)")
    a(f"s_xor_b32 s{sT0}, s{sT0}, s{sTAG}")
    a("v_mov_b32 v34, 0")
    a(f"v_mov_b32 v35, s{sT0}")
    a("s_mov_b64 exec, 1")
    a(f"buffer_store_dword v35, v34, {sr(R_WS,4)}, s{sT6} offen sc1")
    a("s_mov_b64 exec, -1")
    stamp(2)
    lab("L_h_nopub")
if PP_ == 0:
    if FPOS == 0: kvflag()
    cm("SSM parameters")
    q0, q1, q2, q3, q4 = 64, 65, 66, 67, 68
    a(f"v_lshlrev_b32 v{p0}, 16, v{p0}")
    a(f"v_lshlrev_b32 v{p1}, 16, v{p1}")
    a(f"v_lshlrev_b32 v{p2}, 16, v{p2}")
    a(f"v_mul_f32 v{p2}, {f32(LOG2E)}, v{p2}")
    a(f"v_exp_f32 v{p2}, v{p2}")
    a("s_nop 0")
    a(f"v_cvt_pk_bf16_f32 v{p2}, v{p2}, v{p2}")
    a(f"v_and_b32 v{p2}, 0xffff0000, v{p2}")
    a(f"v_mul_f32 v{q0}, v{p2}, v{p0}")
    a(f"v_mul_f32 v{q1}, v{p2}, v{p1}")
    a(f"v_mul_f32 v{q0}, {f32(LOG2E)}, v{q0}")
    a(f"v_mul_f32 v{q1}, {f32(1/(2*math.pi))}, v{q1}")
    a(f"v_exp_f32 v{q0}, v{q0}")
    a(f"v_rndne_f32 v{q2}, v{q1}")
    a(f"v_sub_f32 v{q1}, v{q1}, v{q2}")
    a(f"v_cos_f32 v{q2}, v{q1}")
    a(f"v_sin_f32 v{q3}, v{q1}")
    a(f"v_mul_f32 v{q4}, v{p0}, v{p0}")
    a(f"v_fma_f32 v{q4}, v{p1}, v{p1}, v{q4}")
    a(f"v_mul_f32 v{vL}, v{q0}, v{q2}")
    a(f"v_mul_f32 v{vL+1}, v{q0}, v{q3}")
    a(f"v_rcp_f32 v{q4}, v{q4}")
    a(f"v_add_f32 v{q2}, -1.0, v{vL}")
    a(f"v_add_f32 v{q4}, v{q4}, v{q4}")
    a(f"v_mul_f32 v{q0}, v{q2}, v{p0}")
    a(f"v_fma_f32 v{q0}, v{vL+1}, v{p1}, v{q0}")
    a(f"v_mul_f32 v{q1}, v{vL+1}, v{p0}")
    a(f"v_fma_f32 v{q1}, -v{q2}, v{p1}, v{q1}")
    a(f"v_mul_f32 v{vCO}, v{q0}, v{q4}")
    a(f"v_mul_f32 v{vCO+1}, v{q1}, v{q4}")
    cmul(70, vL, vL); cmul(72, 70, 70); cmul(vL8, 72, 72); cmul(vL16_, vL8, vL8)
    cm("skip term x*D via a diagonal B operand -> YACC")
    YACC = 112
    a("v_and_b32 v64, 1, v0")
    a("v_lshlrev_b32 v64, 4, v64")
    a(f"v_lshlrev_b32 v{vDSK}, v64, v{vDSK}")
    a("v_lshrrev_b32 v64, 1, v17")
    a("v_lshlrev_b32 v65, 2, v18")
    a("v_sub_u32 v64, v64, v65")
    for i in range(0, 8, 2):
        a(f"v_cmp_eq_u32 s[{sM}:{sM+1}], {8*(i//4) + i%4}, v64")
        a(f"v_cmp_eq_u32 vcc, {8*(i//4) + i%4 + 1}, v64")
        a("s_nop 0")
        a(f"v_cndmask_b32 v{104+i}, 0, v{vDSK}, s[{sM}:{sM+1}]")
        a(f"v_cndmask_b32 v{105+i}, 0, v{vDSK}, vcc")
    if FPOS == 1: kvflag()
    cm("per-lane powers: PS = L16^seg, M0 = L256^seg (if valid), M1 = M0*L128 (if valid)")
    vPS, vM0, vM1, vO0, vO1 = 96, 98, 100, 102, 103
    a(f"s_mov_b32 s{sM}, 0")
    a(f"s_mov_b32 s{sM+1}, -1")
    def powsel(dst, b1, b2, b4):
        a(f"v_cndmask_b32 v{dst}, 1.0, v{b1}, s[{sM}:{sM+1}]")
        a(f"v_cndmask_b32 v{dst+1}, 0, v{b1+1}, s[{sM}:{sM+1}]")
        for bit, b in ((0, b2), (1, b4)):
            L = uid("ps")
            a(f"s_bitcmp1_b32 s{sWV}, {bit}")
            a(f"s_cbranch_scc0 {L}")
            cmul(66, dst, b)
            a(f"v_mov_b64 {vr(dst,2)}, v[66:67]")
            lab(L)
    cmul(68, vL16_, vL16_); cmul(70, 68, 68); cmul(72, 70, 70)
    cmul(74, 72, 72); cmul(76, 74, 74); cmul(78, 76, 76)
    powsel(vPS, vL16_, 68, 70)
    powsel(vM0, 74, 76, 78)
    cmul(vM1, vM0, 72)
    a(f"s_lshl_b32 s{sT0}, s{sWV}, 2")
    a(f"s_sub_u32 s{sT0}, s{sC}, s{sT0}")
    a(f"s_sub_u32 s{sT0}, s{sT0}, 1")
    a("v_lshlrev_b32 v30, 1, v18")
    a(f"v_sub_u32 v{vO0}, s{sT0}, v30")
    a(f"v_add_u32 v{vO1}, -1, v{vO0}")
    a(f"v_mov_b32 v30, 0")
    for (vo, vm) in ((vO0, vM0), (vO1, vM1)):
        a(f"v_cmp_le_i32 vcc, 0, v{vo}")
        a("s_nop 1")
        a(f"v_cndmask_b32 v{vo}, v30, v{vo}, vcc")
        a(f"v_cndmask_b32 v{vm}, 0, v{vm}, vcc")
        a(f"v_cndmask_b32 v{vm+1}, 0, v{vm+1}, vcc")
        a(f"v_lshl_add_u32 v{vo}, v{vo}, 9, v14")
else:
    a("v_mov_b32 v92, v17")
    a("v_mov_b32 v93, v18")
    kvflag()
    if PP_ == 1: pld()
if FPOS == 2: kvflag()
cm("Q projection")
ACC, QD = 32, 4
XR = 128
VM, LG = Cnt(), Cnt()
xq = [(j, h) for j in range(16) for h in range(2)]
def xb1():
    j, h = xq.pop(0)
    a(f"buffer_load_dwordx4 {vr(XR+8*j+4*h,4)}, v{8+h}, {sr(R_A,4)}, s{16+j//4} offen offset:{64*(j%4)}")
    VM.issue(("x", j))
def qs(ks): return 128 + 8 * (ks % 8)
def qread(ks):
    a(f"ds_read_b64_tr_b16 {vr(qs(ks),2)}, v56 offset:{2048*ks}")
    a(f"ds_read_b64_tr_b16 {vr(qs(ks)+2,2)}, v56 offset:{2048*ks+512}")
    a(f"ds_read_b128 {vr(qs(ks)+4,4)}, v{QXA[ks % 8]} offset:{16384*(ks//8)}")
def qm(ks): mfma32(ACC, qs(ks), qs(ks) + 4, "0" if ks == 0 else None)
DR = [int(x) for x in OPT.get("drain", "").split(",") if x]
sec("Z"); sec("HQ")
if "3" in SX or OPT.get("pw") == "1": a("s_waitcnt lgkmcnt(0)")
a("s_barrier")
segs = []
k0 = 0
for k1 in DR + [32]:
    segs.append((k0, k1)); k0 = k1
for (k0, k1) in segs:
    if k0: a("s_barrier")
    for ks in range(k0, k0 + QD): qread(ks)
    for ks in range(k0, k1):
        if ks + QD < k1:
            if ks + QD in ((8, 16, 24) if B0 else (16, 24)): a("s_barrier")
            qread(ks + QD)
            a(f"s_waitcnt lgkmcnt(12)")
        else:
            a(f"s_waitcnt lgkmcnt({3*(k1-1-ks)})")
        qm(ks)
a(f"s_lshl_b32 s{sT0}, s{sWV}, 9")
a(f"s_add_u32 s{sT0}, s{sT0}, {L_ES}")
a("v_lshlrev_b32 v13, 3, v0")
a(f"v_add_u32 v13, s{sT0}, v13")
a("v_lshlrev_b32 v15, 3, v17")
a(f"v_add_u32 v15, {L_ES}, v15")
a("v_lshlrev_b32 v1, 2, v17")
a("v_lshl_add_u32 v1, v18, 14, v1")
a(f"s_lshl_b32 s{sT0}, s{sPB}, 15")
a(f"s_lshl_b32 s{sT1}, s{sWV}, 13")
a(f"s_add_u32 s{sT5}, s{sT0}, s{sT1}")
a(f"s_add_u32 s{sT6}, s{sT5}, 4096")
a(f"s_and_b32 s{sT0}, s{sRB}, 3")
a(f"s_lshl2_add_u32 s{sT1}, s{sT0}, s{sWV}")
a(f"s_lshl_b32 s{sT1}, s{sT1}, 15")
a(f"s_lshl_b32 s{sT2}, s{sG}, 7")
a(f"s_add_u32 s{sT1}, s{sT1}, s{sT2}")
a("v_lshlrev_b32 v18, 10, v17")
a(f"v_add_u32 v18, s{sT1}, v18")
if YM:
    a(f"s_lshl3_add_u32 s{sT0}, s{sGY}, s{sG}")
    a(f"s_lshl_b32 s{sT0}, s{sT0}, 13")
    a(f"s_and_b32 s{sT1}, s{sWV}, 1")
    a(f"s_lshl_b32 s{sT1}, s{sT1}, 12")
    a(f"s_add_u32 s{sT0}, s{sT0}, s{sT1}")
    a("v_lshlrev_b32 v17, 7, v17")
else:
    a(f"s_lshl2_add_u32 s{sT0}, s{sG}, s{sT0}")
    a(f"s_lshl_b32 s{sT0}, s{sT0}, 14")
    a(f"s_and_b32 s{sT1}, s{sWV}, 1")
    a(f"s_lshl_b32 s{sT1}, s{sT1}, 13")
    a(f"s_add_u32 s{sT0}, s{sT0}, s{sT1}")
    a("v_lshlrev_b32 v17, 7, v0")
a(f"v_add_u32 v17, s{sT0}, v17")
a(f"s_cmp_lt_u32 s{sWV}, 2")
a(f"s_cselect_b32 s{sPC}, s{P_CRE}, s{P_CIM}")
a(f"s_cselect_b32 s{sPC+1}, s{P_CRE+1}, s{P_CIM+1}")
a(f"s_and_b32 s{sT0}, s{sWV}, 1")
a(f"s_mul_i32 s{sT0}, s{sT0}, {32*RSTR}")
a(f"v_add_u32 v28, s{sT0}, v{vRB}")
for r in range(0, 16, 2):
    a(f"v_pk_mul_f32 {vr(ACC+r,2)}, {vr(ACC+r,2)}, v[58:59]")
for j in range(8):
    a(f"v_cvt_pk_bf16_f32 v{ACC+j}, v{ACC+2*j}, v{ACC+2*j+1}")
a(f"ds_write_b128 v57, {vr(ACC,4)}")
a(f"ds_write_b128 v57, {vr(ACC+4,4)} offset:2048")
cm("B tile: 4 k-slots of [64 rows x 256B], xor-swizzled; read addresses v112..119, dma voffset v120")
BA = 112
a("v_lshrrev_b32 v121, 4, v0")
a("v_and_b32 v122, 15, v0")
a(f"v_lshl_add_u32 v121, s{sWV}, 2, v121")
a("v_xor_b32 v123, v122, v121")
a("v_lshlrev_b32 v123, 4, v123")
a("v_lshl_add_u32 v120, v121, 10, v123")
a(f"s_lshr_b32 s{sT0}, s{sWV}, 1")
a(f"s_lshl_b32 s{sT0}, s{sT0}, 13")
a(f"s_sub_u32 s{sT0}, {L_R1}, s{sT0}")
for ks in range(8):
    a(f"v_add_u32 v{BA+ks}, s{sT0}, v{QXA[ks]}")
a(f"s_lshl_b32 s{sT5}, s{sPB}, 15")
a(f"s_lshl_b32 s{sT6}, s{sWV}, 10")
UR = OPT.get("urot", "2")
if UR == "0": a(f"s_mov_b32 s{sT0}, 0")
elif UR == "1": a(f"s_add_u32 s{sT0}, s{sC}, s{sPB}")
elif UR == "2": a(f"s_lshr_b32 s{sT0}, s2, 1")
elif UR == "3": a(f"s_mov_b32 s{sT0}, s2")
for sl in range(4):
    a(f"s_add_u32 s{sT1}, s{sT0}, {sl}")
    a(f"s_and_b32 s{sT1}, s{sT1}, 3")
    a(f"s_lshl_b32 s{sT1}, s{sT1}, 8")
    a(f"s_add_u32 s{16+sl}, s{sT3}, s{sT1}")
    a(f"s_add_u32 s{20+sl}, s{sT5}, s{sT1}")
a("s_waitcnt lgkmcnt(0)")
stamp(3)
a("s_barrier")
a("s_branch L_h2")
sec("H")
lab("L_h2")
a("s_setprio 2")
def rows_dma(tag, base=sT5, ore=0, oim=0):
    a(f"s_mul_i32 s{sT1}, s{sWV}, {8*RSTR}")
    for i in range(8):
        a(f"s_add_u32 m0, s{sT1}, {L_R1 + RSTR*i}")
        a(f"s_add_u32 s{sT2}, s{base}, {1024*i + ore}")
        dma(vL4, R_B, f"s{sT2}")
        a(f"s_add_u32 m0, s{sT1}, {L_R1 + RSTR*(32+i)}")
        a(f"s_add_u32 s{sT2}, s{base}, {1024*i + oim}")
        dma(vL4, R_C, f"s{sT2}")
    VM.issue(tag, 16)
def xw(j, h):
    if h == 0: waits(vm=VM.need(("x", j)))
    a(f"ds_write_b128 v10, {vr(XR+8*j+4*h,4)}" + (" offset:1024" if h else ""))
    LG.issue(("xw", j))
def xr(j):
    a(f"ds_read_b128 {vr(XR+8*j,4)}, v11")
    a(f"ds_read_b128 {vr(XR+8*j+4,4)}, v12")
    LG.issue(("x", j), 2)
if "4" in SX:
    spx("x", 15, 17); spx("r", 14, 2); spx("i", 14, 2)
if "5" in SX:
    spx("r", 0, 16); spx("i", 0, 16)
if "6" in SX:
    spx("x", 0, 32); spx("r", 14, 2); spx("i", 14, 2)
if "a" in SU: spf([(P_BRE, 4, 0, 4), (P_BIM, 4, 0, 4), (P_BX, 16, 14, 2)])
if "b" in SU: spf([(P_BX, 16, 6, 10)])
if "c" in SU: spf([(P_BRE, 4, 0, 4), (P_BIM, 4, 0, 4), (P_BX, 16, 0, 16)])
if "d" in SU: spf([(P_CRE, 4, 0, 4), (P_CIM, 4, 0, 4), (P_WO, 4, 0, 4)])
def parlate():
    global YACC, vPS, vM0, vM1, vO0, vO1
    a("s_waitcnt vmcnt(0)")
    cm("SSM parameters")
    q0, q1, q2, q3, q4 = 64, 65, 66, 67, 68
    a(f"v_lshlrev_b32 v{p0}, 16, v{p0}")
    a(f"v_lshlrev_b32 v{p1}, 16, v{p1}")
    a(f"v_lshlrev_b32 v{p2}, 16, v{p2}")
    a(f"v_mul_f32 v{p2}, {f32(LOG2E)}, v{p2}")
    a(f"v_exp_f32 v{p2}, v{p2}")
    a("s_nop 0")
    a(f"v_cvt_pk_bf16_f32 v{p2}, v{p2}, v{p2}")
    a(f"v_and_b32 v{p2}, 0xffff0000, v{p2}")
    a(f"v_mul_f32 v{q0}, v{p2}, v{p0}")
    a(f"v_mul_f32 v{q1}, v{p2}, v{p1}")
    a(f"v_mul_f32 v{q0}, {f32(LOG2E)}, v{q0}")
    a(f"v_mul_f32 v{q1}, {f32(1/(2*math.pi))}, v{q1}")
    a(f"v_exp_f32 v{q0}, v{q0}")
    a(f"v_rndne_f32 v{q2}, v{q1}")
    a(f"v_sub_f32 v{q1}, v{q1}, v{q2}")
    a(f"v_cos_f32 v{q2}, v{q1}")
    a(f"v_sin_f32 v{q3}, v{q1}")
    a(f"v_mul_f32 v{q4}, v{p0}, v{p0}")
    a(f"v_fma_f32 v{q4}, v{p1}, v{p1}, v{q4}")
    a(f"v_mul_f32 v{vL}, v{q0}, v{q2}")
    a(f"v_mul_f32 v{vL+1}, v{q0}, v{q3}")
    a(f"v_rcp_f32 v{q4}, v{q4}")
    a(f"v_add_f32 v{q2}, -1.0, v{vL}")
    a(f"v_add_f32 v{q4}, v{q4}, v{q4}")
    a(f"v_mul_f32 v{q0}, v{q2}, v{p0}")
    a(f"v_fma_f32 v{q0}, v{vL+1}, v{p1}, v{q0}")
    a(f"v_mul_f32 v{q1}, v{vL+1}, v{p0}")
    a(f"v_fma_f32 v{q1}, -v{q2}, v{p1}, v{q1}")
    a(f"v_mul_f32 v{vCO}, v{q0}, v{q4}")
    a(f"v_mul_f32 v{vCO+1}, v{q1}, v{q4}")
    cmul(70, vL, vL); cmul(72, 70, 70); cmul(vL8, 72, 72); cmul(vL16_, vL8, vL8)
    cm("skip term x*D via a diagonal B operand -> YACC")
    YACC = 112
    a("v_and_b32 v64, 1, v0")
    a("v_lshlrev_b32 v64, 4, v64")
    a(f"v_lshlrev_b32 v{vDSK}, v64, v{vDSK}")
    a("v_lshrrev_b32 v64, 1, v92")
    a("v_lshlrev_b32 v65, 2, v93")
    a("v_sub_u32 v64, v64, v65")
    for i in range(0, 8, 2):
        a(f"v_cmp_eq_u32 s[{sM}:{sM+1}], {8*(i//4) + i%4}, v64")
        a(f"v_cmp_eq_u32 vcc, {8*(i//4) + i%4 + 1}, v64")
        a("s_nop 0")
        a(f"v_cndmask_b32 v{104+i}, 0, v{vDSK}, s[{sM}:{sM+1}]")
        a(f"v_cndmask_b32 v{105+i}, 0, v{vDSK}, vcc")
    cm("per-lane powers: PS = L16^seg, M0 = L256^seg (if valid), M1 = M0*L128 (if valid)")
    vPS, vM0, vM1, vO0, vO1 = 96, 98, 100, 102, 103
    a(f"s_mov_b32 s{sM}, 0")
    a(f"s_mov_b32 s{sM+1}, -1")
    def powsel(dst, b1, b2, b4):
        a(f"v_cndmask_b32 v{dst}, 1.0, v{b1}, s[{sM}:{sM+1}]")
        a(f"v_cndmask_b32 v{dst+1}, 0, v{b1+1}, s[{sM}:{sM+1}]")
        for bit, b in ((0, b2), (1, b4)):
            L = uid("ps")
            a(f"s_bitcmp1_b32 s{sWV}, {bit}")
            a(f"s_cbranch_scc0 {L}")
            cmul(66, dst, b)
            a(f"v_mov_b64 {vr(dst,2)}, v[66:67]")
            lab(L)
    cmul(68, vL16_, vL16_); cmul(70, 68, 68); cmul(72, 70, 70)
    cmul(74, 72, 72); cmul(76, 74, 74); cmul(78, 76, 76)
    powsel(vPS, vL16_, 68, 70)
    powsel(vM0, 74, 76, 78)
    cmul(vM1, vM0, 72)
    a(f"s_lshl_b32 s{sT0}, s{sWV}, 2")
    a(f"s_sub_u32 s{sT0}, s{sC}, s{sT0}")
    a(f"s_sub_u32 s{sT0}, s{sT0}, 1")
    a("v_lshlrev_b32 v30, 1, v93")
    a(f"v_sub_u32 v{vO0}, s{sT0}, v30")
    a(f"v_add_u32 v{vO1}, -1, v{vO0}")
    a(f"v_mov_b32 v30, 0")
    for (vo, vm) in ((vO0, vM0), (vO1, vM1)):
        a(f"v_cmp_le_i32 vcc, 0, v{vo}")
        a("s_nop 1")
        a(f"v_cndmask_b32 v{vo}, v30, v{vo}, vcc")
        a(f"v_cndmask_b32 v{vm}, 0, v{vm}, vcc")
        a(f"v_cndmask_b32 v{vm+1}, 0, v{vm+1}, vcc")
        a(f"v_lshl_add_u32 v{vo}, v{vo}, 9, v14")
if PP_ == 2: pld()
if PP_ in (1, 2): parlate()
waitc(vCNT, C_A4, 4, 30, sleep=int(OPT.get("a4sl", 0)))
if PP_ == 3: pld(); parlate()
a(f"ds_read_b32 v30, v{vCNT} offset:{C_MODE}")
if EP0: a(f"ds_read_b32 v121, v{vCNT} offset:{C_TAG}")
a("s_setprio 0")
cm("U = x B^T")
XL = int(OPT.get("xl", 2))
def bdma(sl, m):
    a(f"s_add_u32 m0, s{sT6}, {L_R1 + 16384*sl + 4096*m}")
    a(f"s_add_u32 s{sT2}, s{20+sl}, {16384*(m%2)}")
    dma(120, R_B if m < 2 else R_C, f"s{sT2}")
    if sl == 0 and OPT.get("bp") == "1": pace()
    VM.issue(("B", sl))
lq = []
for it in OPT.get("uord", "B0,0,1,2,3,B1,4,5,6,7,B2,8,9,10,11,B3,12,13,14,15").split(","):
    lq += [("B", int(it[1]), m) for m in range(4)] if it[0] == "B" else [("x",), ("x",)]
if OPT.get("mix", "1") == "1":
    for sl in range(1, 4):
        i = lq.index(("B", sl, 0))
        xs, bs_ = lq[i-4:i], lq[i:i+4]
        lq[i-4:i+4] = [y for p in zip(xs, bs_) for y in p]
def ld1(n=1):
    for _ in range(n):
        if not lq: return
        it = lq.pop(0)
        if it[0] == "B": bdma(it[1], it[2])
        else: xb1()
CB = [C_H0, C_H1, C_H2, C_H3]
sigd = set()
def bsig(force=None):
    for sl in range(4):
        issued = not any(it[:2] == ("B", sl) for it in lq)
        if sl in sigd or not issued: continue
        if sl == force: waits(vm=VM.need(("B", sl)))
        if ("B", sl) not in VM.q:
            signal(vCNT, vONE, CB[sl]); LG.issue("sig"); sigd.add(sl)
ld1(int(OPT.get("u0", 12)))
bsig(0)
ld1(int(OPT.get("u1", 4)))
for j in range(XL): xw(j, 0); xw(j, 1); xr(j)
a("s_setprio 2")
a(f"v_readfirstlane_b32 s{sMODE}, v30") if False else None
waitc(vCNT, CB[0], 4, 31)
a(f"v_readfirstlane_b32 s{sMODE}, v30")
if EP0: a(f"v_readfirstlane_b32 s{sTAG}, v121")
LG.q = []
stamp(4)
UPRIO = int(OPT.get("uprio", 0)); YPRIO = int(OPT.get("yprio", 0))
a(f"s_setprio {UPRIO}")
AR, AI, BR = 32, 48, 64
def bread(k):
    s = BR + 8 * (k % 4)
    a(f"ds_read_b128 {vr(s,4)}, v{BA + k % 8} offset:{16384*(k//8)}")
    a(f"ds_read_b128 {vr(s+4,4)}, v{BA + k % 8} offset:{16384*(k//8) + 8192}")
    LG.issue(("b", k), 2)
WOL = int(OPT.get("wol", 0))
PF = [(17, sPC)] + ([] if WOL else [(18, P_WO)])
PFK = int(OPT.get("pfk", 19))
PTK = int(OPT.get("ptk", 27))
CPOS = 0
for k in range(3): bread(k)
for k in range(32):
    j = k // 2; jn = j + XL
    tr = jn < 16
    n1 = LG.need(("x", j)); n2 = LG.need(("b", k))
    waits(lg=n2 if n2 is not None else n1)
    s = BR + 8 * (k % 4)
    first = "0" if k == 0 else None
    mfma32(AR, XR + 4*k, s, first)
    if k % 8 == 2 and k < 24: bsig(k // 8 + 1)
    if k % 8 == 4 and k < 24:
        a(f"ds_read_b32 v31, v{vCNT} offset:{CB[k//8+1]}"); LG.issue("cb")
    if k % 8 == 5 and k < 24:
        waits(lg=LG.need("cb"))
        a("s_setprio 2")
        a("v_cmp_gt_u32 vcc, 4, v31")
        Lk = uid("bk")
        a(f"s_cbranch_vccz {Lk}")
        waitc(vCNT, CB[k//8+1], 4, 31)
        lab(Lk)
        a(f"s_setprio {UPRIO}")
    if k + 3 < 32: bread(k + 3)
    ld1(int(OPT.get("lpk", 1)))
    if PF and k >= PFK and k % 2 == 1:
        v, p = PF.pop(0)
        a(f"global_load_dword v{136+len(PF)}, v{v}, s[{p}:{p+1}]"); VM.issue("pf")
    if k == PTK:
        cm("local mode: make the lines this wave / its attention partner will hand over valid in L2")
        a(f"s_cmp_eq_u32 s{sMODE}, 1")
        a("s_cbranch_scc0 L_h_nopt")
        def touch(soff, n):
            for i in range(n):
                a(f"buffer_load_dwordx4 v[144:147], v{vL4}, {sr(R_WS,4)}, s{soff} offen offset:{1024*i} sc1")
        def touchf(soff):
            a("s_mov_b64 exec, 0xff")
            touch(soff, 1)
            a("s_mov_b64 exec, -1")
        if "h" in LOC:
            a(f"s_lshl2_add_u32 s{sT0}, s{sC}, s{sWV}")
            a(f"s_lshl_b32 s{sT1}, s{sT0}, 5")
            a(f"s_add_u32 s{sT1}, s{sT1}, s{sPB}")
            a(f"s_lshl_b32 s{sT1}, s{sT1}, 11")
            a(f"s_add_u32 s{sT1}, s{sT1}, {WS_H}")
            touch(sT1, 2)
            a(f"s_add_u32 s{sT1}, s{sT1}, 32768")
            touch(sT1, 2)
            a(f"s_lshl4_add_u32 s{sT0}, s{sT0}, s{sPB}")
            a(f"s_lshl_b32 s{sT0}, s{sT0}, 7")
            a(f"s_add_u32 s{sT0}, s{sT0}, {WS_FH}")
            touchf(sT0)
        for kind, off in (("o", 0), ("t", 4)):
            if kind in LOC:
                a(f"s_add_u32 s{sSTEP}, s{sWV}, {off}")
                o_offsets()
                touch(sT1, 1); touchf(sT0)
        lab("L_h_nopt")
    if k == 28:
        a(f"buffer_load_dwordx4 v[128:131], v29, {sr(R_A,4)}, s{sT4} offen")
        a(f"buffer_load_dwordx4 v[132:135], v29, {sr(R_A,4)}, s{sT4} offen offset:32")
        VM.issue("skip", 2)
    mfma32(AI, XR + 4*k, s + 4, first)
    ld1()
    if tr:
        assert not any(q[0] == jn for q in xq)
        xw(jn, k % 2)
        if k % 2: xr(jn)
    bsig()
assert len(sigd) == 4 and not lq
assert not PF
a("s_setprio 2")
srd(R_B, P_CRE, 512 * 1024)
srd(R_C, P_CIM, 512 * 1024)
srd(R_A, P_WO, 512 * 1024)
if CPOS:
    a(f"s_add_u32 s{sSYNC}, s{sSYNC}, 4")
    signal(vCNT, vONE, C_GH)
a(f"s_lshl_b32 s{sT3}, s{sGY}, 16")
a(f"s_lshl_b32 s{sT1}, s{sWV}, 13")
a(f"s_add_u32 s{sT3}, s{sT3}, s{sT1}")
a(f"s_mul_i32 s{sT1}, s{sWV}, {8*RSTR}")
def row1(n, base, ore, oim):
    i, part = n // 2, n % 2
    a(f"s_add_u32 m0, s{sT1}, {L_R1 + RSTR*(32*part+i)}")
    a(f"s_add_u32 s{sT2}, s{base}, {1024*i + (oim if part else ore)}")
    dma(vL4, R_C if part else R_B, f"s{sT2}")
def rowloop(part, goff):
    L = uid("rl")
    a(f"s_mov_b32 s{sKIND}, 0")
    lab(L)
    a(f"s_mul_i32 s{sT2}, s{sKIND}, {RSTR}")
    a(f"s_add_u32 s{sT2}, s{sT2}, s{sT1}")
    a(f"s_add_u32 m0, s{sT2}, {L_R1 + RSTR*32*part}")
    a(f"s_lshl_b32 s{sT2}, s{sKIND}, 10")
    a(f"s_add_u32 s{sT2}, s{sT2}, s{sT3}")
    if goff: a(f"s_add_u32 s{sT2}, s{sT2}, {goff}")
    dma(vL4, R_C if part else R_B, f"s{sT2}")
    if RLV >= 0: a(f"s_waitcnt vmcnt({RLV})")
    a(f"s_add_u32 s{sKIND}, s{sKIND}, 1")
    a(f"s_cmp_lt_u32 s{sKIND}, 8")
    a(f"s_cbranch_scc1 {L}")
RLV = int(OPT.get("rlv", -1))
RL = int(OPT.get("rl", 1))
CS_ = int(OPT.get("cst", 0))
def cld(n, dst, ore, oim):
    i, part = n // 2, n % 2
    a(f"s_add_u32 s{sT2}, s{sT3}, {1024*i + (oim if part else ore)}")
    a(f"buffer_load_dwordx4 {vr(dst,4)}, v{vL4}, {sr(R_C if part else R_B,4)}, s{sT2} offen")
def cwr(n, src):
    i, part = n // 2, n % 2
    a(f"ds_write_b128 v29, {vr(src,4)} offset:{RSTR*(32*part+i)}")
if CS_:
    a(f"s_add_u32 s{sT2}, s{sT1}, {L_R1}")
    a(f"v_add_u32 v29, s{sT2}, v{vL4}")
stamp(5)
cm("scale by coef into pair layout, local scan")
UP = 64
G0, G1 = 30, 8
def sc1(r): a(f"v_pk_mul_f32 {vr(UP+2*r,2)}, {vr(vCO,2)}, {vr(AR+(r&~1),2)} op_sel:[0,{r&1}] op_sel_hi:[1,{r&1}]")
def sc2(r): a(f"v_pk_fma_f32 {vr(UP+2*r,2)}, {vr(vCO,2)}, {vr(AI+(r&~1),2)}, {vr(UP+2*r,2)} op_sel:[1,{r&1},0] op_sel_hi:[0,{r&1},1] neg_lo:[1,0,0]")
def c1(dst, L, g, u): a(f"v_pk_fma_f32 {vr(dst,2)}, {vr(L,2)}, {vr(g,2)}, {vr(u,2)} op_sel:[0,0,0] op_sel_hi:[0,1,1]")
def c2(dst, L, g): a(f"v_pk_fma_f32 {vr(dst,2)}, {vr(L,2)}, {vr(g,2)}, {vr(dst,2)} op_sel:[1,1,0] op_sel_hi:[1,0,1] neg_lo:[1,0,0]")
sc1(0); sc1(1); sc1(2); sc2(0); sc2(1); sc2(2)
src = UP
CLP = int(OPT.get("clp", 1))
for r in range(1, 16):
    dst = G0 if r % 2 else G1
    if r == 8 and CPOS: waitc(vCNT, C_GH, f"s{sSYNC}", 8)
    c1(dst, vL, src, UP + 2*r)
    if r < 14: sc1(r + 2)
    if r >= 8 and CPOS: row1(2*(r-8), sT3, 32768, 0)
    c2(dst, vL, src)
    if CS_ & 1 and CLP == 0:
        cld(r, 160 + 4*r, 32768, 0)
        if r == 1: cld(0, 160, 32768, 0)
    if r < 14: sc2(r + 2)
    if r >= 8 and CPOS: row1(2*(r-8) + 1, sT3, 32768, 0)
    src = dst
a(f"ds_write_b64 v13, {vr(G0,2)}")
gsync(vCNT, vONE, 32, C_GH)
stamp(6)
ESR = 32
for s in range(8):
    a(f"ds_read_b64 {vr(ESR+2*s,2)}, v15 offset:{256*s}")
a(f"s_lshl_b32 s{sT6}, s{sPB}, 13")
a(f"s_add_u32 s{sT6}, s{sT6}, {WS_ST}")
a(f"s_lshl_b32 s{sT0}, s{sC}, 9")
a(f"s_add_u32 s{sT0}, s{sT0}, s{sT6}")
a(f"v_mov_b64 {vr(G0,2)}, 0")
a(f"s_mov_b32 s{sCNT}, {POLL_LIMIT}")
a("s_waitcnt lgkmcnt(0)")
a(f"v_mov_b64 {vr(G1,2)}, {vr(ESR,2)}")
for w in range(4):
    if w: cmul_add(G1, vL16_, G0, ESR + 4*w)
    if w < 3:
        a(f"s_cmp_eq_u32 s{sWV}, {w}")
        a("s_cbranch_scc1 L_h_segdone")
        cmul_add(G0, vL16_, G1, ESR + 4*w + 2)
cmul_add(48, vL16_, G1, ESR + 14)
a(f"v_mov_b32 v50, v49")
a(f"v_mov_b32 v49, s{sTAG}")
a(f"v_mov_b32 v51, s{sTAG}")
a("s_mov_b32 exec_hi, 0")
a(f"buffer_store_dwordx4 v[48:51], v14, {sr(R_WS,4)}, s{sT0} offen sc1")
a("s_mov_b64 exec, -1")
lab("L_h_segdone")
a(f"s_mov_b32 s{sM}, 0")
a(f"s_mov_b32 s{sM+1}, -1")
a(f"v_cndmask_b32 v{G0}, v{G0}, v{G1}, s[{sM}:{sM+1}]")
a(f"v_cndmask_b32 v{G0+1}, v{G0+1}, v{G1+1}, s[{sM}:{sM+1}]")
if not CPOS:
    if CS_ & 1:
        a("s_setprio 0")
        if CLP == 1:
            for n in range(16): cld(n, 160 + 4*n, 32768, 0)
        for n in range(16):
            if n % 2 == 0: a(f"s_waitcnt vmcnt({14 - n})")
            cwr(n, 160 + 4*n)
        a("s_setprio 2")
    elif RL:
        rowloop(0, 32768); rowloop(1, 0)
    else:
        for n in range(16): row1(n, sT3, 32768, 0); pace()
stamp(7)
cm("chunk carry: each lane gathers two predecessors' end states")
a(f"v_mov_b64 {vr(G1,2)}, 0")
a(f"s_cmp_eq_u32 s{sC}, 0")
a("s_cbranch_scc1 L_h_stskip")
lab("L_h_stpoll")
a(f"buffer_load_dwordx4 v[52:55], v{vO0}, {sr(R_WS,4)}, s{sT6} offen sc1")
a(f"buffer_load_dwordx4 v[56:59], v{vO1}, {sr(R_WS,4)}, s{sT6} offen sc1")
a("s_waitcnt vmcnt(0)")
a(f"v_cmp_ne_u32 vcc, s{sTAG}, v53")
a(f"v_cmp_ne_u32 s[{sM}:{sM+1}], s{sTAG}, v55")
a(f"s_or_b64 s[{sM}:{sM+1}], s[{sM}:{sM+1}], vcc")
a(f"v_cmp_ne_u32 vcc, s{sTAG}, v57")
a(f"s_or_b64 s[{sM}:{sM+1}], s[{sM}:{sM+1}], vcc")
a(f"v_cmp_ne_u32 vcc, s{sTAG}, v59")
a(f"s_or_b64 s[{sM}:{sM+1}], s[{sM}:{sM+1}], vcc")
a("s_cbranch_scc0 L_h_stok")
a(f"s_sub_u32 s{sCNT}, s{sCNT}, 1")
a("s_cbranch_scc0 L_h_stpoll")
lab("L_h_stok")
a(f"v_pk_mul_f32 {vr(G1,2)}, {vr(vM0,2)}, v[52:53] op_sel:[0,0] op_sel_hi:[1,0]")
a(f"v_pk_mul_f32 v[60:61], {vr(vM1,2)}, v[56:57] op_sel:[0,0] op_sel_hi:[1,0]")
a(f"v_pk_fma_f32 {vr(G1,2)}, {vr(vM0,2)}, v[54:55], {vr(G1,2)} op_sel:[1,0,0] op_sel_hi:[0,0,1] neg_lo:[1,0,0]")
a(f"v_pk_fma_f32 v[60:61], {vr(vM1,2)}, v[58:59], v[60:61] op_sel:[1,0,0] op_sel_hi:[0,0,1] neg_lo:[1,0,0]")
a(f"v_pk_add_f32 {vr(G1,2)}, {vr(G1,2)}, v[60:61]")
lab("L_h_stskip")
a(f"ds_write_b64 v13, {vr(G1,2)} offset:{L_CS - L_ES}")
a("s_waitcnt vmcnt(0)")
mfma32(YACC, 128, 104, "0")
mfma32(YACC, 132, 108)
if WOL == 1: a(f"global_load_dword v10, v18, s[{P_WO}:{P_WO+1}]")
gsync(vCNT, vONE, 32, C_GH)
for s in range(8):
    a(f"ds_read_b64 {vr(32+2*s,2)}, v15 offset:{L_CS - L_ES + 256*s}")
a(f"s_lshl_b32 s{sT0}, s{sC}, 2")
a(f"s_add_u32 s{sT0}, s{sT0}, s{sWV}")
a(f"s_lshl_b32 s{sT4}, s{sT0}, 16")
a(f"s_add_u32 s{sT4}, s{sT4}, {WS_H}")
a(f"s_lshl_b32 s{sT1}, s{sPB}, 11")
a(f"s_add_u32 s{sT1}, s{sT1}, s{sT4}")
a(f"s_add_u32 s{sT2}, s{sT1}, 32768")
a(f"s_lshl_b32 s{sT0}, s{sT0}, 11")
a(f"s_add_u32 s{sT5}, s{sT0}, {WS_FH}")
a(f"s_lshl_b32 s{sT0}, s{sPB}, 7")
a(f"s_add_u32 s{sF1}, s{sT0}, s{sT5}")
a("s_waitcnt lgkmcnt(0)")
stamp(8)
for st in (8, 4, 2):
    for j in range(0, st, 2):
        a(f"v_pk_add_f32 {vr(32+j,2)}, {vr(32+j,2)}, {vr(32+j+st,2)}")
cmul_add(G0, vPS, 32, G0)
HB = 32
cmul_add(UP, vL, G0, UP)
for r in range(1, 16):
    cmul_add(UP + 2*r, vL, UP + 2*(r-1), UP + 2*r)
for part in range(2):
    ng = "-" if part else ""
    for j in range(8):
        a(f"v_cvt_pk_bf16_f32 v{HB+8*part+j}, {ng}v{UP+4*j+part}, {ng}v{UP+4*j+2+part}")
    a(f"ds_write_b128 v16, {vr(HB+8*part,4)}")
    a(f"ds_write_b128 v16, {vr(HB+4+8*part,4)} offset:16")
    for ks in range(2):
        d = 48 + 8*part + 4*ks
        a(f"ds_read_b64_tr_b16 {vr(d,2)}, v19 offset:{1024*ks}")
        a(f"ds_read_b64_tr_b16 {vr(d+2,2)}, v19 offset:{1024*ks+256}")
KIND[0] = "h"
a(f"v_lshlrev_b32 v24, 2, v0")
a(f"v_mov_b32 v25, s{sTAG}")
def flag_novalu(soff):
    a("s_mov_b32 exec_hi, 0")
    st2([f"buffer_store_dword v25, v24, {sr(R_WS,4)}, s{soff} offen@"])
    a("s_mov_b64 exec, -1")
a("s_waitcnt lgkmcnt(0)")
st2([f"buffer_store_dwordx4 {vr(48+8*part+4*ks,4)}, v{vL4}, {sr(R_WS,4)}, s{sT1 if part == 0 else sT2} offen offset:{1024*ks}@" for part in range(2) for ks in range(2)])
a("v_and_b32 v8, 15, v0")
a("v_lshlrev_b32 v12, 7, v8")
CF = 128
LB = int(OPT.get("lb", 1))
if LB: a("s_setprio 0")
for k in range(32):
    a(f"ds_read_b128 {vr(CF+4*k,4)}, v28 offset:{32*k}")
    if k == 13:
        a("s_waitcnt vmcnt(0)")
        flag_novalu(sF1)
a(f"s_add_u32 s{sSYNC}, s{sSYNC}, 4")
signal(vCNT, vONE, C_GH)
if LB: a("s_setprio 2")
stamp(9)
def reduce_inline(RB_, b1=None, bs=None):
    b1 = RB_ + 16 if b1 is None else b1
    bs = RB_ + 32 if bs is None else bs
    Ls, Le = uid("rs"), uid("re")
    a(f"s_mul_i32 s{sT2}, s{sSTEP}, {PSTRIDE}")
    a(f"v_add_u32 v10, s{sT2}, v{vL4}")
    a(f"s_add_u32 s{sT2}, s{sT2}, {L_PART + 8192}")
    o_offsets()
    waitc(11, 0, f"s{sT2}", 8)
    a(f"ds_read_b128 {vr(bs,4)}, v10 offset:8192")
    for w in range(4):
        d = (RB_ if w < 2 else b1) + 8*(w % 2)
        a(f"ds_read_b128 {vr(d,4)}, v10 offset:{2048*w}")
        a(f"ds_read_b128 {vr(d+4,4)}, v10 offset:{2048*w + 1024}")
    a("s_waitcnt lgkmcnt(8)")
    sum_check(bs)
    a("s_waitcnt lgkmcnt(0)")
    a(f"s_cbranch_scc1 {Ls}")
    reduce_math(RB_, vL4, flag=False, b1=b1, bs=bs)
    a(f"s_branch {Le}")
    lab(Ls)
    a(f"s_mov_b32 s{sT0}, {WS_DUMMY}")
    lab(Le)
RIL = int(OPT.get("ril", 1))
a("v_and_b32 v11, 12, v24")
a(f"v_add_u32 v11, {L_PROG}, v11")
if not RIL:
    waitc(vCNT, C_GH, f"s{sSYNC}", 8)
    a(f"s_mul_i32 s{sT1}, s{sWV}, {8*RSTR}")
    for n in range(16): row1(n, sT3, 0, 32768); pace()
else:
    cm("second half of C; the reduction of q-tile wv fills the gaps between the transfers")
    a(f"s_mov_b32 s{sSTEP}, s{sWV}")
    o_offsets()
    a(f"s_mov_b32 s{sF1}, s{sT0}")
    a(f"s_mov_b32 s{sF2}, s{sT1}")
    a(f"s_mul_i32 s{sT2}, s{sWV}, {PSTRIDE}")
    a(f"v_add_u32 v10, s{sT2}, v{vL4}")
    a(f"s_add_u32 s{sT0}, s{sT2}, {L_PART + 8192}")
    a(f"s_mul_i32 s{sT1}, s{sWV}, {8*RSTR}")
    if CS_ & 2:
        for n in range(12): cld(n, 48 + 4*n, 0, 32768)
    else:
        waitc(vCNT, C_GH, f"s{sSYNC}", 8)
        row1(0, sT3, 0, 32768)
    waitc(11, 0, f"s{sT0}", 8)
    if not CS_ & 2: row1(2 if RL else 1, sT3, 0, 32768)
    a("ds_read_b128 v[20:23], v10 offset:8192")
    for w in range(4):
        d = (32 if w < 2 else 96) + 8*(w % 2)
        a(f"ds_read_b128 {vr(d,4)}, v10 offset:{2048*w}")
        a(f"ds_read_b128 {vr(d+4,4)}, v10 offset:{2048*w + 1024}")
    if not CS_ & 2: row1(4 if RL else 2, sT3, 0, 32768)
    a("s_waitcnt lgkmcnt(8)")
    sum_check(20)
    a(f"s_cselect_b32 s{sF1}, {WS_DUMMY}, s{sF1}")
    a(f"s_cselect_b32 s{sF2}, {WS_DUMMY + 1024}, s{sF2}")
    a("v_rcp_f32 v22, v20")
    a("s_waitcnt lgkmcnt(0)")
    ops = [f"v_pk_add_f32 {vr(32+2*j,2)}, {vr(32+2*j,2)}, {vr(40+2*j,2)}" for j in range(4)]
    ops += [f"v_pk_add_f32 {vr(96+2*j,2)}, {vr(96+2*j,2)}, {vr(104+2*j,2)}" for j in range(4)]
    ops += [f"v_pk_add_f32 {vr(32+2*j,2)}, {vr(32+2*j,2)}, {vr(96+2*j,2)}" for j in range(4)]
    ops += [f"v_pk_mul_f32 {vr(32+2*j,2)}, {vr(32+2*j,2)}, v[22:23] op_sel_hi:[1,0]" for j in range(4)]
    ops += [f"v_cvt_pk_bf16_f32 v{40+j}, v{32+2*j}, v{33+2*j}" for j in range(4)]
    if CS_ & 2:
        waitc(vCNT, C_GH, f"s{sSYNC}", 8)
        for n in range(12):
            a(f"s_waitcnt vmcnt({11 - n if n < 4 else 15 - n if n < 5 else 16 - n})")
            cwr(n, 48 + 4*n)
            if n < 4:
                for _ in range(5): a(ops.pop(0))
            if n == 3:
                for m in range(12, 16): cld(m, 96 + 4*(m-12), 0, 32768)
            if n == 4:
                KIND[0] = "o"
                st2([f"buffer_store_dwordx4 v[40:43], v{vL4}, {sr(R_WS,4)}, s{sF2} offen@"])
        for n in range(12, 16):
            a(f"s_waitcnt vmcnt({16 - n})")
            cwr(n, 96 + 4*(n-12))
    for n in ([] if CS_ & 2 else range(6, 16, 2) if RL else range(3, 16)):
        row1(n, sT3, 0, 32768)
        if ops:
            for _ in range(5): a(ops.pop(0))
            if not ops:
                KIND[0] = "o"
                st2([f"buffer_store_dwordx4 v[40:43], v{vL4}, {sr(R_WS,4)}, s{sF2} offen@"])
        elif n < 15 and not RL: pace()
    if RL and not CS_ & 2: rowloop(1, 32768)
PACE = int(OPT.get('pace3', PACE))
a(f"v_add_u32 v13, {(L_PART - L_R1) & 0xffffffff}, v{vWT}")
a(f"s_lshl_b32 s{sT5}, s{sYY}, 11")
a(f"s_add_u32 s{sT5}, s{sT5}, {WS_FH}")
a(f"s_lshl_b32 s{sT4}, s{sYY}, 16")
a(f"s_and_b32 s{sT1}, s{sWV}, 1")
a(f"s_lshl_b32 s{sT1}, s{sT1}, 15")
a(f"s_add_u32 s{sT4}, s{sT4}, s{sT1}")
a(f"s_add_u32 s{sT4}, s{sT4}, {WS_H}")
stamp(10)
poll(12, f"s{sT5}", 8)
if RIL:
    a(f"s_add_u32 s{sSYNC}, s{sSYNC}, 4")
    signal(vCNT, vONE, C_GH)
    flag_novalu(sF1)
stamp(11)
HR, CR, NH = 48, 96, 12
WF, OF = 48, 128
def hload(k):
    if k % 4 == 0 and k: a(f"s_add_u32 s{sT4}, s{sT4}, 4096")
    a(f"buffer_load_dwordx4 {vr(HR+4*(k%NH),4)}, v{vL4}, {sr(R_WS,4)}, s{sT4} offen offset:{1024*(k%4)} sc1")
def cread(k):
    a(f"ds_read_b128 {vr(CR+4*(k%4),4)}, v28 offset:{32*k}")
def oload(k):
    if k % 4 == 0 and k: a(f"s_add_u32 s{sT6}, s{sT6}, 4096")
    a(f"buffer_load_dwordx4 {vr(OF+4*k,4)}, v{vL4}, {sr(R_WS,4)}, s{sT6} offen offset:{1024*(k%4)} sc1")
def wo_setup():
    a(f"s_and_b32 s{sT0}, s{sWV}, 1")
    a(f"s_lshl_b32 s{sT0}, s{sT0}, 18")
    a(f"s_lshr_b32 s{sT1}, s{sWV}, 1")
    a(f"s_lshl_b32 s{sT1}, s{sT1}, 14")
    a(f"s_add_u32 s{sT0}, s{sT0}, s{sT1}")
    a(f"s_lshl_b32 s{sT1}, s{sG}, 7")
    a(f"s_add_u32 s{sT0}, s{sT0}, s{sT1}")
    a(f"s_mul_i32 s{sT1}, s{sWV}, {PSTRIDE}")
def wo_one(half, n):
    q, i = n // 2, n % 2
    a(f"s_add_u32 m0, s{sT1}, {(L_R1 if half else L_PART) + 2048*q + 1024*i}")
    a(f"s_add_u32 s{sT2}, s{sT0}, {32768*half + 65536*q + 8192*i}")
    dma(vWO, R_A, f"s{sT2}")
def wread(dst, k):
    o = PSTRIDE * ((k % 16) // 4) + 2048 * (k % 4)
    ad = 13 if k < 16 else vWT
    a(f"ds_read_b64_tr_b16 {vr(dst,2)}, v{ad} offset:{o}")
    a(f"ds_read_b64_tr_b16 {vr(dst+2,2)}, v{ad} offset:{o+1024}")
HD, CD = 11, 3
RK = int(OPT.get("rk", 25))
FK = 4
VM, LG = Cnt(), Cnt()
for k in range(HD): hload(k); VM.issue(("h", k))
a(f"s_lshl_b32 s{sT5}, s{sYG}, 12")
a(f"s_add_u32 s{sT5}, s{sT5}, {WS_FO}")
a(f"s_lshl_b32 s{sT6}, s{sYG}, 15")
a(f"s_add_u32 s{sT6}, s{sT6}, {WS_O}")
if not RIL:
    a(f"s_mov_b32 s{sSTEP}, s{sWV}")
    KIND[0] = "o"
    reduce_inline(32, 96, 20)
    a(f"s_mov_b32 s{sF1}, s{sT0}")
    gsync(vCNT, vONE, 8, C_GH)
else:
    waitc(vCNT, C_GH, f"s{sSYNC}", 8)
a(f"s_setprio {YPRIO}")
for k in range(CD): cread(k); LG.issue(("c", k))
FLK = int(OPT.get("flk", 14))
YPK = int(OPT.get("ypk", 99))
oq = list(range(16))
for k in range(32):
    if k == YPK: a("s_setprio 2")
    if k == FK:
        if not RIL:
            waits(vm=VM.need(("h", HD)))
            flag_novalu(sF1); VM.issue("f")
        wo_setup()
    if k == FLK:
        a(f"buffer_load_dword v9, v12, {sr(R_WS,4)}, s{sT5} offen sc1"); VM.issue("fl")
    if k == FLK + 5:
        waits(vm=VM.need("fl"))
        a("s_setprio 2")
        a(f"v_cmp_ne_u32 vcc, s{sTAG}, v9")
        a("s_cbranch_vccz L_y_ok")
        poll(12, f"s{sT5}", 8)
        lab("L_y_ok")
        a(f"s_setprio {YPRIO}")
    if k + HD < 32: hload(k + HD); VM.issue(("h", k + HD))
    if k + CD < 32: cread(k + CD); LG.issue(("c", k + CD))
    waits(vm=VM.need(("h", k)), lg=LG.need(("c", k)))
    mfma32(YACC, HR + 4*(k % NH), CR + 4*(k % 4))
    n = k - FK - 1
    if 0 <= n < 8: wo_one(0, n); VM.issue("wo")
    if k >= FLK + 5:
        for _ in range(2 if k + HD >= 32 else 1):
            if oq: oload(oq.pop(0)); VM.issue("o")
    mfma32(32, HR + 4*(k % NH), CF + 4*k, "0" if k == 0 else None)
assert not oq
a("s_setprio 2")
a(f"s_lshl_b32 s{sT2}, s{sWV}, 12")
a(f"s_add_u32 s{sT2}, s{sT2}, {L_R1 + 40960}")
a(f"v_add_u32 v10, s{sT2}, v{vL4}")
a("v_xor_b32 v11, 4096, v10")
assert (L_R1 + 40960) % 8192 == 0
a(f"s_lshl_b32 s{sT2}, s{sWV}, 9")
a(f"s_add_u32 s{sT2}, s{sT2}, {L_CS}")
a("v_lshlrev_b32 v8, 3, v0")
a(f"v_add_u32 v8, s{sT2}, v8")
a(f"ds_write2_b32 v8, v{vWT}, v1 offset1:1")
waits(vm=VM.need("wo"))
gsync(vCNT, vONE, 8, C_GH)
stamp(12)
for i in range(8):
    wo_one(1, i)
    if i < 4: a(f"ds_write_b128 v10, {vr(32+4*i,4)} offset:{1024*i}")
    if i == 3:
        a(f"s_add_u32 s{sSYNC}, s{sSYNC}, 4")
        signal(vCNT, vONE, C_GH)
    if 4 <= i < 7: pace()
srd(R_B, P_OUT, 2048 * 4096)
a(f"s_lshl_b32 s{sT0}, s{sYY}, 17")
a(f"s_lshl_b32 s{sT1}, s{sCG}, 7")
a(f"s_add_u32 s{sT0}, s{sT0}, s{sT1}")
def store1(b, r, off=0):
    a(f"s_add_u32 s{sT1}, s{sT0}, {4096 * (8*(r//4) + r%4)}")
    a(f"buffer_store_dword v{b+r}, v1, {sr(R_B,4)}, s{sT1} offen" + (f" offset:{off}" if off else "") + YFL)
a(f"s_mul_i32 s{sT2}, s{sWV}, {PSTRIDE}")
a(f"v_add_u32 v10, s{sT2}, v{vL4}")
a(f"s_lshl_b32 s{sT2}, s{sWV}, 2")
a(f"v_add_u32 v9, s{sT2}, v{vCNT}")
waitc(vCNT, C_GH, f"s{sSYNC}", 8)
for i in range(4):
    a(f"ds_read_b128 {vr(192+4*i,4)}, v11 offset:{1024*i}")
YL = OPT.get("ylate") == "1"
def ystores():
    for j in range(8):
        a(f"v_pk_add_f32 {vr(YACC+2*j,2)}, {vr(YACC+2*j,2)}, {vr(192+2*j,2)}")
        store1(YACC, 2*j, 2048)
        store1(YACC, 2*j + 1, 2048)
if LB: a("s_setprio 0")
for k in range(16): wread(WF + 4*k, k)
if LB: a("s_setprio 2")
a(f"s_waitcnt vmcnt(0) lgkmcnt(15)")
a(f"s_add_u32 s{sSYNC}, s{sSYNC}, 4")
signal(vCNT, vONE, C_GH)
for j in range(8):
    a(f"v_pk_add_f32 {vr(YACC+2*j,2)}, {vr(YACC+2*j,2)}, {vr(192+2*j,2)}")
a(f"s_waitcnt lgkmcnt(0)")
stamp(14)
DEF = int(OPT.get("defer", 0))
if DEF:
    for k in range(16): store1(YACC, k, 2048)
    cm("the matrix pipe is free once the attention wave of this SIMD has finished")
    a(f"v_add_u32 v11, {(L_PROG - L_CNT) & 0xffffffff}, v9")
    waitc(11, 0, L_PART + 8192 + 7*PSTRIDE, 8)
else:
    a(f"s_setprio {OPT.get('oprio', 0)}")
for k in range(16):
    mfma32(32, OF + 4*k, WF + 4*k, "0" if k == 0 else None)
    if not YLT and not DEF: store1(YACC, k, 2048)
nsync = sum(1 for n in ("HQ", "H") for x in SECS[n] if x.strip() == f"s_add_u32 s{sSYNC}, s{sSYNC}, 4")
SECS["P"].insert(0, f".set NSYNC_B2, {4*nsync}")
a("s_setprio 2")
waitc(vCNT, C_GH, f"s{sSYNC}", 8)
a("s_nop 6")
for i in range(4):
    a(f"ds_write_b128 v10, {vr(32+4*i,4)} offset:{1024*i}")
a(f"ds_write_b32 v9, v{vONE} offset:{C_HA}")
stamp(13)
if YLT:
    waitc(vCNT, C_S, 4, 8, sleep=1)
    for k in range(16): store1(YACC, k, 2048)
a("s_branch L_end")

lab("L_slow")
a("s_waitcnt lgkmcnt(0)")
a(f"s_mov_b32 s{sKIND}, 0")
a(f"s_lshl_b32 s{sT0}, s{sSTEP}, 10")
a(f"s_add_u32 s{sT0}, s{sT0}, {L_QF}")
a(f"v_add_u32 v4, s{sT0}, v14")
a(f"ds_read_b128 {vr(vQ,4)}, v4")
a("v_mov_b32 v4, 0xff800000")
a("v_lshrrev_b32 v16, 5, v0")
a("v_and_b32 v17, 15, v0")
a("v_lshl_add_u32 v15, v16, 4, v17")
a("v_lshlrev_b32 v15, 4, v15")
a(f"s_mov_b32 s{sM}, 0xffff")
a(f"s_mov_b32 s{sM+1}, 0xffff")
a(f"s_mov_b32 s{sT0}, {WS_KV}")
lab("L_slow_p1")
kvload(0)
a("s_waitcnt vmcnt(0) lgkmcnt(0)")
for t in range(2):
    qk(S0, t)
    a("s_nop 11")
    for i in range(8):
        a(f"v_max3_f32 v4, v{S0+2*i}, v{S0+2*i+1}, v4")
a(f"s_cmp_lt_u32 s{sT0}, {WS_KV + 131072}")
a("s_cbranch_scc1 L_slow_p1")
a("v_mov_b32 v5, v4")
a("s_nop 1")
a("v_permlane32_swap_b32 v4, v5")
a("v_max_f32 v4, v4, v5")
for i in range(16):
    a(f"v_sub_f32 v{S1+i}, 0, v4")
zeroO()
a(f"s_mov_b32 s{sT0}, {WS_KV}")
lab("L_slow_p2")
kvload(0)
a("s_waitcnt vmcnt(0)")
for t in range(2):
    mfma32(S0, K_(t), vQ, vr(S1, 16))
    a("s_nop 11")
    exs(S0, 0, 16)
    a("s_nop 1")
    smf(V1(t), S0)
    smf(V2(t), S0 + 8)
a(f"s_cmp_lt_u32 s{sT0}, {WS_KV + 131072}")
a("s_cbranch_scc1 L_slow_p2")
o_offsets()
a(f"v_rcp_f32 v4, v{vO+8}")
a("s_nop 0")
for j in range(4):
    a(f"v_pk_mul_f32 {vr(vO+2*j,2)}, {vr(vO+2*j,2)}, v[4:5] op_sel_hi:[1,0]")
for j in range(4):
    a(f"v_cvt_pk_bf16_f32 v{16+j}, v{vO+2*j}, v{vO+2*j+1}")
a(f"buffer_store_dwordx4 v[16:19], v14, {sr(R_WS,4)}, s{sT1} offen sc1")
a("s_waitcnt vmcnt(0)")
setflag(16, 17, sT0)
a("v_and_b32 v15, 15, v0")
a("v_lshlrev_b32 v15, 7, v15")
a("v_lshlrev_b32 v7, 3, v0")
a(f"v_add_u32 v7, s{sT5}, v7")
a(f"s_lshl_b32 s{sT0}, s{sWV}, 2")
a(f"v_add_u32 v10, s{sT0}, v{vCA}")
a(f"s_cmp_lt_u32 s{sSTEP}, 4")
a("s_cbranch_scc1 L_a_ok2")
a("ds_read_b128 v[56:59], v6 offset:8192")
a("s_waitcnt lgkmcnt(0)")
a("s_branch L_a_ok1")
lab("L_a_bad1")
a("s_waitcnt lgkmcnt(0)")
a(f"s_sub_u32 s{sSTEP}, 7, s{sWV}")
a("s_branch L_slow")
lab("L_a_bad2")
a(f"s_mov_b32 s{sSTEP}, s{sWV}")
a("s_branch L_slow")

lab("L_end")
ROLE[0] = "E"
if PROBE:
    a("s_waitcnt vmcnt(0)")
    stamp(15)
    a(f"s_cmp_ge_u32 s{sW}, 4")
    a(f"s_cbranch_scc{0 if PROBE[0] == 'A' else 1} L_exit")
    a(f"s_cmp_eq_u32 s{80+int(PROBE[1])}, 0")
    a("s_cbranch_scc1 L_exit")
    a(f"s_sub_u32 s{sT0}, s{80+int(PROBE[1])}, s{80+int(PROBE[2])}")
    if OPT.get("pmode"):
        a(f"s_cmp_eq_u32 s{sMODE}, 1")
        a(f"s_cselect_b32 s{sT0}, 0, 1000")
    a(f"s_min_u32 s{sT0}, s{sT0}, 10000")
    a(f"s_lshl_b32 s{sT0}, s{sT0}, 1")
    a(f"s_memrealtime s[{sST}:{sST+1}]")
    a("s_waitcnt lgkmcnt(0)")
    a(f"s_mov_b32 s{sT1}, s{sST}")
    lab("L_probe")
    a(f"s_memrealtime s[{sST}:{sST+1}]")
    a("s_waitcnt lgkmcnt(0)")
    a(f"s_sub_u32 s{sT2}, s{sST}, s{sT1}")
    a(f"s_cmp_lt_u32 s{sT2}, s{sT0}")
    a("s_cbranch_scc1 L_probe")
elif STAMPS:
    a("s_waitcnt vmcnt(0)")
    stamp(15)
    a(f"s_lshl_b32 s{sT0}, s2, 3")
    a(f"s_xor_b32 s{sT1}, s{sW}, 4")
    a(f"s_add_u32 s{sT0}, s{sT0}, s{sT1}")
    a(f"s_lshl_b32 s{sT0}, s{sT0}, 6")
    a(f"s_add_u32 s{sT0}, s{sT0}, {WS_STAMP}")
    for i in range(16): a(f"v_mov_b32 v{16+i}, s{80+i}")
    a("v_mov_b32 v0, 0")
    a("s_mov_b64 exec, 1")
    for i in range(4):
        a(f"buffer_store_dwordx4 {vr(16+4*i,4)}, v0, {sr(R_WS,4)}, s{sT0} offen offset:{16*i}")
lab("L_exit")
a("s_endpgm")

DOC = """; ---------------------------------------------------------------------------------------------
; (tag = lcg(word 0 of d_ws), written back at the end).  Stores are device scope (sc1); only the last
; ---------------------------------------------------------------------------------------------
"""
hdr = open("cdna_kernels/" + NAME + ".s.ref").read().split("; Override launch")[0]
src = hdr + f"; @launch grid=(256,1,1) block=(512,1,1) lds={LDS_BYTES}\n" + f""".amdgcn_target "amdgcn-amd-amdhsa--gfx950"
{DOC}.text
.globl {NAME}_kernel
.p2align 8
.type {NAME}_kernel,@function
{NAME}_kernel:
""" + "\n".join(x for n in ("P", "AL", "HQ", "Z", "A", "H") for x in SECS[n]) + f"""
.section .rodata,"a"
.p2align 6
.amdhsa_kernel {NAME}_kernel
  .amdhsa_next_free_vgpr 256
  .amdhsa_next_free_sgpr 102
  .amdhsa_accum_offset 256
  .amdhsa_group_segment_fixed_size 0
  .amdhsa_kernarg_size 136
  .amdhsa_user_sgpr_count 2
  .amdhsa_user_sgpr_kernarg_segment_ptr 1
  .amdhsa_system_sgpr_workgroup_id_x 1
.end_amdhsa_kernel
"""
open(OUT, "w").write(src)
```

```python
import sys, math, struct
NAME = "concat_heads__grouped_kv_mqa__ssm_conv_s5__prompt"
STAMPS = "--stamps" in sys.argv
OPT = dict(a.lstrip("-").split("=") for a in sys.argv[1:] if a.startswith("--") and "=" in a)
OUT = [a for a in sys.argv[1:] if not a.startswith("--")][0]
OUTFL = OPT.get("outfl", "nt").replace(",", " ")
if OUTFL: OUTFL = " " + OUTFL
YFL = OPT.get("yfl", "nt").replace(",", " ")
if YFL: YFL = " " + YFL

def f32(x): return "0x%08x" % struct.unpack("<I", struct.pack("<f", x))[0]

FSH = int(OPT.get('fsh', 6))
WS_O2 = 0x300000
C_HA = 48
WS_DUMMY = 0x800
WS_FKV = 0x1000
WS_FH  = 0x20000
WS_FO  = 0x80000
WS_KV  = 0x40000
WS_ST  = 0x60000
WS_O   = 0x100000
WS_H   = 0x400000
WS_SLOW = 0x800000
WS_STAMP = 15 << 20
WS_SIZE = 16 << 20
L_XA, L_WQ, L_KVP, L_WKV = 0, 65536, 131072, 140288
L_PART, L_R1, L_SCR, L_ES, L_QF, L_PROG, L_CNT = 0, 73728, 140288, 148480, 150528, 158720, 159744
L_MAX = 159808
L_CS = 160832

LDS_BYTES = 163840
PSTRIDE = 9216
RSTR = 1040
POLL_LIMIT = 400000
C_A1, C_H1, C_H2, C_A3, C_A4, C_GA, C_GH, C_TAG, C_H3, C_S, C_H0, C_DONE = 0, 4, 8, 12, 16, 20, 24, 28, 32, 36, 40, 44

SECS = {}
class _L:
    cur = None
    def append(self, x): SECS[_L.cur].append(x)
lines = _L()
def sec(n):
    SECS.setdefault(n, []); _L.cur = n
sec("P")
def a(s): lines.append("    " + s)
def lab(s): lines.append(s + ":")
def cm(s): lines.append("    ; " + s)
_uid = [0]
def uid(p):
    _uid[0] += 1
    return f"L_{p}{_uid[0]}"
def vr(b, n): return f"v[{b}:{b+n-1}]"
def sr(b, n): return f"s[{b}:{b+n-1}]"

sW, sTAG, sRB, sG, sC, sPB = 3, 4, 5, 6, 7, 8
sT0, sT1, sT2, sT3, sT4, sCNT = 9, 10, 11, 12, 13, 14
sWV = 15
P_AX, P_WQ, P_WK, P_WV, P_WO, P_BX, P_LRE, P_LIM = 16, 18, 20, 22, 24, 26, 28, 30
P_BRE, P_BIM, P_CRE, P_CIM, P_LDT, P_DSK, P_OUT, P_DBG = 32, 34, 36, 38, 40, 42, 44, 46
P_WS = 48
sT5, sT6 = 50, 51
R_WS, R_A, R_B, R_C = 52, 56, 60, 64
sM = 68
sGRP, sKIND, sSTEP, sSYNC = 70, 71, 72, 73
sRET = 74
sST = 76
sLO, sHI = 78, 79
sROT = sSTEP
sF1, sF2 = 0, 1
sYG, sCG, sPC = 96, 97, 98
sGY, sYY = 100, 101
YM = int(OPT.get('ymap', 0))
sMODE = sGRP
C_MODE = C_DONE
LFL = OPT.get('lfl', '').replace(',', ' ')
if LFL: LFL = ' ' + LFL

def srd(dst, ptr, nbytes):
    a(f"s_mov_b32 s{dst}, s{ptr}")
    a(f"s_and_b32 s{dst+1}, s{ptr+1}, 0xffff")
    a(f"s_mov_b32 s{dst+2}, {nbytes}")
    a(f"s_mov_b32 s{dst+3}, 0x20000")

PROBE = OPT.get("probe")
ROLE = ["?"]
if PROBE:
    PROBE = PROBE.split(","); STAMPS = True
def stamp(i, ins="s_memrealtime"):
    if PROBE and not (ins == "s_memrealtime" and (ROLE[0] in (PROBE[0], "E")) and str(i) in PROBE[1:]): return
    if OPT.get("dbg") == "steps" and ROLE[0] == "A" and i < 10: return
    if OPT.get("sel") and ROLE[0] != "E" and f"{ROLE[0]}{i}" not in OPT["sel"].split(","): return
    if STAMPS:
        a(f"{ins} s[{sST}:{sST+1}]")
        a("s_waitcnt lgkmcnt(0)")
        a(f"s_mov_b32 s{80+i}, s{sST}")
def cstamp(i): stamp(i, "s_memtime")
DBG = OPT.get("dbg", "")
def dstamp(name, i):
    if DBG == name: stamp(i)
_stamp0 = stamp


def dma(voff, srdr, soff, imm=0):
    o = f" offset:{imm}" if imm else ""
    a(f"buffer_load_dwordx4 v{voff}, {sr(srdr,4)}, {soff} offen{o} lds")

PACE = int(OPT.get("pace", 18))
PV = int(OPT.get("pv", 6))
def pace():
    if PV >= 0:
        a(f"s_waitcnt vmcnt({PV})")
        return
    n = PACE
    while n > 0:
        a(f"s_nop {min(n, 16) - 1}"); n -= 16

def poll(voff, soff, vt, sleep=0, fl=" sc1"):
    L, D = uid("poll"), uid("pdone")
    a(f"s_mov_b32 s{sCNT}, {POLL_LIMIT}")
    lab(L)
    a(f"buffer_load_dword v{vt}, v{voff}, {sr(R_WS,4)}, {soff} offen{fl}")
    a("s_waitcnt vmcnt(0)")
    a(f"v_cmp_ne_u32 vcc, s{sTAG}, v{vt}")
    a(f"s_cbranch_vccz {D}")
    if sleep: a(f"s_sleep {sleep}")
    a(f"s_sub_u32 s{sCNT}, s{sCNT}, 1")
    a(f"s_cbranch_scc0 {L}")
    lab(D)

def setflag(vt0, vt1, soff):
    a(f"v_mov_b32 v{vt0}, 0")
    a(f"v_mov_b32 v{vt1}, s{sTAG}")
    a("s_mov_b64 exec, 1")
    a(f"buffer_store_dword v{vt1}, v{vt0}, {sr(R_WS,4)}, s{soff} offen sc1")
    a("s_mov_b64 exec, -1")

LOC = OPT.get("loc", "t")
KIND = ["t"]
assert not (YM and "h" in LOC)
def st2(instrs):
    if KIND[0] not in LOC:
        for x in instrs: a(x.replace("@", " sc1"))
        return
    L, E = uid("sl"), uid("se")
    a(f"s_cmp_eq_u32 s{sMODE}, 1")
    a(f"s_cbranch_scc1 {L}")
    for x in instrs: a(x.replace("@", " sc1"))
    a(f"s_branch {E}")
    lab(L)
    for x in instrs: a(x.replace("@", LFL))
    lab(E)

def spf(spec):
    for ptr, lines, first, cnt in spec:
        a(f"s_lshl2_add_u32 s{sRET}, s2, s{sWV}")
        a(f"s_mul_i32 s{sRET}, s{sRET}, {128*lines}")
        a(f"s_add_u32 s{sRET}, s{sRET}, s{ptr}")
        a(f"s_addc_u32 s{sRET+1}, s{ptr+1}, 0")
        for i in range(first, first + cnt):
            a(f"s_load_dword s{sST}, s[{sRET}:{sRET+1}], {128*i}")

def spx(kind, first, cnt, w="dword"):
    if kind == "x":
        a(f"s_and_b32 s{sRET}, s{sRB}, 0x1b")
        a(f"s_lshr_b32 s{sRET+1}, s{sRET}, 3")
        a(f"s_and_b32 s{sRET}, s{sRET}, 3")
        a(f"s_lshl2_add_u32 s{sRET}, s{sRET+1}, s{sRET}")
        a(f"s_lshl3_add_u32 s{sRET}, s{sRET}, s{sG}")
        a(f"s_lshl2_add_u32 s{sRET}, s{sRET}, s{sWV}")
        a(f"s_lshl_b32 s{sRET}, s{sRET}, 12")
        ptr = P_BX
    else:
        a(f"s_and_b32 s{sRET}, s2, 1")
        a(f"s_lshl3_add_u32 s{sRET}, s{sRET}, s{sG}")
        a(f"s_and_b32 s{sRET+1}, s{sRB}, 3")
        a(f"s_lshl2_add_u32 s{sRET}, s{sRET}, s{sRET+1}")
        a(f"s_lshl2_add_u32 s{sRET}, s{sRET}, s{sWV}")
        a(f"s_lshl_b32 s{sRET}, s{sRET}, 11")
        ptr = P_BRE if kind == "r" else P_BIM
    a(f"s_add_u32 s{sRET}, s{sRET}, s{ptr}")
    a(f"s_addc_u32 s{sRET+1}, s{ptr+1}, 0")
    for i in range(first, first + cnt):
        a(f"s_load_dword s{sST}, s[{sRET}:{sRET+1}], {128*i}")
SX = OPT.get("sx", "")

def signal(vcnt, vone, off):
    a("s_mov_b64 exec, 1")
    a(f"ds_add_u32 v{vcnt}, v{vone} offset:{off}")
    a("s_mov_b64 exec, -1")

HSL = int(OPT.get("hsl", 0))
def waitc(vcnt, off, target, vt, sleep=0):
    L = uid("wc")
    if ROLE[0] == "H" and _L.cur == "H": sleep = max(sleep, HSL)
    if sleep:
        L2 = uid("wd")
        a(f"s_branch {L2}")
    lab(L)
    if sleep:
        a(f"s_sleep {sleep}")
        lab(L2)
    a(f"ds_read_b32 v{vt}, v{vcnt} offset:{off}")
    a("s_waitcnt lgkmcnt(0)")
    a(f"v_cmp_gt_u32 vcc, {target}, v{vt}")
    a(f"s_cbranch_vccnz {L}")

def gsync(vcnt, vone, vt, off):
    a("s_waitcnt lgkmcnt(0)")
    a(f"s_add_u32 s{sSYNC}, s{sSYNC}, 4")
    signal(vcnt, vone, off)
    waitc(vcnt, off, f"s{sSYNC}", vt)

def mfma32(d, x, y, c=None):
    c = vr(d, 16) if c is None else c
    a(f"v_mfma_f32_32x32x16_bf16 {vr(d,16)}, {vr(x,4)}, {vr(y,4)}, {c}")

def cmul_add(dst, L, g, u):
    a(f"v_pk_fma_f32 {vr(dst,2)}, {vr(L,2)}, {vr(g,2)}, {vr(u,2)} op_sel:[0,0,0] op_sel_hi:[0,1,1]")
    a(f"v_pk_fma_f32 {vr(dst,2)}, {vr(L,2)}, {vr(g,2)}, {vr(dst,2)} op_sel:[1,1,0] op_sel_hi:[1,0,1] neg_lo:[1,0,0]")

def cmul(dst, x, y):
    a(f"v_pk_mul_f32 {vr(dst,2)}, {vr(x,2)}, {vr(y,2)} op_sel:[0,0] op_sel_hi:[0,1]")
    a(f"v_pk_fma_f32 {vr(dst,2)}, {vr(x,2)}, {vr(y,2)}, {vr(dst,2)} op_sel:[1,1,0] op_sel_hi:[1,0,1] neg_lo:[1,0,0]")

def csq(dst, src, t):
    a(f"v_mul_f32 v{t}, v{src+1}, v{src+1}")
    a(f"v_add_f32 v{t+1}, v{src}, v{src}")
    a(f"v_fma_f32 v{dst}, v{src}, v{src}, -v{t}")
    a(f"v_mul_f32 v{dst+1}, v{t+1}, v{src+1}")

def xvoffsets(XO, t0):
    a(f"v_lshrrev_b32 v{t0}, 4, v0")
    a(f"v_and_b32 v{t0+1}, 15, v0")
    for i in range(4):
        a(f"v_add_u32 v{t0+2}, {4*i}, v{t0}")
        a(f"v_xor_b32 v{t0+3}, v{t0+1}, v{t0+2}")
        a(f"v_lshlrev_b32 v{t0+3}, 4, v{t0+3}")
        a(f"v_lshl_add_u32 v{XO+i}, v{t0+2}, 10, v{t0+3}")

def wtr_addr(dst, hhshift, base, t):
    a(f"v_bfe_u32 v{t}, v0, 2, 2")
    a(f"v_bfe_u32 v{t+1}, v0, 4, 1")
    a(f"v_bfe_u32 v{t+2}, v0, 1, 1")
    a(f"v_lshl_add_u32 v{t+1}, v{t+1}, 1, v{t+2}")
    a(f"s_and_b32 s{sT0}, s{sWV}, 1")
    a(f"s_lshl_b32 s{sT0}, s{sT0}, 2")
    a(f"v_add_u32 v{t+1}, s{sT0}, v{t+1}")
    a(f"v_bfe_u32 v{t+2}, v0, 3, 1")
    a(f"v_lshlrev_b32 v{t+2}, 2, v{t+2}")
    a(f"v_xor_b32 v{t+1}, v{t+1}, v{t+2}")
    a(f"v_lshlrev_b32 v{t+1}, 4, v{t+1}")
    a(f"v_lshl_add_u32 v{t+1}, v{t}, 7, v{t+1}")
    a(f"v_and_b32 v{t+2}, 1, v0")
    a(f"v_lshl_add_u32 v{t+1}, v{t+2}, 3, v{t+1}")
    a(f"v_lshrrev_b32 v{t+2}, 5, v0")
    a(f"v_lshl_add_u32 v{t+1}, v{t+2}, {hhshift}, v{t+1}")
    a(f"v_add_u32 v{dst}, {base}, v{t+1}")

def o_offsets():
    a(f"s_and_b32 s{sT0}, s{sSTEP}, 1")
    a(f"s_lshl_b32 s{sT1}, s{sRB}, 1")
    a(f"s_add_u32 s{sT0}, s{sT0}, s{sT1}")
    a(f"s_lshl_b32 s{sT0}, s{sT0}, 2")
    a(f"s_lshr_b32 s{sT1}, s{sSTEP}, 1")
    a(f"s_add_u32 s{sT0}, s{sT0}, s{sT1}")
    a(f"s_lshl_b32 s{sT0}, s{sT0}, 3")
    a(f"s_add_u32 s{sT0}, s{sT0}, s{sG}")
    a(f"s_lshl_b32 s{sT1}, s{sT0}, 10")
    a(f"s_add_u32 s{sT1}, s{sT1}, {WS_O}")
    a(f"s_lshl_b32 s{sT0}, s{sT0}, 7")
    a(f"s_add_u32 s{sT0}, s{sT0}, {WS_FO}")

def sum_check(b):
    a(f"v_pk_add_f32 {vr(b,2)}, {vr(b,2)}, {vr(b+2,2)}")
    a(f"v_add_f32 v{b}, v{b}, v{b+1}")
    a(f"v_cmp_nle_f32 vcc, s{sLO}, v{b}")
    a(f"v_cmp_nge_f32 s[{sM}:{sM+1}], s{sHI}, v{b}")
    a(f"s_or_b64 vcc, vcc, s[{sM}:{sM+1}]")

def reduce_math(b, vl16, flag=True, tagged=False, b1=None, bs=None):
    b1 = b + 16 if b1 is None else b1
    bs = b + 32 if bs is None else bs
    a(f"v_rcp_f32 v{bs+2}, v{bs}")
    for j in range(4):
        a(f"v_pk_add_f32 {vr(b+2*j,2)}, {vr(b+2*j,2)}, {vr(b+8+2*j,2)}")
    for j in range(4):
        a(f"v_pk_add_f32 {vr(b1+2*j,2)}, {vr(b1+2*j,2)}, {vr(b1+8+2*j,2)}")
    for j in range(4):
        a(f"v_pk_add_f32 {vr(b+2*j,2)}, {vr(b+2*j,2)}, {vr(b1+2*j,2)}")
    for j in range(4):
        a(f"v_pk_mul_f32 {vr(b+2*j,2)}, {vr(b+2*j,2)}, {vr(bs+2,2)} op_sel_hi:[1,0]")
    for j in range(4):
        a(f"v_cvt_pk_bf16_f32 v{b+8+j}, v{b+2*j}, v{b+2*j+1}")
    if not flag:
        st2([f"buffer_store_dwordx4 {vr(b+8,4)}, v{vl16}, {sr(R_WS,4)}, s{sT1} offen@"])
        return
    a(f"buffer_store_dwordx4 {vr(b+8,4)}, v{vl16}, {sr(R_WS,4)}, s{sT1} offen sc1")
    a("s_waitcnt vmcnt(0)")
    setflag(b, b + 1, sT0)

STG3 = 1
LOG2E = 1.4426950408889634
L_LO, L_HI = 2.0 ** -60, 2.0 ** 60


class Cnt:
    def __init__(s): s.q = []
    def issue(s, tag, n=1): s.q += [tag] * n
    def need(s, tag):
        if tag not in s.q: return None
        i = len(s.q) - 1 - s.q[::-1].index(tag)
        n = len(s.q) - 1 - i
        s.q = s.q[i + 1:]
        return n
def waits(vm=None, lg=None):
    p = []
    if vm is not None: p.append(f"vmcnt({min(vm,63)})")
    if lg is not None: p.append(f"lgkmcnt({min(lg,15)})")
    if p: a("s_waitcnt " + " ".join(p))

a("s_cmp_ge_u32 s2, 256")
a("s_cbranch_scc1 L_exit")
a(f"s_load_dwordx16 s[16:31], s[0:1], 0")
a(f"s_load_dwordx16 s[32:47], s[0:1], 64")
a(f"s_load_dwordx2 s[48:49], s[0:1], 128")
EPF = [int(x) for x in OPT.get("epf", "").split(",") if x]
if EPF:
    cm("request the first code lines at once instead of one miss after the other")
    a(f"s_getpc_b64 s[{sM}:{sM+1}]")
    a(f"v_subrev_u32 v2, {EPF[0]}, v0")
    a(f"v_cmp_gt_u32 vcc, {EPF[1]}, v2")
    a("v_lshlrev_b32 v2, 7, v2")
    a(f"s_and_saveexec_b64 s[{sRET}:{sRET+1}], vcc")
    a("s_cbranch_execz L_noepf")
    a(f"global_load_dword v31, v2, s[{sM}:{sM+1}] offset:128")
    lab("L_noepf")
    a("s_mov_b64 exec, -1")
if STAMPS:
    for i in range(16): a(f"s_mov_b32 s{80+i}, 0")
    a("s_memrealtime s[80:81]")
    a("s_memtime s[92:93]")
a("v_lshrrev_b32 v1, 6, v0")
a("v_and_b32 v0, 63, v0")
a(f"v_readfirstlane_b32 s{sW}, v1")
a("v_lshlrev_b32 v6, 4, v0")
a("v_lshrrev_b32 v12, 4, v0")
a("v_and_b32 v13, 15, v0")
a(f"s_and_b32 s{sT0}, s2, 7")
a(f"s_lshr_b32 s{sT1}, s2, 3")
a(f"s_and_b32 s{sT2}, s{sT1}, 3")
a(f"s_lshl_b32 s{sRB}, s{sT0}, 2")
a(f"s_add_u32 s{sRB}, s{sRB}, s{sT2}")
a(f"s_lshr_b32 s{sG}, s{sT1}, 2")
a(f"s_and_b32 s{sGRP}, s{sG}, 3")
a(f"s_and_b32 s{sWV}, s{sW}, 3")
a(f"s_add_u32 s{sROT}, s{sG}, s{sRB}" if OPT.get("rot", "0") == "1" else f"s_mov_b32 s{sROT}, 0")
a(f"s_mov_b32 s{R_A+2}, {2048*1024}")
a(f"s_mov_b32 s{R_A+3}, 0x20000")
a(f"s_mov_b32 s{R_B+3}, 0x20000")
a(f"s_cmp_ge_u32 s{sW}, 4")
a("s_cbranch_scc1 L_attn")

vL, vL16_, vL8, vCO = 20, 22, 24, 26
vCNT, vONE, vWT, vRB, vL4, vWO = 2, 3, 4, 5, 6, 7
a("s_setprio 3")
for i in range(4):
    a(f"v_add_u32 v14, {4*i}, v12")
    a(f"v_xor_b32 v15, v13, v14")
    a(f"v_lshlrev_b32 v15, 4, v15")
    a(f"v_lshl_add_u32 v{16+i}, v14, 10, v15")
if OPT.get("map", "0" if "h" in LOC else "1") == "0":
    a(f"s_and_b32 s{sT2}, s{sT1}, 1")
    a(f"s_lshl_b32 s{sC}, s{sT0}, 1")
    a(f"s_add_u32 s{sC}, s{sC}, s{sT2}")
    a(f"s_lshr_b32 s{sPB}, s{sT1}, 1")
else:
    a(f"s_and_b32 s{sC}, s{sT0}, 6")
    a(f"s_lshl_b32 s{sC}, s{sC}, 1")
    a(f"s_add_u32 s{sC}, s{sC}, s{sT2}")
    a(f"s_and_b32 s{sPB}, s{sT0}, 1")
    a(f"s_lshl_b32 s{sPB}, s{sPB}, 3")
    a(f"s_add_u32 s{sPB}, s{sPB}, s{sG}")
a(f"s_lshr_b32 s{sKIND}, s{sG}, 2")
a(f"s_lshl_b32 s{sT3}, s{sPB}, 5")
a("v_and_b32 v38, 31, v0")
a(f"v_add_lshl_u32 v37, v38, s{sT3}, 1")
if YM:
    a(f"s_and_b32 s{sGY}, s{sRB}, 7")
else:
    a(f"s_mov_b32 s{sGY}, s{sG}")
a(f"s_and_b32 s{sT3}, s{sWV}, 1")
a(f"s_lshl1_add_u32 s{sT3}, s{sGY}, s{sT3}")
a(f"s_lshl_b32 s{sT3}, s{sT3}, 5")
a(f"v_add_lshl_u32 v38, v38, s{sT3}, 1")
a(f"s_add_u32 s{sT3}, s{sROT}, s{sWV}")
a(f"s_and_b32 s{sT3}, s{sT3}, 3")
a(f"s_lshl_b32 s{sT0}, s{sRB}, 16")
a(f"s_lshl_b32 s{sT1}, s{sGRP}, 14")
a(f"s_add_u32 s{sT0}, s{sT0}, s{sT1}")
a(f"s_lshl_b32 s{sT1}, s{sT3}, 8")
a(f"s_add_u32 s{sT0}, s{sT0}, s{sT1}")
a(f"s_lshl_b32 s{sT2}, s{sGRP}, 12")
a(f"s_lshl_b32 s{sT1}, s{sWV}, 14")
a(f"s_add_u32 s{sT2}, s{sT2}, s{sT1}")
a(f"s_lshl_b32 s{sT3}, s{sT3}, 12")
a(f"s_lshl_b32 s{sT4}, s{sWV}, 12")
a(f"s_add_u32 s{sT4}, s{sT4}, {L_WKV}")
a(f"s_mov_b32 s{R_B+2}, 16384")
a(f"s_mov_b32 m0, s{sT2}")
a(f"s_cmp_eq_u32 s{sKIND}, 0")
a("s_waitcnt lgkmcnt(0)")
a(f"s_cselect_b32 s{R_B}, s{P_WK}, s{P_WV}")
a(f"s_cselect_b32 s{R_B+1}, s{P_WK+1}, s{P_WV+1}")
a(f"s_mov_b32 s{R_A}, s{P_AX}")
a(f"s_and_b32 s{R_A+1}, s{P_AX+1}, 0xffff")
a(f"s_and_b32 s{R_B+1}, s{R_B+1}, 0xffff")
for i in range(4):
    dma(16 + i, R_A, f"s{sT0}")
    a(f"s_add_u32 m0, s{sT2}, {1024*(i+1)}" if i < 3 else f"s_mov_b32 m0, s{sT4}")
    a("s_nop 0")
for i in range(4):
    dma(6, R_B, f"s{sT3}", imm=1024 * i)
p0, p1, p2, vDSK = 60, 61, 62, 63
PP_ = int(OPT.get("pp2", 0))
a("v_mov_b32 v94, v37")
a("v_mov_b32 v95, v38")
def pld():
    a(f"global_load_ushort v{p0}, v94, s[{P_LRE}:{P_LRE+1}]")
    a(f"global_load_ushort v{p1}, v94, s[{P_LIM}:{P_LIM+1}]")
    a(f"global_load_ushort v{p2}, v94, s[{P_LDT}:{P_LDT+1}]")
    a(f"global_load_ushort v{vDSK}, v95, s[{P_DSK}:{P_DSK+1}]")
def pwarm():
    for p in (P_LRE, P_LIM, P_LDT, P_DSK): a(f"s_load_dword s{sST}, s[{p}:{p+1}], 0")
if PP_ == 0: pld()
EP0 = int(OPT.get("ep0", 0))
if EP0:
    a(f"s_cmp_eq_u32 s{sWV}, 0")
    a("s_cbranch_scc0 L_h_noep")
a(f"s_load_dword s{sTAG}, s[{P_WS}:{P_WS+1}], 0")
lab("L_h_noep")
a("s_barrier")

sec("AL")
lab("L_attn"); ROLE[0] = "A"
cm("pull the kernel's code towards this XCD's L2")
a(f"s_getpc_b64 s[{sM}:{sM+1}]")
lab("L_pc")
a(f"s_sub_u32 s{sM}, s{sM}, L_pc - {NAME}_kernel")
a(f"s_subb_u32 s{sM+1}, s{sM+1}, 0")
SPF = int(OPT.get("spf", 0))
if SPF:
    a(f"s_lshl_b32 s{sT3}, s{sWV}, 7")
    a(f"s_add_u32 s{sRET}, s{sM}, s{sT3}")
    a(f"s_addc_u32 s{sRET+1}, s{sM+1}, 0")
    for i in range(SPF):
        a(f"s_load_dword s{sCNT}, s[{sRET}:{sRET+1}], {512*i + 256}")
CSH = int(OPT.get("csh", 32))
NLN = -(-176 // (4 * CSH))
a(f"s_and_b32 s{sT2}, s{sT1}, {CSH-1}")
a(f"s_lshl2_add_u32 s{sT2}, s{sT2}, s{sWV}")
a(f"s_mul_i32 s{sT2}, s{sT2}, {128*NLN}")
CSK = int(OPT.get("csk", 0))
if CSK: a(f"s_add_u32 s{sT2}, s{sT2}, {CSK}")
a("v_lshlrev_b32 v32, 7, v0")
a(f"v_min_u32 v32, {128*(NLN-1)}, v32")
a(f"v_add_u32 v32, s{sT2}, v32")
a(f"v_min_u32 v32, L_slow - {NAME}_kernel, v32")
CPF = int(OPT.get("cpf", 0))
if CPF == 0:
    a(f"s_cmp_ge_u32 s{sT2}, L_slow - {NAME}_kernel")
    a("s_cbranch_scc1 L_nocpf")
    a(f"s_mov_b64 exec, {(1 << NLN) - 1}")
    a(f"global_load_dword v33, v32, s[{sM}:{sM+1}]")
    a("s_mov_b64 exec, -1")
    lab("L_nocpf")
vIDX, vZ, vAD, vAS, vAQ, vPG, vQ = 1, 2, 4, 5, 6, 7, 8
vCA, vONEA = 12, 13
S0, S1, vO, KV = 16, 32, 48, 64
cm("zero sync counters + progress words")
a("v_mov_b32 v2, 0")
a("v_mov_b32 v3, 0")
a("v_mov_b32 v4, 0")
a("v_mov_b32 v5, 0")
a(f"v_add_u32 v7, {L_PROG}, v6")
a("ds_write_b128 v7, v[2:5]")
a("ds_write_b128 v7, v[2:5] offset:1024")
a(f"v_lshl_add_u32 v14, s{sWV}, 2, v12")
a("v_xor_b32 v15, v13, v14")
a("v_lshlrev_b32 v15, 4, v15")
a("v_lshl_add_u32 v16, v14, 10, v15")
def wo_voff(dst, t):
    a(f"v_lshrrev_b32 v{t}, 3, v0")
    a(f"v_and_b32 v{t+1}, 7, v0")
    a(f"v_lshrrev_b32 v{t+2}, 2, v0")
    a(f"v_and_b32 v{t+2}, 4, v{t+2}")
    a(f"v_xor_b32 v{t+1}, v{t+1}, v{t+2}")
    a(f"v_lshlrev_b32 v{t+1}, 4, v{t+1}")
    a(f"v_lshl_add_u32 v{dst}, v{t}, 10, v{t+1}")
wo_voff(17, 20)
def wslice_setup():
    a(f"s_lshl_b32 s{sT0}, s{sG}, 7")
    a(f"s_lshl_b32 s{sT1}, s{sWV}, 15")
    a(f"s_add_u32 s{sT0}, s{sT0}, s{sT1}")
    a(f"s_lshl_b32 s{sT1}, s{sWV}, 12")
wslice_setup()
a(f"s_lshl_b32 s{sT4}, s{sRB}, 16")
a(f"s_lshl_b32 s{sT5}, s{sWV}, 10")
for m in range(1, 4):
    a(f"s_add_u32 s{sT2}, s{sGRP}, {m}")
    a(f"s_and_b32 s{sT2}, s{sT2}, 3")
    a(f"s_lshl_b32 s{sT3}, s{sT2}, 14")
    a(f"s_add_u32 s{95+m}, s{sT3}, s{sT4}")
    a(f"s_lshl_b32 s{sT3}, s{sT2}, 12")
    a(f"s_add_u32 s{98+m}, s{sT3}, s{sT5}")
a(f"s_mov_b32 s{R_B+2}, {512*1024}")
a(f"v_mov_b32 v{vCA}, {L_CNT}")
a(f"v_mov_b32 v{vONEA}, 1")
a("s_waitcnt lgkmcnt(0)")
a(f"s_mov_b32 s{R_A}, s{P_AX}")
a(f"s_and_b32 s{R_A+1}, s{P_AX+1}, 0xffff")
a(f"s_mov_b32 s{R_B}, s{P_WQ}")
a(f"s_and_b32 s{R_B+1}, s{P_WQ+1}, 0xffff")
if STAMPS:
    a("s_mov_b32 s81, 0")
    a("s_mov_b32 s93, 0")
a("s_barrier")
def qops(sl):
    a(f"s_add_u32 s{sT3}, s{sROT}, {sl}")
    a(f"s_and_b32 s{sT3}, s{sT3}, 3")
    a(f"s_lshl_b32 s{sT4}, s{sT3}, 8")
    a(f"s_lshl_b32 s{sT3}, s{sT3}, 17")
    a(f"s_add_u32 s{sT3}, s{sT3}, s{sT0}")
    for m in range(1, 4):
        a(f"s_add_u32 m0, s{98+m}, {L_XA + 16384*sl}")
        a(f"s_add_u32 s{sT2}, s{95+m}, s{sT4}")
        dma(16, R_A, f"s{sT2}")
    for i in range(4):
        a(f"s_add_u32 m0, s{sT1}, {L_WQ + 16384*sl + 1024*i}")
        a(f"s_add_u32 s{sT2}, s{sT3}, {8192*i}")
        dma(17, R_B, f"s{sT2}")
if CPF == 1: a(f"global_load_dword v33, v32, s[{sM}:{sM+1}]")
QW = int(OPT.get("qw", 0))
for sl in range(QW): qops(sl)
PFW, PFU = int(OPT.get("pfw", 1)), OPT.get("pfu", "")
if PFW:
    cm("warm L2 with this workgroup's quarter of its Wq slice")
    a(f"s_and_b32 s{sT2}, s{sRB}, 3")
    a(f"s_lshl2_add_u32 s{sT2}, s{sT2}, s{sWV}")
    a(f"s_lshl_b32 s{sT2}, s{sT2}, 15")
    a(f"s_lshl_b32 s{sT3}, s{sG}, 7")
    a(f"s_add_u32 s{sT2}, s{sT2}, s{sT3}")
    a("v_and_b32 v20, 31, v0")
    a("v_lshlrev_b32 v20, 10, v20")
    a("s_mov_b32 exec_hi, 0")
    a(f"buffer_load_dword v34, v20, {sr(R_B,4)}, s{sT2} offen")
    a("s_mov_b64 exec, -1")
def pfu(which):
    cm("pull this wave's 1/1024 share of later inputs out of HBM")
    a(f"s_lshl2_add_u32 s{sT2}, s2, s{sWV}")
    a("v_lshlrev_b32 v26, 7, v0")
    for i, ch in enumerate(which):
        ptr, lines = {"x": (P_BX, 16), "r": (P_BRE, 4), "i": (P_BIM, 4), "c": (P_CRE, 4), "d": (P_CIM, 4), "o": (P_WO, 4)}[ch]
        a(f"s_mul_i32 s{sT3}, s{sT2}, {128*lines}")
        a(f"v_add_u32 v21, s{sT3}, v26")
        a(f"s_mov_b64 exec, {(1 << lines) - 1}")
        a(f"global_load_dword v{35+i}, v21, s[{ptr}:{ptr+1}]")
        a("s_mov_b64 exec, -1")
if PFU: pfu(PFU)
srd(R_WS, P_WS, WS_SIZE)
a(f"s_mov_b32 s{sSYNC}, 0")
a(f"s_mov_b32 s{sLO}, {f32(L_LO)}")
a(f"s_mov_b32 s{sHI}, {f32(L_HI)}")
cm("prefill V regs: rows 16 and 20 = ones, other rows >=16 zero")
a("v_and_b32 v24, 27, v0")
a("v_cmp_eq_u32 vcc, 16, v24")
a("v_mov_b32 v25, 0x3f803f80")
a("s_nop 0")
a("v_cndmask_b32 v24, 0, v25, vcc")
a("v_mov_b32 v25, v24")
for t in range(16):
    for j in range(4):
        a(f"v_mov_b64 {vr(KV+12*t+4+2*j,2)}, v[24:25]")
a("v_mov_b32 v14, v6")
a("v_lshrrev_b32 v24, 5, v0")
a("v_and_b32 v25, 15, v0")
a("v_lshl_add_u32 v15, v24, 4, v25")
a("v_lshlrev_b32 v15, 4, v15")
a(f"v_mov_b32 v{vIDX}, 0xdddddddd")
a(f"s_lshl_b32 s{sT2}, s{sWV}, 11")
a(f"v_add_u32 v{vAD}, s{sT2}, v14")
a(f"s_lshl_b32 s{sT2}, s{sWV}, 2")
a(f"s_add_u32 s{sT3}, s{sT2}, {L_PART + 8192}")
a(f"v_add_u32 v{vAS}, s{sT3}, v14")
a(f"s_add_u32 s{sT3}, s{sT2}, {L_PROG}")
a(f"v_add_u32 v{vPG}, s{sT3}, v14")
a(f"v_add_u32 v{vAQ}, {L_QF}, v14")
a(f"v_lshlrev_b32 v23, {FSH}, v0")
a("s_barrier")
a(f"ds_read_b32 v20, v{vCA} offset:{C_TAG}")
if "1" in SX: spx("r", 0, 14)
B0 = int(OPT.get("b0", 0))
for sl in range(QW, 4):
    qops(sl)
    if sl + 1 == B0:
        a(f"s_waitcnt vmcnt({7*(B0-1)})")
        a("s_barrier")
PFL = OPT.get("pfl", "")
if PFL: pfu(PFL)
NL = len(PFL)
a(f"s_waitcnt vmcnt({14+NL}) lgkmcnt(0)")
a("s_barrier")
a(f"v_readfirstlane_b32 s{sTAG}, v20")
cm("scalars for the tail")
sKV = sT0
a(f"s_sub_u32 s{sSTEP}, 7, s{sWV}")
o_offsets()
a(f"s_mov_b32 s{sF1}, s{sT0}")
a(f"s_mov_b32 s{sF2}, s{sT1}")
a(f"s_mul_i32 s{sT2}, s{sSTEP}, {PSTRIDE}")
a(f"s_lshr_b32 s{sT4}, s{sWV}, 1")
a(f"s_lshl1_add_u32 s{sYG}, s{sRB}, s{sT4}")
a(f"s_lshl_b32 s{sCG}, s{sYG}, 12")
a(f"s_add_u32 s{sCG}, s{sCG}, {WS_FO + 16*128}")
srd(R_B, P_OUT, 2048 * 4096)
a(f"s_and_b32 s{sT0}, s{sWV}, 1")
a(f"s_lshl1_add_u32 s{sT0}, s{sG}, s{sT0}")
a(f"s_lshl_b32 s{sT0}, s{sT0}, 7")
a(f"s_lshl_b32 s{sT3}, s{sYG}, 17")
a(f"s_add_u32 s{sT3}, s{sT3}, s{sT0}")
a(f"s_lshl_b32 s{sT6}, s{sYG}, 15")
a(f"s_add_u32 s{sT6}, s{sT6}, {WS_O + 16384}")
a(f"s_mul_i32 s{sT4}, s{sWV}, {PSTRIDE}")
a(f"s_lshl_b32 s{sT5}, s{sWV}, 9")
a(f"s_add_u32 s{sT5}, s{sT5}, {L_CS}")
a(f"s_lshl_b32 s{sT0}, s{sWV}, {FSH+6}")
a(f"s_add_u32 s{sT0}, s{sT0}, {WS_FKV}")
stamp(1)
if "2" in SX: spx("i", 0, 14)
SU = OPT.get("su", "")
if "a" in SU: spf([(P_BX, 16, 0, 14)])
if "b" in SU: spf([(P_BRE, 4, 0, 4), (P_BIM, 4, 0, 4), (P_BX, 16, 0, 6)])
a(f"s_waitcnt vmcnt({7+NL})")
a("s_barrier")
PE = int(OPT.get("pe", 1))
if PE == 2:
    a(f"buffer_load_dword v22, v23, {sr(R_WS,4)}, s{sT0} offen sc1")
    a(f"s_waitcnt vmcnt(1)")
else:
    a(f"s_waitcnt vmcnt({NL})")
if PE == 1: a(f"buffer_load_dword v22, v23, {sr(R_WS,4)}, s{sT0} offen sc1")
a("s_barrier")
a("s_branch L_a2")
sec("A")
lab("L_a2")
stamp(2)
for _ in range(int(OPT.get("pd", 0))): a("s_sleep 2")
a(f"s_mov_b32 s{sCNT}, {POLL_LIMIT}")
if PE: a("s_branch L_a_kvq")
lab("L_a_kvp")
a(f"buffer_load_dword v22, v23, {sr(R_WS,4)}, s{sT0} offen sc1")
lab("L_a_kvq")
a("s_waitcnt vmcnt(0)")
a(f"v_xor_b32 v22, s{sTAG}, v22")
a("v_cmp_lt_u32 vcc, 15, v22")
a("s_cbranch_vccz L_a_kvok")
a(f"s_sub_u32 s{sCNT}, s{sCNT}, 1")
a("s_cbranch_scc0 L_a_kvp")
lab("L_a_kvok")
stamp(4)
a(f"s_lshl_b32 s{sT0}, s{sWV}, 15")
a(f"s_add_u32 s{sT0}, s{sT0}, {WS_KV}")
a(f"s_mov_b32 s{sM}, 0xffff")
a(f"s_mov_b32 s{sM+1}, 0xffff")
def kvload(tp):
    for t in (2*tp, 2*tp+1):
        a(f"buffer_load_dwordx4 {vr(KV+12*t,4)}, v14, {sr(R_WS,4)}, s{sT0} offen offset:{2048*(t&1)} sc1")
    a(f"s_mov_b64 exec, s[{sM}:{sM+1}]")
    for t in (2*tp, 2*tp+1):
        a(f"buffer_load_dwordx4 {vr(KV+12*t+4,4)}, v15, {sr(R_WS,4)}, s{sT0} offen offset:{2048*(t&1)+1024} sc1")
        a(f"buffer_load_dwordx4 {vr(KV+12*t+8,4)}, v15, {sr(R_WS,4)}, s{sT0} offen offset:{2048*(t&1)+1536} sc1")
    a("s_mov_b64 exec, -1")
    if tp < 7: a(f"s_add_u32 s{sT0}, s{sT0}, 4096")
NINIT = int(OPT.get("ninit", 3))
A4POS = int(OPT.get("a4", 8))
ABPOS = int(OPT.get("ab", 0))
NB = int(OPT.get("nb", NINIT))
for tp in range(NB):
    kvload(tp)
cm("do all 32 workgroups of this id class share this XCD?")
a(f"s_bfe_u32 s{sT1}, s2, 0x20001")
a(f"s_cmp_eq_u32 s{sT1}, s{sWV}")
a("s_cbranch_scc0 L_a_nomode")
a(f"s_getreg_b32 s{sT1}, hwreg(HW_REG_XCC_ID, 0, 4)")
a(f"v_cmp_ne_u32 vcc, s{sT1}, v22")
a("s_bitcmp1_b32 s2, 0")
a(f"s_cselect_b32 s{sT1}, vcc_hi, vcc_lo")
a(f"s_cmp_eq_u32 s{sT1}, 0")
a(f"s_cselect_b32 s{sT1}, {2 if OPT.get('nolocal') else 1}, 2")
a(f"v_mov_b32 v21, s{sT1}")
a(f"ds_write_b32 v{vCA}, v21 offset:{C_MODE}")
lab("L_a_nomode")
assert NINIT < 8
stamp(5)
a("s_barrier")
a("s_setprio 1")
a(f"ds_read_b128 {vr(vQ,4)}, v{vAQ}")
a(f"v_add_u32 v{vAQ}, 1024, v{vAQ}")
for tp in range(NB, NINIT): kvload(tp)
a(f"s_waitcnt vmcnt({6*(NINIT-1)+4}) lgkmcnt(0)")
stamp(6)
cstamp(10)

K_ = lambda t: KV + 12 * t
V1 = lambda t: KV + 12 * t + 4
V2 = lambda t: KV + 12 * t + 8
def ex(X, i): a(f"v_exp_f32 v{X+i}, v{X+i}")
def exs(X, lo, hi):
    for i in range(lo, hi): ex(X, i)
def smf(v, p): a(f"v_smfmac_f32_32x32x32_bf16 {vr(vO,16)}, {vr(v,4)}, {vr(p,8)}, v{vIDX}")
def qk(d, t): mfma32(d, K_(t), vQ, "0")
def zeroO(): a(f"v_mfma_f32_32x32x8_bf16 {vr(vO,16)}, {vr(vZ,2)}, {vr(vZ,2)}, 0")
def dump():
    a(f"ds_write_b128 v{vAD}, {vr(vO,4)}")
    a(f"ds_write_b128 v{vAD}, {vr(vO+4,4)} offset:1024")
    a(f"ds_write_b32 v{vAS}, v{vO+8}")
    a(f"ds_write_b32 v{vPG}, v{vAS}")

KVS = int(OPT.get('kvs', 2))
QPF = int(OPT.get('qpf', 0))
PQ, PS1 = [int(x) for x in OPT.get('pos', '7,12').split(',')]
assert not QPF
UN2 = int(OPT.get("un2", 0))
def dump2(off):
    a(f"ds_write_b128 v{vAD}, {vr(vO,4)}" + (f" offset:{off}" if off else ""))
    a(f"ds_write_b128 v{vAD}, {vr(vO+4,4)} offset:{1024+off}")
    a(f"ds_write_b32 v{vAS}, v{vO+8}")
    a(f"ds_write_b32 v{vPG}, v{vAS}")
def tiles_1_15(first):
    issued = [NINIT + 1 if first else 8]
    def preqk(tn):
        if first and tn % 2 == 0 and tn < 16:
            a(f"s_waitcnt vmcnt({6*(min(issued[0],8) - 1 - tn//2)})")
    def more(t):
        if first and t % KVS == 0 and issued[0] < 8:
            kvload(issued[0]); issued[0] += 1
            if issued[0] in (A4POS, ABPOS): signal(vCA, vONEA, C_A4)
    for t in range(1, 16):
        X, Y = (S0, S1) if t % 2 == 0 else (S1, S0)
        exs(X, 0, 2); smf(V2(t - 1), Y + 8); exs(X, 2, PQ)
        if t == 15:
            a("s_waitcnt lgkmcnt(0)")
            if DBG == "steps":
                a(f"s_sub_u32 m0, 7, s{sSTEP}")
                a("s_nop 0")
                a(f"s_movreld_b32 s81, s{sST}")
            qk(Y, 0)
        else:
            preqk(t + 1)
            qk(Y, t + 1)
        if t == 14 and DBG == "steps": a(f"s_memtime s[{sST}:{sST+1}]")
        if t == 14:
            a(f"ds_read_b128 {vr(vQ,4)}, v{vAQ}")
            a(f"v_add_u32 v{vAQ}, 1024, v{vAQ}")
        exs(X, PQ, PS1); smf(V1(t), X); more(t); exs(X, PS1, 16)

qk(S0, 0)
zeroO()
a(f"s_mov_b32 s{sSTEP}, 7")
kvload(NINIT)
if NINIT + 1 in (A4POS, ABPOS): signal(vCA, vONEA, C_A4)
exs(S0, 0, 4); qk(S1, 1); exs(S0, 4, 12)
a(f"s_waitcnt vmcnt({6*NINIT})")
smf(V1(0), S0); exs(S0, 12, 16)
tiles_1_15(True)
a(f"s_mov_b32 s{sSTEP}, 6")
a("s_nop 0")
lines.append(".p2align 6")
lab("L_a_loop")
cm("tile 0: finish the previous q-tile (6 exps = 48+ cycles cover the accumulator latency), restart the accumulator")
X, Y = S0, S1
smf(V2(15), Y + 8); exs(X, 0, 3); qk(Y, 1); exs(X, 3, 6)
dump()
ex(X, 6); zeroO(); exs(X, 7, 12)
a(f"v_add_u32 v{vAD}, {PSTRIDE}, v{vAD}")
a(f"v_add_u32 v{vAS}, {PSTRIDE}, v{vAS}")
smf(V1(0), X)
exs(X, 12, 16)
tiles_1_15(False)
a(f"s_sub_u32 s{sSTEP}, s{sSTEP}, 1")
a("s_cbranch_scc0 L_a_loop")

lab("L_a_fin")
smf(V2(15), S1 + 8)
a("v_lshlrev_b32 v14, 4, v0")
a(f"v_mov_b32 v{vCA}, {L_CNT}")
a(f"v_add_u32 v9, s{sT2}, v14")
a("v_and_b32 v10, 3, v0")
a("v_lshlrev_b32 v10, 2, v10")
a(f"v_add_u32 v10, {L_PROG}, v10")
a(f"s_add_u32 s{sT2}, s{sT2}, {L_PART + 8192}")
a(f"v_add_u32 v6, s{sT4}, v14")
a("v_lshlrev_b32 v16, 2, v0")
a(f"v_mov_b32 v17, s{sTAG}")
a("s_setprio 3")
dump()
a("v_lshlrev_b32 v7, 3, v0")
a(f"v_add_u32 v7, s{sT5}, v7")
a(f"s_mov_b32 s{sKIND}, 0")
stamp(7)
cstamp(11)
lab("L_a_rw")
a("ds_read_b32 v11, v10")
a(f"ds_read_b32 v8, v{vCA} offset:{C_MODE}")
a("ds_read_b128 v[52:55], v9 offset:8192")
for w in range(8):
    a(f"ds_read_b128 {vr(20+4*w,4)}, v9 offset:{1024*w}")
a("ds_read_b128 v[56:59], v6 offset:8192")
WSH = int(OPT.get("wsh", 1))
if WSH:
    a(f"ds_read_b32 v60, v{vCA} offset:{C_GH}")
    a("ds_read_b64 v[4:5], v7")
a(f"s_waitcnt lgkmcnt({11 if WSH else 9})")
a(f"v_cmp_gt_u32 vcc, s{sT2}, v11")
a("s_cbranch_vccnz L_a_rw")
a(f"v_readfirstlane_b32 s{sMODE}, v8")
a(f"s_mov_b32 s{sT1}, s{sF2}")
sum_check(52)
a(f"s_waitcnt lgkmcnt({3 if WSH else 1})")
a("s_cbranch_scc1 L_a_bad1")
reduce_math(20, 14, flag=False, bs=52)
a("v_and_b32 v15, 15, v0")
a("v_lshlrev_b32 v15, 7, v15")
a(f"s_lshl_b32 s{sT0}, s{sWV}, 2")
a(f"v_add_u32 v10, s{sT0}, v{vCA}")
AO, AW, AC = 88, 152, 48
NSH = int(OPT.get("nsh", 12)); WG0 = int(OPT.get("wg0", 15))
def awread(k):
    o = PSTRIDE * (k // 4) + 2048 * (k % 4)
    a(f"ds_read_b64_tr_b16 {vr(AW+4*k,2)}, v4 offset:{o}")
    a(f"ds_read_b64_tr_b16 {vr(AW+4*k+2,2)}, v4 offset:{o+1024}")
if WSH:
    a("s_waitcnt lgkmcnt(0)")
    a("v_cmp_gt_u32 vcc, NSYNC_B2, v60")
    a("s_cbranch_vccnz L_a_nosh")
    a(f"s_mov_b32 s{sKIND}, 1")
    for k in range(NSH): awread(k)
    lab("L_a_nosh")
a("s_waitcnt vmcnt(0)")
a("s_mov_b32 exec_hi, 0")
st2([f"buffer_store_dword v17, v16, {sr(R_WS,4)}, s{sF1} offen@"])
a("s_mov_b64 exec, -1")
lab("L_a_ok1")
stamp(8)
if not WSH: a("s_waitcnt lgkmcnt(0)")
sum_check(56)
a("s_cbranch_scc1 L_a_bad2")
lab("L_a_ok2")
cm("output projection, last 16 heads")
poll(15, f"s{sCG}", 8)
stamp(9)
for g in range(16):
    if g % 4 == 0 and g: a(f"s_add_u32 s{sT6}, s{sT6}, 4096")
    a(f"buffer_load_dwordx4 {vr(AO+4*g,4)}, v14, {sr(R_WS,4)}, s{sT6} offen offset:{1024*(g%4)} sc1")
    if g == WG0:
        a(f"s_cmp_eq_u32 s{sKIND}, 1")
        a("s_cbranch_scc1 L_a_wd")
        lab("L_a_ww")
        a(f"ds_read_b32 v11, v{vCA} offset:{C_GH}")
        a("ds_read_b64 v[4:5], v7")
        a("s_waitcnt lgkmcnt(0)")
        a("v_cmp_gt_u32 vcc, NSYNC_B2, v11")
        a("s_cbranch_vccnz L_a_ww")
        for k in range(NSH): awread(k)
        lab("L_a_wd")
YLT = int(OPT.get("ylt", 0))
if YLT == 1: signal(vCA, vONEA, C_S)
for k in range(NSH, 16): awread(k)
a(f"ds_read_b32 v11, v10 offset:{C_HA}")
for i in range(4):
    a(f"ds_read_b128 {vr(16+4*i,4)}, v6 offset:{1024*i}")
cm("epoch update by WG0 (every workgroup has read the old value long ago)")
a(f"s_lshl2_add_u32 s{sT0}, s2, s{sWV}")
a(f"s_cmp_eq_u32 s{sT0}, 0")
a("s_cbranch_scc0 L_a_noep")
setflag(8, 9, sT0)
lab("L_a_noep")
for g in range(16):
    a(f"s_waitcnt vmcnt({15-g}) lgkmcnt({min(15, 5 + 2*(15-g))})")
    mfma32(AC, AO + 4*g, AW + 4*g, "0" if g == 0 else None)
if YLT == 2: signal(vCA, vONEA, C_S)
stamp(13)
a("s_waitcnt lgkmcnt(0)")
a("v_cmp_eq_u32 vcc, 0, v11")
a("s_cbranch_vccz L_a_hok")
lab("L_a_hw")
a(f"ds_read_b32 v11, v10 offset:{C_HA}")
for i in range(4):
    a(f"ds_read_b128 {vr(16+4*i,4)}, v6 offset:{1024*i}")
a("s_waitcnt lgkmcnt(0)")
a("v_cmp_eq_u32 vcc, 0, v11")
a("s_cbranch_vccnz L_a_hw")
lab("L_a_hok")
a("s_nop 8")
stamp(14)
for j in range(8):
    a(f"v_pk_add_f32 {vr(AC+2*j,2)}, {vr(AC+2*j,2)}, {vr(16+2*j,2)}")
    for r in (2*j, 2*j + 1):
        a(f"s_add_u32 s{sT1}, s{sT3}, {4096 * (8*(r//4) + r%4)}")
        a(f"buffer_store_dword v{AC+r}, v5, {sr(R_B,4)}, s{sT1} offen{OUTFL}")
a("s_branch L_end")

sec("P")
ROLE[0] = "H"
if STAMPS:
    a("s_mov_b32 s81, 0")
    a("s_mov_b32 s92, 0")
    a("s_mov_b32 s93, 0")
srd(R_WS, P_WS, WS_SIZE)
a("v_xor_b32 v14, v12, v13")
a("v_lshlrev_b32 v14, 4, v14")
a("v_lshl_add_u32 v14, v13, 8, v14")
a(f"v_add_u32 v8, s{sT2}, v14")
for ks in range(1, 4):
    a(f"v_xor_b32 v{8+ks}, {64*ks}, v8")
a("v_lshrrev_b32 v14, 2, v13")
a("v_lshl_add_u32 v14, v12, 3, v14")
a("v_lshlrev_b32 v14, 5, v14")
a("v_and_b32 v15, 3, v0")
a("v_lshl_add_u32 v14, v15, 3, v14")
a(f"v_add_u32 v14, s{sT4}, v14")
a(f"s_lshl_b32 s{sT0}, s{sWV}, 10")
a(f"s_add_u32 s{sT0}, s{sT0}, {L_KVP}")
a(f"v_add_u32 v15, s{sT0}, v6")
a(f"s_lshl_b32 s{sT0}, s{sRB}, 2")
a(f"s_add_u32 s{sT0}, s{sT0}, s{sGRP}")
a(f"s_lshr_b32 s{sT1}, s{sT0}, 1")
a(f"s_lshl_b32 s{sT1}, s{sT1}, 1")
a(f"s_add_u32 s{sT1}, s{sT1}, s{sKIND}")
a(f"s_lshl_b32 s{sT1}, s{sT1}, 10")
a(f"s_and_b32 s{sT2}, s{sT0}, 1")
a(f"s_add_u32 s{sT3}, s{sKIND}, 8")
a(f"s_lshl_b32 s{sT2}, s{sT2}, s{sT3}")
a(f"s_add_u32 s{sT1}, s{sT1}, s{sT2}")
a(f"s_add_u32 s{sT5}, s{sT1}, {WS_KV}")
a(f"s_lshl_b32 s{sT0}, s{sT0}, 1")
a(f"s_add_u32 s{sT0}, s{sT0}, s{sKIND}")
a(f"s_lshl_b32 s{sT0}, s{sT0}, {FSH}")
a(f"s_add_u32 s{sT6}, s{sT0}, {WS_FKV}")
a(f"s_cmp_eq_u32 s{sKIND}, 0")
a(f"s_cselect_b32 s{sT0}, 9, 3")
a(f"s_cselect_b32 s{sT1}, 3, 8")
a("v_and_b32 v34, 1, v12")
a("v_lshrrev_b32 v35, 1, v12")
a("v_lshlrev_b32 v16, 4, v13")
a(f"v_lshl_add_u32 v16, v34, s{sT0}, v16")
a(f"v_lshl_add_u32 v16, v35, s{sT1}, v16")
a(f"v_mov_b32 v{vCNT}, {L_CNT}")
a(f"v_mov_b32 v{vONE}, 1")
a("s_waitcnt lgkmcnt(0)")
a(f"s_mul_i32 s{sTAG}, s{sTAG}, 1664525")
a(f"s_add_u32 s{sTAG}, s{sTAG}, 1013904223")
if EP0:
    a(f"s_cmp_eq_u32 s{sWV}, 0")
    a("s_cbranch_scc0 L_h_notag")
a(f"v_mov_b32 v36, s{sTAG}")
a(f"ds_write_b32 v{vCNT}, v36 offset:{C_TAG}")
lab("L_h_notag")
a(f"s_cmp_eq_u32 s{sKIND}, 0")
a(f"s_waitcnt vmcnt({0 if PP_ else 4})")
stamp(1)
b = 128
for ks in range(4):
    a(f"ds_read_b128 {vr(b+8*ks,4)}, v{8+ks}")
    a(f"ds_read_b64_tr_b16 {vr(b+8*ks+4,2)}, v14 offset:{1024*ks}")
    a(f"ds_read_b64_tr_b16 {vr(b+8*ks+6,2)}, v14 offset:{1024*ks+128}")
def kvproj(kind):
    for ks in range(4):
        a(f"s_waitcnt lgkmcnt({9 - 3*ks})")
        x, w = vr(b+8*ks, 4), vr(b+8*ks+4, 4)
        if kind == 0: x, w = w, x
        a(f"v_mfma_f32_16x16x32_bf16 v[40:43], {x}, {w}, {'0' if ks == 0 else 'v[40:43]'}")
a("s_cbranch_scc0 L_h_vproj")
kvproj(0)
a("s_branch L_h_kvdone")
lab("L_h_vproj")
kvproj(1)
lab("L_h_kvdone")
a(f"s_cmp_eq_u32 s{sWV}, 0")
a("s_cbranch_scc1 L_h_pub")
a("s_nop 5")
a("ds_write_b128 v15, v[40:43]")
a("s_waitcnt lgkmcnt(0)")
a("s_barrier")
a("s_branch L_h_common")
lab("L_h_pub")
a("s_barrier")
for i in range(1, 4):
    a(f"ds_read_b128 {vr(40+4*i,4)}, v15 offset:{1024*i}")
a("s_nop 1")
a("s_waitcnt lgkmcnt(0)")
a("v_pk_add_f32 v[40:41], v[40:41], v[44:45]")
a("v_pk_add_f32 v[42:43], v[42:43], v[46:47]")
a("v_pk_add_f32 v[48:49], v[48:49], v[52:53]")
a("v_pk_add_f32 v[50:51], v[50:51], v[54:55]")
a("v_pk_add_f32 v[40:41], v[40:41], v[48:49]")
a("v_pk_add_f32 v[42:43], v[42:43], v[50:51]")
a("v_cvt_pk_bf16_f32 v40, v40, v41")
a("v_cvt_pk_bf16_f32 v41, v42, v43")
a(f"buffer_store_dwordx2 v[40:41], v16, {sr(R_WS,4)}, s{sT5} offen sc1")
dstamp("p", 5)
a("s_branch L_h_common")
sec("HQ")
lab("L_h_common")
if OPT.get("pw") == "1": pwarm()
if "3" in SX: spx("x", 0, 15)
a(f"s_mov_b32 s{sSYNC}, 0")
a("v_and_b32 v17, 31, v0")
a("v_lshrrev_b32 v18, 5, v0")
p0, p1, p2, vDSK = 60, 61, 62, 63
cm("Q projection addresses")
QXA = list(range(48, 56))
a(f"s_lshr_b32 s{sT0}, s{sWV}, 1")
a(f"s_lshl_b32 s{sT0}, s{sT0}, 13")
a("v_xor_b32 v34, v13, v18")
a("v_lshlrev_b32 v34, 4, v34")
a("v_lshl_add_u32 v34, v17, 8, v34")
a(f"v_add_u32 v{QXA[0]}, s{sT0}, v34")
for ks in range(1, 8):
    a(f"v_xor_b32 v{QXA[ks]}, {32*ks}, v{QXA[0]}")
wtr_addr(vWT, 9, L_R1, 34)
a(f"v_lshl_add_u32 v56, v18, 9, v{vWT}")
a(f"v_add_u32 v56, {(L_WQ - L_R1) & 0xffffffff}, v56")
a(f"s_and_b32 s{sT1}, s{sWV}, 1")
a(f"s_lshl_b32 s{sT1}, s{sT1}, 12")
a(f"s_lshr_b32 s{sT2}, s{sWV}, 1")
a(f"s_lshl_b32 s{sT2}, s{sT2}, 10")
a(f"s_add_u32 s{sT1}, s{sT1}, s{sT2}")
a(f"s_add_u32 s{sT1}, s{sT1}, {L_QF}")
a(f"v_add_u32 v57, s{sT1}, v6")
a(f"v_mov_b32 v58, {f32(0.25 * LOG2E)}")
a("v_mov_b32 v59, v58")
cm("SSM offsets and addresses")
a(f"s_mov_b32 s{R_A}, s{P_BX}")
a(f"s_and_b32 s{R_A+1}, s{P_BX+1}, 0xffff")
srd(R_B, P_BRE, 512 * 1024)
srd(R_C, P_BIM, 512 * 1024)
a(f"s_mov_b32 s{sLO}, {f32(L_LO)}")
a(f"s_mov_b32 s{sHI}, {f32(L_HI)}")
a(f"s_lshl_b32 s{sT0}, s{sC}, 17")
a(f"s_lshl_b32 s{sT1}, s{sWV}, 15")
a(f"s_add_u32 s{sT3}, s{sT0}, s{sT1}")
a(f"s_lshr_b32 s{sT0}, s{sWV}, 1")
a(f"s_lshl1_add_u32 s{sYG}, s{sRB}, s{sT0}")
if YM:
    a(f"s_and_b32 s{sYY}, s{sRB}, 24")
    a(f"s_add_u32 s{sYY}, s{sYY}, s{sG}")
    a(f"s_lshl1_add_u32 s{sYY}, s{sYY}, s{sT0}")
else:
    a(f"s_mov_b32 s{sYY}, s{sYG}")
a(f"s_and_b32 s{sT0}, s{sWV}, 1")
a(f"s_lshl1_add_u32 s{sCG}, s{sGY}, s{sT0}")
a(f"s_lshl_b32 s{sT4}, s{sYY}, 15")
a(f"s_lshl_b32 s{sT2}, s{sCG}, 6")
a(f"s_add_u32 s{sT4}, s{sT4}, s{sT2}")
wo_voff(vWO, 34)
a("v_lshrrev_b32 v36, 2, v0")
a("v_and_b32 v34, 3, v36")
a("v_bfe_u32 v35, v36, 2, 1")
a("v_lshl_add_u32 v34, v35, 4, v34")
a("v_lshrrev_b32 v35, 3, v36")
a("v_lshl_add_u32 v34, v35, 2, v34")
a("v_and_b32 v37, 3, v0")
a("v_lshlrev_b32 v35, 4, v37")
a("v_lshl_add_u32 v8, v34, 10, v35")
a("v_add_u32 v9, 8192, v8")
a(f"v_mul_u32_u24 v{vRB}, {RSTR}, v17")
a(f"v_lshl_add_u32 v{vRB}, v18, 4, v{vRB}")
a(f"v_add_u32 v{vRB}, {L_R1}, v{vRB}")
a(f"s_lshl_b32 s{sT1}, s{sWV}, 11")
a(f"s_add_u32 s{sT1}, s{sT1}, {L_SCR}")
a("v_xor_b32 v34, v12, v37")
a("v_lshlrev_b32 v34, 4, v34")
a("v_lshl_add_u32 v34, v36, 6, v34")
a(f"v_add_u32 v10, s{sT1}, v34")
a("v_bfe_u32 v34, v0, 2, 2")
a("v_xor_b32 v35, v34, v18")
a("v_lshlrev_b32 v35, 4, v35")
a("v_lshl_add_u32 v35, v17, 6, v35")
a(f"v_add_u32 v11, s{sT1}, v35")
a("v_xor_b32 v12, 32, v11")
a("v_lshl_add_u32 v34, v18, 3, v34")
a("v_lshlrev_b32 v34, 6, v34")
a("v_bfe_u32 v35, v0, 4, 1")
a("v_lshl_add_u32 v34, v35, 5, v34")
a("v_lshl_add_u32 v34, v37, 3, v34")
a(f"v_add_u32 v19, s{sT1}, v34")
a("v_lshlrev_b32 v34, 6, v17")
a("v_lshl_add_u32 v34, v18, 5, v34")
a(f"v_add_u32 v16, s{sT1}, v34")
a("v_lshlrev_b32 v38, 4, v18")
a("v_lshl_add_u32 v29, v17, 10, v38")
a("v_lshlrev_b32 v14, 4, v17")
a("s_waitcnt vmcnt(1)")
a(f"s_cmp_eq_u32 s{sWV}, 0")
a("s_cbranch_scc1 L_h_pw")
a("s_waitcnt vmcnt(0)")
lab("L_h_pw")
FPOS = int(OPT.get("fpos", 1))
def kvflag():
    a("s_waitcnt vmcnt(0)")
    a(f"s_cmp_eq_u32 s{sWV}, 0")
    a("s_cbranch_scc0 L_h_nopub")
    a(f"s_getreg_b32 s{sT0}, hwreg(HW_REG_XCC_ID, 0, 4)")
    a(f"s_xor_b32 s{sT0}, s{sT0}, s{sTAG}")
    a("v_mov_b32 v34, 0")
    a(f"v_mov_b32 v35, s{sT0}")
    a("s_mov_b64 exec, 1")
    a(f"buffer_store_dword v35, v34, {sr(R_WS,4)}, s{sT6} offen sc1")
    a("s_mov_b64 exec, -1")
    stamp(2)
    lab("L_h_nopub")
if PP_ == 0:
    if FPOS == 0: kvflag()
    cm("SSM parameters")
    q0, q1, q2, q3, q4 = 64, 65, 66, 67, 68
    a(f"v_lshlrev_b32 v{p0}, 16, v{p0}")
    a(f"v_lshlrev_b32 v{p1}, 16, v{p1}")
    a(f"v_lshlrev_b32 v{p2}, 16, v{p2}")
    a(f"v_mul_f32 v{p2}, {f32(LOG2E)}, v{p2}")
    a(f"v_exp_f32 v{p2}, v{p2}")
    a("s_nop 0")
    a(f"v_cvt_pk_bf16_f32 v{p2}, v{p2}, v{p2}")
    a(f"v_and_b32 v{p2}, 0xffff0000, v{p2}")
    a(f"v_mul_f32 v{q0}, v{p2}, v{p0}")
    a(f"v_mul_f32 v{q1}, v{p2}, v{p1}")
    a(f"v_mul_f32 v{q0}, {f32(LOG2E)}, v{q0}")
    a(f"v_mul_f32 v{q1}, {f32(1/(2*math.pi))}, v{q1}")
    a(f"v_exp_f32 v{q0}, v{q0}")
    a(f"v_rndne_f32 v{q2}, v{q1}")
    a(f"v_sub_f32 v{q1}, v{q1}, v{q2}")
    a(f"v_cos_f32 v{q2}, v{q1}")
    a(f"v_sin_f32 v{q3}, v{q1}")
    a(f"v_mul_f32 v{q4}, v{p0}, v{p0}")
    a(f"v_fma_f32 v{q4}, v{p1}, v{p1}, v{q4}")
    a(f"v_mul_f32 v{vL}, v{q0}, v{q2}")
    a(f"v_mul_f32 v{vL+1}, v{q0}, v{q3}")
    a(f"v_rcp_f32 v{q4}, v{q4}")
    a(f"v_add_f32 v{q2}, -1.0, v{vL}")
    a(f"v_add_f32 v{q4}, v{q4}, v{q4}")
    a(f"v_mul_f32 v{q0}, v{q2}, v{p0}")
    a(f"v_fma_f32 v{q0}, v{vL+1}, v{p1}, v{q0}")
    a(f"v_mul_f32 v{q1}, v{vL+1}, v{p0}")
    a(f"v_fma_f32 v{q1}, -v{q2}, v{p1}, v{q1}")
    a(f"v_mul_f32 v{vCO}, v{q0}, v{q4}")
    a(f"v_mul_f32 v{vCO+1}, v{q1}, v{q4}")
    cmul(70, vL, vL); cmul(72, 70, 70); cmul(vL8, 72, 72); cmul(vL16_, vL8, vL8)
    cm("skip term x*D via a diagonal B operand -> YACC")
    YACC = 112
    a("v_and_b32 v64, 1, v0")
    a("v_lshlrev_b32 v64, 4, v64")
    a(f"v_lshlrev_b32 v{vDSK}, v64, v{vDSK}")
    a("v_lshrrev_b32 v64, 1, v17")
    a("v_lshlrev_b32 v65, 2, v18")
    a("v_sub_u32 v64, v64, v65")
    for i in range(0, 8, 2):
        a(f"v_cmp_eq_u32 s[{sM}:{sM+1}], {8*(i//4) + i%4}, v64")
        a(f"v_cmp_eq_u32 vcc, {8*(i//4) + i%4 + 1}, v64")
        a("s_nop 0")
        a(f"v_cndmask_b32 v{104+i}, 0, v{vDSK}, s[{sM}:{sM+1}]")
        a(f"v_cndmask_b32 v{105+i}, 0, v{vDSK}, vcc")
    if FPOS == 1: kvflag()
    cm("per-lane powers: PS = L16^seg, M0 = L256^seg (if valid), M1 = M0*L128 (if valid)")
    vPS, vM0, vM1, vO0, vO1 = 96, 98, 100, 102, 103
    a(f"s_mov_b32 s{sM}, 0")
    a(f"s_mov_b32 s{sM+1}, -1")
    def powsel(dst, b1, b2, b4):
        a(f"v_cndmask_b32 v{dst}, 1.0, v{b1}, s[{sM}:{sM+1}]")
        a(f"v_cndmask_b32 v{dst+1}, 0, v{b1+1}, s[{sM}:{sM+1}]")
        for bit, b in ((0, b2), (1, b4)):
            L = uid("ps")
            a(f"s_bitcmp1_b32 s{sWV}, {bit}")
            a(f"s_cbranch_scc0 {L}")
            cmul(66, dst, b)
            a(f"v_mov_b64 {vr(dst,2)}, v[66:67]")
            lab(L)
    cmul(68, vL16_, vL16_); cmul(70, 68, 68); cmul(72, 70, 70)
    cmul(74, 72, 72); cmul(76, 74, 74); cmul(78, 76, 76)
    powsel(vPS, vL16_, 68, 70)
    powsel(vM0, 74, 76, 78)
    cmul(vM1, vM0, 72)
    a(f"s_lshl_b32 s{sT0}, s{sWV}, 2")
    a(f"s_sub_u32 s{sT0}, s{sC}, s{sT0}")
    a(f"s_sub_u32 s{sT0}, s{sT0}, 1")
    a("v_lshlrev_b32 v30, 1, v18")
    a(f"v_sub_u32 v{vO0}, s{sT0}, v30")
    a(f"v_add_u32 v{vO1}, -1, v{vO0}")
    a(f"v_mov_b32 v30, 0")
    for (vo, vm) in ((vO0, vM0), (vO1, vM1)):
        a(f"v_cmp_le_i32 vcc, 0, v{vo}")
        a("s_nop 1")
        a(f"v_cndmask_b32 v{vo}, v30, v{vo}, vcc")
        a(f"v_cndmask_b32 v{vm}, 0, v{vm}, vcc")
        a(f"v_cndmask_b32 v{vm+1}, 0, v{vm+1}, vcc")
        a(f"v_lshl_add_u32 v{vo}, v{vo}, 9, v14")
else:
    a("v_mov_b32 v92, v17")
    a("v_mov_b32 v93, v18")
    kvflag()
    if PP_ == 1: pld()
if FPOS == 2: kvflag()
cm("Q projection")
ACC, QD = 32, 4
XR = 128
VM, LG = Cnt(), Cnt()
xq = [(j, h) for j in range(16) for h in range(2)]
def xb1():
    j, h = xq.pop(0)
    a(f"buffer_load_dwordx4 {vr(XR+8*j+4*h,4)}, v{8+h}, {sr(R_A,4)}, s{16+j//4} offen offset:{64*(j%4)}")
    VM.issue(("x", j))
def qs(ks): return 128 + 8 * (ks % 8)
def qread(ks):
    a(f"ds_read_b64_tr_b16 {vr(qs(ks),2)}, v56 offset:{2048*ks}")
    a(f"ds_read_b64_tr_b16 {vr(qs(ks)+2,2)}, v56 offset:{2048*ks+512}")
    a(f"ds_read_b128 {vr(qs(ks)+4,4)}, v{QXA[ks % 8]} offset:{16384*(ks//8)}")
def qm(ks): mfma32(ACC, qs(ks), qs(ks) + 4, "0" if ks == 0 else None)
DR = [int(x) for x in OPT.get("drain", "").split(",") if x]
sec("Z"); sec("HQ")
if "3" in SX or OPT.get("pw") == "1": a("s_waitcnt lgkmcnt(0)")
a("s_barrier")
segs = []
k0 = 0
for k1 in DR + [32]:
    segs.append((k0, k1)); k0 = k1
for (k0, k1) in segs:
    if k0: a("s_barrier")
    for ks in range(k0, k0 + QD): qread(ks)
    for ks in range(k0, k1):
        if ks + QD < k1:
            if ks + QD in ((8, 16, 24) if B0 else (16, 24)): a("s_barrier")
            qread(ks + QD)
            a(f"s_waitcnt lgkmcnt(12)")
        else:
            a(f"s_waitcnt lgkmcnt({3*(k1-1-ks)})")
        qm(ks)
a(f"s_lshl_b32 s{sT0}, s{sWV}, 9")
a(f"s_add_u32 s{sT0}, s{sT0}, {L_ES}")
a("v_lshlrev_b32 v13, 3, v0")
a(f"v_add_u32 v13, s{sT0}, v13")
a("v_lshlrev_b32 v15, 3, v17")
a(f"v_add_u32 v15, {L_ES}, v15")
a("v_lshlrev_b32 v1, 2, v17")
a("v_lshl_add_u32 v1, v18, 14, v1")
a(f"s_lshl_b32 s{sT0}, s{sPB}, 15")
a(f"s_lshl_b32 s{sT1}, s{sWV}, 13")
a(f"s_add_u32 s{sT5}, s{sT0}, s{sT1}")
a(f"s_add_u32 s{sT6}, s{sT5}, 4096")
a(f"s_and_b32 s{sT0}, s{sRB}, 3")
a(f"s_lshl2_add_u32 s{sT1}, s{sT0}, s{sWV}")
a(f"s_lshl_b32 s{sT1}, s{sT1}, 15")
a(f"s_lshl_b32 s{sT2}, s{sG}, 7")
a(f"s_add_u32 s{sT1}, s{sT1}, s{sT2}")
a("v_lshlrev_b32 v18, 10, v17")
a(f"v_add_u32 v18, s{sT1}, v18")
if YM:
    a(f"s_lshl3_add_u32 s{sT0}, s{sGY}, s{sG}")
    a(f"s_lshl_b32 s{sT0}, s{sT0}, 13")
    a(f"s_and_b32 s{sT1}, s{sWV}, 1")
    a(f"s_lshl_b32 s{sT1}, s{sT1}, 12")
    a(f"s_add_u32 s{sT0}, s{sT0}, s{sT1}")
    a("v_lshlrev_b32 v17, 7, v17")
else:
    a(f"s_lshl2_add_u32 s{sT0}, s{sG}, s{sT0}")
    a(f"s_lshl_b32 s{sT0}, s{sT0}, 14")
    a(f"s_and_b32 s{sT1}, s{sWV}, 1")
    a(f"s_lshl_b32 s{sT1}, s{sT1}, 13")
    a(f"s_add_u32 s{sT0}, s{sT0}, s{sT1}")
    a("v_lshlrev_b32 v17, 7, v0")
a(f"v_add_u32 v17, s{sT0}, v17")
a(f"s_cmp_lt_u32 s{sWV}, 2")
a(f"s_cselect_b32 s{sPC}, s{P_CRE}, s{P_CIM}")
a(f"s_cselect_b32 s{sPC+1}, s{P_CRE+1}, s{P_CIM+1}")
a(f"s_and_b32 s{sT0}, s{sWV}, 1")
a(f"s_mul_i32 s{sT0}, s{sT0}, {32*RSTR}")
a(f"v_add_u32 v28, s{sT0}, v{vRB}")
for r in range(0, 16, 2):
    a(f"v_pk_mul_f32 {vr(ACC+r,2)}, {vr(ACC+r,2)}, v[58:59]")
for j in range(8):
    a(f"v_cvt_pk_bf16_f32 v{ACC+j}, v{ACC+2*j}, v{ACC+2*j+1}")
a(f"ds_write_b128 v57, {vr(ACC,4)}")
a(f"ds_write_b128 v57, {vr(ACC+4,4)} offset:2048")
cm("B tile: 4 k-slots of [64 rows x 256B], xor-swizzled; read addresses v112..119, dma voffset v120")
BA = 112
a("v_lshrrev_b32 v121, 4, v0")
a("v_and_b32 v122, 15, v0")
a(f"v_lshl_add_u32 v121, s{sWV}, 2, v121")
a("v_xor_b32 v123, v122, v121")
a("v_lshlrev_b32 v123, 4, v123")
a("v_lshl_add_u32 v120, v121, 10, v123")
a(f"s_lshr_b32 s{sT0}, s{sWV}, 1")
a(f"s_lshl_b32 s{sT0}, s{sT0}, 13")
a(f"s_sub_u32 s{sT0}, {L_R1}, s{sT0}")
for ks in range(8):
    a(f"v_add_u32 v{BA+ks}, s{sT0}, v{QXA[ks]}")
a(f"s_lshl_b32 s{sT5}, s{sPB}, 15")
a(f"s_lshl_b32 s{sT6}, s{sWV}, 10")
UR = OPT.get("urot", "2")
if UR == "0": a(f"s_mov_b32 s{sT0}, 0")
elif UR == "1": a(f"s_add_u32 s{sT0}, s{sC}, s{sPB}")
elif UR == "2": a(f"s_lshr_b32 s{sT0}, s2, 1")
elif UR == "3": a(f"s_mov_b32 s{sT0}, s2")
for sl in range(4):
    a(f"s_add_u32 s{sT1}, s{sT0}, {sl}")
    a(f"s_and_b32 s{sT1}, s{sT1}, 3")
    a(f"s_lshl_b32 s{sT1}, s{sT1}, 8")
    a(f"s_add_u32 s{16+sl}, s{sT3}, s{sT1}")
    a(f"s_add_u32 s{20+sl}, s{sT5}, s{sT1}")
a("s_waitcnt lgkmcnt(0)")
stamp(3)
a("s_barrier")
a("s_branch L_h2")
sec("H")
lab("L_h2")
a("s_setprio 2")
def rows_dma(tag, base=sT5, ore=0, oim=0):
    a(f"s_mul_i32 s{sT1}, s{sWV}, {8*RSTR}")
    for i in range(8):
        a(f"s_add_u32 m0, s{sT1}, {L_R1 + RSTR*i}")
        a(f"s_add_u32 s{sT2}, s{base}, {1024*i + ore}")
        dma(vL4, R_B, f"s{sT2}")
        a(f"s_add_u32 m0, s{sT1}, {L_R1 + RSTR*(32+i)}")
        a(f"s_add_u32 s{sT2}, s{base}, {1024*i + oim}")
        dma(vL4, R_C, f"s{sT2}")
    VM.issue(tag, 16)
def xw(j, h):
    if h == 0: waits(vm=VM.need(("x", j)))
    a(f"ds_write_b128 v10, {vr(XR+8*j+4*h,4)}" + (" offset:1024" if h else ""))
    LG.issue(("xw", j))
def xr(j):
    a(f"ds_read_b128 {vr(XR+8*j,4)}, v11")
    a(f"ds_read_b128 {vr(XR+8*j+4,4)}, v12")
    LG.issue(("x", j), 2)
if "4" in SX:
    spx("x", 15, 17); spx("r", 14, 2); spx("i", 14, 2)
if "5" in SX:
    spx("r", 0, 16); spx("i", 0, 16)
if "6" in SX:
    spx("x", 0, 32); spx("r", 14, 2); spx("i", 14, 2)
if "a" in SU: spf([(P_BRE, 4, 0, 4), (P_BIM, 4, 0, 4), (P_BX, 16, 14, 2)])
if "b" in SU: spf([(P_BX, 16, 6, 10)])
if "c" in SU: spf([(P_BRE, 4, 0, 4), (P_BIM, 4, 0, 4), (P_BX, 16, 0, 16)])
if "d" in SU: spf([(P_CRE, 4, 0, 4), (P_CIM, 4, 0, 4), (P_WO, 4, 0, 4)])
def parlate():
    global YACC, vPS, vM0, vM1, vO0, vO1
    if PP_ < 4: a("s_waitcnt vmcnt(0)")
    cm("SSM parameters")
    q0, q1, q2, q3, q4 = 64, 65, 66, 67, 68
    a(f"v_lshlrev_b32 v{p0}, 16, v{p0}")
    a(f"v_lshlrev_b32 v{p1}, 16, v{p1}")
    a(f"v_lshlrev_b32 v{p2}, 16, v{p2}")
    a(f"v_mul_f32 v{p2}, {f32(LOG2E)}, v{p2}")
    a(f"v_exp_f32 v{p2}, v{p2}")
    a("s_nop 0")
    a(f"v_cvt_pk_bf16_f32 v{p2}, v{p2}, v{p2}")
    a(f"v_and_b32 v{p2}, 0xffff0000, v{p2}")
    a(f"v_mul_f32 v{q0}, v{p2}, v{p0}")
    a(f"v_mul_f32 v{q1}, v{p2}, v{p1}")
    a(f"v_mul_f32 v{q0}, {f32(LOG2E)}, v{q0}")
    a(f"v_mul_f32 v{q1}, {f32(1/(2*math.pi))}, v{q1}")
    a(f"v_exp_f32 v{q0}, v{q0}")
    a(f"v_rndne_f32 v{q2}, v{q1}")
    a(f"v_sub_f32 v{q1}, v{q1}, v{q2}")
    a(f"v_cos_f32 v{q2}, v{q1}")
    a(f"v_sin_f32 v{q3}, v{q1}")
    a(f"v_mul_f32 v{q4}, v{p0}, v{p0}")
    a(f"v_fma_f32 v{q4}, v{p1}, v{p1}, v{q4}")
    a(f"v_mul_f32 v{vL}, v{q0}, v{q2}")
    a(f"v_mul_f32 v{vL+1}, v{q0}, v{q3}")
    a(f"v_rcp_f32 v{q4}, v{q4}")
    a(f"v_add_f32 v{q2}, -1.0, v{vL}")
    a(f"v_add_f32 v{q4}, v{q4}, v{q4}")
    a(f"v_mul_f32 v{q0}, v{q2}, v{p0}")
    a(f"v_fma_f32 v{q0}, v{vL+1}, v{p1}, v{q0}")
    a(f"v_mul_f32 v{q1}, v{vL+1}, v{p0}")
    a(f"v_fma_f32 v{q1}, -v{q2}, v{p1}, v{q1}")
    a(f"v_mul_f32 v{vCO}, v{q0}, v{q4}")
    a(f"v_mul_f32 v{vCO+1}, v{q1}, v{q4}")
    cmul(70, vL, vL); cmul(72, 70, 70); cmul(vL8, 72, 72); cmul(vL16_, vL8, vL8)
    cm("skip term x*D via a diagonal B operand -> YACC")
    YACC = 112
    a("v_and_b32 v64, 1, v0")
    a("v_lshlrev_b32 v64, 4, v64")
    a(f"v_lshlrev_b32 v{vDSK}, v64, v{vDSK}")
    a("v_lshrrev_b32 v64, 1, v92")
    a("v_lshlrev_b32 v65, 2, v93")
    a("v_sub_u32 v64, v64, v65")
    for i in range(0, 8, 2):
        a(f"v_cmp_eq_u32 s[{sM}:{sM+1}], {8*(i//4) + i%4}, v64")
        a(f"v_cmp_eq_u32 vcc, {8*(i//4) + i%4 + 1}, v64")
        a("s_nop 0")
        a(f"v_cndmask_b32 v{104+i}, 0, v{vDSK}, s[{sM}:{sM+1}]")
        a(f"v_cndmask_b32 v{105+i}, 0, v{vDSK}, vcc")
    cm("per-lane powers: PS = L16^seg, M0 = L256^seg (if valid), M1 = M0*L128 (if valid)")
    vPS, vM0, vM1, vO0, vO1 = 96, 98, 100, 102, 103
    a(f"s_mov_b32 s{sM}, 0")
    a(f"s_mov_b32 s{sM+1}, -1")
    def powsel(dst, b1, b2, b4):
        a(f"v_cndmask_b32 v{dst}, 1.0, v{b1}, s[{sM}:{sM+1}]")
        a(f"v_cndmask_b32 v{dst+1}, 0, v{b1+1}, s[{sM}:{sM+1}]")
        for bit, b in ((0, b2), (1, b4)):
            L = uid("ps")
            a(f"s_bitcmp1_b32 s{sWV}, {bit}")
            a(f"s_cbranch_scc0 {L}")
            cmul(66, dst, b)
            a(f"v_mov_b64 {vr(dst,2)}, v[66:67]")
            lab(L)
    cmul(68, vL16_, vL16_); cmul(70, 68, 68); cmul(72, 70, 70)
    cmul(74, 72, 72); cmul(76, 74, 74); cmul(78, 76, 76)
    powsel(vPS, vL16_, 68, 70)
    powsel(vM0, 74, 76, 78)
    cmul(vM1, vM0, 72)
    a(f"s_lshl_b32 s{sT0}, s{sWV}, 2")
    a(f"s_sub_u32 s{sT0}, s{sC}, s{sT0}")
    a(f"s_sub_u32 s{sT0}, s{sT0}, 1")
    a("v_lshlrev_b32 v30, 1, v93")
    a(f"v_sub_u32 v{vO0}, s{sT0}, v30")
    a(f"v_add_u32 v{vO1}, -1, v{vO0}")
    a(f"v_mov_b32 v30, 0")
    for (vo, vm) in ((vO0, vM0), (vO1, vM1)):
        a(f"v_cmp_le_i32 vcc, 0, v{vo}")
        a("s_nop 1")
        a(f"v_cndmask_b32 v{vo}, v30, v{vo}, vcc")
        a(f"v_cndmask_b32 v{vm}, 0, v{vm}, vcc")
        a(f"v_cndmask_b32 v{vm+1}, 0, v{vm+1}, vcc")
        a(f"v_lshl_add_u32 v{vo}, v{vo}, 9, v14")
if PP_ == 2: pld()
if PP_ in (1, 2): parlate()
waitc(vCNT, C_A4, 4, 30, sleep=int(OPT.get("a4sl", 0)))
if PP_ == 3: pld(); parlate()
if PP_ == 4: pld(); VM.issue("par", 4)
a(f"ds_read_b32 v122, v{vCNT} offset:{C_MODE}")
if EP0: a(f"ds_read_b32 v121, v{vCNT} offset:{C_TAG}")
a("s_setprio 0")
cm("U = x B^T")
XL = int(OPT.get("xl", 2))
def bdma(sl, m):
    a(f"s_add_u32 m0, s{sT6}, {L_R1 + 16384*sl + 4096*m}")
    a(f"s_add_u32 s{sT2}, s{20+sl}, {16384*(m%2)}")
    dma(120, R_B if m < 2 else R_C, f"s{sT2}")
    if sl == 0 and OPT.get("bp") == "1": pace()
    VM.issue(("B", sl))
lq = []
for it in OPT.get("uord", "B0,0,1,2,3,B1,4,5,6,7,B2,8,9,10,11,B3,12,13,14,15").split(","):
    lq += [("B", int(it[1]), m) for m in range(4)] if it[0] == "B" else [("x",), ("x",)]
if OPT.get("mix", "1") == "1":
    for sl in range(1, 4):
        i = lq.index(("B", sl, 0))
        xs, bs_ = lq[i-4:i], lq[i:i+4]
        lq[i-4:i+4] = [y for p in zip(xs, bs_) for y in p]
def ld1(n=1):
    for _ in range(n):
        if not lq: return
        it = lq.pop(0)
        if it[0] == "B": bdma(it[1], it[2])
        else: xb1()
CB = [C_H0, C_H1, C_H2, C_H3]
sigd = set()
def bsig(force=None):
    for sl in range(4):
        issued = not any(it[:2] == ("B", sl) for it in lq)
        if sl in sigd or not issued: continue
        if sl == force: waits(vm=VM.need(("B", sl)))
        if ("B", sl) not in VM.q:
            signal(vCNT, vONE, CB[sl]); LG.issue("sig"); sigd.add(sl)
ld1(int(OPT.get("u0", 12)))
if PP_ == 5: pld(); VM.issue("par", 4)
if PP_ == 4:
    waits(vm=VM.need("par"))
    a("s_setprio 2")
    parlate()
    a("s_setprio 0")
bsig(0)
ld1(int(OPT.get("u1", 4)))
for j in range(XL): xw(j, 0); xw(j, 1); xr(j)
a("s_setprio 2")
a(f"v_readfirstlane_b32 s{sMODE}, v30") if False else None
waitc(vCNT, CB[0], 4, 31)
a(f"v_readfirstlane_b32 s{sMODE}, v122")
if EP0: a(f"v_readfirstlane_b32 s{sTAG}, v121")
LG.q = []
stamp(4)
UPRIO = int(OPT.get("uprio", 0)); YPRIO = int(OPT.get("yprio", 0))
a(f"s_setprio {UPRIO}")
AR, AI, BR = 32, 48, 64
def bread(k):
    s = BR + 8 * (k % 4)
    a(f"ds_read_b128 {vr(s,4)}, v{BA + k % 8} offset:{16384*(k//8)}")
    a(f"ds_read_b128 {vr(s+4,4)}, v{BA + k % 8} offset:{16384*(k//8) + 8192}")
    LG.issue(("b", k), 2)
WOL = int(OPT.get("wol", 0))
PF = [(17, sPC)] + ([] if WOL else [(18, P_WO)])
PFK = int(OPT.get("pfk", 19))
PTK = int(OPT.get("ptk", 27))
CPOS = 0
for k in range(3): bread(k)
for k in range(32):
    j = k // 2; jn = j + XL
    tr = jn < 16
    n1 = LG.need(("x", j)); n2 = LG.need(("b", k))
    waits(lg=n2 if n2 is not None else n1)
    s = BR + 8 * (k % 4)
    first = "0" if k == 0 else None
    mfma32(AR, XR + 4*k, s, first)
    if k % 8 == 2 and k < 24: bsig(k // 8 + 1)
    if k % 8 == 4 and k < 24:
        a(f"ds_read_b32 v31, v{vCNT} offset:{CB[k//8+1]}"); LG.issue("cb")
    if k % 8 == 5 and k < 24:
        waits(lg=LG.need("cb"))
        a("s_setprio 2")
        a("v_cmp_gt_u32 vcc, 4, v31")
        Lk = uid("bk")
        a(f"s_cbranch_vccz {Lk}")
        waitc(vCNT, CB[k//8+1], 4, 31)
        lab(Lk)
        a(f"s_setprio {UPRIO}")
    if k + 3 < 32: bread(k + 3)
    ld1(int(OPT.get("lpk", 1)))
    if PF and k >= PFK and k % 2 == 1:
        v, p = PF.pop(0)
        a(f"global_load_dword v{136+len(PF)}, v{v}, s[{p}:{p+1}]"); VM.issue("pf")
    if k == PTK:
        cm("local mode: make the lines this wave / its attention partner will hand over valid in L2")
        a(f"s_cmp_eq_u32 s{sMODE}, 1")
        a("s_cbranch_scc0 L_h_nopt")
        def touch(soff, n):
            for i in range(n):
                a(f"buffer_load_dwordx4 v[144:147], v{vL4}, {sr(R_WS,4)}, s{soff} offen offset:{1024*i} sc1")
        def touchf(soff):
            a("s_mov_b64 exec, 0xff")
            touch(soff, 1)
            a("s_mov_b64 exec, -1")
        if "h" in LOC:
            a(f"s_lshl2_add_u32 s{sT0}, s{sC}, s{sWV}")
            a(f"s_lshl_b32 s{sT1}, s{sT0}, 5")
            a(f"s_add_u32 s{sT1}, s{sT1}, s{sPB}")
            a(f"s_lshl_b32 s{sT1}, s{sT1}, 11")
            a(f"s_add_u32 s{sT1}, s{sT1}, {WS_H}")
            touch(sT1, 2)
            a(f"s_add_u32 s{sT1}, s{sT1}, 32768")
            touch(sT1, 2)
            a(f"s_lshl4_add_u32 s{sT0}, s{sT0}, s{sPB}")
            a(f"s_lshl_b32 s{sT0}, s{sT0}, 7")
            a(f"s_add_u32 s{sT0}, s{sT0}, {WS_FH}")
            touchf(sT0)
        for kind, off in (("o", 0), ("t", 4)):
            if kind in LOC:
                a(f"s_add_u32 s{sSTEP}, s{sWV}, {off}")
                o_offsets()
                touch(sT1, 1); touchf(sT0)
        lab("L_h_nopt")
    if k == 28:
        a(f"buffer_load_dwordx4 v[128:131], v29, {sr(R_A,4)}, s{sT4} offen")
        a(f"buffer_load_dwordx4 v[132:135], v29, {sr(R_A,4)}, s{sT4} offen offset:32")
        VM.issue("skip", 2)
    mfma32(AI, XR + 4*k, s + 4, first)
    ld1()
    if tr:
        assert not any(q[0] == jn for q in xq)
        xw(jn, k % 2)
        if k % 2: xr(jn)
    bsig()
assert len(sigd) == 4 and not lq
assert not PF
a("s_setprio 2")
srd(R_B, P_CRE, 512 * 1024)
srd(R_C, P_CIM, 512 * 1024)
srd(R_A, P_WO, 512 * 1024)
if CPOS:
    a(f"s_add_u32 s{sSYNC}, s{sSYNC}, 4")
    signal(vCNT, vONE, C_GH)
a(f"s_lshl_b32 s{sT3}, s{sGY}, 16")
a(f"s_lshl_b32 s{sT1}, s{sWV}, 13")
a(f"s_add_u32 s{sT3}, s{sT3}, s{sT1}")
a(f"s_mul_i32 s{sT1}, s{sWV}, {8*RSTR}")
def row1(n, base, ore, oim):
    i, part = n // 2, n % 2
    a(f"s_add_u32 m0, s{sT1}, {L_R1 + RSTR*(32*part+i)}")
    a(f"s_add_u32 s{sT2}, s{base}, {1024*i + (oim if part else ore)}")
    dma(vL4, R_C if part else R_B, f"s{sT2}")
def rowloop(part, goff):
    L = uid("rl")
    a(f"s_mov_b32 s{sKIND}, 0")
    lab(L)
    a(f"s_mul_i32 s{sT2}, s{sKIND}, {RSTR}")
    a(f"s_add_u32 s{sT2}, s{sT2}, s{sT1}")
    a(f"s_add_u32 m0, s{sT2}, {L_R1 + RSTR*32*part}")
    a(f"s_lshl_b32 s{sT2}, s{sKIND}, 10")
    a(f"s_add_u32 s{sT2}, s{sT2}, s{sT3}")
    if goff: a(f"s_add_u32 s{sT2}, s{sT2}, {goff}")
    dma(vL4, R_C if part else R_B, f"s{sT2}")
    if RLV >= 0: a(f"s_waitcnt vmcnt({RLV})")
    a(f"s_add_u32 s{sKIND}, s{sKIND}, 1")
    a(f"s_cmp_lt_u32 s{sKIND}, 8")
    a(f"s_cbranch_scc1 {L}")
RLV = int(OPT.get("rlv", -1))
RL = int(OPT.get("rl", 1))
CS_ = int(OPT.get("cst", 0))
def cld(n, dst, ore, oim):
    i, part = n // 2, n % 2
    a(f"s_add_u32 s{sT2}, s{sT3}, {1024*i + (oim if part else ore)}")
    a(f"buffer_load_dwordx4 {vr(dst,4)}, v{vL4}, {sr(R_C if part else R_B,4)}, s{sT2} offen")
def cwr(n, src):
    i, part = n // 2, n % 2
    a(f"ds_write_b128 v29, {vr(src,4)} offset:{RSTR*(32*part+i)}")
if CS_:
    a(f"s_add_u32 s{sT2}, s{sT1}, {L_R1}")
    a(f"v_add_u32 v29, s{sT2}, v{vL4}")
if PP_ == 5: parlate()
stamp(5)
cm("scale by coef into pair layout, local scan")
UP = 64
G0, G1 = 30, 8
def sc1(r): a(f"v_pk_mul_f32 {vr(UP+2*r,2)}, {vr(vCO,2)}, {vr(AR+(r&~1),2)} op_sel:[0,{r&1}] op_sel_hi:[1,{r&1}]")
def sc2(r): a(f"v_pk_fma_f32 {vr(UP+2*r,2)}, {vr(vCO,2)}, {vr(AI+(r&~1),2)}, {vr(UP+2*r,2)} op_sel:[1,{r&1},0] op_sel_hi:[0,{r&1},1] neg_lo:[1,0,0]")
def c1(dst, L, g, u): a(f"v_pk_fma_f32 {vr(dst,2)}, {vr(L,2)}, {vr(g,2)}, {vr(u,2)} op_sel:[0,0,0] op_sel_hi:[0,1,1]")
def c2(dst, L, g): a(f"v_pk_fma_f32 {vr(dst,2)}, {vr(L,2)}, {vr(g,2)}, {vr(dst,2)} op_sel:[1,1,0] op_sel_hi:[1,0,1] neg_lo:[1,0,0]")
sc1(0); sc1(1); sc1(2); sc2(0); sc2(1); sc2(2)
src = UP
CLP = int(OPT.get("clp", 1))
for r in range(1, 16):
    dst = G0 if r % 2 else G1
    if r == 8 and CPOS: waitc(vCNT, C_GH, f"s{sSYNC}", 8)
    c1(dst, vL, src, UP + 2*r)
    if r < 14: sc1(r + 2)
    if r >= 8 and CPOS: row1(2*(r-8), sT3, 32768, 0)
    c2(dst, vL, src)
    if CS_ & 1 and CLP == 0:
        cld(r, 160 + 4*r, 32768, 0)
        if r == 1: cld(0, 160, 32768, 0)
    if r < 14: sc2(r + 2)
    if r >= 8 and CPOS: row1(2*(r-8) + 1, sT3, 32768, 0)
    src = dst
a(f"ds_write_b64 v13, {vr(G0,2)}")
gsync(vCNT, vONE, 32, C_GH)
stamp(6)
ESR = 32
for s in range(8):
    a(f"ds_read_b64 {vr(ESR+2*s,2)}, v15 offset:{256*s}")
a(f"s_lshl_b32 s{sT6}, s{sPB}, 13")
a(f"s_add_u32 s{sT6}, s{sT6}, {WS_ST}")
a(f"s_lshl_b32 s{sT0}, s{sC}, 9")
a(f"s_add_u32 s{sT0}, s{sT0}, s{sT6}")
a(f"v_mov_b64 {vr(G0,2)}, 0")
a(f"s_mov_b32 s{sCNT}, {POLL_LIMIT}")
a("s_waitcnt lgkmcnt(0)")
a(f"v_mov_b64 {vr(G1,2)}, {vr(ESR,2)}")
for w in range(4):
    if w: cmul_add(G1, vL16_, G0, ESR + 4*w)
    if w < 3:
        a(f"s_cmp_eq_u32 s{sWV}, {w}")
        a("s_cbranch_scc1 L_h_segdone")
        cmul_add(G0, vL16_, G1, ESR + 4*w + 2)
cmul_add(48, vL16_, G1, ESR + 14)
a(f"v_mov_b32 v50, v49")
a(f"v_mov_b32 v49, s{sTAG}")
a(f"v_mov_b32 v51, s{sTAG}")
a("s_mov_b32 exec_hi, 0")
a(f"buffer_store_dwordx4 v[48:51], v14, {sr(R_WS,4)}, s{sT0} offen sc1")
a("s_mov_b64 exec, -1")
lab("L_h_segdone")
a(f"s_mov_b32 s{sM}, 0")
a(f"s_mov_b32 s{sM+1}, -1")
a(f"v_cndmask_b32 v{G0}, v{G0}, v{G1}, s[{sM}:{sM+1}]")
a(f"v_cndmask_b32 v{G0+1}, v{G0+1}, v{G1+1}, s[{sM}:{sM+1}]")
if not CPOS:
    if CS_ & 1:
        a("s_setprio 0")
        if CLP == 1:
            for n in range(16): cld(n, 160 + 4*n, 32768, 0)
        for n in range(16):
            if n % 2 == 0: a(f"s_waitcnt vmcnt({14 - n})")
            cwr(n, 160 + 4*n)
        a("s_setprio 2")
    elif RL:
        rowloop(0, 32768); rowloop(1, 0)
    else:
        for n in range(16): row1(n, sT3, 32768, 0); pace()
stamp(7)
cm("chunk carry: each lane gathers two predecessors' end states")
a(f"v_mov_b64 {vr(G1,2)}, 0")
a(f"s_cmp_eq_u32 s{sC}, 0")
a("s_cbranch_scc1 L_h_stskip")
lab("L_h_stpoll")
a(f"buffer_load_dwordx4 v[52:55], v{vO0}, {sr(R_WS,4)}, s{sT6} offen sc1")
a(f"buffer_load_dwordx4 v[56:59], v{vO1}, {sr(R_WS,4)}, s{sT6} offen sc1")
a("s_waitcnt vmcnt(0)")
a(f"v_cmp_ne_u32 vcc, s{sTAG}, v53")
a(f"v_cmp_ne_u32 s[{sM}:{sM+1}], s{sTAG}, v55")
a(f"s_or_b64 s[{sM}:{sM+1}], s[{sM}:{sM+1}], vcc")
a(f"v_cmp_ne_u32 vcc, s{sTAG}, v57")
a(f"s_or_b64 s[{sM}:{sM+1}], s[{sM}:{sM+1}], vcc")
a(f"v_cmp_ne_u32 vcc, s{sTAG}, v59")
a(f"s_or_b64 s[{sM}:{sM+1}], s[{sM}:{sM+1}], vcc")
a("s_cbranch_scc0 L_h_stok")
a(f"s_sub_u32 s{sCNT}, s{sCNT}, 1")
a("s_cbranch_scc0 L_h_stpoll")
lab("L_h_stok")
a(f"v_pk_mul_f32 {vr(G1,2)}, {vr(vM0,2)}, v[52:53] op_sel:[0,0] op_sel_hi:[1,0]")
a(f"v_pk_mul_f32 v[60:61], {vr(vM1,2)}, v[56:57] op_sel:[0,0] op_sel_hi:[1,0]")
a(f"v_pk_fma_f32 {vr(G1,2)}, {vr(vM0,2)}, v[54:55], {vr(G1,2)} op_sel:[1,0,0] op_sel_hi:[0,0,1] neg_lo:[1,0,0]")
a(f"v_pk_fma_f32 v[60:61], {vr(vM1,2)}, v[58:59], v[60:61] op_sel:[1,0,0] op_sel_hi:[0,0,1] neg_lo:[1,0,0]")
a(f"v_pk_add_f32 {vr(G1,2)}, {vr(G1,2)}, v[60:61]")
lab("L_h_stskip")
a(f"ds_write_b64 v13, {vr(G1,2)} offset:{L_CS - L_ES}")
a("s_waitcnt vmcnt(0)")
mfma32(YACC, 128, 104, "0")
mfma32(YACC, 132, 108)
if WOL == 1: a(f"global_load_dword v10, v18, s[{P_WO}:{P_WO+1}]")
gsync(vCNT, vONE, 32, C_GH)
for s in range(8):
    a(f"ds_read_b64 {vr(32+2*s,2)}, v15 offset:{L_CS - L_ES + 256*s}")
a(f"s_lshl_b32 s{sT0}, s{sC}, 2")
a(f"s_add_u32 s{sT0}, s{sT0}, s{sWV}")
a(f"s_lshl_b32 s{sT4}, s{sT0}, 16")
a(f"s_add_u32 s{sT4}, s{sT4}, {WS_H}")
a(f"s_lshl_b32 s{sT1}, s{sPB}, 11")
a(f"s_add_u32 s{sT1}, s{sT1}, s{sT4}")
a(f"s_add_u32 s{sT2}, s{sT1}, 32768")
a(f"s_lshl_b32 s{sT0}, s{sT0}, 11")
a(f"s_add_u32 s{sT5}, s{sT0}, {WS_FH}")
a(f"s_lshl_b32 s{sT0}, s{sPB}, 7")
a(f"s_add_u32 s{sF1}, s{sT0}, s{sT5}")
a("s_waitcnt lgkmcnt(0)")
stamp(8)
for st in (8, 4, 2):
    for j in range(0, st, 2):
        a(f"v_pk_add_f32 {vr(32+j,2)}, {vr(32+j,2)}, {vr(32+j+st,2)}")
cmul_add(G0, vPS, 32, G0)
HB = 32
cmul_add(UP, vL, G0, UP)
for r in range(1, 16):
    cmul_add(UP + 2*r, vL, UP + 2*(r-1), UP + 2*r)
for part in range(2):
    ng = "-" if part else ""
    for j in range(8):
        a(f"v_cvt_pk_bf16_f32 v{HB+8*part+j}, {ng}v{UP+4*j+part}, {ng}v{UP+4*j+2+part}")
    a(f"ds_write_b128 v16, {vr(HB+8*part,4)}")
    a(f"ds_write_b128 v16, {vr(HB+4+8*part,4)} offset:16")
    for ks in range(2):
        d = 48 + 8*part + 4*ks
        a(f"ds_read_b64_tr_b16 {vr(d,2)}, v19 offset:{1024*ks}")
        a(f"ds_read_b64_tr_b16 {vr(d+2,2)}, v19 offset:{1024*ks+256}")
KIND[0] = "h"
a(f"v_lshlrev_b32 v24, 2, v0")
a(f"v_mov_b32 v25, s{sTAG}")
def flag_novalu(soff):
    a("s_mov_b32 exec_hi, 0")
    st2([f"buffer_store_dword v25, v24, {sr(R_WS,4)}, s{soff} offen@"])
    a("s_mov_b64 exec, -1")
a("s_waitcnt lgkmcnt(0)")
st2([f"buffer_store_dwordx4 {vr(48+8*part+4*ks,4)}, v{vL4}, {sr(R_WS,4)}, s{sT1 if part == 0 else sT2} offen offset:{1024*ks}@" for part in range(2) for ks in range(2)])
a("v_and_b32 v8, 15, v0")
a("v_lshlrev_b32 v12, 7, v8")
CF = 128
LB = int(OPT.get("lb", 1))
if LB: a("s_setprio 0")
for k in range(32):
    a(f"ds_read_b128 {vr(CF+4*k,4)}, v28 offset:{32*k}")
    if k == 13:
        a("s_waitcnt vmcnt(0)")
        flag_novalu(sF1)
a(f"s_add_u32 s{sSYNC}, s{sSYNC}, 4")
signal(vCNT, vONE, C_GH)
if LB: a("s_setprio 2")
stamp(9)
def reduce_inline(RB_, b1=None, bs=None):
    b1 = RB_ + 16 if b1 is None else b1
    bs = RB_ + 32 if bs is None else bs
    Ls, Le = uid("rs"), uid("re")
    a(f"s_mul_i32 s{sT2}, s{sSTEP}, {PSTRIDE}")
    a(f"v_add_u32 v10, s{sT2}, v{vL4}")
    a(f"s_add_u32 s{sT2}, s{sT2}, {L_PART + 8192}")
    o_offsets()
    waitc(11, 0, f"s{sT2}", 8)
    a(f"ds_read_b128 {vr(bs,4)}, v10 offset:8192")
    for w in range(4):
        d = (RB_ if w < 2 else b1) + 8*(w % 2)
        a(f"ds_read_b128 {vr(d,4)}, v10 offset:{2048*w}")
        a(f"ds_read_b128 {vr(d+4,4)}, v10 offset:{2048*w + 1024}")
    a("s_waitcnt lgkmcnt(8)")
    sum_check(bs)
    a("s_waitcnt lgkmcnt(0)")
    a(f"s_cbranch_scc1 {Ls}")
    reduce_math(RB_, vL4, flag=False, b1=b1, bs=bs)
    a(f"s_branch {Le}")
    lab(Ls)
    a(f"s_mov_b32 s{sT0}, {WS_DUMMY}")
    lab(Le)
RIL = int(OPT.get("ril", 1))
a("v_and_b32 v11, 12, v24")
a(f"v_add_u32 v11, {L_PROG}, v11")
if not RIL:
    waitc(vCNT, C_GH, f"s{sSYNC}", 8)
    a(f"s_mul_i32 s{sT1}, s{sWV}, {8*RSTR}")
    for n in range(16): row1(n, sT3, 0, 32768); pace()
else:
    cm("second half of C; the reduction of q-tile wv fills the gaps between the transfers")
    a(f"s_mov_b32 s{sSTEP}, s{sWV}")
    o_offsets()
    a(f"s_mov_b32 s{sF1}, s{sT0}")
    a(f"s_mov_b32 s{sF2}, s{sT1}")
    a(f"s_mul_i32 s{sT2}, s{sWV}, {PSTRIDE}")
    a(f"v_add_u32 v10, s{sT2}, v{vL4}")
    a(f"s_add_u32 s{sT0}, s{sT2}, {L_PART + 8192}")
    a(f"s_mul_i32 s{sT1}, s{sWV}, {8*RSTR}")
    if CS_ & 2:
        for n in range(12): cld(n, 48 + 4*n, 0, 32768)
    else:
        waitc(vCNT, C_GH, f"s{sSYNC}", 8)
        row1(0, sT3, 0, 32768)
    waitc(11, 0, f"s{sT0}", 8)
    if not CS_ & 2: row1(2 if RL else 1, sT3, 0, 32768)
    a("ds_read_b128 v[20:23], v10 offset:8192")
    for w in range(4):
        d = (32 if w < 2 else 96) + 8*(w % 2)
        a(f"ds_read_b128 {vr(d,4)}, v10 offset:{2048*w}")
        a(f"ds_read_b128 {vr(d+4,4)}, v10 offset:{2048*w + 1024}")
    if not CS_ & 2: row1(4 if RL else 2, sT3, 0, 32768)
    a("s_waitcnt lgkmcnt(8)")
    sum_check(20)
    a(f"s_cselect_b32 s{sF1}, {WS_DUMMY}, s{sF1}")
    a(f"s_cselect_b32 s{sF2}, {WS_DUMMY + 1024}, s{sF2}")
    a("v_rcp_f32 v22, v20")
    a("s_waitcnt lgkmcnt(0)")
    ops = [f"v_pk_add_f32 {vr(32+2*j,2)}, {vr(32+2*j,2)}, {vr(40+2*j,2)}" for j in range(4)]
    ops += [f"v_pk_add_f32 {vr(96+2*j,2)}, {vr(96+2*j,2)}, {vr(104+2*j,2)}" for j in range(4)]
    ops += [f"v_pk_add_f32 {vr(32+2*j,2)}, {vr(32+2*j,2)}, {vr(96+2*j,2)}" for j in range(4)]
    ops += [f"v_pk_mul_f32 {vr(32+2*j,2)}, {vr(32+2*j,2)}, v[22:23] op_sel_hi:[1,0]" for j in range(4)]
    ops += [f"v_cvt_pk_bf16_f32 v{40+j}, v{32+2*j}, v{33+2*j}" for j in range(4)]
    if CS_ & 2:
        waitc(vCNT, C_GH, f"s{sSYNC}", 8)
        for n in range(12):
            a(f"s_waitcnt vmcnt({11 - n if n < 4 else 15 - n if n < 5 else 16 - n})")
            cwr(n, 48 + 4*n)
            if n < 4:
                for _ in range(5): a(ops.pop(0))
            if n == 3:
                for m in range(12, 16): cld(m, 96 + 4*(m-12), 0, 32768)
            if n == 4:
                KIND[0] = "o"
                st2([f"buffer_store_dwordx4 v[40:43], v{vL4}, {sr(R_WS,4)}, s{sF2} offen@"])
        for n in range(12, 16):
            a(f"s_waitcnt vmcnt({16 - n})")
            cwr(n, 96 + 4*(n-12))
    for n in ([] if CS_ & 2 else range(6, 16, 2) if RL else range(3, 16)):
        row1(n, sT3, 0, 32768)
        if ops:
            for _ in range(5): a(ops.pop(0))
            if not ops:
                KIND[0] = "o"
                st2([f"buffer_store_dwordx4 v[40:43], v{vL4}, {sr(R_WS,4)}, s{sF2} offen@"])
        elif n < 15 and not RL: pace()
    if RL and not CS_ & 2: rowloop(1, 32768)
PACE = int(OPT.get('pace3', PACE))
a(f"v_add_u32 v13, {(L_PART - L_R1) & 0xffffffff}, v{vWT}")
a(f"s_lshl_b32 s{sT5}, s{sYY}, 11")
a(f"s_add_u32 s{sT5}, s{sT5}, {WS_FH}")
a(f"s_lshl_b32 s{sT4}, s{sYY}, 16")
a(f"s_and_b32 s{sT1}, s{sWV}, 1")
a(f"s_lshl_b32 s{sT1}, s{sT1}, 15")
a(f"s_add_u32 s{sT4}, s{sT4}, s{sT1}")
a(f"s_add_u32 s{sT4}, s{sT4}, {WS_H}")
stamp(10)
poll(12, f"s{sT5}", 8)
if RIL:
    a(f"s_add_u32 s{sSYNC}, s{sSYNC}, 4")
    signal(vCNT, vONE, C_GH)
    flag_novalu(sF1)
stamp(11)
HR, CR, NH = 48, 96, 12
WF, OF = 48, 128
def hload(k):
    if k % 4 == 0 and k: a(f"s_add_u32 s{sT4}, s{sT4}, 4096")
    a(f"buffer_load_dwordx4 {vr(HR+4*(k%NH),4)}, v{vL4}, {sr(R_WS,4)}, s{sT4} offen offset:{1024*(k%4)} sc1")
def cread(k):
    a(f"ds_read_b128 {vr(CR+4*(k%4),4)}, v28 offset:{32*k}")
def oload(k):
    if k % 4 == 0 and k: a(f"s_add_u32 s{sT6}, s{sT6}, 4096")
    a(f"buffer_load_dwordx4 {vr(OF+4*k,4)}, v{vL4}, {sr(R_WS,4)}, s{sT6} offen offset:{1024*(k%4)} sc1")
def wo_setup():
    a(f"s_and_b32 s{sT0}, s{sWV}, 1")
    a(f"s_lshl_b32 s{sT0}, s{sT0}, 18")
    a(f"s_lshr_b32 s{sT1}, s{sWV}, 1")
    a(f"s_lshl_b32 s{sT1}, s{sT1}, 14")
    a(f"s_add_u32 s{sT0}, s{sT0}, s{sT1}")
    a(f"s_lshl_b32 s{sT1}, s{sG}, 7")
    a(f"s_add_u32 s{sT0}, s{sT0}, s{sT1}")
    a(f"s_mul_i32 s{sT1}, s{sWV}, {PSTRIDE}")
def wo_one(half, n):
    q, i = n // 2, n % 2
    a(f"s_add_u32 m0, s{sT1}, {(L_R1 if half else L_PART) + 2048*q + 1024*i}")
    a(f"s_add_u32 s{sT2}, s{sT0}, {32768*half + 65536*q + 8192*i}")
    dma(vWO, R_A, f"s{sT2}")
def wread(dst, k):
    o = PSTRIDE * ((k % 16) // 4) + 2048 * (k % 4)
    ad = 13 if k < 16 else vWT
    a(f"ds_read_b64_tr_b16 {vr(dst,2)}, v{ad} offset:{o}")
    a(f"ds_read_b64_tr_b16 {vr(dst+2,2)}, v{ad} offset:{o+1024}")
HD, CD = 11, 3
RK = int(OPT.get("rk", 25))
FK = 4
VM, LG = Cnt(), Cnt()
for k in range(HD): hload(k); VM.issue(("h", k))
a(f"s_lshl_b32 s{sT5}, s{sYG}, 12")
a(f"s_add_u32 s{sT5}, s{sT5}, {WS_FO}")
a(f"s_lshl_b32 s{sT6}, s{sYG}, 15")
a(f"s_add_u32 s{sT6}, s{sT6}, {WS_O}")
if not RIL:
    a(f"s_mov_b32 s{sSTEP}, s{sWV}")
    KIND[0] = "o"
    reduce_inline(32, 96, 20)
    a(f"s_mov_b32 s{sF1}, s{sT0}")
    gsync(vCNT, vONE, 8, C_GH)
else:
    waitc(vCNT, C_GH, f"s{sSYNC}", 8)
a(f"s_setprio {YPRIO}")
for k in range(CD): cread(k); LG.issue(("c", k))
FLK = int(OPT.get("flk", 14))
YPK = int(OPT.get("ypk", 99))
oq = list(range(16))
for k in range(32):
    if k == YPK: a("s_setprio 2")
    if k == FK:
        if not RIL:
            waits(vm=VM.need(("h", HD)))
            flag_novalu(sF1); VM.issue("f")
        wo_setup()
    if k == FLK:
        a(f"buffer_load_dword v9, v12, {sr(R_WS,4)}, s{sT5} offen sc1"); VM.issue("fl")
    if k == FLK + 5:
        waits(vm=VM.need("fl"))
        a("s_setprio 2")
        a(f"v_cmp_ne_u32 vcc, s{sTAG}, v9")
        a("s_cbranch_vccz L_y_ok")
        poll(12, f"s{sT5}", 8)
        lab("L_y_ok")
        a(f"s_setprio {YPRIO}")
    if k + HD < 32: hload(k + HD); VM.issue(("h", k + HD))
    if k + CD < 32: cread(k + CD); LG.issue(("c", k + CD))
    waits(vm=VM.need(("h", k)), lg=LG.need(("c", k)))
    mfma32(YACC, HR + 4*(k % NH), CR + 4*(k % 4))
    n = k - FK - 1
    if 0 <= n < 8: wo_one(0, n); VM.issue("wo")
    if k >= FLK + 5:
        for _ in range(2 if k + HD >= 32 else 1):
            if oq: oload(oq.pop(0)); VM.issue("o")
    mfma32(32, HR + 4*(k % NH), CF + 4*k, "0" if k == 0 else None)
assert not oq
a("s_setprio 2")
a(f"s_lshl_b32 s{sT2}, s{sWV}, 12")
a(f"s_add_u32 s{sT2}, s{sT2}, {L_R1 + 40960}")
a(f"v_add_u32 v10, s{sT2}, v{vL4}")
a("v_xor_b32 v11, 4096, v10")
assert (L_R1 + 40960) % 8192 == 0
a(f"s_lshl_b32 s{sT2}, s{sWV}, 9")
a(f"s_add_u32 s{sT2}, s{sT2}, {L_CS}")
a("v_lshlrev_b32 v8, 3, v0")
a(f"v_add_u32 v8, s{sT2}, v8")
a(f"ds_write2_b32 v8, v{vWT}, v1 offset1:1")
waits(vm=VM.need("wo"))
gsync(vCNT, vONE, 8, C_GH)
stamp(12)
for i in range(8):
    wo_one(1, i)
    if i < 4: a(f"ds_write_b128 v10, {vr(32+4*i,4)} offset:{1024*i}")
    if i == 3:
        a(f"s_add_u32 s{sSYNC}, s{sSYNC}, 4")
        signal(vCNT, vONE, C_GH)
    if 4 <= i < 7: pace()
srd(R_B, P_OUT, 2048 * 4096)
a(f"s_lshl_b32 s{sT0}, s{sYY}, 17")
a(f"s_lshl_b32 s{sT1}, s{sCG}, 7")
a(f"s_add_u32 s{sT0}, s{sT0}, s{sT1}")
def store1(b, r, off=0):
    a(f"s_add_u32 s{sT1}, s{sT0}, {4096 * (8*(r//4) + r%4)}")
    a(f"buffer_store_dword v{b+r}, v1, {sr(R_B,4)}, s{sT1} offen" + (f" offset:{off}" if off else "") + YFL)
a(f"s_mul_i32 s{sT2}, s{sWV}, {PSTRIDE}")
a(f"v_add_u32 v10, s{sT2}, v{vL4}")
a(f"s_lshl_b32 s{sT2}, s{sWV}, 2")
a(f"v_add_u32 v9, s{sT2}, v{vCNT}")
waitc(vCNT, C_GH, f"s{sSYNC}", 8)
for i in range(4):
    a(f"ds_read_b128 {vr(192+4*i,4)}, v11 offset:{1024*i}")
YL = OPT.get("ylate") == "1"
def ystores():
    for j in range(8):
        a(f"v_pk_add_f32 {vr(YACC+2*j,2)}, {vr(YACC+2*j,2)}, {vr(192+2*j,2)}")
        store1(YACC, 2*j, 2048)
        store1(YACC, 2*j + 1, 2048)
if LB: a("s_setprio 0")
for k in range(16): wread(WF + 4*k, k)
if LB: a("s_setprio 2")
a(f"s_waitcnt vmcnt(0) lgkmcnt(15)")
a(f"s_add_u32 s{sSYNC}, s{sSYNC}, 4")
signal(vCNT, vONE, C_GH)
for j in range(8):
    a(f"v_pk_add_f32 {vr(YACC+2*j,2)}, {vr(YACC+2*j,2)}, {vr(192+2*j,2)}")
a(f"s_waitcnt lgkmcnt(0)")
stamp(14)
DEF = int(OPT.get("defer", 0))
if DEF:
    for k in range(16): store1(YACC, k, 2048)
    cm("the matrix pipe is free once the attention wave of this SIMD has finished")
    a(f"v_add_u32 v11, {(L_PROG - L_CNT) & 0xffffffff}, v9")
    waitc(11, 0, L_PART + 8192 + 7*PSTRIDE, 8)
else:
    a(f"s_setprio {OPT.get('oprio', 0)}")
for k in range(16):
    mfma32(32, OF + 4*k, WF + 4*k, "0" if k == 0 else None)
    if not YLT and not DEF: store1(YACC, k, 2048)
nsync = sum(1 for n in ("HQ", "H") for x in SECS[n] if x.strip() == f"s_add_u32 s{sSYNC}, s{sSYNC}, 4")
SECS["P"].insert(0, f".set NSYNC_B2, {4*nsync}")
a("s_setprio 2")
waitc(vCNT, C_GH, f"s{sSYNC}", 8)
a("s_nop 6")
for i in range(4):
    a(f"ds_write_b128 v10, {vr(32+4*i,4)} offset:{1024*i}")
a(f"ds_write_b32 v9, v{vONE} offset:{C_HA}")
stamp(13)
if YLT:
    waitc(vCNT, C_S, 4, 8, sleep=1)
    for k in range(16): store1(YACC, k, 2048)
a("s_branch L_end")

lab("L_slow")
a("s_waitcnt lgkmcnt(0)")
a(f"s_mov_b32 s{sKIND}, 0")
a(f"s_lshl_b32 s{sT0}, s{sSTEP}, 10")
a(f"s_add_u32 s{sT0}, s{sT0}, {L_QF}")
a(f"v_add_u32 v4, s{sT0}, v14")
a(f"ds_read_b128 {vr(vQ,4)}, v4")
a("v_mov_b32 v4, 0xff800000")
a("v_lshrrev_b32 v16, 5, v0")
a("v_and_b32 v17, 15, v0")
a("v_lshl_add_u32 v15, v16, 4, v17")
a("v_lshlrev_b32 v15, 4, v15")
a(f"s_mov_b32 s{sM}, 0xffff")
a(f"s_mov_b32 s{sM+1}, 0xffff")
a(f"s_mov_b32 s{sT0}, {WS_KV}")
lab("L_slow_p1")
kvload(0)
a("s_waitcnt vmcnt(0) lgkmcnt(0)")
for t in range(2):
    qk(S0, t)
    a("s_nop 11")
    for i in range(8):
        a(f"v_max3_f32 v4, v{S0+2*i}, v{S0+2*i+1}, v4")
a(f"s_cmp_lt_u32 s{sT0}, {WS_KV + 131072}")
a("s_cbranch_scc1 L_slow_p1")
a("v_mov_b32 v5, v4")
a("s_nop 1")
a("v_permlane32_swap_b32 v4, v5")
a("v_max_f32 v4, v4, v5")
for i in range(16):
    a(f"v_sub_f32 v{S1+i}, 0, v4")
zeroO()
a(f"s_mov_b32 s{sT0}, {WS_KV}")
lab("L_slow_p2")
kvload(0)
a("s_waitcnt vmcnt(0)")
for t in range(2):
    mfma32(S0, K_(t), vQ, vr(S1, 16))
    a("s_nop 11")
    exs(S0, 0, 16)
    a("s_nop 1")
    smf(V1(t), S0)
    smf(V2(t), S0 + 8)
a(f"s_cmp_lt_u32 s{sT0}, {WS_KV + 131072}")
a("s_cbranch_scc1 L_slow_p2")
o_offsets()
a(f"v_rcp_f32 v4, v{vO+8}")
a("s_nop 0")
for j in range(4):
    a(f"v_pk_mul_f32 {vr(vO+2*j,2)}, {vr(vO+2*j,2)}, v[4:5] op_sel_hi:[1,0]")
for j in range(4):
    a(f"v_cvt_pk_bf16_f32 v{16+j}, v{vO+2*j}, v{vO+2*j+1}")
a(f"buffer_store_dwordx4 v[16:19], v14, {sr(R_WS,4)}, s{sT1} offen sc1")
a("s_waitcnt vmcnt(0)")
setflag(16, 17, sT0)
a("v_and_b32 v15, 15, v0")
a("v_lshlrev_b32 v15, 7, v15")
a("v_lshlrev_b32 v7, 3, v0")
a(f"v_add_u32 v7, s{sT5}, v7")
a(f"s_lshl_b32 s{sT0}, s{sWV}, 2")
a(f"v_add_u32 v10, s{sT0}, v{vCA}")
a(f"s_cmp_lt_u32 s{sSTEP}, 4")
a("s_cbranch_scc1 L_a_ok2")
a("ds_read_b128 v[56:59], v6 offset:8192")
a("s_waitcnt lgkmcnt(0)")
a("s_branch L_a_ok1")
lab("L_a_bad1")
a("s_waitcnt lgkmcnt(0)")
a(f"s_sub_u32 s{sSTEP}, 7, s{sWV}")
a("s_branch L_slow")
lab("L_a_bad2")
a(f"s_mov_b32 s{sSTEP}, s{sWV}")
a("s_branch L_slow")

lab("L_end")
ROLE[0] = "E"
if PROBE:
    a("s_waitcnt vmcnt(0)")
    stamp(15)
    a(f"s_cmp_ge_u32 s{sW}, 4")
    a(f"s_cbranch_scc{0 if PROBE[0] == 'A' else 1} L_exit")
    a(f"s_cmp_eq_u32 s{80+int(PROBE[1])}, 0")
    a("s_cbranch_scc1 L_exit")
    a(f"s_sub_u32 s{sT0}, s{80+int(PROBE[1])}, s{80+int(PROBE[2])}")
    if OPT.get("pmode"):
        a(f"s_cmp_eq_u32 s{sMODE}, 1")
        a(f"s_cselect_b32 s{sT0}, 0, 1000")
    a(f"s_min_u32 s{sT0}, s{sT0}, 10000")
    a(f"s_lshl_b32 s{sT0}, s{sT0}, 1")
    a(f"s_memrealtime s[{sST}:{sST+1}]")
    a("s_waitcnt lgkmcnt(0)")
    a(f"s_mov_b32 s{sT1}, s{sST}")
    lab("L_probe")
    a(f"s_memrealtime s[{sST}:{sST+1}]")
    a("s_waitcnt lgkmcnt(0)")
    a(f"s_sub_u32 s{sT2}, s{sST}, s{sT1}")
    a(f"s_cmp_lt_u32 s{sT2}, s{sT0}")
    a("s_cbranch_scc1 L_probe")
elif STAMPS:
    a("s_waitcnt vmcnt(0)")
    stamp(15)
    a(f"s_lshl_b32 s{sT0}, s2, 3")
    a(f"s_xor_b32 s{sT1}, s{sW}, 4")
    a(f"s_add_u32 s{sT0}, s{sT0}, s{sT1}")
    a(f"s_lshl_b32 s{sT0}, s{sT0}, 6")
    a(f"s_add_u32 s{sT0}, s{sT0}, {WS_STAMP}")
    for i in range(16): a(f"v_mov_b32 v{16+i}, s{80+i}")
    a("v_mov_b32 v0, 0")
    a("s_mov_b64 exec, 1")
    for i in range(4):
        a(f"buffer_store_dwordx4 {vr(16+4*i,4)}, v0, {sr(R_WS,4)}, s{sT0} offen offset:{16*i}")
lab("L_exit")
a("s_endpgm")

DOC = """; ---------------------------------------------------------------------------------------------
; (tag = lcg(word 0 of d_ws), written back at the end).  Stores are device scope (sc1); only the last
; ---------------------------------------------------------------------------------------------
"""
hdr = open("cdna_kernels/" + NAME + ".s.ref").read().split("; Override launch")[0]
src = hdr + f"; @launch grid=(256,1,1) block=(512,1,1) lds={LDS_BYTES}\n" + f""".amdgcn_target "amdgcn-amd-amdhsa--gfx950"
{DOC}.text
.globl {NAME}_kernel
.p2align 8
.type {NAME}_kernel,@function
{NAME}_kernel:
""" + "\n".join(x for n in ("P", "AL", "HQ", "Z", "A", "H") for x in SECS[n]) + f"""
.section .rodata,"a"
.p2align 6
.amdhsa_kernel {NAME}_kernel
  .amdhsa_next_free_vgpr 256
  .amdhsa_next_free_sgpr 102
  .amdhsa_accum_offset 256
  .amdhsa_group_segment_fixed_size 0
  .amdhsa_kernarg_size 136
  .amdhsa_user_sgpr_count 2
  .amdhsa_user_sgpr_kernarg_segment_ptr 1
  .amdhsa_system_sgpr_workgroup_id_x 1
.end_amdhsa_kernel
"""
open(OUT, "w").write(src)
```

```python
import sys, math, struct
NAME = "concat_heads__grouped_kv_mqa__ssm_conv_s5__prompt"
STAMPS = "--stamps" in sys.argv
OPT = dict(a.lstrip("-").split("=") for a in sys.argv[1:] if a.startswith("--") and "=" in a)
OUT = [a for a in sys.argv[1:] if not a.startswith("--")][0]
OUTFL = OPT.get("outfl", "nt").replace(",", " ")
if OUTFL: OUTFL = " " + OUTFL
YFL = OPT.get("yfl", "nt").replace(",", " ")
if YFL: YFL = " " + YFL

def f32(x): return "0x%08x" % struct.unpack("<I", struct.pack("<f", x))[0]

FSH = int(OPT.get('fsh', 6))
WS_O2 = 0x300000
C_HA = 48
WS_DUMMY = 0x800
WS_FKV = 0x1000
WS_FH  = 0x20000
WS_FO  = 0x80000
WS_KV  = 0x40000
WS_ST  = 0x60000
WS_O   = 0x100000
WS_H   = 0x400000
WS_SLOW = 0x800000
WS_STAMP = 15 << 20
WS_SIZE = 16 << 20
L_XA, L_WQ, L_KVP, L_WKV = 0, 65536, 131072, 140288
L_PART, L_R1, L_SCR, L_ES, L_QF, L_PROG, L_CNT = 0, 73728, 140288, 148480, 150528, 158720, 159744
L_MAX = 159808
L_CS = 160832

LDS_BYTES = 163840
PSTRIDE = 9216
RSTR = 1040
POLL_LIMIT = 400000
C_A1, C_H1, C_H2, C_A3, C_A4, C_GA, C_GH, C_TAG, C_H3, C_S, C_H0, C_DONE = 0, 4, 8, 12, 16, 20, 24, 28, 32, 36, 40, 44

SECS = {}
class _L:
    cur = None
    def append(self, x): SECS[_L.cur].append(x)
lines = _L()
def sec(n):
    SECS.setdefault(n, []); _L.cur = n
sec("P")
def a(s): lines.append("    " + s)
def lab(s): lines.append(s + ":")
def cm(s): lines.append("    ; " + s)
_uid = [0]
def uid(p):
    _uid[0] += 1
    return f"L_{p}{_uid[0]}"
def vr(b, n): return f"v[{b}:{b+n-1}]"
def sr(b, n): return f"s[{b}:{b+n-1}]"

sW, sTAG, sRB, sG, sC, sPB = 3, 4, 5, 6, 7, 8
sT0, sT1, sT2, sT3, sT4, sCNT = 9, 10, 11, 12, 13, 14
sWV = 15
P_AX, P_WQ, P_WK, P_WV, P_WO, P_BX, P_LRE, P_LIM = 16, 18, 20, 22, 24, 26, 28, 30
P_BRE, P_BIM, P_CRE, P_CIM, P_LDT, P_DSK, P_OUT, P_DBG = 32, 34, 36, 38, 40, 42, 44, 46
P_WS = 48
sT5, sT6 = 50, 51
R_WS, R_A, R_B, R_C = 52, 56, 60, 64
sM = 68
sGRP, sKIND, sSTEP, sSYNC = 70, 71, 72, 73
sRET = 74
sST = 76
sLO, sHI = 78, 79
sROT = sSTEP
sF1, sF2 = 0, 1
sYG, sCG, sPC = 96, 97, 98
sGY, sYY = 100, 101
YM = int(OPT.get('ymap', 0))
sMODE = sGRP
C_MODE = C_DONE
LFL = OPT.get('lfl', '').replace(',', ' ')
if LFL: LFL = ' ' + LFL

def srd(dst, ptr, nbytes):
    a(f"s_mov_b32 s{dst}, s{ptr}")
    a(f"s_and_b32 s{dst+1}, s{ptr+1}, 0xffff")
    a(f"s_mov_b32 s{dst+2}, {nbytes}")
    a(f"s_mov_b32 s{dst+3}, 0x20000")

PROBE = OPT.get("probe")
ROLE = ["?"]
if PROBE:
    PROBE = PROBE.split(","); STAMPS = True
def stamp(i, ins="s_memrealtime"):
    if PROBE and not (ins == "s_memrealtime" and (ROLE[0] in (PROBE[0], "E")) and str(i) in PROBE[1:]): return
    if OPT.get("dbg") == "steps" and ROLE[0] == "A" and i < 10: return
    if OPT.get("sel") and ROLE[0] != "E" and f"{ROLE[0]}{i}" not in OPT["sel"].split(","): return
    if STAMPS:
        a(f"{ins} s[{sST}:{sST+1}]")
        a("s_waitcnt lgkmcnt(0)")
        a(f"s_mov_b32 s{80+i}, s{sST}")
def cstamp(i): stamp(i, "s_memtime")
DBG = OPT.get("dbg", "")
def dstamp(name, i):
    if DBG == name: stamp(i)
_stamp0 = stamp


def dma(voff, srdr, soff, imm=0):
    o = f" offset:{imm}" if imm else ""
    a(f"buffer_load_dwordx4 v{voff}, {sr(srdr,4)}, {soff} offen{o} lds")

PACE = int(OPT.get("pace", 18))
PV = int(OPT.get("pv", 6))
def pace():
    if PV >= 0:
        a(f"s_waitcnt vmcnt({PV})")
        return
    n = PACE
    while n > 0:
        a(f"s_nop {min(n, 16) - 1}"); n -= 16

def poll(voff, soff, vt, sleep=0, fl=" sc1"):
    L, D = uid("poll"), uid("pdone")
    a(f"s_mov_b32 s{sCNT}, {POLL_LIMIT}")
    lab(L)
    a(f"buffer_load_dword v{vt}, v{voff}, {sr(R_WS,4)}, {soff} offen{fl}")
    a("s_waitcnt vmcnt(0)")
    a(f"v_cmp_ne_u32 vcc, s{sTAG}, v{vt}")
    a(f"s_cbranch_vccz {D}")
    if sleep: a(f"s_sleep {sleep}")
    a(f"s_sub_u32 s{sCNT}, s{sCNT}, 1")
    a(f"s_cbranch_scc0 {L}")
    lab(D)

def setflag(vt0, vt1, soff):
    a(f"v_mov_b32 v{vt0}, 0")
    a(f"v_mov_b32 v{vt1}, s{sTAG}")
    a("s_mov_b64 exec, 1")
    a(f"buffer_store_dword v{vt1}, v{vt0}, {sr(R_WS,4)}, s{soff} offen sc1")
    a("s_mov_b64 exec, -1")

LOC = OPT.get("loc", "t")
KIND = ["t"]
assert not (YM and "h" in LOC)
def st2(instrs):
    if KIND[0] not in LOC:
        for x in instrs: a(x.replace("@", " sc1"))
        return
    L, E = uid("sl"), uid("se")
    a(f"s_cmp_eq_u32 s{sMODE}, 1")
    a(f"s_cbranch_scc1 {L}")
    for x in instrs: a(x.replace("@", " sc1"))
    a(f"s_branch {E}")
    lab(L)
    for x in instrs: a(x.replace("@", LFL))
    lab(E)

def spf(spec):
    for ptr, lines, first, cnt in spec:
        a(f"s_lshl2_add_u32 s{sRET}, s2, s{sWV}")
        a(f"s_mul_i32 s{sRET}, s{sRET}, {128*lines}")
        a(f"s_add_u32 s{sRET}, s{sRET}, s{ptr}")
        a(f"s_addc_u32 s{sRET+1}, s{ptr+1}, 0")
        for i in range(first, first + cnt):
            a(f"s_load_dword s{sST}, s[{sRET}:{sRET+1}], {128*i}")

def spx(kind, first, cnt, w="dword"):
    if kind == "x":
        a(f"s_and_b32 s{sRET}, s{sRB}, 0x1b")
        a(f"s_lshr_b32 s{sRET+1}, s{sRET}, 3")
        a(f"s_and_b32 s{sRET}, s{sRET}, 3")
        a(f"s_lshl2_add_u32 s{sRET}, s{sRET+1}, s{sRET}")
        a(f"s_lshl3_add_u32 s{sRET}, s{sRET}, s{sG}")
        a(f"s_lshl2_add_u32 s{sRET}, s{sRET}, s{sWV}")
        a(f"s_lshl_b32 s{sRET}, s{sRET}, 12")
        ptr = P_BX
    else:
        a(f"s_and_b32 s{sRET}, s2, 1")
        a(f"s_lshl3_add_u32 s{sRET}, s{sRET}, s{sG}")
        a(f"s_and_b32 s{sRET+1}, s{sRB}, 3")
        a(f"s_lshl2_add_u32 s{sRET}, s{sRET}, s{sRET+1}")
        a(f"s_lshl2_add_u32 s{sRET}, s{sRET}, s{sWV}")
        a(f"s_lshl_b32 s{sRET}, s{sRET}, 11")
        ptr = P_BRE if kind == "r" else P_BIM
    a(f"s_add_u32 s{sRET}, s{sRET}, s{ptr}")
    a(f"s_addc_u32 s{sRET+1}, s{ptr+1}, 0")
    for i in range(first, first + cnt):
        a(f"s_load_dword s{sST}, s[{sRET}:{sRET+1}], {128*i}")
SX = OPT.get("sx", "")

def signal(vcnt, vone, off):
    a("s_mov_b64 exec, 1")
    a(f"ds_add_u32 v{vcnt}, v{vone} offset:{off}")
    a("s_mov_b64 exec, -1")

HSL = int(OPT.get("hsl", 0))
def waitc(vcnt, off, target, vt, sleep=0):
    L = uid("wc")
    if ROLE[0] == "H" and _L.cur == "H": sleep = max(sleep, HSL)
    if sleep:
        L2 = uid("wd")
        a(f"s_branch {L2}")
    lab(L)
    if sleep:
        a(f"s_sleep {sleep}")
        lab(L2)
    a(f"ds_read_b32 v{vt}, v{vcnt} offset:{off}")
    a("s_waitcnt lgkmcnt(0)")
    a(f"v_cmp_gt_u32 vcc, {target}, v{vt}")
    a(f"s_cbranch_vccnz {L}")

def gsync(vcnt, vone, vt, off):
    a("s_waitcnt lgkmcnt(0)")
    a(f"s_add_u32 s{sSYNC}, s{sSYNC}, 4")
    signal(vcnt, vone, off)
    waitc(vcnt, off, f"s{sSYNC}", vt)

def mfma32(d, x, y, c=None):
    c = vr(d, 16) if c is None else c
    a(f"v_mfma_f32_32x32x16_bf16 {vr(d,16)}, {vr(x,4)}, {vr(y,4)}, {c}")

def cmul_add(dst, L, g, u):
    a(f"v_pk_fma_f32 {vr(dst,2)}, {vr(L,2)}, {vr(g,2)}, {vr(u,2)} op_sel:[0,0,0] op_sel_hi:[0,1,1]")
    a(f"v_pk_fma_f32 {vr(dst,2)}, {vr(L,2)}, {vr(g,2)}, {vr(dst,2)} op_sel:[1,1,0] op_sel_hi:[1,0,1] neg_lo:[1,0,0]")

def cmul(dst, x, y):
    a(f"v_pk_mul_f32 {vr(dst,2)}, {vr(x,2)}, {vr(y,2)} op_sel:[0,0] op_sel_hi:[0,1]")
    a(f"v_pk_fma_f32 {vr(dst,2)}, {vr(x,2)}, {vr(y,2)}, {vr(dst,2)} op_sel:[1,1,0] op_sel_hi:[1,0,1] neg_lo:[1,0,0]")

def csq(dst, src, t):
    a(f"v_mul_f32 v{t}, v{src+1}, v{src+1}")
    a(f"v_add_f32 v{t+1}, v{src}, v{src}")
    a(f"v_fma_f32 v{dst}, v{src}, v{src}, -v{t}")
    a(f"v_mul_f32 v{dst+1}, v{t+1}, v{src+1}")

def xvoffsets(XO, t0):
    a(f"v_lshrrev_b32 v{t0}, 4, v0")
    a(f"v_and_b32 v{t0+1}, 15, v0")
    for i in range(4):
        a(f"v_add_u32 v{t0+2}, {4*i}, v{t0}")
        a(f"v_xor_b32 v{t0+3}, v{t0+1}, v{t0+2}")
        a(f"v_lshlrev_b32 v{t0+3}, 4, v{t0+3}")
        a(f"v_lshl_add_u32 v{XO+i}, v{t0+2}, 10, v{t0+3}")

def wtr_addr(dst, hhshift, base, t):
    a(f"v_bfe_u32 v{t}, v0, 2, 2")
    a(f"v_bfe_u32 v{t+1}, v0, 4, 1")
    a(f"v_bfe_u32 v{t+2}, v0, 1, 1")
    a(f"v_lshl_add_u32 v{t+1}, v{t+1}, 1, v{t+2}")
    a(f"s_and_b32 s{sT0}, s{sWV}, 1")
    a(f"s_lshl_b32 s{sT0}, s{sT0}, 2")
    a(f"v_add_u32 v{t+1}, s{sT0}, v{t+1}")
    a(f"v_bfe_u32 v{t+2}, v0, 3, 1")
    a(f"v_lshlrev_b32 v{t+2}, 2, v{t+2}")
    a(f"v_xor_b32 v{t+1}, v{t+1}, v{t+2}")
    a(f"v_lshlrev_b32 v{t+1}, 4, v{t+1}")
    a(f"v_lshl_add_u32 v{t+1}, v{t}, 7, v{t+1}")
    a(f"v_and_b32 v{t+2}, 1, v0")
    a(f"v_lshl_add_u32 v{t+1}, v{t+2}, 3, v{t+1}")
    a(f"v_lshrrev_b32 v{t+2}, 5, v0")
    a(f"v_lshl_add_u32 v{t+1}, v{t+2}, {hhshift}, v{t+1}")
    a(f"v_add_u32 v{dst}, {base}, v{t+1}")

def o_offsets():
    a(f"s_and_b32 s{sT0}, s{sSTEP}, 1")
    a(f"s_lshl_b32 s{sT1}, s{sRB}, 1")
    a(f"s_add_u32 s{sT0}, s{sT0}, s{sT1}")
    a(f"s_lshl_b32 s{sT0}, s{sT0}, 2")
    a(f"s_lshr_b32 s{sT1}, s{sSTEP}, 1")
    a(f"s_add_u32 s{sT0}, s{sT0}, s{sT1}")
    a(f"s_lshl_b32 s{sT0}, s{sT0}, 3")
    a(f"s_add_u32 s{sT0}, s{sT0}, s{sG}")
    a(f"s_lshl_b32 s{sT1}, s{sT0}, 10")
    a(f"s_add_u32 s{sT1}, s{sT1}, {WS_O}")
    a(f"s_lshl_b32 s{sT0}, s{sT0}, 7")
    a(f"s_add_u32 s{sT0}, s{sT0}, {WS_FO}")

def sum_check(b):
    a(f"v_pk_add_f32 {vr(b,2)}, {vr(b,2)}, {vr(b+2,2)}")
    a(f"v_add_f32 v{b}, v{b}, v{b+1}")
    a(f"v_cmp_nle_f32 vcc, s{sLO}, v{b}")
    a(f"v_cmp_nge_f32 s[{sM}:{sM+1}], s{sHI}, v{b}")
    a(f"s_or_b64 vcc, vcc, s[{sM}:{sM+1}]")

def reduce_math(b, vl16, flag=True, tagged=False, b1=None, bs=None):
    b1 = b + 16 if b1 is None else b1
    bs = b + 32 if bs is None else bs
    a(f"v_rcp_f32 v{bs+2}, v{bs}")
    for j in range(4):
        a(f"v_pk_add_f32 {vr(b+2*j,2)}, {vr(b+2*j,2)}, {vr(b+8+2*j,2)}")
    for j in range(4):
        a(f"v_pk_add_f32 {vr(b1+2*j,2)}, {vr(b1+2*j,2)}, {vr(b1+8+2*j,2)}")
    for j in range(4):
        a(f"v_pk_add_f32 {vr(b+2*j,2)}, {vr(b+2*j,2)}, {vr(b1+2*j,2)}")
    for j in range(4):
        a(f"v_pk_mul_f32 {vr(b+2*j,2)}, {vr(b+2*j,2)}, {vr(bs+2,2)} op_sel_hi:[1,0]")
    for j in range(4):
        a(f"v_cvt_pk_bf16_f32 v{b+8+j}, v{b+2*j}, v{b+2*j+1}")
    if not flag:
        st2([f"buffer_store_dwordx4 {vr(b+8,4)}, v{vl16}, {sr(R_WS,4)}, s{sT1} offen@"])
        return
    a(f"buffer_store_dwordx4 {vr(b+8,4)}, v{vl16}, {sr(R_WS,4)}, s{sT1} offen sc1")
    a("s_waitcnt vmcnt(0)")
    setflag(b, b + 1, sT0)

STG3 = 1
LOG2E = 1.4426950408889634
L_LO, L_HI = 2.0 ** -60, 2.0 ** 60


class Cnt:
    def __init__(s): s.q = []
    def issue(s, tag, n=1): s.q += [tag] * n
    def need(s, tag):
        if tag not in s.q: return None
        i = len(s.q) - 1 - s.q[::-1].index(tag)
        n = len(s.q) - 1 - i
        s.q = s.q[i + 1:]
        return n
def waits(vm=None, lg=None):
    p = []
    if vm is not None: p.append(f"vmcnt({min(vm,63)})")
    if lg is not None: p.append(f"lgkmcnt({min(lg,15)})")
    if p: a("s_waitcnt " + " ".join(p))

a("s_cmp_ge_u32 s2, 256")
a("s_cbranch_scc1 L_exit")
a(f"s_load_dwordx16 s[16:31], s[0:1], 0")
a(f"s_load_dwordx16 s[32:47], s[0:1], 64")
a(f"s_load_dwordx2 s[48:49], s[0:1], 128")
EPF = [int(x) for x in OPT.get("epf", "").split(",") if x]
if EPF:
    cm("request the first code lines at once instead of one miss after the other")
    a(f"s_getpc_b64 s[{sM}:{sM+1}]")
    a(f"v_subrev_u32 v2, {EPF[0]}, v0")
    a(f"v_cmp_gt_u32 vcc, {EPF[1]}, v2")
    a("v_lshlrev_b32 v2, 7, v2")
    a(f"s_and_saveexec_b64 s[{sRET}:{sRET+1}], vcc")
    a("s_cbranch_execz L_noepf")
    a(f"global_load_dword v31, v2, s[{sM}:{sM+1}] offset:128")
    lab("L_noepf")
    a("s_mov_b64 exec, -1")
if STAMPS:
    for i in range(16): a(f"s_mov_b32 s{80+i}, 0")
    a("s_memrealtime s[80:81]")
    a("s_memtime s[92:93]")
a("v_lshrrev_b32 v1, 6, v0")
a("v_and_b32 v0, 63, v0")
a(f"v_readfirstlane_b32 s{sW}, v1")
a("v_lshlrev_b32 v6, 4, v0")
a("v_lshrrev_b32 v12, 4, v0")
a("v_and_b32 v13, 15, v0")
a(f"s_and_b32 s{sT0}, s2, 7")
a(f"s_lshr_b32 s{sT1}, s2, 3")
a(f"s_and_b32 s{sT2}, s{sT1}, 3")
a(f"s_lshl_b32 s{sRB}, s{sT0}, 2")
a(f"s_add_u32 s{sRB}, s{sRB}, s{sT2}")
a(f"s_lshr_b32 s{sG}, s{sT1}, 2")
a(f"s_and_b32 s{sGRP}, s{sG}, 3")
a(f"s_and_b32 s{sWV}, s{sW}, 3")
a(f"s_add_u32 s{sROT}, s{sG}, s{sRB}" if OPT.get("rot", "0") == "1" else f"s_mov_b32 s{sROT}, 0")
a(f"s_mov_b32 s{R_A+2}, {2048*1024}")
a(f"s_mov_b32 s{R_A+3}, 0x20000")
a(f"s_mov_b32 s{R_B+3}, 0x20000")
a(f"s_cmp_ge_u32 s{sW}, 4")
a("s_cbranch_scc1 L_attn")

vL, vL16_, vL8, vCO = 20, 22, 24, 26
vCNT, vONE, vWT, vRB, vL4, vWO = 2, 3, 4, 5, 6, 7
a("s_setprio 3")
for i in range(4):
    a(f"v_add_u32 v14, {4*i}, v12")
    a(f"v_xor_b32 v15, v13, v14")
    a(f"v_lshlrev_b32 v15, 4, v15")
    a(f"v_lshl_add_u32 v{16+i}, v14, 10, v15")
if OPT.get("map", "0" if "h" in LOC else "1") == "0":
    a(f"s_and_b32 s{sT2}, s{sT1}, 1")
    a(f"s_lshl_b32 s{sC}, s{sT0}, 1")
    a(f"s_add_u32 s{sC}, s{sC}, s{sT2}")
    a(f"s_lshr_b32 s{sPB}, s{sT1}, 1")
else:
    a(f"s_and_b32 s{sC}, s{sT0}, 6")
    a(f"s_lshl_b32 s{sC}, s{sC}, 1")
    a(f"s_add_u32 s{sC}, s{sC}, s{sT2}")
    a(f"s_and_b32 s{sPB}, s{sT0}, 1")
    a(f"s_lshl_b32 s{sPB}, s{sPB}, 3")
    a(f"s_add_u32 s{sPB}, s{sPB}, s{sG}")
a(f"s_lshr_b32 s{sKIND}, s{sG}, 2")
a(f"s_lshl_b32 s{sT3}, s{sPB}, 5")
a("v_and_b32 v38, 31, v0")
a(f"v_add_lshl_u32 v37, v38, s{sT3}, 1")
if YM:
    a(f"s_and_b32 s{sGY}, s{sRB}, 7")
else:
    a(f"s_mov_b32 s{sGY}, s{sG}")
a(f"s_and_b32 s{sT3}, s{sWV}, 1")
a(f"s_lshl1_add_u32 s{sT3}, s{sGY}, s{sT3}")
a(f"s_lshl_b32 s{sT3}, s{sT3}, 5")
a(f"v_add_lshl_u32 v38, v38, s{sT3}, 1")
a(f"s_add_u32 s{sT3}, s{sROT}, s{sWV}")
a(f"s_and_b32 s{sT3}, s{sT3}, 3")
a(f"s_lshl_b32 s{sT0}, s{sRB}, 16")
a(f"s_lshl_b32 s{sT1}, s{sGRP}, 14")
a(f"s_add_u32 s{sT0}, s{sT0}, s{sT1}")
a(f"s_lshl_b32 s{sT1}, s{sT3}, 8")
a(f"s_add_u32 s{sT0}, s{sT0}, s{sT1}")
a(f"s_lshl_b32 s{sT2}, s{sGRP}, 12")
a(f"s_lshl_b32 s{sT1}, s{sWV}, 14")
a(f"s_add_u32 s{sT2}, s{sT2}, s{sT1}")
a(f"s_lshl_b32 s{sT3}, s{sT3}, 12")
a(f"s_lshl_b32 s{sT4}, s{sWV}, 12")
a(f"s_add_u32 s{sT4}, s{sT4}, {L_WKV}")
a(f"s_mov_b32 s{R_B+2}, 16384")
a(f"s_mov_b32 m0, s{sT2}")
a(f"s_cmp_eq_u32 s{sKIND}, 0")
a("s_waitcnt lgkmcnt(0)")
a(f"s_cselect_b32 s{R_B}, s{P_WK}, s{P_WV}")
a(f"s_cselect_b32 s{R_B+1}, s{P_WK+1}, s{P_WV+1}")
a(f"s_mov_b32 s{R_A}, s{P_AX}")
a(f"s_and_b32 s{R_A+1}, s{P_AX+1}, 0xffff")
a(f"s_and_b32 s{R_B+1}, s{R_B+1}, 0xffff")
for i in range(4):
    dma(16 + i, R_A, f"s{sT0}")
    a(f"s_add_u32 m0, s{sT2}, {1024*(i+1)}" if i < 3 else f"s_mov_b32 m0, s{sT4}")
    a("s_nop 0")
for i in range(4):
    dma(6, R_B, f"s{sT3}", imm=1024 * i)
p0, p1, p2, vDSK = 60, 61, 62, 63
a(f"global_load_ushort v{p0}, v37, s[{P_LRE}:{P_LRE+1}]")
a(f"global_load_ushort v{p1}, v37, s[{P_LIM}:{P_LIM+1}]")
a(f"global_load_ushort v{p2}, v37, s[{P_LDT}:{P_LDT+1}]")
a(f"global_load_ushort v{vDSK}, v38, s[{P_DSK}:{P_DSK+1}]")
EP0 = int(OPT.get("ep0", 0))
if EP0:
    a(f"s_cmp_eq_u32 s{sWV}, 0")
    a("s_cbranch_scc0 L_h_noep")
a(f"s_load_dword s{sTAG}, s[{P_WS}:{P_WS+1}], 0")
lab("L_h_noep")
a("s_barrier")

sec("AL")
lab("L_attn"); ROLE[0] = "A"
cm("pull the kernel's code towards this XCD's L2")
a(f"s_getpc_b64 s[{sM}:{sM+1}]")
lab("L_pc")
a(f"s_sub_u32 s{sM}, s{sM}, L_pc - {NAME}_kernel")
a(f"s_subb_u32 s{sM+1}, s{sM+1}, 0")
SPF = int(OPT.get("spf", 0))
if SPF:
    a(f"s_lshl_b32 s{sT3}, s{sWV}, 7")
    a(f"s_add_u32 s{sRET}, s{sM}, s{sT3}")
    a(f"s_addc_u32 s{sRET+1}, s{sM+1}, 0")
    for i in range(SPF):
        a(f"s_load_dword s{sCNT}, s[{sRET}:{sRET+1}], {512*i + 256}")
CSH = int(OPT.get("csh", 32))
NLN = -(-176 // (4 * CSH))
a(f"s_and_b32 s{sT2}, s{sT1}, {CSH-1}")
a(f"s_lshl2_add_u32 s{sT2}, s{sT2}, s{sWV}")
a(f"s_mul_i32 s{sT2}, s{sT2}, {128*NLN}")
CSK = int(OPT.get("csk", 0))
if CSK: a(f"s_add_u32 s{sT2}, s{sT2}, {CSK}")
a("v_lshlrev_b32 v32, 7, v0")
a(f"v_min_u32 v32, {128*(NLN-1)}, v32")
a(f"v_add_u32 v32, s{sT2}, v32")
a(f"v_min_u32 v32, L_slow - {NAME}_kernel, v32")
CPF = int(OPT.get("cpf", 0))
if CPF == 0:
    a(f"s_cmp_ge_u32 s{sT2}, L_slow - {NAME}_kernel")
    a("s_cbranch_scc1 L_nocpf")
    a(f"s_mov_b64 exec, {(1 << NLN) - 1}")
    a(f"global_load_dword v33, v32, s[{sM}:{sM+1}]")
    a("s_mov_b64 exec, -1")
    lab("L_nocpf")
vIDX, vZ, vAD, vAS, vAQ, vPG, vQ = 1, 2, 4, 5, 6, 7, 8
vCA, vONEA = 12, 13
S0, S1, vO, KV = 16, 32, 48, 64
cm("zero sync counters + progress words")
a("v_mov_b32 v2, 0")
a("v_mov_b32 v3, 0")
a("v_mov_b32 v4, 0")
a("v_mov_b32 v5, 0")
a(f"v_add_u32 v7, {L_PROG}, v6")
a("ds_write_b128 v7, v[2:5]")
a("ds_write_b128 v7, v[2:5] offset:1024")
a(f"v_lshl_add_u32 v14, s{sWV}, 2, v12")
a("v_xor_b32 v15, v13, v14")
a("v_lshlrev_b32 v15, 4, v15")
a("v_lshl_add_u32 v16, v14, 10, v15")
def wo_voff(dst, t):
    a(f"v_lshrrev_b32 v{t}, 3, v0")
    a(f"v_and_b32 v{t+1}, 7, v0")
    a(f"v_lshrrev_b32 v{t+2}, 2, v0")
    a(f"v_and_b32 v{t+2}, 4, v{t+2}")
    a(f"v_xor_b32 v{t+1}, v{t+1}, v{t+2}")
    a(f"v_lshlrev_b32 v{t+1}, 4, v{t+1}")
    a(f"v_lshl_add_u32 v{dst}, v{t}, 10, v{t+1}")
wo_voff(17, 20)
def wslice_setup():
    a(f"s_lshl_b32 s{sT0}, s{sG}, 7")
    a(f"s_lshl_b32 s{sT1}, s{sWV}, 15")
    a(f"s_add_u32 s{sT0}, s{sT0}, s{sT1}")
    a(f"s_lshl_b32 s{sT1}, s{sWV}, 12")
wslice_setup()
a(f"s_lshl_b32 s{sT4}, s{sRB}, 16")
a(f"s_lshl_b32 s{sT5}, s{sWV}, 10")
for m in range(1, 4):
    a(f"s_add_u32 s{sT2}, s{sGRP}, {m}")
    a(f"s_and_b32 s{sT2}, s{sT2}, 3")
    a(f"s_lshl_b32 s{sT3}, s{sT2}, 14")
    a(f"s_add_u32 s{95+m}, s{sT3}, s{sT4}")
    a(f"s_lshl_b32 s{sT3}, s{sT2}, 12")
    a(f"s_add_u32 s{98+m}, s{sT3}, s{sT5}")
a(f"s_mov_b32 s{R_B+2}, {512*1024}")
a(f"v_mov_b32 v{vCA}, {L_CNT}")
a(f"v_mov_b32 v{vONEA}, 1")
a("s_waitcnt lgkmcnt(0)")
a(f"s_mov_b32 s{R_A}, s{P_AX}")
a(f"s_and_b32 s{R_A+1}, s{P_AX+1}, 0xffff")
a(f"s_mov_b32 s{R_B}, s{P_WQ}")
a(f"s_and_b32 s{R_B+1}, s{P_WQ+1}, 0xffff")
if STAMPS:
    a("s_mov_b32 s81, 0")
    a("s_mov_b32 s93, 0")
a("s_barrier")
def qops(sl):
    a(f"s_add_u32 s{sT3}, s{sROT}, {sl}")
    a(f"s_and_b32 s{sT3}, s{sT3}, 3")
    a(f"s_lshl_b32 s{sT4}, s{sT3}, 8")
    a(f"s_lshl_b32 s{sT3}, s{sT3}, 17")
    a(f"s_add_u32 s{sT3}, s{sT3}, s{sT0}")
    for m in range(1, 4):
        a(f"s_add_u32 m0, s{98+m}, {L_XA + 16384*sl}")
        a(f"s_add_u32 s{sT2}, s{95+m}, s{sT4}")
        dma(16, R_A, f"s{sT2}")
    for i in range(4):
        a(f"s_add_u32 m0, s{sT1}, {L_WQ + 16384*sl + 1024*i}")
        a(f"s_add_u32 s{sT2}, s{sT3}, {8192*i}")
        dma(17, R_B, f"s{sT2}")
if CPF == 1: a(f"global_load_dword v33, v32, s[{sM}:{sM+1}]")
QW = int(OPT.get("qw", 0))
for sl in range(QW): qops(sl)
PFW, PFU = int(OPT.get("pfw", 1)), OPT.get("pfu", "")
if PFW:
    cm("warm L2 with this workgroup's quarter of its Wq slice")
    a(f"s_and_b32 s{sT2}, s{sRB}, 3")
    a(f"s_lshl2_add_u32 s{sT2}, s{sT2}, s{sWV}")
    a(f"s_lshl_b32 s{sT2}, s{sT2}, 15")
    a(f"s_lshl_b32 s{sT3}, s{sG}, 7")
    a(f"s_add_u32 s{sT2}, s{sT2}, s{sT3}")
    a("v_and_b32 v20, 31, v0")
    a("v_lshlrev_b32 v20, 10, v20")
    a("s_mov_b32 exec_hi, 0")
    a(f"buffer_load_dword v34, v20, {sr(R_B,4)}, s{sT2} offen")
    a("s_mov_b64 exec, -1")
def pfu(which):
    cm("pull this wave's 1/1024 share of later inputs out of HBM")
    a(f"s_lshl2_add_u32 s{sT2}, s2, s{sWV}")
    a("v_lshlrev_b32 v26, 7, v0")
    for i, ch in enumerate(which):
        ptr, lines = {"x": (P_BX, 16), "r": (P_BRE, 4), "i": (P_BIM, 4), "c": (P_CRE, 4), "d": (P_CIM, 4), "o": (P_WO, 4)}[ch]
        a(f"s_mul_i32 s{sT3}, s{sT2}, {128*lines}")
        a(f"v_add_u32 v21, s{sT3}, v26")
        a(f"s_mov_b64 exec, {(1 << lines) - 1}")
        a(f"global_load_dword v{35+i}, v21, s[{ptr}:{ptr+1}]")
        a("s_mov_b64 exec, -1")
if PFU: pfu(PFU)
srd(R_WS, P_WS, WS_SIZE)
a(f"s_mov_b32 s{sSYNC}, 0")
a(f"s_mov_b32 s{sLO}, {f32(L_LO)}")
a(f"s_mov_b32 s{sHI}, {f32(L_HI)}")
cm("prefill V regs: rows 16 and 20 = ones, other rows >=16 zero")
a("v_and_b32 v24, 27, v0")
a("v_cmp_eq_u32 vcc, 16, v24")
a("v_mov_b32 v25, 0x3f803f80")
a("s_nop 0")
a("v_cndmask_b32 v24, 0, v25, vcc")
a("v_mov_b32 v25, v24")
for t in range(16):
    for j in range(4):
        a(f"v_mov_b64 {vr(KV+12*t+4+2*j,2)}, v[24:25]")
a("v_mov_b32 v14, v6")
a("v_lshrrev_b32 v24, 5, v0")
a("v_and_b32 v25, 15, v0")
a("v_lshl_add_u32 v15, v24, 4, v25")
a("v_lshlrev_b32 v15, 4, v15")
a(f"v_mov_b32 v{vIDX}, 0xdddddddd")
a(f"s_lshl_b32 s{sT2}, s{sWV}, 11")
a(f"v_add_u32 v{vAD}, s{sT2}, v14")
a(f"s_lshl_b32 s{sT2}, s{sWV}, 2")
a(f"s_add_u32 s{sT3}, s{sT2}, {L_PART + 8192}")
a(f"v_add_u32 v{vAS}, s{sT3}, v14")
a(f"s_add_u32 s{sT3}, s{sT2}, {L_PROG}")
a(f"v_add_u32 v{vPG}, s{sT3}, v14")
a(f"v_add_u32 v{vAQ}, {L_QF}, v14")
a(f"v_lshlrev_b32 v23, {FSH}, v0")
a("s_barrier")
a(f"ds_read_b32 v20, v{vCA} offset:{C_TAG}")
if "1" in SX: spx("r", 0, 14)
B0 = int(OPT.get("b0", 0))
for sl in range(QW, 4):
    qops(sl)
    if sl + 1 == B0:
        a(f"s_waitcnt vmcnt({7*(B0-1)})")
        a("s_barrier")
PFL = OPT.get("pfl", "")
if PFL: pfu(PFL)
NL = len(PFL)
a(f"s_waitcnt vmcnt({14+NL}) lgkmcnt(0)")
a("s_barrier")
a(f"v_readfirstlane_b32 s{sTAG}, v20")
cm("scalars for the tail")
sKV = sT0
a(f"s_sub_u32 s{sSTEP}, 7, s{sWV}")
o_offsets()
a(f"s_mov_b32 s{sF1}, s{sT0}")
a(f"s_mov_b32 s{sF2}, s{sT1}")
a(f"s_mul_i32 s{sT2}, s{sSTEP}, {PSTRIDE}")
a(f"s_lshr_b32 s{sT4}, s{sWV}, 1")
a(f"s_lshl1_add_u32 s{sYG}, s{sRB}, s{sT4}")
a(f"s_lshl_b32 s{sCG}, s{sYG}, 12")
a(f"s_add_u32 s{sCG}, s{sCG}, {WS_FO + 16*128}")
srd(R_B, P_OUT, 2048 * 4096)
a(f"s_and_b32 s{sT0}, s{sWV}, 1")
a(f"s_lshl1_add_u32 s{sT0}, s{sG}, s{sT0}")
a(f"s_lshl_b32 s{sT0}, s{sT0}, 7")
a(f"s_lshl_b32 s{sT3}, s{sYG}, 17")
a(f"s_add_u32 s{sT3}, s{sT3}, s{sT0}")
a(f"s_lshl_b32 s{sT6}, s{sYG}, 15")
a(f"s_add_u32 s{sT6}, s{sT6}, {WS_O + 16384}")
a(f"s_mul_i32 s{sT4}, s{sWV}, {PSTRIDE}")
a(f"s_lshl_b32 s{sT5}, s{sWV}, 9")
a(f"s_add_u32 s{sT5}, s{sT5}, {L_CS}")
a(f"s_lshl_b32 s{sT0}, s{sWV}, {FSH+6}")
a(f"s_add_u32 s{sT0}, s{sT0}, {WS_FKV}")
stamp(1)
if "2" in SX: spx("i", 0, 14)
SU = OPT.get("su", "")
if "a" in SU: spf([(P_BX, 16, 0, 14)])
if "b" in SU: spf([(P_BRE, 4, 0, 4), (P_BIM, 4, 0, 4), (P_BX, 16, 0, 6)])
a(f"s_waitcnt vmcnt({7+NL})")
a("s_barrier")
PE = int(OPT.get("pe", 1))
if PE == 2:
    a(f"buffer_load_dword v22, v23, {sr(R_WS,4)}, s{sT0} offen sc1")
    a(f"s_waitcnt vmcnt(1)")
else:
    a(f"s_waitcnt vmcnt({NL})")
if PE == 1: a(f"buffer_load_dword v22, v23, {sr(R_WS,4)}, s{sT0} offen sc1")
a("s_barrier")
a("s_branch L_a2")
sec("A")
lab("L_a2")
stamp(2)
for _ in range(int(OPT.get("pd", 0))): a("s_sleep 2")
a(f"s_mov_b32 s{sCNT}, {POLL_LIMIT}")
if PE: a("s_branch L_a_kvq")
lab("L_a_kvp")
a(f"buffer_load_dword v22, v23, {sr(R_WS,4)}, s{sT0} offen sc1")
lab("L_a_kvq")
a("s_waitcnt vmcnt(0)")
a(f"v_xor_b32 v22, s{sTAG}, v22")
a("v_cmp_lt_u32 vcc, 15, v22")
a("s_cbranch_vccz L_a_kvok")
a(f"s_sub_u32 s{sCNT}, s{sCNT}, 1")
a("s_cbranch_scc0 L_a_kvp")
lab("L_a_kvok")
stamp(4)
a(f"s_lshl_b32 s{sT0}, s{sWV}, 15")
a(f"s_add_u32 s{sT0}, s{sT0}, {WS_KV}")
a(f"s_mov_b32 s{sM}, 0xffff")
a(f"s_mov_b32 s{sM+1}, 0xffff")
def kvload(tp):
    for t in (2*tp, 2*tp+1):
        a(f"buffer_load_dwordx4 {vr(KV+12*t,4)}, v14, {sr(R_WS,4)}, s{sT0} offen offset:{2048*(t&1)} sc1")
    a(f"s_mov_b64 exec, s[{sM}:{sM+1}]")
    for t in (2*tp, 2*tp+1):
        a(f"buffer_load_dwordx4 {vr(KV+12*t+4,4)}, v15, {sr(R_WS,4)}, s{sT0} offen offset:{2048*(t&1)+1024} sc1")
        a(f"buffer_load_dwordx4 {vr(KV+12*t+8,4)}, v15, {sr(R_WS,4)}, s{sT0} offen offset:{2048*(t&1)+1536} sc1")
    a("s_mov_b64 exec, -1")
    if tp < 7: a(f"s_add_u32 s{sT0}, s{sT0}, 4096")
NINIT = int(OPT.get("ninit", 3))
A4POS = int(OPT.get("a4", 8))
ABPOS = int(OPT.get("ab", 0))
NB = int(OPT.get("nb", NINIT))
for tp in range(NB):
    kvload(tp)
cm("do all 32 workgroups of this id class share this XCD?")
a(f"s_bfe_u32 s{sT1}, s2, 0x20001")
a(f"s_cmp_eq_u32 s{sT1}, s{sWV}")
a("s_cbranch_scc0 L_a_nomode")
a(f"s_getreg_b32 s{sT1}, hwreg(HW_REG_XCC_ID, 0, 4)")
a(f"v_cmp_ne_u32 vcc, s{sT1}, v22")
a("s_bitcmp1_b32 s2, 0")
a(f"s_cselect_b32 s{sT1}, vcc_hi, vcc_lo")
a(f"s_cmp_eq_u32 s{sT1}, 0")
a(f"s_cselect_b32 s{sT1}, {2 if OPT.get('nolocal') else 1}, 2")
a(f"v_mov_b32 v21, s{sT1}")
a(f"ds_write_b32 v{vCA}, v21 offset:{C_MODE}")
lab("L_a_nomode")
assert NINIT < 8
stamp(5)
a("s_barrier")
a("s_setprio 1")
a(f"ds_read_b128 {vr(vQ,4)}, v{vAQ}")
a(f"v_add_u32 v{vAQ}, 1024, v{vAQ}")
for tp in range(NB, NINIT): kvload(tp)
a(f"s_waitcnt vmcnt({6*(NINIT-1)+4}) lgkmcnt(0)")
stamp(6)
cstamp(10)

K_ = lambda t: KV + 12 * t
V1 = lambda t: KV + 12 * t + 4
V2 = lambda t: KV + 12 * t + 8
def ex(X, i): a(f"v_exp_f32 v{X+i}, v{X+i}")
def exs(X, lo, hi):
    for i in range(lo, hi): ex(X, i)
def smf(v, p): a(f"v_smfmac_f32_32x32x32_bf16 {vr(vO,16)}, {vr(v,4)}, {vr(p,8)}, v{vIDX}")
def qk(d, t): mfma32(d, K_(t), vQ, "0")
def zeroO(): a(f"v_mfma_f32_32x32x8_bf16 {vr(vO,16)}, {vr(vZ,2)}, {vr(vZ,2)}, 0")
def dump():
    a(f"ds_write_b128 v{vAD}, {vr(vO,4)}")
    a(f"ds_write_b128 v{vAD}, {vr(vO+4,4)} offset:1024")
    a(f"ds_write_b32 v{vAS}, v{vO+8}")
    a(f"ds_write_b32 v{vPG}, v{vAS}")

KVS = int(OPT.get('kvs', 2))
QPF = int(OPT.get('qpf', 0))
PQ, PS1 = [int(x) for x in OPT.get('pos', '7,12').split(',')]
assert not QPF
UN2 = int(OPT.get("un2", 0))
def dump2(off):
    a(f"ds_write_b128 v{vAD}, {vr(vO,4)}" + (f" offset:{off}" if off else ""))
    a(f"ds_write_b128 v{vAD}, {vr(vO+4,4)} offset:{1024+off}")
    a(f"ds_write_b32 v{vAS}, v{vO+8}")
    a(f"ds_write_b32 v{vPG}, v{vAS}")
def tiles_1_15(first):
    issued = [NINIT + 1 if first else 8]
    def preqk(tn):
        if first and tn % 2 == 0 and tn < 16:
            a(f"s_waitcnt vmcnt({6*(min(issued[0],8) - 1 - tn//2)})")
    def more(t):
        if first and t % KVS == 0 and issued[0] < 8:
            kvload(issued[0]); issued[0] += 1
            if issued[0] in (A4POS, ABPOS): signal(vCA, vONEA, C_A4)
    for t in range(1, 16):
        X, Y = (S0, S1) if t % 2 == 0 else (S1, S0)
        exs(X, 0, 2); smf(V2(t - 1), Y + 8); exs(X, 2, PQ)
        if t == 15:
            a("s_waitcnt lgkmcnt(0)")
            if DBG == "steps":
                a(f"s_sub_u32 m0, 7, s{sSTEP}")
                a("s_nop 0")
                a(f"s_movreld_b32 s81, s{sST}")
            qk(Y, 0)
        else:
            preqk(t + 1)
            qk(Y, t + 1)
        if t == 14 and DBG == "steps": a(f"s_memtime s[{sST}:{sST+1}]")
        if t == 14:
            a(f"ds_read_b128 {vr(vQ,4)}, v{vAQ}")
            a(f"v_add_u32 v{vAQ}, 1024, v{vAQ}")
        exs(X, PQ, PS1); smf(V1(t), X); more(t); exs(X, PS1, 16)

qk(S0, 0)
zeroO()
a(f"s_mov_b32 s{sSTEP}, 7")
kvload(NINIT)
if NINIT + 1 in (A4POS, ABPOS): signal(vCA, vONEA, C_A4)
exs(S0, 0, 4); qk(S1, 1); exs(S0, 4, 12)
a(f"s_waitcnt vmcnt({6*NINIT})")
smf(V1(0), S0); exs(S0, 12, 16)
tiles_1_15(True)
a(f"s_mov_b32 s{sSTEP}, 6")
a("s_nop 0")
lines.append(".p2align 6")
lab("L_a_loop")
cm("tile 0: finish the previous q-tile (6 exps = 48+ cycles cover the accumulator latency), restart the accumulator")
X, Y = S0, S1
smf(V2(15), Y + 8); exs(X, 0, 3); qk(Y, 1); exs(X, 3, 6)
dump()
ex(X, 6); zeroO(); exs(X, 7, 12)
a(f"v_add_u32 v{vAD}, {PSTRIDE}, v{vAD}")
a(f"v_add_u32 v{vAS}, {PSTRIDE}, v{vAS}")
smf(V1(0), X)
exs(X, 12, 16)
tiles_1_15(False)
a(f"s_sub_u32 s{sSTEP}, s{sSTEP}, 1")
a("s_cbranch_scc0 L_a_loop")

lab("L_a_fin")
smf(V2(15), S1 + 8)
a("v_lshlrev_b32 v14, 4, v0")
a(f"v_mov_b32 v{vCA}, {L_CNT}")
a(f"v_add_u32 v9, s{sT2}, v14")
a("v_and_b32 v10, 3, v0")
a("v_lshlrev_b32 v10, 2, v10")
a(f"v_add_u32 v10, {L_PROG}, v10")
a(f"s_add_u32 s{sT2}, s{sT2}, {L_PART + 8192}")
a(f"v_add_u32 v6, s{sT4}, v14")
a("v_lshlrev_b32 v16, 2, v0")
a(f"v_mov_b32 v17, s{sTAG}")
a("s_setprio 3")
dump()
a("v_lshlrev_b32 v7, 3, v0")
a(f"v_add_u32 v7, s{sT5}, v7")
a(f"s_mov_b32 s{sKIND}, 0")
stamp(7)
cstamp(11)
lab("L_a_rw")
a("ds_read_b32 v11, v10")
a(f"ds_read_b32 v8, v{vCA} offset:{C_MODE}")
a("ds_read_b128 v[52:55], v9 offset:8192")
for w in range(8):
    a(f"ds_read_b128 {vr(20+4*w,4)}, v9 offset:{1024*w}")
a("ds_read_b128 v[56:59], v6 offset:8192")
WSH = int(OPT.get("wsh", 1))
if WSH:
    a(f"ds_read_b32 v60, v{vCA} offset:{C_GH}")
    a("ds_read_b64 v[4:5], v7")
a(f"s_waitcnt lgkmcnt({11 if WSH else 9})")
a(f"v_cmp_gt_u32 vcc, s{sT2}, v11")
a("s_cbranch_vccnz L_a_rw")
a(f"v_readfirstlane_b32 s{sMODE}, v8")
a(f"s_mov_b32 s{sT1}, s{sF2}")
sum_check(52)
a(f"s_waitcnt lgkmcnt({3 if WSH else 1})")
a("s_cbranch_scc1 L_a_bad1")
reduce_math(20, 14, flag=False, bs=52)
a("v_and_b32 v15, 15, v0")
a("v_lshlrev_b32 v15, 7, v15")
a(f"s_lshl_b32 s{sT0}, s{sWV}, 2")
a(f"v_add_u32 v10, s{sT0}, v{vCA}")
AO, AW, AC = 88, 152, 48
NSH = int(OPT.get("nsh", 12)); WG0 = int(OPT.get("wg0", 15))
def awread(k):
    o = PSTRIDE * (k // 4) + 2048 * (k % 4)
    a(f"ds_read_b64_tr_b16 {vr(AW+4*k,2)}, v4 offset:{o}")
    a(f"ds_read_b64_tr_b16 {vr(AW+4*k+2,2)}, v4 offset:{o+1024}")
if WSH:
    a("s_waitcnt lgkmcnt(0)")
    a("v_cmp_gt_u32 vcc, NSYNC_B2, v60")
    a("s_cbranch_vccnz L_a_nosh")
    a(f"s_mov_b32 s{sKIND}, 1")
    for k in range(NSH): awread(k)
    lab("L_a_nosh")
a("s_waitcnt vmcnt(0)")
a("s_mov_b32 exec_hi, 0")
st2([f"buffer_store_dword v17, v16, {sr(R_WS,4)}, s{sF1} offen@"])
a("s_mov_b64 exec, -1")
lab("L_a_ok1")
stamp(8)
if not WSH: a("s_waitcnt lgkmcnt(0)")
sum_check(56)
a("s_cbranch_scc1 L_a_bad2")
lab("L_a_ok2")
cm("output projection, last 16 heads")
poll(15, f"s{sCG}", 8)
stamp(9)
for g in range(16):
    if g % 4 == 0 and g: a(f"s_add_u32 s{sT6}, s{sT6}, 4096")
    a(f"buffer_load_dwordx4 {vr(AO+4*g,4)}, v14, {sr(R_WS,4)}, s{sT6} offen offset:{1024*(g%4)} sc1")
    if g == WG0:
        a(f"s_cmp_eq_u32 s{sKIND}, 1")
        a("s_cbranch_scc1 L_a_wd")
        lab("L_a_ww")
        a(f"ds_read_b32 v11, v{vCA} offset:{C_GH}")
        a("ds_read_b64 v[4:5], v7")
        a("s_waitcnt lgkmcnt(0)")
        a("v_cmp_gt_u32 vcc, NSYNC_B2, v11")
        a("s_cbranch_vccnz L_a_ww")
        for k in range(NSH): awread(k)
        lab("L_a_wd")
YLT = int(OPT.get("ylt", 0))
if YLT == 1: signal(vCA, vONEA, C_S)
for k in range(NSH, 16): awread(k)
a(f"ds_read_b32 v11, v10 offset:{C_HA}")
for i in range(4):
    a(f"ds_read_b128 {vr(16+4*i,4)}, v6 offset:{1024*i}")
cm("epoch update by WG0 (every workgroup has read the old value long ago)")
a(f"s_lshl2_add_u32 s{sT0}, s2, s{sWV}")
a(f"s_cmp_eq_u32 s{sT0}, 0")
a("s_cbranch_scc0 L_a_noep")
setflag(8, 9, sT0)
lab("L_a_noep")
for g in range(16):
    a(f"s_waitcnt vmcnt({15-g}) lgkmcnt({min(15, 5 + 2*(15-g))})")
    mfma32(AC, AO + 4*g, AW + 4*g, "0" if g == 0 else None)
if YLT == 2: signal(vCA, vONEA, C_S)
stamp(13)
a("s_waitcnt lgkmcnt(0)")
a("v_cmp_eq_u32 vcc, 0, v11")
a("s_cbranch_vccz L_a_hok")
lab("L_a_hw")
a(f"ds_read_b32 v11, v10 offset:{C_HA}")
for i in range(4):
    a(f"ds_read_b128 {vr(16+4*i,4)}, v6 offset:{1024*i}")
a("s_waitcnt lgkmcnt(0)")
a("v_cmp_eq_u32 vcc, 0, v11")
a("s_cbranch_vccnz L_a_hw")
lab("L_a_hok")
a("s_nop 8")
stamp(14)
for j in range(8):
    a(f"v_pk_add_f32 {vr(AC+2*j,2)}, {vr(AC+2*j,2)}, {vr(16+2*j,2)}")
    for r in (2*j, 2*j + 1):
        a(f"s_add_u32 s{sT1}, s{sT3}, {4096 * (8*(r//4) + r%4)}")
        a(f"buffer_store_dword v{AC+r}, v5, {sr(R_B,4)}, s{sT1} offen{OUTFL}")
a("s_branch L_end")

sec("P")
ROLE[0] = "H"
if STAMPS:
    a("s_mov_b32 s81, 0")
    a("s_mov_b32 s92, 0")
    a("s_mov_b32 s93, 0")
srd(R_WS, P_WS, WS_SIZE)
a("v_xor_b32 v14, v12, v13")
a("v_lshlrev_b32 v14, 4, v14")
a("v_lshl_add_u32 v14, v13, 8, v14")
a(f"v_add_u32 v8, s{sT2}, v14")
for ks in range(1, 4):
    a(f"v_xor_b32 v{8+ks}, {64*ks}, v8")
a("v_lshrrev_b32 v14, 2, v13")
a("v_lshl_add_u32 v14, v12, 3, v14")
a("v_lshlrev_b32 v14, 5, v14")
a("v_and_b32 v15, 3, v0")
a("v_lshl_add_u32 v14, v15, 3, v14")
a(f"v_add_u32 v14, s{sT4}, v14")
a(f"s_lshl_b32 s{sT0}, s{sWV}, 10")
a(f"s_add_u32 s{sT0}, s{sT0}, {L_KVP}")
a(f"v_add_u32 v15, s{sT0}, v6")
a(f"s_lshl_b32 s{sT0}, s{sRB}, 2")
a(f"s_add_u32 s{sT0}, s{sT0}, s{sGRP}")
a(f"s_lshr_b32 s{sT1}, s{sT0}, 1")
a(f"s_lshl_b32 s{sT1}, s{sT1}, 1")
a(f"s_add_u32 s{sT1}, s{sT1}, s{sKIND}")
a(f"s_lshl_b32 s{sT1}, s{sT1}, 10")
a(f"s_and_b32 s{sT2}, s{sT0}, 1")
a(f"s_add_u32 s{sT3}, s{sKIND}, 8")
a(f"s_lshl_b32 s{sT2}, s{sT2}, s{sT3}")
a(f"s_add_u32 s{sT1}, s{sT1}, s{sT2}")
a(f"s_add_u32 s{sT5}, s{sT1}, {WS_KV}")
a(f"s_lshl_b32 s{sT0}, s{sT0}, 1")
a(f"s_add_u32 s{sT0}, s{sT0}, s{sKIND}")
a(f"s_lshl_b32 s{sT0}, s{sT0}, {FSH}")
a(f"s_add_u32 s{sT6}, s{sT0}, {WS_FKV}")
a(f"s_cmp_eq_u32 s{sKIND}, 0")
a(f"s_cselect_b32 s{sT0}, 9, 3")
a(f"s_cselect_b32 s{sT1}, 3, 8")
a("v_and_b32 v34, 1, v12")
a("v_lshrrev_b32 v35, 1, v12")
a("v_lshlrev_b32 v16, 4, v13")
a(f"v_lshl_add_u32 v16, v34, s{sT0}, v16")
a(f"v_lshl_add_u32 v16, v35, s{sT1}, v16")
a(f"v_mov_b32 v{vCNT}, {L_CNT}")
a(f"v_mov_b32 v{vONE}, 1")
a("s_waitcnt lgkmcnt(0)")
a(f"s_mul_i32 s{sTAG}, s{sTAG}, 1664525")
a(f"s_add_u32 s{sTAG}, s{sTAG}, 1013904223")
if EP0:
    a(f"s_cmp_eq_u32 s{sWV}, 0")
    a("s_cbranch_scc0 L_h_notag")
a(f"v_mov_b32 v36, s{sTAG}")
a(f"ds_write_b32 v{vCNT}, v36 offset:{C_TAG}")
lab("L_h_notag")
a(f"s_cmp_eq_u32 s{sKIND}, 0")
a(f"s_waitcnt vmcnt(4)")
stamp(1)
b = 128
for ks in range(4):
    a(f"ds_read_b128 {vr(b+8*ks,4)}, v{8+ks}")
    a(f"ds_read_b64_tr_b16 {vr(b+8*ks+4,2)}, v14 offset:{1024*ks}")
    a(f"ds_read_b64_tr_b16 {vr(b+8*ks+6,2)}, v14 offset:{1024*ks+128}")
def kvproj(kind):
    for ks in range(4):
        a(f"s_waitcnt lgkmcnt({9 - 3*ks})")
        x, w = vr(b+8*ks, 4), vr(b+8*ks+4, 4)
        if kind == 0: x, w = w, x
        a(f"v_mfma_f32_16x16x32_bf16 v[40:43], {x}, {w}, {'0' if ks == 0 else 'v[40:43]'}")
a("s_cbranch_scc0 L_h_vproj")
kvproj(0)
a("s_branch L_h_kvdone")
lab("L_h_vproj")
kvproj(1)
lab("L_h_kvdone")
a(f"s_cmp_eq_u32 s{sWV}, 0")
a("s_cbranch_scc1 L_h_pub")
a("s_nop 5")
a("ds_write_b128 v15, v[40:43]")
a("s_waitcnt lgkmcnt(0)")
a("s_barrier")
a("s_branch L_h_common")
lab("L_h_pub")
a("s_barrier")
for i in range(1, 4):
    a(f"ds_read_b128 {vr(40+4*i,4)}, v15 offset:{1024*i}")
a("s_nop 1")
a("s_waitcnt lgkmcnt(0)")
a("v_pk_add_f32 v[40:41], v[40:41], v[44:45]")
a("v_pk_add_f32 v[42:43], v[42:43], v[46:47]")
a("v_pk_add_f32 v[48:49], v[48:49], v[52:53]")
a("v_pk_add_f32 v[50:51], v[50:51], v[54:55]")
a("v_pk_add_f32 v[40:41], v[40:41], v[48:49]")
a("v_pk_add_f32 v[42:43], v[42:43], v[50:51]")
a("v_cvt_pk_bf16_f32 v40, v40, v41")
a("v_cvt_pk_bf16_f32 v41, v42, v43")
a(f"buffer_store_dwordx2 v[40:41], v16, {sr(R_WS,4)}, s{sT5} offen sc1")
dstamp("p", 5)
a("s_branch L_h_common")
sec("HQ")
lab("L_h_common")
if "3" in SX: spx("x", 0, 15)
a(f"s_mov_b32 s{sSYNC}, 0")
a("v_and_b32 v17, 31, v0")
a("v_lshrrev_b32 v18, 5, v0")
p0, p1, p2, vDSK = 60, 61, 62, 63
cm("Q projection addresses")
QXA = list(range(48, 56))
a(f"s_lshr_b32 s{sT0}, s{sWV}, 1")
a(f"s_lshl_b32 s{sT0}, s{sT0}, 13")
a("v_xor_b32 v34, v13, v18")
a("v_lshlrev_b32 v34, 4, v34")
a("v_lshl_add_u32 v34, v17, 8, v34")
a(f"v_add_u32 v{QXA[0]}, s{sT0}, v34")
for ks in range(1, 8):
    a(f"v_xor_b32 v{QXA[ks]}, {32*ks}, v{QXA[0]}")
wtr_addr(vWT, 9, L_R1, 34)
a(f"v_lshl_add_u32 v56, v18, 9, v{vWT}")
a(f"v_add_u32 v56, {(L_WQ - L_R1) & 0xffffffff}, v56")
a(f"s_and_b32 s{sT1}, s{sWV}, 1")
a(f"s_lshl_b32 s{sT1}, s{sT1}, 12")
a(f"s_lshr_b32 s{sT2}, s{sWV}, 1")
a(f"s_lshl_b32 s{sT2}, s{sT2}, 10")
a(f"s_add_u32 s{sT1}, s{sT1}, s{sT2}")
a(f"s_add_u32 s{sT1}, s{sT1}, {L_QF}")
a(f"v_add_u32 v57, s{sT1}, v6")
a(f"v_mov_b32 v58, {f32(0.25 * LOG2E)}")
a("v_mov_b32 v59, v58")
cm("SSM offsets and addresses")
a(f"s_mov_b32 s{R_A}, s{P_BX}")
a(f"s_and_b32 s{R_A+1}, s{P_BX+1}, 0xffff")
srd(R_B, P_BRE, 512 * 1024)
srd(R_C, P_BIM, 512 * 1024)
a(f"s_mov_b32 s{sLO}, {f32(L_LO)}")
a(f"s_mov_b32 s{sHI}, {f32(L_HI)}")
a(f"s_lshl_b32 s{sT0}, s{sC}, 17")
a(f"s_lshl_b32 s{sT1}, s{sWV}, 15")
a(f"s_add_u32 s{sT3}, s{sT0}, s{sT1}")
a(f"s_lshr_b32 s{sT0}, s{sWV}, 1")
a(f"s_lshl1_add_u32 s{sYG}, s{sRB}, s{sT0}")
if YM:
    a(f"s_and_b32 s{sYY}, s{sRB}, 24")
    a(f"s_add_u32 s{sYY}, s{sYY}, s{sG}")
    a(f"s_lshl1_add_u32 s{sYY}, s{sYY}, s{sT0}")
else:
    a(f"s_mov_b32 s{sYY}, s{sYG}")
a(f"s_and_b32 s{sT0}, s{sWV}, 1")
a(f"s_lshl1_add_u32 s{sCG}, s{sGY}, s{sT0}")
a(f"s_lshl_b32 s{sT4}, s{sYY}, 15")
a(f"s_lshl_b32 s{sT2}, s{sCG}, 6")
a(f"s_add_u32 s{sT4}, s{sT4}, s{sT2}")
wo_voff(vWO, 34)
a("v_lshrrev_b32 v36, 2, v0")
a("v_and_b32 v34, 3, v36")
a("v_bfe_u32 v35, v36, 2, 1")
a("v_lshl_add_u32 v34, v35, 4, v34")
a("v_lshrrev_b32 v35, 3, v36")
a("v_lshl_add_u32 v34, v35, 2, v34")
a("v_and_b32 v37, 3, v0")
a("v_lshlrev_b32 v35, 4, v37")
a("v_lshl_add_u32 v8, v34, 10, v35")
a("v_add_u32 v9, 8192, v8")
a(f"v_mul_u32_u24 v{vRB}, {RSTR}, v17")
a(f"v_lshl_add_u32 v{vRB}, v18, 4, v{vRB}")
a(f"v_add_u32 v{vRB}, {L_R1}, v{vRB}")
a(f"s_lshl_b32 s{sT1}, s{sWV}, 11")
a(f"s_add_u32 s{sT1}, s{sT1}, {L_SCR}")
a("v_xor_b32 v34, v12, v37")
a("v_lshlrev_b32 v34, 4, v34")
a("v_lshl_add_u32 v34, v36, 6, v34")
a(f"v_add_u32 v10, s{sT1}, v34")
a("v_bfe_u32 v34, v0, 2, 2")
a("v_xor_b32 v35, v34, v18")
a("v_lshlrev_b32 v35, 4, v35")
a("v_lshl_add_u32 v35, v17, 6, v35")
a(f"v_add_u32 v11, s{sT1}, v35")
a("v_xor_b32 v12, 32, v11")
a("v_lshl_add_u32 v34, v18, 3, v34")
a("v_lshlrev_b32 v34, 6, v34")
a("v_bfe_u32 v35, v0, 4, 1")
a("v_lshl_add_u32 v34, v35, 5, v34")
a("v_lshl_add_u32 v34, v37, 3, v34")
a(f"v_add_u32 v19, s{sT1}, v34")
a("v_lshlrev_b32 v34, 6, v17")
a("v_lshl_add_u32 v34, v18, 5, v34")
a(f"v_add_u32 v16, s{sT1}, v34")
a("v_lshlrev_b32 v38, 4, v18")
a("v_lshl_add_u32 v29, v17, 10, v38")
a("v_lshlrev_b32 v14, 4, v17")
a("s_waitcnt vmcnt(1)")
a(f"s_cmp_eq_u32 s{sWV}, 0")
a("s_cbranch_scc1 L_h_pw")
a("s_waitcnt vmcnt(0)")
lab("L_h_pw")
FPOS = int(OPT.get("fpos", 1))
def kvflag():
    a("s_waitcnt vmcnt(0)")
    a(f"s_cmp_eq_u32 s{sWV}, 0")
    a("s_cbranch_scc0 L_h_nopub")
    a(f"s_getreg_b32 s{sT0}, hwreg(HW_REG_XCC_ID, 0, 4)")
    a(f"s_xor_b32 s{sT0}, s{sT0}, s{sTAG}")
    a("v_mov_b32 v34, 0")
    a(f"v_mov_b32 v35, s{sT0}")
    a("s_mov_b64 exec, 1")
    a(f"buffer_store_dword v35, v34, {sr(R_WS,4)}, s{sT6} offen sc1")
    a("s_mov_b64 exec, -1")
    stamp(2)
    lab("L_h_nopub")
if FPOS == 0: kvflag()
cm("SSM parameters")
q0, q1, q2, q3, q4 = 64, 65, 66, 67, 68
a(f"v_lshlrev_b32 v{p0}, 16, v{p0}")
a(f"v_lshlrev_b32 v{p1}, 16, v{p1}")
a(f"v_lshlrev_b32 v{p2}, 16, v{p2}")
a(f"v_mul_f32 v{p2}, {f32(LOG2E)}, v{p2}")
a(f"v_exp_f32 v{p2}, v{p2}")
a("s_nop 0")
a(f"v_cvt_pk_bf16_f32 v{p2}, v{p2}, v{p2}")
a(f"v_and_b32 v{p2}, 0xffff0000, v{p2}")
a(f"v_mul_f32 v{q0}, v{p2}, v{p0}")
a(f"v_mul_f32 v{q1}, v{p2}, v{p1}")
a(f"v_mul_f32 v{q0}, {f32(LOG2E)}, v{q0}")
a(f"v_mul_f32 v{q1}, {f32(1/(2*math.pi))}, v{q1}")
a(f"v_exp_f32 v{q0}, v{q0}")
a(f"v_rndne_f32 v{q2}, v{q1}")
a(f"v_sub_f32 v{q1}, v{q1}, v{q2}")
a(f"v_cos_f32 v{q2}, v{q1}")
a(f"v_sin_f32 v{q3}, v{q1}")
a(f"v_mul_f32 v{q4}, v{p0}, v{p0}")
a(f"v_fma_f32 v{q4}, v{p1}, v{p1}, v{q4}")
a(f"v_mul_f32 v{vL}, v{q0}, v{q2}")
a(f"v_mul_f32 v{vL+1}, v{q0}, v{q3}")
a(f"v_rcp_f32 v{q4}, v{q4}")
a(f"v_add_f32 v{q2}, -1.0, v{vL}")
a(f"v_add_f32 v{q4}, v{q4}, v{q4}")
a(f"v_mul_f32 v{q0}, v{q2}, v{p0}")
a(f"v_fma_f32 v{q0}, v{vL+1}, v{p1}, v{q0}")
a(f"v_mul_f32 v{q1}, v{vL+1}, v{p0}")
a(f"v_fma_f32 v{q1}, -v{q2}, v{p1}, v{q1}")
a(f"v_mul_f32 v{vCO}, v{q0}, v{q4}")
a(f"v_mul_f32 v{vCO+1}, v{q1}, v{q4}")
cmul(70, vL, vL); cmul(72, 70, 70); cmul(vL8, 72, 72); cmul(vL16_, vL8, vL8)
cm("skip term x*D via a diagonal B operand -> YACC")
YACC = 112
a("v_and_b32 v64, 1, v0")
a("v_lshlrev_b32 v64, 4, v64")
a(f"v_lshlrev_b32 v{vDSK}, v64, v{vDSK}")
a("v_lshrrev_b32 v64, 1, v17")
a("v_lshlrev_b32 v65, 2, v18")
a("v_sub_u32 v64, v64, v65")
for i in range(0, 8, 2):
    a(f"v_cmp_eq_u32 s[{sM}:{sM+1}], {8*(i//4) + i%4}, v64")
    a(f"v_cmp_eq_u32 vcc, {8*(i//4) + i%4 + 1}, v64")
    a("s_nop 0")
    a(f"v_cndmask_b32 v{104+i}, 0, v{vDSK}, s[{sM}:{sM+1}]")
    a(f"v_cndmask_b32 v{105+i}, 0, v{vDSK}, vcc")
if FPOS == 1: kvflag()
cm("per-lane powers: PS = L16^seg, M0 = L256^seg (if valid), M1 = M0*L128 (if valid)")
vPS, vM0, vM1, vO0, vO1 = 96, 98, 100, 102, 103
a(f"s_mov_b32 s{sM}, 0")
a(f"s_mov_b32 s{sM+1}, -1")
def powsel(dst, b1, b2, b4):
    a(f"v_cndmask_b32 v{dst}, 1.0, v{b1}, s[{sM}:{sM+1}]")
    a(f"v_cndmask_b32 v{dst+1}, 0, v{b1+1}, s[{sM}:{sM+1}]")
    for bit, b in ((0, b2), (1, b4)):
        L = uid("ps")
        a(f"s_bitcmp1_b32 s{sWV}, {bit}")
        a(f"s_cbranch_scc0 {L}")
        cmul(66, dst, b)
        a(f"v_mov_b64 {vr(dst,2)}, v[66:67]")
        lab(L)
cmul(68, vL16_, vL16_); cmul(70, 68, 68); cmul(72, 70, 70)
cmul(74, 72, 72); cmul(76, 74, 74); cmul(78, 76, 76)
powsel(vPS, vL16_, 68, 70)
powsel(vM0, 74, 76, 78)
cmul(vM1, vM0, 72)
a(f"s_lshl_b32 s{sT0}, s{sWV}, 2")
a(f"s_sub_u32 s{sT0}, s{sC}, s{sT0}")
a(f"s_sub_u32 s{sT0}, s{sT0}, 1")
a("v_lshlrev_b32 v30, 1, v18")
a(f"v_sub_u32 v{vO0}, s{sT0}, v30")
a(f"v_add_u32 v{vO1}, -1, v{vO0}")
a(f"v_mov_b32 v30, 0")
for (vo, vm) in ((vO0, vM0), (vO1, vM1)):
    a(f"v_cmp_le_i32 vcc, 0, v{vo}")
    a("s_nop 1")
    a(f"v_cndmask_b32 v{vo}, v30, v{vo}, vcc")
    a(f"v_cndmask_b32 v{vm}, 0, v{vm}, vcc")
    a(f"v_cndmask_b32 v{vm+1}, 0, v{vm+1}, vcc")
    a(f"v_lshl_add_u32 v{vo}, v{vo}, 9, v14")
if FPOS == 2: kvflag()
cm("Q projection")
ACC, QD = 32, 4
XR = 128
VM, LG = Cnt(), Cnt()
xq = [(j, h) for j in range(16) for h in range(2)]
def xb1():
    j, h = xq.pop(0)
    a(f"buffer_load_dwordx4 {vr(XR+8*j+4*h,4)}, v{8+h}, {sr(R_A,4)}, s{16+j//4} offen offset:{64*(j%4)}")
    VM.issue(("x", j))
def qs(ks): return 128 + 8 * (ks % 8)
def qread(ks):
    a(f"ds_read_b64_tr_b16 {vr(qs(ks),2)}, v56 offset:{2048*ks}")
    a(f"ds_read_b64_tr_b16 {vr(qs(ks)+2,2)}, v56 offset:{2048*ks+512}")
    a(f"ds_read_b128 {vr(qs(ks)+4,4)}, v{QXA[ks % 8]} offset:{16384*(ks//8)}")
def qm(ks): mfma32(ACC, qs(ks), qs(ks) + 4, "0" if ks == 0 else None)
DR = [int(x) for x in OPT.get("drain", "").split(",") if x]
sec("Z"); sec("HQ")
if "3" in SX: a("s_waitcnt lgkmcnt(0)")
a("s_barrier")
segs = []
k0 = 0
for k1 in DR + [32]:
    segs.append((k0, k1)); k0 = k1
for (k0, k1) in segs:
    if k0: a("s_barrier")
    for ks in range(k0, k0 + QD): qread(ks)
    for ks in range(k0, k1):
        if ks + QD < k1:
            if ks + QD in ((8, 16, 24) if B0 else (16, 24)): a("s_barrier")
            qread(ks + QD)
            a(f"s_waitcnt lgkmcnt(12)")
        else:
            a(f"s_waitcnt lgkmcnt({3*(k1-1-ks)})")
        qm(ks)
a(f"s_lshl_b32 s{sT0}, s{sWV}, 9")
a(f"s_add_u32 s{sT0}, s{sT0}, {L_ES}")
a("v_lshlrev_b32 v13, 3, v0")
a(f"v_add_u32 v13, s{sT0}, v13")
a("v_lshlrev_b32 v15, 3, v17")
a(f"v_add_u32 v15, {L_ES}, v15")
a("v_lshlrev_b32 v1, 2, v17")
a("v_lshl_add_u32 v1, v18, 14, v1")
a(f"s_lshl_b32 s{sT0}, s{sPB}, 15")
a(f"s_lshl_b32 s{sT1}, s{sWV}, 13")
a(f"s_add_u32 s{sT5}, s{sT0}, s{sT1}")
a(f"s_add_u32 s{sT6}, s{sT5}, 4096")
a(f"s_and_b32 s{sT0}, s{sRB}, 3")
a(f"s_lshl2_add_u32 s{sT1}, s{sT0}, s{sWV}")
a(f"s_lshl_b32 s{sT1}, s{sT1}, 15")
a(f"s_lshl_b32 s{sT2}, s{sG}, 7")
a(f"s_add_u32 s{sT1}, s{sT1}, s{sT2}")
a("v_lshlrev_b32 v18, 10, v17")
a(f"v_add_u32 v18, s{sT1}, v18")
if YM:
    a(f"s_lshl3_add_u32 s{sT0}, s{sGY}, s{sG}")
    a(f"s_lshl_b32 s{sT0}, s{sT0}, 13")
    a(f"s_and_b32 s{sT1}, s{sWV}, 1")
    a(f"s_lshl_b32 s{sT1}, s{sT1}, 12")
    a(f"s_add_u32 s{sT0}, s{sT0}, s{sT1}")
    a("v_lshlrev_b32 v17, 7, v17")
else:
    a(f"s_lshl2_add_u32 s{sT0}, s{sG}, s{sT0}")
    a(f"s_lshl_b32 s{sT0}, s{sT0}, 14")
    a(f"s_and_b32 s{sT1}, s{sWV}, 1")
    a(f"s_lshl_b32 s{sT1}, s{sT1}, 13")
    a(f"s_add_u32 s{sT0}, s{sT0}, s{sT1}")
    a("v_lshlrev_b32 v17, 7, v0")
a(f"v_add_u32 v17, s{sT0}, v17")
a(f"s_cmp_lt_u32 s{sWV}, 2")
a(f"s_cselect_b32 s{sPC}, s{P_CRE}, s{P_CIM}")
a(f"s_cselect_b32 s{sPC+1}, s{P_CRE+1}, s{P_CIM+1}")
a(f"s_and_b32 s{sT0}, s{sWV}, 1")
a(f"s_mul_i32 s{sT0}, s{sT0}, {32*RSTR}")
a(f"v_add_u32 v28, s{sT0}, v{vRB}")
for r in range(0, 16, 2):
    a(f"v_pk_mul_f32 {vr(ACC+r,2)}, {vr(ACC+r,2)}, v[58:59]")
for j in range(8):
    a(f"v_cvt_pk_bf16_f32 v{ACC+j}, v{ACC+2*j}, v{ACC+2*j+1}")
a(f"ds_write_b128 v57, {vr(ACC,4)}")
a(f"ds_write_b128 v57, {vr(ACC+4,4)} offset:2048")
cm("B tile: 4 k-slots of [64 rows x 256B], xor-swizzled; read addresses v112..119, dma voffset v120")
BA = 112
a("v_lshrrev_b32 v121, 4, v0")
a("v_and_b32 v122, 15, v0")
a(f"v_lshl_add_u32 v121, s{sWV}, 2, v121")
a("v_xor_b32 v123, v122, v121")
a("v_lshlrev_b32 v123, 4, v123")
a("v_lshl_add_u32 v120, v121, 10, v123")
a(f"s_lshr_b32 s{sT0}, s{sWV}, 1")
a(f"s_lshl_b32 s{sT0}, s{sT0}, 13")
a(f"s_sub_u32 s{sT0}, {L_R1}, s{sT0}")
for ks in range(8):
    a(f"v_add_u32 v{BA+ks}, s{sT0}, v{QXA[ks]}")
a(f"s_lshl_b32 s{sT5}, s{sPB}, 15")
a(f"s_lshl_b32 s{sT6}, s{sWV}, 10")
UR = OPT.get("urot", "2")
if UR == "0": a(f"s_mov_b32 s{sT0}, 0")
elif UR == "1": a(f"s_add_u32 s{sT0}, s{sC}, s{sPB}")
elif UR == "2": a(f"s_lshr_b32 s{sT0}, s2, 1")
elif UR == "3": a(f"s_mov_b32 s{sT0}, s2")
for sl in range(4):
    a(f"s_add_u32 s{sT1}, s{sT0}, {sl}")
    a(f"s_and_b32 s{sT1}, s{sT1}, 3")
    a(f"s_lshl_b32 s{sT1}, s{sT1}, 8")
    a(f"s_add_u32 s{16+sl}, s{sT3}, s{sT1}")
    a(f"s_add_u32 s{20+sl}, s{sT5}, s{sT1}")
a("s_waitcnt lgkmcnt(0)")
stamp(3)
a("s_barrier")
a("s_branch L_h2")
sec("H")
lab("L_h2")
a("s_setprio 2")
def rows_dma(tag, base=sT5, ore=0, oim=0):
    a(f"s_mul_i32 s{sT1}, s{sWV}, {8*RSTR}")
    for i in range(8):
        a(f"s_add_u32 m0, s{sT1}, {L_R1 + RSTR*i}")
        a(f"s_add_u32 s{sT2}, s{base}, {1024*i + ore}")
        dma(vL4, R_B, f"s{sT2}")
        a(f"s_add_u32 m0, s{sT1}, {L_R1 + RSTR*(32+i)}")
        a(f"s_add_u32 s{sT2}, s{base}, {1024*i + oim}")
        dma(vL4, R_C, f"s{sT2}")
    VM.issue(tag, 16)
def xw(j, h):
    if h == 0: waits(vm=VM.need(("x", j)))
    a(f"ds_write_b128 v10, {vr(XR+8*j+4*h,4)}" + (" offset:1024" if h else ""))
    LG.issue(("xw", j))
def xr(j):
    a(f"ds_read_b128 {vr(XR+8*j,4)}, v11")
    a(f"ds_read_b128 {vr(XR+8*j+4,4)}, v12")
    LG.issue(("x", j), 2)
if "4" in SX:
    spx("x", 15, 17); spx("r", 14, 2); spx("i", 14, 2)
if "5" in SX:
    spx("r", 0, 16); spx("i", 0, 16)
if "6" in SX:
    spx("x", 0, 32); spx("r", 14, 2); spx("i", 14, 2)
if "a" in SU: spf([(P_BRE, 4, 0, 4), (P_BIM, 4, 0, 4), (P_BX, 16, 14, 2)])
if "b" in SU: spf([(P_BX, 16, 6, 10)])
if "c" in SU: spf([(P_BRE, 4, 0, 4), (P_BIM, 4, 0, 4), (P_BX, 16, 0, 16)])
if "d" in SU: spf([(P_CRE, 4, 0, 4), (P_CIM, 4, 0, 4), (P_WO, 4, 0, 4)])
waitc(vCNT, C_A4, 4, 30, sleep=int(OPT.get("a4sl", 0)))
a(f"ds_read_b32 v30, v{vCNT} offset:{C_MODE}")
if EP0: a(f"ds_read_b32 v121, v{vCNT} offset:{C_TAG}")
a("s_setprio 0")
cm("U = x B^T")
XL = int(OPT.get("xl", 2))
def bdma(sl, m):
    a(f"s_add_u32 m0, s{sT6}, {L_R1 + 16384*sl + 4096*m}")
    a(f"s_add_u32 s{sT2}, s{20+sl}, {16384*(m%2)}")
    dma(120, R_B if m < 2 else R_C, f"s{sT2}")
    if sl == 0 and OPT.get("bp") == "1": pace()
    VM.issue(("B", sl))
lq = []
for it in OPT.get("uord", "B0,0,1,2,3,B1,4,5,6,7,B2,8,9,10,11,B3,12,13,14,15").split(","):
    lq += [("B", int(it[1]), m) for m in range(4)] if it[0] == "B" else [("x",), ("x",)]
if OPT.get("mix", "1") == "1":
    for sl in range(1, 4):
        i = lq.index(("B", sl, 0))
        xs, bs_ = lq[i-4:i], lq[i:i+4]
        lq[i-4:i+4] = [y for p in zip(xs, bs_) for y in p]
def ld1(n=1):
    for _ in range(n):
        if not lq: return
        it = lq.pop(0)
        if it[0] == "B": bdma(it[1], it[2])
        else: xb1()
CB = [C_H0, C_H1, C_H2, C_H3]
sigd = set()
def bsig(force=None):
    for sl in range(4):
        issued = not any(it[:2] == ("B", sl) for it in lq)
        if sl in sigd or not issued: continue
        if sl == force: waits(vm=VM.need(("B", sl)))
        if ("B", sl) not in VM.q:
            signal(vCNT, vONE, CB[sl]); LG.issue("sig"); sigd.add(sl)
ld1(int(OPT.get("u0", 12)))
bsig(0)
ld1(int(OPT.get("u1", 4)))
for j in range(XL): xw(j, 0); xw(j, 1); xr(j)
a("s_setprio 2")
a(f"v_readfirstlane_b32 s{sMODE}, v30") if False else None
waitc(vCNT, CB[0], 4, 31)
a(f"v_readfirstlane_b32 s{sMODE}, v30")
if EP0: a(f"v_readfirstlane_b32 s{sTAG}, v121")
LG.q = []
stamp(4)
UPRIO = int(OPT.get("uprio", 0)); YPRIO = int(OPT.get("yprio", 0))
a(f"s_setprio {UPRIO}")
AR, AI, BR = 32, 48, 64
def bread(k):
    s = BR + 8 * (k % 4)
    a(f"ds_read_b128 {vr(s,4)}, v{BA + k % 8} offset:{16384*(k//8)}")
    a(f"ds_read_b128 {vr(s+4,4)}, v{BA + k % 8} offset:{16384*(k//8) + 8192}")
    LG.issue(("b", k), 2)
WOL = int(OPT.get("wol", 0))
PF = [(17, sPC)] + ([] if WOL else [(18, P_WO)])
PFK = int(OPT.get("pfk", 19))
PTK = int(OPT.get("ptk", 27))
CPOS = 0
for k in range(3): bread(k)
for k in range(32):
    j = k // 2; jn = j + XL
    tr = jn < 16
    n1 = LG.need(("x", j)); n2 = LG.need(("b", k))
    waits(lg=n2 if n2 is not None else n1)
    s = BR + 8 * (k % 4)
    first = "0" if k == 0 else None
    mfma32(AR, XR + 4*k, s, first)
    if k % 8 == 2 and k < 24: bsig(k // 8 + 1)
    if k % 8 == 4 and k < 24:
        a(f"ds_read_b32 v31, v{vCNT} offset:{CB[k//8+1]}"); LG.issue("cb")
    if k % 8 == 5 and k < 24:
        waits(lg=LG.need("cb"))
        a("s_setprio 2")
        a("v_cmp_gt_u32 vcc, 4, v31")
        Lk = uid("bk")
        a(f"s_cbranch_vccz {Lk}")
        waitc(vCNT, CB[k//8+1], 4, 31)
        lab(Lk)
        a(f"s_setprio {UPRIO}")
    if k + 3 < 32: bread(k + 3)
    ld1(int(OPT.get("lpk", 1)))
    if PF and k >= PFK and k % 2 == 1:
        v, p = PF.pop(0)
        a(f"global_load_dword v{136+len(PF)}, v{v}, s[{p}:{p+1}]"); VM.issue("pf")
    if k == PTK:
        cm("local mode: make the lines this wave / its attention partner will hand over valid in L2")
        a(f"s_cmp_eq_u32 s{sMODE}, 1")
        a("s_cbranch_scc0 L_h_nopt")
        def touch(soff, n):
            for i in range(n):
                a(f"buffer_load_dwordx4 v[144:147], v{vL4}, {sr(R_WS,4)}, s{soff} offen offset:{1024*i} sc1")
        def touchf(soff):
            a("s_mov_b64 exec, 0xff")
            touch(soff, 1)
            a("s_mov_b64 exec, -1")
        if "h" in LOC:
            a(f"s_lshl2_add_u32 s{sT0}, s{sC}, s{sWV}")
            a(f"s_lshl_b32 s{sT1}, s{sT0}, 5")
            a(f"s_add_u32 s{sT1}, s{sT1}, s{sPB}")
            a(f"s_lshl_b32 s{sT1}, s{sT1}, 11")
            a(f"s_add_u32 s{sT1}, s{sT1}, {WS_H}")
            touch(sT1, 2)
            a(f"s_add_u32 s{sT1}, s{sT1}, 32768")
            touch(sT1, 2)
            a(f"s_lshl4_add_u32 s{sT0}, s{sT0}, s{sPB}")
            a(f"s_lshl_b32 s{sT0}, s{sT0}, 7")
            a(f"s_add_u32 s{sT0}, s{sT0}, {WS_FH}")
            touchf(sT0)
        for kind, off in (("o", 0), ("t", 4)):
            if kind in LOC:
                a(f"s_add_u32 s{sSTEP}, s{sWV}, {off}")
                o_offsets()
                touch(sT1, 1); touchf(sT0)
        lab("L_h_nopt")
    if k == 28:
        a(f"buffer_load_dwordx4 v[128:131], v29, {sr(R_A,4)}, s{sT4} offen")
        a(f"buffer_load_dwordx4 v[132:135], v29, {sr(R_A,4)}, s{sT4} offen offset:32")
        VM.issue("skip", 2)
    mfma32(AI, XR + 4*k, s + 4, first)
    ld1()
    if tr:
        assert not any(q[0] == jn for q in xq)
        xw(jn, k % 2)
        if k % 2: xr(jn)
    bsig()
assert len(sigd) == 4 and not lq
assert not PF
a("s_setprio 2")
srd(R_B, P_CRE, 512 * 1024)
srd(R_C, P_CIM, 512 * 1024)
srd(R_A, P_WO, 512 * 1024)
if CPOS:
    a(f"s_add_u32 s{sSYNC}, s{sSYNC}, 4")
    signal(vCNT, vONE, C_GH)
a(f"s_lshl_b32 s{sT3}, s{sGY}, 16")
a(f"s_lshl_b32 s{sT1}, s{sWV}, 13")
a(f"s_add_u32 s{sT3}, s{sT3}, s{sT1}")
a(f"s_mul_i32 s{sT1}, s{sWV}, {8*RSTR}")
def row1(n, base, ore, oim):
    i, part = n // 2, n % 2
    a(f"s_add_u32 m0, s{sT1}, {L_R1 + RSTR*(32*part+i)}")
    a(f"s_add_u32 s{sT2}, s{base}, {1024*i + (oim if part else ore)}")
    dma(vL4, R_C if part else R_B, f"s{sT2}")
def rowloop(part, goff):
    L = uid("rl")
    a(f"s_mov_b32 s{sKIND}, 0")
    lab(L)
    a(f"s_mul_i32 s{sT2}, s{sKIND}, {RSTR}")
    a(f"s_add_u32 s{sT2}, s{sT2}, s{sT1}")
    a(f"s_add_u32 m0, s{sT2}, {L_R1 + RSTR*32*part}")
    a(f"s_lshl_b32 s{sT2}, s{sKIND}, 10")
    a(f"s_add_u32 s{sT2}, s{sT2}, s{sT3}")
    if goff: a(f"s_add_u32 s{sT2}, s{sT2}, {goff}")
    dma(vL4, R_C if part else R_B, f"s{sT2}")
    if RLV >= 0: a(f"s_waitcnt vmcnt({RLV})")
    a(f"s_add_u32 s{sKIND}, s{sKIND}, 1")
    a(f"s_cmp_lt_u32 s{sKIND}, 8")
    a(f"s_cbranch_scc1 {L}")
RLV = int(OPT.get("rlv", -1))
RL = int(OPT.get("rl", 1))
CS_ = int(OPT.get("cst", 0))
def cld(n, dst, ore, oim):
    i, part = n // 2, n % 2
    a(f"s_add_u32 s{sT2}, s{sT3}, {1024*i + (oim if part else ore)}")
    a(f"buffer_load_dwordx4 {vr(dst,4)}, v{vL4}, {sr(R_C if part else R_B,4)}, s{sT2} offen")
def cwr(n, src):
    i, part = n // 2, n % 2
    a(f"ds_write_b128 v29, {vr(src,4)} offset:{RSTR*(32*part+i)}")
if CS_:
    a(f"s_add_u32 s{sT2}, s{sT1}, {L_R1}")
    a(f"v_add_u32 v29, s{sT2}, v{vL4}")
stamp(5)
cm("scale by coef into pair layout, local scan")
UP = 64
G0, G1 = 30, 8
def sc1(r): a(f"v_pk_mul_f32 {vr(UP+2*r,2)}, {vr(vCO,2)}, {vr(AR+(r&~1),2)} op_sel:[0,{r&1}] op_sel_hi:[1,{r&1}]")
def sc2(r): a(f"v_pk_fma_f32 {vr(UP+2*r,2)}, {vr(vCO,2)}, {vr(AI+(r&~1),2)}, {vr(UP+2*r,2)} op_sel:[1,{r&1},0] op_sel_hi:[0,{r&1},1] neg_lo:[1,0,0]")
def c1(dst, L, g, u): a(f"v_pk_fma_f32 {vr(dst,2)}, {vr(L,2)}, {vr(g,2)}, {vr(u,2)} op_sel:[0,0,0] op_sel_hi:[0,1,1]")
def c2(dst, L, g): a(f"v_pk_fma_f32 {vr(dst,2)}, {vr(L,2)}, {vr(g,2)}, {vr(dst,2)} op_sel:[1,1,0] op_sel_hi:[1,0,1] neg_lo:[1,0,0]")
sc1(0); sc1(1); sc1(2); sc2(0); sc2(1); sc2(2)
src = UP
CLP = int(OPT.get("clp", 1))
for r in range(1, 16):
    dst = G0 if r % 2 else G1
    if r == 8 and CPOS: waitc(vCNT, C_GH, f"s{sSYNC}", 8)
    c1(dst, vL, src, UP + 2*r)
    if r < 14: sc1(r + 2)
    if r >= 8 and CPOS: row1(2*(r-8), sT3, 32768, 0)
    c2(dst, vL, src)
    if CS_ & 1 and CLP == 0:
        cld(r, 160 + 4*r, 32768, 0)
        if r == 1: cld(0, 160, 32768, 0)
    if r < 14: sc2(r + 2)
    if r >= 8 and CPOS: row1(2*(r-8) + 1, sT3, 32768, 0)
    src = dst
a(f"ds_write_b64 v13, {vr(G0,2)}")
gsync(vCNT, vONE, 32, C_GH)
stamp(6)
ESR = 32
for s in range(8):
    a(f"ds_read_b64 {vr(ESR+2*s,2)}, v15 offset:{256*s}")
a(f"s_lshl_b32 s{sT6}, s{sPB}, 13")
a(f"s_add_u32 s{sT6}, s{sT6}, {WS_ST}")
a(f"s_lshl_b32 s{sT0}, s{sC}, 9")
a(f"s_add_u32 s{sT0}, s{sT0}, s{sT6}")
a(f"v_mov_b64 {vr(G0,2)}, 0")
a(f"s_mov_b32 s{sCNT}, {POLL_LIMIT}")
a("s_waitcnt lgkmcnt(0)")
a(f"v_mov_b64 {vr(G1,2)}, {vr(ESR,2)}")
for w in range(4):
    if w: cmul_add(G1, vL16_, G0, ESR + 4*w)
    if w < 3:
        a(f"s_cmp_eq_u32 s{sWV}, {w}")
        a("s_cbranch_scc1 L_h_segdone")
        cmul_add(G0, vL16_, G1, ESR + 4*w + 2)
cmul_add(48, vL16_, G1, ESR + 14)
a(f"v_mov_b32 v50, v49")
a(f"v_mov_b32 v49, s{sTAG}")
a(f"v_mov_b32 v51, s{sTAG}")
a("s_mov_b32 exec_hi, 0")
a(f"buffer_store_dwordx4 v[48:51], v14, {sr(R_WS,4)}, s{sT0} offen sc1")
a("s_mov_b64 exec, -1")
lab("L_h_segdone")
a(f"s_mov_b32 s{sM}, 0")
a(f"s_mov_b32 s{sM+1}, -1")
a(f"v_cndmask_b32 v{G0}, v{G0}, v{G1}, s[{sM}:{sM+1}]")
a(f"v_cndmask_b32 v{G0+1}, v{G0+1}, v{G1+1}, s[{sM}:{sM+1}]")
if not CPOS:
    if CS_ & 1:
        a("s_setprio 0")
        if CLP == 1:
            for n in range(16): cld(n, 160 + 4*n, 32768, 0)
        for n in range(16):
            if n % 2 == 0: a(f"s_waitcnt vmcnt({14 - n})")
            cwr(n, 160 + 4*n)
        a("s_setprio 2")
    elif RL:
        rowloop(0, 32768); rowloop(1, 0)
    else:
        for n in range(16): row1(n, sT3, 32768, 0); pace()
stamp(7)
cm("chunk carry: each lane gathers two predecessors' end states")
a(f"v_mov_b64 {vr(G1,2)}, 0")
a(f"s_cmp_eq_u32 s{sC}, 0")
a("s_cbranch_scc1 L_h_stskip")
lab("L_h_stpoll")
a(f"buffer_load_dwordx4 v[52:55], v{vO0}, {sr(R_WS,4)}, s{sT6} offen sc1")
a(f"buffer_load_dwordx4 v[56:59], v{vO1}, {sr(R_WS,4)}, s{sT6} offen sc1")
a("s_waitcnt vmcnt(0)")
a(f"v_cmp_ne_u32 vcc, s{sTAG}, v53")
a(f"v_cmp_ne_u32 s[{sM}:{sM+1}], s{sTAG}, v55")
a(f"s_or_b64 s[{sM}:{sM+1}], s[{sM}:{sM+1}], vcc")
a(f"v_cmp_ne_u32 vcc, s{sTAG}, v57")
a(f"s_or_b64 s[{sM}:{sM+1}], s[{sM}:{sM+1}], vcc")
a(f"v_cmp_ne_u32 vcc, s{sTAG}, v59")
a(f"s_or_b64 s[{sM}:{sM+1}], s[{sM}:{sM+1}], vcc")
a("s_cbranch_scc0 L_h_stok")
a(f"s_sub_u32 s{sCNT}, s{sCNT}, 1")
a("s_cbranch_scc0 L_h_stpoll")
lab("L_h_stok")
a(f"v_pk_mul_f32 {vr(G1,2)}, {vr(vM0,2)}, v[52:53] op_sel:[0,0] op_sel_hi:[1,0]")
a(f"v_pk_mul_f32 v[60:61], {vr(vM1,2)}, v[56:57] op_sel:[0,0] op_sel_hi:[1,0]")
a(f"v_pk_fma_f32 {vr(G1,2)}, {vr(vM0,2)}, v[54:55], {vr(G1,2)} op_sel:[1,0,0] op_sel_hi:[0,0,1] neg_lo:[1,0,0]")
a(f"v_pk_fma_f32 v[60:61], {vr(vM1,2)}, v[58:59], v[60:61] op_sel:[1,0,0] op_sel_hi:[0,0,1] neg_lo:[1,0,0]")
a(f"v_pk_add_f32 {vr(G1,2)}, {vr(G1,2)}, v[60:61]")
lab("L_h_stskip")
a(f"ds_write_b64 v13, {vr(G1,2)} offset:{L_CS - L_ES}")
a("s_waitcnt vmcnt(0)")
mfma32(YACC, 128, 104, "0")
mfma32(YACC, 132, 108)
if WOL == 1: a(f"global_load_dword v10, v18, s[{P_WO}:{P_WO+1}]")
gsync(vCNT, vONE, 32, C_GH)
for s in range(8):
    a(f"ds_read_b64 {vr(32+2*s,2)}, v15 offset:{L_CS - L_ES + 256*s}")
a(f"s_lshl_b32 s{sT0}, s{sC}, 2")
a(f"s_add_u32 s{sT0}, s{sT0}, s{sWV}")
a(f"s_lshl_b32 s{sT4}, s{sT0}, 16")
a(f"s_add_u32 s{sT4}, s{sT4}, {WS_H}")
a(f"s_lshl_b32 s{sT1}, s{sPB}, 11")
a(f"s_add_u32 s{sT1}, s{sT1}, s{sT4}")
a(f"s_add_u32 s{sT2}, s{sT1}, 32768")
a(f"s_lshl_b32 s{sT0}, s{sT0}, 11")
a(f"s_add_u32 s{sT5}, s{sT0}, {WS_FH}")
a(f"s_lshl_b32 s{sT0}, s{sPB}, 7")
a(f"s_add_u32 s{sF1}, s{sT0}, s{sT5}")
a("s_waitcnt lgkmcnt(0)")
stamp(8)
for st in (8, 4, 2):
    for j in range(0, st, 2):
        a(f"v_pk_add_f32 {vr(32+j,2)}, {vr(32+j,2)}, {vr(32+j+st,2)}")
cmul_add(G0, vPS, 32, G0)
HB = 32
cmul_add(UP, vL, G0, UP)
for r in range(1, 16):
    cmul_add(UP + 2*r, vL, UP + 2*(r-1), UP + 2*r)
for part in range(2):
    ng = "-" if part else ""
    for j in range(8):
        a(f"v_cvt_pk_bf16_f32 v{HB+8*part+j}, {ng}v{UP+4*j+part}, {ng}v{UP+4*j+2+part}")
    a(f"ds_write_b128 v16, {vr(HB+8*part,4)}")
    a(f"ds_write_b128 v16, {vr(HB+4+8*part,4)} offset:16")
    for ks in range(2):
        d = 48 + 8*part + 4*ks
        a(f"ds_read_b64_tr_b16 {vr(d,2)}, v19 offset:{1024*ks}")
        a(f"ds_read_b64_tr_b16 {vr(d+2,2)}, v19 offset:{1024*ks+256}")
KIND[0] = "h"
a(f"v_lshlrev_b32 v24, 2, v0")
a(f"v_mov_b32 v25, s{sTAG}")
def flag_novalu(soff):
    a("s_mov_b32 exec_hi, 0")
    st2([f"buffer_store_dword v25, v24, {sr(R_WS,4)}, s{soff} offen@"])
    a("s_mov_b64 exec, -1")
a("s_waitcnt lgkmcnt(0)")
st2([f"buffer_store_dwordx4 {vr(48+8*part+4*ks,4)}, v{vL4}, {sr(R_WS,4)}, s{sT1 if part == 0 else sT2} offen offset:{1024*ks}@" for part in range(2) for ks in range(2)])
a("v_and_b32 v8, 15, v0")
a("v_lshlrev_b32 v12, 7, v8")
CF = 128
LB = int(OPT.get("lb", 1))
if LB: a("s_setprio 0")
for k in range(32):
    a(f"ds_read_b128 {vr(CF+4*k,4)}, v28 offset:{32*k}")
    if k == 13:
        a("s_waitcnt vmcnt(0)")
        flag_novalu(sF1)
a(f"s_add_u32 s{sSYNC}, s{sSYNC}, 4")
signal(vCNT, vONE, C_GH)
if LB: a("s_setprio 2")
stamp(9)
def reduce_inline(RB_, b1=None, bs=None):
    b1 = RB_ + 16 if b1 is None else b1
    bs = RB_ + 32 if bs is None else bs
    Ls, Le = uid("rs"), uid("re")
    a(f"s_mul_i32 s{sT2}, s{sSTEP}, {PSTRIDE}")
    a(f"v_add_u32 v10, s{sT2}, v{vL4}")
    a(f"s_add_u32 s{sT2}, s{sT2}, {L_PART + 8192}")
    o_offsets()
    waitc(11, 0, f"s{sT2}", 8)
    a(f"ds_read_b128 {vr(bs,4)}, v10 offset:8192")
    for w in range(4):
        d = (RB_ if w < 2 else b1) + 8*(w % 2)
        a(f"ds_read_b128 {vr(d,4)}, v10 offset:{2048*w}")
        a(f"ds_read_b128 {vr(d+4,4)}, v10 offset:{2048*w + 1024}")
    a("s_waitcnt lgkmcnt(8)")
    sum_check(bs)
    a("s_waitcnt lgkmcnt(0)")
    a(f"s_cbranch_scc1 {Ls}")
    reduce_math(RB_, vL4, flag=False, b1=b1, bs=bs)
    a(f"s_branch {Le}")
    lab(Ls)
    a(f"s_mov_b32 s{sT0}, {WS_DUMMY}")
    lab(Le)
RIL = int(OPT.get("ril", 1))
a("v_and_b32 v11, 12, v24")
a(f"v_add_u32 v11, {L_PROG}, v11")
if not RIL:
    waitc(vCNT, C_GH, f"s{sSYNC}", 8)
    a(f"s_mul_i32 s{sT1}, s{sWV}, {8*RSTR}")
    for n in range(16): row1(n, sT3, 0, 32768); pace()
else:
    cm("second half of C; the reduction of q-tile wv fills the gaps between the transfers")
    a(f"s_mov_b32 s{sSTEP}, s{sWV}")
    o_offsets()
    a(f"s_mov_b32 s{sF1}, s{sT0}")
    a(f"s_mov_b32 s{sF2}, s{sT1}")
    a(f"s_mul_i32 s{sT2}, s{sWV}, {PSTRIDE}")
    a(f"v_add_u32 v10, s{sT2}, v{vL4}")
    a(f"s_add_u32 s{sT0}, s{sT2}, {L_PART + 8192}")
    a(f"s_mul_i32 s{sT1}, s{sWV}, {8*RSTR}")
    if CS_ & 2:
        for n in range(12): cld(n, 48 + 4*n, 0, 32768)
    else:
        waitc(vCNT, C_GH, f"s{sSYNC}", 8)
        row1(0, sT3, 0, 32768)
    waitc(11, 0, f"s{sT0}", 8)
    if not CS_ & 2: row1(2 if RL else 1, sT3, 0, 32768)
    a("ds_read_b128 v[20:23], v10 offset:8192")
    for w in range(4):
        d = (32 if w < 2 else 96) + 8*(w % 2)
        a(f"ds_read_b128 {vr(d,4)}, v10 offset:{2048*w}")
        a(f"ds_read_b128 {vr(d+4,4)}, v10 offset:{2048*w + 1024}")
    if not CS_ & 2: row1(4 if RL else 2, sT3, 0, 32768)
    a("s_waitcnt lgkmcnt(8)")
    sum_check(20)
    a(f"s_cselect_b32 s{sF1}, {WS_DUMMY}, s{sF1}")
    a(f"s_cselect_b32 s{sF2}, {WS_DUMMY + 1024}, s{sF2}")
    a("v_rcp_f32 v22, v20")
    a("s_waitcnt lgkmcnt(0)")
    ops = [f"v_pk_add_f32 {vr(32+2*j,2)}, {vr(32+2*j,2)}, {vr(40+2*j,2)}" for j in range(4)]
    ops += [f"v_pk_add_f32 {vr(96+2*j,2)}, {vr(96+2*j,2)}, {vr(104+2*j,2)}" for j in range(4)]
    ops += [f"v_pk_add_f32 {vr(32+2*j,2)}, {vr(32+2*j,2)}, {vr(96+2*j,2)}" for j in range(4)]
    ops += [f"v_pk_mul_f32 {vr(32+2*j,2)}, {vr(32+2*j,2)}, v[22:23] op_sel_hi:[1,0]" for j in range(4)]
    ops += [f"v_cvt_pk_bf16_f32 v{40+j}, v{32+2*j}, v{33+2*j}" for j in range(4)]
    if CS_ & 2:
        waitc(vCNT, C_GH, f"s{sSYNC}", 8)
        for n in range(12):
            a(f"s_waitcnt vmcnt({11 - n if n < 4 else 15 - n if n < 5 else 16 - n})")
            cwr(n, 48 + 4*n)
            if n < 4:
                for _ in range(5): a(ops.pop(0))
            if n == 3:
                for m in range(12, 16): cld(m, 96 + 4*(m-12), 0, 32768)
            if n == 4:
                KIND[0] = "o"
                st2([f"buffer_store_dwordx4 v[40:43], v{vL4}, {sr(R_WS,4)}, s{sF2} offen@"])
        for n in range(12, 16):
            a(f"s_waitcnt vmcnt({16 - n})")
            cwr(n, 96 + 4*(n-12))
    for n in ([] if CS_ & 2 else range(6, 16, 2) if RL else range(3, 16)):
        row1(n, sT3, 0, 32768)
        if ops:
            for _ in range(5): a(ops.pop(0))
            if not ops:
                KIND[0] = "o"
                st2([f"buffer_store_dwordx4 v[40:43], v{vL4}, {sr(R_WS,4)}, s{sF2} offen@"])
        elif n < 15 and not RL: pace()
    if RL and not CS_ & 2: rowloop(1, 32768)
PACE = int(OPT.get('pace3', PACE))
a(f"v_add_u32 v13, {(L_PART - L_R1) & 0xffffffff}, v{vWT}")
a(f"s_lshl_b32 s{sT5}, s{sYY}, 11")
a(f"s_add_u32 s{sT5}, s{sT5}, {WS_FH}")
a(f"s_lshl_b32 s{sT4}, s{sYY}, 16")
a(f"s_and_b32 s{sT1}, s{sWV}, 1")
a(f"s_lshl_b32 s{sT1}, s{sT1}, 15")
a(f"s_add_u32 s{sT4}, s{sT4}, s{sT1}")
a(f"s_add_u32 s{sT4}, s{sT4}, {WS_H}")
stamp(10)
poll(12, f"s{sT5}", 8)
if RIL:
    a(f"s_add_u32 s{sSYNC}, s{sSYNC}, 4")
    signal(vCNT, vONE, C_GH)
    flag_novalu(sF1)
stamp(11)
HR, CR, NH = 48, 96, 12
WF, OF = 48, 128
def hload(k):
    if k % 4 == 0 and k: a(f"s_add_u32 s{sT4}, s{sT4}, 4096")
    a(f"buffer_load_dwordx4 {vr(HR+4*(k%NH),4)}, v{vL4}, {sr(R_WS,4)}, s{sT4} offen offset:{1024*(k%4)} sc1")
def cread(k):
    a(f"ds_read_b128 {vr(CR+4*(k%4),4)}, v28 offset:{32*k}")
def oload(k):
    if k % 4 == 0 and k: a(f"s_add_u32 s{sT6}, s{sT6}, 4096")
    a(f"buffer_load_dwordx4 {vr(OF+4*k,4)}, v{vL4}, {sr(R_WS,4)}, s{sT6} offen offset:{1024*(k%4)} sc1")
def wo_setup():
    a(f"s_and_b32 s{sT0}, s{sWV}, 1")
    a(f"s_lshl_b32 s{sT0}, s{sT0}, 18")
    a(f"s_lshr_b32 s{sT1}, s{sWV}, 1")
    a(f"s_lshl_b32 s{sT1}, s{sT1}, 14")
    a(f"s_add_u32 s{sT0}, s{sT0}, s{sT1}")
    a(f"s_lshl_b32 s{sT1}, s{sG}, 7")
    a(f"s_add_u32 s{sT0}, s{sT0}, s{sT1}")
    a(f"s_mul_i32 s{sT1}, s{sWV}, {PSTRIDE}")
def wo_one(half, n):
    q, i = n // 2, n % 2
    a(f"s_add_u32 m0, s{sT1}, {(L_R1 if half else L_PART) + 2048*q + 1024*i}")
    a(f"s_add_u32 s{sT2}, s{sT0}, {32768*half + 65536*q + 8192*i}")
    dma(vWO, R_A, f"s{sT2}")
def wread(dst, k):
    o = PSTRIDE * ((k % 16) // 4) + 2048 * (k % 4)
    ad = 13 if k < 16 else vWT
    a(f"ds_read_b64_tr_b16 {vr(dst,2)}, v{ad} offset:{o}")
    a(f"ds_read_b64_tr_b16 {vr(dst+2,2)}, v{ad} offset:{o+1024}")
HD, CD = 11, 3
RK = int(OPT.get("rk", 25))
FK = 4
VM, LG = Cnt(), Cnt()
for k in range(HD): hload(k); VM.issue(("h", k))
a(f"s_lshl_b32 s{sT5}, s{sYG}, 12")
a(f"s_add_u32 s{sT5}, s{sT5}, {WS_FO}")
a(f"s_lshl_b32 s{sT6}, s{sYG}, 15")
a(f"s_add_u32 s{sT6}, s{sT6}, {WS_O}")
if not RIL:
    a(f"s_mov_b32 s{sSTEP}, s{sWV}")
    KIND[0] = "o"
    reduce_inline(32, 96, 20)
    a(f"s_mov_b32 s{sF1}, s{sT0}")
    gsync(vCNT, vONE, 8, C_GH)
else:
    waitc(vCNT, C_GH, f"s{sSYNC}", 8)
a(f"s_setprio {YPRIO}")
for k in range(CD): cread(k); LG.issue(("c", k))
FLK = int(OPT.get("flk", 14))
YPK = int(OPT.get("ypk", 99))
oq = list(range(16))
for k in range(32):
    if k == YPK: a("s_setprio 2")
    if k == FK:
        if not RIL:
            waits(vm=VM.need(("h", HD)))
            flag_novalu(sF1); VM.issue("f")
        wo_setup()
    if k == FLK:
        a(f"buffer_load_dword v9, v12, {sr(R_WS,4)}, s{sT5} offen sc1"); VM.issue("fl")
    if k == FLK + 5:
        waits(vm=VM.need("fl"))
        a("s_setprio 2")
        a(f"v_cmp_ne_u32 vcc, s{sTAG}, v9")
        a("s_cbranch_vccz L_y_ok")
        poll(12, f"s{sT5}", 8)
        lab("L_y_ok")
        a(f"s_setprio {YPRIO}")
    if k + HD < 32: hload(k + HD); VM.issue(("h", k + HD))
    if k + CD < 32: cread(k + CD); LG.issue(("c", k + CD))
    waits(vm=VM.need(("h", k)), lg=LG.need(("c", k)))
    mfma32(YACC, HR + 4*(k % NH), CR + 4*(k % 4))
    n = k - FK - 1
    if 0 <= n < 8: wo_one(0, n); VM.issue("wo")
    if k >= FLK + 5:
        for _ in range(2 if k + HD >= 32 else 1):
            if oq: oload(oq.pop(0)); VM.issue("o")
    mfma32(32, HR + 4*(k % NH), CF + 4*k, "0" if k == 0 else None)
assert not oq
a("s_setprio 2")
a(f"s_lshl_b32 s{sT2}, s{sWV}, 12")
a(f"s_add_u32 s{sT2}, s{sT2}, {L_R1 + 40960}")
a(f"v_add_u32 v10, s{sT2}, v{vL4}")
a("v_xor_b32 v11, 4096, v10")
assert (L_R1 + 40960) % 8192 == 0
a(f"s_lshl_b32 s{sT2}, s{sWV}, 9")
a(f"s_add_u32 s{sT2}, s{sT2}, {L_CS}")
a("v_lshlrev_b32 v8, 3, v0")
a(f"v_add_u32 v8, s{sT2}, v8")
a(f"ds_write2_b32 v8, v{vWT}, v1 offset1:1")
waits(vm=VM.need("wo"))
gsync(vCNT, vONE, 8, C_GH)
stamp(12)
for i in range(8):
    wo_one(1, i)
    if i < 4: a(f"ds_write_b128 v10, {vr(32+4*i,4)} offset:{1024*i}")
    if i == 3:
        a(f"s_add_u32 s{sSYNC}, s{sSYNC}, 4")
        signal(vCNT, vONE, C_GH)
    if 4 <= i < 7: pace()
srd(R_B, P_OUT, 2048 * 4096)
a(f"s_lshl_b32 s{sT0}, s{sYY}, 17")
a(f"s_lshl_b32 s{sT1}, s{sCG}, 7")
a(f"s_add_u32 s{sT0}, s{sT0}, s{sT1}")
def store1(b, r, off=0):
    a(f"s_add_u32 s{sT1}, s{sT0}, {4096 * (8*(r//4) + r%4)}")
    a(f"buffer_store_dword v{b+r}, v1, {sr(R_B,4)}, s{sT1} offen" + (f" offset:{off}" if off else "") + YFL)
a(f"s_mul_i32 s{sT2}, s{sWV}, {PSTRIDE}")
a(f"v_add_u32 v10, s{sT2}, v{vL4}")
a(f"s_lshl_b32 s{sT2}, s{sWV}, 2")
a(f"v_add_u32 v9, s{sT2}, v{vCNT}")
waitc(vCNT, C_GH, f"s{sSYNC}", 8)
for i in range(4):
    a(f"ds_read_b128 {vr(192+4*i,4)}, v11 offset:{1024*i}")
YL = OPT.get("ylate") == "1"
def ystores():
    for j in range(8):
        a(f"v_pk_add_f32 {vr(YACC+2*j,2)}, {vr(YACC+2*j,2)}, {vr(192+2*j,2)}")
        store1(YACC, 2*j, 2048)
        store1(YACC, 2*j + 1, 2048)
if LB: a("s_setprio 0")
for k in range(16): wread(WF + 4*k, k)
if LB: a("s_setprio 2")
a(f"s_waitcnt vmcnt(0) lgkmcnt(15)")
a(f"s_add_u32 s{sSYNC}, s{sSYNC}, 4")
signal(vCNT, vONE, C_GH)
for j in range(8):
    a(f"v_pk_add_f32 {vr(YACC+2*j,2)}, {vr(YACC+2*j,2)}, {vr(192+2*j,2)}")
a(f"s_waitcnt lgkmcnt(0)")
stamp(14)
DEF = int(OPT.get("defer", 0))
if DEF:
    for k in range(16): store1(YACC, k, 2048)
    cm("the matrix pipe is free once the attention wave of this SIMD has finished")
    a(f"v_add_u32 v11, {(L_PROG - L_CNT) & 0xffffffff}, v9")
    waitc(11, 0, L_PART + 8192 + 7*PSTRIDE, 8)
else:
    a(f"s_setprio {OPT.get('oprio', 0)}")
for k in range(16):
    mfma32(32, OF + 4*k, WF + 4*k, "0" if k == 0 else None)
    if not YLT and not DEF: store1(YACC, k, 2048)
nsync = sum(1 for n in ("HQ", "H") for x in SECS[n] if x.strip() == f"s_add_u32 s{sSYNC}, s{sSYNC}, 4")
SECS["P"].insert(0, f".set NSYNC_B2, {4*nsync}")
a("s_setprio 2")
waitc(vCNT, C_GH, f"s{sSYNC}", 8)
a("s_nop 6")
for i in range(4):
    a(f"ds_write_b128 v10, {vr(32+4*i,4)} offset:{1024*i}")
a(f"ds_write_b32 v9, v{vONE} offset:{C_HA}")
stamp(13)
if YLT:
    waitc(vCNT, C_S, 4, 8, sleep=1)
    for k in range(16): store1(YACC, k, 2048)
a("s_branch L_end")

lab("L_slow")
a("s_waitcnt lgkmcnt(0)")
a(f"s_mov_b32 s{sKIND}, 0")
a(f"s_lshl_b32 s{sT0}, s{sSTEP}, 10")
a(f"s_add_u32 s{sT0}, s{sT0}, {L_QF}")
a(f"v_add_u32 v4, s{sT0}, v14")
a(f"ds_read_b128 {vr(vQ,4)}, v4")
a("v_mov_b32 v4, 0xff800000")
a("v_lshrrev_b32 v16, 5, v0")
a("v_and_b32 v17, 15, v0")
a("v_lshl_add_u32 v15, v16, 4, v17")
a("v_lshlrev_b32 v15, 4, v15")
a(f"s_mov_b32 s{sM}, 0xffff")
a(f"s_mov_b32 s{sM+1}, 0xffff")
a(f"s_mov_b32 s{sT0}, {WS_KV}")
lab("L_slow_p1")
kvload(0)
a("s_waitcnt vmcnt(0) lgkmcnt(0)")
for t in range(2):
    qk(S0, t)
    a("s_nop 11")
    for i in range(8):
        a(f"v_max3_f32 v4, v{S0+2*i}, v{S0+2*i+1}, v4")
a(f"s_cmp_lt_u32 s{sT0}, {WS_KV + 131072}")
a("s_cbranch_scc1 L_slow_p1")
a("v_mov_b32 v5, v4")
a("s_nop 1")
a("v_permlane32_swap_b32 v4, v5")
a("v_max_f32 v4, v4, v5")
for i in range(16):
    a(f"v_sub_f32 v{S1+i}, 0, v4")
zeroO()
a(f"s_mov_b32 s{sT0}, {WS_KV}")
lab("L_slow_p2")
kvload(0)
a("s_waitcnt vmcnt(0)")
for t in range(2):
    mfma32(S0, K_(t), vQ, vr(S1, 16))
    a("s_nop 11")
    exs(S0, 0, 16)
    a("s_nop 1")
    smf(V1(t), S0)
    smf(V2(t), S0 + 8)
a(f"s_cmp_lt_u32 s{sT0}, {WS_KV + 131072}")
a("s_cbranch_scc1 L_slow_p2")
o_offsets()
a(f"v_rcp_f32 v4, v{vO+8}")
a("s_nop 0")
for j in range(4):
    a(f"v_pk_mul_f32 {vr(vO+2*j,2)}, {vr(vO+2*j,2)}, v[4:5] op_sel_hi:[1,0]")
for j in range(4):
    a(f"v_cvt_pk_bf16_f32 v{16+j}, v{vO+2*j}, v{vO+2*j+1}")
a(f"buffer_store_dwordx4 v[16:19], v14, {sr(R_WS,4)}, s{sT1} offen sc1")
a("s_waitcnt vmcnt(0)")
setflag(16, 17, sT0)
a("v_and_b32 v15, 15, v0")
a("v_lshlrev_b32 v15, 7, v15")
a("v_lshlrev_b32 v7, 3, v0")
a(f"v_add_u32 v7, s{sT5}, v7")
a(f"s_lshl_b32 s{sT0}, s{sWV}, 2")
a(f"v_add_u32 v10, s{sT0}, v{vCA}")
a(f"s_cmp_lt_u32 s{sSTEP}, 4")
a("s_cbranch_scc1 L_a_ok2")
a("ds_read_b128 v[56:59], v6 offset:8192")
a("s_waitcnt lgkmcnt(0)")
a("s_branch L_a_ok1")
lab("L_a_bad1")
a("s_waitcnt lgkmcnt(0)")
a(f"s_sub_u32 s{sSTEP}, 7, s{sWV}")
a("s_branch L_slow")
lab("L_a_bad2")
a(f"s_mov_b32 s{sSTEP}, s{sWV}")
a("s_branch L_slow")

lab("L_end")
ROLE[0] = "E"
if PROBE:
    a("s_waitcnt vmcnt(0)")
    stamp(15)
    a(f"s_cmp_ge_u32 s{sW}, 4")
    a(f"s_cbranch_scc{0 if PROBE[0] == 'A' else 1} L_exit")
    a(f"s_cmp_eq_u32 s{80+int(PROBE[1])}, 0")
    a("s_cbranch_scc1 L_exit")
    a(f"s_sub_u32 s{sT0}, s{80+int(PROBE[1])}, s{80+int(PROBE[2])}")
    if OPT.get("pmode"):
        a(f"s_cmp_eq_u32 s{sMODE}, 1")
        a(f"s_cselect_b32 s{sT0}, 0, 1000")
    a(f"s_min_u32 s{sT0}, s{sT0}, 10000")
    a(f"s_lshl_b32 s{sT0}, s{sT0}, 1")
    a(f"s_memrealtime s[{sST}:{sST+1}]")
    a("s_waitcnt lgkmcnt(0)")
    a(f"s_mov_b32 s{sT1}, s{sST}")
    lab("L_probe")
    a(f"s_memrealtime s[{sST}:{sST+1}]")
    a("s_waitcnt lgkmcnt(0)")
    a(f"s_sub_u32 s{sT2}, s{sST}, s{sT1}")
    a(f"s_cmp_lt_u32 s{sT2}, s{sT0}")
    a("s_cbranch_scc1 L_probe")
elif STAMPS:
    a("s_waitcnt vmcnt(0)")
    stamp(15)
    a(f"s_lshl_b32 s{sT0}, s2, 3")
    a(f"s_xor_b32 s{sT1}, s{sW}, 4")
    a(f"s_add_u32 s{sT0}, s{sT0}, s{sT1}")
    a(f"s_lshl_b32 s{sT0}, s{sT0}, 6")
    a(f"s_add_u32 s{sT0}, s{sT0}, {WS_STAMP}")
    for i in range(16): a(f"v_mov_b32 v{16+i}, s{80+i}")
    a("v_mov_b32 v0, 0")
    a("s_mov_b64 exec, 1")
    for i in range(4):
        a(f"buffer_store_dwordx4 {vr(16+4*i,4)}, v0, {sr(R_WS,4)}, s{sT0} offen offset:{16*i}")
lab("L_exit")
a("s_endpgm")

DOC = """; ---------------------------------------------------------------------------------------------
; (tag = lcg(word 0 of d_ws), written back at the end).  Stores are device scope (sc1); only the last
; ---------------------------------------------------------------------------------------------
"""
hdr = open("cdna_kernels/" + NAME + ".s.ref").read().split("; Override launch")[0]
src = hdr + f"; @launch grid=(256,1,1) block=(512,1,1) lds={LDS_BYTES}\n" + f""".amdgcn_target "amdgcn-amd-amdhsa--gfx950"
{DOC}.text
.globl {NAME}_kernel
.p2align 8
.type {NAME}_kernel,@function
{NAME}_kernel:
""" + "\n".join(x for n in ("P", "AL", "HQ", "Z", "A", "H") for x in SECS[n]) + f"""
.section .rodata,"a"
.p2align 6
.amdhsa_kernel {NAME}_kernel
  .amdhsa_next_free_vgpr 256
  .amdhsa_next_free_sgpr 102
  .amdhsa_accum_offset 256
  .amdhsa_group_segment_fixed_size 0
  .amdhsa_kernarg_size 136
  .amdhsa_user_sgpr_count 2
  .amdhsa_user_sgpr_kernarg_segment_ptr 1
  .amdhsa_system_sgpr_workgroup_id_x 1
.end_amdhsa_kernel
"""
open(OUT, "w").write(src)
```
